```python
import torch

def _softmax(x, axis=-1):
    return torch.softmax(x, dim=axis)
def _gelu(x):
    return torch.nn.functional.gelu(x, approximate="tanh")
def _silu(x):
    return torch.nn.functional.silu(x)
def _sigmoid(x):
    return torch.sigmoid(x)
def _layernorm(x, axis=-1, eps=1e-5):
    m = x.mean(dim=axis, keepdim=True)
    v = x.var(dim=axis, keepdim=True, unbiased=False)
    return (x - m) / torch.sqrt(v + eps)
def _scatter_add(tgt, idx, src, axis=0):
    return tgt.clone().index_add_(axis, idx, src)
def _segment_sum(src, seg, n):
    out = torch.zeros((n,) + src.shape[1:], dtype=src.dtype)
    return out.index_add_(0, seg, src)
def _pad(x, pw):
    flat = tuple(v for pair in reversed(pw) for v in pair)
    return torch.nn.functional.pad(x, flat)

kernel_name = 'gated_mix__linear_kernel_hedgehog__softmax_full_mha__prompt'

def setup_inputs():

    _w = (lambda a: (lambda t: t.to(torch.bfloat16) if t.is_floating_point() else t)(torch.as_tensor(a)))
    def _A_setup():
        B, S, D, H = 1, 2048, 1024, 32
        Dh = D // H
        return {
            "x": _w((lambda *s: torch.randn(*s, dtype=torch.bfloat16) * 0.05)(B, S, D)),
            "wqkv": _w((lambda *s: torch.randn(*s, dtype=torch.bfloat16) * 3.2)(D, 3 * D)),
            "w_phi": _w((lambda *s: torch.randn(*s, dtype=torch.bfloat16) * 3.2)(H, Dh, Dh) * (Dh ** -0.5)),
            "wo": _w((lambda *s: torch.randn(*s, dtype=torch.bfloat16) * 1.6)(D, D)),
        }
    _A_in = _A_setup()

    def _B_setup():
        B, S, D = 1, 2048, 1024
        return {
            "x": _w((lambda *s: torch.randn(*s, dtype=torch.bfloat16) * 0.05)(B, S, D)),
            "wqkv": _w((lambda *s: torch.randn(*s, dtype=torch.bfloat16) * 3.2)(D, 3 * D)),
            "wo": _w((lambda *s: torch.randn(*s, dtype=torch.bfloat16) * 0.1)(D, D)),
        }
    _B_in = _B_setup()

    return {
        "A_x": _A_in["x"],
        "A_wqkv": _A_in["wqkv"],
        "A_w_phi": _A_in["w_phi"],
        "A_wo": _A_in["wo"],
        "B_x": _B_in["x"],
        "B_wqkv": _B_in["wqkv"],
        "B_wo": _B_in["wo"],
        "gate_w": _w((lambda *s: torch.randn(*s, dtype=torch.bfloat16) * 0.4)(1024) * 16.0),
    }

def reference(A_x, A_wqkv, A_w_phi, A_wo, B_x, B_wqkv, B_wo, gate_w):
    def _A_ref(x, wqkv, w_phi, wo):
        B, S, D = x.shape
        H = 32; Dh = D // H
        qkv = (lambda x, *d: x.permute(*d))((x @ wqkv).reshape(B, S, 3, H, Dh), 2, 0, 3, 1, 4)
        q, k, v = qkv[0], qkv[1], qkv[2]
        pq = torch.einsum("bhsd,hdf->bhsf", q, w_phi)
        pk = torch.einsum("bhsd,hdf->bhsf", k, w_phi)
        phi_q = torch.concatenate([_softmax(pq, axis=-1), _softmax(-pq, axis=-1)], axis=-1)
        phi_k = torch.concatenate([_softmax(pk, axis=-1), _softmax(-pk, axis=-1)], axis=-1)
        kv = torch.einsum("bhsf,bhsd->bhfd", phi_k, v)
        z  = torch.einsum("bhsf->bhf", phi_k)
        num = torch.einsum("bhqf,bhfd->bhqd", phi_q, kv)
        den = torch.einsum("bhqf,bhf->bhq", phi_q, z)[..., None] + 1e-6
        o = num / den
        return (lambda x, *d: x.permute(*d))(o, 0, 2, 1, 3).reshape(B, S, D) @ wo

    def _B_ref(x, wqkv, wo):
        B, S, D = x.shape
        H = 32; Dh = D // H
        qkv = (lambda x, *d: x.permute(*d))((x @ wqkv).reshape(B, S, 3, H, Dh), 2, 0, 3, 1, 4)
        q, k, v = qkv[0], qkv[1], qkv[2]
        scale = Dh ** -0.5
        scores = torch.einsum("bhqd,bhkd->bhqk", q, k) * scale
        p = _softmax(scores, axis=-1)
        o = torch.einsum("bhqk,bhkd->bhqd", p, v)
        return (lambda x, *d: x.permute(*d))(o, 0, 2, 1, 3).reshape(B, S, D) @ wo

    x = A_x
    g = _sigmoid((x * gate_w).sum(-1, keepdims=True))
    a = _A_ref(x, A_wqkv, A_w_phi, A_wo)
    b = _B_ref(x, B_wqkv, B_wo)
    return g * a + (1 - g) * b
```

```python
import re

class Asm:
    def __init__(self):
        self.lines = []
        self._uid = 0
    def __call__(self, s=""):
        for l in s.split("\n"):
            l = l.strip()
            if not l: continue
            if l.endswith(":") and " " not in l:
                self.lines.append(l)
            else:
                self.lines.append("    " + l)
    def label(self, n): self.lines.append(n + ":")
    def uid(self, p="L"):
        self._uid += 1
        return f"{p}_{self._uid}"
    def text(self): return "\n".join(self.lines) + "\n"
    def nop(self, n):
        while n > 0:
            k = min(n, 16)
            self(f"s_nop {k-1}")
            n -= k

def vr(a, n=1):
    return f"v{a}" if n == 1 else f"v[{a}:{a+n-1}]"
def sr(a, n=1):
    return f"s{a}" if n == 1 else f"s[{a}:{a+n-1}]"

_reg = re.compile(r"\b([vsa])\[(\d+):(\d+)\]|\b([vsa])(\d+)\b|\b(vcc|exec|m0|scc)(_lo|_hi)?\b")
def regs_of(op):
    out = set()
    for m in _reg.finditer(op):
        if m.group(1):
            for i in range(int(m.group(2)), int(m.group(3)) + 1): out.add((m.group(1), i))
        elif m.group(4):
            out.add((m.group(4), int(m.group(5))))
        else:
            out.add((m.group(6), 0))
    return out

TRANS = ("v_exp_f32", "v_log_f32", "v_rcp_f32", "v_rsq_f32", "v_sqrt_f32", "v_sin_f32", "v_cos_f32")
class Ins:
    __slots__ = ("i", "text", "op", "defs", "uses", "kind", "ws", "passes", "srcc", "ab", "target", "store_data", "addr")
    def __init__(self, i, text):
        self.i = i; self.text = text
        t = text.split(";")[0].strip()
        parts = t.split(None, 1)
        self.op = op = parts[0]
        rest = parts[1] if len(parts) > 1 else ""
        ops = [o.strip() for o in re.split(r",(?![^\[]*\])", rest)] if rest else []
        self.defs = set(); self.uses = set(); self.kind = "other"; self.ws = 1
        self.passes = 0; self.srcc = set(); self.ab = set(); self.target = None
        self.store_data = set(); self.addr = set()
        R = regs_of
        if op == "s_nop":
            self.ws = int(ops[0]) + 1; self.kind = "nop"
        elif op.startswith("s_cbranch") or op == "s_branch":
            self.kind = "branch"; self.target = ops[0]
        elif op.startswith("v_mfma"):
            self.kind = "mfma"
            self.passes = 4 if "16x16x32" in op else 8
            self.defs = R(ops[0]); self.ab = R(ops[1]) | R(ops[2]); self.srcc = R(ops[3].split()[0])
            self.uses = self.ab | self.srcc
        elif op.startswith("v_"):
            self.kind = "valu"
            if op.startswith("v_cmpx"):
                self.defs = {("exec", 0)} | (R(ops[0]) if not ops[0].startswith("v") else set())
                self.uses = set().union(*[R(o) for o in ops[1:]])
            elif op.startswith("v_cmp"):
                self.defs = R(ops[0]); self.uses = set().union(*[R(o) for o in ops[1:]])
            elif op.startswith("v_permlane32_swap") or op.startswith("v_permlane16_swap") or op.startswith("v_swap"):
                self.defs = R(ops[0]) | R(ops[1]); self.uses = set(self.defs)
            else:
                self.defs = R(ops[0]); self.uses = set().union(*[R(o) for o in ops[1:]]) if len(ops) > 1 else set()
                if op.startswith(("v_add_co", "v_sub_co", "v_addc_co", "v_subb_co")):
                    self.defs |= R(ops[1])
                if op.startswith(("v_fmac", "v_mac", "v_dot2c", "v_pk_fmac", "v_writelane")) or "UNUSED_PRESERVE" in rest or "_d16" in op:
                    self.uses |= self.defs
                if op.startswith("v_cndmask") and len(ops) == 3: self.uses.add(("vcc", 0))
            if op.startswith(TRANS): self.kind = "trans"
            if op.startswith("v_dot"):
                self.kind = "dot"; self.ab = R(ops[1]) | R(ops[2])
        elif op.startswith(("buffer_", "global_")):
            self.kind = "vmem"
            isld = "load" in op
            lds = re.search(r"\blds\b", rest) is not None or "_lds_" in op
            if op in ("buffer_wbl2", "buffer_inv"):
                pass
            elif isld and not lds:
                self.defs = R(ops[0]); self.uses = set().union(*[R(o) for o in ops[1:]])
                if "_d16" in op: self.uses |= self.defs
            elif isld:
                self.uses = set().union(*[R(o) for o in ops]) | {("m0", 0)}
            else:
                self.uses = set().union(*[R(o) for o in ops])
                self.store_data = R(ops[0]) if op.startswith("buffer_") else R(ops[1])
                if not (op.endswith("x4") or op.endswith("x3")): self.store_data = set()
        elif op.startswith("ds_"):
            self.kind = "ds"
            if op.startswith("ds_read") or op.startswith("ds_bpermute") or op.startswith("ds_permute") or op.startswith("ds_swizzle"):
                self.defs = R(ops[0]); self.uses = set().union(*[R(o) for o in ops[1:]])
            else:
                self.uses = set().union(*[R(o) for o in ops])
        elif op.startswith("s_"):
            self.kind = "salu"
            if op in ("s_waitcnt", "s_barrier", "s_endpgm", "s_setprio", "s_sleep"):
                pass
            elif op.startswith("s_cmp") or op.startswith("s_bitcmp"):
                self.uses = set().union(*[R(o) for o in ops]); self.defs = {("scc", 0)}
            else:
                self.defs = R(ops[0]) if ops else set()
                self.uses = set().union(*[R(o) for o in ops[1:]]) if len(ops) > 1 else set()
                if op.startswith("s_and_saveexec") or op.startswith("s_or_saveexec"): self.defs.add(("exec", 0))

def check(lines, name=""):
    ins = []; labels = {}
    for l in lines:
        s = l.split(";")[0].strip()
        if not s or s.startswith("."): continue
        if s.endswith(":"):
            labels[s[:-1]] = len(ins); continue
        ins.append(Ins(len(ins), s))
    n = len(ins)
    preds = [[] for _ in range(n + 1)]
    for k, x in enumerate(ins):
        if x.kind == "branch":
            t = labels.get(x.target)
            if t is None: raise ValueError("unknown label " + x.target)
            preds[t].append(k)
            if x.op != "s_branch": preds[k + 1].append(k)
        elif x.op == "s_endpgm":
            pass
        else:
            preds[k + 1].append(k)
    errs = []
    isv = lambda S: {r for r in S if r[0] in ("v", "a")}
    iss = lambda S: {r for r in S if r[0] in ("s", "vcc")}
    def need(p, c):
        w = 0
        valu_p = p.kind in ("valu", "trans", "dot")
        valu_c = c.kind in ("valu", "trans", "dot")
        if valu_p:
            d = p.defs
            if c.kind == "mfma" and isv(d) & c.uses: w = max(w, 2)
            if c.kind == "mfma" and ("exec", 0) in d: w = max(w, 4)
            if p.kind == "trans" and valu_c and c.kind != "trans" and isv(d) & (c.uses | c.defs): w = max(w, 1)
            if p.kind == "trans" and c.kind in ("vmem", "ds") and isv(d) & c.uses: w = max(w, 1)
            if p.kind == "dot" and c.op != p.op and isv(d) & (c.uses | c.defs): w = max(w, 3)
            if p.kind == "dot" and c.op == p.op and isv(d) & c.ab:
                w = max(w, 3)
            if c.op.startswith("v_permlane") and isv(d) & c.uses: w = max(w, 2)
            if "dpp" in c.text or "row_" in c.text or "quad_perm" in c.text:
                if isv(d) & c.uses: w = max(w, 2)
                if ("exec", 0) in d: w = max(w, 5)
            if c.op.startswith(("v_readfirstlane", "v_readlane")) and isv(d) & c.uses: w = max(w, 1)
            if c.op.startswith(("v_readlane", "v_writelane")) and iss(d) & c.uses: w = max(w, 4)
            if c.kind == "vmem" and iss(d) & c.uses: w = max(w, 5)
            if valu_c and iss(d) & c.uses: w = max(w, 2)
            if ("SDWA" in p.text.upper() or "op_sel" in p.text) and not p.op.startswith("v_pk") and valu_c and isv(d) & (c.uses | c.defs): w = max(w, 1)
            if ("exec", 0) in d and c.op.startswith(("v_readlane", "v_readfirstlane", "v_writelane", "v_permlane")): w = max(w, 4)
        if p.kind == "mfma":
            tabs = {4: (6, 8, 8, 3), 8: (10, 12, 12, 7)}[p.passes]
            d = p.defs
            if c.kind == "mfma":
                if d & c.srcc:
                    if not (d == c.srcc and c.passes == p.passes): w = max(w, tabs[0])
                if d & c.ab: w = max(w, tabs[1])
                if d & c.defs and not (d & c.srcc): w = max(w, tabs[0])
            elif valu_c or c.kind in ("vmem", "ds"):
                if d & (c.uses | c.defs): w = max(w, tabs[2])
            if valu_c and p.srcc & c.defs: w = max(w, tabs[3])
        if p.store_data:
            if isv(c.defs) & p.store_data: w = max(w, 2 if valu_c else 1)
        if p.kind == "salu" and ("m0", 0) in p.defs and c.kind == "vmem" and ("m0", 0) in c.uses: w = max(w, 1)
        return w
    MAXW = 13
    for c in ins:
        if c.kind in ("nop", "branch"): continue
        stack = [(q, 0) for q in preds[c.i]]
        seen = {}
        while stack:
            k, dist = stack.pop()
            if k in seen and seen[k] <= dist: continue
            seen[k] = dist
            p = ins[k]
            w = need(p, c)
            if w > dist:
                errs.append(f"{name}: need {w} ws, have {dist}: [{p.i}] {p.text}  ->  [{c.i}] {c.text}")
            nd = dist + p.ws
            if nd < MAXW:
                for q in preds[k]: stack.append((q, nd))
    return errs
```

```python
from asmlib import *

NAME = "gated_mix__linear_kernel_hedgehog__softmax_full_mha__prompt"
MB = 1 << 20
WS_QB   = 0
WS_KVB  = 4 * MB
WS_PHIQ = 12 * MB
WS_KVP  = 20 * MB
WS_ZP   = 22 * MB
WS_G    = 22 * MB + 65536
WS_OA   = 24 * MB
WS_OB   = 28 * MB
WS_USED = 32 * MB
LOG2E = 1.4426950408889634
import struct
def f2u(x): return struct.unpack("<I", struct.pack("<f", x))[0]
def fhex(x): return hex(f2u(x))

def srd(A, d, lo, nbytes):
    A(f"s_mov_b32 s{d}, s{lo}")
    A(f"s_mov_b32 s{d+1}, s{lo+1}")
    A(f"s_mov_b32 s{d+2}, {nbytes}")
    A(f"s_mov_b32 s{d+3}, 0x00020000")

def lane_id(A, v):
    A(f"v_mbcnt_lo_u32_b32 v{v}, -1, 0")
    A(f"v_mbcnt_hi_u32_b32 v{v}, -1, v{v}")

def kernel_begin(A, kname):
    A.lines.append(f".globl {kname}")
    A.lines.append(".p2align 8")
    A.lines.append(f".type {kname},@function")
    A.label(kname)

def kernel_desc(kname, nvgpr=256, nsgpr=102, accum=None):
    if accum is None: accum = min(256, (nvgpr + 3) // 4 * 4)
    return f""".amdhsa_kernel {kname}
  .amdhsa_next_free_vgpr {nvgpr}
  .amdhsa_next_free_sgpr {nsgpr}
  .amdhsa_accum_offset {accum}
  .amdhsa_group_segment_fixed_size 0
  .amdhsa_kernarg_size 88
  .amdhsa_user_sgpr_count 2
  .amdhsa_user_sgpr_kernarg_segment_ptr 1
  .amdhsa_system_sgpr_workgroup_id_x 1
.end_amdhsa_kernel
"""

WS_PROF = 40 * MB
def stamp(A, cfg, i):
    if cfg.get("prof"):
        A(f"s_memtime s[{70+4*i}:{71+4*i}]")
        A(f"s_memrealtime s[{72+4*i}:{73+4*i}]")
        A("s_waitcnt lgkmcnt(0)")
def prof_store(A, cfg, kidx, n, wave_sgpr, ws_lo):
    if not cfg.get("prof"): return
    A(f"s_mov_b32 s92, s{ws_lo}")
    A(f"s_mov_b32 s93, s{ws_lo+1}")
    A(f"s_mov_b32 s94, {64*MB}")
    A("s_mov_b32 s95, 0x00020000")
    A("s_lshl_b32 s90, s2, 3")
    A(f"s_add_u32 s90, s90, s{wave_sgpr}")
    A("s_lshl_b32 s90, s90, 6")
    A(f"s_add_u32 s90, s90, {WS_PROF + kidx*131072}")
    A("s_mov_b64 exec, 1")
    A("v_mov_b32 v1, 0")
    for i in range(n):
        A(f"v_mov_b32 v2, s{70+4*i}")
        A(f"buffer_store_dword v2, v1, s[92:95], s90 offen offset:{8*i}")
        A(f"v_mov_b32 v3, s{72+4*i}")
        A(f"buffer_store_dword v3, v1, s[92:95], s90 offen offset:{8*i+4}")
        A("s_nop 1")
```

```python
from common import *

K1_SLOT = 28672
K1_NSLOT = 5
K1_WPHI = K1_SLOT * K1_NSLOT
K1_LDS = K1_WPHI + 4096
K1_TBUF = 4352
K1_RED = 32768

def cvt_tile(A, dst, src):
    for i in range(8):
        A(f"v_cvt_pk_bf16_f32 v{dst+i}, v{src+2*i}, v{src+2*i+1}")

def gen_k1(A, cfg):
    K = "k1_qkv_kernel"
    kernel_begin(A, K)
    A(f"""
    s_cmp_ge_u32 s2, 256
    s_cbranch_scc1 K1_END
    s_load_dwordx2 s[4:5], s[0:1], 0
    s_load_dwordx2 s[6:7], s[0:1], 8
    s_load_dwordx2 s[8:9], s[0:1], 40
    s_load_dwordx2 s[10:11], s[0:1], 16
    s_load_dwordx2 s[12:13], s[0:1], 56
    s_load_dwordx2 s[14:15], s[0:1], 80
    v_lshrrev_b32 v1, 6, v0
    v_and_b32 v0, 63, v0
    v_readfirstlane_b32 s40, v1
    s_and_b32 s45, s2, 7
    s_lshr_b32 s46, s2, 3
    """)
    stamp(A, cfg, 0)
    if cfg.get("k1map", "4x8") == "4x8":
        A("""
        s_and_b32 s41, s45, 1
        s_lshl_b32 s41, s41, 2
        s_lshr_b32 s47, s46, 3
        s_add_u32 s41, s41, s47          ; r = 4*(e&1) + (i>>3)
        s_lshr_b32 s42, s45, 1
        s_lshl_b32 s42, s42, 3
        s_and_b32 s47, s46, 7
        s_add_u32 s42, s42, s47          ; c = 8*(e>>1) + (i&7)
        """)
    else:
        A("""
        s_lshr_b32 s41, s46, 2           ; r = i>>2
        s_lshl_b32 s42, s45, 2
        s_and_b32 s47, s46, 3
        s_add_u32 s42, s42, s47          ; c = 4*e + (i&3)
        """)
    A("""
    s_lshr_b32 s43, s42, 1           ; p
    s_and_b32 s44, s42, 1            ; type
    s_waitcnt lgkmcnt(0)
    """)
    srd(A, 32, 14, WS_USED)
    A("""
    s_cmp_ge_u32 s40, 4
    s_cbranch_scc1 K1_LOADER
    """)
    XA, WA = 4, 20
    XB, WB = 32, 48
    ACC = 60
    acc = lambda sg, tt: ACC + (sg * 4 + tt) * 16
    A(f"""
    s_lshr_b32 s50, s40, 1           ; th
    s_and_b32 s51, s40, 1            ; hsel
    v_and_b32 v4, 31, v0
    v_lshrrev_b32 v5, 5, v0          ; hh
    v_bfe_u32 v6, v0, 2, 2           ; f = (l>>2)&3
    v_xor_b32 v7, v5, v6
    v_lshlrev_b32 v7, 4, v7
    v_lshl_add_u32 v1, v4, 6, v7
    s_lshl_b32 s47, s50, 13
    v_add_u32 v1, s47, v1            ; vxa0
    v_xor_b32 v2, 32, v1             ; vxa1
    v_lshl_add_u32 v7, v5, 3, v6
    v_lshlrev_b32 v7, 7, v7          ; *128
    v_bfe_u32 v8, v0, 4, 1           ; g&1
    v_bfe_u32 v9, v0, 1, 1
    v_lshl_add_u32 v8, v8, 1, v9     ; (g&1)*2 + ((i&3)>>1)
    s_lshl_b32 s47, s51, 2
    v_add_u32 v8, s47, v8            ; + hsel*4
    v_bfe_u32 v9, v0, 3, 1
    v_lshlrev_b32 v9, 2, v9
    v_xor_b32 v8, v8, v9             ; chunk'
    v_lshl_add_u32 v7, v8, 4, v7
    v_and_b32 v9, 1, v0
    v_lshl_add_u32 v7, v9, 3, v7
    v_add_u32 v3, 16384, v7          ; vwa
    s_mov_b32 s48, 0
    s_mov_b32 s52, {K1_SLOT}
    s_mov_b32 s53, {-(K1_NSLOT-1)*K1_SLOT & 0xffffffff}
    s_mov_b32 s54, 32
    """)
    for i in range(192):
        A(f"v_mov_b32 v{ACC+i}, 0")
    A("s_barrier")
    stamp(A, cfg, 1)

    def reads(X, W, s):
        r = []
        xa = 1 if s == 0 else 2
        for tt in range(4):
            r.append(f"ds_read_b128 v[{X+4*tt}:{X+4*tt+3}], v{xa} offset:{tt*2048}")
        for sg in range(3):
            for sec in range(2):
                r.append(f"ds_read_b64_tr_b16 v[{W+4*sg+2*sec}:{W+4*sg+2*sec+1}], v3 offset:{sg*4096 + s*2048 + sec*512}")
        return [r[4], r[5], r[0], r[1], r[2], r[3], r[6], r[7], r[8], r[9]]
    def mfmas(X, W):
        m = []
        for sg in range(3):
            for tt in range(4):
                a = acc(sg, tt)
                w = f"v[{W+4*sg}:{W+4*sg+3}]"; x = f"v[{X+4*tt}:{X+4*tt+3}]"
                if sg < 2: m.append(f"v_mfma_f32_32x32x16_bf16 v[{a}:{a+15}], {w}, {x}, v[{a}:{a+15}]")
                else:      m.append(f"v_mfma_f32_32x32x16_bf16 v[{a}:{a+15}], {x}, {w}, v[{a}:{a+15}]")
        return m
    for l in reads(XA, WA, 0): A(l)
    A.label("K1_CLOOP")
    A("s_waitcnt lgkmcnt(0)")
    m = mfmas(XA, WA); r = reads(XB, WB, 1)
    extra0 = {6: ["s_add_u32 s48, s48, 1", f"s_cmp_eq_u32 s48, {K1_NSLOT}", "s_cselect_b32 s49, s53, s52", "s_cselect_b32 s48, 0, s48"],
              7: ["v_add_u32 v1, s49, v1"], 8: ["v_add_u32 v2, s49, v2"], 9: ["v_add_u32 v3, s49, v3"]}
    for k in range(12):
        A(m[k])
        if k < 5:
            A(r[2*k]); A(r[2*k+1])
        for l in extra0.get(k, []): A(l)
    A("s_waitcnt lgkmcnt(0)")
    m = mfmas(XB, WB); r = reads(XA, WA, 0)
    for k in range(12):
        A(m[k])
        if k < 5:
            A(r[2*k]); A(r[2*k+1])
        if k == 8:
            A("s_sub_u32 s54, s54, 1"); A("s_cmp_lg_u32 s54, 0")
    A("s_barrier")
    A("s_cbranch_scc1 K1_CLOOP")
    A("s_waitcnt lgkmcnt(0)")
    stamp(A, cfg, 2)
    A.nop(12)
    A(f"""
    v_lshlrev_b32 v1, 4, v0          ; lane*16
    s_lshl_b32 s52, s43, 1
    s_add_u32 s52, s52, s51          ; h
    s_lshl_b32 s53, s41, 3
    s_lshl_b32 s47, s50, 2
    s_add_u32 s53, s53, s47
    s_lshl_b32 s54, s52, 6
    s_add_u32 s54, s54, s53          ; h*64 + tb0
    s_cmp_lg_u32 s44, 0
    s_cbranch_scc1 K1_E1T1
    s_mov_b32 s56, {fhex(32**-0.5 * LOG2E)}
    s_mov_b32 s57, s56
    """)
    for k in range(32):
        a = acc(1, 0) + 2*k
        A(f"v_pk_mul_f32 v[{a}:{a+1}], v[{a}:{a+1}], s[56:57]")
    A(f"""
    s_lshl_b32 s58, s54, 11
    s_add_u32 s58, s58, {WS_QB}
    s_mov_b32 s59, 2048
    s_branch K1_E1J
    K1_E1T1:
    s_lshl_b32 s58, s54, 12
    s_add_u32 s58, s58, {WS_KVB}
    s_mov_b32 s59, 4096
    K1_E1J:
    """)
    T1 = 4
    for tt in range(4):
        cvt_tile(A, T1 + 8*tt, acc(1, tt))
    V = acc(1, 0)
    Q = acc(1, 0) + 32
    for tt in range(4):
        A(f"buffer_store_dwordx4 v[{T1+8*tt}:{T1+8*tt+3}], v1, s[32:35], s58 offen")
        A(f"buffer_store_dwordx4 v[{T1+8*tt+4}:{T1+8*tt+7}], v1, s[32:35], s58 offen offset:1024")
        A("s_add_u32 s58, s58, s59")
    for tt in range(4):
        cvt_tile(A, V + 8*tt, acc(2, tt))
    A(f"""
    s_cmp_eq_u32 s44, 0
    s_cbranch_scc1 K1_E2J
    s_lshl_b32 s58, s54, 12
    s_add_u32 s58, s58, {WS_KVB + 2048}
    """)
    for tt in range(4):
        A(f"buffer_store_dwordx4 v[{V+8*tt}:{V+8*tt+3}], v1, s[32:35], s58 offen")
        A(f"buffer_store_dwordx4 v[{V+8*tt+4}:{V+8*tt+7}], v1, s[32:35], s58 offen offset:1024")
        A("s_add_u32 s58, s58, 4096")
    A.label("K1_E2J")
    WP = 36
    A(f"""
    v_lshrrev_b32 v5, 5, v0          ; hh
    v_bfe_u32 v6, v0, 2, 2           ; i>>2
    v_lshl_add_u32 v6, v5, 2, v6     ; 4hh + (i>>2)
    v_bfe_u32 v7, v0, 4, 1
    v_lshlrev_b32 v7, 5, v7
    v_and_b32 v8, 3, v0
    v_lshl_add_u32 v7, v8, 3, v7     ; (g&1)*32 + (i&3)*8   [v7 kept]
    v_lshl_add_u32 v2, v6, 6, v7
    s_lshl_b32 s47, s51, 11
    s_add_u32 s47, s47, {K1_WPHI}
    v_add_u32 v2, s47, v2
    """)
    for s in range(2):
        for sec in range(2):
            A(f"ds_read_b64_tr_b16 v[{WP+4*s+2*sec}:{WP+4*s+2*sec+1}], v2 offset:{(16*s+8*sec)*64}")
    A(f"""
    s_mul_i32 s47, s40, {K1_TBUF}
    v_mul_u32_u24 v25, 136, v6
    v_add_u32 v25, v25, v7
    v_add_u32 v25, s47, v25
    v_and_b32 v8, 31, v0
    v_mul_u32_u24 v24, 136, v8
    v_lshl_add_u32 v24, v5, 3, v24
    v_add_u32 v24, s47, v24
    v_bfe_u32 v8, v0, 2, 1
    v_bfe_u32 v9, v0, 4, 1
    v_cmp_eq_u32 vcc, v8, v9
    v_mov_b32 v9, 0x3f803f80
    v_mov_b32 v8, 0
    v_cndmask_b32 v20, v8, v9, vcc
    v_cndmask_b32 v21, v8, v9, vcc
    v_cndmask_b32 v22, v8, v9, vcc
    v_cndmask_b32 v23, v8, v9, vcc
    """)
    for tt in range(4):
        cvt_tile(A, Q + 8*tt, acc(0, tt))
    A("s_waitcnt lgkmcnt(0)")
    for tt in range(4):
        a = acc(0, tt)
        A(f"v_mfma_f32_32x32x16_bf16 v[{a}:{a+15}], v[{WP}:{WP+3}], v[{Q+8*tt}:{Q+8*tt+3}], 0")
    for tt in range(4):
        a = acc(0, tt)
        A(f"v_mfma_f32_32x32x16_bf16 v[{a}:{a+15}], v[{WP+4}:{WP+7}], v[{Q+8*tt+4}:{Q+8*tt+7}], v[{a}:{a+15}]")
    A(f"""
    s_mov_b32 s56, {fhex(LOG2E)}
    s_mov_b32 s57, s56
    s_lshl_b32 s58, s54, 12
    s_add_u32 s58, s58, {WS_PHIQ}
    """)
    A.nop(10)
    EP = acc(2, 0)
    PH = EP + 16
    AF = PH + 16
    KV0 = AF + 16
    KV1 = 44
    Z0, Z1, SEL = 12, 16, 20
    def kv_mfmas(tt):
        out = []
        for s in range(2):
            for fb in range(2):
                kv = KV0 if fb == 0 else KV1
                z = Z0 if fb == 0 else Z1
                af = AF + (fb*2+s)*4
                c = "0" if (tt == 0 and s == 0) else f"v[{kv}:{kv+15}]"
                cz = "0" if (tt == 0 and s == 0) else f"v[{z}:{z+3}]"
                out.append(f"v_mfma_f32_32x32x16_bf16 v[{kv}:{kv+15}], v[{af}:{af+3}], v[{V+8*tt+4*s}:{V+8*tt+4*s+3}], {c}")
                out.append(f"v_mfma_f32_16x16x32_bf16 v[{z}:{z+3}], v[{SEL}:{SEL+3}], v[{af}:{af+3}], {cz}")
        return out
    for tt in range(4):
        P = acc(0, tt)
        A(f"v_max3_f32 v4, v{P}, v{P+1}, v{P+2}")
        A(f"v_max3_f32 v5, -v{P}, -v{P+1}, -v{P+2}")
        for k in range(3, 15, 2):
            A(f"v_max3_f32 v4, v4, v{P+k}, v{P+k+1}")
            A(f"v_max3_f32 v5, v5, -v{P+k}, -v{P+k+1}")
        A(f"v_max_f32 v4, v4, v{P+15}")
        A(f"v_max_f32 v5, v5, -v{P+15}")
        A.nop(2)
        A("v_permlane32_swap_b32 v4, v5")
        A("s_nop 0")
        A("v_max_f32 v4, v4, v5")
        A("v_mov_b32 v5, v4")
        A.nop(2)
        A("v_permlane32_swap_b32 v4, v5")
        A("s_nop 0")
        A(f"v_mul_f32 v6, {fhex(-LOG2E)}, v4")
        A(f"v_mul_f32 v8, {fhex(-LOG2E)}, v5")
        for k in range(8):
            A(f"v_pk_fma_f32 v[{EP+2*k}:{EP+2*k+1}], v[{P+2*k}:{P+2*k+1}], s[56:57], v[6:7] op_sel_hi:[1,1,0]")
            A(f"v_pk_fma_f32 v[{P+2*k}:{P+2*k+1}], v[{P+2*k}:{P+2*k+1}], s[56:57], v[8:9] op_sel_hi:[1,1,0] neg_lo:[0,1,0] neg_hi:[0,1,0]")
        for k in range(16):
            A(f"v_exp_f32 v{EP+k}, v{EP+k}")
            A(f"v_exp_f32 v{P+k}, v{P+k}")
        if tt > 0:
            j = A.uid("K1_KVS")
            A("s_cmp_lg_u32 s44, 0"); A(f"s_cbranch_scc1 {j}")
            A("s_waitcnt lgkmcnt(0)")
            for l in kv_mfmas(tt-1): A(l)
            A.label(j)
        A(f"v_pk_add_f32 v[4:5], v[{EP}:{EP+1}], v[{EP+2}:{EP+3}]")
        A(f"v_pk_add_f32 v[6:7], v[{P}:{P+1}], v[{P+2}:{P+3}]")
        for k in range(2, 8):
            A(f"v_pk_add_f32 v[4:5], v[4:5], v[{EP+2*k}:{EP+2*k+1}]")
            A(f"v_pk_add_f32 v[6:7], v[6:7], v[{P+2*k}:{P+2*k+1}]")
        A("v_add_f32 v4, v4, v5")
        A("v_add_f32 v6, v6, v7")
        A.nop(2)
        A("v_permlane32_swap_b32 v4, v6")
        A("s_nop 0")
        A("v_add_f32 v4, v4, v6")
        A("v_rcp_f32 v4, v4")
        A("s_nop 0")
        A("v_mov_b32 v6, v4")
        A.nop(2)
        A("v_permlane32_swap_b32 v4, v6")
        A("s_nop 0")
        for k in range(8):
            A(f"v_pk_mul_f32 v[{EP+2*k}:{EP+2*k+1}], v[{EP+2*k}:{EP+2*k+1}], v[4:5] op_sel_hi:[1,0]")
            A(f"v_pk_mul_f32 v[{P+2*k}:{P+2*k+1}], v[{P+2*k}:{P+2*k+1}], v[6:7] op_sel_hi:[1,0]")
        cvt_tile(A, PH, EP)
        cvt_tile(A, PH + 8, P)
        j1 = A.uid("K1_T0"); j2 = A.uid("K1_TJ")
        A("s_cmp_eq_u32 s44, 0"); A(f"s_cbranch_scc1 {j1}")
        for s in range(4):
            A(f"buffer_store_dwordx4 v[{PH+4*s}:{PH+4*s+3}], v1, s[32:35], s58 offen offset:{s*1024}")
        A("s_add_u32 s58, s58, 4096")
        A(f"s_branch {j2}")
        A.label(j1)
        for sign in range(2):
            for b in range(4):
                A(f"ds_write_b64 v24, v[{PH+8*sign+2*b}:{PH+8*sign+2*b+1}] offset:{sign*64+b*16}")
        for fb in range(2):
            for s in range(2):
                for sec in range(2):
                    af = AF + (fb*2+s)*4 + 2*sec
                    A(f"ds_read_b64_tr_b16 v[{af}:{af+1}], v25 offset:{(16*s+8*sec)*136 + fb*64}")
        A.label(j2)
    A("s_cmp_lg_u32 s44, 0")
    A("s_cbranch_scc1 K1_DONE")
    A("s_waitcnt lgkmcnt(0)")
    for l in kv_mfmas(3): A(l)
    A.nop(12)
    A(f"""
    v_mov_b32 v{Z0+1}, v{Z1}
    s_mul_i32 s47, s51, 9216
    s_add_u32 s47, s47, {K1_RED}
    v_add_u32 v2, s47, v1
    v_lshlrev_b32 v3, 3, v0
    v_add_u32 v3, s47, v3
    s_cmp_eq_u32 s50, 0
    s_cbranch_scc1 K1_RED0
    """)
    for fb in range(2):
        kv = KV0 if fb == 0 else KV1
        for q in range(4):
            A(f"ds_write_b128 v2, v[{kv+4*q}:{kv+4*q+3}] offset:{fb*4096+q*1024}")
    A(f"ds_write_b64 v3, v[{Z0}:{Z0+1}] offset:8192")
    A("""
    s_waitcnt lgkmcnt(0)
    s_barrier
    s_branch K1_DONE
    K1_RED0:
    s_barrier
    """)
    R = 60
    for k in range(8):
        A(f"ds_read_b128 v[{R+4*k}:{R+4*k+3}], v2 offset:{k*1024}")
    A(f"ds_read_b64 v[{R+32}:{R+33}], v3 offset:8192")
    A(f"""
    s_lshl_b32 s47, s52, 3
    s_add_u32 s47, s47, s41          ; h*8 + r
    s_lshl_b32 s58, s47, 13
    s_add_u32 s58, s58, {WS_KVP}
    s_add_u32 s59, s58, 4096
    s_lshl_b32 s60, s47, 8
    s_add_u32 s60, s60, {WS_ZP}
    v_and_b32 v3, 31, v0
    v_lshlrev_b32 v3, 2, v3
    s_waitcnt lgkmcnt(0)
    """)
    for fb in range(2):
        kv = KV0 if fb == 0 else KV1
        for k in range(8):
            A(f"v_pk_add_f32 v[{kv+2*k}:{kv+2*k+1}], v[{kv+2*k}:{kv+2*k+1}], v[{R+16*fb+2*k}:{R+16*fb+2*k+1}]")
    A(f"v_pk_add_f32 v[{Z0}:{Z0+1}], v[{Z0}:{Z0+1}], v[{R+32}:{R+33}]")
    for fb in range(2):
        kv = KV0 if fb == 0 else KV1
        for q in range(4):
            A(f"buffer_store_dwordx4 v[{kv+4*q}:{kv+4*q+3}], v1, s[32:35], s{58+fb} offen offset:{q*1024}")
    A(f"buffer_store_dword v{Z0}, v3, s[32:35], s60 offen")
    A(f"buffer_store_dword v{Z0+1}, v3, s[32:35], s60 offen offset:128")
    A.label("K1_DONE")
    stamp(A, cfg, 3)
    if cfg.get("prof"):
        A("s_waitcnt vmcnt(0)")
        stamp(A, cfg, 4)
    prof_store(A, cfg, 0, 5, 40, 14)
    A("s_endpgm")
    A.label("K1_LOADER")
    srd(A, 16, 4, 2048*2048)
    srd(A, 20, 6, 1024*6144)
    srd(A, 24, 8, 1024*6144)
    A("""
    s_cmp_eq_u32 s44, 0
    s_cselect_b32 s28, s6, s8
    s_cselect_b32 s29, s7, s9
    """)
    A(f"s_mov_b32 s30, {1024*6144}")
    A("s_mov_b32 s31, 0x00020000")
    srd(A, 36, 10, 32*2048)
    A(f"""
    s_sub_u32 s50, s40, 4            ; w
    v_lshrrev_b32 v1, 2, v0
    v_lshrrev_b32 v2, 4, v0
    v_and_b32 v3, 3, v0
    v_xor_b32 v3, v3, v2
    v_lshlrev_b32 v3, 4, v3
    v_lshl_add_u32 v4, v1, 11, v3
    """)
    if cfg.get("fake128"):
        A("v_lshrrev_b32 v1, 3, v0")
        A("v_and_b32 v3, 7, v0")
        A("v_lshlrev_b32 v3, 4, v3")
        A("v_lshl_add_u32 v4, v1, 11, v3")
        A("s_mov_b32 s63, 0")
        A(f"s_mov_b32 s65, {(128 - 8*2048) & 0xffffffff}")
    A(f"""
    s_lshl_b32 s47, s41, 8
    s_lshl_b32 s51, s50, 6
    s_add_u32 s47, s47, s51
    s_lshl_b32 s47, s47, 11          ; (r*256 + 64w)*2048
    v_add_u32 v4, s47, v4
    v_add_u32 v5, 32768, v4
    v_add_u32 v6, 65536, v4
    v_add_u32 v7, 98304, v4
    v_lshrrev_b32 v1, 3, v0
    s_lshl_b32 s47, s50, 3
    v_add_u32 v1, s47, v1            ; krow = 8w + (l>>3)
    v_mul_u32_u24 v1, 6144, v1
    v_bfe_u32 v2, v0, 4, 1
    v_lshlrev_b32 v2, 2, v2
    v_and_b32 v3, 7, v0
    v_xor_b32 v3, v3, v2
    v_lshl_add_u32 v1, v3, 4, v1
    s_lshl_b32 s47, s43, 7           ; 128p
    s_lshl_b32 s51, s44, 11          ; type*2048
    s_add_u32 s52, s47, s51
    v_add_u32 v9, s52, v1            ; seg1
    s_sub_u32 s52, 2048, s51
    s_add_u32 s52, s52, s47
    v_add_u32 v8, s52, v1            ; seg0
    s_add_u32 s52, s47, 4096
    v_add_u32 v10, s52, v1           ; seg2
    v_lshlrev_b32 v11, 4, v0
    s_lshl_b32 s47, s43, 12
    s_lshl_b32 s51, s50, 10
    s_add_u32 s47, s47, s51
    s_add_u32 m0, s51, {K1_WPHI}
    s_lshl_b32 s55, s50, 12          ; w*4096  (x pieces)
    buffer_load_dwordx4 v11, s[36:39], s47 offen lds
    s_add_u32 s56, s51, 16384        ; 16384 + w*1024 (W pieces)
    s_mov_b32 s57, 0
    s_mov_b32 s58, 0                 ; soffset x
    s_mov_b32 s59, 0                 ; soffset W
    s_mov_b32 s60, 0                 ; block
    """)
    stamp(A, cfg, 1)
    A(f"""
    K1_LLOOP:
    s_add_u32 s61, s57, s55
    s_add_u32 s62, s57, s56
    """)
    xfl = cfg.get("xfl", "").replace("+", " "); wfl = cfg.get("wfl", "").replace("+", " ")
    if cfg.get("nodma"):
        A("s_cmp_ge_u32 s60, 5"); A("s_cbranch_scc1 K1_NODMA")
    for i in range(4):
        A(f"s_add_u32 m0, s61, {i*1024}")
        A("s_nop 0")
        A(f"buffer_load_dwordx4 v{4+i}, s[16:19], s58 offen {xfl} lds")
    for sg in range(3):
        A(f"s_add_u32 m0, s62, {sg*4096}")
        A("s_nop 0")
        A(f"buffer_load_dwordx4 v{8+sg}, s[{20+4*sg}:{23+4*sg}], s59 offen {wfl} lds")
    if cfg.get("nodma"): A.label("K1_NODMA")
    if cfg.get("samedma"):
        A("s_cmp_eq_u32 s60, 4")
        A("s_cselect_b32 s58, 0, s58")
        A("s_cselect_b32 s59, 0, s59")
        A("s_and_b32 s58, s58, 0xff")
        A("s_and_b32 s59, s59, 0x3ffff")
    if cfg.get("fake128"):
        A("s_xor_b32 s63, s63, 1")
        A("s_cmp_eq_u32 s63, 1")
        A(f"s_cselect_b32 s64, {8*2048}, s65")
        A("s_add_u32 s58, s58, s64")
    A(f"""
    s_add_u32 s58, s58, {0 if cfg.get("fake128") else 64}
    s_add_u32 s59, s59, {32*6144}
    s_add_u32 s57, s57, {K1_SLOT}
    s_cmp_eq_u32 s57, {K1_SLOT*K1_NSLOT}
    s_cselect_b32 s57, 0, s57
    s_add_u32 s60, s60, 1
    s_cmp_lt_u32 s60, 4
    s_cbranch_scc1 K1_LLOOP
    """)
    if cfg.get("prof"):
        A("s_cmp_lg_u32 s60, 4"); A("s_cbranch_scc1 K1_PSK")
        stamp(A, cfg, 2)
        A("s_waitcnt vmcnt(21)")
        stamp(A, cfg, 3)
        A("s_waitcnt vmcnt(14)")
        stamp(A, cfg, 4)
        A.label("K1_PSK")
    A(f"""
    s_waitcnt vmcnt(14)
    s_barrier
    s_cmp_lt_u32 s60, 32
    s_cbranch_scc1 K1_LLOOP
    s_waitcnt vmcnt(7)
    s_barrier
    s_waitcnt vmcnt(0)
    s_barrier
    """)
    srd(A, 36, 12, 2048)
    A(f"""
    s_lshl_b32 s47, s41, 8
    s_lshl_b32 s51, s42, 3
    s_add_u32 s47, s47, s51
    s_lshl_b32 s51, s50, 1
    s_add_u32 s47, s47, s51          ; t0
    s_lshl_b32 s51, s47, 11
    v_lshlrev_b32 v1, 5, v0
    buffer_load_dwordx4 v[32:35], v1, s[36:39], 0 offen
    buffer_load_dwordx4 v[36:39], v1, s[36:39], 0 offen offset:16
    buffer_load_dwordx4 v[16:19], v1, s[16:19], s51 offen
    buffer_load_dwordx4 v[20:23], v1, s[16:19], s51 offen offset:16
    buffer_load_dwordx4 v[24:27], v1, s[16:19], s51 offen offset:2048
    buffer_load_dwordx4 v[28:31], v1, s[16:19], s51 offen offset:2064
    s_barrier
    v_mov_b32 v40, 0
    v_mov_b32 v41, 0
    s_barrier
    s_waitcnt vmcnt(0)
    """)
    for k in range(8):
        A(f"v_dot2c_f32_bf16 v40, v{16+k}, v{32+k}")
        A(f"v_dot2c_f32_bf16 v41, v{24+k}, v{32+k}")
    A("v_lshlrev_b32 v3, 2, v0")
    A.nop(3)
    for mask in (1, 2, 4, 8, 16, 32):
        A(f"""
        v_xor_b32 v4, {mask*4}, v3
        ds_bpermute_b32 v5, v4, v40
        ds_bpermute_b32 v6, v4, v41
        s_waitcnt lgkmcnt(0)
        v_add_f32 v40, v40, v5
        v_add_f32 v41, v41, v6
        """)
    A(f"""
    v_cmp_eq_u32 vcc, 1, v0
    s_nop 1
    v_cndmask_b32 v40, v40, v41, vcc
    v_mul_f32 v40, {fhex(-LOG2E)}, v40
    v_exp_f32 v40, v40
    s_nop 0
    v_add_f32 v40, 1.0, v40
    v_rcp_f32 v40, v40
    s_lshl_b32 s47, s47, 2
    s_add_u32 s47, s47, {WS_G}
    s_mov_b64 exec, 3
    buffer_store_dword v40, v3, s[32:35], s47 offen
    """)
    prof_store(A, cfg, 0, 5, 40, 14)
    A(f"""
    K1_END:
    s_endpgm
    """)
    return K, K1_LDS
```

```python
from common import *

K2_RING = 131072
K2_KVT = K2_RING
K2_Z = K2_RING + 4096
K2_LDS = K2_Z + 256
BIAS = 48.0

def gen_k2(A, cfg):
    K = "k2_attn_kernel"
    kernel_begin(A, K)
    A(f"""
    s_cmp_ge_u32 s2, 256
    s_cbranch_scc1 K2_END
    s_load_dwordx2 s[14:15], s[0:1], 80
    v_lshrrev_b32 v1, 6, v0
    v_and_b32 v0, 63, v0
    v_readfirstlane_b32 s40, v1      ; wave
    s_and_b32 s45, s2, 7
    s_lshr_b32 s46, s2, 3
    s_lshr_b32 s47, s46, 3
    s_lshl_b32 s41, s45, 2
    s_add_u32 s41, s41, s47          ; h = 4e + (i>>3)
    s_and_b32 s42, s46, 7            ; qb
    s_lshl_b32 s43, s42, 3
    s_add_u32 s43, s43, s40
    s_lshl_b32 s44, s41, 6
    s_add_u32 s44, s44, s43          ; h*64 + tb
    v_lshlrev_b32 v3, 4, v0          ; lane*16
    s_lshl_b32 s50, s44, 11
    s_add_u32 s50, s50, {WS_QB}      ; Q offset
    s_lshl_b32 s51, s41, 18
    s_add_u32 s51, s51, {WS_KVB}
    s_lshl_b32 s52, s40, 11          ; wave*2048
    s_add_u32 s53, s51, s52
    s_mov_b32 s54, s52
    s_lshl_b32 s55, s41, 16
    s_add_u32 s55, s55, {WS_KVP}
    s_lshl_b32 s56, s40, 10
    s_add_u32 s55, s55, s56
    s_lshl_b32 s56, s41, 11
    s_add_u32 s56, s56, {WS_ZP}
    s_lshl_b32 s57, s44, 12
    s_add_u32 s57, s57, {WS_PHIQ}
    v_lshlrev_b32 v2, 2, v0          ; lane*4
    """)
    stamp(A, cfg, 0)
    A("s_waitcnt lgkmcnt(0)")
    srd(A, 32, 14, WS_USED)
    Q, K0, K1, V0, V1, SEL, NEGM, SA, SB, O, L, P = 8, 16, 20, 24, 28, 40, 48, 64, 80, 96, 112, 120
    PHQ, KVP, ZP = 128, 144, 176
    def dma_chunk():
        A("s_mov_b32 m0, s54")
        A("s_add_u32 s54, s54, 16384")
        A("buffer_load_dwordx4 v3, s[32:35], s53 offen lds")
        A("buffer_load_dwordx4 v3, s[32:35], s53 offen offset:1024 lds")
        A(f"s_and_b32 s54, s54, {K2_RING-1}")
        A("s_add_u32 s53, s53, 16384")
    A(f"buffer_load_dwordx4 v[{Q}:{Q+3}], v3, s[32:35], s50 offen")
    A(f"buffer_load_dwordx4 v[{Q+4}:{Q+7}], v3, s[32:35], s50 offen offset:1024")
    dma_chunk(); dma_chunk()
    for r in range(8):
        A(f"buffer_load_dwordx4 v[{KVP+4*r}:{KVP+4*r+3}], v3, s[32:35], s55 offen")
        A("s_add_u32 s55, s55, 8192")
    for r in range(8):
        A(f"buffer_load_dword v{ZP+r}, v2, s[32:35], s56 offen offset:{256*r}")
    for s in range(4):
        A(f"buffer_load_dwordx4 v[{PHQ+4*s}:{PHQ+4*s+3}], v3, s[32:35], s57 offen offset:{1024*s}")
    for c in range(4): dma_chunk()
    A(f"""
    v_bfe_u32 v4, v0, 2, 1
    v_bfe_u32 v5, v0, 4, 1
    v_cmp_eq_u32 vcc, v4, v5
    v_mov_b32 v5, 0x3f803f80
    v_mov_b32 v4, 0
    v_cndmask_b32 v{SEL}, v4, v5, vcc
    v_cndmask_b32 v{SEL+1}, v4, v5, vcc
    v_cndmask_b32 v{SEL+2}, v4, v5, vcc
    v_cndmask_b32 v{SEL+3}, v4, v5, vcc
    """)
    for i in range(16): A(f"v_mov_b32 v{O+i}, 0")
    for i in range(4):
        A(f"v_mov_b32 v{L+i}, 0"); A(f"v_mov_b32 v{V1+i}, 0"); A(f"v_mov_b32 v{P+4+i}, 0")
    A(f"""
    s_lshr_b32 s58, s40, 1
    s_lshl_b32 s58, s58, 10
    s_and_b32 s59, s40, 1
    s_lshl_b32 s59, s59, 3
    s_add_u32 s58, s58, s59
    s_add_u32 s58, s58, {K2_KVT}
    v_add_u32 v4, s58, v3
    v_lshlrev_b32 v5, 1, v0
    v_add_u32 v5, {K2_Z}, v5
    s_waitcnt vmcnt(12)
    """)
    for r in range(1, 8):
        A(f"v_pk_add_f32 v[{KVP}:{KVP+1}], v[{KVP}:{KVP+1}], v[{KVP+4*r}:{KVP+4*r+1}]")
        A(f"v_pk_add_f32 v[{KVP+2}:{KVP+3}], v[{KVP+2}:{KVP+3}], v[{KVP+4*r+2}:{KVP+4*r+3}]")
        A(f"v_add_f32 v{ZP}, v{ZP}, v{ZP+r}")
    A(f"""
    v_cvt_pk_bf16_f32 v6, v{KVP}, v{KVP+1}
    v_cvt_pk_bf16_f32 v7, v{KVP+2}, v{KVP+3}
    v_cvt_pk_bf16_f32 v{ZP}, v{ZP}, v{ZP}
    ds_write_b64 v4, v[6:7]
    ds_write_b16 v5, v{ZP}
    s_waitcnt vmcnt(8) lgkmcnt(0)
    s_barrier
    """)
    stamp(A, cfg, 1)
    KVT, ZR, NUM, DEN = 144, 160, 176, 192
    A(f"""
    v_add_u32 v4, {K2_KVT}, v3
    v_lshrrev_b32 v5, 5, v0
    v_lshlrev_b32 v5, 3, v5
    v_add_u32 v5, {K2_Z}, v5         ; Z + hh*8
    """)
    for s in range(4):
        A(f"ds_read_b128 v[{KVT+4*s}:{KVT+4*s+3}], v4 offset:{s*1024}")
        A(f"ds_read_b64 v[{ZR+4*s}:{ZR+4*s+1}], v5 offset:{32*s}")
        A(f"ds_read_b64 v[{ZR+4*s+2}:{ZR+4*s+3}], v5 offset:{32*s+16}")
    KP, SP = 208, 128
    for t in range(4):
        A(f"ds_read_b128 v[{KP+8*t}:{KP+8*t+3}], v3 offset:{t*4096}")
        A(f"ds_read_b128 v[{KP+8*t+4}:{KP+8*t+7}], v3 offset:{t*4096+1024}")
    A("s_waitcnt lgkmcnt(8)")
    for s in range(4):
        c = "0" if s == 0 else f"v[{NUM}:{NUM+15}]"
        A(f"v_mfma_f32_32x32x16_bf16 v[{NUM}:{NUM+15}], v[{KVT+4*s}:{KVT+4*s+3}], v[{PHQ+4*s}:{PHQ+4*s+3}], {c}")
        c = "0" if s == 0 else f"v[{DEN}:{DEN+15}]"
        A(f"v_mfma_f32_32x32x16_bf16 v[{DEN}:{DEN+15}], v[{ZR+4*s}:{ZR+4*s+3}], v[{PHQ+4*s}:{PHQ+4*s+3}], {c}")
    A(f"""
    s_lshl_b32 s58, s43, 5
    s_add_u32 s58, s58, s41          ; tb*32 + h
    s_lshl_b32 s58, s58, 11
    s_add_u32 s59, s58, {WS_OB}
    s_add_u32 s58, s58, {WS_OA}
    """)
    A.nop(8)
    A(f"v_add_f32 v4, {fhex(1e-6)}, v{DEN}")
    A("v_rcp_f32 v4, v4")
    A("s_nop 0")
    for k in range(8):
        A(f"v_pk_mul_f32 v[{NUM+2*k}:{NUM+2*k+1}], v[{NUM+2*k}:{NUM+2*k+1}], v[4:5] op_sel_hi:[1,0]")
    OA = 192
    for i in range(8):
        A(f"v_cvt_pk_bf16_f32 v{OA+i}, v{NUM+2*i}, v{NUM+2*i+1}")
    A(f"buffer_store_dwordx4 v[{OA}:{OA+3}], v3, s[32:35], s58 offen")
    A(f"buffer_store_dwordx4 v[{OA+4}:{OA+7}], v3, s[32:35], s58 offen offset:1024")
    A("s_waitcnt lgkmcnt(0)")
    for t in range(4):
        A(f"v_mfma_f32_32x32x16_bf16 v[{SP+16*t}:{SP+16*t+15}], v[{KP+8*t}:{KP+8*t+3}], v[{Q}:{Q+3}], 0")
    for t in range(4):
        A(f"v_mfma_f32_32x32x16_bf16 v[{SP+16*t}:{SP+16*t+15}], v[{KP+8*t+4}:{KP+8*t+7}], v[{Q+4}:{Q+7}], v[{SP+16*t}:{SP+16*t+15}]")
    A(f"""
    v_mov_b32 v1, v3                 ; cur
    v_add_u32 v2, 16384, v3          ; next
    """)
    A.nop(10)
    A(f"v_max3_f32 v4, v{SP}, v{SP+1}, v{SP+2}")
    A(f"v_max3_f32 v5, v{SP+3}, v{SP+4}, v{SP+5}")
    for k in range(6, 64, 4):
        if k + 3 < 64:
            A(f"v_max3_f32 v4, v4, v{SP+k}, v{SP+k+1}")
            A(f"v_max3_f32 v5, v5, v{SP+k+2}, v{SP+k+3}")
        else:
            A(f"v_max3_f32 v4, v4, v{SP+k}, v{SP+k+1}")
    A("v_max_f32 v4, v4, v5")
    A("v_mov_b32 v5, v4")
    A.nop(2)
    A("v_permlane32_swap_b32 v4, v5")
    A("s_nop 0")
    A("v_max_f32 v4, v4, v5")
    A(f"v_add_f32 v4, {fhex(BIAS)}, v4")
    for i in range(16):
        A(f"v_sub_f32 v{NEGM+i}, 0, v4")
    A("s_nop 1")
    A(f"v_mfma_f32_32x32x16_bf16 v[{SA}:{SA+15}], v[{KP}:{KP+3}], v[{Q}:{Q+3}], v[{NEGM}:{NEGM+15}]")
    A(f"v_mfma_f32_32x32x16_bf16 v[{SA}:{SA+15}], v[{KP+4}:{KP+7}], v[{Q+4}:{Q+7}], v[{SA}:{SA+15}]")
    A(f"ds_read_b128 v[{K0}:{K0+3}], v1 offset:4096")
    A(f"ds_read_b128 v[{K1}:{K1+3}], v1 offset:{4096+1024}")
    A(f"ds_read_b128 v[{V0}:{V0+3}], v1 offset:2048")
    A("s_mov_b32 s60, 0")
    A.nop(8)
    stamp(A, cfg, 2)
    A.label("K2_LOOP")
    A("s_cmp_ge_u32 s60, 10")
    A("s_cbranch_scc1 K2_NOLD")
    dma_chunk()
    A.label("K2_NOLD")
    def tile(i, Sa, Sb):
        e = lambda k: f"v_exp_f32 v{Sa+k}, v{Sa+k}"
        c = lambda k: f"v_cvt_pk_bf16_f32 v{P+k}, v{Sa+2*k}, v{Sa+2*k+1}"
        QK0 = f"v_mfma_f32_32x32x16_bf16 v[{Sb}:{Sb+15}], v[{K0}:{K0+3}], v[{Q}:{Q+3}], v[{NEGM}:{NEGM+15}]"
        QK1 = f"v_mfma_f32_32x32x16_bf16 v[{Sb}:{Sb+15}], v[{K1}:{K1+3}], v[{Q+4}:{Q+7}], v[{Sb}:{Sb+15}]"
        PV0 = f"v_mfma_f32_32x32x16_bf16 v[{O}:{O+15}], v[{V0}:{V0+3}], v[{P}:{P+3}], v[{O}:{O+15}]"
        PV1 = f"v_mfma_f32_32x32x16_bf16 v[{O}:{O+15}], v[{V1}:{V1+3}], v[{P+4}:{P+7}], v[{O}:{O+15}]"
        L0 = f"v_mfma_f32_16x16x32_bf16 v[{L}:{L+3}], v[{SEL}:{SEL+3}], v[{P}:{P+3}], v[{L}:{L+3}]"
        L1 = f"v_mfma_f32_16x16x32_bf16 v[{L}:{L+3}], v[{SEL}:{SEL+3}], v[{P+4}:{P+7}], v[{L}:{L+3}]"
        W = "s_waitcnt lgkmcnt(3)"
        def addr(tt, fr):
            return (f"v1 offset:{tt*4096+fr*1024}" if tt < 4 else f"v2 offset:{(tt-4)*4096+fr*1024}")
        rK0 = f"ds_read_b128 v[{K0}:{K0+3}], {addr(i+2, 0)}"; rK1 = f"ds_read_b128 v[{K1}:{K1+3}], {addr(i+2, 1)}"
        rV0 = f"ds_read_b128 v[{V0}:{V0+3}], {addr(i+1, 2)}"; rV1 = f"ds_read_b128 v[{V1}:{V1+3}], {addr(i, 3)}"
        seq = [e(0), e(1), W, PV1, rV1, e(2), e(3), e(4), e(5), W, QK0, rK0, e(6), e(7), c(0), c(1), L1, c(2), c(3), e(8), W, QK1, rK1,
               e(9), e(10), e(11), W, PV0, rV0, e(12), e(13), e(14), L0, e(15), c(4), c(5), c(6), c(7)]
        for x in seq: A(x)
    for i in range(4):
        tile(i, SA if i % 2 == 0 else SB, SB if i % 2 == 0 else SA)
    A(f"""
    v_mov_b32 v1, v2
    v_add_u32 v2, 16384, v2
    v_and_b32 v2, {K2_RING-1}, v2
    s_cmp_ge_u32 s60, 10
    s_cbranch_scc1 K2_W0
    s_waitcnt vmcnt(8)
    s_branch K2_W1
    K2_W0:
    s_waitcnt vmcnt(0)
    K2_W1:
    s_add_u32 s60, s60, 1
    s_cmp_lt_u32 s60, 16
    s_barrier
    s_cbranch_scc1 K2_LOOP
    s_waitcnt lgkmcnt(0)
    v_mfma_f32_32x32x16_bf16 v[{O}:{O+15}], v[{V1}:{V1+3}], v[{P+4}:{P+7}], v[{O}:{O+15}]
    v_mfma_f32_16x16x32_bf16 v[{L}:{L+3}], v[{SEL}:{SEL+3}], v[{P+4}:{P+7}], v[{L}:{L+3}]
    """)
    stamp(A, cfg, 3)
    A.nop(12)
    A.label("K2_FIN")
    A(f"v_rcp_f32 v4, v{L}")
    A("s_nop 0")
    for k in range(8):
        A(f"v_pk_mul_f32 v[{O+2*k}:{O+2*k+1}], v[{O+2*k}:{O+2*k+1}], v[4:5] op_sel_hi:[1,0]")
    A(f"""
    v_mov_b32 v6, 0
    """)
    for k in range(16):
        A(f"v_fma_f32 v6, v{O+k}, 0, v6")
    A(f"""
    v_mov_b32 v7, {fhex(2.0**120)}
    v_cmp_u_f32 vcc, v6, v6
    v_cmp_nlt_f32 s[62:63], v{L}, v7
    s_or_b64 vcc, vcc, s[62:63]
    """)
    if cfg.get("force_fb"):
        A("s_mov_b64 vcc, -1")
    A(f"""
    s_cmp_eq_u32 s60, 16
    s_cselect_b64 vcc, vcc, 0
    s_cbranch_vccnz K2_FB
    """)
    for i in range(8):
        A(f"v_cvt_pk_bf16_f32 v{P+i}, v{O+2*i}, v{O+2*i+1}")
    A(f"buffer_store_dwordx4 v[{P}:{P+3}], v3, s[32:35], s59 offen")
    A(f"buffer_store_dwordx4 v[{P+4}:{P+7}], v3, s[32:35], s59 offen offset:1024")
    stamp(A, cfg, 4)
    prof_store(A, cfg, 1, 5, 40, 14)
    A("s_endpgm")
    A.label("K2_FB")
    A("s_mov_b32 s60, 17")
    A("s_mov_b32 s61, 0")
    for i in range(16): A(f"v_mov_b32 v{O+i}, 0")
    for i in range(4): A(f"v_mov_b32 v{L+i}, 0")
    A("v_mov_b32 v8, v8")
    A(f"v_mov_b32 v44, 0xff800000")
    A.label("K2_FBL")
    A(f"""
    buffer_load_dwordx4 v[{K0}:{K0+3}], v3, s[32:35], s51 offen
    buffer_load_dwordx4 v[{K1}:{K1+3}], v3, s[32:35], s51 offen offset:1024
    buffer_load_dwordx4 v[{V0}:{V0+3}], v3, s[32:35], s51 offen offset:2048
    buffer_load_dwordx4 v[{V1}:{V1+3}], v3, s[32:35], s51 offen offset:3072
    s_add_u32 s51, s51, 4096
    s_waitcnt vmcnt(0)
    v_mfma_f32_32x32x16_bf16 v[{SA}:{SA+15}], v[{K0}:{K0+3}], v[{Q}:{Q+3}], 0
    v_mfma_f32_32x32x16_bf16 v[{SA}:{SA+15}], v[{K1}:{K1+3}], v[{Q+4}:{Q+7}], v[{SA}:{SA+15}]
    """)
    A.nop(12)
    A(f"v_max3_f32 v4, v{SA}, v{SA+1}, v{SA+2}")
    for k in range(3, 15, 2):
        A(f"v_max3_f32 v4, v4, v{SA+k}, v{SA+k+1}")
    A(f"v_max3_f32 v4, v4, v{SA+15}, v44")
    A("v_mov_b32 v5, v4")
    A.nop(2)
    A("v_permlane32_swap_b32 v4, v5")
    A("s_nop 0")
    A("v_max_f32 v4, v4, v5")
    A("v_sub_f32 v5, v44, v4")
    A("v_exp_f32 v5, v5")
    A("v_mov_b32 v44, v4")
    for k in range(16):
        A(f"v_sub_f32 v{SA+k}, v{SA+k}, v4")
    for k in range(16):
        A(f"v_exp_f32 v{SA+k}, v{SA+k}")
    for k in range(16):
        A(f"v_mul_f32 v{O+k}, v{O+k}, v5")
    for k in range(4):
        A(f"v_mul_f32 v{L+k}, v{L+k}, v5")
    for k in range(8):
        A(f"v_cvt_pk_bf16_f32 v{P+k}, v{SA+2*k}, v{SA+2*k+1}")
    A("s_nop 1")
    A(f"""
    v_mfma_f32_32x32x16_bf16 v[{O}:{O+15}], v[{V0}:{V0+3}], v[{P}:{P+3}], v[{O}:{O+15}]
    v_mfma_f32_16x16x32_bf16 v[{L}:{L+3}], v[{SEL}:{SEL+3}], v[{P}:{P+3}], v[{L}:{L+3}]
    v_mfma_f32_32x32x16_bf16 v[{O}:{O+15}], v[{V1}:{V1+3}], v[{P+4}:{P+7}], v[{O}:{O+15}]
    v_mfma_f32_16x16x32_bf16 v[{L}:{L+3}], v[{SEL}:{SEL+3}], v[{P+4}:{P+7}], v[{L}:{L+3}]
    s_add_u32 s61, s61, 1
    s_cmp_lt_u32 s61, 64
    """)
    A.nop(12)
    A("s_cbranch_scc1 K2_FBL")
    A("s_branch K2_FIN")
    A.label("K2_END")
    A("s_endpgm")
    return K, K2_LDS
```

```python
from common import *

K3_SLOT = 16384
K3_NS = 4
K3_ROW = 272
K3_RED = 128 * K3_ROW
K3_LDS = 2 * K3_RED

def gen_k3(A, cfg):
    K = "k3_out_kernel"
    kernel_begin(A, K)
    A(f"""
    s_cmp_ge_u32 s2, 256
    s_cbranch_scc1 K3_END
    s_load_dwordx2 s[14:15], s[0:1], 80
    s_load_dwordx2 s[4:5], s[0:1], 24
    s_load_dwordx2 s[6:7], s[0:1], 48
    s_load_dwordx2 s[8:9], s[0:1], 64
    v_lshrrev_b32 v1, 6, v0
    v_mov_b32 v10, v0                ; tid
    v_and_b32 v0, 63, v0
    v_readfirstlane_b32 s40, v1      ; wave
    s_and_b32 s45, s2, 7
    s_lshr_b32 s46, s2, 3
    s_lshr_b32 s41, s45, 1
    s_lshl_b32 s41, s41, 2
    s_lshr_b32 s47, s46, 3
    s_add_u32 s41, s41, s47          ; T = 4*(e>>1) + (i>>3)
    s_and_b32 s42, s45, 1
    s_lshl_b32 s42, s42, 3
    s_and_b32 s47, s46, 7
    s_add_u32 s42, s42, s47          ; C = 8*(e&1) + (i&7)
    s_lshr_b32 s43, s40, 2           ; grp
    s_and_b32 s44, s40, 3            ; tq
    s_lshl_b32 s47, s41, 2
    s_add_u32 s47, s47, s44          ; tb
    s_lshl_b32 s50, s47, 16
    s_lshl_b32 s51, s43, 15
    s_add_u32 s50, s50, s51
    s_add_u32 s50, s50, {WS_OA}
    s_lshl_b32 s51, s47, 7
    s_add_u32 s51, s51, {WS_G}       ; g offset
    v_lshlrev_b32 v3, 4, v0          ; lane*16
    v_and_b32 v4, 31, v0
    v_lshlrev_b32 v4, 2, v4          ; g voffset
    v_lshrrev_b32 v5, 3, v0
    v_lshlrev_b32 v5, 11, v5         ; r*2048
    v_bfe_u32 v6, v0, 4, 1
    v_lshlrev_b32 v6, 2, v6
    v_and_b32 v7, 7, v0
    v_xor_b32 v7, v7, v6
    v_lshl_add_u32 v5, v7, 4, v5
    s_lshl_b32 s52, s43, 9
    s_lshl_b32 s53, s44, 4
    s_add_u32 s52, s52, s53
    s_lshl_b32 s52, s52, 11
    s_lshl_b32 s53, s42, 7
    s_add_u32 s52, s52, s53          ; + C*128
    v_add_u32 v5, s52, v5            ; piece 0
    v_add_u32 v6, {16384 - 1024}, v5
    s_lshl_b32 s54, s43, 13
    s_lshl_b32 s53, s44, 11
    s_add_u32 s54, s54, s53
    s_mov_b32 s55, 0
    v_lshrrev_b32 v7, 5, v0          ; hh
    v_bfe_u32 v8, v0, 2, 2           ; i>>2
    v_lshl_add_u32 v7, v7, 2, v8
    v_lshlrev_b32 v7, 7, v7
    v_bfe_u32 v8, v0, 4, 1
    v_bfe_u32 v9, v0, 1, 1
    v_lshl_add_u32 v8, v8, 1, v9
    v_bfe_u32 v9, v0, 3, 1
    v_lshlrev_b32 v9, 2, v9
    v_xor_b32 v8, v8, v9
    v_lshl_add_u32 v7, v8, 4, v7
    v_and_b32 v9, 1, v0
    v_lshl_add_u32 v7, v9, 3, v7
    s_lshl_b32 s53, s43, 13
    v_add_u32 v1, s53, v7            ; cb=0
    v_xor_b32 v2, 64, v1             ; cb=1
    """)
    stamp(A, cfg, 0)
    A("s_waitcnt lgkmcnt(0)")
    srd(A, 32, 14, WS_USED)
    srd(A, 20, 4, 1024*2048)
    G, OMG = 12, 14
    OF = 16
    WF = 80
    ACC = 112
    ACS = 144
    A(f"buffer_load_dword v{G}, v4, s[32:35], s51 offen")
    def issue(slot):
        A(f"s_add_u32 m0, s54, {slot*K3_SLOT}")
        for j in range(4):
            r = OF + 16*slot + 4*j
            A(f"buffer_load_dwordx4 v[{r}:{r+3}], v3, s[32:35], s50 offen offset:{j*1024}")
        A(f"buffer_load_dwordx4 v5, s[20:23], s55 offen lds")
        A(f"buffer_load_dwordx4 v6, s[20:23], s55 offen offset:1024 lds")
        A("s_add_u32 s50, s50, 4096")
        A(f"s_add_u32 s55, s55, {64*2048}")
    for s in range(3): issue(s)
    for i in range(32): A(f"v_mov_b32 v{ACC+i}, 0")
    A("s_mov_b32 s60, 0")
    stamp(A, cfg, 1)
    A.label("K3_LOOP")
    for u in range(4):
        A("s_waitcnt vmcnt(12)")
        A("s_barrier")
        for j in range(4):
            for cb in range(2):
                for sec in range(2):
                    r = WF + 8*j + 4*cb + 2*sec
                    A(f"ds_read_b64_tr_b16 v[{r}:{r+1}], v{1+cb} offset:{u*K3_SLOT + (16*j+8*sec)*128}")
        if u == 1:
            A(f"""
            s_cmp_eq_u32 s60, 1
            s_cselect_b32 s20, s6, s20
            s_cselect_b32 s21, s7, s21
            s_cselect_b32 s55, 0, s55
            s_cselect_b32 s61, {4*MB - 32768}, 0
            s_add_u32 s50, s50, s61
            s_cmp_eq_u32 s60, 3
            s_cselect_b32 s22, 0, s22
            s_cselect_b32 s34, 0, s34
            """)
        issue((u + 3) % 4)
        for j in range(4):
            for cb in range(2):
                A(f"s_waitcnt lgkmcnt({14 - 4*j - 2*cb})")
                w = WF + 8*j + 4*cb; o = OF + 16*u + 4*j; a = ACC + 16*cb
                A(f"v_mfma_f32_32x32x16_bf16 v[{a}:{a+15}], v[{w}:{w+3}], v[{o}:{o+3}], v[{a}:{a+15}]")
    A(f"""
    s_add_u32 s60, s60, 1
    s_cmp_lg_u32 s60, 2
    s_cbranch_scc1 K3_NOSW
    """)
    A.nop(14)
    for k in range(16):
        A(f"v_pk_mul_f32 v[{ACS+2*k}:{ACS+2*k+1}], v[{ACC+2*k}:{ACC+2*k+1}], v[{G}:{G+1}] op_sel_hi:[1,0]")
    for k in range(32): A(f"v_mov_b32 v{ACC+k}, 0")
    A(f"""
    K3_NOSW:
    s_cmp_lt_u32 s60, 4
    s_cbranch_scc1 K3_LOOP
    """)
    stamp(A, cfg, 2)
    A(f"""
    v_sub_f32 v{OMG}, 1.0, v{G}
    v_and_b32 v4, 31, v0
    s_lshl_b32 s53, s44, 5
    v_add_u32 v4, s53, v4
    v_mul_u32_u24 v4, {K3_ROW}, v4
    v_lshrrev_b32 v5, 5, v0
    v_lshl_add_u32 v4, v5, 4, v4
    s_mul_i32 s53, s43, {K3_RED}
    v_add_u32 v4, s53, v4
    v_lshrrev_b32 v5, 3, v10
    v_and_b32 v6, 7, v10             ; chunk
    v_mul_u32_u24 v7, {K3_ROW}, v5
    v_lshl_add_u32 v7, v6, 5, v7
    s_lshl_b32 s53, s41, 7
    v_add_u32 v5, s53, v5
    v_lshlrev_b32 v5, 11, v5
    v_lshl_add_u32 v5, v6, 4, v5
    s_lshl_b32 s53, s42, 7
    v_add_u32 v5, s53, v5
    s_waitcnt vmcnt(0)
    s_barrier
    """)
    srd(A, 24, 8, 4194304)
    A.nop(6)
    for k in range(16):
        A(f"v_pk_fma_f32 v[{ACC+2*k}:{ACC+2*k+1}], v[{ACC+2*k}:{ACC+2*k+1}], v[{OMG}:{OMG+1}], v[{ACS+2*k}:{ACS+2*k+1}] op_sel_hi:[1,0,1]")
    for cb in range(2):
        for q in range(4):
            r = ACC + 16*cb + 4*q
            A(f"ds_write_b128 v4, v[{r}:{r+3}] offset:{cb*128 + q*32}")
    A("s_waitcnt lgkmcnt(0)")
    A("s_barrier")
    R = 16
    for it in range(2):
        for g in range(2):
            for hf in range(2):
                r = R + 16*it + 8*g + 4*hf
                A(f"ds_read_b128 v[{r}:{r+3}], v7 offset:{it*64*K3_ROW + g*K3_RED + hf*16}")
    for it in range(2):
        A(f"s_waitcnt lgkmcnt({4 - 4*it})")
        r = R + 16*it
        for k in range(4):
            A(f"v_pk_add_f32 v[{r+2*k}:{r+2*k+1}], v[{r+2*k}:{r+2*k+1}], v[{r+8+2*k}:{r+8+2*k+1}]")
        for k in range(4):
            A(f"v_cvt_pk_bf16_f32 v{r+k}, v{r+2*k}, v{r+2*k+1}")
        A(f"buffer_store_dwordx4 v[{r}:{r+3}], v5, s[24:27], 0 offen")
        if it == 0: A(f"v_add_u32 v5, {64*2048}, v5")
    stamp(A, cfg, 3)
    if cfg.get("prof"):
        A("s_waitcnt vmcnt(0)")
        stamp(A, cfg, 4)
        A(f"s_mov_b32 s34, {WS_USED}")
    prof_store(A, cfg, 2, 5, 40, 14)
    A.label("K3_END")
    A("s_endpgm")
    return K, K3_LDS
```

```python
import sys, os
sys.path.insert(0, os.path.dirname(__file__))
from common import *
import k1, k2, k3
HEADER = open("cdna_kernels/" + NAME + ".s.ref").read().split("; Override launch")[0]

def build(cfg, kernels):
    A = Asm()
    launches = []; descs = []; errs = []
    for gen, nv in kernels:
        start = len(A.lines)
        kn, lds = gen(A, cfg)
        errs += check(A.lines[start:], kn)
        launches.append(f"; @launch kernel={kn} grid=(256,1,1) block=(512,1,1) lds={lds}")
        descs.append(kernel_desc(kn, nv))
    txt = HEADER + "\n".join(launches) + "\n"
    txt += '.amdgcn_target "amdgcn-amd-amdhsa--gfx950"\n.text\n' + A.text()
    txt += '.section .rodata,"a"\n.p2align 6\n' + ".p2align 6\n".join(descs)
    return txt, errs

if __name__ == "__main__":
    cfg = dict(a.split("=") for a in sys.argv[2:])
    ks = [(k1.gen_k1, 256), (k2.gen_k2, 256), (k3.gen_k3, 256)]
    txt, errs = build(cfg, ks)
    for e in errs: print(e)
    open(sys.argv[1], "w").write(txt)
    print(len(txt), "bytes")
```

```python
from common import *
def gen_k9(A, cfg):
    K = "k9_diag_kernel"
    kernel_begin(A, K)
    ka, sa, opa, kb, sb, opb, scale = cfg["q"].split(",")
    ka, sa, kb, sb, scale = int(ka), int(sa), int(kb), int(sb), int(scale)
    A(f"""
    s_cmp_ge_u32 s2, 1
    s_cbranch_scc1 K9_END
    s_load_dwordx2 s[14:15], s[0:1], 80
    v_lshlrev_b32 v1, 9, v0
    s_waitcnt lgkmcnt(0)
    """)
    srd(A, 32, 14, 64*MB)
    def get(k, s, op, dst):
        n = 0
        for j in range(4):
            for w in range(4):
                off = WS_PROF + k*131072 + j*64*512 + w*64 + s*8 + 4
                A(f"s_mov_b32 s20, {off}")
                A(f"buffer_load_dword v{8+n}, v1, s[32:35], s20 offen")
                n += 1
        A("s_waitcnt vmcnt(0)")
        for i in range(16):
            A(f"v_subrev_u32 v{8+i}, s50, v{8+i}")
        o = "min" if op == "min" else "max"
        for i in range(1, 16):
            A(f"v_{o}_i32 v8, v8, v{8+i}")
        A("s_nop 1")
        A(f"v_readlane_b32 s{dst}, v8, 0")
        for l in range(1, 64):
            A(f"v_readlane_b32 s21, v8, {l}")
            A(f"s_{o}_i32 s{dst}, s{dst}, s21")
    A(f"s_mov_b32 s20, {WS_PROF + 4}")
    A("v_mov_b32 v2, 0")
    A("buffer_load_dword v3, v2, s[32:35], s20 offen")
    A("s_waitcnt vmcnt(0)")
    A("v_readfirstlane_b32 s50, v3")
    get(ka, sa, opa, 51)
    get(kb, sb, opb, 52)
    A(f"""
    s_sub_u32 s53, s52, s51
    s_max_i32 s53, s53, 0
    s_min_i32 s53, s53, 20000
    s_mul_i32 s53, s53, {scale}
    s_memrealtime s[60:61]
    s_waitcnt lgkmcnt(0)
    K9_SPIN:
    s_memrealtime s[62:63]
    s_waitcnt lgkmcnt(0)
    s_sub_u32 s54, s62, s60
    s_cmp_lt_u32 s54, s53
    s_cbranch_scc1 K9_SPIN
    K9_END:
    s_endpgm
    """)
    return K, 0
```

```python
import sys, os
sys.path.insert(0, os.path.dirname(__file__))
from common import *
import k1, k2, k3, k9
HEADER = open("cdna_kernels/" + NAME + ".s.ref").read().split("; Override launch")[0]

def build(cfg, kernels):
    A = Asm()
    launches = []; descs = []; errs = []
    for gen, nv in kernels:
        start = len(A.lines)
        kn, lds = gen(A, cfg)
        errs += check(A.lines[start:], kn)
        if kn.startswith("k9"): launches.append(f"; @launch kernel={kn} grid=(1,1,1) block=(64,1,1) lds={lds}")
        else: launches.append(f"; @launch kernel={kn} grid=(256,1,1) block=(512,1,1) lds={lds}")
        descs.append(kernel_desc(kn, nv))
    txt = HEADER + "\n".join(launches) + "\n"
    txt += '.amdgcn_target "amdgcn-amd-amdhsa--gfx950"\n.text\n' + A.text()
    txt += '.section .rodata,"a"\n.p2align 6\n' + ".p2align 6\n".join(descs)
    return txt, errs

if __name__ == "__main__":
    cfg = dict(a.split("=") for a in sys.argv[2:])
    ks = [(k1.gen_k1, 256), (k2.gen_k2, 256), (k3.gen_k3, 256)]
    if "q" in cfg: ks.append((k9.gen_k9, 64))
    txt, errs = build(cfg, ks)
    for e in errs: print(e)
    open(sys.argv[1], "w").write(txt)
    print(len(txt), "bytes")
```

```python
from asmlib import *

NAME = "gated_mix__linear_kernel_hedgehog__softmax_full_mha__prompt"
MB = 1 << 20
WS_QB   = 0
WS_KVB  = 4 * MB
WS_PHIQ = 12 * MB
WS_KVP  = 20 * MB
WS_ZP   = 22 * MB
WS_G    = 22 * MB + 65536
WS_OA   = 24 * MB
WS_OB   = 28 * MB
WS_USED = 32 * MB
LOG2E = 1.4426950408889634
import struct
def f2u(x): return struct.unpack("<I", struct.pack("<f", x))[0]
def fhex(x): return hex(f2u(x))

def srd(A, d, lo, nbytes):
    A(f"s_mov_b32 s{d}, s{lo}")
    A(f"s_mov_b32 s{d+1}, s{lo+1}")
    A(f"s_mov_b32 s{d+2}, {nbytes}")
    A(f"s_mov_b32 s{d+3}, 0x00020000")

def lane_id(A, v):
    A(f"v_mbcnt_lo_u32_b32 v{v}, -1, 0")
    A(f"v_mbcnt_hi_u32_b32 v{v}, -1, v{v}")

def kernel_begin(A, kname):
    A.lines.append(f".globl {kname}")
    A.lines.append(".p2align 8")
    A.lines.append(f".type {kname},@function")
    A.label(kname)

def kernel_desc(kname, nvgpr=256, nsgpr=102, accum=None):
    if accum is None: accum = min(256, (nvgpr + 3) // 4 * 4)
    return f""".amdhsa_kernel {kname}
  .amdhsa_next_free_vgpr {nvgpr}
  .amdhsa_next_free_sgpr {nsgpr}
  .amdhsa_accum_offset {accum}
  .amdhsa_group_segment_fixed_size 0
  .amdhsa_kernarg_size 88
  .amdhsa_user_sgpr_count 2
  .amdhsa_user_sgpr_kernarg_segment_ptr 1
  .amdhsa_system_sgpr_workgroup_id_x 1
.end_amdhsa_kernel
"""

WS_FLAG = 23 * MB
WS_PROF = 40 * MB
def stamp(A, cfg, i):
    if cfg.get("prof"):
        A("s_memtime s[96:97]")
        A("s_memrealtime s[98:99]")
        A("s_waitcnt lgkmcnt(0)")
        A(f"s_mov_b32 s{70+2*i}, s96")
        A(f"s_mov_b32 s{71+2*i}, s98")
def prof_store(A, cfg, kidx, n, wave_sgpr, ws_lo):
    if not cfg.get("prof"): return
    A(f"s_mov_b32 s92, s{ws_lo}")
    A(f"s_mov_b32 s93, s{ws_lo+1}")
    A(f"s_mov_b32 s94, {64*MB}")
    A("s_mov_b32 s95, 0x00020000")
    A("s_lshl_b32 s90, s2, 3")
    A(f"s_add_u32 s90, s90, s{wave_sgpr}")
    A("s_lshl_b32 s90, s90, 6")
    A(f"s_add_u32 s90, s90, {WS_PROF + kidx*131072}")
    A("s_mov_b64 exec, 1")
    A("v_mov_b32 v1, 0")
    for i in range(n):
        A(f"v_mov_b32 v2, s{70+2*i}")
        A(f"buffer_store_dword v2, v1, s[92:95], s90 offen offset:{8*i}")
        A(f"v_mov_b32 v3, s{71+2*i}")
        A(f"buffer_store_dword v3, v1, s[92:95], s90 offen offset:{8*i+4}")
        A("s_nop 1")
```

```python
from common import *

K1_SLOT = 28672
K1_NSLOT = 5
K1_WPHI = K1_SLOT * K1_NSLOT
K1_LDS = K1_WPHI + 4096
K1_TBUF = 4352
K1_RED = 32768

def cvt_tile(A, dst, src):
    for i in range(8):
        A(f"v_cvt_pk_bf16_f32 v{dst+i}, v{src+2*i}, v{src+2*i+1}")

def gen_k1(A, cfg):
    K = "k1_qkv_kernel"
    kernel_begin(A, K)
    A(f"""
    s_cmp_ge_u32 s2, 256
    s_cbranch_scc1 K1_END
    s_load_dwordx2 s[4:5], s[0:1], 0
    s_load_dwordx2 s[6:7], s[0:1], 8
    s_load_dwordx2 s[8:9], s[0:1], 40
    s_load_dwordx2 s[10:11], s[0:1], 16
    s_load_dwordx2 s[12:13], s[0:1], 56
    s_load_dwordx2 s[14:15], s[0:1], 80
    v_lshrrev_b32 v1, 6, v0
    v_and_b32 v0, 63, v0
    v_readfirstlane_b32 s40, v1
    s_and_b32 s45, s2, 7
    s_lshr_b32 s46, s2, 3
    """)
    stamp(A, cfg, 0)
    if cfg.get("k1map", "4x8") == "4x8":
        A("""
        s_and_b32 s41, s45, 1
        s_lshl_b32 s41, s41, 2
        s_lshr_b32 s47, s46, 3
        s_add_u32 s41, s41, s47          ; r = 4*(e&1) + (i>>3)
        s_lshr_b32 s42, s45, 1
        s_lshl_b32 s42, s42, 3
        s_and_b32 s47, s46, 7
        s_add_u32 s42, s42, s47          ; c = 8*(e>>1) + (i&7)
        """)
    else:
        A("""
        s_lshr_b32 s41, s46, 2           ; r = i>>2
        s_lshl_b32 s42, s45, 2
        s_and_b32 s47, s46, 3
        s_add_u32 s42, s42, s47          ; c = 4*e + (i&3)
        """)
    A("""
    s_lshr_b32 s43, s42, 1           ; p
    s_and_b32 s44, s42, 1            ; type
    s_waitcnt lgkmcnt(0)
    """)
    srd(A, 32, 14, WS_USED)
    A("""
    s_cmp_ge_u32 s40, 4
    s_cbranch_scc1 K1_LOADER
    """)
    XA, WA = 4, 20
    XB, WB = 32, 48
    ACC = 60
    acc = lambda sg, tt: ACC + (sg * 4 + tt) * 16
    A(f"""
    s_lshr_b32 s50, s40, 1           ; th
    s_and_b32 s51, s40, 1            ; hsel
    v_and_b32 v4, 31, v0
    v_lshrrev_b32 v5, 5, v0          ; hh
    v_bfe_u32 v6, v0, 2, 2           ; f = (l>>2)&3
    v_xor_b32 v7, v5, v6
    v_lshlrev_b32 v7, 4, v7
    v_lshl_add_u32 v1, v4, 6, v7
    s_lshl_b32 s47, s50, 13
    v_add_u32 v1, s47, v1            ; vxa0
    v_xor_b32 v2, 32, v1             ; vxa1
    v_lshl_add_u32 v7, v5, 3, v6
    v_lshlrev_b32 v7, 7, v7          ; *128
    v_bfe_u32 v8, v0, 4, 1           ; g&1
    v_bfe_u32 v9, v0, 1, 1
    v_lshl_add_u32 v8, v8, 1, v9     ; (g&1)*2 + ((i&3)>>1)
    s_lshl_b32 s47, s51, 2
    v_add_u32 v8, s47, v8            ; + hsel*4
    v_bfe_u32 v9, v0, 3, 1
    v_lshlrev_b32 v9, 2, v9
    v_xor_b32 v8, v8, v9             ; chunk'
    v_lshl_add_u32 v7, v8, 4, v7
    v_and_b32 v9, 1, v0
    v_lshl_add_u32 v7, v9, 3, v7
    v_add_u32 v3, 16384, v7          ; vwa
    s_mov_b32 s48, 0
    s_mov_b32 s52, {K1_SLOT}
    s_mov_b32 s53, {-(K1_NSLOT-1)*K1_SLOT & 0xffffffff}
    s_mov_b32 s54, 32
    """)
    for i in range(192):
        A(f"v_mov_b32 v{ACC+i}, 0")
    A("s_barrier")
    stamp(A, cfg, 1)

    def reads(X, W, s):
        r = []
        xa = 1 if s == 0 else 2
        for tt in range(4):
            r.append(f"ds_read_b128 v[{X+4*tt}:{X+4*tt+3}], v{xa} offset:{tt*2048}")
        for sg in range(3):
            for sec in range(2):
                r.append(f"ds_read_b64_tr_b16 v[{W+4*sg+2*sec}:{W+4*sg+2*sec+1}], v3 offset:{sg*4096 + s*2048 + sec*512}")
        return [r[4], r[5], r[0], r[1], r[2], r[3], r[6], r[7], r[8], r[9]]
    def mfmas(X, W):
        m = []
        for sg in range(3):
            for tt in range(4):
                a = acc(sg, tt)
                w = f"v[{W+4*sg}:{W+4*sg+3}]"; x = f"v[{X+4*tt}:{X+4*tt+3}]"
                if sg < 2: m.append(f"v_mfma_f32_32x32x16_bf16 v[{a}:{a+15}], {w}, {x}, v[{a}:{a+15}]")
                else:      m.append(f"v_mfma_f32_32x32x16_bf16 v[{a}:{a+15}], {x}, {w}, v[{a}:{a+15}]")
        return m
    for l in reads(XA, WA, 0): A(l)
    A.label("K1_CLOOP")
    A("s_waitcnt lgkmcnt(0)")
    m = mfmas(XA, WA); r = reads(XB, WB, 1)
    extra0 = {6: ["s_add_u32 s48, s48, 1", f"s_cmp_eq_u32 s48, {K1_NSLOT}", "s_cselect_b32 s49, s53, s52", "s_cselect_b32 s48, 0, s48"],
              7: ["v_add_u32 v1, s49, v1"], 8: ["v_add_u32 v2, s49, v2"], 9: ["v_add_u32 v3, s49, v3"]}
    for k in range(12):
        A(m[k])
        if k < 5:
            A(r[2*k]); A(r[2*k+1])
        for l in extra0.get(k, []): A(l)
    A("s_waitcnt lgkmcnt(0)")
    m = mfmas(XB, WB); r = reads(XA, WA, 0)
    for k in range(12):
        A(m[k])
        if k < 5:
            A(r[2*k]); A(r[2*k+1])
        if k == 8:
            A("s_sub_u32 s54, s54, 1"); A("s_cmp_lg_u32 s54, 0")
    A("s_barrier")
    A("s_cbranch_scc1 K1_CLOOP")
    A("s_waitcnt lgkmcnt(0)")
    stamp(A, cfg, 2)
    A.nop(12)
    A(f"""
    v_lshlrev_b32 v1, 4, v0          ; lane*16
    s_lshl_b32 s52, s43, 1
    s_add_u32 s52, s52, s51          ; h
    s_lshl_b32 s53, s41, 3
    s_lshl_b32 s47, s50, 2
    s_add_u32 s53, s53, s47
    s_lshl_b32 s54, s52, 6
    s_add_u32 s54, s54, s53          ; h*64 + tb0
    s_cmp_lg_u32 s44, 0
    s_cbranch_scc1 K1_E1T1
    s_mov_b32 s56, {fhex(32**-0.5 * LOG2E)}
    s_mov_b32 s57, s56
    """)
    for k in range(32):
        a = acc(1, 0) + 2*k
        A(f"v_pk_mul_f32 v[{a}:{a+1}], v[{a}:{a+1}], s[56:57]")
    A(f"""
    s_lshl_b32 s58, s54, 11
    s_add_u32 s58, s58, {WS_QB}
    s_mov_b32 s59, 2048
    s_branch K1_E1J
    K1_E1T1:
    s_lshl_b32 s58, s54, 12
    s_add_u32 s58, s58, {WS_KVB}
    s_mov_b32 s59, 4096
    K1_E1J:
    """)
    T1 = 4
    for tt in range(4):
        cvt_tile(A, T1 + 8*tt, acc(1, tt))
    V = acc(1, 0)
    Q = acc(1, 0) + 32
    for tt in range(4):
        A(f"buffer_store_dwordx4 v[{T1+8*tt}:{T1+8*tt+3}], v1, s[32:35], s58 offen")
        A(f"buffer_store_dwordx4 v[{T1+8*tt+4}:{T1+8*tt+7}], v1, s[32:35], s58 offen offset:1024")
        A("s_add_u32 s58, s58, s59")
    for tt in range(4):
        cvt_tile(A, V + 8*tt, acc(2, tt))
    A(f"""
    s_cmp_eq_u32 s44, 0
    s_cbranch_scc1 K1_E2J
    s_lshl_b32 s58, s54, 12
    s_add_u32 s58, s58, {WS_KVB + 2048}
    """)
    for tt in range(4):
        A(f"buffer_store_dwordx4 v[{V+8*tt}:{V+8*tt+3}], v1, s[32:35], s58 offen")
        A(f"buffer_store_dwordx4 v[{V+8*tt+4}:{V+8*tt+7}], v1, s[32:35], s58 offen offset:1024")
        A("s_add_u32 s58, s58, 4096")
    A.label("K1_E2J")
    WP = 36
    A(f"""
    v_lshrrev_b32 v5, 5, v0          ; hh
    v_bfe_u32 v6, v0, 2, 2           ; i>>2
    v_lshl_add_u32 v6, v5, 2, v6     ; 4hh + (i>>2)
    v_bfe_u32 v7, v0, 4, 1
    v_lshlrev_b32 v7, 5, v7
    v_and_b32 v8, 3, v0
    v_lshl_add_u32 v7, v8, 3, v7     ; (g&1)*32 + (i&3)*8   [v7 kept]
    v_lshl_add_u32 v2, v6, 6, v7
    s_lshl_b32 s47, s51, 11
    s_add_u32 s47, s47, {K1_WPHI}
    v_add_u32 v2, s47, v2
    """)
    for s in range(2):
        for sec in range(2):
            A(f"ds_read_b64_tr_b16 v[{WP+4*s+2*sec}:{WP+4*s+2*sec+1}], v2 offset:{(16*s+8*sec)*64}")
    A(f"""
    s_mul_i32 s47, s40, {K1_TBUF}
    v_mul_u32_u24 v25, 136, v6
    v_add_u32 v25, v25, v7
    v_add_u32 v25, s47, v25
    v_and_b32 v8, 31, v0
    v_mul_u32_u24 v24, 136, v8
    v_lshl_add_u32 v24, v5, 3, v24
    v_add_u32 v24, s47, v24
    v_bfe_u32 v8, v0, 2, 1
    v_bfe_u32 v9, v0, 4, 1
    v_cmp_eq_u32 vcc, v8, v9
    v_mov_b32 v9, 0x3f803f80
    v_mov_b32 v8, 0
    v_cndmask_b32 v20, v8, v9, vcc
    v_cndmask_b32 v21, v8, v9, vcc
    v_cndmask_b32 v22, v8, v9, vcc
    v_cndmask_b32 v23, v8, v9, vcc
    """)
    for tt in range(4):
        cvt_tile(A, Q + 8*tt, acc(0, tt))
    A("s_waitcnt lgkmcnt(0)")
    for tt in range(4):
        a = acc(0, tt)
        A(f"v_mfma_f32_32x32x16_bf16 v[{a}:{a+15}], v[{WP}:{WP+3}], v[{Q+8*tt}:{Q+8*tt+3}], 0")
    for tt in range(4):
        a = acc(0, tt)
        A(f"v_mfma_f32_32x32x16_bf16 v[{a}:{a+15}], v[{WP+4}:{WP+7}], v[{Q+8*tt+4}:{Q+8*tt+7}], v[{a}:{a+15}]")
    A(f"""
    s_mov_b32 s56, {fhex(LOG2E)}
    s_mov_b32 s57, s56
    s_lshl_b32 s58, s54, 12
    s_add_u32 s58, s58, {WS_PHIQ}
    """)
    A.nop(10)
    EP = acc(2, 0)
    PH = EP + 16
    AF = PH + 16
    KV0 = AF + 16
    KV1 = 44
    Z0, Z1, SEL = 12, 16, 20
    def kv_mfmas(tt):
        out = []
        for s in range(2):
            for fb in range(2):
                kv = KV0 if fb == 0 else KV1
                z = Z0 if fb == 0 else Z1
                af = AF + (fb*2+s)*4
                c = "0" if (tt == 0 and s == 0) else f"v[{kv}:{kv+15}]"
                cz = "0" if (tt == 0 and s == 0) else f"v[{z}:{z+3}]"
                out.append(f"v_mfma_f32_32x32x16_bf16 v[{kv}:{kv+15}], v[{af}:{af+3}], v[{V+8*tt+4*s}:{V+8*tt+4*s+3}], {c}")
                out.append(f"v_mfma_f32_16x16x32_bf16 v[{z}:{z+3}], v[{SEL}:{SEL+3}], v[{af}:{af+3}], {cz}")
        return out
    for tt in range(4):
        P = acc(0, tt)
        A(f"v_max3_f32 v4, v{P}, v{P+1}, v{P+2}")
        A(f"v_max3_f32 v5, -v{P}, -v{P+1}, -v{P+2}")
        for k in range(3, 15, 2):
            A(f"v_max3_f32 v4, v4, v{P+k}, v{P+k+1}")
            A(f"v_max3_f32 v5, v5, -v{P+k}, -v{P+k+1}")
        A(f"v_max_f32 v4, v4, v{P+15}")
        A(f"v_max_f32 v5, v5, -v{P+15}")
        A.nop(2)
        A("v_permlane32_swap_b32 v4, v5")
        A("s_nop 0")
        A("v_max_f32 v4, v4, v5")
        A("v_mov_b32 v5, v4")
        A.nop(2)
        A("v_permlane32_swap_b32 v4, v5")
        A("s_nop 0")
        A(f"v_mul_f32 v6, {fhex(-LOG2E)}, v4")
        A(f"v_mul_f32 v8, {fhex(-LOG2E)}, v5")
        for k in range(8):
            A(f"v_pk_fma_f32 v[{EP+2*k}:{EP+2*k+1}], v[{P+2*k}:{P+2*k+1}], s[56:57], v[6:7] op_sel_hi:[1,1,0]")
            A(f"v_pk_fma_f32 v[{P+2*k}:{P+2*k+1}], v[{P+2*k}:{P+2*k+1}], s[56:57], v[8:9] op_sel_hi:[1,1,0] neg_lo:[0,1,0] neg_hi:[0,1,0]")
        for k in range(16):
            A(f"v_exp_f32 v{EP+k}, v{EP+k}")
            A(f"v_exp_f32 v{P+k}, v{P+k}")
        if tt > 0:
            j = A.uid("K1_KVS")
            A("s_cmp_lg_u32 s44, 0"); A(f"s_cbranch_scc1 {j}")
            A("s_waitcnt lgkmcnt(0)")
            for l in kv_mfmas(tt-1): A(l)
            A.label(j)
        A(f"v_pk_add_f32 v[4:5], v[{EP}:{EP+1}], v[{EP+2}:{EP+3}]")
        A(f"v_pk_add_f32 v[6:7], v[{P}:{P+1}], v[{P+2}:{P+3}]")
        for k in range(2, 8):
            A(f"v_pk_add_f32 v[4:5], v[4:5], v[{EP+2*k}:{EP+2*k+1}]")
            A(f"v_pk_add_f32 v[6:7], v[6:7], v[{P+2*k}:{P+2*k+1}]")
        A("v_add_f32 v4, v4, v5")
        A("v_add_f32 v6, v6, v7")
        A.nop(2)
        A("v_permlane32_swap_b32 v4, v6")
        A("s_nop 0")
        A("v_add_f32 v4, v4, v6")
        A("v_rcp_f32 v4, v4")
        A("s_nop 0")
        A("v_mov_b32 v6, v4")
        A.nop(2)
        A("v_permlane32_swap_b32 v4, v6")
        A("s_nop 0")
        for k in range(8):
            A(f"v_pk_mul_f32 v[{EP+2*k}:{EP+2*k+1}], v[{EP+2*k}:{EP+2*k+1}], v[4:5] op_sel_hi:[1,0]")
            A(f"v_pk_mul_f32 v[{P+2*k}:{P+2*k+1}], v[{P+2*k}:{P+2*k+1}], v[6:7] op_sel_hi:[1,0]")
        cvt_tile(A, PH, EP)
        cvt_tile(A, PH + 8, P)
        j1 = A.uid("K1_T0"); j2 = A.uid("K1_TJ")
        A("s_cmp_eq_u32 s44, 0"); A(f"s_cbranch_scc1 {j1}")
        for s in range(4):
            A(f"buffer_store_dwordx4 v[{PH+4*s}:{PH+4*s+3}], v1, s[32:35], s58 offen offset:{s*1024}")
        A("s_add_u32 s58, s58, 4096")
        A(f"s_branch {j2}")
        A.label(j1)
        for sign in range(2):
            for b in range(4):
                A(f"ds_write_b64 v24, v[{PH+8*sign+2*b}:{PH+8*sign+2*b+1}] offset:{sign*64+b*16}")
        for fb in range(2):
            for s in range(2):
                for sec in range(2):
                    af = AF + (fb*2+s)*4 + 2*sec
                    A(f"ds_read_b64_tr_b16 v[{af}:{af+1}], v25 offset:{(16*s+8*sec)*136 + fb*64}")
        A.label(j2)
    A("s_cmp_lg_u32 s44, 0")
    A("s_cbranch_scc1 K1_DONE")
    A("s_waitcnt lgkmcnt(0)")
    for l in kv_mfmas(3): A(l)
    A.nop(12)
    A(f"""
    v_mov_b32 v{Z0+1}, v{Z1}
    s_mul_i32 s47, s51, 9216
    s_add_u32 s47, s47, {K1_RED}
    v_add_u32 v2, s47, v1
    v_lshlrev_b32 v3, 3, v0
    v_add_u32 v3, s47, v3
    s_cmp_eq_u32 s50, 0
    s_cbranch_scc1 K1_RED0
    """)
    for fb in range(2):
        kv = KV0 if fb == 0 else KV1
        for q in range(4):
            A(f"ds_write_b128 v2, v[{kv+4*q}:{kv+4*q+3}] offset:{fb*4096+q*1024}")
    A(f"ds_write_b64 v3, v[{Z0}:{Z0+1}] offset:8192")
    A("""
    s_waitcnt lgkmcnt(0)
    s_barrier
    s_branch K1_DONE
    K1_RED0:
    s_barrier
    """)
    R = 60
    for k in range(8):
        A(f"ds_read_b128 v[{R+4*k}:{R+4*k+3}], v2 offset:{k*1024}")
    A(f"ds_read_b64 v[{R+32}:{R+33}], v3 offset:8192")
    A(f"""
    s_lshl_b32 s47, s52, 3
    s_add_u32 s47, s47, s41          ; h*8 + r
    s_lshl_b32 s58, s47, 13
    s_add_u32 s58, s58, {WS_KVP}
    s_add_u32 s59, s58, 4096
    s_lshl_b32 s60, s47, 8
    s_add_u32 s60, s60, {WS_ZP}
    v_and_b32 v3, 31, v0
    v_lshlrev_b32 v3, 2, v3
    s_waitcnt lgkmcnt(0)
    """)
    for fb in range(2):
        kv = KV0 if fb == 0 else KV1
        for k in range(8):
            A(f"v_pk_add_f32 v[{kv+2*k}:{kv+2*k+1}], v[{kv+2*k}:{kv+2*k+1}], v[{R+16*fb+2*k}:{R+16*fb+2*k+1}]")
    A(f"v_pk_add_f32 v[{Z0}:{Z0+1}], v[{Z0}:{Z0+1}], v[{R+32}:{R+33}]")
    for fb in range(2):
        kv = KV0 if fb == 0 else KV1
        for q in range(4):
            A(f"buffer_store_dwordx4 v[{kv+4*q}:{kv+4*q+3}], v1, s[32:35], s{58+fb} offen offset:{q*1024}")
    A(f"buffer_store_dword v{Z0}, v3, s[32:35], s60 offen")
    A(f"buffer_store_dword v{Z0+1}, v3, s[32:35], s60 offen offset:128")
    A.label("K1_DONE")
    stamp(A, cfg, 3)
    if cfg.get("prof"):
        A("s_waitcnt vmcnt(0)")
        stamp(A, cfg, 4)
    prof_store(A, cfg, 0, 5, 40, 14)
    A("s_endpgm")
    A.label("K1_LOADER")
    srd(A, 16, 4, 2048*2048)
    srd(A, 20, 6, 1024*6144)
    srd(A, 24, 8, 1024*6144)
    A("""
    s_cmp_eq_u32 s44, 0
    s_cselect_b32 s28, s6, s8
    s_cselect_b32 s29, s7, s9
    """)
    A(f"s_mov_b32 s30, {1024*6144}")
    A("s_mov_b32 s31, 0x00020000")
    srd(A, 36, 10, 32*2048)
    A(f"""
    s_sub_u32 s50, s40, 4            ; w
    v_lshrrev_b32 v1, 2, v0
    v_lshrrev_b32 v2, 4, v0
    v_and_b32 v3, 3, v0
    v_xor_b32 v3, v3, v2
    v_lshlrev_b32 v3, 4, v3
    v_lshl_add_u32 v4, v1, 11, v3
    """)
    if cfg.get("fake128"):
        A("v_lshrrev_b32 v1, 3, v0")
        A("v_and_b32 v3, 7, v0")
        A("v_lshlrev_b32 v3, 4, v3")
        A("v_lshl_add_u32 v4, v1, 11, v3")
        A("s_mov_b32 s63, 0")
        A(f"s_mov_b32 s65, {(128 - 8*2048) & 0xffffffff}")
    A(f"""
    s_lshl_b32 s47, s41, 8
    s_lshl_b32 s51, s50, 6
    s_add_u32 s47, s47, s51
    s_lshl_b32 s47, s47, 11          ; (r*256 + 64w)*2048
    v_add_u32 v4, s47, v4
    v_add_u32 v5, 32768, v4
    v_add_u32 v6, 65536, v4
    v_add_u32 v7, 98304, v4
    v_lshrrev_b32 v1, 3, v0
    s_lshl_b32 s47, s50, 3
    v_add_u32 v1, s47, v1            ; krow = 8w + (l>>3)
    v_mul_u32_u24 v1, 6144, v1
    v_bfe_u32 v2, v0, 4, 1
    v_lshlrev_b32 v2, 2, v2
    v_and_b32 v3, 7, v0
    v_xor_b32 v3, v3, v2
    v_lshl_add_u32 v1, v3, 4, v1
    s_lshl_b32 s47, s43, 7           ; 128p
    s_lshl_b32 s51, s44, 11          ; type*2048
    s_add_u32 s52, s47, s51
    v_add_u32 v9, s52, v1            ; seg1
    s_sub_u32 s52, 2048, s51
    s_add_u32 s52, s52, s47
    v_add_u32 v8, s52, v1            ; seg0
    s_add_u32 s52, s47, 4096
    v_add_u32 v10, s52, v1           ; seg2
    v_lshlrev_b32 v11, 4, v0
    s_lshl_b32 s47, s43, 12
    s_lshl_b32 s51, s50, 10
    s_add_u32 s47, s47, s51
    s_add_u32 m0, s51, {K1_WPHI}
    s_lshl_b32 s55, s50, 12          ; w*4096  (x pieces)
    buffer_load_dwordx4 v11, s[36:39], s47 offen lds
    s_add_u32 s56, s51, 16384        ; 16384 + w*1024 (W pieces)
    s_mov_b32 s57, 0
    s_mov_b32 s58, 0                 ; soffset x
    s_mov_b32 s59, 0                 ; soffset W
    s_mov_b32 s60, 0                 ; block
    """)
    if cfg.get("w64"):
        A(f"""
        s_lshr_b32 s47, s50, 1           ; branch = w>>1
        s_cmp_eq_u32 s47, 0
        s_cselect_b32 s20, s6, s8
        s_cselect_b32 s21, s7, s9
        s_mov_b32 s24, s20
        s_mov_b32 s25, s21
        s_mov_b32 s28, s20
        s_mov_b32 s29, s21
        v_lshrrev_b32 v1, 2, v0
        v_mul_u32_u24 v1, 6144, v1
        v_and_b32 v3, 3, v0
        v_lshl_add_u32 v1, v3, 4, v1
        s_lshl_b32 s47, s42, 6           ; h*64
        v_add_u32 v1, s47, v1
        s_and_b32 s51, s50, 1
        s_cmp_eq_u32 s51, 0
        s_cselect_b32 s47, 0, {2048 + 16*6144}
        v_add_u32 v8, s47, v1
        s_mov_b32 s62, 4096
        s_cselect_b32 s47, {16*6144}, s62
        v_add_u32 v9, s47, v1
        s_mov_b32 s62, 2048
        s_cselect_b32 s47, s62, {4096 + 16*6144}
        v_add_u32 v10, s47, v1
        s_lshl_b32 s51, s50, 10
        """)
    stamp(A, cfg, 1)
    A(f"""
    K1_LLOOP:
    s_add_u32 s61, s57, s55
    s_add_u32 s62, s57, s56
    """)
    xfl = cfg.get("xfl", "").replace("+", " "); wfl = cfg.get("wfl", "").replace("+", " ")
    if cfg.get("nodma"):
        A("s_cmp_ge_u32 s60, 5"); A("s_cbranch_scc1 K1_NODMA")
    for i in range(4):
        A(f"s_add_u32 m0, s61, {i*1024}")
        A("s_nop 0")
        A(f"buffer_load_dwordx4 v{4+i}, s[16:19], s58 offen {xfl} lds")
    for sg in range(3):
        A(f"s_add_u32 m0, s62, {sg*4096}")
        A("s_nop 0")
        A(f"buffer_load_dwordx4 v{8+sg}, s[{20+4*sg}:{23+4*sg}], s59 offen {wfl} lds")
    if cfg.get("nodma"): A.label("K1_NODMA")
    if cfg.get("samedma"):
        A("s_cmp_eq_u32 s60, 4")
        A("s_cselect_b32 s58, 0, s58")
        A("s_cselect_b32 s59, 0, s59")
        A("s_and_b32 s58, s58, 0xff")
        A("s_and_b32 s59, s59, 0x3ffff")
    if cfg.get("fake128"):
        A("s_xor_b32 s63, s63, 1")
        A("s_cmp_eq_u32 s63, 1")
        A(f"s_cselect_b32 s64, {8*2048}, s65")
        A("s_add_u32 s58, s58, s64")
    A(f"""
    s_add_u32 s58, s58, {0 if cfg.get("fake128") else 64}
    s_add_u32 s59, s59, {32*6144}
    s_add_u32 s57, s57, {K1_SLOT}
    s_cmp_eq_u32 s57, {K1_SLOT*K1_NSLOT}
    s_cselect_b32 s57, 0, s57
    s_add_u32 s60, s60, 1
    s_cmp_lt_u32 s60, 4
    s_cbranch_scc1 K1_LLOOP
    """)
    if cfg.get("prof"):
        A("s_cmp_lg_u32 s60, 4"); A("s_cbranch_scc1 K1_PSK")
        stamp(A, cfg, 2)
        A("s_waitcnt vmcnt(21)")
        stamp(A, cfg, 3)
        A("s_waitcnt vmcnt(14)")
        stamp(A, cfg, 4)
        A.label("K1_PSK")
    A(f"""
    s_waitcnt vmcnt(14)
    s_barrier
    s_cmp_lt_u32 s60, 32
    s_cbranch_scc1 K1_LLOOP
    s_waitcnt vmcnt(7)
    s_barrier
    s_waitcnt vmcnt(0)
    s_barrier
    """)
    srd(A, 36, 12, 2048)
    A(f"""
    s_lshl_b32 s47, s41, 8
    s_lshl_b32 s51, s42, 3
    s_add_u32 s47, s47, s51
    s_lshl_b32 s51, s50, 1
    s_add_u32 s47, s47, s51          ; t0
    s_lshl_b32 s51, s47, 11
    v_lshlrev_b32 v1, 5, v0
    buffer_load_dwordx4 v[32:35], v1, s[36:39], 0 offen
    buffer_load_dwordx4 v[36:39], v1, s[36:39], 0 offen offset:16
    buffer_load_dwordx4 v[16:19], v1, s[16:19], s51 offen
    buffer_load_dwordx4 v[20:23], v1, s[16:19], s51 offen offset:16
    buffer_load_dwordx4 v[24:27], v1, s[16:19], s51 offen offset:2048
    buffer_load_dwordx4 v[28:31], v1, s[16:19], s51 offen offset:2064
    s_barrier
    v_mov_b32 v40, 0
    v_mov_b32 v41, 0
    s_barrier
    s_waitcnt vmcnt(0)
    """)
    for k in range(8):
        A(f"v_dot2c_f32_bf16 v40, v{16+k}, v{32+k}")
        A(f"v_dot2c_f32_bf16 v41, v{24+k}, v{32+k}")
    A("v_lshlrev_b32 v3, 2, v0")
    A.nop(3)
    for mask in (1, 2, 4, 8, 16, 32):
        A(f"""
        v_xor_b32 v4, {mask*4}, v3
        ds_bpermute_b32 v5, v4, v40
        ds_bpermute_b32 v6, v4, v41
        s_waitcnt lgkmcnt(0)
        v_add_f32 v40, v40, v5
        v_add_f32 v41, v41, v6
        """)
    A(f"""
    v_cmp_eq_u32 vcc, 1, v0
    s_nop 1
    v_cndmask_b32 v40, v40, v41, vcc
    v_mul_f32 v40, {fhex(-LOG2E)}, v40
    v_exp_f32 v40, v40
    s_nop 0
    v_add_f32 v40, 1.0, v40
    v_rcp_f32 v40, v40
    s_lshl_b32 s47, s47, 2
    s_add_u32 s47, s47, {WS_G}
    s_mov_b64 exec, 3
    buffer_store_dword v40, v3, s[32:35], s47 offen
    s_cmp_lg_u32 s50, 0
    s_cbranch_scc1 K1_NOZ
    v_lshlrev_b32 v4, 10, v0
    v_mov_b32 v5, 0
    s_lshl_b32 s47, s2, 2
    s_add_u32 s47, s47, {WS_FLAG}
    buffer_store_dword v5, v4, s[32:35], s47 offen
    K1_NOZ:
    """)
    prof_store(A, cfg, 0, 5, 40, 14)
    A(f"""
    K1_END:
    s_endpgm
    """)
    return K, K1_LDS
```

```python
from common import *

K2_RING = 131072
K2_KVT = K2_RING
K2_Z = K2_RING + 4096
K2_LDS = K2_Z + 256
BIAS = 48.0
K3_SLOT = 16384
K3_ROW = 272
K3_RED = 128 * K3_ROW
SPIN_MAX = 1 << 16

def poll_check(A, vreg, soff, tag):
    ok = A.uid(tag + "_OK"); sp = A.uid(tag + "_SP")
    A(f"""
    v_cmp_eq_u32 vcc, 1, v{vreg}
    s_cmp_eq_u64 vcc, -1
    s_cbranch_scc1 {ok}
    s_mov_b32 s37, 0
    {sp}:
    s_sleep 2
    buffer_load_dword v{vreg}, v45, s[32:35], {soff} offen sc1
    s_add_u32 s37, s37, 1
    s_waitcnt vmcnt(0)
    v_cmp_eq_u32 vcc, 1, v{vreg}
    s_cmp_eq_u64 vcc, -1
    s_cbranch_scc1 {ok}
    s_cmp_lt_u32 s37, {SPIN_MAX}
    s_cbranch_scc1 {sp}
    {ok}:
    """)

def gen_k23(A, cfg):
    FLAGP = int(cfg.get("flagp", 5)); TOUCHP = int(cfg.get("touchp", 6))
    K = "k23_attn_out_kernel"
    SC = "" if cfg.get("nosc") else "sc1"
    kernel_begin(A, K)
    A(f"""
    s_cmp_ge_u32 s2, 256
    s_cbranch_scc1 K2_END
    s_load_dwordx2 s[14:15], s[0:1], 80
    s_load_dwordx2 s[4:5], s[0:1], 24
    s_load_dwordx2 s[6:7], s[0:1], 48
    s_load_dwordx2 s[8:9], s[0:1], 64
    v_lshrrev_b32 v1, 6, v0
    v_and_b32 v0, 63, v0
    v_readfirstlane_b32 s40, v1      ; wave
    s_and_b32 s45, s2, 7
    s_lshr_b32 s46, s2, 3
    s_lshr_b32 s47, s46, 3
    s_lshl_b32 s41, s45, 2
    s_add_u32 s41, s41, s47          ; h = 4e + (i>>3)
    s_and_b32 s42, s46, 7            ; qb
    s_lshl_b32 s43, s42, 3
    s_add_u32 s43, s43, s40
    s_lshl_b32 s44, s41, 6
    s_add_u32 s44, s44, s43          ; h*64 + tb
    v_lshlrev_b32 v3, 4, v0          ; lane*16
    s_lshl_b32 s50, s44, 11
    s_add_u32 s50, s50, {WS_QB}      ; Q offset
    s_lshl_b32 s51, s41, 18
    s_add_u32 s51, s51, {WS_KVB}
    s_lshl_b32 s52, s40, 11          ; wave*2048
    s_add_u32 s53, s51, s52
    s_mov_b32 s54, s52
    s_lshl_b32 s55, s41, 16
    s_add_u32 s55, s55, {WS_KVP}
    s_lshl_b32 s56, s40, 10
    s_add_u32 s55, s55, s56
    s_lshl_b32 s56, s41, 11
    s_add_u32 s56, s56, {WS_ZP}
    s_lshl_b32 s57, s44, 12
    s_add_u32 s57, s57, {WS_PHIQ}
    v_lshlrev_b32 v2, 2, v0          ; lane*4
    """)
    stamp(A, cfg, 0)
    A("s_waitcnt lgkmcnt(0)")
    srd(A, 32, 14, WS_USED)
    Q, K0, K1, V0, V1, SEL, NEGM, SA, SB, O, L, P = 8, 16, 20, 24, 28, 40, 48, 64, 80, 96, 112, 120
    PHQ, KVP, ZP = 128, 144, 176
    def dma_chunk():
        A("s_mov_b32 m0, s54")
        A("s_add_u32 s54, s54, 16384")
        A("buffer_load_dwordx4 v3, s[32:35], s53 offen lds")
        A("buffer_load_dwordx4 v3, s[32:35], s53 offen offset:1024 lds")
        A(f"s_and_b32 s54, s54, {K2_RING-1}")
        A("s_add_u32 s53, s53, 16384")
    A(f"buffer_load_dwordx4 v[{Q}:{Q+3}], v3, s[32:35], s50 offen")
    A(f"buffer_load_dwordx4 v[{Q+4}:{Q+7}], v3, s[32:35], s50 offen offset:1024")
    dma_chunk(); dma_chunk()
    for r in range(8):
        A(f"buffer_load_dwordx4 v[{KVP+4*r}:{KVP+4*r+3}], v3, s[32:35], s55 offen")
        A("s_add_u32 s55, s55, 8192")
    for r in range(8):
        A(f"buffer_load_dword v{ZP+r}, v2, s[32:35], s56 offen offset:{256*r}")
    for s in range(4):
        A(f"buffer_load_dwordx4 v[{PHQ+4*s}:{PHQ+4*s+3}], v3, s[32:35], s57 offen offset:{1024*s}")
    for c in range(4): dma_chunk()
    A(f"""
    s_lshr_b32 s16, s45, 1
    s_lshl_b32 s16, s16, 2
    s_lshr_b32 s47, s46, 3
    s_add_u32 s16, s16, s47          ; T = 4*(e>>1) + (i>>3)
    s_and_b32 s17, s45, 1
    s_lshl_b32 s38, s17, 10          ; (e&1)*1024 bytes
    s_lshl_b32 s17, s17, 3
    s_and_b32 s47, s46, 7
    s_add_u32 s17, s17, s47          ; C = 8*(e&1) + (i&7)
    s_lshr_b32 s18, s40, 2           ; grp
    s_and_b32 s19, s40, 3            ; tq
    s_cmp_lt_u32 s46, 16
    s_cselect_b32 s20, s4, s6
    s_cselect_b32 s21, s5, s7
    s_mov_b32 s22, {1024*2048}
    s_mov_b32 s23, 0x00020000
    s_and_b32 s47, s46, 15
    s_lshl_b32 s47, s47, 3
    s_add_u32 s47, s47, s40          ; 8*(i&15) + w
    s_lshl_b32 s47, s47, 14          ; *8 rows*2048
    s_add_u32 s47, s47, s38
    v_lshrrev_b32 v4, 3, v0
    v_lshlrev_b32 v4, 11, v4
    v_and_b32 v5, 7, v0
    v_lshl_add_u32 v4, v5, 7, v4
    """)
    A("v_add_u32 v46, s47, v4")
    A("s_mov_b32 s24, s20"); A("s_mov_b32 s25, s21"); A("s_mov_b32 s26, s22"); A("s_mov_b32 s27, s23")
    A(f"""
    s_mov_b32 s20, s4
    s_mov_b32 s21, s5
    s_lshl_b32 s47, s16, 2
    s_add_u32 s47, s47, s19          ; tb3
    s_lshl_b32 s28, s47, 16
    s_lshl_b32 s38, s18, 15
    s_add_u32 s28, s28, s38
    s_add_u32 s28, s28, {WS_OA}
    s_lshl_b32 s31, s47, 7
    s_add_u32 s31, s31, {WS_G}       ; g offset
    s_lshr_b32 s36, s16, 1
    s_lshl_b32 s36, s36, 7
    s_add_u32 s36, s36, {WS_FLAG}
    s_lshl_b32 s39, s42, 5
    s_add_u32 s39, s39, s41
    s_lshl_b32 s39, s39, 2
    s_add_u32 s39, s39, {WS_FLAG}
    v_and_b32 v45, 31, v0
    v_lshlrev_b32 v45, 2, v45        ; (l&31)*4
    v_lshrrev_b32 v5, 3, v0
    v_lshlrev_b32 v5, 11, v5         ; r*2048
    v_bfe_u32 v6, v0, 4, 1
    v_lshlrev_b32 v6, 2, v6
    v_and_b32 v7, 7, v0
    v_xor_b32 v7, v7, v6
    v_lshl_add_u32 v5, v7, 4, v5
    s_lshl_b32 s47, s18, 9
    s_lshl_b32 s38, s19, 4
    s_add_u32 s47, s47, s38
    s_lshl_b32 s47, s47, 11
    s_lshl_b32 s38, s17, 7
    s_add_u32 s47, s47, s38          ; + C*128
    v_add_u32 v36, s47, v5           ; piece 0
    v_add_u32 v37, {16384 - 1024}, v36
    s_lshl_b32 s30, s18, 13
    s_lshl_b32 s38, s19, 11
    s_add_u32 s30, s30, s38
    s_mov_b32 s29, 0
    v_lshrrev_b32 v7, 5, v0          ; hh
    v_bfe_u32 v6, v0, 2, 2           ; i>>2
    v_lshl_add_u32 v7, v7, 2, v6
    v_lshlrev_b32 v7, 7, v7
    v_bfe_u32 v6, v0, 4, 1
    v_bfe_u32 v5, v0, 1, 1
    v_lshl_add_u32 v6, v6, 1, v5
    v_bfe_u32 v5, v0, 3, 1
    v_lshlrev_b32 v5, 2, v5
    v_xor_b32 v6, v6, v5
    v_lshl_add_u32 v7, v6, 4, v7
    v_and_b32 v5, 1, v0
    v_lshl_add_u32 v7, v5, 3, v7
    s_lshl_b32 s38, s18, 13
    v_add_u32 v38, s38, v7           ; cb=0
    v_xor_b32 v39, 64, v38           ; cb=1
    """)
    A(f"""
    v_bfe_u32 v4, v0, 2, 1
    v_bfe_u32 v5, v0, 4, 1
    v_cmp_eq_u32 vcc, v4, v5
    v_mov_b32 v5, 0x3f803f80
    v_mov_b32 v4, 0
    v_cndmask_b32 v{SEL}, v4, v5, vcc
    v_cndmask_b32 v{SEL+1}, v4, v5, vcc
    v_cndmask_b32 v{SEL+2}, v4, v5, vcc
    v_cndmask_b32 v{SEL+3}, v4, v5, vcc
    """)
    for i in range(16): A(f"v_mov_b32 v{O+i}, 0")
    for i in range(4):
        A(f"v_mov_b32 v{L+i}, 0"); A(f"v_mov_b32 v{V1+i}, 0"); A(f"v_mov_b32 v{P+4+i}, 0")
    A(f"""
    s_lshr_b32 s58, s40, 1
    s_lshl_b32 s58, s58, 10
    s_and_b32 s59, s40, 1
    s_lshl_b32 s59, s59, 3
    s_add_u32 s58, s58, s59
    s_add_u32 s58, s58, {K2_KVT}
    v_add_u32 v4, s58, v3
    v_lshlrev_b32 v5, 1, v0
    v_add_u32 v5, {K2_Z}, v5
    s_waitcnt vmcnt(12)
    """)
    for r in range(1, 8):
        A(f"v_pk_add_f32 v[{KVP}:{KVP+1}], v[{KVP}:{KVP+1}], v[{KVP+4*r}:{KVP+4*r+1}]")
        A(f"v_pk_add_f32 v[{KVP+2}:{KVP+3}], v[{KVP+2}:{KVP+3}], v[{KVP+4*r+2}:{KVP+4*r+3}]")
        A(f"v_add_f32 v{ZP}, v{ZP}, v{ZP+r}")
    A(f"""
    v_cvt_pk_bf16_f32 v6, v{KVP}, v{KVP+1}
    v_cvt_pk_bf16_f32 v7, v{KVP+2}, v{KVP+3}
    v_cvt_pk_bf16_f32 v{ZP}, v{ZP}, v{ZP}
    ds_write_b64 v4, v[6:7]
    ds_write_b16 v5, v{ZP}
    s_waitcnt vmcnt(8) lgkmcnt(0)
    s_barrier
    """)
    stamp(A, cfg, 1)
    KVT, ZR, NUM, DEN = 144, 160, 176, 192
    A(f"""
    v_add_u32 v4, {K2_KVT}, v3
    v_lshrrev_b32 v5, 5, v0
    v_lshlrev_b32 v5, 3, v5
    v_add_u32 v5, {K2_Z}, v5         ; Z + hh*8
    """)
    for s in range(4):
        A(f"ds_read_b128 v[{KVT+4*s}:{KVT+4*s+3}], v4 offset:{s*1024}")
        A(f"ds_read_b64 v[{ZR+4*s}:{ZR+4*s+1}], v5 offset:{32*s}")
        A(f"ds_read_b64 v[{ZR+4*s+2}:{ZR+4*s+3}], v5 offset:{32*s+16}")
    KP, SP = 208, 128
    for t in range(4):
        A(f"ds_read_b128 v[{KP+8*t}:{KP+8*t+3}], v3 offset:{t*4096}")
        A(f"ds_read_b128 v[{KP+8*t+4}:{KP+8*t+7}], v3 offset:{t*4096+1024}")
    A("s_waitcnt lgkmcnt(8)")
    for s in range(4):
        c = "0" if s == 0 else f"v[{NUM}:{NUM+15}]"
        A(f"v_mfma_f32_32x32x16_bf16 v[{NUM}:{NUM+15}], v[{KVT+4*s}:{KVT+4*s+3}], v[{PHQ+4*s}:{PHQ+4*s+3}], {c}")
        c = "0" if s == 0 else f"v[{DEN}:{DEN+15}]"
        A(f"v_mfma_f32_32x32x16_bf16 v[{DEN}:{DEN+15}], v[{ZR+4*s}:{ZR+4*s+3}], v[{PHQ+4*s}:{PHQ+4*s+3}], {c}")
    A(f"""
    s_lshl_b32 s58, s43, 5
    s_add_u32 s58, s58, s41          ; tb*32 + h
    s_lshl_b32 s58, s58, 11
    s_add_u32 s59, s58, {WS_OB}
    s_add_u32 s58, s58, {WS_OA}
    """)
    A.nop(8)
    A(f"v_add_f32 v4, {fhex(1e-6)}, v{DEN}")
    A("v_rcp_f32 v4, v4")
    A("s_nop 0")
    for k in range(8):
        A(f"v_pk_mul_f32 v[{NUM+2*k}:{NUM+2*k+1}], v[{NUM+2*k}:{NUM+2*k+1}], v[4:5] op_sel_hi:[1,0]")
    OA = 192
    for i in range(8):
        A(f"v_cvt_pk_bf16_f32 v{OA+i}, v{NUM+2*i}, v{NUM+2*i+1}")
    A(f"buffer_store_dwordx4 v[{OA}:{OA+3}], v3, s[32:35], s58 offen {SC}")
    A(f"buffer_store_dwordx4 v[{OA+4}:{OA+7}], v3, s[32:35], s58 offen offset:1024 {SC}")
    A("s_waitcnt lgkmcnt(0)")
    for t in range(4):
        A(f"v_mfma_f32_32x32x16_bf16 v[{SP+16*t}:{SP+16*t+15}], v[{KP+8*t}:{KP+8*t+3}], v[{Q}:{Q+3}], 0")
    for t in range(4):
        A(f"v_mfma_f32_32x32x16_bf16 v[{SP+16*t}:{SP+16*t+15}], v[{KP+8*t+4}:{KP+8*t+7}], v[{Q+4}:{Q+7}], v[{SP+16*t}:{SP+16*t+15}]")
    A(f"""
    v_mov_b32 v1, v3                 ; cur
    v_add_u32 v2, 16384, v3          ; next
    """)
    A.nop(10)
    A(f"v_max3_f32 v4, v{SP}, v{SP+1}, v{SP+2}")
    A(f"v_max3_f32 v5, v{SP+3}, v{SP+4}, v{SP+5}")
    for k in range(6, 64, 4):
        if k + 3 < 64:
            A(f"v_max3_f32 v4, v4, v{SP+k}, v{SP+k+1}")
            A(f"v_max3_f32 v5, v5, v{SP+k+2}, v{SP+k+3}")
        else:
            A(f"v_max3_f32 v4, v4, v{SP+k}, v{SP+k+1}")
    A("v_max_f32 v4, v4, v5")
    A("v_mov_b32 v5, v4")
    A.nop(2)
    A("v_permlane32_swap_b32 v4, v5")
    A("s_nop 0")
    A("v_max_f32 v4, v4, v5")
    A(f"v_add_f32 v4, {fhex(BIAS)}, v4")
    for i in range(16):
        A(f"v_sub_f32 v{NEGM+i}, 0, v4")
    A("s_nop 1")
    A(f"v_mfma_f32_32x32x16_bf16 v[{SA}:{SA+15}], v[{KP}:{KP+3}], v[{Q}:{Q+3}], v[{NEGM}:{NEGM+15}]")
    A(f"v_mfma_f32_32x32x16_bf16 v[{SA}:{SA+15}], v[{KP+4}:{KP+7}], v[{Q+4}:{Q+7}], v[{SA}:{SA+15}]")
    A(f"ds_read_b128 v[{K0}:{K0+3}], v1 offset:4096")
    A(f"ds_read_b128 v[{K1}:{K1+3}], v1 offset:{4096+1024}")
    A(f"ds_read_b128 v[{V0}:{V0+3}], v1 offset:2048")
    A("s_mov_b32 s60, 0")
    A(f"s_mov_b32 s48, {(1<<FLAGP) | (1<<TOUCHP) | 0xfc00}")
    A.nop(8)
    stamp(A, cfg, 2)
    G, OMG = 32, 34
    OF = 128
    WF = 192
    ACC = 64
    ACS = 224
    def issue(slot):
        A(f"s_add_u32 m0, s30, {slot*K3_SLOT}")
        for j in range(4):
            r = OF + 16*slot + 4*j
            A(f"buffer_load_dwordx4 v[{r}:{r+3}], v3, s[32:35], s28 offen offset:{j*1024} {SC}")
        A(f"buffer_load_dwordx4 v36, s[20:23], s29 offen lds")
        A(f"buffer_load_dwordx4 v37, s[20:23], s29 offen offset:1024 lds")
        A("s_add_u32 s28, s28, 4096")
        A(f"s_add_u32 s29, s29, {64*2048}")
    A.label("K2_LOOP")
    A("s_bitcmp1_b32 s48, s60")
    A("s_cbranch_scc1 K2_TAIL")
    A.label("K2_DMA")
    dma_chunk()
    A.label("K2_NOLD")
    def tile(i, Sa, Sb):
        e = lambda k: f"v_exp_f32 v{Sa+k}, v{Sa+k}"
        c = lambda k: f"v_cvt_pk_bf16_f32 v{P+k}, v{Sa+2*k}, v{Sa+2*k+1}"
        QK0 = f"v_mfma_f32_32x32x16_bf16 v[{Sb}:{Sb+15}], v[{K0}:{K0+3}], v[{Q}:{Q+3}], v[{NEGM}:{NEGM+15}]"
        QK1 = f"v_mfma_f32_32x32x16_bf16 v[{Sb}:{Sb+15}], v[{K1}:{K1+3}], v[{Q+4}:{Q+7}], v[{Sb}:{Sb+15}]"
        PV0 = f"v_mfma_f32_32x32x16_bf16 v[{O}:{O+15}], v[{V0}:{V0+3}], v[{P}:{P+3}], v[{O}:{O+15}]"
        PV1 = f"v_mfma_f32_32x32x16_bf16 v[{O}:{O+15}], v[{V1}:{V1+3}], v[{P+4}:{P+7}], v[{O}:{O+15}]"
        L0 = f"v_mfma_f32_16x16x32_bf16 v[{L}:{L+3}], v[{SEL}:{SEL+3}], v[{P}:{P+3}], v[{L}:{L+3}]"
        L1 = f"v_mfma_f32_16x16x32_bf16 v[{L}:{L+3}], v[{SEL}:{SEL+3}], v[{P+4}:{P+7}], v[{L}:{L+3}]"
        W = "s_waitcnt lgkmcnt(3)"
        def addr(tt, fr):
            return (f"v1 offset:{tt*4096+fr*1024}" if tt < 4 else f"v2 offset:{(tt-4)*4096+fr*1024}")
        rK0 = f"ds_read_b128 v[{K0}:{K0+3}], {addr(i+2, 0)}"; rK1 = f"ds_read_b128 v[{K1}:{K1+3}], {addr(i+2, 1)}"
        rV0 = f"ds_read_b128 v[{V0}:{V0+3}], {addr(i+1, 2)}"; rV1 = f"ds_read_b128 v[{V1}:{V1+3}], {addr(i, 3)}"
        seq = [e(0), e(1), W, PV1, rV1, e(2), e(3), e(4), e(5), W, QK0, rK0, e(6), e(7), c(0), c(1), L1, c(2), c(3), e(8), W, QK1, rK1,
               e(9), e(10), e(11), W, PV0, rV0, e(12), e(13), e(14), L0, e(15), c(4), c(5), c(6), c(7)]
        for x in seq: A(x)
    for i in range(4):
        tile(i, SA if i % 2 == 0 else SB, SB if i % 2 == 0 else SA)
    A(f"""
    v_mov_b32 v1, v2
    v_add_u32 v2, 16384, v2
    v_and_b32 v2, {K2_RING-1}, v2
    s_cmp_ge_u32 s60, 10
    s_cbranch_scc1 K2_W0
    s_waitcnt vmcnt(8)
    K2_W1:
    s_add_u32 s60, s60, 1
    s_cmp_lt_u32 s60, 16
    s_barrier
    s_cbranch_scc1 K2_LOOP
    s_waitcnt lgkmcnt(0)
    v_mfma_f32_32x32x16_bf16 v[{O}:{O+15}], v[{V1}:{V1+3}], v[{P+4}:{P+7}], v[{O}:{O+15}]
    v_mfma_f32_16x16x32_bf16 v[{L}:{L+3}], v[{SEL}:{SEL+3}], v[{P+4}:{P+7}], v[{L}:{L+3}]
    """)
    stamp(A, cfg, 3)
    A.nop(12)
    A.label("K2_FIN")
    A(f"v_rcp_f32 v4, v{L}")
    A("s_nop 0")
    for k in range(8):
        A(f"v_pk_mul_f32 v[{O+2*k}:{O+2*k+1}], v[{O+2*k}:{O+2*k+1}], v[4:5] op_sel_hi:[1,0]")
    A("v_mov_b32 v6, 0")
    for k in range(16):
        A(f"v_fma_f32 v6, v{O+k}, 0, v6")
    A(f"""
    v_mov_b32 v7, {fhex(2.0**120)}
    v_cmp_u_f32 vcc, v6, v6
    v_cmp_nlt_f32 s[62:63], v{L}, v7
    s_or_b64 vcc, vcc, s[62:63]
    """)
    if cfg.get("force_fb"):
        A("s_mov_b64 vcc, -1")
    A(f"""
    s_cmp_eq_u32 s60, 16
    s_cselect_b64 vcc, vcc, 0
    s_cbranch_vccnz K2_FB
    """)
    for i in range(8):
        A(f"v_cvt_pk_bf16_f32 v{P+i}, v{O+2*i}, v{O+2*i+1}")
    A(f"buffer_store_dwordx4 v[{P}:{P+3}], v3, s[32:35], s59 offen {SC}")
    A(f"buffer_store_dwordx4 v[{P+4}:{P+7}], v3, s[32:35], s59 offen offset:1024 {SC}")
    for i in range(32): A(f"v_mov_b32 v{ACC+i}, 0")
    A(f"""
    s_add_u32 s39, s39, 1024
    s_add_u32 s36, s36, 1024
    s_waitcnt vmcnt(0)
    s_barrier
    s_cmp_lg_u32 s40, 0
    s_cbranch_scc1 K3_NOFL
    s_mov_b64 exec, 1
    v_mov_b32 v4, 1
    v_mov_b32 v5, 0
    buffer_store_dword v4, v5, s[32:35], s39 offen sc1
    s_mov_b64 exec, -1
    K3_NOFL:
    s_mov_b32 s60, 0
    """)
    stamp(A, cfg, 4)
    A.label("K3_LOOP")
    for u in range(4):
        A("s_waitcnt vmcnt(12)")
        if u == 1:
            j = A.uid("K3_NP")
            A(f"s_cmp_lg_u32 s60, 1"); A(f"s_cbranch_scc1 {j}")
            poll_check(A, 47, "s36", "PB")
            A.label(j)
        A("s_barrier")
        for j in range(4):
            for cb in range(2):
                for sec in range(2):
                    r = WF + 8*j + 4*cb + 2*sec
                    A(f"ds_read_b64_tr_b16 v[{r}:{r+1}], v{38+cb} offset:{u*K3_SLOT + (16*j+8*sec)*128}")
        if u == 1:
            A(f"""
            s_cmp_eq_u32 s60, 1
            s_cselect_b32 s20, s6, s20
            s_cselect_b32 s21, s7, s21
            s_cselect_b32 s29, 0, s29
            s_cselect_b32 s38, {4*MB - 32768}, 0
            s_add_u32 s28, s28, s38
            s_cmp_eq_u32 s60, 3
            s_cselect_b32 s22, 0, s22
            s_cselect_b32 s34, 0, s34
            """)
        if u == 3:
            j = A.uid("K3_NI")
            A(f"s_cmp_lg_u32 s60, 0"); A(f"s_cbranch_scc1 {j}")
            A("buffer_load_dword v47, v45, s[32:35], s36 offen sc1")
            A.label(j)
        issue((u + 3) % 4)
        for j in range(4):
            for cb in range(2):
                A(f"s_waitcnt lgkmcnt({14 - 4*j - 2*cb})")
                w = WF + 8*j + 4*cb; o = OF + 16*u + 4*j; a = ACC + 16*cb
                A(f"v_mfma_f32_32x32x16_bf16 v[{a}:{a+15}], v[{w}:{w+3}], v[{o}:{o+3}], v[{a}:{a+15}]")
    A(f"""
    s_add_u32 s60, s60, 1
    s_cmp_lg_u32 s60, 2
    s_cbranch_scc1 K3_NOSW
    """)
    stamp(A, cfg, 5)
    A.nop(14)
    for k in range(16):
        A(f"v_pk_mul_f32 v[{ACS+2*k}:{ACS+2*k+1}], v[{ACC+2*k}:{ACC+2*k+1}], v[{G}:{G+1}] op_sel_hi:[1,0]")
    for k in range(32): A(f"v_mov_b32 v{ACC+k}, 0")
    A(f"""
    K3_NOSW:
    s_cmp_lt_u32 s60, 4
    s_cbranch_scc1 K3_LOOP
    """)
    stamp(A, cfg, 6)
    A(f"""
    v_sub_f32 v{OMG}, 1.0, v{G}
    v_and_b32 v4, 31, v0
    s_lshl_b32 s38, s19, 5
    v_add_u32 v4, s38, v4
    v_mul_u32_u24 v4, {K3_ROW}, v4
    v_lshrrev_b32 v5, 5, v0
    v_lshl_add_u32 v4, v5, 4, v4
    s_mul_i32 s38, s18, {K3_RED}
    v_add_u32 v4, s38, v4
    s_lshl_b32 s38, s40, 6
    v_add_u32 v10, s38, v0           ; tid
    v_lshrrev_b32 v5, 3, v10
    v_and_b32 v6, 7, v10             ; chunk
    v_mul_u32_u24 v7, {K3_ROW}, v5
    v_lshl_add_u32 v7, v6, 5, v7
    s_lshl_b32 s38, s16, 7
    v_add_u32 v5, s38, v5
    v_lshlrev_b32 v5, 11, v5
    v_lshl_add_u32 v5, v6, 4, v5
    s_lshl_b32 s38, s17, 7
    v_add_u32 v5, s38, v5
    s_waitcnt vmcnt(0)
    s_barrier
    """)
    srd(A, 24, 8, 4194304)
    A.nop(6)
    for k in range(16):
        A(f"v_pk_fma_f32 v[{ACC+2*k}:{ACC+2*k+1}], v[{ACC+2*k}:{ACC+2*k+1}], v[{OMG}:{OMG+1}], v[{ACS+2*k}:{ACS+2*k+1}] op_sel_hi:[1,0,1]")
    for cb in range(2):
        for q in range(4):
            r = ACC + 16*cb + 4*q
            A(f"ds_write_b128 v4, v[{r}:{r+3}] offset:{cb*128 + q*32}")
    A("s_waitcnt lgkmcnt(0)")
    A("s_barrier")
    R = 128
    for it in range(2):
        for g in range(2):
            for hf in range(2):
                r = R + 16*it + 8*g + 4*hf
                A(f"ds_read_b128 v[{r}:{r+3}], v7 offset:{it*64*K3_ROW + g*K3_RED + hf*16}")
    for it in range(2):
        A(f"s_waitcnt lgkmcnt({4 - 4*it})")
        r = R + 16*it
        for k in range(4):
            A(f"v_pk_add_f32 v[{r+2*k}:{r+2*k+1}], v[{r+2*k}:{r+2*k+1}], v[{r+8+2*k}:{r+8+2*k+1}]")
        for k in range(4):
            A(f"v_cvt_pk_bf16_f32 v{r+k}, v{r+2*k}, v{r+2*k+1}")
        A(f"buffer_store_dwordx4 v[{r}:{r+3}], v5, s[24:27], 0 offen")
        if it == 0: A(f"v_add_u32 v5, {64*2048}, v5")
    if cfg.get("prof"):
        A("s_waitcnt vmcnt(0)")
        stamp(A, cfg, 7)
        A(f"s_mov_b32 s34, {WS_USED}")
    prof_store(A, cfg, 1, 8, 40, 14)
    A("s_endpgm")
    A(f"""
    K2_TAIL:
    s_cmp_eq_u32 s60, {TOUCHP}
    s_cbranch_scc0 K2_TF
    buffer_load_dword v44, v46, s[24:27], 0 offen
    s_branch K2_DMA
    K2_TF:
    s_cmp_eq_u32 s60, {FLAGP}
    s_cbranch_scc0 K2_T12
    s_cmp_lg_u32 s40, 0
    s_cbranch_scc1 K2_DMA
    s_mov_b64 exec, 1
    v_mov_b32 v4, 1
    v_mov_b32 v5, 0
    buffer_store_dword v4, v5, s[32:35], s39 offen sc1
    s_mov_b64 exec, -1
    s_branch K2_DMA
    K2_T12:
    s_cmp_eq_u32 s60, 12
    s_cbranch_scc0 K2_T14
    buffer_load_dword v47, v45, s[32:35], s36 offen sc1
    s_branch K2_NOLD
    K2_T14:
    s_cmp_eq_u32 s60, 14
    s_cbranch_scc0 K2_T15
    v_and_b32 v4, 31, v0
    v_lshlrev_b32 v4, 2, v4
    buffer_load_dword v{G}, v4, s[32:35], s31 offen
    """)
    issue(0); issue(1)
    A(f"""
    s_branch K2_NOLD
    K2_T15:
    s_cmp_eq_u32 s60, 15
    s_cbranch_scc0 K2_NOLD
    """)
    issue(2)
    A("s_branch K2_NOLD")
    A(f"""
    K2_W0:
    s_cmp_eq_u32 s60, 10
    s_cbranch_scc0 K2_W13
    s_waitcnt vmcnt(0)
    s_branch K2_W1
    K2_W13:
    s_cmp_eq_u32 s60, 13
    s_cbranch_scc0 K2_W1
    s_waitcnt vmcnt(0)
    """)
    poll_check(A, 47, "s36", "PA")
    A("s_branch K2_W1")
    A.label("K2_FB")
    A("s_mov_b32 s60, 17")
    A("s_mov_b32 s61, 0")
    for i in range(16): A(f"v_mov_b32 v{O+i}, 0")
    for i in range(4): A(f"v_mov_b32 v{L+i}, 0")
    A(f"v_mov_b32 v44, 0xff800000")
    A.label("K2_FBL")
    A(f"""
    buffer_load_dwordx4 v[{K0}:{K0+3}], v3, s[32:35], s51 offen
    buffer_load_dwordx4 v[{K1}:{K1+3}], v3, s[32:35], s51 offen offset:1024
    buffer_load_dwordx4 v[{V0}:{V0+3}], v3, s[32:35], s51 offen offset:2048
    buffer_load_dwordx4 v[{V1}:{V1+3}], v3, s[32:35], s51 offen offset:3072
    s_add_u32 s51, s51, 4096
    s_waitcnt vmcnt(0)
    v_mfma_f32_32x32x16_bf16 v[{SA}:{SA+15}], v[{K0}:{K0+3}], v[{Q}:{Q+3}], 0
    v_mfma_f32_32x32x16_bf16 v[{SA}:{SA+15}], v[{K1}:{K1+3}], v[{Q+4}:{Q+7}], v[{SA}:{SA+15}]
    """)
    A.nop(12)
    A(f"v_max3_f32 v4, v{SA}, v{SA+1}, v{SA+2}")
    for k in range(3, 15, 2):
        A(f"v_max3_f32 v4, v4, v{SA+k}, v{SA+k+1}")
    A(f"v_max3_f32 v4, v4, v{SA+15}, v44")
    A("v_mov_b32 v5, v4")
    A.nop(2)
    A("v_permlane32_swap_b32 v4, v5")
    A("s_nop 0")
    A("v_max_f32 v4, v4, v5")
    A("v_sub_f32 v5, v44, v4")
    A("v_exp_f32 v5, v5")
    A("v_mov_b32 v44, v4")
    for k in range(16):
        A(f"v_sub_f32 v{SA+k}, v{SA+k}, v4")
    for k in range(16):
        A(f"v_exp_f32 v{SA+k}, v{SA+k}")
    for k in range(16):
        A(f"v_mul_f32 v{O+k}, v{O+k}, v5")
    for k in range(4):
        A(f"v_mul_f32 v{L+k}, v{L+k}, v5")
    for k in range(8):
        A(f"v_cvt_pk_bf16_f32 v{P+k}, v{SA+2*k}, v{SA+2*k+1}")
    A("s_nop 1")
    A(f"""
    v_mfma_f32_32x32x16_bf16 v[{O}:{O+15}], v[{V0}:{V0+3}], v[{P}:{P+3}], v[{O}:{O+15}]
    v_mfma_f32_16x16x32_bf16 v[{L}:{L+3}], v[{SEL}:{SEL+3}], v[{P}:{P+3}], v[{L}:{L+3}]
    v_mfma_f32_32x32x16_bf16 v[{O}:{O+15}], v[{V1}:{V1+3}], v[{P+4}:{P+7}], v[{O}:{O+15}]
    v_mfma_f32_16x16x32_bf16 v[{L}:{L+3}], v[{SEL}:{SEL+3}], v[{P+4}:{P+7}], v[{L}:{L+3}]
    s_add_u32 s61, s61, 1
    s_cmp_lt_u32 s61, 64
    """)
    A.nop(12)
    A("s_cbranch_scc1 K2_FBL")
    A("s_branch K2_FIN")
    A.label("K2_END")
    A("s_endpgm")
    return K, K2_LDS
```

```python
from common import *

K1_SLOT = 28672
K1_NSLOT = 5
K1_WPHI = K1_SLOT * K1_NSLOT
K1_LDS = K1_WPHI + 4096
K1_TBUF = 4352
K1_RED = 32768

def cvt_tile(A, dst, src):
    for i in range(8):
        A(f"v_cvt_pk_bf16_f32 v{dst+i}, v{src+2*i}, v{src+2*i+1}")

def gen_k1(A, cfg):
    K = "k1_qkv_kernel"
    kernel_begin(A, K)
    A(f"""
    s_cmp_ge_u32 s2, 256
    s_cbranch_scc1 K1_END
    s_load_dwordx2 s[4:5], s[0:1], 0
    s_load_dwordx2 s[6:7], s[0:1], 8
    s_load_dwordx2 s[8:9], s[0:1], 40
    s_load_dwordx2 s[10:11], s[0:1], 16
    s_load_dwordx2 s[12:13], s[0:1], 56
    s_load_dwordx2 s[14:15], s[0:1], 80
    v_lshrrev_b32 v1, 6, v0
    v_and_b32 v0, 63, v0
    v_readfirstlane_b32 s40, v1
    s_and_b32 s45, s2, 7
    s_lshr_b32 s46, s2, 3
    """)
    stamp(A, cfg, 0)
    if cfg.get("k1map", "4x8") == "4x8":
        A("""
        s_and_b32 s41, s45, 1
        s_lshl_b32 s41, s41, 2
        s_lshr_b32 s47, s46, 3
        s_add_u32 s41, s41, s47          ; r = 4*(e&1) + (i>>3)
        s_lshr_b32 s42, s45, 1
        s_lshl_b32 s42, s42, 3
        s_and_b32 s47, s46, 7
        s_add_u32 s42, s42, s47          ; c = 8*(e>>1) + (i&7)
        """)
    else:
        A("""
        s_lshr_b32 s41, s46, 2           ; r = i>>2
        s_lshl_b32 s42, s45, 2
        s_and_b32 s47, s46, 3
        s_add_u32 s42, s42, s47          ; c = 4*e + (i&3)
        """)
    A("""
    s_lshr_b32 s43, s42, 1           ; p
    s_and_b32 s44, s42, 1            ; type
    s_waitcnt lgkmcnt(0)
    """)
    srd(A, 32, 14, WS_USED)
    A("""
    s_cmp_ge_u32 s40, 4
    s_cbranch_scc1 K1_LOADER
    """)
    XA, WA = 4, 20
    XB, WB = 32, 48
    ACC = 60
    acc = lambda sg, tt: ACC + (sg * 4 + tt) * 16
    A(f"""
    s_lshr_b32 s50, s40, 1           ; th
    s_and_b32 s51, s40, 1            ; hsel
    v_and_b32 v4, 31, v0
    v_lshrrev_b32 v5, 5, v0          ; hh
    v_bfe_u32 v6, v0, 2, 2           ; f = (l>>2)&3
    v_xor_b32 v7, v5, v6
    v_lshlrev_b32 v7, 4, v7
    v_lshl_add_u32 v1, v4, 6, v7
    s_lshl_b32 s47, s50, 13
    v_add_u32 v1, s47, v1            ; vxa0
    v_xor_b32 v2, 32, v1             ; vxa1
    v_lshl_add_u32 v7, v5, 3, v6
    v_lshlrev_b32 v7, 7, v7          ; *128
    v_bfe_u32 v8, v0, 4, 1           ; g&1
    v_bfe_u32 v9, v0, 1, 1
    v_lshl_add_u32 v8, v8, 1, v9     ; (g&1)*2 + ((i&3)>>1)
    s_lshl_b32 s47, s51, 2
    v_add_u32 v8, s47, v8            ; + hsel*4
    v_bfe_u32 v9, v0, 3, 1
    v_lshlrev_b32 v9, 2, v9
    v_xor_b32 v8, v8, v9             ; chunk'
    v_lshl_add_u32 v7, v8, 4, v7
    v_and_b32 v9, 1, v0
    v_lshl_add_u32 v7, v9, 3, v7
    v_add_u32 v3, 16384, v7          ; vwa
    s_mov_b32 s48, 0
    s_mov_b32 s52, {K1_SLOT}
    s_mov_b32 s53, {-(K1_NSLOT-1)*K1_SLOT & 0xffffffff}
    s_mov_b32 s54, 32
    """)
    TD = int(cfg.get("touch", 0))
    if TD:
        A(f"""
        s_cmp_eq_u32 s40, 1
        s_cselect_b32 s36, s8, s6
        s_cselect_b32 s37, s9, s7
        s_add_u32 s47, s40, s44
        s_cmp_eq_u32 s47, 3
        s_cselect_b32 s47, 1, 0
        s_cmp_eq_u32 s40, 2
        s_cselect_b32 s47, s47, 0
        s_cmp_eq_u32 s47, 1
        s_cselect_b32 s36, s8, s36
        s_cselect_b32 s37, s9, s37
        s_mov_b32 s38, {1024*6144}
        s_mov_b32 s39, 0x00020000
        s_lshl_b32 s56, s44, 11          ; type*2048
        s_sub_u32 s57, 2048, s56
        s_cmp_eq_u32 s40, 0
        s_cselect_b32 s56, s57, s56
        s_cmp_eq_u32 s40, 2
        s_cselect_b32 s56, 4096, s56
        s_lshl_b32 s57, s43, 7
        s_add_u32 s56, s56, s57
        s_and_b32 s57, s41, 3
        s_lshl_b32 s57, s57, 3           ; 8*(r&3)
        s_mul_i32 s57, s57, 6144
        s_add_u32 s56, s56, s57
        v_mul_u32_u24 v253, 6144, v0
        v_add_u32 v253, s56, v253
        s_mov_b32 s58, 8
        s_mov_b32 s61, {32*6144}
        s_mov_b32 s63, 0
        s_mov_b32 s60, {4*32*6144}
        s_cmp_lg_u32 s40, 3
        s_cbranch_scc1 K1_TW
        s_mov_b32 s36, s4
        s_mov_b32 s37, s5
        s_mov_b32 s38, {2048*2048}
        s_lshl_b32 s56, s41, 8
        s_and_b32 s57, s42, 7
        s_lshl_b32 s57, s57, 5
        s_add_u32 s56, s56, s57          ; row0 = r*256 + 32*(c&7)
        s_lshl_b32 s56, s56, 11
        v_lshlrev_b32 v253, 11, v0
        v_add_u32 v253, s56, v253
        s_mov_b32 s58, 16
        s_mov_b32 s61, 32768
        s_mov_b32 s63, {32768 ^ ((128-32768) & 0xffffffff)}
        s_mov_b32 s60, 256
        K1_TW:
        v_cmp_gt_u32 vcc, s58, v0
        v_mov_b32 v254, 0x40000000
        s_nop 0
        v_cndmask_b32 v253, v254, v253, vcc
        """)
        for _ in range(4, TD):
            A("buffer_load_dword v252, v253, s[36:39], s60 offen")
            A("s_add_u32 s60, s60, s61")
            A("s_xor_b32 s61, s61, s63")
    for i in range(192):
        A(f"v_mov_b32 v{ACC+i}, 0")
    A("s_barrier")
    stamp(A, cfg, 1)

    def reads(X, W, s):
        r = []
        xa = 1 if s == 0 else 2
        for tt in range(4):
            r.append(f"ds_read_b128 v[{X+4*tt}:{X+4*tt+3}], v{xa} offset:{tt*2048}")
        for sg in range(3):
            for sec in range(2):
                r.append(f"ds_read_b64_tr_b16 v[{W+4*sg+2*sec}:{W+4*sg+2*sec+1}], v3 offset:{sg*4096 + s*2048 + sec*512}")
        return [r[4], r[5], r[0], r[1], r[2], r[3], r[6], r[7], r[8], r[9]]
    def mfmas(X, W):
        m = []
        for sg in range(3):
            for tt in range(4):
                a = acc(sg, tt)
                w = f"v[{W+4*sg}:{W+4*sg+3}]"; x = f"v[{X+4*tt}:{X+4*tt+3}]"
                if sg < 2: m.append(f"v_mfma_f32_32x32x16_bf16 v[{a}:{a+15}], {w}, {x}, v[{a}:{a+15}]")
                else:      m.append(f"v_mfma_f32_32x32x16_bf16 v[{a}:{a+15}], {x}, {w}, v[{a}:{a+15}]")
        return m
    for l in reads(XA, WA, 0): A(l)
    A.label("K1_CLOOP")
    A("s_waitcnt lgkmcnt(0)")
    m = mfmas(XA, WA); r = reads(XB, WB, 1)
    extra0 = {6: ["s_add_u32 s48, s48, 1", f"s_cmp_eq_u32 s48, {K1_NSLOT}", "s_cselect_b32 s49, s53, s52", "s_cselect_b32 s48, 0, s48"],
              7: ["v_add_u32 v1, s49, v1"], 8: ["v_add_u32 v2, s49, v2"], 9: ["v_add_u32 v3, s49, v3"]}
    for k in range(12):
        A(m[k])
        if k < 5:
            A(r[2*k]); A(r[2*k+1])
        for l in extra0.get(k, []): A(l)
    A("s_waitcnt lgkmcnt(0)")
    m = mfmas(XB, WB); r = reads(XA, WA, 0)
    for k in range(12):
        A(m[k])
        if k < 5:
            A(r[2*k]); A(r[2*k+1])
        if TD and k == 1:
            A(f"s_cmp_le_u32 s54, {TD}"); A("s_cselect_b32 s38, 0, s38")
            A("buffer_load_dword v252, v253, s[36:39], s60 offen")
            A("s_add_u32 s60, s60, s61")
            A("s_xor_b32 s61, s61, s63")
        if k == 8:
            A("s_sub_u32 s54, s54, 1"); A("s_cmp_lg_u32 s54, 0")
    A("s_barrier")
    A("s_cbranch_scc1 K1_CLOOP")
    A("s_waitcnt lgkmcnt(0)")
    stamp(A, cfg, 2)
    A.nop(12)
    A(f"""
    v_lshlrev_b32 v1, 4, v0          ; lane*16
    s_lshl_b32 s52, s43, 1
    s_add_u32 s52, s52, s51          ; h
    s_lshl_b32 s53, s41, 3
    s_lshl_b32 s47, s50, 2
    s_add_u32 s53, s53, s47
    s_lshl_b32 s54, s52, 6
    s_add_u32 s54, s54, s53          ; h*64 + tb0
    s_cmp_lg_u32 s44, 0
    s_cbranch_scc1 K1_E1T1
    s_mov_b32 s56, {fhex(32**-0.5 * LOG2E)}
    s_mov_b32 s57, s56
    """)
    for k in range(32):
        a = acc(1, 0) + 2*k
        A(f"v_pk_mul_f32 v[{a}:{a+1}], v[{a}:{a+1}], s[56:57]")
    A(f"""
    s_lshl_b32 s58, s54, 11
    s_add_u32 s58, s58, {WS_QB}
    s_mov_b32 s59, 2048
    s_branch K1_E1J
    K1_E1T1:
    s_lshl_b32 s58, s54, 12
    s_add_u32 s58, s58, {WS_KVB}
    s_mov_b32 s59, 4096
    K1_E1J:
    """)
    T1 = 4
    for tt in range(4):
        cvt_tile(A, T1 + 8*tt, acc(1, tt))
    V = acc(1, 0)
    Q = acc(1, 0) + 32
    for tt in range(4):
        A(f"buffer_store_dwordx4 v[{T1+8*tt}:{T1+8*tt+3}], v1, s[32:35], s58 offen")
        A(f"buffer_store_dwordx4 v[{T1+8*tt+4}:{T1+8*tt+7}], v1, s[32:35], s58 offen offset:1024")
        A("s_add_u32 s58, s58, s59")
    for tt in range(4):
        cvt_tile(A, V + 8*tt, acc(2, tt))
    A(f"""
    s_cmp_eq_u32 s44, 0
    s_cbranch_scc1 K1_E2J
    s_lshl_b32 s58, s54, 12
    s_add_u32 s58, s58, {WS_KVB + 2048}
    """)
    for tt in range(4):
        A(f"buffer_store_dwordx4 v[{V+8*tt}:{V+8*tt+3}], v1, s[32:35], s58 offen")
        A(f"buffer_store_dwordx4 v[{V+8*tt+4}:{V+8*tt+7}], v1, s[32:35], s58 offen offset:1024")
        A("s_add_u32 s58, s58, 4096")
    A.label("K1_E2J")
    WP = 36
    A(f"""
    v_lshrrev_b32 v5, 5, v0          ; hh
    v_bfe_u32 v6, v0, 2, 2           ; i>>2
    v_lshl_add_u32 v6, v5, 2, v6     ; 4hh + (i>>2)
    v_bfe_u32 v7, v0, 4, 1
    v_lshlrev_b32 v7, 5, v7
    v_and_b32 v8, 3, v0
    v_lshl_add_u32 v7, v8, 3, v7     ; (g&1)*32 + (i&3)*8   [v7 kept]
    v_lshl_add_u32 v2, v6, 6, v7
    s_lshl_b32 s47, s51, 11
    s_add_u32 s47, s47, {K1_WPHI}
    v_add_u32 v2, s47, v2
    """)
    for s in range(2):
        for sec in range(2):
            A(f"ds_read_b64_tr_b16 v[{WP+4*s+2*sec}:{WP+4*s+2*sec+1}], v2 offset:{(16*s+8*sec)*64}")
    A(f"""
    s_mul_i32 s47, s40, {K1_TBUF}
    v_mul_u32_u24 v25, 136, v6
    v_add_u32 v25, v25, v7
    v_add_u32 v25, s47, v25
    v_and_b32 v8, 31, v0
    v_mul_u32_u24 v24, 136, v8
    v_lshl_add_u32 v24, v5, 3, v24
    v_add_u32 v24, s47, v24
    v_bfe_u32 v8, v0, 2, 1
    v_bfe_u32 v9, v0, 4, 1
    v_cmp_eq_u32 vcc, v8, v9
    v_mov_b32 v9, 0x3f803f80
    v_mov_b32 v8, 0
    v_cndmask_b32 v20, v8, v9, vcc
    v_cndmask_b32 v21, v8, v9, vcc
    v_cndmask_b32 v22, v8, v9, vcc
    v_cndmask_b32 v23, v8, v9, vcc
    """)
    for tt in range(4):
        cvt_tile(A, Q + 8*tt, acc(0, tt))
    A("s_waitcnt lgkmcnt(0)")
    for tt in range(4):
        a = acc(0, tt)
        A(f"v_mfma_f32_32x32x16_bf16 v[{a}:{a+15}], v[{WP}:{WP+3}], v[{Q+8*tt}:{Q+8*tt+3}], 0")
    for tt in range(4):
        a = acc(0, tt)
        A(f"v_mfma_f32_32x32x16_bf16 v[{a}:{a+15}], v[{WP+4}:{WP+7}], v[{Q+8*tt+4}:{Q+8*tt+7}], v[{a}:{a+15}]")
    A(f"""
    s_mov_b32 s56, {fhex(LOG2E)}
    s_mov_b32 s57, s56
    s_lshl_b32 s58, s54, 12
    s_add_u32 s58, s58, {WS_PHIQ}
    """)
    A.nop(10)
    EP = acc(2, 0)
    PH = EP + 16
    AF = PH + 16
    KV0 = AF + 16
    KV1 = 44
    Z0, Z1, SEL = 12, 16, 20
    def kv_mfmas(tt):
        out = []
        for s in range(2):
            for fb in range(2):
                kv = KV0 if fb == 0 else KV1
                z = Z0 if fb == 0 else Z1
                af = AF + (fb*2+s)*4
                c = "0" if (tt == 0 and s == 0) else f"v[{kv}:{kv+15}]"
                cz = "0" if (tt == 0 and s == 0) else f"v[{z}:{z+3}]"
                out.append(f"v_mfma_f32_32x32x16_bf16 v[{kv}:{kv+15}], v[{af}:{af+3}], v[{V+8*tt+4*s}:{V+8*tt+4*s+3}], {c}")
                out.append(f"v_mfma_f32_16x16x32_bf16 v[{z}:{z+3}], v[{SEL}:{SEL+3}], v[{af}:{af+3}], {cz}")
        return out
    for tt in range(4):
        P = acc(0, tt)
        A(f"v_max3_f32 v4, v{P}, v{P+1}, v{P+2}")
        A(f"v_max3_f32 v5, -v{P}, -v{P+1}, -v{P+2}")
        for k in range(3, 15, 2):
            A(f"v_max3_f32 v4, v4, v{P+k}, v{P+k+1}")
            A(f"v_max3_f32 v5, v5, -v{P+k}, -v{P+k+1}")
        A(f"v_max_f32 v4, v4, v{P+15}")
        A(f"v_max_f32 v5, v5, -v{P+15}")
        A.nop(2)
        A("v_permlane32_swap_b32 v4, v5")
        A("s_nop 0")
        A("v_max_f32 v4, v4, v5")
        A("v_mov_b32 v5, v4")
        A.nop(2)
        A("v_permlane32_swap_b32 v4, v5")
        A("s_nop 0")
        A(f"v_mul_f32 v6, {fhex(-LOG2E)}, v4")
        A(f"v_mul_f32 v8, {fhex(-LOG2E)}, v5")
        for k in range(8):
            A(f"v_pk_fma_f32 v[{EP+2*k}:{EP+2*k+1}], v[{P+2*k}:{P+2*k+1}], s[56:57], v[6:7] op_sel_hi:[1,1,0]")
            A(f"v_pk_fma_f32 v[{P+2*k}:{P+2*k+1}], v[{P+2*k}:{P+2*k+1}], s[56:57], v[8:9] op_sel_hi:[1,1,0] neg_lo:[0,1,0] neg_hi:[0,1,0]")
        for k in range(16):
            A(f"v_exp_f32 v{EP+k}, v{EP+k}")
            A(f"v_exp_f32 v{P+k}, v{P+k}")
        if tt > 0:
            j = A.uid("K1_KVS")
            A("s_cmp_lg_u32 s44, 0"); A(f"s_cbranch_scc1 {j}")
            A("s_waitcnt lgkmcnt(0)")
            for l in kv_mfmas(tt-1): A(l)
            A.label(j)
        A(f"v_pk_add_f32 v[4:5], v[{EP}:{EP+1}], v[{EP+2}:{EP+3}]")
        A(f"v_pk_add_f32 v[6:7], v[{P}:{P+1}], v[{P+2}:{P+3}]")
        for k in range(2, 8):
            A(f"v_pk_add_f32 v[4:5], v[4:5], v[{EP+2*k}:{EP+2*k+1}]")
            A(f"v_pk_add_f32 v[6:7], v[6:7], v[{P+2*k}:{P+2*k+1}]")
        A("v_add_f32 v4, v4, v5")
        A("v_add_f32 v6, v6, v7")
        A.nop(2)
        A("v_permlane32_swap_b32 v4, v6")
        A("s_nop 0")
        A("v_add_f32 v4, v4, v6")
        A("v_rcp_f32 v4, v4")
        A("s_nop 0")
        A("v_mov_b32 v6, v4")
        A.nop(2)
        A("v_permlane32_swap_b32 v4, v6")
        A("s_nop 0")
        for k in range(8):
            A(f"v_pk_mul_f32 v[{EP+2*k}:{EP+2*k+1}], v[{EP+2*k}:{EP+2*k+1}], v[4:5] op_sel_hi:[1,0]")
            A(f"v_pk_mul_f32 v[{P+2*k}:{P+2*k+1}], v[{P+2*k}:{P+2*k+1}], v[6:7] op_sel_hi:[1,0]")
        cvt_tile(A, PH, EP)
        cvt_tile(A, PH + 8, P)
        j1 = A.uid("K1_T0"); j2 = A.uid("K1_TJ")
        A("s_cmp_eq_u32 s44, 0"); A(f"s_cbranch_scc1 {j1}")
        for s in range(4):
            A(f"buffer_store_dwordx4 v[{PH+4*s}:{PH+4*s+3}], v1, s[32:35], s58 offen offset:{s*1024}")
        A("s_add_u32 s58, s58, 4096")
        A(f"s_branch {j2}")
        A.label(j1)
        for sign in range(2):
            for b in range(4):
                A(f"ds_write_b64 v24, v[{PH+8*sign+2*b}:{PH+8*sign+2*b+1}] offset:{sign*64+b*16}")
        for fb in range(2):
            for s in range(2):
                for sec in range(2):
                    af = AF + (fb*2+s)*4 + 2*sec
                    A(f"ds_read_b64_tr_b16 v[{af}:{af+1}], v25 offset:{(16*s+8*sec)*136 + fb*64}")
        A.label(j2)
    A("s_cmp_lg_u32 s44, 0")
    A("s_cbranch_scc1 K1_DONE")
    A("s_waitcnt lgkmcnt(0)")
    for l in kv_mfmas(3): A(l)
    A.nop(12)
    A(f"""
    v_mov_b32 v{Z0+1}, v{Z1}
    s_mul_i32 s47, s51, 9216
    s_add_u32 s47, s47, {K1_RED}
    v_add_u32 v2, s47, v1
    v_lshlrev_b32 v3, 3, v0
    v_add_u32 v3, s47, v3
    s_cmp_eq_u32 s50, 0
    s_cbranch_scc1 K1_RED0
    """)
    for fb in range(2):
        kv = KV0 if fb == 0 else KV1
        for q in range(4):
            A(f"ds_write_b128 v2, v[{kv+4*q}:{kv+4*q+3}] offset:{fb*4096+q*1024}")
    A(f"ds_write_b64 v3, v[{Z0}:{Z0+1}] offset:8192")
    A("""
    s_waitcnt lgkmcnt(0)
    s_barrier
    s_branch K1_DONE
    K1_RED0:
    s_barrier
    """)
    R = 60
    for k in range(8):
        A(f"ds_read_b128 v[{R+4*k}:{R+4*k+3}], v2 offset:{k*1024}")
    A(f"ds_read_b64 v[{R+32}:{R+33}], v3 offset:8192")
    A(f"""
    s_lshl_b32 s47, s52, 3
    s_add_u32 s47, s47, s41          ; h*8 + r
    s_lshl_b32 s58, s47, 13
    s_add_u32 s58, s58, {WS_KVP}
    s_add_u32 s59, s58, 4096
    s_lshl_b32 s60, s47, 8
    s_add_u32 s60, s60, {WS_ZP}
    v_and_b32 v3, 31, v0
    v_lshlrev_b32 v3, 2, v3
    s_waitcnt lgkmcnt(0)
    """)
    for fb in range(2):
        kv = KV0 if fb == 0 else KV1
        for k in range(8):
            A(f"v_pk_add_f32 v[{kv+2*k}:{kv+2*k+1}], v[{kv+2*k}:{kv+2*k+1}], v[{R+16*fb+2*k}:{R+16*fb+2*k+1}]")
    A(f"v_pk_add_f32 v[{Z0}:{Z0+1}], v[{Z0}:{Z0+1}], v[{R+32}:{R+33}]")
    for fb in range(2):
        kv = KV0 if fb == 0 else KV1
        for q in range(4):
            A(f"buffer_store_dwordx4 v[{kv+4*q}:{kv+4*q+3}], v1, s[32:35], s{58+fb} offen offset:{q*1024}")
    A(f"buffer_store_dword v{Z0}, v3, s[32:35], s60 offen")
    A(f"buffer_store_dword v{Z0+1}, v3, s[32:35], s60 offen offset:128")
    A.label("K1_DONE")
    stamp(A, cfg, 3)
    if cfg.get("prof"):
        A("s_waitcnt vmcnt(0)")
        stamp(A, cfg, 4)
    prof_store(A, cfg, 0, 5, 40, 14)
    A("s_endpgm")
    A.label("K1_LOADER")
    srd(A, 16, 4, 2048*2048)
    srd(A, 20, 6, 1024*6144)
    srd(A, 24, 8, 1024*6144)
    A("""
    s_cmp_eq_u32 s44, 0
    s_cselect_b32 s28, s6, s8
    s_cselect_b32 s29, s7, s9
    """)
    A(f"s_mov_b32 s30, {1024*6144}")
    A("s_mov_b32 s31, 0x00020000")
    srd(A, 36, 10, 32*2048)
    A(f"""
    s_sub_u32 s50, s40, 4            ; w
    v_lshrrev_b32 v1, 2, v0
    v_lshrrev_b32 v2, 4, v0
    v_and_b32 v3, 3, v0
    v_xor_b32 v3, v3, v2
    v_lshlrev_b32 v3, 4, v3
    v_lshl_add_u32 v4, v1, 11, v3
    """)
    if cfg.get("fake128"):
        A("v_lshrrev_b32 v1, 3, v0")
        A("v_and_b32 v3, 7, v0")
        A("v_lshlrev_b32 v3, 4, v3")
        A("v_lshl_add_u32 v4, v1, 11, v3")
        A("s_mov_b32 s63, 0")
        A(f"s_mov_b32 s65, {(128 - 8*2048) & 0xffffffff}")
    A(f"""
    s_lshl_b32 s47, s41, 8
    s_lshl_b32 s51, s50, 6
    s_add_u32 s47, s47, s51
    s_lshl_b32 s47, s47, 11          ; (r*256 + 64w)*2048
    v_add_u32 v4, s47, v4
    v_add_u32 v5, 32768, v4
    v_add_u32 v6, 65536, v4
    v_add_u32 v7, 98304, v4
    v_lshrrev_b32 v1, 3, v0
    s_lshl_b32 s47, s50, 3
    v_add_u32 v1, s47, v1            ; krow = 8w + (l>>3)
    v_mul_u32_u24 v1, 6144, v1
    v_bfe_u32 v2, v0, 4, 1
    v_lshlrev_b32 v2, 2, v2
    v_and_b32 v3, 7, v0
    v_xor_b32 v3, v3, v2
    v_lshl_add_u32 v1, v3, 4, v1
    s_lshl_b32 s47, s43, 7           ; 128p
    s_lshl_b32 s51, s44, 11          ; type*2048
    s_add_u32 s52, s47, s51
    v_add_u32 v9, s52, v1            ; seg1
    s_sub_u32 s52, 2048, s51
    s_add_u32 s52, s52, s47
    v_add_u32 v8, s52, v1            ; seg0
    s_add_u32 s52, s47, 4096
    v_add_u32 v10, s52, v1           ; seg2
    v_lshlrev_b32 v11, 4, v0
    s_lshl_b32 s47, s43, 12
    s_lshl_b32 s51, s50, 10
    s_add_u32 s47, s47, s51
    s_add_u32 m0, s51, {K1_WPHI}
    s_lshl_b32 s55, s50, 12          ; w*4096  (x pieces)
    buffer_load_dwordx4 v11, s[36:39], s47 offen lds
    s_add_u32 s56, s51, 16384        ; 16384 + w*1024 (W pieces)
    s_mov_b32 s57, 0
    s_mov_b32 s58, 0                 ; soffset x
    s_mov_b32 s59, 0                 ; soffset W
    s_mov_b32 s60, 0                 ; block
    """)
    ROT = int(cfg.get("rot", 0))
    if ROT:
        A(f"s_mul_i32 s47, s45, {ROT}")
        A("s_and_b32 s47, s47, 31")
        A("s_lshl_b32 s58, s47, 6")
        A(f"s_mul_i32 s59, s47, {32*6144}")
    if cfg.get("w64"):
        A(f"""
        s_lshr_b32 s47, s50, 1           ; branch = w>>1
        s_cmp_eq_u32 s47, 0
        s_cselect_b32 s20, s6, s8
        s_cselect_b32 s21, s7, s9
        s_mov_b32 s24, s20
        s_mov_b32 s25, s21
        s_mov_b32 s28, s20
        s_mov_b32 s29, s21
        v_lshrrev_b32 v1, 2, v0
        v_mul_u32_u24 v1, 6144, v1
        v_and_b32 v3, 3, v0
        v_lshl_add_u32 v1, v3, 4, v1
        s_lshl_b32 s47, s42, 6           ; h*64
        v_add_u32 v1, s47, v1
        s_and_b32 s51, s50, 1
        s_cmp_eq_u32 s51, 0
        s_cselect_b32 s47, 0, {2048 + 16*6144}
        v_add_u32 v8, s47, v1
        s_mov_b32 s62, 4096
        s_cselect_b32 s47, {16*6144}, s62
        v_add_u32 v9, s47, v1
        s_mov_b32 s62, 2048
        s_cselect_b32 s47, s62, {4096 + 16*6144}
        v_add_u32 v10, s47, v1
        s_lshl_b32 s51, s50, 10
        """)
    stamp(A, cfg, 1)
    A(f"""
    K1_LLOOP:
    s_add_u32 s61, s57, s55
    s_add_u32 s62, s57, s56
    """)
    xfl = cfg.get("xfl", "").replace("+", " "); wfl = cfg.get("wfl", "").replace("+", " ")
    if cfg.get("nodma"):
        A("s_cmp_ge_u32 s60, 5"); A("s_cbranch_scc1 K1_NODMA")
    for i in range(4):
        A(f"s_add_u32 m0, s61, {i*1024}")
        A("s_nop 0")
        A(f"buffer_load_dwordx4 v{4+i}, s[16:19], s58 offen {xfl} lds")
    for sg in range(3):
        A(f"s_add_u32 m0, s62, {sg*4096}")
        A("s_nop 0")
        A(f"buffer_load_dwordx4 v{8+sg}, s[{20+4*sg}:{23+4*sg}], s59 offen {wfl} lds")
    if cfg.get("nodma"): A.label("K1_NODMA")
    if cfg.get("samedma"):
        A("s_cmp_eq_u32 s60, 4")
        A("s_cselect_b32 s58, 0, s58")
        A("s_cselect_b32 s59, 0, s59")
        A("s_and_b32 s58, s58, 0xff")
        A("s_and_b32 s59, s59, 0x3ffff")
    if cfg.get("fake128"):
        A("s_xor_b32 s63, s63, 1")
        A("s_cmp_eq_u32 s63, 1")
        A(f"s_cselect_b32 s64, {8*2048}, s65")
        A("s_add_u32 s58, s58, s64")
    A(f"""
    s_add_u32 s58, s58, {0 if cfg.get("fake128") else 64}
    s_add_u32 s59, s59, {32*6144}
    s_and_b32 s58, s58, {2047 if ROT else 0xffffffff}
    s_cmp_eq_u32 s59, {1024*6144}
    s_cselect_b32 s59, {0 if ROT else "s59"}, s59
    s_add_u32 s57, s57, {K1_SLOT}
    s_cmp_eq_u32 s57, {K1_SLOT*K1_NSLOT}
    s_cselect_b32 s57, 0, s57
    s_add_u32 s60, s60, 1
    s_cmp_lt_u32 s60, 4
    s_cbranch_scc1 K1_LLOOP
    """)
    if cfg.get("prof"):
        A("s_cmp_lg_u32 s60, 4"); A("s_cbranch_scc1 K1_PSK")
        stamp(A, cfg, 2)
        A("s_waitcnt vmcnt(21)")
        stamp(A, cfg, 3)
        A("s_waitcnt vmcnt(14)")
        stamp(A, cfg, 4)
        A.label("K1_PSK")
    A(f"""
    s_waitcnt vmcnt(14)
    s_barrier
    s_cmp_lt_u32 s60, 32
    s_cbranch_scc1 K1_LLOOP
    s_waitcnt vmcnt(7)
    s_barrier
    s_waitcnt vmcnt(0)
    s_barrier
    """)
    srd(A, 36, 12, 2048)
    A(f"""
    s_lshl_b32 s47, s41, 8
    s_lshl_b32 s51, s42, 3
    s_add_u32 s47, s47, s51
    s_lshl_b32 s51, s50, 1
    s_add_u32 s47, s47, s51          ; t0
    s_lshl_b32 s51, s47, 11
    v_lshlrev_b32 v1, 5, v0
    buffer_load_dwordx4 v[32:35], v1, s[36:39], 0 offen
    buffer_load_dwordx4 v[36:39], v1, s[36:39], 0 offen offset:16
    buffer_load_dwordx4 v[16:19], v1, s[16:19], s51 offen
    buffer_load_dwordx4 v[20:23], v1, s[16:19], s51 offen offset:16
    buffer_load_dwordx4 v[24:27], v1, s[16:19], s51 offen offset:2048
    buffer_load_dwordx4 v[28:31], v1, s[16:19], s51 offen offset:2064
    s_barrier
    v_mov_b32 v40, 0
    v_mov_b32 v41, 0
    s_barrier
    s_waitcnt vmcnt(0)
    """)
    for k in range(8):
        A(f"v_dot2c_f32_bf16 v40, v{16+k}, v{32+k}")
        A(f"v_dot2c_f32_bf16 v41, v{24+k}, v{32+k}")
    A("v_lshlrev_b32 v3, 2, v0")
    A.nop(3)
    for mask in (1, 2, 4, 8, 16, 32):
        A(f"""
        v_xor_b32 v4, {mask*4}, v3
        ds_bpermute_b32 v5, v4, v40
        ds_bpermute_b32 v6, v4, v41
        s_waitcnt lgkmcnt(0)
        v_add_f32 v40, v40, v5
        v_add_f32 v41, v41, v6
        """)
    A(f"""
    v_cmp_eq_u32 vcc, 1, v0
    s_nop 1
    v_cndmask_b32 v40, v40, v41, vcc
    v_mul_f32 v40, {fhex(-LOG2E)}, v40
    v_exp_f32 v40, v40
    s_nop 0
    v_add_f32 v40, 1.0, v40
    v_rcp_f32 v40, v40
    s_lshl_b32 s47, s47, 2
    s_add_u32 s47, s47, {WS_G}
    s_mov_b64 exec, 3
    buffer_store_dword v40, v3, s[32:35], s47 offen
    s_cmp_lg_u32 s50, 0
    s_cbranch_scc1 K1_NOZ
    v_lshlrev_b32 v4, 10, v0
    v_mov_b32 v5, 0
    s_lshl_b32 s47, s2, 2
    s_add_u32 s47, s47, {WS_FLAG}
    buffer_store_dword v5, v4, s[32:35], s47 offen
    K1_NOZ:
    """)
    prof_store(A, cfg, 0, 5, 40, 14)
    A(f"""
    K1_END:
    s_endpgm
    """)
    return K, K1_LDS
```

```python
from common import *

KNAME = NAME + "_kernel"
K1_SLOT = 28672
K1_NSLOT = 5
K1_WPHI = K1_SLOT * K1_NSLOT
K1_TBUF = 4352
TBUF0 = 98304
RED0 = 116736
RING = 131072
KVT_L = 131072
Z_L = 139264
QST = 147456
KF_LDS = 163840
WS_F1 = WS_FLAG
WS_FK = WS_FLAG + 4096
WS_FA = WS_FLAG + 8192
WS_FB = WS_FLAG + 12288
BIAS = 80.0
K3_SLOT = 16384
K3_ROW = 272
K3_RED = 128 * K3_ROW
SPIN_MAX = 1 << 16
WS_PROFV = WS_PROF

def cvt_tile(A, dst, src):
    for i in range(8):
        A(f"v_cvt_pk_bf16_f32 v{dst+i}, v{src+2*i}, v{src+2*i+1}")

def vstamp(A, cfg, i, reg):
    if cfg.get("prof"):
        A("s_memtime s[96:97]")
        A("s_memrealtime s[98:99]")
        A("s_waitcnt lgkmcnt(0)")
        A(f"v_writelane_b32 v{reg}, s96, {2*i}")
        A(f"v_writelane_b32 v{reg}, s98, {2*i+1}")

def poll_issue(A, vdst, vaddr, srd, soff):
    A(f"buffer_load_dword v{vdst}, v{vaddr}, s[{srd}:{srd+3}], {soff} offen sc1")

def poll_check(A, vdst, vaddr, srd, soff, tag, expect=1):
    ok = A.uid(tag + "_OK"); sp = A.uid(tag + "_SP")
    A(f"""
    v_cmp_eq_u32 vcc, {expect}, v{vdst}
    s_cmp_eq_u64 vcc, -1
    s_cbranch_scc1 {ok}
    s_mov_b32 s82, 0
    {sp}:
    s_sleep 2
    buffer_load_dword v{vdst}, v{vaddr}, s[{srd}:{srd+3}], {soff} offen sc1
    s_add_u32 s82, s82, 1
    s_waitcnt vmcnt(0)
    v_cmp_eq_u32 vcc, {expect}, v{vdst}
    s_cmp_eq_u64 vcc, -1
    s_cbranch_scc1 {ok}
    s_cmp_lt_u32 s82, {SPIN_MAX}
    s_cbranch_scc1 {sp}
    {ok}:
    """)

def set_flag(A, soff):
    A(f"""
    s_mov_b64 exec, 1
    v_mov_b32 v4, 1
    v_mov_b32 v5, 0
    buffer_store_dword v4, v5, s[32:35], {soff} offen sc1
    s_mov_b64 exec, -1
    """)

def setup_p2(A):
    A(f"""
    s_lshl_b32 s80, s45, 2
    s_lshr_b32 s47, s46, 3
    s_add_u32 s80, s80, s47          ; h2
    s_and_b32 s81, s46, 7            ; qb
    s_lshl_b32 s70, s80, 18
    s_add_u32 s70, s70, {WS_KVB}
    s_lshl_b32 s47, s40, 11
    s_add_u32 s72, s47, {6*16384}
    s_add_u32 s71, s70, s72
    s_lshl_b32 s47, s81, 3
    s_add_u32 s47, s47, s40
    s_lshl_b32 s47, s47, 5
    s_add_u32 s47, s47, s80
    s_lshl_b32 s73, s47, 11
    s_add_u32 s73, s73, {WS_OB}
    s_lshl_b32 s47, s64, 3
    s_lshr_b32 s38, s40, 1
    s_lshl_b32 s38, s38, 2
    s_add_u32 s47, s47, s38          ; r*8 + th*4
    s_lshl_b32 s47, s47, 5
    s_lshl_b32 s38, s65, 1
    s_add_u32 s47, s47, s38
    s_and_b32 s38, s40, 1
    s_add_u32 s47, s47, s38          ; *32 + 2p + hsel
    s_lshl_b32 s74, s47, 11
    s_add_u32 s74, s74, {WS_OA}
    s_lshl_b32 s75, s65, 17
    s_lshl_b32 s47, s40, 10
    s_add_u32 s75, s75, s47
    s_add_u32 s75, s75, {WS_KVP}
    s_lshl_b32 s47, s65, 1
    s_add_u32 s47, s47, s38
    s_lshl_b32 s76, s47, 11
    s_add_u32 s76, s76, {WS_ZP}
    s_lshl_b32 s77, s65, 7
    s_add_u32 s77, s77, {WS_FK}
    s_lshr_b32 s47, s80, 1
    s_lshl_b32 s78, s47, 8
    s_add_u32 s78, s78, {WS_F1}
    s_lshl_b32 s47, s80, 6
    s_lshl_b32 s38, s81, 3
    s_add_u32 s47, s47, s38
    s_and_b32 s38, s40, 3
    s_lshl_b32 s38, s38, 1
    s_add_u32 s47, s47, s38          ; h2*64 + qb*8 + 2w
    s_lshl_b32 s79, s47, 11
    s_add_u32 s79, s79, {WS_QB}
    s_lshl_b32 s47, s64, 1
    s_add_u32 s47, s47, s66          ; r*2 + type
    s_lshl_b32 s47, s47, 4
    s_lshl_b32 s67, s65, 8
    s_add_u32 s67, s67, s47
    s_and_b32 s38, s40, 3
    s_lshl_b32 s38, s38, 2
    s_add_u32 s67, s67, s38
    s_add_u32 s67, s67, {WS_F1}
    s_lshl_b32 s47, s64, 8
    s_lshl_b32 s68, s65, 4
    s_add_u32 s68, s68, s47
    s_add_u32 s68, s68, s38
    s_add_u32 s68, s68, {WS_FA}
    s_lshl_b32 s47, s64, 3
    s_add_u32 s47, s47, s77
    s_and_b32 s38, s40, 1
    s_lshl_b32 s38, s38, 2
    s_add_u32 s47, s47, s38
    s_cmp_eq_u32 s66, 0
    s_cselect_b32 s68, s47, s68
    s_lshl_b32 s47, s81, 5
    s_add_u32 s47, s47, s80
    s_lshl_b32 s69, s47, 2
    s_add_u32 s69, s69, {WS_FB}
    """)

def setup_p3(A):
    A(f"""
    s_load_dwordx2 s[4:5], s[0:1], 24
    s_load_dwordx2 s[6:7], s[0:1], 48
    s_load_dwordx2 s[8:9], s[0:1], 64
    s_lshr_b32 s16, s45, 1
    s_lshl_b32 s16, s16, 2
    s_lshr_b32 s47, s46, 3
    s_add_u32 s16, s16, s47          ; T = 4*(e>>1) + (i>>3)
    s_and_b32 s17, s45, 1
    s_lshl_b32 s17, s17, 3
    s_and_b32 s47, s46, 7
    s_add_u32 s17, s17, s47          ; C = 8*(e&1) + (i&7)
    s_lshr_b32 s18, s40, 2           ; grp
    s_and_b32 s19, s40, 3            ; tq
    s_lshl_b32 s47, s16, 2
    s_add_u32 s47, s47, s19          ; tb3
    s_lshl_b32 s28, s47, 16
    s_lshl_b32 s38, s18, 15
    s_add_u32 s28, s28, s38
    s_add_u32 s28, s28, {WS_OA}
    s_lshl_b32 s31, s47, 7
    s_add_u32 s31, s31, {WS_G}       ; g offset
    s_lshr_b32 s47, s16, 1
    s_lshl_b32 s36, s47, 8
    s_add_u32 s36, s36, {WS_FA}
    s_lshl_b32 s83, s47, 7
    s_add_u32 s83, s83, {WS_FB}
    s_lshl_b32 s30, s18, 13
    s_lshl_b32 s38, s19, 11
    s_add_u32 s30, s30, s38
    s_mov_b32 s29, 0
    s_waitcnt lgkmcnt(0)
    s_cmp_lt_u32 s46, 16
    s_cselect_b32 s24, s4, s6
    s_cselect_b32 s25, s5, s7
    s_mov_b32 s26, {1024*2048}
    s_mov_b32 s27, 0x00020000
    s_mov_b32 s20, s4
    s_mov_b32 s21, s5
    s_mov_b32 s22, {1024*2048}
    s_mov_b32 s23, 0x00020000
    """)

def gen_kf(A, cfg):
    K = KNAME
    F1POS = int(cfg.get("f1pos", 2))
    ROT = int(cfg.get("rot", 12))
    PV = 255
    kernel_begin(A, K)
    A(f"""
    s_cmp_ge_u32 s2, 256
    s_cbranch_scc1 KF_END
    s_load_dwordx2 s[4:5], s[0:1], 0
    s_load_dwordx2 s[6:7], s[0:1], 8
    s_load_dwordx2 s[8:9], s[0:1], 40
    s_load_dwordx2 s[10:11], s[0:1], 16
    s_load_dwordx2 s[12:13], s[0:1], 56
    s_load_dwordx2 s[14:15], s[0:1], 80
    s_load_dwordx2 s[86:87], s[0:1], 72
    v_lshrrev_b32 v1, 6, v0
    v_and_b32 v0, 63, v0
    v_readfirstlane_b32 s40, v1
    s_and_b32 s45, s2, 7
    s_lshr_b32 s46, s2, 3
    """)
    if cfg.get("prof"): A(f"v_mov_b32 v{PV}, 0")
    vstamp(A, cfg, 0, PV)
    A("""
    s_and_b32 s41, s45, 1
    s_lshl_b32 s41, s41, 2
    s_lshr_b32 s47, s46, 3
    s_add_u32 s41, s41, s47          ; r = 4*(e&1) + (i>>3)
    s_lshr_b32 s42, s45, 1
    s_lshl_b32 s42, s42, 3
    s_and_b32 s47, s46, 7
    s_add_u32 s42, s42, s47          ; c = 8*(e>>1) + (i&7)
    s_lshr_b32 s43, s42, 1           ; p
    s_and_b32 s44, s42, 1            ; type
    s_mov_b32 s64, s41
    s_mov_b32 s65, s43
    s_mov_b32 s66, s44
    s_waitcnt lgkmcnt(0)
    """)
    srd(A, 32, 14, WS_USED)
    A("""
    s_cmp_ge_u32 s40, 4
    s_cbranch_scc1 K1_LOADER
    """)
    setup_p2(A)
    A(f"""
    s_cmp_lg_u32 s40, 0
    s_cbranch_scc1 K1_NOZ
    s_cmp_eq_u32 s66, 0
    s_cselect_b32 s47, 1, 3
    v_and_b32 v4, s47, v0
    v_lshlrev_b32 v4, 2, v4
    v_add_u32 v4, s68, v4
    v_lshlrev_b32 v5, 2, v0
    v_add_u32 v5, s67, v5
    v_cmp_gt_u32 vcc, 4, v0
    v_mov_b32 v6, s69
    s_nop 0
    v_cndmask_b32 v4, v4, v5, vcc
    v_cmp_eq_u32 vcc, 8, v0
    v_mov_b32 v5, 0
    s_nop 0
    v_cndmask_b32 v4, v4, v6, vcc
    s_mov_b64 exec, 0x1ff
    buffer_store_dword v5, v4, s[32:35], 0 offen sc1
    s_mov_b32 s36, s86
    s_mov_b32 s37, s87
    s_mov_b32 s38, 256
    s_mov_b32 s39, 0x00020000
    s_waitcnt vmcnt(0)
    s_mov_b64 exec, 1
    v_mov_b32 v6, 1
    buffer_atomic_add v6, v5, s[36:39], 0 offen
    s_mov_b64 exec, -1
    K1_NOZ:
    """)
    setup_p3(A)
    XA, WA = 4, 20
    XB, WB = 32, 48
    ACC = 60
    acc = lambda sg, tt: ACC + (sg * 4 + tt) * 16
    A(f"""
    s_lshr_b32 s50, s40, 1           ; th
    s_and_b32 s51, s40, 1            ; hsel
    v_and_b32 v4, 31, v0
    v_lshrrev_b32 v5, 5, v0          ; hh
    v_bfe_u32 v6, v0, 2, 2           ; f = (l>>2)&3
    v_xor_b32 v7, v5, v6
    v_lshlrev_b32 v7, 4, v7
    v_lshl_add_u32 v1, v4, 6, v7
    s_lshl_b32 s47, s50, 13
    v_add_u32 v1, s47, v1            ; vxa0
    v_xor_b32 v2, 32, v1             ; vxa1
    v_lshl_add_u32 v7, v5, 3, v6
    v_lshlrev_b32 v7, 7, v7          ; *128
    v_bfe_u32 v8, v0, 4, 1           ; g&1
    v_bfe_u32 v9, v0, 1, 1
    v_lshl_add_u32 v8, v8, 1, v9     ; (g&1)*2 + ((i&3)>>1)
    s_lshl_b32 s47, s51, 2
    v_add_u32 v8, s47, v8            ; + hsel*4
    v_bfe_u32 v9, v0, 3, 1
    v_lshlrev_b32 v9, 2, v9
    v_xor_b32 v8, v8, v9             ; chunk'
    v_lshl_add_u32 v7, v8, 4, v7
    v_and_b32 v9, 1, v0
    v_lshl_add_u32 v7, v9, 3, v7
    v_add_u32 v3, 16384, v7          ; vwa
    s_mov_b32 s48, 0
    s_mov_b32 s52, {K1_SLOT}
    s_mov_b32 s53, {-(K1_NSLOT-1)*K1_SLOT & 0xffffffff}
    s_mov_b32 s54, 32
    """)
    for i in range(192):
        A(f"v_mov_b32 v{ACC+i}, 0")
    A("s_barrier")
    vstamp(A, cfg, 1, PV)
    def reads(X, W, s):
        r = []
        xa = 1 if s == 0 else 2
        for tt in range(4):
            r.append(f"ds_read_b128 v[{X+4*tt}:{X+4*tt+3}], v{xa} offset:{tt*2048}")
        for sg in range(3):
            for sec in range(2):
                r.append(f"ds_read_b64_tr_b16 v[{W+4*sg+2*sec}:{W+4*sg+2*sec+1}], v3 offset:{sg*4096 + s*2048 + sec*512}")
        return [r[4], r[5], r[0], r[1], r[2], r[3], r[6], r[7], r[8], r[9]]
    def mfmas(X, W):
        m = []
        for sg in range(3):
            for tt in range(4):
                a = acc(sg, tt)
                w = f"v[{W+4*sg}:{W+4*sg+3}]"; x = f"v[{X+4*tt}:{X+4*tt+3}]"
                if sg < 2: m.append(f"v_mfma_f32_32x32x16_bf16 v[{a}:{a+15}], {w}, {x}, v[{a}:{a+15}]")
                else:      m.append(f"v_mfma_f32_32x32x16_bf16 v[{a}:{a+15}], {x}, {w}, v[{a}:{a+15}]")
        return m
    for l in reads(XA, WA, 0): A(l)
    A.label("K1_CLOOP")
    A("s_waitcnt lgkmcnt(0)")
    m = mfmas(XA, WA); r = reads(XB, WB, 1)
    extra0 = {6: ["s_add_u32 s48, s48, 1", f"s_cmp_eq_u32 s48, {K1_NSLOT}", "s_cselect_b32 s49, s53, s52", "s_cselect_b32 s48, 0, s48"],
              7: ["v_add_u32 v1, s49, v1"], 8: ["v_add_u32 v2, s49, v2"], 9: ["v_add_u32 v3, s49, v3"]}
    for k in range(12):
        A(m[k])
        if k < 5:
            A(r[2*k]); A(r[2*k+1])
        for l in extra0.get(k, []): A(l)
    A("s_waitcnt lgkmcnt(0)")
    m = mfmas(XB, WB); r = reads(XA, WA, 0)
    for k in range(12):
        A(m[k])
        if k < 5:
            A(r[2*k]); A(r[2*k+1])
        if k == 8:
            A("s_sub_u32 s54, s54, 1"); A("s_cmp_lg_u32 s54, 0")
    A("s_barrier")
    A("s_cbranch_scc1 K1_CLOOP")
    A("s_waitcnt lgkmcnt(0)")
    vstamp(A, cfg, 2, PV)
    A(f"""
    v_lshlrev_b32 v1, 4, v0          ; lane*16
    s_lshl_b32 s52, s43, 1
    s_add_u32 s52, s52, s51          ; h
    s_lshl_b32 s53, s41, 3
    s_lshl_b32 s47, s50, 2
    s_add_u32 s53, s53, s47
    s_lshl_b32 s54, s52, 6
    s_add_u32 s54, s54, s53          ; h*64 + tb0
    s_cmp_lg_u32 s44, 0
    s_cbranch_scc1 K1_E1T1
    s_mov_b32 s56, {fhex(32**-0.5 * LOG2E)}
    s_mov_b32 s57, s56
    s_lshl_b32 s58, s54, 11
    s_add_u32 s58, s58, {WS_QB}
    """)
    A.nop(6)
    T1 = 4
    V = acc(1, 0)
    Q = acc(1, 0) + 32
    for tt in range(4):
        for k in range(8):
            a = acc(1, tt) + 2*k
            A(f"v_pk_mul_f32 v[{a}:{a+1}], v[{a}:{a+1}], s[56:57]")
        cvt_tile(A, T1 + 8*tt, acc(1, tt))
        A(f"buffer_store_dwordx4 v[{T1+8*tt}:{T1+8*tt+3}], v1, s[32:35], s58 offen sc1")
        A(f"buffer_store_dwordx4 v[{T1+8*tt+4}:{T1+8*tt+7}], v1, s[32:35], s58 offen offset:1024 sc1")
        A("s_add_u32 s58, s58, 2048")
    for tt in range(4):
        cvt_tile(A, V + 8*tt, acc(2, tt))
    A("s_branch K1_E2J")
    A.label("K1_E1T1")
    A(f"""
    s_lshl_b32 s58, s54, 12
    s_add_u32 s58, s58, {WS_KVB}
    """)
    A.nop(10)
    for tt in range(4):
        cvt_tile(A, T1 + 8*tt, acc(1, tt))
        A(f"buffer_store_dwordx4 v[{T1+8*tt}:{T1+8*tt+3}], v1, s[32:35], s58 offen sc1")
        A(f"buffer_store_dwordx4 v[{T1+8*tt+4}:{T1+8*tt+7}], v1, s[32:35], s58 offen offset:1024 sc1")
        A("s_add_u32 s58, s58, 4096")
    A(f"s_sub_u32 s58, s58, {4*4096 - 2048}")
    for tt in range(4):
        cvt_tile(A, V + 8*tt, acc(2, tt))
        A(f"buffer_store_dwordx4 v[{V+8*tt}:{V+8*tt+3}], v1, s[32:35], s58 offen sc1")
        A(f"buffer_store_dwordx4 v[{V+8*tt+4}:{V+8*tt+7}], v1, s[32:35], s58 offen offset:1024 sc1")
        A("s_add_u32 s58, s58, 4096")
    A.label("K1_E2J")
    WP = 36
    A(f"""
    v_lshrrev_b32 v5, 5, v0          ; hh
    v_bfe_u32 v6, v0, 2, 2           ; i>>2
    v_lshl_add_u32 v6, v5, 2, v6     ; 4hh + (i>>2)
    v_bfe_u32 v7, v0, 4, 1
    v_lshlrev_b32 v7, 5, v7
    v_and_b32 v8, 3, v0
    v_lshl_add_u32 v7, v8, 3, v7     ; (g&1)*32 + (i&3)*8
    v_lshl_add_u32 v2, v6, 6, v7
    s_lshl_b32 s47, s51, 11
    s_add_u32 s47, s47, {K1_WPHI}
    v_add_u32 v2, s47, v2
    """)
    for s in range(2):
        for sec in range(2):
            A(f"ds_read_b64_tr_b16 v[{WP+4*s+2*sec}:{WP+4*s+2*sec+1}], v2 offset:{(16*s+8*sec)*64}")
    A(f"""
    s_mul_i32 s47, s40, {K1_TBUF}
    s_add_u32 s47, s47, {TBUF0}
    v_mul_u32_u24 v25, 136, v6
    v_add_u32 v25, v25, v7
    v_add_u32 v25, s47, v25
    v_and_b32 v8, 31, v0
    v_mul_u32_u24 v24, 136, v8
    v_lshl_add_u32 v24, v5, 3, v24
    v_add_u32 v24, s47, v24
    v_bfe_u32 v8, v0, 2, 1
    v_bfe_u32 v9, v0, 4, 1
    v_cmp_eq_u32 vcc, v8, v9
    v_mov_b32 v9, 0x3f803f80
    v_mov_b32 v8, 0
    v_cndmask_b32 v20, v8, v9, vcc
    v_cndmask_b32 v21, v8, v9, vcc
    v_cndmask_b32 v22, v8, v9, vcc
    v_cndmask_b32 v23, v8, v9, vcc
    """)
    for tt in range(4):
        cvt_tile(A, Q + 8*tt, acc(0, tt))
    A("s_waitcnt lgkmcnt(0)")
    for tt in range(4):
        a = acc(0, tt)
        A(f"v_mfma_f32_32x32x16_bf16 v[{a}:{a+15}], v[{WP}:{WP+3}], v[{Q+8*tt}:{Q+8*tt+3}], 0")
    for tt in range(4):
        a = acc(0, tt)
        A(f"v_mfma_f32_32x32x16_bf16 v[{a}:{a+15}], v[{WP+4}:{WP+7}], v[{Q+8*tt+4}:{Q+8*tt+7}], v[{a}:{a+15}]")
    A(f"""
    s_mov_b32 s56, {fhex(LOG2E)}
    s_mov_b32 s57, s56
    """)
    A.nop(10)
    EP = acc(2, 0)
    PH = EP + 16
    AF = PH + 16
    KV0 = AF + 16
    KV1 = 44
    Z0, Z1, SEL1 = 12, 16, 20
    PHQ = 128
    def kv_mfmas(tt):
        out = []
        for s in range(2):
            for fb in range(2):
                kv = KV0 if fb == 0 else KV1
                z = Z0 if fb == 0 else Z1
                af = AF + (fb*2+s)*4
                c = "0" if (tt == 0 and s == 0) else f"v[{kv}:{kv+15}]"
                cz = "0" if (tt == 0 and s == 0) else f"v[{z}:{z+3}]"
                out.append(f"v_mfma_f32_32x32x16_bf16 v[{kv}:{kv+15}], v[{af}:{af+3}], v[{V+8*tt+4*s}:{V+8*tt+4*s+3}], {c}")
                out.append(f"v_mfma_f32_16x16x32_bf16 v[{z}:{z+3}], v[{SEL1}:{SEL1+3}], v[{af}:{af+3}], {cz}")
        return out
    for tt in range(4):
        P = acc(0, tt)
        A(f"v_max3_f32 v4, v{P}, v{P+1}, v{P+2}")
        A(f"v_max3_f32 v5, -v{P}, -v{P+1}, -v{P+2}")
        for k in range(3, 15, 2):
            A(f"v_max3_f32 v4, v4, v{P+k}, v{P+k+1}")
            A(f"v_max3_f32 v5, v5, -v{P+k}, -v{P+k+1}")
        A(f"v_max_f32 v4, v4, v{P+15}")
        A(f"v_max_f32 v5, v5, -v{P+15}")
        A.nop(2)
        A("v_permlane32_swap_b32 v4, v5")
        A("s_nop 0")
        A("v_max_f32 v4, v4, v5")
        A("v_mov_b32 v5, v4")
        A.nop(2)
        A("v_permlane32_swap_b32 v4, v5")
        A("s_nop 0")
        A(f"v_mul_f32 v6, {fhex(-LOG2E)}, v4")
        A(f"v_mul_f32 v8, {fhex(-LOG2E)}, v5")
        for k in range(8):
            A(f"v_pk_fma_f32 v[{EP+2*k}:{EP+2*k+1}], v[{P+2*k}:{P+2*k+1}], s[56:57], v[6:7] op_sel_hi:[1,1,0]")
            A(f"v_pk_fma_f32 v[{P+2*k}:{P+2*k+1}], v[{P+2*k}:{P+2*k+1}], s[56:57], v[8:9] op_sel_hi:[1,1,0] neg_lo:[0,1,0] neg_hi:[0,1,0]")
        for k in range(16):
            A(f"v_exp_f32 v{EP+k}, v{EP+k}")
            A(f"v_exp_f32 v{P+k}, v{P+k}")
        if tt > 0:
            j = A.uid("K1_KVS")
            A("s_cmp_lg_u32 s44, 0"); A(f"s_cbranch_scc1 {j}")
            A("s_waitcnt lgkmcnt(0)")
            for l in kv_mfmas(tt-1): A(l)
            A.label(j)
        A(f"v_pk_add_f32 v[4:5], v[{EP}:{EP+1}], v[{EP+2}:{EP+3}]")
        A(f"v_pk_add_f32 v[6:7], v[{P}:{P+1}], v[{P+2}:{P+3}]")
        for k in range(2, 8):
            A(f"v_pk_add_f32 v[4:5], v[4:5], v[{EP+2*k}:{EP+2*k+1}]")
            A(f"v_pk_add_f32 v[6:7], v[6:7], v[{P+2*k}:{P+2*k+1}]")
        A("v_add_f32 v4, v4, v5")
        A("v_add_f32 v6, v6, v7")
        A.nop(2)
        A("v_permlane32_swap_b32 v4, v6")
        A("s_nop 0")
        A("v_add_f32 v4, v4, v6")
        A("v_rcp_f32 v4, v4")
        A("s_nop 0")
        A("v_mov_b32 v6, v4")
        A.nop(2)
        A("v_permlane32_swap_b32 v4, v6")
        A("s_nop 0")
        for k in range(8):
            A(f"v_pk_mul_f32 v[{EP+2*k}:{EP+2*k+1}], v[{EP+2*k}:{EP+2*k+1}], v[4:5] op_sel_hi:[1,0]")
            A(f"v_pk_mul_f32 v[{P+2*k}:{P+2*k+1}], v[{P+2*k}:{P+2*k+1}], v[6:7] op_sel_hi:[1,0]")
        j1 = A.uid("K1_T0"); j2 = A.uid("K1_TJ")
        A("s_cmp_eq_u32 s44, 0"); A(f"s_cbranch_scc1 {j1}")
        cvt_tile(A, PHQ + 16*tt, EP)
        cvt_tile(A, PHQ + 16*tt + 8, P)
        A(f"s_branch {j2}")
        A.label(j1)
        cvt_tile(A, PH, EP)
        cvt_tile(A, PH + 8, P)
        for sign in range(2):
            for b in range(4):
                A(f"ds_write_b64 v24, v[{PH+8*sign+2*b}:{PH+8*sign+2*b+1}] offset:{sign*64+b*16}")
        for fb in range(2):
            for s in range(2):
                for sec in range(2):
                    af = AF + (fb*2+s)*4 + 2*sec
                    A(f"ds_read_b64_tr_b16 v[{af}:{af+1}], v25 offset:{(16*s+8*sec)*136 + fb*64}")
        A.label(j2)
        if tt == F1POS:
            A("s_waitcnt vmcnt(0)")
            set_flag(A, "s67")
            vstamp(A, cfg, 3, PV)
    A("s_cmp_lg_u32 s44, 0")
    A("s_cbranch_scc1 KF_JOIN")
    A("s_waitcnt lgkmcnt(0)")
    for l in kv_mfmas(3): A(l)
    A.nop(12)
    A(f"""
    v_mov_b32 v{Z0+1}, v{Z1}
    s_mul_i32 s47, s51, 9216
    s_add_u32 s47, s47, {RED0}
    v_add_u32 v2, s47, v1
    v_lshlrev_b32 v3, 3, v0
    v_add_u32 v3, s47, v3
    s_cmp_eq_u32 s50, 0
    s_cbranch_scc1 K1_RED0
    """)
    for fb in range(2):
        kv = KV0 if fb == 0 else KV1
        for q in range(4):
            A(f"ds_write_b128 v2, v[{kv+4*q}:{kv+4*q+3}] offset:{fb*4096+q*1024}")
    A(f"ds_write_b64 v3, v[{Z0}:{Z0+1}] offset:8192")
    A("""
    s_waitcnt lgkmcnt(0)
    s_barrier
    s_branch KF_JOIN
    K1_RED0:
    s_barrier
    """)
    R = 60
    for k in range(8):
        A(f"ds_read_b128 v[{R+4*k}:{R+4*k+3}], v2 offset:{k*1024}")
    A(f"ds_read_b64 v[{R+32}:{R+33}], v3 offset:8192")
    A(f"""
    s_lshl_b32 s47, s52, 3
    s_add_u32 s47, s47, s41          ; h*8 + r
    s_lshl_b32 s58, s47, 13
    s_add_u32 s58, s58, {WS_KVP}
    s_add_u32 s59, s58, 4096
    s_lshl_b32 s60, s47, 8
    s_add_u32 s60, s60, {WS_ZP}
    v_and_b32 v3, 31, v0
    v_lshlrev_b32 v3, 2, v3
    s_waitcnt lgkmcnt(0)
    """)
    for fb in range(2):
        kv = KV0 if fb == 0 else KV1
        for k in range(8):
            A(f"v_pk_add_f32 v[{kv+2*k}:{kv+2*k+1}], v[{kv+2*k}:{kv+2*k+1}], v[{R+16*fb+2*k}:{R+16*fb+2*k+1}]")
    A(f"v_pk_add_f32 v[{Z0}:{Z0+1}], v[{Z0}:{Z0+1}], v[{R+32}:{R+33}]")
    for fb in range(2):
        kv = KV0 if fb == 0 else KV1
        for q in range(4):
            A(f"buffer_store_dwordx4 v[{kv+4*q}:{kv+4*q+3}], v1, s[32:35], s{58+fb} offen offset:{q*1024} sc1")
    A(f"buffer_store_dword v{Z0}, v3, s[32:35], s60 offen sc1")
    A(f"buffer_store_dword v{Z0+1}, v3, s[32:35], s60 offen offset:128 sc1")
    A("s_branch KF_JOIN")
    A.label("K1_LOADER")
    srd(A, 16, 4, 2048*2048)
    srd(A, 20, 6, 1024*6144)
    srd(A, 24, 8, 1024*6144)
    A("""
    s_cmp_eq_u32 s44, 0
    s_cselect_b32 s28, s6, s8
    s_cselect_b32 s29, s7, s9
    """)
    A(f"s_mov_b32 s30, {1024*6144}")
    A("s_mov_b32 s31, 0x00020000")
    srd(A, 36, 10, 32*2048)
    A(f"""
    s_sub_u32 s50, s40, 4            ; w
    v_lshrrev_b32 v1, 2, v0
    v_lshrrev_b32 v2, 4, v0
    v_and_b32 v3, 3, v0
    v_xor_b32 v3, v3, v2
    v_lshlrev_b32 v3, 4, v3
    v_lshl_add_u32 v4, v1, 11, v3
    s_lshl_b32 s47, s41, 8
    s_lshl_b32 s51, s50, 6
    s_add_u32 s47, s47, s51
    s_lshl_b32 s47, s47, 11          ; (r*256 + 64w)*2048
    v_add_u32 v4, s47, v4
    v_add_u32 v5, 32768, v4
    v_add_u32 v6, 65536, v4
    v_add_u32 v7, 98304, v4
    v_lshrrev_b32 v1, 3, v0
    s_lshl_b32 s47, s50, 3
    v_add_u32 v1, s47, v1            ; krow = 8w + (l>>3)
    v_mul_u32_u24 v1, 6144, v1
    v_bfe_u32 v2, v0, 4, 1
    v_lshlrev_b32 v2, 2, v2
    v_and_b32 v3, 7, v0
    v_xor_b32 v3, v3, v2
    v_lshl_add_u32 v1, v3, 4, v1
    s_lshl_b32 s47, s43, 7           ; 128p
    s_lshl_b32 s51, s44, 11          ; type*2048
    s_add_u32 s52, s47, s51
    v_add_u32 v9, s52, v1            ; seg1
    s_sub_u32 s52, 2048, s51
    s_add_u32 s52, s52, s47
    v_add_u32 v8, s52, v1            ; seg0
    s_add_u32 s52, s47, 4096
    v_add_u32 v10, s52, v1           ; seg2
    v_lshlrev_b32 v11, 4, v0
    s_lshl_b32 s47, s43, 12
    s_lshl_b32 s51, s50, 10
    s_add_u32 s47, s47, s51
    s_add_u32 m0, s51, {K1_WPHI}
    s_lshl_b32 s55, s50, 12          ; w*4096  (x pieces)
    buffer_load_dwordx4 v11, s[36:39], s47 offen lds
    s_add_u32 s56, s51, 16384        ; 16384 + w*1024 (W pieces)
    s_mov_b32 s57, 0
    s_mul_i32 s47, s45, {ROT}
    s_and_b32 s47, s47, 31
    s_lshl_b32 s58, s47, 6           ; soffset x
    s_mul_i32 s59, s47, {32*6144}    ; soffset W
    s_mov_b32 s60, 0                 ; block
    K1_LLOOP:
    s_add_u32 s61, s57, s55
    s_add_u32 s62, s57, s56
    """)
    for i in range(4):
        A(f"s_add_u32 m0, s61, {i*1024}")
        A("s_nop 0")
        A(f"buffer_load_dwordx4 v{4+i}, s[16:19], s58 offen lds")
    for sg in range(3):
        A(f"s_add_u32 m0, s62, {sg*4096}")
        A("s_nop 0")
        A(f"buffer_load_dwordx4 v{8+sg}, s[{20+4*sg}:{23+4*sg}], s59 offen lds")
    A(f"""
    s_add_u32 s58, s58, 64
    s_add_u32 s59, s59, {32*6144}
    s_and_b32 s58, s58, 2047
    s_cmp_eq_u32 s59, {1024*6144}
    s_cselect_b32 s59, 0, s59
    s_add_u32 s57, s57, {K1_SLOT}
    s_cmp_eq_u32 s57, {K1_SLOT*K1_NSLOT}
    s_cselect_b32 s57, 0, s57
    s_add_u32 s60, s60, 1
    s_cmp_lt_u32 s60, 4
    s_cbranch_scc1 K1_LLOOP
    s_waitcnt vmcnt(14)
    s_barrier
    s_cmp_lt_u32 s60, 32
    s_cbranch_scc1 K1_LLOOP
    s_waitcnt vmcnt(7)
    s_barrier
    s_waitcnt vmcnt(0)
    s_barrier
    s_cmp_eq_u32 s44, 0
    s_cbranch_scc1 KL_NOG0
    """)
    srd(A, 36, 12, 2048)
    GX = 64
    A(f"""
    s_lshl_b32 s47, s41, 8
    s_lshl_b32 s51, s43, 4
    s_add_u32 s47, s47, s51
    s_lshl_b32 s51, s50, 2
    s_add_u32 s63, s47, s51          ; t0 = r*256 + p*16 + 4w
    s_lshl_b32 s51, s63, 11
    v_lshlrev_b32 v1, 5, v0
    buffer_load_dwordx4 v[32:35], v1, s[36:39], 0 offen
    buffer_load_dwordx4 v[36:39], v1, s[36:39], 0 offen offset:16
    """)
    for j in range(4):
        A(f"buffer_load_dwordx4 v[{GX+8*j}:{GX+8*j+3}], v1, s[16:19], s51 offen")
        A(f"buffer_load_dwordx4 v[{GX+8*j+4}:{GX+8*j+7}], v1, s[16:19], s51 offen offset:16")
        if j < 3: A("s_add_u32 s51, s51, 2048")
    A("""
    KL_NOG0:
    s_barrier
    s_barrier
    """)
    vstamp(A, cfg, 2, PV)
    A("""
    s_cmp_eq_u32 s44, 0
    s_cbranch_scc1 KL_NOG1
    """)
    for j in range(4): A(f"v_mov_b32 v{40+j}, 0")
    A("s_waitcnt vmcnt(0)")
    for k in range(8):
        for j in range(4):
            A(f"v_dot2c_f32_bf16 v{40+j}, v{GX+8*j+k}, v{32+k}")
    A("v_lshlrev_b32 v3, 2, v0")
    A.nop(3)
    for mask in (1, 2, 4, 8, 16, 32):
        A(f"v_xor_b32 v4, {mask*4}, v3")
        for j in range(4): A(f"ds_bpermute_b32 v{5+j}, v4, v{40+j}")
        A("s_waitcnt lgkmcnt(0)")
        for j in range(4): A(f"v_add_f32 v{40+j}, v{40+j}, v{5+j}")
    for j in range(1, 4):
        A(f"v_cmp_eq_u32 vcc, {j}, v0")
        A("s_nop 1")
        A(f"v_cndmask_b32 v40, v40, v{40+j}, vcc")
    A(f"""
    v_mul_f32 v40, {fhex(-LOG2E)}, v40
    v_exp_f32 v40, v40
    s_nop 0
    v_add_f32 v40, 1.0, v40
    v_rcp_f32 v40, v40
    s_lshl_b32 s47, s63, 2
    s_add_u32 s47, s47, {WS_G}
    s_mov_b64 exec, 15
    buffer_store_dword v40, v3, s[32:35], s47 offen sc1
    s_mov_b64 exec, -1
    KL_NOG1:
    """)
    setup_p2(A)
    setup_p3(A)
    A("""
    s_cmp_lg_u32 s66, 0
    s_cbranch_scc1 KL_NOE3
    s_barrier
    KL_NOE3:
    s_mov_b32 s85, s36
    """)
    A(f"""
    s_mov_b32 s36, s86
    s_mov_b32 s37, s87
    s_mov_b32 s38, 256
    s_mov_b32 s39, 0x00020000
    v_mov_b32 v46, 0
    v_lshlrev_b32 v35, 2, v0
    """)
    poll_issue(A, 47, 46, 36, "0")
    A("s_waitcnt vmcnt(0)")
    poll_check(A, 47, 46, 36, "0", "PG", expect="0x100")
    poll_issue(A, 47, 35, 32, "s78")
    A("s_waitcnt vmcnt(0)")
    poll_check(A, 47, 35, 32, "s78", "P1")
    vstamp(A, cfg, 3, PV)
    A(f"""
    v_lshlrev_b32 v3, 4, v0
    s_lshl_b32 s47, s50, 12          ; w*4096
    s_add_u32 m0, s47, {QST}
    s_add_u32 s51, s70, s47
    """)
    for j in range(4):
        A(f"buffer_load_dwordx4 v3, s[32:35], s79 offen offset:{j*1024} sc1 lds")
    for c in range(6):
        A(f"s_add_u32 m0, s47, {c*16384}")
        A("s_nop 0")
        for j in range(4):
            A(f"buffer_load_dwordx4 v3, s[32:35], s51 offen offset:{j*1024} sc1 lds")
        A("s_add_u32 s51, s51, 16384")
    A("s_mov_b32 s36, s85")
    A.label("KF_JOIN")
    Q, K0, K1, V0, V1, SEL, NEGM, SA, SB, O, L, P = 8, 16, 20, 24, 28, 40, 48, 64, 80, 96, 112, 120
    PR = 116
    if cfg.get("prof"): A(f"v_mov_b32 v{PR}, v{PV}")
    vstamp(A, cfg, 4, PR)
    A(f"""
    v_lshlrev_b32 v3, 4, v0          ; lane*16
    v_bfe_u32 v4, v0, 2, 1
    v_bfe_u32 v5, v0, 4, 1
    v_cmp_eq_u32 vcc, v4, v5
    v_mov_b32 v5, 0x3f803f80
    v_mov_b32 v4, 0
    v_cndmask_b32 v{SEL}, v4, v5, vcc
    v_cndmask_b32 v{SEL+1}, v4, v5, vcc
    v_cndmask_b32 v{SEL+2}, v4, v5, vcc
    v_cndmask_b32 v{SEL+3}, v4, v5, vcc
    s_lshl_b32 s47, s40, 11
    s_add_u32 s47, s47, {QST}
    v_add_u32 v6, s47, v3
    v_mov_b32 v1, v3                 ; cur
    v_add_u32 v2, 16384, v3          ; next
    """)
    for i in range(16): A(f"v_mov_b32 v{O+i}, 0")
    for i in range(4):
        A(f"v_mov_b32 v{L+i}, 0"); A(f"v_mov_b32 v{V1+i}, 0"); A(f"v_mov_b32 v{P+4+i}, 0")
    for i in (35, 36, 37, 38, 39, 45, 46): A(f"v_mov_b32 v{i}, 0")
    A(f"""
    s_mov_b32 s60, 0
    s_mov_b32 s61, 2
    s_waitcnt vmcnt(16)
    s_barrier
    """)
    vstamp(A, cfg, 5, PR)
    A(f"""
    ds_read_b128 v[{Q}:{Q+3}], v6
    ds_read_b128 v[{NEGM}:{NEGM+3}], v3
    ds_read_b128 v[{Q+4}:{Q+7}], v6 offset:1024
    ds_read_b128 v[{NEGM+4}:{NEGM+7}], v3 offset:1024
    ds_read_b128 v[{K0}:{K0+3}], v3 offset:4096
    ds_read_b128 v[{K1}:{K1+3}], v3 offset:{4096+1024}
    ds_read_b128 v[{V0}:{V0+3}], v3 offset:2048
    s_waitcnt lgkmcnt(5)
    v_mfma_f32_32x32x16_bf16 v[{SA}:{SA+15}], v[{NEGM}:{NEGM+3}], v[{Q}:{Q+3}], 0
    s_waitcnt lgkmcnt(3)
    v_mfma_f32_32x32x16_bf16 v[{SA}:{SA+15}], v[{NEGM+4}:{NEGM+7}], v[{Q+4}:{Q+7}], v[{SA}:{SA+15}]
    s_waitcnt lgkmcnt(1)
    v_mfma_f32_32x32x16_bf16 v[{SB}:{SB+15}], v[{K0}:{K0+3}], v[{Q}:{Q+3}], 0
    v_mfma_f32_32x32x16_bf16 v[{SB}:{SB+15}], v[{K1}:{K1+3}], v[{Q+4}:{Q+7}], v[{SB}:{SB+15}]
    """)
    A.nop(9)
    A(f"v_max3_f32 v4, v{SA}, v{SA+1}, v{SA+2}")
    A(f"v_max3_f32 v5, v{SA+3}, v{SA+4}, v{SA+5}")
    for k in range(6, 14, 4):
        A(f"v_max3_f32 v4, v4, v{SA+k}, v{SA+k+1}")
        A(f"v_max3_f32 v5, v5, v{SA+k+2}, v{SA+k+3}")
    A(f"v_max3_f32 v4, v4, v{SA+14}, v{SA+15}")
    for k in range(0, 16, 4):
        A(f"v_max3_f32 v4, v4, v{SB+k}, v{SB+k+1}")
        A(f"v_max3_f32 v5, v5, v{SB+k+2}, v{SB+k+3}")
    A("v_max_f32 v4, v4, v5")
    A("v_mov_b32 v5, v4")
    A.nop(2)
    A("v_permlane32_swap_b32 v4, v5")
    A("s_nop 0")
    A("v_max_f32 v4, v4, v5")
    A(f"v_add_f32 v4, {fhex(BIAS)}, v4")
    for i in range(16):
        A(f"v_sub_f32 v{NEGM+i}, 0, v4")
    for k in range(8):
        A(f"v_pk_add_f32 v[{SA+2*k}:{SA+2*k+1}], v[{SA+2*k}:{SA+2*k+1}], v[{NEGM}:{NEGM+1}]")
    vstamp(A, cfg, 6, PR)
    def dma_chunk():
        A("s_mov_b32 m0, s72")
        A("s_add_u32 s72, s72, 16384")
        A("buffer_load_dwordx4 v3, s[32:35], s71 offen sc1 lds")
        A("buffer_load_dwordx4 v3, s[32:35], s71 offen offset:1024 sc1 lds")
        A(f"s_and_b32 s72, s72, {RING-1}")
        A("s_add_u32 s71, s71, 16384")
    def tile(i, Sa, Sb, sideA=(), sideB=(), end=()):
        e = lambda k: f"v_exp_f32 v{Sa+k}, v{Sa+k}"
        c = lambda k: f"v_cvt_pk_bf16_f32 v{P+k}, v{Sa+2*k}, v{Sa+2*k+1}"
        QK0 = f"v_mfma_f32_32x32x16_bf16 v[{Sb}:{Sb+15}], v[{K0}:{K0+3}], v[{Q}:{Q+3}], v[{NEGM}:{NEGM+15}]"
        QK1 = f"v_mfma_f32_32x32x16_bf16 v[{Sb}:{Sb+15}], v[{K1}:{K1+3}], v[{Q+4}:{Q+7}], v[{Sb}:{Sb+15}]"
        PV0 = f"v_mfma_f32_32x32x16_bf16 v[{O}:{O+15}], v[{V0}:{V0+3}], v[{P}:{P+3}], v[{O}:{O+15}]"
        PV1 = f"v_mfma_f32_32x32x16_bf16 v[{O}:{O+15}], v[{V1}:{V1+3}], v[{P+4}:{P+7}], v[{O}:{O+15}]"
        L0 = f"v_mfma_f32_16x16x32_bf16 v[{L}:{L+3}], v[{SEL}:{SEL+3}], v[{P}:{P+3}], v[{L}:{L+3}]"
        L1 = f"v_mfma_f32_16x16x32_bf16 v[{L}:{L+3}], v[{SEL}:{SEL+3}], v[{P+4}:{P+7}], v[{L}:{L+3}]"
        W = "s_waitcnt lgkmcnt(3)"
        def addr(tt, fr):
            return (f"v1 offset:{tt*4096+fr*1024}" if tt < 4 else f"v2 offset:{(tt-4)*4096+fr*1024}")
        rK0 = f"ds_read_b128 v[{K0}:{K0+3}], {addr(i+2, 0)}"; rK1 = f"ds_read_b128 v[{K1}:{K1+3}], {addr(i+2, 1)}"
        rV0 = f"ds_read_b128 v[{V0}:{V0+3}], {addr(i+1, 2)}"; rV1 = f"ds_read_b128 v[{V1}:{V1+3}], {addr(i, 3)}"
        seq = [e(0), e(1), W, PV1, rV1, *sideA, e(2), e(3), e(4), e(5), W, QK0, rK0, e(6), e(7), c(0), c(1), L1, c(2), c(3), e(8), W, QK1, rK1,
               *sideB, e(9), e(10), e(11), W, PV0, rV0, e(12), e(13), e(14), L0, e(15), c(4), c(5), c(6), c(7), *end]
        for x in seq:
            if callable(x): x()
            else: A(x)
    def period(sides=None, dma=True):
        if dma: dma_chunk()
        for i in range(4):
            sa, sb, en = (sides or {}).get(i, ((), (), ()))
            tile(i, SA if i % 2 == 0 else SB, SB if i % 2 == 0 else SA, sa, sb, en)
        A(f"""
        v_mov_b32 v1, v2
        v_add_u32 v2, 16384, v2
        v_and_b32 v2, {RING-1}, v2
        """)
    A.label("K2_LOOP")
    A("s_cmp_ge_u32 s60, 10")
    A("s_cbranch_scc1 K2_NOLD")
    dma_chunk()
    A.label("K2_NOLD")
    period(dma=False)
    A(f"""
    s_add_u32 s60, s60, 1
    s_cmp_lg_u32 s60, s61
    s_waitcnt vmcnt(8)
    s_barrier
    s_cbranch_scc1 K2_LOOP
    """)
    A(f"""
    s_cmp_eq_u32 s60, 2
    s_cbranch_scc1 KD_2
    s_cmp_eq_u32 s60, 3
    s_cbranch_scc1 KD_3
    s_cmp_eq_u32 s60, 4
    s_cbranch_scc1 KD_4
    s_cmp_eq_u32 s60, 8
    s_cbranch_scc1 KD_8
    s_cmp_eq_u32 s60, 9
    s_cbranch_scc1 KD_9
    s_cmp_eq_u32 s60, 10
    s_cbranch_scc1 KD_10
    s_cmp_eq_u32 s60, 12
    s_cbranch_scc1 KD_12
    s_branch KD_13
    KD_2:
    s_mov_b32 s61, 3
    s_cmp_lg_u32 s66, 0
    s_cbranch_scc1 K2_LOOP
    s_mov_b32 s61, 10
    s_cmp_ge_u32 s40, 2
    s_cbranch_scc1 K2_LOOP
    s_waitcnt vmcnt(4)
    """)
    set_flag(A, "s68")
    A(f"""
    s_branch K2_LOOP
    KD_3:
    v_and_b32 v46, 15, v0
    v_lshlrev_b32 v46, 2, v46
    s_mov_b32 s61, 4
    """)
    poll_issue(A, 47, 46, 32, "s77")
    A("s_branch K2_LOOP")
    A.label("KD_4")
    vstamp(A, cfg, 7, PR)
    A("s_waitcnt vmcnt(2)")
    poll_check(A, 47, 46, 32, "s77", "PK")
    KVP = 192; ZP = 128
    A(f"""
    v_lshlrev_b32 v46, 2, v0         ; lane*4
    s_and_b32 s47, s40, 6
    s_cmp_eq_u32 s47, 4
    s_cselect_b32 s84, 1, 0
    """)
    def kvload(hd, rr):
        def f():
            A(f"buffer_load_dwordx4 v[{KVP+32*hd+4*rr}:{KVP+32*hd+4*rr+3}], v3, s[32:35], s75 offen sc1")
            A("s_add_u32 s75, s75, 8192")
        return f
    def zload(rr):
        def f():
            j = A.uid("KZ")
            A("s_cmp_eq_u32 s84, 0"); A(f"s_cbranch_scc1 {j}")
            A(f"buffer_load_dword v{ZP+rr}, v46, s[32:35], s76 offen offset:{256*rr} sc1")
            A.label(j)
        return f
    for hd in range(2):
        period({i: ((kvload(hd, 2*i),), (kvload(hd, 2*i+1), zload(4*hd+i)), ()) for i in range(4)})
        A("s_barrier")
    def kvsum():
        A("s_waitcnt vmcnt(2)")
        A(f"""
        s_lshr_b32 s47, s40, 1
        s_lshl_b32 s47, s47, 10
        s_and_b32 s38, s40, 1
        s_lshl_b32 s38, s38, 3
        s_add_u32 s47, s47, s38
        s_add_u32 s47, s47, {KVT_L}
        v_add_u32 v4, s47, v3
        """)
        for hd in range(2):
            b = KVP + 32*hd
            for rr in range(1, 8):
                A(f"v_pk_add_f32 v[{b}:{b+1}], v[{b}:{b+1}], v[{b+4*rr}:{b+4*rr+1}]")
                A(f"v_pk_add_f32 v[{b+2}:{b+3}], v[{b+2}:{b+3}], v[{b+4*rr+2}:{b+4*rr+3}]")
        for hd in range(2):
            b = KVP + 32*hd
            A(f"v_cvt_pk_bf16_f32 v{b}, v{b}, v{b+1}")
            A(f"v_cvt_pk_bf16_f32 v{b+1}, v{b+2}, v{b+3}")
            A(f"ds_write_b64 v4, v[{b}:{b+1}] offset:{hd*4096}")
        j = A.uid("KZS")
        A("s_cmp_eq_u32 s84, 0"); A(f"s_cbranch_scc1 {j}")
        for rr in range(1, 8):
            A(f"v_add_f32 v{ZP}, v{ZP}, v{ZP+rr}")
        A(f"""
        s_and_b32 s47, s40, 1
        s_lshl_b32 s47, s47, 7
        s_add_u32 s47, s47, {Z_L}
        v_lshlrev_b32 v5, 1, v0
        v_add_u32 v5, s47, v5
        v_cvt_pk_bf16_f32 v{ZP}, v{ZP}, v{ZP}
        ds_write_b16 v5, v{ZP}
        """)
        A.label(j)
    period({1: ((), (), (kvsum,))})
    A(f"""
    s_barrier
    s_mov_b32 s60, 7
    s_mov_b32 s61, 8
    s_cmp_ge_u32 s40, 4
    s_cbranch_scc1 K2_LOOP
    """)
    KVT, ZR, NUM, DEN, OA = 192, 208, 224, 240, 244
    A(f"""
    s_and_b32 s47, s40, 1
    s_lshl_b32 s38, s47, 12
    s_add_u32 s38, s38, {KVT_L}
    v_add_u32 v4, s38, v3
    s_lshl_b32 s47, s47, 7
    s_add_u32 s47, s47, {Z_L}
    v_lshrrev_b32 v5, 5, v0
    v_lshlrev_b32 v5, 3, v5
    v_add_u32 v5, s47, v5            ; Z + hh*8
    """)
    for s in range(4):
        A(f"ds_read_b128 v[{KVT+4*s}:{KVT+4*s+3}], v4 offset:{s*1024}")
        A(f"ds_read_b64 v[{ZR+4*s}:{ZR+4*s+1}], v5 offset:{32*s}")
        A(f"ds_read_b64 v[{ZR+4*s+2}:{ZR+4*s+3}], v5 offset:{32*s+16}")
    def zmask():
        A("v_bfe_u32 v4, v0, 2, 1")
        A("v_bfe_u32 v5, v0, 4, 1")
        A("v_cmp_eq_u32 vcc, v4, v5")
        A("v_mov_b32 v4, 0")
        A("s_nop 0")
        for k in range(16): A(f"v_cndmask_b32 v{ZR+k}, v4, v{ZR+k}, vcc")
    def amfma(t):
        def f():
            for s in range(4):
                c = "0" if s == 0 else f"v[{NUM}:{NUM+15}]"
                A(f"v_mfma_f32_32x32x16_bf16 v[{NUM}:{NUM+15}], v[{KVT+4*s}:{KVT+4*s+3}], v[{PHQ+16*t+4*s}:{PHQ+16*t+4*s+3}], {c}")
                c = "0" if s == 0 else f"v[{DEN}:{DEN+3}]"
                A(f"v_mfma_f32_16x16x32_bf16 v[{DEN}:{DEN+3}], v[{ZR+4*s}:{ZR+4*s+3}], v[{PHQ+16*t+4*s}:{PHQ+16*t+4*s+3}], {c}")
        return f
    def afin():
        A(f"v_add_f32 v4, {fhex(1e-6)}, v{DEN}")
        A("v_rcp_f32 v4, v4")
        A("s_nop 0")
        for k in range(8):
            A(f"v_pk_mul_f32 v[{NUM+2*k}:{NUM+2*k+1}], v[{NUM+2*k}:{NUM+2*k+1}], v[4:5] op_sel_hi:[1,0]")
        cvt_tile(A, OA, NUM)
        A(f"buffer_store_dwordx4 v[{OA}:{OA+3}], v3, s[32:35], s74 offen sc1")
        A(f"buffer_store_dwordx4 v[{OA+4}:{OA+7}], v3, s[32:35], s74 offen offset:1024 sc1")
        A("s_add_u32 s74, s74, 65536")
    period({0: ((), (), (zmask, amfma(0))), 1: ((), (), (afin, amfma(1))), 2: ((), (), (afin, amfma(2))), 3: ((), (), (afin, amfma(3)))})
    A.nop(12)
    afin()
    A(f"""
    s_mov_b32 s60, 8
    s_barrier
    KD_8:
    s_mov_b32 s61, 9
    s_branch K2_LOOP
    KD_9:
    s_mov_b32 s61, 10
    s_cmp_ge_u32 s40, 4
    s_cbranch_scc1 K2_LOOP
    s_waitcnt vmcnt(2)
    """)
    set_flag(A, "s68")
    A("s_branch K2_LOOP")
    A.label("KD_10")
    vstamp(A, cfg, 8, PR)
    A(f"""
    s_waitcnt vmcnt(2)
    s_and_b32 s47, s46, 15
    s_lshl_b32 s47, s47, 3
    s_add_u32 s47, s47, s40          ; 8*(i&15) + w
    s_lshl_b32 s47, s47, 14          ; *8 rows*2048
    s_and_b32 s38, s45, 1
    s_lshl_b32 s38, s38, 10
    s_add_u32 s47, s47, s38
    v_lshrrev_b32 v4, 3, v0
    v_lshlrev_b32 v5, 11, v4         ; r*2048
    v_and_b32 v7, 7, v0
    v_lshl_add_u32 v4, v7, 7, v5
    v_add_u32 v46, s47, v4
    buffer_load_dword v44, v46, s[24:27], 0 offen
    v_and_b32 v45, 31, v0
    v_lshlrev_b32 v45, 2, v45        ; (l&31)*4
    v_lshlrev_b32 v35, 2, v0         ; lane*4
    v_bfe_u32 v6, v0, 4, 1
    v_lshlrev_b32 v6, 2, v6
    v_xor_b32 v7, v7, v6
    v_lshl_add_u32 v5, v7, 4, v5
    s_lshl_b32 s47, s18, 9
    s_lshl_b32 s38, s19, 4
    s_add_u32 s47, s47, s38
    s_lshl_b32 s47, s47, 11
    s_lshl_b32 s38, s17, 7
    s_add_u32 s47, s47, s38          ; + C*128
    v_add_u32 v36, s47, v5           ; piece 0
    v_add_u32 v37, {16384 - 1024}, v36
    v_lshrrev_b32 v7, 5, v0          ; hh
    v_bfe_u32 v6, v0, 2, 2           ; i>>2
    v_lshl_add_u32 v7, v7, 2, v6
    v_lshlrev_b32 v7, 7, v7
    v_bfe_u32 v6, v0, 4, 1
    v_bfe_u32 v5, v0, 1, 1
    v_lshl_add_u32 v6, v6, 1, v5
    v_bfe_u32 v5, v0, 3, 1
    v_lshlrev_b32 v5, 2, v5
    v_xor_b32 v6, v6, v5
    v_lshl_add_u32 v7, v6, 4, v7
    v_and_b32 v5, 1, v0
    v_lshl_add_u32 v7, v5, 3, v7
    s_lshl_b32 s38, s18, 13
    v_add_u32 v38, s38, v7           ; cb=0
    v_xor_b32 v39, 64, v38           ; cb=1
    s_mov_b32 s61, 12
    s_branch K2_LOOP
    KD_12:
    s_mov_b32 s61, 13
    """)
    poll_issue(A, 47, 35, 32, "s36")
    A("s_branch K2_LOOP")
    A.label("KD_13")
    A("s_waitcnt vmcnt(0)")
    poll_check(A, 47, 35, 32, "s36", "PA")
    vstamp(A, cfg, 9, PR)
    G, OMG = 32, 34
    OF = 128
    WF = 192
    ACC3 = 64
    ACS = 224
    def oload(slot, j):
        r = OF + 16*slot + 4*j
        return f"buffer_load_dwordx4 v[{r}:{r+3}], v3, s[32:35], s28 offen offset:{j*1024} sc1"
    def wo0(slot):
        return [f"s_add_u32 m0, s30, {slot*K3_SLOT}", "s_nop 0", f"buffer_load_dwordx4 v36, s[20:23], s29 offen lds"]
    def wo1():
        return [f"buffer_load_dwordx4 v37, s[20:23], s29 offen offset:1024 lds", "s_add_u32 s28, s28, 4096", f"s_add_u32 s29, s29, {64*2048}"]
    def issue(slot):
        A(f"s_add_u32 m0, s30, {slot*K3_SLOT}")
        for j in range(4): A(oload(slot, j))
        A(f"buffer_load_dwordx4 v36, s[20:23], s29 offen lds")
        for l in wo1(): A(l)
    A(f"buffer_load_dword v{G}, v45, s[32:35], s31 offen sc1")
    for slot in range(3):
        period({0: ((oload(slot, 0),), (oload(slot, 1),), ()), 1: ((oload(slot, 2),), (oload(slot, 3),), ()),
                2: (tuple(wo0(slot)), (), ()), 3: (tuple(wo1()), (), ())}, dma=False)
        if slot < 2: A("s_barrier")
    A(f"""
    s_mov_b32 s60, 16
    s_waitcnt lgkmcnt(0)
    v_mfma_f32_32x32x16_bf16 v[{O}:{O+15}], v[{V1}:{V1+3}], v[{P+4}:{P+7}], v[{O}:{O+15}]
    v_mfma_f32_16x16x32_bf16 v[{L}:{L+3}], v[{SEL}:{SEL+3}], v[{P+4}:{P+7}], v[{L}:{L+3}]
    """)
    vstamp(A, cfg, 10, PR)
    A.nop(12)
    A.label("K2_FIN")
    A(f"v_rcp_f32 v4, v{L}")
    A("s_nop 0")
    for k in range(8):
        A(f"v_pk_mul_f32 v[{O+2*k}:{O+2*k+1}], v[{O+2*k}:{O+2*k+1}], v[4:5] op_sel_hi:[1,0]")
    A("v_mov_b32 v6, 0")
    for k in range(16):
        A(f"v_fma_f32 v6, v{O+k}, 0, v6")
    A(f"""
    v_mov_b32 v7, {fhex(2.0**120)}
    v_cmp_u_f32 vcc, v6, v6
    v_cmp_nlt_f32 s[62:63], v{L}, v7
    s_or_b64 vcc, vcc, s[62:63]
    """)
    if cfg.get("force_fb"):
        A("s_mov_b64 vcc, -1")
    A(f"""
    s_cmp_eq_u32 s60, 16
    s_cselect_b64 vcc, vcc, 0
    s_cbranch_vccnz K2_FB
    """)
    for i in range(8):
        A(f"v_cvt_pk_bf16_f32 v{P+i}, v{O+2*i}, v{O+2*i+1}")
    A(f"buffer_store_dwordx4 v[{P}:{P+3}], v3, s[32:35], s73 offen sc1")
    A(f"buffer_store_dwordx4 v[{P+4}:{P+7}], v3, s[32:35], s73 offen offset:1024 sc1")
    for i in range(32): A(f"v_mov_b32 v{ACC3+i}, 0")
    A(f"""
    s_waitcnt vmcnt(0)
    s_barrier
    s_cmp_lg_u32 s40, 0
    s_cbranch_scc1 K3_NOFL
    """)
    set_flag(A, "s69")
    A(f"""
    K3_NOFL:
    s_mov_b32 s60, 0
    """)
    vstamp(A, cfg, 11, PR)
    A.label("K3_LOOP")
    for u in range(4):
        A("s_waitcnt vmcnt(12)")
        if u == 1:
            j = A.uid("K3_NP")
            A(f"s_cmp_lg_u32 s60, 1"); A(f"s_cbranch_scc1 {j}")
            poll_check(A, 47, 45, 32, "s83", "PB")
            A.label(j)
        A("s_barrier")
        for j in range(4):
            for cb in range(2):
                for sec in range(2):
                    r = WF + 8*j + 4*cb + 2*sec
                    A(f"ds_read_b64_tr_b16 v[{r}:{r+1}], v{38+cb} offset:{u*K3_SLOT + (16*j+8*sec)*128}")
        if u == 1:
            A(f"""
            s_cmp_eq_u32 s60, 1
            s_cselect_b32 s20, s6, s20
            s_cselect_b32 s21, s7, s21
            s_cselect_b32 s29, 0, s29
            s_cselect_b32 s38, {4*MB - 32768}, 0
            s_add_u32 s28, s28, s38
            s_cmp_eq_u32 s60, 3
            s_cselect_b32 s22, 0, s22
            s_cselect_b32 s34, 0, s34
            """)
        if u == 3:
            j = A.uid("K3_NI")
            A(f"s_cmp_lg_u32 s60, 0"); A(f"s_cbranch_scc1 {j}")
            poll_issue(A, 47, 45, 32, "s83")
            A.label(j)
        issue((u + 3) % 4)
        for j in range(4):
            for cb in range(2):
                A(f"s_waitcnt lgkmcnt({14 - 4*j - 2*cb})")
                w = WF + 8*j + 4*cb; o = OF + 16*u + 4*j; a = ACC3 + 16*cb
                A(f"v_mfma_f32_32x32x16_bf16 v[{a}:{a+15}], v[{w}:{w+3}], v[{o}:{o+3}], v[{a}:{a+15}]")
    A(f"""
    s_add_u32 s60, s60, 1
    s_cmp_lg_u32 s60, 2
    s_cbranch_scc1 K3_NOSW
    """)
    vstamp(A, cfg, 12, PR)
    A.nop(14)
    for k in range(16):
        A(f"v_pk_mul_f32 v[{ACS+2*k}:{ACS+2*k+1}], v[{ACC3+2*k}:{ACC3+2*k+1}], v[{G}:{G+1}] op_sel_hi:[1,0]")
    for k in range(32): A(f"v_mov_b32 v{ACC3+k}, 0")
    A(f"""
    K3_NOSW:
    s_cmp_lt_u32 s60, 4
    s_cbranch_scc1 K3_LOOP
    """)
    vstamp(A, cfg, 13, PR)
    A(f"""
    v_sub_f32 v{OMG}, 1.0, v{G}
    v_and_b32 v4, 31, v0
    s_lshl_b32 s38, s19, 5
    v_add_u32 v4, s38, v4
    v_mul_u32_u24 v4, {K3_ROW}, v4
    v_lshrrev_b32 v5, 5, v0
    v_lshl_add_u32 v4, v5, 4, v4
    s_mul_i32 s38, s18, {K3_RED}
    v_add_u32 v4, s38, v4
    s_lshl_b32 s38, s40, 6
    v_add_u32 v10, s38, v0           ; tid
    v_lshrrev_b32 v5, 3, v10
    v_and_b32 v6, 7, v10             ; chunk
    v_mul_u32_u24 v7, {K3_ROW}, v5
    v_lshl_add_u32 v7, v6, 5, v7
    s_lshl_b32 s38, s16, 7
    v_add_u32 v5, s38, v5
    v_lshlrev_b32 v5, 11, v5
    v_lshl_add_u32 v5, v6, 4, v5
    s_lshl_b32 s38, s17, 7
    v_add_u32 v5, s38, v5
    s_waitcnt vmcnt(0)
    s_barrier
    """)
    srd(A, 24, 8, 4194304)
    A.nop(6)
    for k in range(16):
        A(f"v_pk_fma_f32 v[{ACC3+2*k}:{ACC3+2*k+1}], v[{ACC3+2*k}:{ACC3+2*k+1}], v[{OMG}:{OMG+1}], v[{ACS+2*k}:{ACS+2*k+1}] op_sel_hi:[1,0,1]")
    for cb in range(2):
        for q in range(4):
            r = ACC3 + 16*cb + 4*q
            A(f"ds_write_b128 v4, v[{r}:{r+3}] offset:{cb*128 + q*32}")
    A("s_waitcnt lgkmcnt(0)")
    A("s_barrier")
    R = 128
    for it in range(2):
        for g in range(2):
            for hf in range(2):
                r = R + 16*it + 8*g + 4*hf
                A(f"ds_read_b128 v[{r}:{r+3}], v7 offset:{it*64*K3_ROW + g*K3_RED + hf*16}")
    for it in range(2):
        A(f"s_waitcnt lgkmcnt({4 - 4*it})")
        r = R + 16*it
        for k in range(4):
            A(f"v_pk_add_f32 v[{r+2*k}:{r+2*k+1}], v[{r+2*k}:{r+2*k+1}], v[{r+8+2*k}:{r+8+2*k+1}]")
        for k in range(4):
            A(f"v_cvt_pk_bf16_f32 v{r+k}, v{r+2*k}, v{r+2*k+1}")
        A(f"buffer_store_dwordx4 v[{r}:{r+3}], v5, s[24:27], 0 offen {cfg.get('ost', '').replace('+', ' ')}")
        if it == 0: A(f"v_add_u32 v5, {64*2048}, v5")
    if cfg.get("prof"):
        A("s_waitcnt vmcnt(0)")
        vstamp(A, cfg, 14, PR)
        A(f"""
        s_mov_b32 s92, s14
        s_mov_b32 s93, s15
        s_mov_b32 s94, {64*MB}
        s_mov_b32 s95, 0x00020000
        s_lshl_b32 s90, s2, 3
        s_add_u32 s90, s90, s40
        s_lshl_b32 s90, s90, 7
        s_add_u32 s90, s90, {WS_PROFV}
        v_lshlrev_b32 v1, 2, v0
        s_mov_b64 exec, 0xffffffff
        buffer_store_dword v{PR}, v1, s[92:95], s90 offen
        """)
    A("s_endpgm")
    A.label("K2_FB")
    vstamp(A, cfg, 15, PR)
    A("s_mov_b32 s60, 17")
    A("s_mov_b32 s61, 0")
    for i in range(16): A(f"v_mov_b32 v{O+i}, 0")
    for i in range(4): A(f"v_mov_b32 v{L+i}, 0")
    A(f"v_mov_b32 v44, 0xff800000")
    A.label("K2_FBL")
    A(f"""
    buffer_load_dwordx4 v[{K0}:{K0+3}], v3, s[32:35], s70 offen sc1
    buffer_load_dwordx4 v[{K1}:{K1+3}], v3, s[32:35], s70 offen offset:1024 sc1
    buffer_load_dwordx4 v[{V0}:{V0+3}], v3, s[32:35], s70 offen offset:2048 sc1
    buffer_load_dwordx4 v[{V1}:{V1+3}], v3, s[32:35], s70 offen offset:3072 sc1
    s_add_u32 s70, s70, 4096
    s_waitcnt vmcnt(0)
    v_mfma_f32_32x32x16_bf16 v[{SA}:{SA+15}], v[{K0}:{K0+3}], v[{Q}:{Q+3}], 0
    v_mfma_f32_32x32x16_bf16 v[{SA}:{SA+15}], v[{K1}:{K1+3}], v[{Q+4}:{Q+7}], v[{SA}:{SA+15}]
    """)
    A.nop(12)
    A(f"v_max3_f32 v4, v{SA}, v{SA+1}, v{SA+2}")
    for k in range(3, 15, 2):
        A(f"v_max3_f32 v4, v4, v{SA+k}, v{SA+k+1}")
    A(f"v_max3_f32 v4, v4, v{SA+15}, v44")
    A("v_mov_b32 v5, v4")
    A.nop(2)
    A("v_permlane32_swap_b32 v4, v5")
    A("s_nop 0")
    A("v_max_f32 v4, v4, v5")
    A("v_sub_f32 v5, v44, v4")
    A("v_exp_f32 v5, v5")
    A("v_mov_b32 v44, v4")
    for k in range(16):
        A(f"v_sub_f32 v{SA+k}, v{SA+k}, v4")
    for k in range(16):
        A(f"v_exp_f32 v{SA+k}, v{SA+k}")
    for k in range(16):
        A(f"v_mul_f32 v{O+k}, v{O+k}, v5")
    for k in range(4):
        A(f"v_mul_f32 v{L+k}, v{L+k}, v5")
    for k in range(8):
        A(f"v_cvt_pk_bf16_f32 v{P+k}, v{SA+2*k}, v{SA+2*k+1}")
    A("s_nop 1")
    A(f"""
    v_mfma_f32_32x32x16_bf16 v[{O}:{O+15}], v[{V0}:{V0+3}], v[{P}:{P+3}], v[{O}:{O+15}]
    v_mfma_f32_16x16x32_bf16 v[{L}:{L+3}], v[{SEL}:{SEL+3}], v[{P}:{P+3}], v[{L}:{L+3}]
    v_mfma_f32_32x32x16_bf16 v[{O}:{O+15}], v[{V1}:{V1+3}], v[{P+4}:{P+7}], v[{O}:{O+15}]
    v_mfma_f32_16x16x32_bf16 v[{L}:{L+3}], v[{SEL}:{SEL+3}], v[{P+4}:{P+7}], v[{L}:{L+3}]
    s_add_u32 s61, s61, 1
    s_cmp_lt_u32 s61, 64
    """)
    A.nop(12)
    A("s_cbranch_scc1 K2_FBL")
    A("s_branch K2_FIN")
    A.label("KF_END")
    A("s_endpgm")
    return K, KF_LDS
```

```python
from common import *

KNAME = NAME + "_kernel"
K1_SLOT = 28672
K1_NSLOT = 5
K1_WPHI = K1_SLOT * K1_NSLOT
K1_TBUF = 4352
TBUF0 = 98304
RED0 = 116736
RING = 131072
KVT_L = 131072
Z_L = 139264
QST = 147456
KF_LDS = 163840
WS_F1 = WS_FLAG
WS_FK = WS_FLAG + 4096
WS_FA = WS_FLAG + 8192
WS_FB = WS_FLAG + 12288
BIAS = 80.0
K3_SLOT = 16384
K3_ROW = 272
K3_RED = 128 * K3_ROW
SPIN_MAX = 1 << 16
WS_PROFV = WS_PROF

def cvt_tile(A, dst, src):
    for i in range(8):
        A(f"v_cvt_pk_bf16_f32 v{dst+i}, v{src+2*i}, v{src+2*i+1}")

def vstamp(A, cfg, i, reg):
    if cfg.get("prof"):
        A("s_memtime s[96:97]")
        A("s_memrealtime s[98:99]")
        A("s_waitcnt lgkmcnt(0)")
        A(f"v_writelane_b32 v{reg}, s96, {2*i}")
        A(f"v_writelane_b32 v{reg}, s98, {2*i+1}")

def poll_issue(A, vdst, vaddr, srd, soff):
    A(f"buffer_load_dword v{vdst}, v{vaddr}, s[{srd}:{srd+3}], {soff} offen sc1")

def poll_check(A, vdst, vaddr, srd, soff, tag, expect=1):
    ok = A.uid(tag + "_OK"); sp = A.uid(tag + "_SP")
    A(f"""
    v_cmp_eq_u32 vcc, {expect}, v{vdst}
    s_cmp_eq_u64 vcc, -1
    s_cbranch_scc1 {ok}
    s_mov_b32 s82, 0
    {sp}:
    s_sleep 2
    buffer_load_dword v{vdst}, v{vaddr}, s[{srd}:{srd+3}], {soff} offen sc1
    s_add_u32 s82, s82, 1
    s_waitcnt vmcnt(0)
    v_cmp_eq_u32 vcc, {expect}, v{vdst}
    s_cmp_eq_u64 vcc, -1
    s_cbranch_scc1 {ok}
    s_cmp_lt_u32 s82, {SPIN_MAX}
    s_cbranch_scc1 {sp}
    {ok}:
    """)

def set_flag(A, soff):
    A(f"""
    s_mov_b64 exec, 1
    v_mov_b32 v4, 1
    v_mov_b32 v5, 0
    buffer_store_dword v4, v5, s[32:35], {soff} offen sc1
    s_mov_b64 exec, -1
    """)

def setup_p2(A):
    A(f"""
    s_lshl_b32 s80, s45, 2
    s_lshr_b32 s47, s46, 3
    s_add_u32 s80, s80, s47          ; h2
    s_and_b32 s81, s46, 7            ; qb
    s_lshl_b32 s70, s80, 18
    s_add_u32 s70, s70, {WS_KVB}
    s_lshl_b32 s47, s40, 11
    s_add_u32 s72, s47, {6*16384}
    s_add_u32 s71, s70, s72
    s_lshl_b32 s47, s81, 3
    s_add_u32 s47, s47, s40
    s_lshl_b32 s47, s47, 5
    s_add_u32 s47, s47, s80
    s_lshl_b32 s73, s47, 11
    s_add_u32 s73, s73, {WS_OB}
    s_lshl_b32 s47, s64, 3
    s_lshr_b32 s38, s40, 1
    s_lshl_b32 s38, s38, 2
    s_add_u32 s47, s47, s38          ; r*8 + th*4
    s_lshl_b32 s47, s47, 5
    s_lshl_b32 s38, s65, 1
    s_add_u32 s47, s47, s38
    s_and_b32 s38, s40, 1
    s_add_u32 s47, s47, s38          ; *32 + 2p + hsel
    s_lshl_b32 s74, s47, 11
    s_add_u32 s74, s74, {WS_OA}
    s_lshl_b32 s75, s65, 17
    s_lshl_b32 s47, s40, 10
    s_add_u32 s75, s75, s47
    s_add_u32 s75, s75, {WS_KVP}
    s_lshl_b32 s47, s65, 1
    s_add_u32 s47, s47, s38
    s_lshl_b32 s76, s47, 11
    s_add_u32 s76, s76, {WS_ZP}
    s_lshl_b32 s77, s65, 7
    s_add_u32 s77, s77, {WS_FK}
    s_lshr_b32 s47, s80, 1
    s_lshl_b32 s78, s47, 8
    s_add_u32 s78, s78, {WS_F1}
    s_lshl_b32 s47, s80, 6
    s_lshl_b32 s38, s81, 3
    s_add_u32 s47, s47, s38
    s_and_b32 s38, s40, 3
    s_lshl_b32 s38, s38, 1
    s_add_u32 s47, s47, s38          ; h2*64 + qb*8 + 2w
    s_lshl_b32 s79, s47, 11
    s_add_u32 s79, s79, {WS_QB}
    s_lshl_b32 s47, s64, 1
    s_add_u32 s47, s47, s66          ; r*2 + type
    s_lshl_b32 s47, s47, 4
    s_lshl_b32 s67, s65, 8
    s_add_u32 s67, s67, s47
    s_and_b32 s38, s40, 3
    s_lshl_b32 s38, s38, 2
    s_add_u32 s67, s67, s38
    s_add_u32 s67, s67, {WS_F1}
    s_lshl_b32 s47, s64, 8
    s_lshl_b32 s68, s65, 4
    s_add_u32 s68, s68, s47
    s_add_u32 s68, s68, s38
    s_add_u32 s68, s68, {WS_FA}
    s_lshl_b32 s47, s64, 3
    s_add_u32 s47, s47, s77
    s_and_b32 s38, s40, 1
    s_lshl_b32 s38, s38, 2
    s_add_u32 s47, s47, s38
    s_cmp_eq_u32 s66, 0
    s_cselect_b32 s68, s47, s68
    s_lshl_b32 s47, s81, 5
    s_add_u32 s47, s47, s80
    s_lshl_b32 s69, s47, 2
    s_add_u32 s69, s69, {WS_FB}
    """)

def setup_p3(A):
    A(f"""
    s_load_dwordx2 s[4:5], s[0:1], 24
    s_load_dwordx2 s[6:7], s[0:1], 48
    s_load_dwordx2 s[8:9], s[0:1], 64
    s_lshr_b32 s16, s45, 1
    s_lshl_b32 s16, s16, 2
    s_lshr_b32 s47, s46, 3
    s_add_u32 s16, s16, s47          ; T = 4*(e>>1) + (i>>3)
    s_and_b32 s17, s45, 1
    s_lshl_b32 s17, s17, 3
    s_and_b32 s47, s46, 7
    s_add_u32 s17, s17, s47          ; C = 8*(e&1) + (i&7)
    s_lshr_b32 s18, s40, 2           ; grp
    s_and_b32 s19, s40, 3            ; tq
    s_lshl_b32 s47, s16, 2
    s_add_u32 s47, s47, s19          ; tb3
    s_lshl_b32 s28, s47, 16
    s_lshl_b32 s38, s18, 15
    s_add_u32 s28, s28, s38
    s_add_u32 s28, s28, {WS_OA}
    s_lshl_b32 s31, s47, 7
    s_add_u32 s31, s31, {WS_G}       ; g offset
    s_lshr_b32 s47, s16, 1
    s_lshl_b32 s36, s47, 8
    s_add_u32 s36, s36, {WS_FA}
    s_lshl_b32 s83, s47, 7
    s_add_u32 s83, s83, {WS_FB}
    s_lshl_b32 s30, s18, 13
    s_lshl_b32 s38, s19, 11
    s_add_u32 s30, s30, s38
    s_mov_b32 s29, 0
    s_waitcnt lgkmcnt(0)
    s_cmp_lt_u32 s46, 16
    s_cselect_b32 s24, s4, s6
    s_cselect_b32 s25, s5, s7
    s_mov_b32 s26, {1024*2048}
    s_mov_b32 s27, 0x00020000
    s_mov_b32 s20, s4
    s_mov_b32 s21, s5
    s_mov_b32 s22, {1024*2048}
    s_mov_b32 s23, 0x00020000
    """)

def gen_kf(A, cfg):
    K = KNAME
    F1POS = int(cfg.get("f1pos", 2))
    ROT = int(cfg.get("rot", 12))
    PV = 255
    kernel_begin(A, K)
    A(f"""
    s_cmp_ge_u32 s2, 256
    s_cbranch_scc1 KF_END
    s_load_dwordx2 s[4:5], s[0:1], 0
    s_load_dwordx2 s[6:7], s[0:1], 8
    s_load_dwordx2 s[8:9], s[0:1], 40
    s_load_dwordx2 s[10:11], s[0:1], 16
    s_load_dwordx2 s[12:13], s[0:1], 56
    s_load_dwordx2 s[14:15], s[0:1], 80
    s_load_dwordx2 s[86:87], s[0:1], 72
    v_lshrrev_b32 v1, 6, v0
    v_and_b32 v0, 63, v0
    v_readfirstlane_b32 s40, v1
    s_and_b32 s45, s2, 7
    s_lshr_b32 s46, s2, 3
    """)
    if cfg.get("prof"): A(f"v_mov_b32 v{PV}, 0")
    vstamp(A, cfg, 0, PV)
    A("""
    s_and_b32 s41, s45, 1
    s_lshl_b32 s41, s41, 2
    s_lshr_b32 s47, s46, 3
    s_add_u32 s41, s41, s47          ; r = 4*(e&1) + (i>>3)
    s_lshr_b32 s42, s45, 1
    s_lshl_b32 s42, s42, 3
    s_and_b32 s47, s46, 7
    s_add_u32 s42, s42, s47          ; c = 8*(e>>1) + (i&7)
    s_lshr_b32 s43, s42, 1           ; p
    s_and_b32 s44, s42, 1            ; type
    s_mov_b32 s64, s41
    s_mov_b32 s65, s43
    s_mov_b32 s66, s44
    s_waitcnt lgkmcnt(0)
    """)
    srd(A, 32, 14, WS_USED)
    A("""
    s_cmp_ge_u32 s40, 4
    s_cbranch_scc1 K1_LOADER
    """)
    L2D = int(cfg.get("l2d", 6))
    PFA, PFD = 252, 253
    def l2pf():
        A("s_and_b32 s55, s59, 31")
        A(f"s_mul_i32 s55, s55, {32*6144}")
        A(f"buffer_load_dword v{PFD}, v{PFA}, s[92:95], s55 offen")
        A("s_add_u32 s59, s59, 1")
    if L2D:
        A(f"""
        s_lshl_b32 s47, s44, 2
        s_and_b32 s38, s41, 3
        s_add_u32 s47, s47, s38
        s_mov_b32 s38, s43
        
        s_lshl_b32 s47, s47, 2
        s_lshl_b32 s38, s38, 7
        v_and_b32 v4, 3, v0
        v_add_u32 v4, s47, v4
        v_mul_u32_u24 v4, 6144, v4
        v_lshrrev_b32 v5, 2, v0
        v_lshl_add_u32 v4, v5, 11, v4    ; + segment * 2048
        v_add_u32 v4, s38, v4
        v_mov_b32 v5, 0x7ffffff0
        v_cmp_gt_u32 vcc, 12, v0
        s_cmp_eq_u32 s40, 2
        s_cselect_b32 s92, s6, s8
        s_cselect_b32 s93, s7, s9
        s_cmp_ge_u32 s40, 2
        s_cselect_b32 s62, {1024*6144}, 0
        s_mov_b32 s94, s62
        s_mov_b32 s95, 0x00020000
        v_cndmask_b32 v{PFA}, v5, v4, vcc
        s_mul_i32 s59, s45, {ROT}
        s_add_u32 s59, s59, 4
        """)
        for t in range(L2D): l2pf()
    setup_p2(A)
    A(f"""
    s_cmp_lg_u32 s40, 0
    s_cbranch_scc1 K1_NOZ
    s_cmp_eq_u32 s66, 0
    s_cselect_b32 s47, 1, 3
    v_and_b32 v4, s47, v0
    v_lshlrev_b32 v4, 2, v4
    v_add_u32 v4, s68, v4
    v_lshlrev_b32 v5, 2, v0
    v_add_u32 v5, s67, v5
    v_cmp_gt_u32 vcc, 4, v0
    v_mov_b32 v6, s69
    s_nop 0
    v_cndmask_b32 v4, v4, v5, vcc
    v_cmp_eq_u32 vcc, 8, v0
    v_mov_b32 v5, 0
    s_nop 0
    v_cndmask_b32 v4, v4, v6, vcc
    s_mov_b64 exec, 0x1ff
    buffer_store_dword v5, v4, s[32:35], 0 offen sc1
    s_mov_b32 s36, s86
    s_mov_b32 s37, s87
    s_mov_b32 s38, 256
    s_mov_b32 s39, 0x00020000
    s_waitcnt vmcnt(0)
    s_mov_b64 exec, 1
    v_mov_b32 v6, 1
    buffer_atomic_add v6, v5, s[36:39], 0 offen
    s_mov_b64 exec, -1
    K1_NOZ:
    """)
    setup_p3(A)
    XA, WA = 4, 20
    XB, WB = 32, 48
    ACC = 60
    acc = lambda sg, tt: ACC + (sg * 4 + tt) * 16
    A(f"""
    s_lshr_b32 s50, s40, 1           ; th
    s_and_b32 s51, s40, 1            ; hsel
    v_and_b32 v4, 31, v0
    v_lshrrev_b32 v5, 5, v0          ; hh
    v_bfe_u32 v6, v0, 2, 2           ; f = (l>>2)&3
    v_xor_b32 v7, v5, v6
    v_lshlrev_b32 v7, 4, v7
    v_lshl_add_u32 v1, v4, 6, v7
    s_lshl_b32 s47, s50, 13
    v_add_u32 v1, s47, v1            ; vxa0
    v_xor_b32 v2, 32, v1             ; vxa1
    v_lshl_add_u32 v7, v5, 3, v6
    v_lshlrev_b32 v7, 7, v7          ; *128
    v_bfe_u32 v8, v0, 4, 1           ; g&1
    v_bfe_u32 v9, v0, 1, 1
    v_lshl_add_u32 v8, v8, 1, v9     ; (g&1)*2 + ((i&3)>>1)
    s_lshl_b32 s47, s51, 2
    v_add_u32 v8, s47, v8            ; + hsel*4
    v_bfe_u32 v9, v0, 3, 1
    v_lshlrev_b32 v9, 2, v9
    v_xor_b32 v8, v8, v9             ; chunk'
    v_lshl_add_u32 v7, v8, 4, v7
    v_and_b32 v9, 1, v0
    v_lshl_add_u32 v7, v9, 3, v7
    v_add_u32 v3, 16384, v7          ; vwa
    s_mov_b32 s48, 0
    s_mov_b32 s52, {K1_SLOT}
    s_mov_b32 s53, {-(K1_NSLOT-1)*K1_SLOT & 0xffffffff}
    s_mov_b32 s54, 32
    """)
    for i in range(192):
        A(f"v_mov_b32 v{ACC+i}, 0")
    A("s_barrier")
    vstamp(A, cfg, 1, PV)
    def reads(X, W, s):
        r = []
        xa = 1 if s == 0 else 2
        for tt in range(4):
            r.append(f"ds_read_b128 v[{X+4*tt}:{X+4*tt+3}], v{xa} offset:{tt*2048}")
        for sg in range(3):
            for sec in range(2):
                r.append(f"ds_read_b64_tr_b16 v[{W+4*sg+2*sec}:{W+4*sg+2*sec+1}], v3 offset:{sg*4096 + s*2048 + sec*512}")
        return [r[4], r[5], r[0], r[1], r[2], r[3], r[6], r[7], r[8], r[9]]
    def mfmas(X, W):
        m = []
        for sg in range(3):
            for tt in range(4):
                a = acc(sg, tt)
                w = f"v[{W+4*sg}:{W+4*sg+3}]"; x = f"v[{X+4*tt}:{X+4*tt+3}]"
                if sg < 2: m.append(f"v_mfma_f32_32x32x16_bf16 v[{a}:{a+15}], {w}, {x}, v[{a}:{a+15}]")
                else:      m.append(f"v_mfma_f32_32x32x16_bf16 v[{a}:{a+15}], {x}, {w}, v[{a}:{a+15}]")
        return m
    for l in reads(XA, WA, 0): A(l)
    A.label("K1_CLOOP")
    A("s_waitcnt lgkmcnt(0)")
    m = mfmas(XA, WA); r = reads(XB, WB, 1)
    extra0 = {6: ["s_add_u32 s48, s48, 1", f"s_cmp_eq_u32 s48, {K1_NSLOT}", "s_cselect_b32 s49, s53, s52", "s_cselect_b32 s48, 0, s48"],
              7: ["v_add_u32 v1, s49, v1"], 8: ["v_add_u32 v2, s49, v2"], 9: ["v_add_u32 v3, s49, v3"]}
    for k in range(12):
        A(m[k])
        if k < 5:
            A(r[2*k]); A(r[2*k+1])
        for l in extra0.get(k, []): A(l)
        if L2D and k == 10:
            A(f"s_cmp_gt_u32 s54, {4 + L2D}")
            A("s_cselect_b32 s94, s62, 0")
            l2pf()
    A("s_waitcnt lgkmcnt(0)")
    m = mfmas(XB, WB); r = reads(XA, WA, 0)
    for k in range(12):
        A(m[k])
        if k < 5:
            A(r[2*k]); A(r[2*k+1])
        if k == 8:
            A("s_sub_u32 s54, s54, 1"); A("s_cmp_lg_u32 s54, 0")
    A("s_barrier")
    A("s_cbranch_scc1 K1_CLOOP")
    A("s_waitcnt lgkmcnt(0)")
    vstamp(A, cfg, 2, PV)
    A(f"""
    v_lshlrev_b32 v1, 4, v0          ; lane*16
    s_lshl_b32 s52, s43, 1
    s_add_u32 s52, s52, s51          ; h
    s_lshl_b32 s53, s41, 3
    s_lshl_b32 s47, s50, 2
    s_add_u32 s53, s53, s47
    s_lshl_b32 s54, s52, 6
    s_add_u32 s54, s54, s53          ; h*64 + tb0
    s_cmp_lg_u32 s44, 0
    s_cbranch_scc1 K1_E1T1
    s_mov_b32 s56, {fhex(32**-0.5 * LOG2E)}
    s_mov_b32 s57, s56
    s_lshl_b32 s58, s54, 11
    s_add_u32 s58, s58, {WS_QB}
    """)
    A.nop(6)
    T1 = 4
    V = acc(1, 0)
    Q = acc(1, 0) + 32
    for tt in range(4):
        for k in range(8):
            a = acc(1, tt) + 2*k
            A(f"v_pk_mul_f32 v[{a}:{a+1}], v[{a}:{a+1}], s[56:57]")
        cvt_tile(A, T1 + 8*tt, acc(1, tt))
        A(f"buffer_store_dwordx4 v[{T1+8*tt}:{T1+8*tt+3}], v1, s[32:35], s58 offen sc1")
        A(f"buffer_store_dwordx4 v[{T1+8*tt+4}:{T1+8*tt+7}], v1, s[32:35], s58 offen offset:1024 sc1")
        A("s_add_u32 s58, s58, 2048")
    for tt in range(4):
        cvt_tile(A, V + 8*tt, acc(2, tt))
    A("s_branch K1_E2J")
    A.label("K1_E1T1")
    A(f"""
    s_lshl_b32 s58, s54, 12
    s_add_u32 s58, s58, {WS_KVB}
    """)
    A.nop(10)
    for tt in range(4):
        cvt_tile(A, T1 + 8*tt, acc(1, tt))
        A(f"buffer_store_dwordx4 v[{T1+8*tt}:{T1+8*tt+3}], v1, s[32:35], s58 offen sc1")
        A(f"buffer_store_dwordx4 v[{T1+8*tt+4}:{T1+8*tt+7}], v1, s[32:35], s58 offen offset:1024 sc1")
        A("s_add_u32 s58, s58, 4096")
    A(f"s_sub_u32 s58, s58, {4*4096 - 2048}")
    for tt in range(4):
        cvt_tile(A, V + 8*tt, acc(2, tt))
        A(f"buffer_store_dwordx4 v[{V+8*tt}:{V+8*tt+3}], v1, s[32:35], s58 offen sc1")
        A(f"buffer_store_dwordx4 v[{V+8*tt+4}:{V+8*tt+7}], v1, s[32:35], s58 offen offset:1024 sc1")
        A("s_add_u32 s58, s58, 4096")
    A.label("K1_E2J")
    WP = 36
    A(f"""
    v_lshrrev_b32 v5, 5, v0          ; hh
    v_bfe_u32 v6, v0, 2, 2           ; i>>2
    v_lshl_add_u32 v6, v5, 2, v6     ; 4hh + (i>>2)
    v_bfe_u32 v7, v0, 4, 1
    v_lshlrev_b32 v7, 5, v7
    v_and_b32 v8, 3, v0
    v_lshl_add_u32 v7, v8, 3, v7     ; (g&1)*32 + (i&3)*8
    v_lshl_add_u32 v2, v6, 6, v7
    s_lshl_b32 s47, s51, 11
    s_add_u32 s47, s47, {K1_WPHI}
    v_add_u32 v2, s47, v2
    """)
    for s in range(2):
        for sec in range(2):
            A(f"ds_read_b64_tr_b16 v[{WP+4*s+2*sec}:{WP+4*s+2*sec+1}], v2 offset:{(16*s+8*sec)*64}")
    A(f"""
    s_mul_i32 s47, s40, {K1_TBUF}
    s_add_u32 s47, s47, {TBUF0}
    v_mul_u32_u24 v25, 136, v6
    v_add_u32 v25, v25, v7
    v_add_u32 v25, s47, v25
    v_and_b32 v8, 31, v0
    v_mul_u32_u24 v24, 136, v8
    v_lshl_add_u32 v24, v5, 3, v24
    v_add_u32 v24, s47, v24
    v_bfe_u32 v8, v0, 2, 1
    v_bfe_u32 v9, v0, 4, 1
    v_cmp_eq_u32 vcc, v8, v9
    v_mov_b32 v9, 0x3f803f80
    v_mov_b32 v8, 0
    v_cndmask_b32 v20, v8, v9, vcc
    v_cndmask_b32 v21, v8, v9, vcc
    v_cndmask_b32 v22, v8, v9, vcc
    v_cndmask_b32 v23, v8, v9, vcc
    """)
    for tt in range(4):
        cvt_tile(A, Q + 8*tt, acc(0, tt))
    A("s_waitcnt lgkmcnt(0)")
    for tt in range(4):
        a = acc(0, tt)
        A(f"v_mfma_f32_32x32x16_bf16 v[{a}:{a+15}], v[{WP}:{WP+3}], v[{Q+8*tt}:{Q+8*tt+3}], 0")
    for tt in range(4):
        a = acc(0, tt)
        A(f"v_mfma_f32_32x32x16_bf16 v[{a}:{a+15}], v[{WP+4}:{WP+7}], v[{Q+8*tt+4}:{Q+8*tt+7}], v[{a}:{a+15}]")
    A(f"""
    s_mov_b32 s56, {fhex(LOG2E)}
    s_mov_b32 s57, s56
    """)
    A.nop(10)
    EP = acc(2, 0)
    PH = EP + 16
    AF = PH + 16
    KV0 = AF + 16
    KV1 = 44
    Z0, Z1, SEL1 = 12, 16, 20
    PHQ = 128
    def kv_mfmas(tt):
        out = []
        for s in range(2):
            for fb in range(2):
                kv = KV0 if fb == 0 else KV1
                z = Z0 if fb == 0 else Z1
                af = AF + (fb*2+s)*4
                c = "0" if (tt == 0 and s == 0) else f"v[{kv}:{kv+15}]"
                cz = "0" if (tt == 0 and s == 0) else f"v[{z}:{z+3}]"
                out.append(f"v_mfma_f32_32x32x16_bf16 v[{kv}:{kv+15}], v[{af}:{af+3}], v[{V+8*tt+4*s}:{V+8*tt+4*s+3}], {c}")
                out.append(f"v_mfma_f32_16x16x32_bf16 v[{z}:{z+3}], v[{SEL1}:{SEL1+3}], v[{af}:{af+3}], {cz}")
        return out
    for tt in range(4):
        P = acc(0, tt)
        A(f"v_max3_f32 v4, v{P}, v{P+1}, v{P+2}")
        A(f"v_max3_f32 v5, -v{P}, -v{P+1}, -v{P+2}")
        for k in range(3, 15, 2):
            A(f"v_max3_f32 v4, v4, v{P+k}, v{P+k+1}")
            A(f"v_max3_f32 v5, v5, -v{P+k}, -v{P+k+1}")
        A(f"v_max_f32 v4, v4, v{P+15}")
        A(f"v_max_f32 v5, v5, -v{P+15}")
        A.nop(2)
        A("v_permlane32_swap_b32 v4, v5")
        A("s_nop 0")
        A("v_max_f32 v4, v4, v5")
        A("v_mov_b32 v5, v4")
        A.nop(2)
        A("v_permlane32_swap_b32 v4, v5")
        A("s_nop 0")
        A(f"v_mul_f32 v6, {fhex(-LOG2E)}, v4")
        A(f"v_mul_f32 v8, {fhex(-LOG2E)}, v5")
        for k in range(8):
            A(f"v_pk_fma_f32 v[{EP+2*k}:{EP+2*k+1}], v[{P+2*k}:{P+2*k+1}], s[56:57], v[6:7] op_sel_hi:[1,1,0]")
            A(f"v_pk_fma_f32 v[{P+2*k}:{P+2*k+1}], v[{P+2*k}:{P+2*k+1}], s[56:57], v[8:9] op_sel_hi:[1,1,0] neg_lo:[0,1,0] neg_hi:[0,1,0]")
        for k in range(16):
            A(f"v_exp_f32 v{EP+k}, v{EP+k}")
            A(f"v_exp_f32 v{P+k}, v{P+k}")
        if tt > 0:
            j = A.uid("K1_KVS")
            A("s_cmp_lg_u32 s44, 0"); A(f"s_cbranch_scc1 {j}")
            A("s_waitcnt lgkmcnt(0)")
            for l in kv_mfmas(tt-1): A(l)
            A.label(j)
        A(f"v_pk_add_f32 v[4:5], v[{EP}:{EP+1}], v[{EP+2}:{EP+3}]")
        A(f"v_pk_add_f32 v[6:7], v[{P}:{P+1}], v[{P+2}:{P+3}]")
        for k in range(2, 8):
            A(f"v_pk_add_f32 v[4:5], v[4:5], v[{EP+2*k}:{EP+2*k+1}]")
            A(f"v_pk_add_f32 v[6:7], v[6:7], v[{P+2*k}:{P+2*k+1}]")
        A("v_add_f32 v4, v4, v5")
        A("v_add_f32 v6, v6, v7")
        A.nop(2)
        A("v_permlane32_swap_b32 v4, v6")
        A("s_nop 0")
        A("v_add_f32 v4, v4, v6")
        A("v_rcp_f32 v4, v4")
        A("s_nop 0")
        A("v_mov_b32 v6, v4")
        A.nop(2)
        A("v_permlane32_swap_b32 v4, v6")
        A("s_nop 0")
        for k in range(8):
            A(f"v_pk_mul_f32 v[{EP+2*k}:{EP+2*k+1}], v[{EP+2*k}:{EP+2*k+1}], v[4:5] op_sel_hi:[1,0]")
            A(f"v_pk_mul_f32 v[{P+2*k}:{P+2*k+1}], v[{P+2*k}:{P+2*k+1}], v[6:7] op_sel_hi:[1,0]")
        j1 = A.uid("K1_T0"); j2 = A.uid("K1_TJ")
        A("s_cmp_eq_u32 s44, 0"); A(f"s_cbranch_scc1 {j1}")
        cvt_tile(A, PHQ + 16*tt, EP)
        cvt_tile(A, PHQ + 16*tt + 8, P)
        A(f"s_branch {j2}")
        A.label(j1)
        cvt_tile(A, PH, EP)
        cvt_tile(A, PH + 8, P)
        for sign in range(2):
            for b in range(4):
                A(f"ds_write_b64 v24, v[{PH+8*sign+2*b}:{PH+8*sign+2*b+1}] offset:{sign*64+b*16}")
        for fb in range(2):
            for s in range(2):
                for sec in range(2):
                    af = AF + (fb*2+s)*4 + 2*sec
                    A(f"ds_read_b64_tr_b16 v[{af}:{af+1}], v25 offset:{(16*s+8*sec)*136 + fb*64}")
        A.label(j2)
        if tt == F1POS:
            A("s_waitcnt vmcnt(0)")
            set_flag(A, "s67")
            vstamp(A, cfg, 3, PV)
    A("s_cmp_lg_u32 s44, 0")
    A("s_cbranch_scc1 KF_JOIN")
    A("s_waitcnt lgkmcnt(0)")
    for l in kv_mfmas(3): A(l)
    A.nop(12)
    A(f"""
    v_mov_b32 v{Z0+1}, v{Z1}
    s_mul_i32 s47, s51, 9216
    s_add_u32 s47, s47, {RED0}
    v_add_u32 v2, s47, v1
    v_lshlrev_b32 v3, 3, v0
    v_add_u32 v3, s47, v3
    s_cmp_eq_u32 s50, 0
    s_cbranch_scc1 K1_RED0
    """)
    for fb in range(2):
        kv = KV0 if fb == 0 else KV1
        for q in range(4):
            A(f"ds_write_b128 v2, v[{kv+4*q}:{kv+4*q+3}] offset:{fb*4096+q*1024}")
    A(f"ds_write_b64 v3, v[{Z0}:{Z0+1}] offset:8192")
    A("""
    s_waitcnt lgkmcnt(0)
    s_barrier
    s_branch KF_JOIN
    K1_RED0:
    s_barrier
    """)
    R = 60
    for k in range(8):
        A(f"ds_read_b128 v[{R+4*k}:{R+4*k+3}], v2 offset:{k*1024}")
    A(f"ds_read_b64 v[{R+32}:{R+33}], v3 offset:8192")
    A(f"""
    s_lshl_b32 s47, s52, 3
    s_add_u32 s47, s47, s41          ; h*8 + r
    s_lshl_b32 s58, s47, 13
    s_add_u32 s58, s58, {WS_KVP}
    s_add_u32 s59, s58, 4096
    s_lshl_b32 s60, s47, 8
    s_add_u32 s60, s60, {WS_ZP}
    v_and_b32 v3, 31, v0
    v_lshlrev_b32 v3, 2, v3
    s_waitcnt lgkmcnt(0)
    """)
    for fb in range(2):
        kv = KV0 if fb == 0 else KV1
        for k in range(8):
            A(f"v_pk_add_f32 v[{kv+2*k}:{kv+2*k+1}], v[{kv+2*k}:{kv+2*k+1}], v[{R+16*fb+2*k}:{R+16*fb+2*k+1}]")
    A(f"v_pk_add_f32 v[{Z0}:{Z0+1}], v[{Z0}:{Z0+1}], v[{R+32}:{R+33}]")
    for fb in range(2):
        kv = KV0 if fb == 0 else KV1
        for q in range(4):
            A(f"buffer_store_dwordx4 v[{kv+4*q}:{kv+4*q+3}], v1, s[32:35], s{58+fb} offen offset:{q*1024} sc1")
    A(f"buffer_store_dword v{Z0}, v3, s[32:35], s60 offen sc1")
    A(f"buffer_store_dword v{Z0+1}, v3, s[32:35], s60 offen offset:128 sc1")
    A("s_branch KF_JOIN")
    A.label("K1_LOADER")
    srd(A, 16, 4, 2048*2048)
    srd(A, 20, 6, 1024*6144)
    srd(A, 24, 8, 1024*6144)
    A("""
    s_cmp_eq_u32 s44, 0
    s_cselect_b32 s28, s6, s8
    s_cselect_b32 s29, s7, s9
    """)
    A(f"s_mov_b32 s30, {1024*6144}")
    A("s_mov_b32 s31, 0x00020000")
    srd(A, 36, 10, 32*2048)
    A(f"""
    s_sub_u32 s50, s40, 4            ; w
    v_lshrrev_b32 v1, 2, v0
    v_lshrrev_b32 v2, 4, v0
    v_and_b32 v3, 3, v0
    v_xor_b32 v3, v3, v2
    v_lshlrev_b32 v3, 4, v3
    v_lshl_add_u32 v4, v1, 11, v3
    s_lshl_b32 s47, s41, 8
    s_lshl_b32 s51, s50, 6
    s_add_u32 s47, s47, s51
    s_lshl_b32 s47, s47, 11          ; (r*256 + 64w)*2048
    v_add_u32 v4, s47, v4
    v_add_u32 v5, 32768, v4
    v_add_u32 v6, 65536, v4
    v_add_u32 v7, 98304, v4
    v_lshrrev_b32 v1, 3, v0
    s_lshl_b32 s47, s50, 3
    v_add_u32 v1, s47, v1            ; krow = 8w + (l>>3)
    v_mul_u32_u24 v1, 6144, v1
    v_bfe_u32 v2, v0, 4, 1
    v_lshlrev_b32 v2, 2, v2
    v_and_b32 v3, 7, v0
    v_xor_b32 v3, v3, v2
    v_lshl_add_u32 v1, v3, 4, v1
    s_lshl_b32 s47, s43, 7           ; 128p
    s_lshl_b32 s51, s44, 11          ; type*2048
    s_add_u32 s52, s47, s51
    v_add_u32 v9, s52, v1            ; seg1
    s_sub_u32 s52, 2048, s51
    s_add_u32 s52, s52, s47
    v_add_u32 v8, s52, v1            ; seg0
    s_add_u32 s52, s47, 4096
    v_add_u32 v10, s52, v1           ; seg2
    v_lshlrev_b32 v11, 4, v0
    s_lshl_b32 s47, s43, 12
    s_lshl_b32 s51, s50, 10
    s_add_u32 s47, s47, s51
    s_add_u32 m0, s51, {K1_WPHI}
    s_lshl_b32 s55, s50, 12          ; w*4096  (x pieces)
    buffer_load_dwordx4 v11, s[36:39], s47 offen lds
    s_add_u32 s56, s51, 16384        ; 16384 + w*1024 (W pieces)
    s_mov_b32 s57, 0
    s_mul_i32 s47, s45, {ROT}
    s_and_b32 s47, s47, 31
    s_lshl_b32 s58, s47, 6           ; soffset x
    s_mul_i32 s59, s47, {32*6144}    ; soffset W
    s_mov_b32 s60, 0                 ; block
    K1_LLOOP:
    s_add_u32 s61, s57, s55
    s_add_u32 s62, s57, s56
    """)
    for i in range(4):
        A(f"s_add_u32 m0, s61, {i*1024}")
        A("s_nop 0")
        A(f"buffer_load_dwordx4 v{4+i}, s[16:19], s58 offen lds")
    for sg in range(3):
        A(f"s_add_u32 m0, s62, {sg*4096}")
        A("s_nop 0")
        A(f"buffer_load_dwordx4 v{8+sg}, s[{20+4*sg}:{23+4*sg}], s59 offen lds")
    A(f"""
    s_add_u32 s58, s58, 64
    s_add_u32 s59, s59, {32*6144}
    s_and_b32 s58, s58, 2047
    s_cmp_eq_u32 s59, {1024*6144}
    s_cselect_b32 s59, 0, s59
    s_add_u32 s57, s57, {K1_SLOT}
    s_cmp_eq_u32 s57, {K1_SLOT*K1_NSLOT}
    s_cselect_b32 s57, 0, s57
    s_add_u32 s60, s60, 1
    s_cmp_lt_u32 s60, 4
    s_cbranch_scc1 K1_LLOOP
    s_waitcnt vmcnt(14)
    s_barrier
    s_cmp_lt_u32 s60, 32
    s_cbranch_scc1 K1_LLOOP
    s_waitcnt vmcnt(7)
    s_barrier
    s_waitcnt vmcnt(0)
    s_barrier
    s_cmp_eq_u32 s44, 0
    s_cbranch_scc1 KL_NOG0
    """)
    srd(A, 36, 12, 2048)
    GX = 64
    A(f"""
    s_lshl_b32 s47, s41, 8
    s_lshl_b32 s51, s43, 4
    s_add_u32 s47, s47, s51
    s_lshl_b32 s51, s50, 2
    s_add_u32 s63, s47, s51          ; t0 = r*256 + p*16 + 4w
    s_lshl_b32 s51, s63, 11
    v_lshlrev_b32 v1, 5, v0
    buffer_load_dwordx4 v[32:35], v1, s[36:39], 0 offen
    buffer_load_dwordx4 v[36:39], v1, s[36:39], 0 offen offset:16
    """)
    for j in range(4):
        A(f"buffer_load_dwordx4 v[{GX+8*j}:{GX+8*j+3}], v1, s[16:19], s51 offen")
        A(f"buffer_load_dwordx4 v[{GX+8*j+4}:{GX+8*j+7}], v1, s[16:19], s51 offen offset:16")
        if j < 3: A("s_add_u32 s51, s51, 2048")
    A("""
    KL_NOG0:
    s_barrier
    s_barrier
    """)
    vstamp(A, cfg, 2, PV)
    A("""
    s_cmp_eq_u32 s44, 0
    s_cbranch_scc1 KL_NOG1
    """)
    for j in range(4): A(f"v_mov_b32 v{40+j}, 0")
    A("s_waitcnt vmcnt(0)")
    for k in range(8):
        for j in range(4):
            A(f"v_dot2c_f32_bf16 v{40+j}, v{GX+8*j+k}, v{32+k}")
    A("v_lshlrev_b32 v3, 2, v0")
    A.nop(3)
    for mask in (1, 2, 4, 8, 16, 32):
        A(f"v_xor_b32 v4, {mask*4}, v3")
        for j in range(4): A(f"ds_bpermute_b32 v{5+j}, v4, v{40+j}")
        A("s_waitcnt lgkmcnt(0)")
        for j in range(4): A(f"v_add_f32 v{40+j}, v{40+j}, v{5+j}")
    for j in range(1, 4):
        A(f"v_cmp_eq_u32 vcc, {j}, v0")
        A("s_nop 1")
        A(f"v_cndmask_b32 v40, v40, v{40+j}, vcc")
    A(f"""
    v_mul_f32 v40, {fhex(-LOG2E)}, v40
    v_exp_f32 v40, v40
    s_nop 0
    v_add_f32 v40, 1.0, v40
    v_rcp_f32 v40, v40
    s_lshl_b32 s47, s63, 2
    s_add_u32 s47, s47, {WS_G}
    s_mov_b64 exec, 15
    buffer_store_dword v40, v3, s[32:35], s47 offen sc1
    s_mov_b64 exec, -1
    KL_NOG1:
    """)
    setup_p2(A)
    setup_p3(A)
    A("""
    s_cmp_lg_u32 s66, 0
    s_cbranch_scc1 KL_NOE3
    s_barrier
    KL_NOE3:
    s_mov_b32 s85, s36
    """)
    A(f"""
    s_mov_b32 s36, s86
    s_mov_b32 s37, s87
    s_mov_b32 s38, 256
    s_mov_b32 s39, 0x00020000
    v_mov_b32 v46, 0
    v_lshlrev_b32 v35, 2, v0
    """)
    poll_issue(A, 47, 46, 36, "0")
    A("s_waitcnt vmcnt(0)")
    poll_check(A, 47, 46, 36, "0", "PG", expect="0x100")
    poll_issue(A, 47, 35, 32, "s78")
    A("s_waitcnt vmcnt(0)")
    poll_check(A, 47, 35, 32, "s78", "P1")
    vstamp(A, cfg, 3, PV)
    A(f"""
    v_lshlrev_b32 v3, 4, v0
    s_lshl_b32 s47, s50, 12          ; w*4096
    s_add_u32 m0, s47, {QST}
    s_add_u32 s51, s70, s47
    """)
    for j in range(4):
        A(f"buffer_load_dwordx4 v3, s[32:35], s79 offen offset:{j*1024} sc1 lds")
    for c in range(6):
        A(f"s_add_u32 m0, s47, {c*16384}")
        A("s_nop 0")
        for j in range(4):
            A(f"buffer_load_dwordx4 v3, s[32:35], s51 offen offset:{j*1024} sc1 lds")
        A("s_add_u32 s51, s51, 16384")
    A("s_mov_b32 s36, s85")
    A.label("KF_JOIN")
    Q, K0, K1, V0, V1, SEL, NEGM, SA, SB, O, L, P = 8, 16, 20, 24, 28, 40, 48, 64, 80, 96, 112, 120
    PR = 116
    if cfg.get("prof"): A(f"v_mov_b32 v{PR}, v{PV}")
    vstamp(A, cfg, 4, PR)
    A(f"""
    v_lshlrev_b32 v3, 4, v0          ; lane*16
    v_bfe_u32 v4, v0, 2, 1
    v_bfe_u32 v5, v0, 4, 1
    v_cmp_eq_u32 vcc, v4, v5
    v_mov_b32 v5, 0x3f803f80
    v_mov_b32 v4, 0
    v_cndmask_b32 v{SEL}, v4, v5, vcc
    v_cndmask_b32 v{SEL+1}, v4, v5, vcc
    v_cndmask_b32 v{SEL+2}, v4, v5, vcc
    v_cndmask_b32 v{SEL+3}, v4, v5, vcc
    s_lshl_b32 s47, s40, 11
    s_add_u32 s47, s47, {QST}
    v_add_u32 v6, s47, v3
    v_mov_b32 v1, v3                 ; cur
    v_add_u32 v2, 16384, v3          ; next
    """)
    for i in range(16): A(f"v_mov_b32 v{O+i}, 0")
    for i in range(4):
        A(f"v_mov_b32 v{L+i}, 0"); A(f"v_mov_b32 v{V1+i}, 0"); A(f"v_mov_b32 v{P+4+i}, 0")
    for i in (35, 36, 37, 38, 39, 45, 46): A(f"v_mov_b32 v{i}, 0")
    A(f"""
    s_mov_b32 s60, 0
    s_mov_b32 s61, 2
    s_waitcnt vmcnt(16)
    s_barrier
    """)
    vstamp(A, cfg, 5, PR)
    A(f"""
    ds_read_b128 v[{Q}:{Q+3}], v6
    ds_read_b128 v[{NEGM}:{NEGM+3}], v3
    ds_read_b128 v[{Q+4}:{Q+7}], v6 offset:1024
    ds_read_b128 v[{NEGM+4}:{NEGM+7}], v3 offset:1024
    ds_read_b128 v[{K0}:{K0+3}], v3 offset:4096
    ds_read_b128 v[{K1}:{K1+3}], v3 offset:{4096+1024}
    ds_read_b128 v[{V0}:{V0+3}], v3 offset:2048
    s_waitcnt lgkmcnt(5)
    v_mfma_f32_32x32x16_bf16 v[{SA}:{SA+15}], v[{NEGM}:{NEGM+3}], v[{Q}:{Q+3}], 0
    s_waitcnt lgkmcnt(3)
    v_mfma_f32_32x32x16_bf16 v[{SA}:{SA+15}], v[{NEGM+4}:{NEGM+7}], v[{Q+4}:{Q+7}], v[{SA}:{SA+15}]
    s_waitcnt lgkmcnt(1)
    v_mfma_f32_32x32x16_bf16 v[{SB}:{SB+15}], v[{K0}:{K0+3}], v[{Q}:{Q+3}], 0
    v_mfma_f32_32x32x16_bf16 v[{SB}:{SB+15}], v[{K1}:{K1+3}], v[{Q+4}:{Q+7}], v[{SB}:{SB+15}]
    """)
    A.nop(9)
    A(f"v_max3_f32 v4, v{SA}, v{SA+1}, v{SA+2}")
    A(f"v_max3_f32 v5, v{SA+3}, v{SA+4}, v{SA+5}")
    for k in range(6, 14, 4):
        A(f"v_max3_f32 v4, v4, v{SA+k}, v{SA+k+1}")
        A(f"v_max3_f32 v5, v5, v{SA+k+2}, v{SA+k+3}")
    A(f"v_max3_f32 v4, v4, v{SA+14}, v{SA+15}")
    for k in range(0, 16, 4):
        A(f"v_max3_f32 v4, v4, v{SB+k}, v{SB+k+1}")
        A(f"v_max3_f32 v5, v5, v{SB+k+2}, v{SB+k+3}")
    A("v_max_f32 v4, v4, v5")
    A("v_mov_b32 v5, v4")
    A.nop(2)
    A("v_permlane32_swap_b32 v4, v5")
    A("s_nop 0")
    A("v_max_f32 v4, v4, v5")
    A(f"v_add_f32 v4, {fhex(BIAS)}, v4")
    for i in range(16):
        A(f"v_sub_f32 v{NEGM+i}, 0, v4")
    for k in range(8):
        A(f"v_pk_add_f32 v[{SA+2*k}:{SA+2*k+1}], v[{SA+2*k}:{SA+2*k+1}], v[{NEGM}:{NEGM+1}]")
    vstamp(A, cfg, 6, PR)
    def dma_chunk():
        A("s_mov_b32 m0, s72")
        A("s_add_u32 s72, s72, 16384")
        A("buffer_load_dwordx4 v3, s[32:35], s71 offen sc1 lds")
        A("buffer_load_dwordx4 v3, s[32:35], s71 offen offset:1024 sc1 lds")
        A(f"s_and_b32 s72, s72, {RING-1}")
        A("s_add_u32 s71, s71, 16384")
    def tile(i, Sa, Sb, sideA=(), sideB=(), end=()):
        e = lambda k: f"v_exp_f32 v{Sa+k}, v{Sa+k}"
        c = lambda k: f"v_cvt_pk_bf16_f32 v{P+k}, v{Sa+2*k}, v{Sa+2*k+1}"
        QK0 = f"v_mfma_f32_32x32x16_bf16 v[{Sb}:{Sb+15}], v[{K0}:{K0+3}], v[{Q}:{Q+3}], v[{NEGM}:{NEGM+15}]"
        QK1 = f"v_mfma_f32_32x32x16_bf16 v[{Sb}:{Sb+15}], v[{K1}:{K1+3}], v[{Q+4}:{Q+7}], v[{Sb}:{Sb+15}]"
        PV0 = f"v_mfma_f32_32x32x16_bf16 v[{O}:{O+15}], v[{V0}:{V0+3}], v[{P}:{P+3}], v[{O}:{O+15}]"
        PV1 = f"v_mfma_f32_32x32x16_bf16 v[{O}:{O+15}], v[{V1}:{V1+3}], v[{P+4}:{P+7}], v[{O}:{O+15}]"
        L0 = f"v_mfma_f32_16x16x32_bf16 v[{L}:{L+3}], v[{SEL}:{SEL+3}], v[{P}:{P+3}], v[{L}:{L+3}]"
        L1 = f"v_mfma_f32_16x16x32_bf16 v[{L}:{L+3}], v[{SEL}:{SEL+3}], v[{P+4}:{P+7}], v[{L}:{L+3}]"
        W = "s_waitcnt lgkmcnt(3)"
        def addr(tt, fr):
            return (f"v1 offset:{tt*4096+fr*1024}" if tt < 4 else f"v2 offset:{(tt-4)*4096+fr*1024}")
        rK0 = f"ds_read_b128 v[{K0}:{K0+3}], {addr(i+2, 0)}"; rK1 = f"ds_read_b128 v[{K1}:{K1+3}], {addr(i+2, 1)}"
        rV0 = f"ds_read_b128 v[{V0}:{V0+3}], {addr(i+1, 2)}"; rV1 = f"ds_read_b128 v[{V1}:{V1+3}], {addr(i, 3)}"
        seq = [e(0), e(1), W, PV1, rV1, *sideA, e(2), e(3), e(4), e(5), W, QK0, rK0, e(6), e(7), c(0), c(1), L1, c(2), c(3), e(8), W, QK1, rK1,
               *sideB, e(9), e(10), e(11), W, PV0, rV0, e(12), e(13), e(14), L0, e(15), c(4), c(5), c(6), c(7), *end]
        for x in seq:
            if callable(x): x()
            else: A(x)
    def period(sides=None, dma=True):
        if dma: dma_chunk()
        for i in range(4):
            sa, sb, en = (sides or {}).get(i, ((), (), ()))
            tile(i, SA if i % 2 == 0 else SB, SB if i % 2 == 0 else SA, sa, sb, en)
        A(f"""
        v_mov_b32 v1, v2
        v_add_u32 v2, 16384, v2
        v_and_b32 v2, {RING-1}, v2
        """)
    A.label("K2_LOOP")
    A("s_cmp_ge_u32 s60, 10")
    A("s_cbranch_scc1 K2_NOLD")
    dma_chunk()
    A.label("K2_NOLD")
    period(dma=False)
    A(f"""
    s_add_u32 s60, s60, 1
    s_cmp_lg_u32 s60, s61
    s_waitcnt vmcnt(8)
    s_barrier
    s_cbranch_scc1 K2_LOOP
    """)
    A(f"""
    s_cmp_eq_u32 s60, 2
    s_cbranch_scc1 KD_2
    s_cmp_eq_u32 s60, 3
    s_cbranch_scc1 KD_3
    s_cmp_eq_u32 s60, 4
    s_cbranch_scc1 KD_4
    s_cmp_eq_u32 s60, 8
    s_cbranch_scc1 KD_8
    s_cmp_eq_u32 s60, 9
    s_cbranch_scc1 KD_9
    s_cmp_eq_u32 s60, 10
    s_cbranch_scc1 KD_10
    s_cmp_eq_u32 s60, 12
    s_cbranch_scc1 KD_12
    s_branch KD_13
    KD_2:
    s_mov_b32 s61, 3
    s_cmp_lg_u32 s66, 0
    s_cbranch_scc1 K2_LOOP
    s_mov_b32 s61, 10
    s_cmp_ge_u32 s40, 2
    s_cbranch_scc1 K2_LOOP
    s_waitcnt vmcnt(4)
    """)
    set_flag(A, "s68")
    A(f"""
    s_branch K2_LOOP
    KD_3:
    v_and_b32 v46, 15, v0
    v_lshlrev_b32 v46, 2, v46
    s_mov_b32 s61, 4
    """)
    poll_issue(A, 47, 46, 32, "s77")
    A("s_branch K2_LOOP")
    A.label("KD_4")
    vstamp(A, cfg, 7, PR)
    A("s_waitcnt vmcnt(2)")
    poll_check(A, 47, 46, 32, "s77", "PK")
    KVP = 192; ZP = 128
    A(f"""
    v_lshlrev_b32 v46, 2, v0         ; lane*4
    s_and_b32 s47, s40, 6
    s_cmp_eq_u32 s47, 4
    s_cselect_b32 s84, 1, 0
    """)
    def kvload(hd, rr):
        def f():
            A(f"buffer_load_dwordx4 v[{KVP+32*hd+4*rr}:{KVP+32*hd+4*rr+3}], v3, s[32:35], s75 offen sc1")
            A("s_add_u32 s75, s75, 8192")
        return f
    def zload(rr):
        def f():
            j = A.uid("KZ")
            A("s_cmp_eq_u32 s84, 0"); A(f"s_cbranch_scc1 {j}")
            A(f"buffer_load_dword v{ZP+rr}, v46, s[32:35], s76 offen offset:{256*rr} sc1")
            A.label(j)
        return f
    for hd in range(2):
        period({i: ((kvload(hd, 2*i),), (kvload(hd, 2*i+1), zload(4*hd+i)), ()) for i in range(4)})
        A("s_barrier")
    def kvsum():
        A("s_waitcnt vmcnt(2)")
        A(f"""
        s_lshr_b32 s47, s40, 1
        s_lshl_b32 s47, s47, 10
        s_and_b32 s38, s40, 1
        s_lshl_b32 s38, s38, 3
        s_add_u32 s47, s47, s38
        s_add_u32 s47, s47, {KVT_L}
        v_add_u32 v4, s47, v3
        """)
        for hd in range(2):
            b = KVP + 32*hd
            for rr in range(1, 8):
                A(f"v_pk_add_f32 v[{b}:{b+1}], v[{b}:{b+1}], v[{b+4*rr}:{b+4*rr+1}]")
                A(f"v_pk_add_f32 v[{b+2}:{b+3}], v[{b+2}:{b+3}], v[{b+4*rr+2}:{b+4*rr+3}]")
        for hd in range(2):
            b = KVP + 32*hd
            A(f"v_cvt_pk_bf16_f32 v{b}, v{b}, v{b+1}")
            A(f"v_cvt_pk_bf16_f32 v{b+1}, v{b+2}, v{b+3}")
            A(f"ds_write_b64 v4, v[{b}:{b+1}] offset:{hd*4096}")
        j = A.uid("KZS")
        A("s_cmp_eq_u32 s84, 0"); A(f"s_cbranch_scc1 {j}")
        for rr in range(1, 8):
            A(f"v_add_f32 v{ZP}, v{ZP}, v{ZP+rr}")
        A(f"""
        s_and_b32 s47, s40, 1
        s_lshl_b32 s47, s47, 7
        s_add_u32 s47, s47, {Z_L}
        v_lshlrev_b32 v5, 1, v0
        v_add_u32 v5, s47, v5
        v_cvt_pk_bf16_f32 v{ZP}, v{ZP}, v{ZP}
        ds_write_b16 v5, v{ZP}
        """)
        A.label(j)
    period({1: ((), (), (kvsum,))})
    A(f"""
    s_barrier
    s_mov_b32 s60, 7
    s_mov_b32 s61, 8
    s_cmp_ge_u32 s40, 4
    s_cbranch_scc1 K2_LOOP
    """)
    KVT, ZR, NUM, DEN, OA = 192, 208, 224, 240, 244
    A(f"""
    s_and_b32 s47, s40, 1
    s_lshl_b32 s38, s47, 12
    s_add_u32 s38, s38, {KVT_L}
    v_add_u32 v4, s38, v3
    s_lshl_b32 s47, s47, 7
    s_add_u32 s47, s47, {Z_L}
    v_lshrrev_b32 v5, 5, v0
    v_lshlrev_b32 v5, 3, v5
    v_add_u32 v5, s47, v5            ; Z + hh*8
    """)
    for s in range(4):
        A(f"ds_read_b128 v[{KVT+4*s}:{KVT+4*s+3}], v4 offset:{s*1024}")
        A(f"ds_read_b64 v[{ZR+4*s}:{ZR+4*s+1}], v5 offset:{32*s}")
        A(f"ds_read_b64 v[{ZR+4*s+2}:{ZR+4*s+3}], v5 offset:{32*s+16}")
    def zmask():
        A("v_bfe_u32 v4, v0, 2, 1")
        A("v_bfe_u32 v5, v0, 4, 1")
        A("v_cmp_eq_u32 vcc, v4, v5")
        A("v_mov_b32 v4, 0")
        A("s_nop 0")
        for k in range(16): A(f"v_cndmask_b32 v{ZR+k}, v4, v{ZR+k}, vcc")
    def amfma(t):
        def f():
            for s in range(4):
                c = "0" if s == 0 else f"v[{NUM}:{NUM+15}]"
                A(f"v_mfma_f32_32x32x16_bf16 v[{NUM}:{NUM+15}], v[{KVT+4*s}:{KVT+4*s+3}], v[{PHQ+16*t+4*s}:{PHQ+16*t+4*s+3}], {c}")
                c = "0" if s == 0 else f"v[{DEN}:{DEN+3}]"
                A(f"v_mfma_f32_16x16x32_bf16 v[{DEN}:{DEN+3}], v[{ZR+4*s}:{ZR+4*s+3}], v[{PHQ+16*t+4*s}:{PHQ+16*t+4*s+3}], {c}")
        return f
    def afin():
        A(f"v_add_f32 v4, {fhex(1e-6)}, v{DEN}")
        A("v_rcp_f32 v4, v4")
        A("s_nop 0")
        for k in range(8):
            A(f"v_pk_mul_f32 v[{NUM+2*k}:{NUM+2*k+1}], v[{NUM+2*k}:{NUM+2*k+1}], v[4:5] op_sel_hi:[1,0]")
        cvt_tile(A, OA, NUM)
        A(f"buffer_store_dwordx4 v[{OA}:{OA+3}], v3, s[32:35], s74 offen sc1")
        A(f"buffer_store_dwordx4 v[{OA+4}:{OA+7}], v3, s[32:35], s74 offen offset:1024 sc1")
        A("s_add_u32 s74, s74, 65536")
    period({0: ((), (), (zmask, amfma(0))), 1: ((), (), (afin, amfma(1))), 2: ((), (), (afin, amfma(2))), 3: ((), (), (afin, amfma(3)))})
    A.nop(12)
    afin()
    A(f"""
    s_mov_b32 s60, 8
    s_barrier
    KD_8:
    s_mov_b32 s61, 9
    s_branch K2_LOOP
    KD_9:
    s_mov_b32 s61, 10
    s_cmp_ge_u32 s40, 4
    s_cbranch_scc1 K2_LOOP
    s_waitcnt vmcnt(2)
    """)
    set_flag(A, "s68")
    A("s_branch K2_LOOP")
    A.label("KD_10")
    vstamp(A, cfg, 8, PR)
    A(f"""
    s_waitcnt vmcnt(2)
    s_and_b32 s47, s46, 15
    s_lshl_b32 s47, s47, 3
    s_add_u32 s47, s47, s40          ; 8*(i&15) + w
    s_lshl_b32 s47, s47, 14          ; *8 rows*2048
    s_and_b32 s38, s45, 1
    s_lshl_b32 s38, s38, 10
    s_add_u32 s47, s47, s38
    v_lshrrev_b32 v4, 3, v0
    v_lshlrev_b32 v5, 11, v4         ; r*2048
    v_and_b32 v7, 7, v0
    v_lshl_add_u32 v4, v7, 7, v5
    v_add_u32 v46, s47, v4
    buffer_load_dword v44, v46, s[24:27], 0 offen
    v_and_b32 v45, 31, v0
    v_lshlrev_b32 v45, 2, v45        ; (l&31)*4
    v_lshlrev_b32 v35, 2, v0         ; lane*4
    v_bfe_u32 v6, v0, 4, 1
    v_lshlrev_b32 v6, 2, v6
    v_xor_b32 v7, v7, v6
    v_lshl_add_u32 v5, v7, 4, v5
    s_lshl_b32 s47, s18, 9
    s_lshl_b32 s38, s19, 4
    s_add_u32 s47, s47, s38
    s_lshl_b32 s47, s47, 11
    s_lshl_b32 s38, s17, 7
    s_add_u32 s47, s47, s38          ; + C*128
    v_add_u32 v36, s47, v5           ; piece 0
    v_add_u32 v37, {16384 - 1024}, v36
    v_lshrrev_b32 v7, 5, v0          ; hh
    v_bfe_u32 v6, v0, 2, 2           ; i>>2
    v_lshl_add_u32 v7, v7, 2, v6
    v_lshlrev_b32 v7, 7, v7
    v_bfe_u32 v6, v0, 4, 1
    v_bfe_u32 v5, v0, 1, 1
    v_lshl_add_u32 v6, v6, 1, v5
    v_bfe_u32 v5, v0, 3, 1
    v_lshlrev_b32 v5, 2, v5
    v_xor_b32 v6, v6, v5
    v_lshl_add_u32 v7, v6, 4, v7
    v_and_b32 v5, 1, v0
    v_lshl_add_u32 v7, v5, 3, v7
    s_lshl_b32 s38, s18, 13
    v_add_u32 v38, s38, v7           ; cb=0
    v_xor_b32 v39, 64, v38           ; cb=1
    s_mov_b32 s61, 12
    s_branch K2_LOOP
    KD_12:
    s_mov_b32 s61, 13
    """)
    poll_issue(A, 47, 35, 32, "s36")
    A("s_branch K2_LOOP")
    A.label("KD_13")
    A("s_waitcnt vmcnt(0)")
    poll_check(A, 47, 35, 32, "s36", "PA")
    vstamp(A, cfg, 9, PR)
    G, OMG = 32, 34
    OF = 128
    WF = 192
    ACC3 = 64
    ACS = 224
    def oload(slot, j):
        r = OF + 16*slot + 4*j
        return f"buffer_load_dwordx4 v[{r}:{r+3}], v3, s[32:35], s28 offen offset:{j*1024} sc1"
    def wo0(slot):
        return [f"s_add_u32 m0, s30, {slot*K3_SLOT}", "s_nop 0", f"buffer_load_dwordx4 v36, s[20:23], s29 offen lds"]
    def wo1():
        return [f"buffer_load_dwordx4 v37, s[20:23], s29 offen offset:1024 lds", "s_add_u32 s28, s28, 4096", f"s_add_u32 s29, s29, {64*2048}"]
    def issue(slot):
        A(f"s_add_u32 m0, s30, {slot*K3_SLOT}")
        for j in range(4): A(oload(slot, j))
        A(f"buffer_load_dwordx4 v36, s[20:23], s29 offen lds")
        for l in wo1(): A(l)
    A(f"buffer_load_dword v{G}, v45, s[32:35], s31 offen sc1")
    for slot in range(3):
        period({0: ((oload(slot, 0),), (oload(slot, 1),), ()), 1: ((oload(slot, 2),), (oload(slot, 3),), ()),
                2: (tuple(wo0(slot)), (), ()), 3: (tuple(wo1()), (), ())}, dma=False)
        if slot < 2: A("s_barrier")
    A(f"""
    s_mov_b32 s60, 16
    s_waitcnt lgkmcnt(0)
    v_mfma_f32_32x32x16_bf16 v[{O}:{O+15}], v[{V1}:{V1+3}], v[{P+4}:{P+7}], v[{O}:{O+15}]
    v_mfma_f32_16x16x32_bf16 v[{L}:{L+3}], v[{SEL}:{SEL+3}], v[{P+4}:{P+7}], v[{L}:{L+3}]
    """)
    vstamp(A, cfg, 10, PR)
    A.nop(12)
    A.label("K2_FIN")
    A(f"v_rcp_f32 v4, v{L}")
    A("s_nop 0")
    for k in range(8):
        A(f"v_pk_mul_f32 v[{O+2*k}:{O+2*k+1}], v[{O+2*k}:{O+2*k+1}], v[4:5] op_sel_hi:[1,0]")
    A("v_mov_b32 v6, 0")
    for k in range(16):
        A(f"v_fma_f32 v6, v{O+k}, 0, v6")
    A(f"""
    v_mov_b32 v7, {fhex(2.0**120)}
    v_cmp_u_f32 vcc, v6, v6
    v_cmp_nlt_f32 s[62:63], v{L}, v7
    s_or_b64 vcc, vcc, s[62:63]
    """)
    if cfg.get("force_fb"):
        A("s_mov_b64 vcc, -1")
    A(f"""
    s_cmp_eq_u32 s60, 16
    s_cselect_b64 vcc, vcc, 0
    s_cbranch_vccnz K2_FB
    """)
    for i in range(8):
        A(f"v_cvt_pk_bf16_f32 v{P+i}, v{O+2*i}, v{O+2*i+1}")
    A(f"buffer_store_dwordx4 v[{P}:{P+3}], v3, s[32:35], s73 offen sc1")
    A(f"buffer_store_dwordx4 v[{P+4}:{P+7}], v3, s[32:35], s73 offen offset:1024 sc1")
    for i in range(32): A(f"v_mov_b32 v{ACC3+i}, 0")
    A(f"""
    s_waitcnt vmcnt(0)
    s_barrier
    s_cmp_lg_u32 s40, 0
    s_cbranch_scc1 K3_NOFL
    """)
    set_flag(A, "s69")
    A(f"""
    K3_NOFL:
    s_mov_b32 s60, 0
    """)
    vstamp(A, cfg, 11, PR)
    A.label("K3_LOOP")
    for u in range(4):
        A("s_waitcnt vmcnt(12)")
        if u == 1:
            j = A.uid("K3_NP")
            A(f"s_cmp_lg_u32 s60, 1"); A(f"s_cbranch_scc1 {j}")
            poll_check(A, 47, 45, 32, "s83", "PB")
            A.label(j)
        A("s_barrier")
        for j in range(4):
            for cb in range(2):
                for sec in range(2):
                    r = WF + 8*j + 4*cb + 2*sec
                    A(f"ds_read_b64_tr_b16 v[{r}:{r+1}], v{38+cb} offset:{u*K3_SLOT + (16*j+8*sec)*128}")
        if u == 1:
            A(f"""
            s_cmp_eq_u32 s60, 1
            s_cselect_b32 s20, s6, s20
            s_cselect_b32 s21, s7, s21
            s_cselect_b32 s29, 0, s29
            s_cselect_b32 s38, {4*MB - 32768}, 0
            s_add_u32 s28, s28, s38
            s_cmp_eq_u32 s60, 3
            s_cselect_b32 s22, 0, s22
            s_cselect_b32 s34, 0, s34
            """)
        if u == 3:
            j = A.uid("K3_NI")
            A(f"s_cmp_lg_u32 s60, 0"); A(f"s_cbranch_scc1 {j}")
            poll_issue(A, 47, 45, 32, "s83")
            A.label(j)
        issue((u + 3) % 4)
        for j in range(4):
            for cb in range(2):
                A(f"s_waitcnt lgkmcnt({14 - 4*j - 2*cb})")
                w = WF + 8*j + 4*cb; o = OF + 16*u + 4*j; a = ACC3 + 16*cb
                A(f"v_mfma_f32_32x32x16_bf16 v[{a}:{a+15}], v[{w}:{w+3}], v[{o}:{o+3}], v[{a}:{a+15}]")
    A(f"""
    s_add_u32 s60, s60, 1
    s_cmp_lg_u32 s60, 2
    s_cbranch_scc1 K3_NOSW
    """)
    vstamp(A, cfg, 12, PR)
    A.nop(14)
    for k in range(16):
        A(f"v_pk_mul_f32 v[{ACS+2*k}:{ACS+2*k+1}], v[{ACC3+2*k}:{ACC3+2*k+1}], v[{G}:{G+1}] op_sel_hi:[1,0]")
    for k in range(32): A(f"v_mov_b32 v{ACC3+k}, 0")
    A(f"""
    K3_NOSW:
    s_cmp_lt_u32 s60, 4
    s_cbranch_scc1 K3_LOOP
    """)
    vstamp(A, cfg, 13, PR)
    A(f"""
    v_sub_f32 v{OMG}, 1.0, v{G}
    v_and_b32 v4, 31, v0
    s_lshl_b32 s38, s19, 5
    v_add_u32 v4, s38, v4
    v_mul_u32_u24 v4, {K3_ROW}, v4
    v_lshrrev_b32 v5, 5, v0
    v_lshl_add_u32 v4, v5, 4, v4
    s_mul_i32 s38, s18, {K3_RED}
    v_add_u32 v4, s38, v4
    s_lshl_b32 s38, s40, 6
    v_add_u32 v10, s38, v0           ; tid
    v_lshrrev_b32 v5, 3, v10
    v_and_b32 v6, 7, v10             ; chunk
    v_mul_u32_u24 v7, {K3_ROW}, v5
    v_lshl_add_u32 v7, v6, 5, v7
    s_lshl_b32 s38, s16, 7
    v_add_u32 v5, s38, v5
    v_lshlrev_b32 v5, 11, v5
    v_lshl_add_u32 v5, v6, 4, v5
    s_lshl_b32 s38, s17, 7
    v_add_u32 v5, s38, v5
    s_waitcnt vmcnt(0)
    s_barrier
    """)
    srd(A, 24, 8, 4194304)
    A.nop(6)
    for k in range(16):
        A(f"v_pk_fma_f32 v[{ACC3+2*k}:{ACC3+2*k+1}], v[{ACC3+2*k}:{ACC3+2*k+1}], v[{OMG}:{OMG+1}], v[{ACS+2*k}:{ACS+2*k+1}] op_sel_hi:[1,0,1]")
    for cb in range(2):
        for q in range(4):
            r = ACC3 + 16*cb + 4*q
            A(f"ds_write_b128 v4, v[{r}:{r+3}] offset:{cb*128 + q*32}")
    A("s_waitcnt lgkmcnt(0)")
    A("s_barrier")
    R = 128
    for it in range(2):
        for g in range(2):
            for hf in range(2):
                r = R + 16*it + 8*g + 4*hf
                A(f"ds_read_b128 v[{r}:{r+3}], v7 offset:{it*64*K3_ROW + g*K3_RED + hf*16}")
    for it in range(2):
        A(f"s_waitcnt lgkmcnt({4 - 4*it})")
        r = R + 16*it
        for k in range(4):
            A(f"v_pk_add_f32 v[{r+2*k}:{r+2*k+1}], v[{r+2*k}:{r+2*k+1}], v[{r+8+2*k}:{r+8+2*k+1}]")
        for k in range(4):
            A(f"v_cvt_pk_bf16_f32 v{r+k}, v{r+2*k}, v{r+2*k+1}")
        A(f"buffer_store_dwordx4 v[{r}:{r+3}], v5, s[24:27], 0 offen {cfg.get('ost', '').replace('+', ' ')}")
        if it == 0: A(f"v_add_u32 v5, {64*2048}, v5")
    if cfg.get("prof"):
        A("s_waitcnt vmcnt(0)")
        vstamp(A, cfg, 14, PR)
        A(f"""
        s_mov_b32 s92, s14
        s_mov_b32 s93, s15
        s_mov_b32 s94, {64*MB}
        s_mov_b32 s95, 0x00020000
        s_lshl_b32 s90, s2, 3
        s_add_u32 s90, s90, s40
        s_lshl_b32 s90, s90, 7
        s_add_u32 s90, s90, {WS_PROFV}
        v_lshlrev_b32 v1, 2, v0
        s_mov_b64 exec, 0xffffffff
        buffer_store_dword v{PR}, v1, s[92:95], s90 offen
        """)
    A("s_endpgm")
    A.label("K2_FB")
    vstamp(A, cfg, 15, PR)
    A("s_mov_b32 s60, 17")
    A("s_mov_b32 s61, 0")
    for i in range(16): A(f"v_mov_b32 v{O+i}, 0")
    for i in range(4): A(f"v_mov_b32 v{L+i}, 0")
    A(f"v_mov_b32 v44, 0xff800000")
    A.label("K2_FBL")
    A(f"""
    buffer_load_dwordx4 v[{K0}:{K0+3}], v3, s[32:35], s70 offen sc1
    buffer_load_dwordx4 v[{K1}:{K1+3}], v3, s[32:35], s70 offen offset:1024 sc1
    buffer_load_dwordx4 v[{V0}:{V0+3}], v3, s[32:35], s70 offen offset:2048 sc1
    buffer_load_dwordx4 v[{V1}:{V1+3}], v3, s[32:35], s70 offen offset:3072 sc1
    s_add_u32 s70, s70, 4096
    s_waitcnt vmcnt(0)
    v_mfma_f32_32x32x16_bf16 v[{SA}:{SA+15}], v[{K0}:{K0+3}], v[{Q}:{Q+3}], 0
    v_mfma_f32_32x32x16_bf16 v[{SA}:{SA+15}], v[{K1}:{K1+3}], v[{Q+4}:{Q+7}], v[{SA}:{SA+15}]
    """)
    A.nop(12)
    A(f"v_max3_f32 v4, v{SA}, v{SA+1}, v{SA+2}")
    for k in range(3, 15, 2):
        A(f"v_max3_f32 v4, v4, v{SA+k}, v{SA+k+1}")
    A(f"v_max3_f32 v4, v4, v{SA+15}, v44")
    A("v_mov_b32 v5, v4")
    A.nop(2)
    A("v_permlane32_swap_b32 v4, v5")
    A("s_nop 0")
    A("v_max_f32 v4, v4, v5")
    A("v_sub_f32 v5, v44, v4")
    A("v_exp_f32 v5, v5")
    A("v_mov_b32 v44, v4")
    for k in range(16):
        A(f"v_sub_f32 v{SA+k}, v{SA+k}, v4")
    for k in range(16):
        A(f"v_exp_f32 v{SA+k}, v{SA+k}")
    for k in range(16):
        A(f"v_mul_f32 v{O+k}, v{O+k}, v5")
    for k in range(4):
        A(f"v_mul_f32 v{L+k}, v{L+k}, v5")
    for k in range(8):
        A(f"v_cvt_pk_bf16_f32 v{P+k}, v{SA+2*k}, v{SA+2*k+1}")
    A("s_nop 1")
    A(f"""
    v_mfma_f32_32x32x16_bf16 v[{O}:{O+15}], v[{V0}:{V0+3}], v[{P}:{P+3}], v[{O}:{O+15}]
    v_mfma_f32_16x16x32_bf16 v[{L}:{L+3}], v[{SEL}:{SEL+3}], v[{P}:{P+3}], v[{L}:{L+3}]
    v_mfma_f32_32x32x16_bf16 v[{O}:{O+15}], v[{V1}:{V1+3}], v[{P+4}:{P+7}], v[{O}:{O+15}]
    v_mfma_f32_16x16x32_bf16 v[{L}:{L+3}], v[{SEL}:{SEL+3}], v[{P+4}:{P+7}], v[{L}:{L+3}]
    s_add_u32 s61, s61, 1
    s_cmp_lt_u32 s61, 64
    """)
    A.nop(12)
    A("s_cbranch_scc1 K2_FBL")
    A("s_branch K2_FIN")
    A.label("KF_END")
    A("s_endpgm")
    return K, KF_LDS
```

```python
from common import *

KNAME = NAME + "_kernel"
K1_XS = 32768
K1_NX = 3
K1_WB = K1_XS * K1_NX
K1_SLOT = 12288
K1_NSLOT = 5
K1_WPHI = K1_WB + K1_SLOT * K1_NSLOT
K1_TBUF = 4352
RING = 65536
QST = 65536
TBUF0 = 81920
RED0 = 98304
ZRED = 114688
KVT_L = 116736
Z_L = 120832
KG_LDS = 163840
def WSL(s): return 65536 + 16384 * s if s < 6 else 16384 * (s - 6)
WS_F1 = WS_FLAG
WS_FK = WS_FLAG + 4096
WS_FA = WS_FLAG + 16384
WS_FB = WS_FLAG + 20480
BIAS = 80.0
K3_ROW = 272
K3_RED = 128 * K3_ROW
SPIN_MAX = 1 << 16
WS_PROFV = WS_PROF

def cvt_tile(A, dst, src):
    for i in range(8):
        A(f"v_cvt_pk_bf16_f32 v{dst+i}, v{src+2*i}, v{src+2*i+1}")

def vstamp(A, cfg, i, reg):
    if cfg.get("prof"):
        A("s_memtime s[96:97]")
        A("s_memrealtime s[98:99]")
        A("s_waitcnt lgkmcnt(0)")
        A(f"v_writelane_b32 v{reg}, s96, {2*i}")
        A(f"v_writelane_b32 v{reg}, s98, {2*i+1}")

def poll_issue(A, vdst, vaddr, srd, soff, n=1):
    if n == 1: A(f"buffer_load_dword v{vdst}, v{vaddr}, s[{srd}:{srd+3}], {soff} offen sc1")
    else:      A(f"buffer_load_dwordx2 v[{vdst}:{vdst+1}], v{vaddr}, s[{srd}:{srd+3}], {soff} offen sc1")

def poll_check(A, vdst, vaddr, srd, soff, tag, expect=1, n=1):
    ok = A.uid(tag + "_OK"); sp = A.uid(tag + "_SP")
    def test():
        if n == 2: A(f"v_and_b32 v{vdst}, v{vdst}, v{vdst+1}")
        A(f"v_cmp_eq_u32 vcc, {expect}, v{vdst}")
        A("s_cmp_eq_u64 vcc, -1")
        A(f"s_cbranch_scc1 {ok}")
    test()
    A("s_mov_b32 s82, 0")
    A.label(sp)
    A("s_sleep 2")
    poll_issue(A, vdst, vaddr, srd, soff, n)
    A("s_add_u32 s82, s82, 1")
    A("s_waitcnt vmcnt(0)")
    test()
    A(f"s_cmp_lt_u32 s82, {SPIN_MAX}")
    A(f"s_cbranch_scc1 {sp}")
    A.label(ok)

def set_flag(A, soff):
    A(f"""
    s_mov_b64 exec, 1
    v_mov_b32 v4, 1
    v_mov_b32 v5, 0
    buffer_store_dword v4, v5, s[32:35], {soff} offen sc1
    s_mov_b64 exec, -1
    """)

class VM:
    def __init__(s, A, init=()): s.A = A; s.q = list(init)
    def op(s, tag, text):
        def f(): s.A(text); s.q.append(tag)
        return f
    def now(s, tag, text): s.op(tag, text)()
    def wait(s, *tags):
        idx = max([k for k, t in enumerate(s.q) if t in tags], default=-1)
        if idx < 0: return
        s.A(f"s_waitcnt vmcnt({len(s.q) - 1 - idx})")
        s.q = s.q[idx+1:]

def setup_p2(A):
    A(f"""
    s_lshl_b32 s70, s42, 18
    s_add_u32 s70, s70, {WS_KVB}
    s_lshl_b32 s47, s41, 1
    s_add_u32 s47, s47, 3
    s_and_b32 s47, s47, 15
    s_lshl_b32 s47, s47, 14
    s_lshl_b32 s38, s40, 11
    s_add_u32 s71, s47, s38
    s_add_u32 s72, s38, {3*16384}
    s_lshl_b32 s47, s41, 3
    s_add_u32 s47, s47, s40
    s_lshl_b32 s47, s47, 5
    s_add_u32 s47, s47, s42
    s_lshl_b32 s73, s47, 11
    s_add_u32 s73, s73, {WS_OB}
    s_lshr_b32 s39, s40, 1
    s_and_b32 s39, s39, 1            ; th
    s_lshl_b32 s47, s41, 3
    s_lshl_b32 s38, s39, 2
    s_add_u32 s47, s47, s38          ; r*8 + th*4
    s_lshl_b32 s47, s47, 5
    s_add_u32 s47, s47, s42
    s_lshl_b32 s74, s47, 11
    s_add_u32 s74, s74, {WS_OA}
    s_lshl_b32 s75, s42, 16
    s_lshl_b32 s47, s40, 10
    s_add_u32 s75, s75, s47
    s_add_u32 s75, s75, {WS_KVP}
    s_lshl_b32 s47, s41, 13
    s_add_u32 s79, s75, s47
    s_lshl_b32 s76, s42, 11
    s_add_u32 s76, s76, {WS_ZP}
    s_lshl_b32 s47, s41, 8
    s_add_u32 s89, s76, s47
    s_lshl_b32 s77, s42, 8
    s_add_u32 s77, s77, {WS_FK}
    s_lshl_b32 s47, s41, 5
    s_add_u32 s68, s77, s47
    s_lshl_b32 s47, s40, 2
    s_add_u32 s68, s68, s47
    s_lshl_b32 s78, s42, 6
    s_add_u32 s78, s78, {WS_F1}      ; F1 line
    s_lshl_b32 s47, s41, 3
    s_add_u32 s67, s78, s47
    s_lshl_b32 s38, s39, 2
    s_add_u32 s67, s67, s38
    s_lshl_b32 s88, s41, 8
    s_lshl_b32 s47, s42, 3
    s_add_u32 s88, s88, s47
    s_add_u32 s88, s88, s38
    s_add_u32 s88, s88, {WS_FA}
    s_lshl_b32 s47, s41, 1
    s_lshr_b32 s38, s40, 2
    s_add_u32 s47, s47, s38
    s_lshl_b32 s69, s47, 9
    s_lshl_b32 s47, s42, 4
    s_add_u32 s69, s69, s47
    s_and_b32 s47, s40, 3
    s_lshl_b32 s47, s47, 2
    s_add_u32 s69, s69, s47
    s_add_u32 s69, s69, {WS_FB}
    """)

def setup_p3(A):
    A(f"""
    s_load_dwordx2 s[4:5], s[0:1], 24
    s_load_dwordx2 s[6:7], s[0:1], 48
    s_load_dwordx2 s[8:9], s[0:1], 64
    s_lshr_b32 s16, s45, 1
    s_lshl_b32 s16, s16, 2
    s_lshr_b32 s47, s46, 3
    s_add_u32 s16, s16, s47          ; T = 4*(e>>1) + (i>>3)
    s_and_b32 s17, s45, 1
    s_lshl_b32 s17, s17, 3
    s_and_b32 s47, s46, 7
    s_add_u32 s17, s17, s47          ; C = 8*(e&1) + (i&7)
    s_lshr_b32 s18, s40, 2           ; grp
    s_and_b32 s19, s40, 3            ; tq
    s_lshl_b32 s47, s16, 2
    s_add_u32 s47, s47, s19          ; tb3
    s_lshl_b32 s28, s47, 16
    s_lshl_b32 s38, s18, 15
    s_add_u32 s28, s28, s38
    s_add_u32 s28, s28, {WS_OA}
    s_lshl_b32 s31, s47, 7
    s_add_u32 s31, s31, {WS_G}       ; g offset
    s_lshr_b32 s47, s16, 1
    s_lshl_b32 s36, s47, 8
    s_add_u32 s36, s36, {WS_FA}
    s_lshl_b32 s83, s16, 9
    s_add_u32 s83, s83, {WS_FB}
    s_lshl_b32 s30, s18, 13
    s_lshl_b32 s38, s19, 11
    s_add_u32 s30, s30, s38
    s_mov_b32 s29, 0
    s_waitcnt lgkmcnt(0)
    s_mov_b32 s20, s4
    s_mov_b32 s21, s5
    s_mov_b32 s22, {1024*2048}
    s_mov_b32 s23, 0x00020000
    """)

def gen_kg(A, cfg):
    K = KNAME
    F1POS = int(cfg.get("f1pos", 2))
    ROT = int(cfg.get("rot", 12))
    PV = 255
    kernel_begin(A, K)
    A(f"""
    s_cmp_ge_u32 s2, 256
    s_cbranch_scc1 KF_END
    s_load_dwordx2 s[4:5], s[0:1], 0
    s_load_dwordx2 s[6:7], s[0:1], 8
    s_load_dwordx2 s[8:9], s[0:1], 40
    s_load_dwordx2 s[10:11], s[0:1], 16
    s_load_dwordx2 s[12:13], s[0:1], 56
    s_load_dwordx2 s[14:15], s[0:1], 80
    s_load_dwordx2 s[86:87], s[0:1], 72
    v_lshrrev_b32 v1, 6, v0
    v_and_b32 v0, 63, v0
    v_readfirstlane_b32 s40, v1
    s_and_b32 s45, s2, 7
    s_lshr_b32 s46, s2, 3
    """)
    if cfg.get("prof"): A(f"v_mov_b32 v{PV}, 0")
    vstamp(A, cfg, 0, PV)
    if cfg.get("hmap", "f") == "f":
        A("""
        s_and_b32 s41, s45, 1
        s_lshl_b32 s41, s41, 2
        s_lshr_b32 s47, s46, 3
        s_add_u32 s41, s41, s47          ; r = 4(e&1) + (i>>3)
        s_lshr_b32 s42, s45, 1
        s_lshl_b32 s42, s42, 3
        s_and_b32 s47, s46, 7
        s_add_u32 s42, s42, s47          ; h = 8(e>>1) + (i&7)
        s_waitcnt lgkmcnt(0)
        """)
    else:
        A("""
        s_and_b32 s41, s46, 7            ; r
        s_lshl_b32 s42, s45, 2
        s_lshr_b32 s47, s46, 3
        s_add_u32 s42, s42, s47          ; h = 4e + (i>>3)
        s_waitcnt lgkmcnt(0)
        """)
    srd(A, 32, 14, WS_USED)
    A("""
    s_cmp_ge_u32 s40, 4
    s_cbranch_scc1 K1_LOADER
    """)
    L2D = int(cfg.get("l2d", 6))
    rng = lambda t: range(*map(int, t.split(":"))) if t else range(0)
    PFA_ = rng(cfg.get("pfa", f"4:{4+L2D}")); PFB_ = rng(cfg.get("pfb", ""))
    PFA, PFD = 252, 253
    def l2pf(step=None):
        if step is None:
            A("s_and_b32 s55, s59, 31")
        else:
            A(f"s_add_u32 s55, s63, {step}")
            A("s_and_b32 s55, s55, 31")
        A(f"s_mul_i32 s55, s55, {32*6144}")
        A(f"buffer_load_dword v{PFD}, v{PFA}, s[92:95], s55 offen")
        if step is None: A("s_add_u32 s59, s59, 1")
    if L2D:
        A(f"""
        s_and_b32 s47, s42, 1
        s_lshl_b32 s47, s47, 2
        s_and_b32 s38, s41, 3
        s_add_u32 s47, s47, s38
        s_lshr_b32 s38, s42, 1
        
        s_lshl_b32 s47, s47, 2
        s_lshl_b32 s38, s38, 7
        v_and_b32 v4, 3, v0
        v_add_u32 v4, s47, v4
        v_mul_u32_u24 v4, 6144, v4
        v_lshrrev_b32 v5, 2, v0
        v_lshl_add_u32 v4, v5, 11, v4    ; + segment * 2048
        v_add_u32 v4, s38, v4
        v_mov_b32 v5, 0x7ffffff0
        v_cmp_gt_u32 vcc, 12, v0
        s_cmp_eq_u32 s40, 2
        s_cselect_b32 s92, s6, s8
        s_cselect_b32 s93, s7, s9
        s_cmp_ge_u32 s40, 2
        s_cselect_b32 s62, {1024*6144}, 0
        s_mov_b32 s94, s62
        s_mov_b32 s95, 0x00020000
        v_cndmask_b32 v{PFA}, v5, v4, vcc
        s_mul_i32 s63, s45, {ROT}
        s_add_u32 s59, s63, {4 + L2D}
        """)
        for t in PFA_: l2pf(t)
    setup_p2(A)
    A(f"""
    s_cmp_lg_u32 s40, 0
    s_cbranch_scc1 K1_NOZ
    v_lshlrev_b32 v4, 2, v0
    v_lshrrev_b32 v6, 2, v0
    v_lshlrev_b32 v6, 9, v6
    v_and_b32 v7, 3, v0
    v_lshl_add_u32 v6, v7, 2, v6
    v_mov_b32 v5, 0
    s_mov_b64 exec, 3
    buffer_store_dword v5, v4, s[32:35], s67 offen sc1
    buffer_store_dword v5, v4, s[32:35], s88 offen sc1
    s_mov_b64 exec, 0xff
    buffer_store_dword v5, v4, s[32:35], s68 offen sc1
    buffer_store_dword v5, v6, s[32:35], s69 offen sc1
    s_mov_b32 s36, s86
    s_mov_b32 s37, s87
    s_mov_b32 s38, 256
    s_mov_b32 s39, 0x00020000
    s_waitcnt vmcnt(0)
    s_mov_b64 exec, 1
    v_mov_b32 v6, 1
    buffer_atomic_add v6, v5, s[36:39], 0 offen
    s_mov_b64 exec, -1
    K1_NOZ:
    """)
    setup_p3(A)
    XA, WA = 4, 20
    XB, WB = 32, 48
    ACC = 60
    acc = lambda sg, tt: ACC + (sg * 4 + tt) * 16
    A(f"""
    s_lshr_b32 s50, s40, 1           ; th
    s_and_b32 s51, s40, 1            ; type
    v_and_b32 v4, 31, v0
    v_lshrrev_b32 v5, 5, v0          ; hh
    v_bfe_u32 v6, v0, 2, 2           ; f = (l>>2)&3
    v_bfe_u32 v7, v0, 1, 3           ; (row>>1)&7
    v_xor_b32 v7, v5, v7
    v_lshlrev_b32 v7, 4, v7
    v_lshl_add_u32 v1, v4, 7, v7
    s_lshl_b32 s47, s50, 14
    v_add_u32 v1, s47, v1            ; vxa0
    v_xor_b32 v2, 32, v1             ; vxa1
    v_lshl_add_u32 v7, v5, 3, v6
    v_lshlrev_b32 v7, 6, v7          ; *64
    v_bfe_u32 v8, v0, 4, 1           ; g&1
    v_lshl_add_u32 v7, v8, 5, v7
    v_and_b32 v9, 3, v0
    v_lshl_add_u32 v7, v9, 3, v7
    s_lshl_b32 s47, s51, 11
    s_add_u32 s47, s47, {K1_WB}
    v_add_u32 v3, s47, v7            ; vwa
    s_mov_b32 s48, 0
    s_mov_b32 s52, {K1_SLOT}
    s_mov_b32 s53, {-(K1_NSLOT-1)*K1_SLOT & 0xffffffff}
    s_mov_b32 s54, 32
    s_mov_b32 s64, 0                 ; x slot
    s_mov_b32 s66, {-(K1_NX-1)*K1_XS & 0xffffffff}
    """)
    for i in range(192):
        A(f"v_mov_b32 v{ACC+i}, 0")
    A("s_barrier")
    vstamp(A, cfg, 1, PV)
    if L2D:
        for t in PFB_: l2pf(t)
    def reads(X, W, s):
        r = []
        xa = 1 if s == 0 else 2
        for tt in range(4):
            r.append(f"ds_read_b128 v[{X+4*tt}:{X+4*tt+3}], v{xa} offset:{tt*4096}")
        for sg in range(3):
            for sec in range(2):
                r.append(f"ds_read_b64_tr_b16 v[{W+4*sg+2*sec}:{W+4*sg+2*sec+1}], v3 offset:{sg*4096 + s*1024 + sec*256}")
        return [r[4], r[5], r[0], r[1], r[2], r[3], r[6], r[7], r[8], r[9]]
    def mfmas(X, W):
        m = []
        for sg in range(3):
            for tt in range(4):
                a = acc(sg, tt)
                w = f"v[{W+4*sg}:{W+4*sg+3}]"; x = f"v[{X+4*tt}:{X+4*tt+3}]"
                if sg < 2: m.append(f"v_mfma_f32_32x32x16_bf16 v[{a}:{a+15}], {w}, {x}, v[{a}:{a+15}]")
                else:      m.append(f"v_mfma_f32_32x32x16_bf16 v[{a}:{a+15}], {x}, {w}, v[{a}:{a+15}]")
        return m
    for l in reads(XA, WA, 0): A(l)
    A.label("K1_CLOOP")
    A("s_waitcnt lgkmcnt(0)")
    m = mfmas(XA, WA); r = reads(XB, WB, 1)
    extra0 = {4: ["s_and_b32 s63, s54, 1", "s_add_u32 s64, s64, s63", f"s_cmp_eq_u32 s64, {K1_NX}",
                  f"s_cselect_b32 s65, s66, {K1_XS}", "s_cselect_b32 s64, 0, s64", "s_mul_i32 s65, s65, s63"],
              6: ["s_add_u32 s48, s48, 1", f"s_cmp_eq_u32 s48, {K1_NSLOT}", "s_cselect_b32 s49, s53, s52", "s_cselect_b32 s48, 0, s48"],
              7: ["v_xor_b32 v1, 64, v1", "v_xor_b32 v2, 64, v2"], 8: ["v_add_u32 v1, s65, v1", "v_add_u32 v2, s65, v2"], 9: ["v_add_u32 v3, s49, v3"]}
    for k in range(12):
        A(m[k])
        if k < 5:
            A(r[2*k]); A(r[2*k+1])
        for l in extra0.get(k, []): A(l)
        if L2D and k == 10:
            A(f"s_cmp_gt_u32 s54, {4 + L2D}")
            A("s_cselect_b32 s94, s62, 0")
            l2pf()
    A("s_waitcnt lgkmcnt(0)")
    m = mfmas(XB, WB); r = reads(XA, WA, 0)
    for k in range(12):
        A(m[k])
        if k < 5:
            A(r[2*k]); A(r[2*k+1])
        if k == 8:
            A("s_sub_u32 s54, s54, 1"); A("s_cmp_lg_u32 s54, 0")
    A("s_barrier")
    A("s_cbranch_scc1 K1_CLOOP")
    A("s_waitcnt lgkmcnt(0)")
    vstamp(A, cfg, 2, PV)
    A(f"""
    v_lshlrev_b32 v1, 4, v0          ; lane*16
    s_cmp_lg_u32 s51, 0
    s_cbranch_scc1 K1_E1T1
    s_mov_b32 s56, {fhex(32**-0.5 * LOG2E)}
    s_mov_b32 s57, s56
    s_lshl_b32 s47, s50, 13
    s_add_u32 s47, s47, {QST}
    v_add_u32 v44, s47, v1
    """)
    A.nop(6)
    T1 = 4
    V = acc(1, 0)
    Q = acc(1, 0) + 32
    for tt in range(4):
        for k in range(8):
            a = acc(1, tt) + 2*k
            A(f"v_pk_mul_f32 v[{a}:{a+1}], v[{a}:{a+1}], s[56:57]")
        cvt_tile(A, T1 + 8*tt, acc(1, tt))
        A(f"ds_write_b128 v44, v[{T1+8*tt}:{T1+8*tt+3}] offset:{tt*2048}")
        A(f"ds_write_b128 v44, v[{T1+8*tt+4}:{T1+8*tt+7}] offset:{tt*2048+1024}")
    for tt in range(4):
        cvt_tile(A, V + 8*tt, acc(2, tt))
    A("s_branch K1_E2J")
    A.label("K1_E1T1")
    A(f"""
    s_lshl_b32 s58, s41, 1
    s_add_u32 s58, s58, s50
    s_lshl_b32 s58, s58, 14
    s_add_u32 s58, s58, s70
    s_lshl_b32 s47, s50, 14
    v_add_u32 v44, s47, v1
    """)
    A.nop(10)
    for tt in range(4):
        cvt_tile(A, T1 + 8*tt, acc(1, tt))
        A(f"buffer_store_dwordx4 v[{T1+8*tt}:{T1+8*tt+3}], v1, s[32:35], s58 offen sc1")
        A(f"buffer_store_dwordx4 v[{T1+8*tt+4}:{T1+8*tt+7}], v1, s[32:35], s58 offen offset:1024 sc1")
        A("s_add_u32 s58, s58, 4096")
    A(f"s_sub_u32 s58, s58, {4*4096 - 2048}")
    for tt in range(4):
        cvt_tile(A, V + 8*tt, acc(2, tt))
        A(f"buffer_store_dwordx4 v[{V+8*tt}:{V+8*tt+3}], v1, s[32:35], s58 offen sc1")
        A(f"buffer_store_dwordx4 v[{V+8*tt+4}:{V+8*tt+7}], v1, s[32:35], s58 offen offset:1024 sc1")
        A("s_add_u32 s58, s58, 4096")
    for tt in range(4):
        A(f"ds_write_b128 v44, v[{T1+8*tt}:{T1+8*tt+3}] offset:{tt*4096}")
        A(f"ds_write_b128 v44, v[{T1+8*tt+4}:{T1+8*tt+7}] offset:{tt*4096+1024}")
        A(f"ds_write_b128 v44, v[{V+8*tt}:{V+8*tt+3}] offset:{tt*4096+2048}")
        A(f"ds_write_b128 v44, v[{V+8*tt+4}:{V+8*tt+7}] offset:{tt*4096+3072}")
    A.label("K1_E2J")
    WP = 36
    A(f"""
    v_lshrrev_b32 v5, 5, v0          ; hh
    v_bfe_u32 v6, v0, 2, 2           ; i>>2
    v_lshl_add_u32 v6, v5, 2, v6     ; 4hh + (i>>2)
    v_bfe_u32 v7, v0, 4, 1
    v_lshlrev_b32 v7, 5, v7
    v_and_b32 v8, 3, v0
    v_lshl_add_u32 v7, v8, 3, v7     ; (g&1)*32 + (i&3)*8
    v_lshl_add_u32 v2, v6, 6, v7
    v_add_u32 v2, {K1_WPHI}, v2
    """)
    for s in range(2):
        for sec in range(2):
            A(f"ds_read_b64_tr_b16 v[{WP+4*s+2*sec}:{WP+4*s+2*sec+1}], v2 offset:{(16*s+8*sec)*64}")
    A(f"""
    s_mul_i32 s47, s50, {K1_TBUF}
    s_add_u32 s47, s47, {TBUF0}
    v_mul_u32_u24 v25, 136, v6
    v_add_u32 v25, v25, v7
    v_add_u32 v25, s47, v25
    v_and_b32 v8, 31, v0
    v_mul_u32_u24 v24, 136, v8
    v_lshl_add_u32 v24, v5, 3, v24
    v_add_u32 v24, s47, v24
    v_bfe_u32 v8, v0, 2, 1
    v_bfe_u32 v9, v0, 4, 1
    v_cmp_eq_u32 vcc, v8, v9
    v_mov_b32 v9, 0x3f803f80
    v_mov_b32 v8, 0
    v_cndmask_b32 v20, v8, v9, vcc
    v_cndmask_b32 v21, v8, v9, vcc
    v_cndmask_b32 v22, v8, v9, vcc
    v_cndmask_b32 v23, v8, v9, vcc
    """)
    for tt in range(4):
        cvt_tile(A, Q + 8*tt, acc(0, tt))
    A("s_waitcnt lgkmcnt(0)")
    for tt in range(4):
        a = acc(0, tt)
        A(f"v_mfma_f32_32x32x16_bf16 v[{a}:{a+15}], v[{WP}:{WP+3}], v[{Q+8*tt}:{Q+8*tt+3}], 0")
    for tt in range(4):
        a = acc(0, tt)
        A(f"v_mfma_f32_32x32x16_bf16 v[{a}:{a+15}], v[{WP+4}:{WP+7}], v[{Q+8*tt+4}:{Q+8*tt+7}], v[{a}:{a+15}]")
    A(f"""
    s_mov_b32 s56, {fhex(LOG2E)}
    s_mov_b32 s57, s56
    """)
    A.nop(10)
    EP = acc(2, 0)
    PH = EP + 16
    AF = PH + 16
    KV0 = AF + 16
    KV1 = 44
    Z0, Z1, SEL1 = 12, 16, 20
    PHQ = 128
    def kv_mfmas(tt):
        out = []
        for s in range(2):
            for fb in range(2):
                kv = KV0 if fb == 0 else KV1
                z = Z0 if fb == 0 else Z1
                af = AF + (fb*2+s)*4
                c = "0" if (tt == 0 and s == 0) else f"v[{kv}:{kv+15}]"
                cz = "0" if (tt == 0 and s == 0) else f"v[{z}:{z+3}]"
                out.append(f"v_mfma_f32_32x32x16_bf16 v[{kv}:{kv+15}], v[{af}:{af+3}], v[{V+8*tt+4*s}:{V+8*tt+4*s+3}], {c}")
                out.append(f"v_mfma_f32_16x16x32_bf16 v[{z}:{z+3}], v[{SEL1}:{SEL1+3}], v[{af}:{af+3}], {cz}")
        return out
    for tt in range(4):
        P = acc(0, tt)
        A(f"v_max3_f32 v4, v{P}, v{P+1}, v{P+2}")
        A(f"v_max3_f32 v5, -v{P}, -v{P+1}, -v{P+2}")
        for k in range(3, 15, 2):
            A(f"v_max3_f32 v4, v4, v{P+k}, v{P+k+1}")
            A(f"v_max3_f32 v5, v5, -v{P+k}, -v{P+k+1}")
        A(f"v_max_f32 v4, v4, v{P+15}")
        A(f"v_max_f32 v5, v5, -v{P+15}")
        A.nop(2)
        A("v_permlane32_swap_b32 v4, v5")
        A("s_nop 0")
        A("v_max_f32 v4, v4, v5")
        A("v_mov_b32 v5, v4")
        A.nop(2)
        A("v_permlane32_swap_b32 v4, v5")
        A("s_nop 0")
        A(f"v_mul_f32 v6, {fhex(-LOG2E)}, v4")
        A(f"v_mul_f32 v8, {fhex(-LOG2E)}, v5")
        for k in range(8):
            A(f"v_pk_fma_f32 v[{EP+2*k}:{EP+2*k+1}], v[{P+2*k}:{P+2*k+1}], s[56:57], v[6:7] op_sel_hi:[1,1,0]")
            A(f"v_pk_fma_f32 v[{P+2*k}:{P+2*k+1}], v[{P+2*k}:{P+2*k+1}], s[56:57], v[8:9] op_sel_hi:[1,1,0] neg_lo:[0,1,0] neg_hi:[0,1,0]")
        for k in range(16):
            A(f"v_exp_f32 v{EP+k}, v{EP+k}")
            A(f"v_exp_f32 v{P+k}, v{P+k}")
        if tt > 0:
            j = A.uid("K1_KVS")
            A("s_cmp_lg_u32 s51, 0"); A(f"s_cbranch_scc1 {j}")
            A("s_waitcnt lgkmcnt(0)")
            for l in kv_mfmas(tt-1): A(l)
            A.label(j)
        A(f"v_pk_add_f32 v[4:5], v[{EP}:{EP+1}], v[{EP+2}:{EP+3}]")
        A(f"v_pk_add_f32 v[6:7], v[{P}:{P+1}], v[{P+2}:{P+3}]")
        for k in range(2, 8):
            A(f"v_pk_add_f32 v[4:5], v[4:5], v[{EP+2*k}:{EP+2*k+1}]")
            A(f"v_pk_add_f32 v[6:7], v[6:7], v[{P+2*k}:{P+2*k+1}]")
        A("v_add_f32 v4, v4, v5")
        A("v_add_f32 v6, v6, v7")
        A.nop(2)
        A("v_permlane32_swap_b32 v4, v6")
        A("s_nop 0")
        A("v_add_f32 v4, v4, v6")
        A("v_rcp_f32 v4, v4")
        A("s_nop 0")
        A("v_mov_b32 v6, v4")
        A.nop(2)
        A("v_permlane32_swap_b32 v4, v6")
        A("s_nop 0")
        for k in range(8):
            A(f"v_pk_mul_f32 v[{EP+2*k}:{EP+2*k+1}], v[{EP+2*k}:{EP+2*k+1}], v[4:5] op_sel_hi:[1,0]")
            A(f"v_pk_mul_f32 v[{P+2*k}:{P+2*k+1}], v[{P+2*k}:{P+2*k+1}], v[6:7] op_sel_hi:[1,0]")
        j1 = A.uid("K1_T0"); j2 = A.uid("K1_TJ")
        A("s_cmp_eq_u32 s51, 0"); A(f"s_cbranch_scc1 {j1}")
        cvt_tile(A, PHQ + 16*tt, EP)
        cvt_tile(A, PHQ + 16*tt + 8, P)
        if tt == F1POS:
            A("s_waitcnt vmcnt(0)")
            set_flag(A, "s67")
            vstamp(A, cfg, 3, PV)
        A(f"s_branch {j2}")
        A.label(j1)
        cvt_tile(A, PH, EP)
        cvt_tile(A, PH + 8, P)
        for sign in range(2):
            for b in range(4):
                A(f"ds_write_b64 v24, v[{PH+8*sign+2*b}:{PH+8*sign+2*b+1}] offset:{sign*64+b*16}")
        for fb in range(2):
            for s in range(2):
                for sec in range(2):
                    af = AF + (fb*2+s)*4 + 2*sec
                    A(f"ds_read_b64_tr_b16 v[{af}:{af+1}], v25 offset:{(16*s+8*sec)*136 + fb*64}")
        A.label(j2)
    A("s_cmp_lg_u32 s51, 0")
    A("s_cbranch_scc1 KF_JOIN")
    A("s_waitcnt lgkmcnt(0)")
    for l in kv_mfmas(3): A(l)
    A(f"""
    s_lshl_b32 s47, s50, 13
    s_add_u32 s47, s47, {RED0}
    v_add_u32 v2, s47, v1
    v_and_b32 v3, 31, v0
    v_lshlrev_b32 v3, 2, v3
    s_lshl_b32 s47, s50, 8
    s_add_u32 s47, s47, {ZRED}
    v_add_u32 v3, s47, v3
    """)
    A.nop(8)
    A(f"ds_write_b32 v3, v{Z0}")
    A(f"ds_write_b32 v3, v{Z1} offset:128")
    for fb in range(2):
        kv = KV0 if fb == 0 else KV1
        for q in range(4):
            A(f"ds_write_b128 v2, v[{kv+4*q}:{kv+4*q+3}] offset:{fb*4096+q*1024}")
    A("s_branch KF_JOIN")
    A.label("K1_LOADER")
    srd(A, 16, 4, 2048*2048)
    srd(A, 20, 6, 1024*6144)
    srd(A, 24, 8, 1024*6144)
    A(f"""
    s_sub_u32 s50, s40, 4            ; w
    s_lshr_b32 s44, s50, 1
    s_cmp_eq_u32 s44, 0
    s_cselect_b32 s28, s6, s8
    s_cselect_b32 s29, s7, s9
    """)
    A(f"s_mov_b32 s30, {1024*6144}")
    A("s_mov_b32 s31, 0x00020000")
    srd(A, 36, 10, 32*2048)
    A(f"""
    v_lshrrev_b32 v1, 3, v0
    v_lshrrev_b32 v2, 4, v0
    v_and_b32 v3, 7, v0
    v_xor_b32 v3, v3, v2
    v_lshlrev_b32 v3, 4, v3
    v_lshl_add_u32 v4, v1, 11, v3
    s_lshl_b32 s47, s41, 8
    s_lshl_b32 s51, s50, 6
    s_add_u32 s47, s47, s51
    s_lshl_b32 s47, s47, 11          ; (r*256 + 64w)*2048
    v_add_u32 v4, s47, v4            ; piece 0
    v_xor_b32 v5, 64, v4
    v_add_u32 v5, 16384, v5
    v_add_u32 v6, 32768, v4
    v_add_u32 v7, 32768, v5
    v_add_u32 v12, 65536, v4
    v_add_u32 v13, 65536, v5
    v_add_u32 v14, 98304, v4
    v_add_u32 v15, 98304, v5
    v_lshrrev_b32 v1, 2, v0
    s_and_b32 s47, s50, 1
    s_lshl_b32 s47, s47, 4
    v_add_u32 v1, s47, v1            ; krow = 16*(w&1) + (l>>2)
    v_mul_u32_u24 v1, 6144, v1
    v_and_b32 v3, 3, v0
    v_lshl_add_u32 v1, v3, 4, v1
    s_lshl_b32 s47, s42, 6           ; 64h
    s_lshl_b32 s51, s44, 11          ; type*2048
    s_add_u32 s52, s47, s51
    v_add_u32 v9, s52, v1            ; seg1 : B.q / B.k
    s_sub_u32 s52, 2048, s51
    s_add_u32 s52, s52, s47
    v_add_u32 v8, s52, v1            ; seg0 : A.k / A.q
    s_add_u32 s52, s47, 4096
    v_add_u32 v10, s52, v1           ; seg2 : A.v / B.v
    v_lshlrev_b32 v11, 4, v0
    s_and_b32 s51, s50, 1
    s_lshl_b32 s51, s51, 10
    s_lshl_b32 s47, s42, 11
    s_add_u32 s47, s47, s51
    s_add_u32 m0, s51, {K1_WPHI}
    s_lshl_b32 s55, s50, 13          ; w*8192  (x pieces)
    buffer_load_dwordx4 v11, s[36:39], s47 offen lds
    s_lshl_b32 s51, s50, 10
    s_add_u32 s56, s51, {K1_WB}      ; W pieces : + w*1024
    s_mul_i32 s47, s45, {ROT}
    s_and_b32 s47, s47, 31
    s_lshl_b32 s58, s47, 6           ; soffset x
    s_mul_i32 s59, s47, {32*6144}    ; soffset W
    s_mov_b32 s60, 0                 ; block
    s_mov_b32 s61, s55               ; x slot
    s_mov_b32 s62, s56               ; W slot
    s_add_u32 s55, s55, {K1_XS*K1_NX}
    s_add_u32 s56, s56, {K1_SLOT*K1_NSLOT}
    K1_LLOOP:
    """)
    XV = [4, 5, 6, 7, 12, 13, 14, 15]
    def ld_x():
        for i in range(8):
            A(f"s_add_u32 m0, s61, {i*1024}")
            A("s_nop 0")
            A(f"buffer_load_dwordx4 v{XV[i]}, s[16:19], s58 offen lds")
        A(f"""
        s_add_u32 s58, s58, 128
        s_and_b32 s58, s58, 2047
        s_add_u32 s61, s61, {K1_XS}
        s_cmp_eq_u32 s61, s55
        s_cselect_b32 s47, {K1_XS*K1_NX}, 0
        s_sub_u32 s61, s61, s47
        """)
    def ld_w():
        for sg in range(3):
            A(f"s_add_u32 m0, s62, {sg*4096}")
            A("s_nop 0")
            A(f"buffer_load_dwordx4 v{8+sg}, s[{20+4*sg}:{23+4*sg}], s59 offen lds")
        A(f"""
        s_add_u32 s59, s59, {32*6144}
        s_cmp_eq_u32 s59, {1024*6144}
        s_cselect_b32 s59, 0, s59
        s_add_u32 s62, s62, {K1_SLOT}
        s_cmp_eq_u32 s62, s56
        s_cselect_b32 s47, {K1_SLOT*K1_NSLOT}, 0
        s_sub_u32 s62, s62, s47
        """)
    ld_x(); ld_w()
    A("""
    s_cmp_lt_u32 s60, 4
    s_cbranch_scc1 K1_LS1
    s_waitcnt vmcnt(14)
    s_barrier
    K1_LS1:
    """)
    ld_w()
    A("""
    s_cmp_lt_u32 s60, 2
    s_cbranch_scc1 K1_LS2
    s_waitcnt vmcnt(14)
    s_barrier
    K1_LS2:
    s_add_u32 s60, s60, 2
    s_cmp_lt_u32 s60, 32
    s_cbranch_scc1 K1_LLOOP
    s_waitcnt vmcnt(3)
    s_barrier
    s_waitcnt vmcnt(0)
    s_barrier
    """)
    srd(A, 36, 12, 2048)
    GX = 64
    A(f"""
    s_lshl_b32 s47, s41, 8
    s_lshl_b32 s51, s42, 3
    s_add_u32 s47, s47, s51
    s_lshl_b32 s51, s50, 1
    s_add_u32 s63, s47, s51          ; t0 = r*256 + h*8 + 2w
    s_lshl_b32 s51, s63, 11
    v_lshlrev_b32 v1, 5, v0
    buffer_load_dwordx4 v[32:35], v1, s[36:39], 0 offen
    buffer_load_dwordx4 v[36:39], v1, s[36:39], 0 offen offset:16
    """)
    for j in range(2):
        A(f"buffer_load_dwordx4 v[{GX+8*j}:{GX+8*j+3}], v1, s[16:19], s51 offen")
        A(f"buffer_load_dwordx4 v[{GX+8*j+4}:{GX+8*j+7}], v1, s[16:19], s51 offen offset:16")
        if j < 1: A("s_add_u32 s51, s51, 2048")
    A("""
    s_barrier
    s_barrier
    """)
    vstamp(A, cfg, 2, PV)
    for j in range(2): A(f"v_mov_b32 v{40+j}, 0")
    A("s_waitcnt vmcnt(0)")
    for k in range(8):
        for j in range(2):
            A(f"v_dot2c_f32_bf16 v{40+j}, v{GX+8*j+k}, v{32+k}")
        A("s_nop 1")
    A("v_lshlrev_b32 v3, 2, v0")
    A.nop(3)
    for mask in (1, 2, 4, 8, 16, 32):
        A(f"v_xor_b32 v4, {mask*4}, v3")
        for j in range(2): A(f"ds_bpermute_b32 v{5+j}, v4, v{40+j}")
        A("s_waitcnt lgkmcnt(0)")
        for j in range(2): A(f"v_add_f32 v{40+j}, v{40+j}, v{5+j}")
    A(f"v_cmp_eq_u32 vcc, 1, v0")
    A("s_nop 1")
    A(f"v_cndmask_b32 v40, v40, v41, vcc")
    A(f"""
    v_mul_f32 v40, {fhex(-LOG2E)}, v40
    v_exp_f32 v40, v40
    s_nop 0
    v_add_f32 v40, 1.0, v40
    v_rcp_f32 v40, v40
    s_lshl_b32 s47, s63, 2
    s_add_u32 s47, s47, {WS_G}
    s_mov_b64 exec, 3
    buffer_store_dword v40, v3, s[32:35], s47 offen sc1
    s_mov_b64 exec, -1
    """)
    setup_p2(A)
    setup_p3(A)
    A(f"""
    s_mov_b32 s85, s36
    s_mov_b32 s36, s86
    s_mov_b32 s37, s87
    s_mov_b32 s38, 256
    s_mov_b32 s39, 0x00020000
    v_mov_b32 v46, 0
    v_and_b32 v35, 15, v0
    v_lshlrev_b32 v35, 2, v35
    """)
    poll_issue(A, 47, 46, 36, "0")
    A("s_waitcnt vmcnt(0)")
    poll_check(A, 47, 46, 36, "0", "PG", expect="0x100")
    poll_issue(A, 47, 35, 32, "s78")
    A("s_waitcnt vmcnt(0)")
    poll_check(A, 47, 35, 32, "s78", "P1")
    vstamp(A, cfg, 3, PV)
    A(f"""
    v_lshlrev_b32 v3, 4, v0
    s_lshl_b32 s47, s50, 12          ; w*4096
    s_add_u32 m0, s47, {2*16384}
    s_lshl_b32 s51, s41, 1
    s_add_u32 s51, s51, 2
    s_and_b32 s51, s51, 15
    s_lshl_b32 s51, s51, 14
    s_add_u32 s51, s51, s47
    s_add_u32 s51, s51, s70
    """)
    for j in range(4):
        A(f"buffer_load_dwordx4 v3, s[32:35], s51 offen offset:{j*1024} sc1 lds")
    A("s_mov_b32 s36, s85")
    A.label("KF_JOIN")
    Q, K0, K1, V0, V1, SEL, NEGM, SA, SB, O, L, P = 8, 16, 20, 24, 28, 40, 48, 64, 80, 96, 112, 120
    PR = 33
    RD = 192
    if cfg.get("prof"): A(f"v_mov_b32 v{PR}, v{PV}")
    vstamp(A, cfg, 4, PR)
    A(f"""
    v_lshlrev_b32 v3, 4, v0          ; lane*16
    v_bfe_u32 v4, v0, 2, 1
    v_bfe_u32 v5, v0, 4, 1
    v_cmp_eq_u32 vcc, v4, v5
    v_mov_b32 v5, 0x3f803f80
    v_mov_b32 v4, 0
    v_cndmask_b32 v{SEL}, v4, v5, vcc
    v_cndmask_b32 v{SEL+1}, v4, v5, vcc
    v_cndmask_b32 v{SEL+2}, v4, v5, vcc
    v_cndmask_b32 v{SEL+3}, v4, v5, vcc
    s_lshl_b32 s47, s40, 11
    s_add_u32 s47, s47, {QST}
    v_add_u32 v6, s47, v3
    s_lshl_b32 s47, s40, 10
    s_add_u32 s47, s47, {RED0}
    v_add_u32 v7, s47, v3
    v_mov_b32 v1, v3                 ; cur
    v_add_u32 v2, 16384, v3          ; next
    """)
    for i in range(16): A(f"v_mov_b32 v{O+i}, 0")
    for i in range(4):
        A(f"v_mov_b32 v{L+i}, 0"); A(f"v_mov_b32 v{V1+i}, 0"); A(f"v_mov_b32 v{P+4+i}, 0")
    for i in (35, 36, 37, 38, 39, 45, 46): A(f"v_mov_b32 v{i}, 0")
    A(f"""
    s_mov_b32 s60, 0
    s_mov_b32 s61, 1
    s_waitcnt lgkmcnt(0)
    s_barrier
    """)
    vstamp(A, cfg, 5, PR)
    A(f"""
    ds_read_b128 v[{Q}:{Q+3}], v6
    ds_read_b128 v[{NEGM}:{NEGM+3}], v3
    ds_read_b128 v[{Q+4}:{Q+7}], v6 offset:1024
    ds_read_b128 v[{NEGM+4}:{NEGM+7}], v3 offset:1024
    ds_read_b128 v[{K0}:{K0+3}], v3 offset:4096
    ds_read_b128 v[{K1}:{K1+3}], v3 offset:{4096+1024}
    ds_read_b128 v[{V0}:{V0+3}], v3 offset:2048
    ds_read_b128 v[{RD}:{RD+3}], v7
    ds_read_b128 v[{RD+4}:{RD+7}], v7 offset:8192
    s_waitcnt lgkmcnt(7)
    v_mfma_f32_32x32x16_bf16 v[{SA}:{SA+15}], v[{NEGM}:{NEGM+3}], v[{Q}:{Q+3}], 0
    s_waitcnt lgkmcnt(5)
    v_mfma_f32_32x32x16_bf16 v[{SA}:{SA+15}], v[{NEGM+4}:{NEGM+7}], v[{Q+4}:{Q+7}], v[{SA}:{SA+15}]
    s_waitcnt lgkmcnt(3)
    v_mfma_f32_32x32x16_bf16 v[{SB}:{SB+15}], v[{K0}:{K0+3}], v[{Q}:{Q+3}], 0
    v_mfma_f32_32x32x16_bf16 v[{SB}:{SB+15}], v[{K1}:{K1+3}], v[{Q+4}:{Q+7}], v[{SB}:{SB+15}]
    s_waitcnt lgkmcnt(0)
    v_pk_add_f32 v[{RD}:{RD+1}], v[{RD}:{RD+1}], v[{RD+4}:{RD+5}]
    v_pk_add_f32 v[{RD+2}:{RD+3}], v[{RD+2}:{RD+3}], v[{RD+6}:{RD+7}]
    s_cmp_lg_u32 s40, 7
    buffer_store_dwordx4 v[{RD}:{RD+3}], v3, s[32:35], s79 offen sc1
    s_cbranch_scc1 KJ_NOZ
    v_lshlrev_b32 v4, 2, v0
    v_add_u32 v5, {ZRED}, v4
    ds_read_b32 v{RD+8}, v5
    ds_read_b32 v{RD+9}, v5 offset:256
    s_waitcnt lgkmcnt(0)
    v_add_f32 v{RD+8}, v{RD+8}, v{RD+9}
    buffer_store_dword v{RD+8}, v4, s[32:35], s89 offen sc1
    KJ_NOZ:
    """)
    A.nop(6)
    A(f"v_max3_f32 v4, v{SA}, v{SA+1}, v{SA+2}")
    A(f"v_max3_f32 v5, v{SA+3}, v{SA+4}, v{SA+5}")
    for k in range(6, 14, 4):
        A(f"v_max3_f32 v4, v4, v{SA+k}, v{SA+k+1}")
        A(f"v_max3_f32 v5, v5, v{SA+k+2}, v{SA+k+3}")
    A(f"v_max3_f32 v4, v4, v{SA+14}, v{SA+15}")
    for k in range(0, 16, 4):
        A(f"v_max3_f32 v4, v4, v{SB+k}, v{SB+k+1}")
        A(f"v_max3_f32 v5, v5, v{SB+k+2}, v{SB+k+3}")
    A("v_max_f32 v4, v4, v5")
    A("v_mov_b32 v5, v4")
    A.nop(2)
    A("v_permlane32_swap_b32 v4, v5")
    A("s_nop 0")
    A("v_max_f32 v4, v4, v5")
    A(f"v_add_f32 v4, {fhex(BIAS)}, v4")
    for i in range(16):
        A(f"v_sub_f32 v{NEGM+i}, 0, v4")
    for k in range(8):
        A(f"v_pk_add_f32 v[{SA+2*k}:{SA+2*k+1}], v[{SA+2*k}:{SA+2*k+1}], v[{NEGM}:{NEGM+1}]")
    vstamp(A, cfg, 6, PR)
    def dma_ops():
        a = ["s_mov_b32 m0, s72", "s_add_u32 s81, s70, s71", "s_add_u32 s72, s72, 16384",
             "buffer_load_dwordx4 v3, s[32:35], s81 offen sc1 lds"]
        b = ["buffer_load_dwordx4 v3, s[32:35], s81 offen offset:1024 sc1 lds",
             f"s_and_b32 s72, s72, {RING-1}", "s_add_u32 s71, s71, 16384", "s_and_b32 s71, s71, 0x3ffff"]
        return a, b
    def dma_chunk():
        a, b = dma_ops()
        for l in a + b: A(l)
    def tile(i, Sa, Sb, sideA=(), sideB=(), end=()):
        e = lambda k: f"v_exp_f32 v{Sa+k}, v{Sa+k}"
        c = lambda k: f"v_cvt_pk_bf16_f32 v{P+k}, v{Sa+2*k}, v{Sa+2*k+1}"
        QK0 = f"v_mfma_f32_32x32x16_bf16 v[{Sb}:{Sb+15}], v[{K0}:{K0+3}], v[{Q}:{Q+3}], v[{NEGM}:{NEGM+15}]"
        QK1 = f"v_mfma_f32_32x32x16_bf16 v[{Sb}:{Sb+15}], v[{K1}:{K1+3}], v[{Q+4}:{Q+7}], v[{Sb}:{Sb+15}]"
        PV0 = f"v_mfma_f32_32x32x16_bf16 v[{O}:{O+15}], v[{V0}:{V0+3}], v[{P}:{P+3}], v[{O}:{O+15}]"
        PV1 = f"v_mfma_f32_32x32x16_bf16 v[{O}:{O+15}], v[{V1}:{V1+3}], v[{P+4}:{P+7}], v[{O}:{O+15}]"
        L0 = f"v_mfma_f32_16x16x32_bf16 v[{L}:{L+3}], v[{SEL}:{SEL+3}], v[{P}:{P+3}], v[{L}:{L+3}]"
        L1 = f"v_mfma_f32_16x16x32_bf16 v[{L}:{L+3}], v[{SEL}:{SEL+3}], v[{P+4}:{P+7}], v[{L}:{L+3}]"
        W = "s_waitcnt lgkmcnt(3)"
        def addr(tt, fr):
            return (f"v1 offset:{tt*4096+fr*1024}" if tt < 4 else f"v2 offset:{(tt-4)*4096+fr*1024}")
        rK0 = f"ds_read_b128 v[{K0}:{K0+3}], {addr(i+2, 0)}"; rK1 = f"ds_read_b128 v[{K1}:{K1+3}], {addr(i+2, 1)}"
        rV0 = f"ds_read_b128 v[{V0}:{V0+3}], {addr(i+1, 2)}"; rV1 = f"ds_read_b128 v[{V1}:{V1+3}], {addr(i, 3)}"
        seq = [e(0), e(1), W, PV1, rV1, *sideA, e(2), e(3), e(4), e(5), W, QK0, rK0, e(6), e(7), c(0), c(1), L1, c(2), c(3), e(8), W, QK1, rK1,
               *sideB, e(9), e(10), e(11), W, PV0, rV0, e(12), e(13), e(14), L0, e(15), c(4), c(5), c(6), c(7), *end]
        for x in seq:
            if callable(x): x()
            else: A(x)
    def period(sides=None, dma=True):
        if dma: dma_chunk()
        for i in range(4):
            sa, sb, en = (sides or {}).get(i, ((), (), ()))
            tile(i, SA if i % 2 == 0 else SB, SB if i % 2 == 0 else SA, sa, sb, en)
        A(f"""
        v_mov_b32 v1, v2
        v_add_u32 v2, 16384, v2
        v_and_b32 v2, {RING-1}, v2
        """)
    A.label("K2_LOOP")
    period()
    A(f"""
    s_add_u32 s60, s60, 1
    s_cmp_lg_u32 s60, s61
    s_waitcnt vmcnt(2)
    s_barrier
    s_cbranch_scc1 K2_LOOP
    """)
    A(f"""
    s_cmp_eq_u32 s60, 1
    s_cbranch_scc1 KD_1
    s_cmp_eq_u32 s60, 3
    s_cbranch_scc1 KD_3
    s_cmp_eq_u32 s60, 4
    s_cbranch_scc1 KD_4
    s_branch KD_7
    KD_1:
    s_mov_b32 s61, 3
    """)
    set_flag(A, "s68")
    A(f"""
    s_branch K2_LOOP
    KD_3:
    v_lshlrev_b32 v46, 2, v0
    s_mov_b32 s61, 4
    """)
    poll_issue(A, 47, 46, 32, "s77")
    A("s_branch K2_LOOP")
    A.label("KD_4")
    vstamp(A, cfg, 7, PR)
    poll_check(A, 47, 46, 32, "s77", "PK")
    KVP = 192; ZP = 224
    A(f"""
    s_cmp_eq_u32 s40, 4
    s_cselect_b32 s84, 1, 0
    """)
    def kvload(rr):
        def f():
            A(f"buffer_load_dwordx4 v[{KVP+4*rr}:{KVP+4*rr+3}], v3, s[32:35], s75 offen sc1")
            A("s_add_u32 s75, s75, 8192")
        return f
    def zload(rr):
        def f():
            j = A.uid("KZ")
            A("s_cmp_eq_u32 s84, 0"); A(f"s_cbranch_scc1 {j}")
            A(f"buffer_load_dword v{ZP+rr}, v46, s[32:35], s76 offen offset:{256*rr} sc1")
            A(f"buffer_load_dword v{ZP+rr+1}, v46, s[32:35], s76 offen offset:{256*rr+256} sc1")
            A.label(j)
        return f
    period({i: ((kvload(2*i),), (kvload(2*i+1),), (zload(2*i),)) for i in range(4)})
    A("s_waitcnt vmcnt(10)")
    A("s_barrier")
    def kvsum():
        A("s_waitcnt vmcnt(2)")
        A(f"""
        s_lshr_b32 s47, s40, 1
        s_lshl_b32 s47, s47, 10
        s_and_b32 s38, s40, 1
        s_lshl_b32 s38, s38, 3
        s_add_u32 s47, s47, s38
        s_add_u32 s47, s47, {KVT_L}
        v_add_u32 v4, s47, v3
        """)
        b = KVP
        for rr in range(1, 8):
            A(f"v_pk_add_f32 v[{b}:{b+1}], v[{b}:{b+1}], v[{b+4*rr}:{b+4*rr+1}]")
            A(f"v_pk_add_f32 v[{b+2}:{b+3}], v[{b+2}:{b+3}], v[{b+4*rr+2}:{b+4*rr+3}]")
        A(f"v_cvt_pk_bf16_f32 v{b}, v{b}, v{b+1}")
        A(f"v_cvt_pk_bf16_f32 v{b+1}, v{b+2}, v{b+3}")
        A(f"ds_write_b64 v4, v[{b}:{b+1}]")
        j = A.uid("KZS")
        A("s_cmp_eq_u32 s84, 0"); A(f"s_cbranch_scc1 {j}")
        for rr in range(1, 8):
            A(f"v_add_f32 v{ZP}, v{ZP}, v{ZP+rr}")
        A(f"""
        v_lshlrev_b32 v5, 1, v0
        v_add_u32 v5, {Z_L}, v5
        v_cvt_pk_bf16_f32 v{ZP}, v{ZP}, v{ZP}
        ds_write_b16 v5, v{ZP}
        """)
        A.label(j)
    period({1: ((), (), (kvsum,))})
    A(f"""
    s_barrier
    s_mov_b32 s60, 6
    s_mov_b32 s61, 7
    s_and_b32 s47, s40, 5
    s_cmp_lg_u32 s47, 1
    s_cbranch_scc1 K2_LOOP
    """)
    KVT, ZR, NUM, DEN, OA = 192, 208, 224, 240, 244
    A(f"""
    v_add_u32 v4, {KVT_L}, v3
    v_lshrrev_b32 v5, 5, v0
    v_lshlrev_b32 v5, 3, v5
    v_add_u32 v5, {Z_L}, v5          ; Z + hh*8
    """)
    for s in range(4):
        A(f"ds_read_b128 v[{KVT+4*s}:{KVT+4*s+3}], v4 offset:{s*1024}")
        A(f"ds_read_b64 v[{ZR+4*s}:{ZR+4*s+1}], v5 offset:{32*s}")
        A(f"ds_read_b64 v[{ZR+4*s+2}:{ZR+4*s+3}], v5 offset:{32*s+16}")
    def zmask():
        A("v_bfe_u32 v4, v0, 2, 1")
        A("v_bfe_u32 v5, v0, 4, 1")
        A("v_cmp_eq_u32 vcc, v4, v5")
        A("v_mov_b32 v4, 0")
        A("s_nop 0")
        for k in range(16): A(f"v_cndmask_b32 v{ZR+k}, v4, v{ZR+k}, vcc")
    def amfma(t):
        def f():
            for s in range(4):
                c = "0" if s == 0 else f"v[{NUM}:{NUM+15}]"
                A(f"v_mfma_f32_32x32x16_bf16 v[{NUM}:{NUM+15}], v[{KVT+4*s}:{KVT+4*s+3}], v[{PHQ+16*t+4*s}:{PHQ+16*t+4*s+3}], {c}")
                c = "0" if s == 0 else f"v[{DEN}:{DEN+3}]"
                A(f"v_mfma_f32_16x16x32_bf16 v[{DEN}:{DEN+3}], v[{ZR+4*s}:{ZR+4*s+3}], v[{PHQ+16*t+4*s}:{PHQ+16*t+4*s+3}], {c}")
        return f
    def afin():
        A(f"v_add_f32 v4, {fhex(1e-6)}, v{DEN}")
        A("v_rcp_f32 v4, v4")
        A("s_nop 0")
        for k in range(8):
            A(f"v_pk_mul_f32 v[{NUM+2*k}:{NUM+2*k+1}], v[{NUM+2*k}:{NUM+2*k+1}], v[4:5] op_sel_hi:[1,0]")
        cvt_tile(A, OA, NUM)
        A(f"buffer_store_dwordx4 v[{OA}:{OA+3}], v3, s[32:35], s74 offen sc1")
        A(f"buffer_store_dwordx4 v[{OA+4}:{OA+7}], v3, s[32:35], s74 offen offset:1024 sc1")
        A("s_add_u32 s74, s74, 65536")
    period({0: ((), (), (zmask, amfma(0))), 1: ((), (), (afin, amfma(1))), 2: ((), (), (afin, amfma(2))), 3: ((), (), (afin, amfma(3)))})
    A.nop(12)
    afin()
    A(f"""
    s_waitcnt vmcnt(10)
    s_barrier
    """)
    A.label("KD_7")
    A(f"""
    s_mov_b32 s60, 7
    v_and_b32 v45, 31, v0
    v_lshlrev_b32 v45, 2, v45        ; (l&31)*4
    v_lshlrev_b32 v35, 2, v0         ; lane*4
    v_lshrrev_b32 v4, 3, v0
    v_lshlrev_b32 v5, 11, v4         ; row*2048
    v_and_b32 v7, 7, v0
    v_bfe_u32 v6, v0, 4, 1
    v_lshlrev_b32 v6, 2, v6
    v_xor_b32 v7, v7, v6
    v_lshl_add_u32 v5, v7, 4, v5
    s_lshl_b32 s47, s18, 9
    s_lshl_b32 s38, s19, 4
    s_add_u32 s47, s47, s38
    s_lshl_b32 s47, s47, 11
    s_lshl_b32 s38, s17, 7
    s_add_u32 s47, s47, s38          ; + C*128
    v_add_u32 v36, s47, v5           ; piece 0
    v_add_u32 v37, {16384 - 1024}, v36
    v_lshrrev_b32 v7, 5, v0          ; hh
    v_bfe_u32 v6, v0, 2, 2           ; i>>2
    v_lshl_add_u32 v7, v7, 2, v6
    v_lshlrev_b32 v7, 7, v7
    v_bfe_u32 v6, v0, 4, 1
    v_bfe_u32 v5, v0, 1, 1
    v_lshl_add_u32 v6, v6, 1, v5
    v_bfe_u32 v5, v0, 3, 1
    v_lshlrev_b32 v5, 2, v5
    v_xor_b32 v6, v6, v5
    v_lshl_add_u32 v7, v6, 4, v7
    v_and_b32 v5, 1, v0
    v_lshl_add_u32 v7, v5, 3, v7
    s_lshl_b32 s38, s18, 13
    v_add_u32 v38, s38, v7           ; cb=0
    v_xor_b32 v39, 64, v38           ; cb=1
    s_add_u32 s80, s30, {WSL(0)}
    """)
    def wo_ops(m0src):
        a = [m0src, "s_nop 0", "buffer_load_dwordx4 v36, s[20:23], s29 offen lds"]
        b = ["buffer_load_dwordx4 v37, s[20:23], s29 offen offset:1024 lds", f"s_add_u32 s29, s29, {64*2048}"]
        return a, b
    A.label("K2_LOOPB")
    wa, wb = wo_ops("s_mov_b32 m0, s80")
    wb = wb + ["s_add_u32 s80, s80, 16384"]
    ca, cb_ = dma_ops()
    period({0: (tuple(wa), tuple(wb), ()), 1: (tuple(wa), tuple(wb), ()), 2: (tuple(ca), tuple(cb_), ())}, dma=False)
    A(f"""
    s_add_u32 s60, s60, 1
    s_cmp_eq_u32 s60, 10
    s_waitcnt vmcnt(6)
    s_barrier
    s_cbranch_scc1 KB_10
    s_cmp_eq_u32 s60, 9
    s_cbranch_scc1 KB_9
    s_and_b32 s47, s40, 5
    s_cmp_lg_u32 s47, 1
    s_cbranch_scc1 K2_LOOPB
    """)
    set_flag(A, "s88")
    A("s_branch K2_LOOPB")
    A.label("KB_9")
    poll_issue(A, 47, 35, 32, "s36")
    A("s_branch K2_LOOPB")
    A.label("KB_10")
    vstamp(A, cfg, 8, PR)
    poll_check(A, 47, 35, 32, "s36", "PA")
    G, OMG = 32, 34
    OF = 128
    vm = VM(A, ["W4", "W4", "W5", "W5", "c12", "c12"])
    vm.now("G", f"buffer_load_dword v{G}, v45, s[32:35], s31 offen sc1")
    nld = [0]
    def oload():
        k = nld[0]; nld[0] += 1
        s, j = divmod(k, 4)
        r = OF + 16*s + 4*j
        def f():
            vm.now("o", f"buffer_load_dwordx4 v[{r}:{r+3}], v3, s[32:35], s28 offen offset:{j*1024} sc1")
            if j == 3: A("s_add_u32 s28, s28, 4096")
        return f
    def lines(tag, ls):
        def f():
            for l in ls:
                if l.startswith("buffer_"): vm.now(tag, l)
                else: A(l)
        return f
    for n in range(10, 16):
        sides = {}
        if n <= 12:
            a, b = dma_ops()
            sides[0] = ((lines(f"c{n+3}", a),), (lines(f"c{n+3}", b),), (oload(),))
            sides[1] = ((oload(),), (oload(),), ())
            sides[2] = ((oload(),), (oload(),), ())
            sides[3] = ((oload(),), (), ())
        elif n <= 14:
            a, b = wo_ops(f"s_add_u32 m0, s30, {WSL(n - 7)}")
            sides[0] = ((lines("W", a),), (lines("W", b),), (oload(),))
            sides[1] = ((oload(),), (oload(),), ())
            sides[2] = ((oload(),), (), ())
            sides[3] = ((oload(),), (), ())
        else:
            sides[0] = ((oload(),), (oload(),), ())
            sides[1] = ((oload(),), (oload(),), ())
        period(sides, dma=False)
        if n <= 13:
            vm.wait(f"c{n+2}")
            A("s_barrier")
        if n == 12: vstamp(A, cfg, 9, PR)
    assert nld[0] == 32
    A(f"""
    s_mov_b32 s60, 16
    s_waitcnt lgkmcnt(0)
    v_mfma_f32_32x32x16_bf16 v[{O}:{O+15}], v[{V1}:{V1+3}], v[{P+4}:{P+7}], v[{O}:{O+15}]
    v_mfma_f32_16x16x32_bf16 v[{L}:{L+3}], v[{SEL}:{SEL+3}], v[{P+4}:{P+7}], v[{L}:{L+3}]
    """)
    vstamp(A, cfg, 10, PR)
    A("v_lshlrev_b32 v45, 3, v0")
    A.nop(12)
    A.label("K2_FIN")
    A(f"v_rcp_f32 v4, v{L}")
    A("s_nop 0")
    for k in range(8):
        A(f"v_pk_mul_f32 v[{O+2*k}:{O+2*k+1}], v[{O+2*k}:{O+2*k+1}], v[4:5] op_sel_hi:[1,0]")
    A("v_mov_b32 v6, 0")
    for k in range(16):
        A(f"v_fma_f32 v6, v{O+k}, 0, v6")
    A(f"""
    v_mov_b32 v7, {fhex(2.0**120)}
    v_cmp_u_f32 vcc, v6, v6
    v_cmp_nlt_f32 s[62:63], v{L}, v7
    s_or_b64 vcc, vcc, s[62:63]
    """)
    if cfg.get("force_fb"):
        A("s_mov_b64 vcc, -1")
    A(f"""
    s_cmp_eq_u32 s60, 16
    s_cselect_b64 vcc, vcc, 0
    s_cbranch_vccnz K2_FB
    """)
    for i in range(8):
        A(f"v_cvt_pk_bf16_f32 v{P+i}, v{O+2*i}, v{O+2*i+1}")
    A(f"buffer_store_dwordx4 v[{P}:{P+3}], v3, s[32:35], s73 offen sc1")
    A(f"buffer_store_dwordx4 v[{P+4}:{P+7}], v3, s[32:35], s73 offen offset:1024 sc1")
    A("s_waitcnt vmcnt(2)")
    A("s_barrier")
    vstamp(A, cfg, 11, PR)
    WFJ = [16, 24, 48, 56]
    ACCA, ACCB = 64, 96
    def waddr(s):
        A(f"v_add_u32 v40, {WSL(s)}, v38")
        A(f"v_add_u32 v41, {WSL(s)}, v39")
    def wreads(j):
        for cb in range(2):
            for sec in range(2):
                r = WFJ[j] + 4*cb + 2*sec
                A(f"ds_read_b64_tr_b16 v[{r}:{r+1}], v{40+cb} offset:{(16*j+8*sec)*128}")
    def gemm(acc_, after, owait):
        waddr(0)
        for j in range(4): wreads(j)
        for s in range(8):
            last = s == 7
            for j in range(4):
                if owait: A(f"s_waitcnt vmcnt({31 - (4*s + j)})")
                for cb in range(2):
                    n = (14 - 2*cb) if not last else (14 - 4*j - 2*cb)
                    A(f"s_waitcnt lgkmcnt({n})")
                    w = WFJ[j] + 4*cb; o = OF + 16*s + 4*j; a = acc_ + 16*cb
                    c = "0" if (s == 0 and j == 0) else f"v[{a}:{a+15}]"
                    A(f"v_mfma_f32_32x32x16_bf16 v[{a}:{a+15}], v[{w}:{w+3}], v[{o}:{o+3}], {c}")
                if not last:
                    if j == 0: waddr(s + 1)
                    wreads(j)
            if s in after: after[s]()
    def refill(s0):
        for s in range(s0, s0 + 4):
            a, b = wo_ops(f"s_add_u32 m0, s30, {WSL(s)}")
            for l in a + b: A(l)
    def a_flag():
        A("s_waitcnt vmcnt(0)")
        set_flag(A, "s69")
    def a_mid():
        A("s_barrier")
        A("""
        s_mov_b32 s20, s6
        s_mov_b32 s21, s7
        s_mov_b32 s29, 0
        """)
        refill(0)
    def a_poll():
        poll_issue(A, 46, 45, 32, "s83", n=2)
    FBPOS = int(cfg.get("fbpos", 2))
    gemm(ACCA, {FBPOS: a_flag, 3: a_mid, 5: a_poll}, False)
    A("s_barrier")
    refill(4)
    vstamp(A, cfg, 12, PR)
    A("s_waitcnt vmcnt(8)")
    poll_check(A, 46, 45, 32, "s83", "PB", n=2)
    A(f"s_add_u32 s28, s28, {4*MB - 32768}")
    for s in range(8):
        for j in range(4):
            r = OF + 16*s + 4*j
            A(f"buffer_load_dwordx4 v[{r}:{r+3}], v3, s[32:35], s28 offen offset:{j*1024} sc1")
        A("s_add_u32 s28, s28, 4096")
    A("s_waitcnt vmcnt(31)")
    A("s_barrier")
    gemm(ACCB, {}, True)
    vstamp(A, cfg, 13, PR)
    A(f"""
    v_sub_f32 v{OMG}, 1.0, v{G}
    v_and_b32 v4, 31, v0
    s_lshl_b32 s38, s19, 5
    v_add_u32 v4, s38, v4
    v_mul_u32_u24 v4, {K3_ROW}, v4
    v_lshrrev_b32 v5, 5, v0
    v_lshl_add_u32 v4, v5, 4, v4
    s_mul_i32 s38, s18, {K3_RED}
    v_add_u32 v4, s38, v4
    s_lshl_b32 s38, s40, 6
    v_add_u32 v10, s38, v0           ; tid
    v_lshrrev_b32 v5, 3, v10
    v_and_b32 v6, 7, v10             ; chunk
    v_mul_u32_u24 v7, {K3_ROW}, v5
    v_lshl_add_u32 v7, v6, 5, v7
    s_lshl_b32 s38, s16, 7
    v_add_u32 v5, s38, v5
    v_lshlrev_b32 v5, 11, v5
    v_lshl_add_u32 v5, v6, 4, v5
    s_lshl_b32 s38, s17, 7
    v_add_u32 v5, s38, v5
    """)
    for k in range(16):
        A(f"v_pk_mul_f32 v[{ACCA+2*k}:{ACCA+2*k+1}], v[{ACCA+2*k}:{ACCA+2*k+1}], v[{G}:{G+1}] op_sel_hi:[1,0]")
    A("s_barrier")
    srd(A, 24, 8, 4194304)
    A.nop(4)
    for k in range(16):
        A(f"v_pk_fma_f32 v[{ACCA+2*k}:{ACCA+2*k+1}], v[{ACCB+2*k}:{ACCB+2*k+1}], v[{OMG}:{OMG+1}], v[{ACCA+2*k}:{ACCA+2*k+1}] op_sel_hi:[1,0,1]")
    for cb in range(2):
        for q in range(4):
            r = ACCA + 16*cb + 4*q
            A(f"ds_write_b128 v4, v[{r}:{r+3}] offset:{cb*128 + q*32}")
    A("s_waitcnt lgkmcnt(0)")
    A("s_barrier")
    R = 128
    for it in range(2):
        for g in range(2):
            for hf in range(2):
                r = R + 16*it + 8*g + 4*hf
                A(f"ds_read_b128 v[{r}:{r+3}], v7 offset:{it*64*K3_ROW + g*K3_RED + hf*16}")
    for it in range(2):
        A(f"s_waitcnt lgkmcnt({4 - 4*it})")
        r = R + 16*it
        for k in range(4):
            A(f"v_pk_add_f32 v[{r+2*k}:{r+2*k+1}], v[{r+2*k}:{r+2*k+1}], v[{r+8+2*k}:{r+8+2*k+1}]")
        for k in range(4):
            A(f"v_cvt_pk_bf16_f32 v{r+k}, v{r+2*k}, v{r+2*k+1}")
        A(f"buffer_store_dwordx4 v[{r}:{r+3}], v5, s[24:27], 0 offen {cfg.get('ost', 'nt').replace('+', ' ')}")
        if it == 0: A(f"v_add_u32 v5, {64*2048}, v5")
    if cfg.get("prof"):
        A("s_waitcnt vmcnt(0)")
        vstamp(A, cfg, 14, PR)
        A(f"""
        s_mov_b32 s92, s14
        s_mov_b32 s93, s15
        s_mov_b32 s94, {64*MB}
        s_mov_b32 s95, 0x00020000
        s_lshl_b32 s90, s2, 3
        s_add_u32 s90, s90, s40
        s_lshl_b32 s90, s90, 7
        s_add_u32 s90, s90, {WS_PROFV}
        v_lshlrev_b32 v1, 2, v0
        s_mov_b64 exec, 0xffffffff
        buffer_store_dword v{PR}, v1, s[92:95], s90 offen
        """)
    A("s_endpgm")
    A.label("K2_FB")
    vstamp(A, cfg, 15, PR)
    A("s_mov_b32 s60, 17")
    A("s_mov_b32 s61, 0")
    for i in range(16): A(f"v_mov_b32 v{O+i}, 0")
    for i in range(4): A(f"v_mov_b32 v{L+i}, 0")
    A(f"v_mov_b32 v44, 0xff800000")
    A.label("K2_FBL")
    A(f"""
    buffer_load_dwordx4 v[{K0}:{K0+3}], v3, s[32:35], s70 offen sc1
    buffer_load_dwordx4 v[{K1}:{K1+3}], v3, s[32:35], s70 offen offset:1024 sc1
    buffer_load_dwordx4 v[{V0}:{V0+3}], v3, s[32:35], s70 offen offset:2048 sc1
    buffer_load_dwordx4 v[{V1}:{V1+3}], v3, s[32:35], s70 offen offset:3072 sc1
    s_add_u32 s70, s70, 4096
    s_waitcnt vmcnt(0)
    v_mfma_f32_32x32x16_bf16 v[{SA}:{SA+15}], v[{K0}:{K0+3}], v[{Q}:{Q+3}], 0
    v_mfma_f32_32x32x16_bf16 v[{SA}:{SA+15}], v[{K1}:{K1+3}], v[{Q+4}:{Q+7}], v[{SA}:{SA+15}]
    """)
    A.nop(12)
    A(f"v_max3_f32 v4, v{SA}, v{SA+1}, v{SA+2}")
    for k in range(3, 15, 2):
        A(f"v_max3_f32 v4, v4, v{SA+k}, v{SA+k+1}")
    A(f"v_max3_f32 v4, v4, v{SA+15}, v44")
    A("v_mov_b32 v5, v4")
    A.nop(2)
    A("v_permlane32_swap_b32 v4, v5")
    A("s_nop 0")
    A("v_max_f32 v4, v4, v5")
    A("v_sub_f32 v5, v44, v4")
    A("v_exp_f32 v5, v5")
    A("v_mov_b32 v44, v4")
    for k in range(16):
        A(f"v_sub_f32 v{SA+k}, v{SA+k}, v4")
    for k in range(16):
        A(f"v_exp_f32 v{SA+k}, v{SA+k}")
    for k in range(16):
        A(f"v_mul_f32 v{O+k}, v{O+k}, v5")
    for k in range(4):
        A(f"v_mul_f32 v{L+k}, v{L+k}, v5")
    for k in range(8):
        A(f"v_cvt_pk_bf16_f32 v{P+k}, v{SA+2*k}, v{SA+2*k+1}")
    A("s_nop 1")
    A(f"""
    v_mfma_f32_32x32x16_bf16 v[{O}:{O+15}], v[{V0}:{V0+3}], v[{P}:{P+3}], v[{O}:{O+15}]
    v_mfma_f32_16x16x32_bf16 v[{L}:{L+3}], v[{SEL}:{SEL+3}], v[{P}:{P+3}], v[{L}:{L+3}]
    v_mfma_f32_32x32x16_bf16 v[{O}:{O+15}], v[{V1}:{V1+3}], v[{P+4}:{P+7}], v[{O}:{O+15}]
    v_mfma_f32_16x16x32_bf16 v[{L}:{L+3}], v[{SEL}:{SEL+3}], v[{P+4}:{P+7}], v[{L}:{L+3}]
    s_add_u32 s61, s61, 1
    s_cmp_lt_u32 s61, 64
    """)
    A.nop(12)
    A("s_cbranch_scc1 K2_FBL")
    A("s_branch K2_FIN")
    A.label("KF_END")
    A("s_endpgm")
    return K, KG_LDS
```

```python
from common import *

KNAME = NAME + "_kernel"
K1_XS = 32768
K1_NX = 3
K1_WB = K1_XS * K1_NX
K1_SLOT = 12288
K1_NSLOT = 5
K1_WPHI = K1_WB + K1_SLOT * K1_NSLOT
K1_TBUF = 4352
RING = 65536
QST = 65536
TBUF0 = 81920
RED0 = 98304
ZRED = 114688
KVT_L = 116736
Z_L = 120832
KG_LDS = 163840
def WSL(s): return 65536 + 16384 * s if s < 6 else 16384 * (s - 6)
WS_F1 = WS_FLAG
WS_FK = WS_FLAG + 4096
WS_FA = WS_FLAG + 16384
WS_FB = WS_FLAG + 20480
BIAS = 80.0
K3_ROW = 272
K3_RED = 128 * K3_ROW
SPIN_MAX = 1 << 16
WS_PROFV = WS_PROF

def cvt_tile(A, dst, src):
    for i in range(8):
        A(f"v_cvt_pk_bf16_f32 v{dst+i}, v{src+2*i}, v{src+2*i+1}")

def bstamp(A, cfg, kind, reg=33):
    if cfg.get("prof") == "2":
        A("s_memtime s[96:97]")
        A(f"s_add_u32 m0, s100, {16*kind}")
        A("s_waitcnt lgkmcnt(0)")
        A(f"v_writelane_b32 v{reg}, s96, m0")
        if kind == 2: A("s_add_u32 s100, s100, 1")

def pbar(A, cfg, wait):
    bstamp(A, cfg, 0)
    if callable(wait): wait()
    elif wait: A(wait)
    bstamp(A, cfg, 1)
    A("s_barrier")
    bstamp(A, cfg, 2)

def vstamp(A, cfg, i, reg):
    if cfg.get("prof") == "1":
        A("s_memtime s[96:97]")
        A("s_memrealtime s[98:99]")
        A("s_waitcnt lgkmcnt(0)")
        A(f"v_writelane_b32 v{reg}, s96, {2*i}")
        A(f"v_writelane_b32 v{reg}, s98, {2*i+1}")

def poll_issue(A, vdst, vaddr, srd, soff, n=1):
    if n == 1: A(f"buffer_load_dword v{vdst}, v{vaddr}, s[{srd}:{srd+3}], {soff} offen sc1")
    else:      A(f"buffer_load_dwordx2 v[{vdst}:{vdst+1}], v{vaddr}, s[{srd}:{srd+3}], {soff} offen sc1")

def poll_check(A, vdst, vaddr, srd, soff, tag, expect=1, n=1):
    ok = A.uid(tag + "_OK"); sp = A.uid(tag + "_SP")
    def test():
        if n == 2: A(f"v_and_b32 v{vdst}, v{vdst}, v{vdst+1}")
        A(f"v_cmp_eq_u32 vcc, {expect}, v{vdst}")
        A("s_cmp_eq_u64 vcc, -1")
        A(f"s_cbranch_scc1 {ok}")
    test()
    A("s_mov_b32 s82, 0")
    A.label(sp)
    A("s_sleep 2")
    poll_issue(A, vdst, vaddr, srd, soff, n)
    A("s_add_u32 s82, s82, 1")
    A("s_waitcnt vmcnt(0)")
    test()
    A(f"s_cmp_lt_u32 s82, {SPIN_MAX}")
    A(f"s_cbranch_scc1 {sp}")
    A.label(ok)

def set_flag(A, soff):
    A(f"""
    s_mov_b64 exec, 1
    v_mov_b32 v4, 1
    v_mov_b32 v5, 0
    buffer_store_dword v4, v5, s[32:35], {soff} offen sc1
    s_mov_b64 exec, -1
    """)

class VM:
    def __init__(s, A, init=()): s.A = A; s.q = list(init)
    def op(s, tag, text):
        def f(): s.A(text); s.q.append(tag)
        return f
    def now(s, tag, text): s.op(tag, text)()
    def wait(s, *tags):
        idx = max([k for k, t in enumerate(s.q) if t in tags], default=-1)
        if idx < 0: return
        s.A(f"s_waitcnt vmcnt({len(s.q) - 1 - idx})")
        s.q = s.q[idx+1:]

def setup_p2(A):
    A(f"""
    s_lshl_b32 s70, s42, 18
    s_add_u32 s70, s70, {WS_KVB}
    s_lshl_b32 s47, s41, 1
    s_add_u32 s47, s47, 3
    s_and_b32 s47, s47, 15
    s_lshl_b32 s47, s47, 14
    s_lshl_b32 s38, s40, 11
    s_add_u32 s71, s47, s38
    s_add_u32 s72, s38, {3*16384}
    s_lshl_b32 s47, s41, 3
    s_add_u32 s47, s47, s40
    s_lshl_b32 s47, s47, 5
    s_add_u32 s47, s47, s42
    s_lshl_b32 s73, s47, 11
    s_add_u32 s73, s73, {WS_OB}
    s_lshr_b32 s39, s40, 1
    s_and_b32 s39, s39, 1            ; th
    s_lshl_b32 s47, s41, 3
    s_lshl_b32 s38, s39, 2
    s_add_u32 s47, s47, s38          ; r*8 + th*4
    s_lshl_b32 s47, s47, 5
    s_add_u32 s47, s47, s42
    s_lshl_b32 s74, s47, 11
    s_add_u32 s74, s74, {WS_OA}
    s_lshl_b32 s75, s42, 16
    s_lshl_b32 s47, s40, 10
    s_add_u32 s75, s75, s47
    s_add_u32 s75, s75, {WS_KVP}
    s_lshl_b32 s47, s41, 13
    s_add_u32 s79, s75, s47
    s_lshl_b32 s76, s42, 11
    s_add_u32 s76, s76, {WS_ZP}
    s_lshl_b32 s47, s41, 8
    s_add_u32 s89, s76, s47
    s_lshl_b32 s77, s42, 8
    s_add_u32 s77, s77, {WS_FK}
    s_lshl_b32 s47, s41, 5
    s_add_u32 s68, s77, s47
    s_lshl_b32 s47, s40, 2
    s_add_u32 s68, s68, s47
    s_lshl_b32 s78, s42, 6
    s_add_u32 s78, s78, {WS_F1}      ; F1 line
    s_lshl_b32 s47, s41, 3
    s_add_u32 s67, s78, s47
    s_lshl_b32 s38, s39, 2
    s_add_u32 s67, s67, s38
    s_lshl_b32 s88, s41, 8
    s_lshl_b32 s47, s42, 3
    s_add_u32 s88, s88, s47
    s_add_u32 s88, s88, s38
    s_add_u32 s88, s88, {WS_FA}
    s_lshl_b32 s47, s41, 1
    s_lshr_b32 s38, s40, 2
    s_add_u32 s47, s47, s38
    s_lshl_b32 s69, s47, 9
    s_lshl_b32 s47, s42, 4
    s_add_u32 s69, s69, s47
    s_and_b32 s47, s40, 3
    s_lshl_b32 s47, s47, 2
    s_add_u32 s69, s69, s47
    s_add_u32 s69, s69, {WS_FB}
    """)

def setup_p3(A):
    A(f"""
    s_load_dwordx2 s[4:5], s[0:1], 24
    s_load_dwordx2 s[6:7], s[0:1], 48
    s_load_dwordx2 s[8:9], s[0:1], 64
    s_lshr_b32 s16, s45, 1
    s_lshl_b32 s16, s16, 2
    s_lshr_b32 s47, s46, 3
    s_add_u32 s16, s16, s47          ; T = 4*(e>>1) + (i>>3)
    s_and_b32 s17, s45, 1
    s_lshl_b32 s17, s17, 3
    s_and_b32 s47, s46, 7
    s_add_u32 s17, s17, s47          ; C = 8*(e&1) + (i&7)
    s_lshr_b32 s18, s40, 2           ; grp
    s_and_b32 s19, s40, 3            ; tq
    s_lshl_b32 s47, s16, 2
    s_add_u32 s47, s47, s19          ; tb3
    s_lshl_b32 s28, s47, 16
    s_lshl_b32 s38, s18, 15
    s_add_u32 s28, s28, s38
    s_add_u32 s28, s28, {WS_OA}
    s_lshl_b32 s31, s47, 7
    s_add_u32 s31, s31, {WS_G}       ; g offset
    s_lshr_b32 s47, s16, 1
    s_lshl_b32 s36, s47, 8
    s_add_u32 s36, s36, {WS_FA}
    s_lshl_b32 s83, s16, 9
    s_add_u32 s83, s83, {WS_FB}
    s_lshl_b32 s30, s18, 13
    s_lshl_b32 s38, s19, 11
    s_add_u32 s30, s30, s38
    s_mov_b32 s29, 0
    s_waitcnt lgkmcnt(0)
    s_mov_b32 s20, s4
    s_mov_b32 s21, s5
    s_mov_b32 s22, {1024*2048}
    s_mov_b32 s23, 0x00020000
    """)

def gen_kg(A, cfg):
    K = KNAME
    F1POS = int(cfg.get("f1pos", 2))
    ROT = int(cfg.get("rot", 12))
    RSH = int(cfg.get("rsh", 0))
    ROT2 = int(cfg.get("rot2", 0))
    PV = 255
    kernel_begin(A, K)
    A(f"""
    s_cmp_ge_u32 s2, 256
    s_cbranch_scc1 KF_END
    s_load_dwordx2 s[4:5], s[0:1], 0
    s_load_dwordx2 s[6:7], s[0:1], 8
    s_load_dwordx2 s[8:9], s[0:1], 40
    s_load_dwordx2 s[10:11], s[0:1], 16
    s_load_dwordx2 s[12:13], s[0:1], 56
    s_load_dwordx2 s[14:15], s[0:1], 80
    s_load_dwordx2 s[86:87], s[0:1], 72
    v_lshrrev_b32 v1, 6, v0
    v_and_b32 v0, 63, v0
    v_readfirstlane_b32 s40, v1
    s_and_b32 s45, s2, 7
    s_lshr_b32 s46, s2, 3
    """)
    if cfg.get("prof"): A(f"v_mov_b32 v{PV}, 0")
    vstamp(A, cfg, 0, PV)
    if cfg.get("prof") == "4":
        A("s_memrealtime s[96:97]")
        A("s_waitcnt lgkmcnt(0)")
        A(f"v_writelane_b32 v{PV}, s96, 40")
    if cfg.get("hmap", "f") == "f":
        A("""
        s_and_b32 s41, s45, 1
        s_lshl_b32 s41, s41, 2
        s_lshr_b32 s47, s46, 3
        s_add_u32 s41, s41, s47          ; r = 4(e&1) + (i>>3)
        s_lshr_b32 s42, s45, 1
        s_lshl_b32 s42, s42, 3
        s_and_b32 s47, s46, 7
        s_add_u32 s42, s42, s47          ; h = 8(e>>1) + (i&7)
        s_waitcnt lgkmcnt(0)
        """)
    elif cfg.get("hmap") == "h":
        A("""
        s_lshr_b32 s41, s45, 1
        s_lshl_b32 s41, s41, 1
        s_lshr_b32 s47, s46, 4
        s_add_u32 s41, s41, s47          ; r = 2(e>>1) + (i>>4)
        s_and_b32 s42, s45, 1
        s_lshl_b32 s42, s42, 4
        s_and_b32 s47, s46, 15
        s_add_u32 s42, s42, s47          ; h = 16(e&1) + (i&15)
        s_waitcnt lgkmcnt(0)
        """)
    else:
        A("""
        s_and_b32 s41, s46, 7            ; r
        s_lshl_b32 s42, s45, 2
        s_lshr_b32 s47, s46, 3
        s_add_u32 s42, s42, s47          ; h = 4e + (i>>3)
        s_waitcnt lgkmcnt(0)
        """)
    def rstamp(lane):
        if cfg.get("prof") == "4":
            A("s_memrealtime s[96:97]")
            A("s_waitcnt lgkmcnt(0)")
            A(f"v_writelane_b32 v{PV}, s96, {lane}")
    rstamp(41)
    srd(A, 32, 14, WS_USED)
    A("""
    s_cmp_ge_u32 s40, 4
    s_cbranch_scc1 K1_LOADER
    """)
    PF3 = cfg.get("pf3")
    PF4 = cfg.get("pf4")
    L2D = int(cfg.get("l2d", 2)) if not (PF3 or PF4) else 0
    TL = int(cfg.get("tl", 4))
    TC = int(cfg.get("tc", 8))
    def touch_addr(w, dst, t0, t1, t2, shift, sa):
        OFFL = int(cfg.get("offl", 0))
        A(f"""
        s_and_b32 s47, s42, 1
        s_lshl_b32 s47, s47, 2
        s_and_b32 s38, s41, 3
        s_add_u32 s47, s47, s38
        s_lshl_b32 s47, s47, 2
        v_bfe_u32 v{t0}, v0, 2, 1
        v_lshlrev_b32 v{t0}, 5, v{t0}    ; 32 * block
        v_and_b32 v{t2}, 3, v0
        v_add3_u32 v{dst}, v{t2}, v{t0}, s47
        v_mul_u32_u24 v{dst}, 6144, v{dst}
        v_lshrrev_b32 v{t1}, 3, v0       ; segment
        v_lshl_add_u32 v{dst}, v{t1}, 11, v{dst}
        s_lshr_b32 s47, s42, 1
        s_lshl_b32 s47, s47, 7
        v_add_u32 v{dst}, s47, v{dst}
        s_and_b32 {sa}, s42, 7
        """)
        if OFFL:
            A(f"""
            s_lshl_b32 s47, {sa}, 2
            s_add_u32 s47, s47, s38
            s_lshl_b32 s47, s47, 2
            v_add_u32 v{t2}, s47, v{t2}
            v_lshrrev_b32 v{t1}, 5, v{t2}
            v_and_b32 v{t2}, 31, v{t2}
            v_add_u32 v{t2}, v{t2}, v{t0}
            v_mul_u32_u24 v{t2}, 6144, v{t2}
            v_lshl_add_u32 v{t2}, v{t1}, 11, v{t2}
            s_lshr_b32 s47, s42, 1
            s_or_b32 s47, s47, 3
            s_lshl_b32 s47, s47, 7
            v_add_u32 v{t2}, s47, v{t2}
            v_cmp_lt_u32 vcc, 23, v0
            s_nop 1
            v_cndmask_b32 v{dst}, v{dst}, v{t2}, vcc
            s_cmp_lt_u32 {sa}, 6
            s_cselect_b32 s63, 32, 0
            """)
            if OFFL == 1:
                A(f"""
                s_lshl_b32 s47, {sa}, 4
                s_mul_i32 s38, {sa}, 80
                s_sub_u32 s38, s38, {6*80 - 96}
                s_cmp_lt_u32 {sa}, 6
                s_cselect_b32 s47, s47, s38
                s_cselect_b32 {sa}, 16, 40
                s_cselect_b32 s38, 0, 40
                s_cmp_eq_u32 {w}, 3
                s_cselect_b32 {sa}, s38, {sa}
                s_cselect_b32 s38, 40, 0
                s_add_u32 s47, s47, s38
                """)
            elif OFFL == 2:
                A(f"""
                s_mul_i32 s47, {sa}, 43
                s_cmp_lt_u32 {sa}, 5
                s_cselect_b32 s38, 43, 41
                s_cmp_lt_u32 {sa}, 6
                s_cselect_b32 {sa}, s38, 0
                s_cmp_eq_u32 {w}, 3
                s_cselect_b32 {sa}, 0, {sa}
                """)
            else:
                A(f"""
                s_lshl_b32 s47, {sa}, 5
                s_cmp_eq_u32 {w}, 3
                s_cselect_b32 {sa}, 0, 32
                """)
        else:
            A(f"""
            s_mov_b32 s63, 24
            s_lshl_b32 s47, {sa}, 5
            s_cmp_eq_u32 {w}, 3
            s_cselect_b32 {sa}, 0, 32
            """)
        A(f"""
        s_lshl_b32 s38, s41, 8
        s_add_u32 s47, s47, s38
        v_add_u32 v{t1}, s47, v0
        v_lshlrev_b32 v{t1}, 11, v{t1}   ; x row
        v_bfe_u32 v{t0}, v0, 1, 1
        s_and_b32 s38, s45, 1
        v_xor_b32 v{t0}, s38, v{t0}      ; 0 : ours
        v_and_b32 v{t2}, 3, v0
        s_lshr_b32 s38, s45, 1
        v_xor_b32 v{t2}, s38, v{t2}
        s_cmp_ge_u32 {w}, 2
        s_cselect_b64 vcc, -1, 0
        s_cselect_b32 s47, {sa}, s63
        s_mov_b32 s38, {(TC - TL) * 32 * 6144}
        s_cselect_b32 s38, {(TC - TL) * 64}, s38
        v_cndmask_b32 v{dst}, v{dst}, v{t1}, vcc
        v_cndmask_b32 v{t0}, v{t0}, v{t2}, vcc
        v_cmp_eq_u32 vcc, 0, v{t0}
        """)
        if shift:
            A(f"""
            v_mov_b32 v{t1}, s38
            s_nop 0
            v_cndmask_b32 v{t1}, 0, v{t1}, vcc
            v_add_u32 v{dst}, v{dst}, v{t1}
            v_cmp_gt_u32 vcc, s47, v0
            v_mov_b32 v{t1}, 0x7ffffff0
            s_nop 0
            v_cndmask_b32 v{dst}, v{t1}, v{dst}, vcc
            """)
        else:
            A(f"""
            v_cmp_gt_u32 s[62:63], s47, v0
            v_mov_b32 v{t1}, 0x7ffffff0
            s_and_b64 vcc, vcc, s[62:63]
            v_cndmask_b32 v{dst+2}, v{t1}, v{dst}, vcc
            v_cndmask_b32 v{dst}, v{t1}, v{dst}, s[62:63]
            """)
        A(f"""
        s_cmp_eq_u32 {w}, 0
        s_cselect_b32 s92, s6, s8
        s_cselect_b32 s93, s7, s9
        s_cmp_ge_u32 {w}, 2
        s_cselect_b32 s92, s4, s92
        s_cselect_b32 s93, s5, s93
        s_mov_b32 s94, {1024*6144}
        s_cselect_b32 s94, {2048*2048}, s94
        s_mov_b32 s95, 0x00020000
        """)
    rng = lambda t: range(*map(int, t.split(":"))) if t else range(0)
    PFA_ = rng(cfg.get("pfa", f"0:{4+L2D}")); PFB_ = rng(cfg.get("pfb", ""))
    PFA, PFD = 252, 253
    def l2pf(step=None):
        if step is None:
            A("s_and_b32 s55, s59, 31")
        else:
            A(f"s_add_u32 s55, s63, {step}")
            A("s_and_b32 s55, s55, 31")
        A(f"s_mul_i32 s55, s55, {32*6144}")
        A(f"buffer_load_dword v{PFD}, v{PFA}, s[92:95], s55 offen")
        if step is None: A("s_add_u32 s59, s59, 1")
    PF2 = cfg.get("pf2")
    def touch():
        return [f"buffer_load_dword v{PFD}, v{PFA}, s[92:95], s55 offen", "s_add_u32 s55, s55, s59", "s_cmp_eq_u32 s55, s56",
                "s_cselect_b32 s55, 0, s55", "s_xor_b32 s59, s59, s57"]
    if PF2:
        XW = int(cfg.get("pfx", 1))
        HM = cfg.get("hmap", "f") == "h"
        RB = 1 if HM else 2
        HB = 4 if HM else 3
        R20 = 0 if cfg.get("r2") == "early0" else 4
        A(f"""
        s_and_b32 s47, s42, 1
        s_lshl_b32 s47, s47, {RB}
        s_and_b32 s38, s41, {(1 << RB) - 1}
        s_add_u32 s47, s47, s38
        s_lshr_b32 s38, s42, 1
        s_lshl_b32 s47, s47, {4 - RB}
        s_lshl_b32 s38, s38, 7
        v_and_b32 v4, {(1 << (4 - RB)) - 1}, v0
        v_add_u32 v4, s47, v4
        v_mul_u32_u24 v4, 6144, v4
        v_lshrrev_b32 v5, {4 - RB}, v0
        v_lshl_add_u32 v4, v5, 11, v4    ; + segment * 2048
        v_add_u32 v4, s38, v4
        s_lshl_b32 s47, s41, 8
        s_and_b32 s38, s42, {(1 << HB) - 1}
        s_lshl_b32 s38, s38, {8 - HB}
        s_add_u32 s47, s47, s38
        v_add_u32 v6, s47, v0
        v_lshlrev_b32 v6, 11, v6
        s_cmp_eq_u32 s40, 0
        s_cselect_b64 vcc, -1, 0
        s_cselect_b32 s38, {1 << (7 - HB)}, {3 << (4 - RB)}
        v_mov_b32 v5, 0x7ffffff0
        v_cndmask_b32 v4, v4, v6, vcc
        v_cmp_gt_u32 vcc, s38, v0
        s_cmp_eq_u32 s40, 2
        s_cselect_b32 s92, s6, s8
        s_cselect_b32 s93, s7, s9
        s_cmp_ge_u32 s40, 2
        s_cselect_b32 s62, {1024*6144}, 0
        v_cndmask_b32 v{PFA}, v5, v4, vcc
        s_lshr_b32 s63, s45, {RSH}
        s_mul_i32 s63, s63, {ROT}
        s_and_b32 s47, s45, 1
        s_mul_i32 s47, s47, {ROT2}
        s_add_u32 s63, s63, s47
        s_add_u32 s63, s63, {R20}
        s_and_b32 s55, s63, 31
        s_mul_i32 s55, s55, {32*6144}
        s_mov_b32 s59, {32*6144}
        s_mov_b32 s57, 0
        s_mov_b32 s56, {1024*6144}
        s_cmp_lg_u32 s40, 0
        s_cbranch_scc1 K1_PFW
        s_mov_b32 s92, s4
        s_mov_b32 s93, s5
        s_mov_b32 s62, {2048*2048 if XW else 0}
        s_lshr_b32 s55, s63, 1
        s_and_b32 s55, s55, 15
        s_lshl_b32 s55, s55, 7
        s_mov_b32 s59, {1 << (18 - HB)}
        s_mov_b32 s57, {(1 << (18 - HB)) ^ ((128 - (1 << (18 - HB))) & 0xffffffff)}
        s_mov_b32 s56, 2048
        K1_PFW:
        s_mov_b32 s94, s62
        s_mov_b32 s95, 0x00020000
        """)
        if cfg.get("r2") == "early0":
            for t in range(int(cfg.get("e0n", 4))):
                for l in touch(): A(l)
        if cfg.get("r2") == "early":
            for t in range(L2D):
                for l in touch(): A(l)
    elif L2D:
        A(f"""
        s_and_b32 s47, s42, 1
        s_lshl_b32 s47, s47, 2
        s_and_b32 s38, s41, 3
        s_add_u32 s47, s47, s38
        s_lshr_b32 s38, s42, 1
        
        s_lshl_b32 s47, s47, 2
        s_lshl_b32 s38, s38, 7
        v_and_b32 v4, 3, v0
        v_add_u32 v4, s47, v4
        v_mul_u32_u24 v4, 6144, v4
        v_lshrrev_b32 v5, 2, v0
        v_lshl_add_u32 v4, v5, 11, v4    ; + segment * 2048
        v_add_u32 v4, s38, v4
        v_mov_b32 v5, 0x7ffffff0
        v_cmp_gt_u32 vcc, 12, v0
        s_cmp_eq_u32 s40, 2
        s_cselect_b32 s92, s6, s8
        s_cselect_b32 s93, s7, s9
        s_cmp_ge_u32 s40, 2
        s_cselect_b32 s62, {1024*6144}, 0
        s_mov_b32 s94, s62
        s_mov_b32 s95, 0x00020000
        v_cndmask_b32 v{PFA}, v5, v4, vcc
        s_lshr_b32 s63, s45, {RSH}
        s_mul_i32 s63, s63, {ROT}
        s_add_u32 s59, s63, {4 + L2D}
        """)
        for t in PFA_: l2pf(t)
    if PF4:
        assert ROT == 0 and ROT2 == 0
        touch_addr("s40", PFA, 4, 5, 6, False, "s62")
        A(f"""
        s_cmp_ge_u32 s40, 2
        s_mov_b32 s59, {64*6144}
        s_cselect_b32 s59, 128, s59
        s_mov_b32 s55, 0
        """)
        for t in range(int(cfg.get("r0", 0))):
            A(f"buffer_load_dword v{PFD}, v{PFA}, s[92:95], s55 offen")
            A("s_add_u32 s55, s55, s59")
        A(f"""
        s_cmp_ge_u32 s40, 2
        s_mov_b32 s55, {TL*32*6144}
        s_cselect_b32 s55, {TL*64}, s55
        """)
    rstamp(42)
    setup_p2(A)
    rstamp(43)
    A(f"""
    s_cmp_lg_u32 s40, 0
    s_cbranch_scc1 K1_NOZ
    v_lshlrev_b32 v4, 2, v0
    v_lshrrev_b32 v6, 2, v0
    v_lshlrev_b32 v6, 9, v6
    v_and_b32 v7, 3, v0
    v_lshl_add_u32 v6, v7, 2, v6
    v_mov_b32 v5, 0
    s_mov_b64 exec, 3
    buffer_store_dword v5, v4, s[32:35], s67 offen sc1
    buffer_store_dword v5, v4, s[32:35], s88 offen sc1
    s_mov_b64 exec, 0xff
    buffer_store_dword v5, v4, s[32:35], s68 offen sc1
    buffer_store_dword v5, v6, s[32:35], s69 offen sc1
    s_mov_b32 s36, s86
    s_mov_b32 s37, s87
    s_mov_b32 s38, 256
    s_mov_b32 s39, 0x00020000
    """)
    LATE = cfg.get("late")
    if not LATE:
        A("""
        s_waitcnt vmcnt(0)
        s_mov_b64 exec, 1
        v_mov_b32 v6, 1
        buffer_atomic_add v6, v5, s[36:39], 0 offen
        s_mov_b64 exec, -1
        """)
    else:
        A("s_mov_b64 exec, -1")
    A("""
    K1_NOZ:
    """)
    rstamp(44)
    setup_p3(A)
    rstamp(45)
    XA, WA = 4, 20
    XB, WB = 32, 48
    ACC = 60
    acc = lambda sg, tt: ACC + (sg * 4 + tt) * 16
    A(f"""
    s_lshr_b32 s50, s40, 1           ; th
    s_and_b32 s51, s40, 1            ; type
    v_and_b32 v4, 31, v0
    v_lshrrev_b32 v5, 5, v0          ; hh
    v_bfe_u32 v6, v0, 2, 2           ; f = (l>>2)&3
    v_bfe_u32 v7, v0, 1, 3           ; (row>>1)&7
    v_xor_b32 v7, v5, v7
    v_lshlrev_b32 v7, 4, v7
    v_lshl_add_u32 v1, v4, 7, v7
    s_lshl_b32 s47, s50, 14
    v_add_u32 v1, s47, v1            ; vxa0
    v_xor_b32 v2, 32, v1             ; vxa1
    v_lshl_add_u32 v7, v5, 3, v6
    v_lshlrev_b32 v7, 6, v7          ; *64
    v_bfe_u32 v8, v0, 4, 1           ; g&1
    v_lshl_add_u32 v7, v8, 5, v7
    v_and_b32 v9, 3, v0
    v_lshl_add_u32 v7, v9, 3, v7
    s_lshl_b32 s47, s51, 11
    s_add_u32 s47, s47, {K1_WB}
    v_add_u32 v3, s47, v7            ; vwa
    s_mov_b32 s48, {1 if cfg.get("spread") else 0}
    s_mov_b32 s49, {K1_SLOT}
    s_mov_b32 s65, 0
    s_mov_b32 s52, {K1_SLOT}
    s_mov_b32 s53, {-(K1_NSLOT-1)*K1_SLOT & 0xffffffff}
    s_mov_b32 s54, 32
    s_mov_b32 s64, 0                 ; x slot
    s_mov_b32 s66, {-(K1_NX-1)*K1_XS & 0xffffffff}
    """)
    for i in range(192):
        A(f"v_mov_b32 v{ACC+i}, 0")
    if PF2 and cfg.get("r2") != "early":
        for t in range(L2D + (4 - int(cfg.get("e0n", 4)) if cfg.get("r2") == "early0" else 0)):
            for l in touch(): A(l)
    rstamp(46)
    A("s_barrier")
    vstamp(A, cfg, 1, PV)
    if cfg.get("prof") == "4":
        A("s_memrealtime s[96:97]")
        A("s_waitcnt lgkmcnt(0)")
        A(f"v_writelane_b32 v{PV}, s96, 0")
    if cfg.get("prof") == "3":
        A("s_memtime s[96:97]")
        A("s_mov_b32 s100, 0")
        A("s_waitcnt lgkmcnt(0)")
        A("s_mov_b32 s101, s96")
    if L2D:
        for t in PFB_: l2pf(t)
    def reads(X, W, s):
        r = []
        xa = 1 if s == 0 else 2
        for tt in range(4):
            r.append(f"ds_read_b128 v[{X+4*tt}:{X+4*tt+3}], v{xa} offset:{tt*4096}")
        for sg in range(3):
            for sec in range(2):
                r.append(f"ds_read_b64_tr_b16 v[{W+4*sg+2*sec}:{W+4*sg+2*sec+1}], v3 offset:{sg*4096 + s*1024 + sec*256}")
        return [r[4], r[5], r[0], r[1], r[2], r[3], r[6], r[7], r[8], r[9]]
    def mfmas(X, W):
        m = []
        for sg in range(3):
            for tt in range(4):
                a = acc(sg, tt)
                w = f"v[{W+4*sg}:{W+4*sg+3}]"; x = f"v[{X+4*tt}:{X+4*tt+3}]"
                if cfg.get("exp16"):
                    m.append(f"v_mfma_f32_16x16x32_bf16 v[{a}:{a+3}], {w}, {x}, v[{a}:{a+3}]\nv_mfma_f32_16x16x32_bf16 v[{a+8}:{a+11}], {x}, {w}, v[{a+8}:{a+11}]")
                elif sg < 2: m.append(f"v_mfma_f32_32x32x16_bf16 v[{a}:{a+15}], {w}, {x}, v[{a}:{a+15}]")
                else:      m.append(f"v_mfma_f32_32x32x16_bf16 v[{a}:{a+15}], {x}, {w}, v[{a}:{a+15}]")
        return m
    for l in reads(XA, WA, 0): A(l)
    if LATE:
        A("""
        s_cmp_lg_u32 s40, 0
        s_cbranch_scc1 K1_NOARR
        s_mov_b32 s96, s86
        s_mov_b32 s97, s87
        s_mov_b32 s98, 256
        s_mov_b32 s99, 0x00020000
        v_mov_b32 v32, 0
        v_mov_b32 v33, 1
        s_waitcnt vmcnt(0)
        s_mov_b64 exec, 1
        buffer_atomic_add v33, v32, s[96:99], 0 offen
        s_mov_b64 exec, -1
        K1_NOARR:
        """)
    if PF4:
        for t in range((TC - TL) // 2):
            A(f"buffer_load_dword v{PFD}, v{PFA+2}, s[92:95], s55 offen")
            A("s_add_u32 s55, s55, s59")
    A.label("K1_CLOOP")
    A("s_waitcnt lgkmcnt(0)")
    m = mfmas(XA, WA); r = reads(XB, WB, 1)
    extra0 = {4: ["s_and_b32 s63, s54, 1", "s_add_u32 s64, s64, s63", f"s_cmp_eq_u32 s64, {K1_NX}",
                  f"s_cselect_b32 s65, s66, {K1_XS}", "s_cselect_b32 s64, 0, s64", "s_mul_i32 s65, s65, s63"],
              6: ["s_add_u32 s48, s48, 1", f"s_cmp_eq_u32 s48, {K1_NSLOT}", "s_cselect_b32 s49, s53, s52", "s_cselect_b32 s48, 0, s48"],
              7: ["v_xor_b32 v1, 64, v1", "v_xor_b32 v2, 64, v2"], 8: ["v_add_u32 v1, s65, v1", "v_add_u32 v2, s65, v2"], 9: ["v_add_u32 v3, s49, v3"]}
    SPREAD = cfg.get("spread")
    extra1 = {}
    if SPREAD:
        extra0 = {6: ["v_xad_u32 v1, v1, 64, s65"], 8: ["v_xad_u32 v2, v2, 64, s65"], 10: ["v_add_u32 v3, s49, v3"]}
        extra1 = {5: ["s_sub_u32 s54, s54, 1", "s_and_b32 s63, s54, 1", "s_add_u32 s64, s64, s63"],
                  6: [f"s_cmp_eq_u32 s64, {K1_NX}", f"s_cselect_b32 s65, s66, {K1_XS}", "s_cselect_b32 s64, 0, s64"],
                  7: ["s_mul_i32 s65, s65, s63", "s_add_u32 s48, s48, 1", f"s_cmp_eq_u32 s48, {K1_NSLOT}"],
                  8: ["s_cselect_b32 s49, s53, s52", "s_cselect_b32 s48, 0, s48"],
                  11: ["s_cmp_lg_u32 s54, 0"]}
        if PF2:
            t_ = touch()
            th_, tk_ = map(int, cfg.get("tpos", "1:9").split(":"))
            ex_ = extra1 if th_ else extra0
            after_dec = th_ == 1 and tk_ >= 5
            cmp_ = f"s_cmp_ge_u32 s54, {4 + L2D}" if after_dec else f"s_cmp_gt_u32 s54, {4 + L2D}"
            def addx(d, k, ls, front=False):
                d[k] = (ls + d.get(k, [])) if front else (d.get(k, []) + ls)
            if th_ == 1 and tk_ == 9:
                extra1[9] = [cmp_, "s_cselect_b32 s94, s62, 0", t_[0]]
                extra1[10] = t_[1:4]
                extra1[11] = [t_[4], "s_cmp_lg_u32 s54, 0"]
            else:
                assert not (th_ == 1 and 3 < tk_ < 9)
                addx(ex_, tk_, [cmp_, "s_cselect_b32 s94, s62, 0", t_[0]])
                addx(ex_, tk_ + 1, [t_[1], t_[2], t_[3], t_[4]])
        elif L2D:
            extra1[9] = [f"s_cmp_ge_u32 s54, {4 + L2D}", "s_cselect_b32 s94, s62, 0", "s_and_b32 s55, s59, 31"]
            extra1[10] = [f"s_mul_i32 s55, s55, {32*6144}", "s_add_u32 s59, s59, 1", f"buffer_load_dword v{PFD}, v{PFA}, s[92:95], s55 offen"]
    for k in range(12):
        A(m[k])
        if k < 5:
            A(r[2*k]); A(r[2*k+1])
        for l in extra0.get(k, []): A(l)
        if L2D and k == 10 and not SPREAD:
            assert not PF2
            A(f"s_cmp_gt_u32 s54, {4 + L2D}")
            A("s_cselect_b32 s94, s62, 0")
            l2pf()
    A("s_waitcnt lgkmcnt(0)")
    m = mfmas(XB, WB); r = reads(XA, WA, 0)
    for k in range(12):
        A(m[k])
        if k < 5:
            A(r[2*k]); A(r[2*k+1])
        for l in extra1.get(k, []): A(l)
        if k == 8 and not SPREAD:
            A("s_sub_u32 s54, s54, 1"); A("s_cmp_lg_u32 s54, 0")
    if cfg.get("prof") == "3":
        A("s_memtime s[96:97]")
        A("s_barrier")
        A("s_memtime s[98:99]")
        A("s_waitcnt lgkmcnt(0)")
        A("s_sub_u32 s98, s98, s96")
        A("s_add_u32 s100, s100, s98")
        A("s_cmp_lg_u32 s54, 0")
    elif cfg.get("prof") == "4":
        A("s_barrier")
        A("s_memrealtime s[96:97]")
        A("s_sub_u32 m0, 32, s54")
        A("s_waitcnt lgkmcnt(0)")
        A(f"v_writelane_b32 v{PV}, s96, m0")
        A("s_cmp_lg_u32 s54, 0")
    else:
        A("s_barrier")
    A("s_cbranch_scc1 K1_CLOOP")
    A("s_waitcnt lgkmcnt(0)")
    if cfg.get("prof") == "3":
        A("s_memtime s[96:97]")
        A("s_waitcnt lgkmcnt(0)")
        A("s_sub_u32 s96, s96, s101")
        A(f"v_writelane_b32 v{PV}, s100, 0")
        A(f"v_writelane_b32 v{PV}, s96, 2")
    vstamp(A, cfg, 2, PV)
    A(f"""
    v_lshlrev_b32 v1, 4, v0          ; lane*16
    s_cmp_lg_u32 s51, 0
    s_cbranch_scc1 K1_E1T1
    s_mov_b32 s56, {fhex(32**-0.5 * LOG2E)}
    s_mov_b32 s57, s56
    s_lshl_b32 s47, s50, 13
    s_add_u32 s47, s47, {QST}
    v_add_u32 v44, s47, v1
    """)
    A.nop(6)
    T1 = 4
    V = acc(1, 0)
    Q = acc(1, 0) + 32
    for tt in range(4):
        for k in range(8):
            a = acc(1, tt) + 2*k
            A(f"v_pk_mul_f32 v[{a}:{a+1}], v[{a}:{a+1}], s[56:57]")
        cvt_tile(A, T1 + 8*tt, acc(1, tt))
        A(f"ds_write_b128 v44, v[{T1+8*tt}:{T1+8*tt+3}] offset:{tt*2048}")
        A(f"ds_write_b128 v44, v[{T1+8*tt+4}:{T1+8*tt+7}] offset:{tt*2048+1024}")
    for tt in range(4):
        cvt_tile(A, V + 8*tt, acc(2, tt))
    A("s_branch K1_E2J")
    A.label("K1_E1T1")
    A(f"""
    s_lshl_b32 s58, s41, 1
    s_add_u32 s58, s58, s50
    s_lshl_b32 s58, s58, 14
    s_add_u32 s58, s58, s70
    s_lshl_b32 s47, s50, 14
    v_add_u32 v44, s47, v1
    """)
    A.nop(10)
    for tt in range(4):
        cvt_tile(A, T1 + 8*tt, acc(1, tt))
        A(f"buffer_store_dwordx4 v[{T1+8*tt}:{T1+8*tt+3}], v1, s[32:35], s58 offen sc1")
        A(f"buffer_store_dwordx4 v[{T1+8*tt+4}:{T1+8*tt+7}], v1, s[32:35], s58 offen offset:1024 sc1")
        A("s_add_u32 s58, s58, 4096")
    A(f"s_sub_u32 s58, s58, {4*4096 - 2048}")
    for tt in range(4):
        cvt_tile(A, V + 8*tt, acc(2, tt))
        A(f"buffer_store_dwordx4 v[{V+8*tt}:{V+8*tt+3}], v1, s[32:35], s58 offen sc1")
        A(f"buffer_store_dwordx4 v[{V+8*tt+4}:{V+8*tt+7}], v1, s[32:35], s58 offen offset:1024 sc1")
        A("s_add_u32 s58, s58, 4096")
    for tt in range(4):
        A(f"ds_write_b128 v44, v[{T1+8*tt}:{T1+8*tt+3}] offset:{tt*4096}")
        A(f"ds_write_b128 v44, v[{T1+8*tt+4}:{T1+8*tt+7}] offset:{tt*4096+1024}")
        A(f"ds_write_b128 v44, v[{V+8*tt}:{V+8*tt+3}] offset:{tt*4096+2048}")
        A(f"ds_write_b128 v44, v[{V+8*tt+4}:{V+8*tt+7}] offset:{tt*4096+3072}")
    A.label("K1_E2J")
    WP = 36
    A(f"""
    v_lshrrev_b32 v5, 5, v0          ; hh
    v_bfe_u32 v6, v0, 2, 2           ; i>>2
    v_lshl_add_u32 v6, v5, 2, v6     ; 4hh + (i>>2)
    v_bfe_u32 v7, v0, 4, 1
    v_lshlrev_b32 v7, 5, v7
    v_and_b32 v8, 3, v0
    v_lshl_add_u32 v7, v8, 3, v7     ; (g&1)*32 + (i&3)*8
    v_lshl_add_u32 v2, v6, 6, v7
    v_add_u32 v2, {K1_WPHI}, v2
    """)
    for s in range(2):
        for sec in range(2):
            A(f"ds_read_b64_tr_b16 v[{WP+4*s+2*sec}:{WP+4*s+2*sec+1}], v2 offset:{(16*s+8*sec)*64}")
    A(f"""
    s_mul_i32 s47, s50, {K1_TBUF}
    s_add_u32 s47, s47, {TBUF0}
    v_mul_u32_u24 v25, 136, v6
    v_add_u32 v25, v25, v7
    v_add_u32 v25, s47, v25
    v_and_b32 v8, 31, v0
    v_mul_u32_u24 v24, 136, v8
    v_lshl_add_u32 v24, v5, 3, v24
    v_add_u32 v24, s47, v24
    v_bfe_u32 v8, v0, 2, 1
    v_bfe_u32 v9, v0, 4, 1
    v_cmp_eq_u32 vcc, v8, v9
    v_mov_b32 v9, 0x3f803f80
    v_mov_b32 v8, 0
    v_cndmask_b32 v20, v8, v9, vcc
    v_cndmask_b32 v21, v8, v9, vcc
    v_cndmask_b32 v22, v8, v9, vcc
    v_cndmask_b32 v23, v8, v9, vcc
    """)
    for tt in range(4):
        cvt_tile(A, Q + 8*tt, acc(0, tt))
    A("s_waitcnt lgkmcnt(0)")
    for tt in range(4):
        a = acc(0, tt)
        A(f"v_mfma_f32_32x32x16_bf16 v[{a}:{a+15}], v[{WP}:{WP+3}], v[{Q+8*tt}:{Q+8*tt+3}], 0")
    for tt in range(4):
        a = acc(0, tt)
        A(f"v_mfma_f32_32x32x16_bf16 v[{a}:{a+15}], v[{WP+4}:{WP+7}], v[{Q+8*tt+4}:{Q+8*tt+7}], v[{a}:{a+15}]")
    A(f"""
    s_mov_b32 s56, {fhex(LOG2E)}
    s_mov_b32 s57, s56
    """)
    A.nop(10)
    EP = acc(2, 0)
    PH = EP + 16
    AF = PH + 16
    KV0 = AF + 16
    KV1 = 44
    Z0, Z1, SEL1 = 12, 16, 20
    PHQ = 128
    def kv_mfmas(tt):
        out = []
        for s in range(2):
            for fb in range(2):
                kv = KV0 if fb == 0 else KV1
                z = Z0 if fb == 0 else Z1
                af = AF + (fb*2+s)*4
                c = "0" if (tt == 0 and s == 0) else f"v[{kv}:{kv+15}]"
                cz = "0" if (tt == 0 and s == 0) else f"v[{z}:{z+3}]"
                out.append(f"v_mfma_f32_32x32x16_bf16 v[{kv}:{kv+15}], v[{af}:{af+3}], v[{V+8*tt+4*s}:{V+8*tt+4*s+3}], {c}")
                out.append(f"v_mfma_f32_16x16x32_bf16 v[{z}:{z+3}], v[{SEL1}:{SEL1+3}], v[{af}:{af+3}], {cz}")
        return out
    for tt in range(4):
        P = acc(0, tt)
        A(f"v_max3_f32 v4, v{P}, v{P+1}, v{P+2}")
        A(f"v_max3_f32 v5, -v{P}, -v{P+1}, -v{P+2}")
        for k in range(3, 15, 2):
            A(f"v_max3_f32 v4, v4, v{P+k}, v{P+k+1}")
            A(f"v_max3_f32 v5, v5, -v{P+k}, -v{P+k+1}")
        A(f"v_max_f32 v4, v4, v{P+15}")
        A(f"v_max_f32 v5, v5, -v{P+15}")
        A.nop(2)
        A("v_permlane32_swap_b32 v4, v5")
        A("s_nop 0")
        A("v_max_f32 v4, v4, v5")
        A("v_mov_b32 v5, v4")
        A.nop(2)
        A("v_permlane32_swap_b32 v4, v5")
        A("s_nop 0")
        A(f"v_mul_f32 v6, {fhex(-LOG2E)}, v4")
        A(f"v_mul_f32 v8, {fhex(-LOG2E)}, v5")
        for k in range(8):
            A(f"v_pk_fma_f32 v[{EP+2*k}:{EP+2*k+1}], v[{P+2*k}:{P+2*k+1}], s[56:57], v[6:7] op_sel_hi:[1,1,0]")
            A(f"v_pk_fma_f32 v[{P+2*k}:{P+2*k+1}], v[{P+2*k}:{P+2*k+1}], s[56:57], v[8:9] op_sel_hi:[1,1,0] neg_lo:[0,1,0] neg_hi:[0,1,0]")
        for k in range(16):
            A(f"v_exp_f32 v{EP+k}, v{EP+k}")
            A(f"v_exp_f32 v{P+k}, v{P+k}")
        if tt > 0:
            j = A.uid("K1_KVS")
            A("s_cmp_lg_u32 s51, 0"); A(f"s_cbranch_scc1 {j}")
            A("s_waitcnt lgkmcnt(0)")
            for l in kv_mfmas(tt-1): A(l)
            A.label(j)
        A(f"v_pk_add_f32 v[4:5], v[{EP}:{EP+1}], v[{EP+2}:{EP+3}]")
        A(f"v_pk_add_f32 v[6:7], v[{P}:{P+1}], v[{P+2}:{P+3}]")
        for k in range(2, 8):
            A(f"v_pk_add_f32 v[4:5], v[4:5], v[{EP+2*k}:{EP+2*k+1}]")
            A(f"v_pk_add_f32 v[6:7], v[6:7], v[{P+2*k}:{P+2*k+1}]")
        A("v_add_f32 v4, v4, v5")
        A("v_add_f32 v6, v6, v7")
        A.nop(2)
        A("v_permlane32_swap_b32 v4, v6")
        A("s_nop 0")
        A("v_add_f32 v4, v4, v6")
        A("v_rcp_f32 v4, v4")
        A("s_nop 0")
        A("v_mov_b32 v6, v4")
        A.nop(2)
        A("v_permlane32_swap_b32 v4, v6")
        A("s_nop 0")
        for k in range(8):
            A(f"v_pk_mul_f32 v[{EP+2*k}:{EP+2*k+1}], v[{EP+2*k}:{EP+2*k+1}], v[4:5] op_sel_hi:[1,0]")
            A(f"v_pk_mul_f32 v[{P+2*k}:{P+2*k+1}], v[{P+2*k}:{P+2*k+1}], v[6:7] op_sel_hi:[1,0]")
        j1 = A.uid("K1_T0"); j2 = A.uid("K1_TJ")
        A("s_cmp_eq_u32 s51, 0"); A(f"s_cbranch_scc1 {j1}")
        cvt_tile(A, PHQ + 16*tt, EP)
        cvt_tile(A, PHQ + 16*tt + 8, P)
        if tt == F1POS:
            A("s_waitcnt vmcnt(0)")
            set_flag(A, "s67")
            vstamp(A, cfg, 3, PV)
        A(f"s_branch {j2}")
        A.label(j1)
        cvt_tile(A, PH, EP)
        cvt_tile(A, PH + 8, P)
        for sign in range(2):
            for b in range(4):
                A(f"ds_write_b64 v24, v[{PH+8*sign+2*b}:{PH+8*sign+2*b+1}] offset:{sign*64+b*16}")
        for fb in range(2):
            for s in range(2):
                for sec in range(2):
                    af = AF + (fb*2+s)*4 + 2*sec
                    A(f"ds_read_b64_tr_b16 v[{af}:{af+1}], v25 offset:{(16*s+8*sec)*136 + fb*64}")
        A.label(j2)
    A("s_cmp_lg_u32 s51, 0")
    A("s_cbranch_scc1 KF_JOIN")
    A("s_waitcnt lgkmcnt(0)")
    for l in kv_mfmas(3): A(l)
    A(f"""
    s_lshl_b32 s47, s50, 13
    s_add_u32 s47, s47, {RED0}
    v_add_u32 v2, s47, v1
    v_and_b32 v3, 31, v0
    v_lshlrev_b32 v3, 2, v3
    s_lshl_b32 s47, s50, 8
    s_add_u32 s47, s47, {ZRED}
    v_add_u32 v3, s47, v3
    """)
    A.nop(8)
    A(f"ds_write_b32 v3, v{Z0}")
    A(f"ds_write_b32 v3, v{Z1} offset:128")
    for fb in range(2):
        kv = KV0 if fb == 0 else KV1
        for q in range(4):
            A(f"ds_write_b128 v2, v[{kv+4*q}:{kv+4*q+3}] offset:{fb*4096+q*1024}")
    A("s_branch KF_JOIN")
    A.label("K1_LOADER")
    if cfg.get("lprio"): A(f"s_setprio {cfg.get('lprio')[0]}")
    srd(A, 16, 4, 2048*2048)
    srd(A, 20, 6, 1024*6144)
    srd(A, 24, 8, 1024*6144)
    A(f"""
    s_sub_u32 s50, s40, 4            ; w
    s_lshr_b32 s44, s50, 1
    s_cmp_eq_u32 s44, 0
    s_cselect_b32 s28, s6, s8
    s_cselect_b32 s29, s7, s9
    """)
    A(f"s_mov_b32 s30, {1024*6144}")
    A("s_mov_b32 s31, 0x00020000")
    R1 = cfg.get("r1", "1") if cfg.get("pf2") else (cfg.get("r1", "0") if (PF3 or PF4) else "0")
    if R1 != "0":
        HM = cfg.get("hmap", "f") == "h"
        RB = 1 if HM else 2; HB = 4 if HM else 3
        NW = 3 << (4 - RB)
        A(f"""
        s_lshr_b32 s47, s45, {RSH}
        s_mul_i32 s47, s47, {ROT}
        s_and_b32 s51, s45, 1
        s_mul_i32 s51, s51, {ROT2}
        s_add_u32 s47, s47, s51
        s_and_b32 s51, s50, 1
        s_lshl_b32 s51, s51, 1
        s_add_u32 s51, s51, s47
        v_mul_u32_u24 v20, 43, v0
        v_lshrrev_b32 v20, {10 if HM else 9}, v20
        v_mul_u32_u24 v21, {NW}, v20
        v_sub_u32 v21, v0, v21           ; lane % NW
        v_add_u32 v20, s51, v20
        v_and_b32 v20, 31, v20
        v_mul_u32_u24 v20, {32*6144}, v20
        s_and_b32 s51, s42, 1
        s_lshl_b32 s51, s51, {RB}
        s_and_b32 s52, s41, {(1 << RB) - 1}
        s_add_u32 s51, s51, s52
        s_lshl_b32 s51, s51, {4 - RB}
        v_and_b32 v22, {(1 << (4 - RB)) - 1}, v21
        v_add_u32 v22, s51, v22
        v_mul_u32_u24 v22, 6144, v22
        v_lshrrev_b32 v21, {4 - RB}, v21
        v_lshl_add_u32 v22, v21, 11, v22
        s_lshr_b32 s51, s42, 1
        s_lshl_b32 s51, s51, 7
        v_add3_u32 v20, v20, v22, s51
        v_mov_b32 v23, 0x7ffffff0
        v_cmp_gt_u32 vcc, {2 * NW}, v0
        s_lshl_b32 s51, s41, 8
        s_and_b32 s52, s42, {(1 << HB) - 1}
        s_lshl_b32 s52, s52, {8 - HB}
        v_cndmask_b32 v20, v23, v20, vcc
        s_add_u32 s51, s51, s52
        s_lshl_b32 s52, s50, {6 - HB}
        s_add_u32 s51, s51, s52
        buffer_load_dword v24, v20, s[28:31], 0 offen
        v_and_b32 v21, {(1 << (6 - HB)) - 1}, v0
        v_add_u32 v21, s51, v21
        v_lshlrev_b32 v21, 11, v21
        v_lshrrev_b32 v22, {6 - HB}, v0
        s_lshr_b32 s47, s47, 1
        v_add_u32 v22, s47, v22
        v_and_b32 v22, 15, v22
        v_lshl_add_u32 v21, v22, 7, v21
        v_cmp_gt_u32 vcc, {2 << (6 - HB)}, v0
        s_nop 1
        v_cndmask_b32 v21, v23, v21, vcc
        buffer_load_dword v25, v21, s[16:19], 0 offen
        """)
    srd(A, 36, 10, 32*2048)
    A(f"""
    v_lshrrev_b32 v1, 3, v0
    v_lshrrev_b32 v2, 4, v0
    v_and_b32 v3, 7, v0
    v_xor_b32 v3, v3, v2
    v_lshlrev_b32 v3, 4, v3
    v_lshl_add_u32 v4, v1, 11, v3
    s_lshl_b32 s47, s41, 8
    s_lshl_b32 s51, s50, 6
    s_add_u32 s47, s47, s51
    s_lshl_b32 s47, s47, 11          ; (r*256 + 64w)*2048
    v_add_u32 v4, s47, v4            ; piece 0
    v_xor_b32 v5, 64, v4
    v_add_u32 v5, 16384, v5
    v_add_u32 v6, 32768, v4
    v_add_u32 v7, 32768, v5
    v_add_u32 v12, 65536, v4
    v_add_u32 v13, 65536, v5
    v_add_u32 v14, 98304, v4
    v_add_u32 v15, 98304, v5
    v_lshrrev_b32 v1, {3 if cfg.get("expw") else 2}, v0
    s_and_b32 s47, s50, 1
    s_lshl_b32 s47, s47, 4
    v_add_u32 v1, s47, v1            ; krow = 16*(w&1) + (l>>2)
    v_mul_u32_u24 v1, 6144, v1
    v_and_b32 v3, {7 if cfg.get("expw") else 3}, v0
    v_lshl_add_u32 v1, v3, 4, v1
    s_lshl_b32 s47, s42, 6           ; 64h
    {"s_and_b32 s47, s47, 0x780" if cfg.get("expw") else ""}
    s_lshl_b32 s51, s44, 11          ; type*2048
    s_add_u32 s52, s47, s51
    v_add_u32 v9, s52, v1            ; seg1 : B.q / B.k
    s_sub_u32 s52, 2048, s51
    s_add_u32 s52, s52, s47
    v_add_u32 v8, s52, v1            ; seg0 : A.k / A.q
    s_add_u32 s52, s47, 4096
    v_add_u32 v10, s52, v1           ; seg2 : A.v / B.v
    v_lshlrev_b32 v11, 4, v0
    s_and_b32 s51, s50, 1
    s_lshl_b32 s51, s51, 10
    s_lshl_b32 s47, s42, 11
    s_add_u32 s47, s47, s51
    s_add_u32 m0, s51, {K1_WPHI}
    s_lshl_b32 s55, s50, 13          ; w*8192  (x pieces)
    {"s_waitcnt vmcnt(0)" if R1 == "1" else ""}
    buffer_load_dwordx4 v11, s[36:39], s47 offen lds
    s_lshl_b32 s51, s50, 10
    s_add_u32 s56, s51, {K1_WB}      ; W pieces : + w*1024
    s_lshr_b32 s47, s45, {RSH}
    s_mul_i32 s47, s47, {ROT}
    s_and_b32 s51, s45, 1
    s_mul_i32 s51, s51, {ROT2}
    s_add_u32 s47, s47, s51
    s_and_b32 s47, s47, 31
    s_lshl_b32 s58, s47, 6           ; soffset x
    s_mul_i32 s59, s47, {32*6144}    ; soffset W
    s_mov_b32 s60, 0                 ; block
    s_mov_b32 s61, s55               ; x slot
    s_mov_b32 s62, s56               ; W slot
    s_add_u32 s55, s55, {K1_XS*K1_NX}
    s_add_u32 s56, s56, {K1_SLOT*K1_NSLOT}
    """)
    if PF3:
        TE = int(cfg.get("te", 2))
        OFFL = int(cfg.get("offl", 0))
        XT = int(cfg.get("pfx", 1))
        BW = TE // 2; LB = BW.bit_length() - 1
        assert cfg.get("hmap", "f") == "f"
        A(f"""
        s_and_b32 s51, s42, 7            ; head within the XCD
        s_and_b32 s52, s41, 3            ; token block within the XCD
        s_and_b32 s63, s42, 1
        s_lshl_b32 s63, s63, 2
        s_add_u32 s63, s63, s52          ; share of the pair's weight lines
        s_lshl_b32 s63, s63, 2           ; first row
        s_and_b32 s64, s50, 1
        s_lshl_b32 s64, s64, {5 + LB}    ; first row of this wave's group of blocks
        s_add_u32 s63, s63, s64
        v_bfe_u32 v27, v0, 2, {LB})
        v_lshlrev_b32 v30, 5, v27        ; 32 * block
        v_and_b32 v26, 3, v0
        v_add3_u32 v26, v26, v30, s63    ; row
        v_mul_u32_u24 v26, 6144, v26
        v_lshrrev_b32 v27, {2 + LB}, v0  ; segment
        v_lshl_add_u32 v26, v27, 11, v26
        s_lshr_b32 s63, s42, 1
        s_lshl_b32 s63, s63, 7
        v_add_u32 v26, s63, v26          ; + column of the pair
        v_mov_b32 v29, 0x7ffffff0
        v_cmp_gt_u32 vcc, 3, v27
        """.replace("v_bfe_u32 v27, v0, 2, 0)", "v_mov_b32 v27, 0").replace(")\n", "\n"))
        if OFFL:
            A(f"""
            s_cmp_lt_u32 s51, 6
            s_cselect_b64 vcc, vcc, 0
            v_cndmask_b32 v26, v29, v26, vcc
            s_lshl_b32 s63, s51, 2
            s_add_u32 s63, s63, s52
            s_lshl_b32 s63, s63, 2
            v_and_b32 v28, 3, v0
            v_add_u32 v31, s63, v28
            v_and_b32 v28, 31, v31
            v_add3_u32 v28, v28, v30, s64
            v_mul_u32_u24 v28, 6144, v28
            v_lshrrev_b32 v31, 5, v31
            v_lshl_add_u32 v28, v31, 11, v28
            s_lshr_b32 s63, s42, 1
            s_or_b32 s63, s63, 3
            s_lshl_b32 s63, s63, 7
            v_add_u32 v28, s63, v28
            v_cmp_eq_u32 vcc, 3, v27
            s_cmp_lt_u32 s51, 6
            s_cselect_b64 vcc, vcc, 0
            v_cndmask_b32 v26, v26, v28, vcc
            """)
        else:
            A("s_nop 1\nv_cndmask_b32 v26, v29, v26, vcc")
        if OFFL == 2:
            A(f"""
            s_mul_i32 s63, s51, 43
            v_add_u32 v27, s63, v0
            v_cmp_gt_u32 vcc, 43, v0
            s_movk_i32 s63, 0x100
            v_cmp_gt_u32 s[64:65], s63, v27
            s_and_b64 vcc, vcc, s[64:65]
            s_cmp_lt_u32 s51, 6
            s_cselect_b64 vcc, vcc, 0
            """)
        else:
            A(f"""
            s_lshl_b32 s63, s51, 5
            v_add_u32 v27, s63, v0
            v_cmp_gt_u32 vcc, 32, v0
            """)
        A(f"""
        s_lshl_b32 s63, s41, 8
        v_add_u32 v27, s63, v27          ; x row
        v_lshlrev_b32 v27, 11, v27
        v_cndmask_b32 v27, v29, v27, vcc
        s_lshr_b32 s63, s58, 6
        s_add_u32 s63, s63, {TL}
        s_and_b32 s63, s63, 31
        s_mul_i32 s64, s63, {32*6144}
        s_lshr_b32 s63, s63, 1
        s_add_u32 s63, s63, s50
        s_and_b32 s63, s63, 15
        s_lshl_b32 s65, s63, 7           ; x offset
        s_cmp_lt_u32 s50, {BW}
        s_cselect_b32 s67, {2048*2048 if XT else 0}, 0
        s_cmp_lt_u32 s50, 2
        s_cselect_b32 s92, s6, s8
        s_cselect_b32 s93, s7, s9
        s_mov_b32 s94, 0
        s_mov_b32 s95, 0x00020000
        s_mov_b32 s88, s4
        s_mov_b32 s89, s5
        s_mov_b32 s90, 0
        s_mov_b32 s91, 0x00020000
        """)
    if PF4:
        touch_addr("s50", 26, 27, 28, 29, True, "s66")
        A(f"""
        s_mov_b32 s67, s94
        s_cmp_ge_u32 s50, 2
        s_mov_b32 s64, {TL*32*6144}
        s_cselect_b32 s64, {TL*64}, s64
        s_mov_b32 s65, {64*6144}
        s_cselect_b32 s65, 128, s65
        """)
    rstamp(42)
    if cfg.get("lprio"): A(f"s_setprio {cfg.get('lprio')[1]}")
    A("K1_LLOOP:")
    XV = [4, 5, 6, 7, 12, 13, 14, 15]
    def ld_x(i0=0, i1=8):
        for i in range(i0, i1):
            A(f"s_add_u32 m0, s61, {i*1024}")
            A("s_nop 0")
            A(f"buffer_load_dwordx4 v{XV[i]}, s[16:19], s58 offen lds")
        if i1 == 8: A(f"""
        s_add_u32 s58, s58, 128
        s_and_b32 s58, s58, 2047
        s_add_u32 s61, s61, {K1_XS}
        s_cmp_eq_u32 s61, s55
        s_cselect_b32 s47, {K1_XS*K1_NX}, 0
        s_sub_u32 s61, s61, s47
        """)
    def ld_w():
        for sg in range(3):
            A(f"s_add_u32 m0, s62, {sg*4096}")
            A("s_nop 0")
            A(f"buffer_load_dwordx4 v{8+sg}, s[{20+4*sg}:{23+4*sg}], s59 offen lds")
        A(f"""
        s_add_u32 s59, s59, {32*6144}
        s_cmp_eq_u32 s59, {1024*6144}
        s_cselect_b32 s59, 0, s59
        s_add_u32 s62, s62, {K1_SLOT}
        s_cmp_eq_u32 s62, s56
        s_cselect_b32 s47, {K1_SLOT*K1_NSLOT}, 0
        s_sub_u32 s62, s62, s47
        """)
    def lsync(n=14):
        if cfg.get("prof") == "3":
            A("s_memtime s[96:97]")
            A(f"s_waitcnt vmcnt({n})")
            A("s_memtime s[98:99]")
            A("s_barrier")
            A("s_memtime s[90:91]")
            A("s_waitcnt lgkmcnt(0)")
            A("s_sub_u32 s96, s98, s96")
            A("s_add_u32 s100, s100, s96")
            A("s_sub_u32 s90, s90, s98")
            A("s_add_u32 s101, s101, s90")
        else:
            A(f"s_waitcnt vmcnt({n})")
            A("s_barrier")
    if cfg.get("prof") == "3":
        A("s_cmp_lg_u32 s60, 0")
        A("s_cbranch_scc1 K1_LP3")
        A("s_mov_b32 s100, 0")
        A("s_mov_b32 s101, 0")
        A.label("K1_LP3")
    BAL = int(cfg.get("bal", 0))
    NT = 2 if PF3 else 1 if PF4 else 0
    if BAL:
        ld_w(); ld_x(0, 8 - BAL)
    else:
        ld_x(); ld_w()
    A("""
    s_cmp_lt_u32 s60, 4
    s_cbranch_scc1 K1_LS1
    """)
    lsync(14 - BAL + NT)
    A("K1_LS1:")
    if BAL: ld_x(8 - BAL, 8)
    ld_w()
    if PF4:
        A(f"""
        s_cmp_le_u32 s60, {30 - TL}
        s_cselect_b32 s94, s67, 0
        buffer_load_dword v31, v26, s[92:95], s64 offen
        s_add_u32 s64, s64, s65
        """)
    if PF3:
        A(f"""
        s_and_b32 s63, s60, {TE - 1}
        s_cmp_le_u32 s60, {32 - TL - TE}
        s_cselect_b32 s63, s63, 1
        s_cmp_eq_u32 s63, 0
        s_cselect_b32 s94, {1024*6144}, 0
        s_cselect_b32 s90, s67, 0
        s_cselect_b32 s63, {TE*32*6144}, 0
        s_cselect_b32 s66, {TE*64}, 0
        buffer_load_dword v31, v26, s[92:95], s64 offen
        buffer_load_dword v31, v27, s[88:91], s65 offen
        s_add_u32 s64, s64, s63
        s_cmp_eq_u32 s64, {1024*6144}
        s_cselect_b32 s64, 0, s64
        s_add_u32 s65, s65, s66
        s_and_b32 s65, s65, 2047
        """)
    A("""
    s_cmp_lt_u32 s60, 2
    s_cbranch_scc1 K1_LS2
    """)
    if cfg.get("prof") == "4":
        A("s_cmp_lg_u32 s60, 2"); A("s_cbranch_scc1 K1_P4A"); rstamp(43); A(f"s_waitcnt vmcnt({14 + 2*NT})"); rstamp(44); A("K1_P4A:")
    lsync(14 + 2*NT)
    A(f"""
    K1_LS2:
    s_add_u32 s60, s60, 2
    s_cmp_lt_u32 s60, 32
    s_cbranch_scc1 K1_LLOOP
    s_waitcnt vmcnt({3 + NT})
    s_barrier
    s_waitcnt vmcnt(0)
    s_barrier
    """)
    if cfg.get("prof") == "3":
        A(f"v_writelane_b32 v{PV}, s100, 0")
        A(f"v_writelane_b32 v{PV}, s101, 1")
    if cfg.get("lprio"): A("s_setprio 0")
    srd(A, 36, 12, 2048)
    GX = 64
    A(f"""
    s_lshl_b32 s47, s41, 8
    s_lshl_b32 s51, s42, 3
    s_add_u32 s47, s47, s51
    s_lshl_b32 s51, s50, 1
    s_add_u32 s63, s47, s51          ; t0 = r*256 + h*8 + 2w
    s_lshl_b32 s51, s63, 11
    v_lshlrev_b32 v1, 5, v0
    buffer_load_dwordx4 v[32:35], v1, s[36:39], 0 offen
    buffer_load_dwordx4 v[36:39], v1, s[36:39], 0 offen offset:16
    """)
    for j in range(2):
        A(f"buffer_load_dwordx4 v[{GX+8*j}:{GX+8*j+3}], v1, s[16:19], s51 offen")
        A(f"buffer_load_dwordx4 v[{GX+8*j+4}:{GX+8*j+7}], v1, s[16:19], s51 offen offset:16")
        if j < 1: A("s_add_u32 s51, s51, 2048")
    A("""
    s_barrier
    s_barrier
    """)
    vstamp(A, cfg, 2, PV)
    for j in range(2): A(f"v_mov_b32 v{40+j}, 0")
    A("s_waitcnt vmcnt(0)")
    for k in range(8):
        for j in range(2):
            A(f"v_dot2c_f32_bf16 v{40+j}, v{GX+8*j+k}, v{32+k}")
        A("s_nop 1")
    A("v_lshlrev_b32 v3, 2, v0")
    A.nop(3)
    for mask in (1, 2, 4, 8, 16, 32):
        A(f"v_xor_b32 v4, {mask*4}, v3")
        for j in range(2): A(f"ds_bpermute_b32 v{5+j}, v4, v{40+j}")
        A("s_waitcnt lgkmcnt(0)")
        for j in range(2): A(f"v_add_f32 v{40+j}, v{40+j}, v{5+j}")
    A(f"v_cmp_eq_u32 vcc, 1, v0")
    A("s_nop 1")
    A(f"v_cndmask_b32 v40, v40, v41, vcc")
    A(f"""
    v_mul_f32 v40, {fhex(-LOG2E)}, v40
    v_exp_f32 v40, v40
    s_nop 0
    v_add_f32 v40, 1.0, v40
    v_rcp_f32 v40, v40
    s_lshl_b32 s47, s63, 2
    s_add_u32 s47, s47, {WS_G}
    s_mov_b64 exec, 3
    buffer_store_dword v40, v3, s[32:35], s47 offen sc1
    s_mov_b64 exec, -1
    """)
    setup_p2(A)
    setup_p3(A)
    A(f"""
    s_mov_b32 s85, s36
    s_mov_b32 s36, s86
    s_mov_b32 s37, s87
    s_mov_b32 s38, 256
    s_mov_b32 s39, 0x00020000
    v_mov_b32 v46, 0
    v_and_b32 v35, 15, v0
    v_lshlrev_b32 v35, 2, v35
    """)
    poll_issue(A, 47, 46, 36, "0")
    A("s_waitcnt vmcnt(0)")
    poll_check(A, 47, 46, 36, "0", "PG", expect="0x100")
    poll_issue(A, 47, 35, 32, "s78")
    A("s_waitcnt vmcnt(0)")
    poll_check(A, 47, 35, 32, "s78", "P1")
    vstamp(A, cfg, 3, PV)
    A(f"""
    v_lshlrev_b32 v3, 4, v0
    s_lshl_b32 s47, s50, 12          ; w*4096
    s_add_u32 m0, s47, {2*16384}
    s_lshl_b32 s51, s41, 1
    s_add_u32 s51, s51, 2
    s_and_b32 s51, s51, 15
    s_lshl_b32 s51, s51, 14
    s_add_u32 s51, s51, s47
    s_add_u32 s51, s51, s70
    """)
    for j in range(4):
        A(f"buffer_load_dwordx4 v3, s[32:35], s51 offen offset:{j*1024} sc1 lds")
    A("s_mov_b32 s36, s85")
    A.label("KF_JOIN")
    Q, K0, K1, V0, V1, SEL, NEGM, SA, SB, O, L, P = 8, 16, 20, 24, 28, 40, 48, 64, 80, 96, 112, 120
    PR = 33
    RD = 192
    if cfg.get("prof"): A(f"v_mov_b32 v{PR}, v{PV}")
    vstamp(A, cfg, 4, PR)
    A(f"""
    v_lshlrev_b32 v3, 4, v0          ; lane*16
    v_bfe_u32 v4, v0, 2, 1
    v_bfe_u32 v5, v0, 4, 1
    v_cmp_eq_u32 vcc, v4, v5
    v_mov_b32 v5, 0x3f803f80
    v_mov_b32 v4, 0
    v_cndmask_b32 v{SEL}, v4, v5, vcc
    v_cndmask_b32 v{SEL+1}, v4, v5, vcc
    v_cndmask_b32 v{SEL+2}, v4, v5, vcc
    v_cndmask_b32 v{SEL+3}, v4, v5, vcc
    s_lshl_b32 s47, s40, 11
    s_add_u32 s47, s47, {QST}
    v_add_u32 v6, s47, v3
    s_lshl_b32 s47, s40, 10
    s_add_u32 s47, s47, {RED0}
    v_add_u32 v7, s47, v3
    v_mov_b32 v1, v3                 ; cur
    v_add_u32 v2, 16384, v3          ; next
    """)
    for i in range(16): A(f"v_mov_b32 v{O+i}, 0")
    for i in range(4):
        A(f"v_mov_b32 v{L+i}, 0"); A(f"v_mov_b32 v{V1+i}, 0"); A(f"v_mov_b32 v{P+4+i}, 0")
    for i in (35, 36, 37, 38, 39, 45, 46): A(f"v_mov_b32 v{i}, 0")
    A(f"""
    s_mov_b32 s60, 0
    s_mov_b32 s61, 1
    s_waitcnt lgkmcnt(0)
    s_barrier
    """)
    vstamp(A, cfg, 5, PR)
    A(f"""
    ds_read_b128 v[{Q}:{Q+3}], v6
    ds_read_b128 v[{NEGM}:{NEGM+3}], v3
    ds_read_b128 v[{Q+4}:{Q+7}], v6 offset:1024
    ds_read_b128 v[{NEGM+4}:{NEGM+7}], v3 offset:1024
    ds_read_b128 v[{K0}:{K0+3}], v3 offset:4096
    ds_read_b128 v[{K1}:{K1+3}], v3 offset:{4096+1024}
    ds_read_b128 v[{V0}:{V0+3}], v3 offset:2048
    ds_read_b128 v[{RD}:{RD+3}], v7
    ds_read_b128 v[{RD+4}:{RD+7}], v7 offset:8192
    s_waitcnt lgkmcnt(7)
    v_mfma_f32_32x32x16_bf16 v[{SA}:{SA+15}], v[{NEGM}:{NEGM+3}], v[{Q}:{Q+3}], 0
    s_waitcnt lgkmcnt(5)
    v_mfma_f32_32x32x16_bf16 v[{SA}:{SA+15}], v[{NEGM+4}:{NEGM+7}], v[{Q+4}:{Q+7}], v[{SA}:{SA+15}]
    s_waitcnt lgkmcnt(3)
    v_mfma_f32_32x32x16_bf16 v[{SB}:{SB+15}], v[{K0}:{K0+3}], v[{Q}:{Q+3}], 0
    v_mfma_f32_32x32x16_bf16 v[{SB}:{SB+15}], v[{K1}:{K1+3}], v[{Q+4}:{Q+7}], v[{SB}:{SB+15}]
    s_waitcnt lgkmcnt(0)
    v_pk_add_f32 v[{RD}:{RD+1}], v[{RD}:{RD+1}], v[{RD+4}:{RD+5}]
    v_pk_add_f32 v[{RD+2}:{RD+3}], v[{RD+2}:{RD+3}], v[{RD+6}:{RD+7}]
    s_cmp_lg_u32 s40, 7
    buffer_store_dwordx4 v[{RD}:{RD+3}], v3, s[32:35], s79 offen sc1
    s_cbranch_scc1 KJ_NOZ
    v_lshlrev_b32 v4, 2, v0
    v_add_u32 v5, {ZRED}, v4
    ds_read_b32 v{RD+8}, v5
    ds_read_b32 v{RD+9}, v5 offset:256
    s_waitcnt lgkmcnt(0)
    v_add_f32 v{RD+8}, v{RD+8}, v{RD+9}
    buffer_store_dword v{RD+8}, v4, s[32:35], s89 offen sc1
    KJ_NOZ:
    """)
    A.nop(6)
    A(f"v_max3_f32 v4, v{SA}, v{SA+1}, v{SA+2}")
    A(f"v_max3_f32 v5, v{SA+3}, v{SA+4}, v{SA+5}")
    for k in range(6, 14, 4):
        A(f"v_max3_f32 v4, v4, v{SA+k}, v{SA+k+1}")
        A(f"v_max3_f32 v5, v5, v{SA+k+2}, v{SA+k+3}")
    A(f"v_max3_f32 v4, v4, v{SA+14}, v{SA+15}")
    for k in range(0, 16, 4):
        A(f"v_max3_f32 v4, v4, v{SB+k}, v{SB+k+1}")
        A(f"v_max3_f32 v5, v5, v{SB+k+2}, v{SB+k+3}")
    A("v_max_f32 v4, v4, v5")
    A("v_mov_b32 v5, v4")
    A.nop(2)
    A("v_permlane32_swap_b32 v4, v5")
    A("s_nop 0")
    A("v_max_f32 v4, v4, v5")
    A(f"v_add_f32 v4, {fhex(BIAS)}, v4")
    for i in range(16):
        A(f"v_sub_f32 v{NEGM+i}, 0, v4")
    for k in range(8):
        A(f"v_pk_add_f32 v[{SA+2*k}:{SA+2*k+1}], v[{SA+2*k}:{SA+2*k+1}], v[{NEGM}:{NEGM+1}]")
    vstamp(A, cfg, 6, PR)
    if cfg.get("prof") == "2":
        A("s_mov_b32 s100, 15"); A(f"v_mov_b32 v{PR}, 0"); bstamp(A, cfg, 2); A("s_mov_b32 s100, 0")
    def dma_ops():
        a = ["s_mov_b32 m0, s72", "s_add_u32 s81, s70, s71", "s_add_u32 s72, s72, 16384",
             "buffer_load_dwordx4 v3, s[32:35], s81 offen sc1 lds"]
        b = ["buffer_load_dwordx4 v3, s[32:35], s81 offen offset:1024 sc1 lds",
             f"s_and_b32 s72, s72, {RING-1}", "s_add_u32 s71, s71, 16384", "s_and_b32 s71, s71, 0x3ffff"]
        return a, b
    def dma_chunk():
        a, b = dma_ops()
        for l in a + b: A(l)
    def tile(i, Sa, Sb, sideA=(), sideB=(), end=()):
        e = lambda k: f"v_exp_f32 v{Sa+k}, v{Sa+k}"
        c = lambda k: f"v_cvt_pk_bf16_f32 v{P+k}, v{Sa+2*k}, v{Sa+2*k+1}"
        QK0 = f"v_mfma_f32_32x32x16_bf16 v[{Sb}:{Sb+15}], v[{K0}:{K0+3}], v[{Q}:{Q+3}], v[{NEGM}:{NEGM+15}]"
        QK1 = f"v_mfma_f32_32x32x16_bf16 v[{Sb}:{Sb+15}], v[{K1}:{K1+3}], v[{Q+4}:{Q+7}], v[{Sb}:{Sb+15}]"
        PV0 = f"v_mfma_f32_32x32x16_bf16 v[{O}:{O+15}], v[{V0}:{V0+3}], v[{P}:{P+3}], v[{O}:{O+15}]"
        PV1 = f"v_mfma_f32_32x32x16_bf16 v[{O}:{O+15}], v[{V1}:{V1+3}], v[{P+4}:{P+7}], v[{O}:{O+15}]"
        L0 = f"v_mfma_f32_16x16x32_bf16 v[{L}:{L+3}], v[{SEL}:{SEL+3}], v[{P}:{P+3}], v[{L}:{L+3}]"
        L1 = f"v_mfma_f32_16x16x32_bf16 v[{L}:{L+3}], v[{SEL}:{SEL+3}], v[{P+4}:{P+7}], v[{L}:{L+3}]"
        W = "s_waitcnt lgkmcnt(3)"
        def addr(tt, fr):
            return (f"v1 offset:{tt*4096+fr*1024}" if tt < 4 else f"v2 offset:{(tt-4)*4096+fr*1024}")
        rK0 = f"ds_read_b128 v[{K0}:{K0+3}], {addr(i+2, 0)}"; rK1 = f"ds_read_b128 v[{K1}:{K1+3}], {addr(i+2, 1)}"
        rV0 = f"ds_read_b128 v[{V0}:{V0+3}], {addr(i+1, 2)}"; rV1 = f"ds_read_b128 v[{V1}:{V1+3}], {addr(i, 3)}"
        seq = [e(0), e(1), W, PV1, rV1, *sideA, e(2), e(3), e(4), e(5), W, QK0, rK0, e(6), e(7), c(0), c(1), L1, c(2), c(3), e(8), W, QK1, rK1,
               *sideB, e(9), e(10), e(11), W, PV0, rV0, e(12), e(13), e(14), L0, e(15), c(4), c(5), c(6), c(7), *end]
        for x in seq:
            if callable(x): x()
            else: A(x)
    PRIO = [int(c) for c in cfg.get("prio", "3210")]
    def period(sides=None, dma=True):
        if dma: dma_chunk()
        for i in range(4):
            sa, sb, en = (sides or {}).get(i, ((), (), ()))
            if cfg.get("prio"): A(f"s_setprio {PRIO[i]}")
            tile(i, SA if i % 2 == 0 else SB, SB if i % 2 == 0 else SA, sa, sb, en)
        A(f"""
        v_mov_b32 v1, v2
        v_add_u32 v2, 16384, v2
        v_and_b32 v2, {RING-1}, v2
        """)
    A.label("K2_LOOP")
    period()
    if cfg.get("prof") == "2":
        pbar(A, cfg, "s_waitcnt vmcnt(2)")
        A("""
        s_add_u32 s60, s60, 1
        s_cmp_lg_u32 s60, s61
        s_cbranch_scc1 K2_LOOP
        """)
    else:
        A(f"""
        s_add_u32 s60, s60, 1
        s_cmp_lg_u32 s60, s61
        s_waitcnt vmcnt(2)
        s_barrier
        s_cbranch_scc1 K2_LOOP
        """)
    A(f"""
    s_cmp_eq_u32 s60, 1
    s_cbranch_scc1 KD_1
    s_cmp_eq_u32 s60, 3
    s_cbranch_scc1 KD_3
    s_cmp_eq_u32 s60, 4
    s_cbranch_scc1 KD_4
    s_branch KD_7
    KD_1:
    s_mov_b32 s61, 3
    """)
    set_flag(A, "s68")
    A(f"""
    s_branch K2_LOOP
    KD_3:
    v_lshlrev_b32 v46, 2, v0
    s_mov_b32 s61, 4
    """)
    poll_issue(A, 47, 46, 32, "s77")
    A("s_branch K2_LOOP")
    A.label("KD_4")
    vstamp(A, cfg, 7, PR)
    poll_check(A, 47, 46, 32, "s77", "PK")
    KVP = 192; ZP = 224
    A(f"""
    s_cmp_eq_u32 s40, 4
    s_cselect_b32 s84, 1, 0
    """)
    def kvload(rr):
        def f():
            A(f"buffer_load_dwordx4 v[{KVP+4*rr}:{KVP+4*rr+3}], v3, s[32:35], s75 offen sc1")
            A("s_add_u32 s75, s75, 8192")
        return f
    def zload(rr):
        def f():
            j = A.uid("KZ")
            A("s_cmp_eq_u32 s84, 0"); A(f"s_cbranch_scc1 {j}")
            A(f"buffer_load_dword v{ZP+rr}, v46, s[32:35], s76 offen offset:{256*rr} sc1")
            A(f"buffer_load_dword v{ZP+rr+1}, v46, s[32:35], s76 offen offset:{256*rr+256} sc1")
            A.label(j)
        return f
    period({i: ((kvload(2*i),), (kvload(2*i+1),), (zload(2*i),)) for i in range(4)})
    pbar(A, cfg, "s_waitcnt vmcnt(10)")
    def kvsum():
        A("s_waitcnt vmcnt(2)")
        A(f"""
        s_lshr_b32 s47, s40, 1
        s_lshl_b32 s47, s47, 10
        s_and_b32 s38, s40, 1
        s_lshl_b32 s38, s38, 3
        s_add_u32 s47, s47, s38
        s_add_u32 s47, s47, {KVT_L}
        v_add_u32 v4, s47, v3
        """)
        b = KVP
        for rr in range(1, 8):
            A(f"v_pk_add_f32 v[{b}:{b+1}], v[{b}:{b+1}], v[{b+4*rr}:{b+4*rr+1}]")
            A(f"v_pk_add_f32 v[{b+2}:{b+3}], v[{b+2}:{b+3}], v[{b+4*rr+2}:{b+4*rr+3}]")
        A(f"v_cvt_pk_bf16_f32 v{b}, v{b}, v{b+1}")
        A(f"v_cvt_pk_bf16_f32 v{b+1}, v{b+2}, v{b+3}")
        A(f"ds_write_b64 v4, v[{b}:{b+1}]")
        j = A.uid("KZS")
        A("s_cmp_eq_u32 s84, 0"); A(f"s_cbranch_scc1 {j}")
        for rr in range(1, 8):
            A(f"v_add_f32 v{ZP}, v{ZP}, v{ZP+rr}")
        A(f"""
        v_lshlrev_b32 v5, 1, v0
        v_add_u32 v5, {Z_L}, v5
        v_cvt_pk_bf16_f32 v{ZP}, v{ZP}, v{ZP}
        ds_write_b16 v5, v{ZP}
        """)
        A.label(j)
    period({1: ((), (), (kvsum,))})
    pbar(A, cfg, None)
    A(f"""
    s_mov_b32 s60, 6
    s_mov_b32 s61, 7
    s_and_b32 s47, s40, 5
    s_cmp_lg_u32 s47, 1
    s_cbranch_scc1 K2_LOOP
    """)
    KVT, ZR, NUM, DEN, OA = 192, 208, 224, 240, 244
    A(f"""
    v_add_u32 v4, {KVT_L}, v3
    v_lshrrev_b32 v5, 5, v0
    v_lshlrev_b32 v5, 3, v5
    v_add_u32 v5, {Z_L}, v5          ; Z + hh*8
    """)
    for s in range(4):
        A(f"ds_read_b128 v[{KVT+4*s}:{KVT+4*s+3}], v4 offset:{s*1024}")
        A(f"ds_read_b64 v[{ZR+4*s}:{ZR+4*s+1}], v5 offset:{32*s}")
        A(f"ds_read_b64 v[{ZR+4*s+2}:{ZR+4*s+3}], v5 offset:{32*s+16}")
    def zmask():
        A("v_bfe_u32 v4, v0, 2, 1")
        A("v_bfe_u32 v5, v0, 4, 1")
        A("v_cmp_eq_u32 vcc, v4, v5")
        A("v_mov_b32 v4, 0")
        A("s_nop 0")
        for k in range(16): A(f"v_cndmask_b32 v{ZR+k}, v4, v{ZR+k}, vcc")
    def amfma(t):
        def f():
            for s in range(4):
                c = "0" if s == 0 else f"v[{NUM}:{NUM+15}]"
                A(f"v_mfma_f32_32x32x16_bf16 v[{NUM}:{NUM+15}], v[{KVT+4*s}:{KVT+4*s+3}], v[{PHQ+16*t+4*s}:{PHQ+16*t+4*s+3}], {c}")
                c = "0" if s == 0 else f"v[{DEN}:{DEN+3}]"
                A(f"v_mfma_f32_16x16x32_bf16 v[{DEN}:{DEN+3}], v[{ZR+4*s}:{ZR+4*s+3}], v[{PHQ+16*t+4*s}:{PHQ+16*t+4*s+3}], {c}")
        return f
    def afin():
        A(f"v_add_f32 v4, {fhex(1e-6)}, v{DEN}")
        A("v_rcp_f32 v4, v4")
        A("s_nop 0")
        for k in range(8):
            A(f"v_pk_mul_f32 v[{NUM+2*k}:{NUM+2*k+1}], v[{NUM+2*k}:{NUM+2*k+1}], v[4:5] op_sel_hi:[1,0]")
        cvt_tile(A, OA, NUM)
        A(f"buffer_store_dwordx4 v[{OA}:{OA+3}], v3, s[32:35], s74 offen sc1")
        A(f"buffer_store_dwordx4 v[{OA+4}:{OA+7}], v3, s[32:35], s74 offen offset:1024 sc1")
        A("s_add_u32 s74, s74, 65536")
    period({0: ((), (), (zmask, amfma(0))), 1: ((), (), (afin, amfma(1))), 2: ((), (), (afin, amfma(2))), 3: ((), (), (afin, amfma(3)))})
    A.nop(12)
    afin()
    pbar(A, cfg, "s_waitcnt vmcnt(10)")
    A.label("KD_7")
    A(f"""
    s_mov_b32 s60, 7
    v_and_b32 v45, 31, v0
    v_lshlrev_b32 v45, 2, v45        ; (l&31)*4
    v_lshlrev_b32 v35, 2, v0         ; lane*4
    v_lshrrev_b32 v4, 3, v0
    v_lshlrev_b32 v5, 11, v4         ; row*2048
    v_and_b32 v7, 7, v0
    v_bfe_u32 v6, v0, 4, 1
    v_lshlrev_b32 v6, 2, v6
    v_xor_b32 v7, v7, v6
    v_lshl_add_u32 v5, v7, 4, v5
    s_lshl_b32 s47, s18, 9
    s_lshl_b32 s38, s19, 4
    s_add_u32 s47, s47, s38
    s_lshl_b32 s47, s47, 11
    s_lshl_b32 s38, s17, 7
    s_add_u32 s47, s47, s38          ; + C*128
    v_add_u32 v36, s47, v5           ; piece 0
    v_add_u32 v37, {16384 - 1024}, v36
    v_lshrrev_b32 v7, 5, v0          ; hh
    v_bfe_u32 v6, v0, 2, 2           ; i>>2
    v_lshl_add_u32 v7, v7, 2, v6
    v_lshlrev_b32 v7, 7, v7
    v_bfe_u32 v6, v0, 4, 1
    v_bfe_u32 v5, v0, 1, 1
    v_lshl_add_u32 v6, v6, 1, v5
    v_bfe_u32 v5, v0, 3, 1
    v_lshlrev_b32 v5, 2, v5
    v_xor_b32 v6, v6, v5
    v_lshl_add_u32 v7, v6, 4, v7
    v_and_b32 v5, 1, v0
    v_lshl_add_u32 v7, v5, 3, v7
    s_lshl_b32 s38, s18, 13
    v_add_u32 v38, s38, v7           ; cb=0
    v_xor_b32 v39, 64, v38           ; cb=1
    s_add_u32 s80, s30, {WSL(0)}
    """)
    def wo_ops(m0src):
        a = [m0src, "s_nop 0", "buffer_load_dwordx4 v36, s[20:23], s29 offen lds"]
        b = ["buffer_load_dwordx4 v37, s[20:23], s29 offen offset:1024 lds", f"s_add_u32 s29, s29, {64*2048}"]
        return a, b
    A.label("K2_LOOPB")
    wa, wb = wo_ops("s_mov_b32 m0, s80")
    wb = wb + ["s_add_u32 s80, s80, 16384"]
    ca, cb_ = dma_ops()
    period({0: (tuple(wa), tuple(wb), ()), 1: (tuple(wa), tuple(wb), ()), 2: (tuple(ca), tuple(cb_), ())}, dma=False)
    if cfg.get("prof") == "2":
        pbar(A, cfg, "s_waitcnt vmcnt(6)")
        A("""
        s_add_u32 s60, s60, 1
        s_cmp_eq_u32 s60, 10
        """)
    else:
        A("""
        s_add_u32 s60, s60, 1
        s_cmp_eq_u32 s60, 10
        s_waitcnt vmcnt(6)
        s_barrier
        """)
    A(f"""
    s_cbranch_scc1 KB_10
    s_cmp_eq_u32 s60, 9
    s_cbranch_scc1 KB_9
    s_and_b32 s47, s40, 5
    s_cmp_lg_u32 s47, 1
    s_cbranch_scc1 K2_LOOPB
    """)
    set_flag(A, "s88")
    A("s_branch K2_LOOPB")
    A.label("KB_9")
    poll_issue(A, 47, 35, 32, "s36")
    A("s_branch K2_LOOPB")
    A.label("KB_10")
    vstamp(A, cfg, 8, PR)
    poll_check(A, 47, 35, 32, "s36", "PA")
    G, OMG = 32, 34
    OF = 128
    vm = VM(A, ["W4", "W4", "W5", "W5", "c12", "c12"])
    vm.now("G", f"buffer_load_dword v{G}, v45, s[32:35], s31 offen sc1")
    nld = [0]
    def oload():
        k = nld[0]; nld[0] += 1
        s, j = divmod(k, 4)
        r = OF + 16*s + 4*j
        def f():
            vm.now("o", f"buffer_load_dwordx4 v[{r}:{r+3}], v3, s[32:35], s28 offen offset:{j*1024} sc1")
            if j == 3: A("s_add_u32 s28, s28, 4096")
        return f
    def lines(tag, ls):
        def f():
            for l in ls:
                if l.startswith("buffer_"): vm.now(tag, l)
                else: A(l)
        return f
    for n in range(10, 16):
        sides = {}
        if n <= 12:
            a, b = dma_ops()
            sides[0] = ((lines(f"c{n+3}", a),), (lines(f"c{n+3}", b),), (oload(),))
            sides[1] = ((oload(),), (oload(),), ())
            sides[2] = ((oload(),), (oload(),), ())
            sides[3] = ((oload(),), (), ())
        elif n <= 14:
            a, b = wo_ops(f"s_add_u32 m0, s30, {WSL(n - 7)}")
            sides[0] = ((lines("W", a),), (lines("W", b),), (oload(),))
            sides[1] = ((oload(),), (oload(),), ())
            sides[2] = ((oload(),), (), ())
            sides[3] = ((oload(),), (), ())
        else:
            sides[0] = ((oload(),), (oload(),), ())
            sides[1] = ((oload(),), (oload(),), ())
        period(sides, dma=False)
        if n <= 13:
            pbar(A, cfg, lambda: vm.wait(f"c{n+2}"))
        elif cfg.get("prof") == "2":
            bstamp(A, cfg, 0); bstamp(A, cfg, 1); bstamp(A, cfg, 2)
        if n == 12: vstamp(A, cfg, 9, PR)
    assert nld[0] == 32
    A(f"""
    s_mov_b32 s60, 16
    s_waitcnt lgkmcnt(0)
    v_mfma_f32_32x32x16_bf16 v[{O}:{O+15}], v[{V1}:{V1+3}], v[{P+4}:{P+7}], v[{O}:{O+15}]
    v_mfma_f32_16x16x32_bf16 v[{L}:{L+3}], v[{SEL}:{SEL+3}], v[{P+4}:{P+7}], v[{L}:{L+3}]
    """)
    vstamp(A, cfg, 10, PR)
    A("v_lshlrev_b32 v45, 3, v0")
    A.nop(12)
    A.label("K2_FIN")
    A(f"v_rcp_f32 v4, v{L}")
    A("s_nop 0")
    for k in range(8):
        A(f"v_pk_mul_f32 v[{O+2*k}:{O+2*k+1}], v[{O+2*k}:{O+2*k+1}], v[4:5] op_sel_hi:[1,0]")
    A("v_mov_b32 v6, 0")
    for k in range(16):
        A(f"v_fma_f32 v6, v{O+k}, 0, v6")
    A(f"""
    v_mov_b32 v7, {fhex(2.0**120)}
    v_cmp_u_f32 vcc, v6, v6
    v_cmp_nlt_f32 s[62:63], v{L}, v7
    s_or_b64 vcc, vcc, s[62:63]
    """)
    if cfg.get("force_fb"):
        A("s_mov_b64 vcc, -1")
    A(f"""
    s_cmp_eq_u32 s60, 16
    s_cselect_b64 vcc, vcc, 0
    s_cbranch_vccnz K2_FB
    """)
    for i in range(8):
        A(f"v_cvt_pk_bf16_f32 v{P+i}, v{O+2*i}, v{O+2*i+1}")
    A(f"buffer_store_dwordx4 v[{P}:{P+3}], v3, s[32:35], s73 offen sc1")
    A(f"buffer_store_dwordx4 v[{P+4}:{P+7}], v3, s[32:35], s73 offen offset:1024 sc1")
    A("s_waitcnt vmcnt(2)")
    A("s_barrier")
    vstamp(A, cfg, 11, PR)
    WFJ = [16, 24, 48, 56]
    ACCA, ACCB = 64, 96
    def waddr(s):
        A(f"v_add_u32 v40, {WSL(s)}, v38")
        A(f"v_add_u32 v41, {WSL(s)}, v39")
    def wreads(j):
        for cb in range(2):
            for sec in range(2):
                r = WFJ[j] + 4*cb + 2*sec
                A(f"ds_read_b64_tr_b16 v[{r}:{r+1}], v{40+cb} offset:{(16*j+8*sec)*128}")
    def gemm(acc_, after, owait):
        waddr(0)
        for j in range(4): wreads(j)
        for s in range(8):
            last = s == 7
            for j in range(4):
                if owait: A(f"s_waitcnt vmcnt({31 - (4*s + j)})")
                for cb in range(2):
                    n = (14 - 2*cb) if not last else (14 - 4*j - 2*cb)
                    A(f"s_waitcnt lgkmcnt({n})")
                    w = WFJ[j] + 4*cb; o = OF + 16*s + 4*j; a = acc_ + 16*cb
                    c = "0" if (s == 0 and j == 0) else f"v[{a}:{a+15}]"
                    A(f"v_mfma_f32_32x32x16_bf16 v[{a}:{a+15}], v[{w}:{w+3}], v[{o}:{o+3}], {c}")
                if not last:
                    if j == 0: waddr(s + 1)
                    wreads(j)
            if s in after: after[s]()
    def refill(s0):
        for s in range(s0, s0 + 4):
            a, b = wo_ops(f"s_add_u32 m0, s30, {WSL(s)}")
            for l in a + b: A(l)
    def a_flag():
        A("s_waitcnt vmcnt(0)")
        set_flag(A, "s69")
    def a_mid():
        A("s_barrier")
        A("""
        s_mov_b32 s20, s6
        s_mov_b32 s21, s7
        s_mov_b32 s29, 0
        """)
        refill(0)
    def a_poll():
        poll_issue(A, 46, 45, 32, "s83", n=2)
    FBPOS = int(cfg.get("fbpos", 2))
    gemm(ACCA, {FBPOS: a_flag, 3: a_mid, 5: a_poll}, False)
    A("s_barrier")
    refill(4)
    vstamp(A, cfg, 12, PR)
    A("s_waitcnt vmcnt(8)")
    poll_check(A, 46, 45, 32, "s83", "PB", n=2)
    A(f"s_add_u32 s28, s28, {4*MB - 32768}")
    for s in range(8):
        for j in range(4):
            r = OF + 16*s + 4*j
            A(f"buffer_load_dwordx4 v[{r}:{r+3}], v3, s[32:35], s28 offen offset:{j*1024} sc1")
        A("s_add_u32 s28, s28, 4096")
    A("s_waitcnt vmcnt(31)")
    A("s_barrier")
    gemm(ACCB, {}, True)
    vstamp(A, cfg, 13, PR)
    A(f"""
    v_sub_f32 v{OMG}, 1.0, v{G}
    v_and_b32 v4, 31, v0
    s_lshl_b32 s38, s19, 5
    v_add_u32 v4, s38, v4
    v_mul_u32_u24 v4, {K3_ROW}, v4
    v_lshrrev_b32 v5, 5, v0
    v_lshl_add_u32 v4, v5, 4, v4
    s_mul_i32 s38, s18, {K3_RED}
    v_add_u32 v4, s38, v4
    s_lshl_b32 s38, s40, 6
    v_add_u32 v10, s38, v0           ; tid
    v_lshrrev_b32 v5, 3, v10
    v_and_b32 v6, 7, v10             ; chunk
    v_mul_u32_u24 v7, {K3_ROW}, v5
    v_lshl_add_u32 v7, v6, 5, v7
    s_lshl_b32 s38, s16, 7
    v_add_u32 v5, s38, v5
    v_lshlrev_b32 v5, 11, v5
    v_lshl_add_u32 v5, v6, 4, v5
    s_lshl_b32 s38, s17, 7
    v_add_u32 v5, s38, v5
    """)
    for k in range(16):
        A(f"v_pk_mul_f32 v[{ACCA+2*k}:{ACCA+2*k+1}], v[{ACCA+2*k}:{ACCA+2*k+1}], v[{G}:{G+1}] op_sel_hi:[1,0]")
    A("s_barrier")
    srd(A, 24, 8, 4194304)
    A.nop(4)
    for k in range(16):
        A(f"v_pk_fma_f32 v[{ACCA+2*k}:{ACCA+2*k+1}], v[{ACCB+2*k}:{ACCB+2*k+1}], v[{OMG}:{OMG+1}], v[{ACCA+2*k}:{ACCA+2*k+1}] op_sel_hi:[1,0,1]")
    for cb in range(2):
        for q in range(4):
            r = ACCA + 16*cb + 4*q
            A(f"ds_write_b128 v4, v[{r}:{r+3}] offset:{cb*128 + q*32}")
    A("s_waitcnt lgkmcnt(0)")
    A("s_barrier")
    R = 128
    for it in range(2):
        for g in range(2):
            for hf in range(2):
                r = R + 16*it + 8*g + 4*hf
                A(f"ds_read_b128 v[{r}:{r+3}], v7 offset:{it*64*K3_ROW + g*K3_RED + hf*16}")
    for it in range(2):
        A(f"s_waitcnt lgkmcnt({4 - 4*it})")
        r = R + 16*it
        for k in range(4):
            A(f"v_pk_add_f32 v[{r+2*k}:{r+2*k+1}], v[{r+2*k}:{r+2*k+1}], v[{r+8+2*k}:{r+8+2*k+1}]")
        for k in range(4):
            A(f"v_cvt_pk_bf16_f32 v{r+k}, v{r+2*k}, v{r+2*k+1}")
        A(f"buffer_store_dwordx4 v[{r}:{r+3}], v5, s[24:27], 0 offen {cfg.get('ost', 'nt').replace('+', ' ')}")
        if it == 0: A(f"v_add_u32 v5, {64*2048}, v5")
    if cfg.get("prof"):
        A("s_waitcnt vmcnt(0)")
        vstamp(A, cfg, 14, PR)
        A(f"""
        s_mov_b32 s92, s14
        s_mov_b32 s93, s15
        s_mov_b32 s94, {64*MB}
        s_mov_b32 s95, 0x00020000
        s_lshl_b32 s90, s2, 3
        s_add_u32 s90, s90, s40
        s_lshl_b32 s90, s90, {8 if cfg.get("prof") in ("2", "3", "4") else 7}
        s_add_u32 s90, s90, {WS_PROFV}
        v_lshlrev_b32 v1, 2, v0
        s_mov_b64 exec, {-1 if cfg.get("prof") in ("2", "3", "4") else "0xffffffff"}
        buffer_store_dword v{PR}, v1, s[92:95], s90 offen
        """)
    A("s_endpgm")
    A.label("K2_FB")
    vstamp(A, cfg, 15, PR)
    A("s_mov_b32 s60, 17")
    A("s_mov_b32 s61, 0")
    for i in range(16): A(f"v_mov_b32 v{O+i}, 0")
    for i in range(4): A(f"v_mov_b32 v{L+i}, 0")
    A(f"v_mov_b32 v44, 0xff800000")
    A.label("K2_FBL")
    A(f"""
    buffer_load_dwordx4 v[{K0}:{K0+3}], v3, s[32:35], s70 offen sc1
    buffer_load_dwordx4 v[{K1}:{K1+3}], v3, s[32:35], s70 offen offset:1024 sc1
    buffer_load_dwordx4 v[{V0}:{V0+3}], v3, s[32:35], s70 offen offset:2048 sc1
    buffer_load_dwordx4 v[{V1}:{V1+3}], v3, s[32:35], s70 offen offset:3072 sc1
    s_add_u32 s70, s70, 4096
    s_waitcnt vmcnt(0)
    v_mfma_f32_32x32x16_bf16 v[{SA}:{SA+15}], v[{K0}:{K0+3}], v[{Q}:{Q+3}], 0
    v_mfma_f32_32x32x16_bf16 v[{SA}:{SA+15}], v[{K1}:{K1+3}], v[{Q+4}:{Q+7}], v[{SA}:{SA+15}]
    """)
    A.nop(12)
    A(f"v_max3_f32 v4, v{SA}, v{SA+1}, v{SA+2}")
    for k in range(3, 15, 2):
        A(f"v_max3_f32 v4, v4, v{SA+k}, v{SA+k+1}")
    A(f"v_max3_f32 v4, v4, v{SA+15}, v44")
    A("v_mov_b32 v5, v4")
    A.nop(2)
    A("v_permlane32_swap_b32 v4, v5")
    A("s_nop 0")
    A("v_max_f32 v4, v4, v5")
    A("v_sub_f32 v5, v44, v4")
    A("v_exp_f32 v5, v5")
    A("v_mov_b32 v44, v4")
    for k in range(16):
        A(f"v_sub_f32 v{SA+k}, v{SA+k}, v4")
    for k in range(16):
        A(f"v_exp_f32 v{SA+k}, v{SA+k}")
    for k in range(16):
        A(f"v_mul_f32 v{O+k}, v{O+k}, v5")
    for k in range(4):
        A(f"v_mul_f32 v{L+k}, v{L+k}, v5")
    for k in range(8):
        A(f"v_cvt_pk_bf16_f32 v{P+k}, v{SA+2*k}, v{SA+2*k+1}")
    A("s_nop 1")
    A(f"""
    v_mfma_f32_32x32x16_bf16 v[{O}:{O+15}], v[{V0}:{V0+3}], v[{P}:{P+3}], v[{O}:{O+15}]
    v_mfma_f32_16x16x32_bf16 v[{L}:{L+3}], v[{SEL}:{SEL+3}], v[{P}:{P+3}], v[{L}:{L+3}]
    v_mfma_f32_32x32x16_bf16 v[{O}:{O+15}], v[{V1}:{V1+3}], v[{P+4}:{P+7}], v[{O}:{O+15}]
    v_mfma_f32_16x16x32_bf16 v[{L}:{L+3}], v[{SEL}:{SEL+3}], v[{P+4}:{P+7}], v[{L}:{L+3}]
    s_add_u32 s61, s61, 1
    s_cmp_lt_u32 s61, 64
    """)
    A.nop(12)
    A("s_cbranch_scc1 K2_FBL")
    A("s_branch K2_FIN")
    A.label("KF_END")
    A("s_endpgm")
    return K, KG_LDS
```

```python
from common import *

KNAME = NAME + "_kernel"
K1_XS = 32768
K1_NX = 3
K1_WB = K1_XS * K1_NX
K1_SLOT = 12288
K1_NSLOT = 5
K1_WPHI = K1_WB + K1_SLOT * K1_NSLOT
K1_TBUF = 4352
RING = 65536
QST = 65536
TBUF0 = 81920
RED0 = 98304
ZRED = 114688
KVT_L = 116736
Z_L = 120832
KG_LDS = 163840
def WSL(s): return 65536 + 16384 * s if s < 6 else 16384 * (s - 6)
WS_F1 = WS_FLAG
WS_FK = WS_FLAG + 4096
WS_FA = WS_FLAG + 16384
WS_FB = WS_FLAG + 20480
BIAS = 80.0
K3_ROW = 272
K3_RED = 128 * K3_ROW
SPIN_MAX = 1 << 16
WS_PROFV = WS_PROF

def cvt_tile(A, dst, src):
    for i in range(8):
        A(f"v_cvt_pk_bf16_f32 v{dst+i}, v{src+2*i}, v{src+2*i+1}")

def bstamp(A, cfg, kind, reg=33):
    if cfg.get("prof") == "2":
        A("s_memtime s[96:97]")
        A(f"s_add_u32 m0, s100, {16*kind}")
        A("s_waitcnt lgkmcnt(0)")
        A(f"v_writelane_b32 v{reg}, s96, m0")
        if kind == 2: A("s_add_u32 s100, s100, 1")

def pbar(A, cfg, wait):
    bstamp(A, cfg, 0)
    if callable(wait): wait()
    elif wait: A(wait)
    bstamp(A, cfg, 1)
    A("s_barrier")
    bstamp(A, cfg, 2)

def vstamp(A, cfg, i, reg):
    if cfg.get("prof") == "1":
        A("s_memtime s[96:97]")
        A("s_memrealtime s[98:99]")
        A("s_waitcnt lgkmcnt(0)")
        A(f"v_writelane_b32 v{reg}, s96, {2*i}")
        A(f"v_writelane_b32 v{reg}, s98, {2*i+1}")

def rst(A, cfg, lane, reg=33):
    if cfg.get("prof") == "5":
        A("s_memrealtime s[96:97]")
        A("s_waitcnt lgkmcnt(0)")
        A(f"v_writelane_b32 v{reg}, s96, {lane}")

def poll_issue(A, vdst, vaddr, srd, soff, n=1):
    if n == 1: A(f"buffer_load_dword v{vdst}, v{vaddr}, s[{srd}:{srd+3}], {soff} offen sc1")
    else:      A(f"buffer_load_dwordx2 v[{vdst}:{vdst+1}], v{vaddr}, s[{srd}:{srd+3}], {soff} offen sc1")

def poll_check(A, vdst, vaddr, srd, soff, tag, expect=1, n=1):
    ok = A.uid(tag + "_OK"); sp = A.uid(tag + "_SP")
    def test():
        if n == 2: A(f"v_and_b32 v{vdst}, v{vdst}, v{vdst+1}")
        A(f"v_cmp_eq_u32 vcc, {expect}, v{vdst}")
        A("s_cmp_eq_u64 vcc, -1")
        A(f"s_cbranch_scc1 {ok}")
    test()
    A("s_mov_b32 s82, 0")
    A.label(sp)
    A("s_sleep 2")
    poll_issue(A, vdst, vaddr, srd, soff, n)
    A("s_add_u32 s82, s82, 1")
    A("s_waitcnt vmcnt(0)")
    test()
    A(f"s_cmp_lt_u32 s82, {SPIN_MAX}")
    A(f"s_cbranch_scc1 {sp}")
    A.label(ok)

def set_flag(A, soff):
    A(f"""
    s_mov_b64 exec, 1
    v_mov_b32 v4, 1
    v_mov_b32 v5, 0
    buffer_store_dword v4, v5, s[32:35], {soff} offen sc1
    s_mov_b64 exec, -1
    """)

class VM:
    def __init__(s, A, init=()): s.A = A; s.q = list(init)
    def op(s, tag, text):
        def f(): s.A(text); s.q.append(tag)
        return f
    def now(s, tag, text): s.op(tag, text)()
    def wait(s, *tags):
        idx = max([k for k, t in enumerate(s.q) if t in tags], default=-1)
        if idx < 0: return
        s.A(f"s_waitcnt vmcnt({len(s.q) - 1 - idx})")
        s.q = s.q[idx+1:]

def setup_p2(A):
    A(f"""
    s_lshl_b32 s70, s42, 18
    s_add_u32 s70, s70, {WS_KVB}
    s_lshl_b32 s47, s41, 1
    s_add_u32 s47, s47, 3
    s_and_b32 s47, s47, 15
    s_lshl_b32 s47, s47, 14
    s_lshl_b32 s38, s40, 11
    s_add_u32 s71, s47, s38
    s_add_u32 s72, s38, {3*16384}
    s_lshl_b32 s47, s41, 3
    s_add_u32 s47, s47, s40
    s_lshl_b32 s47, s47, 5
    s_add_u32 s47, s47, s42
    s_lshl_b32 s73, s47, 11
    s_add_u32 s73, s73, {WS_OB}
    s_lshr_b32 s39, s40, 1
    s_and_b32 s39, s39, 1            ; th
    s_lshl_b32 s47, s41, 3
    s_lshl_b32 s38, s39, 2
    s_add_u32 s47, s47, s38          ; r*8 + th*4
    s_lshl_b32 s47, s47, 5
    s_add_u32 s47, s47, s42
    s_lshl_b32 s74, s47, 11
    s_add_u32 s74, s74, {WS_OA}
    s_lshl_b32 s75, s42, 16
    s_lshl_b32 s47, s40, 10
    s_add_u32 s75, s75, s47
    s_add_u32 s75, s75, {WS_KVP}
    s_lshl_b32 s47, s41, 13
    s_add_u32 s79, s75, s47
    s_lshl_b32 s76, s42, 11
    s_add_u32 s76, s76, {WS_ZP}
    s_lshl_b32 s47, s41, 8
    s_add_u32 s89, s76, s47
    s_lshl_b32 s77, s42, 8
    s_add_u32 s77, s77, {WS_FK}
    s_lshl_b32 s47, s41, 5
    s_add_u32 s68, s77, s47
    s_lshl_b32 s47, s40, 2
    s_add_u32 s68, s68, s47
    s_lshl_b32 s78, s42, 6
    s_add_u32 s78, s78, {WS_F1}      ; F1 line
    s_lshl_b32 s47, s41, 3
    s_add_u32 s67, s78, s47
    s_lshl_b32 s38, s39, 2
    s_add_u32 s67, s67, s38
    s_lshl_b32 s88, s41, 8
    s_lshl_b32 s47, s42, 3
    s_add_u32 s88, s88, s47
    s_add_u32 s88, s88, s38
    s_add_u32 s88, s88, {WS_FA}
    s_lshl_b32 s47, s41, 1
    s_lshr_b32 s38, s40, 2
    s_add_u32 s47, s47, s38
    s_lshl_b32 s69, s47, 9
    s_lshl_b32 s47, s42, 4
    s_add_u32 s69, s69, s47
    s_and_b32 s47, s40, 3
    s_lshl_b32 s47, s47, 2
    s_add_u32 s69, s69, s47
    s_add_u32 s69, s69, {WS_FB}
    """)

def setup_p3(A):
    A(f"""
    s_load_dwordx2 s[4:5], s[0:1], 24
    s_load_dwordx2 s[6:7], s[0:1], 48
    s_load_dwordx2 s[8:9], s[0:1], 64
    s_lshr_b32 s16, s45, 1
    s_lshl_b32 s16, s16, 2
    s_lshr_b32 s47, s46, 3
    s_add_u32 s16, s16, s47          ; T = 4*(e>>1) + (i>>3)
    s_and_b32 s17, s45, 1
    s_lshl_b32 s17, s17, 3
    s_and_b32 s47, s46, 7
    s_add_u32 s17, s17, s47          ; C = 8*(e&1) + (i&7)
    s_lshr_b32 s18, s40, 2           ; grp
    s_and_b32 s19, s40, 3            ; tq
    s_lshl_b32 s47, s16, 2
    s_add_u32 s47, s47, s19          ; tb3
    s_lshl_b32 s28, s47, 16
    s_lshl_b32 s38, s18, 15
    s_add_u32 s28, s28, s38
    s_add_u32 s28, s28, {WS_OA}
    s_lshl_b32 s31, s47, 7
    s_add_u32 s31, s31, {WS_G}       ; g offset
    s_lshr_b32 s47, s16, 1
    s_lshl_b32 s36, s47, 8
    s_add_u32 s36, s36, {WS_FA}
    s_lshl_b32 s83, s16, 9
    s_add_u32 s83, s83, {WS_FB}
    s_lshl_b32 s30, s18, 13
    s_lshl_b32 s38, s19, 11
    s_add_u32 s30, s30, s38
    s_mov_b32 s29, 0
    s_waitcnt lgkmcnt(0)
    s_mov_b32 s20, s4
    s_mov_b32 s21, s5
    s_mov_b32 s22, {1024*2048}
    s_mov_b32 s23, 0x00020000
    """)

def gen_kg(A, cfg):
    K = KNAME
    F1POS = int(cfg.get("f1pos", 2))
    ROT = int(cfg.get("rot", 12))
    RSH = int(cfg.get("rsh", 0))
    ROT2 = int(cfg.get("rot2", 0))
    PV = 255
    kernel_begin(A, K)
    A(f"""
    s_cmp_ge_u32 s2, 256
    s_cbranch_scc1 KF_END
    s_load_dwordx2 s[4:5], s[0:1], 0
    s_load_dwordx2 s[6:7], s[0:1], 8
    s_load_dwordx2 s[8:9], s[0:1], 40
    s_load_dwordx2 s[10:11], s[0:1], 16
    s_load_dwordx2 s[12:13], s[0:1], 56
    s_load_dwordx2 s[14:15], s[0:1], 80
    s_load_dwordx2 s[86:87], s[0:1], 72
    v_lshrrev_b32 v1, 6, v0
    v_and_b32 v0, 63, v0
    v_readfirstlane_b32 s40, v1
    s_and_b32 s45, s2, 7
    s_lshr_b32 s46, s2, 3
    """)
    if cfg.get("prof"): A(f"v_mov_b32 v{PV}, 0")
    vstamp(A, cfg, 0, PV)
    if cfg.get("prof") == "4":
        A("s_memrealtime s[96:97]")
        A("s_waitcnt lgkmcnt(0)")
        A(f"v_writelane_b32 v{PV}, s96, 40")
    if cfg.get("hmap", "f") == "f":
        A("""
        s_and_b32 s41, s45, 1
        s_lshl_b32 s41, s41, 2
        s_lshr_b32 s47, s46, 3
        s_add_u32 s41, s41, s47          ; r = 4(e&1) + (i>>3)
        s_lshr_b32 s42, s45, 1
        s_lshl_b32 s42, s42, 3
        s_and_b32 s47, s46, 7
        s_add_u32 s42, s42, s47          ; h = 8(e>>1) + (i&7)
        s_waitcnt lgkmcnt(0)
        """)
    elif cfg.get("hmap") == "h":
        A("""
        s_lshr_b32 s41, s45, 1
        s_lshl_b32 s41, s41, 1
        s_lshr_b32 s47, s46, 4
        s_add_u32 s41, s41, s47          ; r = 2(e>>1) + (i>>4)
        s_and_b32 s42, s45, 1
        s_lshl_b32 s42, s42, 4
        s_and_b32 s47, s46, 15
        s_add_u32 s42, s42, s47          ; h = 16(e&1) + (i&15)
        s_waitcnt lgkmcnt(0)
        """)
    else:
        A("""
        s_and_b32 s41, s46, 7            ; r
        s_lshl_b32 s42, s45, 2
        s_lshr_b32 s47, s46, 3
        s_add_u32 s42, s42, s47          ; h = 4e + (i>>3)
        s_waitcnt lgkmcnt(0)
        """)
    def rstamp(lane):
        if cfg.get("prof") == "4":
            A("s_memrealtime s[96:97]")
            A("s_waitcnt lgkmcnt(0)")
            A(f"v_writelane_b32 v{PV}, s96, {lane}")
    rstamp(41)
    srd(A, 32, 14, WS_USED)
    A("""
    s_cmp_ge_u32 s40, 4
    s_cbranch_scc1 K1_LOADER
    """)
    PF3 = cfg.get("pf3")
    PF4 = cfg.get("pf4")
    L2D = int(cfg.get("l2d", 2)) if not (PF3 or PF4) else 0
    TL = int(cfg.get("tl", 4))
    TC = int(cfg.get("tc", 8))
    def touch_addr(w, dst, t0, t1, t2, shift, sa):
        OFFL = int(cfg.get("offl", 0))
        A(f"""
        s_and_b32 s47, s42, 1
        s_lshl_b32 s47, s47, 2
        s_and_b32 s38, s41, 3
        s_add_u32 s47, s47, s38
        s_lshl_b32 s47, s47, 2
        v_bfe_u32 v{t0}, v0, 2, 1
        v_lshlrev_b32 v{t0}, 5, v{t0}    ; 32 * block
        v_and_b32 v{t2}, 3, v0
        v_add3_u32 v{dst}, v{t2}, v{t0}, s47
        v_mul_u32_u24 v{dst}, 6144, v{dst}
        v_lshrrev_b32 v{t1}, 3, v0       ; segment
        v_lshl_add_u32 v{dst}, v{t1}, 11, v{dst}
        s_lshr_b32 s47, s42, 1
        s_lshl_b32 s47, s47, 7
        v_add_u32 v{dst}, s47, v{dst}
        s_and_b32 {sa}, s42, 7
        """)
        if OFFL:
            A(f"""
            s_lshl_b32 s47, {sa}, 2
            s_add_u32 s47, s47, s38
            s_lshl_b32 s47, s47, 2
            v_add_u32 v{t2}, s47, v{t2}
            v_lshrrev_b32 v{t1}, 5, v{t2}
            v_and_b32 v{t2}, 31, v{t2}
            v_add_u32 v{t2}, v{t2}, v{t0}
            v_mul_u32_u24 v{t2}, 6144, v{t2}
            v_lshl_add_u32 v{t2}, v{t1}, 11, v{t2}
            s_lshr_b32 s47, s42, 1
            s_or_b32 s47, s47, 3
            s_lshl_b32 s47, s47, 7
            v_add_u32 v{t2}, s47, v{t2}
            v_cmp_lt_u32 vcc, 23, v0
            s_nop 1
            v_cndmask_b32 v{dst}, v{dst}, v{t2}, vcc
            s_cmp_lt_u32 {sa}, 6
            s_cselect_b32 s63, 32, 0
            """)
            if OFFL == 1:
                A(f"""
                s_lshl_b32 s47, {sa}, 4
                s_mul_i32 s38, {sa}, 80
                s_sub_u32 s38, s38, {6*80 - 96}
                s_cmp_lt_u32 {sa}, 6
                s_cselect_b32 s47, s47, s38
                s_cselect_b32 {sa}, 16, 40
                s_cselect_b32 s38, 0, 40
                s_cmp_eq_u32 {w}, 3
                s_cselect_b32 {sa}, s38, {sa}
                s_cselect_b32 s38, 40, 0
                s_add_u32 s47, s47, s38
                """)
            elif OFFL == 2:
                A(f"""
                s_mul_i32 s47, {sa}, 43
                s_cmp_lt_u32 {sa}, 5
                s_cselect_b32 s38, 43, 41
                s_cmp_lt_u32 {sa}, 6
                s_cselect_b32 {sa}, s38, 0
                s_cmp_eq_u32 {w}, 3
                s_cselect_b32 {sa}, 0, {sa}
                """)
            else:
                A(f"""
                s_lshl_b32 s47, {sa}, 5
                s_cmp_eq_u32 {w}, 3
                s_cselect_b32 {sa}, 0, 32
                """)
        else:
            A(f"""
            s_mov_b32 s63, 24
            s_lshl_b32 s47, {sa}, 5
            s_cmp_eq_u32 {w}, 3
            s_cselect_b32 {sa}, 0, 32
            """)
        A(f"""
        s_lshl_b32 s38, s41, 8
        s_add_u32 s47, s47, s38
        v_add_u32 v{t1}, s47, v0
        v_lshlrev_b32 v{t1}, 11, v{t1}   ; x row
        v_bfe_u32 v{t0}, v0, 1, 1
        s_and_b32 s38, s45, 1
        v_xor_b32 v{t0}, s38, v{t0}      ; 0 : ours
        v_and_b32 v{t2}, 3, v0
        s_lshr_b32 s38, s45, 1
        v_xor_b32 v{t2}, s38, v{t2}
        s_cmp_ge_u32 {w}, 2
        s_cselect_b64 vcc, -1, 0
        s_cselect_b32 s47, {sa}, s63
        s_mov_b32 s38, {(TC - TL) * 32 * 6144}
        s_cselect_b32 s38, {(TC - TL) * 64}, s38
        v_cndmask_b32 v{dst}, v{dst}, v{t1}, vcc
        v_cndmask_b32 v{t0}, v{t0}, v{t2}, vcc
        v_cmp_eq_u32 vcc, 0, v{t0}
        """)
        if shift:
            A(f"""
            v_mov_b32 v{t1}, s38
            s_nop 0
            v_cndmask_b32 v{t1}, 0, v{t1}, vcc
            v_add_u32 v{dst}, v{dst}, v{t1}
            v_cmp_gt_u32 vcc, s47, v0
            v_mov_b32 v{t1}, 0x7ffffff0
            s_nop 0
            v_cndmask_b32 v{dst}, v{t1}, v{dst}, vcc
            """)
        else:
            A(f"""
            v_cmp_gt_u32 s[62:63], s47, v0
            v_mov_b32 v{t1}, 0x7ffffff0
            s_and_b64 vcc, vcc, s[62:63]
            v_cndmask_b32 v{dst+2}, v{t1}, v{dst}, vcc
            v_cndmask_b32 v{dst}, v{t1}, v{dst}, s[62:63]
            """)
        A(f"""
        s_cmp_eq_u32 {w}, 0
        s_cselect_b32 s92, s6, s8
        s_cselect_b32 s93, s7, s9
        s_cmp_ge_u32 {w}, 2
        s_cselect_b32 s92, s4, s92
        s_cselect_b32 s93, s5, s93
        s_mov_b32 s94, {1024*6144}
        s_cselect_b32 s94, {2048*2048}, s94
        s_mov_b32 s95, 0x00020000
        """)
    rng = lambda t: range(*map(int, t.split(":"))) if t else range(0)
    PFA_ = rng(cfg.get("pfa", f"0:{4+L2D}")); PFB_ = rng(cfg.get("pfb", ""))
    PFA, PFD = 252, 253
    def l2pf(step=None):
        if step is None:
            A("s_and_b32 s55, s59, 31")
        else:
            A(f"s_add_u32 s55, s63, {step}")
            A("s_and_b32 s55, s55, 31")
        A(f"s_mul_i32 s55, s55, {32*6144}")
        A(f"buffer_load_dword v{PFD}, v{PFA}, s[92:95], s55 offen")
        if step is None: A("s_add_u32 s59, s59, 1")
    PF2 = cfg.get("pf2")
    def touch():
        return [f"buffer_load_dword v{PFD}, v{PFA}, s[92:95], s55 offen", "s_add_u32 s55, s55, s59", "s_cmp_eq_u32 s55, s56",
                "s_cselect_b32 s55, 0, s55", "s_xor_b32 s59, s59, s57"]
    if PF2:
        XW = int(cfg.get("pfx", 1))
        HM = cfg.get("hmap", "f") == "h"
        RB = 1 if HM else 2
        HB = 4 if HM else 3
        R20 = 0 if cfg.get("r2") == "early0" else 4
        A(f"""
        s_and_b32 s47, s42, 1
        s_lshl_b32 s47, s47, {RB}
        s_and_b32 s38, s41, {(1 << RB) - 1}
        s_add_u32 s47, s47, s38
        s_lshr_b32 s38, s42, 1
        s_lshl_b32 s47, s47, {4 - RB}
        s_lshl_b32 s38, s38, 7
        v_and_b32 v4, {(1 << (4 - RB)) - 1}, v0
        v_add_u32 v4, s47, v4
        v_mul_u32_u24 v4, 6144, v4
        v_lshrrev_b32 v5, {4 - RB}, v0
        v_lshl_add_u32 v4, v5, 11, v4    ; + segment * 2048
        v_add_u32 v4, s38, v4
        s_lshl_b32 s47, s41, 8
        s_and_b32 s38, s42, {(1 << HB) - 1}
        s_lshl_b32 s38, s38, {8 - HB}
        s_add_u32 s47, s47, s38
        v_add_u32 v6, s47, v0
        v_lshlrev_b32 v6, 11, v6
        s_cmp_eq_u32 s40, 0
        s_cselect_b64 vcc, -1, 0
        s_cselect_b32 s38, {1 << (7 - HB)}, {3 << (4 - RB)}
        v_mov_b32 v5, 0x7ffffff0
        v_cndmask_b32 v4, v4, v6, vcc
        v_cmp_gt_u32 vcc, s38, v0
        s_cmp_eq_u32 s40, 2
        s_cselect_b32 s92, s6, s8
        s_cselect_b32 s93, s7, s9
        s_cmp_ge_u32 s40, 2
        s_cselect_b32 s62, {1024*6144}, 0
        v_cndmask_b32 v{PFA}, v5, v4, vcc
        s_lshr_b32 s63, s45, {RSH}
        s_mul_i32 s63, s63, {ROT}
        s_and_b32 s47, s45, 1
        s_mul_i32 s47, s47, {ROT2}
        s_add_u32 s63, s63, s47
        s_add_u32 s63, s63, {R20}
        s_and_b32 s55, s63, 31
        s_mul_i32 s55, s55, {32*6144}
        s_mov_b32 s59, {32*6144}
        s_mov_b32 s57, 0
        s_mov_b32 s56, {1024*6144}
        s_cmp_lg_u32 s40, 0
        s_cbranch_scc1 K1_PFW
        s_mov_b32 s92, s4
        s_mov_b32 s93, s5
        s_mov_b32 s62, {2048*2048 if XW else 0}
        s_lshr_b32 s55, s63, 1
        s_and_b32 s55, s55, 15
        s_lshl_b32 s55, s55, 7
        s_mov_b32 s59, {1 << (18 - HB)}
        s_mov_b32 s57, {(1 << (18 - HB)) ^ ((128 - (1 << (18 - HB))) & 0xffffffff)}
        s_mov_b32 s56, 2048
        K1_PFW:
        s_mov_b32 s94, s62
        s_mov_b32 s95, 0x00020000
        """)
        if cfg.get("r2") == "early0":
            for t in range(int(cfg.get("e0n", 4))):
                for l in touch(): A(l)
        if cfg.get("r2") == "early":
            for t in range(L2D):
                for l in touch(): A(l)
    elif L2D:
        A(f"""
        s_and_b32 s47, s42, 1
        s_lshl_b32 s47, s47, 2
        s_and_b32 s38, s41, 3
        s_add_u32 s47, s47, s38
        s_lshr_b32 s38, s42, 1
        
        s_lshl_b32 s47, s47, 2
        s_lshl_b32 s38, s38, 7
        v_and_b32 v4, 3, v0
        v_add_u32 v4, s47, v4
        v_mul_u32_u24 v4, 6144, v4
        v_lshrrev_b32 v5, 2, v0
        v_lshl_add_u32 v4, v5, 11, v4    ; + segment * 2048
        v_add_u32 v4, s38, v4
        v_mov_b32 v5, 0x7ffffff0
        v_cmp_gt_u32 vcc, 12, v0
        s_cmp_eq_u32 s40, 2
        s_cselect_b32 s92, s6, s8
        s_cselect_b32 s93, s7, s9
        s_cmp_ge_u32 s40, 2
        s_cselect_b32 s62, {1024*6144}, 0
        s_mov_b32 s94, s62
        s_mov_b32 s95, 0x00020000
        v_cndmask_b32 v{PFA}, v5, v4, vcc
        s_lshr_b32 s63, s45, {RSH}
        s_mul_i32 s63, s63, {ROT}
        s_add_u32 s59, s63, {4 + L2D}
        """)
        for t in PFA_: l2pf(t)
    if PF4:
        assert ROT == 0 and ROT2 == 0
        touch_addr("s40", PFA, 4, 5, 6, False, "s62")
        A(f"""
        s_cmp_ge_u32 s40, 2
        s_mov_b32 s59, {64*6144}
        s_cselect_b32 s59, 128, s59
        s_mov_b32 s55, 0
        """)
        for t in range(int(cfg.get("r0", 0))):
            A(f"buffer_load_dword v{PFD}, v{PFA}, s[92:95], s55 offen")
            A("s_add_u32 s55, s55, s59")
        A(f"""
        s_cmp_ge_u32 s40, 2
        s_mov_b32 s55, {TL*32*6144}
        s_cselect_b32 s55, {TL*64}, s55
        """)
    rstamp(42)
    setup_p2(A)
    rstamp(43)
    A(f"""
    s_cmp_lg_u32 s40, 0
    s_cbranch_scc1 K1_NOZ
    v_lshlrev_b32 v4, 2, v0
    v_lshrrev_b32 v6, 2, v0
    v_lshlrev_b32 v6, 9, v6
    v_and_b32 v7, 3, v0
    v_lshl_add_u32 v6, v7, 2, v6
    v_mov_b32 v5, 0
    s_mov_b64 exec, 3
    buffer_store_dword v5, v4, s[32:35], s67 offen sc1
    buffer_store_dword v5, v4, s[32:35], s88 offen sc1
    s_mov_b64 exec, 0xff
    buffer_store_dword v5, v4, s[32:35], s68 offen sc1
    buffer_store_dword v5, v6, s[32:35], s69 offen sc1
    s_mov_b32 s36, s86
    s_mov_b32 s37, s87
    s_mov_b32 s38, 256
    s_mov_b32 s39, 0x00020000
    """)
    LATE = cfg.get("late")
    if not LATE:
        A("""
        s_waitcnt vmcnt(0)
        s_mov_b64 exec, 1
        v_mov_b32 v6, 1
        buffer_atomic_add v6, v5, s[36:39], 0 offen
        s_mov_b64 exec, -1
        """)
    else:
        A("s_mov_b64 exec, -1")
    A("""
    K1_NOZ:
    """)
    rstamp(44)
    setup_p3(A)
    rstamp(45)
    XA, WA = 4, 20
    XB, WB = 32, 48
    ACC = 60
    acc = lambda sg, tt: ACC + (sg * 4 + tt) * 16
    A(f"""
    s_lshr_b32 s50, s40, 1           ; th
    s_and_b32 s51, s40, 1            ; type
    v_and_b32 v4, 31, v0
    v_lshrrev_b32 v5, 5, v0          ; hh
    v_bfe_u32 v6, v0, 2, 2           ; f = (l>>2)&3
    v_bfe_u32 v7, v0, 1, 3           ; (row>>1)&7
    v_xor_b32 v7, v5, v7
    v_lshlrev_b32 v7, 4, v7
    v_lshl_add_u32 v1, v4, 7, v7
    s_lshl_b32 s47, s50, 14
    v_add_u32 v1, s47, v1            ; vxa0
    v_xor_b32 v2, 32, v1             ; vxa1
    v_lshl_add_u32 v7, v5, 3, v6
    v_lshlrev_b32 v7, 6, v7          ; *64
    v_bfe_u32 v8, v0, 4, 1           ; g&1
    v_lshl_add_u32 v7, v8, 5, v7
    v_and_b32 v9, 3, v0
    v_lshl_add_u32 v7, v9, 3, v7
    s_lshl_b32 s47, s51, 11
    s_add_u32 s47, s47, {K1_WB}
    v_add_u32 v3, s47, v7            ; vwa
    s_mov_b32 s48, {1 if cfg.get("spread") else 0}
    s_mov_b32 s49, {K1_SLOT}
    s_mov_b32 s65, 0
    s_mov_b32 s52, {K1_SLOT}
    s_mov_b32 s53, {-(K1_NSLOT-1)*K1_SLOT & 0xffffffff}
    s_mov_b32 s54, 32
    s_mov_b32 s64, 0                 ; x slot
    s_mov_b32 s66, {-(K1_NX-1)*K1_XS & 0xffffffff}
    """)
    for i in range(192):
        A(f"v_mov_b32 v{ACC+i}, 0")
    if PF2 and cfg.get("r2") != "early":
        for t in range(L2D + (4 - int(cfg.get("e0n", 4)) if cfg.get("r2") == "early0" else 0)):
            for l in touch(): A(l)
    rstamp(46)
    A("s_barrier")
    vstamp(A, cfg, 1, PV)
    if cfg.get("prof") == "4":
        A("s_memrealtime s[96:97]")
        A("s_waitcnt lgkmcnt(0)")
        A(f"v_writelane_b32 v{PV}, s96, 0")
    if cfg.get("prof") == "3":
        A("s_memtime s[96:97]")
        A("s_mov_b32 s100, 0")
        A("s_waitcnt lgkmcnt(0)")
        A("s_mov_b32 s101, s96")
    if L2D:
        for t in PFB_: l2pf(t)
    def reads(X, W, s):
        r = []
        xa = 1 if s == 0 else 2
        for tt in range(4):
            r.append(f"ds_read_b128 v[{X+4*tt}:{X+4*tt+3}], v{xa} offset:{tt*4096}")
        for sg in range(3):
            for sec in range(2):
                r.append(f"ds_read_b64_tr_b16 v[{W+4*sg+2*sec}:{W+4*sg+2*sec+1}], v3 offset:{sg*4096 + s*1024 + sec*256}")
        return [r[4], r[5], r[0], r[1], r[2], r[3], r[6], r[7], r[8], r[9]]
    def mfmas(X, W):
        m = []
        for sg in range(3):
            for tt in range(4):
                a = acc(sg, tt)
                w = f"v[{W+4*sg}:{W+4*sg+3}]"; x = f"v[{X+4*tt}:{X+4*tt+3}]"
                if cfg.get("exp16"):
                    m.append(f"v_mfma_f32_16x16x32_bf16 v[{a}:{a+3}], {w}, {x}, v[{a}:{a+3}]\nv_mfma_f32_16x16x32_bf16 v[{a+8}:{a+11}], {x}, {w}, v[{a+8}:{a+11}]")
                elif sg < 2: m.append(f"v_mfma_f32_32x32x16_bf16 v[{a}:{a+15}], {w}, {x}, v[{a}:{a+15}]")
                else:      m.append(f"v_mfma_f32_32x32x16_bf16 v[{a}:{a+15}], {x}, {w}, v[{a}:{a+15}]")
        return m
    for l in reads(XA, WA, 0): A(l)
    if LATE:
        A("""
        s_cmp_lg_u32 s40, 0
        s_cbranch_scc1 K1_NOARR
        s_mov_b32 s96, s86
        s_mov_b32 s97, s87
        s_mov_b32 s98, 256
        s_mov_b32 s99, 0x00020000
        v_mov_b32 v32, 0
        v_mov_b32 v33, 1
        s_waitcnt vmcnt(0)
        s_mov_b64 exec, 1
        buffer_atomic_add v33, v32, s[96:99], 0 offen
        s_mov_b64 exec, -1
        K1_NOARR:
        """)
    if PF4:
        for t in range((TC - TL) // 2):
            A(f"buffer_load_dword v{PFD}, v{PFA+2}, s[92:95], s55 offen")
            A("s_add_u32 s55, s55, s59")
    A.label("K1_CLOOP")
    A("s_waitcnt lgkmcnt(0)")
    m = mfmas(XA, WA); r = reads(XB, WB, 1)
    extra0 = {4: ["s_and_b32 s63, s54, 1", "s_add_u32 s64, s64, s63", f"s_cmp_eq_u32 s64, {K1_NX}",
                  f"s_cselect_b32 s65, s66, {K1_XS}", "s_cselect_b32 s64, 0, s64", "s_mul_i32 s65, s65, s63"],
              6: ["s_add_u32 s48, s48, 1", f"s_cmp_eq_u32 s48, {K1_NSLOT}", "s_cselect_b32 s49, s53, s52", "s_cselect_b32 s48, 0, s48"],
              7: ["v_xor_b32 v1, 64, v1", "v_xor_b32 v2, 64, v2"], 8: ["v_add_u32 v1, s65, v1", "v_add_u32 v2, s65, v2"], 9: ["v_add_u32 v3, s49, v3"]}
    SPREAD = cfg.get("spread")
    extra1 = {}
    if SPREAD:
        extra0 = {6: ["v_xad_u32 v1, v1, 64, s65"], 8: ["v_xad_u32 v2, v2, 64, s65"], 10: ["v_add_u32 v3, s49, v3"]}
        extra1 = {5: ["s_sub_u32 s54, s54, 1", "s_and_b32 s63, s54, 1", "s_add_u32 s64, s64, s63"],
                  6: [f"s_cmp_eq_u32 s64, {K1_NX}", f"s_cselect_b32 s65, s66, {K1_XS}", "s_cselect_b32 s64, 0, s64"],
                  7: ["s_mul_i32 s65, s65, s63", "s_add_u32 s48, s48, 1", f"s_cmp_eq_u32 s48, {K1_NSLOT}"],
                  8: ["s_cselect_b32 s49, s53, s52", "s_cselect_b32 s48, 0, s48"],
                  11: ["s_cmp_lg_u32 s54, 0"]}
        if PF2:
            t_ = touch()
            th_, tk_ = map(int, cfg.get("tpos", "1:9").split(":"))
            ex_ = extra1 if th_ else extra0
            after_dec = th_ == 1 and tk_ >= 5
            cmp_ = f"s_cmp_ge_u32 s54, {4 + L2D}" if after_dec else f"s_cmp_gt_u32 s54, {4 + L2D}"
            def addx(d, k, ls, front=False):
                d[k] = (ls + d.get(k, [])) if front else (d.get(k, []) + ls)
            if th_ == 1 and tk_ == 9:
                extra1[9] = [cmp_, "s_cselect_b32 s94, s62, 0", t_[0]]
                extra1[10] = t_[1:4]
                extra1[11] = [t_[4], "s_cmp_lg_u32 s54, 0"]
            else:
                assert not (th_ == 1 and 3 < tk_ < 9)
                addx(ex_, tk_, [cmp_, "s_cselect_b32 s94, s62, 0", t_[0]])
                addx(ex_, tk_ + 1, [t_[1], t_[2], t_[3], t_[4]])
        elif L2D:
            extra1[9] = [f"s_cmp_ge_u32 s54, {4 + L2D}", "s_cselect_b32 s94, s62, 0", "s_and_b32 s55, s59, 31"]
            extra1[10] = [f"s_mul_i32 s55, s55, {32*6144}", "s_add_u32 s59, s59, 1", f"buffer_load_dword v{PFD}, v{PFA}, s[92:95], s55 offen"]
    for k in range(12):
        A(m[k])
        if k < 5:
            A(r[2*k]); A(r[2*k+1])
        for l in extra0.get(k, []): A(l)
        if L2D and k == 10 and not SPREAD:
            assert not PF2
            A(f"s_cmp_gt_u32 s54, {4 + L2D}")
            A("s_cselect_b32 s94, s62, 0")
            l2pf()
    A("s_waitcnt lgkmcnt(0)")
    m = mfmas(XB, WB); r = reads(XA, WA, 0)
    for k in range(12):
        A(m[k])
        if k < 5:
            A(r[2*k]); A(r[2*k+1])
        for l in extra1.get(k, []): A(l)
        if k == 8 and not SPREAD:
            A("s_sub_u32 s54, s54, 1"); A("s_cmp_lg_u32 s54, 0")
    if cfg.get("prof") == "3":
        A("s_memtime s[96:97]")
        A("s_barrier")
        A("s_memtime s[98:99]")
        A("s_waitcnt lgkmcnt(0)")
        A("s_sub_u32 s98, s98, s96")
        A("s_add_u32 s100, s100, s98")
        A("s_cmp_lg_u32 s54, 0")
    elif cfg.get("prof") == "4":
        A("s_barrier")
        A("s_memrealtime s[96:97]")
        A("s_sub_u32 m0, 32, s54")
        A("s_waitcnt lgkmcnt(0)")
        A(f"v_writelane_b32 v{PV}, s96, m0")
        A("s_cmp_lg_u32 s54, 0")
    else:
        A("s_barrier")
    A("s_cbranch_scc1 K1_CLOOP")
    A("s_waitcnt lgkmcnt(0)")
    if cfg.get("prof") == "3":
        A("s_memtime s[96:97]")
        A("s_waitcnt lgkmcnt(0)")
        A("s_sub_u32 s96, s96, s101")
        A(f"v_writelane_b32 v{PV}, s100, 0")
        A(f"v_writelane_b32 v{PV}, s96, 2")
    vstamp(A, cfg, 2, PV)
    A(f"""
    v_lshlrev_b32 v1, 4, v0          ; lane*16
    s_cmp_lg_u32 s51, 0
    s_cbranch_scc1 K1_E1T1
    s_mov_b32 s56, {fhex(32**-0.5 * LOG2E)}
    s_mov_b32 s57, s56
    s_lshl_b32 s47, s50, 13
    s_add_u32 s47, s47, {QST}
    v_add_u32 v44, s47, v1
    """)
    A.nop(6)
    T1 = 4
    V = acc(1, 0)
    Q = acc(1, 0) + 32
    for tt in range(4):
        for k in range(8):
            a = acc(1, tt) + 2*k
            A(f"v_pk_mul_f32 v[{a}:{a+1}], v[{a}:{a+1}], s[56:57]")
        cvt_tile(A, T1 + 8*tt, acc(1, tt))
        A(f"ds_write_b128 v44, v[{T1+8*tt}:{T1+8*tt+3}] offset:{tt*2048}")
        A(f"ds_write_b128 v44, v[{T1+8*tt+4}:{T1+8*tt+7}] offset:{tt*2048+1024}")
    for tt in range(4):
        cvt_tile(A, V + 8*tt, acc(2, tt))
    A("s_branch K1_E2J")
    A.label("K1_E1T1")
    A(f"""
    s_lshl_b32 s58, s41, 1
    s_add_u32 s58, s58, s50
    s_lshl_b32 s58, s58, 14
    s_add_u32 s58, s58, s70
    s_lshl_b32 s47, s50, 14
    v_add_u32 v44, s47, v1
    """)
    A.nop(10)
    for tt in range(4):
        cvt_tile(A, T1 + 8*tt, acc(1, tt))
        A(f"buffer_store_dwordx4 v[{T1+8*tt}:{T1+8*tt+3}], v1, s[32:35], s58 offen sc1")
        A(f"buffer_store_dwordx4 v[{T1+8*tt+4}:{T1+8*tt+7}], v1, s[32:35], s58 offen offset:1024 sc1")
        A("s_add_u32 s58, s58, 4096")
    A(f"s_sub_u32 s58, s58, {4*4096 - 2048}")
    for tt in range(4):
        cvt_tile(A, V + 8*tt, acc(2, tt))
        A(f"buffer_store_dwordx4 v[{V+8*tt}:{V+8*tt+3}], v1, s[32:35], s58 offen sc1")
        A(f"buffer_store_dwordx4 v[{V+8*tt+4}:{V+8*tt+7}], v1, s[32:35], s58 offen offset:1024 sc1")
        A("s_add_u32 s58, s58, 4096")
    for tt in range(4):
        A(f"ds_write_b128 v44, v[{T1+8*tt}:{T1+8*tt+3}] offset:{tt*4096}")
        A(f"ds_write_b128 v44, v[{T1+8*tt+4}:{T1+8*tt+7}] offset:{tt*4096+1024}")
        A(f"ds_write_b128 v44, v[{V+8*tt}:{V+8*tt+3}] offset:{tt*4096+2048}")
        A(f"ds_write_b128 v44, v[{V+8*tt+4}:{V+8*tt+7}] offset:{tt*4096+3072}")
    A.label("K1_E2J")
    WP = 36
    A(f"""
    v_lshrrev_b32 v5, 5, v0          ; hh
    v_bfe_u32 v6, v0, 2, 2           ; i>>2
    v_lshl_add_u32 v6, v5, 2, v6     ; 4hh + (i>>2)
    v_bfe_u32 v7, v0, 4, 1
    v_lshlrev_b32 v7, 5, v7
    v_and_b32 v8, 3, v0
    v_lshl_add_u32 v7, v8, 3, v7     ; (g&1)*32 + (i&3)*8
    v_lshl_add_u32 v2, v6, 6, v7
    v_add_u32 v2, {K1_WPHI}, v2
    """)
    for s in range(2):
        for sec in range(2):
            A(f"ds_read_b64_tr_b16 v[{WP+4*s+2*sec}:{WP+4*s+2*sec+1}], v2 offset:{(16*s+8*sec)*64}")
    A(f"""
    s_mul_i32 s47, s50, {K1_TBUF}
    s_add_u32 s47, s47, {TBUF0}
    v_mul_u32_u24 v25, 136, v6
    v_add_u32 v25, v25, v7
    v_add_u32 v25, s47, v25
    v_and_b32 v8, 31, v0
    v_mul_u32_u24 v24, 136, v8
    v_lshl_add_u32 v24, v5, 3, v24
    v_add_u32 v24, s47, v24
    v_bfe_u32 v8, v0, 2, 1
    v_bfe_u32 v9, v0, 4, 1
    v_cmp_eq_u32 vcc, v8, v9
    v_mov_b32 v9, 0x3f803f80
    v_mov_b32 v8, 0
    v_cndmask_b32 v20, v8, v9, vcc
    v_cndmask_b32 v21, v8, v9, vcc
    v_cndmask_b32 v22, v8, v9, vcc
    v_cndmask_b32 v23, v8, v9, vcc
    """)
    for tt in range(4):
        cvt_tile(A, Q + 8*tt, acc(0, tt))
    A("s_waitcnt lgkmcnt(0)")
    for tt in range(4):
        a = acc(0, tt)
        A(f"v_mfma_f32_32x32x16_bf16 v[{a}:{a+15}], v[{WP}:{WP+3}], v[{Q+8*tt}:{Q+8*tt+3}], 0")
    for tt in range(4):
        a = acc(0, tt)
        A(f"v_mfma_f32_32x32x16_bf16 v[{a}:{a+15}], v[{WP+4}:{WP+7}], v[{Q+8*tt+4}:{Q+8*tt+7}], v[{a}:{a+15}]")
    A(f"""
    s_mov_b32 s56, {fhex(LOG2E)}
    s_mov_b32 s57, s56
    """)
    A.nop(10)
    EP = acc(2, 0)
    PH = EP + 16
    AF = PH + 16
    KV0 = AF + 16
    KV1 = 44
    Z0, Z1, SEL1 = 12, 16, 20
    PHQ = 128
    def kv_mfmas(tt):
        out = []
        for s in range(2):
            for fb in range(2):
                kv = KV0 if fb == 0 else KV1
                z = Z0 if fb == 0 else Z1
                af = AF + (fb*2+s)*4
                c = "0" if (tt == 0 and s == 0) else f"v[{kv}:{kv+15}]"
                cz = "0" if (tt == 0 and s == 0) else f"v[{z}:{z+3}]"
                out.append(f"v_mfma_f32_32x32x16_bf16 v[{kv}:{kv+15}], v[{af}:{af+3}], v[{V+8*tt+4*s}:{V+8*tt+4*s+3}], {c}")
                out.append(f"v_mfma_f32_16x16x32_bf16 v[{z}:{z+3}], v[{SEL1}:{SEL1+3}], v[{af}:{af+3}], {cz}")
        return out
    for tt in range(4):
        P = acc(0, tt)
        A(f"v_max3_f32 v4, v{P}, v{P+1}, v{P+2}")
        A(f"v_max3_f32 v5, -v{P}, -v{P+1}, -v{P+2}")
        for k in range(3, 15, 2):
            A(f"v_max3_f32 v4, v4, v{P+k}, v{P+k+1}")
            A(f"v_max3_f32 v5, v5, -v{P+k}, -v{P+k+1}")
        A(f"v_max_f32 v4, v4, v{P+15}")
        A(f"v_max_f32 v5, v5, -v{P+15}")
        A.nop(2)
        A("v_permlane32_swap_b32 v4, v5")
        A("s_nop 0")
        A("v_max_f32 v4, v4, v5")
        A("v_mov_b32 v5, v4")
        A.nop(2)
        A("v_permlane32_swap_b32 v4, v5")
        A("s_nop 0")
        A(f"v_mul_f32 v6, {fhex(-LOG2E)}, v4")
        A(f"v_mul_f32 v8, {fhex(-LOG2E)}, v5")
        for k in range(8):
            A(f"v_pk_fma_f32 v[{EP+2*k}:{EP+2*k+1}], v[{P+2*k}:{P+2*k+1}], s[56:57], v[6:7] op_sel_hi:[1,1,0]")
            A(f"v_pk_fma_f32 v[{P+2*k}:{P+2*k+1}], v[{P+2*k}:{P+2*k+1}], s[56:57], v[8:9] op_sel_hi:[1,1,0] neg_lo:[0,1,0] neg_hi:[0,1,0]")
        for k in range(16):
            A(f"v_exp_f32 v{EP+k}, v{EP+k}")
            A(f"v_exp_f32 v{P+k}, v{P+k}")
        if tt > 0:
            j = A.uid("K1_KVS")
            A("s_cmp_lg_u32 s51, 0"); A(f"s_cbranch_scc1 {j}")
            A("s_waitcnt lgkmcnt(0)")
            for l in kv_mfmas(tt-1): A(l)
            A.label(j)
        A(f"v_pk_add_f32 v[4:5], v[{EP}:{EP+1}], v[{EP+2}:{EP+3}]")
        A(f"v_pk_add_f32 v[6:7], v[{P}:{P+1}], v[{P+2}:{P+3}]")
        for k in range(2, 8):
            A(f"v_pk_add_f32 v[4:5], v[4:5], v[{EP+2*k}:{EP+2*k+1}]")
            A(f"v_pk_add_f32 v[6:7], v[6:7], v[{P+2*k}:{P+2*k+1}]")
        A("v_add_f32 v4, v4, v5")
        A("v_add_f32 v6, v6, v7")
        A.nop(2)
        A("v_permlane32_swap_b32 v4, v6")
        A("s_nop 0")
        A("v_add_f32 v4, v4, v6")
        A("v_rcp_f32 v4, v4")
        A("s_nop 0")
        A("v_mov_b32 v6, v4")
        A.nop(2)
        A("v_permlane32_swap_b32 v4, v6")
        A("s_nop 0")
        for k in range(8):
            A(f"v_pk_mul_f32 v[{EP+2*k}:{EP+2*k+1}], v[{EP+2*k}:{EP+2*k+1}], v[4:5] op_sel_hi:[1,0]")
            A(f"v_pk_mul_f32 v[{P+2*k}:{P+2*k+1}], v[{P+2*k}:{P+2*k+1}], v[6:7] op_sel_hi:[1,0]")
        j1 = A.uid("K1_T0"); j2 = A.uid("K1_TJ")
        A("s_cmp_eq_u32 s51, 0"); A(f"s_cbranch_scc1 {j1}")
        cvt_tile(A, PHQ + 16*tt, EP)
        cvt_tile(A, PHQ + 16*tt + 8, P)
        if tt == F1POS:
            A("s_waitcnt vmcnt(0)")
            set_flag(A, "s67")
            vstamp(A, cfg, 3, PV)
        A(f"s_branch {j2}")
        A.label(j1)
        cvt_tile(A, PH, EP)
        cvt_tile(A, PH + 8, P)
        for sign in range(2):
            for b in range(4):
                A(f"ds_write_b64 v24, v[{PH+8*sign+2*b}:{PH+8*sign+2*b+1}] offset:{sign*64+b*16}")
        for fb in range(2):
            for s in range(2):
                for sec in range(2):
                    af = AF + (fb*2+s)*4 + 2*sec
                    A(f"ds_read_b64_tr_b16 v[{af}:{af+1}], v25 offset:{(16*s+8*sec)*136 + fb*64}")
        A.label(j2)
    A("s_cmp_lg_u32 s51, 0")
    A("s_cbranch_scc1 KF_JOIN")
    A("s_waitcnt lgkmcnt(0)")
    for l in kv_mfmas(3): A(l)
    A(f"""
    s_lshl_b32 s47, s50, 13
    s_add_u32 s47, s47, {RED0}
    v_add_u32 v2, s47, v1
    v_and_b32 v3, 31, v0
    v_lshlrev_b32 v3, 2, v3
    s_lshl_b32 s47, s50, 8
    s_add_u32 s47, s47, {ZRED}
    v_add_u32 v3, s47, v3
    """)
    A.nop(8)
    A(f"ds_write_b32 v3, v{Z0}")
    A(f"ds_write_b32 v3, v{Z1} offset:128")
    for fb in range(2):
        kv = KV0 if fb == 0 else KV1
        for q in range(4):
            A(f"ds_write_b128 v2, v[{kv+4*q}:{kv+4*q+3}] offset:{fb*4096+q*1024}")
    A("s_branch KF_JOIN")
    A.label("K1_LOADER")
    if cfg.get("lprio"): A(f"s_setprio {cfg.get('lprio')[0]}")
    srd(A, 16, 4, 2048*2048)
    srd(A, 20, 6, 1024*6144)
    srd(A, 24, 8, 1024*6144)
    A(f"""
    s_sub_u32 s50, s40, 4            ; w
    s_lshr_b32 s44, s50, 1
    s_cmp_eq_u32 s44, 0
    s_cselect_b32 s28, s6, s8
    s_cselect_b32 s29, s7, s9
    """)
    A(f"s_mov_b32 s30, {1024*6144}")
    A("s_mov_b32 s31, 0x00020000")
    R1 = cfg.get("r1", "1") if cfg.get("pf2") else (cfg.get("r1", "0") if (PF3 or PF4) else "0")
    if R1 != "0":
        HM = cfg.get("hmap", "f") == "h"
        RB = 1 if HM else 2; HB = 4 if HM else 3
        NW = 3 << (4 - RB)
        A(f"""
        s_lshr_b32 s47, s45, {RSH}
        s_mul_i32 s47, s47, {ROT}
        s_and_b32 s51, s45, 1
        s_mul_i32 s51, s51, {ROT2}
        s_add_u32 s47, s47, s51
        s_and_b32 s51, s50, 1
        s_lshl_b32 s51, s51, 1
        s_add_u32 s51, s51, s47
        v_mul_u32_u24 v20, 43, v0
        v_lshrrev_b32 v20, {10 if HM else 9}, v20
        v_mul_u32_u24 v21, {NW}, v20
        v_sub_u32 v21, v0, v21           ; lane % NW
        v_add_u32 v20, s51, v20
        v_and_b32 v20, 31, v20
        v_mul_u32_u24 v20, {32*6144}, v20
        s_and_b32 s51, s42, 1
        s_lshl_b32 s51, s51, {RB}
        s_and_b32 s52, s41, {(1 << RB) - 1}
        s_add_u32 s51, s51, s52
        s_lshl_b32 s51, s51, {4 - RB}
        v_and_b32 v22, {(1 << (4 - RB)) - 1}, v21
        v_add_u32 v22, s51, v22
        v_mul_u32_u24 v22, 6144, v22
        v_lshrrev_b32 v21, {4 - RB}, v21
        v_lshl_add_u32 v22, v21, 11, v22
        s_lshr_b32 s51, s42, 1
        s_lshl_b32 s51, s51, 7
        v_add3_u32 v20, v20, v22, s51
        v_mov_b32 v23, 0x7ffffff0
        v_cmp_gt_u32 vcc, {2 * NW}, v0
        s_lshl_b32 s51, s41, 8
        s_and_b32 s52, s42, {(1 << HB) - 1}
        s_lshl_b32 s52, s52, {8 - HB}
        v_cndmask_b32 v20, v23, v20, vcc
        s_add_u32 s51, s51, s52
        s_lshl_b32 s52, s50, {6 - HB}
        s_add_u32 s51, s51, s52
        buffer_load_dword v24, v20, s[28:31], 0 offen
        v_and_b32 v21, {(1 << (6 - HB)) - 1}, v0
        v_add_u32 v21, s51, v21
        v_lshlrev_b32 v21, 11, v21
        v_lshrrev_b32 v22, {6 - HB}, v0
        s_lshr_b32 s47, s47, 1
        v_add_u32 v22, s47, v22
        v_and_b32 v22, 15, v22
        v_lshl_add_u32 v21, v22, 7, v21
        v_cmp_gt_u32 vcc, {2 << (6 - HB)}, v0
        s_nop 1
        v_cndmask_b32 v21, v23, v21, vcc
        buffer_load_dword v25, v21, s[16:19], 0 offen
        """)
    srd(A, 36, 10, 32*2048)
    A(f"""
    v_lshrrev_b32 v1, 3, v0
    v_lshrrev_b32 v2, 4, v0
    v_and_b32 v3, 7, v0
    v_xor_b32 v3, v3, v2
    v_lshlrev_b32 v3, 4, v3
    v_lshl_add_u32 v4, v1, 11, v3
    s_lshl_b32 s47, s41, 8
    s_lshl_b32 s51, s50, 6
    s_add_u32 s47, s47, s51
    s_lshl_b32 s47, s47, 11          ; (r*256 + 64w)*2048
    v_add_u32 v4, s47, v4            ; piece 0
    v_xor_b32 v5, 64, v4
    v_add_u32 v5, 16384, v5
    v_add_u32 v6, 32768, v4
    v_add_u32 v7, 32768, v5
    v_add_u32 v12, 65536, v4
    v_add_u32 v13, 65536, v5
    v_add_u32 v14, 98304, v4
    v_add_u32 v15, 98304, v5
    v_lshrrev_b32 v1, {3 if cfg.get("expw") else 2}, v0
    s_and_b32 s47, s50, 1
    s_lshl_b32 s47, s47, 4
    v_add_u32 v1, s47, v1            ; krow = 16*(w&1) + (l>>2)
    v_mul_u32_u24 v1, 6144, v1
    v_and_b32 v3, {7 if cfg.get("expw") else 3}, v0
    v_lshl_add_u32 v1, v3, 4, v1
    s_lshl_b32 s47, s42, 6           ; 64h
    {"s_and_b32 s47, s47, 0x780" if cfg.get("expw") else ""}
    s_lshl_b32 s51, s44, 11          ; type*2048
    s_add_u32 s52, s47, s51
    v_add_u32 v9, s52, v1            ; seg1 : B.q / B.k
    s_sub_u32 s52, 2048, s51
    s_add_u32 s52, s52, s47
    v_add_u32 v8, s52, v1            ; seg0 : A.k / A.q
    s_add_u32 s52, s47, 4096
    v_add_u32 v10, s52, v1           ; seg2 : A.v / B.v
    v_lshlrev_b32 v11, 4, v0
    s_and_b32 s51, s50, 1
    s_lshl_b32 s51, s51, 10
    s_lshl_b32 s47, s42, 11
    s_add_u32 s47, s47, s51
    s_add_u32 m0, s51, {K1_WPHI}
    s_lshl_b32 s55, s50, 13          ; w*8192  (x pieces)
    {"s_waitcnt vmcnt(0)" if R1 == "1" else ""}
    buffer_load_dwordx4 v11, s[36:39], s47 offen lds
    s_lshl_b32 s51, s50, 10
    s_add_u32 s56, s51, {K1_WB}      ; W pieces : + w*1024
    s_lshr_b32 s47, s45, {RSH}
    s_mul_i32 s47, s47, {ROT}
    s_and_b32 s51, s45, 1
    s_mul_i32 s51, s51, {ROT2}
    s_add_u32 s47, s47, s51
    s_and_b32 s47, s47, 31
    s_lshl_b32 s58, s47, 6           ; soffset x
    s_mul_i32 s59, s47, {32*6144}    ; soffset W
    s_mov_b32 s60, 0                 ; block
    s_mov_b32 s61, s55               ; x slot
    s_mov_b32 s62, s56               ; W slot
    s_add_u32 s55, s55, {K1_XS*K1_NX}
    s_add_u32 s56, s56, {K1_SLOT*K1_NSLOT}
    """)
    if PF3:
        TE = int(cfg.get("te", 2))
        OFFL = int(cfg.get("offl", 0))
        XT = int(cfg.get("pfx", 1))
        BW = TE // 2; LB = BW.bit_length() - 1
        assert cfg.get("hmap", "f") == "f"
        A(f"""
        s_and_b32 s51, s42, 7            ; head within the XCD
        s_and_b32 s52, s41, 3            ; token block within the XCD
        s_and_b32 s63, s42, 1
        s_lshl_b32 s63, s63, 2
        s_add_u32 s63, s63, s52          ; share of the pair's weight lines
        s_lshl_b32 s63, s63, 2           ; first row
        s_and_b32 s64, s50, 1
        s_lshl_b32 s64, s64, {5 + LB}    ; first row of this wave's group of blocks
        s_add_u32 s63, s63, s64
        v_bfe_u32 v27, v0, 2, {LB})
        v_lshlrev_b32 v30, 5, v27        ; 32 * block
        v_and_b32 v26, 3, v0
        v_add3_u32 v26, v26, v30, s63    ; row
        v_mul_u32_u24 v26, 6144, v26
        v_lshrrev_b32 v27, {2 + LB}, v0  ; segment
        v_lshl_add_u32 v26, v27, 11, v26
        s_lshr_b32 s63, s42, 1
        s_lshl_b32 s63, s63, 7
        v_add_u32 v26, s63, v26          ; + column of the pair
        v_mov_b32 v29, 0x7ffffff0
        v_cmp_gt_u32 vcc, 3, v27
        """.replace("v_bfe_u32 v27, v0, 2, 0)", "v_mov_b32 v27, 0").replace(")\n", "\n"))
        if OFFL:
            A(f"""
            s_cmp_lt_u32 s51, 6
            s_cselect_b64 vcc, vcc, 0
            v_cndmask_b32 v26, v29, v26, vcc
            s_lshl_b32 s63, s51, 2
            s_add_u32 s63, s63, s52
            s_lshl_b32 s63, s63, 2
            v_and_b32 v28, 3, v0
            v_add_u32 v31, s63, v28
            v_and_b32 v28, 31, v31
            v_add3_u32 v28, v28, v30, s64
            v_mul_u32_u24 v28, 6144, v28
            v_lshrrev_b32 v31, 5, v31
            v_lshl_add_u32 v28, v31, 11, v28
            s_lshr_b32 s63, s42, 1
            s_or_b32 s63, s63, 3
            s_lshl_b32 s63, s63, 7
            v_add_u32 v28, s63, v28
            v_cmp_eq_u32 vcc, 3, v27
            s_cmp_lt_u32 s51, 6
            s_cselect_b64 vcc, vcc, 0
            v_cndmask_b32 v26, v26, v28, vcc
            """)
        else:
            A("s_nop 1\nv_cndmask_b32 v26, v29, v26, vcc")
        if OFFL == 2:
            A(f"""
            s_mul_i32 s63, s51, 43
            v_add_u32 v27, s63, v0
            v_cmp_gt_u32 vcc, 43, v0
            s_movk_i32 s63, 0x100
            v_cmp_gt_u32 s[64:65], s63, v27
            s_and_b64 vcc, vcc, s[64:65]
            s_cmp_lt_u32 s51, 6
            s_cselect_b64 vcc, vcc, 0
            """)
        else:
            A(f"""
            s_lshl_b32 s63, s51, 5
            v_add_u32 v27, s63, v0
            v_cmp_gt_u32 vcc, 32, v0
            """)
        A(f"""
        s_lshl_b32 s63, s41, 8
        v_add_u32 v27, s63, v27          ; x row
        v_lshlrev_b32 v27, 11, v27
        v_cndmask_b32 v27, v29, v27, vcc
        s_lshr_b32 s63, s58, 6
        s_add_u32 s63, s63, {TL}
        s_and_b32 s63, s63, 31
        s_mul_i32 s64, s63, {32*6144}
        s_lshr_b32 s63, s63, 1
        s_add_u32 s63, s63, s50
        s_and_b32 s63, s63, 15
        s_lshl_b32 s65, s63, 7           ; x offset
        s_cmp_lt_u32 s50, {BW}
        s_cselect_b32 s67, {2048*2048 if XT else 0}, 0
        s_cmp_lt_u32 s50, 2
        s_cselect_b32 s92, s6, s8
        s_cselect_b32 s93, s7, s9
        s_mov_b32 s94, 0
        s_mov_b32 s95, 0x00020000
        s_mov_b32 s88, s4
        s_mov_b32 s89, s5
        s_mov_b32 s90, 0
        s_mov_b32 s91, 0x00020000
        """)
    if PF4:
        touch_addr("s50", 26, 27, 28, 29, True, "s66")
        A(f"""
        s_mov_b32 s67, s94
        s_cmp_ge_u32 s50, 2
        s_mov_b32 s64, {TL*32*6144}
        s_cselect_b32 s64, {TL*64}, s64
        s_mov_b32 s65, {64*6144}
        s_cselect_b32 s65, 128, s65
        """)
    rstamp(42)
    if cfg.get("lprio"): A(f"s_setprio {cfg.get('lprio')[1]}")
    A("K1_LLOOP:")
    XV = [4, 5, 6, 7, 12, 13, 14, 15]
    def ld_x(i0=0, i1=8):
        for i in range(i0, i1):
            A(f"s_add_u32 m0, s61, {i*1024}")
            A("s_nop 0")
            A(f"buffer_load_dwordx4 v{XV[i]}, s[16:19], s58 offen lds")
        if i1 == 8: A(f"""
        s_add_u32 s58, s58, 128
        s_and_b32 s58, s58, 2047
        s_add_u32 s61, s61, {K1_XS}
        s_cmp_eq_u32 s61, s55
        s_cselect_b32 s47, {K1_XS*K1_NX}, 0
        s_sub_u32 s61, s61, s47
        """)
    def ld_w():
        for sg in range(3):
            A(f"s_add_u32 m0, s62, {sg*4096}")
            A("s_nop 0")
            A(f"buffer_load_dwordx4 v{8+sg}, s[{20+4*sg}:{23+4*sg}], s59 offen lds")
        A(f"""
        s_add_u32 s59, s59, {32*6144}
        s_cmp_eq_u32 s59, {1024*6144}
        s_cselect_b32 s59, 0, s59
        s_add_u32 s62, s62, {K1_SLOT}
        s_cmp_eq_u32 s62, s56
        s_cselect_b32 s47, {K1_SLOT*K1_NSLOT}, 0
        s_sub_u32 s62, s62, s47
        """)
    def lsync(n=14):
        if cfg.get("prof") == "3":
            A("s_memtime s[96:97]")
            A(f"s_waitcnt vmcnt({n})")
            A("s_memtime s[98:99]")
            A("s_barrier")
            A("s_memtime s[90:91]")
            A("s_waitcnt lgkmcnt(0)")
            A("s_sub_u32 s96, s98, s96")
            A("s_add_u32 s100, s100, s96")
            A("s_sub_u32 s90, s90, s98")
            A("s_add_u32 s101, s101, s90")
        else:
            A(f"s_waitcnt vmcnt({n})")
            A("s_barrier")
    if cfg.get("prof") == "3":
        A("s_cmp_lg_u32 s60, 0")
        A("s_cbranch_scc1 K1_LP3")
        A("s_mov_b32 s100, 0")
        A("s_mov_b32 s101, 0")
        A.label("K1_LP3")
    BAL = int(cfg.get("bal", 0))
    NT = 2 if PF3 else 1 if PF4 else 0
    if BAL:
        ld_w(); ld_x(0, 8 - BAL)
    else:
        ld_x(); ld_w()
    A("""
    s_cmp_lt_u32 s60, 4
    s_cbranch_scc1 K1_LS1
    """)
    lsync(14 - BAL + NT)
    A("K1_LS1:")
    if BAL: ld_x(8 - BAL, 8)
    ld_w()
    if PF4:
        A(f"""
        s_cmp_le_u32 s60, {30 - TL}
        s_cselect_b32 s94, s67, 0
        buffer_load_dword v31, v26, s[92:95], s64 offen
        s_add_u32 s64, s64, s65
        """)
    if PF3:
        A(f"""
        s_and_b32 s63, s60, {TE - 1}
        s_cmp_le_u32 s60, {32 - TL - TE}
        s_cselect_b32 s63, s63, 1
        s_cmp_eq_u32 s63, 0
        s_cselect_b32 s94, {1024*6144}, 0
        s_cselect_b32 s90, s67, 0
        s_cselect_b32 s63, {TE*32*6144}, 0
        s_cselect_b32 s66, {TE*64}, 0
        buffer_load_dword v31, v26, s[92:95], s64 offen
        buffer_load_dword v31, v27, s[88:91], s65 offen
        s_add_u32 s64, s64, s63
        s_cmp_eq_u32 s64, {1024*6144}
        s_cselect_b32 s64, 0, s64
        s_add_u32 s65, s65, s66
        s_and_b32 s65, s65, 2047
        """)
    A("""
    s_cmp_lt_u32 s60, 2
    s_cbranch_scc1 K1_LS2
    """)
    if cfg.get("prof") == "4":
        A("s_cmp_lg_u32 s60, 2"); A("s_cbranch_scc1 K1_P4A"); rstamp(43); A(f"s_waitcnt vmcnt({14 + 2*NT})"); rstamp(44); A("K1_P4A:")
    lsync(14 + 2*NT)
    A(f"""
    K1_LS2:
    s_add_u32 s60, s60, 2
    s_cmp_lt_u32 s60, 32
    s_cbranch_scc1 K1_LLOOP
    s_waitcnt vmcnt({3 + NT})
    s_barrier
    s_waitcnt vmcnt(0)
    s_barrier
    """)
    if cfg.get("prof") == "3":
        A(f"v_writelane_b32 v{PV}, s100, 0")
        A(f"v_writelane_b32 v{PV}, s101, 1")
    if cfg.get("lprio"): A("s_setprio 0")
    srd(A, 36, 12, 2048)
    GX = 64
    A(f"""
    s_lshl_b32 s47, s41, 8
    s_lshl_b32 s51, s42, 3
    s_add_u32 s47, s47, s51
    s_lshl_b32 s51, s50, 1
    s_add_u32 s63, s47, s51          ; t0 = r*256 + h*8 + 2w
    s_lshl_b32 s51, s63, 11
    v_lshlrev_b32 v1, 5, v0
    buffer_load_dwordx4 v[32:35], v1, s[36:39], 0 offen
    buffer_load_dwordx4 v[36:39], v1, s[36:39], 0 offen offset:16
    """)
    for j in range(2):
        A(f"buffer_load_dwordx4 v[{GX+8*j}:{GX+8*j+3}], v1, s[16:19], s51 offen")
        A(f"buffer_load_dwordx4 v[{GX+8*j+4}:{GX+8*j+7}], v1, s[16:19], s51 offen offset:16")
        if j < 1: A("s_add_u32 s51, s51, 2048")
    A("""
    s_barrier
    s_barrier
    """)
    vstamp(A, cfg, 2, PV)
    for j in range(2): A(f"v_mov_b32 v{40+j}, 0")
    A("s_waitcnt vmcnt(0)")
    for k in range(8):
        for j in range(2):
            A(f"v_dot2c_f32_bf16 v{40+j}, v{GX+8*j+k}, v{32+k}")
        A("s_nop 1")
    A("v_lshlrev_b32 v3, 2, v0")
    A.nop(3)
    for mask in (1, 2, 4, 8, 16, 32):
        A(f"v_xor_b32 v4, {mask*4}, v3")
        for j in range(2): A(f"ds_bpermute_b32 v{5+j}, v4, v{40+j}")
        A("s_waitcnt lgkmcnt(0)")
        for j in range(2): A(f"v_add_f32 v{40+j}, v{40+j}, v{5+j}")
    A(f"v_cmp_eq_u32 vcc, 1, v0")
    A("s_nop 1")
    A(f"v_cndmask_b32 v40, v40, v41, vcc")
    A(f"""
    v_mul_f32 v40, {fhex(-LOG2E)}, v40
    v_exp_f32 v40, v40
    s_nop 0
    v_add_f32 v40, 1.0, v40
    v_rcp_f32 v40, v40
    s_lshl_b32 s47, s63, 2
    s_add_u32 s47, s47, {WS_G}
    s_mov_b64 exec, 3
    buffer_store_dword v40, v3, s[32:35], s47 offen sc1
    s_mov_b64 exec, -1
    """)
    setup_p2(A)
    setup_p3(A)
    A(f"""
    s_mov_b32 s85, s36
    s_mov_b32 s36, s86
    s_mov_b32 s37, s87
    s_mov_b32 s38, 256
    s_mov_b32 s39, 0x00020000
    v_mov_b32 v46, 0
    v_and_b32 v35, 15, v0
    v_lshlrev_b32 v35, 2, v35
    """)
    poll_issue(A, 47, 46, 36, "0")
    A("s_waitcnt vmcnt(0)")
    poll_check(A, 47, 46, 36, "0", "PG", expect="0x100")
    poll_issue(A, 47, 35, 32, "s78")
    A("s_waitcnt vmcnt(0)")
    poll_check(A, 47, 35, 32, "s78", "P1")
    vstamp(A, cfg, 3, PV)
    A(f"""
    v_lshlrev_b32 v3, 4, v0
    s_lshl_b32 s47, s50, 12          ; w*4096
    s_add_u32 m0, s47, {2*16384}
    s_lshl_b32 s51, s41, 1
    s_add_u32 s51, s51, 2
    s_and_b32 s51, s51, 15
    s_lshl_b32 s51, s51, 14
    s_add_u32 s51, s51, s47
    s_add_u32 s51, s51, s70
    """)
    for j in range(4):
        A(f"buffer_load_dwordx4 v3, s[32:35], s51 offen offset:{j*1024} sc1 lds")
    A("s_mov_b32 s36, s85")
    A.label("KF_JOIN")
    Q, K0, K1, V0, V1, SEL, NEGM, SA, SB, O, L, P = 8, 16, 20, 24, 28, 40, 48, 64, 80, 96, 112, 120
    PR = 33
    RD = 192
    if cfg.get("prof"): A(f"v_mov_b32 v{PR}, v{PV}")
    vstamp(A, cfg, 4, PR)
    A(f"""
    v_lshlrev_b32 v3, 4, v0          ; lane*16
    v_bfe_u32 v4, v0, 2, 1
    v_bfe_u32 v5, v0, 4, 1
    v_cmp_eq_u32 vcc, v4, v5
    v_mov_b32 v5, 0x3f803f80
    v_mov_b32 v4, 0
    v_cndmask_b32 v{SEL}, v4, v5, vcc
    v_cndmask_b32 v{SEL+1}, v4, v5, vcc
    v_cndmask_b32 v{SEL+2}, v4, v5, vcc
    v_cndmask_b32 v{SEL+3}, v4, v5, vcc
    s_lshl_b32 s47, s40, 11
    s_add_u32 s47, s47, {QST}
    v_add_u32 v6, s47, v3
    s_lshl_b32 s47, s40, 10
    s_add_u32 s47, s47, {RED0}
    v_add_u32 v7, s47, v3
    v_mov_b32 v1, v3                 ; cur
    v_add_u32 v2, 16384, v3          ; next
    """)
    for i in range(16): A(f"v_mov_b32 v{O+i}, 0")
    for i in range(4):
        A(f"v_mov_b32 v{L+i}, 0"); A(f"v_mov_b32 v{V1+i}, 0"); A(f"v_mov_b32 v{P+4+i}, 0")
    for i in (35, 36, 37, 38, 39, 45, 46): A(f"v_mov_b32 v{i}, 0")
    A(f"""
    s_mov_b32 s60, 0
    s_mov_b32 s61, 1
    s_waitcnt lgkmcnt(0)
    s_barrier
    """)
    vstamp(A, cfg, 5, PR)
    A(f"""
    ds_read_b128 v[{Q}:{Q+3}], v6
    ds_read_b128 v[{NEGM}:{NEGM+3}], v3
    ds_read_b128 v[{Q+4}:{Q+7}], v6 offset:1024
    ds_read_b128 v[{NEGM+4}:{NEGM+7}], v3 offset:1024
    ds_read_b128 v[{K0}:{K0+3}], v3 offset:4096
    ds_read_b128 v[{K1}:{K1+3}], v3 offset:{4096+1024}
    ds_read_b128 v[{V0}:{V0+3}], v3 offset:2048
    ds_read_b128 v[{RD}:{RD+3}], v7
    ds_read_b128 v[{RD+4}:{RD+7}], v7 offset:8192
    s_waitcnt lgkmcnt(7)
    v_mfma_f32_32x32x16_bf16 v[{SA}:{SA+15}], v[{NEGM}:{NEGM+3}], v[{Q}:{Q+3}], 0
    s_waitcnt lgkmcnt(5)
    v_mfma_f32_32x32x16_bf16 v[{SA}:{SA+15}], v[{NEGM+4}:{NEGM+7}], v[{Q+4}:{Q+7}], v[{SA}:{SA+15}]
    s_waitcnt lgkmcnt(3)
    v_mfma_f32_32x32x16_bf16 v[{SB}:{SB+15}], v[{K0}:{K0+3}], v[{Q}:{Q+3}], 0
    v_mfma_f32_32x32x16_bf16 v[{SB}:{SB+15}], v[{K1}:{K1+3}], v[{Q+4}:{Q+7}], v[{SB}:{SB+15}]
    s_waitcnt lgkmcnt(0)
    v_pk_add_f32 v[{RD}:{RD+1}], v[{RD}:{RD+1}], v[{RD+4}:{RD+5}]
    v_pk_add_f32 v[{RD+2}:{RD+3}], v[{RD+2}:{RD+3}], v[{RD+6}:{RD+7}]
    s_cmp_lg_u32 s40, 7
    buffer_store_dwordx4 v[{RD}:{RD+3}], v3, s[32:35], s79 offen sc1
    s_cbranch_scc1 KJ_NOZ
    v_lshlrev_b32 v4, 2, v0
    v_add_u32 v5, {ZRED}, v4
    ds_read_b32 v{RD+8}, v5
    ds_read_b32 v{RD+9}, v5 offset:256
    s_waitcnt lgkmcnt(0)
    v_add_f32 v{RD+8}, v{RD+8}, v{RD+9}
    buffer_store_dword v{RD+8}, v4, s[32:35], s89 offen sc1
    KJ_NOZ:
    """)
    A.nop(6)
    A(f"v_max3_f32 v4, v{SA}, v{SA+1}, v{SA+2}")
    A(f"v_max3_f32 v5, v{SA+3}, v{SA+4}, v{SA+5}")
    for k in range(6, 14, 4):
        A(f"v_max3_f32 v4, v4, v{SA+k}, v{SA+k+1}")
        A(f"v_max3_f32 v5, v5, v{SA+k+2}, v{SA+k+3}")
    A(f"v_max3_f32 v4, v4, v{SA+14}, v{SA+15}")
    for k in range(0, 16, 4):
        A(f"v_max3_f32 v4, v4, v{SB+k}, v{SB+k+1}")
        A(f"v_max3_f32 v5, v5, v{SB+k+2}, v{SB+k+3}")
    A("v_max_f32 v4, v4, v5")
    A("v_mov_b32 v5, v4")
    A.nop(2)
    A("v_permlane32_swap_b32 v4, v5")
    A("s_nop 0")
    A("v_max_f32 v4, v4, v5")
    A(f"v_add_f32 v4, {fhex(BIAS)}, v4")
    for i in range(16):
        A(f"v_sub_f32 v{NEGM+i}, 0, v4")
    for k in range(8):
        A(f"v_pk_add_f32 v[{SA+2*k}:{SA+2*k+1}], v[{SA+2*k}:{SA+2*k+1}], v[{NEGM}:{NEGM+1}]")
    vstamp(A, cfg, 6, PR)
    if cfg.get("prof") == "2":
        A("s_mov_b32 s100, 15"); A(f"v_mov_b32 v{PR}, 0"); bstamp(A, cfg, 2); A("s_mov_b32 s100, 0")
    def dma_ops():
        a = ["s_mov_b32 m0, s72", "s_add_u32 s81, s70, s71", "s_add_u32 s72, s72, 16384",
             "buffer_load_dwordx4 v3, s[32:35], s81 offen sc1 lds"]
        b = ["buffer_load_dwordx4 v3, s[32:35], s81 offen offset:1024 sc1 lds",
             f"s_and_b32 s72, s72, {RING-1}", "s_add_u32 s71, s71, 16384", "s_and_b32 s71, s71, 0x3ffff"]
        return a, b
    def dma_chunk():
        a, b = dma_ops()
        for l in a + b: A(l)
    def tile(i, Sa, Sb, sideA=(), sideB=(), end=()):
        e = lambda k: f"v_exp_f32 v{Sa+k}, v{Sa+k}"
        c = lambda k: f"v_cvt_pk_bf16_f32 v{P+k}, v{Sa+2*k}, v{Sa+2*k+1}"
        QK0 = f"v_mfma_f32_32x32x16_bf16 v[{Sb}:{Sb+15}], v[{K0}:{K0+3}], v[{Q}:{Q+3}], v[{NEGM}:{NEGM+15}]"
        QK1 = f"v_mfma_f32_32x32x16_bf16 v[{Sb}:{Sb+15}], v[{K1}:{K1+3}], v[{Q+4}:{Q+7}], v[{Sb}:{Sb+15}]"
        PV0 = f"v_mfma_f32_32x32x16_bf16 v[{O}:{O+15}], v[{V0}:{V0+3}], v[{P}:{P+3}], v[{O}:{O+15}]"
        PV1 = f"v_mfma_f32_32x32x16_bf16 v[{O}:{O+15}], v[{V1}:{V1+3}], v[{P+4}:{P+7}], v[{O}:{O+15}]"
        L0 = f"v_mfma_f32_16x16x32_bf16 v[{L}:{L+3}], v[{SEL}:{SEL+3}], v[{P}:{P+3}], v[{L}:{L+3}]"
        L1 = f"v_mfma_f32_16x16x32_bf16 v[{L}:{L+3}], v[{SEL}:{SEL+3}], v[{P+4}:{P+7}], v[{L}:{L+3}]"
        W = "s_waitcnt lgkmcnt(3)"
        def addr(tt, fr):
            return (f"v1 offset:{tt*4096+fr*1024}" if tt < 4 else f"v2 offset:{(tt-4)*4096+fr*1024}")
        rK0 = f"ds_read_b128 v[{K0}:{K0+3}], {addr(i+2, 0)}"; rK1 = f"ds_read_b128 v[{K1}:{K1+3}], {addr(i+2, 1)}"
        rV0 = f"ds_read_b128 v[{V0}:{V0+3}], {addr(i+1, 2)}"; rV1 = f"ds_read_b128 v[{V1}:{V1+3}], {addr(i, 3)}"
        seq = [e(0), e(1), W, PV1, rV1, *sideA, e(2), e(3), e(4), e(5), W, QK0, rK0, e(6), e(7), c(0), c(1), L1, c(2), c(3), e(8), W, QK1, rK1,
               *sideB, e(9), e(10), e(11), W, PV0, rV0, e(12), e(13), e(14), L0, e(15), c(4), c(5), c(6), c(7), *end]
        for x in seq:
            if callable(x): x()
            else: A(x)
    PRIO = [int(c) for c in cfg.get("prio", "3210")]
    def period(sides=None, dma=True):
        if dma: dma_chunk()
        for i in range(4):
            sa, sb, en = (sides or {}).get(i, ((), (), ()))
            if cfg.get("prio"): A(f"s_setprio {PRIO[i]}")
            tile(i, SA if i % 2 == 0 else SB, SB if i % 2 == 0 else SA, sa, sb, en)
        A(f"""
        v_mov_b32 v1, v2
        v_add_u32 v2, 16384, v2
        v_and_b32 v2, {RING-1}, v2
        """)
    A.label("K2_LOOP")
    period()
    if cfg.get("prof") == "2":
        pbar(A, cfg, "s_waitcnt vmcnt(2)")
        A("""
        s_add_u32 s60, s60, 1
        s_cmp_lg_u32 s60, s61
        s_cbranch_scc1 K2_LOOP
        """)
    else:
        A(f"""
        s_add_u32 s60, s60, 1
        s_cmp_lg_u32 s60, s61
        s_waitcnt vmcnt(2)
        s_barrier
        s_cbranch_scc1 K2_LOOP
        """)
    A(f"""
    s_cmp_eq_u32 s60, 1
    s_cbranch_scc1 KD_1
    s_cmp_eq_u32 s60, 3
    s_cbranch_scc1 KD_3
    s_cmp_eq_u32 s60, 4
    s_cbranch_scc1 KD_4
    s_branch KD_7
    KD_1:
    s_mov_b32 s61, 3
    """)
    set_flag(A, "s68")
    A(f"""
    s_branch K2_LOOP
    KD_3:
    v_lshlrev_b32 v46, 2, v0
    s_mov_b32 s61, 4
    """)
    poll_issue(A, 47, 46, 32, "s77")
    A("s_branch K2_LOOP")
    A.label("KD_4")
    vstamp(A, cfg, 7, PR)
    poll_check(A, 47, 46, 32, "s77", "PK")
    KVP = 192; ZP = 224
    A(f"""
    s_cmp_eq_u32 s40, 4
    s_cselect_b32 s84, 1, 0
    """)
    def kvload(rr):
        def f():
            A(f"buffer_load_dwordx4 v[{KVP+4*rr}:{KVP+4*rr+3}], v3, s[32:35], s75 offen sc1")
            A("s_add_u32 s75, s75, 8192")
        return f
    def zload(rr):
        def f():
            j = A.uid("KZ")
            A("s_cmp_eq_u32 s84, 0"); A(f"s_cbranch_scc1 {j}")
            A(f"buffer_load_dword v{ZP+rr}, v46, s[32:35], s76 offen offset:{256*rr} sc1")
            A(f"buffer_load_dword v{ZP+rr+1}, v46, s[32:35], s76 offen offset:{256*rr+256} sc1")
            A.label(j)
        return f
    period({i: ((kvload(2*i),), (kvload(2*i+1),), (zload(2*i),)) for i in range(4)})
    pbar(A, cfg, "s_waitcnt vmcnt(10)")
    def kvsum():
        A("s_waitcnt vmcnt(2)")
        A(f"""
        s_lshr_b32 s47, s40, 1
        s_lshl_b32 s47, s47, 10
        s_and_b32 s38, s40, 1
        s_lshl_b32 s38, s38, 3
        s_add_u32 s47, s47, s38
        s_add_u32 s47, s47, {KVT_L}
        v_add_u32 v4, s47, v3
        """)
        b = KVP
        for rr in range(1, 8):
            A(f"v_pk_add_f32 v[{b}:{b+1}], v[{b}:{b+1}], v[{b+4*rr}:{b+4*rr+1}]")
            A(f"v_pk_add_f32 v[{b+2}:{b+3}], v[{b+2}:{b+3}], v[{b+4*rr+2}:{b+4*rr+3}]")
        A(f"v_cvt_pk_bf16_f32 v{b}, v{b}, v{b+1}")
        A(f"v_cvt_pk_bf16_f32 v{b+1}, v{b+2}, v{b+3}")
        A(f"ds_write_b64 v4, v[{b}:{b+1}]")
        j = A.uid("KZS")
        A("s_cmp_eq_u32 s84, 0"); A(f"s_cbranch_scc1 {j}")
        for rr in range(1, 8):
            A(f"v_add_f32 v{ZP}, v{ZP}, v{ZP+rr}")
        A(f"""
        v_lshlrev_b32 v5, 1, v0
        v_add_u32 v5, {Z_L}, v5
        v_cvt_pk_bf16_f32 v{ZP}, v{ZP}, v{ZP}
        ds_write_b16 v5, v{ZP}
        """)
        A.label(j)
    period({1: ((), (), (kvsum,))})
    pbar(A, cfg, None)
    A(f"""
    s_mov_b32 s60, 6
    s_mov_b32 s61, 7
    s_and_b32 s47, s40, 5
    s_cmp_lg_u32 s47, 1
    s_cbranch_scc1 K2_LOOP
    """)
    KVT, ZR, NUM, DEN, OA = 192, 208, 224, 240, 244
    A(f"""
    v_add_u32 v4, {KVT_L}, v3
    v_lshrrev_b32 v5, 5, v0
    v_lshlrev_b32 v5, 3, v5
    v_add_u32 v5, {Z_L}, v5          ; Z + hh*8
    """)
    for s in range(4):
        A(f"ds_read_b128 v[{KVT+4*s}:{KVT+4*s+3}], v4 offset:{s*1024}")
        A(f"ds_read_b64 v[{ZR+4*s}:{ZR+4*s+1}], v5 offset:{32*s}")
        A(f"ds_read_b64 v[{ZR+4*s+2}:{ZR+4*s+3}], v5 offset:{32*s+16}")
    def zmask():
        A("v_bfe_u32 v4, v0, 2, 1")
        A("v_bfe_u32 v5, v0, 4, 1")
        A("v_cmp_eq_u32 vcc, v4, v5")
        A("v_mov_b32 v4, 0")
        A("s_nop 0")
        for k in range(16): A(f"v_cndmask_b32 v{ZR+k}, v4, v{ZR+k}, vcc")
    def amfma(t):
        def f():
            for s in range(4):
                c = "0" if s == 0 else f"v[{NUM}:{NUM+15}]"
                A(f"v_mfma_f32_32x32x16_bf16 v[{NUM}:{NUM+15}], v[{KVT+4*s}:{KVT+4*s+3}], v[{PHQ+16*t+4*s}:{PHQ+16*t+4*s+3}], {c}")
                c = "0" if s == 0 else f"v[{DEN}:{DEN+3}]"
                A(f"v_mfma_f32_16x16x32_bf16 v[{DEN}:{DEN+3}], v[{ZR+4*s}:{ZR+4*s+3}], v[{PHQ+16*t+4*s}:{PHQ+16*t+4*s+3}], {c}")
        return f
    def afin():
        A(f"v_add_f32 v4, {fhex(1e-6)}, v{DEN}")
        A("v_rcp_f32 v4, v4")
        A("s_nop 0")
        for k in range(8):
            A(f"v_pk_mul_f32 v[{NUM+2*k}:{NUM+2*k+1}], v[{NUM+2*k}:{NUM+2*k+1}], v[4:5] op_sel_hi:[1,0]")
        cvt_tile(A, OA, NUM)
        A(f"buffer_store_dwordx4 v[{OA}:{OA+3}], v3, s[32:35], s74 offen sc1")
        A(f"buffer_store_dwordx4 v[{OA+4}:{OA+7}], v3, s[32:35], s74 offen offset:1024 sc1")
        A("s_add_u32 s74, s74, 65536")
    period({0: ((), (), (zmask, amfma(0))), 1: ((), (), (afin, amfma(1))), 2: ((), (), (afin, amfma(2))), 3: ((), (), (afin, amfma(3)))})
    A.nop(12)
    afin()
    pbar(A, cfg, "s_waitcnt vmcnt(10)")
    A.label("KD_7")
    A(f"""
    s_mov_b32 s60, 7
    v_and_b32 v45, 31, v0
    v_lshlrev_b32 v45, 2, v45        ; (l&31)*4
    v_lshlrev_b32 v35, 2, v0         ; lane*4
    v_lshrrev_b32 v4, 3, v0
    v_lshlrev_b32 v5, 11, v4         ; row*2048
    v_and_b32 v7, 7, v0
    v_bfe_u32 v6, v0, 4, 1
    v_lshlrev_b32 v6, 2, v6
    v_xor_b32 v7, v7, v6
    v_lshl_add_u32 v5, v7, 4, v5
    s_lshl_b32 s47, s18, 9
    s_lshl_b32 s38, s19, 4
    s_add_u32 s47, s47, s38
    s_lshl_b32 s47, s47, 11
    s_lshl_b32 s38, s17, 7
    s_add_u32 s47, s47, s38          ; + C*128
    v_add_u32 v36, s47, v5           ; piece 0
    v_add_u32 v37, {16384 - 1024}, v36
    v_lshrrev_b32 v7, 5, v0          ; hh
    v_bfe_u32 v6, v0, 2, 2           ; i>>2
    v_lshl_add_u32 v7, v7, 2, v6
    v_lshlrev_b32 v7, 7, v7
    v_bfe_u32 v6, v0, 4, 1
    v_bfe_u32 v5, v0, 1, 1
    v_lshl_add_u32 v6, v6, 1, v5
    v_bfe_u32 v5, v0, 3, 1
    v_lshlrev_b32 v5, 2, v5
    v_xor_b32 v6, v6, v5
    v_lshl_add_u32 v7, v6, 4, v7
    v_and_b32 v5, 1, v0
    v_lshl_add_u32 v7, v5, 3, v7
    s_lshl_b32 s38, s18, 13
    v_add_u32 v38, s38, v7           ; cb=0
    v_xor_b32 v39, 64, v38           ; cb=1
    s_add_u32 s80, s30, {WSL(0)}
    """)
    def wo_ops(m0src):
        a = [m0src, "s_nop 0", "buffer_load_dwordx4 v36, s[20:23], s29 offen lds"]
        b = ["buffer_load_dwordx4 v37, s[20:23], s29 offen offset:1024 lds", f"s_add_u32 s29, s29, {64*2048}"]
        return a, b
    A.label("K2_LOOPB")
    wa, wb = wo_ops("s_mov_b32 m0, s80")
    wb = wb + ["s_add_u32 s80, s80, 16384"]
    ca, cb_ = dma_ops()
    period({0: (tuple(wa), tuple(wb), ()), 1: (tuple(wa), tuple(wb), ()), 2: (tuple(ca), tuple(cb_), ())}, dma=False)
    if cfg.get("prof") == "2":
        pbar(A, cfg, "s_waitcnt vmcnt(6)")
        A("""
        s_add_u32 s60, s60, 1
        s_cmp_eq_u32 s60, 10
        """)
    else:
        A("""
        s_add_u32 s60, s60, 1
        s_cmp_eq_u32 s60, 10
        s_waitcnt vmcnt(6)
        s_barrier
        """)
    A(f"""
    s_cbranch_scc1 KB_10
    s_cmp_eq_u32 s60, 9
    s_cbranch_scc1 KB_9
    s_and_b32 s47, s40, 5
    s_cmp_lg_u32 s47, 1
    s_cbranch_scc1 K2_LOOPB
    """)
    set_flag(A, "s88")
    A("s_branch K2_LOOPB")
    A.label("KB_9")
    poll_issue(A, 47, 35, 32, "s36")
    A("s_branch K2_LOOPB")
    A.label("KB_10")
    vstamp(A, cfg, 8, PR)
    poll_check(A, 47, 35, 32, "s36", "PA")
    G, OMG = 32, 34
    OF = 128
    vm = VM(A, ["W4", "W4", "W5", "W5", "c12", "c12"])
    vm.now("G", f"buffer_load_dword v{G}, v45, s[32:35], s31 offen sc1")
    nld = [0]
    def oload():
        k = nld[0]; nld[0] += 1
        s, j = divmod(k, 4)
        r = OF + 16*s + 4*j
        def f():
            vm.now("o", f"buffer_load_dwordx4 v[{r}:{r+3}], v3, s[32:35], s28 offen offset:{j*1024} sc1")
            if j == 3: A("s_add_u32 s28, s28, 4096")
        return f
    def lines(tag, ls):
        def f():
            for l in ls:
                if l.startswith("buffer_"): vm.now(tag, l)
                else: A(l)
        return f
    BT = int(cfg.get("btouch", 0))
    def btouch():
        A(f"""
        s_and_b32 s47, s16, 3
        s_lshl_b32 s47, s47, 3
        s_add_u32 s47, s47, s40
        s_lshl_b32 s47, s47, 5
        v_add_u32 v44, s47, v0
        v_lshlrev_b32 v44, 11, v44
        s_lshl_b32 s47, s17, 7
        v_add_u32 v44, s47, v44
        v_mov_b32 v4, 0x7ffffff0
        v_cmp_gt_u32 vcc, 32, v0
        s_mov_b32 s92, s6
        s_mov_b32 s93, s7
        s_mov_b32 s94, {1024*2048}
        s_mov_b32 s95, 0x00020000
        v_cndmask_b32 v44, v4, v44, vcc
        """)
        vm.now("T", "buffer_load_dword v44, v44, s[92:95], 0 offen")
    for n in range(10, 16):
        sides = {}
        if n <= 12:
            a, b = dma_ops()
            sides[0] = ((lines(f"c{n+3}", a),), (lines(f"c{n+3}", b),), (oload(),))
            sides[1] = ((oload(),), (oload(),), ())
            sides[2] = ((oload(),), (oload(),), ())
            sides[3] = ((oload(),), (), ())
        elif n <= 14:
            a, b = wo_ops(f"s_add_u32 m0, s30, {WSL(n - 7)}")
            sides[0] = ((lines("W", a),), (lines("W", b),), (oload(),))
            sides[1] = ((oload(),), (oload(),), ())
            sides[2] = ((oload(),), (), ())
            sides[3] = ((oload(),), (), ())
        else:
            sides[0] = ((oload(),), (oload(),), ())
            sides[1] = ((oload(),), (oload(),), ())
        if n == BT: sides[3] = (sides[3][0], sides[3][1], tuple(sides[3][2]) + (btouch,))
        period(sides, dma=False)
        if n <= 13:
            pbar(A, cfg, lambda: vm.wait(f"c{n+2}"))
        elif cfg.get("prof") == "2":
            bstamp(A, cfg, 0); bstamp(A, cfg, 1); bstamp(A, cfg, 2)
        if n == 12: vstamp(A, cfg, 9, PR)
    assert nld[0] == 32
    A(f"""
    s_mov_b32 s60, 16
    s_waitcnt lgkmcnt(0)
    v_mfma_f32_32x32x16_bf16 v[{O}:{O+15}], v[{V1}:{V1+3}], v[{P+4}:{P+7}], v[{O}:{O+15}]
    v_mfma_f32_16x16x32_bf16 v[{L}:{L+3}], v[{SEL}:{SEL+3}], v[{P+4}:{P+7}], v[{L}:{L+3}]
    """)
    vstamp(A, cfg, 10, PR)
    rst(A, cfg, 0)
    A("v_lshlrev_b32 v45, 3, v0")
    A.nop(12)
    A.label("K2_FIN")
    A(f"v_rcp_f32 v4, v{L}")
    A("s_nop 0")
    for k in range(8):
        A(f"v_pk_mul_f32 v[{O+2*k}:{O+2*k+1}], v[{O+2*k}:{O+2*k+1}], v[4:5] op_sel_hi:[1,0]")
    A("v_mov_b32 v6, 0")
    for k in range(16):
        A(f"v_fma_f32 v6, v{O+k}, 0, v6")
    A(f"""
    v_mov_b32 v7, {fhex(2.0**120)}
    v_cmp_u_f32 vcc, v6, v6
    v_cmp_nlt_f32 s[62:63], v{L}, v7
    s_or_b64 vcc, vcc, s[62:63]
    """)
    if cfg.get("force_fb"):
        A("s_mov_b64 vcc, -1")
    A(f"""
    s_cmp_eq_u32 s60, 16
    s_cselect_b64 vcc, vcc, 0
    s_cbranch_vccnz K2_FB
    """)
    for i in range(8):
        A(f"v_cvt_pk_bf16_f32 v{P+i}, v{O+2*i}, v{O+2*i+1}")
    A(f"buffer_store_dwordx4 v[{P}:{P+3}], v3, s[32:35], s73 offen sc1")
    A(f"buffer_store_dwordx4 v[{P+4}:{P+7}], v3, s[32:35], s73 offen offset:1024 sc1")
    EF = cfg.get("ef")
    if EF:
        A("""
        s_cmp_lt_u32 s40, 4
        s_cbranch_scc0 K3_EF1
        s_waitcnt vmcnt(0)
        """)
        set_flag(A, "s69")
        A("""
        s_branch K3_EF2
        K3_EF1:
        s_setprio 1
        s_waitcnt vmcnt(2)
        K3_EF2:
        """)
    else:
        A("s_waitcnt vmcnt(2)")
    A("s_barrier")
    vstamp(A, cfg, 11, PR)
    rst(A, cfg, 1)
    WFJ = [16, 24, 48, 56]
    ACCA, ACCB = 64, 96
    P3V = cfg.get("p3v") in ("2", "3")
    OD = int(cfg.get("od", 8))
    P3R = cfg.get("p3v") == "3"
    BSL = lambda b: 32768 + 16384 * b if b < 2 else WSL(b - 2)
    def waddr(s, slot=WSL):
        if slot is None:
            A("v_add_u32 v40, s90, v38")
            A("v_add_u32 v41, s90, v39")
            A("s_add_u32 s90, s90, 16384")
            A("s_and_b32 s90, s90, 0x1ffff")
            return
        A(f"v_add_u32 v40, {slot(s)}, v38")
        A(f"v_add_u32 v41, {slot(s)}, v39")
    def wreads(j):
        for cb in range(2):
            for sec in range(2):
                r = WFJ[j] + 4*cb + 2*sec
                A(f"ds_read_b64_tr_b16 v[{r}:{r+1}], v{40+cb} offset:{(16*j+8*sec)*128}")
    def gemm(acc_, after, owait, slot=WSL, inl={}, stamp=None):
        waddr(0, slot)
        for j in range(4): wreads(j)
        for s in range(8):
            last = s == 7
            for j in range(4):
                if owait: A(f"s_waitcnt vmcnt({min(4*OD + 4*s + j, 32) - (4*s + j) - 1})")
                for cb in range(2):
                    n = (14 - 2*cb) if not last else (14 - 4*j - 2*cb)
                    A(f"s_waitcnt lgkmcnt({n})")
                    w = WFJ[j] + 4*cb; o = OF + 16*s + 4*j; a = acc_ + 16*cb
                    c = "0" if (s == 0 and j == 0) else f"v[{a}:{a+15}]"
                    A(f"v_mfma_f32_32x32x16_bf16 v[{a}:{a+15}], v[{w}:{w+3}], v[{o}:{o+3}], {c}")
                if not last:
                    if j == 0: waddr(s + 1, slot)
                    wreads(j)
                for l in inl.get((s, j), []):
                    if callable(l): l()
                    else: A(l)
                if owait and s + OD < 8: o_load(s + OD, j)
            if s in after: after[s]()
            if stamp is not None and cfg.get("prof") == "5" and (s in (1, 3, 5, 7) or owait):
                rst(A, cfg, stamp + s)
    def refill(s0):
        for s in range(s0, s0 + 4):
            a, b = wo_ops(f"s_add_u32 m0, s30, {WSL(s)}")
            for l in a + b: A(l)
    def a_flag():
        A("s_waitcnt vmcnt(0)")
        set_flag(A, "s69")
    def a_mid():
        A("s_barrier")
        A("""
        s_mov_b32 s20, s6
        s_mov_b32 s21, s7
        s_mov_b32 s29, 0
        """)
        refill(0)
    def a_poll():
        poll_issue(A, 46, 45, 32, "s83", n=2)
    FBPOS = int(cfg.get("fbpos", 2))
    RB0 = 32768 if P3V else 0
    def out_addr():
        A(f"""
        v_sub_f32 v{OMG}, 1.0, v{G}
        v_and_b32 v4, 31, v0
        s_lshl_b32 s38, s19, 5
        v_add_u32 v4, s38, v4
        v_mul_u32_u24 v4, {K3_ROW}, v4
        v_lshrrev_b32 v5, 5, v0
        v_lshl_add_u32 v4, v5, 4, v4
        s_mul_i32 s38, s18, {K3_RED}
        {f"s_add_u32 s38, s38, {RB0}" if RB0 else ""}
        v_add_u32 v4, s38, v4
        s_lshl_b32 s38, s40, 6
        v_add_u32 v10, s38, v0           ; tid
        v_lshrrev_b32 v5, 3, v10
        v_and_b32 v6, 7, v10             ; chunk
        v_mul_u32_u24 v7, {K3_ROW}, v5
        v_lshl_add_u32 v7, v6, 5, v7
        {f"v_add_u32 v7, {RB0}, v7" if RB0 else ""}
        s_lshl_b32 s38, s16, 7
        v_add_u32 v5, s38, v5
        v_lshlrev_b32 v5, 11, v5
        v_lshl_add_u32 v5, v6, 4, v5
        s_lshl_b32 s38, s17, 7
        v_add_u32 v5, s38, v5
        """)
    def scale_a():
        for k in range(16):
            A(f"v_pk_mul_f32 v[{ACCA+2*k}:{ACCA+2*k+1}], v[{ACCA+2*k}:{ACCA+2*k+1}], v[{G}:{G+1}] op_sel_hi:[1,0]")
    def o_load(s, j):
        if j == 0:
            if s == 0: A(f"s_sub_u32 s28, s28, 32768" if cfg.get("expo") else f"s_add_u32 s28, s28, {4*MB - 32768}")
            if P3R:
                A("s_add_u32 s85, s28, s91")
                A("s_add_u32 s91, s91, 4096")
                A("s_and_b32 s91, s91, 0x7fff")
            elif s: A("s_add_u32 s28, s28, 4096")
        r = OF + 16*s + 4*j
        A(f"buffer_load_dwordx4 v[{r}:{r+3}], v3, s[32:35], {'s85' if P3R else 's28'} offen offset:{j*1024} sc1")
    def o_loads():
        for s in range(OD):
            for j in range(4): o_load(s, j)
    if P3V:
        A("""
        s_mov_b32 s20, s6
        s_mov_b32 s21, s7
        s_mov_b32 s29, 0
        """)
        inl = {}
        def bslab(b, s, j):
            a_, b_ = wo_ops(f"s_add_u32 m0, s30, {BSL(b)}")
            inl[(s, j)] = a_; inl[(s, j + 1)] = b_
        BS = cfg.get("bs", "0")
        bslab(0, 0, 0); bslab(1, 1, 0)
        if BS == "0":
            bslab(2, 4, 0); bslab(3, 4, 2); bslab(4, 5, 0); bslab(5, 5, 2)
        else:
            bslab(2, 2, 0); bslab(3, 3, 0); bslab(4, 4, 0); bslab(5, 5, 0)
        bslab(6, 6, 0); bslab(7, 6, 2)
        def a_flag2():
            if EF:
                j = A.uid("K3_F")
                A("s_cmp_lt_u32 s40, 4"); A(f"s_cbranch_scc1 {j}")
            A(f"s_waitcnt vmcnt({2 * min(FBPOS + 1, 2)})")
            set_flag(A, "s69")
            if EF:
                A("s_setprio 0")
                A.label(j)
        EP = int(cfg.get("ep", 0))
        def a_bar5():
            if EP:
                A("s_waitcnt vmcnt(7)")
                A("s_barrier")
                poll_check(A, 46, 45, 32, "s83", "PB", n=2)
                for b in (6, 7):
                    a_, b_ = wo_ops(f"s_add_u32 m0, s30, {BSL(b)}")
                    for l in a_ + b_: A(l)
                for s_ in range(EP):
                    for j in range(4): o_load(s_, j)
            else:
                A("s_barrier")
                a_poll()
        if EP:
            assert OD == EP + 2 and not P3R
            del inl[(6, 0)], inl[(6, 1)], inl[(6, 2)], inl[(6, 3)]
            inl[(4, 0)] = inl[(4, 0)] + [a_poll]
            for s_ in (6, 7):
                for j in range(4): inl[(s_, j)] = [(lambda s_=s_, j=j: o_load(EP + s_ - 6, j))]
        aft = {3: lambda: A("s_barrier"), 5: a_bar5}
        if FBPOS == 3: aft[3] = lambda: (a_flag2(), A("s_barrier"))
        else: aft[FBPOS] = a_flag2
        if BS == "1":
            assert FBPOS in (0, 1)
            if FBPOS == 1: aft[1] = lambda: (a_flag2(), A("s_barrier"))
            else: aft[1] = lambda: A("s_barrier")
        gemm(ACCA, aft, False, WSL, inl, 2)
        vstamp(A, cfg, 12, PR)
        if P3R:
            RM = int(cfg.get("rmask", 6))
            A(f"""
            s_and_b32 s47, s17, {RM}
            s_lshl_b32 s90, s47, 14
            s_lshl_b32 s91, s47, 12
            v_add_u32 v38, 32768, v38
            v_add_u32 v39, 32768, v39
            """)
            if cfg.get("gfirst", "1") == "1":
                A("""
                s_and_b32 s47, s17, 1
                s_cmp_eq_u32 s47, s18
                s_cbranch_scc0 K3_NP
                s_setprio 1
                K3_NP:
                """)
        A(f"s_waitcnt vmcnt({4 * OD if EP else 0})")
        rst(A, cfg, 10)
        A("s_barrier")
        rst(A, cfg, 11)
        if not EP:
            poll_check(A, 46, 45, 32, "s83", "PB", n=2)
            rst(A, cfg, 12)
            o_loads()
            rst(A, cfg, 13)
        out_addr()
        scale_a()
        srd(A, 24, 8, 4194304)
        def zbar(g):
            def f():
                j = A.uid("K3_Z")
                A(f"s_cmp_eq_u32 s18, {g}"); A(f"s_cbranch_scc0 {j}"); A("s_barrier"); A.label(j)
            return f
        if P3R:
            gemm(ACCB, {}, True, None, {}, 14)
            vstamp(A, cfg, 13, PR)
            A("s_setprio 0")
            A("s_barrier")
            A.nop(12)
        else:
            gemm(ACCB, {4: zbar(1)}, True, BSL, {}, 14)
            vstamp(A, cfg, 13, PR)
            zbar(0)()
            A.nop(12)
    else:
        gemm(ACCA, {FBPOS: a_flag, 3: a_mid, 5: a_poll}, False)
        A("s_barrier")
        refill(4)
        vstamp(A, cfg, 12, PR)
        A("s_waitcnt vmcnt(8)")
        poll_check(A, 46, 45, 32, "s83", "PB", n=2)
        o_loads()
        A("s_waitcnt vmcnt(31)")
        A("s_barrier")
        gemm(ACCB, {}, True)
        vstamp(A, cfg, 13, PR)
        out_addr()
        scale_a()
        A("s_barrier")
        srd(A, 24, 8, 4194304)
        A.nop(4)
    for k in range(16):
        A(f"v_pk_fma_f32 v[{ACCA+2*k}:{ACCA+2*k+1}], v[{ACCB+2*k}:{ACCB+2*k+1}], v[{OMG}:{OMG+1}], v[{ACCA+2*k}:{ACCA+2*k+1}] op_sel_hi:[1,0,1]")
    for cb in range(2):
        for q in range(4):
            r = ACCA + 16*cb + 4*q
            A(f"ds_write_b128 v4, v[{r}:{r+3}] offset:{cb*128 + q*32}")
    A("s_waitcnt lgkmcnt(0)")
    rst(A, cfg, 22)
    A("s_barrier")
    rst(A, cfg, 23)
    R = 128
    for it in range(2):
        for g in range(2):
            for hf in range(2):
                r = R + 16*it + 8*g + 4*hf
                A(f"ds_read_b128 v[{r}:{r+3}], v7 offset:{it*64*K3_ROW + g*K3_RED + hf*16}")
    for it in range(2):
        A(f"s_waitcnt lgkmcnt({4 - 4*it})")
        r = R + 16*it
        for k in range(4):
            A(f"v_pk_add_f32 v[{r+2*k}:{r+2*k+1}], v[{r+2*k}:{r+2*k+1}], v[{r+8+2*k}:{r+8+2*k+1}]")
        for k in range(4):
            A(f"v_cvt_pk_bf16_f32 v{r+k}, v{r+2*k}, v{r+2*k+1}")
        A(f"buffer_store_dwordx4 v[{r}:{r+3}], v5, s[24:27], 0 offen {cfg.get('ost', 'nt').replace('+', ' ')}")
        if it == 0: A(f"v_add_u32 v5, {64*2048}, v5")
    if cfg.get("prof"):
        A("s_waitcnt vmcnt(0)")
        vstamp(A, cfg, 14, PR)
        rst(A, cfg, 24)
        A(f"""
        s_mov_b32 s92, s14
        s_mov_b32 s93, s15
        s_mov_b32 s94, {64*MB}
        s_mov_b32 s95, 0x00020000
        s_lshl_b32 s90, s2, 3
        s_add_u32 s90, s90, s40
        s_lshl_b32 s90, s90, {8 if cfg.get("prof") in ("2", "3", "4", "5") else 7}
        s_add_u32 s90, s90, {WS_PROFV}
        v_lshlrev_b32 v1, 2, v0
        s_mov_b64 exec, {-1 if cfg.get("prof") in ("2", "3", "4", "5") else "0xffffffff"}
        buffer_store_dword v{PR}, v1, s[92:95], s90 offen
        """)
    A("s_endpgm")
    A.label("K2_FB")
    vstamp(A, cfg, 15, PR)
    A("s_mov_b32 s60, 17")
    A("s_mov_b32 s61, 0")
    for i in range(16): A(f"v_mov_b32 v{O+i}, 0")
    for i in range(4): A(f"v_mov_b32 v{L+i}, 0")
    A(f"v_mov_b32 v44, 0xff800000")
    A.label("K2_FBL")
    A(f"""
    buffer_load_dwordx4 v[{K0}:{K0+3}], v3, s[32:35], s70 offen sc1
    buffer_load_dwordx4 v[{K1}:{K1+3}], v3, s[32:35], s70 offen offset:1024 sc1
    buffer_load_dwordx4 v[{V0}:{V0+3}], v3, s[32:35], s70 offen offset:2048 sc1
    buffer_load_dwordx4 v[{V1}:{V1+3}], v3, s[32:35], s70 offen offset:3072 sc1
    s_add_u32 s70, s70, 4096
    s_waitcnt vmcnt(0)
    v_mfma_f32_32x32x16_bf16 v[{SA}:{SA+15}], v[{K0}:{K0+3}], v[{Q}:{Q+3}], 0
    v_mfma_f32_32x32x16_bf16 v[{SA}:{SA+15}], v[{K1}:{K1+3}], v[{Q+4}:{Q+7}], v[{SA}:{SA+15}]
    """)
    A.nop(12)
    A(f"v_max3_f32 v4, v{SA}, v{SA+1}, v{SA+2}")
    for k in range(3, 15, 2):
        A(f"v_max3_f32 v4, v4, v{SA+k}, v{SA+k+1}")
    A(f"v_max3_f32 v4, v4, v{SA+15}, v44")
    A("v_mov_b32 v5, v4")
    A.nop(2)
    A("v_permlane32_swap_b32 v4, v5")
    A("s_nop 0")
    A("v_max_f32 v4, v4, v5")
    A("v_sub_f32 v5, v44, v4")
    A("v_exp_f32 v5, v5")
    A("v_mov_b32 v44, v4")
    for k in range(16):
        A(f"v_sub_f32 v{SA+k}, v{SA+k}, v4")
    for k in range(16):
        A(f"v_exp_f32 v{SA+k}, v{SA+k}")
    for k in range(16):
        A(f"v_mul_f32 v{O+k}, v{O+k}, v5")
    for k in range(4):
        A(f"v_mul_f32 v{L+k}, v{L+k}, v5")
    for k in range(8):
        A(f"v_cvt_pk_bf16_f32 v{P+k}, v{SA+2*k}, v{SA+2*k+1}")
    A("s_nop 1")
    A(f"""
    v_mfma_f32_32x32x16_bf16 v[{O}:{O+15}], v[{V0}:{V0+3}], v[{P}:{P+3}], v[{O}:{O+15}]
    v_mfma_f32_16x16x32_bf16 v[{L}:{L+3}], v[{SEL}:{SEL+3}], v[{P}:{P+3}], v[{L}:{L+3}]
    v_mfma_f32_32x32x16_bf16 v[{O}:{O+15}], v[{V1}:{V1+3}], v[{P+4}:{P+7}], v[{O}:{O+15}]
    v_mfma_f32_16x16x32_bf16 v[{L}:{L+3}], v[{SEL}:{SEL+3}], v[{P+4}:{P+7}], v[{L}:{L+3}]
    s_add_u32 s61, s61, 1
    s_cmp_lt_u32 s61, 64
    """)
    A.nop(12)
    A("s_cbranch_scc1 K2_FBL")
    A("s_branch K2_FIN")
    A.label("KF_END")
    A("s_endpgm")
    return K, KG_LDS
```

```python
from common import *

KNAME = NAME + "_kernel"
K1_XS = 32768
K1_NX = 3
K1_WB = K1_XS * K1_NX
K1_SLOT = 12288
K1_NSLOT = 5
K1_WPHI = K1_WB + K1_SLOT * K1_NSLOT
K1_TBUF = 4352
RING = 65536
QST = 65536
TBUF0 = 81920
RED0 = 98304
ZRED = 114688
KVT_L = 116736
Z_L = 120832
KG_LDS = 163840
def WSL(s): return 65536 + 16384 * s if s < 6 else 16384 * (s - 6)
WS_F1 = WS_FLAG
WS_FK = WS_FLAG + 4096
WS_FA = WS_FLAG + 16384
WS_FB = WS_FLAG + 20480
HB0 = 122880
HB1 = 139264
TBUF1 = 147456
BIAS = 80.0
K3_ROW = 272
K3_RED = 128 * K3_ROW
SPIN_MAX = 1 << 16
WS_PROFV = WS_PROF

def cvt_tile(A, dst, src):
    for i in range(8):
        A(f"v_cvt_pk_bf16_f32 v{dst+i}, v{src+2*i}, v{src+2*i+1}")

def bstamp(A, cfg, kind, reg=33):
    if cfg.get("prof") == "2":
        A("s_memtime s[96:97]")
        A(f"s_add_u32 m0, s100, {16*kind}")
        A("s_waitcnt lgkmcnt(0)")
        A(f"v_writelane_b32 v{reg}, s96, m0")
        if kind == 2: A("s_add_u32 s100, s100, 1")

def pbar(A, cfg, wait):
    bstamp(A, cfg, 0)
    if callable(wait): wait()
    elif wait: A(wait)
    bstamp(A, cfg, 1)
    A("s_barrier")
    bstamp(A, cfg, 2)

def vstamp(A, cfg, i, reg):
    if cfg.get("prof") == "1":
        A("s_memtime s[96:97]")
        A("s_memrealtime s[98:99]")
        A("s_waitcnt lgkmcnt(0)")
        A(f"v_writelane_b32 v{reg}, s96, {2*i}")
        A(f"v_writelane_b32 v{reg}, s98, {2*i+1}")

def rst(A, cfg, lane, reg=33):
    if cfg.get("prof") == "5":
        A("s_memrealtime s[96:97]")
        A("s_waitcnt lgkmcnt(0)")
        A(f"v_writelane_b32 v{reg}, s96, {lane}")

def poll_issue(A, vdst, vaddr, srd, soff, n=1):
    if n == 1: A(f"buffer_load_dword v{vdst}, v{vaddr}, s[{srd}:{srd+3}], {soff} offen sc1")
    else:      A(f"buffer_load_dwordx2 v[{vdst}:{vdst+1}], v{vaddr}, s[{srd}:{srd+3}], {soff} offen sc1")

def poll_check(A, vdst, vaddr, srd, soff, tag, expect=1, n=1):
    ok = A.uid(tag + "_OK"); sp = A.uid(tag + "_SP")
    def test():
        if n == 2: A(f"v_and_b32 v{vdst}, v{vdst}, v{vdst+1}")
        A(f"v_cmp_eq_u32 vcc, {expect}, v{vdst}")
        A("s_cmp_eq_u64 vcc, -1")
        A(f"s_cbranch_scc1 {ok}")
    test()
    A("s_mov_b32 s82, 0")
    A.label(sp)
    A("s_sleep 2")
    poll_issue(A, vdst, vaddr, srd, soff, n)
    A("s_add_u32 s82, s82, 1")
    A("s_waitcnt vmcnt(0)")
    test()
    A(f"s_cmp_lt_u32 s82, {SPIN_MAX}")
    A(f"s_cbranch_scc1 {sp}")
    A.label(ok)

def set_flag(A, soff):
    A(f"""
    s_mov_b64 exec, 1
    v_mov_b32 v4, 1
    v_mov_b32 v5, 0
    buffer_store_dword v4, v5, s[32:35], {soff} offen sc1
    s_mov_b64 exec, -1
    """)

class VM:
    def __init__(s, A, init=()): s.A = A; s.q = list(init)
    def op(s, tag, text):
        def f(): s.A(text); s.q.append(tag)
        return f
    def now(s, tag, text): s.op(tag, text)()
    def wait(s, *tags):
        idx = max([k for k, t in enumerate(s.q) if t in tags], default=-1)
        if idx < 0: return
        s.A(f"s_waitcnt vmcnt({len(s.q) - 1 - idx})")
        s.q = s.q[idx+1:]

def setup_p2(A):
    A(f"""
    s_lshl_b32 s70, s42, 18
    s_add_u32 s70, s70, {WS_KVB}
    s_lshl_b32 s47, s41, 1
    s_add_u32 s47, s47, 3
    s_and_b32 s47, s47, 15
    s_lshl_b32 s47, s47, 14
    s_lshl_b32 s38, s40, 11
    s_add_u32 s71, s47, s38
    s_add_u32 s72, s38, {3*16384}
    s_lshl_b32 s47, s41, 3
    s_add_u32 s47, s47, s40
    s_lshl_b32 s47, s47, 5
    s_add_u32 s47, s47, s42
    s_lshl_b32 s73, s47, 11
    s_add_u32 s73, s73, {WS_OB}
    s_lshr_b32 s39, s40, 1
    s_and_b32 s39, s39, 1            ; th
    s_lshl_b32 s47, s41, 3
    s_lshl_b32 s38, s39, 2
    s_add_u32 s47, s47, s38          ; r*8 + th*4
    s_lshl_b32 s47, s47, 5
    s_add_u32 s47, s47, s42
    s_lshl_b32 s74, s47, 11
    s_add_u32 s74, s74, {WS_OA}
    s_lshl_b32 s75, s42, 16
    s_lshl_b32 s47, s40, 10
    s_add_u32 s75, s75, s47
    s_add_u32 s75, s75, {WS_KVP}
    s_lshl_b32 s47, s41, 13
    s_add_u32 s79, s75, s47
    s_lshl_b32 s76, s42, 11
    s_add_u32 s76, s76, {WS_ZP}
    s_lshl_b32 s47, s41, 8
    s_add_u32 s89, s76, s47
    s_lshl_b32 s77, s42, 8
    s_add_u32 s77, s77, {WS_FK}
    s_lshl_b32 s47, s41, 5
    s_add_u32 s68, s77, s47
    s_lshl_b32 s47, s40, 2
    s_add_u32 s68, s68, s47
    s_lshl_b32 s78, s42, 6
    s_add_u32 s78, s78, {WS_F1}      ; F1 line
    s_lshl_b32 s47, s41, 3
    s_add_u32 s67, s78, s47
    s_lshl_b32 s38, s39, 2
    s_add_u32 s67, s67, s38
    s_lshl_b32 s88, s41, 8
    s_lshl_b32 s47, s42, 3
    s_add_u32 s88, s88, s47
    s_add_u32 s88, s88, s38
    s_add_u32 s88, s88, {WS_FA}
    s_lshl_b32 s47, s41, 1
    s_lshr_b32 s38, s40, 2
    s_add_u32 s47, s47, s38
    s_lshl_b32 s69, s47, 9
    s_lshl_b32 s47, s42, 4
    s_add_u32 s69, s69, s47
    s_and_b32 s47, s40, 3
    s_lshl_b32 s47, s47, 2
    s_add_u32 s69, s69, s47
    s_add_u32 s69, s69, {WS_FB}
    """)

def setup_p3(A):
    A(f"""
    s_load_dwordx2 s[4:5], s[0:1], 24
    s_load_dwordx2 s[6:7], s[0:1], 48
    s_load_dwordx2 s[8:9], s[0:1], 64
    s_lshr_b32 s16, s45, 1
    s_lshl_b32 s16, s16, 2
    s_lshr_b32 s47, s46, 3
    s_add_u32 s16, s16, s47          ; T = 4*(e>>1) + (i>>3)
    s_and_b32 s17, s45, 1
    s_lshl_b32 s17, s17, 3
    s_and_b32 s47, s46, 7
    s_add_u32 s17, s17, s47          ; C = 8*(e&1) + (i&7)
    s_lshr_b32 s18, s40, 2           ; grp
    s_and_b32 s19, s40, 3            ; tq
    s_lshl_b32 s47, s16, 2
    s_add_u32 s47, s47, s19          ; tb3
    s_lshl_b32 s28, s47, 16
    s_lshl_b32 s38, s18, 15
    s_add_u32 s28, s28, s38
    s_add_u32 s28, s28, {WS_OA}
    s_lshl_b32 s31, s47, 7
    s_add_u32 s31, s31, {WS_G}       ; g offset
    s_lshr_b32 s47, s16, 1
    s_lshl_b32 s36, s47, 8
    s_add_u32 s36, s36, {WS_FA}
    s_lshl_b32 s83, s16, 9
    s_add_u32 s83, s83, {WS_FB}
    s_lshl_b32 s30, s18, 13
    s_lshl_b32 s38, s19, 11
    s_add_u32 s30, s30, s38
    s_mov_b32 s29, 0
    s_waitcnt lgkmcnt(0)
    s_mov_b32 s20, s4
    s_mov_b32 s21, s5
    s_mov_b32 s22, {1024*2048}
    s_mov_b32 s23, 0x00020000
    """)

def gen_kg(A, cfg):
    K = KNAME
    F1POS = int(cfg.get("f1pos", 2))
    ROT = int(cfg.get("rot", 12))
    RSH = int(cfg.get("rsh", 0))
    ROT2 = int(cfg.get("rot2", 0))
    PV = 255
    kernel_begin(A, K)
    A(f"""
    s_cmp_ge_u32 s2, 256
    s_cbranch_scc1 KF_END
    s_load_dwordx2 s[4:5], s[0:1], 0
    s_load_dwordx2 s[6:7], s[0:1], 8
    s_load_dwordx2 s[8:9], s[0:1], 40
    s_load_dwordx2 s[10:11], s[0:1], 16
    s_load_dwordx2 s[12:13], s[0:1], 56
    s_load_dwordx2 s[14:15], s[0:1], 80
    s_load_dwordx2 s[86:87], s[0:1], 72
    v_lshrrev_b32 v1, 6, v0
    v_and_b32 v0, 63, v0
    v_readfirstlane_b32 s40, v1
    s_and_b32 s45, s2, 7
    s_lshr_b32 s46, s2, 3
    """)
    if cfg.get("prof"): A(f"v_mov_b32 v{PV}, 0")
    vstamp(A, cfg, 0, PV)
    if cfg.get("prof") == "4":
        A("s_memrealtime s[96:97]")
        A("s_waitcnt lgkmcnt(0)")
        A(f"v_writelane_b32 v{PV}, s96, 40")
    if cfg.get("hmap", "f") == "f":
        A("""
        s_and_b32 s41, s45, 1
        s_lshl_b32 s41, s41, 2
        s_lshr_b32 s47, s46, 3
        s_add_u32 s41, s41, s47          ; r = 4(e&1) + (i>>3)
        s_lshr_b32 s42, s45, 1
        s_lshl_b32 s42, s42, 3
        s_and_b32 s47, s46, 7
        s_add_u32 s42, s42, s47          ; h = 8(e>>1) + (i&7)
        s_waitcnt lgkmcnt(0)
        """)
    elif cfg.get("hmap") == "h":
        A("""
        s_lshr_b32 s41, s45, 1
        s_lshl_b32 s41, s41, 1
        s_lshr_b32 s47, s46, 4
        s_add_u32 s41, s41, s47          ; r = 2(e>>1) + (i>>4)
        s_and_b32 s42, s45, 1
        s_lshl_b32 s42, s42, 4
        s_and_b32 s47, s46, 15
        s_add_u32 s42, s42, s47          ; h = 16(e&1) + (i&15)
        s_waitcnt lgkmcnt(0)
        """)
    else:
        A("""
        s_and_b32 s41, s46, 7            ; r
        s_lshl_b32 s42, s45, 2
        s_lshr_b32 s47, s46, 3
        s_add_u32 s42, s42, s47          ; h = 4e + (i>>3)
        s_waitcnt lgkmcnt(0)
        """)
    def rstamp(lane):
        if cfg.get("prof") == "4":
            A("s_memrealtime s[96:97]")
            A("s_waitcnt lgkmcnt(0)")
            A(f"v_writelane_b32 v{PV}, s96, {lane}")
    rstamp(41)
    srd(A, 32, 14, WS_USED)
    A("""
    s_cmp_ge_u32 s40, 4
    s_cbranch_scc1 K1_LOADER
    """)
    PF3 = cfg.get("pf3")
    PF4 = cfg.get("pf4")
    L2D = int(cfg.get("l2d", 2)) if not (PF3 or PF4) else 0
    TL = int(cfg.get("tl", 4))
    TC = int(cfg.get("tc", 8))
    def touch_addr(w, dst, t0, t1, t2, shift, sa):
        OFFL = int(cfg.get("offl", 0))
        A(f"""
        s_and_b32 s47, s42, 1
        s_lshl_b32 s47, s47, 2
        s_and_b32 s38, s41, 3
        s_add_u32 s47, s47, s38
        s_lshl_b32 s47, s47, 2
        v_bfe_u32 v{t0}, v0, 2, 1
        v_lshlrev_b32 v{t0}, 5, v{t0}    ; 32 * block
        v_and_b32 v{t2}, 3, v0
        v_add3_u32 v{dst}, v{t2}, v{t0}, s47
        v_mul_u32_u24 v{dst}, 6144, v{dst}
        v_lshrrev_b32 v{t1}, 3, v0       ; segment
        v_lshl_add_u32 v{dst}, v{t1}, 11, v{dst}
        s_lshr_b32 s47, s42, 1
        s_lshl_b32 s47, s47, 7
        v_add_u32 v{dst}, s47, v{dst}
        s_and_b32 {sa}, s42, 7
        """)
        if OFFL:
            A(f"""
            s_lshl_b32 s47, {sa}, 2
            s_add_u32 s47, s47, s38
            s_lshl_b32 s47, s47, 2
            v_add_u32 v{t2}, s47, v{t2}
            v_lshrrev_b32 v{t1}, 5, v{t2}
            v_and_b32 v{t2}, 31, v{t2}
            v_add_u32 v{t2}, v{t2}, v{t0}
            v_mul_u32_u24 v{t2}, 6144, v{t2}
            v_lshl_add_u32 v{t2}, v{t1}, 11, v{t2}
            s_lshr_b32 s47, s42, 1
            s_or_b32 s47, s47, 3
            s_lshl_b32 s47, s47, 7
            v_add_u32 v{t2}, s47, v{t2}
            v_cmp_lt_u32 vcc, 23, v0
            s_nop 1
            v_cndmask_b32 v{dst}, v{dst}, v{t2}, vcc
            s_cmp_lt_u32 {sa}, 6
            s_cselect_b32 s63, 32, 0
            """)
            if OFFL == 1:
                A(f"""
                s_lshl_b32 s47, {sa}, 4
                s_mul_i32 s38, {sa}, 80
                s_sub_u32 s38, s38, {6*80 - 96}
                s_cmp_lt_u32 {sa}, 6
                s_cselect_b32 s47, s47, s38
                s_cselect_b32 {sa}, 16, 40
                s_cselect_b32 s38, 0, 40
                s_cmp_eq_u32 {w}, 3
                s_cselect_b32 {sa}, s38, {sa}
                s_cselect_b32 s38, 40, 0
                s_add_u32 s47, s47, s38
                """)
            elif OFFL == 2:
                A(f"""
                s_mul_i32 s47, {sa}, 43
                s_cmp_lt_u32 {sa}, 5
                s_cselect_b32 s38, 43, 41
                s_cmp_lt_u32 {sa}, 6
                s_cselect_b32 {sa}, s38, 0
                s_cmp_eq_u32 {w}, 3
                s_cselect_b32 {sa}, 0, {sa}
                """)
            else:
                A(f"""
                s_lshl_b32 s47, {sa}, 5
                s_cmp_eq_u32 {w}, 3
                s_cselect_b32 {sa}, 0, 32
                """)
        else:
            A(f"""
            s_mov_b32 s63, 24
            s_lshl_b32 s47, {sa}, 5
            s_cmp_eq_u32 {w}, 3
            s_cselect_b32 {sa}, 0, 32
            """)
        A(f"""
        s_lshl_b32 s38, s41, 8
        s_add_u32 s47, s47, s38
        v_add_u32 v{t1}, s47, v0
        v_lshlrev_b32 v{t1}, 11, v{t1}   ; x row
        v_bfe_u32 v{t0}, v0, 1, 1
        s_and_b32 s38, s45, 1
        v_xor_b32 v{t0}, s38, v{t0}      ; 0 : ours
        v_and_b32 v{t2}, 3, v0
        s_lshr_b32 s38, s45, 1
        v_xor_b32 v{t2}, s38, v{t2}
        s_cmp_ge_u32 {w}, 2
        s_cselect_b64 vcc, -1, 0
        s_cselect_b32 s47, {sa}, s63
        s_mov_b32 s38, {(TC - TL) * 32 * 6144}
        s_cselect_b32 s38, {(TC - TL) * 64}, s38
        v_cndmask_b32 v{dst}, v{dst}, v{t1}, vcc
        v_cndmask_b32 v{t0}, v{t0}, v{t2}, vcc
        v_cmp_eq_u32 vcc, 0, v{t0}
        """)
        if shift:
            A(f"""
            v_mov_b32 v{t1}, s38
            s_nop 0
            v_cndmask_b32 v{t1}, 0, v{t1}, vcc
            v_add_u32 v{dst}, v{dst}, v{t1}
            v_cmp_gt_u32 vcc, s47, v0
            v_mov_b32 v{t1}, 0x7ffffff0
            s_nop 0
            v_cndmask_b32 v{dst}, v{t1}, v{dst}, vcc
            """)
        else:
            A(f"""
            v_cmp_gt_u32 s[62:63], s47, v0
            v_mov_b32 v{t1}, 0x7ffffff0
            s_and_b64 vcc, vcc, s[62:63]
            v_cndmask_b32 v{dst+2}, v{t1}, v{dst}, vcc
            v_cndmask_b32 v{dst}, v{t1}, v{dst}, s[62:63]
            """)
        A(f"""
        s_cmp_eq_u32 {w}, 0
        s_cselect_b32 s92, s6, s8
        s_cselect_b32 s93, s7, s9
        s_cmp_ge_u32 {w}, 2
        s_cselect_b32 s92, s4, s92
        s_cselect_b32 s93, s5, s93
        s_mov_b32 s94, {1024*6144}
        s_cselect_b32 s94, {2048*2048}, s94
        s_mov_b32 s95, 0x00020000
        """)
    rng = lambda t: range(*map(int, t.split(":"))) if t else range(0)
    PFA_ = rng(cfg.get("pfa", f"0:{4+L2D}")); PFB_ = rng(cfg.get("pfb", ""))
    PFA, PFD = 252, 253
    def l2pf(step=None):
        if step is None:
            A("s_and_b32 s55, s59, 31")
        else:
            A(f"s_add_u32 s55, s63, {step}")
            A("s_and_b32 s55, s55, 31")
        A(f"s_mul_i32 s55, s55, {32*6144}")
        A(f"buffer_load_dword v{PFD}, v{PFA}, s[92:95], s55 offen")
        if step is None: A("s_add_u32 s59, s59, 1")
    PF2 = cfg.get("pf2")
    def touch():
        return [f"buffer_load_dword v{PFD}, v{PFA}, s[92:95], s55 offen", "s_add_u32 s55, s55, s59", "s_cmp_eq_u32 s55, s56",
                "s_cselect_b32 s55, 0, s55", "s_xor_b32 s59, s59, s57"]
    if PF2:
        XW = int(cfg.get("pfx", 1))
        HM = cfg.get("hmap", "f") == "h"
        RB = 1 if HM else 2
        HB = 4 if HM else 3
        R20 = 0 if cfg.get("r2") == "early0" else 4
        A(f"""
        s_and_b32 s47, s42, 1
        s_lshl_b32 s47, s47, {RB}
        s_and_b32 s38, s41, {(1 << RB) - 1}
        s_add_u32 s47, s47, s38
        s_lshr_b32 s38, s42, 1
        s_lshl_b32 s47, s47, {4 - RB}
        s_lshl_b32 s38, s38, 7
        v_and_b32 v4, {(1 << (4 - RB)) - 1}, v0
        v_add_u32 v4, s47, v4
        v_mul_u32_u24 v4, 6144, v4
        v_lshrrev_b32 v5, {4 - RB}, v0
        v_lshl_add_u32 v4, v5, 11, v4    ; + segment * 2048
        v_add_u32 v4, s38, v4
        s_lshl_b32 s47, s41, 8
        s_and_b32 s38, s42, {(1 << HB) - 1}
        s_lshl_b32 s38, s38, {8 - HB}
        s_add_u32 s47, s47, s38
        v_add_u32 v6, s47, v0
        v_lshlrev_b32 v6, 11, v6
        s_cmp_eq_u32 s40, 0
        s_cselect_b64 vcc, -1, 0
        s_cselect_b32 s38, {1 << (7 - HB)}, {3 << (4 - RB)}
        v_mov_b32 v5, 0x7ffffff0
        v_cndmask_b32 v4, v4, v6, vcc
        v_cmp_gt_u32 vcc, s38, v0
        s_cmp_eq_u32 s40, 2
        s_cselect_b32 s92, s6, s8
        s_cselect_b32 s93, s7, s9
        s_cmp_ge_u32 s40, 2
        s_cselect_b32 s62, {1024*6144}, 0
        v_cndmask_b32 v{PFA}, v5, v4, vcc
        s_lshr_b32 s63, s45, {RSH}
        s_mul_i32 s63, s63, {ROT}
        s_and_b32 s47, s45, 1
        s_mul_i32 s47, s47, {ROT2}
        s_add_u32 s63, s63, s47
        s_add_u32 s63, s63, {R20}
        s_and_b32 s55, s63, 31
        s_mul_i32 s55, s55, {32*6144}
        s_mov_b32 s59, {32*6144}
        s_mov_b32 s57, 0
        s_mov_b32 s56, {1024*6144}
        s_cmp_lg_u32 s40, 0
        s_cbranch_scc1 K1_PFW
        s_mov_b32 s92, s4
        s_mov_b32 s93, s5
        s_mov_b32 s62, {2048*2048 if XW else 0}
        s_lshr_b32 s55, s63, 1
        s_and_b32 s55, s55, 15
        s_lshl_b32 s55, s55, 7
        s_mov_b32 s59, {1 << (18 - HB)}
        s_mov_b32 s57, {(1 << (18 - HB)) ^ ((128 - (1 << (18 - HB))) & 0xffffffff)}
        s_mov_b32 s56, 2048
        K1_PFW:
        s_mov_b32 s94, s62
        s_mov_b32 s95, 0x00020000
        """)
        if cfg.get("r2") == "early0":
            for t in range(int(cfg.get("e0n", 4))):
                for l in touch(): A(l)
        if cfg.get("r2") == "early":
            for t in range(L2D):
                for l in touch(): A(l)
    elif L2D:
        A(f"""
        s_and_b32 s47, s42, 1
        s_lshl_b32 s47, s47, 2
        s_and_b32 s38, s41, 3
        s_add_u32 s47, s47, s38
        s_lshr_b32 s38, s42, 1
        
        s_lshl_b32 s47, s47, 2
        s_lshl_b32 s38, s38, 7
        v_and_b32 v4, 3, v0
        v_add_u32 v4, s47, v4
        v_mul_u32_u24 v4, 6144, v4
        v_lshrrev_b32 v5, 2, v0
        v_lshl_add_u32 v4, v5, 11, v4    ; + segment * 2048
        v_add_u32 v4, s38, v4
        v_mov_b32 v5, 0x7ffffff0
        v_cmp_gt_u32 vcc, 12, v0
        s_cmp_eq_u32 s40, 2
        s_cselect_b32 s92, s6, s8
        s_cselect_b32 s93, s7, s9
        s_cmp_ge_u32 s40, 2
        s_cselect_b32 s62, {1024*6144}, 0
        s_mov_b32 s94, s62
        s_mov_b32 s95, 0x00020000
        v_cndmask_b32 v{PFA}, v5, v4, vcc
        s_lshr_b32 s63, s45, {RSH}
        s_mul_i32 s63, s63, {ROT}
        s_add_u32 s59, s63, {4 + L2D}
        """)
        for t in PFA_: l2pf(t)
    if PF4:
        assert ROT == 0 and ROT2 == 0
        touch_addr("s40", PFA, 4, 5, 6, False, "s62")
        A(f"""
        s_cmp_ge_u32 s40, 2
        s_mov_b32 s59, {64*6144}
        s_cselect_b32 s59, 128, s59
        s_mov_b32 s55, 0
        """)
        for t in range(int(cfg.get("r0", 0))):
            A(f"buffer_load_dword v{PFD}, v{PFA}, s[92:95], s55 offen")
            A("s_add_u32 s55, s55, s59")
        A(f"""
        s_cmp_ge_u32 s40, 2
        s_mov_b32 s55, {TL*32*6144}
        s_cselect_b32 s55, {TL*64}, s55
        """)
    rstamp(42)
    setup_p2(A)
    rstamp(43)
    A(f"""
    s_cmp_lg_u32 s40, 0
    s_cbranch_scc1 K1_NOZ
    v_lshlrev_b32 v4, 2, v0
    v_lshrrev_b32 v6, 2, v0
    v_lshlrev_b32 v6, 9, v6
    v_and_b32 v7, 3, v0
    v_lshl_add_u32 v6, v7, 2, v6
    v_mov_b32 v5, 0
    s_mov_b64 exec, 3
    buffer_store_dword v5, v4, s[32:35], s67 offen sc1
    buffer_store_dword v5, v4, s[32:35], s88 offen sc1
    s_mov_b64 exec, 0xff
    buffer_store_dword v5, v4, s[32:35], s68 offen sc1
    buffer_store_dword v5, v6, s[32:35], s69 offen sc1
    s_mov_b32 s36, s86
    s_mov_b32 s37, s87
    s_mov_b32 s38, 256
    s_mov_b32 s39, 0x00020000
    """)
    LATE = cfg.get("late")
    if not LATE:
        A("""
        s_waitcnt vmcnt(0)
        s_mov_b64 exec, 1
        v_mov_b32 v6, 1
        buffer_atomic_add v6, v5, s[36:39], 0 offen
        s_mov_b64 exec, -1
        """)
    else:
        A("s_mov_b64 exec, -1")
    A("""
    K1_NOZ:
    """)
    rstamp(44)
    setup_p3(A)
    rstamp(45)
    XA, WA = 4, 20
    XB, WB = 32, 48
    ACC = 60
    acc = lambda sg, tt: ACC + (sg * 4 + tt) * 16
    A(f"""
    s_lshr_b32 s50, s40, 1           ; th
    s_and_b32 s51, s40, 1            ; type
    v_and_b32 v4, 31, v0
    v_lshrrev_b32 v5, 5, v0          ; hh
    v_bfe_u32 v6, v0, 2, 2           ; f = (l>>2)&3
    v_bfe_u32 v7, v0, 1, 3           ; (row>>1)&7
    v_xor_b32 v7, v5, v7
    v_lshlrev_b32 v7, 4, v7
    v_lshl_add_u32 v1, v4, 7, v7
    s_lshl_b32 s47, s50, 14
    v_add_u32 v1, s47, v1            ; vxa0
    v_xor_b32 v2, 32, v1             ; vxa1
    v_lshl_add_u32 v7, v5, 3, v6
    v_lshlrev_b32 v7, 6, v7          ; *64
    v_bfe_u32 v8, v0, 4, 1           ; g&1
    v_lshl_add_u32 v7, v8, 5, v7
    v_and_b32 v9, 3, v0
    v_lshl_add_u32 v7, v9, 3, v7
    s_lshl_b32 s47, s51, 11
    s_add_u32 s47, s47, {K1_WB}
    v_add_u32 v3, s47, v7            ; vwa
    s_mov_b32 s48, {1 if cfg.get("spread") else 0}
    s_mov_b32 s49, {K1_SLOT}
    s_mov_b32 s65, 0
    s_mov_b32 s52, {K1_SLOT}
    s_mov_b32 s53, {-(K1_NSLOT-1)*K1_SLOT & 0xffffffff}
    s_mov_b32 s54, 32
    s_mov_b32 s64, 0                 ; x slot
    s_mov_b32 s66, {-(K1_NX-1)*K1_XS & 0xffffffff}
    """)
    for i in range(192):
        A(f"v_mov_b32 v{ACC+i}, 0")
    if PF2 and cfg.get("r2") != "early":
        for t in range(L2D + (4 - int(cfg.get("e0n", 4)) if cfg.get("r2") == "early0" else 0)):
            for l in touch(): A(l)
    rstamp(46)
    A("s_barrier")
    vstamp(A, cfg, 1, PV)
    if cfg.get("prof") == "4":
        A("s_memrealtime s[96:97]")
        A("s_waitcnt lgkmcnt(0)")
        A(f"v_writelane_b32 v{PV}, s96, 0")
    if cfg.get("prof") == "3":
        A("s_memtime s[96:97]")
        A("s_mov_b32 s100, 0")
        A("s_waitcnt lgkmcnt(0)")
        A("s_mov_b32 s101, s96")
    if L2D:
        for t in PFB_: l2pf(t)
    def reads(X, W, s):
        r = []
        xa = 1 if s == 0 else 2
        for tt in range(4):
            r.append(f"ds_read_b128 v[{X+4*tt}:{X+4*tt+3}], v{xa} offset:{tt*4096}")
        for sg in range(3):
            for sec in range(2):
                r.append(f"ds_read_b64_tr_b16 v[{W+4*sg+2*sec}:{W+4*sg+2*sec+1}], v3 offset:{sg*4096 + s*1024 + sec*256}")
        return [r[4], r[5], r[0], r[1], r[2], r[3], r[6], r[7], r[8], r[9]]
    def mfmas(X, W):
        m = []
        for sg in range(3):
            for tt in range(4):
                a = acc(sg, tt)
                w = f"v[{W+4*sg}:{W+4*sg+3}]"; x = f"v[{X+4*tt}:{X+4*tt+3}]"
                if cfg.get("exp16"):
                    m.append(f"v_mfma_f32_16x16x32_bf16 v[{a}:{a+3}], {w}, {x}, v[{a}:{a+3}]\nv_mfma_f32_16x16x32_bf16 v[{a+8}:{a+11}], {x}, {w}, v[{a+8}:{a+11}]")
                elif sg < 2: m.append(f"v_mfma_f32_32x32x16_bf16 v[{a}:{a+15}], {w}, {x}, v[{a}:{a+15}]")
                else:      m.append(f"v_mfma_f32_32x32x16_bf16 v[{a}:{a+15}], {x}, {w}, v[{a}:{a+15}]")
        return m
    for l in reads(XA, WA, 0): A(l)
    if LATE:
        A("""
        s_cmp_lg_u32 s40, 0
        s_cbranch_scc1 K1_NOARR
        s_mov_b32 s96, s86
        s_mov_b32 s97, s87
        s_mov_b32 s98, 256
        s_mov_b32 s99, 0x00020000
        v_mov_b32 v32, 0
        v_mov_b32 v33, 1
        s_waitcnt vmcnt(0)
        s_mov_b64 exec, 1
        buffer_atomic_add v33, v32, s[96:99], 0 offen
        s_mov_b64 exec, -1
        K1_NOARR:
        """)
    if PF4:
        for t in range((TC - TL) // 2):
            A(f"buffer_load_dword v{PFD}, v{PFA+2}, s[92:95], s55 offen")
            A("s_add_u32 s55, s55, s59")
    A.label("K1_CLOOP")
    A("s_waitcnt lgkmcnt(0)")
    m = mfmas(XA, WA); r = reads(XB, WB, 1)
    extra0 = {4: ["s_and_b32 s63, s54, 1", "s_add_u32 s64, s64, s63", f"s_cmp_eq_u32 s64, {K1_NX}",
                  f"s_cselect_b32 s65, s66, {K1_XS}", "s_cselect_b32 s64, 0, s64", "s_mul_i32 s65, s65, s63"],
              6: ["s_add_u32 s48, s48, 1", f"s_cmp_eq_u32 s48, {K1_NSLOT}", "s_cselect_b32 s49, s53, s52", "s_cselect_b32 s48, 0, s48"],
              7: ["v_xor_b32 v1, 64, v1", "v_xor_b32 v2, 64, v2"], 8: ["v_add_u32 v1, s65, v1", "v_add_u32 v2, s65, v2"], 9: ["v_add_u32 v3, s49, v3"]}
    SPREAD = cfg.get("spread")
    extra1 = {}
    if SPREAD:
        extra0 = {6: ["v_xad_u32 v1, v1, 64, s65"], 8: ["v_xad_u32 v2, v2, 64, s65"], 10: ["v_add_u32 v3, s49, v3"]}
        extra1 = {5: ["s_sub_u32 s54, s54, 1", "s_and_b32 s63, s54, 1", "s_add_u32 s64, s64, s63"],
                  6: [f"s_cmp_eq_u32 s64, {K1_NX}", f"s_cselect_b32 s65, s66, {K1_XS}", "s_cselect_b32 s64, 0, s64"],
                  7: ["s_mul_i32 s65, s65, s63", "s_add_u32 s48, s48, 1", f"s_cmp_eq_u32 s48, {K1_NSLOT}"],
                  8: ["s_cselect_b32 s49, s53, s52", "s_cselect_b32 s48, 0, s48"],
                  11: ["s_cmp_lg_u32 s54, 0"]}
        if PF2:
            t_ = touch()
            th_, tk_ = map(int, cfg.get("tpos", "1:9").split(":"))
            ex_ = extra1 if th_ else extra0
            after_dec = th_ == 1 and tk_ >= 5
            cmp_ = f"s_cmp_ge_u32 s54, {4 + L2D}" if after_dec else f"s_cmp_gt_u32 s54, {4 + L2D}"
            def addx(d, k, ls, front=False):
                d[k] = (ls + d.get(k, [])) if front else (d.get(k, []) + ls)
            if th_ == 1 and tk_ == 9:
                extra1[9] = [cmp_, "s_cselect_b32 s94, s62, 0", t_[0]]
                extra1[10] = t_[1:4]
                extra1[11] = [t_[4], "s_cmp_lg_u32 s54, 0"]
            else:
                assert not (th_ == 1 and 3 < tk_ < 9)
                addx(ex_, tk_, [cmp_, "s_cselect_b32 s94, s62, 0", t_[0]])
                addx(ex_, tk_ + 1, [t_[1], t_[2], t_[3], t_[4]])
        elif L2D:
            extra1[9] = [f"s_cmp_ge_u32 s54, {4 + L2D}", "s_cselect_b32 s94, s62, 0", "s_and_b32 s55, s59, 31"]
            extra1[10] = [f"s_mul_i32 s55, s55, {32*6144}", "s_add_u32 s59, s59, 1", f"buffer_load_dword v{PFD}, v{PFA}, s[92:95], s55 offen"]
    for k in range(12):
        A(m[k])
        if k < 5:
            A(r[2*k]); A(r[2*k+1])
        for l in extra0.get(k, []): A(l)
        if L2D and k == 10 and not SPREAD:
            assert not PF2
            A(f"s_cmp_gt_u32 s54, {4 + L2D}")
            A("s_cselect_b32 s94, s62, 0")
            l2pf()
    A("s_waitcnt lgkmcnt(0)")
    m = mfmas(XB, WB); r = reads(XA, WA, 0)
    for k in range(12):
        A(m[k])
        if k < 5:
            A(r[2*k]); A(r[2*k+1])
        for l in extra1.get(k, []): A(l)
        if k == 8 and not SPREAD:
            A("s_sub_u32 s54, s54, 1"); A("s_cmp_lg_u32 s54, 0")
    if cfg.get("prof") == "3":
        A("s_memtime s[96:97]")
        A("s_barrier")
        A("s_memtime s[98:99]")
        A("s_waitcnt lgkmcnt(0)")
        A("s_sub_u32 s98, s98, s96")
        A("s_add_u32 s100, s100, s98")
        A("s_cmp_lg_u32 s54, 0")
    elif cfg.get("prof") == "4":
        A("s_barrier")
        A("s_memrealtime s[96:97]")
        A("s_sub_u32 m0, 32, s54")
        A("s_waitcnt lgkmcnt(0)")
        A(f"v_writelane_b32 v{PV}, s96, m0")
        A("s_cmp_lg_u32 s54, 0")
    else:
        A("s_barrier")
    A("s_cbranch_scc1 K1_CLOOP")
    A("s_waitcnt lgkmcnt(0)")
    if cfg.get("prof") == "3":
        A("s_memtime s[96:97]")
        A("s_waitcnt lgkmcnt(0)")
        A("s_sub_u32 s96, s96, s101")
        A(f"v_writelane_b32 v{PV}, s100, 0")
        A(f"v_writelane_b32 v{PV}, s96, 2")
    vstamp(A, cfg, 2, PV)
    E8 = cfg.get("e8")
    T1 = 4
    VB = acc(1, 0)
    QL = E8 and cfg.get("qlate", "1") == "1"
    V = acc(0, 2) if QL else acc(1, 0)
    Q = V + 16 if QL else acc(1, 0) + 32
    NT8 = 2 if E8 else 4
    A(f"""
    v_lshlrev_b32 v1, 4, v0          ; lane*16
    s_cmp_lg_u32 s51, 0
    s_cbranch_scc1 K1_E1T1
    s_mov_b32 s56, {fhex(32**-0.5 * LOG2E)}
    s_mov_b32 s57, s56
    s_lshl_b32 s47, s50, 13
    s_add_u32 s47, s47, {QST}
    v_add_u32 v44, s47, v1
    """)
    def handoff(srcs):
        for k, src in enumerate(srcs):
            cvt_tile(A, T1 + 8*k, src)
            A(f"ds_write_b128 v45, v[{T1+8*k}:{T1+8*k+3}] offset:{k*2048}")
            A(f"ds_write_b128 v45, v[{T1+8*k+4}:{T1+8*k+7}] offset:{k*2048+1024}")
        A("s_waitcnt lgkmcnt(0)")
        A("s_barrier")
    if E8:
        A(f"""
        s_lshl_b32 s47, s50, 13
        s_add_u32 s47, s47, {HB0}
        v_add_u32 v45, s47, v1
        """)
        A.nop(2)
        handoff([acc(0, 2), acc(0, 3), acc(2, 2), acc(2, 3)])
    else:
        A.nop(6)
    def bq_stage(tts, sc, adr, inplace):
        for tt in tts:
            for k in range(8):
                a = acc(1, tt) + 2*k
                A(f"v_pk_mul_f32 v[{a}:{a+1}], v[{a}:{a+1}], s[{sc}:{sc+1}]")
            d = acc(1, tt) if inplace else T1 + 8*tt
            cvt_tile(A, d, acc(1, tt))
            A(f"ds_write_b128 v{adr}, v[{d}:{d+3}] offset:{tt*2048}")
            A(f"ds_write_b128 v{adr}, v[{d+4}:{d+7}] offset:{tt*2048+1024}")
    if QL:
        A("""
        v_mov_b32 v26, v44
        s_mov_b32 s64, s56
        s_mov_b32 s65, s56
        """)
    else:
        bq_stage(range(4), 56, 44, False)
    for tt in range(NT8):
        cvt_tile(A, V + 8*tt, acc(2, tt))
    A("s_branch K1_E2J")
    A.label("K1_E1T1")
    A(f"""
    s_lshl_b32 s58, s41, 1
    s_add_u32 s58, s58, s50
    s_lshl_b32 s58, s58, 14
    s_add_u32 s58, s58, s70
    s_lshl_b32 s47, s50, 14
    v_add_u32 v44, s47, v1
    """)
    if E8:
        A(f"""
        s_lshl_b32 s47, s50, 12
        s_add_u32 s47, s47, {HB1}
        v_add_u32 v45, s47, v1
        """)
        handoff([acc(0, 2), acc(0, 3)])
    else:
        A.nop(10)
    for tt in range(4):
        cvt_tile(A, T1 + 8*tt, acc(1, tt))
        A(f"buffer_store_dwordx4 v[{T1+8*tt}:{T1+8*tt+3}], v1, s[32:35], s58 offen sc1")
        A(f"buffer_store_dwordx4 v[{T1+8*tt+4}:{T1+8*tt+7}], v1, s[32:35], s58 offen offset:1024 sc1")
        A("s_add_u32 s58, s58, 4096")
    A(f"s_sub_u32 s58, s58, {4*4096 - 2048}")
    for tt in range(4):
        cvt_tile(A, VB + 8*tt, acc(2, tt))
        A(f"buffer_store_dwordx4 v[{VB+8*tt}:{VB+8*tt+3}], v1, s[32:35], s58 offen sc1")
        A(f"buffer_store_dwordx4 v[{VB+8*tt+4}:{VB+8*tt+7}], v1, s[32:35], s58 offen offset:1024 sc1")
        A("s_add_u32 s58, s58, 4096")
    for tt in range(4):
        A(f"ds_write_b128 v44, v[{T1+8*tt}:{T1+8*tt+3}] offset:{tt*4096}")
        A(f"ds_write_b128 v44, v[{T1+8*tt+4}:{T1+8*tt+7}] offset:{tt*4096+1024}")
        A(f"ds_write_b128 v44, v[{VB+8*tt}:{VB+8*tt+3}] offset:{tt*4096+2048}")
        A(f"ds_write_b128 v44, v[{VB+8*tt+4}:{VB+8*tt+7}] offset:{tt*4096+3072}")
    A.label("K1_E2J")
    WP = 36
    def feat_setup(tb):
        A(f"""
        v_lshrrev_b32 v5, 5, v0          ; hh
        v_bfe_u32 v6, v0, 2, 2           ; i>>2
        v_lshl_add_u32 v6, v5, 2, v6     ; 4hh + (i>>2)
        v_bfe_u32 v7, v0, 4, 1
        v_lshlrev_b32 v7, 5, v7
        v_and_b32 v8, 3, v0
        v_lshl_add_u32 v7, v8, 3, v7     ; (g&1)*32 + (i&3)*8
        v_lshl_add_u32 v2, v6, 6, v7
        v_add_u32 v2, {K1_WPHI}, v2
        """)
        for s in range(2):
            for sec in range(2):
                A(f"ds_read_b64_tr_b16 v[{WP+4*s+2*sec}:{WP+4*s+2*sec+1}], v2 offset:{(16*s+8*sec)*64}")
        A(f"""
        s_mul_i32 s47, s50, {K1_TBUF}
        s_add_u32 s47, s47, {tb}
        v_mul_u32_u24 v25, 136, v6
        v_add_u32 v25, v25, v7
        v_add_u32 v25, s47, v25
        v_and_b32 v8, 31, v0
        v_mul_u32_u24 v24, 136, v8
        v_lshl_add_u32 v24, v5, 3, v24
        v_add_u32 v24, s47, v24
        v_bfe_u32 v8, v0, 2, 1
        v_bfe_u32 v9, v0, 4, 1
        v_cmp_eq_u32 vcc, v8, v9
        v_mov_b32 v9, 0x3f803f80
        v_mov_b32 v8, 0
        v_cndmask_b32 v20, v8, v9, vcc
        v_cndmask_b32 v21, v8, v9, vcc
        v_cndmask_b32 v22, v8, v9, vcc
        v_cndmask_b32 v23, v8, v9, vcc
        """)
    feat_setup(TBUF0)
    for tt in range(NT8):
        cvt_tile(A, Q + 8*tt, acc(0, tt))
    if E8: A.label("K1_E2L")
    A("s_waitcnt lgkmcnt(0)")
    for tt in range(NT8):
        a = acc(0, tt)
        A(f"v_mfma_f32_32x32x16_bf16 v[{a}:{a+15}], v[{WP}:{WP+3}], v[{Q+8*tt}:{Q+8*tt+3}], 0")
    for tt in range(NT8):
        a = acc(0, tt)
        A(f"v_mfma_f32_32x32x16_bf16 v[{a}:{a+15}], v[{WP+4}:{WP+7}], v[{Q+8*tt+4}:{Q+8*tt+7}], v[{a}:{a+15}]")
    A(f"""
    s_mov_b32 s56, {fhex(LOG2E)}
    s_mov_b32 s57, s56
    """)
    A.nop(10)
    EP = acc(2, 0)
    PH = EP + 16
    AF = PH + 16
    KV0 = AF + 16
    KV1 = 44
    Z0, Z1, SEL1 = 12, 16, 20
    PHQ = 128
    def kv_mfmas(tt):
        out = []
        for s in range(2):
            for fb in range(2):
                kv = KV0 if fb == 0 else KV1
                z = Z0 if fb == 0 else Z1
                af = AF + (fb*2+s)*4
                c = "0" if (tt == 0 and s == 0) else f"v[{kv}:{kv+15}]"
                cz = "0" if (tt == 0 and s == 0) else f"v[{z}:{z+3}]"
                out.append(f"v_mfma_f32_32x32x16_bf16 v[{kv}:{kv+15}], v[{af}:{af+3}], v[{V+8*tt+4*s}:{V+8*tt+4*s+3}], {c}")
                out.append(f"v_mfma_f32_16x16x32_bf16 v[{z}:{z+3}], v[{SEL1}:{SEL1+3}], v[{af}:{af+3}], {cz}")
        return out
    if E8: F1POS = min(int(cfg.get("f1pos", 0)), 1)
    for tt in range(NT8):
        P = acc(0, tt)
        A(f"v_max3_f32 v4, v{P}, v{P+1}, v{P+2}")
        A(f"v_max3_f32 v5, -v{P}, -v{P+1}, -v{P+2}")
        for k in range(3, 15, 2):
            A(f"v_max3_f32 v4, v4, v{P+k}, v{P+k+1}")
            A(f"v_max3_f32 v5, v5, -v{P+k}, -v{P+k+1}")
        A(f"v_max_f32 v4, v4, v{P+15}")
        A(f"v_max_f32 v5, v5, -v{P+15}")
        A.nop(2)
        A("v_permlane32_swap_b32 v4, v5")
        A("s_nop 0")
        A("v_max_f32 v4, v4, v5")
        A("v_mov_b32 v5, v4")
        A.nop(2)
        A("v_permlane32_swap_b32 v4, v5")
        A("s_nop 0")
        A(f"v_mul_f32 v6, {fhex(-LOG2E)}, v4")
        A(f"v_mul_f32 v8, {fhex(-LOG2E)}, v5")
        for k in range(8):
            A(f"v_pk_fma_f32 v[{EP+2*k}:{EP+2*k+1}], v[{P+2*k}:{P+2*k+1}], s[56:57], v[6:7] op_sel_hi:[1,1,0]")
            A(f"v_pk_fma_f32 v[{P+2*k}:{P+2*k+1}], v[{P+2*k}:{P+2*k+1}], s[56:57], v[8:9] op_sel_hi:[1,1,0] neg_lo:[0,1,0] neg_hi:[0,1,0]")
        for k in range(16):
            A(f"v_exp_f32 v{EP+k}, v{EP+k}")
            A(f"v_exp_f32 v{P+k}, v{P+k}")
        if tt > 0:
            j = A.uid("K1_KVS")
            A("s_cmp_lg_u32 s51, 0"); A(f"s_cbranch_scc1 {j}")
            A("s_waitcnt lgkmcnt(0)")
            for l in kv_mfmas(tt-1): A(l)
            A.label(j)
        A(f"v_pk_add_f32 v[4:5], v[{EP}:{EP+1}], v[{EP+2}:{EP+3}]")
        A(f"v_pk_add_f32 v[6:7], v[{P}:{P+1}], v[{P+2}:{P+3}]")
        for k in range(2, 8):
            A(f"v_pk_add_f32 v[4:5], v[4:5], v[{EP+2*k}:{EP+2*k+1}]")
            A(f"v_pk_add_f32 v[6:7], v[6:7], v[{P+2*k}:{P+2*k+1}]")
        A("v_add_f32 v4, v4, v5")
        A("v_add_f32 v6, v6, v7")
        A.nop(2)
        A("v_permlane32_swap_b32 v4, v6")
        A("s_nop 0")
        A("v_add_f32 v4, v4, v6")
        A("v_rcp_f32 v4, v4")
        A("s_nop 0")
        A("v_mov_b32 v6, v4")
        A.nop(2)
        A("v_permlane32_swap_b32 v4, v6")
        A("s_nop 0")
        for k in range(8):
            A(f"v_pk_mul_f32 v[{EP+2*k}:{EP+2*k+1}], v[{EP+2*k}:{EP+2*k+1}], v[4:5] op_sel_hi:[1,0]")
            A(f"v_pk_mul_f32 v[{P+2*k}:{P+2*k+1}], v[{P+2*k}:{P+2*k+1}], v[6:7] op_sel_hi:[1,0]")
        j1 = A.uid("K1_T0"); j2 = A.uid("K1_TJ")
        A("s_cmp_eq_u32 s51, 0"); A(f"s_cbranch_scc1 {j1}")
        cvt_tile(A, PHQ + 16*tt, EP)
        cvt_tile(A, PHQ + 16*tt + 8, P)
        if tt == F1POS:
            if E8:
                A("s_cmp_ge_u32 s40, 4"); A(f"s_cbranch_scc1 {j2}")
            A("s_waitcnt vmcnt(0)")
            set_flag(A, "s67")
            vstamp(A, cfg, 3, PV)
        A(f"s_branch {j2}")
        A.label(j1)
        cvt_tile(A, PH, EP)
        cvt_tile(A, PH + 8, P)
        for sign in range(2):
            for b in range(4):
                A(f"ds_write_b64 v24, v[{PH+8*sign+2*b}:{PH+8*sign+2*b+1}] offset:{sign*64+b*16}")
        for fb in range(2):
            for s in range(2):
                for sec in range(2):
                    af = AF + (fb*2+s)*4 + 2*sec
                    A(f"ds_read_b64_tr_b16 v[{af}:{af+1}], v25 offset:{(16*s+8*sec)*136 + fb*64}")
        A.label(j2)
    A("s_cmp_lg_u32 s51, 0")
    A("s_cbranch_scc1 KF_JOIN")
    if QL:
        QN = int(cfg.get("qn", 4))
        A("s_cmp_ge_u32 s40, 4")
        A("s_cbranch_scc1 K1_QL0")
        bq_stage(range(QN), 64, 26, True)
        A(f"s_waitcnt lgkmcnt({2 * QN})")
        for l in kv_mfmas(NT8 - 1): A(l)
        bq_stage(range(QN, 4), 64, 26, True)
        A("s_branch K1_QL1")
        A("K1_QL0:")
        A("s_waitcnt lgkmcnt(0)")
        for l in kv_mfmas(NT8 - 1): A(l)
        A("K1_QL1:")
    else:
        A("s_waitcnt lgkmcnt(0)")
        for l in kv_mfmas(NT8 - 1): A(l)
    if E8:
        A(f"""
        s_cmp_ge_u32 s40, 4
        s_cselect_b32 s38, {HB0 - RED0}, 0
        s_cselect_b32 s55, 512, 0
        s_add_u32 s38, s38, {RED0}
        s_add_u32 s55, s55, {ZRED}
        """)
    else:
        A(f"s_mov_b32 s38, {RED0}")
        A(f"s_mov_b32 s55, {ZRED}")
    A(f"""
    s_lshl_b32 s47, s50, 13
    s_add_u32 s47, s47, s38
    v_add_u32 v2, s47, v1
    v_and_b32 v3, 31, v0
    v_lshlrev_b32 v3, 2, v3
    s_lshl_b32 s47, s50, 8
    s_add_u32 s47, s47, s55
    v_add_u32 v3, s47, v3
    """)
    A.nop(8)
    A(f"ds_write_b32 v3, v{Z0}")
    A(f"ds_write_b32 v3, v{Z1} offset:128")
    for fb in range(2):
        kv = KV0 if fb == 0 else KV1
        for q in range(4):
            A(f"ds_write_b128 v2, v[{kv+4*q}:{kv+4*q+3}] offset:{fb*4096+q*1024}")
    A("s_branch KF_JOIN")
    A.label("K1_LOADER")
    if cfg.get("lprio"): A(f"s_setprio {cfg.get('lprio')[0]}")
    srd(A, 16, 4, 2048*2048)
    srd(A, 20, 6, 1024*6144)
    srd(A, 24, 8, 1024*6144)
    A(f"""
    s_sub_u32 s50, s40, 4            ; w
    s_lshr_b32 s44, s50, 1
    s_cmp_eq_u32 s44, 0
    s_cselect_b32 s28, s6, s8
    s_cselect_b32 s29, s7, s9
    """)
    A(f"s_mov_b32 s30, {1024*6144}")
    A("s_mov_b32 s31, 0x00020000")
    R1 = cfg.get("r1", "1") if cfg.get("pf2") else (cfg.get("r1", "0") if (PF3 or PF4) else "0")
    if R1 != "0":
        HM = cfg.get("hmap", "f") == "h"
        RB = 1 if HM else 2; HB = 4 if HM else 3
        NW = 3 << (4 - RB)
        A(f"""
        s_lshr_b32 s47, s45, {RSH}
        s_mul_i32 s47, s47, {ROT}
        s_and_b32 s51, s45, 1
        s_mul_i32 s51, s51, {ROT2}
        s_add_u32 s47, s47, s51
        s_and_b32 s51, s50, 1
        s_lshl_b32 s51, s51, 1
        s_add_u32 s51, s51, s47
        v_mul_u32_u24 v20, 43, v0
        v_lshrrev_b32 v20, {10 if HM else 9}, v20
        v_mul_u32_u24 v21, {NW}, v20
        v_sub_u32 v21, v0, v21           ; lane % NW
        v_add_u32 v20, s51, v20
        v_and_b32 v20, 31, v20
        v_mul_u32_u24 v20, {32*6144}, v20
        s_and_b32 s51, s42, 1
        s_lshl_b32 s51, s51, {RB}
        s_and_b32 s52, s41, {(1 << RB) - 1}
        s_add_u32 s51, s51, s52
        s_lshl_b32 s51, s51, {4 - RB}
        v_and_b32 v22, {(1 << (4 - RB)) - 1}, v21
        v_add_u32 v22, s51, v22
        v_mul_u32_u24 v22, 6144, v22
        v_lshrrev_b32 v21, {4 - RB}, v21
        v_lshl_add_u32 v22, v21, 11, v22
        s_lshr_b32 s51, s42, 1
        s_lshl_b32 s51, s51, 7
        v_add3_u32 v20, v20, v22, s51
        v_mov_b32 v23, 0x7ffffff0
        v_cmp_gt_u32 vcc, {2 * NW}, v0
        s_lshl_b32 s51, s41, 8
        s_and_b32 s52, s42, {(1 << HB) - 1}
        s_lshl_b32 s52, s52, {8 - HB}
        v_cndmask_b32 v20, v23, v20, vcc
        s_add_u32 s51, s51, s52
        s_lshl_b32 s52, s50, {6 - HB}
        s_add_u32 s51, s51, s52
        buffer_load_dword v24, v20, s[28:31], 0 offen
        v_and_b32 v21, {(1 << (6 - HB)) - 1}, v0
        v_add_u32 v21, s51, v21
        v_lshlrev_b32 v21, 11, v21
        v_lshrrev_b32 v22, {6 - HB}, v0
        s_lshr_b32 s47, s47, 1
        v_add_u32 v22, s47, v22
        v_and_b32 v22, 15, v22
        v_lshl_add_u32 v21, v22, 7, v21
        v_cmp_gt_u32 vcc, {2 << (6 - HB)}, v0
        s_nop 1
        v_cndmask_b32 v21, v23, v21, vcc
        buffer_load_dword v25, v21, s[16:19], 0 offen
        """)
    srd(A, 36, 10, 32*2048)
    A(f"""
    v_lshrrev_b32 v1, 3, v0
    v_lshrrev_b32 v2, 4, v0
    v_and_b32 v3, 7, v0
    v_xor_b32 v3, v3, v2
    v_lshlrev_b32 v3, 4, v3
    v_lshl_add_u32 v4, v1, 11, v3
    s_lshl_b32 s47, s41, 8
    s_lshl_b32 s51, s50, 6
    s_add_u32 s47, s47, s51
    s_lshl_b32 s47, s47, 11          ; (r*256 + 64w)*2048
    v_add_u32 v4, s47, v4            ; piece 0
    v_xor_b32 v5, 64, v4
    v_add_u32 v5, 16384, v5
    v_add_u32 v6, 32768, v4
    v_add_u32 v7, 32768, v5
    v_add_u32 v12, 65536, v4
    v_add_u32 v13, 65536, v5
    v_add_u32 v14, 98304, v4
    v_add_u32 v15, 98304, v5
    v_lshrrev_b32 v1, {3 if cfg.get("expw") else 2}, v0
    s_and_b32 s47, s50, 1
    s_lshl_b32 s47, s47, 4
    v_add_u32 v1, s47, v1            ; krow = 16*(w&1) + (l>>2)
    v_mul_u32_u24 v1, 6144, v1
    v_and_b32 v3, {7 if cfg.get("expw") else 3}, v0
    v_lshl_add_u32 v1, v3, 4, v1
    s_lshl_b32 s47, s42, 6           ; 64h
    {"s_and_b32 s47, s47, 0x780" if cfg.get("expw") else ""}
    s_lshl_b32 s51, s44, 11          ; type*2048
    s_add_u32 s52, s47, s51
    v_add_u32 v9, s52, v1            ; seg1 : B.q / B.k
    s_sub_u32 s52, 2048, s51
    s_add_u32 s52, s52, s47
    v_add_u32 v8, s52, v1            ; seg0 : A.k / A.q
    s_add_u32 s52, s47, 4096
    v_add_u32 v10, s52, v1           ; seg2 : A.v / B.v
    v_lshlrev_b32 v11, 4, v0
    s_and_b32 s51, s50, 1
    s_lshl_b32 s51, s51, 10
    s_lshl_b32 s47, s42, 11
    s_add_u32 s47, s47, s51
    s_add_u32 m0, s51, {K1_WPHI}
    s_lshl_b32 s55, s50, 13          ; w*8192  (x pieces)
    {"s_waitcnt vmcnt(0)" if R1 == "1" else ""}
    buffer_load_dwordx4 v11, s[36:39], s47 offen lds
    s_lshl_b32 s51, s50, 10
    s_add_u32 s56, s51, {K1_WB}      ; W pieces : + w*1024
    s_lshr_b32 s47, s45, {RSH}
    s_mul_i32 s47, s47, {ROT}
    s_and_b32 s51, s45, 1
    s_mul_i32 s51, s51, {ROT2}
    s_add_u32 s47, s47, s51
    s_and_b32 s47, s47, 31
    s_lshl_b32 s58, s47, 6           ; soffset x
    s_mul_i32 s59, s47, {32*6144}    ; soffset W
    s_mov_b32 s60, 0                 ; block
    s_mov_b32 s61, s55               ; x slot
    s_mov_b32 s62, s56               ; W slot
    s_add_u32 s55, s55, {K1_XS*K1_NX}
    s_add_u32 s56, s56, {K1_SLOT*K1_NSLOT}
    """)
    if PF3:
        TE = int(cfg.get("te", 2))
        OFFL = int(cfg.get("offl", 0))
        XT = int(cfg.get("pfx", 1))
        BW = TE // 2; LB = BW.bit_length() - 1
        assert cfg.get("hmap", "f") == "f"
        A(f"""
        s_and_b32 s51, s42, 7            ; head within the XCD
        s_and_b32 s52, s41, 3            ; token block within the XCD
        s_and_b32 s63, s42, 1
        s_lshl_b32 s63, s63, 2
        s_add_u32 s63, s63, s52          ; share of the pair's weight lines
        s_lshl_b32 s63, s63, 2           ; first row
        s_and_b32 s64, s50, 1
        s_lshl_b32 s64, s64, {5 + LB}    ; first row of this wave's group of blocks
        s_add_u32 s63, s63, s64
        v_bfe_u32 v27, v0, 2, {LB})
        v_lshlrev_b32 v30, 5, v27        ; 32 * block
        v_and_b32 v26, 3, v0
        v_add3_u32 v26, v26, v30, s63    ; row
        v_mul_u32_u24 v26, 6144, v26
        v_lshrrev_b32 v27, {2 + LB}, v0  ; segment
        v_lshl_add_u32 v26, v27, 11, v26
        s_lshr_b32 s63, s42, 1
        s_lshl_b32 s63, s63, 7
        v_add_u32 v26, s63, v26          ; + column of the pair
        v_mov_b32 v29, 0x7ffffff0
        v_cmp_gt_u32 vcc, 3, v27
        """.replace("v_bfe_u32 v27, v0, 2, 0)", "v_mov_b32 v27, 0").replace(")\n", "\n"))
        if OFFL:
            A(f"""
            s_cmp_lt_u32 s51, 6
            s_cselect_b64 vcc, vcc, 0
            v_cndmask_b32 v26, v29, v26, vcc
            s_lshl_b32 s63, s51, 2
            s_add_u32 s63, s63, s52
            s_lshl_b32 s63, s63, 2
            v_and_b32 v28, 3, v0
            v_add_u32 v31, s63, v28
            v_and_b32 v28, 31, v31
            v_add3_u32 v28, v28, v30, s64
            v_mul_u32_u24 v28, 6144, v28
            v_lshrrev_b32 v31, 5, v31
            v_lshl_add_u32 v28, v31, 11, v28
            s_lshr_b32 s63, s42, 1
            s_or_b32 s63, s63, 3
            s_lshl_b32 s63, s63, 7
            v_add_u32 v28, s63, v28
            v_cmp_eq_u32 vcc, 3, v27
            s_cmp_lt_u32 s51, 6
            s_cselect_b64 vcc, vcc, 0
            v_cndmask_b32 v26, v26, v28, vcc
            """)
        else:
            A("s_nop 1\nv_cndmask_b32 v26, v29, v26, vcc")
        if OFFL == 2:
            A(f"""
            s_mul_i32 s63, s51, 43
            v_add_u32 v27, s63, v0
            v_cmp_gt_u32 vcc, 43, v0
            s_movk_i32 s63, 0x100
            v_cmp_gt_u32 s[64:65], s63, v27
            s_and_b64 vcc, vcc, s[64:65]
            s_cmp_lt_u32 s51, 6
            s_cselect_b64 vcc, vcc, 0
            """)
        else:
            A(f"""
            s_lshl_b32 s63, s51, 5
            v_add_u32 v27, s63, v0
            v_cmp_gt_u32 vcc, 32, v0
            """)
        A(f"""
        s_lshl_b32 s63, s41, 8
        v_add_u32 v27, s63, v27          ; x row
        v_lshlrev_b32 v27, 11, v27
        v_cndmask_b32 v27, v29, v27, vcc
        s_lshr_b32 s63, s58, 6
        s_add_u32 s63, s63, {TL}
        s_and_b32 s63, s63, 31
        s_mul_i32 s64, s63, {32*6144}
        s_lshr_b32 s63, s63, 1
        s_add_u32 s63, s63, s50
        s_and_b32 s63, s63, 15
        s_lshl_b32 s65, s63, 7           ; x offset
        s_cmp_lt_u32 s50, {BW}
        s_cselect_b32 s67, {2048*2048 if XT else 0}, 0
        s_cmp_lt_u32 s50, 2
        s_cselect_b32 s92, s6, s8
        s_cselect_b32 s93, s7, s9
        s_mov_b32 s94, 0
        s_mov_b32 s95, 0x00020000
        s_mov_b32 s88, s4
        s_mov_b32 s89, s5
        s_mov_b32 s90, 0
        s_mov_b32 s91, 0x00020000
        """)
    if PF4:
        touch_addr("s50", 26, 27, 28, 29, True, "s66")
        A(f"""
        s_mov_b32 s67, s94
        s_cmp_ge_u32 s50, 2
        s_mov_b32 s64, {TL*32*6144}
        s_cselect_b32 s64, {TL*64}, s64
        s_mov_b32 s65, {64*6144}
        s_cselect_b32 s65, 128, s65
        """)
    rstamp(42)
    if cfg.get("lprio"): A(f"s_setprio {cfg.get('lprio')[1]}")
    A("K1_LLOOP:")
    XV = [4, 5, 6, 7, 12, 13, 14, 15]
    def ld_x(i0=0, i1=8):
        for i in range(i0, i1):
            A(f"s_add_u32 m0, s61, {i*1024}")
            A("s_nop 0")
            A(f"buffer_load_dwordx4 v{XV[i]}, s[16:19], s58 offen lds")
        if i1 == 8: A(f"""
        s_add_u32 s58, s58, 128
        s_and_b32 s58, s58, 2047
        s_add_u32 s61, s61, {K1_XS}
        s_cmp_eq_u32 s61, s55
        s_cselect_b32 s47, {K1_XS*K1_NX}, 0
        s_sub_u32 s61, s61, s47
        """)
    def ld_w():
        for sg in range(3):
            A(f"s_add_u32 m0, s62, {sg*4096}")
            A("s_nop 0")
            A(f"buffer_load_dwordx4 v{8+sg}, s[{20+4*sg}:{23+4*sg}], s59 offen lds")
        A(f"""
        s_add_u32 s59, s59, {32*6144}
        s_cmp_eq_u32 s59, {1024*6144}
        s_cselect_b32 s59, 0, s59
        s_add_u32 s62, s62, {K1_SLOT}
        s_cmp_eq_u32 s62, s56
        s_cselect_b32 s47, {K1_SLOT*K1_NSLOT}, 0
        s_sub_u32 s62, s62, s47
        """)
    E8 = cfg.get("e8")
    def lsync(n=14):
        if cfg.get("prof") == "3":
            A("s_memtime s[96:97]")
            A(f"s_waitcnt vmcnt({n})")
            A("s_memtime s[98:99]")
            A("s_barrier")
            A("s_memtime s[90:91]")
            A("s_waitcnt lgkmcnt(0)")
            A("s_sub_u32 s96, s98, s96")
            A("s_add_u32 s100, s100, s96")
            A("s_sub_u32 s90, s90, s98")
            A("s_add_u32 s101, s101, s90")
        else:
            A(f"s_waitcnt vmcnt({n})")
            A("s_barrier")
    if cfg.get("prof") == "3":
        A("s_cmp_lg_u32 s60, 0")
        A("s_cbranch_scc1 K1_LP3")
        A("s_mov_b32 s100, 0")
        A("s_mov_b32 s101, 0")
        A.label("K1_LP3")
    BAL = int(cfg.get("bal", 0))
    NT = 2 if PF3 else 1 if PF4 else 0
    if BAL:
        ld_w(); ld_x(0, 8 - BAL)
    else:
        ld_x(); ld_w()
    A("""
    s_cmp_lt_u32 s60, 4
    s_cbranch_scc1 K1_LS1
    """)
    lsync(14 - BAL + NT)
    A("K1_LS1:")
    if BAL: ld_x(8 - BAL, 8)
    ld_w()
    if PF4:
        A(f"""
        s_cmp_le_u32 s60, {30 - TL}
        s_cselect_b32 s94, s67, 0
        buffer_load_dword v31, v26, s[92:95], s64 offen
        s_add_u32 s64, s64, s65
        """)
    if PF3:
        A(f"""
        s_and_b32 s63, s60, {TE - 1}
        s_cmp_le_u32 s60, {32 - TL - TE}
        s_cselect_b32 s63, s63, 1
        s_cmp_eq_u32 s63, 0
        s_cselect_b32 s94, {1024*6144}, 0
        s_cselect_b32 s90, s67, 0
        s_cselect_b32 s63, {TE*32*6144}, 0
        s_cselect_b32 s66, {TE*64}, 0
        buffer_load_dword v31, v26, s[92:95], s64 offen
        buffer_load_dword v31, v27, s[88:91], s65 offen
        s_add_u32 s64, s64, s63
        s_cmp_eq_u32 s64, {1024*6144}
        s_cselect_b32 s64, 0, s64
        s_add_u32 s65, s65, s66
        s_and_b32 s65, s65, 2047
        """)
    A("""
    s_cmp_lt_u32 s60, 2
    s_cbranch_scc1 K1_LS2
    """)
    if cfg.get("prof") == "4":
        A("s_cmp_lg_u32 s60, 2"); A("s_cbranch_scc1 K1_P4A"); rstamp(43); A(f"s_waitcnt vmcnt({14 + 2*NT})"); rstamp(44); A("K1_P4A:")
    lsync(14 + 2*NT)
    A("K1_LS2:")
    GW, GX, GA = (160, 168, 200) if E8 else (32, 64, 40)
    G1 = E8 and cfg.get("g1", "1") == "1"
    NG = 4 if G1 else 2
    def gate_loads():
        srd(A, 36, 12, 2048)
        A(f"""
        s_lshl_b32 s47, s41, 8
        s_lshl_b32 s51, s42, 3
        s_add_u32 s47, s47, s51
        s_lshl_b32 s51, s50, 1
        {"s_and_b32 s51, s51, 4" if G1 else ""}
        s_add_u32 s63, s47, s51          ; t0 = r*256 + h*8 + 2w  /  + 4th
        s_lshl_b32 s51, s63, 11
        v_lshlrev_b32 v1, 5, v0
        buffer_load_dwordx4 v[{GW}:{GW+3}], v1, s[36:39], 0 offen
        buffer_load_dwordx4 v[{GW+4}:{GW+7}], v1, s[36:39], 0 offen offset:16
        """)
        for j in range(NG):
            A(f"buffer_load_dwordx4 v[{GX+8*j}:{GX+8*j+3}], v1, s[16:19], s51 offen")
            A(f"buffer_load_dwordx4 v[{GX+8*j+4}:{GX+8*j+7}], v1, s[16:19], s51 offen offset:16")
            if j < NG - 1: A("s_add_u32 s51, s51, 2048")
    def dbg_srd(r=36):
        A(f"""
        s_mov_b32 s{r}, s86
        s_mov_b32 s{r+1}, s87
        s_mov_b32 s{r+2}, 256
        s_mov_b32 s{r+3}, 0x00020000
        v_mov_b32 v46, 0
        """)
    A(f"""
    s_add_u32 s60, s60, 2
    s_cmp_lt_u32 s60, 32
    s_cbranch_scc1 K1_LLOOP
    """)
    def ltail(gate):
        GN = (3 + 2*NG if gate else 1) if E8 else 0
        if E8:
            if gate:
                gate_loads()
                A("s_mov_b32 s84, s63")
            dbg_srd(92)
            poll_issue(A, 47, 46, 92, "0")
        A(f"""
        s_waitcnt vmcnt({3 + NT + GN})
        s_barrier
        """)
        if E8:
            setup_p2(A)
            A(f"s_add_u32 s74, s74, {2*65536}")
        A(f"""
        s_waitcnt vmcnt({GN})
        s_barrier
        """)
    if G1:
        A("s_bitcmp1_b32 s50, 0")
        A("s_cbranch_scc1 K1_LT1")
        ltail(False)
        A("s_branch K1_LT2")
        A("K1_LT1:")
        ltail(True)
        A("K1_LT2:")
    else:
        ltail(True)
    if cfg.get("prof") == "3":
        A(f"v_writelane_b32 v{PV}, s100, 0")
        A(f"v_writelane_b32 v{PV}, s101, 1")
    if cfg.get("lprio"): A("s_setprio 0")
    if E8:
        setup_p3(A)
        A("s_barrier")
        A(f"""
        s_and_b32 s51, s50, 1
        s_lshr_b32 s50, s50, 1           ; th
        """)
        feat_setup(TBUF1)
        A(f"""
        v_lshlrev_b32 v1, 4, v0          ; lane*16
        s_lshl_b32 s47, s50, 13
        s_add_u32 s47, s47, {HB0}
        s_lshl_b32 s38, s50, 12
        s_add_u32 s38, s38, {HB1}
        s_cmp_eq_u32 s51, 0
        s_cselect_b32 s47, s47, s38
        v_add_u32 v45, s47, v1
        """)
        for j in range(NG): A(f"v_mov_b32 v{GA+j}, 0")
        A("s_barrier")
        vstamp(A, cfg, 2, PV)
        A("s_waitcnt vmcnt(0)")
        poll_check(A, 47, 46, 92, "0", "PG", expect="0x100")
        A("s_barrier")
        EPR = cfg.get("eprio", "00")
        if EPR != "00":
            A(f"s_setprio {EPR[1]}")
            A("s_cmp_lg_u32 s51, 0")
            A("s_cbranch_scc1 K1_LP1")
            A(f"s_setprio {EPR[0]}")
            A("K1_LP1:")
        for k in range(2):
            A(f"ds_read_b128 v[{Q+8*k}:{Q+8*k+3}], v45 offset:{k*2048}")
            A(f"ds_read_b128 v[{Q+8*k+4}:{Q+8*k+7}], v45 offset:{k*2048+1024}")
        A("s_cmp_lg_u32 s51, 0")
        A("s_cbranch_scc1 K1_LNV")
        for k in range(2):
            A(f"ds_read_b128 v[{V+8*k}:{V+8*k+3}], v45 offset:{4096+k*2048}")
            A(f"ds_read_b128 v[{V+8*k+4}:{V+8*k+7}], v45 offset:{4096+k*2048+1024}")
        if G1: A("s_branch K1_E2L")
        A("K1_LNV:")
        for k in range(8):
            for j in range(NG):
                A(f"v_dot2c_f32_bf16 v{GA+j}, v{GX+8*j+k}, v{GW+k}")
            if NG == 2: A("s_nop 1")
        A.nop(3)
        for rot in (8, 4, 2, 1):
            for j in range(NG): A(f"v_add_f32_dpp v{GA+j}, v{GA+j}, v{GA+j} row_ror:{rot} row_mask:0xf bank_mask:0xf")
            if NG == 2: A("s_nop 1")
        if G1:
            A(f"""
            v_permlane16_swap_b32 v{GA}, v{GA+1}
            s_nop 0
            v_permlane16_swap_b32 v{GA+2}, v{GA+3}
            s_nop 1
            v_add_f32 v{GA}, v{GA}, v{GA+1}          ; rows : a01, b01, a23, b23
            v_add_f32 v{GA+1}, v{GA+2}, v{GA+3}      ; rows : c01, d01, c23, d23
            s_nop 1
            v_permlane32_swap_b32 v{GA}, v{GA+1}
            s_nop 1
            v_add_f32 v{GA}, v{GA}, v{GA+1}
            """)
        else:
            A(f"""
            v_permlane16_swap_b32 v{GA}, v{GA+1}
            s_nop 1
            v_add_f32 v{GA}, v{GA}, v{GA+1}          ; rows : a01, b01, a23, b23
            v_mov_b32 v{GA+1}, v{GA}
            s_nop 1
            v_permlane32_swap_b32 v{GA}, v{GA+1}
            s_nop 1
            v_add_f32 v{GA}, v{GA}, v{GA+1}
            """)
        A(f"""
        v_mul_f32 v{GA}, {fhex(-LOG2E)}, v{GA}
        v_exp_f32 v{GA}, v{GA}
        v_lshrrev_b32 v{GA+2}, 4, v0
        v_lshlrev_b32 v{GA+2}, 2, v{GA+2}
        v_add_f32 v{GA}, 1.0, v{GA}
        v_rcp_f32 v{GA}, v{GA}
        s_lshl_b32 s47, s84, 2
        s_add_u32 s47, s47, {WS_G}
        s_mov_b32 exec_lo, 0x10001
        s_mov_b32 exec_hi, {"0x10001" if G1 else "0"}
        buffer_store_dword v{GA}, v{GA+2}, s[32:35], s47 offen sc1
        s_mov_b64 exec, -1
        """)
        A("s_branch K1_E2L")
    else:
        gate_loads()
        A("""
        s_barrier
        s_barrier
        """)
        vstamp(A, cfg, 2, PV)
        for j in range(2): A(f"v_mov_b32 v{40+j}, 0")
        A("s_waitcnt vmcnt(0)")
        for k in range(8):
            for j in range(2):
                A(f"v_dot2c_f32_bf16 v{40+j}, v{GX+8*j+k}, v{32+k}")
            A("s_nop 1")
        A("v_lshlrev_b32 v3, 2, v0")
        A.nop(3)
        for mask in (1, 2, 4, 8, 16, 32):
            A(f"v_xor_b32 v4, {mask*4}, v3")
            for j in range(2): A(f"ds_bpermute_b32 v{5+j}, v4, v{40+j}")
            A("s_waitcnt lgkmcnt(0)")
            for j in range(2): A(f"v_add_f32 v{40+j}, v{40+j}, v{5+j}")
        A(f"v_cmp_eq_u32 vcc, 1, v0")
        A("s_nop 1")
        A(f"v_cndmask_b32 v40, v40, v41, vcc")
        A(f"""
        v_mul_f32 v40, {fhex(-LOG2E)}, v40
        v_exp_f32 v40, v40
        s_nop 0
        v_add_f32 v40, 1.0, v40
        v_rcp_f32 v40, v40
        s_lshl_b32 s47, s63, 2
        s_add_u32 s47, s47, {WS_G}
        s_mov_b64 exec, 3
        buffer_store_dword v40, v3, s[32:35], s47 offen sc1
        s_mov_b64 exec, -1
        """)
        setup_p2(A)
        setup_p3(A)
        A(f"""
        s_mov_b32 s85, s36
        v_and_b32 v35, 15, v0
        v_lshlrev_b32 v35, 2, v35
        """)
        dbg_srd()
        poll_issue(A, 47, 46, 36, "0")
        A("s_waitcnt vmcnt(0)")
        poll_check(A, 47, 46, 36, "0", "PG", expect="0x100")
        poll_issue(A, 47, 35, 32, "s78")
        A("s_waitcnt vmcnt(0)")
        poll_check(A, 47, 35, 32, "s78", "P1")
        vstamp(A, cfg, 3, PV)
        A(f"""
        v_lshlrev_b32 v3, 4, v0
        s_lshl_b32 s47, s50, 12          ; w*4096
        s_add_u32 m0, s47, {2*16384}
        s_lshl_b32 s51, s41, 1
        s_add_u32 s51, s51, 2
        s_and_b32 s51, s51, 15
        s_lshl_b32 s51, s51, 14
        s_add_u32 s51, s51, s47
        s_add_u32 s51, s51, s70
        """)
        for j in range(4):
            A(f"buffer_load_dwordx4 v3, s[32:35], s51 offen offset:{j*1024} sc1 lds")
        A("s_mov_b32 s36, s85")
    A.label("KF_JOIN")
    if cfg.get("e8") and cfg.get("eprio", "00") != "00": A("s_setprio 0")
    Q, K0, K1, V0, V1, SEL, NEGM, SA, SB, O, L, P = 8, 16, 20, 24, 28, 40, 48, 64, 80, 96, 112, 120
    PR = 33
    RD = 192
    if cfg.get("prof"): A(f"v_mov_b32 v{PR}, v{PV}")
    vstamp(A, cfg, 4, PR)
    A(f"""
    v_lshlrev_b32 v3, 4, v0          ; lane*16
    v_bfe_u32 v4, v0, 2, 1
    v_bfe_u32 v5, v0, 4, 1
    v_cmp_eq_u32 vcc, v4, v5
    v_mov_b32 v5, 0x3f803f80
    v_mov_b32 v4, 0
    v_cndmask_b32 v{SEL}, v4, v5, vcc
    v_cndmask_b32 v{SEL+1}, v4, v5, vcc
    v_cndmask_b32 v{SEL+2}, v4, v5, vcc
    v_cndmask_b32 v{SEL+3}, v4, v5, vcc
    s_lshl_b32 s47, s40, 11
    s_add_u32 s47, s47, {QST}
    v_add_u32 v6, s47, v3
    s_lshl_b32 s47, s40, 10
    s_add_u32 s47, s47, {RED0}
    v_add_u32 v7, s47, v3
    v_mov_b32 v1, v3                 ; cur
    v_add_u32 v2, 16384, v3          ; next
    """)
    for i in range(16): A(f"v_mov_b32 v{O+i}, 0")
    for i in range(4):
        A(f"v_mov_b32 v{L+i}, 0"); A(f"v_mov_b32 v{V1+i}, 0"); A(f"v_mov_b32 v{P+4+i}, 0")
    for i in (35, 36, 37, 38, 39, 45, 46): A(f"v_mov_b32 v{i}, 0")
    if E8:
        A("v_and_b32 v46, 15, v0")
        A("v_lshlrev_b32 v46, 2, v46")
        poll_issue(A, 47, 46, 32, "s78")
    A(f"""
    s_mov_b32 s60, 0
    s_mov_b32 s61, 1
    s_waitcnt lgkmcnt(0)
    s_barrier
    """)
    vstamp(A, cfg, 5, PR)
    NRD = 4 if E8 else 2
    A(f"""
    ds_read_b128 v[{Q}:{Q+3}], v6
    ds_read_b128 v[{NEGM}:{NEGM+3}], v3
    ds_read_b128 v[{Q+4}:{Q+7}], v6 offset:1024
    ds_read_b128 v[{NEGM+4}:{NEGM+7}], v3 offset:1024
    ds_read_b128 v[{K0}:{K0+3}], v3 offset:4096
    ds_read_b128 v[{K1}:{K1+3}], v3 offset:{4096+1024}
    ds_read_b128 v[{V0}:{V0+3}], v3 offset:2048
    ds_read_b128 v[{RD}:{RD+3}], v7
    ds_read_b128 v[{RD+4}:{RD+7}], v7 offset:8192
    """)
    if E8:
        A(f"ds_read_b128 v[{RD+12}:{RD+15}], v7 offset:{HB0 - RED0}")
        A(f"ds_read_b128 v[{RD+16}:{RD+19}], v7 offset:{HB0 - RED0 + 8192}")
    A(f"""
    s_waitcnt lgkmcnt({5 + NRD})
    v_mfma_f32_32x32x16_bf16 v[{SA}:{SA+15}], v[{NEGM}:{NEGM+3}], v[{Q}:{Q+3}], 0
    s_waitcnt lgkmcnt({3 + NRD})
    v_mfma_f32_32x32x16_bf16 v[{SA}:{SA+15}], v[{NEGM+4}:{NEGM+7}], v[{Q+4}:{Q+7}], v[{SA}:{SA+15}]
    s_waitcnt lgkmcnt({1 + NRD})
    v_mfma_f32_32x32x16_bf16 v[{SB}:{SB+15}], v[{K0}:{K0+3}], v[{Q}:{Q+3}], 0
    v_mfma_f32_32x32x16_bf16 v[{SB}:{SB+15}], v[{K1}:{K1+3}], v[{Q+4}:{Q+7}], v[{SB}:{SB+15}]
    s_waitcnt lgkmcnt(0)
    v_pk_add_f32 v[{RD}:{RD+1}], v[{RD}:{RD+1}], v[{RD+4}:{RD+5}]
    v_pk_add_f32 v[{RD+2}:{RD+3}], v[{RD+2}:{RD+3}], v[{RD+6}:{RD+7}]
    """)
    if E8:
        A(f"""
        v_pk_add_f32 v[{RD+12}:{RD+13}], v[{RD+12}:{RD+13}], v[{RD+16}:{RD+17}]
        v_pk_add_f32 v[{RD+14}:{RD+15}], v[{RD+14}:{RD+15}], v[{RD+18}:{RD+19}]
        v_pk_add_f32 v[{RD}:{RD+1}], v[{RD}:{RD+1}], v[{RD+12}:{RD+13}]
        v_pk_add_f32 v[{RD+2}:{RD+3}], v[{RD+2}:{RD+3}], v[{RD+14}:{RD+15}]
        s_cmp_lg_u32 s40, 7
        s_cbranch_scc1 KJ_NOZ
        v_lshlrev_b32 v4, 2, v0
        v_add_u32 v5, {ZRED}, v4
        ds_read_b32 v{RD+8}, v5
        ds_read_b32 v{RD+9}, v5 offset:256
        ds_read_b32 v{RD+10}, v5 offset:512
        ds_read_b32 v{RD+11}, v5 offset:768
        s_waitcnt lgkmcnt(0)
        v_add_f32 v{RD+8}, v{RD+8}, v{RD+9}
        v_add_f32 v{RD+10}, v{RD+10}, v{RD+11}
        v_add_f32 v{RD+8}, v{RD+8}, v{RD+10}
        KJ_NOZ:
        """)
    else:
        A(f"""
        s_cmp_lg_u32 s40, 7
        buffer_store_dwordx4 v[{RD}:{RD+3}], v3, s[32:35], s79 offen sc1
        s_cbranch_scc1 KJ_NOZ
        v_lshlrev_b32 v4, 2, v0
        v_add_u32 v5, {ZRED}, v4
        ds_read_b32 v{RD+8}, v5
        ds_read_b32 v{RD+9}, v5 offset:256
        s_waitcnt lgkmcnt(0)
        v_add_f32 v{RD+8}, v{RD+8}, v{RD+9}
        buffer_store_dword v{RD+8}, v4, s[32:35], s89 offen sc1
        KJ_NOZ:
        """)
    A.nop(6)
    A(f"v_max3_f32 v4, v{SA}, v{SA+1}, v{SA+2}")
    A(f"v_max3_f32 v5, v{SA+3}, v{SA+4}, v{SA+5}")
    for k in range(6, 14, 4):
        A(f"v_max3_f32 v4, v4, v{SA+k}, v{SA+k+1}")
        A(f"v_max3_f32 v5, v5, v{SA+k+2}, v{SA+k+3}")
    A(f"v_max3_f32 v4, v4, v{SA+14}, v{SA+15}")
    for k in range(0, 16, 4):
        A(f"v_max3_f32 v4, v4, v{SB+k}, v{SB+k+1}")
        A(f"v_max3_f32 v5, v5, v{SB+k+2}, v{SB+k+3}")
    A("v_max_f32 v4, v4, v5")
    A("v_mov_b32 v5, v4")
    A.nop(2)
    A("v_permlane32_swap_b32 v4, v5")
    A("s_nop 0")
    A("v_max_f32 v4, v4, v5")
    A(f"v_add_f32 v4, {fhex(BIAS)}, v4")
    for i in range(16):
        A(f"v_sub_f32 v{NEGM+i}, 0, v4")
    for k in range(8):
        A(f"v_pk_add_f32 v[{SA+2*k}:{SA+2*k+1}], v[{SA+2*k}:{SA+2*k+1}], v[{NEGM}:{NEGM+1}]")
    if E8:
        A("s_waitcnt vmcnt(0)")
        poll_check(A, 47, 46, 32, "s78", "P1")
        A(f"""
        buffer_store_dwordx4 v[{RD}:{RD+3}], v3, s[32:35], s79 offen sc1
        s_cmp_lg_u32 s40, 7
        s_cbranch_scc1 KJ_NOZ2
        v_lshlrev_b32 v4, 2, v0
        buffer_store_dword v{RD+8}, v4, s[32:35], s89 offen sc1
        KJ_NOZ2:
        s_lshl_b32 s47, s40, 11
        s_add_u32 m0, s47, {2*16384}
        s_lshl_b32 s38, s41, 1
        s_add_u32 s38, s38, 2
        s_and_b32 s38, s38, 15
        s_lshl_b32 s38, s38, 14
        s_add_u32 s38, s38, s47
        s_add_u32 s81, s38, s70
        buffer_load_dwordx4 v3, s[32:35], s81 offen sc1 lds
        buffer_load_dwordx4 v3, s[32:35], s81 offen offset:1024 sc1 lds
        """)
    vstamp(A, cfg, 6, PR)
    if cfg.get("prof") == "2":
        A("s_mov_b32 s100, 15"); A(f"v_mov_b32 v{PR}, 0"); bstamp(A, cfg, 2); A("s_mov_b32 s100, 0")
    def dma_ops():
        a = ["s_mov_b32 m0, s72", "s_add_u32 s81, s70, s71", "s_add_u32 s72, s72, 16384",
             "buffer_load_dwordx4 v3, s[32:35], s81 offen sc1 lds"]
        b = ["buffer_load_dwordx4 v3, s[32:35], s81 offen offset:1024 sc1 lds",
             f"s_and_b32 s72, s72, {RING-1}", "s_add_u32 s71, s71, 16384", "s_and_b32 s71, s71, 0x3ffff"]
        return a, b
    def dma_chunk():
        a, b = dma_ops()
        for l in a + b: A(l)
    def tile(i, Sa, Sb, sideA=(), sideB=(), end=()):
        e = lambda k: f"v_exp_f32 v{Sa+k}, v{Sa+k}"
        c = lambda k: f"v_cvt_pk_bf16_f32 v{P+k}, v{Sa+2*k}, v{Sa+2*k+1}"
        QK0 = f"v_mfma_f32_32x32x16_bf16 v[{Sb}:{Sb+15}], v[{K0}:{K0+3}], v[{Q}:{Q+3}], v[{NEGM}:{NEGM+15}]"
        QK1 = f"v_mfma_f32_32x32x16_bf16 v[{Sb}:{Sb+15}], v[{K1}:{K1+3}], v[{Q+4}:{Q+7}], v[{Sb}:{Sb+15}]"
        PV0 = f"v_mfma_f32_32x32x16_bf16 v[{O}:{O+15}], v[{V0}:{V0+3}], v[{P}:{P+3}], v[{O}:{O+15}]"
        PV1 = f"v_mfma_f32_32x32x16_bf16 v[{O}:{O+15}], v[{V1}:{V1+3}], v[{P+4}:{P+7}], v[{O}:{O+15}]"
        L0 = f"v_mfma_f32_16x16x32_bf16 v[{L}:{L+3}], v[{SEL}:{SEL+3}], v[{P}:{P+3}], v[{L}:{L+3}]"
        L1 = f"v_mfma_f32_16x16x32_bf16 v[{L}:{L+3}], v[{SEL}:{SEL+3}], v[{P+4}:{P+7}], v[{L}:{L+3}]"
        W = "s_waitcnt lgkmcnt(3)"
        def addr(tt, fr):
            return (f"v1 offset:{tt*4096+fr*1024}" if tt < 4 else f"v2 offset:{(tt-4)*4096+fr*1024}")
        rK0 = f"ds_read_b128 v[{K0}:{K0+3}], {addr(i+2, 0)}"; rK1 = f"ds_read_b128 v[{K1}:{K1+3}], {addr(i+2, 1)}"
        rV0 = f"ds_read_b128 v[{V0}:{V0+3}], {addr(i+1, 2)}"; rV1 = f"ds_read_b128 v[{V1}:{V1+3}], {addr(i, 3)}"
        seq = [e(0), e(1), W, PV1, rV1, *sideA, e(2), e(3), e(4), e(5), W, QK0, rK0, e(6), e(7), c(0), c(1), L1, c(2), c(3), e(8), W, QK1, rK1,
               *sideB, e(9), e(10), e(11), W, PV0, rV0, e(12), e(13), e(14), L0, e(15), c(4), c(5), c(6), c(7), *end]
        for x in seq:
            if callable(x): x()
            else: A(x)
    PRIO = [int(c) for c in cfg.get("prio", "3210")]
    def period(sides=None, dma=True):
        if dma: dma_chunk()
        for i in range(4):
            sa, sb, en = (sides or {}).get(i, ((), (), ()))
            if cfg.get("prio"): A(f"s_setprio {PRIO[i]}")
            tile(i, SA if i % 2 == 0 else SB, SB if i % 2 == 0 else SA, sa, sb, en)
        A(f"""
        v_mov_b32 v1, v2
        v_add_u32 v2, 16384, v2
        v_and_b32 v2, {RING-1}, v2
        """)
    A.label("K2_LOOP")
    period()
    if cfg.get("prof") == "2":
        pbar(A, cfg, "s_waitcnt vmcnt(2)")
        A("""
        s_add_u32 s60, s60, 1
        s_cmp_lg_u32 s60, s61
        s_cbranch_scc1 K2_LOOP
        """)
    else:
        A(f"""
        s_add_u32 s60, s60, 1
        s_cmp_lg_u32 s60, s61
        s_waitcnt vmcnt(2)
        s_barrier
        s_cbranch_scc1 K2_LOOP
        """)
    A(f"""
    s_cmp_eq_u32 s60, 1
    s_cbranch_scc1 KD_1
    s_cmp_eq_u32 s60, 3
    s_cbranch_scc1 KD_3
    s_cmp_eq_u32 s60, 4
    s_cbranch_scc1 KD_4
    s_branch KD_7
    KD_1:
    s_mov_b32 s61, 3
    """)
    set_flag(A, "s68")
    A(f"""
    s_branch K2_LOOP
    KD_3:
    v_lshlrev_b32 v46, 2, v0
    s_mov_b32 s61, 4
    """)
    poll_issue(A, 47, 46, 32, "s77")
    A("s_branch K2_LOOP")
    A.label("KD_4")
    vstamp(A, cfg, 7, PR)
    poll_check(A, 47, 46, 32, "s77", "PK")
    KVP = 192; ZP = 224
    A(f"""
    s_cmp_eq_u32 s40, 4
    s_cselect_b32 s84, 1, 0
    """)
    def kvload(rr):
        def f():
            A(f"buffer_load_dwordx4 v[{KVP+4*rr}:{KVP+4*rr+3}], v3, s[32:35], s75 offen sc1")
            A("s_add_u32 s75, s75, 8192")
        return f
    def zload(rr):
        def f():
            j = A.uid("KZ")
            A("s_cmp_eq_u32 s84, 0"); A(f"s_cbranch_scc1 {j}")
            A(f"buffer_load_dword v{ZP+rr}, v46, s[32:35], s76 offen offset:{256*rr} sc1")
            A(f"buffer_load_dword v{ZP+rr+1}, v46, s[32:35], s76 offen offset:{256*rr+256} sc1")
            A.label(j)
        return f
    period({i: ((kvload(2*i),), (kvload(2*i+1),), (zload(2*i),)) for i in range(4)})
    pbar(A, cfg, "s_waitcnt vmcnt(10)")
    def kvsum():
        A("s_waitcnt vmcnt(2)")
        A(f"""
        s_lshr_b32 s47, s40, 1
        s_lshl_b32 s47, s47, 10
        s_and_b32 s38, s40, 1
        s_lshl_b32 s38, s38, 3
        s_add_u32 s47, s47, s38
        s_add_u32 s47, s47, {KVT_L}
        v_add_u32 v4, s47, v3
        """)
        b = KVP
        for rr in range(1, 8):
            A(f"v_pk_add_f32 v[{b}:{b+1}], v[{b}:{b+1}], v[{b+4*rr}:{b+4*rr+1}]")
            A(f"v_pk_add_f32 v[{b+2}:{b+3}], v[{b+2}:{b+3}], v[{b+4*rr+2}:{b+4*rr+3}]")
        A(f"v_cvt_pk_bf16_f32 v{b}, v{b}, v{b+1}")
        A(f"v_cvt_pk_bf16_f32 v{b+1}, v{b+2}, v{b+3}")
        A(f"ds_write_b64 v4, v[{b}:{b+1}]")
        j = A.uid("KZS")
        A("s_cmp_eq_u32 s84, 0"); A(f"s_cbranch_scc1 {j}")
        for rr in range(1, 8):
            A(f"v_add_f32 v{ZP}, v{ZP}, v{ZP+rr}")
        A(f"""
        v_lshlrev_b32 v5, 1, v0
        v_add_u32 v5, {Z_L}, v5
        v_cvt_pk_bf16_f32 v{ZP}, v{ZP}, v{ZP}
        ds_write_b16 v5, v{ZP}
        """)
        A.label(j)
    period({1: ((), (), (kvsum,))})
    pbar(A, cfg, None)
    A(f"""
    s_mov_b32 s60, 6
    s_mov_b32 s61, 7
    s_and_b32 s47, s40, {1 if E8 else 5}
    s_cmp_lg_u32 s47, 1
    s_cbranch_scc1 K2_LOOP
    """)
    KVT, ZR, NUM, DEN, OA = 192, 208, 224, 240, 244
    A(f"""
    v_add_u32 v4, {KVT_L}, v3
    v_lshrrev_b32 v5, 5, v0
    v_lshlrev_b32 v5, 3, v5
    v_add_u32 v5, {Z_L}, v5          ; Z + hh*8
    """)
    for s in range(4):
        A(f"ds_read_b128 v[{KVT+4*s}:{KVT+4*s+3}], v4 offset:{s*1024}")
        A(f"ds_read_b64 v[{ZR+4*s}:{ZR+4*s+1}], v5 offset:{32*s}")
        A(f"ds_read_b64 v[{ZR+4*s+2}:{ZR+4*s+3}], v5 offset:{32*s+16}")
    def zmask():
        A("v_bfe_u32 v4, v0, 2, 1")
        A("v_bfe_u32 v5, v0, 4, 1")
        A("v_cmp_eq_u32 vcc, v4, v5")
        A("v_mov_b32 v4, 0")
        A("s_nop 0")
        for k in range(16): A(f"v_cndmask_b32 v{ZR+k}, v4, v{ZR+k}, vcc")
    def amfma(t):
        def f():
            for s in range(4):
                c = "0" if s == 0 else f"v[{NUM}:{NUM+15}]"
                A(f"v_mfma_f32_32x32x16_bf16 v[{NUM}:{NUM+15}], v[{KVT+4*s}:{KVT+4*s+3}], v[{PHQ+16*t+4*s}:{PHQ+16*t+4*s+3}], {c}")
                c = "0" if s == 0 else f"v[{DEN}:{DEN+3}]"
                A(f"v_mfma_f32_16x16x32_bf16 v[{DEN}:{DEN+3}], v[{ZR+4*s}:{ZR+4*s+3}], v[{PHQ+16*t+4*s}:{PHQ+16*t+4*s+3}], {c}")
        return f
    def afin():
        A(f"v_add_f32 v4, {fhex(1e-6)}, v{DEN}")
        A("v_rcp_f32 v4, v4")
        A("s_nop 0")
        for k in range(8):
            A(f"v_pk_mul_f32 v[{NUM+2*k}:{NUM+2*k+1}], v[{NUM+2*k}:{NUM+2*k+1}], v[4:5] op_sel_hi:[1,0]")
        cvt_tile(A, OA, NUM)
        A(f"buffer_store_dwordx4 v[{OA}:{OA+3}], v3, s[32:35], s74 offen sc1")
        A(f"buffer_store_dwordx4 v[{OA+4}:{OA+7}], v3, s[32:35], s74 offen offset:1024 sc1")
        A("s_add_u32 s74, s74, 65536")
    if E8:
        period({0: ((), (), (zmask, amfma(0))), 1: ((), (), (afin, amfma(1))), 2: ((), (), (afin,))})
        pbar(A, cfg, "s_waitcnt vmcnt(6)")
    else:
        period({0: ((), (), (zmask, amfma(0))), 1: ((), (), (afin, amfma(1))), 2: ((), (), (afin, amfma(2))), 3: ((), (), (afin, amfma(3)))})
        A.nop(12)
        afin()
        pbar(A, cfg, "s_waitcnt vmcnt(10)")
    A.label("KD_7")
    A(f"""
    s_mov_b32 s60, 7
    v_and_b32 v45, 31, v0
    v_lshlrev_b32 v45, 2, v45        ; (l&31)*4
    v_lshlrev_b32 v35, 2, v0         ; lane*4
    v_lshrrev_b32 v4, 3, v0
    v_lshlrev_b32 v5, 11, v4         ; row*2048
    v_and_b32 v7, 7, v0
    v_bfe_u32 v6, v0, 4, 1
    v_lshlrev_b32 v6, 2, v6
    v_xor_b32 v7, v7, v6
    v_lshl_add_u32 v5, v7, 4, v5
    s_lshl_b32 s47, s18, 9
    s_lshl_b32 s38, s19, 4
    s_add_u32 s47, s47, s38
    s_lshl_b32 s47, s47, 11
    s_lshl_b32 s38, s17, 7
    s_add_u32 s47, s47, s38          ; + C*128
    v_add_u32 v36, s47, v5           ; piece 0
    v_add_u32 v37, {16384 - 1024}, v36
    v_lshrrev_b32 v7, 5, v0          ; hh
    v_bfe_u32 v6, v0, 2, 2           ; i>>2
    v_lshl_add_u32 v7, v7, 2, v6
    v_lshlrev_b32 v7, 7, v7
    v_bfe_u32 v6, v0, 4, 1
    v_bfe_u32 v5, v0, 1, 1
    v_lshl_add_u32 v6, v6, 1, v5
    v_bfe_u32 v5, v0, 3, 1
    v_lshlrev_b32 v5, 2, v5
    v_xor_b32 v6, v6, v5
    v_lshl_add_u32 v7, v6, 4, v7
    v_and_b32 v5, 1, v0
    v_lshl_add_u32 v7, v5, 3, v7
    s_lshl_b32 s38, s18, 13
    v_add_u32 v38, s38, v7           ; cb=0
    v_xor_b32 v39, 64, v38           ; cb=1
    s_add_u32 s80, s30, {WSL(0)}
    """)
    def wo_ops(m0src):
        a = [m0src, "s_nop 0", "buffer_load_dwordx4 v36, s[20:23], s29 offen lds"]
        b = ["buffer_load_dwordx4 v37, s[20:23], s29 offen offset:1024 lds", f"s_add_u32 s29, s29, {64*2048}"]
        return a, b
    A.label("K2_LOOPB")
    wa, wb = wo_ops("s_mov_b32 m0, s80")
    wb = wb + ["s_add_u32 s80, s80, 16384"]
    ca, cb_ = dma_ops()
    period({0: (tuple(wa), tuple(wb), ()), 1: (tuple(wa), tuple(wb), ()), 2: (tuple(ca), tuple(cb_), ())}, dma=False)
    if cfg.get("prof") == "2":
        pbar(A, cfg, "s_waitcnt vmcnt(6)")
        A("""
        s_add_u32 s60, s60, 1
        s_cmp_eq_u32 s60, 10
        """)
    else:
        A("""
        s_add_u32 s60, s60, 1
        s_cmp_eq_u32 s60, 10
        s_waitcnt vmcnt(6)
        s_barrier
        """)
    A(f"""
    s_cbranch_scc1 KB_10
    s_cmp_eq_u32 s60, 9
    s_cbranch_scc1 KB_9
    s_and_b32 s47, s40, 5
    s_cmp_lg_u32 s47, 1
    s_cbranch_scc1 K2_LOOPB
    """)
    set_flag(A, "s88")
    A("s_branch K2_LOOPB")
    A.label("KB_9")
    poll_issue(A, 47, 35, 32, "s36")
    A("s_branch K2_LOOPB")
    A.label("KB_10")
    vstamp(A, cfg, 8, PR)
    poll_check(A, 47, 35, 32, "s36", "PA")
    G, OMG = 32, 34
    OF = 128
    vm = VM(A, ["W4", "W4", "W5", "W5", "c12", "c12"])
    vm.now("G", f"buffer_load_dword v{G}, v45, s[32:35], s31 offen sc1")
    nld = [0]
    def oload():
        k = nld[0]; nld[0] += 1
        s, j = divmod(k, 4)
        r = OF + 16*s + 4*j
        def f():
            vm.now("o", f"buffer_load_dwordx4 v[{r}:{r+3}], v3, s[32:35], s28 offen offset:{j*1024} sc1")
            if j == 3: A("s_add_u32 s28, s28, 4096")
        return f
    def lines(tag, ls):
        def f():
            for l in ls:
                if l.startswith("buffer_"): vm.now(tag, l)
                else: A(l)
        return f
    BT = int(cfg.get("btouch", 0))
    def btouch():
        A(f"""
        s_and_b32 s47, s16, 3
        s_lshl_b32 s47, s47, 3
        s_add_u32 s47, s47, s40
        s_lshl_b32 s47, s47, 5
        v_add_u32 v44, s47, v0
        v_lshlrev_b32 v44, 11, v44
        s_lshl_b32 s47, s17, 7
        v_add_u32 v44, s47, v44
        v_mov_b32 v4, 0x7ffffff0
        v_cmp_gt_u32 vcc, 32, v0
        s_mov_b32 s92, s6
        s_mov_b32 s93, s7
        s_mov_b32 s94, {1024*2048}
        s_mov_b32 s95, 0x00020000
        v_cndmask_b32 v44, v4, v44, vcc
        """)
        vm.now("T", "buffer_load_dword v44, v44, s[92:95], 0 offen")
    for n in range(10, 16):
        sides = {}
        if n <= 12:
            a, b = dma_ops()
            sides[0] = ((lines(f"c{n+3}", a),), (lines(f"c{n+3}", b),), (oload(),))
            sides[1] = ((oload(),), (oload(),), ())
            sides[2] = ((oload(),), (oload(),), ())
            sides[3] = ((oload(),), (), ())
        elif n <= 14:
            a, b = wo_ops(f"s_add_u32 m0, s30, {WSL(n - 7)}")
            sides[0] = ((lines("W", a),), (lines("W", b),), (oload(),))
            sides[1] = ((oload(),), (oload(),), ())
            sides[2] = ((oload(),), (), ())
            sides[3] = ((oload(),), (), ())
        else:
            sides[0] = ((oload(),), (oload(),), ())
            sides[1] = ((oload(),), (oload(),), ())
        if n == BT: sides[3] = (sides[3][0], sides[3][1], tuple(sides[3][2]) + (btouch,))
        period(sides, dma=False)
        if n <= 13:
            pbar(A, cfg, lambda: vm.wait(f"c{n+2}"))
        elif cfg.get("prof") == "2":
            bstamp(A, cfg, 0); bstamp(A, cfg, 1); bstamp(A, cfg, 2)
        if n == 12: vstamp(A, cfg, 9, PR)
    assert nld[0] == 32
    A(f"""
    s_mov_b32 s60, 16
    s_waitcnt lgkmcnt(0)
    v_mfma_f32_32x32x16_bf16 v[{O}:{O+15}], v[{V1}:{V1+3}], v[{P+4}:{P+7}], v[{O}:{O+15}]
    v_mfma_f32_16x16x32_bf16 v[{L}:{L+3}], v[{SEL}:{SEL+3}], v[{P+4}:{P+7}], v[{L}:{L+3}]
    """)
    vstamp(A, cfg, 10, PR)
    rst(A, cfg, 0)
    A("v_lshlrev_b32 v45, 3, v0")
    A.nop(12)
    A.label("K2_FIN")
    A(f"v_rcp_f32 v4, v{L}")
    A("s_nop 0")
    for k in range(8):
        A(f"v_pk_mul_f32 v[{O+2*k}:{O+2*k+1}], v[{O+2*k}:{O+2*k+1}], v[4:5] op_sel_hi:[1,0]")
    A("v_mov_b32 v6, 0")
    for k in range(16):
        A(f"v_fma_f32 v6, v{O+k}, 0, v6")
    A(f"""
    v_mov_b32 v7, {fhex(2.0**120)}
    v_cmp_u_f32 vcc, v6, v6
    v_cmp_nlt_f32 s[62:63], v{L}, v7
    s_or_b64 vcc, vcc, s[62:63]
    """)
    if cfg.get("force_fb"):
        A("s_mov_b64 vcc, -1")
    A(f"""
    s_cmp_eq_u32 s60, 16
    s_cselect_b64 vcc, vcc, 0
    s_cbranch_vccnz K2_FB
    """)
    for i in range(8):
        A(f"v_cvt_pk_bf16_f32 v{P+i}, v{O+2*i}, v{O+2*i+1}")
    A(f"buffer_store_dwordx4 v[{P}:{P+3}], v3, s[32:35], s73 offen sc1")
    A(f"buffer_store_dwordx4 v[{P+4}:{P+7}], v3, s[32:35], s73 offen offset:1024 sc1")
    EF = cfg.get("ef")
    if EF:
        A("""
        s_cmp_lt_u32 s40, 4
        s_cbranch_scc0 K3_EF1
        s_waitcnt vmcnt(0)
        """)
        set_flag(A, "s69")
        A("""
        s_branch K3_EF2
        K3_EF1:
        s_setprio 1
        s_waitcnt vmcnt(2)
        K3_EF2:
        """)
    else:
        A("s_waitcnt vmcnt(2)")
    A("s_barrier")
    vstamp(A, cfg, 11, PR)
    rst(A, cfg, 1)
    WFJ = [16, 24, 48, 56]
    ACCA, ACCB = 64, 96
    P3V = cfg.get("p3v") in ("2", "3")
    OD = int(cfg.get("od", 8))
    P3R = cfg.get("p3v") == "3"
    BSL = lambda b: 32768 + 16384 * b if b < 2 else WSL(b - 2)
    def waddr(s, slot=WSL):
        if slot is None:
            A("v_add_u32 v40, s90, v38")
            A("v_add_u32 v41, s90, v39")
            A("s_add_u32 s90, s90, 16384")
            A("s_and_b32 s90, s90, 0x1ffff")
            return
        A(f"v_add_u32 v40, {slot(s)}, v38")
        A(f"v_add_u32 v41, {slot(s)}, v39")
    def wreads(j):
        for cb in range(2):
            for sec in range(2):
                r = WFJ[j] + 4*cb + 2*sec
                A(f"ds_read_b64_tr_b16 v[{r}:{r+1}], v{40+cb} offset:{(16*j+8*sec)*128}")
    def gemm(acc_, after, owait, slot=WSL, inl={}, stamp=None):
        waddr(0, slot)
        for j in range(4): wreads(j)
        for s in range(8):
            last = s == 7
            for j in range(4):
                if owait: A(f"s_waitcnt vmcnt({min(4*OD + 4*s + j, 32) - (4*s + j) - 1})")
                for cb in range(2):
                    n = (14 - 2*cb) if not last else (14 - 4*j - 2*cb)
                    A(f"s_waitcnt lgkmcnt({n})")
                    w = WFJ[j] + 4*cb; o = OF + 16*s + 4*j; a = acc_ + 16*cb
                    c = "0" if (s == 0 and j == 0) else f"v[{a}:{a+15}]"
                    A(f"v_mfma_f32_32x32x16_bf16 v[{a}:{a+15}], v[{w}:{w+3}], v[{o}:{o+3}], {c}")
                if not last:
                    if j == 0: waddr(s + 1, slot)
                    wreads(j)
                for l in inl.get((s, j), []):
                    if callable(l): l()
                    else: A(l)
                if owait and s + OD < 8: o_load(s + OD, j)
            if s in after: after[s]()
            if stamp is not None and cfg.get("prof") == "5" and (s in (1, 3, 5, 7) or owait):
                rst(A, cfg, stamp + s)
    def refill(s0):
        for s in range(s0, s0 + 4):
            a, b = wo_ops(f"s_add_u32 m0, s30, {WSL(s)}")
            for l in a + b: A(l)
    def a_flag():
        A("s_waitcnt vmcnt(0)")
        set_flag(A, "s69")
    def a_mid():
        A("s_barrier")
        A("""
        s_mov_b32 s20, s6
        s_mov_b32 s21, s7
        s_mov_b32 s29, 0
        """)
        refill(0)
    def a_poll():
        poll_issue(A, 46, 45, 32, "s83", n=2)
    FBPOS = int(cfg.get("fbpos", 2))
    RB0 = 32768 if P3V else 0
    def out_addr():
        A(f"""
        v_sub_f32 v{OMG}, 1.0, v{G}
        v_and_b32 v4, 31, v0
        s_lshl_b32 s38, s19, 5
        v_add_u32 v4, s38, v4
        v_mul_u32_u24 v4, {K3_ROW}, v4
        v_lshrrev_b32 v5, 5, v0
        v_lshl_add_u32 v4, v5, 4, v4
        s_mul_i32 s38, s18, {K3_RED}
        {f"s_add_u32 s38, s38, {RB0}" if RB0 else ""}
        v_add_u32 v4, s38, v4
        s_lshl_b32 s38, s40, 6
        v_add_u32 v10, s38, v0           ; tid
        v_lshrrev_b32 v5, 3, v10
        v_and_b32 v6, 7, v10             ; chunk
        v_mul_u32_u24 v7, {K3_ROW}, v5
        v_lshl_add_u32 v7, v6, 5, v7
        {f"v_add_u32 v7, {RB0}, v7" if RB0 else ""}
        s_lshl_b32 s38, s16, 7
        v_add_u32 v5, s38, v5
        v_lshlrev_b32 v5, 11, v5
        v_lshl_add_u32 v5, v6, 4, v5
        s_lshl_b32 s38, s17, 7
        v_add_u32 v5, s38, v5
        """)
    def scale_a():
        for k in range(16):
            A(f"v_pk_mul_f32 v[{ACCA+2*k}:{ACCA+2*k+1}], v[{ACCA+2*k}:{ACCA+2*k+1}], v[{G}:{G+1}] op_sel_hi:[1,0]")
    def o_load(s, j):
        if j == 0:
            if s == 0: A(f"s_sub_u32 s28, s28, 32768" if cfg.get("expo") else f"s_add_u32 s28, s28, {4*MB - 32768}")
            if P3R:
                A("s_add_u32 s85, s28, s91")
                A("s_add_u32 s91, s91, 4096")
                A("s_and_b32 s91, s91, 0x7fff")
            elif s: A("s_add_u32 s28, s28, 4096")
        r = OF + 16*s + 4*j
        A(f"buffer_load_dwordx4 v[{r}:{r+3}], v3, s[32:35], {'s85' if P3R else 's28'} offen offset:{j*1024} sc1")
    def o_loads():
        for s in range(OD):
            for j in range(4): o_load(s, j)
    if P3V:
        A("""
        s_mov_b32 s20, s6
        s_mov_b32 s21, s7
        s_mov_b32 s29, 0
        """)
        inl = {}
        def bslab(b, s, j):
            a_, b_ = wo_ops(f"s_add_u32 m0, s30, {BSL(b)}")
            inl[(s, j)] = a_; inl[(s, j + 1)] = b_
        BS = cfg.get("bs", "0")
        bslab(0, 0, 0); bslab(1, 1, 0)
        if BS == "0":
            bslab(2, 4, 0); bslab(3, 4, 2); bslab(4, 5, 0); bslab(5, 5, 2)
        else:
            bslab(2, 2, 0); bslab(3, 3, 0); bslab(4, 4, 0); bslab(5, 5, 0)
        bslab(6, 6, 0); bslab(7, 6, 2)
        def a_flag2():
            if EF:
                j = A.uid("K3_F")
                A("s_cmp_lt_u32 s40, 4"); A(f"s_cbranch_scc1 {j}")
            A(f"s_waitcnt vmcnt({2 * min(FBPOS + 1, 2)})")
            set_flag(A, "s69")
            if EF:
                A("s_setprio 0")
                A.label(j)
        EP = int(cfg.get("ep", 0))
        def a_bar5():
            if EP:
                A("s_waitcnt vmcnt(7)")
                A("s_barrier")
                poll_check(A, 46, 45, 32, "s83", "PB", n=2)
                for b in (6, 7):
                    a_, b_ = wo_ops(f"s_add_u32 m0, s30, {BSL(b)}")
                    for l in a_ + b_: A(l)
                for s_ in range(EP):
                    for j in range(4): o_load(s_, j)
            else:
                A("s_barrier")
                a_poll()
        if EP:
            assert OD == EP + 2 and not P3R
            del inl[(6, 0)], inl[(6, 1)], inl[(6, 2)], inl[(6, 3)]
            inl[(4, 0)] = inl[(4, 0)] + [a_poll]
            for s_ in (6, 7):
                for j in range(4): inl[(s_, j)] = [(lambda s_=s_, j=j: o_load(EP + s_ - 6, j))]
        aft = {3: lambda: A("s_barrier"), 5: a_bar5}
        if FBPOS == 3: aft[3] = lambda: (a_flag2(), A("s_barrier"))
        else: aft[FBPOS] = a_flag2
        if BS == "1":
            assert FBPOS in (0, 1)
            if FBPOS == 1: aft[1] = lambda: (a_flag2(), A("s_barrier"))
            else: aft[1] = lambda: A("s_barrier")
        gemm(ACCA, aft, False, WSL, inl, 2)
        vstamp(A, cfg, 12, PR)
        if P3R:
            RM = int(cfg.get("rmask", 6))
            A(f"""
            s_and_b32 s47, s17, {RM}
            s_lshl_b32 s90, s47, 14
            s_lshl_b32 s91, s47, 12
            v_add_u32 v38, 32768, v38
            v_add_u32 v39, 32768, v39
            """)
            if cfg.get("gfirst", "1") == "1":
                A("""
                s_and_b32 s47, s17, 1
                s_cmp_eq_u32 s47, s18
                s_cbranch_scc0 K3_NP
                s_setprio 1
                K3_NP:
                """)
        A(f"s_waitcnt vmcnt({4 * OD if EP else 0})")
        rst(A, cfg, 10)
        A("s_barrier")
        rst(A, cfg, 11)
        if not EP:
            poll_check(A, 46, 45, 32, "s83", "PB", n=2)
            rst(A, cfg, 12)
            o_loads()
            rst(A, cfg, 13)
        out_addr()
        scale_a()
        srd(A, 24, 8, 4194304)
        def zbar(g):
            def f():
                j = A.uid("K3_Z")
                A(f"s_cmp_eq_u32 s18, {g}"); A(f"s_cbranch_scc0 {j}"); A("s_barrier"); A.label(j)
            return f
        if P3R:
            gemm(ACCB, {}, True, None, {}, 14)
            vstamp(A, cfg, 13, PR)
            A("s_setprio 0")
            A("s_barrier")
            A.nop(12)
        else:
            gemm(ACCB, {4: zbar(1)}, True, BSL, {}, 14)
            vstamp(A, cfg, 13, PR)
            zbar(0)()
            A.nop(12)
    else:
        gemm(ACCA, {FBPOS: a_flag, 3: a_mid, 5: a_poll}, False)
        A("s_barrier")
        refill(4)
        vstamp(A, cfg, 12, PR)
        A("s_waitcnt vmcnt(8)")
        poll_check(A, 46, 45, 32, "s83", "PB", n=2)
        o_loads()
        A("s_waitcnt vmcnt(31)")
        A("s_barrier")
        gemm(ACCB, {}, True)
        vstamp(A, cfg, 13, PR)
        out_addr()
        scale_a()
        A("s_barrier")
        srd(A, 24, 8, 4194304)
        A.nop(4)
    for k in range(16):
        A(f"v_pk_fma_f32 v[{ACCA+2*k}:{ACCA+2*k+1}], v[{ACCB+2*k}:{ACCB+2*k+1}], v[{OMG}:{OMG+1}], v[{ACCA+2*k}:{ACCA+2*k+1}] op_sel_hi:[1,0,1]")
    for cb in range(2):
        for q in range(4):
            r = ACCA + 16*cb + 4*q
            A(f"ds_write_b128 v4, v[{r}:{r+3}] offset:{cb*128 + q*32}")
    A("s_waitcnt lgkmcnt(0)")
    rst(A, cfg, 22)
    A("s_barrier")
    rst(A, cfg, 23)
    R = 128
    for it in range(2):
        for g in range(2):
            for hf in range(2):
                r = R + 16*it + 8*g + 4*hf
                A(f"ds_read_b128 v[{r}:{r+3}], v7 offset:{it*64*K3_ROW + g*K3_RED + hf*16}")
    for it in range(2):
        A(f"s_waitcnt lgkmcnt({4 - 4*it})")
        r = R + 16*it
        for k in range(4):
            A(f"v_pk_add_f32 v[{r+2*k}:{r+2*k+1}], v[{r+2*k}:{r+2*k+1}], v[{r+8+2*k}:{r+8+2*k+1}]")
        for k in range(4):
            A(f"v_cvt_pk_bf16_f32 v{r+k}, v{r+2*k}, v{r+2*k+1}")
        A(f"buffer_store_dwordx4 v[{r}:{r+3}], v5, s[24:27], 0 offen {cfg.get('ost', 'nt').replace('+', ' ')}")
        if it == 0: A(f"v_add_u32 v5, {64*2048}, v5")
    if cfg.get("prof"):
        A("s_waitcnt vmcnt(0)")
        vstamp(A, cfg, 14, PR)
        rst(A, cfg, 24)
        A(f"""
        s_mov_b32 s92, s14
        s_mov_b32 s93, s15
        s_mov_b32 s94, {64*MB}
        s_mov_b32 s95, 0x00020000
        s_lshl_b32 s90, s2, 3
        s_add_u32 s90, s90, s40
        s_lshl_b32 s90, s90, {8 if cfg.get("prof") in ("2", "3", "4", "5") else 7}
        s_add_u32 s90, s90, {WS_PROFV}
        v_lshlrev_b32 v1, 2, v0
        s_mov_b64 exec, {-1 if cfg.get("prof") in ("2", "3", "4", "5") else "0xffffffff"}
        buffer_store_dword v{PR}, v1, s[92:95], s90 offen
        """)
    A("s_endpgm")
    A.label("K2_FB")
    vstamp(A, cfg, 15, PR)
    A("s_mov_b32 s60, 17")
    A("s_mov_b32 s61, 0")
    for i in range(16): A(f"v_mov_b32 v{O+i}, 0")
    for i in range(4): A(f"v_mov_b32 v{L+i}, 0")
    A(f"v_mov_b32 v44, 0xff800000")
    A.label("K2_FBL")
    A(f"""
    buffer_load_dwordx4 v[{K0}:{K0+3}], v3, s[32:35], s70 offen sc1
    buffer_load_dwordx4 v[{K1}:{K1+3}], v3, s[32:35], s70 offen offset:1024 sc1
    buffer_load_dwordx4 v[{V0}:{V0+3}], v3, s[32:35], s70 offen offset:2048 sc1
    buffer_load_dwordx4 v[{V1}:{V1+3}], v3, s[32:35], s70 offen offset:3072 sc1
    s_add_u32 s70, s70, 4096
    s_waitcnt vmcnt(0)
    v_mfma_f32_32x32x16_bf16 v[{SA}:{SA+15}], v[{K0}:{K0+3}], v[{Q}:{Q+3}], 0
    v_mfma_f32_32x32x16_bf16 v[{SA}:{SA+15}], v[{K1}:{K1+3}], v[{Q+4}:{Q+7}], v[{SA}:{SA+15}]
    """)
    A.nop(12)
    A(f"v_max3_f32 v4, v{SA}, v{SA+1}, v{SA+2}")
    for k in range(3, 15, 2):
        A(f"v_max3_f32 v4, v4, v{SA+k}, v{SA+k+1}")
    A(f"v_max3_f32 v4, v4, v{SA+15}, v44")
    A("v_mov_b32 v5, v4")
    A.nop(2)
    A("v_permlane32_swap_b32 v4, v5")
    A("s_nop 0")
    A("v_max_f32 v4, v4, v5")
    A("v_sub_f32 v5, v44, v4")
    A("v_exp_f32 v5, v5")
    A("v_mov_b32 v44, v4")
    for k in range(16):
        A(f"v_sub_f32 v{SA+k}, v{SA+k}, v4")
    for k in range(16):
        A(f"v_exp_f32 v{SA+k}, v{SA+k}")
    for k in range(16):
        A(f"v_mul_f32 v{O+k}, v{O+k}, v5")
    for k in range(4):
        A(f"v_mul_f32 v{L+k}, v{L+k}, v5")
    for k in range(8):
        A(f"v_cvt_pk_bf16_f32 v{P+k}, v{SA+2*k}, v{SA+2*k+1}")
    A("s_nop 1")
    A(f"""
    v_mfma_f32_32x32x16_bf16 v[{O}:{O+15}], v[{V0}:{V0+3}], v[{P}:{P+3}], v[{O}:{O+15}]
    v_mfma_f32_16x16x32_bf16 v[{L}:{L+3}], v[{SEL}:{SEL+3}], v[{P}:{P+3}], v[{L}:{L+3}]
    v_mfma_f32_32x32x16_bf16 v[{O}:{O+15}], v[{V1}:{V1+3}], v[{P+4}:{P+7}], v[{O}:{O+15}]
    v_mfma_f32_16x16x32_bf16 v[{L}:{L+3}], v[{SEL}:{SEL+3}], v[{P+4}:{P+7}], v[{L}:{L+3}]
    s_add_u32 s61, s61, 1
    s_cmp_lt_u32 s61, 64
    """)
    A.nop(12)
    A("s_cbranch_scc1 K2_FBL")
    A("s_branch K2_FIN")
    A.label("KF_END")
    A("s_endpgm")
    return K, KG_LDS
```

```python
from common import *

KNAME = NAME + "_kernel"
K1_XS = 32768
K1_NX = 3
K1_WB = K1_XS * K1_NX
K1_SLOT = 12288
K1_NSLOT = 5
K1_WPHI = K1_WB + K1_SLOT * K1_NSLOT
K1_TBUF = 4352
RING = 65536
QST = 65536
TBUF0 = 81920
RED0 = 98304
ZRED = 114688
KVT_L = 116736
Z_L = 120832
KG_LDS = 163840
def WSL(s): return 65536 + 16384 * s if s < 6 else 16384 * (s - 6)
WS_F1 = WS_FLAG
WS_FK = WS_FLAG + 4096
WS_FA = WS_FLAG + 16384
WS_FB = WS_FLAG + 20480
HB0 = 122880
HB1 = 139264
TBUF1 = 147456
BIAS = 80.0
K3_ROW = 272
K3_RED = 128 * K3_ROW
SPIN_MAX = 1 << 16
WS_PROFV = WS_PROF

def cvt_tile(A, dst, src):
    for i in range(8):
        A(f"v_cvt_pk_bf16_f32 v{dst+i}, v{src+2*i}, v{src+2*i+1}")

def bstamp(A, cfg, kind, reg=33):
    if cfg.get("prof") == "2":
        A("s_memtime s[96:97]")
        A(f"s_add_u32 m0, s100, {16*kind}")
        A("s_waitcnt lgkmcnt(0)")
        A(f"v_writelane_b32 v{reg}, s96, m0")
        if kind == 2: A("s_add_u32 s100, s100, 1")

def pbar(A, cfg, wait):
    bstamp(A, cfg, 0)
    if callable(wait): wait()
    elif wait: A(wait)
    bstamp(A, cfg, 1)
    A("s_barrier")
    bstamp(A, cfg, 2)

def vstamp(A, cfg, i, reg):
    if cfg.get("prof") == "1":
        A("s_memtime s[96:97]")
        A("s_memrealtime s[98:99]")
        A("s_waitcnt lgkmcnt(0)")
        A(f"v_writelane_b32 v{reg}, s96, {2*i}")
        A(f"v_writelane_b32 v{reg}, s98, {2*i+1}")

def rst(A, cfg, lane, reg=33):
    if cfg.get("prof") == "5":
        A("s_memrealtime s[96:97]")
        A("s_waitcnt lgkmcnt(0)")
        A(f"v_writelane_b32 v{reg}, s96, {lane}")

def poll_issue(A, vdst, vaddr, srd, soff, n=1):
    if n == 1: A(f"buffer_load_dword v{vdst}, v{vaddr}, s[{srd}:{srd+3}], {soff} offen sc1")
    else:      A(f"buffer_load_dwordx2 v[{vdst}:{vdst+1}], v{vaddr}, s[{srd}:{srd+3}], {soff} offen sc1")

def poll_check(A, vdst, vaddr, srd, soff, tag, expect=1, n=1):
    ok = A.uid(tag + "_OK"); sp = A.uid(tag + "_SP")
    def test():
        if n == 2: A(f"v_and_b32 v{vdst}, v{vdst}, v{vdst+1}")
        A(f"v_cmp_eq_u32 vcc, {expect}, v{vdst}")
        A("s_cmp_eq_u64 vcc, -1")
        A(f"s_cbranch_scc1 {ok}")
    test()
    A("s_mov_b32 s82, 0")
    A.label(sp)
    A("s_sleep 2")
    poll_issue(A, vdst, vaddr, srd, soff, n)
    A("s_add_u32 s82, s82, 1")
    A("s_waitcnt vmcnt(0)")
    test()
    A(f"s_cmp_lt_u32 s82, {SPIN_MAX}")
    A(f"s_cbranch_scc1 {sp}")
    A.label(ok)

def set_flag(A, soff):
    A(f"""
    s_mov_b64 exec, 1
    v_mov_b32 v4, 1
    v_mov_b32 v5, 0
    buffer_store_dword v4, v5, s[32:35], {soff} offen sc1
    s_mov_b64 exec, -1
    """)

class VM:
    def __init__(s, A, init=()): s.A = A; s.q = list(init)
    def op(s, tag, text):
        def f(): s.A(text); s.q.append(tag)
        return f
    def now(s, tag, text): s.op(tag, text)()
    def wait(s, *tags):
        idx = max([k for k, t in enumerate(s.q) if t in tags], default=-1)
        if idx < 0: return
        s.A(f"s_waitcnt vmcnt({len(s.q) - 1 - idx})")
        s.q = s.q[idx+1:]

def setup_p2(A):
    A(f"""
    s_lshl_b32 s70, s42, 18
    s_add_u32 s70, s70, {WS_KVB}
    s_lshl_b32 s47, s41, 1
    s_add_u32 s47, s47, 3
    s_and_b32 s47, s47, 15
    s_lshl_b32 s47, s47, 14
    s_lshl_b32 s38, s40, 11
    s_add_u32 s71, s47, s38          ; offset within the head of this wave's part of the next chunk
    s_add_u32 s72, s38, {3*16384}
    s_lshl_b32 s47, s41, 3
    s_add_u32 s47, s47, s40
    s_lshl_b32 s47, s47, 5
    s_add_u32 s47, s47, s42
    s_lshl_b32 s73, s47, 11
    s_add_u32 s73, s73, {WS_OB}
    s_lshr_b32 s39, s40, 1
    s_and_b32 s39, s39, 1            ; th
    s_lshl_b32 s47, s41, 3
    s_lshl_b32 s38, s39, 2
    s_add_u32 s47, s47, s38          ; r*8 + th*4
    s_lshl_b32 s47, s47, 5
    s_add_u32 s47, s47, s42
    s_lshl_b32 s74, s47, 11
    s_add_u32 s74, s74, {WS_OA}
    s_lshl_b32 s75, s42, 16
    s_lshl_b32 s47, s40, 10
    s_add_u32 s75, s75, s47
    s_add_u32 s75, s75, {WS_KVP}
    s_lshl_b32 s47, s41, 13
    s_add_u32 s79, s75, s47
    s_lshl_b32 s76, s42, 11
    s_add_u32 s76, s76, {WS_ZP}
    s_lshl_b32 s47, s41, 8
    s_add_u32 s89, s76, s47
    s_lshl_b32 s77, s42, 8
    s_add_u32 s77, s77, {WS_FK}
    s_lshl_b32 s47, s41, 5
    s_add_u32 s68, s77, s47
    s_lshl_b32 s47, s40, 2
    s_add_u32 s68, s68, s47
    s_lshl_b32 s78, s42, 6
    s_add_u32 s78, s78, {WS_F1}      ; F1 line
    s_lshl_b32 s47, s41, 3
    s_add_u32 s67, s78, s47
    s_lshl_b32 s38, s39, 2
    s_add_u32 s67, s67, s38
    s_lshl_b32 s88, s41, 8
    s_lshl_b32 s47, s42, 3
    s_add_u32 s88, s88, s47
    s_add_u32 s88, s88, s38
    s_add_u32 s88, s88, {WS_FA}
    s_lshl_b32 s47, s41, 1
    s_lshr_b32 s38, s40, 2
    s_add_u32 s47, s47, s38
    s_lshl_b32 s69, s47, 9
    s_lshl_b32 s47, s42, 4
    s_add_u32 s69, s69, s47
    s_and_b32 s47, s40, 3
    s_lshl_b32 s47, s47, 2
    s_add_u32 s69, s69, s47
    s_add_u32 s69, s69, {WS_FB}
    """)

def setup_p3(A):
    A(f"""
    s_load_dwordx2 s[4:5], s[0:1], 24
    s_load_dwordx2 s[6:7], s[0:1], 48
    s_load_dwordx2 s[8:9], s[0:1], 64
    s_lshr_b32 s16, s45, 1
    s_lshl_b32 s16, s16, 2
    s_lshr_b32 s47, s46, 3
    s_add_u32 s16, s16, s47          ; T = 4*(e>>1) + (i>>3)
    s_and_b32 s17, s45, 1
    s_lshl_b32 s17, s17, 3
    s_and_b32 s47, s46, 7
    s_add_u32 s17, s17, s47          ; C = 8*(e&1) + (i&7)
    s_lshr_b32 s18, s40, 2           ; grp
    s_and_b32 s19, s40, 3            ; tq
    s_lshl_b32 s47, s16, 2
    s_add_u32 s47, s47, s19          ; tb3
    s_lshl_b32 s28, s47, 16
    s_lshl_b32 s38, s18, 15
    s_add_u32 s28, s28, s38
    s_add_u32 s28, s28, {WS_OA}
    s_lshl_b32 s31, s47, 7
    s_add_u32 s31, s31, {WS_G}       ; g offset
    s_lshr_b32 s47, s16, 1
    s_lshl_b32 s36, s47, 8
    s_add_u32 s36, s36, {WS_FA}
    s_lshl_b32 s83, s16, 9
    s_add_u32 s83, s83, {WS_FB}
    s_lshl_b32 s30, s18, 13
    s_lshl_b32 s38, s19, 11
    s_add_u32 s30, s30, s38
    s_mov_b32 s29, 0
    s_waitcnt lgkmcnt(0)
    s_mov_b32 s20, s4
    s_mov_b32 s21, s5
    s_mov_b32 s22, {1024*2048}
    s_mov_b32 s23, 0x00020000
    """)

def gen_kg(A, cfg):
    K = KNAME
    F1POS = int(cfg.get("f1pos", 2))
    ROT = int(cfg.get("rot", 12))
    RSH = int(cfg.get("rsh", 0))
    ROT2 = int(cfg.get("rot2", 0))
    PV = 255
    kernel_begin(A, K)
    A(f"""
    s_cmp_ge_u32 s2, 256
    s_cbranch_scc1 KF_END
    s_load_dwordx2 s[4:5], s[0:1], 0
    s_load_dwordx2 s[6:7], s[0:1], 8
    s_load_dwordx2 s[8:9], s[0:1], 40
    s_load_dwordx2 s[10:11], s[0:1], 16
    s_load_dwordx2 s[12:13], s[0:1], 56
    s_load_dwordx2 s[14:15], s[0:1], 80
    s_load_dwordx2 s[86:87], s[0:1], 72
    v_lshrrev_b32 v1, 6, v0
    v_and_b32 v0, 63, v0
    v_readfirstlane_b32 s40, v1
    s_and_b32 s45, s2, 7
    s_lshr_b32 s46, s2, 3
    """)
    if cfg.get("prof"): A(f"v_mov_b32 v{PV}, 0")
    vstamp(A, cfg, 0, PV)
    if cfg.get("prof") == "4":
        A("s_memrealtime s[96:97]")
        A("s_waitcnt lgkmcnt(0)")
        A(f"v_writelane_b32 v{PV}, s96, 40")
    if cfg.get("hmap", "f") == "f":
        A("""
        s_and_b32 s41, s45, 1
        s_lshl_b32 s41, s41, 2
        s_lshr_b32 s47, s46, 3
        s_add_u32 s41, s41, s47          ; r = 4(e&1) + (i>>3)
        s_lshr_b32 s42, s45, 1
        s_lshl_b32 s42, s42, 3
        s_and_b32 s47, s46, 7
        s_add_u32 s42, s42, s47          ; h = 8(e>>1) + (i&7)
        s_waitcnt lgkmcnt(0)
        """)
    elif cfg.get("hmap") == "h":
        A("""
        s_lshr_b32 s41, s45, 1
        s_lshl_b32 s41, s41, 1
        s_lshr_b32 s47, s46, 4
        s_add_u32 s41, s41, s47          ; r = 2(e>>1) + (i>>4)
        s_and_b32 s42, s45, 1
        s_lshl_b32 s42, s42, 4
        s_and_b32 s47, s46, 15
        s_add_u32 s42, s42, s47          ; h = 16(e&1) + (i&15)
        s_waitcnt lgkmcnt(0)
        """)
    else:
        A("""
        s_and_b32 s41, s46, 7            ; r
        s_lshl_b32 s42, s45, 2
        s_lshr_b32 s47, s46, 3
        s_add_u32 s42, s42, s47          ; h = 4e + (i>>3)
        s_waitcnt lgkmcnt(0)
        """)
    def rstamp(lane):
        if cfg.get("prof") == "4":
            A("s_memrealtime s[96:97]")
            A("s_waitcnt lgkmcnt(0)")
            A(f"v_writelane_b32 v{PV}, s96, {lane}")
    rstamp(41)
    srd(A, 32, 14, WS_USED)
    A("""
    s_cmp_ge_u32 s40, 4
    s_cbranch_scc1 K1_LOADER
    """)
    PF3 = cfg.get("pf3")
    PF4 = cfg.get("pf4")
    L2D = int(cfg.get("l2d", 2)) if not (PF3 or PF4) else 0
    TL = int(cfg.get("tl", 4))
    TC = int(cfg.get("tc", 8))
    def touch_addr(w, dst, t0, t1, t2, shift, sa):
        OFFL = int(cfg.get("offl", 0))
        A(f"""
        s_and_b32 s47, s42, 1
        s_lshl_b32 s47, s47, 2
        s_and_b32 s38, s41, 3
        s_add_u32 s47, s47, s38
        s_lshl_b32 s47, s47, 2
        v_bfe_u32 v{t0}, v0, 2, 1
        v_lshlrev_b32 v{t0}, 5, v{t0}    ; 32 * block
        v_and_b32 v{t2}, 3, v0
        v_add3_u32 v{dst}, v{t2}, v{t0}, s47
        v_mul_u32_u24 v{dst}, 6144, v{dst}
        v_lshrrev_b32 v{t1}, 3, v0       ; segment
        v_lshl_add_u32 v{dst}, v{t1}, 11, v{dst}
        s_lshr_b32 s47, s42, 1
        s_lshl_b32 s47, s47, 7
        v_add_u32 v{dst}, s47, v{dst}
        s_and_b32 {sa}, s42, 7
        """)
        if OFFL:
            A(f"""
            s_lshl_b32 s47, {sa}, 2
            s_add_u32 s47, s47, s38
            s_lshl_b32 s47, s47, 2
            v_add_u32 v{t2}, s47, v{t2}
            v_lshrrev_b32 v{t1}, 5, v{t2}
            v_and_b32 v{t2}, 31, v{t2}
            v_add_u32 v{t2}, v{t2}, v{t0}
            v_mul_u32_u24 v{t2}, 6144, v{t2}
            v_lshl_add_u32 v{t2}, v{t1}, 11, v{t2}
            s_lshr_b32 s47, s42, 1
            s_or_b32 s47, s47, 3
            s_lshl_b32 s47, s47, 7
            v_add_u32 v{t2}, s47, v{t2}
            v_cmp_lt_u32 vcc, 23, v0
            s_nop 1
            v_cndmask_b32 v{dst}, v{dst}, v{t2}, vcc
            s_cmp_lt_u32 {sa}, 6
            s_cselect_b32 s63, 32, 0
            """)
            if OFFL == 1:
                A(f"""
                s_lshl_b32 s47, {sa}, 4
                s_mul_i32 s38, {sa}, 80
                s_sub_u32 s38, s38, {6*80 - 96}
                s_cmp_lt_u32 {sa}, 6
                s_cselect_b32 s47, s47, s38
                s_cselect_b32 {sa}, 16, 40
                s_cselect_b32 s38, 0, 40
                s_cmp_eq_u32 {w}, 3
                s_cselect_b32 {sa}, s38, {sa}
                s_cselect_b32 s38, 40, 0
                s_add_u32 s47, s47, s38
                """)
            elif OFFL == 2:
                A(f"""
                s_mul_i32 s47, {sa}, 43
                s_cmp_lt_u32 {sa}, 5
                s_cselect_b32 s38, 43, 41
                s_cmp_lt_u32 {sa}, 6
                s_cselect_b32 {sa}, s38, 0
                s_cmp_eq_u32 {w}, 3
                s_cselect_b32 {sa}, 0, {sa}
                """)
            else:
                A(f"""
                s_lshl_b32 s47, {sa}, 5
                s_cmp_eq_u32 {w}, 3
                s_cselect_b32 {sa}, 0, 32
                """)
        else:
            A(f"""
            s_mov_b32 s63, 24
            s_lshl_b32 s47, {sa}, 5
            s_cmp_eq_u32 {w}, 3
            s_cselect_b32 {sa}, 0, 32
            """)
        A(f"""
        s_lshl_b32 s38, s41, 8
        s_add_u32 s47, s47, s38
        v_add_u32 v{t1}, s47, v0
        v_lshlrev_b32 v{t1}, 11, v{t1}   ; x row
        v_bfe_u32 v{t0}, v0, 1, 1
        s_and_b32 s38, s45, 1
        v_xor_b32 v{t0}, s38, v{t0}      ; 0 : ours
        v_and_b32 v{t2}, 3, v0
        s_lshr_b32 s38, s45, 1
        v_xor_b32 v{t2}, s38, v{t2}
        s_cmp_ge_u32 {w}, 2
        s_cselect_b64 vcc, -1, 0
        s_cselect_b32 s47, {sa}, s63
        s_mov_b32 s38, {(TC - TL) * 32 * 6144}
        s_cselect_b32 s38, {(TC - TL) * 64}, s38
        v_cndmask_b32 v{dst}, v{dst}, v{t1}, vcc
        v_cndmask_b32 v{t0}, v{t0}, v{t2}, vcc
        v_cmp_eq_u32 vcc, 0, v{t0}
        """)
        if shift:
            A(f"""
            v_mov_b32 v{t1}, s38
            s_nop 0
            v_cndmask_b32 v{t1}, 0, v{t1}, vcc
            v_add_u32 v{dst}, v{dst}, v{t1}
            v_cmp_gt_u32 vcc, s47, v0
            v_mov_b32 v{t1}, 0x7ffffff0
            s_nop 0
            v_cndmask_b32 v{dst}, v{t1}, v{dst}, vcc
            """)
        else:
            A(f"""
            v_cmp_gt_u32 s[62:63], s47, v0
            v_mov_b32 v{t1}, 0x7ffffff0
            s_and_b64 vcc, vcc, s[62:63]
            v_cndmask_b32 v{dst+2}, v{t1}, v{dst}, vcc
            v_cndmask_b32 v{dst}, v{t1}, v{dst}, s[62:63]
            """)
        A(f"""
        s_cmp_eq_u32 {w}, 0
        s_cselect_b32 s92, s6, s8
        s_cselect_b32 s93, s7, s9
        s_cmp_ge_u32 {w}, 2
        s_cselect_b32 s92, s4, s92
        s_cselect_b32 s93, s5, s93
        s_mov_b32 s94, {1024*6144}
        s_cselect_b32 s94, {2048*2048}, s94
        s_mov_b32 s95, 0x00020000
        """)
    rng = lambda t: range(*map(int, t.split(":"))) if t else range(0)
    PFA_ = rng(cfg.get("pfa", f"0:{4+L2D}")); PFB_ = rng(cfg.get("pfb", ""))
    PFA, PFD = 252, 253
    def l2pf(step=None):
        if step is None:
            A("s_and_b32 s55, s59, 31")
        else:
            A(f"s_add_u32 s55, s63, {step}")
            A("s_and_b32 s55, s55, 31")
        A(f"s_mul_i32 s55, s55, {32*6144}")
        A(f"buffer_load_dword v{PFD}, v{PFA}, s[92:95], s55 offen")
        if step is None: A("s_add_u32 s59, s59, 1")
    PF2 = cfg.get("pf2")
    def touch():
        return [f"buffer_load_dword v{PFD}, v{PFA}, s[92:95], s55 offen", "s_add_u32 s55, s55, s59", "s_cmp_eq_u32 s55, s56",
                "s_cselect_b32 s55, 0, s55", "s_xor_b32 s59, s59, s57"]
    if PF2:
        XW = int(cfg.get("pfx", 1))
        HM = cfg.get("hmap", "f") == "h"
        RB = 1 if HM else 2
        HB = 4 if HM else 3
        R20 = 0 if cfg.get("r2") == "early0" else 4
        A(f"""
        s_and_b32 s47, s42, 1
        s_lshl_b32 s47, s47, {RB}
        s_and_b32 s38, s41, {(1 << RB) - 1}
        s_add_u32 s47, s47, s38
        s_lshr_b32 s38, s42, 1
        s_lshl_b32 s47, s47, {4 - RB}
        s_lshl_b32 s38, s38, 7
        v_and_b32 v4, {(1 << (4 - RB)) - 1}, v0
        v_add_u32 v4, s47, v4
        v_mul_u32_u24 v4, 6144, v4
        v_lshrrev_b32 v5, {4 - RB}, v0
        v_lshl_add_u32 v4, v5, 11, v4    ; + segment * 2048
        v_add_u32 v4, s38, v4
        s_lshl_b32 s47, s41, 8
        s_and_b32 s38, s42, {(1 << HB) - 1}
        s_lshl_b32 s38, s38, {8 - HB}
        s_add_u32 s47, s47, s38
        v_add_u32 v6, s47, v0
        v_lshlrev_b32 v6, 11, v6
        s_cmp_eq_u32 s40, 0
        s_cselect_b64 vcc, -1, 0
        s_cselect_b32 s38, {1 << (7 - HB)}, {3 << (4 - RB)}
        v_mov_b32 v5, 0x7ffffff0
        v_cndmask_b32 v4, v4, v6, vcc
        v_cmp_gt_u32 vcc, s38, v0
        s_cmp_eq_u32 s40, 2
        s_cselect_b32 s92, s6, s8
        s_cselect_b32 s93, s7, s9
        s_cmp_ge_u32 s40, 2
        s_cselect_b32 s62, {1024*6144}, 0
        v_cndmask_b32 v{PFA}, v5, v4, vcc
        s_lshr_b32 s63, s45, {RSH}
        s_mul_i32 s63, s63, {ROT}
        s_and_b32 s47, s45, 1
        s_mul_i32 s47, s47, {ROT2}
        s_add_u32 s63, s63, s47
        s_add_u32 s63, s63, {R20}
        s_and_b32 s55, s63, 31
        s_mul_i32 s55, s55, {32*6144}
        s_mov_b32 s59, {32*6144}
        s_mov_b32 s57, 0
        s_mov_b32 s56, {1024*6144}
        s_cmp_lg_u32 s40, 0
        s_cbranch_scc1 K1_PFW
        s_mov_b32 s92, s4
        s_mov_b32 s93, s5
        s_mov_b32 s62, {2048*2048 if XW else 0}
        s_lshr_b32 s55, s63, 1
        s_and_b32 s55, s55, 15
        s_lshl_b32 s55, s55, 7
        s_mov_b32 s59, {1 << (18 - HB)}
        s_mov_b32 s57, {(1 << (18 - HB)) ^ ((128 - (1 << (18 - HB))) & 0xffffffff)}
        s_mov_b32 s56, 2048
        K1_PFW:
        s_mov_b32 s94, s62
        s_mov_b32 s95, 0x00020000
        """)
        if cfg.get("r2") == "early0":
            for t in range(int(cfg.get("e0n", 4))):
                for l in touch(): A(l)
        if cfg.get("r2") == "early":
            for t in range(L2D):
                for l in touch(): A(l)
    elif L2D:
        A(f"""
        s_and_b32 s47, s42, 1
        s_lshl_b32 s47, s47, 2
        s_and_b32 s38, s41, 3
        s_add_u32 s47, s47, s38
        s_lshr_b32 s38, s42, 1
        
        s_lshl_b32 s47, s47, 2
        s_lshl_b32 s38, s38, 7
        v_and_b32 v4, 3, v0
        v_add_u32 v4, s47, v4
        v_mul_u32_u24 v4, 6144, v4
        v_lshrrev_b32 v5, 2, v0
        v_lshl_add_u32 v4, v5, 11, v4    ; + segment * 2048
        v_add_u32 v4, s38, v4
        v_mov_b32 v5, 0x7ffffff0
        v_cmp_gt_u32 vcc, 12, v0
        s_cmp_eq_u32 s40, 2
        s_cselect_b32 s92, s6, s8
        s_cselect_b32 s93, s7, s9
        s_cmp_ge_u32 s40, 2
        s_cselect_b32 s62, {1024*6144}, 0
        s_mov_b32 s94, s62
        s_mov_b32 s95, 0x00020000
        v_cndmask_b32 v{PFA}, v5, v4, vcc
        s_lshr_b32 s63, s45, {RSH}
        s_mul_i32 s63, s63, {ROT}
        s_add_u32 s59, s63, {4 + L2D}
        """)
        for t in PFA_: l2pf(t)
    if PF4:
        assert ROT == 0 and ROT2 == 0
        touch_addr("s40", PFA, 4, 5, 6, False, "s62")
        A(f"""
        s_cmp_ge_u32 s40, 2
        s_mov_b32 s59, {64*6144}
        s_cselect_b32 s59, 128, s59
        s_mov_b32 s55, 0
        """)
        for t in range(int(cfg.get("r0", 0))):
            A(f"buffer_load_dword v{PFD}, v{PFA}, s[92:95], s55 offen")
            A("s_add_u32 s55, s55, s59")
        A(f"""
        s_cmp_ge_u32 s40, 2
        s_mov_b32 s55, {TL*32*6144}
        s_cselect_b32 s55, {TL*64}, s55
        """)
    rstamp(42)
    setup_p2(A)
    rstamp(43)
    A(f"""
    s_cmp_lg_u32 s40, 0
    s_cbranch_scc1 K1_NOZ
    v_lshlrev_b32 v4, 2, v0
    v_lshrrev_b32 v6, 2, v0
    v_lshlrev_b32 v6, 9, v6
    v_and_b32 v7, 3, v0
    v_lshl_add_u32 v6, v7, 2, v6
    v_mov_b32 v5, 0
    s_mov_b64 exec, 3
    buffer_store_dword v5, v4, s[32:35], s67 offen sc1
    buffer_store_dword v5, v4, s[32:35], s88 offen sc1
    s_mov_b64 exec, 0xff
    buffer_store_dword v5, v4, s[32:35], s68 offen sc1
    buffer_store_dword v5, v6, s[32:35], s69 offen sc1
    s_mov_b32 s36, s86
    s_mov_b32 s37, s87
    s_mov_b32 s38, 256
    s_mov_b32 s39, 0x00020000
    """)
    LATE = cfg.get("late")
    if not LATE:
        A("""
        s_waitcnt vmcnt(0)
        s_mov_b64 exec, 1
        v_mov_b32 v6, 1
        buffer_atomic_add v6, v5, s[36:39], 0 offen
        s_mov_b64 exec, -1
        """)
    else:
        A("s_mov_b64 exec, -1")
    A("""
    K1_NOZ:
    """)
    rstamp(44)
    setup_p3(A)
    rstamp(45)
    XA, WA = 4, 20
    XB, WB = 32, 48
    ACC = 60
    acc = lambda sg, tt: ACC + (sg * 4 + tt) * 16
    A(f"""
    s_lshr_b32 s50, s40, 1           ; th
    s_and_b32 s51, s40, 1            ; type
    v_and_b32 v4, 31, v0
    v_lshrrev_b32 v5, 5, v0          ; hh
    v_bfe_u32 v6, v0, 2, 2           ; f = (l>>2)&3
    v_bfe_u32 v7, v0, 1, 3           ; (row>>1)&7
    v_xor_b32 v7, v5, v7
    v_lshlrev_b32 v7, 4, v7
    v_lshl_add_u32 v1, v4, 7, v7
    s_lshl_b32 s47, s50, 14
    v_add_u32 v1, s47, v1            ; vxa0
    v_xor_b32 v2, 32, v1             ; vxa1
    v_lshl_add_u32 v7, v5, 3, v6
    v_lshlrev_b32 v7, 6, v7          ; *64
    v_bfe_u32 v8, v0, 4, 1           ; g&1
    v_lshl_add_u32 v7, v8, 5, v7
    v_and_b32 v9, 3, v0
    v_lshl_add_u32 v7, v9, 3, v7
    s_lshl_b32 s47, s51, 11
    s_add_u32 s47, s47, {K1_WB}
    v_add_u32 v3, s47, v7            ; vwa
    s_mov_b32 s48, {1 if cfg.get("spread") else 0}
    s_mov_b32 s49, {K1_SLOT}
    s_mov_b32 s65, 0
    s_mov_b32 s52, {K1_SLOT}
    s_mov_b32 s53, {-(K1_NSLOT-1)*K1_SLOT & 0xffffffff}
    s_mov_b32 s54, 32
    s_mov_b32 s64, 0                 ; x slot
    s_mov_b32 s66, {-(K1_NX-1)*K1_XS & 0xffffffff}
    """)
    for i in range(192):
        A(f"v_mov_b32 v{ACC+i}, 0")
    if PF2 and cfg.get("r2") != "early":
        for t in range(L2D + (4 - int(cfg.get("e0n", 4)) if cfg.get("r2") == "early0" else 0)):
            for l in touch(): A(l)
    rstamp(46)
    A("s_barrier")
    vstamp(A, cfg, 1, PV)
    if cfg.get("prof") == "4":
        A("s_memrealtime s[96:97]")
        A("s_waitcnt lgkmcnt(0)")
        A(f"v_writelane_b32 v{PV}, s96, 0")
    if cfg.get("prof") == "3":
        A("s_memtime s[96:97]")
        A("s_mov_b32 s100, 0")
        A("s_waitcnt lgkmcnt(0)")
        A("s_mov_b32 s101, s96")
    if L2D:
        for t in PFB_: l2pf(t)
    def reads(X, W, s):
        r = []
        xa = 1 if s == 0 else 2
        for tt in range(4):
            r.append(f"ds_read_b128 v[{X+4*tt}:{X+4*tt+3}], v{xa} offset:{tt*4096}")
        for sg in range(3):
            for sec in range(2):
                r.append(f"ds_read_b64_tr_b16 v[{W+4*sg+2*sec}:{W+4*sg+2*sec+1}], v3 offset:{sg*4096 + s*1024 + sec*256}")
        return [r[4], r[5], r[0], r[1], r[2], r[3], r[6], r[7], r[8], r[9]]
    def mfmas(X, W):
        m = []
        for sg in range(3):
            for tt in range(4):
                a = acc(sg, tt)
                w = f"v[{W+4*sg}:{W+4*sg+3}]"; x = f"v[{X+4*tt}:{X+4*tt+3}]"
                if cfg.get("exp16"):
                    m.append(f"v_mfma_f32_16x16x32_bf16 v[{a}:{a+3}], {w}, {x}, v[{a}:{a+3}]\nv_mfma_f32_16x16x32_bf16 v[{a+8}:{a+11}], {x}, {w}, v[{a+8}:{a+11}]")
                elif sg < 2: m.append(f"v_mfma_f32_32x32x16_bf16 v[{a}:{a+15}], {w}, {x}, v[{a}:{a+15}]")
                else:      m.append(f"v_mfma_f32_32x32x16_bf16 v[{a}:{a+15}], {x}, {w}, v[{a}:{a+15}]")
        return m
    for l in reads(XA, WA, 0): A(l)
    if LATE:
        A("""
        s_cmp_lg_u32 s40, 0
        s_cbranch_scc1 K1_NOARR
        s_mov_b32 s96, s86
        s_mov_b32 s97, s87
        s_mov_b32 s98, 256
        s_mov_b32 s99, 0x00020000
        v_mov_b32 v32, 0
        v_mov_b32 v33, 1
        s_waitcnt vmcnt(0)
        s_mov_b64 exec, 1
        buffer_atomic_add v33, v32, s[96:99], 0 offen
        s_mov_b64 exec, -1
        K1_NOARR:
        """)
    if PF4:
        for t in range((TC - TL) // 2):
            A(f"buffer_load_dword v{PFD}, v{PFA+2}, s[92:95], s55 offen")
            A("s_add_u32 s55, s55, s59")
    A.label("K1_CLOOP")
    A("s_waitcnt lgkmcnt(0)")
    m = mfmas(XA, WA); r = reads(XB, WB, 1)
    extra0 = {4: ["s_and_b32 s63, s54, 1", "s_add_u32 s64, s64, s63", f"s_cmp_eq_u32 s64, {K1_NX}",
                  f"s_cselect_b32 s65, s66, {K1_XS}", "s_cselect_b32 s64, 0, s64", "s_mul_i32 s65, s65, s63"],
              6: ["s_add_u32 s48, s48, 1", f"s_cmp_eq_u32 s48, {K1_NSLOT}", "s_cselect_b32 s49, s53, s52", "s_cselect_b32 s48, 0, s48"],
              7: ["v_xor_b32 v1, 64, v1", "v_xor_b32 v2, 64, v2"], 8: ["v_add_u32 v1, s65, v1", "v_add_u32 v2, s65, v2"], 9: ["v_add_u32 v3, s49, v3"]}
    SPREAD = cfg.get("spread")
    extra1 = {}
    if SPREAD:
        extra0 = {6: ["v_xad_u32 v1, v1, 64, s65"], 8: ["v_xad_u32 v2, v2, 64, s65"], 10: ["v_add_u32 v3, s49, v3"]}
        extra1 = {5: ["s_sub_u32 s54, s54, 1", "s_and_b32 s63, s54, 1", "s_add_u32 s64, s64, s63"],
                  6: [f"s_cmp_eq_u32 s64, {K1_NX}", f"s_cselect_b32 s65, s66, {K1_XS}", "s_cselect_b32 s64, 0, s64"],
                  7: ["s_mul_i32 s65, s65, s63", "s_add_u32 s48, s48, 1", f"s_cmp_eq_u32 s48, {K1_NSLOT}"],
                  8: ["s_cselect_b32 s49, s53, s52", "s_cselect_b32 s48, 0, s48"],
                  11: ["s_cmp_lg_u32 s54, 0"]}
        if PF2:
            t_ = touch()
            th_, tk_ = map(int, cfg.get("tpos", "1:9").split(":"))
            ex_ = extra1 if th_ else extra0
            after_dec = th_ == 1 and tk_ >= 5
            cmp_ = f"s_cmp_ge_u32 s54, {4 + L2D}" if after_dec else f"s_cmp_gt_u32 s54, {4 + L2D}"
            def addx(d, k, ls, front=False):
                d[k] = (ls + d.get(k, [])) if front else (d.get(k, []) + ls)
            if th_ == 1 and tk_ == 9:
                extra1[9] = [cmp_, "s_cselect_b32 s94, s62, 0", t_[0]]
                extra1[10] = t_[1:4]
                extra1[11] = [t_[4], "s_cmp_lg_u32 s54, 0"]
            else:
                assert not (th_ == 1 and 3 < tk_ < 9)
                addx(ex_, tk_, [cmp_, "s_cselect_b32 s94, s62, 0", t_[0]])
                addx(ex_, tk_ + 1, [t_[1], t_[2], t_[3], t_[4]])
        elif L2D:
            extra1[9] = [f"s_cmp_ge_u32 s54, {4 + L2D}", "s_cselect_b32 s94, s62, 0", "s_and_b32 s55, s59, 31"]
            extra1[10] = [f"s_mul_i32 s55, s55, {32*6144}", "s_add_u32 s59, s59, 1", f"buffer_load_dword v{PFD}, v{PFA}, s[92:95], s55 offen"]
    for k in range(12):
        A(m[k])
        if k < 5:
            A(r[2*k]); A(r[2*k+1])
        for l in extra0.get(k, []): A(l)
        if L2D and k == 10 and not SPREAD:
            assert not PF2
            A(f"s_cmp_gt_u32 s54, {4 + L2D}")
            A("s_cselect_b32 s94, s62, 0")
            l2pf()
    A("s_waitcnt lgkmcnt(0)")
    m = mfmas(XB, WB); r = reads(XA, WA, 0)
    for k in range(12):
        A(m[k])
        if k < 5:
            A(r[2*k]); A(r[2*k+1])
        for l in extra1.get(k, []): A(l)
        if k == 8 and not SPREAD:
            A("s_sub_u32 s54, s54, 1"); A("s_cmp_lg_u32 s54, 0")
    if cfg.get("prof") == "3":
        A("s_memtime s[96:97]")
        A("s_barrier")
        A("s_memtime s[98:99]")
        A("s_waitcnt lgkmcnt(0)")
        A("s_sub_u32 s98, s98, s96")
        A("s_add_u32 s100, s100, s98")
        A("s_cmp_lg_u32 s54, 0")
    elif cfg.get("prof") == "4":
        A("s_barrier")
        A("s_memrealtime s[96:97]")
        A("s_sub_u32 m0, 32, s54")
        A("s_waitcnt lgkmcnt(0)")
        A(f"v_writelane_b32 v{PV}, s96, m0")
        A("s_cmp_lg_u32 s54, 0")
    else:
        A("s_barrier")
    A("s_cbranch_scc1 K1_CLOOP")
    A("s_waitcnt lgkmcnt(0)")
    if cfg.get("prof") == "3":
        A("s_memtime s[96:97]")
        A("s_waitcnt lgkmcnt(0)")
        A("s_sub_u32 s96, s96, s101")
        A(f"v_writelane_b32 v{PV}, s100, 0")
        A(f"v_writelane_b32 v{PV}, s96, 2")
    vstamp(A, cfg, 2, PV)
    E8 = cfg.get("e8")
    T1 = 4
    VB = acc(1, 0)
    QL = E8 and cfg.get("qlate", "1") == "1"
    V = acc(0, 2) if QL else acc(1, 0)
    Q = V + 16 if QL else acc(1, 0) + 32
    NT8 = 2 if E8 else 4
    A(f"""
    v_lshlrev_b32 v1, 4, v0          ; lane*16
    s_cmp_lg_u32 s51, 0
    s_cbranch_scc1 K1_E1T1
    s_mov_b32 s56, {fhex(32**-0.5 * LOG2E)}
    s_mov_b32 s57, s56
    s_lshl_b32 s47, s50, 13
    s_add_u32 s47, s47, {QST}
    v_add_u32 v44, s47, v1
    """)
    def handoff(srcs):
        for k, src in enumerate(srcs):
            cvt_tile(A, T1 + 8*k, src)
            A(f"ds_write_b128 v45, v[{T1+8*k}:{T1+8*k+3}] offset:{k*2048}")
            A(f"ds_write_b128 v45, v[{T1+8*k+4}:{T1+8*k+7}] offset:{k*2048+1024}")
        A("s_waitcnt lgkmcnt(0)")
        A("s_barrier")
    if E8:
        A(f"""
        s_lshl_b32 s47, s50, 13
        s_add_u32 s47, s47, {HB0}
        v_add_u32 v45, s47, v1
        """)
        A.nop(2)
        handoff([acc(0, 2), acc(0, 3), acc(2, 2), acc(2, 3)])
    else:
        A.nop(6)
    def bq_stage(tts, sc, adr, inplace):
        for tt in tts:
            for k in range(8):
                a = acc(1, tt) + 2*k
                A(f"v_pk_mul_f32 v[{a}:{a+1}], v[{a}:{a+1}], s[{sc}:{sc+1}]")
            d = acc(1, tt) if inplace else T1 + 8*tt
            cvt_tile(A, d, acc(1, tt))
            A(f"ds_write_b128 v{adr}, v[{d}:{d+3}] offset:{tt*2048}")
            A(f"ds_write_b128 v{adr}, v[{d+4}:{d+7}] offset:{tt*2048+1024}")
    if QL:
        A("""
        v_mov_b32 v26, v44
        s_mov_b32 s64, s56
        s_mov_b32 s65, s56
        """)
    else:
        bq_stage(range(4), 56, 44, False)
    for tt in range(NT8):
        cvt_tile(A, V + 8*tt, acc(2, tt))
    A("s_branch K1_E2J")
    A.label("K1_E1T1")
    A(f"""
    s_lshl_b32 s58, s41, 1
    s_add_u32 s58, s58, s50
    s_lshl_b32 s58, s58, 14
    s_add_u32 s58, s58, s70
    s_lshl_b32 s47, s50, 14
    v_add_u32 v44, s47, v1
    """)
    if E8:
        A(f"""
        s_lshl_b32 s47, s50, 12
        s_add_u32 s47, s47, {HB1}
        v_add_u32 v45, s47, v1
        """)
        handoff([acc(0, 2), acc(0, 3)])
    else:
        A.nop(10)
    for tt in range(4):
        cvt_tile(A, T1 + 8*tt, acc(1, tt))
        A(f"buffer_store_dwordx4 v[{T1+8*tt}:{T1+8*tt+3}], v1, s[32:35], s58 offen sc1")
        A(f"buffer_store_dwordx4 v[{T1+8*tt+4}:{T1+8*tt+7}], v1, s[32:35], s58 offen offset:1024 sc1")
        A("s_add_u32 s58, s58, 4096")
    A(f"s_sub_u32 s58, s58, {4*4096 - 2048}")
    for tt in range(4):
        cvt_tile(A, VB + 8*tt, acc(2, tt))
        A(f"buffer_store_dwordx4 v[{VB+8*tt}:{VB+8*tt+3}], v1, s[32:35], s58 offen sc1")
        A(f"buffer_store_dwordx4 v[{VB+8*tt+4}:{VB+8*tt+7}], v1, s[32:35], s58 offen offset:1024 sc1")
        A("s_add_u32 s58, s58, 4096")
    for tt in range(4):
        A(f"ds_write_b128 v44, v[{T1+8*tt}:{T1+8*tt+3}] offset:{tt*4096}")
        A(f"ds_write_b128 v44, v[{T1+8*tt+4}:{T1+8*tt+7}] offset:{tt*4096+1024}")
        A(f"ds_write_b128 v44, v[{VB+8*tt}:{VB+8*tt+3}] offset:{tt*4096+2048}")
        A(f"ds_write_b128 v44, v[{VB+8*tt+4}:{VB+8*tt+7}] offset:{tt*4096+3072}")
    A.label("K1_E2J")
    WP = 36
    def feat_setup(tb):
        A(f"""
        v_lshrrev_b32 v5, 5, v0          ; hh
        v_bfe_u32 v6, v0, 2, 2           ; i>>2
        v_lshl_add_u32 v6, v5, 2, v6     ; 4hh + (i>>2)
        v_bfe_u32 v7, v0, 4, 1
        v_lshlrev_b32 v7, 5, v7
        v_and_b32 v8, 3, v0
        v_lshl_add_u32 v7, v8, 3, v7     ; (g&1)*32 + (i&3)*8
        v_lshl_add_u32 v2, v6, 6, v7
        v_add_u32 v2, {K1_WPHI}, v2
        """)
        for s in range(2):
            for sec in range(2):
                A(f"ds_read_b64_tr_b16 v[{WP+4*s+2*sec}:{WP+4*s+2*sec+1}], v2 offset:{(16*s+8*sec)*64}")
        A(f"""
        s_mul_i32 s47, s50, {K1_TBUF}
        s_add_u32 s47, s47, {tb}
        v_mul_u32_u24 v25, 136, v6
        v_add_u32 v25, v25, v7
        v_add_u32 v25, s47, v25
        v_and_b32 v8, 31, v0
        v_mul_u32_u24 v24, 136, v8
        v_lshl_add_u32 v24, v5, 3, v24
        v_add_u32 v24, s47, v24
        v_bfe_u32 v8, v0, 2, 1
        v_bfe_u32 v9, v0, 4, 1
        v_cmp_eq_u32 vcc, v8, v9
        v_mov_b32 v9, 0x3f803f80
        v_mov_b32 v8, 0
        v_cndmask_b32 v20, v8, v9, vcc
        v_cndmask_b32 v21, v8, v9, vcc
        v_cndmask_b32 v22, v8, v9, vcc
        v_cndmask_b32 v23, v8, v9, vcc
        """)
    feat_setup(TBUF0)
    for tt in range(NT8):
        cvt_tile(A, Q + 8*tt, acc(0, tt))
    if E8: A.label("K1_E2L")
    A("s_waitcnt lgkmcnt(0)")
    for tt in range(NT8):
        a = acc(0, tt)
        A(f"v_mfma_f32_32x32x16_bf16 v[{a}:{a+15}], v[{WP}:{WP+3}], v[{Q+8*tt}:{Q+8*tt+3}], 0")
    for tt in range(NT8):
        a = acc(0, tt)
        A(f"v_mfma_f32_32x32x16_bf16 v[{a}:{a+15}], v[{WP+4}:{WP+7}], v[{Q+8*tt+4}:{Q+8*tt+7}], v[{a}:{a+15}]")
    A(f"""
    s_mov_b32 s56, {fhex(LOG2E)}
    s_mov_b32 s57, s56
    """)
    A.nop(10)
    EP = acc(2, 0)
    PH = EP + 16
    AF = PH + 16
    KV0 = AF + 16
    KV1 = 44
    Z0, Z1, SEL1 = 12, 16, 20
    PHQ = 128
    def kv_mfmas(tt):
        out = []
        for s in range(2):
            for fb in range(2):
                kv = KV0 if fb == 0 else KV1
                z = Z0 if fb == 0 else Z1
                af = AF + (fb*2+s)*4
                c = "0" if (tt == 0 and s == 0) else f"v[{kv}:{kv+15}]"
                cz = "0" if (tt == 0 and s == 0) else f"v[{z}:{z+3}]"
                out.append(f"v_mfma_f32_32x32x16_bf16 v[{kv}:{kv+15}], v[{af}:{af+3}], v[{V+8*tt+4*s}:{V+8*tt+4*s+3}], {c}")
                out.append(f"v_mfma_f32_16x16x32_bf16 v[{z}:{z+3}], v[{SEL1}:{SEL1+3}], v[{af}:{af+3}], {cz}")
        return out
    if E8: F1POS = min(int(cfg.get("f1pos", 0)), 1)
    for tt in range(NT8):
        P = acc(0, tt)
        A(f"v_max3_f32 v4, v{P}, v{P+1}, v{P+2}")
        A(f"v_max3_f32 v5, -v{P}, -v{P+1}, -v{P+2}")
        for k in range(3, 15, 2):
            A(f"v_max3_f32 v4, v4, v{P+k}, v{P+k+1}")
            A(f"v_max3_f32 v5, v5, -v{P+k}, -v{P+k+1}")
        A(f"v_max_f32 v4, v4, v{P+15}")
        A(f"v_max_f32 v5, v5, -v{P+15}")
        A.nop(2)
        A("v_permlane32_swap_b32 v4, v5")
        A("s_nop 0")
        A("v_max_f32 v4, v4, v5")
        A("v_mov_b32 v5, v4")
        A.nop(2)
        A("v_permlane32_swap_b32 v4, v5")
        A("s_nop 0")
        A(f"v_mul_f32 v6, {fhex(-LOG2E)}, v4")
        A(f"v_mul_f32 v8, {fhex(-LOG2E)}, v5")
        for k in range(8):
            A(f"v_pk_fma_f32 v[{EP+2*k}:{EP+2*k+1}], v[{P+2*k}:{P+2*k+1}], s[56:57], v[6:7] op_sel_hi:[1,1,0]")
            A(f"v_pk_fma_f32 v[{P+2*k}:{P+2*k+1}], v[{P+2*k}:{P+2*k+1}], s[56:57], v[8:9] op_sel_hi:[1,1,0] neg_lo:[0,1,0] neg_hi:[0,1,0]")
        for k in range(16):
            A(f"v_exp_f32 v{EP+k}, v{EP+k}")
            A(f"v_exp_f32 v{P+k}, v{P+k}")
        if tt > 0:
            j = A.uid("K1_KVS")
            A("s_cmp_lg_u32 s51, 0"); A(f"s_cbranch_scc1 {j}")
            A("s_waitcnt lgkmcnt(0)")
            for l in kv_mfmas(tt-1): A(l)
            A.label(j)
        A(f"v_pk_add_f32 v[4:5], v[{EP}:{EP+1}], v[{EP+2}:{EP+3}]")
        A(f"v_pk_add_f32 v[6:7], v[{P}:{P+1}], v[{P+2}:{P+3}]")
        for k in range(2, 8):
            A(f"v_pk_add_f32 v[4:5], v[4:5], v[{EP+2*k}:{EP+2*k+1}]")
            A(f"v_pk_add_f32 v[6:7], v[6:7], v[{P+2*k}:{P+2*k+1}]")
        A("v_add_f32 v4, v4, v5")
        A("v_add_f32 v6, v6, v7")
        A.nop(2)
        A("v_permlane32_swap_b32 v4, v6")
        A("s_nop 0")
        A("v_add_f32 v4, v4, v6")
        A("v_rcp_f32 v4, v4")
        A("s_nop 0")
        A("v_mov_b32 v6, v4")
        A.nop(2)
        A("v_permlane32_swap_b32 v4, v6")
        A("s_nop 0")
        for k in range(8):
            A(f"v_pk_mul_f32 v[{EP+2*k}:{EP+2*k+1}], v[{EP+2*k}:{EP+2*k+1}], v[4:5] op_sel_hi:[1,0]")
            A(f"v_pk_mul_f32 v[{P+2*k}:{P+2*k+1}], v[{P+2*k}:{P+2*k+1}], v[6:7] op_sel_hi:[1,0]")
        j1 = A.uid("K1_T0"); j2 = A.uid("K1_TJ")
        A("s_cmp_eq_u32 s51, 0"); A(f"s_cbranch_scc1 {j1}")
        cvt_tile(A, PHQ + 16*tt, EP)
        cvt_tile(A, PHQ + 16*tt + 8, P)
        if tt == F1POS:
            if E8:
                A("s_cmp_ge_u32 s40, 4"); A(f"s_cbranch_scc1 {j2}")
            A("s_waitcnt vmcnt(0)")
            set_flag(A, "s67")
            vstamp(A, cfg, 3, PV)
        A(f"s_branch {j2}")
        A.label(j1)
        cvt_tile(A, PH, EP)
        cvt_tile(A, PH + 8, P)
        for sign in range(2):
            for b in range(4):
                A(f"ds_write_b64 v24, v[{PH+8*sign+2*b}:{PH+8*sign+2*b+1}] offset:{sign*64+b*16}")
        for fb in range(2):
            for s in range(2):
                for sec in range(2):
                    af = AF + (fb*2+s)*4 + 2*sec
                    A(f"ds_read_b64_tr_b16 v[{af}:{af+1}], v25 offset:{(16*s+8*sec)*136 + fb*64}")
        A.label(j2)
    A("s_cmp_lg_u32 s51, 0")
    A("s_cbranch_scc1 KF_JOIN")
    if QL:
        QN = int(cfg.get("qn", 4))
        A("s_cmp_ge_u32 s40, 4")
        A("s_cbranch_scc1 K1_QL0")
        bq_stage(range(QN), 64, 26, True)
        A(f"s_waitcnt lgkmcnt({2 * QN})")
        for l in kv_mfmas(NT8 - 1): A(l)
        bq_stage(range(QN, 4), 64, 26, True)
        A("s_branch K1_QL1")
        A("K1_QL0:")
        A("s_waitcnt lgkmcnt(0)")
        for l in kv_mfmas(NT8 - 1): A(l)
        A("K1_QL1:")
    else:
        A("s_waitcnt lgkmcnt(0)")
        for l in kv_mfmas(NT8 - 1): A(l)
    if E8:
        A(f"""
        s_cmp_ge_u32 s40, 4
        s_cselect_b32 s38, {HB0 - RED0}, 0
        s_cselect_b32 s55, 512, 0
        s_add_u32 s38, s38, {RED0}
        s_add_u32 s55, s55, {ZRED}
        """)
    else:
        A(f"s_mov_b32 s38, {RED0}")
        A(f"s_mov_b32 s55, {ZRED}")
    A(f"""
    s_lshl_b32 s47, s50, 13
    s_add_u32 s47, s47, s38
    v_add_u32 v2, s47, v1
    v_and_b32 v3, 31, v0
    v_lshlrev_b32 v3, 2, v3
    s_lshl_b32 s47, s50, 8
    s_add_u32 s47, s47, s55
    v_add_u32 v3, s47, v3
    """)
    A.nop(8)
    A(f"ds_write_b32 v3, v{Z0}")
    A(f"ds_write_b32 v3, v{Z1} offset:128")
    for fb in range(2):
        kv = KV0 if fb == 0 else KV1
        for q in range(4):
            A(f"ds_write_b128 v2, v[{kv+4*q}:{kv+4*q+3}] offset:{fb*4096+q*1024}")
    A("s_branch KF_JOIN")
    A.label("K1_LOADER")
    if cfg.get("lprio"): A(f"s_setprio {cfg.get('lprio')[0]}")
    srd(A, 16, 4, 2048*2048)
    srd(A, 20, 6, 1024*6144)
    srd(A, 24, 8, 1024*6144)
    A(f"""
    s_sub_u32 s50, s40, 4            ; w
    s_lshr_b32 s44, s50, 1
    s_cmp_eq_u32 s44, 0
    s_cselect_b32 s28, s6, s8
    s_cselect_b32 s29, s7, s9
    """)
    A(f"s_mov_b32 s30, {1024*6144}")
    A("s_mov_b32 s31, 0x00020000")
    R1 = cfg.get("r1", "1") if cfg.get("pf2") else (cfg.get("r1", "0") if (PF3 or PF4) else "0")
    if R1 != "0":
        HM = cfg.get("hmap", "f") == "h"
        RB = 1 if HM else 2; HB = 4 if HM else 3
        NW = 3 << (4 - RB)
        A(f"""
        s_lshr_b32 s47, s45, {RSH}
        s_mul_i32 s47, s47, {ROT}
        s_and_b32 s51, s45, 1
        s_mul_i32 s51, s51, {ROT2}
        s_add_u32 s47, s47, s51
        s_and_b32 s51, s50, 1
        s_lshl_b32 s51, s51, 1
        s_add_u32 s51, s51, s47
        v_mul_u32_u24 v20, 43, v0
        v_lshrrev_b32 v20, {10 if HM else 9}, v20
        v_mul_u32_u24 v21, {NW}, v20
        v_sub_u32 v21, v0, v21           ; lane % NW
        v_add_u32 v20, s51, v20
        v_and_b32 v20, 31, v20
        v_mul_u32_u24 v20, {32*6144}, v20
        s_and_b32 s51, s42, 1
        s_lshl_b32 s51, s51, {RB}
        s_and_b32 s52, s41, {(1 << RB) - 1}
        s_add_u32 s51, s51, s52
        s_lshl_b32 s51, s51, {4 - RB}
        v_and_b32 v22, {(1 << (4 - RB)) - 1}, v21
        v_add_u32 v22, s51, v22
        v_mul_u32_u24 v22, 6144, v22
        v_lshrrev_b32 v21, {4 - RB}, v21
        v_lshl_add_u32 v22, v21, 11, v22
        s_lshr_b32 s51, s42, 1
        s_lshl_b32 s51, s51, 7
        v_add3_u32 v20, v20, v22, s51
        v_mov_b32 v23, 0x7ffffff0
        v_cmp_gt_u32 vcc, {2 * NW}, v0
        s_lshl_b32 s51, s41, 8
        s_and_b32 s52, s42, {(1 << HB) - 1}
        s_lshl_b32 s52, s52, {8 - HB}
        v_cndmask_b32 v20, v23, v20, vcc
        s_add_u32 s51, s51, s52
        s_lshl_b32 s52, s50, {6 - HB}
        s_add_u32 s51, s51, s52
        buffer_load_dword v24, v20, s[28:31], 0 offen
        v_and_b32 v21, {(1 << (6 - HB)) - 1}, v0
        v_add_u32 v21, s51, v21
        v_lshlrev_b32 v21, 11, v21
        v_lshrrev_b32 v22, {6 - HB}, v0
        s_lshr_b32 s47, s47, 1
        v_add_u32 v22, s47, v22
        v_and_b32 v22, 15, v22
        v_lshl_add_u32 v21, v22, 7, v21
        v_cmp_gt_u32 vcc, {2 << (6 - HB)}, v0
        s_nop 1
        v_cndmask_b32 v21, v23, v21, vcc
        buffer_load_dword v25, v21, s[16:19], 0 offen
        """)
    srd(A, 36, 10, 32*2048)
    A(f"""
    v_lshrrev_b32 v1, 3, v0
    v_lshrrev_b32 v2, 4, v0
    v_and_b32 v3, 7, v0
    v_xor_b32 v3, v3, v2
    v_lshlrev_b32 v3, 4, v3
    v_lshl_add_u32 v4, v1, 11, v3
    s_lshl_b32 s47, s41, 8
    s_lshl_b32 s51, s50, 6
    s_add_u32 s47, s47, s51
    s_lshl_b32 s47, s47, 11          ; (r*256 + 64w)*2048
    v_add_u32 v4, s47, v4            ; piece 0
    v_xor_b32 v5, 64, v4
    v_add_u32 v5, 16384, v5
    v_add_u32 v6, 32768, v4
    v_add_u32 v7, 32768, v5
    v_add_u32 v12, 65536, v4
    v_add_u32 v13, 65536, v5
    v_add_u32 v14, 98304, v4
    v_add_u32 v15, 98304, v5
    v_lshrrev_b32 v1, {3 if cfg.get("expw") else 2}, v0
    s_and_b32 s47, s50, 1
    s_lshl_b32 s47, s47, 4
    v_add_u32 v1, s47, v1            ; krow = 16*(w&1) + (l>>2)
    v_mul_u32_u24 v1, 6144, v1
    v_and_b32 v3, {7 if cfg.get("expw") else 3}, v0
    v_lshl_add_u32 v1, v3, 4, v1
    s_lshl_b32 s47, s42, 6           ; 64h
    {"s_and_b32 s47, s47, 0x780" if cfg.get("expw") else ""}
    s_lshl_b32 s51, s44, 11          ; type*2048
    s_add_u32 s52, s47, s51
    v_add_u32 v9, s52, v1            ; seg1 : B.q / B.k
    s_sub_u32 s52, 2048, s51
    s_add_u32 s52, s52, s47
    v_add_u32 v8, s52, v1            ; seg0 : A.k / A.q
    s_add_u32 s52, s47, 4096
    v_add_u32 v10, s52, v1           ; seg2 : A.v / B.v
    v_lshlrev_b32 v11, 4, v0
    s_and_b32 s51, s50, 1
    s_lshl_b32 s51, s51, 10
    s_lshl_b32 s47, s42, 11
    s_add_u32 s47, s47, s51
    s_add_u32 m0, s51, {K1_WPHI}
    s_lshl_b32 s55, s50, 13          ; w*8192  (x pieces)
    {"s_waitcnt vmcnt(0)" if R1 == "1" else ""}
    buffer_load_dwordx4 v11, s[36:39], s47 offen lds
    s_lshl_b32 s51, s50, 10
    s_add_u32 s56, s51, {K1_WB}      ; W pieces : + w*1024
    s_lshr_b32 s47, s45, {RSH}
    s_mul_i32 s47, s47, {ROT}
    s_and_b32 s51, s45, 1
    s_mul_i32 s51, s51, {ROT2}
    s_add_u32 s47, s47, s51
    s_and_b32 s47, s47, 31
    s_lshl_b32 s58, s47, 6           ; soffset x
    s_mul_i32 s59, s47, {32*6144}    ; soffset W
    s_mov_b32 s60, 0                 ; block
    s_mov_b32 s61, s55               ; x slot
    s_mov_b32 s62, s56               ; W slot
    s_add_u32 s55, s55, {K1_XS*K1_NX}
    s_add_u32 s56, s56, {K1_SLOT*K1_NSLOT}
    """)
    if PF3:
        TE = int(cfg.get("te", 2))
        OFFL = int(cfg.get("offl", 0))
        XT = int(cfg.get("pfx", 1))
        BW = TE // 2; LB = BW.bit_length() - 1
        assert cfg.get("hmap", "f") == "f"
        A(f"""
        s_and_b32 s51, s42, 7            ; head within the XCD
        s_and_b32 s52, s41, 3            ; token block within the XCD
        s_and_b32 s63, s42, 1
        s_lshl_b32 s63, s63, 2
        s_add_u32 s63, s63, s52          ; share of the pair's weight lines
        s_lshl_b32 s63, s63, 2           ; first row
        s_and_b32 s64, s50, 1
        s_lshl_b32 s64, s64, {5 + LB}    ; first row of this wave's group of blocks
        s_add_u32 s63, s63, s64
        v_bfe_u32 v27, v0, 2, {LB})
        v_lshlrev_b32 v30, 5, v27        ; 32 * block
        v_and_b32 v26, 3, v0
        v_add3_u32 v26, v26, v30, s63    ; row
        v_mul_u32_u24 v26, 6144, v26
        v_lshrrev_b32 v27, {2 + LB}, v0  ; segment
        v_lshl_add_u32 v26, v27, 11, v26
        s_lshr_b32 s63, s42, 1
        s_lshl_b32 s63, s63, 7
        v_add_u32 v26, s63, v26          ; + column of the pair
        v_mov_b32 v29, 0x7ffffff0
        v_cmp_gt_u32 vcc, 3, v27
        """.replace("v_bfe_u32 v27, v0, 2, 0)", "v_mov_b32 v27, 0").replace(")\n", "\n"))
        if OFFL:
            A(f"""
            s_cmp_lt_u32 s51, 6
            s_cselect_b64 vcc, vcc, 0
            v_cndmask_b32 v26, v29, v26, vcc
            s_lshl_b32 s63, s51, 2
            s_add_u32 s63, s63, s52
            s_lshl_b32 s63, s63, 2
            v_and_b32 v28, 3, v0
            v_add_u32 v31, s63, v28
            v_and_b32 v28, 31, v31
            v_add3_u32 v28, v28, v30, s64
            v_mul_u32_u24 v28, 6144, v28
            v_lshrrev_b32 v31, 5, v31
            v_lshl_add_u32 v28, v31, 11, v28
            s_lshr_b32 s63, s42, 1
            s_or_b32 s63, s63, 3
            s_lshl_b32 s63, s63, 7
            v_add_u32 v28, s63, v28
            v_cmp_eq_u32 vcc, 3, v27
            s_cmp_lt_u32 s51, 6
            s_cselect_b64 vcc, vcc, 0
            v_cndmask_b32 v26, v26, v28, vcc
            """)
        else:
            A("s_nop 1\nv_cndmask_b32 v26, v29, v26, vcc")
        if OFFL == 2:
            A(f"""
            s_mul_i32 s63, s51, 43
            v_add_u32 v27, s63, v0
            v_cmp_gt_u32 vcc, 43, v0
            s_movk_i32 s63, 0x100
            v_cmp_gt_u32 s[64:65], s63, v27
            s_and_b64 vcc, vcc, s[64:65]
            s_cmp_lt_u32 s51, 6
            s_cselect_b64 vcc, vcc, 0
            """)
        else:
            A(f"""
            s_lshl_b32 s63, s51, 5
            v_add_u32 v27, s63, v0
            v_cmp_gt_u32 vcc, 32, v0
            """)
        A(f"""
        s_lshl_b32 s63, s41, 8
        v_add_u32 v27, s63, v27          ; x row
        v_lshlrev_b32 v27, 11, v27
        v_cndmask_b32 v27, v29, v27, vcc
        s_lshr_b32 s63, s58, 6
        s_add_u32 s63, s63, {TL}
        s_and_b32 s63, s63, 31
        s_mul_i32 s64, s63, {32*6144}
        s_lshr_b32 s63, s63, 1
        s_add_u32 s63, s63, s50
        s_and_b32 s63, s63, 15
        s_lshl_b32 s65, s63, 7           ; x offset
        s_cmp_lt_u32 s50, {BW}
        s_cselect_b32 s67, {2048*2048 if XT else 0}, 0
        s_cmp_lt_u32 s50, 2
        s_cselect_b32 s92, s6, s8
        s_cselect_b32 s93, s7, s9
        s_mov_b32 s94, 0
        s_mov_b32 s95, 0x00020000
        s_mov_b32 s88, s4
        s_mov_b32 s89, s5
        s_mov_b32 s90, 0
        s_mov_b32 s91, 0x00020000
        """)
    if PF4:
        touch_addr("s50", 26, 27, 28, 29, True, "s66")
        A(f"""
        s_mov_b32 s67, s94
        s_cmp_ge_u32 s50, 2
        s_mov_b32 s64, {TL*32*6144}
        s_cselect_b32 s64, {TL*64}, s64
        s_mov_b32 s65, {64*6144}
        s_cselect_b32 s65, 128, s65
        """)
    rstamp(42)
    if cfg.get("lprio"): A(f"s_setprio {cfg.get('lprio')[1]}")
    A("K1_LLOOP:")
    XV = [4, 5, 6, 7, 12, 13, 14, 15]
    def ld_x(i0=0, i1=8):
        for i in range(i0, i1):
            A(f"s_add_u32 m0, s61, {i*1024}")
            A("s_nop 0")
            A(f"buffer_load_dwordx4 v{XV[i]}, s[16:19], s58 offen lds")
        if i1 == 8: A(f"""
        s_add_u32 s58, s58, 128
        s_and_b32 s58, s58, 2047
        s_add_u32 s61, s61, {K1_XS}
        s_cmp_eq_u32 s61, s55
        s_cselect_b32 s47, {K1_XS*K1_NX}, 0
        s_sub_u32 s61, s61, s47
        """)
    def ld_w():
        for sg in range(3):
            A(f"s_add_u32 m0, s62, {sg*4096}")
            A("s_nop 0")
            A(f"buffer_load_dwordx4 v{8+sg}, s[{20+4*sg}:{23+4*sg}], s59 offen lds")
        A(f"""
        s_add_u32 s59, s59, {32*6144}
        s_cmp_eq_u32 s59, {1024*6144}
        s_cselect_b32 s59, 0, s59
        s_add_u32 s62, s62, {K1_SLOT}
        s_cmp_eq_u32 s62, s56
        s_cselect_b32 s47, {K1_SLOT*K1_NSLOT}, 0
        s_sub_u32 s62, s62, s47
        """)
    E8 = cfg.get("e8")
    def lsync(n=14):
        if cfg.get("prof") == "3":
            A("s_memtime s[96:97]")
            A(f"s_waitcnt vmcnt({n})")
            A("s_memtime s[98:99]")
            A("s_barrier")
            A("s_memtime s[90:91]")
            A("s_waitcnt lgkmcnt(0)")
            A("s_sub_u32 s96, s98, s96")
            A("s_add_u32 s100, s100, s96")
            A("s_sub_u32 s90, s90, s98")
            A("s_add_u32 s101, s101, s90")
        else:
            A(f"s_waitcnt vmcnt({n})")
            A("s_barrier")
    if cfg.get("prof") == "3":
        A("s_cmp_lg_u32 s60, 0")
        A("s_cbranch_scc1 K1_LP3")
        A("s_mov_b32 s100, 0")
        A("s_mov_b32 s101, 0")
        A.label("K1_LP3")
    BAL = int(cfg.get("bal", 0))
    NT = 2 if PF3 else 1 if PF4 else 0
    if BAL:
        ld_w(); ld_x(0, 8 - BAL)
    else:
        ld_x(); ld_w()
    A("""
    s_cmp_lt_u32 s60, 4
    s_cbranch_scc1 K1_LS1
    """)
    lsync(14 - BAL + NT)
    A("K1_LS1:")
    if BAL: ld_x(8 - BAL, 8)
    ld_w()
    if PF4:
        A(f"""
        s_cmp_le_u32 s60, {30 - TL}
        s_cselect_b32 s94, s67, 0
        buffer_load_dword v31, v26, s[92:95], s64 offen
        s_add_u32 s64, s64, s65
        """)
    if PF3:
        A(f"""
        s_and_b32 s63, s60, {TE - 1}
        s_cmp_le_u32 s60, {32 - TL - TE}
        s_cselect_b32 s63, s63, 1
        s_cmp_eq_u32 s63, 0
        s_cselect_b32 s94, {1024*6144}, 0
        s_cselect_b32 s90, s67, 0
        s_cselect_b32 s63, {TE*32*6144}, 0
        s_cselect_b32 s66, {TE*64}, 0
        buffer_load_dword v31, v26, s[92:95], s64 offen
        buffer_load_dword v31, v27, s[88:91], s65 offen
        s_add_u32 s64, s64, s63
        s_cmp_eq_u32 s64, {1024*6144}
        s_cselect_b32 s64, 0, s64
        s_add_u32 s65, s65, s66
        s_and_b32 s65, s65, 2047
        """)
    A("""
    s_cmp_lt_u32 s60, 2
    s_cbranch_scc1 K1_LS2
    """)
    if cfg.get("prof") == "4":
        A("s_cmp_lg_u32 s60, 2"); A("s_cbranch_scc1 K1_P4A"); rstamp(43); A(f"s_waitcnt vmcnt({14 + 2*NT})"); rstamp(44); A("K1_P4A:")
    lsync(14 + 2*NT)
    A("K1_LS2:")
    GW, GX, GA = (160, 168, 200) if E8 else (32, 64, 40)
    G1 = E8 and cfg.get("g1", "1") == "1"
    NG = 4 if G1 else 2
    XT8 = E8 and cfg.get("xt", "1") == "1"
    def gate_loads():
        srd(A, 36, 12, 2048)
        A(f"""
        s_lshl_b32 s47, s41, 8
        s_lshl_b32 s51, s42, 3
        s_add_u32 s47, s47, s51
        s_lshl_b32 s51, s50, 1
        {"s_and_b32 s51, s51, 4" if G1 else ""}
        s_add_u32 s63, s47, s51          ; t0 = r*256 + h*8 + 2w  /  + 4th
        s_lshl_b32 s51, s63, 11
        v_lshlrev_b32 v1, 5, v0
        buffer_load_dwordx4 v[{GW}:{GW+3}], v1, s[36:39], 0 offen
        buffer_load_dwordx4 v[{GW+4}:{GW+7}], v1, s[36:39], 0 offen offset:16
        """)
        for j in range(NG):
            A(f"buffer_load_dwordx4 v[{GX+8*j}:{GX+8*j+3}], v1, s[16:19], s51 offen")
            A(f"buffer_load_dwordx4 v[{GX+8*j+4}:{GX+8*j+7}], v1, s[16:19], s51 offen offset:16")
            if j < NG - 1: A("s_add_u32 s51, s51, 2048")
    def dbg_srd(r=36):
        A(f"""
        s_mov_b32 s{r}, s86
        s_mov_b32 s{r+1}, s87
        s_mov_b32 s{r+2}, 256
        s_mov_b32 s{r+3}, 0x00020000
        v_mov_b32 v46, 0
        """)
    A(f"""
    s_add_u32 s60, s60, 2
    s_cmp_lt_u32 s60, 32
    s_cbranch_scc1 K1_LLOOP
    """)
    def ltail(gate):
        GN = (3 + 2*NG if gate else 1) if E8 else 0
        if E8:
            if gate:
                gate_loads()
                A("s_mov_b32 s84, s63")
            dbg_srd(92)
            poll_issue(A, 47, 46, 92, "0")
        A(f"""
        s_waitcnt vmcnt({3 + NT + GN})
        s_barrier
        """)
        if E8:
            setup_p2(A)
            A(f"s_add_u32 s74, s74, {2*65536}")
        A(f"""
        s_waitcnt vmcnt({GN})
        s_barrier
        """)
    if G1:
        A("s_bitcmp1_b32 s50, 0")
        A("s_cbranch_scc1 K1_LT1")
        ltail(False)
        A("s_branch K1_LT2")
        A("K1_LT1:")
        ltail(True)
        A("K1_LT2:")
    else:
        ltail(True)
    if cfg.get("prof") == "3":
        A(f"v_writelane_b32 v{PV}, s100, 0")
        A(f"v_writelane_b32 v{PV}, s101, 1")
    if cfg.get("lprio"): A("s_setprio 0")
    if E8:
        setup_p3(A)
        A("s_barrier")
        A(f"""
        s_and_b32 s51, s50, 1
        {"s_xor_b32 s51, s51, 1" if XT8 else ""}
        s_lshr_b32 s50, s50, 1
        """)
        feat_setup(TBUF1)
        A(f"""
        v_lshlrev_b32 v1, 4, v0          ; lane*16
        s_lshl_b32 s47, s50, 13
        s_add_u32 s47, s47, {HB0}
        s_lshl_b32 s38, s50, 12
        s_add_u32 s38, s38, {HB1}
        s_cmp_eq_u32 s51, 0
        s_cselect_b32 s47, s47, s38
        v_add_u32 v45, s47, v1
        """)
        for j in range(NG): A(f"v_mov_b32 v{GA+j}, 0")
        A("s_barrier")
        vstamp(A, cfg, 2, PV)
        A("s_waitcnt vmcnt(0)")
        poll_check(A, 47, 46, 92, "0", "PG", expect="0x100")
        A("s_barrier")
        EPR = cfg.get("eprio", "00")
        if EPR != "00":
            A(f"s_setprio {EPR[1]}")
            A("s_cmp_lg_u32 s51, 0")
            A("s_cbranch_scc1 K1_LP1")
            A(f"s_setprio {EPR[0]}")
            A("K1_LP1:")
        for k in range(2):
            A(f"ds_read_b128 v[{Q+8*k}:{Q+8*k+3}], v45 offset:{k*2048}")
            A(f"ds_read_b128 v[{Q+8*k+4}:{Q+8*k+7}], v45 offset:{k*2048+1024}")
        A("s_cmp_lg_u32 s51, 0")
        A(f"s_cbranch_scc1 {'K1_E2L' if (XT8 and G1) else 'K1_LNV'}")
        for k in range(2):
            A(f"ds_read_b128 v[{V+8*k}:{V+8*k+3}], v45 offset:{4096+k*2048}")
            A(f"ds_read_b128 v[{V+8*k+4}:{V+8*k+7}], v45 offset:{4096+k*2048+1024}")
        if G1 and not XT8: A("s_branch K1_E2L")
        A("K1_LNV:")
        for k in range(8):
            for j in range(NG):
                A(f"v_dot2c_f32_bf16 v{GA+j}, v{GX+8*j+k}, v{GW+k}")
            if NG == 2: A("s_nop 1")
        A.nop(3)
        for rot in (8, 4, 2, 1):
            for j in range(NG): A(f"v_add_f32_dpp v{GA+j}, v{GA+j}, v{GA+j} row_ror:{rot} row_mask:0xf bank_mask:0xf")
            if NG == 2: A("s_nop 1")
        if G1:
            A(f"""
            v_permlane16_swap_b32 v{GA}, v{GA+1}
            s_nop 0
            v_permlane16_swap_b32 v{GA+2}, v{GA+3}
            s_nop 1
            v_add_f32 v{GA}, v{GA}, v{GA+1}          ; rows : a01, b01, a23, b23
            v_add_f32 v{GA+1}, v{GA+2}, v{GA+3}      ; rows : c01, d01, c23, d23
            s_nop 1
            v_permlane32_swap_b32 v{GA}, v{GA+1}
            s_nop 1
            v_add_f32 v{GA}, v{GA}, v{GA+1}
            """)
        else:
            A(f"""
            v_permlane16_swap_b32 v{GA}, v{GA+1}
            s_nop 1
            v_add_f32 v{GA}, v{GA}, v{GA+1}          ; rows : a01, b01, a23, b23
            v_mov_b32 v{GA+1}, v{GA}
            s_nop 1
            v_permlane32_swap_b32 v{GA}, v{GA+1}
            s_nop 1
            v_add_f32 v{GA}, v{GA}, v{GA+1}
            """)
        A(f"""
        v_mul_f32 v{GA}, {fhex(-LOG2E)}, v{GA}
        v_exp_f32 v{GA}, v{GA}
        v_lshrrev_b32 v{GA+2}, 4, v0
        v_lshlrev_b32 v{GA+2}, 2, v{GA+2}
        v_add_f32 v{GA}, 1.0, v{GA}
        v_rcp_f32 v{GA}, v{GA}
        s_lshl_b32 s47, s84, 2
        s_add_u32 s47, s47, {WS_G}
        s_mov_b32 exec_lo, 0x10001
        s_mov_b32 exec_hi, {"0x10001" if G1 else "0"}
        buffer_store_dword v{GA}, v{GA+2}, s[32:35], s47 offen sc1
        s_mov_b64 exec, -1
        """)
        A("s_branch K1_E2L")
    else:
        gate_loads()
        A("""
        s_barrier
        s_barrier
        """)
        vstamp(A, cfg, 2, PV)
        for j in range(2): A(f"v_mov_b32 v{40+j}, 0")
        A("s_waitcnt vmcnt(0)")
        for k in range(8):
            for j in range(2):
                A(f"v_dot2c_f32_bf16 v{40+j}, v{GX+8*j+k}, v{32+k}")
            A("s_nop 1")
        A("v_lshlrev_b32 v3, 2, v0")
        A.nop(3)
        for mask in (1, 2, 4, 8, 16, 32):
            A(f"v_xor_b32 v4, {mask*4}, v3")
            for j in range(2): A(f"ds_bpermute_b32 v{5+j}, v4, v{40+j}")
            A("s_waitcnt lgkmcnt(0)")
            for j in range(2): A(f"v_add_f32 v{40+j}, v{40+j}, v{5+j}")
        A(f"v_cmp_eq_u32 vcc, 1, v0")
        A("s_nop 1")
        A(f"v_cndmask_b32 v40, v40, v41, vcc")
        A(f"""
        v_mul_f32 v40, {fhex(-LOG2E)}, v40
        v_exp_f32 v40, v40
        s_nop 0
        v_add_f32 v40, 1.0, v40
        v_rcp_f32 v40, v40
        s_lshl_b32 s47, s63, 2
        s_add_u32 s47, s47, {WS_G}
        s_mov_b64 exec, 3
        buffer_store_dword v40, v3, s[32:35], s47 offen sc1
        s_mov_b64 exec, -1
        """)
        setup_p2(A)
        setup_p3(A)
        A(f"""
        s_mov_b32 s85, s36
        v_and_b32 v35, 15, v0
        v_lshlrev_b32 v35, 2, v35
        """)
        dbg_srd()
        poll_issue(A, 47, 46, 36, "0")
        A("s_waitcnt vmcnt(0)")
        poll_check(A, 47, 46, 36, "0", "PG", expect="0x100")
        poll_issue(A, 47, 35, 32, "s78")
        A("s_waitcnt vmcnt(0)")
        poll_check(A, 47, 35, 32, "s78", "P1")
        vstamp(A, cfg, 3, PV)
        A(f"""
        v_lshlrev_b32 v3, 4, v0
        s_lshl_b32 s47, s50, 12          ; w*4096
        s_add_u32 m0, s47, {2*16384}
        s_lshl_b32 s51, s41, 1
        s_add_u32 s51, s51, 2
        s_and_b32 s51, s51, 15
        s_lshl_b32 s51, s51, 14
        s_add_u32 s51, s51, s47
        s_add_u32 s51, s51, s70
        """)
        for j in range(4):
            A(f"buffer_load_dwordx4 v3, s[32:35], s51 offen offset:{j*1024} sc1 lds")
        A("s_mov_b32 s36, s85")
    A.label("KF_JOIN")
    if cfg.get("e8") and cfg.get("eprio", "00") != "00": A("s_setprio 0")
    Q, K0, K1, V0, V1, SEL, NEGM, SA, SB, O, L, P = 8, 16, 20, 24, 28, 40, 48, 64, 80, 96, 112, 120
    PR = 33
    RD = 192
    if cfg.get("prof"): A(f"v_mov_b32 v{PR}, v{PV}")
    vstamp(A, cfg, 4, PR)
    A(f"""
    v_lshlrev_b32 v3, 4, v0          ; lane*16
    v_bfe_u32 v4, v0, 2, 1
    v_bfe_u32 v5, v0, 4, 1
    v_cmp_eq_u32 vcc, v4, v5
    v_mov_b32 v5, 0x3f803f80
    v_mov_b32 v4, 0
    v_cndmask_b32 v{SEL}, v4, v5, vcc
    v_cndmask_b32 v{SEL+1}, v4, v5, vcc
    v_cndmask_b32 v{SEL+2}, v4, v5, vcc
    v_cndmask_b32 v{SEL+3}, v4, v5, vcc
    s_lshl_b32 s47, s40, 11
    s_add_u32 s47, s47, {QST}
    v_add_u32 v6, s47, v3
    s_lshl_b32 s47, s40, 10
    s_add_u32 s47, s47, {RED0}
    v_add_u32 v7, s47, v3
    v_mov_b32 v1, v3                 ; cur
    v_add_u32 v2, 16384, v3          ; next
    """)
    for i in range(16): A(f"v_mov_b32 v{O+i}, 0")
    for i in range(4):
        A(f"v_mov_b32 v{L+i}, 0"); A(f"v_mov_b32 v{V1+i}, 0"); A(f"v_mov_b32 v{P+4+i}, 0")
    for i in (35, 36, 37, 38, 39, 45, 46): A(f"v_mov_b32 v{i}, 0")
    if E8:
        A("v_and_b32 v46, 15, v0")
        A("v_lshlrev_b32 v46, 2, v46")
        poll_issue(A, 47, 46, 32, "s78")
    A(f"""
    s_mov_b32 s60, 0
    s_mov_b32 s61, 1
    s_waitcnt lgkmcnt(0)
    s_barrier
    """)
    vstamp(A, cfg, 5, PR)
    NRD = 4 if E8 else 2
    A(f"""
    ds_read_b128 v[{Q}:{Q+3}], v6
    ds_read_b128 v[{NEGM}:{NEGM+3}], v3
    ds_read_b128 v[{Q+4}:{Q+7}], v6 offset:1024
    ds_read_b128 v[{NEGM+4}:{NEGM+7}], v3 offset:1024
    ds_read_b128 v[{K0}:{K0+3}], v3 offset:4096
    ds_read_b128 v[{K1}:{K1+3}], v3 offset:{4096+1024}
    ds_read_b128 v[{V0}:{V0+3}], v3 offset:2048
    ds_read_b128 v[{RD}:{RD+3}], v7
    ds_read_b128 v[{RD+4}:{RD+7}], v7 offset:8192
    """)
    if E8:
        A(f"ds_read_b128 v[{RD+12}:{RD+15}], v7 offset:{HB0 - RED0}")
        A(f"ds_read_b128 v[{RD+16}:{RD+19}], v7 offset:{HB0 - RED0 + 8192}")
    A(f"""
    s_waitcnt lgkmcnt({5 + NRD})
    v_mfma_f32_32x32x16_bf16 v[{SA}:{SA+15}], v[{NEGM}:{NEGM+3}], v[{Q}:{Q+3}], 0
    s_waitcnt lgkmcnt({3 + NRD})
    v_mfma_f32_32x32x16_bf16 v[{SA}:{SA+15}], v[{NEGM+4}:{NEGM+7}], v[{Q+4}:{Q+7}], v[{SA}:{SA+15}]
    s_waitcnt lgkmcnt({1 + NRD})
    v_mfma_f32_32x32x16_bf16 v[{SB}:{SB+15}], v[{K0}:{K0+3}], v[{Q}:{Q+3}], 0
    v_mfma_f32_32x32x16_bf16 v[{SB}:{SB+15}], v[{K1}:{K1+3}], v[{Q+4}:{Q+7}], v[{SB}:{SB+15}]
    s_waitcnt lgkmcnt(0)
    v_pk_add_f32 v[{RD}:{RD+1}], v[{RD}:{RD+1}], v[{RD+4}:{RD+5}]
    v_pk_add_f32 v[{RD+2}:{RD+3}], v[{RD+2}:{RD+3}], v[{RD+6}:{RD+7}]
    """)
    if E8:
        A(f"""
        v_pk_add_f32 v[{RD+12}:{RD+13}], v[{RD+12}:{RD+13}], v[{RD+16}:{RD+17}]
        v_pk_add_f32 v[{RD+14}:{RD+15}], v[{RD+14}:{RD+15}], v[{RD+18}:{RD+19}]
        v_pk_add_f32 v[{RD}:{RD+1}], v[{RD}:{RD+1}], v[{RD+12}:{RD+13}]
        v_pk_add_f32 v[{RD+2}:{RD+3}], v[{RD+2}:{RD+3}], v[{RD+14}:{RD+15}]
        s_cmp_lg_u32 s40, 7
        s_cbranch_scc1 KJ_NOZ
        v_lshlrev_b32 v4, 2, v0
        v_add_u32 v5, {ZRED}, v4
        ds_read_b32 v{RD+8}, v5
        ds_read_b32 v{RD+9}, v5 offset:256
        ds_read_b32 v{RD+10}, v5 offset:512
        ds_read_b32 v{RD+11}, v5 offset:768
        s_waitcnt lgkmcnt(0)
        v_add_f32 v{RD+8}, v{RD+8}, v{RD+9}
        v_add_f32 v{RD+10}, v{RD+10}, v{RD+11}
        v_add_f32 v{RD+8}, v{RD+8}, v{RD+10}
        KJ_NOZ:
        """)
    else:
        A(f"""
        s_cmp_lg_u32 s40, 7
        buffer_store_dwordx4 v[{RD}:{RD+3}], v3, s[32:35], s79 offen sc1
        s_cbranch_scc1 KJ_NOZ
        v_lshlrev_b32 v4, 2, v0
        v_add_u32 v5, {ZRED}, v4
        ds_read_b32 v{RD+8}, v5
        ds_read_b32 v{RD+9}, v5 offset:256
        s_waitcnt lgkmcnt(0)
        v_add_f32 v{RD+8}, v{RD+8}, v{RD+9}
        buffer_store_dword v{RD+8}, v4, s[32:35], s89 offen sc1
        KJ_NOZ:
        """)
    A.nop(6)
    A(f"v_max3_f32 v4, v{SA}, v{SA+1}, v{SA+2}")
    A(f"v_max3_f32 v5, v{SA+3}, v{SA+4}, v{SA+5}")
    for k in range(6, 14, 4):
        A(f"v_max3_f32 v4, v4, v{SA+k}, v{SA+k+1}")
        A(f"v_max3_f32 v5, v5, v{SA+k+2}, v{SA+k+3}")
    A(f"v_max3_f32 v4, v4, v{SA+14}, v{SA+15}")
    for k in range(0, 16, 4):
        A(f"v_max3_f32 v4, v4, v{SB+k}, v{SB+k+1}")
        A(f"v_max3_f32 v5, v5, v{SB+k+2}, v{SB+k+3}")
    A("v_max_f32 v4, v4, v5")
    A("v_mov_b32 v5, v4")
    A.nop(2)
    A("v_permlane32_swap_b32 v4, v5")
    A("s_nop 0")
    A("v_max_f32 v4, v4, v5")
    A(f"v_add_f32 v4, {fhex(BIAS)}, v4")
    for i in range(16):
        A(f"v_sub_f32 v{NEGM+i}, 0, v4")
    for k in range(8):
        A(f"v_pk_add_f32 v[{SA+2*k}:{SA+2*k+1}], v[{SA+2*k}:{SA+2*k+1}], v[{NEGM}:{NEGM+1}]")
    if E8:
        A("s_waitcnt vmcnt(0)")
        poll_check(A, 47, 46, 32, "s78", "P1")
        A(f"""
        buffer_store_dwordx4 v[{RD}:{RD+3}], v3, s[32:35], s79 offen sc1
        s_cmp_lg_u32 s40, 7
        s_cbranch_scc1 KJ_NOZ2
        v_lshlrev_b32 v4, 2, v0
        buffer_store_dword v{RD+8}, v4, s[32:35], s89 offen sc1
        KJ_NOZ2:
        s_lshl_b32 s47, s40, 11
        s_add_u32 m0, s47, {2*16384}
        s_lshl_b32 s38, s41, 1
        s_add_u32 s38, s38, 2
        s_and_b32 s38, s38, 15
        s_lshl_b32 s38, s38, 14
        s_add_u32 s38, s38, s47
        s_add_u32 s81, s38, s70
        buffer_load_dwordx4 v3, s[32:35], s81 offen sc1 lds
        buffer_load_dwordx4 v3, s[32:35], s81 offen offset:1024 sc1 lds
        """)
    vstamp(A, cfg, 6, PR)
    if cfg.get("prof") == "2":
        A("s_mov_b32 s100, 15"); A(f"v_mov_b32 v{PR}, 0"); bstamp(A, cfg, 2); A("s_mov_b32 s100, 0")
    def dma_ops():
        a = ["s_mov_b32 m0, s72", "s_add_u32 s81, s70, s71", "s_add_u32 s72, s72, 16384",
             "buffer_load_dwordx4 v3, s[32:35], s81 offen sc1 lds"]
        b = ["buffer_load_dwordx4 v3, s[32:35], s81 offen offset:1024 sc1 lds",
             f"s_and_b32 s72, s72, {RING-1}", "s_add_u32 s71, s71, 16384", "s_and_b32 s71, s71, 0x3ffff"]
        return a, b
    def dma_chunk():
        a, b = dma_ops()
        for l in a + b: A(l)
    def tile(i, Sa, Sb, sideA=(), sideB=(), end=()):
        e = lambda k: f"v_exp_f32 v{Sa+k}, v{Sa+k}"
        c = lambda k: f"v_cvt_pk_bf16_f32 v{P+k}, v{Sa+2*k}, v{Sa+2*k+1}"
        QK0 = f"v_mfma_f32_32x32x16_bf16 v[{Sb}:{Sb+15}], v[{K0}:{K0+3}], v[{Q}:{Q+3}], v[{NEGM}:{NEGM+15}]"
        QK1 = f"v_mfma_f32_32x32x16_bf16 v[{Sb}:{Sb+15}], v[{K1}:{K1+3}], v[{Q+4}:{Q+7}], v[{Sb}:{Sb+15}]"
        PV0 = f"v_mfma_f32_32x32x16_bf16 v[{O}:{O+15}], v[{V0}:{V0+3}], v[{P}:{P+3}], v[{O}:{O+15}]"
        PV1 = f"v_mfma_f32_32x32x16_bf16 v[{O}:{O+15}], v[{V1}:{V1+3}], v[{P+4}:{P+7}], v[{O}:{O+15}]"
        L0 = f"v_mfma_f32_16x16x32_bf16 v[{L}:{L+3}], v[{SEL}:{SEL+3}], v[{P}:{P+3}], v[{L}:{L+3}]"
        L1 = f"v_mfma_f32_16x16x32_bf16 v[{L}:{L+3}], v[{SEL}:{SEL+3}], v[{P+4}:{P+7}], v[{L}:{L+3}]"
        W = "s_waitcnt lgkmcnt(3)"
        def addr(tt, fr):
            return (f"v1 offset:{tt*4096+fr*1024}" if tt < 4 else f"v2 offset:{(tt-4)*4096+fr*1024}")
        rK0 = f"ds_read_b128 v[{K0}:{K0+3}], {addr(i+2, 0)}"; rK1 = f"ds_read_b128 v[{K1}:{K1+3}], {addr(i+2, 1)}"
        rV0 = f"ds_read_b128 v[{V0}:{V0+3}], {addr(i+1, 2)}"; rV1 = f"ds_read_b128 v[{V1}:{V1+3}], {addr(i, 3)}"
        seq = [e(0), e(1), W, PV1, rV1, *sideA, e(2), e(3), e(4), e(5), W, QK0, rK0, e(6), e(7), c(0), c(1), L1, c(2), c(3), e(8), W, QK1, rK1,
               *sideB, e(9), e(10), e(11), W, PV0, rV0, e(12), e(13), e(14), L0, e(15), c(4), c(5), c(6), c(7), *end]
        for x in seq:
            if callable(x): x()
            else: A(x)
    PRIO = [int(c) for c in cfg.get("prio", "3210")]
    def period(sides=None, dma=True):
        if dma: dma_chunk()
        for i in range(4):
            sa, sb, en = (sides or {}).get(i, ((), (), ()))
            if cfg.get("prio"): A(f"s_setprio {PRIO[i]}")
            tile(i, SA if i % 2 == 0 else SB, SB if i % 2 == 0 else SA, sa, sb, en)
        A(f"""
        v_mov_b32 v1, v2
        v_add_u32 v2, 16384, v2
        v_and_b32 v2, {RING-1}, v2
        """)
    A.label("K2_LOOP")
    period()
    if cfg.get("prof") == "2":
        pbar(A, cfg, "s_waitcnt vmcnt(2)")
        A("""
        s_add_u32 s60, s60, 1
        s_cmp_lg_u32 s60, s61
        s_cbranch_scc1 K2_LOOP
        """)
    else:
        A(f"""
        s_add_u32 s60, s60, 1
        s_cmp_lg_u32 s60, s61
        s_waitcnt vmcnt(2)
        s_barrier
        s_cbranch_scc1 K2_LOOP
        """)
    A(f"""
    s_cmp_eq_u32 s60, 1
    s_cbranch_scc1 KD_1
    s_cmp_eq_u32 s60, 3
    s_cbranch_scc1 KD_3
    s_cmp_eq_u32 s60, 4
    s_cbranch_scc1 KD_4
    s_branch KD_7
    KD_1:
    s_mov_b32 s61, 3
    """)
    set_flag(A, "s68")
    A(f"""
    s_branch K2_LOOP
    KD_3:
    v_lshlrev_b32 v46, 2, v0
    s_mov_b32 s61, 4
    """)
    poll_issue(A, 47, 46, 32, "s77")
    A("s_branch K2_LOOP")
    A.label("KD_4")
    vstamp(A, cfg, 7, PR)
    poll_check(A, 47, 46, 32, "s77", "PK")
    KVP = 192; ZP = 224
    A(f"""
    s_cmp_eq_u32 s40, 4
    s_cselect_b32 s84, 1, 0
    """)
    def kvload(rr):
        def f():
            A(f"buffer_load_dwordx4 v[{KVP+4*rr}:{KVP+4*rr+3}], v3, s[32:35], s75 offen sc1")
            A("s_add_u32 s75, s75, 8192")
        return f
    def zload(rr):
        def f():
            j = A.uid("KZ")
            A("s_cmp_eq_u32 s84, 0"); A(f"s_cbranch_scc1 {j}")
            A(f"buffer_load_dword v{ZP+rr}, v46, s[32:35], s76 offen offset:{256*rr} sc1")
            A(f"buffer_load_dword v{ZP+rr+1}, v46, s[32:35], s76 offen offset:{256*rr+256} sc1")
            A.label(j)
        return f
    period({i: ((kvload(2*i),), (kvload(2*i+1),), (zload(2*i),)) for i in range(4)})
    pbar(A, cfg, "s_waitcnt vmcnt(10)")
    def kvsum():
        A("s_waitcnt vmcnt(2)")
        A(f"""
        s_lshr_b32 s47, s40, 1
        s_lshl_b32 s47, s47, 10
        s_and_b32 s38, s40, 1
        s_lshl_b32 s38, s38, 3
        s_add_u32 s47, s47, s38
        s_add_u32 s47, s47, {KVT_L}
        v_add_u32 v4, s47, v3
        """)
        b = KVP
        for rr in range(1, 8):
            A(f"v_pk_add_f32 v[{b}:{b+1}], v[{b}:{b+1}], v[{b+4*rr}:{b+4*rr+1}]")
            A(f"v_pk_add_f32 v[{b+2}:{b+3}], v[{b+2}:{b+3}], v[{b+4*rr+2}:{b+4*rr+3}]")
        A(f"v_cvt_pk_bf16_f32 v{b}, v{b}, v{b+1}")
        A(f"v_cvt_pk_bf16_f32 v{b+1}, v{b+2}, v{b+3}")
        A(f"ds_write_b64 v4, v[{b}:{b+1}]")
        j = A.uid("KZS")
        A("s_cmp_eq_u32 s84, 0"); A(f"s_cbranch_scc1 {j}")
        for rr in range(1, 8):
            A(f"v_add_f32 v{ZP}, v{ZP}, v{ZP+rr}")
        A(f"""
        v_lshlrev_b32 v5, 1, v0
        v_add_u32 v5, {Z_L}, v5
        v_cvt_pk_bf16_f32 v{ZP}, v{ZP}, v{ZP}
        ds_write_b16 v5, v{ZP}
        """)
        A.label(j)
    period({1: ((), (), (kvsum,))})
    pbar(A, cfg, None)
    A(f"""
    s_mov_b32 s60, 6
    s_mov_b32 s61, 7
    {"s_lshr_b32 s47, s40, 2" if XT8 else "s_mov_b32 s47, 0"}
    s_xor_b32 s47, s47, s40
    s_and_b32 s47, s47, {1 if E8 else 5}
    s_cmp_lg_u32 s47, 1
    s_cbranch_scc1 K2_LOOP
    """)
    KVT, ZR, NUM, DEN, OA = 192, 208, 224, 240, 244
    A(f"""
    v_add_u32 v4, {KVT_L}, v3
    v_lshrrev_b32 v5, 5, v0
    v_lshlrev_b32 v5, 3, v5
    v_add_u32 v5, {Z_L}, v5          ; Z + hh*8
    """)
    for s in range(4):
        A(f"ds_read_b128 v[{KVT+4*s}:{KVT+4*s+3}], v4 offset:{s*1024}")
        A(f"ds_read_b64 v[{ZR+4*s}:{ZR+4*s+1}], v5 offset:{32*s}")
        A(f"ds_read_b64 v[{ZR+4*s+2}:{ZR+4*s+3}], v5 offset:{32*s+16}")
    def zmask():
        A("v_bfe_u32 v4, v0, 2, 1")
        A("v_bfe_u32 v5, v0, 4, 1")
        A("v_cmp_eq_u32 vcc, v4, v5")
        A("v_mov_b32 v4, 0")
        A("s_nop 0")
        for k in range(16): A(f"v_cndmask_b32 v{ZR+k}, v4, v{ZR+k}, vcc")
    def amfma(t):
        def f():
            for s in range(4):
                c = "0" if s == 0 else f"v[{NUM}:{NUM+15}]"
                A(f"v_mfma_f32_32x32x16_bf16 v[{NUM}:{NUM+15}], v[{KVT+4*s}:{KVT+4*s+3}], v[{PHQ+16*t+4*s}:{PHQ+16*t+4*s+3}], {c}")
                c = "0" if s == 0 else f"v[{DEN}:{DEN+3}]"
                A(f"v_mfma_f32_16x16x32_bf16 v[{DEN}:{DEN+3}], v[{ZR+4*s}:{ZR+4*s+3}], v[{PHQ+16*t+4*s}:{PHQ+16*t+4*s+3}], {c}")
        return f
    def afin():
        A(f"v_add_f32 v4, {fhex(1e-6)}, v{DEN}")
        A("v_rcp_f32 v4, v4")
        A("s_nop 0")
        for k in range(8):
            A(f"v_pk_mul_f32 v[{NUM+2*k}:{NUM+2*k+1}], v[{NUM+2*k}:{NUM+2*k+1}], v[4:5] op_sel_hi:[1,0]")
        cvt_tile(A, OA, NUM)
        A(f"buffer_store_dwordx4 v[{OA}:{OA+3}], v3, s[32:35], s74 offen sc1")
        A(f"buffer_store_dwordx4 v[{OA+4}:{OA+7}], v3, s[32:35], s74 offen offset:1024 sc1")
        A("s_add_u32 s74, s74, 65536")
    if E8:
        period({0: ((), (), (zmask, amfma(0))), 1: ((), (), (afin, amfma(1))), 2: ((), (), (afin,))})
        pbar(A, cfg, "s_waitcnt vmcnt(6)")
    else:
        period({0: ((), (), (zmask, amfma(0))), 1: ((), (), (afin, amfma(1))), 2: ((), (), (afin, amfma(2))), 3: ((), (), (afin, amfma(3)))})
        A.nop(12)
        afin()
        pbar(A, cfg, "s_waitcnt vmcnt(10)")
    A.label("KD_7")
    A(f"""
    s_mov_b32 s60, 7
    v_and_b32 v45, 31, v0
    v_lshlrev_b32 v45, 2, v45        ; (l&31)*4
    v_lshlrev_b32 v35, 2, v0         ; lane*4
    v_lshrrev_b32 v4, 3, v0
    v_lshlrev_b32 v5, 11, v4         ; row*2048
    v_and_b32 v7, 7, v0
    v_bfe_u32 v6, v0, 4, 1
    v_lshlrev_b32 v6, 2, v6
    v_xor_b32 v7, v7, v6
    v_lshl_add_u32 v5, v7, 4, v5
    s_lshl_b32 s47, s18, 9
    s_lshl_b32 s38, s19, 4
    s_add_u32 s47, s47, s38
    s_lshl_b32 s47, s47, 11
    s_lshl_b32 s38, s17, 7
    s_add_u32 s47, s47, s38          ; + C*128
    v_add_u32 v36, s47, v5           ; piece 0
    v_add_u32 v37, {16384 - 1024}, v36
    v_lshrrev_b32 v7, 5, v0          ; hh
    v_bfe_u32 v6, v0, 2, 2           ; i>>2
    v_lshl_add_u32 v7, v7, 2, v6
    v_lshlrev_b32 v7, 7, v7
    v_bfe_u32 v6, v0, 4, 1
    v_bfe_u32 v5, v0, 1, 1
    v_lshl_add_u32 v6, v6, 1, v5
    v_bfe_u32 v5, v0, 3, 1
    v_lshlrev_b32 v5, 2, v5
    v_xor_b32 v6, v6, v5
    v_lshl_add_u32 v7, v6, 4, v7
    v_and_b32 v5, 1, v0
    v_lshl_add_u32 v7, v5, 3, v7
    s_lshl_b32 s38, s18, 13
    v_add_u32 v38, s38, v7           ; cb=0
    v_xor_b32 v39, 64, v38           ; cb=1
    s_add_u32 s80, s30, {WSL(0)}
    """)
    def wo_ops(m0src):
        a = [m0src, "s_nop 0", "buffer_load_dwordx4 v36, s[20:23], s29 offen lds"]
        b = ["buffer_load_dwordx4 v37, s[20:23], s29 offen offset:1024 lds", f"s_add_u32 s29, s29, {64*2048}"]
        return a, b
    A.label("K2_LOOPB")
    wa, wb = wo_ops("s_mov_b32 m0, s80")
    wb = wb + ["s_add_u32 s80, s80, 16384"]
    ca, cb_ = dma_ops()
    period({0: (tuple(wa), tuple(wb), ()), 1: (tuple(wa), tuple(wb), ()), 2: (tuple(ca), tuple(cb_), ())}, dma=False)
    if cfg.get("prof") == "2":
        pbar(A, cfg, "s_waitcnt vmcnt(6)")
        A("""
        s_add_u32 s60, s60, 1
        s_cmp_eq_u32 s60, 10
        """)
    else:
        A("""
        s_add_u32 s60, s60, 1
        s_cmp_eq_u32 s60, 10
        s_waitcnt vmcnt(6)
        s_barrier
        """)
    A(f"""
    s_cbranch_scc1 KB_10
    s_cmp_eq_u32 s60, 9
    s_cbranch_scc1 KB_9
    s_and_b32 s47, s40, 5
    s_cmp_lg_u32 s47, 1
    s_cbranch_scc1 K2_LOOPB
    """)
    set_flag(A, "s88")
    A("s_branch K2_LOOPB")
    A.label("KB_9")
    poll_issue(A, 47, 35, 32, "s36")
    A("s_branch K2_LOOPB")
    A.label("KB_10")
    vstamp(A, cfg, 8, PR)
    poll_check(A, 47, 35, 32, "s36", "PA")
    G, OMG = 32, 34
    OF = 128
    vm = VM(A, ["W4", "W4", "W5", "W5", "c12", "c12"])
    vm.now("G", f"buffer_load_dword v{G}, v45, s[32:35], s31 offen sc1")
    nld = [0]
    def oload():
        k = nld[0]; nld[0] += 1
        s, j = divmod(k, 4)
        r = OF + 16*s + 4*j
        def f():
            vm.now("o", f"buffer_load_dwordx4 v[{r}:{r+3}], v3, s[32:35], s28 offen offset:{j*1024} sc1")
            if j == 3: A("s_add_u32 s28, s28, 4096")
        return f
    def lines(tag, ls):
        def f():
            for l in ls:
                if l.startswith("buffer_"): vm.now(tag, l)
                else: A(l)
        return f
    BT = int(cfg.get("btouch", 0))
    def btouch():
        A(f"""
        s_and_b32 s47, s16, 3
        s_lshl_b32 s47, s47, 3
        s_add_u32 s47, s47, s40
        s_lshl_b32 s47, s47, 5
        v_add_u32 v44, s47, v0
        v_lshlrev_b32 v44, 11, v44
        s_lshl_b32 s47, s17, 7
        v_add_u32 v44, s47, v44
        v_mov_b32 v4, 0x7ffffff0
        v_cmp_gt_u32 vcc, 32, v0
        s_mov_b32 s92, s6
        s_mov_b32 s93, s7
        s_mov_b32 s94, {1024*2048}
        s_mov_b32 s95, 0x00020000
        v_cndmask_b32 v44, v4, v44, vcc
        """)
        vm.now("T", "buffer_load_dword v44, v44, s[92:95], 0 offen")
    for n in range(10, 16):
        sides = {}
        if n <= 12:
            a, b = dma_ops()
            sides[0] = ((lines(f"c{n+3}", a),), (lines(f"c{n+3}", b),), (oload(),))
            sides[1] = ((oload(),), (oload(),), ())
            sides[2] = ((oload(),), (oload(),), ())
            sides[3] = ((oload(),), (), ())
        elif n <= 14:
            a, b = wo_ops(f"s_add_u32 m0, s30, {WSL(n - 7)}")
            sides[0] = ((lines("W", a),), (lines("W", b),), (oload(),))
            sides[1] = ((oload(),), (oload(),), ())
            sides[2] = ((oload(),), (), ())
            sides[3] = ((oload(),), (), ())
        else:
            sides[0] = ((oload(),), (oload(),), ())
            sides[1] = ((oload(),), (oload(),), ())
        if n == BT: sides[3] = (sides[3][0], sides[3][1], tuple(sides[3][2]) + (btouch,))
        period(sides, dma=False)
        if n <= 13:
            pbar(A, cfg, lambda: vm.wait(f"c{n+2}"))
        elif cfg.get("prof") == "2":
            bstamp(A, cfg, 0); bstamp(A, cfg, 1); bstamp(A, cfg, 2)
        if n == 12: vstamp(A, cfg, 9, PR)
    assert nld[0] == 32
    A(f"""
    s_mov_b32 s60, 16
    s_waitcnt lgkmcnt(0)
    v_mfma_f32_32x32x16_bf16 v[{O}:{O+15}], v[{V1}:{V1+3}], v[{P+4}:{P+7}], v[{O}:{O+15}]
    v_mfma_f32_16x16x32_bf16 v[{L}:{L+3}], v[{SEL}:{SEL+3}], v[{P+4}:{P+7}], v[{L}:{L+3}]
    """)
    vstamp(A, cfg, 10, PR)
    rst(A, cfg, 0)
    A("v_lshlrev_b32 v45, 3, v0")
    A.nop(12)
    A.label("K2_FIN")
    A(f"v_rcp_f32 v4, v{L}")
    A("s_nop 0")
    for k in range(8):
        A(f"v_pk_mul_f32 v[{O+2*k}:{O+2*k+1}], v[{O+2*k}:{O+2*k+1}], v[4:5] op_sel_hi:[1,0]")
    A("v_mov_b32 v6, 0")
    for k in range(16):
        A(f"v_fma_f32 v6, v{O+k}, 0, v6")
    A(f"""
    v_mov_b32 v7, {fhex(2.0**120)}
    v_cmp_u_f32 vcc, v6, v6
    v_cmp_nlt_f32 s[62:63], v{L}, v7
    s_or_b64 vcc, vcc, s[62:63]
    """)
    if cfg.get("force_fb"):
        A("s_mov_b64 vcc, -1")
    A(f"""
    s_cmp_eq_u32 s60, 16
    s_cselect_b64 vcc, vcc, 0
    s_cbranch_vccnz K2_FB
    """)
    for i in range(8):
        A(f"v_cvt_pk_bf16_f32 v{P+i}, v{O+2*i}, v{O+2*i+1}")
    A(f"buffer_store_dwordx4 v[{P}:{P+3}], v3, s[32:35], s73 offen sc1")
    A(f"buffer_store_dwordx4 v[{P+4}:{P+7}], v3, s[32:35], s73 offen offset:1024 sc1")
    EF = cfg.get("ef")
    if EF:
        A("""
        s_cmp_lt_u32 s40, 4
        s_cbranch_scc0 K3_EF1
        s_waitcnt vmcnt(0)
        """)
        set_flag(A, "s69")
        A("""
        s_branch K3_EF2
        K3_EF1:
        s_setprio 1
        s_waitcnt vmcnt(2)
        K3_EF2:
        """)
    else:
        A("s_waitcnt vmcnt(2)")
    A("s_barrier")
    vstamp(A, cfg, 11, PR)
    rst(A, cfg, 1)
    WFJ = [16, 24, 48, 56]
    ACCA, ACCB = 64, 96
    P3V = cfg.get("p3v") in ("2", "3")
    OD = int(cfg.get("od", 8))
    P3R = cfg.get("p3v") == "3"
    BSL = lambda b: 32768 + 16384 * b if b < 2 else WSL(b - 2)
    def waddr(s, slot=WSL):
        if slot is None:
            A("v_add_u32 v40, s90, v38")
            A("v_add_u32 v41, s90, v39")
            A("s_add_u32 s90, s90, 16384")
            A("s_and_b32 s90, s90, 0x1ffff")
            return
        A(f"v_add_u32 v40, {slot(s)}, v38")
        A(f"v_add_u32 v41, {slot(s)}, v39")
    def wreads(j):
        for cb in range(2):
            for sec in range(2):
                r = WFJ[j] + 4*cb + 2*sec
                A(f"ds_read_b64_tr_b16 v[{r}:{r+1}], v{40+cb} offset:{(16*j+8*sec)*128}")
    def gemm(acc_, after, owait, slot=WSL, inl={}, stamp=None):
        waddr(0, slot)
        for j in range(4): wreads(j)
        for s in range(8):
            last = s == 7
            for j in range(4):
                if owait: A(f"s_waitcnt vmcnt({min(4*OD + 4*s + j, 32) - (4*s + j) - 1})")
                for cb in range(2):
                    n = (14 - 2*cb) if not last else (14 - 4*j - 2*cb)
                    A(f"s_waitcnt lgkmcnt({n})")
                    w = WFJ[j] + 4*cb; o = OF + 16*s + 4*j; a = acc_ + 16*cb
                    c = "0" if (s == 0 and j == 0) else f"v[{a}:{a+15}]"
                    A(f"v_mfma_f32_32x32x16_bf16 v[{a}:{a+15}], v[{w}:{w+3}], v[{o}:{o+3}], {c}")
                if not last:
                    if j == 0: waddr(s + 1, slot)
                    wreads(j)
                for l in inl.get((s, j), []):
                    if callable(l): l()
                    else: A(l)
                if owait and s + OD < 8: o_load(s + OD, j)
            if s in after: after[s]()
            if stamp is not None and cfg.get("prof") == "5" and (s in (1, 3, 5, 7) or owait):
                rst(A, cfg, stamp + s)
    def refill(s0):
        for s in range(s0, s0 + 4):
            a, b = wo_ops(f"s_add_u32 m0, s30, {WSL(s)}")
            for l in a + b: A(l)
    def a_flag():
        A("s_waitcnt vmcnt(0)")
        set_flag(A, "s69")
    def a_mid():
        A("s_barrier")
        A("""
        s_mov_b32 s20, s6
        s_mov_b32 s21, s7
        s_mov_b32 s29, 0
        """)
        refill(0)
    def a_poll():
        poll_issue(A, 46, 45, 32, "s83", n=2)
    FBPOS = int(cfg.get("fbpos", 2))
    RB0 = 32768 if P3V else 0
    def out_addr():
        A(f"""
        v_sub_f32 v{OMG}, 1.0, v{G}
        v_and_b32 v4, 31, v0
        s_lshl_b32 s38, s19, 5
        v_add_u32 v4, s38, v4
        v_mul_u32_u24 v4, {K3_ROW}, v4
        v_lshrrev_b32 v5, 5, v0
        v_lshl_add_u32 v4, v5, 4, v4
        s_mul_i32 s38, s18, {K3_RED}
        {f"s_add_u32 s38, s38, {RB0}" if RB0 else ""}
        v_add_u32 v4, s38, v4
        s_lshl_b32 s38, s40, 6
        v_add_u32 v10, s38, v0           ; tid
        v_lshrrev_b32 v5, 3, v10
        v_and_b32 v6, 7, v10             ; chunk
        v_mul_u32_u24 v7, {K3_ROW}, v5
        v_lshl_add_u32 v7, v6, 5, v7
        {f"v_add_u32 v7, {RB0}, v7" if RB0 else ""}
        s_lshl_b32 s38, s16, 7
        v_add_u32 v5, s38, v5
        v_lshlrev_b32 v5, 11, v5
        v_lshl_add_u32 v5, v6, 4, v5
        s_lshl_b32 s38, s17, 7
        v_add_u32 v5, s38, v5
        """)
    def scale_a():
        for k in range(16):
            A(f"v_pk_mul_f32 v[{ACCA+2*k}:{ACCA+2*k+1}], v[{ACCA+2*k}:{ACCA+2*k+1}], v[{G}:{G+1}] op_sel_hi:[1,0]")
    def o_load(s, j):
        if j == 0:
            if s == 0: A(f"s_sub_u32 s28, s28, 32768" if cfg.get("expo") else f"s_add_u32 s28, s28, {4*MB - 32768}")
            if P3R:
                A("s_add_u32 s85, s28, s91")
                A("s_add_u32 s91, s91, 4096")
                A("s_and_b32 s91, s91, 0x7fff")
            elif s: A("s_add_u32 s28, s28, 4096")
        r = OF + 16*s + 4*j
        A(f"buffer_load_dwordx4 v[{r}:{r+3}], v3, s[32:35], {'s85' if P3R else 's28'} offen offset:{j*1024} sc1")
    def o_loads():
        for s in range(OD):
            for j in range(4): o_load(s, j)
    if P3V:
        A("""
        s_mov_b32 s20, s6
        s_mov_b32 s21, s7
        s_mov_b32 s29, 0
        """)
        inl = {}
        def bslab(b, s, j):
            a_, b_ = wo_ops(f"s_add_u32 m0, s30, {BSL(b)}")
            inl[(s, j)] = a_; inl[(s, j + 1)] = b_
        BS = cfg.get("bs", "0")
        bslab(0, 0, 0); bslab(1, 1, 0)
        if BS == "0":
            bslab(2, 4, 0); bslab(3, 4, 2); bslab(4, 5, 0); bslab(5, 5, 2)
        else:
            bslab(2, 2, 0); bslab(3, 3, 0); bslab(4, 4, 0); bslab(5, 5, 0)
        bslab(6, 6, 0); bslab(7, 6, 2)
        def a_flag2():
            if EF:
                j = A.uid("K3_F")
                A("s_cmp_lt_u32 s40, 4"); A(f"s_cbranch_scc1 {j}")
            A(f"s_waitcnt vmcnt({2 * min(FBPOS + 1, 2)})")
            set_flag(A, "s69")
            if EF:
                A("s_setprio 0")
                A.label(j)
        EP = int(cfg.get("ep", 0))
        def a_bar5():
            if EP:
                A("s_waitcnt vmcnt(7)")
                A("s_barrier")
                poll_check(A, 46, 45, 32, "s83", "PB", n=2)
                for b in (6, 7):
                    a_, b_ = wo_ops(f"s_add_u32 m0, s30, {BSL(b)}")
                    for l in a_ + b_: A(l)
                for s_ in range(EP):
                    for j in range(4): o_load(s_, j)
            else:
                A("s_barrier")
                a_poll()
        if EP:
            assert OD == EP + 2 and not P3R
            del inl[(6, 0)], inl[(6, 1)], inl[(6, 2)], inl[(6, 3)]
            inl[(4, 0)] = inl[(4, 0)] + [a_poll]
            for s_ in (6, 7):
                for j in range(4): inl[(s_, j)] = [(lambda s_=s_, j=j: o_load(EP + s_ - 6, j))]
        aft = {3: lambda: A("s_barrier"), 5: a_bar5}
        if FBPOS == 3: aft[3] = lambda: (a_flag2(), A("s_barrier"))
        else: aft[FBPOS] = a_flag2
        if BS == "1":
            assert FBPOS in (0, 1)
            if FBPOS == 1: aft[1] = lambda: (a_flag2(), A("s_barrier"))
            else: aft[1] = lambda: A("s_barrier")
        gemm(ACCA, aft, False, WSL, inl, 2)
        vstamp(A, cfg, 12, PR)
        if P3R:
            RM = int(cfg.get("rmask", 6))
            A(f"""
            s_and_b32 s47, s17, {RM}
            s_lshl_b32 s90, s47, 14
            s_lshl_b32 s91, s47, 12
            v_add_u32 v38, 32768, v38
            v_add_u32 v39, 32768, v39
            """)
            if cfg.get("gfirst", "1") == "1":
                A("""
                s_and_b32 s47, s17, 1
                s_cmp_eq_u32 s47, s18
                s_cbranch_scc0 K3_NP
                s_setprio 1
                K3_NP:
                """)
        A(f"s_waitcnt vmcnt({4 * OD if EP else 0})")
        rst(A, cfg, 10)
        A("s_barrier")
        rst(A, cfg, 11)
        if not EP:
            poll_check(A, 46, 45, 32, "s83", "PB", n=2)
            rst(A, cfg, 12)
            o_loads()
            rst(A, cfg, 13)
        out_addr()
        scale_a()
        srd(A, 24, 8, 4194304)
        def zbar(g):
            def f():
                j = A.uid("K3_Z")
                A(f"s_cmp_eq_u32 s18, {g}"); A(f"s_cbranch_scc0 {j}"); A("s_barrier"); A.label(j)
            return f
        if P3R:
            gemm(ACCB, {}, True, None, {}, 14)
            vstamp(A, cfg, 13, PR)
            A("s_setprio 0")
            A("s_barrier")
            A.nop(12)
        else:
            gemm(ACCB, {4: zbar(1)}, True, BSL, {}, 14)
            vstamp(A, cfg, 13, PR)
            zbar(0)()
            A.nop(12)
    else:
        gemm(ACCA, {FBPOS: a_flag, 3: a_mid, 5: a_poll}, False)
        A("s_barrier")
        refill(4)
        vstamp(A, cfg, 12, PR)
        A("s_waitcnt vmcnt(8)")
        poll_check(A, 46, 45, 32, "s83", "PB", n=2)
        o_loads()
        A("s_waitcnt vmcnt(31)")
        A("s_barrier")
        gemm(ACCB, {}, True)
        vstamp(A, cfg, 13, PR)
        out_addr()
        scale_a()
        A("s_barrier")
        srd(A, 24, 8, 4194304)
        A.nop(4)
    for k in range(16):
        A(f"v_pk_fma_f32 v[{ACCA+2*k}:{ACCA+2*k+1}], v[{ACCB+2*k}:{ACCB+2*k+1}], v[{OMG}:{OMG+1}], v[{ACCA+2*k}:{ACCA+2*k+1}] op_sel_hi:[1,0,1]")
    for cb in range(2):
        for q in range(4):
            r = ACCA + 16*cb + 4*q
            A(f"ds_write_b128 v4, v[{r}:{r+3}] offset:{cb*128 + q*32}")
    A("s_waitcnt lgkmcnt(0)")
    rst(A, cfg, 22)
    A("s_barrier")
    rst(A, cfg, 23)
    R = 128
    for it in range(2):
        for g in range(2):
            for hf in range(2):
                r = R + 16*it + 8*g + 4*hf
                A(f"ds_read_b128 v[{r}:{r+3}], v7 offset:{it*64*K3_ROW + g*K3_RED + hf*16}")
    for it in range(2):
        A(f"s_waitcnt lgkmcnt({4 - 4*it})")
        r = R + 16*it
        for k in range(4):
            A(f"v_pk_add_f32 v[{r+2*k}:{r+2*k+1}], v[{r+2*k}:{r+2*k+1}], v[{r+8+2*k}:{r+8+2*k+1}]")
        for k in range(4):
            A(f"v_cvt_pk_bf16_f32 v{r+k}, v{r+2*k}, v{r+2*k+1}")
        A(f"buffer_store_dwordx4 v[{r}:{r+3}], v5, s[24:27], 0 offen {cfg.get('ost', 'nt').replace('+', ' ')}")
        if it == 0: A(f"v_add_u32 v5, {64*2048}, v5")
    if cfg.get("prof"):
        A("s_waitcnt vmcnt(0)")
        vstamp(A, cfg, 14, PR)
        rst(A, cfg, 24)
        A(f"""
        s_mov_b32 s92, s14
        s_mov_b32 s93, s15
        s_mov_b32 s94, {64*MB}
        s_mov_b32 s95, 0x00020000
        s_lshl_b32 s90, s2, 3
        s_add_u32 s90, s90, s40
        s_lshl_b32 s90, s90, {8 if cfg.get("prof") in ("2", "3", "4", "5") else 7}
        s_add_u32 s90, s90, {WS_PROFV}
        v_lshlrev_b32 v1, 2, v0
        s_mov_b64 exec, {-1 if cfg.get("prof") in ("2", "3", "4", "5") else "0xffffffff"}
        buffer_store_dword v{PR}, v1, s[92:95], s90 offen
        """)
    A("s_endpgm")
    A.label("K2_FB")
    vstamp(A, cfg, 15, PR)
    A("s_mov_b32 s60, 17")
    A("s_mov_b32 s61, 0")
    for i in range(16): A(f"v_mov_b32 v{O+i}, 0")
    for i in range(4): A(f"v_mov_b32 v{L+i}, 0")
    A(f"v_mov_b32 v44, 0xff800000")
    A.label("K2_FBL")
    A(f"""
    buffer_load_dwordx4 v[{K0}:{K0+3}], v3, s[32:35], s70 offen sc1
    buffer_load_dwordx4 v[{K1}:{K1+3}], v3, s[32:35], s70 offen offset:1024 sc1
    buffer_load_dwordx4 v[{V0}:{V0+3}], v3, s[32:35], s70 offen offset:2048 sc1
    buffer_load_dwordx4 v[{V1}:{V1+3}], v3, s[32:35], s70 offen offset:3072 sc1
    s_add_u32 s70, s70, 4096
    s_waitcnt vmcnt(0)
    v_mfma_f32_32x32x16_bf16 v[{SA}:{SA+15}], v[{K0}:{K0+3}], v[{Q}:{Q+3}], 0
    v_mfma_f32_32x32x16_bf16 v[{SA}:{SA+15}], v[{K1}:{K1+3}], v[{Q+4}:{Q+7}], v[{SA}:{SA+15}]
    """)
    A.nop(12)
    A(f"v_max3_f32 v4, v{SA}, v{SA+1}, v{SA+2}")
    for k in range(3, 15, 2):
        A(f"v_max3_f32 v4, v4, v{SA+k}, v{SA+k+1}")
    A(f"v_max3_f32 v4, v4, v{SA+15}, v44")
    A("v_mov_b32 v5, v4")
    A.nop(2)
    A("v_permlane32_swap_b32 v4, v5")
    A("s_nop 0")
    A("v_max_f32 v4, v4, v5")
    A("v_sub_f32 v5, v44, v4")
    A("v_exp_f32 v5, v5")
    A("v_mov_b32 v44, v4")
    for k in range(16):
        A(f"v_sub_f32 v{SA+k}, v{SA+k}, v4")
    for k in range(16):
        A(f"v_exp_f32 v{SA+k}, v{SA+k}")
    for k in range(16):
        A(f"v_mul_f32 v{O+k}, v{O+k}, v5")
    for k in range(4):
        A(f"v_mul_f32 v{L+k}, v{L+k}, v5")
    for k in range(8):
        A(f"v_cvt_pk_bf16_f32 v{P+k}, v{SA+2*k}, v{SA+2*k+1}")
    A("s_nop 1")
    A(f"""
    v_mfma_f32_32x32x16_bf16 v[{O}:{O+15}], v[{V0}:{V0+3}], v[{P}:{P+3}], v[{O}:{O+15}]
    v_mfma_f32_16x16x32_bf16 v[{L}:{L+3}], v[{SEL}:{SEL+3}], v[{P}:{P+3}], v[{L}:{L+3}]
    v_mfma_f32_32x32x16_bf16 v[{O}:{O+15}], v[{V1}:{V1+3}], v[{P+4}:{P+7}], v[{O}:{O+15}]
    v_mfma_f32_16x16x32_bf16 v[{L}:{L+3}], v[{SEL}:{SEL+3}], v[{P+4}:{P+7}], v[{L}:{L+3}]
    s_add_u32 s61, s61, 1
    s_cmp_lt_u32 s61, 64
    """)
    A.nop(12)
    A("s_cbranch_scc1 K2_FBL")
    A("s_branch K2_FIN")
    A.label("KF_END")
    A("s_endpgm")
    return K, KG_LDS
```

```python
from common import *

KNAME = NAME + "_kernel"
K1_XS = 32768
K1_NX = 3
K1_WB = K1_XS * K1_NX
K1_SLOT = 12288
K1_NSLOT = 5
K1_WPHI = K1_WB + K1_SLOT * K1_NSLOT
K1_TBUF = 4352
RING = 65536
QST = 65536
TBUF0 = 81920
RED0 = 98304
ZRED = 114688
KVT_L = 116736
Z_L = 120832
KG_LDS = 163840
def WSL(s): return 65536 + 16384 * s if s < 6 else 16384 * (s - 6)
WS_F1 = WS_FLAG
WS_FK = WS_FLAG + 4096
WS_FA = WS_FLAG + 16384
WS_FB = WS_FLAG + 20480
HB0 = 122880
HB1 = 139264
TBUF1 = 147456
BIAS = 80.0
K3_ROW = 272
K3_RED = 128 * K3_ROW
SPIN_MAX = 1 << 16
WS_PROFV = WS_PROF

def cvt_tile(A, dst, src):
    for i in range(8):
        A(f"v_cvt_pk_bf16_f32 v{dst+i}, v{src+2*i}, v{src+2*i+1}")

def bstamp(A, cfg, kind, reg=33):
    if cfg.get("prof") == "2":
        A("s_memtime s[96:97]")
        A(f"s_add_u32 m0, s100, {16*kind}")
        A("s_waitcnt lgkmcnt(0)")
        A(f"v_writelane_b32 v{reg}, s96, m0")
        if kind == 2: A("s_add_u32 s100, s100, 1")

def pbar(A, cfg, wait):
    bstamp(A, cfg, 0)
    if callable(wait): wait()
    elif wait: A(wait)
    bstamp(A, cfg, 1)
    A("s_barrier")
    bstamp(A, cfg, 2)

def vstamp(A, cfg, i, reg):
    if cfg.get("prof") == "1":
        A("s_memtime s[96:97]")
        A("s_memrealtime s[98:99]")
        A("s_waitcnt lgkmcnt(0)")
        A(f"v_writelane_b32 v{reg}, s96, {2*i}")
        A(f"v_writelane_b32 v{reg}, s98, {2*i+1}")

def rst(A, cfg, lane, reg=33):
    if cfg.get("prof") == "5":
        A("s_memrealtime s[96:97]")
        A("s_waitcnt lgkmcnt(0)")
        A(f"v_writelane_b32 v{reg}, s96, {lane}")

def poll_issue(A, vdst, vaddr, srd, soff, n=1):
    if n == 1: A(f"buffer_load_dword v{vdst}, v{vaddr}, s[{srd}:{srd+3}], {soff} offen sc1")
    else:      A(f"buffer_load_dwordx2 v[{vdst}:{vdst+1}], v{vaddr}, s[{srd}:{srd+3}], {soff} offen sc1")

def poll_check(A, vdst, vaddr, srd, soff, tag, expect=1, n=1):
    ok = A.uid(tag + "_OK"); sp = A.uid(tag + "_SP")
    def test():
        if n == 2: A(f"v_and_b32 v{vdst}, v{vdst}, v{vdst+1}")
        A(f"v_cmp_eq_u32 vcc, {expect}, v{vdst}")
        A("s_cmp_eq_u64 vcc, -1")
        A(f"s_cbranch_scc1 {ok}")
    test()
    A("s_mov_b32 s82, 0")
    A.label(sp)
    A("s_sleep 2")
    poll_issue(A, vdst, vaddr, srd, soff, n)
    A("s_add_u32 s82, s82, 1")
    A("s_waitcnt vmcnt(0)")
    test()
    A(f"s_cmp_lt_u32 s82, {SPIN_MAX}")
    A(f"s_cbranch_scc1 {sp}")
    A.label(ok)

def set_flag(A, soff):
    A(f"""
    s_mov_b64 exec, 1
    v_mov_b32 v4, 1
    v_mov_b32 v5, 0
    buffer_store_dword v4, v5, s[32:35], {soff} offen sc1
    s_mov_b64 exec, -1
    """)

class VM:
    def __init__(s, A, init=()): s.A = A; s.q = list(init)
    def op(s, tag, text):
        def f(): s.A(text); s.q.append(tag)
        return f
    def now(s, tag, text): s.op(tag, text)()
    def wait(s, *tags):
        idx = max([k for k, t in enumerate(s.q) if t in tags], default=-1)
        if idx < 0: return
        s.A(f"s_waitcnt vmcnt({len(s.q) - 1 - idx})")
        s.q = s.q[idx+1:]

def setup_p2(A):
    A(f"""
    s_lshl_b32 s70, s42, 18
    s_add_u32 s70, s70, {WS_KVB}
    s_lshl_b32 s47, s41, 1
    s_add_u32 s47, s47, 3
    s_and_b32 s47, s47, 15
    s_lshl_b32 s47, s47, 14
    s_lshl_b32 s38, s40, 11
    s_add_u32 s71, s47, s38          ; offset within the head of this wave's part of the next chunk
    s_add_u32 s72, s38, {3*16384}
    s_lshl_b32 s47, s41, 3
    s_add_u32 s47, s47, s40
    s_lshl_b32 s47, s47, 5
    s_add_u32 s47, s47, s42
    s_lshl_b32 s73, s47, 11
    s_add_u32 s73, s73, {WS_OB}
    s_lshr_b32 s39, s40, 1
    s_and_b32 s39, s39, 1            ; th
    s_lshl_b32 s47, s41, 3
    s_lshl_b32 s38, s39, 2
    s_add_u32 s47, s47, s38          ; r*8 + th*4
    s_lshl_b32 s47, s47, 5
    s_add_u32 s47, s47, s42
    s_lshl_b32 s74, s47, 11
    s_add_u32 s74, s74, {WS_OA}
    s_lshl_b32 s75, s42, 16
    s_lshl_b32 s47, s40, 10
    s_add_u32 s75, s75, s47
    s_add_u32 s75, s75, {WS_KVP}
    s_lshl_b32 s47, s41, 13
    s_add_u32 s79, s75, s47
    s_lshl_b32 s76, s42, 11
    s_add_u32 s76, s76, {WS_ZP}
    s_lshl_b32 s47, s41, 8
    s_add_u32 s89, s76, s47
    s_lshl_b32 s77, s42, 8
    s_add_u32 s77, s77, {WS_FK}
    s_lshl_b32 s47, s41, 5
    s_add_u32 s68, s77, s47
    s_lshl_b32 s47, s40, 2
    s_add_u32 s68, s68, s47
    s_lshl_b32 s78, s42, 6
    s_add_u32 s78, s78, {WS_F1}      ; F1 line
    s_lshl_b32 s47, s41, 3
    s_add_u32 s67, s78, s47
    s_lshl_b32 s38, s39, 2
    s_add_u32 s67, s67, s38
    s_lshl_b32 s88, s41, 8
    s_lshl_b32 s47, s42, 3
    s_add_u32 s88, s88, s47
    s_add_u32 s88, s88, s38
    s_add_u32 s88, s88, {WS_FA}
    s_lshl_b32 s47, s41, 1
    s_lshr_b32 s38, s40, 2
    s_add_u32 s47, s47, s38
    s_lshl_b32 s69, s47, 9
    s_lshl_b32 s47, s42, 4
    s_add_u32 s69, s69, s47
    s_and_b32 s47, s40, 3
    s_lshl_b32 s47, s47, 2
    s_add_u32 s69, s69, s47
    s_add_u32 s69, s69, {WS_FB}
    """)

def setup_p3(A):
    A(f"""
    s_load_dwordx2 s[4:5], s[0:1], 24
    s_load_dwordx2 s[6:7], s[0:1], 48
    s_load_dwordx2 s[8:9], s[0:1], 64
    s_lshr_b32 s16, s45, 1
    s_lshl_b32 s16, s16, 2
    s_lshr_b32 s47, s46, 3
    s_add_u32 s16, s16, s47          ; T = 4*(e>>1) + (i>>3)
    s_and_b32 s17, s45, 1
    s_lshl_b32 s17, s17, 3
    s_and_b32 s47, s46, 7
    s_add_u32 s17, s17, s47          ; C = 8*(e&1) + (i&7)
    s_lshr_b32 s18, s40, 2           ; grp
    s_and_b32 s19, s40, 3            ; tq
    s_lshl_b32 s47, s16, 2
    s_add_u32 s47, s47, s19          ; tb3
    s_lshl_b32 s28, s47, 16
    s_lshl_b32 s38, s18, 15
    s_add_u32 s28, s28, s38
    s_add_u32 s28, s28, {WS_OA}
    s_lshl_b32 s31, s47, 7
    s_add_u32 s31, s31, {WS_G}       ; g offset
    s_lshr_b32 s47, s16, 1
    s_lshl_b32 s36, s47, 8
    s_add_u32 s36, s36, {WS_FA}
    s_lshl_b32 s83, s16, 9
    s_add_u32 s83, s83, {WS_FB}
    s_lshl_b32 s30, s18, 13
    s_lshl_b32 s38, s19, 11
    s_add_u32 s30, s30, s38
    s_mov_b32 s29, 0
    s_waitcnt lgkmcnt(0)
    s_mov_b32 s20, s4
    s_mov_b32 s21, s5
    s_mov_b32 s22, {1024*2048}
    s_mov_b32 s23, 0x00020000
    """)

def gen_kg(A, cfg):
    K = KNAME
    F1POS = int(cfg.get("f1pos", 2))
    ROT = int(cfg.get("rot", 12))
    RSH = int(cfg.get("rsh", 0))
    ROT2 = int(cfg.get("rot2", 0))
    PV = 255
    kernel_begin(A, K)
    A(f"""
    s_cmp_ge_u32 s2, 256
    s_cbranch_scc1 KF_END
    s_load_dwordx2 s[4:5], s[0:1], 0
    s_load_dwordx2 s[6:7], s[0:1], 8
    s_load_dwordx2 s[8:9], s[0:1], 40
    s_load_dwordx2 s[10:11], s[0:1], 16
    s_load_dwordx2 s[12:13], s[0:1], 56
    s_load_dwordx2 s[14:15], s[0:1], 80
    s_load_dwordx2 s[86:87], s[0:1], 72
    v_lshrrev_b32 v1, 6, v0
    v_and_b32 v0, 63, v0
    v_readfirstlane_b32 s40, v1
    s_and_b32 s45, s2, 7
    s_lshr_b32 s46, s2, 3
    """)
    if cfg.get("prof"): A(f"v_mov_b32 v{PV}, 0")
    vstamp(A, cfg, 0, PV)
    if cfg.get("prof") == "4":
        A("s_memrealtime s[96:97]")
        A("s_waitcnt lgkmcnt(0)")
        A(f"v_writelane_b32 v{PV}, s96, 40")
    if cfg.get("hmap", "f") == "f":
        A("""
        s_and_b32 s41, s45, 1
        s_lshl_b32 s41, s41, 2
        s_lshr_b32 s47, s46, 3
        s_add_u32 s41, s41, s47          ; r = 4(e&1) + (i>>3)
        s_lshr_b32 s42, s45, 1
        s_lshl_b32 s42, s42, 3
        s_and_b32 s47, s46, 7
        s_add_u32 s42, s42, s47          ; h = 8(e>>1) + (i&7)
        s_waitcnt lgkmcnt(0)
        """)
    elif cfg.get("hmap") == "h":
        A("""
        s_lshr_b32 s41, s45, 1
        s_lshl_b32 s41, s41, 1
        s_lshr_b32 s47, s46, 4
        s_add_u32 s41, s41, s47          ; r = 2(e>>1) + (i>>4)
        s_and_b32 s42, s45, 1
        s_lshl_b32 s42, s42, 4
        s_and_b32 s47, s46, 15
        s_add_u32 s42, s42, s47          ; h = 16(e&1) + (i&15)
        s_waitcnt lgkmcnt(0)
        """)
    else:
        A("""
        s_and_b32 s41, s46, 7            ; r
        s_lshl_b32 s42, s45, 2
        s_lshr_b32 s47, s46, 3
        s_add_u32 s42, s42, s47          ; h = 4e + (i>>3)
        s_waitcnt lgkmcnt(0)
        """)
    def rstamp(lane):
        if cfg.get("prof") == "4":
            A("s_memrealtime s[96:97]")
            A("s_waitcnt lgkmcnt(0)")
            A(f"v_writelane_b32 v{PV}, s96, {lane}")
    rstamp(41)
    srd(A, 32, 14, WS_USED)
    A("""
    s_cmp_ge_u32 s40, 4
    s_cbranch_scc1 K1_LOADER
    """)
    PF3 = cfg.get("pf3")
    PF4 = cfg.get("pf4")
    L2D = int(cfg.get("l2d", 2)) if not (PF3 or PF4) else 0
    TL = int(cfg.get("tl", 4))
    TC = int(cfg.get("tc", 8))
    def touch_addr(w, dst, t0, t1, t2, shift, sa):
        OFFL = int(cfg.get("offl", 0))
        A(f"""
        s_and_b32 s47, s42, 1
        s_lshl_b32 s47, s47, 2
        s_and_b32 s38, s41, 3
        s_add_u32 s47, s47, s38
        s_lshl_b32 s47, s47, 2
        v_bfe_u32 v{t0}, v0, 2, 1
        v_lshlrev_b32 v{t0}, 5, v{t0}    ; 32 * block
        v_and_b32 v{t2}, 3, v0
        v_add3_u32 v{dst}, v{t2}, v{t0}, s47
        v_mul_u32_u24 v{dst}, 6144, v{dst}
        v_lshrrev_b32 v{t1}, 3, v0       ; segment
        v_lshl_add_u32 v{dst}, v{t1}, 11, v{dst}
        s_lshr_b32 s47, s42, 1
        s_lshl_b32 s47, s47, 7
        v_add_u32 v{dst}, s47, v{dst}
        s_and_b32 {sa}, s42, 7
        """)
        if OFFL:
            A(f"""
            s_lshl_b32 s47, {sa}, 2
            s_add_u32 s47, s47, s38
            s_lshl_b32 s47, s47, 2
            v_add_u32 v{t2}, s47, v{t2}
            v_lshrrev_b32 v{t1}, 5, v{t2}
            v_and_b32 v{t2}, 31, v{t2}
            v_add_u32 v{t2}, v{t2}, v{t0}
            v_mul_u32_u24 v{t2}, 6144, v{t2}
            v_lshl_add_u32 v{t2}, v{t1}, 11, v{t2}
            s_lshr_b32 s47, s42, 1
            s_or_b32 s47, s47, 3
            s_lshl_b32 s47, s47, 7
            v_add_u32 v{t2}, s47, v{t2}
            v_cmp_lt_u32 vcc, 23, v0
            s_nop 1
            v_cndmask_b32 v{dst}, v{dst}, v{t2}, vcc
            s_cmp_lt_u32 {sa}, 6
            s_cselect_b32 s63, 32, 0
            """)
            if OFFL == 1:
                A(f"""
                s_lshl_b32 s47, {sa}, 4
                s_mul_i32 s38, {sa}, 80
                s_sub_u32 s38, s38, {6*80 - 96}
                s_cmp_lt_u32 {sa}, 6
                s_cselect_b32 s47, s47, s38
                s_cselect_b32 {sa}, 16, 40
                s_cselect_b32 s38, 0, 40
                s_cmp_eq_u32 {w}, 3
                s_cselect_b32 {sa}, s38, {sa}
                s_cselect_b32 s38, 40, 0
                s_add_u32 s47, s47, s38
                """)
            elif OFFL == 2:
                A(f"""
                s_mul_i32 s47, {sa}, 43
                s_cmp_lt_u32 {sa}, 5
                s_cselect_b32 s38, 43, 41
                s_cmp_lt_u32 {sa}, 6
                s_cselect_b32 {sa}, s38, 0
                s_cmp_eq_u32 {w}, 3
                s_cselect_b32 {sa}, 0, {sa}
                """)
            else:
                A(f"""
                s_lshl_b32 s47, {sa}, 5
                s_cmp_eq_u32 {w}, 3
                s_cselect_b32 {sa}, 0, 32
                """)
        else:
            A(f"""
            s_mov_b32 s63, 24
            s_lshl_b32 s47, {sa}, 5
            s_cmp_eq_u32 {w}, 3
            s_cselect_b32 {sa}, 0, 32
            """)
        A(f"""
        s_lshl_b32 s38, s41, 8
        s_add_u32 s47, s47, s38
        v_add_u32 v{t1}, s47, v0
        v_lshlrev_b32 v{t1}, 11, v{t1}   ; x row
        v_bfe_u32 v{t0}, v0, 1, 1
        s_and_b32 s38, s45, 1
        v_xor_b32 v{t0}, s38, v{t0}      ; 0 : ours
        v_and_b32 v{t2}, 3, v0
        s_lshr_b32 s38, s45, 1
        v_xor_b32 v{t2}, s38, v{t2}
        s_cmp_ge_u32 {w}, 2
        s_cselect_b64 vcc, -1, 0
        s_cselect_b32 s47, {sa}, s63
        s_mov_b32 s38, {(TC - TL) * 32 * 6144}
        s_cselect_b32 s38, {(TC - TL) * 64}, s38
        v_cndmask_b32 v{dst}, v{dst}, v{t1}, vcc
        v_cndmask_b32 v{t0}, v{t0}, v{t2}, vcc
        v_cmp_eq_u32 vcc, 0, v{t0}
        """)
        if shift:
            A(f"""
            v_mov_b32 v{t1}, s38
            s_nop 0
            v_cndmask_b32 v{t1}, 0, v{t1}, vcc
            v_add_u32 v{dst}, v{dst}, v{t1}
            v_cmp_gt_u32 vcc, s47, v0
            v_mov_b32 v{t1}, 0x7ffffff0
            s_nop 0
            v_cndmask_b32 v{dst}, v{t1}, v{dst}, vcc
            """)
        else:
            A(f"""
            v_cmp_gt_u32 s[62:63], s47, v0
            v_mov_b32 v{t1}, 0x7ffffff0
            s_and_b64 vcc, vcc, s[62:63]
            v_cndmask_b32 v{dst+2}, v{t1}, v{dst}, vcc
            v_cndmask_b32 v{dst}, v{t1}, v{dst}, s[62:63]
            """)
        A(f"""
        s_cmp_eq_u32 {w}, 0
        s_cselect_b32 s92, s6, s8
        s_cselect_b32 s93, s7, s9
        s_cmp_ge_u32 {w}, 2
        s_cselect_b32 s92, s4, s92
        s_cselect_b32 s93, s5, s93
        s_mov_b32 s94, {1024*6144}
        s_cselect_b32 s94, {2048*2048}, s94
        s_mov_b32 s95, 0x00020000
        """)
    rng = lambda t: range(*map(int, t.split(":"))) if t else range(0)
    PFA_ = rng(cfg.get("pfa", f"0:{4+L2D}")); PFB_ = rng(cfg.get("pfb", ""))
    PFA, PFD = 252, 253
    def l2pf(step=None):
        if step is None:
            A("s_and_b32 s55, s59, 31")
        else:
            A(f"s_add_u32 s55, s63, {step}")
            A("s_and_b32 s55, s55, 31")
        A(f"s_mul_i32 s55, s55, {32*6144}")
        A(f"buffer_load_dword v{PFD}, v{PFA}, s[92:95], s55 offen")
        if step is None: A("s_add_u32 s59, s59, 1")
    PF2 = cfg.get("pf2")
    def touch():
        return [f"buffer_load_dword v{PFD}, v{PFA}, s[92:95], s55 offen", "s_add_u32 s55, s55, s59", "s_cmp_eq_u32 s55, s56",
                "s_cselect_b32 s55, 0, s55", "s_xor_b32 s59, s59, s57"]
    if PF2:
        XW = int(cfg.get("pfx", 1))
        HM = cfg.get("hmap", "f") == "h"
        RB = 1 if HM else 2
        HB = 4 if HM else 3
        R20 = 0 if cfg.get("r2") == "early0" else 4
        A(f"""
        s_and_b32 s47, s42, 1
        s_lshl_b32 s47, s47, {RB}
        s_and_b32 s38, s41, {(1 << RB) - 1}
        s_add_u32 s47, s47, s38
        s_lshr_b32 s38, s42, 1
        s_lshl_b32 s47, s47, {4 - RB}
        s_lshl_b32 s38, s38, 7
        v_and_b32 v4, {(1 << (4 - RB)) - 1}, v0
        v_add_u32 v4, s47, v4
        v_mul_u32_u24 v4, 6144, v4
        v_lshrrev_b32 v5, {4 - RB}, v0
        v_lshl_add_u32 v4, v5, 11, v4    ; + segment * 2048
        v_add_u32 v4, s38, v4
        s_lshl_b32 s47, s41, 8
        s_and_b32 s38, s42, {(1 << HB) - 1}
        s_lshl_b32 s38, s38, {8 - HB}
        s_add_u32 s47, s47, s38
        v_add_u32 v6, s47, v0
        v_lshlrev_b32 v6, 11, v6
        s_cmp_eq_u32 s40, 0
        s_cselect_b64 vcc, -1, 0
        s_cselect_b32 s38, {1 << (7 - HB)}, {3 << (4 - RB)}
        v_mov_b32 v5, 0x7ffffff0
        v_cndmask_b32 v4, v4, v6, vcc
        v_cmp_gt_u32 vcc, s38, v0
        s_cmp_eq_u32 s40, 2
        s_cselect_b32 s92, s6, s8
        s_cselect_b32 s93, s7, s9
        s_cmp_ge_u32 s40, 2
        s_cselect_b32 s62, {1024*6144}, 0
        v_cndmask_b32 v{PFA}, v5, v4, vcc
        s_lshr_b32 s63, s45, {RSH}
        s_mul_i32 s63, s63, {ROT}
        s_and_b32 s47, s45, 1
        s_mul_i32 s47, s47, {ROT2}
        s_add_u32 s63, s63, s47
        s_add_u32 s63, s63, {R20}
        s_and_b32 s55, s63, 31
        s_mul_i32 s55, s55, {32*6144}
        s_mov_b32 s59, {32*6144}
        s_mov_b32 s57, 0
        s_mov_b32 s56, {1024*6144}
        s_cmp_lg_u32 s40, 0
        s_cbranch_scc1 K1_PFW
        s_mov_b32 s92, s4
        s_mov_b32 s93, s5
        s_mov_b32 s62, {2048*2048 if XW else 0}
        s_lshr_b32 s55, s63, 1
        s_and_b32 s55, s55, 15
        s_lshl_b32 s55, s55, 7
        s_mov_b32 s59, {1 << (18 - HB)}
        s_mov_b32 s57, {(1 << (18 - HB)) ^ ((128 - (1 << (18 - HB))) & 0xffffffff)}
        s_mov_b32 s56, 2048
        K1_PFW:
        s_mov_b32 s94, s62
        s_mov_b32 s95, 0x00020000
        """)
        if cfg.get("r2") == "early0":
            for t in range(int(cfg.get("e0n", 4))):
                for l in touch(): A(l)
        if cfg.get("r2") == "early":
            for t in range(L2D):
                for l in touch(): A(l)
    elif L2D:
        A(f"""
        s_and_b32 s47, s42, 1
        s_lshl_b32 s47, s47, 2
        s_and_b32 s38, s41, 3
        s_add_u32 s47, s47, s38
        s_lshr_b32 s38, s42, 1
        
        s_lshl_b32 s47, s47, 2
        s_lshl_b32 s38, s38, 7
        v_and_b32 v4, 3, v0
        v_add_u32 v4, s47, v4
        v_mul_u32_u24 v4, 6144, v4
        v_lshrrev_b32 v5, 2, v0
        v_lshl_add_u32 v4, v5, 11, v4    ; + segment * 2048
        v_add_u32 v4, s38, v4
        v_mov_b32 v5, 0x7ffffff0
        v_cmp_gt_u32 vcc, 12, v0
        s_cmp_eq_u32 s40, 2
        s_cselect_b32 s92, s6, s8
        s_cselect_b32 s93, s7, s9
        s_cmp_ge_u32 s40, 2
        s_cselect_b32 s62, {1024*6144}, 0
        s_mov_b32 s94, s62
        s_mov_b32 s95, 0x00020000
        v_cndmask_b32 v{PFA}, v5, v4, vcc
        s_lshr_b32 s63, s45, {RSH}
        s_mul_i32 s63, s63, {ROT}
        s_add_u32 s59, s63, {4 + L2D}
        """)
        for t in PFA_: l2pf(t)
    if PF4:
        assert ROT == 0 and ROT2 == 0
        touch_addr("s40", PFA, 4, 5, 6, False, "s62")
        A(f"""
        s_cmp_ge_u32 s40, 2
        s_mov_b32 s59, {64*6144}
        s_cselect_b32 s59, 128, s59
        s_mov_b32 s55, 0
        """)
        for t in range(int(cfg.get("r0", 0))):
            A(f"buffer_load_dword v{PFD}, v{PFA}, s[92:95], s55 offen")
            A("s_add_u32 s55, s55, s59")
        A(f"""
        s_cmp_ge_u32 s40, 2
        s_mov_b32 s55, {TL*32*6144}
        s_cselect_b32 s55, {TL*64}, s55
        """)
    rstamp(42)
    setup_p2(A)
    rstamp(43)
    A(f"""
    s_cmp_lg_u32 s40, 0
    s_cbranch_scc1 K1_NOZ
    v_lshlrev_b32 v4, 2, v0
    v_lshrrev_b32 v6, 2, v0
    v_lshlrev_b32 v6, 9, v6
    v_and_b32 v7, 3, v0
    v_lshl_add_u32 v6, v7, 2, v6
    v_mov_b32 v5, 0
    s_mov_b64 exec, 3
    buffer_store_dword v5, v4, s[32:35], s67 offen sc1
    buffer_store_dword v5, v4, s[32:35], s88 offen sc1
    s_mov_b64 exec, 0xff
    buffer_store_dword v5, v4, s[32:35], s68 offen sc1
    buffer_store_dword v5, v6, s[32:35], s69 offen sc1
    s_mov_b32 s36, s86
    s_mov_b32 s37, s87
    s_mov_b32 s38, 256
    s_mov_b32 s39, 0x00020000
    """)
    LATE = cfg.get("late")
    if not LATE:
        A("""
        s_waitcnt vmcnt(0)
        s_mov_b64 exec, 1
        v_mov_b32 v6, 1
        buffer_atomic_add v6, v5, s[36:39], 0 offen
        s_mov_b64 exec, -1
        """)
    else:
        A("s_mov_b64 exec, -1")
    A("""
    K1_NOZ:
    """)
    rstamp(44)
    setup_p3(A)
    rstamp(45)
    XA, WA = 4, 20
    XB, WB = 32, 48
    ACC = 60
    acc = lambda sg, tt: ACC + (sg * 4 + tt) * 16
    A(f"""
    s_lshr_b32 s50, s40, 1           ; th
    s_and_b32 s51, s40, 1            ; type
    v_and_b32 v4, 31, v0
    v_lshrrev_b32 v5, 5, v0          ; hh
    v_bfe_u32 v6, v0, 2, 2           ; f = (l>>2)&3
    v_bfe_u32 v7, v0, 1, 3           ; (row>>1)&7
    v_xor_b32 v7, v5, v7
    v_lshlrev_b32 v7, 4, v7
    v_lshl_add_u32 v1, v4, 7, v7
    s_lshl_b32 s47, s50, 14
    v_add_u32 v1, s47, v1            ; vxa0
    v_xor_b32 v2, 32, v1             ; vxa1
    v_lshl_add_u32 v7, v5, 3, v6
    v_lshlrev_b32 v7, 6, v7          ; *64
    v_bfe_u32 v8, v0, 4, 1           ; g&1
    v_lshl_add_u32 v7, v8, 5, v7
    v_and_b32 v9, 3, v0
    v_lshl_add_u32 v7, v9, 3, v7
    s_lshl_b32 s47, s51, 11
    s_add_u32 s47, s47, {K1_WB}
    v_add_u32 v3, s47, v7            ; vwa
    """)
    M16 = cfg.get("m16")
    if M16:
        assert cfg.get("e8") and cfg.get("spread")
        A(f"""
        v_and_b32 v4, 15, v0             ; i
        v_lshrrev_b32 v5, 4, v0          ; q4
        v_lshrrev_b32 v6, 1, v4
        v_xor_b32 v6, v5, v6
        v_lshlrev_b32 v6, 4, v6
        v_lshl_add_u32 v1, v4, 7, v6
        s_lshl_b32 s38, s50, 14
        v_add_u32 v1, s38, v1
        v_lshrrev_b32 v6, 2, v4
        v_lshl_add_u32 v6, v5, 3, v6     ; k row 8 q4 + (i >> 2)
        v_lshlrev_b32 v6, 6, v6
        v_and_b32 v7, 1, v5
        v_lshl_add_u32 v6, v7, 5, v6
        v_and_b32 v7, 3, v0
        v_lshl_add_u32 v6, v7, 3, v6
        v_add_u32 v3, s47, v6            ; W columns 0..15
        v_xor_b32 v2, 32, v3             ; W columns 16..31
        """)
    A(f"""
    s_mov_b32 s48, {1 if cfg.get("spread") else 0}
    s_mov_b32 s49, {K1_SLOT}
    s_mov_b32 s65, 0
    s_mov_b32 s52, {K1_SLOT}
    s_mov_b32 s53, {-(K1_NSLOT-1)*K1_SLOT & 0xffffffff}
    s_mov_b32 s54, 32
    s_mov_b32 s64, 0                 ; x slot
    s_mov_b32 s66, {-(K1_NX-1)*K1_XS & 0xffffffff}
    """)
    for i in range(192):
        A(f"v_mov_b32 v{ACC+i}, 0")
    if PF2 and cfg.get("r2") != "early":
        for t in range(L2D + (4 - int(cfg.get("e0n", 4)) if cfg.get("r2") == "early0" else 0)):
            for l in touch(): A(l)
    rstamp(46)
    A("s_barrier")
    vstamp(A, cfg, 1, PV)
    if cfg.get("prof") == "4":
        A("s_memrealtime s[96:97]")
        A("s_waitcnt lgkmcnt(0)")
        A(f"v_writelane_b32 v{PV}, s96, 0")
    if cfg.get("prof") == "3":
        A("s_memtime s[96:97]")
        A("s_mov_b32 s100, 0")
        A("s_waitcnt lgkmcnt(0)")
        A("s_mov_b32 s101, s96")
    if L2D:
        for t in PFB_: l2pf(t)
    def reads(X, W, s):
        r = []
        xa = 1 if s == 0 else 2
        for tt in range(4):
            r.append(f"ds_read_b128 v[{X+4*tt}:{X+4*tt+3}], v{xa} offset:{tt*4096}")
        for sg in range(3):
            for sec in range(2):
                r.append(f"ds_read_b64_tr_b16 v[{W+4*sg+2*sec}:{W+4*sg+2*sec+1}], v3 offset:{sg*4096 + s*1024 + sec*256}")
        return [r[4], r[5], r[0], r[1], r[2], r[3], r[6], r[7], r[8], r[9]]
    def mfmas(X, W):
        m = []
        for sg in range(3):
            for tt in range(4):
                a = acc(sg, tt)
                w = f"v[{W+4*sg}:{W+4*sg+3}]"; x = f"v[{X+4*tt}:{X+4*tt+3}]"
                if cfg.get("exp16"):
                    m.append(f"v_mfma_f32_16x16x32_bf16 v[{a}:{a+3}], {w}, {x}, v[{a}:{a+3}]\nv_mfma_f32_16x16x32_bf16 v[{a+8}:{a+11}], {x}, {w}, v[{a+8}:{a+11}]")
                elif sg < 2: m.append(f"v_mfma_f32_32x32x16_bf16 v[{a}:{a+15}], {w}, {x}, v[{a}:{a+15}]")
                else:      m.append(f"v_mfma_f32_32x32x16_bf16 v[{a}:{a+15}], {x}, {w}, v[{a}:{a+15}]")
        return m
    X16, W16 = 4, 36
    def acc16(g, c):
        sg, ch = c >> 1, c & 1
        return acc(sg, g >> 1) + ((g & 1) * 8 + ch * 4 if sg < 2 else ch * 8 + (g & 1) * 4)
    def mf16(g, c):
        a = acc16(g, c); w = f"v[{W16+4*c}:{W16+4*c+3}]"; x = f"v[{X16+4*g}:{X16+4*g+3}]"
        return f"v_mfma_f32_16x16x32_bf16 v[{a}:{a+3}], " + (f"{w}, {x}" if c < 4 else f"{x}, {w}") + f", v[{a}:{a+3}]"
    rx16 = lambda g: f"ds_read_b128 v[{X16+4*g}:{X16+4*g+3}], v1 offset:{g*2048}"
    rw16 = lambda c, sec: f"ds_read_b64_tr_b16 v[{W16+4*c+2*sec}:{W16+4*c+2*sec+1}], v{3 - (c & 1)} offset:{(c >> 1)*4096 + sec*256}"
    H1R = {0: [rx16(0)], 1: [rx16(1)], 2: [rx16(2)], 3: [rw16(0, 0)], 4: [rx16(3), rw16(0, 1)], 23: [rw16(5, 0), rw16(5, 1)]}
    for c in range(1, 5):
        H1R[4*c+3] = [rw16(c, 0)]; H1R[4*c+4] = H1R.get(4*c+4, []) + [rw16(c, 1)]
    if M16:
        for k in range(24):
            for l in H1R.get(k, []): A(l)
    else:
        for l in reads(XA, WA, 0): A(l)
    if LATE:
        A("""
        s_cmp_lg_u32 s40, 0
        s_cbranch_scc1 K1_NOARR
        s_mov_b32 s96, s86
        s_mov_b32 s97, s87
        s_mov_b32 s98, 256
        s_mov_b32 s99, 0x00020000
        v_mov_b32 v32, 0
        v_mov_b32 v33, 1
        s_waitcnt vmcnt(0)
        s_mov_b64 exec, 1
        buffer_atomic_add v33, v32, s[96:99], 0 offen
        s_mov_b64 exec, -1
        K1_NOARR:
        """)
    if PF4:
        for t in range((TC - TL) // 2):
            A(f"buffer_load_dword v{PFD}, v{PFA+2}, s[92:95], s55 offen")
            A("s_add_u32 s55, s55, s59")
    A.label("K1_CLOOP")
    if M16:
        XP = int(cfg.get("m16x", 0))
        ex0 = {XP+5: ["v_xad_u32 v1, v1, 64, s65"], XP+7: ["v_add_u32 v3, s49, v3"], XP+9: ["v_add_u32 v2, s49, v2"]}
        sal = ["s_sub_u32 s54, s54, 1", "s_and_b32 s63, s54, 1", "s_add_u32 s64, s64, s63",
               f"s_cmp_eq_u32 s64, {K1_NX}", f"s_cselect_b32 s65, s66, {K1_XS}", "s_cselect_b32 s64, 0, s64",
               "s_mul_i32 s65, s65, s63", "s_add_u32 s48, s48, 1", f"s_cmp_eq_u32 s48, {K1_NSLOT}",
               "s_cselect_b32 s49, s53, s52", "s_cselect_b32 s48, 0, s48", "s_cmp_lg_u32 s54, 0"]
        free = [k for k in range(5, 23) if len(H1R.get(k, [])) == 0]
        ex1 = {k: [] for k in free}
        for n, l in enumerate(sal): ex1[free[n * len(free) // len(sal)]].append(l)
        for k in range(24):
            if k % 4 == 0:
                c = k // 4
                A(f"s_waitcnt lgkmcnt({2 * (5 - c) + min(4, max(0, k - XP))})")
            A(mf16(k % 4, k // 4))
            if XP <= k < XP + 4: A(rx16(4 + k - XP))
            for l in ex0.get(k, []): A(l)
        A("s_waitcnt lgkmcnt(0)")
        for k in range(24):
            A(mf16(4 + k % 4, k // 4))
            for l in H1R.get(k, []) + ex1.get(k, []): A(l)
    else:
        A("s_waitcnt lgkmcnt(0)")
    m = mfmas(XA, WA); r = reads(XB, WB, 1)
    extra0 = {4: ["s_and_b32 s63, s54, 1", "s_add_u32 s64, s64, s63", f"s_cmp_eq_u32 s64, {K1_NX}",
                  f"s_cselect_b32 s65, s66, {K1_XS}", "s_cselect_b32 s64, 0, s64", "s_mul_i32 s65, s65, s63"],
              6: ["s_add_u32 s48, s48, 1", f"s_cmp_eq_u32 s48, {K1_NSLOT}", "s_cselect_b32 s49, s53, s52", "s_cselect_b32 s48, 0, s48"],
              7: ["v_xor_b32 v1, 64, v1", "v_xor_b32 v2, 64, v2"], 8: ["v_add_u32 v1, s65, v1", "v_add_u32 v2, s65, v2"], 9: ["v_add_u32 v3, s49, v3"]}
    SPREAD = cfg.get("spread")
    extra1 = {}
    if SPREAD:
        extra0 = {6: ["v_xad_u32 v1, v1, 64, s65"], 8: ["v_xad_u32 v2, v2, 64, s65"], 10: ["v_add_u32 v3, s49, v3"]}
        extra1 = {5: ["s_sub_u32 s54, s54, 1", "s_and_b32 s63, s54, 1", "s_add_u32 s64, s64, s63"],
                  6: [f"s_cmp_eq_u32 s64, {K1_NX}", f"s_cselect_b32 s65, s66, {K1_XS}", "s_cselect_b32 s64, 0, s64"],
                  7: ["s_mul_i32 s65, s65, s63", "s_add_u32 s48, s48, 1", f"s_cmp_eq_u32 s48, {K1_NSLOT}"],
                  8: ["s_cselect_b32 s49, s53, s52", "s_cselect_b32 s48, 0, s48"],
                  11: ["s_cmp_lg_u32 s54, 0"]}
        if PF2:
            t_ = touch()
            th_, tk_ = map(int, cfg.get("tpos", "1:9").split(":"))
            ex_ = extra1 if th_ else extra0
            after_dec = th_ == 1 and tk_ >= 5
            cmp_ = f"s_cmp_ge_u32 s54, {4 + L2D}" if after_dec else f"s_cmp_gt_u32 s54, {4 + L2D}"
            def addx(d, k, ls, front=False):
                d[k] = (ls + d.get(k, [])) if front else (d.get(k, []) + ls)
            if th_ == 1 and tk_ == 9:
                extra1[9] = [cmp_, "s_cselect_b32 s94, s62, 0", t_[0]]
                extra1[10] = t_[1:4]
                extra1[11] = [t_[4], "s_cmp_lg_u32 s54, 0"]
            else:
                assert not (th_ == 1 and 3 < tk_ < 9)
                addx(ex_, tk_, [cmp_, "s_cselect_b32 s94, s62, 0", t_[0]])
                addx(ex_, tk_ + 1, [t_[1], t_[2], t_[3], t_[4]])
        elif L2D:
            extra1[9] = [f"s_cmp_ge_u32 s54, {4 + L2D}", "s_cselect_b32 s94, s62, 0", "s_and_b32 s55, s59, 31"]
            extra1[10] = [f"s_mul_i32 s55, s55, {32*6144}", "s_add_u32 s59, s59, 1", f"buffer_load_dword v{PFD}, v{PFA}, s[92:95], s55 offen"]
    for k in range(0 if M16 else 12):
        A(m[k])
        if k < 5:
            A(r[2*k]); A(r[2*k+1])
        for l in extra0.get(k, []): A(l)
        if L2D and k == 10 and not SPREAD:
            assert not PF2
            A(f"s_cmp_gt_u32 s54, {4 + L2D}")
            A("s_cselect_b32 s94, s62, 0")
            l2pf()
    if not M16: A("s_waitcnt lgkmcnt(0)")
    m = mfmas(XB, WB); r = reads(XA, WA, 0)
    for k in range(0 if M16 else 12):
        A(m[k])
        if k < 5:
            A(r[2*k]); A(r[2*k+1])
        for l in extra1.get(k, []): A(l)
        if k == 8 and not SPREAD:
            A("s_sub_u32 s54, s54, 1"); A("s_cmp_lg_u32 s54, 0")
    if cfg.get("prof") == "3":
        A("s_memtime s[96:97]")
        A("s_barrier")
        A("s_memtime s[98:99]")
        A("s_waitcnt lgkmcnt(0)")
        A("s_sub_u32 s98, s98, s96")
        A("s_add_u32 s100, s100, s98")
        A("s_cmp_lg_u32 s54, 0")
    elif cfg.get("prof") == "4":
        A("s_barrier")
        A("s_memrealtime s[96:97]")
        A("s_sub_u32 m0, 32, s54")
        A("s_waitcnt lgkmcnt(0)")
        A(f"v_writelane_b32 v{PV}, s96, m0")
        A("s_cmp_lg_u32 s54, 0")
    else:
        A("s_barrier")
    A("s_cbranch_scc1 K1_CLOOP")
    A("s_waitcnt lgkmcnt(0)")
    if cfg.get("prof") == "3":
        A("s_memtime s[96:97]")
        A("s_waitcnt lgkmcnt(0)")
        A("s_sub_u32 s96, s96, s101")
        A(f"v_writelane_b32 v{PV}, s100, 0")
        A(f"v_writelane_b32 v{PV}, s96, 2")
    vstamp(A, cfg, 2, PV)
    E8 = cfg.get("e8")
    T1 = 4
    VB = acc(1, 0)
    QL = E8 and cfg.get("qlate", "1") == "1"
    V = acc(0, 2) if QL else acc(1, 0)
    Q = V + 16 if QL else acc(1, 0) + 32
    NT8 = 2 if E8 else 4
    if M16:
        A("""
        v_and_b32 v42, 15, v0            ; i
        v_lshrrev_b32 v43, 4, v0
        v_lshlrev_b32 v1, 4, v42
        v_lshl_add_u32 v40, v43, 9, v1
        v_and_b32 v41, 1, v43
        v_lshl_add_u32 v41, v41, 10, v1
        v_lshrrev_b32 v43, 1, v43
        v_lshl_add_u32 v41, v43, 9, v41
        v_lshrrev_b32 v42, 3, v42
        v_lshl_add_u32 v42, v42, 7, v40
        """)
    A(f"""
    v_lshlrev_b32 v1, 4, v0          ; lane*16
    s_cmp_lg_u32 s51, 0
    s_cbranch_scc1 K1_E1T1
    s_mov_b32 s56, {fhex(32**-0.5 * LOG2E)}
    s_mov_b32 s57, s56
    s_lshl_b32 s47, s50, 13
    s_add_u32 s47, s47, {QST}
    v_add_u32 v44, s47, v{40 if M16 else 1}
    """)
    O2 = 256 if M16 else 1024
    def swap_tile(d):
        if M16:
            for k in range(4): A(f"v_permlane16_swap_b32 v{d+k}, v{d+4+k}")
    def handoff(srcs):
        for k, src in enumerate(srcs):
            cvt_tile(A, T1 + 8*k, src)
            A(f"ds_write_b128 v45, v[{T1+8*k}:{T1+8*k+3}] offset:{k*2048}")
            A(f"ds_write_b128 v45, v[{T1+8*k+4}:{T1+8*k+7}] offset:{k*2048+O2}")
        A("s_waitcnt lgkmcnt(0)")
        A("s_barrier")
    if E8:
        A(f"""
        s_lshl_b32 s47, s50, 13
        s_add_u32 s47, s47, {HB0}
        v_add_u32 v45, s47, v{41 if M16 else 1}
        """)
        A.nop(2)
        handoff([acc(0, 2), acc(0, 3), acc(2, 2), acc(2, 3)])
    else:
        A.nop(6)
    def bq_stage(tts, sc, adr, inplace):
        for tt in tts:
            for k in range(8):
                a = acc(1, tt) + 2*k
                A(f"v_pk_mul_f32 v[{a}:{a+1}], v[{a}:{a+1}], s[{sc}:{sc+1}]")
            d = acc(1, tt) if inplace else T1 + 8*tt
            cvt_tile(A, d, acc(1, tt))
            A(f"ds_write_b128 v{adr}, v[{d}:{d+3}] offset:{tt*2048}")
            A(f"ds_write_b128 v{adr}, v[{d+4}:{d+7}] offset:{tt*2048+O2}")
    if QL:
        A("""
        v_mov_b32 v26, v44
        s_mov_b32 s64, s56
        s_mov_b32 s65, s56
        """)
    else:
        bq_stage(range(4), 56, 44, False)
    for tt in range(NT8):
        cvt_tile(A, V + 8*tt, acc(2, tt))
        swap_tile(V + 8*tt)
    A("s_branch K1_E2J")
    A.label("K1_E1T1")
    A(f"""
    s_lshl_b32 s58, s41, 1
    s_add_u32 s58, s58, s50
    s_lshl_b32 s58, s58, 14
    s_add_u32 s58, s58, s70
    s_lshl_b32 s47, s50, 14
    v_add_u32 v44, s47, v{42 if M16 else 1}
    v_add_u32 v43, s47, v{40 if M16 else 1}
    """)
    if E8:
        A(f"""
        s_lshl_b32 s47, s50, 12
        s_add_u32 s47, s47, {HB1}
        v_add_u32 v45, s47, v{41 if M16 else 1}
        """)
        handoff([acc(0, 2), acc(0, 3)])
    else:
        A.nop(10)
    KA, K2 = (42, 128) if M16 else (1, 1024)
    VA = 40 if M16 else 1
    for tt in range(4):
        cvt_tile(A, T1 + 8*tt, acc(1, tt))
        A(f"buffer_store_dwordx4 v[{T1+8*tt}:{T1+8*tt+3}], v{KA}, s[32:35], s58 offen sc1")
        A(f"buffer_store_dwordx4 v[{T1+8*tt+4}:{T1+8*tt+7}], v{KA}, s[32:35], s58 offen offset:{K2} sc1")
        A("s_add_u32 s58, s58, 4096")
    A(f"s_sub_u32 s58, s58, {4*4096 - 2048}")
    for tt in range(4):
        cvt_tile(A, VB + 8*tt, acc(2, tt))
        A(f"buffer_store_dwordx4 v[{VB+8*tt}:{VB+8*tt+3}], v{VA}, s[32:35], s58 offen sc1")
        A(f"buffer_store_dwordx4 v[{VB+8*tt+4}:{VB+8*tt+7}], v{VA}, s[32:35], s58 offen offset:{O2} sc1")
        A("s_add_u32 s58, s58, 4096")
    for tt in range(4):
        A(f"ds_write_b128 v44, v[{T1+8*tt}:{T1+8*tt+3}] offset:{tt*4096}")
        A(f"ds_write_b128 v44, v[{T1+8*tt+4}:{T1+8*tt+7}] offset:{tt*4096+K2}")
        A(f"ds_write_b128 v43, v[{VB+8*tt}:{VB+8*tt+3}] offset:{tt*4096+2048}")
        A(f"ds_write_b128 v43, v[{VB+8*tt+4}:{VB+8*tt+7}] offset:{tt*4096+2048+O2}")
    A.label("K1_E2J")
    WP = 36
    krow = (lambda s, sec: 16*sec + 4*s) if M16 else (lambda s, sec: 16*s + 8*sec)
    def feat_setup(tb):
        A(f"""
        v_lshrrev_b32 v5, 5, v0          ; hh
        v_bfe_u32 v6, v0, 2, 2           ; i>>2
        v_lshl_add_u32 v6, v5, {3 if M16 else 2}, v6     ; 4hh + (i>>2)
        v_bfe_u32 v7, v0, 4, 1
        v_lshlrev_b32 v7, 5, v7
        v_and_b32 v8, 3, v0
        v_lshl_add_u32 v7, v8, 3, v7     ; (g&1)*32 + (i&3)*8
        v_lshl_add_u32 v2, v6, 6, v7
        v_add_u32 v2, {K1_WPHI}, v2
        """)
        for s in range(2):
            for sec in range(2):
                A(f"ds_read_b64_tr_b16 v[{WP+4*s+2*sec}:{WP+4*s+2*sec+1}], v2 offset:{krow(s, sec)*64}")
        A(f"""
        s_mul_i32 s47, s50, {K1_TBUF}
        s_add_u32 s47, s47, {tb}
        v_mul_u32_u24 v25, 136, v6
        v_add_u32 v25, v25, v7
        v_add_u32 v25, s47, v25
        v_and_b32 v8, 31, v0
        v_mul_u32_u24 v24, 136, v8
        v_lshl_add_u32 v24, v5, 3, v24
        v_add_u32 v24, s47, v24
        v_bfe_u32 v8, v0, 2, 1
        v_bfe_u32 v9, v0, 4, 1
        v_cmp_eq_u32 vcc, v8, v9
        v_mov_b32 v9, 0x3f803f80
        v_mov_b32 v8, 0
        v_cndmask_b32 v20, v8, v9, vcc
        v_cndmask_b32 v21, v8, v9, vcc
        v_cndmask_b32 v22, v8, v9, vcc
        v_cndmask_b32 v23, v8, v9, vcc
        """)
    feat_setup(TBUF0)
    for tt in range(NT8):
        cvt_tile(A, Q + 8*tt, acc(0, tt))
        swap_tile(Q + 8*tt)
    if M16: A("s_nop 0")
    if E8: A.label("K1_E2L")
    A("s_waitcnt lgkmcnt(0)")
    for tt in range(NT8):
        a = acc(0, tt)
        A(f"v_mfma_f32_32x32x16_bf16 v[{a}:{a+15}], v[{WP}:{WP+3}], v[{Q+8*tt}:{Q+8*tt+3}], 0")
    for tt in range(NT8):
        a = acc(0, tt)
        A(f"v_mfma_f32_32x32x16_bf16 v[{a}:{a+15}], v[{WP+4}:{WP+7}], v[{Q+8*tt+4}:{Q+8*tt+7}], v[{a}:{a+15}]")
    A(f"""
    s_mov_b32 s56, {fhex(LOG2E)}
    s_mov_b32 s57, s56
    """)
    A.nop(10)
    EP = acc(2, 0)
    PH = EP + 16
    AF = PH + 16
    KV0 = AF + 16
    KV1 = 44
    Z0, Z1, SEL1 = 12, 16, 20
    PHQ = 128
    def kv_mfmas(tt):
        out = []
        for s in range(2):
            for fb in range(2):
                kv = KV0 if fb == 0 else KV1
                z = Z0 if fb == 0 else Z1
                af = AF + (fb*2+s)*4
                c = "0" if (tt == 0 and s == 0) else f"v[{kv}:{kv+15}]"
                cz = "0" if (tt == 0 and s == 0) else f"v[{z}:{z+3}]"
                out.append(f"v_mfma_f32_32x32x16_bf16 v[{kv}:{kv+15}], v[{af}:{af+3}], v[{V+8*tt+4*s}:{V+8*tt+4*s+3}], {c}")
                out.append(f"v_mfma_f32_16x16x32_bf16 v[{z}:{z+3}], v[{SEL1}:{SEL1+3}], v[{af}:{af+3}], {cz}")
        return out
    if E8: F1POS = min(int(cfg.get("f1pos", 0)), 1)
    for tt in range(NT8):
        P = acc(0, tt)
        A(f"v_max3_f32 v4, v{P}, v{P+1}, v{P+2}")
        A(f"v_max3_f32 v5, -v{P}, -v{P+1}, -v{P+2}")
        for k in range(3, 15, 2):
            A(f"v_max3_f32 v4, v4, v{P+k}, v{P+k+1}")
            A(f"v_max3_f32 v5, v5, -v{P+k}, -v{P+k+1}")
        A(f"v_max_f32 v4, v4, v{P+15}")
        A(f"v_max_f32 v5, v5, -v{P+15}")
        A.nop(2)
        A("v_permlane32_swap_b32 v4, v5")
        A("s_nop 0")
        A("v_max_f32 v4, v4, v5")
        A("v_mov_b32 v5, v4")
        A.nop(2)
        A("v_permlane32_swap_b32 v4, v5")
        A("s_nop 0")
        A(f"v_mul_f32 v6, {fhex(-LOG2E)}, v4")
        A(f"v_mul_f32 v8, {fhex(-LOG2E)}, v5")
        for k in range(8):
            A(f"v_pk_fma_f32 v[{EP+2*k}:{EP+2*k+1}], v[{P+2*k}:{P+2*k+1}], s[56:57], v[6:7] op_sel_hi:[1,1,0]")
            A(f"v_pk_fma_f32 v[{P+2*k}:{P+2*k+1}], v[{P+2*k}:{P+2*k+1}], s[56:57], v[8:9] op_sel_hi:[1,1,0] neg_lo:[0,1,0] neg_hi:[0,1,0]")
        for k in range(16):
            A(f"v_exp_f32 v{EP+k}, v{EP+k}")
            A(f"v_exp_f32 v{P+k}, v{P+k}")
        if tt > 0:
            j = A.uid("K1_KVS")
            A("s_cmp_lg_u32 s51, 0"); A(f"s_cbranch_scc1 {j}")
            A("s_waitcnt lgkmcnt(0)")
            for l in kv_mfmas(tt-1): A(l)
            A.label(j)
        A(f"v_pk_add_f32 v[4:5], v[{EP}:{EP+1}], v[{EP+2}:{EP+3}]")
        A(f"v_pk_add_f32 v[6:7], v[{P}:{P+1}], v[{P+2}:{P+3}]")
        for k in range(2, 8):
            A(f"v_pk_add_f32 v[4:5], v[4:5], v[{EP+2*k}:{EP+2*k+1}]")
            A(f"v_pk_add_f32 v[6:7], v[6:7], v[{P+2*k}:{P+2*k+1}]")
        A("v_add_f32 v4, v4, v5")
        A("v_add_f32 v6, v6, v7")
        A.nop(2)
        A("v_permlane32_swap_b32 v4, v6")
        A("s_nop 0")
        A("v_add_f32 v4, v4, v6")
        A("v_rcp_f32 v4, v4")
        A("s_nop 0")
        A("v_mov_b32 v6, v4")
        A.nop(2)
        A("v_permlane32_swap_b32 v4, v6")
        A("s_nop 0")
        for k in range(8):
            A(f"v_pk_mul_f32 v[{EP+2*k}:{EP+2*k+1}], v[{EP+2*k}:{EP+2*k+1}], v[4:5] op_sel_hi:[1,0]")
            A(f"v_pk_mul_f32 v[{P+2*k}:{P+2*k+1}], v[{P+2*k}:{P+2*k+1}], v[6:7] op_sel_hi:[1,0]")
        j1 = A.uid("K1_T0"); j2 = A.uid("K1_TJ")
        A("s_cmp_eq_u32 s51, 0"); A(f"s_cbranch_scc1 {j1}")
        cvt_tile(A, PHQ + 16*tt, EP)
        cvt_tile(A, PHQ + 16*tt + 8, P)
        if tt == F1POS:
            if E8:
                A("s_cmp_ge_u32 s40, 4"); A(f"s_cbranch_scc1 {j2}")
            A("s_waitcnt vmcnt(0)")
            set_flag(A, "s67")
            vstamp(A, cfg, 3, PV)
        A(f"s_branch {j2}")
        A.label(j1)
        cvt_tile(A, PH, EP)
        cvt_tile(A, PH + 8, P)
        for sign in range(2):
            for b in range(4):
                A(f"ds_write_b64 v24, v[{PH+8*sign+2*b}:{PH+8*sign+2*b+1}] offset:{sign*64+b*16}")
        for fb in range(2):
            for s in range(2):
                for sec in range(2):
                    af = AF + (fb*2+s)*4 + 2*sec
                    A(f"ds_read_b64_tr_b16 v[{af}:{af+1}], v25 offset:{krow(s, sec)*136 + fb*64}")
        A.label(j2)
    A("s_cmp_lg_u32 s51, 0")
    A("s_cbranch_scc1 KF_JOIN")
    if QL:
        QN = int(cfg.get("qn", 4))
        A("s_cmp_ge_u32 s40, 4")
        A("s_cbranch_scc1 K1_QL0")
        bq_stage(range(QN), 64, 26, True)
        A(f"s_waitcnt lgkmcnt({2 * QN})")
        for l in kv_mfmas(NT8 - 1): A(l)
        bq_stage(range(QN, 4), 64, 26, True)
        A("s_branch K1_QL1")
        A("K1_QL0:")
        A("s_waitcnt lgkmcnt(0)")
        for l in kv_mfmas(NT8 - 1): A(l)
        A("K1_QL1:")
    else:
        A("s_waitcnt lgkmcnt(0)")
        for l in kv_mfmas(NT8 - 1): A(l)
    if E8:
        A(f"""
        s_cmp_ge_u32 s40, 4
        s_cselect_b32 s38, {HB0 - RED0}, 0
        s_cselect_b32 s55, 512, 0
        s_add_u32 s38, s38, {RED0}
        s_add_u32 s55, s55, {ZRED}
        """)
    else:
        A(f"s_mov_b32 s38, {RED0}")
        A(f"s_mov_b32 s55, {ZRED}")
    A(f"""
    s_lshl_b32 s47, s50, 13
    s_add_u32 s47, s47, s38
    v_add_u32 v2, s47, v1
    v_and_b32 v3, 31, v0
    v_lshlrev_b32 v3, 2, v3
    s_lshl_b32 s47, s50, 8
    s_add_u32 s47, s47, s55
    v_add_u32 v3, s47, v3
    """)
    A.nop(8)
    A(f"ds_write_b32 v3, v{Z0}")
    A(f"ds_write_b32 v3, v{Z1} offset:128")
    for fb in range(2):
        kv = KV0 if fb == 0 else KV1
        for q in range(4):
            A(f"ds_write_b128 v2, v[{kv+4*q}:{kv+4*q+3}] offset:{fb*4096+q*1024}")
    A("s_branch KF_JOIN")
    A.label("K1_LOADER")
    if cfg.get("lprio"): A(f"s_setprio {cfg.get('lprio')[0]}")
    srd(A, 16, 4, 2048*2048)
    srd(A, 20, 6, 1024*6144)
    srd(A, 24, 8, 1024*6144)
    A(f"""
    s_sub_u32 s50, s40, 4            ; w
    s_lshr_b32 s44, s50, 1
    s_cmp_eq_u32 s44, 0
    s_cselect_b32 s28, s6, s8
    s_cselect_b32 s29, s7, s9
    """)
    A(f"s_mov_b32 s30, {1024*6144}")
    A("s_mov_b32 s31, 0x00020000")
    R1 = cfg.get("r1", "1") if cfg.get("pf2") else (cfg.get("r1", "0") if (PF3 or PF4) else "0")
    if R1 != "0":
        HM = cfg.get("hmap", "f") == "h"
        RB = 1 if HM else 2; HB = 4 if HM else 3
        NW = 3 << (4 - RB)
        A(f"""
        s_lshr_b32 s47, s45, {RSH}
        s_mul_i32 s47, s47, {ROT}
        s_and_b32 s51, s45, 1
        s_mul_i32 s51, s51, {ROT2}
        s_add_u32 s47, s47, s51
        s_and_b32 s51, s50, 1
        s_lshl_b32 s51, s51, 1
        s_add_u32 s51, s51, s47
        v_mul_u32_u24 v20, 43, v0
        v_lshrrev_b32 v20, {10 if HM else 9}, v20
        v_mul_u32_u24 v21, {NW}, v20
        v_sub_u32 v21, v0, v21           ; lane % NW
        v_add_u32 v20, s51, v20
        v_and_b32 v20, 31, v20
        v_mul_u32_u24 v20, {32*6144}, v20
        s_and_b32 s51, s42, 1
        s_lshl_b32 s51, s51, {RB}
        s_and_b32 s52, s41, {(1 << RB) - 1}
        s_add_u32 s51, s51, s52
        s_lshl_b32 s51, s51, {4 - RB}
        v_and_b32 v22, {(1 << (4 - RB)) - 1}, v21
        v_add_u32 v22, s51, v22
        v_mul_u32_u24 v22, 6144, v22
        v_lshrrev_b32 v21, {4 - RB}, v21
        v_lshl_add_u32 v22, v21, 11, v22
        s_lshr_b32 s51, s42, 1
        s_lshl_b32 s51, s51, 7
        v_add3_u32 v20, v20, v22, s51
        v_mov_b32 v23, 0x7ffffff0
        v_cmp_gt_u32 vcc, {2 * NW}, v0
        s_lshl_b32 s51, s41, 8
        s_and_b32 s52, s42, {(1 << HB) - 1}
        s_lshl_b32 s52, s52, {8 - HB}
        v_cndmask_b32 v20, v23, v20, vcc
        s_add_u32 s51, s51, s52
        s_lshl_b32 s52, s50, {6 - HB}
        s_add_u32 s51, s51, s52
        buffer_load_dword v24, v20, s[28:31], 0 offen
        v_and_b32 v21, {(1 << (6 - HB)) - 1}, v0
        v_add_u32 v21, s51, v21
        v_lshlrev_b32 v21, 11, v21
        v_lshrrev_b32 v22, {6 - HB}, v0
        s_lshr_b32 s47, s47, 1
        v_add_u32 v22, s47, v22
        v_and_b32 v22, 15, v22
        v_lshl_add_u32 v21, v22, 7, v21
        v_cmp_gt_u32 vcc, {2 << (6 - HB)}, v0
        s_nop 1
        v_cndmask_b32 v21, v23, v21, vcc
        buffer_load_dword v25, v21, s[16:19], 0 offen
        """)
    srd(A, 36, 10, 32*2048)
    A(f"""
    v_lshrrev_b32 v1, 3, v0
    v_lshrrev_b32 v2, 4, v0
    v_and_b32 v3, 7, v0
    v_xor_b32 v3, v3, v2
    v_lshlrev_b32 v3, 4, v3
    v_lshl_add_u32 v4, v1, 11, v3
    s_lshl_b32 s47, s41, 8
    s_lshl_b32 s51, s50, 6
    s_add_u32 s47, s47, s51
    s_lshl_b32 s47, s47, 11          ; (r*256 + 64w)*2048
    v_add_u32 v4, s47, v4            ; piece 0
    v_xor_b32 v5, 64, v4
    v_add_u32 v5, 16384, v5
    v_add_u32 v6, 32768, v4
    v_add_u32 v7, 32768, v5
    v_add_u32 v12, 65536, v4
    v_add_u32 v13, 65536, v5
    v_add_u32 v14, 98304, v4
    v_add_u32 v15, 98304, v5
    v_lshrrev_b32 v1, {3 if cfg.get("expw") else 2}, v0
    s_and_b32 s47, s50, 1
    s_lshl_b32 s47, s47, 4
    v_add_u32 v1, s47, v1            ; krow = 16*(w&1) + (l>>2)
    v_mul_u32_u24 v1, 6144, v1
    v_and_b32 v3, {7 if cfg.get("expw") else 3}, v0
    {"v_lshrrev_b32 v2, 4, v0" if cfg.get("m16") else ""}
    {"v_and_b32 v2, 2, v2" if cfg.get("m16") else ""}
    {"v_xor_b32 v3, v2, v3            ; m16 : the column halves of k rows 8..15 change places" if cfg.get("m16") else ""}
    v_lshl_add_u32 v1, v3, 4, v1
    s_lshl_b32 s47, s42, 6           ; 64h
    {"s_and_b32 s47, s47, 0x780" if cfg.get("expw") else ""}
    s_lshl_b32 s51, s44, 11          ; type*2048
    s_add_u32 s52, s47, s51
    v_add_u32 v9, s52, v1            ; seg1 : B.q / B.k
    s_sub_u32 s52, 2048, s51
    s_add_u32 s52, s52, s47
    v_add_u32 v8, s52, v1            ; seg0 : A.k / A.q
    s_add_u32 s52, s47, 4096
    v_add_u32 v10, s52, v1           ; seg2 : A.v / B.v
    v_lshlrev_b32 v11, 4, v0
    s_and_b32 s51, s50, 1
    s_lshl_b32 s51, s51, 10
    s_lshl_b32 s47, s42, 11
    s_add_u32 s47, s47, s51
    s_add_u32 m0, s51, {K1_WPHI}
    s_lshl_b32 s55, s50, 13          ; w*8192  (x pieces)
    {"s_waitcnt vmcnt(0)" if R1 == "1" else ""}
    buffer_load_dwordx4 v11, s[36:39], s47 offen lds
    s_lshl_b32 s51, s50, 10
    s_add_u32 s56, s51, {K1_WB}      ; W pieces : + w*1024
    s_lshr_b32 s47, s45, {RSH}
    s_mul_i32 s47, s47, {ROT}
    s_and_b32 s51, s45, 1
    s_mul_i32 s51, s51, {ROT2}
    s_add_u32 s47, s47, s51
    s_and_b32 s47, s47, 31
    s_lshl_b32 s58, s47, 6           ; soffset x
    s_mul_i32 s59, s47, {32*6144}    ; soffset W
    s_mov_b32 s60, 0                 ; block
    s_mov_b32 s61, s55               ; x slot
    s_mov_b32 s62, s56               ; W slot
    s_add_u32 s55, s55, {K1_XS*K1_NX}
    s_add_u32 s56, s56, {K1_SLOT*K1_NSLOT}
    """)
    if PF3:
        TE = int(cfg.get("te", 2))
        OFFL = int(cfg.get("offl", 0))
        XT = int(cfg.get("pfx", 1))
        BW = TE // 2; LB = BW.bit_length() - 1
        assert cfg.get("hmap", "f") == "f"
        A(f"""
        s_and_b32 s51, s42, 7            ; head within the XCD
        s_and_b32 s52, s41, 3            ; token block within the XCD
        s_and_b32 s63, s42, 1
        s_lshl_b32 s63, s63, 2
        s_add_u32 s63, s63, s52          ; share of the pair's weight lines
        s_lshl_b32 s63, s63, 2           ; first row
        s_and_b32 s64, s50, 1
        s_lshl_b32 s64, s64, {5 + LB}    ; first row of this wave's group of blocks
        s_add_u32 s63, s63, s64
        v_bfe_u32 v27, v0, 2, {LB})
        v_lshlrev_b32 v30, 5, v27        ; 32 * block
        v_and_b32 v26, 3, v0
        v_add3_u32 v26, v26, v30, s63    ; row
        v_mul_u32_u24 v26, 6144, v26
        v_lshrrev_b32 v27, {2 + LB}, v0  ; segment
        v_lshl_add_u32 v26, v27, 11, v26
        s_lshr_b32 s63, s42, 1
        s_lshl_b32 s63, s63, 7
        v_add_u32 v26, s63, v26          ; + column of the pair
        v_mov_b32 v29, 0x7ffffff0
        v_cmp_gt_u32 vcc, 3, v27
        """.replace("v_bfe_u32 v27, v0, 2, 0)", "v_mov_b32 v27, 0").replace(")\n", "\n"))
        if OFFL:
            A(f"""
            s_cmp_lt_u32 s51, 6
            s_cselect_b64 vcc, vcc, 0
            v_cndmask_b32 v26, v29, v26, vcc
            s_lshl_b32 s63, s51, 2
            s_add_u32 s63, s63, s52
            s_lshl_b32 s63, s63, 2
            v_and_b32 v28, 3, v0
            v_add_u32 v31, s63, v28
            v_and_b32 v28, 31, v31
            v_add3_u32 v28, v28, v30, s64
            v_mul_u32_u24 v28, 6144, v28
            v_lshrrev_b32 v31, 5, v31
            v_lshl_add_u32 v28, v31, 11, v28
            s_lshr_b32 s63, s42, 1
            s_or_b32 s63, s63, 3
            s_lshl_b32 s63, s63, 7
            v_add_u32 v28, s63, v28
            v_cmp_eq_u32 vcc, 3, v27
            s_cmp_lt_u32 s51, 6
            s_cselect_b64 vcc, vcc, 0
            v_cndmask_b32 v26, v26, v28, vcc
            """)
        else:
            A("s_nop 1\nv_cndmask_b32 v26, v29, v26, vcc")
        if OFFL == 2:
            A(f"""
            s_mul_i32 s63, s51, 43
            v_add_u32 v27, s63, v0
            v_cmp_gt_u32 vcc, 43, v0
            s_movk_i32 s63, 0x100
            v_cmp_gt_u32 s[64:65], s63, v27
            s_and_b64 vcc, vcc, s[64:65]
            s_cmp_lt_u32 s51, 6
            s_cselect_b64 vcc, vcc, 0
            """)
        else:
            A(f"""
            s_lshl_b32 s63, s51, 5
            v_add_u32 v27, s63, v0
            v_cmp_gt_u32 vcc, 32, v0
            """)
        A(f"""
        s_lshl_b32 s63, s41, 8
        v_add_u32 v27, s63, v27          ; x row
        v_lshlrev_b32 v27, 11, v27
        v_cndmask_b32 v27, v29, v27, vcc
        s_lshr_b32 s63, s58, 6
        s_add_u32 s63, s63, {TL}
        s_and_b32 s63, s63, 31
        s_mul_i32 s64, s63, {32*6144}
        s_lshr_b32 s63, s63, 1
        s_add_u32 s63, s63, s50
        s_and_b32 s63, s63, 15
        s_lshl_b32 s65, s63, 7           ; x offset
        s_cmp_lt_u32 s50, {BW}
        s_cselect_b32 s67, {2048*2048 if XT else 0}, 0
        s_cmp_lt_u32 s50, 2
        s_cselect_b32 s92, s6, s8
        s_cselect_b32 s93, s7, s9
        s_mov_b32 s94, 0
        s_mov_b32 s95, 0x00020000
        s_mov_b32 s88, s4
        s_mov_b32 s89, s5
        s_mov_b32 s90, 0
        s_mov_b32 s91, 0x00020000
        """)
    if PF4:
        touch_addr("s50", 26, 27, 28, 29, True, "s66")
        A(f"""
        s_mov_b32 s67, s94
        s_cmp_ge_u32 s50, 2
        s_mov_b32 s64, {TL*32*6144}
        s_cselect_b32 s64, {TL*64}, s64
        s_mov_b32 s65, {64*6144}
        s_cselect_b32 s65, 128, s65
        """)
    rstamp(42)
    if cfg.get("lprio"): A(f"s_setprio {cfg.get('lprio')[1]}")
    A("K1_LLOOP:")
    XV = [4, 5, 6, 7, 12, 13, 14, 15]
    def ld_x(i0=0, i1=8):
        for i in range(i0, i1):
            A(f"s_add_u32 m0, s61, {i*1024}")
            A("s_nop 0")
            A(f"buffer_load_dwordx4 v{XV[i]}, s[16:19], s58 offen lds")
        if i1 == 8: A(f"""
        s_add_u32 s58, s58, 128
        s_and_b32 s58, s58, 2047
        s_add_u32 s61, s61, {K1_XS}
        s_cmp_eq_u32 s61, s55
        s_cselect_b32 s47, {K1_XS*K1_NX}, 0
        s_sub_u32 s61, s61, s47
        """)
    def ld_w():
        for sg in range(3):
            A(f"s_add_u32 m0, s62, {sg*4096}")
            A("s_nop 0")
            A(f"buffer_load_dwordx4 v{8+sg}, s[{20+4*sg}:{23+4*sg}], s59 offen lds")
        A(f"""
        s_add_u32 s59, s59, {32*6144}
        s_cmp_eq_u32 s59, {1024*6144}
        s_cselect_b32 s59, 0, s59
        s_add_u32 s62, s62, {K1_SLOT}
        s_cmp_eq_u32 s62, s56
        s_cselect_b32 s47, {K1_SLOT*K1_NSLOT}, 0
        s_sub_u32 s62, s62, s47
        """)
    E8 = cfg.get("e8")
    def lsync(n=14):
        if cfg.get("prof") == "3":
            A("s_memtime s[96:97]")
            A(f"s_waitcnt vmcnt({n})")
            A("s_memtime s[98:99]")
            A("s_barrier")
            A("s_memtime s[90:91]")
            A("s_waitcnt lgkmcnt(0)")
            A("s_sub_u32 s96, s98, s96")
            A("s_add_u32 s100, s100, s96")
            A("s_sub_u32 s90, s90, s98")
            A("s_add_u32 s101, s101, s90")
        else:
            A(f"s_waitcnt vmcnt({n})")
            A("s_barrier")
    if cfg.get("prof") == "3":
        A("s_cmp_lg_u32 s60, 0")
        A("s_cbranch_scc1 K1_LP3")
        A("s_mov_b32 s100, 0")
        A("s_mov_b32 s101, 0")
        A.label("K1_LP3")
    BAL = int(cfg.get("bal", 0))
    NT = 2 if PF3 else 1 if PF4 else 0
    if BAL:
        ld_w(); ld_x(0, 8 - BAL)
    else:
        ld_x(); ld_w()
    A("""
    s_cmp_lt_u32 s60, 4
    s_cbranch_scc1 K1_LS1
    """)
    lsync(14 - BAL + NT)
    A("K1_LS1:")
    if BAL: ld_x(8 - BAL, 8)
    ld_w()
    if PF4:
        A(f"""
        s_cmp_le_u32 s60, {30 - TL}
        s_cselect_b32 s94, s67, 0
        buffer_load_dword v31, v26, s[92:95], s64 offen
        s_add_u32 s64, s64, s65
        """)
    if PF3:
        A(f"""
        s_and_b32 s63, s60, {TE - 1}
        s_cmp_le_u32 s60, {32 - TL - TE}
        s_cselect_b32 s63, s63, 1
        s_cmp_eq_u32 s63, 0
        s_cselect_b32 s94, {1024*6144}, 0
        s_cselect_b32 s90, s67, 0
        s_cselect_b32 s63, {TE*32*6144}, 0
        s_cselect_b32 s66, {TE*64}, 0
        buffer_load_dword v31, v26, s[92:95], s64 offen
        buffer_load_dword v31, v27, s[88:91], s65 offen
        s_add_u32 s64, s64, s63
        s_cmp_eq_u32 s64, {1024*6144}
        s_cselect_b32 s64, 0, s64
        s_add_u32 s65, s65, s66
        s_and_b32 s65, s65, 2047
        """)
    A("""
    s_cmp_lt_u32 s60, 2
    s_cbranch_scc1 K1_LS2
    """)
    if cfg.get("prof") == "4":
        A("s_cmp_lg_u32 s60, 2"); A("s_cbranch_scc1 K1_P4A"); rstamp(43); A(f"s_waitcnt vmcnt({14 + 2*NT})"); rstamp(44); A("K1_P4A:")
    lsync(14 + 2*NT)
    A("K1_LS2:")
    GW, GX, GA = (160, 168, 200) if E8 else (32, 64, 40)
    G1 = E8 and cfg.get("g1", "1") == "1"
    NG = 4 if G1 else 2
    XT8 = E8 and cfg.get("xt", "1") == "1"
    def gate_loads():
        srd(A, 36, 12, 2048)
        A(f"""
        s_lshl_b32 s47, s41, 8
        s_lshl_b32 s51, s42, 3
        s_add_u32 s47, s47, s51
        s_lshl_b32 s51, s50, 1
        {"s_and_b32 s51, s51, 4" if G1 else ""}
        s_add_u32 s63, s47, s51          ; t0 = r*256 + h*8 + 2w  /  + 4th
        s_lshl_b32 s51, s63, 11
        v_lshlrev_b32 v1, 5, v0
        buffer_load_dwordx4 v[{GW}:{GW+3}], v1, s[36:39], 0 offen
        buffer_load_dwordx4 v[{GW+4}:{GW+7}], v1, s[36:39], 0 offen offset:16
        """)
        for j in range(NG):
            A(f"buffer_load_dwordx4 v[{GX+8*j}:{GX+8*j+3}], v1, s[16:19], s51 offen")
            A(f"buffer_load_dwordx4 v[{GX+8*j+4}:{GX+8*j+7}], v1, s[16:19], s51 offen offset:16")
            if j < NG - 1: A("s_add_u32 s51, s51, 2048")
    def dbg_srd(r=36):
        A(f"""
        s_mov_b32 s{r}, s86
        s_mov_b32 s{r+1}, s87
        s_mov_b32 s{r+2}, 256
        s_mov_b32 s{r+3}, 0x00020000
        v_mov_b32 v46, 0
        """)
    A(f"""
    s_add_u32 s60, s60, 2
    s_cmp_lt_u32 s60, 32
    s_cbranch_scc1 K1_LLOOP
    """)
    def ltail(gate):
        GN = (3 + 2*NG if gate else 1) if E8 else 0
        if E8:
            if gate:
                gate_loads()
                A("s_mov_b32 s84, s63")
            dbg_srd(92)
            poll_issue(A, 47, 46, 92, "0")
        A(f"""
        s_waitcnt vmcnt({3 + NT + GN})
        s_barrier
        """)
        if E8:
            setup_p2(A)
            A(f"s_add_u32 s74, s74, {2*65536}")
        A(f"""
        s_waitcnt vmcnt({GN})
        s_barrier
        """)
    if G1:
        A("s_bitcmp1_b32 s50, 0")
        A("s_cbranch_scc1 K1_LT1")
        ltail(False)
        A("s_branch K1_LT2")
        A("K1_LT1:")
        ltail(True)
        A("K1_LT2:")
    else:
        ltail(True)
    if cfg.get("prof") == "3":
        A(f"v_writelane_b32 v{PV}, s100, 0")
        A(f"v_writelane_b32 v{PV}, s101, 1")
    if cfg.get("lprio"): A("s_setprio 0")
    if E8:
        setup_p3(A)
        A("s_barrier")
        A(f"""
        s_and_b32 s51, s50, 1
        {"s_xor_b32 s51, s51, 1" if XT8 else ""}
        s_lshr_b32 s50, s50, 1
        """)
        feat_setup(TBUF1)
        A(f"""
        v_lshlrev_b32 v1, 4, v0          ; lane*16
        s_lshl_b32 s47, s50, 13
        s_add_u32 s47, s47, {HB0}
        s_lshl_b32 s38, s50, 12
        s_add_u32 s38, s38, {HB1}
        s_cmp_eq_u32 s51, 0
        s_cselect_b32 s47, s47, s38
        v_add_u32 v45, s47, v1
        """)
        for j in range(NG): A(f"v_mov_b32 v{GA+j}, 0")
        A("s_barrier")
        vstamp(A, cfg, 2, PV)
        A("s_waitcnt vmcnt(0)")
        poll_check(A, 47, 46, 92, "0", "PG", expect="0x100")
        A("s_barrier")
        EPR = cfg.get("eprio", "00")
        if EPR != "00":
            A(f"s_setprio {EPR[1]}")
            A("s_cmp_lg_u32 s51, 0")
            A("s_cbranch_scc1 K1_LP1")
            A(f"s_setprio {EPR[0]}")
            A("K1_LP1:")
        for k in range(2):
            A(f"ds_read_b128 v[{Q+8*k}:{Q+8*k+3}], v45 offset:{k*2048}")
            A(f"ds_read_b128 v[{Q+8*k+4}:{Q+8*k+7}], v45 offset:{k*2048+1024}")
        A("s_cmp_lg_u32 s51, 0")
        A(f"s_cbranch_scc1 {'K1_E2L' if (XT8 and G1) else 'K1_LNV'}")
        for k in range(2):
            A(f"ds_read_b128 v[{V+8*k}:{V+8*k+3}], v45 offset:{4096+k*2048}")
            A(f"ds_read_b128 v[{V+8*k+4}:{V+8*k+7}], v45 offset:{4096+k*2048+1024}")
        if G1 and not XT8: A("s_branch K1_E2L")
        A("K1_LNV:")
        for k in range(8):
            for j in range(NG):
                A(f"v_dot2c_f32_bf16 v{GA+j}, v{GX+8*j+k}, v{GW+k}")
            if NG == 2: A("s_nop 1")
        A.nop(3)
        for rot in (8, 4, 2, 1):
            for j in range(NG): A(f"v_add_f32_dpp v{GA+j}, v{GA+j}, v{GA+j} row_ror:{rot} row_mask:0xf bank_mask:0xf")
            if NG == 2: A("s_nop 1")
        if G1:
            A(f"""
            v_permlane16_swap_b32 v{GA}, v{GA+1}
            s_nop 0
            v_permlane16_swap_b32 v{GA+2}, v{GA+3}
            s_nop 1
            v_add_f32 v{GA}, v{GA}, v{GA+1}          ; rows : a01, b01, a23, b23
            v_add_f32 v{GA+1}, v{GA+2}, v{GA+3}      ; rows : c01, d01, c23, d23
            s_nop 1
            v_permlane32_swap_b32 v{GA}, v{GA+1}
            s_nop 1
            v_add_f32 v{GA}, v{GA}, v{GA+1}
            """)
        else:
            A(f"""
            v_permlane16_swap_b32 v{GA}, v{GA+1}
            s_nop 1
            v_add_f32 v{GA}, v{GA}, v{GA+1}          ; rows : a01, b01, a23, b23
            v_mov_b32 v{GA+1}, v{GA}
            s_nop 1
            v_permlane32_swap_b32 v{GA}, v{GA+1}
            s_nop 1
            v_add_f32 v{GA}, v{GA}, v{GA+1}
            """)
        A(f"""
        v_mul_f32 v{GA}, {fhex(-LOG2E)}, v{GA}
        v_exp_f32 v{GA}, v{GA}
        v_lshrrev_b32 v{GA+2}, 4, v0
        v_lshlrev_b32 v{GA+2}, 2, v{GA+2}
        v_add_f32 v{GA}, 1.0, v{GA}
        v_rcp_f32 v{GA}, v{GA}
        s_lshl_b32 s47, s84, 2
        s_add_u32 s47, s47, {WS_G}
        s_mov_b32 exec_lo, 0x10001
        s_mov_b32 exec_hi, {"0x10001" if G1 else "0"}
        buffer_store_dword v{GA}, v{GA+2}, s[32:35], s47 offen sc1
        s_mov_b64 exec, -1
        """)
        A("s_branch K1_E2L")
    else:
        gate_loads()
        A("""
        s_barrier
        s_barrier
        """)
        vstamp(A, cfg, 2, PV)
        for j in range(2): A(f"v_mov_b32 v{40+j}, 0")
        A("s_waitcnt vmcnt(0)")
        for k in range(8):
            for j in range(2):
                A(f"v_dot2c_f32_bf16 v{40+j}, v{GX+8*j+k}, v{32+k}")
            A("s_nop 1")
        A("v_lshlrev_b32 v3, 2, v0")
        A.nop(3)
        for mask in (1, 2, 4, 8, 16, 32):
            A(f"v_xor_b32 v4, {mask*4}, v3")
            for j in range(2): A(f"ds_bpermute_b32 v{5+j}, v4, v{40+j}")
            A("s_waitcnt lgkmcnt(0)")
            for j in range(2): A(f"v_add_f32 v{40+j}, v{40+j}, v{5+j}")
        A(f"v_cmp_eq_u32 vcc, 1, v0")
        A("s_nop 1")
        A(f"v_cndmask_b32 v40, v40, v41, vcc")
        A(f"""
        v_mul_f32 v40, {fhex(-LOG2E)}, v40
        v_exp_f32 v40, v40
        s_nop 0
        v_add_f32 v40, 1.0, v40
        v_rcp_f32 v40, v40
        s_lshl_b32 s47, s63, 2
        s_add_u32 s47, s47, {WS_G}
        s_mov_b64 exec, 3
        buffer_store_dword v40, v3, s[32:35], s47 offen sc1
        s_mov_b64 exec, -1
        """)
        setup_p2(A)
        setup_p3(A)
        A(f"""
        s_mov_b32 s85, s36
        v_and_b32 v35, 15, v0
        v_lshlrev_b32 v35, 2, v35
        """)
        dbg_srd()
        poll_issue(A, 47, 46, 36, "0")
        A("s_waitcnt vmcnt(0)")
        poll_check(A, 47, 46, 36, "0", "PG", expect="0x100")
        poll_issue(A, 47, 35, 32, "s78")
        A("s_waitcnt vmcnt(0)")
        poll_check(A, 47, 35, 32, "s78", "P1")
        vstamp(A, cfg, 3, PV)
        A(f"""
        v_lshlrev_b32 v3, 4, v0
        s_lshl_b32 s47, s50, 12          ; w*4096
        s_add_u32 m0, s47, {2*16384}
        s_lshl_b32 s51, s41, 1
        s_add_u32 s51, s51, 2
        s_and_b32 s51, s51, 15
        s_lshl_b32 s51, s51, 14
        s_add_u32 s51, s51, s47
        s_add_u32 s51, s51, s70
        """)
        for j in range(4):
            A(f"buffer_load_dwordx4 v3, s[32:35], s51 offen offset:{j*1024} sc1 lds")
        A("s_mov_b32 s36, s85")
    A.label("KF_JOIN")
    if cfg.get("e8") and cfg.get("eprio", "00") != "00": A("s_setprio 0")
    Q, K0, K1, V0, V1, SEL, NEGM, SA, SB, O, L, P = 8, 16, 20, 24, 28, 40, 48, 64, 80, 96, 112, 120
    PR = 33
    RD = 192
    if cfg.get("prof"): A(f"v_mov_b32 v{PR}, v{PV}")
    vstamp(A, cfg, 4, PR)
    A(f"""
    v_lshlrev_b32 v3, 4, v0          ; lane*16
    v_bfe_u32 v4, v0, 2, 1
    v_bfe_u32 v5, v0, 4, 1
    v_cmp_eq_u32 vcc, v4, v5
    v_mov_b32 v5, 0x3f803f80
    v_mov_b32 v4, 0
    v_cndmask_b32 v{SEL}, v4, v5, vcc
    v_cndmask_b32 v{SEL+1}, v4, v5, vcc
    v_cndmask_b32 v{SEL+2}, v4, v5, vcc
    v_cndmask_b32 v{SEL+3}, v4, v5, vcc
    s_lshl_b32 s47, s40, 11
    s_add_u32 s47, s47, {QST}
    v_add_u32 v6, s47, v3
    s_lshl_b32 s47, s40, 10
    s_add_u32 s47, s47, {RED0}
    v_add_u32 v7, s47, v3
    v_mov_b32 v1, v3                 ; cur
    v_add_u32 v2, 16384, v3          ; next
    """)
    for i in range(16): A(f"v_mov_b32 v{O+i}, 0")
    for i in range(4):
        A(f"v_mov_b32 v{L+i}, 0"); A(f"v_mov_b32 v{V1+i}, 0"); A(f"v_mov_b32 v{P+4+i}, 0")
    for i in (35, 36, 37, 38, 39, 45, 46): A(f"v_mov_b32 v{i}, 0")
    if E8:
        A("v_and_b32 v46, 15, v0")
        A("v_lshlrev_b32 v46, 2, v46")
        poll_issue(A, 47, 46, 32, "s78")
    A(f"""
    s_mov_b32 s60, 0
    s_mov_b32 s61, 1
    s_waitcnt lgkmcnt(0)
    s_barrier
    """)
    vstamp(A, cfg, 5, PR)
    NRD = 4 if E8 else 2
    A(f"""
    ds_read_b128 v[{Q}:{Q+3}], v6
    ds_read_b128 v[{NEGM}:{NEGM+3}], v3
    ds_read_b128 v[{Q+4}:{Q+7}], v6 offset:1024
    ds_read_b128 v[{NEGM+4}:{NEGM+7}], v3 offset:1024
    ds_read_b128 v[{K0}:{K0+3}], v3 offset:4096
    ds_read_b128 v[{K1}:{K1+3}], v3 offset:{4096+1024}
    ds_read_b128 v[{V0}:{V0+3}], v3 offset:2048
    ds_read_b128 v[{RD}:{RD+3}], v7
    ds_read_b128 v[{RD+4}:{RD+7}], v7 offset:8192
    """)
    if E8:
        A(f"ds_read_b128 v[{RD+12}:{RD+15}], v7 offset:{HB0 - RED0}")
        A(f"ds_read_b128 v[{RD+16}:{RD+19}], v7 offset:{HB0 - RED0 + 8192}")
    A(f"""
    s_waitcnt lgkmcnt({5 + NRD})
    v_mfma_f32_32x32x16_bf16 v[{SA}:{SA+15}], v[{NEGM}:{NEGM+3}], v[{Q}:{Q+3}], 0
    s_waitcnt lgkmcnt({3 + NRD})
    v_mfma_f32_32x32x16_bf16 v[{SA}:{SA+15}], v[{NEGM+4}:{NEGM+7}], v[{Q+4}:{Q+7}], v[{SA}:{SA+15}]
    s_waitcnt lgkmcnt({1 + NRD})
    v_mfma_f32_32x32x16_bf16 v[{SB}:{SB+15}], v[{K0}:{K0+3}], v[{Q}:{Q+3}], 0
    v_mfma_f32_32x32x16_bf16 v[{SB}:{SB+15}], v[{K1}:{K1+3}], v[{Q+4}:{Q+7}], v[{SB}:{SB+15}]
    s_waitcnt lgkmcnt(0)
    v_pk_add_f32 v[{RD}:{RD+1}], v[{RD}:{RD+1}], v[{RD+4}:{RD+5}]
    v_pk_add_f32 v[{RD+2}:{RD+3}], v[{RD+2}:{RD+3}], v[{RD+6}:{RD+7}]
    """)
    if E8:
        A(f"""
        v_pk_add_f32 v[{RD+12}:{RD+13}], v[{RD+12}:{RD+13}], v[{RD+16}:{RD+17}]
        v_pk_add_f32 v[{RD+14}:{RD+15}], v[{RD+14}:{RD+15}], v[{RD+18}:{RD+19}]
        v_pk_add_f32 v[{RD}:{RD+1}], v[{RD}:{RD+1}], v[{RD+12}:{RD+13}]
        v_pk_add_f32 v[{RD+2}:{RD+3}], v[{RD+2}:{RD+3}], v[{RD+14}:{RD+15}]
        s_cmp_lg_u32 s40, 7
        s_cbranch_scc1 KJ_NOZ
        v_lshlrev_b32 v4, 2, v0
        v_add_u32 v5, {ZRED}, v4
        ds_read_b32 v{RD+8}, v5
        ds_read_b32 v{RD+9}, v5 offset:256
        ds_read_b32 v{RD+10}, v5 offset:512
        ds_read_b32 v{RD+11}, v5 offset:768
        s_waitcnt lgkmcnt(0)
        v_add_f32 v{RD+8}, v{RD+8}, v{RD+9}
        v_add_f32 v{RD+10}, v{RD+10}, v{RD+11}
        v_add_f32 v{RD+8}, v{RD+8}, v{RD+10}
        KJ_NOZ:
        """)
    else:
        A(f"""
        s_cmp_lg_u32 s40, 7
        buffer_store_dwordx4 v[{RD}:{RD+3}], v3, s[32:35], s79 offen sc1
        s_cbranch_scc1 KJ_NOZ
        v_lshlrev_b32 v4, 2, v0
        v_add_u32 v5, {ZRED}, v4
        ds_read_b32 v{RD+8}, v5
        ds_read_b32 v{RD+9}, v5 offset:256
        s_waitcnt lgkmcnt(0)
        v_add_f32 v{RD+8}, v{RD+8}, v{RD+9}
        buffer_store_dword v{RD+8}, v4, s[32:35], s89 offen sc1
        KJ_NOZ:
        """)
    A.nop(6)
    A(f"v_max3_f32 v4, v{SA}, v{SA+1}, v{SA+2}")
    A(f"v_max3_f32 v5, v{SA+3}, v{SA+4}, v{SA+5}")
    for k in range(6, 14, 4):
        A(f"v_max3_f32 v4, v4, v{SA+k}, v{SA+k+1}")
        A(f"v_max3_f32 v5, v5, v{SA+k+2}, v{SA+k+3}")
    A(f"v_max3_f32 v4, v4, v{SA+14}, v{SA+15}")
    for k in range(0, 16, 4):
        A(f"v_max3_f32 v4, v4, v{SB+k}, v{SB+k+1}")
        A(f"v_max3_f32 v5, v5, v{SB+k+2}, v{SB+k+3}")
    A("v_max_f32 v4, v4, v5")
    A("v_mov_b32 v5, v4")
    A.nop(2)
    A("v_permlane32_swap_b32 v4, v5")
    A("s_nop 0")
    A("v_max_f32 v4, v4, v5")
    A(f"v_add_f32 v4, {fhex(BIAS)}, v4")
    for i in range(16):
        A(f"v_sub_f32 v{NEGM+i}, 0, v4")
    for k in range(8):
        A(f"v_pk_add_f32 v[{SA+2*k}:{SA+2*k+1}], v[{SA+2*k}:{SA+2*k+1}], v[{NEGM}:{NEGM+1}]")
    if E8:
        A("s_waitcnt vmcnt(0)")
        poll_check(A, 47, 46, 32, "s78", "P1")
        A(f"""
        buffer_store_dwordx4 v[{RD}:{RD+3}], v3, s[32:35], s79 offen sc1
        s_cmp_lg_u32 s40, 7
        s_cbranch_scc1 KJ_NOZ2
        v_lshlrev_b32 v4, 2, v0
        buffer_store_dword v{RD+8}, v4, s[32:35], s89 offen sc1
        KJ_NOZ2:
        s_lshl_b32 s47, s40, 11
        s_add_u32 m0, s47, {2*16384}
        s_lshl_b32 s38, s41, 1
        s_add_u32 s38, s38, 2
        s_and_b32 s38, s38, 15
        s_lshl_b32 s38, s38, 14
        s_add_u32 s38, s38, s47
        s_add_u32 s81, s38, s70
        buffer_load_dwordx4 v3, s[32:35], s81 offen sc1 lds
        buffer_load_dwordx4 v3, s[32:35], s81 offen offset:1024 sc1 lds
        """)
    vstamp(A, cfg, 6, PR)
    if cfg.get("prof") == "2":
        A("s_mov_b32 s100, 15"); A(f"v_mov_b32 v{PR}, 0"); bstamp(A, cfg, 2); A("s_mov_b32 s100, 0")
    def dma_ops():
        a = ["s_mov_b32 m0, s72", "s_add_u32 s81, s70, s71", "s_add_u32 s72, s72, 16384",
             "buffer_load_dwordx4 v3, s[32:35], s81 offen sc1 lds"]
        b = ["buffer_load_dwordx4 v3, s[32:35], s81 offen offset:1024 sc1 lds",
             f"s_and_b32 s72, s72, {RING-1}", "s_add_u32 s71, s71, 16384", "s_and_b32 s71, s71, 0x3ffff"]
        return a, b
    def dma_chunk():
        a, b = dma_ops()
        for l in a + b: A(l)
    def tile(i, Sa, Sb, sideA=(), sideB=(), end=()):
        e = lambda k: f"v_exp_f32 v{Sa+k}, v{Sa+k}"
        c = lambda k: f"v_cvt_pk_bf16_f32 v{P+k}, v{Sa+2*k}, v{Sa+2*k+1}"
        QK0 = f"v_mfma_f32_32x32x16_bf16 v[{Sb}:{Sb+15}], v[{K0}:{K0+3}], v[{Q}:{Q+3}], v[{NEGM}:{NEGM+15}]"
        QK1 = f"v_mfma_f32_32x32x16_bf16 v[{Sb}:{Sb+15}], v[{K1}:{K1+3}], v[{Q+4}:{Q+7}], v[{Sb}:{Sb+15}]"
        PV0 = f"v_mfma_f32_32x32x16_bf16 v[{O}:{O+15}], v[{V0}:{V0+3}], v[{P}:{P+3}], v[{O}:{O+15}]"
        PV1 = f"v_mfma_f32_32x32x16_bf16 v[{O}:{O+15}], v[{V1}:{V1+3}], v[{P+4}:{P+7}], v[{O}:{O+15}]"
        L0 = f"v_mfma_f32_16x16x32_bf16 v[{L}:{L+3}], v[{SEL}:{SEL+3}], v[{P}:{P+3}], v[{L}:{L+3}]"
        L1 = f"v_mfma_f32_16x16x32_bf16 v[{L}:{L+3}], v[{SEL}:{SEL+3}], v[{P+4}:{P+7}], v[{L}:{L+3}]"
        W = "s_waitcnt lgkmcnt(3)"
        def addr(tt, fr):
            return (f"v1 offset:{tt*4096+fr*1024}" if tt < 4 else f"v2 offset:{(tt-4)*4096+fr*1024}")
        rK0 = f"ds_read_b128 v[{K0}:{K0+3}], {addr(i+2, 0)}"; rK1 = f"ds_read_b128 v[{K1}:{K1+3}], {addr(i+2, 1)}"
        rV0 = f"ds_read_b128 v[{V0}:{V0+3}], {addr(i+1, 2)}"; rV1 = f"ds_read_b128 v[{V1}:{V1+3}], {addr(i, 3)}"
        seq = [e(0), e(1), W, PV1, rV1, *sideA, e(2), e(3), e(4), e(5), W, QK0, rK0, e(6), e(7), c(0), c(1), L1, c(2), c(3), e(8), W, QK1, rK1,
               *sideB, e(9), e(10), e(11), W, PV0, rV0, e(12), e(13), e(14), L0, e(15), c(4), c(5), c(6), c(7), *end]
        for x in seq:
            if callable(x): x()
            else: A(x)
    PRIO = [int(c) for c in cfg.get("prio", "3210")]
    def period(sides=None, dma=True):
        if dma: dma_chunk()
        for i in range(4):
            sa, sb, en = (sides or {}).get(i, ((), (), ()))
            if cfg.get("prio"): A(f"s_setprio {PRIO[i]}")
            tile(i, SA if i % 2 == 0 else SB, SB if i % 2 == 0 else SA, sa, sb, en)
        A(f"""
        v_mov_b32 v1, v2
        v_add_u32 v2, 16384, v2
        v_and_b32 v2, {RING-1}, v2
        """)
    A.label("K2_LOOP")
    period()
    if cfg.get("prof") == "2":
        pbar(A, cfg, "s_waitcnt vmcnt(2)")
        A("""
        s_add_u32 s60, s60, 1
        s_cmp_lg_u32 s60, s61
        s_cbranch_scc1 K2_LOOP
        """)
    else:
        A(f"""
        s_add_u32 s60, s60, 1
        s_cmp_lg_u32 s60, s61
        s_waitcnt vmcnt(2)
        s_barrier
        s_cbranch_scc1 K2_LOOP
        """)
    A(f"""
    s_cmp_eq_u32 s60, 1
    s_cbranch_scc1 KD_1
    s_cmp_eq_u32 s60, 3
    s_cbranch_scc1 KD_3
    s_cmp_eq_u32 s60, 4
    s_cbranch_scc1 KD_4
    s_branch KD_7
    KD_1:
    s_mov_b32 s61, 3
    """)
    set_flag(A, "s68")
    A(f"""
    s_branch K2_LOOP
    KD_3:
    v_lshlrev_b32 v46, 2, v0
    s_mov_b32 s61, 4
    """)
    poll_issue(A, 47, 46, 32, "s77")
    A("s_branch K2_LOOP")
    A.label("KD_4")
    vstamp(A, cfg, 7, PR)
    poll_check(A, 47, 46, 32, "s77", "PK")
    KVP = 192; ZP = 224
    A(f"""
    s_cmp_eq_u32 s40, 4
    s_cselect_b32 s84, 1, 0
    """)
    def kvload(rr):
        def f():
            A(f"buffer_load_dwordx4 v[{KVP+4*rr}:{KVP+4*rr+3}], v3, s[32:35], s75 offen sc1")
            A("s_add_u32 s75, s75, 8192")
        return f
    def zload(rr):
        def f():
            j = A.uid("KZ")
            A("s_cmp_eq_u32 s84, 0"); A(f"s_cbranch_scc1 {j}")
            A(f"buffer_load_dword v{ZP+rr}, v46, s[32:35], s76 offen offset:{256*rr} sc1")
            A(f"buffer_load_dword v{ZP+rr+1}, v46, s[32:35], s76 offen offset:{256*rr+256} sc1")
            A.label(j)
        return f
    period({i: ((kvload(2*i),), (kvload(2*i+1),), (zload(2*i),)) for i in range(4)})
    pbar(A, cfg, "s_waitcnt vmcnt(10)")
    def kvsum():
        A("s_waitcnt vmcnt(2)")
        A(f"""
        s_lshr_b32 s47, s40, 1
        s_lshl_b32 s47, s47, 10
        s_and_b32 s38, s40, 1
        s_lshl_b32 s38, s38, 3
        s_add_u32 s47, s47, s38
        s_add_u32 s47, s47, {KVT_L}
        v_add_u32 v4, s47, v3
        """)
        b = KVP
        for rr in range(1, 8):
            A(f"v_pk_add_f32 v[{b}:{b+1}], v[{b}:{b+1}], v[{b+4*rr}:{b+4*rr+1}]")
            A(f"v_pk_add_f32 v[{b+2}:{b+3}], v[{b+2}:{b+3}], v[{b+4*rr+2}:{b+4*rr+3}]")
        A(f"v_cvt_pk_bf16_f32 v{b}, v{b}, v{b+1}")
        A(f"v_cvt_pk_bf16_f32 v{b+1}, v{b+2}, v{b+3}")
        A(f"ds_write_b64 v4, v[{b}:{b+1}]")
        j = A.uid("KZS")
        A("s_cmp_eq_u32 s84, 0"); A(f"s_cbranch_scc1 {j}")
        for rr in range(1, 8):
            A(f"v_add_f32 v{ZP}, v{ZP}, v{ZP+rr}")
        A(f"""
        v_lshlrev_b32 v5, 1, v0
        v_add_u32 v5, {Z_L}, v5
        v_cvt_pk_bf16_f32 v{ZP}, v{ZP}, v{ZP}
        ds_write_b16 v5, v{ZP}
        """)
        A.label(j)
    period({1: ((), (), (kvsum,))})
    pbar(A, cfg, None)
    A(f"""
    s_mov_b32 s60, 6
    s_mov_b32 s61, 7
    {"s_lshr_b32 s47, s40, 2" if XT8 else "s_mov_b32 s47, 0"}
    s_xor_b32 s47, s47, s40
    s_and_b32 s47, s47, {1 if E8 else 5}
    s_cmp_lg_u32 s47, 1
    s_cbranch_scc1 K2_LOOP
    """)
    KVT, ZR, NUM, DEN, OA = 192, 208, 224, 240, 244
    A(f"""
    v_add_u32 v4, {KVT_L}, v3
    v_lshrrev_b32 v5, 5, v0
    v_lshlrev_b32 v5, 3, v5
    v_add_u32 v5, {Z_L}, v5          ; Z + hh*8
    """)
    for s in range(4):
        A(f"ds_read_b128 v[{KVT+4*s}:{KVT+4*s+3}], v4 offset:{s*1024}")
        A(f"ds_read_b64 v[{ZR+4*s}:{ZR+4*s+1}], v5 offset:{32*s}")
        A(f"ds_read_b64 v[{ZR+4*s+2}:{ZR+4*s+3}], v5 offset:{32*s+16}")
    def zmask():
        A("v_bfe_u32 v4, v0, 2, 1")
        A("v_bfe_u32 v5, v0, 4, 1")
        A("v_cmp_eq_u32 vcc, v4, v5")
        A("v_mov_b32 v4, 0")
        A("s_nop 0")
        for k in range(16): A(f"v_cndmask_b32 v{ZR+k}, v4, v{ZR+k}, vcc")
    def amfma(t):
        def f():
            for s in range(4):
                c = "0" if s == 0 else f"v[{NUM}:{NUM+15}]"
                A(f"v_mfma_f32_32x32x16_bf16 v[{NUM}:{NUM+15}], v[{KVT+4*s}:{KVT+4*s+3}], v[{PHQ+16*t+4*s}:{PHQ+16*t+4*s+3}], {c}")
                c = "0" if s == 0 else f"v[{DEN}:{DEN+3}]"
                A(f"v_mfma_f32_16x16x32_bf16 v[{DEN}:{DEN+3}], v[{ZR+4*s}:{ZR+4*s+3}], v[{PHQ+16*t+4*s}:{PHQ+16*t+4*s+3}], {c}")
        return f
    def afin():
        A(f"v_add_f32 v4, {fhex(1e-6)}, v{DEN}")
        A("v_rcp_f32 v4, v4")
        A("s_nop 0")
        for k in range(8):
            A(f"v_pk_mul_f32 v[{NUM+2*k}:{NUM+2*k+1}], v[{NUM+2*k}:{NUM+2*k+1}], v[4:5] op_sel_hi:[1,0]")
        cvt_tile(A, OA, NUM)
        A(f"buffer_store_dwordx4 v[{OA}:{OA+3}], v3, s[32:35], s74 offen sc1")
        A(f"buffer_store_dwordx4 v[{OA+4}:{OA+7}], v3, s[32:35], s74 offen offset:1024 sc1")
        A("s_add_u32 s74, s74, 65536")
    if E8:
        period({0: ((), (), (zmask, amfma(0))), 1: ((), (), (afin, amfma(1))), 2: ((), (), (afin,))})
        pbar(A, cfg, "s_waitcnt vmcnt(6)")
    else:
        period({0: ((), (), (zmask, amfma(0))), 1: ((), (), (afin, amfma(1))), 2: ((), (), (afin, amfma(2))), 3: ((), (), (afin, amfma(3)))})
        A.nop(12)
        afin()
        pbar(A, cfg, "s_waitcnt vmcnt(10)")
    A.label("KD_7")
    A(f"""
    s_mov_b32 s60, 7
    v_and_b32 v45, 31, v0
    v_lshlrev_b32 v45, 2, v45        ; (l&31)*4
    v_lshlrev_b32 v35, 2, v0         ; lane*4
    v_lshrrev_b32 v4, 3, v0
    v_lshlrev_b32 v5, 11, v4         ; row*2048
    v_and_b32 v7, 7, v0
    v_bfe_u32 v6, v0, 4, 1
    v_lshlrev_b32 v6, 2, v6
    v_xor_b32 v7, v7, v6
    v_lshl_add_u32 v5, v7, 4, v5
    s_lshl_b32 s47, s18, 9
    s_lshl_b32 s38, s19, 4
    s_add_u32 s47, s47, s38
    s_lshl_b32 s47, s47, 11
    s_lshl_b32 s38, s17, 7
    s_add_u32 s47, s47, s38          ; + C*128
    v_add_u32 v36, s47, v5           ; piece 0
    v_add_u32 v37, {16384 - 1024}, v36
    v_lshrrev_b32 v7, 5, v0          ; hh
    v_bfe_u32 v6, v0, 2, 2           ; i>>2
    v_lshl_add_u32 v7, v7, 2, v6
    v_lshlrev_b32 v7, 7, v7
    v_bfe_u32 v6, v0, 4, 1
    v_bfe_u32 v5, v0, 1, 1
    v_lshl_add_u32 v6, v6, 1, v5
    v_bfe_u32 v5, v0, 3, 1
    v_lshlrev_b32 v5, 2, v5
    v_xor_b32 v6, v6, v5
    v_lshl_add_u32 v7, v6, 4, v7
    v_and_b32 v5, 1, v0
    v_lshl_add_u32 v7, v5, 3, v7
    s_lshl_b32 s38, s18, 13
    v_add_u32 v38, s38, v7           ; cb=0
    v_xor_b32 v39, 64, v38           ; cb=1
    s_add_u32 s80, s30, {WSL(0)}
    """)
    def wo_ops(m0src):
        a = [m0src, "s_nop 0", "buffer_load_dwordx4 v36, s[20:23], s29 offen lds"]
        b = ["buffer_load_dwordx4 v37, s[20:23], s29 offen offset:1024 lds", f"s_add_u32 s29, s29, {64*2048}"]
        return a, b
    A.label("K2_LOOPB")
    wa, wb = wo_ops("s_mov_b32 m0, s80")
    wb = wb + ["s_add_u32 s80, s80, 16384"]
    ca, cb_ = dma_ops()
    period({0: (tuple(wa), tuple(wb), ()), 1: (tuple(wa), tuple(wb), ()), 2: (tuple(ca), tuple(cb_), ())}, dma=False)
    if cfg.get("prof") == "2":
        pbar(A, cfg, "s_waitcnt vmcnt(6)")
        A("""
        s_add_u32 s60, s60, 1
        s_cmp_eq_u32 s60, 10
        """)
    else:
        A("""
        s_add_u32 s60, s60, 1
        s_cmp_eq_u32 s60, 10
        s_waitcnt vmcnt(6)
        s_barrier
        """)
    A(f"""
    s_cbranch_scc1 KB_10
    s_cmp_eq_u32 s60, 9
    s_cbranch_scc1 KB_9
    s_and_b32 s47, s40, 5
    s_cmp_lg_u32 s47, 1
    s_cbranch_scc1 K2_LOOPB
    """)
    set_flag(A, "s88")
    A("s_branch K2_LOOPB")
    A.label("KB_9")
    poll_issue(A, 47, 35, 32, "s36")
    A("s_branch K2_LOOPB")
    A.label("KB_10")
    vstamp(A, cfg, 8, PR)
    poll_check(A, 47, 35, 32, "s36", "PA")
    G, OMG = 32, 34
    OF = 128
    vm = VM(A, ["W4", "W4", "W5", "W5", "c12", "c12"])
    vm.now("G", f"buffer_load_dword v{G}, v45, s[32:35], s31 offen sc1")
    nld = [0]
    def oload():
        k = nld[0]; nld[0] += 1
        s, j = divmod(k, 4)
        r = OF + 16*s + 4*j
        def f():
            vm.now("o", f"buffer_load_dwordx4 v[{r}:{r+3}], v3, s[32:35], s28 offen offset:{j*1024} sc1")
            if j == 3: A("s_add_u32 s28, s28, 4096")
        return f
    def lines(tag, ls):
        def f():
            for l in ls:
                if l.startswith("buffer_"): vm.now(tag, l)
                else: A(l)
        return f
    BT = int(cfg.get("btouch", 0))
    def btouch():
        A(f"""
        s_and_b32 s47, s16, 3
        s_lshl_b32 s47, s47, 3
        s_add_u32 s47, s47, s40
        s_lshl_b32 s47, s47, 5
        v_add_u32 v44, s47, v0
        v_lshlrev_b32 v44, 11, v44
        s_lshl_b32 s47, s17, 7
        v_add_u32 v44, s47, v44
        v_mov_b32 v4, 0x7ffffff0
        v_cmp_gt_u32 vcc, 32, v0
        s_mov_b32 s92, s6
        s_mov_b32 s93, s7
        s_mov_b32 s94, {1024*2048}
        s_mov_b32 s95, 0x00020000
        v_cndmask_b32 v44, v4, v44, vcc
        """)
        vm.now("T", "buffer_load_dword v44, v44, s[92:95], 0 offen")
    for n in range(10, 16):
        sides = {}
        if n <= 12:
            a, b = dma_ops()
            sides[0] = ((lines(f"c{n+3}", a),), (lines(f"c{n+3}", b),), (oload(),))
            sides[1] = ((oload(),), (oload(),), ())
            sides[2] = ((oload(),), (oload(),), ())
            sides[3] = ((oload(),), (), ())
        elif n <= 14:
            a, b = wo_ops(f"s_add_u32 m0, s30, {WSL(n - 7)}")
            sides[0] = ((lines("W", a),), (lines("W", b),), (oload(),))
            sides[1] = ((oload(),), (oload(),), ())
            sides[2] = ((oload(),), (), ())
            sides[3] = ((oload(),), (), ())
        else:
            sides[0] = ((oload(),), (oload(),), ())
            sides[1] = ((oload(),), (oload(),), ())
        if n == BT: sides[3] = (sides[3][0], sides[3][1], tuple(sides[3][2]) + (btouch,))
        period(sides, dma=False)
        if n <= 13:
            pbar(A, cfg, lambda: vm.wait(f"c{n+2}"))
        elif cfg.get("prof") == "2":
            bstamp(A, cfg, 0); bstamp(A, cfg, 1); bstamp(A, cfg, 2)
        if n == 12: vstamp(A, cfg, 9, PR)
    assert nld[0] == 32
    A(f"""
    s_mov_b32 s60, 16
    s_waitcnt lgkmcnt(0)
    v_mfma_f32_32x32x16_bf16 v[{O}:{O+15}], v[{V1}:{V1+3}], v[{P+4}:{P+7}], v[{O}:{O+15}]
    v_mfma_f32_16x16x32_bf16 v[{L}:{L+3}], v[{SEL}:{SEL+3}], v[{P+4}:{P+7}], v[{L}:{L+3}]
    """)
    vstamp(A, cfg, 10, PR)
    rst(A, cfg, 0)
    A("v_lshlrev_b32 v45, 3, v0")
    A.nop(12)
    A.label("K2_FIN")
    A(f"v_rcp_f32 v4, v{L}")
    A("s_nop 0")
    for k in range(8):
        A(f"v_pk_mul_f32 v[{O+2*k}:{O+2*k+1}], v[{O+2*k}:{O+2*k+1}], v[4:5] op_sel_hi:[1,0]")
    A("v_mov_b32 v6, 0")
    for k in range(16):
        A(f"v_fma_f32 v6, v{O+k}, 0, v6")
    A(f"""
    v_mov_b32 v7, {fhex(2.0**120)}
    v_cmp_u_f32 vcc, v6, v6
    v_cmp_nlt_f32 s[62:63], v{L}, v7
    s_or_b64 vcc, vcc, s[62:63]
    """)
    if cfg.get("force_fb"):
        A("s_mov_b64 vcc, -1")
    A(f"""
    s_cmp_eq_u32 s60, 16
    s_cselect_b64 vcc, vcc, 0
    s_cbranch_vccnz K2_FB
    """)
    for i in range(8):
        A(f"v_cvt_pk_bf16_f32 v{P+i}, v{O+2*i}, v{O+2*i+1}")
    A(f"buffer_store_dwordx4 v[{P}:{P+3}], v3, s[32:35], s73 offen sc1")
    A(f"buffer_store_dwordx4 v[{P+4}:{P+7}], v3, s[32:35], s73 offen offset:1024 sc1")
    EF = cfg.get("ef")
    if EF:
        A("""
        s_cmp_lt_u32 s40, 4
        s_cbranch_scc0 K3_EF1
        s_waitcnt vmcnt(0)
        """)
        set_flag(A, "s69")
        A("""
        s_branch K3_EF2
        K3_EF1:
        s_setprio 1
        s_waitcnt vmcnt(2)
        K3_EF2:
        """)
    else:
        A("s_waitcnt vmcnt(2)")
    A("s_barrier")
    vstamp(A, cfg, 11, PR)
    rst(A, cfg, 1)
    WFJ = [16, 24, 48, 56]
    ACCA, ACCB = 64, 96
    P3V = cfg.get("p3v") in ("2", "3")
    OD = int(cfg.get("od", 8))
    P3R = cfg.get("p3v") == "3"
    BSL = lambda b: 32768 + 16384 * b if b < 2 else WSL(b - 2)
    def waddr(s, slot=WSL):
        if slot is None:
            A("v_add_u32 v40, s90, v38")
            A("v_add_u32 v41, s90, v39")
            A("s_add_u32 s90, s90, 16384")
            A("s_and_b32 s90, s90, 0x1ffff")
            return
        A(f"v_add_u32 v40, {slot(s)}, v38")
        A(f"v_add_u32 v41, {slot(s)}, v39")
    def wreads(j):
        for cb in range(2):
            for sec in range(2):
                r = WFJ[j] + 4*cb + 2*sec
                A(f"ds_read_b64_tr_b16 v[{r}:{r+1}], v{40+cb} offset:{(16*j+8*sec)*128}")
    def gemm(acc_, after, owait, slot=WSL, inl={}, stamp=None):
        waddr(0, slot)
        for j in range(4): wreads(j)
        for s in range(8):
            last = s == 7
            for j in range(4):
                if owait: A(f"s_waitcnt vmcnt({min(4*OD + 4*s + j, 32) - (4*s + j) - 1})")
                for cb in range(2):
                    n = (14 - 2*cb) if not last else (14 - 4*j - 2*cb)
                    A(f"s_waitcnt lgkmcnt({n})")
                    w = WFJ[j] + 4*cb; o = OF + 16*s + 4*j; a = acc_ + 16*cb
                    c = "0" if (s == 0 and j == 0) else f"v[{a}:{a+15}]"
                    A(f"v_mfma_f32_32x32x16_bf16 v[{a}:{a+15}], v[{w}:{w+3}], v[{o}:{o+3}], {c}")
                if not last:
                    if j == 0: waddr(s + 1, slot)
                    wreads(j)
                for l in inl.get((s, j), []):
                    if callable(l): l()
                    else: A(l)
                if owait and s + OD < 8: o_load(s + OD, j)
            if s in after: after[s]()
            if stamp is not None and cfg.get("prof") == "5" and (s in (1, 3, 5, 7) or owait):
                rst(A, cfg, stamp + s)
    def refill(s0):
        for s in range(s0, s0 + 4):
            a, b = wo_ops(f"s_add_u32 m0, s30, {WSL(s)}")
            for l in a + b: A(l)
    def a_flag():
        A("s_waitcnt vmcnt(0)")
        set_flag(A, "s69")
    def a_mid():
        A("s_barrier")
        A("""
        s_mov_b32 s20, s6
        s_mov_b32 s21, s7
        s_mov_b32 s29, 0
        """)
        refill(0)
    def a_poll():
        poll_issue(A, 46, 45, 32, "s83", n=2)
    FBPOS = int(cfg.get("fbpos", 2))
    RB0 = 32768 if P3V else 0
    def out_addr():
        A(f"""
        v_sub_f32 v{OMG}, 1.0, v{G}
        v_and_b32 v4, 31, v0
        s_lshl_b32 s38, s19, 5
        v_add_u32 v4, s38, v4
        v_mul_u32_u24 v4, {K3_ROW}, v4
        v_lshrrev_b32 v5, 5, v0
        v_lshl_add_u32 v4, v5, 4, v4
        s_mul_i32 s38, s18, {K3_RED}
        {f"s_add_u32 s38, s38, {RB0}" if RB0 else ""}
        v_add_u32 v4, s38, v4
        s_lshl_b32 s38, s40, 6
        v_add_u32 v10, s38, v0           ; tid
        v_lshrrev_b32 v5, 3, v10
        v_and_b32 v6, 7, v10             ; chunk
        v_mul_u32_u24 v7, {K3_ROW}, v5
        v_lshl_add_u32 v7, v6, 5, v7
        {f"v_add_u32 v7, {RB0}, v7" if RB0 else ""}
        s_lshl_b32 s38, s16, 7
        v_add_u32 v5, s38, v5
        v_lshlrev_b32 v5, 11, v5
        v_lshl_add_u32 v5, v6, 4, v5
        s_lshl_b32 s38, s17, 7
        v_add_u32 v5, s38, v5
        """)
    def scale_a():
        for k in range(16):
            A(f"v_pk_mul_f32 v[{ACCA+2*k}:{ACCA+2*k+1}], v[{ACCA+2*k}:{ACCA+2*k+1}], v[{G}:{G+1}] op_sel_hi:[1,0]")
    def o_load(s, j):
        if j == 0:
            if s == 0: A(f"s_sub_u32 s28, s28, 32768" if cfg.get("expo") else f"s_add_u32 s28, s28, {4*MB - 32768}")
            if P3R:
                A("s_add_u32 s85, s28, s91")
                A("s_add_u32 s91, s91, 4096")
                A("s_and_b32 s91, s91, 0x7fff")
            elif s: A("s_add_u32 s28, s28, 4096")
        r = OF + 16*s + 4*j
        A(f"buffer_load_dwordx4 v[{r}:{r+3}], v3, s[32:35], {'s85' if P3R else 's28'} offen offset:{j*1024} sc1")
    def o_loads():
        for s in range(OD):
            for j in range(4): o_load(s, j)
    if P3V:
        A("""
        s_mov_b32 s20, s6
        s_mov_b32 s21, s7
        s_mov_b32 s29, 0
        """)
        inl = {}
        def bslab(b, s, j):
            a_, b_ = wo_ops(f"s_add_u32 m0, s30, {BSL(b)}")
            inl[(s, j)] = a_; inl[(s, j + 1)] = b_
        BS = cfg.get("bs", "0")
        bslab(0, 0, 0); bslab(1, 1, 0)
        if BS == "0":
            bslab(2, 4, 0); bslab(3, 4, 2); bslab(4, 5, 0); bslab(5, 5, 2)
        else:
            bslab(2, 2, 0); bslab(3, 3, 0); bslab(4, 4, 0); bslab(5, 5, 0)
        bslab(6, 6, 0); bslab(7, 6, 2)
        def a_flag2():
            if EF:
                j = A.uid("K3_F")
                A("s_cmp_lt_u32 s40, 4"); A(f"s_cbranch_scc1 {j}")
            A(f"s_waitcnt vmcnt({2 * min(FBPOS + 1, 2)})")
            set_flag(A, "s69")
            if EF:
                A("s_setprio 0")
                A.label(j)
        EP = int(cfg.get("ep", 0))
        def a_bar5():
            if EP:
                A("s_waitcnt vmcnt(7)")
                A("s_barrier")
                poll_check(A, 46, 45, 32, "s83", "PB", n=2)
                for b in (6, 7):
                    a_, b_ = wo_ops(f"s_add_u32 m0, s30, {BSL(b)}")
                    for l in a_ + b_: A(l)
                for s_ in range(EP):
                    for j in range(4): o_load(s_, j)
            else:
                A("s_barrier")
                a_poll()
        if EP:
            assert OD == EP + 2 and not P3R
            del inl[(6, 0)], inl[(6, 1)], inl[(6, 2)], inl[(6, 3)]
            inl[(4, 0)] = inl[(4, 0)] + [a_poll]
            for s_ in (6, 7):
                for j in range(4): inl[(s_, j)] = [(lambda s_=s_, j=j: o_load(EP + s_ - 6, j))]
        aft = {3: lambda: A("s_barrier"), 5: a_bar5}
        if FBPOS == 3: aft[3] = lambda: (a_flag2(), A("s_barrier"))
        else: aft[FBPOS] = a_flag2
        if BS == "1":
            assert FBPOS in (0, 1)
            if FBPOS == 1: aft[1] = lambda: (a_flag2(), A("s_barrier"))
            else: aft[1] = lambda: A("s_barrier")
        gemm(ACCA, aft, False, WSL, inl, 2)
        vstamp(A, cfg, 12, PR)
        if P3R:
            RM = int(cfg.get("rmask", 6))
            A(f"""
            s_and_b32 s47, s17, {RM}
            s_lshl_b32 s90, s47, 14
            s_lshl_b32 s91, s47, 12
            v_add_u32 v38, 32768, v38
            v_add_u32 v39, 32768, v39
            """)
            if cfg.get("gfirst", "1") == "1":
                A("""
                s_and_b32 s47, s17, 1
                s_cmp_eq_u32 s47, s18
                s_cbranch_scc0 K3_NP
                s_setprio 1
                K3_NP:
                """)
        A(f"s_waitcnt vmcnt({4 * OD if EP else 0})")
        rst(A, cfg, 10)
        A("s_barrier")
        rst(A, cfg, 11)
        if not EP:
            poll_check(A, 46, 45, 32, "s83", "PB", n=2)
            rst(A, cfg, 12)
            o_loads()
            rst(A, cfg, 13)
        out_addr()
        scale_a()
        srd(A, 24, 8, 4194304)
        def zbar(g):
            def f():
                j = A.uid("K3_Z")
                A(f"s_cmp_eq_u32 s18, {g}"); A(f"s_cbranch_scc0 {j}"); A("s_barrier"); A.label(j)
            return f
        if P3R:
            gemm(ACCB, {}, True, None, {}, 14)
            vstamp(A, cfg, 13, PR)
            A("s_setprio 0")
            A("s_barrier")
            A.nop(12)
        else:
            gemm(ACCB, {4: zbar(1)}, True, BSL, {}, 14)
            vstamp(A, cfg, 13, PR)
            zbar(0)()
            A.nop(12)
    else:
        gemm(ACCA, {FBPOS: a_flag, 3: a_mid, 5: a_poll}, False)
        A("s_barrier")
        refill(4)
        vstamp(A, cfg, 12, PR)
        A("s_waitcnt vmcnt(8)")
        poll_check(A, 46, 45, 32, "s83", "PB", n=2)
        o_loads()
        A("s_waitcnt vmcnt(31)")
        A("s_barrier")
        gemm(ACCB, {}, True)
        vstamp(A, cfg, 13, PR)
        out_addr()
        scale_a()
        A("s_barrier")
        srd(A, 24, 8, 4194304)
        A.nop(4)
    for k in range(16):
        A(f"v_pk_fma_f32 v[{ACCA+2*k}:{ACCA+2*k+1}], v[{ACCB+2*k}:{ACCB+2*k+1}], v[{OMG}:{OMG+1}], v[{ACCA+2*k}:{ACCA+2*k+1}] op_sel_hi:[1,0,1]")
    for cb in range(2):
        for q in range(4):
            r = ACCA + 16*cb + 4*q
            A(f"ds_write_b128 v4, v[{r}:{r+3}] offset:{cb*128 + q*32}")
    A("s_waitcnt lgkmcnt(0)")
    rst(A, cfg, 22)
    A("s_barrier")
    rst(A, cfg, 23)
    R = 128
    for it in range(2):
        for g in range(2):
            for hf in range(2):
                r = R + 16*it + 8*g + 4*hf
                A(f"ds_read_b128 v[{r}:{r+3}], v7 offset:{it*64*K3_ROW + g*K3_RED + hf*16}")
    for it in range(2):
        A(f"s_waitcnt lgkmcnt({4 - 4*it})")
        r = R + 16*it
        for k in range(4):
            A(f"v_pk_add_f32 v[{r+2*k}:{r+2*k+1}], v[{r+2*k}:{r+2*k+1}], v[{r+8+2*k}:{r+8+2*k+1}]")
        for k in range(4):
            A(f"v_cvt_pk_bf16_f32 v{r+k}, v{r+2*k}, v{r+2*k+1}")
        A(f"buffer_store_dwordx4 v[{r}:{r+3}], v5, s[24:27], 0 offen {cfg.get('ost', 'nt').replace('+', ' ')}")
        if it == 0: A(f"v_add_u32 v5, {64*2048}, v5")
    if cfg.get("prof"):
        A("s_waitcnt vmcnt(0)")
        vstamp(A, cfg, 14, PR)
        rst(A, cfg, 24)
        A(f"""
        s_mov_b32 s92, s14
        s_mov_b32 s93, s15
        s_mov_b32 s94, {64*MB}
        s_mov_b32 s95, 0x00020000
        s_lshl_b32 s90, s2, 3
        s_add_u32 s90, s90, s40
        s_lshl_b32 s90, s90, {8 if cfg.get("prof") in ("2", "3", "4", "5") else 7}
        s_add_u32 s90, s90, {WS_PROFV}
        v_lshlrev_b32 v1, 2, v0
        s_mov_b64 exec, {-1 if cfg.get("prof") in ("2", "3", "4", "5") else "0xffffffff"}
        buffer_store_dword v{PR}, v1, s[92:95], s90 offen
        """)
    A("s_endpgm")
    A.label("K2_FB")
    vstamp(A, cfg, 15, PR)
    A("s_mov_b32 s60, 17")
    A("s_mov_b32 s61, 0")
    for i in range(16): A(f"v_mov_b32 v{O+i}, 0")
    for i in range(4): A(f"v_mov_b32 v{L+i}, 0")
    A(f"v_mov_b32 v44, 0xff800000")
    A.label("K2_FBL")
    A(f"""
    buffer_load_dwordx4 v[{K0}:{K0+3}], v3, s[32:35], s70 offen sc1
    buffer_load_dwordx4 v[{K1}:{K1+3}], v3, s[32:35], s70 offen offset:1024 sc1
    buffer_load_dwordx4 v[{V0}:{V0+3}], v3, s[32:35], s70 offen offset:2048 sc1
    buffer_load_dwordx4 v[{V1}:{V1+3}], v3, s[32:35], s70 offen offset:3072 sc1
    s_add_u32 s70, s70, 4096
    s_waitcnt vmcnt(0)
    v_mfma_f32_32x32x16_bf16 v[{SA}:{SA+15}], v[{K0}:{K0+3}], v[{Q}:{Q+3}], 0
    v_mfma_f32_32x32x16_bf16 v[{SA}:{SA+15}], v[{K1}:{K1+3}], v[{Q+4}:{Q+7}], v[{SA}:{SA+15}]
    """)
    A.nop(12)
    A(f"v_max3_f32 v4, v{SA}, v{SA+1}, v{SA+2}")
    for k in range(3, 15, 2):
        A(f"v_max3_f32 v4, v4, v{SA+k}, v{SA+k+1}")
    A(f"v_max3_f32 v4, v4, v{SA+15}, v44")
    A("v_mov_b32 v5, v4")
    A.nop(2)
    A("v_permlane32_swap_b32 v4, v5")
    A("s_nop 0")
    A("v_max_f32 v4, v4, v5")
    A("v_sub_f32 v5, v44, v4")
    A("v_exp_f32 v5, v5")
    A("v_mov_b32 v44, v4")
    for k in range(16):
        A(f"v_sub_f32 v{SA+k}, v{SA+k}, v4")
    for k in range(16):
        A(f"v_exp_f32 v{SA+k}, v{SA+k}")
    for k in range(16):
        A(f"v_mul_f32 v{O+k}, v{O+k}, v5")
    for k in range(4):
        A(f"v_mul_f32 v{L+k}, v{L+k}, v5")
    for k in range(8):
        A(f"v_cvt_pk_bf16_f32 v{P+k}, v{SA+2*k}, v{SA+2*k+1}")
    A("s_nop 1")
    A(f"""
    v_mfma_f32_32x32x16_bf16 v[{O}:{O+15}], v[{V0}:{V0+3}], v[{P}:{P+3}], v[{O}:{O+15}]
    v_mfma_f32_16x16x32_bf16 v[{L}:{L+3}], v[{SEL}:{SEL+3}], v[{P}:{P+3}], v[{L}:{L+3}]
    v_mfma_f32_32x32x16_bf16 v[{O}:{O+15}], v[{V1}:{V1+3}], v[{P+4}:{P+7}], v[{O}:{O+15}]
    v_mfma_f32_16x16x32_bf16 v[{L}:{L+3}], v[{SEL}:{SEL+3}], v[{P+4}:{P+7}], v[{L}:{L+3}]
    s_add_u32 s61, s61, 1
    s_cmp_lt_u32 s61, 64
    """)
    A.nop(12)
    A("s_cbranch_scc1 K2_FBL")
    A("s_branch K2_FIN")
    A.label("KF_END")
    A("s_endpgm")
    return K, KG_LDS
```

```python
from common import *

KNAME = NAME + "_kernel"
K1_XS = 32768
K1_NX = 3
K1_WB = K1_XS * K1_NX
K1_SLOT = 12288
K1_NSLOT = 5
K1_WPHI = K1_WB + K1_SLOT * K1_NSLOT
K1_TBUF = 4352
RING = 65536
QST = 65536
TBUF0 = 81920
RED0 = 98304
ZRED = 114688
KVT_L = 116736
Z_L = 120832
KG_LDS = 163840
def WSL(s): return 65536 + 16384 * s if s < 6 else 16384 * (s - 6)
WS_F1 = WS_FLAG
WS_FK = WS_FLAG + 4096
WS_FA = WS_FLAG + 16384
WS_FB = WS_FLAG + 20480
HB0 = 122880
HB1 = 139264
TBUF1 = 147456
BIAS = 80.0
K3_ROW = 272
K3_RED = 128 * K3_ROW
SPIN_MAX = 1 << 16
WS_PROFV = WS_PROF

def cvt_tile(A, dst, src):
    for i in range(8):
        A(f"v_cvt_pk_bf16_f32 v{dst+i}, v{src+2*i}, v{src+2*i+1}")

def bstamp(A, cfg, kind, reg=33):
    if cfg.get("prof") == "2":
        A("s_memtime s[96:97]")
        A(f"s_add_u32 m0, s100, {16*kind}")
        A("s_waitcnt lgkmcnt(0)")
        A(f"v_writelane_b32 v{reg}, s96, m0")
        if kind == 2: A("s_add_u32 s100, s100, 1")

def pbar(A, cfg, wait):
    bstamp(A, cfg, 0)
    if callable(wait): wait()
    elif wait: A(wait)
    bstamp(A, cfg, 1)
    A("s_barrier")
    bstamp(A, cfg, 2)

def vstamp(A, cfg, i, reg):
    if cfg.get("prof") == "1":
        A("s_memtime s[96:97]")
        A("s_memrealtime s[98:99]")
        A("s_waitcnt lgkmcnt(0)")
        A(f"v_writelane_b32 v{reg}, s96, {2*i}")
        A(f"v_writelane_b32 v{reg}, s98, {2*i+1}")

def rst(A, cfg, lane, reg=33):
    if cfg.get("prof") == "5":
        A("s_memrealtime s[96:97]")
        A("s_waitcnt lgkmcnt(0)")
        A(f"v_writelane_b32 v{reg}, s96, {lane}")

def poll_issue(A, vdst, vaddr, srd, soff, n=1):
    if n == 1: A(f"buffer_load_dword v{vdst}, v{vaddr}, s[{srd}:{srd+3}], {soff} offen sc1")
    else:      A(f"buffer_load_dwordx2 v[{vdst}:{vdst+1}], v{vaddr}, s[{srd}:{srd+3}], {soff} offen sc1")

def poll_check(A, vdst, vaddr, srd, soff, tag, expect=1, n=1):
    ok = A.uid(tag + "_OK"); sp = A.uid(tag + "_SP")
    def test():
        if n == 2: A(f"v_and_b32 v{vdst}, v{vdst}, v{vdst+1}")
        A(f"v_cmp_eq_u32 vcc, {expect}, v{vdst}")
        A("s_cmp_eq_u64 vcc, -1")
        A(f"s_cbranch_scc1 {ok}")
    test()
    A("s_mov_b32 s82, 0")
    A.label(sp)
    A("s_sleep 2")
    poll_issue(A, vdst, vaddr, srd, soff, n)
    A("s_add_u32 s82, s82, 1")
    A("s_waitcnt vmcnt(0)")
    test()
    A(f"s_cmp_lt_u32 s82, {SPIN_MAX}")
    A(f"s_cbranch_scc1 {sp}")
    A.label(ok)

def set_flag(A, soff):
    A(f"""
    s_mov_b64 exec, 1
    v_mov_b32 v4, 1
    v_mov_b32 v5, 0
    buffer_store_dword v4, v5, s[32:35], {soff} offen sc1
    s_mov_b64 exec, -1
    """)

class VM:
    def __init__(s, A, init=()): s.A = A; s.q = list(init)
    def op(s, tag, text):
        def f(): s.A(text); s.q.append(tag)
        return f
    def now(s, tag, text): s.op(tag, text)()
    def wait(s, *tags):
        idx = max([k for k, t in enumerate(s.q) if t in tags], default=-1)
        if idx < 0: return
        s.A(f"s_waitcnt vmcnt({len(s.q) - 1 - idx})")
        s.q = s.q[idx+1:]

def setup_p2(A):
    A(f"""
    s_lshl_b32 s70, s42, 18
    s_add_u32 s70, s70, {WS_KVB}
    s_lshl_b32 s47, s41, 1
    s_add_u32 s47, s47, 3
    s_and_b32 s47, s47, 15           ; chunk 3 of the rotated order
    s_lshl_b32 s47, s47, 14
    s_lshl_b32 s38, s40, 11
    s_add_u32 s71, s47, s38          ; offset within the head of this wave's part of the next chunk
    s_add_u32 s72, s38, {3*16384}
    s_lshl_b32 s47, s41, 3
    s_add_u32 s47, s47, s40
    s_lshl_b32 s47, s47, 5
    s_add_u32 s47, s47, s42
    s_lshl_b32 s73, s47, 11
    s_add_u32 s73, s73, {WS_OB}
    s_lshr_b32 s39, s40, 1
    s_and_b32 s39, s39, 1            ; th
    s_lshl_b32 s47, s41, 3
    s_lshl_b32 s38, s39, 2
    s_add_u32 s47, s47, s38          ; r*8 + th*4
    s_lshl_b32 s47, s47, 5
    s_add_u32 s47, s47, s42
    s_lshl_b32 s74, s47, 11
    s_add_u32 s74, s74, {WS_OA}      ; oA store offset (waves 1, 3)
    s_lshl_b32 s75, s42, 16
    s_lshl_b32 s47, s40, 10
    s_add_u32 s75, s75, s47
    s_add_u32 s75, s75, {WS_KVP}
    s_lshl_b32 s47, s41, 13
    s_add_u32 s79, s75, s47
    s_lshl_b32 s76, s42, 11
    s_add_u32 s76, s76, {WS_ZP}
    s_lshl_b32 s47, s41, 8
    s_add_u32 s89, s76, s47
    s_lshl_b32 s77, s42, 8
    s_add_u32 s77, s77, {WS_FK}
    s_lshl_b32 s47, s41, 5
    s_add_u32 s68, s77, s47
    s_lshl_b32 s47, s40, 2
    s_add_u32 s68, s68, s47
    s_lshl_b32 s78, s42, 6
    s_add_u32 s78, s78, {WS_F1}      ; F1 line
    s_lshl_b32 s47, s41, 3
    s_add_u32 s67, s78, s47
    s_lshl_b32 s38, s39, 2
    s_add_u32 s67, s67, s38
    s_lshl_b32 s88, s41, 8
    s_lshl_b32 s47, s42, 3
    s_add_u32 s88, s88, s47
    s_add_u32 s88, s88, s38
    s_add_u32 s88, s88, {WS_FA}
    s_lshl_b32 s47, s41, 1
    s_lshr_b32 s38, s40, 2
    s_add_u32 s47, s47, s38
    s_lshl_b32 s69, s47, 9
    s_lshl_b32 s47, s42, 4
    s_add_u32 s69, s69, s47
    s_and_b32 s47, s40, 3
    s_lshl_b32 s47, s47, 2
    s_add_u32 s69, s69, s47
    s_add_u32 s69, s69, {WS_FB}
    """)

def setup_p3(A):
    A(f"""
    s_load_dwordx2 s[4:5], s[0:1], 24
    s_load_dwordx2 s[6:7], s[0:1], 48
    s_load_dwordx2 s[8:9], s[0:1], 64
    s_lshr_b32 s16, s45, 1
    s_lshl_b32 s16, s16, 2
    s_lshr_b32 s47, s46, 3
    s_add_u32 s16, s16, s47          ; T = 4*(e>>1) + (i>>3)
    s_and_b32 s17, s45, 1
    s_lshl_b32 s17, s17, 3
    s_and_b32 s47, s46, 7
    s_add_u32 s17, s17, s47          ; C = 8*(e&1) + (i&7)
    s_lshr_b32 s18, s40, 2           ; grp
    s_and_b32 s19, s40, 3            ; tq
    s_lshl_b32 s47, s16, 2
    s_add_u32 s47, s47, s19          ; tb3
    s_lshl_b32 s28, s47, 16
    s_lshl_b32 s38, s18, 15
    s_add_u32 s28, s28, s38
    s_add_u32 s28, s28, {WS_OA}
    s_lshl_b32 s31, s47, 7
    s_add_u32 s31, s31, {WS_G}       ; g offset
    s_lshr_b32 s47, s16, 1
    s_lshl_b32 s36, s47, 8
    s_add_u32 s36, s36, {WS_FA}
    s_lshl_b32 s83, s16, 9
    s_add_u32 s83, s83, {WS_FB}
    s_lshl_b32 s30, s18, 13
    s_lshl_b32 s38, s19, 11
    s_add_u32 s30, s30, s38
    s_mov_b32 s29, 0
    s_waitcnt lgkmcnt(0)
    s_mov_b32 s20, s4
    s_mov_b32 s21, s5
    s_mov_b32 s22, {1024*2048}
    s_mov_b32 s23, 0x00020000
    """)

def gen_kg(A, cfg):
    K = KNAME
    F1POS = int(cfg.get("f1pos", 2))
    ROT = int(cfg.get("rot", 12))
    RSH = int(cfg.get("rsh", 0))
    ROT2 = int(cfg.get("rot2", 0))
    PV = 255
    kernel_begin(A, K)
    A(f"""
    s_cmp_ge_u32 s2, 256
    s_cbranch_scc1 KF_END
    s_load_dwordx2 s[4:5], s[0:1], 0
    s_load_dwordx2 s[6:7], s[0:1], 8
    s_load_dwordx2 s[8:9], s[0:1], 40
    s_load_dwordx2 s[10:11], s[0:1], 16
    s_load_dwordx2 s[12:13], s[0:1], 56
    s_load_dwordx2 s[14:15], s[0:1], 80
    s_load_dwordx2 s[86:87], s[0:1], 72
    v_lshrrev_b32 v1, 6, v0
    v_and_b32 v0, 63, v0
    v_readfirstlane_b32 s40, v1
    s_and_b32 s45, s2, 7
    s_lshr_b32 s46, s2, 3
    """)
    if cfg.get("prof"): A(f"v_mov_b32 v{PV}, 0")
    vstamp(A, cfg, 0, PV)
    if cfg.get("prof") == "4":
        A("s_memrealtime s[96:97]")
        A("s_waitcnt lgkmcnt(0)")
        A(f"v_writelane_b32 v{PV}, s96, 40")
    ES = cfg.get("es") == "1"
    assert not ES or cfg.get("hmap", "f") == "f"
    if cfg.get("hmap", "f") == "f":
        A("""
        s_and_b32 s41, s45, 1
        s_lshl_b32 s41, s41, 2
        s_lshr_b32 s47, s46, 3
        s_add_u32 s41, s41, s47          ; r = 4(e&1) + (i>>3)
        s_lshr_b32 s42, s45, 1
        s_lshl_b32 s42, s42, 3
        s_and_b32 s47, s46, 7
        s_add_u32 s42, s42, s47          ; h = 8(e>>1) + (i&7)
        """)
        if not ES: A("s_waitcnt lgkmcnt(0)")
    elif cfg.get("hmap") == "h":
        A("""
        s_lshr_b32 s41, s45, 1
        s_lshl_b32 s41, s41, 1
        s_lshr_b32 s47, s46, 4
        s_add_u32 s41, s41, s47          ; r = 2(e>>1) + (i>>4)
        s_and_b32 s42, s45, 1
        s_lshl_b32 s42, s42, 4
        s_and_b32 s47, s46, 15
        s_add_u32 s42, s42, s47          ; h = 16(e&1) + (i&15)
        s_waitcnt lgkmcnt(0)
        """)
    else:
        A("""
        s_and_b32 s41, s46, 7            ; r
        s_lshl_b32 s42, s45, 2
        s_lshr_b32 s47, s46, 3
        s_add_u32 s42, s42, s47          ; h = 4e + (i>>3)
        s_waitcnt lgkmcnt(0)
        """)
    def rstamp(lane):
        if cfg.get("prof") == "4":
            A("s_memrealtime s[96:97]")
            A("s_waitcnt lgkmcnt(0)")
            A(f"v_writelane_b32 v{PV}, s96, {lane}")
    if not ES:
        rstamp(41)
        srd(A, 32, 14, WS_USED)
    A("""
    s_cmp_ge_u32 s40, 4
    s_cbranch_scc1 K1_LOADER
    """)
    if ES:
        A("s_waitcnt lgkmcnt(0)")
        rstamp(41)
        srd(A, 32, 14, WS_USED)
    PF3 = cfg.get("pf3")
    PF4 = cfg.get("pf4")
    L2D = int(cfg.get("l2d", 2)) if not (PF3 or PF4) else 0
    TL = int(cfg.get("tl", 4))
    TC = int(cfg.get("tc", 8))
    def touch_addr(w, dst, t0, t1, t2, shift, sa):
        OFFL = int(cfg.get("offl", 0))
        A(f"""
        s_and_b32 s47, s42, 1
        s_lshl_b32 s47, s47, 2
        s_and_b32 s38, s41, 3
        s_add_u32 s47, s47, s38          ; share of the pair's weight lines
        s_lshl_b32 s47, s47, 2
        v_bfe_u32 v{t0}, v0, 2, 1
        v_lshlrev_b32 v{t0}, 5, v{t0}    ; 32 * block
        v_and_b32 v{t2}, 3, v0
        v_add3_u32 v{dst}, v{t2}, v{t0}, s47
        v_mul_u32_u24 v{dst}, 6144, v{dst}
        v_lshrrev_b32 v{t1}, 3, v0       ; segment
        v_lshl_add_u32 v{dst}, v{t1}, 11, v{dst}
        s_lshr_b32 s47, s42, 1
        s_lshl_b32 s47, s47, 7
        v_add_u32 v{dst}, s47, v{dst}
        s_and_b32 {sa}, s42, 7
        """)
        if OFFL:
            A(f"""
            s_lshl_b32 s47, {sa}, 2
            s_add_u32 s47, s47, s38
            s_lshl_b32 s47, s47, 2
            v_add_u32 v{t2}, s47, v{t2}
            v_lshrrev_b32 v{t1}, 5, v{t2}
            v_and_b32 v{t2}, 31, v{t2}
            v_add_u32 v{t2}, v{t2}, v{t0}
            v_mul_u32_u24 v{t2}, 6144, v{t2}
            v_lshl_add_u32 v{t2}, v{t1}, 11, v{t2}
            s_lshr_b32 s47, s42, 1
            s_or_b32 s47, s47, 3
            s_lshl_b32 s47, s47, 7
            v_add_u32 v{t2}, s47, v{t2}
            v_cmp_lt_u32 vcc, 23, v0
            s_nop 1
            v_cndmask_b32 v{dst}, v{dst}, v{t2}, vcc
            s_cmp_lt_u32 {sa}, 6
            s_cselect_b32 s63, 32, 0         ; live lanes of the weight waves
            """)
            if OFFL == 1:
                A(f"""
                s_lshl_b32 s47, {sa}, 4
                s_mul_i32 s38, {sa}, 80
                s_sub_u32 s38, s38, {6*80 - 96}
                s_cmp_lt_u32 {sa}, 6
                s_cselect_b32 s47, s47, s38
                s_cselect_b32 {sa}, 16, 40        ; live lanes of wave 2
                s_cselect_b32 s38, 0, 40         ; live lanes of wave 3
                s_cmp_eq_u32 {w}, 3
                s_cselect_b32 {sa}, s38, {sa}
                s_cselect_b32 s38, 40, 0
                s_add_u32 s47, s47, s38
                """)
            elif OFFL == 2:
                A(f"""
                s_mul_i32 s47, {sa}, 43
                s_cmp_lt_u32 {sa}, 5
                s_cselect_b32 s38, 43, 41
                s_cmp_lt_u32 {sa}, 6
                s_cselect_b32 {sa}, s38, 0
                s_cmp_eq_u32 {w}, 3
                s_cselect_b32 {sa}, 0, {sa}
                """)
            else:
                A(f"""
                s_lshl_b32 s47, {sa}, 5
                s_cmp_eq_u32 {w}, 3
                s_cselect_b32 {sa}, 0, 32
                """)
        else:
            A(f"""
            s_mov_b32 s63, 24
            s_lshl_b32 s47, {sa}, 5
            s_cmp_eq_u32 {w}, 3
            s_cselect_b32 {sa}, 0, 32
            """)
        A(f"""
        s_lshl_b32 s38, s41, 8
        s_add_u32 s47, s47, s38
        v_add_u32 v{t1}, s47, v0
        v_lshlrev_b32 v{t1}, 11, v{t1}   ; x row
        v_bfe_u32 v{t0}, v0, 1, 1
        s_and_b32 s38, s45, 1
        v_xor_b32 v{t0}, s38, v{t0}      ; 0 : ours
        v_and_b32 v{t2}, 3, v0
        s_lshr_b32 s38, s45, 1
        v_xor_b32 v{t2}, s38, v{t2}
        s_cmp_ge_u32 {w}, 2
        s_cselect_b64 vcc, -1, 0
        s_cselect_b32 s47, {sa}, s63      ; live lanes
        s_mov_b32 s38, {(TC - TL) * 32 * 6144}
        s_cselect_b32 s38, {(TC - TL) * 64}, s38
        v_cndmask_b32 v{dst}, v{dst}, v{t1}, vcc
        v_cndmask_b32 v{t0}, v{t0}, v{t2}, vcc
        v_cmp_eq_u32 vcc, 0, v{t0}
        """)
        if shift:
            A(f"""
            v_mov_b32 v{t1}, s38
            s_nop 0
            v_cndmask_b32 v{t1}, 0, v{t1}, vcc
            v_add_u32 v{dst}, v{dst}, v{t1}
            v_cmp_gt_u32 vcc, s47, v0
            v_mov_b32 v{t1}, 0x7ffffff0
            s_nop 0
            v_cndmask_b32 v{dst}, v{t1}, v{dst}, vcc
            """)
        else:
            A(f"""
            v_cmp_gt_u32 s[62:63], s47, v0
            v_mov_b32 v{t1}, 0x7ffffff0
            s_and_b64 vcc, vcc, s[62:63]
            v_cndmask_b32 v{dst+2}, v{t1}, v{dst}, vcc
            v_cndmask_b32 v{dst}, v{t1}, v{dst}, s[62:63]
            """)
        A(f"""
        s_cmp_eq_u32 {w}, 0
        s_cselect_b32 s92, s6, s8
        s_cselect_b32 s93, s7, s9
        s_cmp_ge_u32 {w}, 2
        s_cselect_b32 s92, s4, s92
        s_cselect_b32 s93, s5, s93
        s_mov_b32 s94, {1024*6144}
        s_cselect_b32 s94, {2048*2048}, s94
        s_mov_b32 s95, 0x00020000
        """)
    rng = lambda t: range(*map(int, t.split(":"))) if t else range(0)
    PFA_ = rng(cfg.get("pfa", f"0:{4+L2D}")); PFB_ = rng(cfg.get("pfb", ""))
    PFA, PFD = 252, 253
    def l2pf(step=None):
        if step is None:
            A("s_and_b32 s55, s59, 31")
        else:
            A(f"s_add_u32 s55, s63, {step}")
            A("s_and_b32 s55, s55, 31")
        A(f"s_mul_i32 s55, s55, {32*6144}")
        A(f"buffer_load_dword v{PFD}, v{PFA}, s[92:95], s55 offen")
        if step is None: A("s_add_u32 s59, s59, 1")
    PF2 = cfg.get("pf2")
    def touch():
        return [f"buffer_load_dword v{PFD}, v{PFA}, s[92:95], s55 offen", "s_add_u32 s55, s55, s59", "s_cmp_eq_u32 s55, s56",
                "s_cselect_b32 s55, 0, s55", "s_xor_b32 s59, s59, s57"]
    if PF2:
        XW = int(cfg.get("pfx", 1))
        HM = cfg.get("hmap", "f") == "h"
        RB = 1 if HM else 2
        HB = 4 if HM else 3
        R20 = 0 if cfg.get("r2") == "early0" else 4
        A(f"""
        s_and_b32 s47, s42, 1
        s_lshl_b32 s47, s47, {RB}
        s_and_b32 s38, s41, {(1 << RB) - 1}
        s_add_u32 s47, s47, s38          ; share of the weight lines
        s_lshr_b32 s38, s42, 1
        s_lshl_b32 s47, s47, {4 - RB}
        s_lshl_b32 s38, s38, 7
        v_and_b32 v4, {(1 << (4 - RB)) - 1}, v0
        v_add_u32 v4, s47, v4
        v_mul_u32_u24 v4, 6144, v4
        v_lshrrev_b32 v5, {4 - RB}, v0
        v_lshl_add_u32 v4, v5, 11, v4    ; + segment * 2048
        v_add_u32 v4, s38, v4
        s_lshl_b32 s47, s41, 8
        s_and_b32 s38, s42, {(1 << HB) - 1}
        s_lshl_b32 s38, s38, {8 - HB}
        s_add_u32 s47, s47, s38
        v_add_u32 v6, s47, v0
        v_lshlrev_b32 v6, 11, v6
        s_cmp_eq_u32 s40, 0
        s_cselect_b64 vcc, -1, 0
        s_cselect_b32 s38, {1 << (7 - HB)}, {3 << (4 - RB)}
        v_mov_b32 v5, 0x7ffffff0
        v_cndmask_b32 v4, v4, v6, vcc
        v_cmp_gt_u32 vcc, s38, v0
        s_cmp_eq_u32 s40, 2
        s_cselect_b32 s92, s6, s8
        s_cselect_b32 s93, s7, s9
        s_cmp_ge_u32 s40, 2
        s_cselect_b32 s62, {1024*6144}, 0
        v_cndmask_b32 v{PFA}, v5, v4, vcc
        s_lshr_b32 s63, s45, {RSH}
        s_mul_i32 s63, s63, {ROT}
        s_and_b32 s47, s45, 1
        s_mul_i32 s47, s47, {ROT2}
        s_add_u32 s63, s63, s47
        s_add_u32 s63, s63, {R20}
        s_and_b32 s55, s63, 31
        s_mul_i32 s55, s55, {32*6144}
        s_mov_b32 s59, {32*6144}
        s_mov_b32 s57, 0
        s_mov_b32 s56, {1024*6144}
        s_cmp_lg_u32 s40, 0
        s_cbranch_scc1 K1_PFW
        s_mov_b32 s92, s4
        s_mov_b32 s93, s5
        s_mov_b32 s62, {2048*2048 if XW else 0}
        s_lshr_b32 s55, s63, 1
        s_and_b32 s55, s55, 15
        s_lshl_b32 s55, s55, 7
        s_mov_b32 s59, {1 << (18 - HB)}
        s_mov_b32 s57, {(1 << (18 - HB)) ^ ((128 - (1 << (18 - HB))) & 0xffffffff)}
        s_mov_b32 s56, 2048
        K1_PFW:
        s_mov_b32 s94, s62
        s_mov_b32 s95, 0x00020000
        """)
        if cfg.get("r2") == "early0":
            for t in range(int(cfg.get("e0n", 4))):
                for l in touch(): A(l)
        if cfg.get("r2") == "early":
            for t in range(L2D):
                for l in touch(): A(l)
    elif L2D:
        A(f"""
        s_and_b32 s47, s42, 1
        s_lshl_b32 s47, s47, 2
        s_and_b32 s38, s41, 3
        s_add_u32 s47, s47, s38
        s_lshr_b32 s38, s42, 1
        
        s_lshl_b32 s47, s47, 2
        s_lshl_b32 s38, s38, 7
        v_and_b32 v4, 3, v0
        v_add_u32 v4, s47, v4
        v_mul_u32_u24 v4, 6144, v4
        v_lshrrev_b32 v5, 2, v0
        v_lshl_add_u32 v4, v5, 11, v4    ; + segment * 2048
        v_add_u32 v4, s38, v4
        v_mov_b32 v5, 0x7ffffff0
        v_cmp_gt_u32 vcc, 12, v0
        s_cmp_eq_u32 s40, 2
        s_cselect_b32 s92, s6, s8
        s_cselect_b32 s93, s7, s9
        s_cmp_ge_u32 s40, 2
        s_cselect_b32 s62, {1024*6144}, 0
        s_mov_b32 s94, s62
        s_mov_b32 s95, 0x00020000
        v_cndmask_b32 v{PFA}, v5, v4, vcc
        s_lshr_b32 s63, s45, {RSH}
        s_mul_i32 s63, s63, {ROT}
        s_add_u32 s59, s63, {4 + L2D}
        """)
        for t in PFA_: l2pf(t)
    if PF4:
        assert ROT == 0 and ROT2 == 0
        touch_addr("s40", PFA, 4, 5, 6, False, "s62")
        A(f"""
        s_cmp_ge_u32 s40, 2
        s_mov_b32 s59, {64*6144}
        s_cselect_b32 s59, 128, s59
        s_mov_b32 s55, 0
        """)
        for t in range(int(cfg.get("r0", 0))):
            A(f"buffer_load_dword v{PFD}, v{PFA}, s[92:95], s55 offen")
            A("s_add_u32 s55, s55, s59")
        A(f"""
        s_cmp_ge_u32 s40, 2
        s_mov_b32 s55, {TL*32*6144}
        s_cselect_b32 s55, {TL*64}, s55
        """)
    rstamp(42)
    setup_p2(A)
    rstamp(43)
    A(f"""
    s_cmp_lg_u32 s40, 0
    s_cbranch_scc1 K1_NOZ
    v_lshlrev_b32 v4, 2, v0
    v_lshrrev_b32 v6, 2, v0
    v_lshlrev_b32 v6, 9, v6
    v_and_b32 v7, 3, v0
    v_lshl_add_u32 v6, v7, 2, v6
    v_mov_b32 v5, 0
    s_mov_b64 exec, 3
    buffer_store_dword v5, v4, s[32:35], s67 offen sc1
    buffer_store_dword v5, v4, s[32:35], s88 offen sc1
    s_mov_b64 exec, 0xff
    buffer_store_dword v5, v4, s[32:35], s68 offen sc1
    buffer_store_dword v5, v6, s[32:35], s69 offen sc1
    s_mov_b32 s36, s86
    s_mov_b32 s37, s87
    s_mov_b32 s38, 256
    s_mov_b32 s39, 0x00020000
    """)
    LATE = cfg.get("late")
    if not LATE:
        A("""
        s_waitcnt vmcnt(0)
        s_mov_b64 exec, 1
        v_mov_b32 v6, 1
        buffer_atomic_add v6, v5, s[36:39], 0 offen
        s_mov_b64 exec, -1
        """)
    else:
        A("s_mov_b64 exec, -1")
    A("""
    K1_NOZ:
    """)
    rstamp(44)
    setup_p3(A)
    rstamp(45)
    TW = cfg.get("tw")
    if TW:
        assert PF4
        A(f"""
        s_cmp_eq_u32 s40, 1
        s_cbranch_scc0 K1_TW2
        v_lshlrev_b32 v4, 12, v0
        s_lshl_b32 s47, s41, 15
        s_add_u32 s47, s47, s70
        s_mov_b64 exec, 0xff
        buffer_load_dword v{PFD}, v4, s[32:35], s47 offen
        s_mov_b64 exec, 1
        buffer_load_dword v{PFD}, v4, s[32:35], s79 offen
        buffer_load_dword v{PFD}, v4, s[32:35], s89 offen
        s_mov_b64 exec, -1
        K1_TW2:
        s_cmp_eq_u32 s40, 2
        s_cbranch_scc0 K1_TW3
        v_lshlrev_b32 v4, 16, v0
        s_sub_u32 s47, s73, {2*65536}
        s_mov_b64 exec, 0xff
        buffer_load_dword v{PFD}, v4, s[32:35], s47 offen
        s_sub_u32 s47, s47, {WS_OB - WS_OA}
        buffer_load_dword v{PFD}, v4, s[32:35], s47 offen
        s_mov_b64 exec, -1
        K1_TW3:
        """)
        if TW == "1":
            A(f"""
            s_cmp_eq_u32 s40, 3
            s_cbranch_scc0 K1_TW4
            s_mov_b32 s96, s8
            s_mov_b32 s97, s9
            s_mov_b32 s98, 4194304
            s_mov_b32 s99, 0x00020000
            v_lshlrev_b32 v4, 12, v0
            s_lshl_b32 s47, s16, 18
            s_lshl_b32 s38, s17, 7
            s_add_u32 s47, s47, s38
            buffer_load_dword v{PFD}, v4, s[96:99], s47 offen
            K1_TW4:
            """)
    XA, WA = 4, 20
    XB, WB = 32, 48
    ACC = 60
    acc = lambda sg, tt: ACC + (sg * 4 + tt) * 16
    A(f"""
    s_lshr_b32 s50, s40, 1           ; th
    s_and_b32 s51, s40, 1            ; type
    v_and_b32 v4, 31, v0
    v_lshrrev_b32 v5, 5, v0          ; hh
    v_bfe_u32 v6, v0, 2, 2           ; f = (l>>2)&3
    v_bfe_u32 v7, v0, 1, 3           ; (row>>1)&7
    v_xor_b32 v7, v5, v7
    v_lshlrev_b32 v7, 4, v7
    v_lshl_add_u32 v1, v4, 7, v7
    s_lshl_b32 s47, s50, 14
    v_add_u32 v1, s47, v1            ; vxa0
    v_xor_b32 v2, 32, v1             ; vxa1
    v_lshl_add_u32 v7, v5, 3, v6
    v_lshlrev_b32 v7, 6, v7          ; *64
    v_bfe_u32 v8, v0, 4, 1           ; g&1
    v_lshl_add_u32 v7, v8, 5, v7
    v_and_b32 v9, 3, v0
    v_lshl_add_u32 v7, v9, 3, v7
    s_lshl_b32 s47, s51, 11
    s_add_u32 s47, s47, {K1_WB}
    v_add_u32 v3, s47, v7            ; vwa
    """)
    M16 = cfg.get("m16")
    if M16:
        assert cfg.get("e8") and cfg.get("spread")
        A(f"""
        v_and_b32 v4, 15, v0             ; i
        v_lshrrev_b32 v5, 4, v0          ; q4
        v_lshrrev_b32 v6, 1, v4
        v_xor_b32 v6, v5, v6
        v_lshlrev_b32 v6, 4, v6
        v_lshl_add_u32 v1, v4, 7, v6
        s_lshl_b32 s38, s50, 14
        v_add_u32 v1, s38, v1
        v_lshrrev_b32 v6, 2, v4
        v_lshl_add_u32 v6, v5, 3, v6     ; k row 8 q4 + (i >> 2)
        v_lshlrev_b32 v6, 6, v6
        v_and_b32 v7, 1, v5
        v_lshl_add_u32 v6, v7, 5, v6
        v_and_b32 v7, 3, v0
        v_lshl_add_u32 v6, v7, 3, v6
        v_add_u32 v3, s47, v6            ; W columns 0..15
        v_xor_b32 v2, 32, v3             ; W columns 16..31
        """)
    A(f"""
    s_mov_b32 s48, {1 if cfg.get("spread") else 0}
    s_mov_b32 s49, {K1_SLOT}
    s_mov_b32 s65, 0
    s_mov_b32 s52, {K1_SLOT}
    s_mov_b32 s53, {-(K1_NSLOT-1)*K1_SLOT & 0xffffffff}
    s_mov_b32 s54, 32
    s_mov_b32 s64, 0                 ; x slot
    s_mov_b32 s66, {-(K1_NX-1)*K1_XS & 0xffffffff}
    """)
    for i in range(192):
        A(f"v_mov_b32 v{ACC+i}, 0")
    if PF2 and cfg.get("r2") != "early":
        for t in range(L2D + (4 - int(cfg.get("e0n", 4)) if cfg.get("r2") == "early0" else 0)):
            for l in touch(): A(l)
    rstamp(46)
    A("s_barrier")
    vstamp(A, cfg, 1, PV)
    if cfg.get("prof") == "4":
        A("s_memrealtime s[96:97]")
        A("s_waitcnt lgkmcnt(0)")
        A(f"v_writelane_b32 v{PV}, s96, 0")
    if cfg.get("prof") == "3":
        A("s_memtime s[96:97]")
        A("s_mov_b32 s100, 0")
        A("s_waitcnt lgkmcnt(0)")
        A("s_mov_b32 s101, s96")
    if L2D:
        for t in PFB_: l2pf(t)
    def reads(X, W, s):
        r = []
        xa = 1 if s == 0 else 2
        for tt in range(4):
            r.append(f"ds_read_b128 v[{X+4*tt}:{X+4*tt+3}], v{xa} offset:{tt*4096}")
        for sg in range(3):
            for sec in range(2):
                r.append(f"ds_read_b64_tr_b16 v[{W+4*sg+2*sec}:{W+4*sg+2*sec+1}], v3 offset:{sg*4096 + s*1024 + sec*256}")
        return [r[4], r[5], r[0], r[1], r[2], r[3], r[6], r[7], r[8], r[9]]
    def mfmas(X, W):
        m = []
        for sg in range(3):
            for tt in range(4):
                a = acc(sg, tt)
                w = f"v[{W+4*sg}:{W+4*sg+3}]"; x = f"v[{X+4*tt}:{X+4*tt+3}]"
                if cfg.get("exp16"):
                    m.append(f"v_mfma_f32_16x16x32_bf16 v[{a}:{a+3}], {w}, {x}, v[{a}:{a+3}]\nv_mfma_f32_16x16x32_bf16 v[{a+8}:{a+11}], {x}, {w}, v[{a+8}:{a+11}]")
                elif sg < 2: m.append(f"v_mfma_f32_32x32x16_bf16 v[{a}:{a+15}], {w}, {x}, v[{a}:{a+15}]")
                else:      m.append(f"v_mfma_f32_32x32x16_bf16 v[{a}:{a+15}], {x}, {w}, v[{a}:{a+15}]")
        return m
    X16, W16 = 4, 36
    def acc16(g, c):
        sg, ch = c >> 1, c & 1
        return acc(sg, g >> 1) + ((g & 1) * 8 + ch * 4 if sg < 2 else ch * 8 + (g & 1) * 4)
    def mf16(g, c):
        a = acc16(g, c); w = f"v[{W16+4*c}:{W16+4*c+3}]"; x = f"v[{X16+4*g}:{X16+4*g+3}]"
        return f"v_mfma_f32_16x16x32_bf16 v[{a}:{a+3}], " + (f"{w}, {x}" if c < 4 else f"{x}, {w}") + f", v[{a}:{a+3}]"
    rx16 = lambda g: f"ds_read_b128 v[{X16+4*g}:{X16+4*g+3}], v1 offset:{g*2048}"
    rw16 = lambda c, sec: f"ds_read_b64_tr_b16 v[{W16+4*c+2*sec}:{W16+4*c+2*sec+1}], v{3 - (c & 1)} offset:{(c >> 1)*4096 + sec*256}"
    H1R = {23: [rw16(5, 0), rw16(5, 1)]}
    for c in range(0, 5):
        H1R[4*c+3] = [rw16(c, 0)]; H1R[4*c+4] = [rw16(c, 1)]
    XAP = [int(x) for x in cfg.get("m16a", "0,1,2,4").split(",")]
    for g, k in enumerate(XAP): H1R[k] = [rx16(g)] + H1R.get(k, [])
    H1L = [l for k in range(24) for l in H1R.get(k, [])]
    H1N = lambda l: len(H1L) - 1 - H1L.index(l)
    if M16:
        for l in H1L: A(l)
    else:
        for l in reads(XA, WA, 0): A(l)
    if LATE:
        A("""
        s_cmp_lg_u32 s40, 0
        s_cbranch_scc1 K1_NOARR
        s_mov_b32 s96, s86
        s_mov_b32 s97, s87
        s_mov_b32 s98, 256
        s_mov_b32 s99, 0x00020000
        v_mov_b32 v32, 0
        v_mov_b32 v33, 1
        s_waitcnt vmcnt(0)
        s_mov_b64 exec, 1
        buffer_atomic_add v33, v32, s[96:99], 0 offen
        s_mov_b64 exec, -1
        K1_NOARR:
        """)
    if PF4:
        for t in range((TC - TL) // 2):
            A(f"buffer_load_dword v{PFD}, v{PFA+2}, s[92:95], s55 offen")
            A("s_add_u32 s55, s55, s59")
    A.label("K1_CLOOP")
    if M16:
        XP = int(cfg.get("m16x", 0))
        XS_ = int(cfg.get("m16s", 1))
        XBP = [XP + XS_ * g for g in range(4)]
        fr0 = [k for k in range(24) if k not in XBP and k % 4 != 3]
        ex0 = {[k for k in fr0 if k > XBP[-1]][0]: ["v_xad_u32 v1, v1, 64, s65"]}
        f2 = [k for k in fr0 if k not in ex0]
        ex0[f2[1]] = ["v_add_u32 v3, s49, v3"]; ex0[f2[3]] = ["v_add_u32 v2, s49, v2"]
        sal = ["s_sub_u32 s54, s54, 1", "s_and_b32 s63, s54, 1", "s_add_u32 s64, s64, s63",
               f"s_cmp_eq_u32 s64, {K1_NX}", f"s_cselect_b32 s65, s66, {K1_XS}", "s_cselect_b32 s64, 0, s64",
               "s_mul_i32 s65, s65, s63", "s_add_u32 s48, s48, 1", f"s_cmp_eq_u32 s48, {K1_NSLOT}",
               "s_cselect_b32 s49, s53, s52", "s_cselect_b32 s48, 0, s48", "s_cmp_lg_u32 s54, 0"]
        free = [k for k in range(1, 23) if len(H1R.get(k, [])) == 0]
        ex1 = {k: [] for k in free}
        for n, l in enumerate(sal): ex1[free[n * len(free) // len(sal)]].append(l)
        for k in range(24):
            nb = len([x for x in XBP if x < k])
            if k % 4 == 0:
                c = k // 4
                n = H1N(rw16(c, 1))
                if c == 0: n = min(n, H1N(rx16(0)))
                A(f"s_waitcnt lgkmcnt({min(15, n + nb)})")
                done = n
            if k in (1, 2, 3) and H1N(rx16(k)) < done:
                done = H1N(rx16(k)); A(f"s_waitcnt lgkmcnt({min(15, done + nb)})")
            A(mf16(k % 4, k // 4))
            if k in XBP: A(rx16(4 + XBP.index(k)))
            for l in ex0.get(k, []): A(l)
        for k in range(24):
            if k < 4 and (k == 0 or XS_ > 1): A(f"s_waitcnt lgkmcnt({(3 - k if XS_ > 1 else 0) + len([l for j in range(k) for l in H1R.get(j, [])])})")
            A(mf16(4 + k % 4, k // 4))
            for l in H1R.get(k, []) + ex1.get(k, []): A(l)
    else:
        A("s_waitcnt lgkmcnt(0)")
    m = mfmas(XA, WA); r = reads(XB, WB, 1)
    extra0 = {4: ["s_and_b32 s63, s54, 1", "s_add_u32 s64, s64, s63", f"s_cmp_eq_u32 s64, {K1_NX}",
                  f"s_cselect_b32 s65, s66, {K1_XS}", "s_cselect_b32 s64, 0, s64", "s_mul_i32 s65, s65, s63"],
              6: ["s_add_u32 s48, s48, 1", f"s_cmp_eq_u32 s48, {K1_NSLOT}", "s_cselect_b32 s49, s53, s52", "s_cselect_b32 s48, 0, s48"],
              7: ["v_xor_b32 v1, 64, v1", "v_xor_b32 v2, 64, v2"], 8: ["v_add_u32 v1, s65, v1", "v_add_u32 v2, s65, v2"], 9: ["v_add_u32 v3, s49, v3"]}
    SPREAD = cfg.get("spread")
    extra1 = {}
    if SPREAD:
        extra0 = {6: ["v_xad_u32 v1, v1, 64, s65"], 8: ["v_xad_u32 v2, v2, 64, s65"], 10: ["v_add_u32 v3, s49, v3"]}
        extra1 = {5: ["s_sub_u32 s54, s54, 1", "s_and_b32 s63, s54, 1", "s_add_u32 s64, s64, s63"],
                  6: [f"s_cmp_eq_u32 s64, {K1_NX}", f"s_cselect_b32 s65, s66, {K1_XS}", "s_cselect_b32 s64, 0, s64"],
                  7: ["s_mul_i32 s65, s65, s63", "s_add_u32 s48, s48, 1", f"s_cmp_eq_u32 s48, {K1_NSLOT}"],
                  8: ["s_cselect_b32 s49, s53, s52", "s_cselect_b32 s48, 0, s48"],
                  11: ["s_cmp_lg_u32 s54, 0"]}
        if PF2:
            t_ = touch()
            th_, tk_ = map(int, cfg.get("tpos", "1:9").split(":"))
            ex_ = extra1 if th_ else extra0
            after_dec = th_ == 1 and tk_ >= 5
            cmp_ = f"s_cmp_ge_u32 s54, {4 + L2D}" if after_dec else f"s_cmp_gt_u32 s54, {4 + L2D}"
            def addx(d, k, ls, front=False):
                d[k] = (ls + d.get(k, [])) if front else (d.get(k, []) + ls)
            if th_ == 1 and tk_ == 9:
                extra1[9] = [cmp_, "s_cselect_b32 s94, s62, 0", t_[0]]
                extra1[10] = t_[1:4]
                extra1[11] = [t_[4], "s_cmp_lg_u32 s54, 0"]
            else:
                assert not (th_ == 1 and 3 < tk_ < 9)
                addx(ex_, tk_, [cmp_, "s_cselect_b32 s94, s62, 0", t_[0]])
                addx(ex_, tk_ + 1, [t_[1], t_[2], t_[3], t_[4]])
        elif L2D:
            extra1[9] = [f"s_cmp_ge_u32 s54, {4 + L2D}", "s_cselect_b32 s94, s62, 0", "s_and_b32 s55, s59, 31"]
            extra1[10] = [f"s_mul_i32 s55, s55, {32*6144}", "s_add_u32 s59, s59, 1", f"buffer_load_dword v{PFD}, v{PFA}, s[92:95], s55 offen"]
    for k in range(0 if M16 else 12):
        A(m[k])
        if k < 5:
            A(r[2*k]); A(r[2*k+1])
        for l in extra0.get(k, []): A(l)
        if L2D and k == 10 and not SPREAD:
            assert not PF2
            A(f"s_cmp_gt_u32 s54, {4 + L2D}")
            A("s_cselect_b32 s94, s62, 0")
            l2pf()
    if not M16: A("s_waitcnt lgkmcnt(0)")
    m = mfmas(XB, WB); r = reads(XA, WA, 0)
    for k in range(0 if M16 else 12):
        A(m[k])
        if k < 5:
            A(r[2*k]); A(r[2*k+1])
        for l in extra1.get(k, []): A(l)
        if k == 8 and not SPREAD:
            A("s_sub_u32 s54, s54, 1"); A("s_cmp_lg_u32 s54, 0")
    if cfg.get("prof") == "3":
        A("s_memtime s[96:97]")
        A("s_barrier")
        A("s_memtime s[98:99]")
        A("s_waitcnt lgkmcnt(0)")
        A("s_sub_u32 s98, s98, s96")
        A("s_add_u32 s100, s100, s98")
        A("s_cmp_lg_u32 s54, 0")
    elif cfg.get("prof") == "4":
        A("s_barrier")
        A("s_memrealtime s[96:97]")
        A("s_sub_u32 m0, 32, s54")
        A("s_waitcnt lgkmcnt(0)")
        A(f"v_writelane_b32 v{PV}, s96, m0")
        A("s_cmp_lg_u32 s54, 0")
    else:
        A("s_barrier")
    A("s_cbranch_scc1 K1_CLOOP")
    A("s_waitcnt lgkmcnt(0)")
    if cfg.get("prof") == "3":
        A("s_memtime s[96:97]")
        A("s_waitcnt lgkmcnt(0)")
        A("s_sub_u32 s96, s96, s101")
        A(f"v_writelane_b32 v{PV}, s100, 0")
        A(f"v_writelane_b32 v{PV}, s96, 2")
    vstamp(A, cfg, 2, PV)
    E8 = cfg.get("e8")
    T1 = 4
    VB = acc(1, 0)
    QL = E8 and cfg.get("qlate", "1") == "1"
    V = acc(0, 2) if QL else acc(1, 0)
    Q = V + 16 if QL else acc(1, 0) + 32
    NT8 = 2 if E8 else 4
    if M16:
        A("""
        v_and_b32 v42, 15, v0            ; i
        v_lshrrev_b32 v43, 4, v0
        v_lshlrev_b32 v1, 4, v42
        v_lshl_add_u32 v40, v43, 9, v1   ; Q, V images : row * 512 + i * 16
        v_and_b32 v41, 1, v43
        v_lshl_add_u32 v41, v41, 10, v1
        v_lshrrev_b32 v43, 1, v43
        v_lshl_add_u32 v41, v43, 9, v41  ; swapped order : (row & 1) * 1024 + (row >> 1) * 512 + i * 16
        v_lshrrev_b32 v42, 3, v42
        v_lshl_add_u32 v42, v42, 7, v40  ; K image : tokens 8..15 and 16..23 change places
        """)
    A(f"""
    v_lshlrev_b32 v1, 4, v0          ; lane*16
    s_cmp_lg_u32 s51, 0
    s_cbranch_scc1 K1_E1T1
    s_mov_b32 s56, {fhex(32**-0.5 * LOG2E)}
    s_mov_b32 s57, s56
    s_lshl_b32 s47, s50, 13
    s_add_u32 s47, s47, {QST}
    v_add_u32 v44, s47, v{40 if M16 else 1}           ; Q staging address
    """)
    O2 = 256 if M16 else 1024
    def swap_tile(d):
        if M16:
            for k in range(4): A(f"v_permlane16_swap_b32 v{d+k}, v{d+4+k}")
    def handoff(srcs):
        for k, src in enumerate(srcs):
            cvt_tile(A, T1 + 8*k, src)
            A(f"ds_write_b128 v45, v[{T1+8*k}:{T1+8*k+3}] offset:{k*2048}")
            A(f"ds_write_b128 v45, v[{T1+8*k+4}:{T1+8*k+7}] offset:{k*2048+O2}")
        A("s_waitcnt lgkmcnt(0)")
        A("s_barrier")
    if E8:
        A(f"""
        s_lshl_b32 s47, s50, 13
        s_add_u32 s47, s47, {HB0}
        v_add_u32 v45, s47, v{41 if M16 else 1}
        """)
        A.nop(2)
        handoff([acc(0, 2), acc(0, 3), acc(2, 2), acc(2, 3)])
    else:
        A.nop(6)
    def bq_stage(tts, sc, adr, inplace):
        for tt in tts:
            for k in range(8):
                a = acc(1, tt) + 2*k
                A(f"v_pk_mul_f32 v[{a}:{a+1}], v[{a}:{a+1}], s[{sc}:{sc+1}]")
            d = acc(1, tt) if inplace else T1 + 8*tt
            cvt_tile(A, d, acc(1, tt))
            A(f"ds_write_b128 v{adr}, v[{d}:{d+3}] offset:{tt*2048}")
            A(f"ds_write_b128 v{adr}, v[{d+4}:{d+7}] offset:{tt*2048+O2}")
    if QL:
        A("""
        v_mov_b32 v26, v44
        s_mov_b32 s64, s56
        s_mov_b32 s65, s56
        """)
    else:
        bq_stage(range(4), 56, 44, False)
    for tt in range(NT8):
        cvt_tile(A, V + 8*tt, acc(2, tt))
        swap_tile(V + 8*tt)
    A("s_branch K1_E2J")
    A.label("K1_E1T1")
    A(f"""
    s_lshl_b32 s58, s41, 1
    s_add_u32 s58, s58, s50
    s_lshl_b32 s58, s58, 14
    s_add_u32 s58, s58, s70
    s_lshl_b32 s47, s50, 14
    v_add_u32 v44, s47, v{42 if M16 else 1}
    v_add_u32 v43, s47, v{40 if M16 else 1}
    """)
    if E8:
        A(f"""
        s_lshl_b32 s47, s50, 12
        s_add_u32 s47, s47, {HB1}
        v_add_u32 v45, s47, v{41 if M16 else 1}
        """)
        handoff([acc(0, 2), acc(0, 3)])
    else:
        A.nop(10)
    KA, K2 = (42, 128) if M16 else (1, 1024)
    VA = 40 if M16 else 1
    for tt in range(4):
        cvt_tile(A, T1 + 8*tt, acc(1, tt))
        A(f"buffer_store_dwordx4 v[{T1+8*tt}:{T1+8*tt+3}], v{KA}, s[32:35], s58 offen sc1")
        A(f"buffer_store_dwordx4 v[{T1+8*tt+4}:{T1+8*tt+7}], v{KA}, s[32:35], s58 offen offset:{K2} sc1")
        A("s_add_u32 s58, s58, 4096")
    A(f"s_sub_u32 s58, s58, {4*4096 - 2048}")
    for tt in range(4):
        cvt_tile(A, VB + 8*tt, acc(2, tt))
        A(f"buffer_store_dwordx4 v[{VB+8*tt}:{VB+8*tt+3}], v{VA}, s[32:35], s58 offen sc1")
        A(f"buffer_store_dwordx4 v[{VB+8*tt+4}:{VB+8*tt+7}], v{VA}, s[32:35], s58 offen offset:{O2} sc1")
        A("s_add_u32 s58, s58, 4096")
    for tt in range(4):
        A(f"ds_write_b128 v44, v[{T1+8*tt}:{T1+8*tt+3}] offset:{tt*4096}")
        A(f"ds_write_b128 v44, v[{T1+8*tt+4}:{T1+8*tt+7}] offset:{tt*4096+K2}")
        A(f"ds_write_b128 v43, v[{VB+8*tt}:{VB+8*tt+3}] offset:{tt*4096+2048}")
        A(f"ds_write_b128 v43, v[{VB+8*tt+4}:{VB+8*tt+7}] offset:{tt*4096+2048+O2}")
    A.label("K1_E2J")
    WP = 36
    krow = (lambda s, sec: 16*sec + 4*s) if M16 else (lambda s, sec: 16*s + 8*sec)
    def feat_setup(tb):
        A(f"""
        v_lshrrev_b32 v5, 5, v0          ; hh
        v_bfe_u32 v6, v0, 2, 2           ; i>>2
        v_lshl_add_u32 v6, v5, {3 if M16 else 2}, v6     ; 4hh + (i>>2)
        v_bfe_u32 v7, v0, 4, 1
        v_lshlrev_b32 v7, 5, v7
        v_and_b32 v8, 3, v0
        v_lshl_add_u32 v7, v8, 3, v7     ; (g&1)*32 + (i&3)*8
        v_lshl_add_u32 v2, v6, 6, v7
        v_add_u32 v2, {K1_WPHI}, v2
        """)
        for s in range(2):
            for sec in range(2):
                A(f"ds_read_b64_tr_b16 v[{WP+4*s+2*sec}:{WP+4*s+2*sec+1}], v2 offset:{krow(s, sec)*64}")
        A(f"""
        s_mul_i32 s47, s50, {K1_TBUF}
        s_add_u32 s47, s47, {tb}
        v_mul_u32_u24 v25, 136, v6
        v_add_u32 v25, v25, v7
        v_add_u32 v25, s47, v25
        v_and_b32 v8, 31, v0
        v_mul_u32_u24 v24, 136, v8
        v_lshl_add_u32 v24, v5, 3, v24
        v_add_u32 v24, s47, v24
        v_bfe_u32 v8, v0, 2, 1
        v_bfe_u32 v9, v0, 4, 1
        v_cmp_eq_u32 vcc, v8, v9
        v_mov_b32 v9, 0x3f803f80
        v_mov_b32 v8, 0
        v_cndmask_b32 v20, v8, v9, vcc
        v_cndmask_b32 v21, v8, v9, vcc
        v_cndmask_b32 v22, v8, v9, vcc
        v_cndmask_b32 v23, v8, v9, vcc
        """)
    feat_setup(TBUF0)
    for tt in range(NT8):
        cvt_tile(A, Q + 8*tt, acc(0, tt))
        swap_tile(Q + 8*tt)
    if M16: A("s_nop 0")
    if E8: A.label("K1_E2L")
    A("s_waitcnt lgkmcnt(0)")
    for tt in range(NT8):
        a = acc(0, tt)
        A(f"v_mfma_f32_32x32x16_bf16 v[{a}:{a+15}], v[{WP}:{WP+3}], v[{Q+8*tt}:{Q+8*tt+3}], 0")
    for tt in range(NT8):
        a = acc(0, tt)
        A(f"v_mfma_f32_32x32x16_bf16 v[{a}:{a+15}], v[{WP+4}:{WP+7}], v[{Q+8*tt+4}:{Q+8*tt+7}], v[{a}:{a+15}]")
    A(f"""
    s_mov_b32 s56, {fhex(LOG2E)}
    s_mov_b32 s57, s56
    """)
    A.nop(10)
    EP = acc(2, 0)
    PH = EP + 16
    AF = PH + 16
    KV0 = AF + 16
    KV1 = 44
    Z0, Z1, SEL1 = 12, 16, 20
    PHQ = 128
    def kv_mfmas(tt):
        out = []
        for s in range(2):
            for fb in range(2):
                kv = KV0 if fb == 0 else KV1
                z = Z0 if fb == 0 else Z1
                af = AF + (fb*2+s)*4
                c = "0" if (tt == 0 and s == 0) else f"v[{kv}:{kv+15}]"
                cz = "0" if (tt == 0 and s == 0) else f"v[{z}:{z+3}]"
                out.append(f"v_mfma_f32_32x32x16_bf16 v[{kv}:{kv+15}], v[{af}:{af+3}], v[{V+8*tt+4*s}:{V+8*tt+4*s+3}], {c}")
                out.append(f"v_mfma_f32_16x16x32_bf16 v[{z}:{z+3}], v[{SEL1}:{SEL1+3}], v[{af}:{af+3}], {cz}")
        return out
    if E8: F1POS = min(int(cfg.get("f1pos", 0)), 1)
    for tt in range(NT8):
        P = acc(0, tt)
        A(f"v_max3_f32 v4, v{P}, v{P+1}, v{P+2}")
        A(f"v_max3_f32 v5, -v{P}, -v{P+1}, -v{P+2}")
        for k in range(3, 15, 2):
            A(f"v_max3_f32 v4, v4, v{P+k}, v{P+k+1}")
            A(f"v_max3_f32 v5, v5, -v{P+k}, -v{P+k+1}")
        A(f"v_max_f32 v4, v4, v{P+15}")
        A(f"v_max_f32 v5, v5, -v{P+15}")
        A.nop(2)
        A("v_permlane32_swap_b32 v4, v5")
        A("s_nop 0")
        A("v_max_f32 v4, v4, v5")
        A("v_mov_b32 v5, v4")
        A.nop(2)
        A("v_permlane32_swap_b32 v4, v5")
        A("s_nop 0")
        A(f"v_mul_f32 v6, {fhex(-LOG2E)}, v4")
        A(f"v_mul_f32 v8, {fhex(-LOG2E)}, v5")
        for k in range(8):
            A(f"v_pk_fma_f32 v[{EP+2*k}:{EP+2*k+1}], v[{P+2*k}:{P+2*k+1}], s[56:57], v[6:7] op_sel_hi:[1,1,0]")
            A(f"v_pk_fma_f32 v[{P+2*k}:{P+2*k+1}], v[{P+2*k}:{P+2*k+1}], s[56:57], v[8:9] op_sel_hi:[1,1,0] neg_lo:[0,1,0] neg_hi:[0,1,0]")
        for k in range(16):
            A(f"v_exp_f32 v{EP+k}, v{EP+k}")
            A(f"v_exp_f32 v{P+k}, v{P+k}")
        if tt > 0:
            j = A.uid("K1_KVS")
            A("s_cmp_lg_u32 s51, 0"); A(f"s_cbranch_scc1 {j}")
            A("s_waitcnt lgkmcnt(0)")
            for l in kv_mfmas(tt-1): A(l)
            A.label(j)
        A(f"v_pk_add_f32 v[4:5], v[{EP}:{EP+1}], v[{EP+2}:{EP+3}]")
        A(f"v_pk_add_f32 v[6:7], v[{P}:{P+1}], v[{P+2}:{P+3}]")
        for k in range(2, 8):
            A(f"v_pk_add_f32 v[4:5], v[4:5], v[{EP+2*k}:{EP+2*k+1}]")
            A(f"v_pk_add_f32 v[6:7], v[6:7], v[{P+2*k}:{P+2*k+1}]")
        A("v_add_f32 v4, v4, v5")
        A("v_add_f32 v6, v6, v7")
        A.nop(2)
        A("v_permlane32_swap_b32 v4, v6")
        A("s_nop 0")
        A("v_add_f32 v4, v4, v6")
        A("v_rcp_f32 v4, v4")
        A("s_nop 0")
        A("v_mov_b32 v6, v4")
        A.nop(2)
        A("v_permlane32_swap_b32 v4, v6")
        A("s_nop 0")
        for k in range(8):
            A(f"v_pk_mul_f32 v[{EP+2*k}:{EP+2*k+1}], v[{EP+2*k}:{EP+2*k+1}], v[4:5] op_sel_hi:[1,0]")
            A(f"v_pk_mul_f32 v[{P+2*k}:{P+2*k+1}], v[{P+2*k}:{P+2*k+1}], v[6:7] op_sel_hi:[1,0]")
        j1 = A.uid("K1_T0"); j2 = A.uid("K1_TJ")
        A("s_cmp_eq_u32 s51, 0"); A(f"s_cbranch_scc1 {j1}")
        cvt_tile(A, PHQ + 16*tt, EP)
        cvt_tile(A, PHQ + 16*tt + 8, P)
        if tt == F1POS:
            if E8:
                A("s_cmp_ge_u32 s40, 4"); A(f"s_cbranch_scc1 {j2}")
            A("s_waitcnt vmcnt(0)")
            set_flag(A, "s67")
            vstamp(A, cfg, 3, PV)
        A(f"s_branch {j2}")
        A.label(j1)
        cvt_tile(A, PH, EP)
        cvt_tile(A, PH + 8, P)
        for sign in range(2):
            for b in range(4):
                A(f"ds_write_b64 v24, v[{PH+8*sign+2*b}:{PH+8*sign+2*b+1}] offset:{sign*64+b*16}")
        for fb in range(2):
            for s in range(2):
                for sec in range(2):
                    af = AF + (fb*2+s)*4 + 2*sec
                    A(f"ds_read_b64_tr_b16 v[{af}:{af+1}], v25 offset:{krow(s, sec)*136 + fb*64}")
        A.label(j2)
    A("s_cmp_lg_u32 s51, 0")
    A("s_cbranch_scc1 KF_JOIN")
    if QL:
        QN = int(cfg.get("qn", 4))
        A("s_cmp_ge_u32 s40, 4")
        A("s_cbranch_scc1 K1_QL0")
        bq_stage(range(QN), 64, 26, True)
        A(f"s_waitcnt lgkmcnt({2 * QN})")
        for l in kv_mfmas(NT8 - 1): A(l)
        bq_stage(range(QN, 4), 64, 26, True)
        A("s_branch K1_QL1")
        A("K1_QL0:")
        A("s_waitcnt lgkmcnt(0)")
        for l in kv_mfmas(NT8 - 1): A(l)
        A("K1_QL1:")
    else:
        A("s_waitcnt lgkmcnt(0)")
        for l in kv_mfmas(NT8 - 1): A(l)
    if E8:
        A(f"""
        s_cmp_ge_u32 s40, 4
        s_cselect_b32 s38, {HB0 - RED0}, 0
        s_cselect_b32 s55, 512, 0
        s_add_u32 s38, s38, {RED0}
        s_add_u32 s55, s55, {ZRED}
        """)
    else:
        A(f"s_mov_b32 s38, {RED0}")
        A(f"s_mov_b32 s55, {ZRED}")
    A(f"""
    s_lshl_b32 s47, s50, 13
    s_add_u32 s47, s47, s38
    v_add_u32 v2, s47, v1
    v_and_b32 v3, 31, v0
    v_lshlrev_b32 v3, 2, v3
    s_lshl_b32 s47, s50, 8
    s_add_u32 s47, s47, s55
    v_add_u32 v3, s47, v3
    """)
    A.nop(8)
    A(f"ds_write_b32 v3, v{Z0}")
    A(f"ds_write_b32 v3, v{Z1} offset:128")
    for fb in range(2):
        kv = KV0 if fb == 0 else KV1
        for q in range(4):
            A(f"ds_write_b128 v2, v[{kv+4*q}:{kv+4*q+3}] offset:{fb*4096+q*1024}")
    A("s_branch KF_JOIN")
    A.label("K1_LOADER")
    if cfg.get("lprio"): A(f"s_setprio {cfg.get('lprio')[0]}")
    def l_srd0():
        A("""
        s_cmp_eq_u32 s44, 0
        s_cselect_b32 s28, s6, s8
        s_cselect_b32 s29, s7, s9
        """)
        A(f"s_mov_b32 s30, {1024*6144}")
        A("s_mov_b32 s31, 0x00020000")
    def l_srd1():
        srd(A, 20, 6, 1024*6144)
        srd(A, 24, 8, 1024*6144)
    if not ES:
        srd(A, 16, 4, 2048*2048)
        l_srd1()
    A(f"""
    s_sub_u32 s50, s40, 4            ; w
    s_lshr_b32 s44, s50, 1
    """)
    if not ES: l_srd0()
    R1 = cfg.get("r1", "1") if cfg.get("pf2") else (cfg.get("r1", "0") if (PF3 or PF4) else "0")
    if R1 != "0":
        HM = cfg.get("hmap", "f") == "h"
        RB = 1 if HM else 2; HB = 4 if HM else 3
        NW = 3 << (4 - RB)
        A(f"""
        s_lshr_b32 s47, s45, {RSH}
        s_mul_i32 s47, s47, {ROT}
        s_and_b32 s51, s45, 1
        s_mul_i32 s51, s51, {ROT2}
        s_add_u32 s47, s47, s51
        s_and_b32 s51, s50, 1
        s_lshl_b32 s51, s51, 1
        s_add_u32 s51, s51, s47
        v_mul_u32_u24 v20, 43, v0
        v_lshrrev_b32 v20, {10 if HM else 9}, v20
        v_mul_u32_u24 v21, {NW}, v20
        v_sub_u32 v21, v0, v21           ; lane % NW
        v_add_u32 v20, s51, v20
        v_and_b32 v20, 31, v20
        v_mul_u32_u24 v20, {32*6144}, v20
        s_and_b32 s51, s42, 1
        s_lshl_b32 s51, s51, {RB}
        s_and_b32 s52, s41, {(1 << RB) - 1}
        s_add_u32 s51, s51, s52
        s_lshl_b32 s51, s51, {4 - RB}
        v_and_b32 v22, {(1 << (4 - RB)) - 1}, v21
        v_add_u32 v22, s51, v22
        v_mul_u32_u24 v22, 6144, v22
        v_lshrrev_b32 v21, {4 - RB}, v21
        v_lshl_add_u32 v22, v21, 11, v22
        s_lshr_b32 s51, s42, 1
        s_lshl_b32 s51, s51, 7
        v_add3_u32 v20, v20, v22, s51
        v_mov_b32 v23, 0x7ffffff0
        v_cmp_gt_u32 vcc, {2 * NW}, v0
        s_lshl_b32 s51, s41, 8
        s_and_b32 s52, s42, {(1 << HB) - 1}
        s_lshl_b32 s52, s52, {8 - HB}
        v_cndmask_b32 v20, v23, v20, vcc
        s_add_u32 s51, s51, s52
        s_lshl_b32 s52, s50, {6 - HB}
        s_add_u32 s51, s51, s52
        {"" if ES else "buffer_load_dword v24, v20, s[28:31], 0 offen"}
        v_and_b32 v21, {(1 << (6 - HB)) - 1}, v0
        v_add_u32 v21, s51, v21
        v_lshlrev_b32 v21, 11, v21
        v_lshrrev_b32 v22, {6 - HB}, v0
        s_lshr_b32 s47, s47, 1
        v_add_u32 v22, s47, v22
        v_and_b32 v22, 15, v22
        v_lshl_add_u32 v21, v22, 7, v21
        v_cmp_gt_u32 vcc, {2 << (6 - HB)}, v0
        s_nop 1
        v_cndmask_b32 v21, v23, v21, vcc
        {"" if ES else "buffer_load_dword v25, v21, s[16:19], 0 offen"}
        """)
    if not ES: srd(A, 36, 10, 32*2048)
    A(f"""
    v_lshrrev_b32 v1, 3, v0
    v_lshrrev_b32 v2, 4, v0
    v_and_b32 v3, 7, v0
    v_xor_b32 v3, v3, v2
    v_lshlrev_b32 v3, 4, v3
    v_lshl_add_u32 v4, v1, 11, v3
    s_lshl_b32 s47, s41, 8
    s_lshl_b32 s51, s50, 6
    s_add_u32 s47, s47, s51
    s_lshl_b32 s47, s47, 11          ; (r*256 + 64w)*2048
    v_add_u32 v4, s47, v4            ; piece 0
    v_xor_b32 v5, 64, v4
    v_add_u32 v5, 16384, v5
    v_add_u32 v6, 32768, v4
    v_add_u32 v7, 32768, v5
    v_add_u32 v12, 65536, v4
    v_add_u32 v13, 65536, v5
    v_add_u32 v14, 98304, v4
    v_add_u32 v15, 98304, v5
    """)
    if ES:
        assert R1 == "2"
        A("s_waitcnt lgkmcnt(0)")
        rstamp(41)
        l_srd0()
        A("buffer_load_dword v24, v20, s[28:31], 0 offen")
        srd(A, 16, 4, 2048*2048)
        A("buffer_load_dword v25, v21, s[16:19], 0 offen")
        l_srd1()
        srd(A, 36, 10, 32*2048)
        srd(A, 32, 14, WS_USED)
    A(f"""
    v_lshrrev_b32 v1, {3 if cfg.get("expw") else 2}, v0
    s_and_b32 s47, s50, 1
    s_lshl_b32 s47, s47, 4
    v_add_u32 v1, s47, v1            ; krow = 16*(w&1) + (l>>2)
    v_mul_u32_u24 v1, 6144, v1
    v_and_b32 v3, {7 if cfg.get("expw") else 3}, v0
    {"v_lshrrev_b32 v2, 4, v0" if cfg.get("m16") else ""}
    {"v_and_b32 v2, 2, v2" if cfg.get("m16") else ""}
    {"v_xor_b32 v3, v2, v3            ; m16 : the column halves of k rows 8..15 change places" if cfg.get("m16") else ""}
    v_lshl_add_u32 v1, v3, 4, v1
    s_lshl_b32 s47, s42, 6           ; 64h
    {"s_and_b32 s47, s47, 0x780" if cfg.get("expw") else ""}
    s_lshl_b32 s51, s44, 11          ; type*2048
    s_add_u32 s52, s47, s51
    v_add_u32 v9, s52, v1            ; seg1 : B.q / B.k
    s_sub_u32 s52, 2048, s51
    s_add_u32 s52, s52, s47
    v_add_u32 v8, s52, v1            ; seg0 : A.k / A.q
    s_add_u32 s52, s47, 4096
    v_add_u32 v10, s52, v1           ; seg2 : A.v / B.v
    v_lshlrev_b32 v11, 4, v0
    s_and_b32 s51, s50, 1
    s_lshl_b32 s51, s51, 10
    s_lshl_b32 s47, s42, 11
    s_add_u32 s47, s47, s51
    s_add_u32 m0, s51, {K1_WPHI}
    s_lshl_b32 s55, s50, 13          ; w*8192  (x pieces)
    {"s_waitcnt vmcnt(0)" if R1 == "1" else ""}
    buffer_load_dwordx4 v11, s[36:39], s47 offen lds
    s_lshl_b32 s51, s50, 10
    s_add_u32 s56, s51, {K1_WB}      ; W pieces : + w*1024
    s_lshr_b32 s47, s45, {RSH}
    s_mul_i32 s47, s47, {ROT}
    s_and_b32 s51, s45, 1
    s_mul_i32 s51, s51, {ROT2}
    s_add_u32 s47, s47, s51
    s_and_b32 s47, s47, 31           ; first k block (rotated per XCD group: spreads the x column reads over the channels)
    s_lshl_b32 s58, s47, 6           ; soffset x
    s_mul_i32 s59, s47, {32*6144}    ; soffset W
    s_mov_b32 s60, 0                 ; block
    s_mov_b32 s61, s55               ; x slot
    s_mov_b32 s62, s56               ; W slot
    s_add_u32 s55, s55, {K1_XS*K1_NX}
    s_add_u32 s56, s56, {K1_SLOT*K1_NSLOT}
    """)
    if PF3:
        TE = int(cfg.get("te", 2))
        OFFL = int(cfg.get("offl", 0))
        XT = int(cfg.get("pfx", 1))
        BW = TE // 2; LB = BW.bit_length() - 1
        assert cfg.get("hmap", "f") == "f"
        A(f"""
        s_and_b32 s51, s42, 7            ; head within the XCD
        s_and_b32 s52, s41, 3            ; token block within the XCD
        s_and_b32 s63, s42, 1
        s_lshl_b32 s63, s63, 2
        s_add_u32 s63, s63, s52          ; share of the pair's weight lines
        s_lshl_b32 s63, s63, 2           ; first row
        s_and_b32 s64, s50, 1
        s_lshl_b32 s64, s64, {5 + LB}    ; first row of this wave's group of blocks
        s_add_u32 s63, s63, s64
        v_bfe_u32 v27, v0, 2, {LB})
        v_lshlrev_b32 v30, 5, v27        ; 32 * block
        v_and_b32 v26, 3, v0
        v_add3_u32 v26, v26, v30, s63    ; row
        v_mul_u32_u24 v26, 6144, v26
        v_lshrrev_b32 v27, {2 + LB}, v0  ; segment
        v_lshl_add_u32 v26, v27, 11, v26
        s_lshr_b32 s63, s42, 1
        s_lshl_b32 s63, s63, 7
        v_add_u32 v26, s63, v26          ; + column of the pair
        v_mov_b32 v29, 0x7ffffff0
        v_cmp_gt_u32 vcc, 3, v27
        """.replace("v_bfe_u32 v27, v0, 2, 0)", "v_mov_b32 v27, 0").replace(")\n", "\n"))
        if OFFL:
            A(f"""
            s_cmp_lt_u32 s51, 6
            s_cselect_b64 vcc, vcc, 0
            v_cndmask_b32 v26, v29, v26, vcc
            s_lshl_b32 s63, s51, 2
            s_add_u32 s63, s63, s52
            s_lshl_b32 s63, s63, 2
            v_and_b32 v28, 3, v0
            v_add_u32 v31, s63, v28
            v_and_b32 v28, 31, v31
            v_add3_u32 v28, v28, v30, s64
            v_mul_u32_u24 v28, 6144, v28
            v_lshrrev_b32 v31, 5, v31
            v_lshl_add_u32 v28, v31, 11, v28
            s_lshr_b32 s63, s42, 1
            s_or_b32 s63, s63, 3
            s_lshl_b32 s63, s63, 7
            v_add_u32 v28, s63, v28
            v_cmp_eq_u32 vcc, 3, v27
            s_cmp_lt_u32 s51, 6
            s_cselect_b64 vcc, vcc, 0
            v_cndmask_b32 v26, v26, v28, vcc
            """)
        else:
            A("s_nop 1\nv_cndmask_b32 v26, v29, v26, vcc")
        if OFFL == 2:
            A(f"""
            s_mul_i32 s63, s51, 43
            v_add_u32 v27, s63, v0
            v_cmp_gt_u32 vcc, 43, v0
            s_movk_i32 s63, 0x100
            v_cmp_gt_u32 s[64:65], s63, v27
            s_and_b64 vcc, vcc, s[64:65]
            s_cmp_lt_u32 s51, 6
            s_cselect_b64 vcc, vcc, 0
            """)
        else:
            A(f"""
            s_lshl_b32 s63, s51, 5
            v_add_u32 v27, s63, v0
            v_cmp_gt_u32 vcc, 32, v0
            """)
        A(f"""
        s_lshl_b32 s63, s41, 8
        v_add_u32 v27, s63, v27          ; x row
        v_lshlrev_b32 v27, 11, v27
        v_cndmask_b32 v27, v29, v27, vcc
        s_lshr_b32 s63, s58, 6
        s_add_u32 s63, s63, {TL}
        s_and_b32 s63, s63, 31
        s_mul_i32 s64, s63, {32*6144}
        s_lshr_b32 s63, s63, 1
        s_add_u32 s63, s63, s50
        s_and_b32 s63, s63, 15
        s_lshl_b32 s65, s63, 7           ; x offset
        s_cmp_lt_u32 s50, {BW}
        s_cselect_b32 s67, {2048*2048 if XT else 0}, 0
        s_cmp_lt_u32 s50, 2
        s_cselect_b32 s92, s6, s8
        s_cselect_b32 s93, s7, s9
        s_mov_b32 s94, 0
        s_mov_b32 s95, 0x00020000
        s_mov_b32 s88, s4
        s_mov_b32 s89, s5
        s_mov_b32 s90, 0
        s_mov_b32 s91, 0x00020000
        """)
    def pf4_setup():
        touch_addr("s50", 26, 27, 28, 29, True, "s66")
        A(f"""
        s_mov_b32 s67, s94
        s_cmp_ge_u32 s50, 2
        s_mov_b32 s64, {TL*32*6144}
        s_cselect_b32 s64, {TL*64}, s64
        s_mov_b32 s65, {64*6144}
        s_cselect_b32 s65, 128, s65
        """)
    ED = ES and cfg.get("ed", "1") == "1"
    if PF4 and not ED: pf4_setup()
    if PF4 and ED:
        A("""
        s_mov_b32 s92, s4
        s_mov_b32 s93, s5
        s_mov_b32 s94, 0
        s_mov_b32 s95, 0x00020000
        s_mov_b32 s64, 0
        v_mov_b32 v26, 0
        """)
    rstamp(42)
    if cfg.get("lprio"): A(f"s_setprio {cfg.get('lprio')[1]}")
    A("K1_LLOOP:")
    XV = [4, 5, 6, 7, 12, 13, 14, 15]
    def ld_x(i0=0, i1=8):
        for i in range(i0, i1):
            A(f"s_add_u32 m0, s61, {i*1024}")
            A("s_nop 0")
            A(f"buffer_load_dwordx4 v{XV[i]}, s[16:19], s58 offen lds")
        if i1 == 8: A(f"""
        s_add_u32 s58, s58, 128
        s_and_b32 s58, s58, 2047
        s_add_u32 s61, s61, {K1_XS}
        s_cmp_eq_u32 s61, s55
        s_cselect_b32 s47, {K1_XS*K1_NX}, 0
        s_sub_u32 s61, s61, s47
        """)
    def ld_w():
        for sg in range(3):
            A(f"s_add_u32 m0, s62, {sg*4096}")
            A("s_nop 0")
            A(f"buffer_load_dwordx4 v{8+sg}, s[{20+4*sg}:{23+4*sg}], s59 offen lds")
        A(f"""
        s_add_u32 s59, s59, {32*6144}
        s_cmp_eq_u32 s59, {1024*6144}
        s_cselect_b32 s59, 0, s59
        s_add_u32 s62, s62, {K1_SLOT}
        s_cmp_eq_u32 s62, s56
        s_cselect_b32 s47, {K1_SLOT*K1_NSLOT}, 0
        s_sub_u32 s62, s62, s47
        """)
    E8 = cfg.get("e8")
    def lsync(n=14):
        if cfg.get("prof") == "3":
            A("s_memtime s[96:97]")
            A(f"s_waitcnt vmcnt({n})")
            A("s_memtime s[98:99]")
            A("s_barrier")
            A("s_memtime s[90:91]")
            A("s_waitcnt lgkmcnt(0)")
            A("s_sub_u32 s96, s98, s96")
            A("s_add_u32 s100, s100, s96")
            A("s_sub_u32 s90, s90, s98")
            A("s_add_u32 s101, s101, s90")
        else:
            A(f"s_waitcnt vmcnt({n})")
            A("s_barrier")
    if cfg.get("prof") == "3":
        A("s_cmp_lg_u32 s60, 0")
        A("s_cbranch_scc1 K1_LP3")
        A("s_mov_b32 s100, 0")
        A("s_mov_b32 s101, 0")
        A.label("K1_LP3")
    BAL = int(cfg.get("bal", 0))
    NT = 2 if PF3 else 1 if PF4 else 0
    if BAL:
        ld_w(); ld_x(0, 8 - BAL)
    else:
        ld_x(); ld_w()
    A("""
    s_cmp_lt_u32 s60, 4
    s_cbranch_scc1 K1_LS1
    """)
    lsync(14 - BAL + NT)
    A("K1_LS1:")
    if BAL: ld_x(8 - BAL, 8)
    ld_w()
    if PF4:
        if ED:
            A("s_cmp_lg_u32 s60, 0"); A("s_cbranch_scc1 K1_PFS")
            pf4_setup()
            A("K1_PFS:")
        A(f"""
        s_cmp_le_u32 s60, {30 - TL}
        s_cselect_b32 s94, s67, 0
        buffer_load_dword v31, v26, s[92:95], s64 offen
        s_add_u32 s64, s64, s65
        """)
    if PF3:
        A(f"""
        s_and_b32 s63, s60, {TE - 1}
        s_cmp_le_u32 s60, {32 - TL - TE}
        s_cselect_b32 s63, s63, 1
        s_cmp_eq_u32 s63, 0
        s_cselect_b32 s94, {1024*6144}, 0
        s_cselect_b32 s90, s67, 0
        s_cselect_b32 s63, {TE*32*6144}, 0
        s_cselect_b32 s66, {TE*64}, 0
        buffer_load_dword v31, v26, s[92:95], s64 offen
        buffer_load_dword v31, v27, s[88:91], s65 offen
        s_add_u32 s64, s64, s63
        s_cmp_eq_u32 s64, {1024*6144}
        s_cselect_b32 s64, 0, s64
        s_add_u32 s65, s65, s66
        s_and_b32 s65, s65, 2047
        """)
    A("""
    s_cmp_lt_u32 s60, 2
    s_cbranch_scc1 K1_LS2
    """)
    if cfg.get("prof") == "4":
        A("s_cmp_lg_u32 s60, 2"); A("s_cbranch_scc1 K1_P4A"); rstamp(43); A(f"s_waitcnt vmcnt({14 + 2*NT})"); rstamp(44); A("K1_P4A:")
    lsync(14 + 2*NT)
    A("K1_LS2:")
    GW, GX, GA = (160, 168, 200) if E8 else (32, 64, 40)
    G1 = E8 and cfg.get("g1", "1") == "1"
    NG = 4 if G1 else 2
    XT8 = E8 and cfg.get("xt", "1") == "1"
    def gate_loads():
        srd(A, 36, 12, 2048)
        A(f"""
        s_lshl_b32 s47, s41, 8
        s_lshl_b32 s51, s42, 3
        s_add_u32 s47, s47, s51
        s_lshl_b32 s51, s50, 1
        {"s_and_b32 s51, s51, 4" if G1 else ""}
        s_add_u32 s63, s47, s51          ; t0 = r*256 + h*8 + 2w  /  + 4th
        s_lshl_b32 s51, s63, 11
        v_lshlrev_b32 v1, 5, v0
        buffer_load_dwordx4 v[{GW}:{GW+3}], v1, s[36:39], 0 offen
        buffer_load_dwordx4 v[{GW+4}:{GW+7}], v1, s[36:39], 0 offen offset:16
        """)
        for j in range(NG):
            A(f"buffer_load_dwordx4 v[{GX+8*j}:{GX+8*j+3}], v1, s[16:19], s51 offen")
            A(f"buffer_load_dwordx4 v[{GX+8*j+4}:{GX+8*j+7}], v1, s[16:19], s51 offen offset:16")
            if j < NG - 1: A("s_add_u32 s51, s51, 2048")
    def dbg_srd(r=36):
        A(f"""
        s_mov_b32 s{r}, s86
        s_mov_b32 s{r+1}, s87
        s_mov_b32 s{r+2}, 256
        s_mov_b32 s{r+3}, 0x00020000
        v_mov_b32 v46, 0
        """)
    A(f"""
    s_add_u32 s60, s60, 2
    s_cmp_lt_u32 s60, 32
    s_cbranch_scc1 K1_LLOOP
    """)
    if cfg.get("lf") == "1": A("K1_LPOST:")
    def ltail(gate):
        GN = (3 + 2*NG if gate else 1) if E8 else 0
        if E8:
            if gate:
                gate_loads()
                A("s_mov_b32 s84, s63")
            dbg_srd(92)
            poll_issue(A, 47, 46, 92, "0")
        A(f"""
        s_waitcnt vmcnt({3 + NT + GN})
        s_barrier
        """)
        if E8:
            setup_p2(A)
            A(f"s_add_u32 s74, s74, {2*65536}        ; oA offset of tiles 2, 3")
        A(f"""
        s_waitcnt vmcnt({GN})
        s_barrier
        """)
    if G1:
        A("s_bitcmp1_b32 s50, 0")
        A("s_cbranch_scc1 K1_LT1")
        ltail(False)
        A("s_branch K1_LT2")
        A("K1_LT1:")
        ltail(True)
        A("K1_LT2:")
    else:
        ltail(True)
    if cfg.get("prof") == "3":
        A(f"v_writelane_b32 v{PV}, s100, 0")
        A(f"v_writelane_b32 v{PV}, s101, 1")
    if cfg.get("lprio"): A("s_setprio 0")
    if E8:
        setup_p3(A)
        A("s_barrier")
        A(f"""
        s_and_b32 s51, s50, 1
        {"s_xor_b32 s51, s51, 1" if XT8 else ""}
        s_lshr_b32 s50, s50, 1
        """)
        feat_setup(TBUF1)
        A(f"""
        v_lshlrev_b32 v1, 4, v0          ; lane*16
        s_lshl_b32 s47, s50, 13
        s_add_u32 s47, s47, {HB0}
        s_lshl_b32 s38, s50, 12
        s_add_u32 s38, s38, {HB1}
        s_cmp_eq_u32 s51, 0
        s_cselect_b32 s47, s47, s38
        v_add_u32 v45, s47, v1
        """)
        for j in range(NG): A(f"v_mov_b32 v{GA+j}, 0")
        A("s_barrier")
        vstamp(A, cfg, 2, PV)
        A("s_waitcnt vmcnt(0)")
        poll_check(A, 47, 46, 92, "0", "PG", expect="0x100")
        A("s_barrier")
        EPR = cfg.get("eprio", "00")
        if EPR != "00":
            A(f"s_setprio {EPR[1]}")
            A("s_cmp_lg_u32 s51, 0")
            A("s_cbranch_scc1 K1_LP1")
            A(f"s_setprio {EPR[0]}")
            A("K1_LP1:")
        for k in range(2):
            A(f"ds_read_b128 v[{Q+8*k}:{Q+8*k+3}], v45 offset:{k*2048}")
            A(f"ds_read_b128 v[{Q+8*k+4}:{Q+8*k+7}], v45 offset:{k*2048+1024}")
        A("s_cmp_lg_u32 s51, 0")
        A(f"s_cbranch_scc1 {'K1_E2L' if (XT8 and G1) else 'K1_LNV'}")
        for k in range(2):
            A(f"ds_read_b128 v[{V+8*k}:{V+8*k+3}], v45 offset:{4096+k*2048}")
            A(f"ds_read_b128 v[{V+8*k+4}:{V+8*k+7}], v45 offset:{4096+k*2048+1024}")
        if G1 and not XT8: A("s_branch K1_E2L")
        A("K1_LNV:")
        for k in range(8):
            for j in range(NG):
                A(f"v_dot2c_f32_bf16 v{GA+j}, v{GX+8*j+k}, v{GW+k}")
            if NG == 2: A("s_nop 1")
        A.nop(3)
        for rot in (8, 4, 2, 1):
            for j in range(NG): A(f"v_add_f32_dpp v{GA+j}, v{GA+j}, v{GA+j} row_ror:{rot} row_mask:0xf bank_mask:0xf")
            if NG == 2: A("s_nop 1")
        if G1:
            A(f"""
            v_permlane16_swap_b32 v{GA}, v{GA+1}
            s_nop 0
            v_permlane16_swap_b32 v{GA+2}, v{GA+3}
            s_nop 1
            v_add_f32 v{GA}, v{GA}, v{GA+1}          ; rows : a01, b01, a23, b23
            v_add_f32 v{GA+1}, v{GA+2}, v{GA+3}      ; rows : c01, d01, c23, d23
            s_nop 1
            v_permlane32_swap_b32 v{GA}, v{GA+1}
            s_nop 1
            v_add_f32 v{GA}, v{GA}, v{GA+1}
            """)
        else:
            A(f"""
            v_permlane16_swap_b32 v{GA}, v{GA+1}
            s_nop 1
            v_add_f32 v{GA}, v{GA}, v{GA+1}          ; rows : a01, b01, a23, b23
            v_mov_b32 v{GA+1}, v{GA}
            s_nop 1
            v_permlane32_swap_b32 v{GA}, v{GA+1}
            s_nop 1
            v_add_f32 v{GA}, v{GA}, v{GA+1}          ; lanes 0..15 : token t0, lanes 16..31 : token t0 + 1
            """)
        A(f"""
        v_mul_f32 v{GA}, {fhex(-LOG2E)}, v{GA}
        v_exp_f32 v{GA}, v{GA}
        v_lshrrev_b32 v{GA+2}, 4, v0
        v_lshlrev_b32 v{GA+2}, 2, v{GA+2}
        v_add_f32 v{GA}, 1.0, v{GA}
        v_rcp_f32 v{GA}, v{GA}
        s_lshl_b32 s47, s84, 2
        s_add_u32 s47, s47, {WS_G}
        s_mov_b32 exec_lo, 0x10001
        s_mov_b32 exec_hi, {"0x10001" if G1 else "0"}
        buffer_store_dword v{GA}, v{GA+2}, s[32:35], s47 offen sc1
        s_mov_b64 exec, -1
        """)
        A("s_branch K1_E2L")
    else:
        gate_loads()
        A("""
        s_barrier
        s_barrier
        """)
        vstamp(A, cfg, 2, PV)
        for j in range(2): A(f"v_mov_b32 v{40+j}, 0")
        A("s_waitcnt vmcnt(0)")
        for k in range(8):
            for j in range(2):
                A(f"v_dot2c_f32_bf16 v{40+j}, v{GX+8*j+k}, v{32+k}")
            A("s_nop 1")
        A("v_lshlrev_b32 v3, 2, v0")
        A.nop(3)
        for mask in (1, 2, 4, 8, 16, 32):
            A(f"v_xor_b32 v4, {mask*4}, v3")
            for j in range(2): A(f"ds_bpermute_b32 v{5+j}, v4, v{40+j}")
            A("s_waitcnt lgkmcnt(0)")
            for j in range(2): A(f"v_add_f32 v{40+j}, v{40+j}, v{5+j}")
        A(f"v_cmp_eq_u32 vcc, 1, v0")
        A("s_nop 1")
        A(f"v_cndmask_b32 v40, v40, v41, vcc")
        A(f"""
        v_mul_f32 v40, {fhex(-LOG2E)}, v40
        v_exp_f32 v40, v40
        s_nop 0
        v_add_f32 v40, 1.0, v40
        v_rcp_f32 v40, v40
        s_lshl_b32 s47, s63, 2
        s_add_u32 s47, s47, {WS_G}
        s_mov_b64 exec, 3
        buffer_store_dword v40, v3, s[32:35], s47 offen sc1
        s_mov_b64 exec, -1
        """)
        setup_p2(A)
        setup_p3(A)
        A(f"""
        s_mov_b32 s85, s36
        v_and_b32 v35, 15, v0
        v_lshlrev_b32 v35, 2, v35
        """)
        dbg_srd()
        poll_issue(A, 47, 46, 36, "0")
        A("s_waitcnt vmcnt(0)")
        poll_check(A, 47, 46, 36, "0", "PG", expect="0x100")
        poll_issue(A, 47, 35, 32, "s78")
        A("s_waitcnt vmcnt(0)")
        poll_check(A, 47, 35, 32, "s78", "P1")
        vstamp(A, cfg, 3, PV)
        A(f"""
        v_lshlrev_b32 v3, 4, v0
        s_lshl_b32 s47, s50, 12          ; w*4096
        s_add_u32 m0, s47, {2*16384}
        s_lshl_b32 s51, s41, 1
        s_add_u32 s51, s51, 2
        s_and_b32 s51, s51, 15
        s_lshl_b32 s51, s51, 14
        s_add_u32 s51, s51, s47
        s_add_u32 s51, s51, s70
        """)
        for j in range(4):
            A(f"buffer_load_dwordx4 v3, s[32:35], s51 offen offset:{j*1024} sc1 lds")
        A("s_mov_b32 s36, s85")
    A.label("KF_JOIN")
    if cfg.get("e8") and cfg.get("eprio", "00") != "00": A("s_setprio 0")
    Q, K0, K1, V0, V1, SEL, NEGM, SA, SB, O, L, P = 8, 16, 20, 24, 28, 40, 48, 64, 80, 96, 112, 120
    PR = 33
    RD = 192
    if cfg.get("prof"): A(f"v_mov_b32 v{PR}, v{PV}")
    vstamp(A, cfg, 4, PR)
    JL = cfg.get("jl") == "1"
    def j_sel():
        A(f"""
        v_bfe_u32 v4, v0, 2, 1
        v_bfe_u32 v5, v0, 4, 1
        v_cmp_eq_u32 vcc, v4, v5
        v_mov_b32 v5, 0x3f803f80
        v_mov_b32 v4, 0
        v_cndmask_b32 v{SEL}, v4, v5, vcc
        v_cndmask_b32 v{SEL+1}, v4, v5, vcc
        v_cndmask_b32 v{SEL+2}, v4, v5, vcc
        v_cndmask_b32 v{SEL+3}, v4, v5, vcc
        v_mov_b32 v1, v3                 ; cur
        v_add_u32 v2, 16384, v3          ; next
        """)
    def j_zero(a, b):
        z = [O+i for i in range(16)]
        for i in range(4): z += [L+i, V1+i, P+4+i]
        z += [35, 36, 37, 38, 39, 45] + ([] if E8 else [46])
        for i in z[a:b]: A(f"v_mov_b32 v{i}, 0")
    A("v_lshlrev_b32 v3, 4, v0          ; lane*16")
    if not JL: j_sel()
    A(f"""
    s_lshl_b32 s47, s40, 11
    s_add_u32 s47, s47, {QST}
    v_add_u32 v6, s47, v3            ; Q staging address
    s_lshl_b32 s47, s40, 10
    s_add_u32 s47, s47, {RED0}
    v_add_u32 v7, s47, v3
    """)
    if not JL: j_zero(0, 99)
    if E8:
        A("v_and_b32 v46, 15, v0")
        A("v_lshlrev_b32 v46, 2, v46")
        poll_issue(A, 47, 46, 32, "s78")
    A(f"""
    s_mov_b32 s60, 0
    s_mov_b32 s61, 1
    s_waitcnt lgkmcnt(0)
    s_barrier
    """)
    vstamp(A, cfg, 5, PR)
    NRD = 4 if E8 else 2
    A(f"""
    ds_read_b128 v[{Q}:{Q+3}], v6
    ds_read_b128 v[{NEGM}:{NEGM+3}], v3
    ds_read_b128 v[{Q+4}:{Q+7}], v6 offset:1024
    ds_read_b128 v[{NEGM+4}:{NEGM+7}], v3 offset:1024
    ds_read_b128 v[{K0}:{K0+3}], v3 offset:4096
    ds_read_b128 v[{K1}:{K1+3}], v3 offset:{4096+1024}
    ds_read_b128 v[{V0}:{V0+3}], v3 offset:2048
    ds_read_b128 v[{RD}:{RD+3}], v7
    ds_read_b128 v[{RD+4}:{RD+7}], v7 offset:8192
    """)
    if E8:
        A(f"ds_read_b128 v[{RD+12}:{RD+15}], v7 offset:{HB0 - RED0}")
        A(f"ds_read_b128 v[{RD+16}:{RD+19}], v7 offset:{HB0 - RED0 + 8192}")
    if JL: j_zero(0, 20)
    A(f"""
    s_waitcnt lgkmcnt({5 + NRD})
    v_mfma_f32_32x32x16_bf16 v[{SA}:{SA+15}], v[{NEGM}:{NEGM+3}], v[{Q}:{Q+3}], 0
    s_waitcnt lgkmcnt({3 + NRD})
    v_mfma_f32_32x32x16_bf16 v[{SA}:{SA+15}], v[{NEGM+4}:{NEGM+7}], v[{Q+4}:{Q+7}], v[{SA}:{SA+15}]
    s_waitcnt lgkmcnt({1 + NRD})
    v_mfma_f32_32x32x16_bf16 v[{SB}:{SB+15}], v[{K0}:{K0+3}], v[{Q}:{Q+3}], 0
    v_mfma_f32_32x32x16_bf16 v[{SB}:{SB+15}], v[{K1}:{K1+3}], v[{Q+4}:{Q+7}], v[{SB}:{SB+15}]
    """)
    if JL: j_sel(); j_zero(20, 99)
    A(f"""
    s_waitcnt lgkmcnt(0)
    v_pk_add_f32 v[{RD}:{RD+1}], v[{RD}:{RD+1}], v[{RD+4}:{RD+5}]
    v_pk_add_f32 v[{RD+2}:{RD+3}], v[{RD+2}:{RD+3}], v[{RD+6}:{RD+7}]
    """)
    if E8:
        A(f"""
        v_pk_add_f32 v[{RD+12}:{RD+13}], v[{RD+12}:{RD+13}], v[{RD+16}:{RD+17}]
        v_pk_add_f32 v[{RD+14}:{RD+15}], v[{RD+14}:{RD+15}], v[{RD+18}:{RD+19}]
        v_pk_add_f32 v[{RD}:{RD+1}], v[{RD}:{RD+1}], v[{RD+12}:{RD+13}]
        v_pk_add_f32 v[{RD+2}:{RD+3}], v[{RD+2}:{RD+3}], v[{RD+14}:{RD+15}]
        s_cmp_lg_u32 s40, 7
        s_cbranch_scc1 KJ_NOZ
        v_lshlrev_b32 v4, 2, v0
        v_add_u32 v5, {ZRED}, v4
        ds_read_b32 v{RD+8}, v5
        ds_read_b32 v{RD+9}, v5 offset:256
        ds_read_b32 v{RD+10}, v5 offset:512
        ds_read_b32 v{RD+11}, v5 offset:768
        s_waitcnt lgkmcnt(0)
        v_add_f32 v{RD+8}, v{RD+8}, v{RD+9}
        v_add_f32 v{RD+10}, v{RD+10}, v{RD+11}
        v_add_f32 v{RD+8}, v{RD+8}, v{RD+10}
        KJ_NOZ:
        """)
    else:
        A(f"""
        s_cmp_lg_u32 s40, 7
        buffer_store_dwordx4 v[{RD}:{RD+3}], v3, s[32:35], s79 offen sc1
        s_cbranch_scc1 KJ_NOZ
        v_lshlrev_b32 v4, 2, v0
        v_add_u32 v5, {ZRED}, v4
        ds_read_b32 v{RD+8}, v5
        ds_read_b32 v{RD+9}, v5 offset:256
        s_waitcnt lgkmcnt(0)
        v_add_f32 v{RD+8}, v{RD+8}, v{RD+9}
        buffer_store_dword v{RD+8}, v4, s[32:35], s89 offen sc1
        KJ_NOZ:
        """)
    A.nop(6)
    A(f"v_max3_f32 v4, v{SA}, v{SA+1}, v{SA+2}")
    A(f"v_max3_f32 v5, v{SA+3}, v{SA+4}, v{SA+5}")
    for k in range(6, 14, 4):
        A(f"v_max3_f32 v4, v4, v{SA+k}, v{SA+k+1}")
        A(f"v_max3_f32 v5, v5, v{SA+k+2}, v{SA+k+3}")
    A(f"v_max3_f32 v4, v4, v{SA+14}, v{SA+15}")
    for k in range(0, 16, 4):
        A(f"v_max3_f32 v4, v4, v{SB+k}, v{SB+k+1}")
        A(f"v_max3_f32 v5, v5, v{SB+k+2}, v{SB+k+3}")
    A("v_max_f32 v4, v4, v5")
    A("v_mov_b32 v5, v4")
    A.nop(2)
    A("v_permlane32_swap_b32 v4, v5")
    A("s_nop 0")
    A("v_max_f32 v4, v4, v5")
    A(f"v_add_f32 v4, {fhex(BIAS)}, v4")
    for i in range(16):
        A(f"v_sub_f32 v{NEGM+i}, 0, v4")
    for k in range(8):
        A(f"v_pk_add_f32 v[{SA+2*k}:{SA+2*k+1}], v[{SA+2*k}:{SA+2*k+1}], v[{NEGM}:{NEGM+1}]")
    if E8:
        A("s_waitcnt vmcnt(0)")
        poll_check(A, 47, 46, 32, "s78", "P1")
        A(f"""
        buffer_store_dwordx4 v[{RD}:{RD+3}], v3, s[32:35], s79 offen sc1
        s_cmp_lg_u32 s40, 7
        s_cbranch_scc1 KJ_NOZ2
        v_lshlrev_b32 v4, 2, v0
        buffer_store_dword v{RD+8}, v4, s[32:35], s89 offen sc1
        KJ_NOZ2:
        s_lshl_b32 s47, s40, 11
        s_add_u32 m0, s47, {2*16384}
        s_lshl_b32 s38, s41, 1
        s_add_u32 s38, s38, 2
        s_and_b32 s38, s38, 15
        s_lshl_b32 s38, s38, 14
        s_add_u32 s38, s38, s47
        s_add_u32 s81, s38, s70
        buffer_load_dwordx4 v3, s[32:35], s81 offen sc1 lds
        buffer_load_dwordx4 v3, s[32:35], s81 offen offset:1024 sc1 lds
        """)
    vstamp(A, cfg, 6, PR)
    if cfg.get("prof") == "2":
        A("s_mov_b32 s100, 15"); A(f"v_mov_b32 v{PR}, 0"); bstamp(A, cfg, 2); A("s_mov_b32 s100, 0")
    def dma_ops():
        a = ["s_mov_b32 m0, s72", "s_add_u32 s81, s70, s71", "s_add_u32 s72, s72, 16384",
             "buffer_load_dwordx4 v3, s[32:35], s81 offen sc1 lds"]
        b = ["buffer_load_dwordx4 v3, s[32:35], s81 offen offset:1024 sc1 lds",
             f"s_and_b32 s72, s72, {RING-1}", "s_add_u32 s71, s71, 16384", "s_and_b32 s71, s71, 0x3ffff"]
        return a, b
    def dma_chunk():
        a, b = dma_ops()
        for l in a + b: A(l)
    class LQ:
        def __init__(s, init): s.q = list(init)
        def rd(s, tag, text):
            def f(): A(text); s.q.append(tag)
            return f
        def wait(s, *tags):
            idx = max([k for k, t in enumerate(s.q) if t in tags], default=-1)
            if idx < 0: return
            A(f"s_waitcnt lgkmcnt({min(15, len(s.q) - 1 - idx)})")
            s.q = s.q[idx+1:]
    LQM = [None]
    def tile(i, Sa, Sb, sideA=(), sideB=(), end=()):
        e = lambda k: f"v_exp_f32 v{Sa+k}, v{Sa+k}"
        c = lambda k: f"v_cvt_pk_bf16_f32 v{P+k}, v{Sa+2*k}, v{Sa+2*k+1}"
        QK0 = f"v_mfma_f32_32x32x16_bf16 v[{Sb}:{Sb+15}], v[{K0}:{K0+3}], v[{Q}:{Q+3}], v[{NEGM}:{NEGM+15}]"
        QK1 = f"v_mfma_f32_32x32x16_bf16 v[{Sb}:{Sb+15}], v[{K1}:{K1+3}], v[{Q+4}:{Q+7}], v[{Sb}:{Sb+15}]"
        PV0 = f"v_mfma_f32_32x32x16_bf16 v[{O}:{O+15}], v[{V0}:{V0+3}], v[{P}:{P+3}], v[{O}:{O+15}]"
        PV1 = f"v_mfma_f32_32x32x16_bf16 v[{O}:{O+15}], v[{V1}:{V1+3}], v[{P+4}:{P+7}], v[{O}:{O+15}]"
        L0 = f"v_mfma_f32_16x16x32_bf16 v[{L}:{L+3}], v[{SEL}:{SEL+3}], v[{P}:{P+3}], v[{L}:{L+3}]"
        L1 = f"v_mfma_f32_16x16x32_bf16 v[{L}:{L+3}], v[{SEL}:{SEL+3}], v[{P+4}:{P+7}], v[{L}:{L+3}]"
        W = "s_waitcnt lgkmcnt(3)"
        def addr(tt, fr):
            return (f"v1 offset:{tt*4096+fr*1024}" if tt < 4 else f"v2 offset:{(tt-4)*4096+fr*1024}")
        rK0 = f"ds_read_b128 v[{K0}:{K0+3}], {addr(i+2, 0)}"; rK1 = f"ds_read_b128 v[{K1}:{K1+3}], {addr(i+2, 1)}"
        rV0 = f"ds_read_b128 v[{V0}:{V0+3}], {addr(i+1, 2)}"; rV1 = f"ds_read_b128 v[{V1}:{V1+3}], {addr(i, 3)}"
        WV1 = WK0 = WK1 = WV0 = W
        lq = LQM[0]
        if lq:
            WV1, WK0, WK1, WV0 = [(lambda t=t: lq.wait(t)) for t in ("V1", "K0", "K1", "V0")]
            rV1, rK0, rK1, rV0 = lq.rd("V1", rV1), lq.rd("K0", rK0), lq.rd("K1", rK1), lq.rd("V0", rV0)
        seq = [e(0), e(1), WV1, PV1, rV1, *sideA, e(2), e(3), e(4), e(5), WK0, QK0, rK0, e(6), e(7), c(0), c(1), L1, c(2), c(3), e(8), WK1, QK1, rK1,
               *sideB, e(9), e(10), e(11), WV0, PV0, rV0, e(12), e(13), e(14), L0, e(15), c(4), c(5), c(6), c(7), *end]
        for x in seq:
            if callable(x): x()
            else: A(x)
    PRIO = [int(c) for c in cfg.get("prio", "3210")]
    def period(sides=None, dma=True):
        if dma: dma_chunk()
        for i in range(4):
            sa, sb, en = (sides or {}).get(i, ((), (), ()))
            if cfg.get("prio"): A(f"s_setprio {PRIO[i]}")
            tile(i, SA if i % 2 == 0 else SB, SB if i % 2 == 0 else SA, sa, sb, en)
        A(f"""
        v_mov_b32 v1, v2
        v_add_u32 v2, 16384, v2
        v_and_b32 v2, {RING-1}, v2
        """)
    A.label("K2_LOOP")
    period()
    if cfg.get("prof") == "2":
        pbar(A, cfg, "s_waitcnt vmcnt(2)")
        A("""
        s_add_u32 s60, s60, 1
        s_cmp_lg_u32 s60, s61
        s_cbranch_scc1 K2_LOOP
        """)
    else:
        A(f"""
        s_add_u32 s60, s60, 1
        s_cmp_lg_u32 s60, s61
        s_waitcnt vmcnt(2)
        s_barrier
        s_cbranch_scc1 K2_LOOP
        """)
    A(f"""
    s_cmp_eq_u32 s60, 1
    s_cbranch_scc1 KD_1
    s_cmp_eq_u32 s60, 3
    s_cbranch_scc1 KD_3
    s_cmp_eq_u32 s60, 4
    s_cbranch_scc1 KD_4
    s_branch KD_7
    KD_1:
    s_mov_b32 s61, 3
    """)
    set_flag(A, "s68")
    A(f"""
    s_branch K2_LOOP
    KD_3:
    v_lshlrev_b32 v46, 2, v0
    s_mov_b32 s61, 4
    """)
    poll_issue(A, 47, 46, 32, "s77")
    A("s_branch K2_LOOP")
    A.label("KD_4")
    vstamp(A, cfg, 7, PR)
    poll_check(A, 47, 46, 32, "s77", "PK")
    KVP = 192; ZP = 224
    A(f"""
    s_cmp_eq_u32 s40, 4
    s_cselect_b32 s84, 1, 0          ; wave 4 also reduces z
    """)
    def kvload(rr):
        def f():
            A(f"buffer_load_dwordx4 v[{KVP+4*rr}:{KVP+4*rr+3}], v3, s[32:35], s75 offen sc1")
            A("s_add_u32 s75, s75, 8192")
        return f
    def zload(rr):
        def f():
            j = A.uid("KZ")
            A("s_cmp_eq_u32 s84, 0"); A(f"s_cbranch_scc1 {j}")
            A(f"buffer_load_dword v{ZP+rr}, v46, s[32:35], s76 offen offset:{256*rr} sc1")
            A(f"buffer_load_dword v{ZP+rr+1}, v46, s[32:35], s76 offen offset:{256*rr+256} sc1")
            A.label(j)
        return f
    period({i: ((kvload(2*i),), (kvload(2*i+1),), (zload(2*i),)) for i in range(4)})
    pbar(A, cfg, "s_waitcnt vmcnt(10)")
    def kvsum():
        A("s_waitcnt vmcnt(2)")
        A(f"""
        s_lshr_b32 s47, s40, 1
        s_lshl_b32 s47, s47, 10
        s_and_b32 s38, s40, 1
        s_lshl_b32 s38, s38, 3
        s_add_u32 s47, s47, s38
        s_add_u32 s47, s47, {KVT_L}
        v_add_u32 v4, s47, v3            ; kvT write address
        """)
        b = KVP
        for rr in range(1, 8):
            A(f"v_pk_add_f32 v[{b}:{b+1}], v[{b}:{b+1}], v[{b+4*rr}:{b+4*rr+1}]")
            A(f"v_pk_add_f32 v[{b+2}:{b+3}], v[{b+2}:{b+3}], v[{b+4*rr+2}:{b+4*rr+3}]")
        A(f"v_cvt_pk_bf16_f32 v{b}, v{b}, v{b+1}")
        A(f"v_cvt_pk_bf16_f32 v{b+1}, v{b+2}, v{b+3}")
        A(f"ds_write_b64 v4, v[{b}:{b+1}]")
        j = A.uid("KZS")
        A("s_cmp_eq_u32 s84, 0"); A(f"s_cbranch_scc1 {j}")
        for rr in range(1, 8):
            A(f"v_add_f32 v{ZP}, v{ZP}, v{ZP+rr}")
        A(f"""
        v_lshlrev_b32 v5, 1, v0
        v_add_u32 v5, {Z_L}, v5          ; z write address (lane = f)
        v_cvt_pk_bf16_f32 v{ZP}, v{ZP}, v{ZP}
        ds_write_b16 v5, v{ZP}
        """)
        A.label(j)
    period({1: ((), (), (kvsum,))})
    pbar(A, cfg, None)
    A(f"""
    s_mov_b32 s60, 6
    s_mov_b32 s61, 7
    {"s_lshr_b32 s47, s40, 2" if XT8 else "s_mov_b32 s47, 0"}
    s_xor_b32 s47, s47, s40
    s_and_b32 s47, s47, {1 if E8 else 5}
    s_cmp_lg_u32 s47, 1
    s_cbranch_scc1 K2_LOOP
    """)
    KVT, ZR, NUM, DEN, OA = 192, 208, 224, 240, 244
    A(f"""
    v_add_u32 v4, {KVT_L}, v3
    v_lshrrev_b32 v5, 5, v0
    v_lshlrev_b32 v5, 3, v5
    v_add_u32 v5, {Z_L}, v5          ; Z + hh*8
    """)
    for s in range(4):
        A(f"ds_read_b128 v[{KVT+4*s}:{KVT+4*s+3}], v4 offset:{s*1024}")
        A(f"ds_read_b64 v[{ZR+4*s}:{ZR+4*s+1}], v5 offset:{32*s}")
        A(f"ds_read_b64 v[{ZR+4*s+2}:{ZR+4*s+3}], v5 offset:{32*s+16}")
    def zmask():
        A("v_bfe_u32 v4, v0, 2, 1")
        A("v_bfe_u32 v5, v0, 4, 1")
        A("v_cmp_eq_u32 vcc, v4, v5")
        A("v_mov_b32 v4, 0")
        A("s_nop 0")
        for k in range(16): A(f"v_cndmask_b32 v{ZR+k}, v4, v{ZR+k}, vcc")
    def amfma(t):
        def f():
            for s in range(4):
                c = "0" if s == 0 else f"v[{NUM}:{NUM+15}]"
                A(f"v_mfma_f32_32x32x16_bf16 v[{NUM}:{NUM+15}], v[{KVT+4*s}:{KVT+4*s+3}], v[{PHQ+16*t+4*s}:{PHQ+16*t+4*s+3}], {c}")
                c = "0" if s == 0 else f"v[{DEN}:{DEN+3}]"
                A(f"v_mfma_f32_16x16x32_bf16 v[{DEN}:{DEN+3}], v[{ZR+4*s}:{ZR+4*s+3}], v[{PHQ+16*t+4*s}:{PHQ+16*t+4*s+3}], {c}")
        return f
    def afin():
        A(f"v_add_f32 v4, {fhex(1e-6)}, v{DEN}")
        A("v_rcp_f32 v4, v4")
        A("s_nop 0")
        for k in range(8):
            A(f"v_pk_mul_f32 v[{NUM+2*k}:{NUM+2*k+1}], v[{NUM+2*k}:{NUM+2*k+1}], v[4:5] op_sel_hi:[1,0]")
        cvt_tile(A, OA, NUM)
        A(f"buffer_store_dwordx4 v[{OA}:{OA+3}], v3, s[32:35], s74 offen sc1")
        A(f"buffer_store_dwordx4 v[{OA+4}:{OA+7}], v3, s[32:35], s74 offen offset:1024 sc1")
        A("s_add_u32 s74, s74, 65536")
    if E8:
        period({0: ((), (), (zmask, amfma(0))), 1: ((), (), (afin, amfma(1))), 2: ((), (), (afin,))})
        pbar(A, cfg, "s_waitcnt vmcnt(6)")
    else:
        period({0: ((), (), (zmask, amfma(0))), 1: ((), (), (afin, amfma(1))), 2: ((), (), (afin, amfma(2))), 3: ((), (), (afin, amfma(3)))})
        A.nop(12)
        afin()
        pbar(A, cfg, "s_waitcnt vmcnt(10)")
    P16 = cfg.get("p16")
    A.label("KD_7")
    A(f"""
    s_mov_b32 s60, 7
    v_and_b32 v45, 31, v0
    v_lshlrev_b32 v45, 2, v45        ; (l&31)*4
    v_lshlrev_b32 v35, 2, v0         ; lane*4
    v_lshrrev_b32 v4, 3, v0
    v_lshlrev_b32 v5, 11, v4         ; row*2048
    v_and_b32 v7, 7, v0
    v_bfe_u32 v6, v0, 4, {2 if P16 else 1}
    v_lshlrev_b32 v6, {1 if P16 else 2}, v6
    v_xor_b32 v7, v7, v6
    v_lshl_add_u32 v5, v7, 4, v5
    s_lshl_b32 s47, s18, 9
    s_lshl_b32 s38, s19, 4
    s_add_u32 s47, s47, s38
    s_lshl_b32 s47, s47, 11
    s_lshl_b32 s38, s17, 7
    s_add_u32 s47, s47, s38          ; + C*128
    v_add_u32 v36, s47, v5           ; piece 0
    v_add_u32 v37, {16384 - 1024}, v36
    v_lshrrev_b32 v7, 5, v0          ; hh
    v_bfe_u32 v6, v0, 2, 2           ; i>>2
    v_lshl_add_u32 v7, v7, 2, v6
    v_lshlrev_b32 v7, 7, v7
    v_bfe_u32 v6, v0, 4, 1
    v_bfe_u32 v5, v0, 1, 1
    v_lshl_add_u32 v6, v6, 1, v5
    v_bfe_u32 v5, v0, 3, 1
    v_lshlrev_b32 v5, 2, v5
    v_xor_b32 v6, v6, v5
    v_lshl_add_u32 v7, v6, 4, v7
    v_and_b32 v5, 1, v0
    v_lshl_add_u32 v7, v5, 3, v7
    s_lshl_b32 s38, s18, 13
    v_add_u32 v38, s38, v7           ; cb=0
    v_xor_b32 v39, 64, v38           ; cb=1
    s_add_u32 s80, s30, {WSL(0)}
    """)
    if P16:
        A(f"""
        v_lshrrev_b32 v4, 4, v0          ; q4
        v_and_b32 v5, 15, v0             ; i
        v_lshlrev_b32 v39, 4, v5
        v_lshl_add_u32 v39, v4, 9, v39   ; o : q4 * 512 + i * 16
        v_lshrrev_b32 v6, 1, v4
        v_lshlrev_b32 v6, 4, v6          ; 16 fr
        v_and_b32 v7, 1, v4
        v_lshl_add_u32 v6, v7, 2, v6     ; + 4 hh
        v_lshrrev_b32 v5, 2, v5
        v_add_u32 v6, v6, v5             ; k row
        v_lshlrev_b32 v38, 7, v6
        v_bfe_u32 v6, v6, 1, 2           ; (row >> 1) & 3
        v_lshl_add_u32 v38, v6, 5, v38
        v_and_b32 v5, 3, v0
        v_lshl_add_u32 v38, v5, 3, v38
        v_add_u32 v38, s38, v38
        v_and_b32 v45, 15, v0
        v_lshlrev_b32 v45, 2, v45        ; (l&15)*4
        """)
    def wo_ops(m0src):
        a = [m0src, "s_nop 0", "buffer_load_dwordx4 v36, s[20:23], s29 offen lds"]
        b = ["buffer_load_dwordx4 v37, s[20:23], s29 offen offset:1024 lds", f"s_add_u32 s29, s29, {64*2048}"]
        return a, b
    A.label("K2_LOOPB")
    wa, wb = wo_ops("s_mov_b32 m0, s80")
    wb = wb + ["s_add_u32 s80, s80, 16384"]
    ca, cb_ = dma_ops()
    period({0: (tuple(wa), tuple(wb), ()), 1: (tuple(wa), tuple(wb), ()), 2: (tuple(ca), tuple(cb_), ())}, dma=False)
    if cfg.get("prof") == "2":
        pbar(A, cfg, "s_waitcnt vmcnt(6)")
        A("""
        s_add_u32 s60, s60, 1
        s_cmp_eq_u32 s60, 10
        """)
    else:
        A("""
        s_add_u32 s60, s60, 1
        s_cmp_eq_u32 s60, 10
        s_waitcnt vmcnt(6)
        s_barrier
        """)
    A(f"""
    s_cbranch_scc1 KB_10
    s_cmp_eq_u32 s60, 9
    s_cbranch_scc1 KB_9
    s_and_b32 s47, s40, 5
    s_cmp_lg_u32 s47, 1
    s_cbranch_scc1 K2_LOOPB
    """)
    set_flag(A, "s88")
    A("s_branch K2_LOOPB")
    A.label("KB_9")
    poll_issue(A, 47, 35, 32, "s36")
    A("s_branch K2_LOOPB")
    A.label("KB_10")
    vstamp(A, cfg, 8, PR)
    poll_check(A, 47, 35, 32, "s36", "PA")
    G, OMG = 32, 34
    OF = 128
    vm = VM(A, ["W4", "W4", "W5", "W5", "c12", "c12"])
    vm.now("G", f"buffer_load_dword v{G}, v45, s[32:35], s31 offen sc1")
    if P16: vm.now("G", f"buffer_load_dword v35, v45, s[32:35], s31 offen offset:64 sc1")
    OV = 39 if P16 else 3
    ooff = (lambda j: (j >> 1)*2048 + (j & 1)*256) if P16 else (lambda j: j*1024)
    nld = [0]
    AE = int(cfg.get("ae", 0))
    assert AE in (0, 4, 5) and not (AE and P16)
    OFA = (lambda s: OF + 16*(s % 5)) if AE else (lambda s: OF + 16*s)
    ACE, WE, WEA = 224, (208, 216), 116
    def oload():
        k = nld[0]; nld[0] += 1
        s, j = divmod(k, 4)
        r = OFA(s) + 4*j
        def f():
            vm.now(f"o{k}" if AE else "o", f"buffer_load_dwordx4 v[{r}:{r+3}], v{OV}, s[32:35], s28 offen offset:{ooff(j)} sc1")
            if j == 3: A("s_add_u32 s28, s28, 4096")
        return f
    if AE:
        A(f"v_add_u32 v{WEA}, {WSL(0)}, v38")
        A(f"v_add_u32 v{WEA+1}, {WSL(0)}, v39")
        LQM[0] = LQ(["V1", "K0", "K1", "V0"])
    def ae_read(k, cb):
        s, j = divmod(k, 4)
        fs = []
        for sec in range(2):
            r = WE[k & 1] + 4*cb + 2*sec
            fs.append(LQM[0].rd(f"w{k}{cb}", f"ds_read_b64_tr_b16 v[{r}:{r+1}], v{WEA+cb} offset:{s*16384 + (16*j+8*sec)*128}"))
        return tuple(fs)
    def ae_mfma(k, cb):
        s, j = divmod(k, 4)
        def f():
            vm.wait(f"o{k}"); LQM[0].wait(f"w{k}{cb}")
            a = ACE + 16*cb; w = WE[k & 1] + 4*cb; o = OFA(s) + 4*j
            A(f"v_mfma_f32_32x32x16_bf16 v[{a}:{a+15}], v[{w}:{w+3}], v[{o}:{o+3}], " + ("0" if k == 0 else f"v[{a}:{a+15}]"))
        return f
    def lines(tag, ls):
        def f():
            for l in ls:
                if l.startswith("buffer_"): vm.now(tag, l)
                else: A(l)
        return f
    BT = int(cfg.get("btouch", 0))
    def btouch():
        A(f"""
        s_and_b32 s47, s16, 3
        s_lshl_b32 s47, s47, 3
        s_add_u32 s47, s47, s40
        s_lshl_b32 s47, s47, 5
        v_add_u32 v44, s47, v0
        v_lshlrev_b32 v44, 11, v44
        s_lshl_b32 s47, s17, 7
        v_add_u32 v44, s47, v44
        v_mov_b32 v4, 0x7ffffff0
        v_cmp_gt_u32 vcc, 32, v0
        s_mov_b32 s92, s6
        s_mov_b32 s93, s7
        s_mov_b32 s94, {1024*2048}
        s_mov_b32 s95, 0x00020000
        v_cndmask_b32 v44, v4, v44, vcc
        """)
        vm.now("T", "buffer_load_dword v44, v44, s[92:95], 0 offen")
    for n in range(10, 16):
        sides = {}
        if n <= 12:
            a, b = dma_ops()
            sides[0] = ((lines(f"c{n+3}", a),), (lines(f"c{n+3}", b),), (oload(),))
            sides[1] = ((oload(),), (oload(),), ())
            if AE == 5 and n == 12:
                sides[2] = ((), (), ()); sides[3] = ((), (), ())
                sides[1] = ((oload(),), (oload(),), ())
            else:
                sides[2] = ((oload(),), (oload(),), ())
                sides[3] = ((oload(),), (), ())
        elif n <= 14:
            a, b = wo_ops(f"s_add_u32 m0, s30, {WSL(n - 7)}")
            if AE == 4:
                sides[0] = ((lines("W", a),), (lines("W", b),), (oload(),))
                sides[1] = ((oload(),), (oload(),), ())
                sides[2] = ((oload(),), (), ()) if n == 14 else ((oload(),), (oload(),), ())
                sides[3] = ((), (), ()) if n == 14 else ((oload(),), (), ())
            else:
                sides[0] = ((lines("W", a),), (lines("W", b),), (oload(),))
                sides[1] = ((oload(),), (oload(),), ())
                sides[2] = ((oload(),), (), ())
                sides[3] = ((oload(),), (), ())
        else:
            sides[0] = ((oload(),), (oload(),), ())
            sides[1] = ((oload(),), (oload(),), ())
        if n == BT: sides[3] = (sides[3][0], sides[3][1], tuple(sides[3][2]) + (btouch,))
        if AE:
            assert AE == 4
            for i in range(4):
                sa, sb, en = sides.get(i, ((), (), ()))
                k = 4*(n - (16 - AE)) + i
                if 0 <= k < 4*AE:
                    sa = (ae_mfma(k, 0),) + tuple(sa); sb = (ae_mfma(k, 1),) + tuple(sb)
                if 0 <= k + 1 < 4*AE:
                    sa = tuple(sa) + ae_read(k + 1, 0); sb = tuple(sb) + ae_read(k + 1, 1)
                sides[i] = (sa, sb, en)
        period(sides, dma=False)
        if n <= 13:
            pbar(A, cfg, lambda: vm.wait(f"c{n+2}"))
        elif cfg.get("prof") == "2":
            bstamp(A, cfg, 0); bstamp(A, cfg, 1); bstamp(A, cfg, 2)
        if n == 12: vstamp(A, cfg, 9, PR)
    assert nld[0] == 32
    A(f"""
    s_mov_b32 s60, 16
    s_waitcnt lgkmcnt(0)
    v_mfma_f32_32x32x16_bf16 v[{O}:{O+15}], v[{V1}:{V1+3}], v[{P+4}:{P+7}], v[{O}:{O+15}]
    v_mfma_f32_16x16x32_bf16 v[{L}:{L+3}], v[{SEL}:{SEL+3}], v[{P+4}:{P+7}], v[{L}:{L+3}]
    """)
    vstamp(A, cfg, 10, PR)
    rst(A, cfg, 0)
    A("v_lshlrev_b32 v45, 3, v0")
    A.nop(12)
    A.label("K2_FIN")
    A(f"v_rcp_f32 v4, v{L}")
    A("s_nop 0")
    for k in range(8):
        A(f"v_pk_mul_f32 v[{O+2*k}:{O+2*k+1}], v[{O+2*k}:{O+2*k+1}], v[4:5] op_sel_hi:[1,0]")
    A("v_mov_b32 v6, 0")
    for k in range(16):
        A(f"v_fma_f32 v6, v{O+k}, 0, v6")
    A(f"""
    v_mov_b32 v7, {fhex(2.0**120)}
    v_cmp_u_f32 vcc, v6, v6
    v_cmp_nlt_f32 s[62:63], v{L}, v7
    s_or_b64 vcc, vcc, s[62:63]
    """)
    if cfg.get("force_fb"):
        A("s_mov_b64 vcc, -1")
    A(f"""
    s_cmp_eq_u32 s60, 16
    s_cselect_b64 vcc, vcc, 0
    s_cbranch_vccnz K2_FB
    """)
    for i in range(8):
        A(f"v_cvt_pk_bf16_f32 v{P+i}, v{O+2*i}, v{O+2*i+1}")
    A(f"buffer_store_dwordx4 v[{P}:{P+3}], v3, s[32:35], s73 offen sc1")
    A(f"buffer_store_dwordx4 v[{P+4}:{P+7}], v3, s[32:35], s73 offen offset:1024 sc1")
    EF = cfg.get("ef")
    if EF:
        A("""
        s_cmp_lt_u32 s40, 4
        s_cbranch_scc0 K3_EF1
        s_waitcnt vmcnt(0)
        """)
        set_flag(A, "s69")
        A("""
        s_branch K3_EF2
        K3_EF1:
        s_setprio 1
        s_waitcnt vmcnt(2)
        K3_EF2:
        """)
    else:
        A("s_waitcnt vmcnt(2)")
    A("s_barrier")
    vstamp(A, cfg, 11, PR)
    rst(A, cfg, 1)
    LQM[0] = None
    WFJ = [16, 24, 48, 56]
    ACCA, ACCB = (ACE if AE else 64), 96
    OFB = (lambda s: OF + 16*(s % 6)) if AE else (lambda s: OF + 16*s)
    P3V = cfg.get("p3v") in ("2", "3")
    OD = int(cfg.get("od", 8))
    P3R = cfg.get("p3v") == "3"
    BSL = lambda b: 32768 + 16384 * b if b < 2 else WSL(b - 2)
    def waddr(s, slot=WSL):
        if slot is None:
            A("v_add_u32 v40, s90, v38")
            A("v_add_u32 v41, s90, v39")
            A("s_add_u32 s90, s90, 16384")
            A("s_and_b32 s90, s90, 0x1ffff")
            return
        A(f"v_add_u32 v40, {slot(s)}, v38")
        if P16:
            A("v_xor_b32 v41, 32, v40"); A("v_xor_b32 v42, 64, v40"); A("v_xor_b32 v43, 0x60, v40")
        else:
            A(f"v_add_u32 v41, {slot(s)}, v39")
    W16F = lambda hd, cg: WFJ[2*hd + (cg >> 1)] + 4*(cg & 1)
    def wread16(hd, cg):
        for sec in range(2):
            r = W16F(hd, cg) + 2*sec
            A(f"ds_read_b64_tr_b16 v[{r}:{r+1}], v{40+cg} offset:{(32*hd+8*sec)*128}")
    def gemm16(acc_, after, owait, slot=WSL, inl={}, stamp=None):
        waddr(0, slot)
        A("s_nop 0")
        for hd in range(2):
            for cg in range(4): wread16(hd, cg)
        for s in range(8):
            last = s == 7
            for j in range(4):
                hd, b = j >> 1, j & 1
                if owait: A(f"s_waitcnt vmcnt({min(4*OD + 4*s + j, 32) - (4*s + j) - 1})")
                for cg in range(4):
                    if b == 0: A(f"s_waitcnt lgkmcnt({2*(3 - cg) + (0 if (last and hd == 1) else 8)})")
                    w = W16F(hd, cg); o = OF + 16*s + 4*j; a = acc_ + 4*(2*cg + b)
                    c = "0" if (s == 0 and hd == 0) else f"v[{a}:{a+3}]"
                    A(f"v_mfma_f32_16x16x32_bf16 v[{a}:{a+3}], v[{w}:{w+3}], v[{o}:{o+3}], {c}")
                    if b == 1 and not last: wread16(hd, cg)
                if j == 0 and not last: waddr(s + 1, slot)
                for l in inl.get((s, j), []):
                    if callable(l): l()
                    else: A(l)
                if owait and s + OD < 8: o_load(s + OD, j)
            if s in after: after[s]()
            if stamp is not None and cfg.get("prof") == "5" and (s in (1, 3, 5, 7) or owait):
                rst(A, cfg, stamp + s)
    def wreads(j):
        for cb in range(2):
            for sec in range(2):
                r = WFJ[j] + 4*cb + 2*sec
                A(f"ds_read_b64_tr_b16 v[{r}:{r+1}], v{40+cb} offset:{(16*j+8*sec)*128}")
    def gemm(acc_, after, owait, slot=WSL, inl={}, stamp=None, s0=0):
        if P16: return gemm16(acc_, after, owait, slot, inl, stamp)
        waddr(s0, slot)
        for j in range(4): wreads(j)
        for s in range(s0, 8):
            last = s == 7
            for j in range(4):
                if owait: A(f"s_waitcnt vmcnt({min(4*OD + 4*s + j, 32) - (4*s + j) - 1 + (4 if (AE and 4*s + j < 4*OD) else 0)})")
                for cb in range(2):
                    n = (14 - 2*cb) if not last else (14 - 4*j - 2*cb)
                    A(f"s_waitcnt lgkmcnt({n})")
                    w = WFJ[j] + 4*cb; o = (OFB(s) if owait else OFA(s)) + 4*j; a = acc_ + 16*cb
                    c = "0" if (s == 0 and j == 0) else f"v[{a}:{a+15}]"
                    A(f"v_mfma_f32_32x32x16_bf16 v[{a}:{a+15}], v[{w}:{w+3}], v[{o}:{o+3}], {c}")
                if not last:
                    if j == 0: waddr(s + 1, slot)
                    wreads(j)
                for l in inl.get((s, j), []):
                    if callable(l): l()
                    else: A(l)
                if owait and s + OD < 8: o_load(s + OD, j)
            if s in after: after[s]()
            if stamp is not None and cfg.get("prof") == "5" and (s in (1, 3, 5, 7) or owait):
                rst(A, cfg, stamp + s)
    def refill(s0):
        for s in range(s0, s0 + 4):
            a, b = wo_ops(f"s_add_u32 m0, s30, {WSL(s)}")
            for l in a + b: A(l)
    def a_flag():
        A("s_waitcnt vmcnt(0)")
        set_flag(A, "s69")
    def a_mid():
        A("s_barrier")
        A("""
        s_mov_b32 s20, s6
        s_mov_b32 s21, s7
        s_mov_b32 s29, 0
        """)
        refill(0)
    def a_poll():
        poll_issue(A, 46, 45, 32, "s83", n=2)
    FBPOS = int(cfg.get("fbpos", 2))
    RB0 = 32768 if P3V else 0
    def out_addr():
        A(f"""
        v_sub_f32 v{OMG}, 1.0, v{G}
        {"v_sub_f32 v46, 1.0, v35" if P16 else ""}
        v_and_b32 v4, {15 if P16 else 31}, v0
        s_lshl_b32 s38, s19, 5
        v_add_u32 v4, s38, v4
        v_mul_u32_u24 v4, {K3_ROW}, v4
        v_lshrrev_b32 v5, {4 if P16 else 5}, v0
        v_lshl_add_u32 v4, v5, 4, v4
        s_mul_i32 s38, s18, {K3_RED}
        {f"s_add_u32 s38, s38, {RB0}" if RB0 else ""}
        v_add_u32 v4, s38, v4            ; write address
        s_lshl_b32 s38, s40, 6
        v_add_u32 v10, s38, v0           ; tid
        v_lshrrev_b32 v5, 3, v10
        v_and_b32 v6, 7, v10             ; chunk
        v_mul_u32_u24 v7, {K3_ROW}, v5
        v_lshl_add_u32 v7, v6, 5, v7     ; read address
        {f"v_add_u32 v7, {RB0}, v7" if RB0 else ""}
        s_lshl_b32 s38, s16, 7
        v_add_u32 v5, s38, v5
        v_lshlrev_b32 v5, 11, v5
        v_lshl_add_u32 v5, v6, 4, v5
        s_lshl_b32 s38, s17, 7
        v_add_u32 v5, s38, v5
        """)
    def scale_a():
        for k in range(16):
            if P16 and (k >> 1) & 1:
                A(f"v_pk_mul_f32 v[{ACCA+2*k}:{ACCA+2*k+1}], v[{ACCA+2*k}:{ACCA+2*k+1}], v[34:35] op_sel:[0,1] op_sel_hi:[1,1]")
            else:
                A(f"v_pk_mul_f32 v[{ACCA+2*k}:{ACCA+2*k+1}], v[{ACCA+2*k}:{ACCA+2*k+1}], v[{G}:{G+1}] op_sel_hi:[1,0]")
    def o_load(s, j):
        if j == 0:
            if s == 0: A(f"s_sub_u32 s28, s28, 32768" if cfg.get("expo") else f"s_add_u32 s28, s28, {4*MB - 32768}")
            if P3R:
                A("s_add_u32 s85, s28, s91")
                A("s_add_u32 s91, s91, 4096")
                A("s_and_b32 s91, s91, 0x7fff")
            elif s: A("s_add_u32 s28, s28, 4096")
        r = OFB(s) + 4*j
        A(f"buffer_load_dwordx4 v[{r}:{r+3}], v{OV}, s[32:35], {'s85' if P3R else 's28'} offen offset:{ooff(j)} sc1")
    def o_loads():
        for s in range(OD):
            for j in range(4): o_load(s, j)
    if P3V:
        A("""
        s_mov_b32 s20, s6
        s_mov_b32 s21, s7
        s_mov_b32 s29, 0
        """)
        inl = {}
        def bslab(b, s, j):
            a_, b_ = wo_ops(f"s_add_u32 m0, s30, {BSL(b)}")
            inl[(s, j)] = a_; inl[(s, j + 1)] = b_
        BS = cfg.get("bs", "0")
        bslab(0, 0, 0); bslab(1, 1, 0)
        if BS == "0":
            bslab(2, 4, 0); bslab(3, 4, 2); bslab(4, 5, 0); bslab(5, 5, 2)
        else:
            bslab(2, 2, 0); bslab(3, 3, 0); bslab(4, 4, 0); bslab(5, 5, 0)
        bslab(6, 6, 0); bslab(7, 6, 2)
        def a_flag2():
            if EF:
                j = A.uid("K3_F")
                A("s_cmp_lt_u32 s40, 4"); A(f"s_cbranch_scc1 {j}")
            A(f"s_waitcnt vmcnt({2 * min(FBPOS + 1, 2)})")
            set_flag(A, "s69")
            if EF:
                A("s_setprio 0")
                A.label(j)
        EP = int(cfg.get("ep", 0))
        def a_bar5():
            if EP:
                A("s_waitcnt vmcnt(7)")
                A("s_barrier")
                poll_check(A, 46, 45, 32, "s83", "PB", n=2)
                for b in (6, 7):
                    a_, b_ = wo_ops(f"s_add_u32 m0, s30, {BSL(b)}")
                    for l in a_ + b_: A(l)
                for s_ in range(EP):
                    for j in range(4): o_load(s_, j)
            else:
                A("s_barrier")
                a_poll()
        if EP:
            assert OD == EP + 2 and not P3R
            del inl[(6, 0)], inl[(6, 1)], inl[(6, 2)], inl[(6, 3)]
            inl[(4, 0)] = inl[(4, 0)] + [a_poll]
            for s_ in (6, 7):
                for j in range(4): inl[(s_, j)] = [(lambda s_=s_, j=j: o_load(EP + s_ - 6, j))]
        aft = {3: lambda: A("s_barrier"), 5: a_bar5}
        if FBPOS == 3: aft[3] = lambda: (a_flag2(), A("s_barrier"))
        else: aft[FBPOS] = a_flag2
        if BS == "1":
            assert FBPOS in (0, 1)
            if FBPOS == 1: aft[1] = lambda: (a_flag2(), A("s_barrier"))
            else: aft[1] = lambda: A("s_barrier")
        if AE:
            assert not EP and not P3R and BS == "0"
            inl.clear()
            n_ = 0
            for b in range(6):
                a_, b_ = wo_ops(f"s_add_u32 m0, s30, {BSL(b)}")
                inl[(AE + b // 4, b % 4)] = a_ + b_
            def a_flag3():
                j = A.uid("K3_F")
                if EF: A("s_cmp_lt_u32 s40, 4"); A(f"s_cbranch_scc1 {j}")
                nb = min(4 * (FBPOS + 1), 6)
                A(f"s_waitcnt vmcnt({2 * nb})")
                set_flag(A, "s69")
                if EF: A("s_setprio 0")
                A.label(j)
            AEP = int(cfg.get("aep", 6))
            assert AEP > AE + FBPOS or AEP == 7
            aft = {AE + FBPOS: a_flag3}
            aft[AEP] = a_poll if AEP != AE + FBPOS else (lambda: (a_flag3(), a_poll()))
            gemm(ACCA, aft, False, WSL, inl, 2, AE)
        else:
            gemm(ACCA, aft, False, WSL, inl, 2)
        vstamp(A, cfg, 12, PR)
        if P3R:
            RM = int(cfg.get("rmask", 6))
            A(f"""
            s_and_b32 s47, s17, {RM}
            s_lshl_b32 s90, s47, 14
            s_lshl_b32 s91, s47, 12
            v_add_u32 v38, 32768, v38
            v_add_u32 v39, 32768, v39
            """)
            if cfg.get("gfirst", "1") == "1":
                A("""
                s_and_b32 s47, s17, 1
                s_cmp_eq_u32 s47, s18
                s_cbranch_scc0 K3_NP
                s_setprio 1
                K3_NP:
                """)
        A(f"s_waitcnt vmcnt({4 * OD if EP else 0})")
        rst(A, cfg, 10)
        A("s_barrier")
        rst(A, cfg, 11)
        if not EP:
            poll_check(A, 46, 45, 32, "s83", "PB", n=2)
            rst(A, cfg, 12)
            o_loads()
            if AE:
                for b in (6, 7):
                    a_, b_ = wo_ops(f"s_add_u32 m0, s30, {BSL(b)}")
                    for l in a_ + b_: A(l)
            rst(A, cfg, 13)
        out_addr()
        scale_a()
        srd(A, 24, 8, 4194304)
        def zbar(g):
            def f():
                j = A.uid("K3_Z")
                A(f"s_cmp_eq_u32 s18, {g}"); A(f"s_cbranch_scc0 {j}"); A("s_barrier"); A.label(j)
            return f
        if P3R:
            gemm(ACCB, {}, True, None, {}, 14)
            vstamp(A, cfg, 13, PR)
            A("s_setprio 0")
            A("s_barrier")
            A.nop(12)
        elif AE:
            gemm(ACCB, {4: lambda: A("s_barrier")}, True, BSL, {}, 14)
            vstamp(A, cfg, 13, PR)
            A.nop(12)
        else:
            gemm(ACCB, {4: zbar(1)}, True, BSL, {}, 14)
            vstamp(A, cfg, 13, PR)
            zbar(0)()
            A.nop(12)
    else:
        gemm(ACCA, {FBPOS: a_flag, 3: a_mid, 5: a_poll}, False)
        A("s_barrier")
        refill(4)
        vstamp(A, cfg, 12, PR)
        A("s_waitcnt vmcnt(8)")
        poll_check(A, 46, 45, 32, "s83", "PB", n=2)
        o_loads()
        A("s_waitcnt vmcnt(31)")
        A("s_barrier")
        gemm(ACCB, {}, True)
        vstamp(A, cfg, 13, PR)
        out_addr()
        scale_a()
        A("s_barrier")
        srd(A, 24, 8, 4194304)
        A.nop(4)
    for k in range(16):
        om = 46 if (P16 and (k >> 1) & 1) else OMG
        A(f"v_pk_fma_f32 v[{ACCA+2*k}:{ACCA+2*k+1}], v[{ACCB+2*k}:{ACCB+2*k+1}], v[{om}:{om+1}], v[{ACCA+2*k}:{ACCA+2*k+1}] op_sel_hi:[1,0,1]")
    for cb in range(2):
        for q in range(4):
            r = ACCA + 16*cb + 4*q
            if P16: A(f"ds_write_b128 v4, v[{r}:{r+3}] offset:{(q & 1)*16*K3_ROW + (2*cb + (q >> 1))*64}")
            else: A(f"ds_write_b128 v4, v[{r}:{r+3}] offset:{cb*128 + q*32}")
    A("s_waitcnt lgkmcnt(0)")
    rst(A, cfg, 22)
    A("s_barrier")
    rst(A, cfg, 23)
    R = 128
    for it in range(2):
        for g in range(2):
            for hf in range(2):
                r = R + 16*it + 8*g + 4*hf
                A(f"ds_read_b128 v[{r}:{r+3}], v7 offset:{it*64*K3_ROW + g*K3_RED + hf*16}")
    for it in range(2):
        A(f"s_waitcnt lgkmcnt({4 - 4*it})")
        r = R + 16*it
        for k in range(4):
            A(f"v_pk_add_f32 v[{r+2*k}:{r+2*k+1}], v[{r+2*k}:{r+2*k+1}], v[{r+8+2*k}:{r+8+2*k+1}]")
        for k in range(4):
            A(f"v_cvt_pk_bf16_f32 v{r+k}, v{r+2*k}, v{r+2*k+1}")
        A(f"buffer_store_dwordx4 v[{r}:{r+3}], v5, s[24:27], 0 offen {cfg.get('ost', 'nt').replace('+', ' ')}")
        if it == 0: A(f"v_add_u32 v5, {64*2048}, v5")
    if cfg.get("prof"):
        A("s_waitcnt vmcnt(0)")
        vstamp(A, cfg, 14, PR)
        rst(A, cfg, 24)
        A(f"""
        s_mov_b32 s92, s14
        s_mov_b32 s93, s15
        s_mov_b32 s94, {64*MB}
        s_mov_b32 s95, 0x00020000
        s_lshl_b32 s90, s2, 3
        s_add_u32 s90, s90, s40
        s_lshl_b32 s90, s90, {8 if cfg.get("prof") in ("2", "3", "4", "5") else 7}
        s_add_u32 s90, s90, {WS_PROFV}
        v_lshlrev_b32 v1, 2, v0
        s_mov_b64 exec, {-1 if cfg.get("prof") in ("2", "3", "4", "5") else "0xffffffff"}
        buffer_store_dword v{PR}, v1, s[92:95], s90 offen
        """)
    A("s_endpgm")
    A.label("K2_FB")
    vstamp(A, cfg, 15, PR)
    A("s_mov_b32 s60, 17")
    A("s_mov_b32 s61, 0")
    for i in range(16): A(f"v_mov_b32 v{O+i}, 0")
    for i in range(4): A(f"v_mov_b32 v{L+i}, 0")
    A(f"v_mov_b32 v44, 0xff800000")
    A.label("K2_FBL")
    A(f"""
    buffer_load_dwordx4 v[{K0}:{K0+3}], v3, s[32:35], s70 offen sc1
    buffer_load_dwordx4 v[{K1}:{K1+3}], v3, s[32:35], s70 offen offset:1024 sc1
    buffer_load_dwordx4 v[{V0}:{V0+3}], v3, s[32:35], s70 offen offset:2048 sc1
    buffer_load_dwordx4 v[{V1}:{V1+3}], v3, s[32:35], s70 offen offset:3072 sc1
    s_add_u32 s70, s70, 4096
    s_waitcnt vmcnt(0)
    v_mfma_f32_32x32x16_bf16 v[{SA}:{SA+15}], v[{K0}:{K0+3}], v[{Q}:{Q+3}], 0
    v_mfma_f32_32x32x16_bf16 v[{SA}:{SA+15}], v[{K1}:{K1+3}], v[{Q+4}:{Q+7}], v[{SA}:{SA+15}]
    """)
    A.nop(12)
    A(f"v_max3_f32 v4, v{SA}, v{SA+1}, v{SA+2}")
    for k in range(3, 15, 2):
        A(f"v_max3_f32 v4, v4, v{SA+k}, v{SA+k+1}")
    A(f"v_max3_f32 v4, v4, v{SA+15}, v44")
    A("v_mov_b32 v5, v4")
    A.nop(2)
    A("v_permlane32_swap_b32 v4, v5")
    A("s_nop 0")
    A("v_max_f32 v4, v4, v5")
    A("v_sub_f32 v5, v44, v4")
    A("v_exp_f32 v5, v5")
    A("v_mov_b32 v44, v4")
    for k in range(16):
        A(f"v_sub_f32 v{SA+k}, v{SA+k}, v4")
    for k in range(16):
        A(f"v_exp_f32 v{SA+k}, v{SA+k}")
    for k in range(16):
        A(f"v_mul_f32 v{O+k}, v{O+k}, v5")
    for k in range(4):
        A(f"v_mul_f32 v{L+k}, v{L+k}, v5")
    for k in range(8):
        A(f"v_cvt_pk_bf16_f32 v{P+k}, v{SA+2*k}, v{SA+2*k+1}")
    A("s_nop 1")
    A(f"""
    v_mfma_f32_32x32x16_bf16 v[{O}:{O+15}], v[{V0}:{V0+3}], v[{P}:{P+3}], v[{O}:{O+15}]
    v_mfma_f32_16x16x32_bf16 v[{L}:{L+3}], v[{SEL}:{SEL+3}], v[{P}:{P+3}], v[{L}:{L+3}]
    v_mfma_f32_32x32x16_bf16 v[{O}:{O+15}], v[{V1}:{V1+3}], v[{P+4}:{P+7}], v[{O}:{O+15}]
    v_mfma_f32_16x16x32_bf16 v[{L}:{L+3}], v[{SEL}:{SEL+3}], v[{P+4}:{P+7}], v[{L}:{L+3}]
    s_add_u32 s61, s61, 1
    s_cmp_lt_u32 s61, 64
    """)
    A.nop(12)
    A("s_cbranch_scc1 K2_FBL")
    A("s_branch K2_FIN")
    A.label("KF_END")
    A("s_endpgm")
    if cfg.get("lf") == "1":
        L_ = A.lines
        i0 = L_.index("K1_LOADER:"); i1 = L_.index("K1_LPOST:")
        blk = L_[i0:i1]
        del L_[i0:i1]
        b = L_.index("    s_cbranch_scc1 K1_LOADER")
        assert L_[b-1].strip() == "s_cmp_ge_u32 s40, 4"
        L_[b-1:b+1] = ["    s_cmp_lt_u32 s40, 4", "    s_cbranch_scc1 K1_CONS"] + blk + ["    s_branch K1_LPOST", "K1_CONS:"]
    WU = cfg.get("wu")
    if WU:
        L_ = A.lines
        def after(pred, nth=0, start=0):
            k = [i for i in range(start, len(L_)) if pred(L_[i].strip())]
            return k[nth] + 1
        def stub(pos, name, nxt, skip=False):
            L_[pos:pos] = ([f"    s_branch {name}S"] if skip else []) + [f"{name}:", f"    s_branch {nxt}"] + ([f"{name}S:"] if skip else [])
        kb10 = L_.index("KB_10:")
        stub(after(lambda l: l == "s_endpgm"), "WU_9", "WU_BACK")
        stub(after(lambda l: l == "s_branch K3_EF2"), "WU_8", "WU_9" if WU == "1" else "WU_BACK")
        stub(after(lambda l: l == "s_barrier", 1, kb10), "WU_7", "WU_BACK", skip=True)
        stub(kb10, "WU_6", "WU_7" if WU == "1" else "WU_BACK")
        stub(after(lambda l: l == "s_branch K1_E2L"), "WU_5", "WU_BACK")
        stub(after(lambda l: l.startswith("s_branch K1_TJ_")), "WU_4", "WU_5" if WU == "1" else "WU_BACK")
        p = after(lambda l: l == "s_barrier", 0, L_.index("K1_NOZ:")) - 1
        d = []
        if WU == "1":
            for w, t in ((0, "WU_4"), (1, "WU_6"), (2, "WU_8")): d += [f"    s_cmp_eq_u32 s40, {w}", f"    s_cbranch_scc1 {t}"]
        else:
            d += ["    s_cmp_eq_u32 s40, 9"] + [f"    s_cbranch_scc1 {t}" for t in ("WU_4", "WU_5", "WU_6", "WU_7", "WU_8", "WU_9")]
        L_[p:p] = d + ["WU_BACK:"]
    return K, KG_LDS
```

```python
from common import *

KNAME = NAME + "_kernel"
K1_XS = 32768
K1_NX = 3
K1_WB = K1_XS * K1_NX
K1_SLOT = 12288
K1_NSLOT = 5
K1_WPHI = K1_WB + K1_SLOT * K1_NSLOT
K1_TBUF = 4352
RING = 65536
QST = 65536
TBUF0 = 81920
RED0 = 98304
ZRED = 114688
KVT_L = 116736
Z_L = 120832
KG_LDS = 163840
def WSL(s): return 65536 + 16384 * s if s < 6 else 16384 * (s - 6)
WS_F1 = WS_FLAG
WS_FK = WS_FLAG + 4096
WS_FA = WS_FLAG + 16384
WS_FB = WS_FLAG + 20480
HB0 = 122880
HB1 = 139264
TBUF1 = 147456
BIAS = 80.0
K3_ROW = 272
K3_RED = 128 * K3_ROW
SPIN_MAX = 1 << 16
WS_PROFV = WS_PROF

def cvt_tile(A, dst, src):
    for i in range(8):
        A(f"v_cvt_pk_bf16_f32 v{dst+i}, v{src+2*i}, v{src+2*i+1}")

def bstamp(A, cfg, kind, reg=33):
    if cfg.get("prof") == "2":
        A("s_memtime s[96:97]")
        A(f"s_add_u32 m0, s100, {16*kind}")
        A("s_waitcnt lgkmcnt(0)")
        A(f"v_writelane_b32 v{reg}, s96, m0")
        if kind == 2: A("s_add_u32 s100, s100, 1")

def pbar(A, cfg, wait):
    bstamp(A, cfg, 0)
    if callable(wait): wait()
    elif wait: A(wait)
    bstamp(A, cfg, 1)
    A("s_barrier")
    bstamp(A, cfg, 2)

def vstamp(A, cfg, i, reg):
    if cfg.get("prof") == "1":
        A("s_memtime s[96:97]")
        A("s_memrealtime s[98:99]")
        A("s_waitcnt lgkmcnt(0)")
        A(f"v_writelane_b32 v{reg}, s96, {2*i}")
        A(f"v_writelane_b32 v{reg}, s98, {2*i+1}")

def rst(A, cfg, lane, reg=33):
    if cfg.get("prof") == "5":
        A("s_memrealtime s[96:97]")
        A("s_waitcnt lgkmcnt(0)")
        A(f"v_writelane_b32 v{reg}, s96, {lane}")

def poll_issue(A, vdst, vaddr, srd, soff, n=1):
    if n == 1: A(f"buffer_load_dword v{vdst}, v{vaddr}, s[{srd}:{srd+3}], {soff} offen sc1")
    else:      A(f"buffer_load_dwordx2 v[{vdst}:{vdst+1}], v{vaddr}, s[{srd}:{srd+3}], {soff} offen sc1")

def poll_check(A, vdst, vaddr, srd, soff, tag, expect=1, n=1):
    ok = A.uid(tag + "_OK"); sp = A.uid(tag + "_SP")
    def test():
        if n == 2: A(f"v_and_b32 v{vdst}, v{vdst}, v{vdst+1}")
        A(f"v_cmp_eq_u32 vcc, {expect}, v{vdst}")
        A("s_cmp_eq_u64 vcc, -1")
        A(f"s_cbranch_scc1 {ok}")
    test()
    A("s_mov_b32 s82, 0")
    A.label(sp)
    A("s_sleep 2")
    poll_issue(A, vdst, vaddr, srd, soff, n)
    A("s_add_u32 s82, s82, 1")
    A("s_waitcnt vmcnt(0)")
    test()
    A(f"s_cmp_lt_u32 s82, {SPIN_MAX}")
    A(f"s_cbranch_scc1 {sp}")
    A.label(ok)

def set_flag(A, soff):
    A(f"""
    s_mov_b64 exec, 1
    v_mov_b32 v4, 1
    v_mov_b32 v5, 0
    buffer_store_dword v4, v5, s[32:35], {soff} offen sc1
    s_mov_b64 exec, -1
    """)

class VM:
    def __init__(s, A, init=()): s.A = A; s.q = list(init)
    def op(s, tag, text):
        def f(): s.A(text); s.q.append(tag)
        return f
    def now(s, tag, text): s.op(tag, text)()
    def wait(s, *tags):
        idx = max([k for k, t in enumerate(s.q) if t in tags], default=-1)
        if idx < 0: return
        s.A(f"s_waitcnt vmcnt({len(s.q) - 1 - idx})")
        s.q = s.q[idx+1:]

def setup_p2(A):
    A(f"""
    s_lshl_b32 s70, s42, 18
    s_add_u32 s70, s70, {WS_KVB}
    s_lshl_b32 s47, s41, 1
    s_add_u32 s47, s47, 3
    s_and_b32 s47, s47, 15           ; chunk 3 of the rotated order
    s_lshl_b32 s47, s47, 14
    s_lshl_b32 s38, s40, 11
    s_add_u32 s71, s47, s38          ; offset within the head of this wave's part of the next chunk
    s_add_u32 s72, s38, {3*16384}    ; LDS offset of the same
    s_lshl_b32 s47, s41, 3
    s_add_u32 s47, s47, s40
    s_lshl_b32 s47, s47, 5
    s_add_u32 s47, s47, s42
    s_lshl_b32 s73, s47, 11
    s_add_u32 s73, s73, {WS_OB}      ; oB store offset
    s_lshr_b32 s39, s40, 1
    s_and_b32 s39, s39, 1            ; th
    s_lshl_b32 s47, s41, 3
    s_lshl_b32 s38, s39, 2
    s_add_u32 s47, s47, s38          ; r*8 + th*4
    s_lshl_b32 s47, s47, 5
    s_add_u32 s47, s47, s42
    s_lshl_b32 s74, s47, 11
    s_add_u32 s74, s74, {WS_OA}      ; oA store offset (waves 1, 3)
    s_lshl_b32 s75, s42, 16
    s_lshl_b32 s47, s40, 10
    s_add_u32 s75, s75, s47
    s_add_u32 s75, s75, {WS_KVP}
    s_lshl_b32 s47, s41, 13
    s_add_u32 s79, s75, s47          ; kv partial store offset
    s_lshl_b32 s76, s42, 11
    s_add_u32 s76, s76, {WS_ZP}
    s_lshl_b32 s47, s41, 8
    s_add_u32 s89, s76, s47          ; z partial store offset
    s_lshl_b32 s77, s42, 8
    s_add_u32 s77, s77, {WS_FK}
    s_lshl_b32 s47, s41, 5
    s_add_u32 s68, s77, s47
    s_lshl_b32 s47, s40, 2
    s_add_u32 s68, s68, s47
    s_lshl_b32 s78, s42, 6
    s_add_u32 s78, s78, {WS_F1}      ; F1 line
    s_lshl_b32 s47, s41, 3
    s_add_u32 s67, s78, s47
    s_lshl_b32 s38, s39, 2
    s_add_u32 s67, s67, s38
    s_lshl_b32 s88, s41, 8
    s_lshl_b32 s47, s42, 3
    s_add_u32 s88, s88, s47
    s_add_u32 s88, s88, s38
    s_add_u32 s88, s88, {WS_FA}
    s_lshl_b32 s47, s41, 1
    s_lshr_b32 s38, s40, 2
    s_add_u32 s47, s47, s38
    s_lshl_b32 s69, s47, 9
    s_lshl_b32 s47, s42, 4
    s_add_u32 s69, s69, s47
    s_and_b32 s47, s40, 3
    s_lshl_b32 s47, s47, 2
    s_add_u32 s69, s69, s47
    s_add_u32 s69, s69, {WS_FB}
    """)

def setup_p3(A):
    A(f"""
    s_load_dwordx2 s[4:5], s[0:1], 24
    s_load_dwordx2 s[6:7], s[0:1], 48
    s_load_dwordx2 s[8:9], s[0:1], 64
    s_lshr_b32 s16, s45, 1
    s_lshl_b32 s16, s16, 2
    s_lshr_b32 s47, s46, 3
    s_add_u32 s16, s16, s47          ; T = 4*(e>>1) + (i>>3)
    s_and_b32 s17, s45, 1
    s_lshl_b32 s17, s17, 3
    s_and_b32 s47, s46, 7
    s_add_u32 s17, s17, s47          ; C = 8*(e&1) + (i&7)
    s_lshr_b32 s18, s40, 2           ; grp
    s_and_b32 s19, s40, 3            ; tq
    s_lshl_b32 s47, s16, 2
    s_add_u32 s47, s47, s19          ; tb3
    s_lshl_b32 s28, s47, 16
    s_lshl_b32 s38, s18, 15
    s_add_u32 s28, s28, s38
    s_add_u32 s28, s28, {WS_OA}      ; o stream offset
    s_lshl_b32 s31, s47, 7
    s_add_u32 s31, s31, {WS_G}       ; g offset
    s_lshr_b32 s47, s16, 1
    s_lshl_b32 s36, s47, 8
    s_add_u32 s36, s36, {WS_FA}
    s_lshl_b32 s83, s16, 9
    s_add_u32 s83, s83, {WS_FB}
    s_lshl_b32 s30, s18, 13
    s_lshl_b32 s38, s19, 11
    s_add_u32 s30, s30, s38
    s_mov_b32 s29, 0                 ; wo soffset
    s_waitcnt lgkmcnt(0)
    s_mov_b32 s20, s4
    s_mov_b32 s21, s5
    s_mov_b32 s22, {1024*2048}
    s_mov_b32 s23, 0x00020000
    """)

def gen_kg(A, cfg):
    K = KNAME
    F1POS = int(cfg.get("f1pos", 2))
    ROT = int(cfg.get("rot", 12))
    RSH = int(cfg.get("rsh", 0))
    ROT2 = int(cfg.get("rot2", 0))
    PV = 255
    kernel_begin(A, K)
    A(f"""
    s_cmp_ge_u32 s2, 256
    s_cbranch_scc1 KF_END
    s_load_dwordx2 s[4:5], s[0:1], 0
    s_load_dwordx2 s[6:7], s[0:1], 8
    s_load_dwordx2 s[8:9], s[0:1], 40
    s_load_dwordx2 s[10:11], s[0:1], 16
    s_load_dwordx2 s[12:13], s[0:1], 56
    s_load_dwordx2 s[14:15], s[0:1], 80
    s_load_dwordx2 s[86:87], s[0:1], 72
    v_lshrrev_b32 v1, 6, v0
    v_and_b32 v0, 63, v0
    v_readfirstlane_b32 s40, v1
    s_and_b32 s45, s2, 7
    s_lshr_b32 s46, s2, 3
    """)
    if cfg.get("prof"): A(f"v_mov_b32 v{PV}, 0")
    vstamp(A, cfg, 0, PV)
    if cfg.get("prof") == "4":
        A("s_memrealtime s[96:97]")
        A("s_waitcnt lgkmcnt(0)")
        A(f"v_writelane_b32 v{PV}, s96, 40")
    ES = cfg.get("es") == "1"
    assert not ES or cfg.get("hmap", "f") == "f"
    if cfg.get("hmap", "f") == "f":
        A("""
        s_and_b32 s41, s45, 1
        s_lshl_b32 s41, s41, 2
        s_lshr_b32 s47, s46, 3
        s_add_u32 s41, s41, s47          ; r = 4(e&1) + (i>>3)
        s_lshr_b32 s42, s45, 1
        s_lshl_b32 s42, s42, 3
        s_and_b32 s47, s46, 7
        s_add_u32 s42, s42, s47          ; h = 8(e>>1) + (i&7)
        """)
        if not ES: A("s_waitcnt lgkmcnt(0)")
    elif cfg.get("hmap") == "h":
        A("""
        s_lshr_b32 s41, s45, 1
        s_lshl_b32 s41, s41, 1
        s_lshr_b32 s47, s46, 4
        s_add_u32 s41, s41, s47          ; r = 2(e>>1) + (i>>4)
        s_and_b32 s42, s45, 1
        s_lshl_b32 s42, s42, 4
        s_and_b32 s47, s46, 15
        s_add_u32 s42, s42, s47          ; h = 16(e&1) + (i&15)
        s_waitcnt lgkmcnt(0)
        """)
    else:
        A("""
        s_and_b32 s41, s46, 7            ; r
        s_lshl_b32 s42, s45, 2
        s_lshr_b32 s47, s46, 3
        s_add_u32 s42, s42, s47          ; h = 4e + (i>>3)
        s_waitcnt lgkmcnt(0)
        """)
    def rstamp(lane):
        if cfg.get("prof") == "4":
            A("s_memrealtime s[96:97]")
            A("s_waitcnt lgkmcnt(0)")
            A(f"v_writelane_b32 v{PV}, s96, {lane}")
    if not ES:
        rstamp(41)
        srd(A, 32, 14, WS_USED)
    A("""
    s_cmp_ge_u32 s40, 4
    s_cbranch_scc1 K1_LOADER
    """)
    if ES:
        A("s_waitcnt lgkmcnt(0)")
        rstamp(41)
        srd(A, 32, 14, WS_USED)
    PF3 = cfg.get("pf3")
    PF4 = cfg.get("pf4")
    L2D = int(cfg.get("l2d", 2)) if not (PF3 or PF4) else 0
    TL = int(cfg.get("tl", 4))
    TC = int(cfg.get("tc", 8))
    def touch_addr(w, dst, t0, t1, t2, shift, sa):
        OFFL = int(cfg.get("offl", 0))
        A(f"""
        s_and_b32 s47, s42, 1
        s_lshl_b32 s47, s47, 2
        s_and_b32 s38, s41, 3
        s_add_u32 s47, s47, s38          ; share of the pair's weight lines
        s_lshl_b32 s47, s47, 2
        v_bfe_u32 v{t0}, v0, 2, 1
        v_lshlrev_b32 v{t0}, 5, v{t0}    ; 32 * block
        v_and_b32 v{t2}, 3, v0
        v_add3_u32 v{dst}, v{t2}, v{t0}, s47
        v_mul_u32_u24 v{dst}, 6144, v{dst}
        v_lshrrev_b32 v{t1}, 3, v0       ; segment
        v_lshl_add_u32 v{dst}, v{t1}, 11, v{dst}
        s_lshr_b32 s47, s42, 1
        s_lshl_b32 s47, s47, 7
        v_add_u32 v{dst}, s47, v{dst}
        s_and_b32 {sa}, s42, 7
        """)
        if OFFL:
            A(f"""
            s_lshl_b32 s47, {sa}, 2
            s_add_u32 s47, s47, s38
            s_lshl_b32 s47, s47, 2
            v_add_u32 v{t2}, s47, v{t2}
            v_lshrrev_b32 v{t1}, 5, v{t2}
            v_and_b32 v{t2}, 31, v{t2}
            v_add_u32 v{t2}, v{t2}, v{t0}
            v_mul_u32_u24 v{t2}, 6144, v{t2}
            v_lshl_add_u32 v{t2}, v{t1}, 11, v{t2}
            s_lshr_b32 s47, s42, 1
            s_or_b32 s47, s47, 3
            s_lshl_b32 s47, s47, 7
            v_add_u32 v{t2}, s47, v{t2}
            v_cmp_lt_u32 vcc, 23, v0
            s_nop 1
            v_cndmask_b32 v{dst}, v{dst}, v{t2}, vcc
            s_cmp_lt_u32 {sa}, 6
            s_cselect_b32 s63, 32, 0         ; live lanes of the weight waves
            """)
            if OFFL == 1:
                A(f"""
                s_lshl_b32 s47, {sa}, 4
                s_mul_i32 s38, {sa}, 80
                s_sub_u32 s38, s38, {6*80 - 96}
                s_cmp_lt_u32 {sa}, 6
                s_cselect_b32 s47, s47, s38
                s_cselect_b32 {sa}, 16, 40        ; live lanes of wave 2
                s_cselect_b32 s38, 0, 40         ; live lanes of wave 3
                s_cmp_eq_u32 {w}, 3
                s_cselect_b32 {sa}, s38, {sa}
                s_cselect_b32 s38, 40, 0
                s_add_u32 s47, s47, s38
                """)
            elif OFFL == 2:
                A(f"""
                s_mul_i32 s47, {sa}, 43
                s_cmp_lt_u32 {sa}, 5
                s_cselect_b32 s38, 43, 41
                s_cmp_lt_u32 {sa}, 6
                s_cselect_b32 {sa}, s38, 0
                s_cmp_eq_u32 {w}, 3
                s_cselect_b32 {sa}, 0, {sa}
                """)
            else:
                A(f"""
                s_lshl_b32 s47, {sa}, 5
                s_cmp_eq_u32 {w}, 3
                s_cselect_b32 {sa}, 0, 32
                """)
        else:
            A(f"""
            s_mov_b32 s63, 24
            s_lshl_b32 s47, {sa}, 5
            s_cmp_eq_u32 {w}, 3
            s_cselect_b32 {sa}, 0, 32
            """)
        A(f"""
        s_lshl_b32 s38, s41, 8
        s_add_u32 s47, s47, s38
        v_add_u32 v{t1}, s47, v0
        v_lshlrev_b32 v{t1}, 11, v{t1}   ; x row
        v_bfe_u32 v{t0}, v0, 1, 1
        s_and_b32 s38, s45, 1
        v_xor_b32 v{t0}, s38, v{t0}      ; 0 : ours
        v_and_b32 v{t2}, 3, v0
        s_lshr_b32 s38, s45, 1
        v_xor_b32 v{t2}, s38, v{t2}
        s_cmp_ge_u32 {w}, 2
        s_cselect_b64 vcc, -1, 0
        s_cselect_b32 s47, {sa}, s63      ; live lanes
        s_mov_b32 s38, {(TC - TL) * 32 * 6144}
        s_cselect_b32 s38, {(TC - TL) * 64}, s38
        v_cndmask_b32 v{dst}, v{dst}, v{t1}, vcc
        v_cndmask_b32 v{t0}, v{t0}, v{t2}, vcc
        v_cmp_eq_u32 vcc, 0, v{t0}
        """)
        if shift:
            A(f"""
            v_mov_b32 v{t1}, s38
            s_nop 0
            v_cndmask_b32 v{t1}, 0, v{t1}, vcc
            v_add_u32 v{dst}, v{dst}, v{t1}
            v_cmp_gt_u32 vcc, s47, v0
            v_mov_b32 v{t1}, 0x7ffffff0
            s_nop 0
            v_cndmask_b32 v{dst}, v{t1}, v{dst}, vcc
            """)
        else:
            A(f"""
            v_cmp_gt_u32 s[62:63], s47, v0
            v_mov_b32 v{t1}, 0x7ffffff0
            s_and_b64 vcc, vcc, s[62:63]
            v_cndmask_b32 v{dst+2}, v{t1}, v{dst}, vcc
            v_cndmask_b32 v{dst}, v{t1}, v{dst}, s[62:63]
            """)
        A(f"""
        s_cmp_eq_u32 {w}, 0
        s_cselect_b32 s92, s6, s8
        s_cselect_b32 s93, s7, s9
        s_cmp_ge_u32 {w}, 2
        s_cselect_b32 s92, s4, s92
        s_cselect_b32 s93, s5, s93
        s_mov_b32 s94, {1024*6144}
        s_cselect_b32 s94, {2048*2048}, s94
        s_mov_b32 s95, 0x00020000
        """)
    rng = lambda t: range(*map(int, t.split(":"))) if t else range(0)
    PFA_ = rng(cfg.get("pfa", f"0:{4+L2D}")); PFB_ = rng(cfg.get("pfb", ""))
    PFA, PFD = 252, 253
    def l2pf(step=None):
        if step is None:
            A("s_and_b32 s55, s59, 31")
        else:
            A(f"s_add_u32 s55, s63, {step}")
            A("s_and_b32 s55, s55, 31")
        A(f"s_mul_i32 s55, s55, {32*6144}")
        A(f"buffer_load_dword v{PFD}, v{PFA}, s[92:95], s55 offen")
        if step is None: A("s_add_u32 s59, s59, 1")
    PF2 = cfg.get("pf2")
    def touch():
        return [f"buffer_load_dword v{PFD}, v{PFA}, s[92:95], s55 offen", "s_add_u32 s55, s55, s59", "s_cmp_eq_u32 s55, s56",
                "s_cselect_b32 s55, 0, s55", "s_xor_b32 s59, s59, s57"]
    if PF2:
        XW = int(cfg.get("pfx", 1))
        HM = cfg.get("hmap", "f") == "h"
        RB = 1 if HM else 2
        HB = 4 if HM else 3
        R20 = 0 if cfg.get("r2") == "early0" else 4
        A(f"""
        s_and_b32 s47, s42, 1
        s_lshl_b32 s47, s47, {RB}
        s_and_b32 s38, s41, {(1 << RB) - 1}
        s_add_u32 s47, s47, s38          ; share of the weight lines
        s_lshr_b32 s38, s42, 1
        s_lshl_b32 s47, s47, {4 - RB}
        s_lshl_b32 s38, s38, 7
        v_and_b32 v4, {(1 << (4 - RB)) - 1}, v0
        v_add_u32 v4, s47, v4
        v_mul_u32_u24 v4, 6144, v4
        v_lshrrev_b32 v5, {4 - RB}, v0
        v_lshl_add_u32 v4, v5, 11, v4    ; + segment * 2048
        v_add_u32 v4, s38, v4
        s_lshl_b32 s47, s41, 8
        s_and_b32 s38, s42, {(1 << HB) - 1}
        s_lshl_b32 s38, s38, {8 - HB}
        s_add_u32 s47, s47, s38
        v_add_u32 v6, s47, v0
        v_lshlrev_b32 v6, 11, v6
        s_cmp_eq_u32 s40, 0
        s_cselect_b64 vcc, -1, 0
        s_cselect_b32 s38, {1 << (7 - HB)}, {3 << (4 - RB)}
        v_mov_b32 v5, 0x7ffffff0
        v_cndmask_b32 v4, v4, v6, vcc
        v_cmp_gt_u32 vcc, s38, v0
        s_cmp_eq_u32 s40, 2
        s_cselect_b32 s92, s6, s8
        s_cselect_b32 s93, s7, s9
        s_cmp_ge_u32 s40, 2
        s_cselect_b32 s62, {1024*6144}, 0
        v_cndmask_b32 v{PFA}, v5, v4, vcc
        s_lshr_b32 s63, s45, {RSH}
        s_mul_i32 s63, s63, {ROT}
        s_and_b32 s47, s45, 1
        s_mul_i32 s47, s47, {ROT2}
        s_add_u32 s63, s63, s47
        s_add_u32 s63, s63, {R20}
        s_and_b32 s55, s63, 31
        s_mul_i32 s55, s55, {32*6144}
        s_mov_b32 s59, {32*6144}
        s_mov_b32 s57, 0
        s_mov_b32 s56, {1024*6144}
        s_cmp_lg_u32 s40, 0
        s_cbranch_scc1 K1_PFW
        s_mov_b32 s92, s4
        s_mov_b32 s93, s5
        s_mov_b32 s62, {2048*2048 if XW else 0}
        s_lshr_b32 s55, s63, 1
        s_and_b32 s55, s55, 15
        s_lshl_b32 s55, s55, 7
        s_mov_b32 s59, {1 << (18 - HB)}
        s_mov_b32 s57, {(1 << (18 - HB)) ^ ((128 - (1 << (18 - HB))) & 0xffffffff)}
        s_mov_b32 s56, 2048
        K1_PFW:
        s_mov_b32 s94, s62
        s_mov_b32 s95, 0x00020000
        """)
        if cfg.get("r2") == "early0":
            for t in range(int(cfg.get("e0n", 4))):
                for l in touch(): A(l)
        if cfg.get("r2") == "early":
            for t in range(L2D):
                for l in touch(): A(l)
    elif L2D:
        A(f"""
        s_and_b32 s47, s42, 1
        s_lshl_b32 s47, s47, 2
        s_and_b32 s38, s41, 3
        s_add_u32 s47, s47, s38
        s_lshr_b32 s38, s42, 1
        
        s_lshl_b32 s47, s47, 2
        s_lshl_b32 s38, s38, 7
        v_and_b32 v4, 3, v0
        v_add_u32 v4, s47, v4
        v_mul_u32_u24 v4, 6144, v4
        v_lshrrev_b32 v5, 2, v0
        v_lshl_add_u32 v4, v5, 11, v4    ; + segment * 2048
        v_add_u32 v4, s38, v4
        v_mov_b32 v5, 0x7ffffff0
        v_cmp_gt_u32 vcc, 12, v0
        s_cmp_eq_u32 s40, 2
        s_cselect_b32 s92, s6, s8
        s_cselect_b32 s93, s7, s9
        s_cmp_ge_u32 s40, 2
        s_cselect_b32 s62, {1024*6144}, 0
        s_mov_b32 s94, s62
        s_mov_b32 s95, 0x00020000
        v_cndmask_b32 v{PFA}, v5, v4, vcc
        s_lshr_b32 s63, s45, {RSH}
        s_mul_i32 s63, s63, {ROT}
        s_add_u32 s59, s63, {4 + L2D}
        """)
        for t in PFA_: l2pf(t)
    if PF4:
        assert ROT == 0 and ROT2 == 0
        touch_addr("s40", PFA, 4, 5, 6, False, "s62")
        A(f"""
        s_cmp_ge_u32 s40, 2
        s_mov_b32 s59, {64*6144}
        s_cselect_b32 s59, 128, s59
        s_mov_b32 s55, 0
        """)
        for t in range(int(cfg.get("r0", 0))):
            A(f"buffer_load_dword v{PFD}, v{PFA}, s[92:95], s55 offen")
            A("s_add_u32 s55, s55, s59")
        A(f"""
        s_cmp_ge_u32 s40, 2
        s_mov_b32 s55, {TL*32*6144}
        s_cselect_b32 s55, {TL*64}, s55
        """)
    rstamp(42)
    setup_p2(A)
    rstamp(43)
    A(f"""
    s_cmp_lg_u32 s40, 0
    s_cbranch_scc1 K1_NOZ
    v_lshlrev_b32 v4, 2, v0
    v_lshrrev_b32 v6, 2, v0
    v_lshlrev_b32 v6, 9, v6
    v_and_b32 v7, 3, v0
    v_lshl_add_u32 v6, v7, 2, v6
    v_mov_b32 v5, 0
    s_mov_b64 exec, 3
    buffer_store_dword v5, v4, s[32:35], s67 offen sc1
    buffer_store_dword v5, v4, s[32:35], s88 offen sc1
    s_mov_b64 exec, 0xff
    buffer_store_dword v5, v4, s[32:35], s68 offen sc1
    buffer_store_dword v5, v6, s[32:35], s69 offen sc1
    s_mov_b32 s36, s86
    s_mov_b32 s37, s87
    s_mov_b32 s38, 256
    s_mov_b32 s39, 0x00020000
    """)
    LATE = cfg.get("late")
    if not LATE:
        A("""
        s_waitcnt vmcnt(0)
        s_mov_b64 exec, 1
        v_mov_b32 v6, 1
        buffer_atomic_add v6, v5, s[36:39], 0 offen
        s_mov_b64 exec, -1
        """)
    else:
        A("s_mov_b64 exec, -1")
    A("""
    K1_NOZ:
    """)
    rstamp(44)
    setup_p3(A)
    rstamp(45)
    TW = cfg.get("tw")
    if TW:
        assert PF4
        A(f"""
        s_cmp_eq_u32 s40, 1
        s_cbranch_scc0 K1_TW2
        v_lshlrev_b32 v4, 12, v0
        s_lshl_b32 s47, s41, 15
        s_add_u32 s47, s47, s70
        s_mov_b64 exec, 0xff
        buffer_load_dword v{PFD}, v4, s[32:35], s47 offen
        s_mov_b64 exec, 1
        buffer_load_dword v{PFD}, v4, s[32:35], s79 offen
        buffer_load_dword v{PFD}, v4, s[32:35], s89 offen
        s_mov_b64 exec, -1
        K1_TW2:
        s_cmp_eq_u32 s40, 2
        s_cbranch_scc0 K1_TW3
        v_lshlrev_b32 v4, 16, v0
        s_sub_u32 s47, s73, {2*65536}
        s_mov_b64 exec, 0xff
        buffer_load_dword v{PFD}, v4, s[32:35], s47 offen
        s_sub_u32 s47, s47, {WS_OB - WS_OA}
        buffer_load_dword v{PFD}, v4, s[32:35], s47 offen
        s_mov_b64 exec, -1
        K1_TW3:
        """)
        if TW == "1":
            A(f"""
            s_cmp_eq_u32 s40, 3
            s_cbranch_scc0 K1_TW4
            s_mov_b32 s96, s8
            s_mov_b32 s97, s9
            s_mov_b32 s98, 4194304
            s_mov_b32 s99, 0x00020000
            v_lshlrev_b32 v4, 12, v0
            s_lshl_b32 s47, s16, 18
            s_lshl_b32 s38, s17, 7
            s_add_u32 s47, s47, s38
            buffer_load_dword v{PFD}, v4, s[96:99], s47 offen
            K1_TW4:
            """)
    XA, WA = 4, 20
    XB, WB = 32, 48
    ACC = 60
    acc = lambda sg, tt: ACC + (sg * 4 + tt) * 16
    A(f"""
    s_lshr_b32 s50, s40, 1           ; th
    s_and_b32 s51, s40, 1            ; type
    v_and_b32 v4, 31, v0
    v_lshrrev_b32 v5, 5, v0          ; hh
    v_bfe_u32 v6, v0, 2, 2           ; f = (l>>2)&3
    v_bfe_u32 v7, v0, 1, 3           ; (row>>1)&7
    v_xor_b32 v7, v5, v7
    v_lshlrev_b32 v7, 4, v7
    v_lshl_add_u32 v1, v4, 7, v7
    s_lshl_b32 s47, s50, 14
    v_add_u32 v1, s47, v1            ; vxa0
    v_xor_b32 v2, 32, v1             ; vxa1
    v_lshl_add_u32 v7, v5, 3, v6
    v_lshlrev_b32 v7, 6, v7          ; *64
    v_bfe_u32 v8, v0, 4, 1           ; g&1
    v_lshl_add_u32 v7, v8, 5, v7
    v_and_b32 v9, 3, v0
    v_lshl_add_u32 v7, v9, 3, v7
    s_lshl_b32 s47, s51, 11
    s_add_u32 s47, s47, {K1_WB}
    v_add_u32 v3, s47, v7            ; vwa
    """)
    M16 = cfg.get("m16")
    if M16:
        assert cfg.get("e8") and cfg.get("spread")
        A(f"""
        v_and_b32 v4, 15, v0             ; i
        v_lshrrev_b32 v5, 4, v0          ; q4
        v_lshrrev_b32 v6, 1, v4
        v_xor_b32 v6, v5, v6
        v_lshlrev_b32 v6, 4, v6
        v_lshl_add_u32 v1, v4, 7, v6
        s_lshl_b32 s38, s50, 14
        v_add_u32 v1, s38, v1
        v_lshrrev_b32 v6, 2, v4
        v_lshl_add_u32 v6, v5, 3, v6     ; k row 8 q4 + (i >> 2)
        v_lshlrev_b32 v6, 6, v6
        v_and_b32 v7, 1, v5
        v_lshl_add_u32 v6, v7, 5, v6
        v_and_b32 v7, 3, v0
        v_lshl_add_u32 v6, v7, 3, v6
        v_add_u32 v3, s47, v6            ; W columns 0..15
        v_xor_b32 v2, 32, v3             ; W columns 16..31
        """)
    A(f"""
    s_mov_b32 s48, {1 if cfg.get("spread") else 0}
    s_mov_b32 s49, {K1_SLOT}
    s_mov_b32 s65, 0
    s_mov_b32 s52, {K1_SLOT}
    s_mov_b32 s53, {-(K1_NSLOT-1)*K1_SLOT & 0xffffffff}
    s_mov_b32 s54, 32
    s_mov_b32 s64, 0                 ; x slot
    s_mov_b32 s66, {-(K1_NX-1)*K1_XS & 0xffffffff}
    """)
    for i in range(192):
        A(f"v_mov_b32 v{ACC+i}, 0")
    if PF2 and cfg.get("r2") != "early":
        for t in range(L2D + (4 - int(cfg.get("e0n", 4)) if cfg.get("r2") == "early0" else 0)):
            for l in touch(): A(l)
    rstamp(46)
    A("s_barrier")
    vstamp(A, cfg, 1, PV)
    if cfg.get("prof") == "4":
        A("s_memrealtime s[96:97]")
        A("s_waitcnt lgkmcnt(0)")
        A(f"v_writelane_b32 v{PV}, s96, 0")
    if cfg.get("prof") == "3":
        A("s_memtime s[96:97]")
        A("s_mov_b32 s100, 0")
        A("s_waitcnt lgkmcnt(0)")
        A("s_mov_b32 s101, s96")
    if L2D:
        for t in PFB_: l2pf(t)
    def reads(X, W, s):
        r = []
        xa = 1 if s == 0 else 2
        for tt in range(4):
            r.append(f"ds_read_b128 v[{X+4*tt}:{X+4*tt+3}], v{xa} offset:{tt*4096}")
        for sg in range(3):
            for sec in range(2):
                r.append(f"ds_read_b64_tr_b16 v[{W+4*sg+2*sec}:{W+4*sg+2*sec+1}], v3 offset:{sg*4096 + s*1024 + sec*256}")
        return [r[4], r[5], r[0], r[1], r[2], r[3], r[6], r[7], r[8], r[9]]
    def mfmas(X, W):
        m = []
        for sg in range(3):
            for tt in range(4):
                a = acc(sg, tt)
                w = f"v[{W+4*sg}:{W+4*sg+3}]"; x = f"v[{X+4*tt}:{X+4*tt+3}]"
                if cfg.get("exp16"):
                    m.append(f"v_mfma_f32_16x16x32_bf16 v[{a}:{a+3}], {w}, {x}, v[{a}:{a+3}]\nv_mfma_f32_16x16x32_bf16 v[{a+8}:{a+11}], {x}, {w}, v[{a+8}:{a+11}]")
                elif sg < 2: m.append(f"v_mfma_f32_32x32x16_bf16 v[{a}:{a+15}], {w}, {x}, v[{a}:{a+15}]")
                else:      m.append(f"v_mfma_f32_32x32x16_bf16 v[{a}:{a+15}], {x}, {w}, v[{a}:{a+15}]")
        return m
    X16, W16 = 4, 36
    def acc16(g, c):
        sg, ch = c >> 1, c & 1
        return acc(sg, g >> 1) + ((g & 1) * 8 + ch * 4 if sg < 2 else ch * 8 + (g & 1) * 4)
    def mf16(g, c):
        a = acc16(g, c); w = f"v[{W16+4*c}:{W16+4*c+3}]"; x = f"v[{X16+4*g}:{X16+4*g+3}]"
        return f"v_mfma_f32_16x16x32_bf16 v[{a}:{a+3}], " + (f"{w}, {x}" if c < 4 else f"{x}, {w}") + f", v[{a}:{a+3}]"
    rx16 = lambda g: f"ds_read_b128 v[{X16+4*g}:{X16+4*g+3}], v1 offset:{g*2048}"
    rw16 = lambda c, sec: f"ds_read_b64_tr_b16 v[{W16+4*c+2*sec}:{W16+4*c+2*sec+1}], v{3 - (c & 1)} offset:{(c >> 1)*4096 + sec*256}"
    H1R = {23: [rw16(5, 0), rw16(5, 1)]}
    for c in range(0, 5):
        H1R[4*c+3] = [rw16(c, 0)]; H1R[4*c+4] = [rw16(c, 1)]
    XAP = [int(x) for x in cfg.get("m16a", "0,1,2,4").split(",")]
    for g, k in enumerate(XAP): H1R[k] = [rx16(g)] + H1R.get(k, [])
    H1L = [l for k in range(24) for l in H1R.get(k, [])]
    H1N = lambda l: len(H1L) - 1 - H1L.index(l)
    if M16:
        for l in H1L: A(l)
    else:
        for l in reads(XA, WA, 0): A(l)
    if LATE:
        A("""
        s_cmp_lg_u32 s40, 0
        s_cbranch_scc1 K1_NOARR
        s_mov_b32 s96, s86
        s_mov_b32 s97, s87
        s_mov_b32 s98, 256
        s_mov_b32 s99, 0x00020000
        v_mov_b32 v32, 0
        v_mov_b32 v33, 1
        s_waitcnt vmcnt(0)
        s_mov_b64 exec, 1
        buffer_atomic_add v33, v32, s[96:99], 0 offen
        s_mov_b64 exec, -1
        K1_NOARR:
        """)
    if PF4:
        for t in range((TC - TL) // 2):
            A(f"buffer_load_dword v{PFD}, v{PFA+2}, s[92:95], s55 offen")
            A("s_add_u32 s55, s55, s59")
    A.label("K1_CLOOP")
    if M16:
        XP = int(cfg.get("m16x", 0))
        XS_ = int(cfg.get("m16s", 1))
        XBP = [XP + XS_ * g for g in range(4)]
        fr0 = [k for k in range(24) if k not in XBP and k % 4 != 3]
        ex0 = {[k for k in fr0 if k > XBP[-1]][0]: ["v_xad_u32 v1, v1, 64, s65"]}
        f2 = [k for k in fr0 if k not in ex0]
        ex0[f2[1]] = ["v_add_u32 v3, s49, v3"]; ex0[f2[3]] = ["v_add_u32 v2, s49, v2"]
        sal = ["s_sub_u32 s54, s54, 1", "s_and_b32 s63, s54, 1", "s_add_u32 s64, s64, s63",
               f"s_cmp_eq_u32 s64, {K1_NX}", f"s_cselect_b32 s65, s66, {K1_XS}", "s_cselect_b32 s64, 0, s64",
               "s_mul_i32 s65, s65, s63", "s_add_u32 s48, s48, 1", f"s_cmp_eq_u32 s48, {K1_NSLOT}",
               "s_cselect_b32 s49, s53, s52", "s_cselect_b32 s48, 0, s48", "s_cmp_lg_u32 s54, 0"]
        free = [k for k in range(1, 23) if len(H1R.get(k, [])) == 0]
        ex1 = {k: [] for k in free}
        for n, l in enumerate(sal): ex1[free[n * len(free) // len(sal)]].append(l)
        for k in range(24):
            nb = len([x for x in XBP if x < k])
            if k % 4 == 0:
                c = k // 4
                n = H1N(rw16(c, 1))
                if c == 0: n = min(n, H1N(rx16(0)))
                A(f"s_waitcnt lgkmcnt({min(15, n + nb)})")
                done = n
            if k in (1, 2, 3) and H1N(rx16(k)) < done:
                done = H1N(rx16(k)); A(f"s_waitcnt lgkmcnt({min(15, done + nb)})")
            A(mf16(k % 4, k // 4))
            if k in XBP: A(rx16(4 + XBP.index(k)))
            for l in ex0.get(k, []): A(l)
        for k in range(24):
            if k < 4 and (k == 0 or XS_ > 1): A(f"s_waitcnt lgkmcnt({(3 - k if XS_ > 1 else 0) + len([l for j in range(k) for l in H1R.get(j, [])])})")
            A(mf16(4 + k % 4, k // 4))
            for l in H1R.get(k, []) + ex1.get(k, []): A(l)
    else:
        A("s_waitcnt lgkmcnt(0)")
    m = mfmas(XA, WA); r = reads(XB, WB, 1)
    extra0 = {4: ["s_and_b32 s63, s54, 1", "s_add_u32 s64, s64, s63", f"s_cmp_eq_u32 s64, {K1_NX}",
                  f"s_cselect_b32 s65, s66, {K1_XS}", "s_cselect_b32 s64, 0, s64", "s_mul_i32 s65, s65, s63"],
              6: ["s_add_u32 s48, s48, 1", f"s_cmp_eq_u32 s48, {K1_NSLOT}", "s_cselect_b32 s49, s53, s52", "s_cselect_b32 s48, 0, s48"],
              7: ["v_xor_b32 v1, 64, v1", "v_xor_b32 v2, 64, v2"], 8: ["v_add_u32 v1, s65, v1", "v_add_u32 v2, s65, v2"], 9: ["v_add_u32 v3, s49, v3"]}
    SPREAD = cfg.get("spread")
    extra1 = {}
    if SPREAD:
        extra0 = {6: ["v_xad_u32 v1, v1, 64, s65"], 8: ["v_xad_u32 v2, v2, 64, s65"], 10: ["v_add_u32 v3, s49, v3"]}
        extra1 = {5: ["s_sub_u32 s54, s54, 1", "s_and_b32 s63, s54, 1", "s_add_u32 s64, s64, s63"],
                  6: [f"s_cmp_eq_u32 s64, {K1_NX}", f"s_cselect_b32 s65, s66, {K1_XS}", "s_cselect_b32 s64, 0, s64"],
                  7: ["s_mul_i32 s65, s65, s63", "s_add_u32 s48, s48, 1", f"s_cmp_eq_u32 s48, {K1_NSLOT}"],
                  8: ["s_cselect_b32 s49, s53, s52", "s_cselect_b32 s48, 0, s48"],
                  11: ["s_cmp_lg_u32 s54, 0"]}
        if PF2:
            t_ = touch()
            th_, tk_ = map(int, cfg.get("tpos", "1:9").split(":"))
            ex_ = extra1 if th_ else extra0
            after_dec = th_ == 1 and tk_ >= 5
            cmp_ = f"s_cmp_ge_u32 s54, {4 + L2D}" if after_dec else f"s_cmp_gt_u32 s54, {4 + L2D}"
            def addx(d, k, ls, front=False):
                d[k] = (ls + d.get(k, [])) if front else (d.get(k, []) + ls)
            if th_ == 1 and tk_ == 9:
                extra1[9] = [cmp_, "s_cselect_b32 s94, s62, 0", t_[0]]
                extra1[10] = t_[1:4]
                extra1[11] = [t_[4], "s_cmp_lg_u32 s54, 0"]
            else:
                assert not (th_ == 1 and 3 < tk_ < 9)
                addx(ex_, tk_, [cmp_, "s_cselect_b32 s94, s62, 0", t_[0]])
                addx(ex_, tk_ + 1, [t_[1], t_[2], t_[3], t_[4]])
        elif L2D:
            extra1[9] = [f"s_cmp_ge_u32 s54, {4 + L2D}", "s_cselect_b32 s94, s62, 0", "s_and_b32 s55, s59, 31"]
            extra1[10] = [f"s_mul_i32 s55, s55, {32*6144}", "s_add_u32 s59, s59, 1", f"buffer_load_dword v{PFD}, v{PFA}, s[92:95], s55 offen"]
    for k in range(0 if M16 else 12):
        A(m[k])
        if k < 5:
            A(r[2*k]); A(r[2*k+1])
        for l in extra0.get(k, []): A(l)
        if L2D and k == 10 and not SPREAD:
            assert not PF2
            A(f"s_cmp_gt_u32 s54, {4 + L2D}")
            A("s_cselect_b32 s94, s62, 0")
            l2pf()
    if not M16: A("s_waitcnt lgkmcnt(0)")
    m = mfmas(XB, WB); r = reads(XA, WA, 0)
    for k in range(0 if M16 else 12):
        A(m[k])
        if k < 5:
            A(r[2*k]); A(r[2*k+1])
        for l in extra1.get(k, []): A(l)
        if k == 8 and not SPREAD:
            A("s_sub_u32 s54, s54, 1"); A("s_cmp_lg_u32 s54, 0")
    if cfg.get("prof") == "3":
        A("s_memtime s[96:97]")
        A("s_barrier")
        A("s_memtime s[98:99]")
        A("s_waitcnt lgkmcnt(0)")
        A("s_sub_u32 s98, s98, s96")
        A("s_add_u32 s100, s100, s98")
        A("s_cmp_lg_u32 s54, 0")
    elif cfg.get("prof") == "4":
        A("s_barrier")
        A("s_memrealtime s[96:97]")
        A("s_sub_u32 m0, 32, s54")
        A("s_waitcnt lgkmcnt(0)")
        A(f"v_writelane_b32 v{PV}, s96, m0")
        A("s_cmp_lg_u32 s54, 0")
    else:
        A("s_barrier")
    A("s_cbranch_scc1 K1_CLOOP")
    A("s_waitcnt lgkmcnt(0)")
    if cfg.get("prof") == "3":
        A("s_memtime s[96:97]")
        A("s_waitcnt lgkmcnt(0)")
        A("s_sub_u32 s96, s96, s101")
        A(f"v_writelane_b32 v{PV}, s100, 0")
        A(f"v_writelane_b32 v{PV}, s96, 2")
    vstamp(A, cfg, 2, PV)
    E8 = cfg.get("e8")
    T1 = 4
    VB = acc(1, 0)
    QL = E8 and cfg.get("qlate", "1") == "1"
    V = acc(0, 2) if QL else acc(1, 0)
    Q = V + 16 if QL else acc(1, 0) + 32
    NT8 = 2 if E8 else 4
    if M16:
        A("""
        v_and_b32 v42, 15, v0            ; i
        v_lshrrev_b32 v43, 4, v0
        v_lshlrev_b32 v1, 4, v42
        v_lshl_add_u32 v40, v43, 9, v1   ; Q, V images : row * 512 + i * 16
        v_and_b32 v41, 1, v43
        v_lshl_add_u32 v41, v41, 10, v1
        v_lshrrev_b32 v43, 1, v43
        v_lshl_add_u32 v41, v43, 9, v41  ; swapped order : (row & 1) * 1024 + (row >> 1) * 512 + i * 16
        v_lshrrev_b32 v42, 3, v42
        v_lshl_add_u32 v42, v42, 7, v40  ; K image : tokens 8..15 and 16..23 change places
        """)
    A(f"""
    v_lshlrev_b32 v1, 4, v0          ; lane*16
    s_cmp_lg_u32 s51, 0
    s_cbranch_scc1 K1_E1T1
    s_mov_b32 s56, {fhex(32**-0.5 * LOG2E)}
    s_mov_b32 s57, s56
    s_lshl_b32 s47, s50, 13
    s_add_u32 s47, s47, {QST}
    v_add_u32 v44, s47, v{40 if M16 else 1}           ; Q staging address
    """)
    O2 = 256 if M16 else 1024
    def swap_tile(d):
        if M16:
            for k in range(4): A(f"v_permlane16_swap_b32 v{d+k}, v{d+4+k}")
    def handoff(srcs):
        for k, src in enumerate(srcs):
            cvt_tile(A, T1 + 8*k, src)
            A(f"ds_write_b128 v45, v[{T1+8*k}:{T1+8*k+3}] offset:{k*2048}")
            A(f"ds_write_b128 v45, v[{T1+8*k+4}:{T1+8*k+7}] offset:{k*2048+O2}")
        A("s_waitcnt lgkmcnt(0)")
        A("s_barrier")
    if E8:
        A(f"""
        s_lshl_b32 s47, s50, 13
        s_add_u32 s47, s47, {HB0}
        v_add_u32 v45, s47, v{41 if M16 else 1}
        """)
        A.nop(2)
        handoff([acc(0, 2), acc(0, 3), acc(2, 2), acc(2, 3)])
    else:
        A.nop(6)
    def bq_stage(tts, sc, adr, inplace):
        for tt in tts:
            for k in range(8):
                a = acc(1, tt) + 2*k
                A(f"v_pk_mul_f32 v[{a}:{a+1}], v[{a}:{a+1}], s[{sc}:{sc+1}]")
            d = acc(1, tt) if inplace else T1 + 8*tt
            cvt_tile(A, d, acc(1, tt))
            A(f"ds_write_b128 v{adr}, v[{d}:{d+3}] offset:{tt*2048}")
            A(f"ds_write_b128 v{adr}, v[{d+4}:{d+7}] offset:{tt*2048+O2}")
    if QL:
        A("""
        v_mov_b32 v26, v44
        s_mov_b32 s64, s56
        s_mov_b32 s65, s56
        """)
    else:
        bq_stage(range(4), 56, 44, False)
    for tt in range(NT8):
        cvt_tile(A, V + 8*tt, acc(2, tt))
        swap_tile(V + 8*tt)
    A("s_branch K1_E2J")
    A.label("K1_E1T1")
    A(f"""
    s_lshl_b32 s58, s41, 1
    s_add_u32 s58, s58, s50
    s_lshl_b32 s58, s58, 14
    s_add_u32 s58, s58, s70
    s_lshl_b32 s47, s50, 14
    v_add_u32 v44, s47, v{42 if M16 else 1}
    v_add_u32 v43, s47, v{40 if M16 else 1}
    """)
    if E8:
        A(f"""
        s_lshl_b32 s47, s50, 12
        s_add_u32 s47, s47, {HB1}
        v_add_u32 v45, s47, v{41 if M16 else 1}
        """)
        handoff([acc(0, 2), acc(0, 3)])
    else:
        A.nop(10)
    KA, K2 = (42, 128) if M16 else (1, 1024)
    VA = 40 if M16 else 1
    for tt in range(4):
        cvt_tile(A, T1 + 8*tt, acc(1, tt))
        A(f"buffer_store_dwordx4 v[{T1+8*tt}:{T1+8*tt+3}], v{KA}, s[32:35], s58 offen sc1")
        A(f"buffer_store_dwordx4 v[{T1+8*tt+4}:{T1+8*tt+7}], v{KA}, s[32:35], s58 offen offset:{K2} sc1")
        A("s_add_u32 s58, s58, 4096")
    A(f"s_sub_u32 s58, s58, {4*4096 - 2048}")
    for tt in range(4):
        cvt_tile(A, VB + 8*tt, acc(2, tt))
        A(f"buffer_store_dwordx4 v[{VB+8*tt}:{VB+8*tt+3}], v{VA}, s[32:35], s58 offen sc1")
        A(f"buffer_store_dwordx4 v[{VB+8*tt+4}:{VB+8*tt+7}], v{VA}, s[32:35], s58 offen offset:{O2} sc1")
        A("s_add_u32 s58, s58, 4096")
    for tt in range(4):
        A(f"ds_write_b128 v44, v[{T1+8*tt}:{T1+8*tt+3}] offset:{tt*4096}")
        A(f"ds_write_b128 v44, v[{T1+8*tt+4}:{T1+8*tt+7}] offset:{tt*4096+K2}")
        A(f"ds_write_b128 v43, v[{VB+8*tt}:{VB+8*tt+3}] offset:{tt*4096+2048}")
        A(f"ds_write_b128 v43, v[{VB+8*tt+4}:{VB+8*tt+7}] offset:{tt*4096+2048+O2}")
    A.label("K1_E2J")
    WP = 36
    krow = (lambda s, sec: 16*sec + 4*s) if M16 else (lambda s, sec: 16*s + 8*sec)
    def feat_setup(tb):
        A(f"""
        v_lshrrev_b32 v5, 5, v0          ; hh
        v_bfe_u32 v6, v0, 2, 2           ; i>>2
        v_lshl_add_u32 v6, v5, {3 if M16 else 2}, v6     ; 4hh + (i>>2)
        v_bfe_u32 v7, v0, 4, 1
        v_lshlrev_b32 v7, 5, v7
        v_and_b32 v8, 3, v0
        v_lshl_add_u32 v7, v8, 3, v7     ; (g&1)*32 + (i&3)*8
        v_lshl_add_u32 v2, v6, 6, v7
        v_add_u32 v2, {K1_WPHI}, v2
        """)
        for s in range(2):
            for sec in range(2):
                A(f"ds_read_b64_tr_b16 v[{WP+4*s+2*sec}:{WP+4*s+2*sec+1}], v2 offset:{krow(s, sec)*64}")
        A(f"""
        s_mul_i32 s47, s50, {K1_TBUF}
        s_add_u32 s47, s47, {tb}
        v_mul_u32_u24 v25, 136, v6
        v_add_u32 v25, v25, v7
        v_add_u32 v25, s47, v25
        v_and_b32 v8, 31, v0
        v_mul_u32_u24 v24, 136, v8
        v_lshl_add_u32 v24, v5, 3, v24
        v_add_u32 v24, s47, v24
        v_bfe_u32 v8, v0, 2, 1
        v_bfe_u32 v9, v0, 4, 1
        v_cmp_eq_u32 vcc, v8, v9
        v_mov_b32 v9, 0x3f803f80
        v_mov_b32 v8, 0
        v_cndmask_b32 v20, v8, v9, vcc
        v_cndmask_b32 v21, v8, v9, vcc
        v_cndmask_b32 v22, v8, v9, vcc
        v_cndmask_b32 v23, v8, v9, vcc
        """)
    feat_setup(TBUF0)
    for tt in range(NT8):
        cvt_tile(A, Q + 8*tt, acc(0, tt))
        swap_tile(Q + 8*tt)
    if M16: A("s_nop 0")
    if E8: A.label("K1_E2L")
    A("s_waitcnt lgkmcnt(0)")
    for tt in range(NT8):
        a = acc(0, tt)
        A(f"v_mfma_f32_32x32x16_bf16 v[{a}:{a+15}], v[{WP}:{WP+3}], v[{Q+8*tt}:{Q+8*tt+3}], 0")
    for tt in range(NT8):
        a = acc(0, tt)
        A(f"v_mfma_f32_32x32x16_bf16 v[{a}:{a+15}], v[{WP+4}:{WP+7}], v[{Q+8*tt+4}:{Q+8*tt+7}], v[{a}:{a+15}]")
    A(f"""
    s_mov_b32 s56, {fhex(LOG2E)}
    s_mov_b32 s57, s56
    """)
    A.nop(10)
    EP = acc(2, 0)
    PH = EP + 16
    AF = PH + 16
    KV0 = AF + 16
    KV1 = 44
    Z0, Z1, SEL1 = 12, 16, 20
    PHQ = 128
    def kv_mfmas(tt):
        out = []
        for s in range(2):
            for fb in range(2):
                kv = KV0 if fb == 0 else KV1
                z = Z0 if fb == 0 else Z1
                af = AF + (fb*2+s)*4
                c = "0" if (tt == 0 and s == 0) else f"v[{kv}:{kv+15}]"
                cz = "0" if (tt == 0 and s == 0) else f"v[{z}:{z+3}]"
                out.append(f"v_mfma_f32_32x32x16_bf16 v[{kv}:{kv+15}], v[{af}:{af+3}], v[{V+8*tt+4*s}:{V+8*tt+4*s+3}], {c}")
                out.append(f"v_mfma_f32_16x16x32_bf16 v[{z}:{z+3}], v[{SEL1}:{SEL1+3}], v[{af}:{af+3}], {cz}")
        return out
    if E8: F1POS = min(int(cfg.get("f1pos", 0)), 1)
    for tt in range(NT8):
        P = acc(0, tt)
        A(f"v_max3_f32 v4, v{P}, v{P+1}, v{P+2}")
        A(f"v_max3_f32 v5, -v{P}, -v{P+1}, -v{P+2}")
        for k in range(3, 15, 2):
            A(f"v_max3_f32 v4, v4, v{P+k}, v{P+k+1}")
            A(f"v_max3_f32 v5, v5, -v{P+k}, -v{P+k+1}")
        A(f"v_max_f32 v4, v4, v{P+15}")
        A(f"v_max_f32 v5, v5, -v{P+15}")
        A.nop(2)
        A("v_permlane32_swap_b32 v4, v5")
        A("s_nop 0")
        A("v_max_f32 v4, v4, v5")
        A("v_mov_b32 v5, v4")
        A.nop(2)
        A("v_permlane32_swap_b32 v4, v5")
        A("s_nop 0")
        A(f"v_mul_f32 v6, {fhex(-LOG2E)}, v4")
        A(f"v_mul_f32 v8, {fhex(-LOG2E)}, v5")
        for k in range(8):
            A(f"v_pk_fma_f32 v[{EP+2*k}:{EP+2*k+1}], v[{P+2*k}:{P+2*k+1}], s[56:57], v[6:7] op_sel_hi:[1,1,0]")
            A(f"v_pk_fma_f32 v[{P+2*k}:{P+2*k+1}], v[{P+2*k}:{P+2*k+1}], s[56:57], v[8:9] op_sel_hi:[1,1,0] neg_lo:[0,1,0] neg_hi:[0,1,0]")
        for k in range(16):
            A(f"v_exp_f32 v{EP+k}, v{EP+k}")
            A(f"v_exp_f32 v{P+k}, v{P+k}")
        if tt > 0:
            j = A.uid("K1_KVS")
            A("s_cmp_lg_u32 s51, 0"); A(f"s_cbranch_scc1 {j}")
            A("s_waitcnt lgkmcnt(0)")
            for l in kv_mfmas(tt-1): A(l)
            A.label(j)
        A(f"v_pk_add_f32 v[4:5], v[{EP}:{EP+1}], v[{EP+2}:{EP+3}]")
        A(f"v_pk_add_f32 v[6:7], v[{P}:{P+1}], v[{P+2}:{P+3}]")
        for k in range(2, 8):
            A(f"v_pk_add_f32 v[4:5], v[4:5], v[{EP+2*k}:{EP+2*k+1}]")
            A(f"v_pk_add_f32 v[6:7], v[6:7], v[{P+2*k}:{P+2*k+1}]")
        A("v_add_f32 v4, v4, v5")
        A("v_add_f32 v6, v6, v7")
        A.nop(2)
        A("v_permlane32_swap_b32 v4, v6")
        A("s_nop 0")
        A("v_add_f32 v4, v4, v6")
        A("v_rcp_f32 v4, v4")
        A("s_nop 0")
        A("v_mov_b32 v6, v4")
        A.nop(2)
        A("v_permlane32_swap_b32 v4, v6")
        A("s_nop 0")
        for k in range(8):
            A(f"v_pk_mul_f32 v[{EP+2*k}:{EP+2*k+1}], v[{EP+2*k}:{EP+2*k+1}], v[4:5] op_sel_hi:[1,0]")
            A(f"v_pk_mul_f32 v[{P+2*k}:{P+2*k+1}], v[{P+2*k}:{P+2*k+1}], v[6:7] op_sel_hi:[1,0]")
        j1 = A.uid("K1_T0"); j2 = A.uid("K1_TJ")
        A("s_cmp_eq_u32 s51, 0"); A(f"s_cbranch_scc1 {j1}")
        cvt_tile(A, PHQ + 16*tt, EP)
        cvt_tile(A, PHQ + 16*tt + 8, P)
        if tt == F1POS:
            if E8:
                A("s_cmp_ge_u32 s40, 4"); A(f"s_cbranch_scc1 {j2}")
            A("s_waitcnt vmcnt(0)")
            set_flag(A, "s67")
            vstamp(A, cfg, 3, PV)
        A(f"s_branch {j2}")
        A.label(j1)
        cvt_tile(A, PH, EP)
        cvt_tile(A, PH + 8, P)
        for sign in range(2):
            for b in range(4):
                A(f"ds_write_b64 v24, v[{PH+8*sign+2*b}:{PH+8*sign+2*b+1}] offset:{sign*64+b*16}")
        for fb in range(2):
            for s in range(2):
                for sec in range(2):
                    af = AF + (fb*2+s)*4 + 2*sec
                    A(f"ds_read_b64_tr_b16 v[{af}:{af+1}], v25 offset:{krow(s, sec)*136 + fb*64}")
        A.label(j2)
    A("s_cmp_lg_u32 s51, 0")
    A("s_cbranch_scc1 KF_JOIN")
    if QL:
        QN = int(cfg.get("qn", 4))
        A("s_cmp_ge_u32 s40, 4")
        A("s_cbranch_scc1 K1_QL0")
        bq_stage(range(QN), 64, 26, True)
        A(f"s_waitcnt lgkmcnt({2 * QN})")
        for l in kv_mfmas(NT8 - 1): A(l)
        bq_stage(range(QN, 4), 64, 26, True)
        A("s_branch K1_QL1")
        A("K1_QL0:")
        A("s_waitcnt lgkmcnt(0)")
        for l in kv_mfmas(NT8 - 1): A(l)
        A("K1_QL1:")
    else:
        A("s_waitcnt lgkmcnt(0)")
        for l in kv_mfmas(NT8 - 1): A(l)
    if E8:
        A(f"""
        s_cmp_ge_u32 s40, 4
        s_cselect_b32 s38, {HB0 - RED0}, 0
        s_cselect_b32 s55, 512, 0
        s_add_u32 s38, s38, {RED0}
        s_add_u32 s55, s55, {ZRED}
        """)
    else:
        A(f"s_mov_b32 s38, {RED0}")
        A(f"s_mov_b32 s55, {ZRED}")
    A(f"""
    s_lshl_b32 s47, s50, 13
    s_add_u32 s47, s47, s38
    v_add_u32 v2, s47, v1
    v_and_b32 v3, 31, v0
    v_lshlrev_b32 v3, 2, v3
    s_lshl_b32 s47, s50, 8
    s_add_u32 s47, s47, s55
    v_add_u32 v3, s47, v3
    """)
    A.nop(8)
    A(f"ds_write_b32 v3, v{Z0}")
    A(f"ds_write_b32 v3, v{Z1} offset:128")
    for fb in range(2):
        kv = KV0 if fb == 0 else KV1
        for q in range(4):
            A(f"ds_write_b128 v2, v[{kv+4*q}:{kv+4*q+3}] offset:{fb*4096+q*1024}")
    A("s_branch KF_JOIN")
    A.label("K1_LOADER")
    if cfg.get("lprio"): A(f"s_setprio {cfg.get('lprio')[0]}")
    def l_srd0():
        A("""
        s_cmp_eq_u32 s44, 0
        s_cselect_b32 s28, s6, s8
        s_cselect_b32 s29, s7, s9
        """)
        A(f"s_mov_b32 s30, {1024*6144}")
        A("s_mov_b32 s31, 0x00020000")
    def l_srd1():
        srd(A, 20, 6, 1024*6144)
        srd(A, 24, 8, 1024*6144)
    if not ES:
        srd(A, 16, 4, 2048*2048)
        l_srd1()
    A(f"""
    s_sub_u32 s50, s40, 4            ; w
    s_lshr_b32 s44, s50, 1
    """)
    if not ES: l_srd0()
    R1 = cfg.get("r1", "1") if cfg.get("pf2") else (cfg.get("r1", "0") if (PF3 or PF4) else "0")
    if R1 != "0":
        HM = cfg.get("hmap", "f") == "h"
        RB = 1 if HM else 2; HB = 4 if HM else 3
        NW = 3 << (4 - RB)
        A(f"""
        s_lshr_b32 s47, s45, {RSH}
        s_mul_i32 s47, s47, {ROT}
        s_and_b32 s51, s45, 1
        s_mul_i32 s51, s51, {ROT2}
        s_add_u32 s47, s47, s51
        s_and_b32 s51, s50, 1
        s_lshl_b32 s51, s51, 1
        s_add_u32 s51, s51, s47
        v_mul_u32_u24 v20, 43, v0
        v_lshrrev_b32 v20, {10 if HM else 9}, v20
        v_mul_u32_u24 v21, {NW}, v20
        v_sub_u32 v21, v0, v21           ; lane % NW
        v_add_u32 v20, s51, v20
        v_and_b32 v20, 31, v20
        v_mul_u32_u24 v20, {32*6144}, v20
        s_and_b32 s51, s42, 1
        s_lshl_b32 s51, s51, {RB}
        s_and_b32 s52, s41, {(1 << RB) - 1}
        s_add_u32 s51, s51, s52
        s_lshl_b32 s51, s51, {4 - RB}
        v_and_b32 v22, {(1 << (4 - RB)) - 1}, v21
        v_add_u32 v22, s51, v22
        v_mul_u32_u24 v22, 6144, v22
        v_lshrrev_b32 v21, {4 - RB}, v21
        v_lshl_add_u32 v22, v21, 11, v22
        s_lshr_b32 s51, s42, 1
        s_lshl_b32 s51, s51, 7
        v_add3_u32 v20, v20, v22, s51
        v_mov_b32 v23, 0x7ffffff0
        v_cmp_gt_u32 vcc, {2 * NW}, v0
        s_lshl_b32 s51, s41, 8
        s_and_b32 s52, s42, {(1 << HB) - 1}
        s_lshl_b32 s52, s52, {8 - HB}
        v_cndmask_b32 v20, v23, v20, vcc
        s_add_u32 s51, s51, s52
        s_lshl_b32 s52, s50, {6 - HB}
        s_add_u32 s51, s51, s52
        {"" if ES else "buffer_load_dword v24, v20, s[28:31], 0 offen"}
        v_and_b32 v21, {(1 << (6 - HB)) - 1}, v0
        v_add_u32 v21, s51, v21
        v_lshlrev_b32 v21, 11, v21
        v_lshrrev_b32 v22, {6 - HB}, v0
        s_lshr_b32 s47, s47, 1
        v_add_u32 v22, s47, v22
        v_and_b32 v22, 15, v22
        v_lshl_add_u32 v21, v22, 7, v21
        v_cmp_gt_u32 vcc, {2 << (6 - HB)}, v0
        s_nop 1
        v_cndmask_b32 v21, v23, v21, vcc
        {"" if ES else "buffer_load_dword v25, v21, s[16:19], 0 offen"}
        """)
    if not ES: srd(A, 36, 10, 32*2048)
    A(f"""
    v_lshrrev_b32 v1, 3, v0
    v_lshrrev_b32 v2, 4, v0
    v_and_b32 v3, 7, v0
    v_xor_b32 v3, v3, v2
    v_lshlrev_b32 v3, 4, v3
    v_lshl_add_u32 v4, v1, 11, v3
    s_lshl_b32 s47, s41, 8
    s_lshl_b32 s51, s50, 6
    s_add_u32 s47, s47, s51
    s_lshl_b32 s47, s47, 11          ; (r*256 + 64w)*2048
    v_add_u32 v4, s47, v4            ; piece 0
    v_xor_b32 v5, 64, v4
    v_add_u32 v5, 16384, v5
    v_add_u32 v6, 32768, v4
    v_add_u32 v7, 32768, v5
    v_add_u32 v12, 65536, v4
    v_add_u32 v13, 65536, v5
    v_add_u32 v14, 98304, v4
    v_add_u32 v15, 98304, v5
    """)
    if ES:
        assert R1 == "2"
        A("s_waitcnt lgkmcnt(0)")
        rstamp(41)
        l_srd0()
        A("buffer_load_dword v24, v20, s[28:31], 0 offen")
        srd(A, 16, 4, 2048*2048)
        A("buffer_load_dword v25, v21, s[16:19], 0 offen")
        l_srd1()
        srd(A, 36, 10, 32*2048)
        srd(A, 32, 14, WS_USED)
    A(f"""
    v_lshrrev_b32 v1, {3 if cfg.get("expw") else 2}, v0
    s_and_b32 s47, s50, 1
    s_lshl_b32 s47, s47, 4
    v_add_u32 v1, s47, v1            ; krow = 16*(w&1) + (l>>2)
    v_mul_u32_u24 v1, 6144, v1
    v_and_b32 v3, {7 if cfg.get("expw") else 3}, v0
    {"v_lshrrev_b32 v2, 4, v0" if cfg.get("m16") else ""}
    {"v_and_b32 v2, 2, v2" if cfg.get("m16") else ""}
    {"v_xor_b32 v3, v2, v3            ; m16 : the column halves of k rows 8..15 change places" if cfg.get("m16") else ""}
    v_lshl_add_u32 v1, v3, 4, v1
    s_lshl_b32 s47, s42, 6           ; 64h
    {"s_and_b32 s47, s47, 0x780" if cfg.get("expw") else ""}
    s_lshl_b32 s51, s44, 11          ; type*2048
    s_add_u32 s52, s47, s51
    v_add_u32 v9, s52, v1            ; seg1 : B.q / B.k
    s_sub_u32 s52, 2048, s51
    s_add_u32 s52, s52, s47
    v_add_u32 v8, s52, v1            ; seg0 : A.k / A.q
    s_add_u32 s52, s47, 4096
    v_add_u32 v10, s52, v1           ; seg2 : A.v / B.v
    v_lshlrev_b32 v11, 4, v0
    s_and_b32 s51, s50, 1
    s_lshl_b32 s51, s51, 10
    s_lshl_b32 s47, s42, 11
    s_add_u32 s47, s47, s51          ; w_phi offset = h*2048 + (w&1)*1024
    s_add_u32 m0, s51, {K1_WPHI}
    s_lshl_b32 s55, s50, 13          ; w*8192  (x pieces)
    {"s_waitcnt vmcnt(0)" if R1 == "1" else ""}
    buffer_load_dwordx4 v11, s[36:39], s47 offen lds
    s_lshl_b32 s51, s50, 10
    s_add_u32 s56, s51, {K1_WB}      ; W pieces : + w*1024
    s_lshr_b32 s47, s45, {RSH}
    s_mul_i32 s47, s47, {ROT}
    s_and_b32 s51, s45, 1
    s_mul_i32 s51, s51, {ROT2}
    s_add_u32 s47, s47, s51
    s_and_b32 s47, s47, 31           ; first k block (rotated per XCD group: spreads the x column reads over the channels)
    s_lshl_b32 s58, s47, 6           ; soffset x
    s_mul_i32 s59, s47, {32*6144}    ; soffset W
    s_mov_b32 s60, 0                 ; block
    s_mov_b32 s61, s55               ; x slot
    s_mov_b32 s62, s56               ; W slot
    s_add_u32 s55, s55, {K1_XS*K1_NX}
    s_add_u32 s56, s56, {K1_SLOT*K1_NSLOT}
    """)
    if PF3:
        TE = int(cfg.get("te", 2))
        OFFL = int(cfg.get("offl", 0))
        XT = int(cfg.get("pfx", 1))
        BW = TE // 2; LB = BW.bit_length() - 1
        assert cfg.get("hmap", "f") == "f"
        A(f"""
        s_and_b32 s51, s42, 7            ; head within the XCD
        s_and_b32 s52, s41, 3            ; token block within the XCD
        s_and_b32 s63, s42, 1
        s_lshl_b32 s63, s63, 2
        s_add_u32 s63, s63, s52          ; share of the pair's weight lines
        s_lshl_b32 s63, s63, 2           ; first row
        s_and_b32 s64, s50, 1
        s_lshl_b32 s64, s64, {5 + LB}    ; first row of this wave's group of blocks
        s_add_u32 s63, s63, s64
        v_bfe_u32 v27, v0, 2, {LB})
        v_lshlrev_b32 v30, 5, v27        ; 32 * block
        v_and_b32 v26, 3, v0
        v_add3_u32 v26, v26, v30, s63    ; row
        v_mul_u32_u24 v26, 6144, v26
        v_lshrrev_b32 v27, {2 + LB}, v0  ; segment
        v_lshl_add_u32 v26, v27, 11, v26
        s_lshr_b32 s63, s42, 1
        s_lshl_b32 s63, s63, 7
        v_add_u32 v26, s63, v26          ; + column of the pair
        v_mov_b32 v29, 0x7ffffff0
        v_cmp_gt_u32 vcc, 3, v27
        """.replace("v_bfe_u32 v27, v0, 2, 0)", "v_mov_b32 v27, 0").replace(")\n", "\n"))
        if OFFL:
            A(f"""
            s_cmp_lt_u32 s51, 6
            s_cselect_b64 vcc, vcc, 0
            v_cndmask_b32 v26, v29, v26, vcc
            s_lshl_b32 s63, s51, 2
            s_add_u32 s63, s63, s52
            s_lshl_b32 s63, s63, 2
            v_and_b32 v28, 3, v0
            v_add_u32 v31, s63, v28
            v_and_b32 v28, 31, v31
            v_add3_u32 v28, v28, v30, s64
            v_mul_u32_u24 v28, 6144, v28
            v_lshrrev_b32 v31, 5, v31
            v_lshl_add_u32 v28, v31, 11, v28
            s_lshr_b32 s63, s42, 1
            s_or_b32 s63, s63, 3
            s_lshl_b32 s63, s63, 7
            v_add_u32 v28, s63, v28
            v_cmp_eq_u32 vcc, 3, v27
            s_cmp_lt_u32 s51, 6
            s_cselect_b64 vcc, vcc, 0
            v_cndmask_b32 v26, v26, v28, vcc
            """)
        else:
            A("s_nop 1\nv_cndmask_b32 v26, v29, v26, vcc")
        if OFFL == 2:
            A(f"""
            s_mul_i32 s63, s51, 43
            v_add_u32 v27, s63, v0
            v_cmp_gt_u32 vcc, 43, v0
            s_movk_i32 s63, 0x100
            v_cmp_gt_u32 s[64:65], s63, v27
            s_and_b64 vcc, vcc, s[64:65]
            s_cmp_lt_u32 s51, 6
            s_cselect_b64 vcc, vcc, 0
            """)
        else:
            A(f"""
            s_lshl_b32 s63, s51, 5
            v_add_u32 v27, s63, v0
            v_cmp_gt_u32 vcc, 32, v0
            """)
        A(f"""
        s_lshl_b32 s63, s41, 8
        v_add_u32 v27, s63, v27          ; x row
        v_lshlrev_b32 v27, 11, v27
        v_cndmask_b32 v27, v29, v27, vcc
        s_lshr_b32 s63, s58, 6
        s_add_u32 s63, s63, {TL}
        s_and_b32 s63, s63, 31
        s_mul_i32 s64, s63, {32*6144}    ; weight offset
        s_lshr_b32 s63, s63, 1
        s_add_u32 s63, s63, s50
        s_and_b32 s63, s63, 15
        s_lshl_b32 s65, s63, 7           ; x offset
        s_cmp_lt_u32 s50, {BW}
        s_cselect_b32 s67, {2048*2048 if XT else 0}, 0
        s_cmp_lt_u32 s50, 2
        s_cselect_b32 s92, s6, s8
        s_cselect_b32 s93, s7, s9
        s_mov_b32 s94, 0
        s_mov_b32 s95, 0x00020000
        s_mov_b32 s88, s4
        s_mov_b32 s89, s5
        s_mov_b32 s90, 0
        s_mov_b32 s91, 0x00020000
        """)
    def pf4_setup():
        touch_addr("s50", 26, 27, 28, 29, True, "s66")
        A(f"""
        s_mov_b32 s67, s94
        s_cmp_ge_u32 s50, 2
        s_mov_b32 s64, {TL*32*6144}
        s_cselect_b32 s64, {TL*64}, s64
        s_mov_b32 s65, {64*6144}
        s_cselect_b32 s65, 128, s65
        """)
    ED = ES and cfg.get("ed", "1") == "1"
    if PF4 and not ED: pf4_setup()
    if PF4 and ED:
        A("""
        s_mov_b32 s92, s4
        s_mov_b32 s93, s5
        s_mov_b32 s94, 0
        s_mov_b32 s95, 0x00020000
        s_mov_b32 s64, 0
        v_mov_b32 v26, 0
        """)
    rstamp(42)
    if cfg.get("lprio"): A(f"s_setprio {cfg.get('lprio')[1]}")
    A("K1_LLOOP:")
    XV = [4, 5, 6, 7, 12, 13, 14, 15]
    def ld_x(i0=0, i1=8):
        for i in range(i0, i1):
            A(f"s_add_u32 m0, s61, {i*1024}")
            A("s_nop 0")
            A(f"buffer_load_dwordx4 v{XV[i]}, s[16:19], s58 offen lds")
        if i1 == 8: A(f"""
        s_add_u32 s58, s58, 128
        s_and_b32 s58, s58, 2047
        s_add_u32 s61, s61, {K1_XS}
        s_cmp_eq_u32 s61, s55
        s_cselect_b32 s47, {K1_XS*K1_NX}, 0
        s_sub_u32 s61, s61, s47
        """)
    def ld_w():
        for sg in range(3):
            A(f"s_add_u32 m0, s62, {sg*4096}")
            A("s_nop 0")
            A(f"buffer_load_dwordx4 v{8+sg}, s[{20+4*sg}:{23+4*sg}], s59 offen lds")
        A(f"""
        s_add_u32 s59, s59, {32*6144}
        s_cmp_eq_u32 s59, {1024*6144}
        s_cselect_b32 s59, 0, s59
        s_add_u32 s62, s62, {K1_SLOT}
        s_cmp_eq_u32 s62, s56
        s_cselect_b32 s47, {K1_SLOT*K1_NSLOT}, 0
        s_sub_u32 s62, s62, s47
        """)
    E8 = cfg.get("e8")
    def lsync(n=14):
        if cfg.get("prof") == "3":
            A("s_memtime s[96:97]")
            A(f"s_waitcnt vmcnt({n})")
            A("s_memtime s[98:99]")
            A("s_barrier")
            A("s_memtime s[90:91]")
            A("s_waitcnt lgkmcnt(0)")
            A("s_sub_u32 s96, s98, s96")
            A("s_add_u32 s100, s100, s96")
            A("s_sub_u32 s90, s90, s98")
            A("s_add_u32 s101, s101, s90")
        else:
            A(f"s_waitcnt vmcnt({n})")
            A("s_barrier")
    if cfg.get("prof") == "3":
        A("s_cmp_lg_u32 s60, 0")
        A("s_cbranch_scc1 K1_LP3")
        A("s_mov_b32 s100, 0")
        A("s_mov_b32 s101, 0")
        A.label("K1_LP3")
    BAL = int(cfg.get("bal", 0))
    NT = 2 if PF3 else 1 if PF4 else 0
    if BAL:
        ld_w(); ld_x(0, 8 - BAL)
    else:
        ld_x(); ld_w()
    A("""
    s_cmp_lt_u32 s60, 4
    s_cbranch_scc1 K1_LS1
    """)
    lsync(14 - BAL + NT)
    A("K1_LS1:")
    if BAL: ld_x(8 - BAL, 8)
    ld_w()
    if PF4:
        if ED:
            A("s_cmp_lg_u32 s60, 0"); A("s_cbranch_scc1 K1_PFS")
            pf4_setup()
            A("K1_PFS:")
        A(f"""
        s_cmp_le_u32 s60, {30 - TL}
        s_cselect_b32 s94, s67, 0
        buffer_load_dword v31, v26, s[92:95], s64 offen
        s_add_u32 s64, s64, s65
        """)
    if PF3:
        A(f"""
        s_and_b32 s63, s60, {TE - 1}
        s_cmp_le_u32 s60, {32 - TL - TE}
        s_cselect_b32 s63, s63, 1
        s_cmp_eq_u32 s63, 0
        s_cselect_b32 s94, {1024*6144}, 0
        s_cselect_b32 s90, s67, 0
        s_cselect_b32 s63, {TE*32*6144}, 0
        s_cselect_b32 s66, {TE*64}, 0
        buffer_load_dword v31, v26, s[92:95], s64 offen
        buffer_load_dword v31, v27, s[88:91], s65 offen
        s_add_u32 s64, s64, s63
        s_cmp_eq_u32 s64, {1024*6144}
        s_cselect_b32 s64, 0, s64
        s_add_u32 s65, s65, s66
        s_and_b32 s65, s65, 2047
        """)
    A("""
    s_cmp_lt_u32 s60, 2
    s_cbranch_scc1 K1_LS2
    """)
    if cfg.get("prof") == "4":
        A("s_cmp_lg_u32 s60, 2"); A("s_cbranch_scc1 K1_P4A"); rstamp(43); A(f"s_waitcnt vmcnt({14 + 2*NT})"); rstamp(44); A("K1_P4A:")
    lsync(14 + 2*NT)
    A("K1_LS2:")
    GW, GX, GA = (160, 168, 200) if E8 else (32, 64, 40)
    G1 = E8 and cfg.get("g1", "1") == "1"
    NG = 4 if G1 else 2
    XT8 = E8 and cfg.get("xt", "1") == "1"
    def gate_loads():
        srd(A, 36, 12, 2048)
        A(f"""
        s_lshl_b32 s47, s41, 8
        s_lshl_b32 s51, s42, 3
        s_add_u32 s47, s47, s51
        s_lshl_b32 s51, s50, 1
        {"s_and_b32 s51, s51, 4" if G1 else ""}
        s_add_u32 s63, s47, s51          ; t0 = r*256 + h*8 + 2w  /  + 4th
        s_lshl_b32 s51, s63, 11
        v_lshlrev_b32 v1, 5, v0
        buffer_load_dwordx4 v[{GW}:{GW+3}], v1, s[36:39], 0 offen
        buffer_load_dwordx4 v[{GW+4}:{GW+7}], v1, s[36:39], 0 offen offset:16
        """)
        for j in range(NG):
            A(f"buffer_load_dwordx4 v[{GX+8*j}:{GX+8*j+3}], v1, s[16:19], s51 offen")
            A(f"buffer_load_dwordx4 v[{GX+8*j+4}:{GX+8*j+7}], v1, s[16:19], s51 offen offset:16")
            if j < NG - 1: A("s_add_u32 s51, s51, 2048")
    def dbg_srd(r=36):
        A(f"""
        s_mov_b32 s{r}, s86
        s_mov_b32 s{r+1}, s87
        s_mov_b32 s{r+2}, 256
        s_mov_b32 s{r+3}, 0x00020000
        v_mov_b32 v46, 0
        """)
    A(f"""
    s_add_u32 s60, s60, 2
    s_cmp_lt_u32 s60, 32
    s_cbranch_scc1 K1_LLOOP
    """)
    if cfg.get("lf") == "1": A("K1_LPOST:")
    def ltail(gate):
        GN = (3 + 2*NG if gate else 1) if E8 else 0
        if E8:
            if gate:
                gate_loads()
                A("s_mov_b32 s84, s63")
            dbg_srd(92)
            poll_issue(A, 47, 46, 92, "0")
        A(f"""
        s_waitcnt vmcnt({3 + NT + GN})
        s_barrier
        """)
        if E8:
            setup_p2(A)
            A(f"s_add_u32 s74, s74, {2*65536}        ; oA offset of tiles 2, 3")
        A(f"""
        s_waitcnt vmcnt({GN})
        s_barrier
        """)
    if G1:
        A("s_bitcmp1_b32 s50, 0")
        A("s_cbranch_scc1 K1_LT1")
        ltail(False)
        A("s_branch K1_LT2")
        A("K1_LT1:")
        ltail(True)
        A("K1_LT2:")
    else:
        ltail(True)
    if cfg.get("prof") == "3":
        A(f"v_writelane_b32 v{PV}, s100, 0")
        A(f"v_writelane_b32 v{PV}, s101, 1")
    if cfg.get("lprio"): A("s_setprio 0")
    if E8:
        setup_p3(A)
        A("s_barrier")
        A(f"""
        s_and_b32 s51, s50, 1
        {"s_xor_b32 s51, s51, 1" if XT8 else ""}
        s_lshr_b32 s50, s50, 1
        """)
        feat_setup(TBUF1)
        A(f"""
        v_lshlrev_b32 v1, 4, v0          ; lane*16
        s_lshl_b32 s47, s50, 13
        s_add_u32 s47, s47, {HB0}
        s_lshl_b32 s38, s50, 12
        s_add_u32 s38, s38, {HB1}
        s_cmp_eq_u32 s51, 0
        s_cselect_b32 s47, s47, s38
        v_add_u32 v45, s47, v1
        """)
        for j in range(NG): A(f"v_mov_b32 v{GA+j}, 0")
        A("s_barrier")
        vstamp(A, cfg, 2, PV)
        A("s_waitcnt vmcnt(0)")
        poll_check(A, 47, 46, 92, "0", "PG", expect="0x100")
        A("s_barrier")
        EPR = cfg.get("eprio", "00")
        if EPR != "00":
            A(f"s_setprio {EPR[1]}")
            A("s_cmp_lg_u32 s51, 0")
            A("s_cbranch_scc1 K1_LP1")
            A(f"s_setprio {EPR[0]}")
            A("K1_LP1:")
        for k in range(2):
            A(f"ds_read_b128 v[{Q+8*k}:{Q+8*k+3}], v45 offset:{k*2048}")
            A(f"ds_read_b128 v[{Q+8*k+4}:{Q+8*k+7}], v45 offset:{k*2048+1024}")
        A("s_cmp_lg_u32 s51, 0")
        A(f"s_cbranch_scc1 {'K1_E2L' if (XT8 and G1) else 'K1_LNV'}")
        for k in range(2):
            A(f"ds_read_b128 v[{V+8*k}:{V+8*k+3}], v45 offset:{4096+k*2048}")
            A(f"ds_read_b128 v[{V+8*k+4}:{V+8*k+7}], v45 offset:{4096+k*2048+1024}")
        if G1 and not XT8: A("s_branch K1_E2L")
        A("K1_LNV:")
        for k in range(8):
            for j in range(NG):
                A(f"v_dot2c_f32_bf16 v{GA+j}, v{GX+8*j+k}, v{GW+k}")
            if NG == 2: A("s_nop 1")
        A.nop(3)
        for rot in (8, 4, 2, 1):
            for j in range(NG): A(f"v_add_f32_dpp v{GA+j}, v{GA+j}, v{GA+j} row_ror:{rot} row_mask:0xf bank_mask:0xf")
            if NG == 2: A("s_nop 1")
        if G1:
            A(f"""
            v_permlane16_swap_b32 v{GA}, v{GA+1}
            s_nop 0
            v_permlane16_swap_b32 v{GA+2}, v{GA+3}
            s_nop 1
            v_add_f32 v{GA}, v{GA}, v{GA+1}          ; rows : a01, b01, a23, b23
            v_add_f32 v{GA+1}, v{GA+2}, v{GA+3}      ; rows : c01, d01, c23, d23
            s_nop 1
            v_permlane32_swap_b32 v{GA}, v{GA+1}
            s_nop 1
            v_add_f32 v{GA}, v{GA}, v{GA+1}
            """)
        else:
            A(f"""
            v_permlane16_swap_b32 v{GA}, v{GA+1}
            s_nop 1
            v_add_f32 v{GA}, v{GA}, v{GA+1}          ; rows : a01, b01, a23, b23
            v_mov_b32 v{GA+1}, v{GA}
            s_nop 1
            v_permlane32_swap_b32 v{GA}, v{GA+1}
            s_nop 1
            v_add_f32 v{GA}, v{GA}, v{GA+1}          ; lanes 0..15 : token t0, lanes 16..31 : token t0 + 1
            """)
        A(f"""
        v_mul_f32 v{GA}, {fhex(-LOG2E)}, v{GA}
        v_exp_f32 v{GA}, v{GA}
        v_lshrrev_b32 v{GA+2}, 4, v0
        v_lshlrev_b32 v{GA+2}, 2, v{GA+2}
        v_add_f32 v{GA}, 1.0, v{GA}
        v_rcp_f32 v{GA}, v{GA}
        s_lshl_b32 s47, s84, 2
        s_add_u32 s47, s47, {WS_G}
        s_mov_b32 exec_lo, 0x10001
        s_mov_b32 exec_hi, {"0x10001" if G1 else "0"}
        buffer_store_dword v{GA}, v{GA+2}, s[32:35], s47 offen sc1
        s_mov_b64 exec, -1
        """)
        A("s_branch K1_E2L")
    else:
        gate_loads()
        A("""
        s_barrier
        s_barrier
        """)
        vstamp(A, cfg, 2, PV)
        for j in range(2): A(f"v_mov_b32 v{40+j}, 0")
        A("s_waitcnt vmcnt(0)")
        for k in range(8):
            for j in range(2):
                A(f"v_dot2c_f32_bf16 v{40+j}, v{GX+8*j+k}, v{32+k}")
            A("s_nop 1")
        A("v_lshlrev_b32 v3, 2, v0")
        A.nop(3)
        for mask in (1, 2, 4, 8, 16, 32):
            A(f"v_xor_b32 v4, {mask*4}, v3")
            for j in range(2): A(f"ds_bpermute_b32 v{5+j}, v4, v{40+j}")
            A("s_waitcnt lgkmcnt(0)")
            for j in range(2): A(f"v_add_f32 v{40+j}, v{40+j}, v{5+j}")
        A(f"v_cmp_eq_u32 vcc, 1, v0")
        A("s_nop 1")
        A(f"v_cndmask_b32 v40, v40, v41, vcc")
        A(f"""
        v_mul_f32 v40, {fhex(-LOG2E)}, v40
        v_exp_f32 v40, v40
        s_nop 0
        v_add_f32 v40, 1.0, v40
        v_rcp_f32 v40, v40
        s_lshl_b32 s47, s63, 2
        s_add_u32 s47, s47, {WS_G}
        s_mov_b64 exec, 3
        buffer_store_dword v40, v3, s[32:35], s47 offen sc1
        s_mov_b64 exec, -1
        """)
        setup_p2(A)
        setup_p3(A)
        A(f"""
        s_mov_b32 s85, s36
        v_and_b32 v35, 15, v0
        v_lshlrev_b32 v35, 2, v35
        """)
        dbg_srd()
        poll_issue(A, 47, 46, 36, "0")
        A("s_waitcnt vmcnt(0)")
        poll_check(A, 47, 46, 36, "0", "PG", expect="0x100")
        poll_issue(A, 47, 35, 32, "s78")
        A("s_waitcnt vmcnt(0)")
        poll_check(A, 47, 35, 32, "s78", "P1")
        vstamp(A, cfg, 3, PV)
        A(f"""
        v_lshlrev_b32 v3, 4, v0
        s_lshl_b32 s47, s50, 12          ; w*4096
        s_add_u32 m0, s47, {2*16384}
        s_lshl_b32 s51, s41, 1
        s_add_u32 s51, s51, 2
        s_and_b32 s51, s51, 15
        s_lshl_b32 s51, s51, 14
        s_add_u32 s51, s51, s47
        s_add_u32 s51, s51, s70
        """)
        for j in range(4):
            A(f"buffer_load_dwordx4 v3, s[32:35], s51 offen offset:{j*1024} sc1 lds")
        A("s_mov_b32 s36, s85")
    A.label("KF_JOIN")
    if cfg.get("e8") and cfg.get("eprio", "00") != "00": A("s_setprio 0")
    Q, K0, K1, V0, V1, SEL, NEGM, SA, SB, O, L, P = 8, 16, 20, 24, 28, 40, 48, 64, 80, 96, 112, 120
    PR = 33
    RD = 192
    if cfg.get("prof"): A(f"v_mov_b32 v{PR}, v{PV}")
    vstamp(A, cfg, 4, PR)
    JL = cfg.get("jl") == "1"
    def j_sel():
        A(f"""
        v_bfe_u32 v4, v0, 2, 1
        v_bfe_u32 v5, v0, 4, 1
        v_cmp_eq_u32 vcc, v4, v5
        v_mov_b32 v5, 0x3f803f80
        v_mov_b32 v4, 0
        v_cndmask_b32 v{SEL}, v4, v5, vcc
        v_cndmask_b32 v{SEL+1}, v4, v5, vcc
        v_cndmask_b32 v{SEL+2}, v4, v5, vcc
        v_cndmask_b32 v{SEL+3}, v4, v5, vcc
        v_mov_b32 v1, v3                 ; cur
        v_add_u32 v2, 16384, v3          ; next
        """)
    def j_zero(a, b):
        z = [O+i for i in range(16)]
        for i in range(4): z += [L+i, V1+i, P+4+i]
        z += [35, 36, 37, 38, 39, 45] + ([] if E8 else [46])
        for i in z[a:b]: A(f"v_mov_b32 v{i}, 0")
    A("v_lshlrev_b32 v3, 4, v0          ; lane*16")
    if not JL: j_sel()
    A(f"""
    s_lshl_b32 s47, s40, 11
    s_add_u32 s47, s47, {QST}
    v_add_u32 v6, s47, v3            ; Q staging address
    s_lshl_b32 s47, s40, 10
    s_add_u32 s47, s47, {RED0}
    v_add_u32 v7, s47, v3
    """)
    if not JL: j_zero(0, 99)
    if E8:
        A("v_and_b32 v46, 15, v0")
        A("v_lshlrev_b32 v46, 2, v46")
        poll_issue(A, 47, 46, 32, "s78")
    A(f"""
    s_mov_b32 s60, 0
    s_mov_b32 s61, 1
    s_waitcnt lgkmcnt(0)
    s_barrier
    """)
    vstamp(A, cfg, 5, PR)
    NRD = 4 if E8 else 2
    A(f"""
    ds_read_b128 v[{Q}:{Q+3}], v6
    ds_read_b128 v[{NEGM}:{NEGM+3}], v3
    ds_read_b128 v[{Q+4}:{Q+7}], v6 offset:1024
    ds_read_b128 v[{NEGM+4}:{NEGM+7}], v3 offset:1024
    ds_read_b128 v[{K0}:{K0+3}], v3 offset:4096
    ds_read_b128 v[{K1}:{K1+3}], v3 offset:{4096+1024}
    ds_read_b128 v[{V0}:{V0+3}], v3 offset:2048
    ds_read_b128 v[{RD}:{RD+3}], v7
    ds_read_b128 v[{RD+4}:{RD+7}], v7 offset:8192
    """)
    if E8:
        A(f"ds_read_b128 v[{RD+12}:{RD+15}], v7 offset:{HB0 - RED0}")
        A(f"ds_read_b128 v[{RD+16}:{RD+19}], v7 offset:{HB0 - RED0 + 8192}")
    if JL: j_zero(0, 20)
    A(f"""
    s_waitcnt lgkmcnt({5 + NRD})
    v_mfma_f32_32x32x16_bf16 v[{SA}:{SA+15}], v[{NEGM}:{NEGM+3}], v[{Q}:{Q+3}], 0
    s_waitcnt lgkmcnt({3 + NRD})
    v_mfma_f32_32x32x16_bf16 v[{SA}:{SA+15}], v[{NEGM+4}:{NEGM+7}], v[{Q+4}:{Q+7}], v[{SA}:{SA+15}]
    s_waitcnt lgkmcnt({1 + NRD})
    v_mfma_f32_32x32x16_bf16 v[{SB}:{SB+15}], v[{K0}:{K0+3}], v[{Q}:{Q+3}], 0
    v_mfma_f32_32x32x16_bf16 v[{SB}:{SB+15}], v[{K1}:{K1+3}], v[{Q+4}:{Q+7}], v[{SB}:{SB+15}]
    """)
    if JL: j_sel(); j_zero(20, 99)
    A(f"""
    s_waitcnt lgkmcnt(0)
    v_pk_add_f32 v[{RD}:{RD+1}], v[{RD}:{RD+1}], v[{RD+4}:{RD+5}]
    v_pk_add_f32 v[{RD+2}:{RD+3}], v[{RD+2}:{RD+3}], v[{RD+6}:{RD+7}]
    """)
    if E8:
        A(f"""
        v_pk_add_f32 v[{RD+12}:{RD+13}], v[{RD+12}:{RD+13}], v[{RD+16}:{RD+17}]
        v_pk_add_f32 v[{RD+14}:{RD+15}], v[{RD+14}:{RD+15}], v[{RD+18}:{RD+19}]
        v_pk_add_f32 v[{RD}:{RD+1}], v[{RD}:{RD+1}], v[{RD+12}:{RD+13}]
        v_pk_add_f32 v[{RD+2}:{RD+3}], v[{RD+2}:{RD+3}], v[{RD+14}:{RD+15}]
        s_cmp_lg_u32 s40, 7
        s_cbranch_scc1 KJ_NOZ
        v_lshlrev_b32 v4, 2, v0
        v_add_u32 v5, {ZRED}, v4
        ds_read_b32 v{RD+8}, v5
        ds_read_b32 v{RD+9}, v5 offset:256
        ds_read_b32 v{RD+10}, v5 offset:512
        ds_read_b32 v{RD+11}, v5 offset:768
        s_waitcnt lgkmcnt(0)
        v_add_f32 v{RD+8}, v{RD+8}, v{RD+9}
        v_add_f32 v{RD+10}, v{RD+10}, v{RD+11}
        v_add_f32 v{RD+8}, v{RD+8}, v{RD+10}
        KJ_NOZ:
        """)
    else:
        A(f"""
        s_cmp_lg_u32 s40, 7
        buffer_store_dwordx4 v[{RD}:{RD+3}], v3, s[32:35], s79 offen sc1
        s_cbranch_scc1 KJ_NOZ
        v_lshlrev_b32 v4, 2, v0
        v_add_u32 v5, {ZRED}, v4
        ds_read_b32 v{RD+8}, v5
        ds_read_b32 v{RD+9}, v5 offset:256
        s_waitcnt lgkmcnt(0)
        v_add_f32 v{RD+8}, v{RD+8}, v{RD+9}
        buffer_store_dword v{RD+8}, v4, s[32:35], s89 offen sc1
        KJ_NOZ:
        """)
    A.nop(6)
    A(f"v_max3_f32 v4, v{SA}, v{SA+1}, v{SA+2}")
    A(f"v_max3_f32 v5, v{SA+3}, v{SA+4}, v{SA+5}")
    for k in range(6, 14, 4):
        A(f"v_max3_f32 v4, v4, v{SA+k}, v{SA+k+1}")
        A(f"v_max3_f32 v5, v5, v{SA+k+2}, v{SA+k+3}")
    A(f"v_max3_f32 v4, v4, v{SA+14}, v{SA+15}")
    for k in range(0, 16, 4):
        A(f"v_max3_f32 v4, v4, v{SB+k}, v{SB+k+1}")
        A(f"v_max3_f32 v5, v5, v{SB+k+2}, v{SB+k+3}")
    A("v_max_f32 v4, v4, v5")
    A("v_mov_b32 v5, v4")
    A.nop(2)
    A("v_permlane32_swap_b32 v4, v5")
    A("s_nop 0")
    A("v_max_f32 v4, v4, v5")
    A(f"v_add_f32 v4, {fhex(BIAS)}, v4")
    for i in range(16):
        A(f"v_sub_f32 v{NEGM+i}, 0, v4")
    for k in range(8):
        A(f"v_pk_add_f32 v[{SA+2*k}:{SA+2*k+1}], v[{SA+2*k}:{SA+2*k+1}], v[{NEGM}:{NEGM+1}]")
    if E8:
        A("s_waitcnt vmcnt(0)")
        poll_check(A, 47, 46, 32, "s78", "P1")
        A(f"""
        buffer_store_dwordx4 v[{RD}:{RD+3}], v3, s[32:35], s79 offen sc1
        s_cmp_lg_u32 s40, 7
        s_cbranch_scc1 KJ_NOZ2
        v_lshlrev_b32 v4, 2, v0
        buffer_store_dword v{RD+8}, v4, s[32:35], s89 offen sc1
        KJ_NOZ2:
        s_lshl_b32 s47, s40, 11
        s_add_u32 m0, s47, {2*16384}
        s_lshl_b32 s38, s41, 1
        s_add_u32 s38, s38, 2
        s_and_b32 s38, s38, 15
        s_lshl_b32 s38, s38, 14
        s_add_u32 s38, s38, s47
        s_add_u32 s81, s38, s70
        buffer_load_dwordx4 v3, s[32:35], s81 offen sc1 lds
        buffer_load_dwordx4 v3, s[32:35], s81 offen offset:1024 sc1 lds
        """)
    vstamp(A, cfg, 6, PR)
    if cfg.get("prof") == "2":
        A("s_mov_b32 s100, 15"); A(f"v_mov_b32 v{PR}, 0"); bstamp(A, cfg, 2); A("s_mov_b32 s100, 0")
    def dma_ops():
        a = ["s_mov_b32 m0, s72", "s_add_u32 s81, s70, s71", "s_add_u32 s72, s72, 16384",
             "buffer_load_dwordx4 v3, s[32:35], s81 offen sc1 lds"]
        b = ["buffer_load_dwordx4 v3, s[32:35], s81 offen offset:1024 sc1 lds",
             f"s_and_b32 s72, s72, {RING-1}", "s_add_u32 s71, s71, 16384", "s_and_b32 s71, s71, 0x3ffff"]
        return a, b
    def dma_chunk():
        a, b = dma_ops()
        for l in a + b: A(l)
    class LQ:
        def __init__(s, init): s.q = list(init)
        def rd(s, tag, text):
            def f(): A(text); s.q.append(tag)
            return f
        def wait(s, *tags):
            idx = max([k for k, t in enumerate(s.q) if t in tags], default=-1)
            if idx < 0: return
            A(f"s_waitcnt lgkmcnt({min(15, len(s.q) - 1 - idx)})")
            s.q = s.q[idx+1:]
    LQM = [None]
    def tile(i, Sa, Sb, sideA=(), sideB=(), end=()):
        e = lambda k: f"v_exp_f32 v{Sa+k}, v{Sa+k}"
        c = lambda k: f"v_cvt_pk_bf16_f32 v{P+k}, v{Sa+2*k}, v{Sa+2*k+1}"
        QK0 = f"v_mfma_f32_32x32x16_bf16 v[{Sb}:{Sb+15}], v[{K0}:{K0+3}], v[{Q}:{Q+3}], v[{NEGM}:{NEGM+15}]"
        QK1 = f"v_mfma_f32_32x32x16_bf16 v[{Sb}:{Sb+15}], v[{K1}:{K1+3}], v[{Q+4}:{Q+7}], v[{Sb}:{Sb+15}]"
        PV0 = f"v_mfma_f32_32x32x16_bf16 v[{O}:{O+15}], v[{V0}:{V0+3}], v[{P}:{P+3}], v[{O}:{O+15}]"
        PV1 = f"v_mfma_f32_32x32x16_bf16 v[{O}:{O+15}], v[{V1}:{V1+3}], v[{P+4}:{P+7}], v[{O}:{O+15}]"
        L0 = f"v_mfma_f32_16x16x32_bf16 v[{L}:{L+3}], v[{SEL}:{SEL+3}], v[{P}:{P+3}], v[{L}:{L+3}]"
        L1 = f"v_mfma_f32_16x16x32_bf16 v[{L}:{L+3}], v[{SEL}:{SEL+3}], v[{P+4}:{P+7}], v[{L}:{L+3}]"
        W = "s_waitcnt lgkmcnt(3)"
        def addr(tt, fr):
            return (f"v1 offset:{tt*4096+fr*1024}" if tt < 4 else f"v2 offset:{(tt-4)*4096+fr*1024}")
        rK0 = f"ds_read_b128 v[{K0}:{K0+3}], {addr(i+2, 0)}"; rK1 = f"ds_read_b128 v[{K1}:{K1+3}], {addr(i+2, 1)}"
        rV0 = f"ds_read_b128 v[{V0}:{V0+3}], {addr(i+1, 2)}"; rV1 = f"ds_read_b128 v[{V1}:{V1+3}], {addr(i, 3)}"
        WV1 = WK0 = WK1 = WV0 = W
        lq = LQM[0]
        if lq:
            WV1, WK0, WK1, WV0 = [(lambda t=t: lq.wait(t)) for t in ("V1", "K0", "K1", "V0")]
            rV1, rK0, rK1, rV0 = lq.rd("V1", rV1), lq.rd("K0", rK0), lq.rd("K1", rK1), lq.rd("V0", rV0)
        seq = [e(0), e(1), WV1, PV1, rV1, *sideA, e(2), e(3), e(4), e(5), WK0, QK0, rK0, e(6), e(7), c(0), c(1), L1, c(2), c(3), e(8), WK1, QK1, rK1,
               *sideB, e(9), e(10), e(11), WV0, PV0, rV0, e(12), e(13), e(14), L0, e(15), c(4), c(5), c(6), c(7), *end]
        for x in seq:
            if callable(x): x()
            else: A(x)
    PRIO = [int(c) for c in cfg.get("prio", "3210")]
    def period(sides=None, dma=True):
        if dma: dma_chunk()
        for i in range(4):
            sa, sb, en = (sides or {}).get(i, ((), (), ()))
            if cfg.get("prio"): A(f"s_setprio {PRIO[i]}")
            tile(i, SA if i % 2 == 0 else SB, SB if i % 2 == 0 else SA, sa, sb, en)
        A(f"""
        v_mov_b32 v1, v2
        v_add_u32 v2, 16384, v2
        v_and_b32 v2, {RING-1}, v2
        """)
    A.label("K2_LOOP")
    period()
    if cfg.get("prof") == "2":
        pbar(A, cfg, "s_waitcnt vmcnt(2)")
        A("""
        s_add_u32 s60, s60, 1
        s_cmp_lg_u32 s60, s61
        s_cbranch_scc1 K2_LOOP
        """)
    else:
        A(f"""
        s_add_u32 s60, s60, 1
        s_cmp_lg_u32 s60, s61
        s_waitcnt vmcnt(2)
        s_barrier
        s_cbranch_scc1 K2_LOOP
        """)
    A(f"""
    s_cmp_eq_u32 s60, 1
    s_cbranch_scc1 KD_1
    s_cmp_eq_u32 s60, 3
    s_cbranch_scc1 KD_3
    s_cmp_eq_u32 s60, 4
    s_cbranch_scc1 KD_4
    s_branch KD_7
    KD_1:
    s_mov_b32 s61, 3
    """)
    set_flag(A, "s68")
    A(f"""
    s_branch K2_LOOP
    KD_3:
    v_lshlrev_b32 v46, 2, v0
    s_mov_b32 s61, 4
    """)
    poll_issue(A, 47, 46, 32, "s77")
    A("s_branch K2_LOOP")
    A.label("KD_4")
    vstamp(A, cfg, 7, PR)
    poll_check(A, 47, 46, 32, "s77", "PK")
    KVP = 192; ZP = 224
    A(f"""
    s_cmp_eq_u32 s40, 4
    s_cselect_b32 s84, 1, 0          ; wave 4 also reduces z
    """)
    def kvload(rr):
        def f():
            A(f"buffer_load_dwordx4 v[{KVP+4*rr}:{KVP+4*rr+3}], v3, s[32:35], s75 offen sc1")
            A("s_add_u32 s75, s75, 8192")
        return f
    def zload(rr):
        def f():
            j = A.uid("KZ")
            A("s_cmp_eq_u32 s84, 0"); A(f"s_cbranch_scc1 {j}")
            A(f"buffer_load_dword v{ZP+rr}, v46, s[32:35], s76 offen offset:{256*rr} sc1")
            A(f"buffer_load_dword v{ZP+rr+1}, v46, s[32:35], s76 offen offset:{256*rr+256} sc1")
            A.label(j)
        return f
    period({i: ((kvload(2*i),), (kvload(2*i+1),), (zload(2*i),)) for i in range(4)})
    pbar(A, cfg, "s_waitcnt vmcnt(10)")
    def kvsum():
        A("s_waitcnt vmcnt(2)")
        A(f"""
        s_lshr_b32 s47, s40, 1
        s_lshl_b32 s47, s47, 10
        s_and_b32 s38, s40, 1
        s_lshl_b32 s38, s38, 3
        s_add_u32 s47, s47, s38
        s_add_u32 s47, s47, {KVT_L}
        v_add_u32 v4, s47, v3            ; kvT write address
        """)
        b = KVP
        for rr in range(1, 8):
            A(f"v_pk_add_f32 v[{b}:{b+1}], v[{b}:{b+1}], v[{b+4*rr}:{b+4*rr+1}]")
            A(f"v_pk_add_f32 v[{b+2}:{b+3}], v[{b+2}:{b+3}], v[{b+4*rr+2}:{b+4*rr+3}]")
        A(f"v_cvt_pk_bf16_f32 v{b}, v{b}, v{b+1}")
        A(f"v_cvt_pk_bf16_f32 v{b+1}, v{b+2}, v{b+3}")
        A(f"ds_write_b64 v4, v[{b}:{b+1}]")
        j = A.uid("KZS")
        A("s_cmp_eq_u32 s84, 0"); A(f"s_cbranch_scc1 {j}")
        for rr in range(1, 8):
            A(f"v_add_f32 v{ZP}, v{ZP}, v{ZP+rr}")
        A(f"""
        v_lshlrev_b32 v5, 1, v0
        v_add_u32 v5, {Z_L}, v5          ; z write address (lane = f)
        v_cvt_pk_bf16_f32 v{ZP}, v{ZP}, v{ZP}
        ds_write_b16 v5, v{ZP}
        """)
        A.label(j)
    period({1: ((), (), (kvsum,))})
    pbar(A, cfg, None)
    A(f"""
    s_mov_b32 s60, 6
    s_mov_b32 s61, 7
    {"s_lshr_b32 s47, s40, 2" if XT8 else "s_mov_b32 s47, 0"}
    s_xor_b32 s47, s47, s40
    s_and_b32 s47, s47, {1 if E8 else 5}
    s_cmp_lg_u32 s47, 1
    s_cbranch_scc1 K2_LOOP
    """)
    KVT, ZR, NUM, DEN, OA = 192, 208, 224, 240, 244
    A(f"""
    v_add_u32 v4, {KVT_L}, v3
    v_lshrrev_b32 v5, 5, v0
    v_lshlrev_b32 v5, 3, v5
    v_add_u32 v5, {Z_L}, v5          ; Z + hh*8
    """)
    for s in range(4):
        A(f"ds_read_b128 v[{KVT+4*s}:{KVT+4*s+3}], v4 offset:{s*1024}")
        A(f"ds_read_b64 v[{ZR+4*s}:{ZR+4*s+1}], v5 offset:{32*s}")
        A(f"ds_read_b64 v[{ZR+4*s+2}:{ZR+4*s+3}], v5 offset:{32*s+16}")
    def zmask():
        A("v_bfe_u32 v4, v0, 2, 1")
        A("v_bfe_u32 v5, v0, 4, 1")
        A("v_cmp_eq_u32 vcc, v4, v5")
        A("v_mov_b32 v4, 0")
        A("s_nop 0")
        for k in range(16): A(f"v_cndmask_b32 v{ZR+k}, v4, v{ZR+k}, vcc")
    def amfma(t):
        def f():
            for s in range(4):
                c = "0" if s == 0 else f"v[{NUM}:{NUM+15}]"
                A(f"v_mfma_f32_32x32x16_bf16 v[{NUM}:{NUM+15}], v[{KVT+4*s}:{KVT+4*s+3}], v[{PHQ+16*t+4*s}:{PHQ+16*t+4*s+3}], {c}")
                c = "0" if s == 0 else f"v[{DEN}:{DEN+3}]"
                A(f"v_mfma_f32_16x16x32_bf16 v[{DEN}:{DEN+3}], v[{ZR+4*s}:{ZR+4*s+3}], v[{PHQ+16*t+4*s}:{PHQ+16*t+4*s+3}], {c}")
        return f
    def afin():
        A(f"v_add_f32 v4, {fhex(1e-6)}, v{DEN}")
        A("v_rcp_f32 v4, v4")
        A("s_nop 0")
        for k in range(8):
            A(f"v_pk_mul_f32 v[{NUM+2*k}:{NUM+2*k+1}], v[{NUM+2*k}:{NUM+2*k+1}], v[4:5] op_sel_hi:[1,0]")
        cvt_tile(A, OA, NUM)
        A(f"buffer_store_dwordx4 v[{OA}:{OA+3}], v3, s[32:35], s74 offen sc1")
        A(f"buffer_store_dwordx4 v[{OA+4}:{OA+7}], v3, s[32:35], s74 offen offset:1024 sc1")
        A("s_add_u32 s74, s74, 65536")
    if E8:
        period({0: ((), (), (zmask, amfma(0))), 1: ((), (), (afin, amfma(1))), 2: ((), (), (afin,))})
        pbar(A, cfg, "s_waitcnt vmcnt(6)")
    else:
        period({0: ((), (), (zmask, amfma(0))), 1: ((), (), (afin, amfma(1))), 2: ((), (), (afin, amfma(2))), 3: ((), (), (afin, amfma(3)))})
        A.nop(12)
        afin()
        pbar(A, cfg, "s_waitcnt vmcnt(10)")
    P16 = cfg.get("p16")
    A.label("KD_7")
    A(f"""
    s_mov_b32 s60, 7
    v_and_b32 v45, 31, v0
    v_lshlrev_b32 v45, 2, v45        ; (l&31)*4
    v_lshlrev_b32 v35, 2, v0         ; lane*4
    v_lshrrev_b32 v4, 3, v0
    v_lshlrev_b32 v5, 11, v4         ; row*2048
    v_and_b32 v7, 7, v0
    v_bfe_u32 v6, v0, 4, {2 if P16 else 1}
    v_lshlrev_b32 v6, {1 if P16 else 2}, v6
    v_xor_b32 v7, v7, v6
    v_lshl_add_u32 v5, v7, 4, v5
    s_lshl_b32 s47, s18, 9
    s_lshl_b32 s38, s19, 4
    s_add_u32 s47, s47, s38
    s_lshl_b32 s47, s47, 11
    s_lshl_b32 s38, s17, 7
    s_add_u32 s47, s47, s38          ; + C*128
    v_add_u32 v36, s47, v5           ; piece 0
    v_add_u32 v37, {16384 - 1024}, v36 ; piece 1 (with offset:1024)
    v_lshrrev_b32 v7, 5, v0          ; hh
    v_bfe_u32 v6, v0, 2, 2           ; i>>2
    v_lshl_add_u32 v7, v7, 2, v6
    v_lshlrev_b32 v7, 7, v7
    v_bfe_u32 v6, v0, 4, 1
    v_bfe_u32 v5, v0, 1, 1
    v_lshl_add_u32 v6, v6, 1, v5
    v_bfe_u32 v5, v0, 3, 1
    v_lshlrev_b32 v5, 2, v5
    v_xor_b32 v6, v6, v5
    v_lshl_add_u32 v7, v6, 4, v7
    v_and_b32 v5, 1, v0
    v_lshl_add_u32 v7, v5, 3, v7
    s_lshl_b32 s38, s18, 13
    v_add_u32 v38, s38, v7           ; cb=0
    v_xor_b32 v39, 64, v38           ; cb=1
    s_add_u32 s80, s30, {WSL(0)}
    """)
    if P16:
        A(f"""
        v_lshrrev_b32 v4, 4, v0          ; q4
        v_and_b32 v5, 15, v0             ; i
        v_lshlrev_b32 v39, 4, v5
        v_lshl_add_u32 v39, v4, 9, v39   ; o : q4 * 512 + i * 16
        v_lshrrev_b32 v6, 1, v4
        v_lshlrev_b32 v6, 4, v6          ; 16 fr
        v_and_b32 v7, 1, v4
        v_lshl_add_u32 v6, v7, 2, v6     ; + 4 hh
        v_lshrrev_b32 v5, 2, v5
        v_add_u32 v6, v6, v5             ; k row
        v_lshlrev_b32 v38, 7, v6
        v_bfe_u32 v6, v6, 1, 2           ; (row >> 1) & 3
        v_lshl_add_u32 v38, v6, 5, v38
        v_and_b32 v5, 3, v0
        v_lshl_add_u32 v38, v5, 3, v38
        v_add_u32 v38, s38, v38
        v_and_b32 v45, 15, v0
        v_lshlrev_b32 v45, 2, v45        ; (l&15)*4
        """)
    def wo_ops(m0src):
        a = [m0src, "s_nop 0", "buffer_load_dwordx4 v36, s[20:23], s29 offen lds"]
        b = ["buffer_load_dwordx4 v37, s[20:23], s29 offen offset:1024 lds", f"s_add_u32 s29, s29, {64*2048}"]
        return a, b
    A.label("K2_LOOPB")
    wa, wb = wo_ops("s_mov_b32 m0, s80")
    wb = wb + ["s_add_u32 s80, s80, 16384"]
    ca, cb_ = dma_ops()
    period({0: (tuple(wa), tuple(wb), ()), 1: (tuple(wa), tuple(wb), ()), 2: (tuple(ca), tuple(cb_), ())}, dma=False)
    if cfg.get("prof") == "2":
        pbar(A, cfg, "s_waitcnt vmcnt(6)")
        A("""
        s_add_u32 s60, s60, 1
        s_cmp_eq_u32 s60, 10
        """)
    else:
        A("""
        s_add_u32 s60, s60, 1
        s_cmp_eq_u32 s60, 10
        s_waitcnt vmcnt(6)
        s_barrier
        """)
    A(f"""
    s_cbranch_scc1 KB_10
    s_cmp_eq_u32 s60, 9
    s_cbranch_scc1 KB_9
    s_and_b32 s47, s40, 5
    s_cmp_lg_u32 s47, 1
    s_cbranch_scc1 K2_LOOPB
    """)
    set_flag(A, "s88")
    A("s_branch K2_LOOPB")
    A.label("KB_9")
    poll_issue(A, 47, 35, 32, "s36")
    A("s_branch K2_LOOPB")
    A.label("KB_10")
    vstamp(A, cfg, 8, PR)
    poll_check(A, 47, 35, 32, "s36", "PA")
    G, OMG = 32, 34
    OF = 128
    vm = VM(A, ["W4", "W4", "W5", "W5", "c12", "c12"])
    vm.now("G", f"buffer_load_dword v{G}, v45, s[32:35], s31 offen sc1")
    if P16: vm.now("G", f"buffer_load_dword v35, v45, s[32:35], s31 offen offset:64 sc1")
    OV = 39 if P16 else 3
    ooff = (lambda j: (j >> 1)*2048 + (j & 1)*256) if P16 else (lambda j: j*1024)
    nld = [0]
    AE = int(cfg.get("ae", 0))
    assert AE in (0, 4, 5) and not (AE and P16)
    OFA = (lambda s: OF + 16*(s % 5)) if AE else (lambda s: OF + 16*s)
    ACE, WE, WEA = 224, (208, 216), 116
    def oload():
        k = nld[0]; nld[0] += 1
        s, j = divmod(k, 4)
        r = OFA(s) + 4*j
        def f():
            vm.now(f"o{k}" if AE else "o", f"buffer_load_dwordx4 v[{r}:{r+3}], v{OV}, s[32:35], s28 offen offset:{ooff(j)} sc1")
            if j == 3: A("s_add_u32 s28, s28, 4096")
        return f
    if AE:
        A(f"v_add_u32 v{WEA}, {WSL(0)}, v38")
        A(f"v_add_u32 v{WEA+1}, {WSL(0)}, v39")
        LQM[0] = LQ(["V1", "K0", "K1", "V0"])
    def ae_read(k, cb):
        s, j = divmod(k, 4)
        fs = []
        for sec in range(2):
            r = WE[k & 1] + 4*cb + 2*sec
            fs.append(LQM[0].rd(f"w{k}{cb}", f"ds_read_b64_tr_b16 v[{r}:{r+1}], v{WEA+cb} offset:{s*16384 + (16*j+8*sec)*128}"))
        return tuple(fs)
    def ae_mfma(k, cb):
        s, j = divmod(k, 4)
        def f():
            vm.wait(f"o{k}"); LQM[0].wait(f"w{k}{cb}")
            a = ACE + 16*cb; w = WE[k & 1] + 4*cb; o = OFA(s) + 4*j
            A(f"v_mfma_f32_32x32x16_bf16 v[{a}:{a+15}], v[{w}:{w+3}], v[{o}:{o+3}], " + ("0" if k == 0 else f"v[{a}:{a+15}]"))
        return f
    def lines(tag, ls):
        def f():
            for l in ls:
                if l.startswith("buffer_"): vm.now(tag, l)
                else: A(l)
        return f
    BT = int(cfg.get("btouch", 0))
    def btouch():
        A(f"""
        s_and_b32 s47, s16, 3
        s_lshl_b32 s47, s47, 3
        s_add_u32 s47, s47, s40
        s_lshl_b32 s47, s47, 5
        v_add_u32 v44, s47, v0
        v_lshlrev_b32 v44, 11, v44
        s_lshl_b32 s47, s17, 7
        v_add_u32 v44, s47, v44
        v_mov_b32 v4, 0x7ffffff0
        v_cmp_gt_u32 vcc, 32, v0
        s_mov_b32 s92, s6
        s_mov_b32 s93, s7
        s_mov_b32 s94, {1024*2048}
        s_mov_b32 s95, 0x00020000
        v_cndmask_b32 v44, v4, v44, vcc
        """)
        vm.now("T", "buffer_load_dword v44, v44, s[92:95], 0 offen")
    for n in range(10, 16):
        sides = {}
        if n <= 12:
            a, b = dma_ops()
            sides[0] = ((lines(f"c{n+3}", a),), (lines(f"c{n+3}", b),), (oload(),))
            sides[1] = ((oload(),), (oload(),), ())
            if AE == 5 and n == 12:
                sides[2] = ((), (), ()); sides[3] = ((), (), ())
                sides[1] = ((oload(),), (oload(),), ())
            else:
                sides[2] = ((oload(),), (oload(),), ())
                sides[3] = ((oload(),), (), ())
        elif n <= 14:
            a, b = wo_ops(f"s_add_u32 m0, s30, {WSL(n - 7)}")
            if AE == 4:
                sides[0] = ((lines("W", a),), (lines("W", b),), (oload(),))
                sides[1] = ((oload(),), (oload(),), ())
                sides[2] = ((oload(),), (), ()) if n == 14 else ((oload(),), (oload(),), ())
                sides[3] = ((), (), ()) if n == 14 else ((oload(),), (), ())
            else:
                sides[0] = ((lines("W", a),), (lines("W", b),), (oload(),))
                sides[1] = ((oload(),), (oload(),), ())
                sides[2] = ((oload(),), (), ())
                sides[3] = ((oload(),), (), ())
        else:
            sides[0] = ((oload(),), (oload(),), ())
            sides[1] = ((oload(),), (oload(),), ())
        if n == BT: sides[3] = (sides[3][0], sides[3][1], tuple(sides[3][2]) + (btouch,))
        if AE:
            assert AE == 4
            for i in range(4):
                sa, sb, en = sides.get(i, ((), (), ()))
                k = 4*(n - (16 - AE)) + i
                if 0 <= k < 4*AE:
                    sa = (ae_mfma(k, 0),) + tuple(sa); sb = (ae_mfma(k, 1),) + tuple(sb)
                if 0 <= k + 1 < 4*AE:
                    sa = tuple(sa) + ae_read(k + 1, 0); sb = tuple(sb) + ae_read(k + 1, 1)
                sides[i] = (sa, sb, en)
        period(sides, dma=False)
        if n <= 13:
            pbar(A, cfg, lambda: vm.wait(f"c{n+2}"))
        elif cfg.get("prof") == "2":
            bstamp(A, cfg, 0); bstamp(A, cfg, 1); bstamp(A, cfg, 2)
        if n == 12: vstamp(A, cfg, 9, PR)
    assert nld[0] == 32
    A(f"""
    s_mov_b32 s60, 16
    s_waitcnt lgkmcnt(0)
    v_mfma_f32_32x32x16_bf16 v[{O}:{O+15}], v[{V1}:{V1+3}], v[{P+4}:{P+7}], v[{O}:{O+15}]
    v_mfma_f32_16x16x32_bf16 v[{L}:{L+3}], v[{SEL}:{SEL+3}], v[{P+4}:{P+7}], v[{L}:{L+3}]
    """)
    vstamp(A, cfg, 10, PR)
    rst(A, cfg, 0)
    A("v_lshlrev_b32 v45, 3, v0")
    A.nop(12)
    A.label("K2_FIN")
    A(f"v_rcp_f32 v4, v{L}")
    A("s_nop 0")
    for k in range(8):
        A(f"v_pk_mul_f32 v[{O+2*k}:{O+2*k+1}], v[{O+2*k}:{O+2*k+1}], v[4:5] op_sel_hi:[1,0]")
    A("v_mov_b32 v6, 0")
    for k in range(16):
        A(f"v_fma_f32 v6, v{O+k}, 0, v6")
    A(f"""
    v_mov_b32 v7, {fhex(2.0**120)}
    v_cmp_u_f32 vcc, v6, v6
    v_cmp_nlt_f32 s[62:63], v{L}, v7
    s_or_b64 vcc, vcc, s[62:63]
    """)
    if cfg.get("force_fb"):
        A("s_mov_b64 vcc, -1")
    A(f"""
    s_cmp_eq_u32 s60, 16
    s_cselect_b64 vcc, vcc, 0
    s_cbranch_vccnz K2_FB
    """)
    for i in range(8):
        A(f"v_cvt_pk_bf16_f32 v{P+i}, v{O+2*i}, v{O+2*i+1}")
    A(f"buffer_store_dwordx4 v[{P}:{P+3}], v3, s[32:35], s73 offen sc1")
    A(f"buffer_store_dwordx4 v[{P+4}:{P+7}], v3, s[32:35], s73 offen offset:1024 sc1")
    EF = cfg.get("ef")
    if EF:
        A("""
        s_cmp_lt_u32 s40, 4
        s_cbranch_scc0 K3_EF1
        s_waitcnt vmcnt(0)
        """)
        set_flag(A, "s69")
        A("""
        s_branch K3_EF2
        K3_EF1:
        s_setprio 1
        s_waitcnt vmcnt(2)
        K3_EF2:
        """)
    else:
        A("s_waitcnt vmcnt(2)")
    A("s_barrier")
    vstamp(A, cfg, 11, PR)
    rst(A, cfg, 1)
    LQM[0] = None
    WFJ = [16, 24, 48, 56]
    ACCA, ACCB = (ACE if AE else 64), 96
    OFB = (lambda s: OF + 16*(s % 6)) if AE else (lambda s: OF + 16*s)
    P3V = cfg.get("p3v") in ("2", "3")
    OD = int(cfg.get("od", 8))
    P3R = cfg.get("p3v") == "3"
    BSL = lambda b: 32768 + 16384 * b if b < 2 else WSL(b - 2)
    def waddr(s, slot=WSL):
        if slot is None:
            A("v_add_u32 v40, s90, v38")
            A("v_add_u32 v41, s90, v39")
            A("s_add_u32 s90, s90, 16384")
            A("s_and_b32 s90, s90, 0x1ffff")
            return
        A(f"v_add_u32 v40, {slot(s)}, v38")
        if P16:
            A("v_xor_b32 v41, 32, v40"); A("v_xor_b32 v42, 64, v40"); A("v_xor_b32 v43, 0x60, v40")
        else:
            A(f"v_add_u32 v41, {slot(s)}, v39")
    W16F = lambda hd, cg: WFJ[2*hd + (cg >> 1)] + 4*(cg & 1)
    def wread16(hd, cg):
        for sec in range(2):
            r = W16F(hd, cg) + 2*sec
            A(f"ds_read_b64_tr_b16 v[{r}:{r+1}], v{40+cg} offset:{(32*hd+8*sec)*128}")
    def gemm16(acc_, after, owait, slot=WSL, inl={}, stamp=None, fs_tail=None):
        waddr(0, slot)
        A("s_nop 0")
        for hd in range(2):
            for cg in range(4): wread16(hd, cg)
        def jbody(s, j, more=0):
            last = s == 7
            hd, b = j >> 1, j & 1
            if owait: A(f"s_waitcnt vmcnt({min(4*OD + 4*s + j, 32) - (4*s + j) - 1})")
            for cg in range(4):
                if b == 0: A(f"s_waitcnt lgkmcnt({2*(3 - cg) + (0 if (last and hd == 1) else 8) + more})")
                w = W16F(hd, cg); o = OF + 16*s + 4*j; a = acc_ + 4*(2*cg + b)
                c = "0" if (s == 0 and hd == 0) else f"v[{a}:{a+3}]"
                A(f"v_mfma_f32_16x16x32_bf16 v[{a}:{a+3}], v[{w}:{w+3}], v[{o}:{o+3}], {c}")
                if b == 1 and not last: wread16(hd, cg)
            if j == 0 and not last: waddr(s + 1, slot)
            for l in inl.get((s, j), []):
                if callable(l): l()
                else: A(l)
            if owait and s + OD < 8: o_load(s + OD, j)
        for s in range(8):
            for j in range(4):
                if fs_tail and s == 7 and j == 2:
                    A("s_cmp_eq_u32 s18, 0"); A("s_cbranch_scc1 K3_G0T")
                    A("s_barrier")
                    for q in range(8): A(f"ds_read_b128 v[{OF+4*q}:{OF+4*q+3}], v4 offset:{q*1024}")
                    jbody(7, 2, 8); jbody(7, 3, 8)
                    if stamp is not None: rst(A, cfg, stamp + s)
                    fs_tail()
                    A.label("K3_G0T")
                jbody(s, j)
            if s in after: after[s]()
            if stamp is not None and cfg.get("prof") == "5" and (s in (1, 3, 5, 7) or owait):
                rst(A, cfg, stamp + s)
    def wreads(j):
        for cb in range(2):
            for sec in range(2):
                r = WFJ[j] + 4*cb + 2*sec
                A(f"ds_read_b64_tr_b16 v[{r}:{r+1}], v{40+cb} offset:{(16*j+8*sec)*128}")
    def gemm(acc_, after, owait, slot=WSL, inl={}, stamp=None, s0=0, fs_tail=None):
        if P16: return gemm16(acc_, after, owait, slot, inl, stamp, fs_tail)
        waddr(s0, slot)
        for j in range(4): wreads(j)
        for s in range(s0, 8):
            last = s == 7
            for j in range(4):
                if owait: A(f"s_waitcnt vmcnt({min(4*OD + 4*s + j, 32) - (4*s + j) - 1 + (4 if (AE and 4*s + j < 4*OD) else 0)})")
                for cb in range(2):
                    n = (14 - 2*cb) if not last else (14 - 4*j - 2*cb)
                    A(f"s_waitcnt lgkmcnt({n})")
                    w = WFJ[j] + 4*cb; o = (OFB(s) if owait else OFA(s)) + 4*j; a = acc_ + 16*cb
                    c = "0" if (s == 0 and j == 0) else f"v[{a}:{a+15}]"
                    A(f"v_mfma_f32_32x32x16_bf16 v[{a}:{a+15}], v[{w}:{w+3}], v[{o}:{o+3}], {c}")
                if not last:
                    if j == 0: waddr(s + 1, slot)
                    wreads(j)
                for l in inl.get((s, j), []):
                    if callable(l): l()
                    else: A(l)
                if owait and s + OD < 8: o_load(s + OD, j)
            if s in after: after[s]()
            if stamp is not None and cfg.get("prof") == "5" and (s in (1, 3, 5, 7) or owait):
                rst(A, cfg, stamp + s)
    def refill(s0):
        for s in range(s0, s0 + 4):
            a, b = wo_ops(f"s_add_u32 m0, s30, {WSL(s)}")
            for l in a + b: A(l)
    def a_flag():
        A("s_waitcnt vmcnt(0)")
        set_flag(A, "s69")
    def a_mid():
        A("s_barrier")
        A("""
        s_mov_b32 s20, s6
        s_mov_b32 s21, s7
        s_mov_b32 s29, 0
        """)
        refill(0)
    def a_poll():
        poll_issue(A, 46, 45, 32, "s83", n=2)
    FBPOS = int(cfg.get("fbpos", 2))
    RB0 = 32768 if P3V else 0
    def out_addr():
        A(f"""
        v_sub_f32 v{OMG}, 1.0, v{G}
        {"v_sub_f32 v46, 1.0, v35" if P16 else ""}
        v_and_b32 v4, {15 if P16 else 31}, v0
        s_lshl_b32 s38, s19, 5
        v_add_u32 v4, s38, v4
        v_mul_u32_u24 v4, {K3_ROW}, v4
        v_lshrrev_b32 v5, {4 if P16 else 5}, v0
        v_lshl_add_u32 v4, v5, 4, v4
        s_mul_i32 s38, s18, {K3_RED}
        {f"s_add_u32 s38, s38, {RB0}" if RB0 else ""}
        v_add_u32 v4, s38, v4            ; write address
        s_lshl_b32 s38, s40, 6
        v_add_u32 v10, s38, v0           ; tid
        v_lshrrev_b32 v5, 3, v10
        v_and_b32 v6, 7, v10             ; chunk
        v_mul_u32_u24 v7, {K3_ROW}, v5
        v_lshl_add_u32 v7, v6, 5, v7     ; read address
        {f"v_add_u32 v7, {RB0}, v7" if RB0 else ""}
        s_lshl_b32 s38, s16, 7
        v_add_u32 v5, s38, v5
        v_lshlrev_b32 v5, 11, v5
        v_lshl_add_u32 v5, v6, 4, v5
        s_lshl_b32 s38, s17, 7
        v_add_u32 v5, s38, v5            ; out offset
        """)
    FS = cfg.get("fs") == "1"
    assert not FS or (P16 and P3V and not AE and not P3R)
    def out_addr_fs():
        A(f"""
        v_sub_f32 v{OMG}, 1.0, v{G}
        v_sub_f32 v46, 1.0, v35
        s_lshl_b32 s38, s19, 13
        s_add_u32 s38, s38, {RB0}
        v_lshl_add_u32 v4, v0, 4, s38
        v_and_b32 v5, 15, v0
        s_lshl_b32 s38, s16, 7
        s_lshl_b32 s47, s19, 5
        s_add_u32 s38, s38, s47
        v_add_u32 v5, s38, v5            ; token
        v_lshlrev_b32 v5, 11, v5
        v_lshrrev_b32 v6, 4, v0
        v_lshl_add_u32 v5, v6, 4, v5
        s_lshl_b32 s38, s17, 7
        v_add_u32 v5, s38, v5            ; out offset
        v_add_u32 v6, {16*2048}, v5      ; tokens 16..31
        """)
    def prof_out():
        if cfg.get("prof"):
            A("s_waitcnt vmcnt(0)")
            vstamp(A, cfg, 14, PR)
            rst(A, cfg, 24)
            A(f"""
            s_mov_b32 s92, s14
            s_mov_b32 s93, s15
            s_mov_b32 s94, {64*MB}
            s_mov_b32 s95, 0x00020000
            s_lshl_b32 s90, s2, 3
            s_add_u32 s90, s90, s40
            s_lshl_b32 s90, s90, {8 if cfg.get("prof") in ("2", "3", "4", "5") else 7}
            s_add_u32 s90, s90, {WS_PROFV}
            v_lshlrev_b32 v1, 2, v0
            s_mov_b64 exec, {-1 if cfg.get("prof") in ("2", "3", "4", "5") else "0xffffffff"}
            buffer_store_dword v{PR}, v1, s[92:95], s90 offen
            """)
    def fma_out():
        for k in range(16):
            om = 46 if (P16 and (k >> 1) & 1) else OMG
            A(f"v_pk_fma_f32 v[{ACCA+2*k}:{ACCA+2*k+1}], v[{ACCB+2*k}:{ACCB+2*k+1}], v[{om}:{om+1}], v[{ACCA+2*k}:{ACCA+2*k+1}] op_sel_hi:[1,0,1]")
    def fs_tail1():
        vstamp(A, cfg, 13, PR)
        A("s_waitcnt lgkmcnt(0)")
        for k in range(16):
            A(f"v_pk_add_f32 v[{ACCA+2*k}:{ACCA+2*k+1}], v[{ACCA+2*k}:{ACCA+2*k+1}], v[{OF+2*k}:{OF+2*k+1}]")
        fma_out()
        rst(A, cfg, 22)
        D = OF + 32
        grp = [(p, b) for b in range(2) for p in range(2)]
        for g, (p, b) in enumerate(grp):
            x = ACCA + 4*(2*(2*p) + b); y = ACCA + 4*(2*(2*p + 1) + b); d = D + 4*g
            A(f"v_cvt_pk_bf16_f32 v{d}, v{x}, v{x+1}")
            A(f"v_cvt_pk_bf16_f32 v{d+1}, v{x+2}, v{x+3}")
            A(f"v_cvt_pk_bf16_f32 v{d+2}, v{y}, v{y+1}")
            A(f"v_cvt_pk_bf16_f32 v{d+3}, v{y+2}, v{y+3}")
        A("s_nop 1")
        for sw in ("32", "16"):
            for g in range(4):
                d = D + 4*g
                A(f"v_permlane{sw}_swap_b32 v{d}, v{d+2}")
                A(f"v_permlane{sw}_swap_b32 v{d+1}, v{d+3}")
        rst(A, cfg, 23)
        for g, (p, b) in enumerate(grp):
            d = D + 4*g
            A(f"buffer_store_dwordx4 v[{d}:{d+3}], v{5 + b}, s[24:27], 0 offen offset:{p*64} {cfg.get('ost', 'nt').replace('+', ' ')}")
        prof_out()
        A("s_endpgm")
    def scale_a():
        for k in range(16):
            if P16 and (k >> 1) & 1:
                A(f"v_pk_mul_f32 v[{ACCA+2*k}:{ACCA+2*k+1}], v[{ACCA+2*k}:{ACCA+2*k+1}], v[34:35] op_sel:[0,1] op_sel_hi:[1,1]")
            else:
                A(f"v_pk_mul_f32 v[{ACCA+2*k}:{ACCA+2*k+1}], v[{ACCA+2*k}:{ACCA+2*k+1}], v[{G}:{G+1}] op_sel_hi:[1,0]")
    def o_load(s, j):
        if j == 0:
            if s == 0: A(f"s_sub_u32 s28, s28, 32768" if cfg.get("expo") else f"s_add_u32 s28, s28, {4*MB - 32768}")
            if P3R:
                A("s_add_u32 s85, s28, s91")
                A("s_add_u32 s91, s91, 4096")
                A("s_and_b32 s91, s91, 0x7fff")
            elif s: A("s_add_u32 s28, s28, 4096")
        r = OFB(s) + 4*j
        A(f"buffer_load_dwordx4 v[{r}:{r+3}], v{OV}, s[32:35], {'s85' if P3R else 's28'} offen offset:{ooff(j)} sc1")
    def o_loads():
        for s in range(OD):
            for j in range(4): o_load(s, j)
    if P3V:
        A("""
        s_mov_b32 s20, s6
        s_mov_b32 s21, s7
        s_mov_b32 s29, 0
        """)
        inl = {}
        def bslab(b, s, j):
            a_, b_ = wo_ops(f"s_add_u32 m0, s30, {BSL(b)}")
            inl[(s, j)] = a_; inl[(s, j + 1)] = b_
        BS = cfg.get("bs", "0")
        bslab(0, 0, 0); bslab(1, 1, 0)
        if BS == "0":
            bslab(2, 4, 0); bslab(3, 4, 2); bslab(4, 5, 0); bslab(5, 5, 2)
        else:
            bslab(2, 2, 0); bslab(3, 3, 0); bslab(4, 4, 0); bslab(5, 5, 0)
        bslab(6, 6, 0); bslab(7, 6, 2)
        def a_flag2():
            if EF:
                j = A.uid("K3_F")
                A("s_cmp_lt_u32 s40, 4"); A(f"s_cbranch_scc1 {j}")
            A(f"s_waitcnt vmcnt({2 * min(FBPOS + 1, 2)})")
            set_flag(A, "s69")
            if EF:
                A("s_setprio 0")
                A.label(j)
        EP = int(cfg.get("ep", 0))
        def a_bar5():
            if EP:
                A("s_waitcnt vmcnt(7)")
                A("s_barrier")
                poll_check(A, 46, 45, 32, "s83", "PB", n=2)
                for b in (6, 7):
                    a_, b_ = wo_ops(f"s_add_u32 m0, s30, {BSL(b)}")
                    for l in a_ + b_: A(l)
                for s_ in range(EP):
                    for j in range(4): o_load(s_, j)
            else:
                A("s_barrier")
                a_poll()
        if EP:
            assert OD == EP + 2 and not P3R
            del inl[(6, 0)], inl[(6, 1)], inl[(6, 2)], inl[(6, 3)]
            inl[(4, 0)] = inl[(4, 0)] + [a_poll]
            for s_ in (6, 7):
                for j in range(4): inl[(s_, j)] = [(lambda s_=s_, j=j: o_load(EP + s_ - 6, j))]
        aft = {3: lambda: A("s_barrier"), 5: a_bar5}
        if FBPOS == 3: aft[3] = lambda: (a_flag2(), A("s_barrier"))
        else: aft[FBPOS] = a_flag2
        if BS == "1":
            assert FBPOS in (0, 1)
            if FBPOS == 1: aft[1] = lambda: (a_flag2(), A("s_barrier"))
            else: aft[1] = lambda: A("s_barrier")
        if AE:
            assert not EP and not P3R and BS == "0"
            inl.clear()
            n_ = 0
            for b in range(6):
                a_, b_ = wo_ops(f"s_add_u32 m0, s30, {BSL(b)}")
                inl[(AE + b // 4, b % 4)] = a_ + b_
            def a_flag3():
                j = A.uid("K3_F")
                if EF: A("s_cmp_lt_u32 s40, 4"); A(f"s_cbranch_scc1 {j}")
                nb = min(4 * (FBPOS + 1), 6)
                A(f"s_waitcnt vmcnt({2 * nb})")
                set_flag(A, "s69")
                if EF: A("s_setprio 0")
                A.label(j)
            AEP = int(cfg.get("aep", 6))
            assert AEP > AE + FBPOS or AEP == 7
            aft = {AE + FBPOS: a_flag3}
            aft[AEP] = a_poll if AEP != AE + FBPOS else (lambda: (a_flag3(), a_poll()))
            gemm(ACCA, aft, False, WSL, inl, 2, AE)
        else:
            gemm(ACCA, aft, False, WSL, inl, 2)
        vstamp(A, cfg, 12, PR)
        if P3R:
            RM = int(cfg.get("rmask", 6))
            A(f"""
            s_and_b32 s47, s17, {RM}
            s_lshl_b32 s90, s47, 14
            s_lshl_b32 s91, s47, 12
            v_add_u32 v38, 32768, v38
            v_add_u32 v39, 32768, v39
            """)
            if cfg.get("gfirst", "1") == "1":
                A("""
                s_and_b32 s47, s17, 1
                s_cmp_eq_u32 s47, s18
                s_cbranch_scc0 K3_NP
                s_setprio 1
                K3_NP:
                """)
        A(f"s_waitcnt vmcnt({4 * OD if EP else 0})")
        rst(A, cfg, 10)
        A("s_barrier")
        rst(A, cfg, 11)
        if not EP:
            poll_check(A, 46, 45, 32, "s83", "PB", n=2)
            rst(A, cfg, 12)
            o_loads()
            if AE:
                for b in (6, 7):
                    a_, b_ = wo_ops(f"s_add_u32 m0, s30, {BSL(b)}")
                    for l in a_ + b_: A(l)
            rst(A, cfg, 13)
        if FS: out_addr_fs()
        else: out_addr()
        scale_a()
        srd(A, 24, 8, 4194304)
        def zbar(g):
            def f():
                j = A.uid("K3_Z")
                A(f"s_cmp_eq_u32 s18, {g}"); A(f"s_cbranch_scc0 {j}"); A("s_barrier"); A.label(j)
            return f
        if P3R:
            gemm(ACCB, {}, True, None, {}, 14)
            vstamp(A, cfg, 13, PR)
            A("s_setprio 0")
            A("s_barrier")
            A.nop(12)
        elif AE:
            gemm(ACCB, {4: lambda: A("s_barrier")}, True, BSL, {}, 14)
            vstamp(A, cfg, 13, PR)
            A.nop(12)
        elif FS:
            gemm(ACCB, {int(cfg.get("zs", 4)): zbar(1)}, True, BSL, {}, 14, 0, fs_tail1)
            vstamp(A, cfg, 13, PR)
            A("s_barrier")
            A.nop(12)
            fma_out()
            for q in range(8): A(f"ds_write_b128 v4, v[{ACCA+4*q}:{ACCA+4*q+3}] offset:{q*1024}")
            A("s_waitcnt lgkmcnt(0)")
            rst(A, cfg, 22)
            A("s_barrier")
            rst(A, cfg, 23)
            prof_out()
            A("s_endpgm")
        else:
            gemm(ACCB, {4: zbar(1)}, True, BSL, {}, 14)
            vstamp(A, cfg, 13, PR)
            zbar(0)()
            A.nop(12)
    else:
        gemm(ACCA, {FBPOS: a_flag, 3: a_mid, 5: a_poll}, False)
        A("s_barrier")
        refill(4)
        vstamp(A, cfg, 12, PR)
        A("s_waitcnt vmcnt(8)")
        poll_check(A, 46, 45, 32, "s83", "PB", n=2)
        o_loads()
        A("s_waitcnt vmcnt(31)")
        A("s_barrier")
        gemm(ACCB, {}, True)
        vstamp(A, cfg, 13, PR)
        out_addr()
        scale_a()
        A("s_barrier")
        srd(A, 24, 8, 4194304)
        A.nop(4)
    if not FS:
        for k in range(16):
            om = 46 if (P16 and (k >> 1) & 1) else OMG
            A(f"v_pk_fma_f32 v[{ACCA+2*k}:{ACCA+2*k+1}], v[{ACCB+2*k}:{ACCB+2*k+1}], v[{om}:{om+1}], v[{ACCA+2*k}:{ACCA+2*k+1}] op_sel_hi:[1,0,1]")
        for cb in range(2):
            for q in range(4):
                r = ACCA + 16*cb + 4*q
                if P16: A(f"ds_write_b128 v4, v[{r}:{r+3}] offset:{(q & 1)*16*K3_ROW + (2*cb + (q >> 1))*64}")
                else: A(f"ds_write_b128 v4, v[{r}:{r+3}] offset:{cb*128 + q*32}")
        A("s_waitcnt lgkmcnt(0)")
        rst(A, cfg, 22)
        A("s_barrier")
        rst(A, cfg, 23)
        R = 128
        for it in range(2):
            for g in range(2):
                for hf in range(2):
                    r = R + 16*it + 8*g + 4*hf
                    A(f"ds_read_b128 v[{r}:{r+3}], v7 offset:{it*64*K3_ROW + g*K3_RED + hf*16}")
        for it in range(2):
            A(f"s_waitcnt lgkmcnt({4 - 4*it})")
            r = R + 16*it
            for k in range(4):
                A(f"v_pk_add_f32 v[{r+2*k}:{r+2*k+1}], v[{r+2*k}:{r+2*k+1}], v[{r+8+2*k}:{r+8+2*k+1}]")
            for k in range(4):
                A(f"v_cvt_pk_bf16_f32 v{r+k}, v{r+2*k}, v{r+2*k+1}")
            A(f"buffer_store_dwordx4 v[{r}:{r+3}], v5, s[24:27], 0 offen {cfg.get('ost', 'nt').replace('+', ' ')}")
            if it == 0: A(f"v_add_u32 v5, {64*2048}, v5")
        if cfg.get("prof"):
            A("s_waitcnt vmcnt(0)")
            vstamp(A, cfg, 14, PR)
            rst(A, cfg, 24)
            A(f"""
            s_mov_b32 s92, s14
            s_mov_b32 s93, s15
            s_mov_b32 s94, {64*MB}
            s_mov_b32 s95, 0x00020000
            s_lshl_b32 s90, s2, 3
            s_add_u32 s90, s90, s40
            s_lshl_b32 s90, s90, {8 if cfg.get("prof") in ("2", "3", "4", "5") else 7}
            s_add_u32 s90, s90, {WS_PROFV}
            v_lshlrev_b32 v1, 2, v0
            s_mov_b64 exec, {-1 if cfg.get("prof") in ("2", "3", "4", "5") else "0xffffffff"}
            buffer_store_dword v{PR}, v1, s[92:95], s90 offen
            """)
        A("s_endpgm")
    A.label("K2_FB")
    vstamp(A, cfg, 15, PR)
    A("s_mov_b32 s60, 17")
    A("s_mov_b32 s61, 0")
    for i in range(16): A(f"v_mov_b32 v{O+i}, 0")
    for i in range(4): A(f"v_mov_b32 v{L+i}, 0")
    A(f"v_mov_b32 v44, 0xff800000")
    A.label("K2_FBL")
    A(f"""
    buffer_load_dwordx4 v[{K0}:{K0+3}], v3, s[32:35], s70 offen sc1
    buffer_load_dwordx4 v[{K1}:{K1+3}], v3, s[32:35], s70 offen offset:1024 sc1
    buffer_load_dwordx4 v[{V0}:{V0+3}], v3, s[32:35], s70 offen offset:2048 sc1
    buffer_load_dwordx4 v[{V1}:{V1+3}], v3, s[32:35], s70 offen offset:3072 sc1
    s_add_u32 s70, s70, 4096
    s_waitcnt vmcnt(0)
    v_mfma_f32_32x32x16_bf16 v[{SA}:{SA+15}], v[{K0}:{K0+3}], v[{Q}:{Q+3}], 0
    v_mfma_f32_32x32x16_bf16 v[{SA}:{SA+15}], v[{K1}:{K1+3}], v[{Q+4}:{Q+7}], v[{SA}:{SA+15}]
    """)
    A.nop(12)
    A(f"v_max3_f32 v4, v{SA}, v{SA+1}, v{SA+2}")
    for k in range(3, 15, 2):
        A(f"v_max3_f32 v4, v4, v{SA+k}, v{SA+k+1}")
    A(f"v_max3_f32 v4, v4, v{SA+15}, v44")
    A("v_mov_b32 v5, v4")
    A.nop(2)
    A("v_permlane32_swap_b32 v4, v5")
    A("s_nop 0")
    A("v_max_f32 v4, v4, v5")
    A("v_sub_f32 v5, v44, v4")
    A("v_exp_f32 v5, v5")
    A("v_mov_b32 v44, v4")
    for k in range(16):
        A(f"v_sub_f32 v{SA+k}, v{SA+k}, v4")
    for k in range(16):
        A(f"v_exp_f32 v{SA+k}, v{SA+k}")
    for k in range(16):
        A(f"v_mul_f32 v{O+k}, v{O+k}, v5")
    for k in range(4):
        A(f"v_mul_f32 v{L+k}, v{L+k}, v5")
    for k in range(8):
        A(f"v_cvt_pk_bf16_f32 v{P+k}, v{SA+2*k}, v{SA+2*k+1}")
    A("s_nop 1")
    A(f"""
    v_mfma_f32_32x32x16_bf16 v[{O}:{O+15}], v[{V0}:{V0+3}], v[{P}:{P+3}], v[{O}:{O+15}]
    v_mfma_f32_16x16x32_bf16 v[{L}:{L+3}], v[{SEL}:{SEL+3}], v[{P}:{P+3}], v[{L}:{L+3}]
    v_mfma_f32_32x32x16_bf16 v[{O}:{O+15}], v[{V1}:{V1+3}], v[{P+4}:{P+7}], v[{O}:{O+15}]
    v_mfma_f32_16x16x32_bf16 v[{L}:{L+3}], v[{SEL}:{SEL+3}], v[{P+4}:{P+7}], v[{L}:{L+3}]
    s_add_u32 s61, s61, 1
    s_cmp_lt_u32 s61, 64
    """)
    A.nop(12)
    A("s_cbranch_scc1 K2_FBL")
    A("s_branch K2_FIN")
    A.label("KF_END")
    A("s_endpgm")
    if cfg.get("lf") == "1":
        L_ = A.lines
        i0 = L_.index("K1_LOADER:"); i1 = L_.index("K1_LPOST:")
        blk = L_[i0:i1]
        del L_[i0:i1]
        b = L_.index("    s_cbranch_scc1 K1_LOADER")
        assert L_[b-1].strip() == "s_cmp_ge_u32 s40, 4"
        L_[b-1:b+1] = ["    s_cmp_lt_u32 s40, 4", "    s_cbranch_scc1 K1_CONS"] + blk + ["    s_branch K1_LPOST", "K1_CONS:"]
    WU = cfg.get("wu")
    if WU:
        L_ = A.lines
        def after(pred, nth=0, start=0):
            k = [i for i in range(start, len(L_)) if pred(L_[i].strip())]
            return k[nth] + 1
        def stub(pos, name, nxt, skip=False):
            L_[pos:pos] = ([f"    s_branch {name}S"] if skip else []) + [f"{name}:", f"    s_branch {nxt}"] + ([f"{name}S:"] if skip else [])
        kb10 = L_.index("KB_10:")
        stub(after(lambda l: l == "s_endpgm"), "WU_9", "WU_BACK")
        stub(after(lambda l: l == "s_branch K3_EF2"), "WU_8", "WU_9" if WU == "1" else "WU_BACK")
        stub(after(lambda l: l == "s_barrier", 1, kb10), "WU_7", "WU_BACK", skip=True)
        stub(kb10, "WU_6", "WU_7" if WU == "1" else "WU_BACK")
        stub(after(lambda l: l == "s_branch K1_E2L"), "WU_5", "WU_BACK")
        stub(after(lambda l: l.startswith("s_branch K1_TJ_")), "WU_4", "WU_5" if WU == "1" else "WU_BACK")
        p = after(lambda l: l == "s_barrier", 0, L_.index("K1_NOZ:")) - 1
        d = []
        if WU == "1":
            for w, t in ((0, "WU_4"), (1, "WU_6"), (2, "WU_8")): d += [f"    s_cmp_eq_u32 s40, {w}", f"    s_cbranch_scc1 {t}"]
        else:
            d += ["    s_cmp_eq_u32 s40, 9"] + [f"    s_cbranch_scc1 {t}" for t in ("WU_4", "WU_5", "WU_6", "WU_7", "WU_8", "WU_9")]
        L_[p:p] = d + ["WU_BACK:"]
    return K, KG_LDS
```

```python
from common import *

KNAME = NAME + "_kernel"
K1_XS = 32768
K1_NX = 3
K1_WB = K1_XS * K1_NX
K1_SLOT = 12288
K1_NSLOT = 5
K1_WPHI = K1_WB + K1_SLOT * K1_NSLOT
K1_TBUF = 4352
RING = 65536
QST = 65536
TBUF0 = 81920
RED0 = 98304
ZRED = 114688
KVT_L = 116736
Z_L = 120832
KG_LDS = 163840
def WSL(s): return 65536 + 16384 * s if s < 6 else 16384 * (s - 6)
WS_F1 = WS_FLAG
WS_FK = WS_FLAG + 4096
WS_FA = WS_FLAG + 16384
WS_FB = WS_FLAG + 20480
HB0 = 122880
HB1 = 139264
TBUF1 = 147456
BIAS = 80.0
K3_ROW = 272
K3_RED = 128 * K3_ROW
SPIN_MAX = 1 << 16
WS_PROFV = WS_PROF

def cvt_tile(A, dst, src):
    for i in range(8):
        A(f"v_cvt_pk_bf16_f32 v{dst+i}, v{src+2*i}, v{src+2*i+1}")

def bstamp(A, cfg, kind, reg=33):
    if cfg.get("prof") == "2":
        A("s_memtime s[96:97]")
        A(f"s_add_u32 m0, s100, {16*kind}")
        A("s_waitcnt lgkmcnt(0)")
        A(f"v_writelane_b32 v{reg}, s96, m0")
        if kind == 2: A("s_add_u32 s100, s100, 1")

def pbar(A, cfg, wait):
    bstamp(A, cfg, 0)
    if callable(wait): wait()
    elif wait: A(wait)
    bstamp(A, cfg, 1)
    A("s_barrier")
    bstamp(A, cfg, 2)

def vstamp(A, cfg, i, reg):
    if cfg.get("prof") == "1":
        A("s_memtime s[96:97]")
        A("s_memrealtime s[98:99]")
        A("s_waitcnt lgkmcnt(0)")
        A(f"v_writelane_b32 v{reg}, s96, {2*i}")
        A(f"v_writelane_b32 v{reg}, s98, {2*i+1}")

def rst(A, cfg, lane, reg=33):
    if cfg.get("prof") == "5":
        A("s_memrealtime s[96:97]")
        A("s_waitcnt lgkmcnt(0)")
        A(f"v_writelane_b32 v{reg}, s96, {lane}")

def poll_issue(A, vdst, vaddr, srd, soff, n=1):
    if n == 1: A(f"buffer_load_dword v{vdst}, v{vaddr}, s[{srd}:{srd+3}], {soff} offen sc1")
    else:      A(f"buffer_load_dwordx2 v[{vdst}:{vdst+1}], v{vaddr}, s[{srd}:{srd+3}], {soff} offen sc1")

def poll_check(A, vdst, vaddr, srd, soff, tag, expect=1, n=1):
    ok = A.uid(tag + "_OK"); sp = A.uid(tag + "_SP")
    def test():
        if n == 2: A(f"v_and_b32 v{vdst}, v{vdst}, v{vdst+1}")
        A(f"v_cmp_eq_u32 vcc, {expect}, v{vdst}")
        A("s_cmp_eq_u64 vcc, -1")
        A(f"s_cbranch_scc1 {ok}")
    test()
    A("s_mov_b32 s82, 0")
    A.label(sp)
    A("s_sleep 2")
    poll_issue(A, vdst, vaddr, srd, soff, n)
    A("s_add_u32 s82, s82, 1")
    A("s_waitcnt vmcnt(0)")
    test()
    A(f"s_cmp_lt_u32 s82, {SPIN_MAX}")
    A(f"s_cbranch_scc1 {sp}")
    A.label(ok)

def set_flag(A, soff):
    A(f"""
    s_mov_b64 exec, 1
    v_mov_b32 v4, 1
    v_mov_b32 v5, 0
    buffer_store_dword v4, v5, s[32:35], {soff} offen sc1
    s_mov_b64 exec, -1
    """)

class VM:
    def __init__(s, A, init=()): s.A = A; s.q = list(init)
    def op(s, tag, text):
        def f(): s.A(text); s.q.append(tag)
        return f
    def now(s, tag, text): s.op(tag, text)()
    def wait(s, *tags):
        idx = max([k for k, t in enumerate(s.q) if t in tags], default=-1)
        if idx < 0: return
        s.A(f"s_waitcnt vmcnt({len(s.q) - 1 - idx})")
        s.q = s.q[idx+1:]

def setup_p2(A):
    A(f"""
    s_lshl_b32 s70, s42, 18
    s_add_u32 s70, s70, {WS_KVB}
    s_lshl_b32 s47, s41, 1
    s_add_u32 s47, s47, 3
    s_and_b32 s47, s47, 15           ; chunk 3 of the rotated order
    s_lshl_b32 s47, s47, 14
    s_lshl_b32 s38, s40, 11
    s_add_u32 s71, s47, s38          ; offset within the head of this wave's part of the next chunk
    s_add_u32 s72, s38, {3*16384}    ; LDS offset of the same
    s_lshl_b32 s47, s41, 3
    s_add_u32 s47, s47, s40
    s_lshl_b32 s47, s47, 5
    s_add_u32 s47, s47, s42
    s_lshl_b32 s73, s47, 11
    s_add_u32 s73, s73, {WS_OB}      ; oB store offset
    s_lshr_b32 s39, s40, 1
    s_and_b32 s39, s39, 1            ; th
    s_lshl_b32 s47, s41, 3
    s_lshl_b32 s38, s39, 2
    s_add_u32 s47, s47, s38          ; r*8 + th*4
    s_lshl_b32 s47, s47, 5
    s_add_u32 s47, s47, s42
    s_lshl_b32 s74, s47, 11
    s_add_u32 s74, s74, {WS_OA}      ; oA store offset (waves 1, 3)
    s_lshl_b32 s75, s42, 16
    s_lshl_b32 s47, s40, 10
    s_add_u32 s75, s75, s47
    s_add_u32 s75, s75, {WS_KVP}
    s_lshl_b32 s47, s41, 13
    s_add_u32 s79, s75, s47          ; kv partial store offset
    s_lshl_b32 s76, s42, 11
    s_add_u32 s76, s76, {WS_ZP}
    s_lshl_b32 s47, s41, 8
    s_add_u32 s89, s76, s47          ; z partial store offset
    s_lshl_b32 s77, s42, 8
    s_add_u32 s77, s77, {WS_FK}
    s_lshl_b32 s47, s41, 5
    s_add_u32 s68, s77, s47
    s_lshl_b32 s47, s40, 2
    s_add_u32 s68, s68, s47
    s_lshl_b32 s78, s42, 6
    s_add_u32 s78, s78, {WS_F1}      ; F1 line
    s_lshl_b32 s47, s41, 3
    s_add_u32 s67, s78, s47
    s_lshl_b32 s38, s39, 2
    s_add_u32 s67, s67, s38
    s_lshl_b32 s88, s41, 8
    s_lshl_b32 s47, s42, 3
    s_add_u32 s88, s88, s47
    s_add_u32 s88, s88, s38
    s_add_u32 s88, s88, {WS_FA}
    s_lshl_b32 s47, s41, 1
    s_lshr_b32 s38, s40, 2
    s_add_u32 s47, s47, s38
    s_lshl_b32 s69, s47, 9
    s_lshl_b32 s47, s42, 4
    s_add_u32 s69, s69, s47
    s_and_b32 s47, s40, 3
    s_lshl_b32 s47, s47, 2
    s_add_u32 s69, s69, s47
    s_add_u32 s69, s69, {WS_FB}
    """)

def setup_p3(A):
    A(f"""
    s_load_dwordx2 s[4:5], s[0:1], 24
    s_load_dwordx2 s[6:7], s[0:1], 48
    s_load_dwordx2 s[8:9], s[0:1], 64
    s_lshr_b32 s16, s45, 1
    s_lshl_b32 s16, s16, 2
    s_lshr_b32 s47, s46, 3
    s_add_u32 s16, s16, s47          ; T = 4*(e>>1) + (i>>3)
    s_and_b32 s17, s45, 1
    s_lshl_b32 s17, s17, 3
    s_and_b32 s47, s46, 7
    s_add_u32 s17, s17, s47          ; C = 8*(e&1) + (i&7)
    s_lshr_b32 s18, s40, 2           ; grp
    s_and_b32 s19, s40, 3            ; tq
    s_lshl_b32 s47, s16, 2
    s_add_u32 s47, s47, s19          ; tb3
    s_lshl_b32 s28, s47, 16
    s_lshl_b32 s38, s18, 15
    s_add_u32 s28, s28, s38
    s_add_u32 s28, s28, {WS_OA}      ; o stream offset
    s_lshl_b32 s31, s47, 7
    s_add_u32 s31, s31, {WS_G}       ; g offset
    s_lshr_b32 s47, s16, 1
    s_lshl_b32 s36, s47, 8
    s_add_u32 s36, s36, {WS_FA}
    s_lshl_b32 s83, s16, 9
    s_add_u32 s83, s83, {WS_FB}
    s_lshl_b32 s30, s18, 13
    s_lshl_b32 s38, s19, 11
    s_add_u32 s30, s30, s38
    s_mov_b32 s29, 0                 ; wo soffset
    s_waitcnt lgkmcnt(0)
    s_mov_b32 s20, s4
    s_mov_b32 s21, s5
    s_mov_b32 s22, {1024*2048}
    s_mov_b32 s23, 0x00020000
    """)

def gen_kg(A, cfg):
    K = KNAME
    F1POS = int(cfg.get("f1pos", 2))
    ROT = int(cfg.get("rot", 12))
    RSH = int(cfg.get("rsh", 0))
    ROT2 = int(cfg.get("rot2", 0))
    PV = 255
    kernel_begin(A, K)
    A(f"""
    s_cmp_ge_u32 s2, 256
    s_cbranch_scc1 KF_END
    s_load_dwordx2 s[4:5], s[0:1], 0
    s_load_dwordx2 s[6:7], s[0:1], 8
    s_load_dwordx2 s[8:9], s[0:1], 40
    s_load_dwordx2 s[10:11], s[0:1], 16
    s_load_dwordx2 s[12:13], s[0:1], 56
    s_load_dwordx2 s[14:15], s[0:1], 80
    s_load_dwordx2 s[86:87], s[0:1], 72
    v_lshrrev_b32 v1, 6, v0
    v_and_b32 v0, 63, v0
    v_readfirstlane_b32 s40, v1
    s_and_b32 s45, s2, 7
    s_lshr_b32 s46, s2, 3
    """)
    if cfg.get("prof"): A(f"v_mov_b32 v{PV}, 0")
    vstamp(A, cfg, 0, PV)
    if cfg.get("prof") == "4":
        A("s_memrealtime s[96:97]")
        A("s_waitcnt lgkmcnt(0)")
        A(f"v_writelane_b32 v{PV}, s96, 40")
    ES = cfg.get("es") == "1"
    assert not ES or cfg.get("hmap", "f") == "f"
    if cfg.get("hmap", "f") == "f":
        A("""
        s_and_b32 s41, s45, 1
        s_lshl_b32 s41, s41, 2
        s_lshr_b32 s47, s46, 3
        s_add_u32 s41, s41, s47          ; r = 4(e&1) + (i>>3)
        s_lshr_b32 s42, s45, 1
        s_lshl_b32 s42, s42, 3
        s_and_b32 s47, s46, 7
        s_add_u32 s42, s42, s47          ; h = 8(e>>1) + (i&7)
        """)
        if not ES: A("s_waitcnt lgkmcnt(0)")
    elif cfg.get("hmap") == "h":
        A("""
        s_lshr_b32 s41, s45, 1
        s_lshl_b32 s41, s41, 1
        s_lshr_b32 s47, s46, 4
        s_add_u32 s41, s41, s47          ; r = 2(e>>1) + (i>>4)
        s_and_b32 s42, s45, 1
        s_lshl_b32 s42, s42, 4
        s_and_b32 s47, s46, 15
        s_add_u32 s42, s42, s47          ; h = 16(e&1) + (i&15)
        s_waitcnt lgkmcnt(0)
        """)
    else:
        A("""
        s_and_b32 s41, s46, 7            ; r
        s_lshl_b32 s42, s45, 2
        s_lshr_b32 s47, s46, 3
        s_add_u32 s42, s42, s47          ; h = 4e + (i>>3)
        s_waitcnt lgkmcnt(0)
        """)
    def rstamp(lane):
        if cfg.get("prof") == "4":
            A("s_memrealtime s[96:97]")
            A("s_waitcnt lgkmcnt(0)")
            A(f"v_writelane_b32 v{PV}, s96, {lane}")
    if not ES:
        rstamp(41)
        srd(A, 32, 14, WS_USED)
    A("""
    s_cmp_ge_u32 s40, 4
    s_cbranch_scc1 K1_LOADER
    """)
    if ES:
        A("s_waitcnt lgkmcnt(0)")
        rstamp(41)
        srd(A, 32, 14, WS_USED)
    PF3 = cfg.get("pf3")
    PF4 = cfg.get("pf4")
    L2D = int(cfg.get("l2d", 2)) if not (PF3 or PF4) else 0
    TL = int(cfg.get("tl", 4))
    TC = int(cfg.get("tc", 8))
    def touch_addr(w, dst, t0, t1, t2, shift, sa):
        OFFL = int(cfg.get("offl", 0))
        A(f"""
        s_and_b32 s47, s42, 1
        s_lshl_b32 s47, s47, 2
        s_and_b32 s38, s41, 3
        s_add_u32 s47, s47, s38          ; share of the pair's weight lines
        s_lshl_b32 s47, s47, 2
        v_bfe_u32 v{t0}, v0, 2, 1
        v_lshlrev_b32 v{t0}, 5, v{t0}    ; 32 * block
        v_and_b32 v{t2}, 3, v0
        v_add3_u32 v{dst}, v{t2}, v{t0}, s47
        v_mul_u32_u24 v{dst}, 6144, v{dst}
        v_lshrrev_b32 v{t1}, 3, v0       ; segment
        v_lshl_add_u32 v{dst}, v{t1}, 11, v{dst}
        s_lshr_b32 s47, s42, 1
        s_lshl_b32 s47, s47, 7
        v_add_u32 v{dst}, s47, v{dst}
        s_and_b32 {sa}, s42, 7
        """)
        if OFFL:
            A(f"""
            s_lshl_b32 s47, {sa}, 2
            s_add_u32 s47, s47, s38
            s_lshl_b32 s47, s47, 2
            v_add_u32 v{t2}, s47, v{t2}
            v_lshrrev_b32 v{t1}, 5, v{t2}
            v_and_b32 v{t2}, 31, v{t2}
            v_add_u32 v{t2}, v{t2}, v{t0}
            v_mul_u32_u24 v{t2}, 6144, v{t2}
            v_lshl_add_u32 v{t2}, v{t1}, 11, v{t2}
            s_lshr_b32 s47, s42, 1
            s_or_b32 s47, s47, 3
            s_lshl_b32 s47, s47, 7
            v_add_u32 v{t2}, s47, v{t2}
            v_cmp_lt_u32 vcc, 23, v0
            s_nop 1
            v_cndmask_b32 v{dst}, v{dst}, v{t2}, vcc
            s_cmp_lt_u32 {sa}, 6
            s_cselect_b32 s63, 32, 0         ; live lanes of the weight waves
            """)
            if OFFL == 1:
                A(f"""
                s_lshl_b32 s47, {sa}, 4
                s_mul_i32 s38, {sa}, 80
                s_sub_u32 s38, s38, {6*80 - 96}
                s_cmp_lt_u32 {sa}, 6
                s_cselect_b32 s47, s47, s38
                s_cselect_b32 {sa}, 16, 40        ; live lanes of wave 2
                s_cselect_b32 s38, 0, 40         ; live lanes of wave 3
                s_cmp_eq_u32 {w}, 3
                s_cselect_b32 {sa}, s38, {sa}
                s_cselect_b32 s38, 40, 0
                s_add_u32 s47, s47, s38
                """)
            elif OFFL == 2:
                A(f"""
                s_mul_i32 s47, {sa}, 43
                s_cmp_lt_u32 {sa}, 5
                s_cselect_b32 s38, 43, 41
                s_cmp_lt_u32 {sa}, 6
                s_cselect_b32 {sa}, s38, 0
                s_cmp_eq_u32 {w}, 3
                s_cselect_b32 {sa}, 0, {sa}
                """)
            else:
                A(f"""
                s_lshl_b32 s47, {sa}, 5
                s_cmp_eq_u32 {w}, 3
                s_cselect_b32 {sa}, 0, 32
                """)
        else:
            A(f"""
            s_mov_b32 s63, 24
            s_lshl_b32 s47, {sa}, 5
            s_cmp_eq_u32 {w}, 3
            s_cselect_b32 {sa}, 0, 32
            """)
        A(f"""
        s_lshl_b32 s38, s41, 8
        s_add_u32 s47, s47, s38
        v_add_u32 v{t1}, s47, v0
        v_lshlrev_b32 v{t1}, 11, v{t1}   ; x row
        v_bfe_u32 v{t0}, v0, 1, 1
        s_and_b32 s38, s45, 1
        v_xor_b32 v{t0}, s38, v{t0}      ; 0 : ours
        v_and_b32 v{t2}, 3, v0
        s_lshr_b32 s38, s45, 1
        v_xor_b32 v{t2}, s38, v{t2}
        s_cmp_ge_u32 {w}, 2
        s_cselect_b64 vcc, -1, 0
        s_cselect_b32 s47, {sa}, s63      ; live lanes
        s_mov_b32 s38, {(TC - TL) * 32 * 6144}
        s_cselect_b32 s38, {(TC - TL) * 64}, s38
        v_cndmask_b32 v{dst}, v{dst}, v{t1}, vcc
        v_cndmask_b32 v{t0}, v{t0}, v{t2}, vcc
        v_cmp_eq_u32 vcc, 0, v{t0}
        """)
        if shift:
            A(f"""
            v_mov_b32 v{t1}, s38
            s_nop 0
            v_cndmask_b32 v{t1}, 0, v{t1}, vcc
            v_add_u32 v{dst}, v{dst}, v{t1}
            v_cmp_gt_u32 vcc, s47, v0
            v_mov_b32 v{t1}, 0x7ffffff0
            s_nop 0
            v_cndmask_b32 v{dst}, v{t1}, v{dst}, vcc
            """)
        else:
            A(f"""
            v_cmp_gt_u32 s[62:63], s47, v0
            v_mov_b32 v{t1}, 0x7ffffff0
            s_and_b64 vcc, vcc, s[62:63]
            v_cndmask_b32 v{dst+2}, v{t1}, v{dst}, vcc
            v_cndmask_b32 v{dst}, v{t1}, v{dst}, s[62:63]
            """)
        A(f"""
        s_cmp_eq_u32 {w}, 0
        s_cselect_b32 s92, s6, s8
        s_cselect_b32 s93, s7, s9
        s_cmp_ge_u32 {w}, 2
        s_cselect_b32 s92, s4, s92
        s_cselect_b32 s93, s5, s93
        s_mov_b32 s94, {1024*6144}
        s_cselect_b32 s94, {2048*2048}, s94
        s_mov_b32 s95, 0x00020000
        """)
    rng = lambda t: range(*map(int, t.split(":"))) if t else range(0)
    PFA_ = rng(cfg.get("pfa", f"0:{4+L2D}")); PFB_ = rng(cfg.get("pfb", ""))
    PFA, PFD = 252, 253
    def l2pf(step=None):
        if step is None:
            A("s_and_b32 s55, s59, 31")
        else:
            A(f"s_add_u32 s55, s63, {step}")
            A("s_and_b32 s55, s55, 31")
        A(f"s_mul_i32 s55, s55, {32*6144}")
        A(f"buffer_load_dword v{PFD}, v{PFA}, s[92:95], s55 offen")
        if step is None: A("s_add_u32 s59, s59, 1")
    PF2 = cfg.get("pf2")
    def touch():
        return [f"buffer_load_dword v{PFD}, v{PFA}, s[92:95], s55 offen", "s_add_u32 s55, s55, s59", "s_cmp_eq_u32 s55, s56",
                "s_cselect_b32 s55, 0, s55", "s_xor_b32 s59, s59, s57"]
    if PF2:
        XW = int(cfg.get("pfx", 1))
        HM = cfg.get("hmap", "f") == "h"
        RB = 1 if HM else 2
        HB = 4 if HM else 3
        R20 = 0 if cfg.get("r2") == "early0" else 4
        A(f"""
        s_and_b32 s47, s42, 1
        s_lshl_b32 s47, s47, {RB}
        s_and_b32 s38, s41, {(1 << RB) - 1}
        s_add_u32 s47, s47, s38          ; share of the weight lines
        s_lshr_b32 s38, s42, 1
        s_lshl_b32 s47, s47, {4 - RB}
        s_lshl_b32 s38, s38, 7
        v_and_b32 v4, {(1 << (4 - RB)) - 1}, v0
        v_add_u32 v4, s47, v4
        v_mul_u32_u24 v4, 6144, v4
        v_lshrrev_b32 v5, {4 - RB}, v0
        v_lshl_add_u32 v4, v5, 11, v4    ; + segment * 2048
        v_add_u32 v4, s38, v4
        s_lshl_b32 s47, s41, 8
        s_and_b32 s38, s42, {(1 << HB) - 1}
        s_lshl_b32 s38, s38, {8 - HB}
        s_add_u32 s47, s47, s38
        v_add_u32 v6, s47, v0
        v_lshlrev_b32 v6, 11, v6
        s_cmp_eq_u32 s40, 0
        s_cselect_b64 vcc, -1, 0
        s_cselect_b32 s38, {1 << (7 - HB)}, {3 << (4 - RB)}
        v_mov_b32 v5, 0x7ffffff0
        v_cndmask_b32 v4, v4, v6, vcc
        v_cmp_gt_u32 vcc, s38, v0
        s_cmp_eq_u32 s40, 2
        s_cselect_b32 s92, s6, s8
        s_cselect_b32 s93, s7, s9
        s_cmp_ge_u32 s40, 2
        s_cselect_b32 s62, {1024*6144}, 0
        v_cndmask_b32 v{PFA}, v5, v4, vcc
        s_lshr_b32 s63, s45, {RSH}
        s_mul_i32 s63, s63, {ROT}
        s_and_b32 s47, s45, 1
        s_mul_i32 s47, s47, {ROT2}
        s_add_u32 s63, s63, s47
        s_add_u32 s63, s63, {R20}
        s_and_b32 s55, s63, 31
        s_mul_i32 s55, s55, {32*6144}
        s_mov_b32 s59, {32*6144}
        s_mov_b32 s57, 0
        s_mov_b32 s56, {1024*6144}
        s_cmp_lg_u32 s40, 0
        s_cbranch_scc1 K1_PFW
        s_mov_b32 s92, s4
        s_mov_b32 s93, s5
        s_mov_b32 s62, {2048*2048 if XW else 0}
        s_lshr_b32 s55, s63, 1
        s_and_b32 s55, s55, 15
        s_lshl_b32 s55, s55, 7
        s_mov_b32 s59, {1 << (18 - HB)}
        s_mov_b32 s57, {(1 << (18 - HB)) ^ ((128 - (1 << (18 - HB))) & 0xffffffff)}
        s_mov_b32 s56, 2048
        K1_PFW:
        s_mov_b32 s94, s62
        s_mov_b32 s95, 0x00020000
        """)
        if cfg.get("r2") == "early0":
            for t in range(int(cfg.get("e0n", 4))):
                for l in touch(): A(l)
        if cfg.get("r2") == "early":
            for t in range(L2D):
                for l in touch(): A(l)
    elif L2D:
        A(f"""
        s_and_b32 s47, s42, 1
        s_lshl_b32 s47, s47, 2
        s_and_b32 s38, s41, 3
        s_add_u32 s47, s47, s38
        s_lshr_b32 s38, s42, 1
        
        s_lshl_b32 s47, s47, 2
        s_lshl_b32 s38, s38, 7
        v_and_b32 v4, 3, v0
        v_add_u32 v4, s47, v4
        v_mul_u32_u24 v4, 6144, v4
        v_lshrrev_b32 v5, 2, v0
        v_lshl_add_u32 v4, v5, 11, v4    ; + segment * 2048
        v_add_u32 v4, s38, v4
        v_mov_b32 v5, 0x7ffffff0
        v_cmp_gt_u32 vcc, 12, v0
        s_cmp_eq_u32 s40, 2
        s_cselect_b32 s92, s6, s8
        s_cselect_b32 s93, s7, s9
        s_cmp_ge_u32 s40, 2
        s_cselect_b32 s62, {1024*6144}, 0
        s_mov_b32 s94, s62
        s_mov_b32 s95, 0x00020000
        v_cndmask_b32 v{PFA}, v5, v4, vcc
        s_lshr_b32 s63, s45, {RSH}
        s_mul_i32 s63, s63, {ROT}
        s_add_u32 s59, s63, {4 + L2D}
        """)
        for t in PFA_: l2pf(t)
    if PF4:
        assert ROT == 0 and ROT2 == 0
        touch_addr("s40", PFA, 4, 5, 6, False, "s62")
        A(f"""
        s_cmp_ge_u32 s40, 2
        s_mov_b32 s59, {64*6144}
        s_cselect_b32 s59, 128, s59
        s_mov_b32 s55, 0
        """)
        for t in range(int(cfg.get("r0", 0))):
            A(f"buffer_load_dword v{PFD}, v{PFA}, s[92:95], s55 offen")
            A("s_add_u32 s55, s55, s59")
        A(f"""
        s_cmp_ge_u32 s40, 2
        s_mov_b32 s55, {TL*32*6144}
        s_cselect_b32 s55, {TL*64}, s55
        """)
    rstamp(42)
    setup_p2(A)
    rstamp(43)
    A(f"""
    s_cmp_lg_u32 s40, 0
    s_cbranch_scc1 K1_NOZ
    v_lshlrev_b32 v4, 2, v0
    v_lshrrev_b32 v6, 2, v0
    v_lshlrev_b32 v6, 9, v6
    v_and_b32 v7, 3, v0
    v_lshl_add_u32 v6, v7, 2, v6
    v_mov_b32 v5, 0
    s_mov_b64 exec, 3
    buffer_store_dword v5, v4, s[32:35], s67 offen sc1
    buffer_store_dword v5, v4, s[32:35], s88 offen sc1
    s_mov_b64 exec, 0xff
    buffer_store_dword v5, v4, s[32:35], s68 offen sc1
    buffer_store_dword v5, v6, s[32:35], s69 offen sc1
    s_mov_b32 s36, s86
    s_mov_b32 s37, s87
    s_mov_b32 s38, 256
    s_mov_b32 s39, 0x00020000
    """)
    LATE = cfg.get("late")
    if not LATE:
        A("""
        s_waitcnt vmcnt(0)
        s_mov_b64 exec, 1
        v_mov_b32 v6, 1
        buffer_atomic_add v6, v5, s[36:39], 0 offen
        s_mov_b64 exec, -1
        """)
    else:
        A("s_mov_b64 exec, -1")
    A("""
    K1_NOZ:
    """)
    rstamp(44)
    setup_p3(A)
    rstamp(45)
    TW = cfg.get("tw")
    if TW:
        assert PF4
        A(f"""
        s_cmp_eq_u32 s40, 1
        s_cbranch_scc0 K1_TW2
        v_lshlrev_b32 v4, 12, v0
        s_lshl_b32 s47, s41, 15
        s_add_u32 s47, s47, s70
        s_mov_b64 exec, 0xff
        buffer_load_dword v{PFD}, v4, s[32:35], s47 offen
        s_mov_b64 exec, 1
        buffer_load_dword v{PFD}, v4, s[32:35], s79 offen
        buffer_load_dword v{PFD}, v4, s[32:35], s89 offen
        s_mov_b64 exec, -1
        K1_TW2:
        s_cmp_eq_u32 s40, 2
        s_cbranch_scc0 K1_TW3
        v_lshlrev_b32 v4, 16, v0
        s_sub_u32 s47, s73, {2*65536}
        s_mov_b64 exec, 0xff
        buffer_load_dword v{PFD}, v4, s[32:35], s47 offen
        s_sub_u32 s47, s47, {WS_OB - WS_OA}
        buffer_load_dword v{PFD}, v4, s[32:35], s47 offen
        s_mov_b64 exec, -1
        K1_TW3:
        """)
        if TW == "1":
            A(f"""
            s_cmp_eq_u32 s40, 3
            s_cbranch_scc0 K1_TW4
            s_mov_b32 s96, s8
            s_mov_b32 s97, s9
            s_mov_b32 s98, 4194304
            s_mov_b32 s99, 0x00020000
            v_lshlrev_b32 v4, 12, v0
            s_lshl_b32 s47, s16, 18
            s_lshl_b32 s38, s17, 7
            s_add_u32 s47, s47, s38
            buffer_load_dword v{PFD}, v4, s[96:99], s47 offen
            K1_TW4:
            """)
    XA, WA = 4, 20
    XB, WB = 32, 48
    ACC = 60
    acc = lambda sg, tt: ACC + (sg * 4 + tt) * 16
    A(f"""
    s_lshr_b32 s50, s40, 1           ; th
    s_and_b32 s51, s40, 1            ; type
    v_and_b32 v4, 31, v0
    v_lshrrev_b32 v5, 5, v0          ; hh
    v_bfe_u32 v6, v0, 2, 2           ; f = (l>>2)&3
    v_bfe_u32 v7, v0, 1, 3           ; (row>>1)&7
    v_xor_b32 v7, v5, v7
    v_lshlrev_b32 v7, 4, v7
    v_lshl_add_u32 v1, v4, 7, v7
    s_lshl_b32 s47, s50, 14
    v_add_u32 v1, s47, v1            ; vxa0
    v_xor_b32 v2, 32, v1             ; vxa1
    v_lshl_add_u32 v7, v5, 3, v6
    v_lshlrev_b32 v7, 6, v7          ; *64
    v_bfe_u32 v8, v0, 4, 1           ; g&1
    v_lshl_add_u32 v7, v8, 5, v7
    v_and_b32 v9, 3, v0
    v_lshl_add_u32 v7, v9, 3, v7
    s_lshl_b32 s47, s51, 11
    s_add_u32 s47, s47, {K1_WB}
    v_add_u32 v3, s47, v7            ; vwa
    """)
    M16 = cfg.get("m16")
    if M16:
        assert cfg.get("e8") and cfg.get("spread")
        A(f"""
        v_and_b32 v4, 15, v0             ; i
        v_lshrrev_b32 v5, 4, v0          ; q4
        v_lshrrev_b32 v6, 1, v4
        v_xor_b32 v6, v5, v6
        v_lshlrev_b32 v6, 4, v6
        v_lshl_add_u32 v1, v4, 7, v6
        s_lshl_b32 s38, s50, 14
        v_add_u32 v1, s38, v1
        v_lshrrev_b32 v6, 2, v4
        v_lshl_add_u32 v6, v5, 3, v6     ; k row 8 q4 + (i >> 2)
        v_lshlrev_b32 v6, 6, v6
        v_and_b32 v7, 1, v5
        v_lshl_add_u32 v6, v7, 5, v6
        v_and_b32 v7, 3, v0
        v_lshl_add_u32 v6, v7, 3, v6
        v_add_u32 v3, s47, v6            ; W columns 0..15
        v_xor_b32 v2, 32, v3             ; W columns 16..31
        """)
    A(f"""
    s_mov_b32 s48, {1 if cfg.get("spread") else 0}
    s_mov_b32 s49, {K1_SLOT}
    s_mov_b32 s65, 0
    s_mov_b32 s52, {K1_SLOT}
    s_mov_b32 s53, {-(K1_NSLOT-1)*K1_SLOT & 0xffffffff}
    s_mov_b32 s54, 32
    s_mov_b32 s64, 0                 ; x slot
    s_mov_b32 s66, {-(K1_NX-1)*K1_XS & 0xffffffff}
    """)
    for i in range(192):
        A(f"v_mov_b32 v{ACC+i}, 0")
    if PF2 and cfg.get("r2") != "early":
        for t in range(L2D + (4 - int(cfg.get("e0n", 4)) if cfg.get("r2") == "early0" else 0)):
            for l in touch(): A(l)
    rstamp(46)
    A("s_barrier")
    vstamp(A, cfg, 1, PV)
    if cfg.get("prof") == "4":
        A("s_memrealtime s[96:97]")
        A("s_waitcnt lgkmcnt(0)")
        A(f"v_writelane_b32 v{PV}, s96, 0")
    if cfg.get("prof") == "3":
        A("s_memtime s[96:97]")
        A("s_mov_b32 s100, 0")
        A("s_waitcnt lgkmcnt(0)")
        A("s_mov_b32 s101, s96")
    if L2D:
        for t in PFB_: l2pf(t)
    def reads(X, W, s):
        r = []
        xa = 1 if s == 0 else 2
        for tt in range(4):
            r.append(f"ds_read_b128 v[{X+4*tt}:{X+4*tt+3}], v{xa} offset:{tt*4096}")
        for sg in range(3):
            for sec in range(2):
                r.append(f"ds_read_b64_tr_b16 v[{W+4*sg+2*sec}:{W+4*sg+2*sec+1}], v3 offset:{sg*4096 + s*1024 + sec*256}")
        return [r[4], r[5], r[0], r[1], r[2], r[3], r[6], r[7], r[8], r[9]]
    def mfmas(X, W):
        m = []
        for sg in range(3):
            for tt in range(4):
                a = acc(sg, tt)
                w = f"v[{W+4*sg}:{W+4*sg+3}]"; x = f"v[{X+4*tt}:{X+4*tt+3}]"
                if cfg.get("exp16"):
                    m.append(f"v_mfma_f32_16x16x32_bf16 v[{a}:{a+3}], {w}, {x}, v[{a}:{a+3}]\nv_mfma_f32_16x16x32_bf16 v[{a+8}:{a+11}], {x}, {w}, v[{a+8}:{a+11}]")
                elif sg < 2: m.append(f"v_mfma_f32_32x32x16_bf16 v[{a}:{a+15}], {w}, {x}, v[{a}:{a+15}]")
                else:      m.append(f"v_mfma_f32_32x32x16_bf16 v[{a}:{a+15}], {x}, {w}, v[{a}:{a+15}]")
        return m
    X16, W16 = 4, 36
    def acc16(g, c):
        sg, ch = c >> 1, c & 1
        return acc(sg, g >> 1) + ((g & 1) * 8 + ch * 4 if sg < 2 else ch * 8 + (g & 1) * 4)
    def mf16(g, c):
        a = acc16(g, c); w = f"v[{W16+4*c}:{W16+4*c+3}]"; x = f"v[{X16+4*g}:{X16+4*g+3}]"
        return f"v_mfma_f32_16x16x32_bf16 v[{a}:{a+3}], " + (f"{w}, {x}" if c < 4 else f"{x}, {w}") + f", v[{a}:{a+3}]"
    rx16 = lambda g: f"ds_read_b128 v[{X16+4*g}:{X16+4*g+3}], v1 offset:{g*2048}"
    rw16 = lambda c, sec: f"ds_read_b64_tr_b16 v[{W16+4*c+2*sec}:{W16+4*c+2*sec+1}], v{3 - (c & 1)} offset:{(c >> 1)*4096 + sec*256}"
    H1R = {23: [rw16(5, 0), rw16(5, 1)]}
    for c in range(0, 5):
        H1R[4*c+3] = [rw16(c, 0)]; H1R[4*c+4] = [rw16(c, 1)]
    XAP = [int(x) for x in cfg.get("m16a", "0,1,2,4").split(",")]
    for g, k in enumerate(XAP): H1R[k] = [rx16(g)] + H1R.get(k, [])
    H1L = [l for k in range(24) for l in H1R.get(k, [])]
    H1N = lambda l: len(H1L) - 1 - H1L.index(l)
    if M16:
        for l in H1L: A(l)
    else:
        for l in reads(XA, WA, 0): A(l)
    if LATE:
        A("""
        s_cmp_lg_u32 s40, 0
        s_cbranch_scc1 K1_NOARR
        s_mov_b32 s96, s86
        s_mov_b32 s97, s87
        s_mov_b32 s98, 256
        s_mov_b32 s99, 0x00020000
        v_mov_b32 v32, 0
        v_mov_b32 v33, 1
        s_waitcnt vmcnt(0)
        s_mov_b64 exec, 1
        buffer_atomic_add v33, v32, s[96:99], 0 offen
        s_mov_b64 exec, -1
        K1_NOARR:
        """)
    if PF4:
        for t in range((TC - TL) // 2):
            A(f"buffer_load_dword v{PFD}, v{PFA+2}, s[92:95], s55 offen")
            A("s_add_u32 s55, s55, s59")
    A.label("K1_CLOOP")
    if M16:
        XP = int(cfg.get("m16x", 0))
        XS_ = int(cfg.get("m16s", 1))
        XBP = [XP + XS_ * g for g in range(4)]
        fr0 = [k for k in range(24) if k not in XBP and k % 4 != 3]
        ex0 = {[k for k in fr0 if k > XBP[-1]][0]: ["v_xad_u32 v1, v1, 64, s65"]}
        f2 = [k for k in fr0 if k not in ex0]
        ex0[f2[1]] = ["v_add_u32 v3, s49, v3"]; ex0[f2[3]] = ["v_add_u32 v2, s49, v2"]
        sal = ["s_sub_u32 s54, s54, 1", "s_and_b32 s63, s54, 1", "s_add_u32 s64, s64, s63",
               f"s_cmp_eq_u32 s64, {K1_NX}", f"s_cselect_b32 s65, s66, {K1_XS}", "s_cselect_b32 s64, 0, s64",
               "s_mul_i32 s65, s65, s63", "s_add_u32 s48, s48, 1", f"s_cmp_eq_u32 s48, {K1_NSLOT}",
               "s_cselect_b32 s49, s53, s52", "s_cselect_b32 s48, 0, s48", "s_cmp_lg_u32 s54, 0"]
        free = [k for k in range(1, 23) if len(H1R.get(k, [])) == 0]
        ex1 = {k: [] for k in free}
        for n, l in enumerate(sal): ex1[free[n * len(free) // len(sal)]].append(l)
        for k in range(24):
            nb = len([x for x in XBP if x < k])
            if k % 4 == 0:
                c = k // 4
                n = H1N(rw16(c, 1))
                if c == 0: n = min(n, H1N(rx16(0)))
                A(f"s_waitcnt lgkmcnt({min(15, n + nb)})")
                done = n
            if k in (1, 2, 3) and H1N(rx16(k)) < done:
                done = H1N(rx16(k)); A(f"s_waitcnt lgkmcnt({min(15, done + nb)})")
            A(mf16(k % 4, k // 4))
            if k in XBP: A(rx16(4 + XBP.index(k)))
            for l in ex0.get(k, []): A(l)
        for k in range(24):
            if k < 4 and (k == 0 or XS_ > 1): A(f"s_waitcnt lgkmcnt({(3 - k if XS_ > 1 else 0) + len([l for j in range(k) for l in H1R.get(j, [])])})")
            A(mf16(4 + k % 4, k // 4))
            for l in H1R.get(k, []) + ex1.get(k, []): A(l)
    else:
        A("s_waitcnt lgkmcnt(0)")
    m = mfmas(XA, WA); r = reads(XB, WB, 1)
    extra0 = {4: ["s_and_b32 s63, s54, 1", "s_add_u32 s64, s64, s63", f"s_cmp_eq_u32 s64, {K1_NX}",
                  f"s_cselect_b32 s65, s66, {K1_XS}", "s_cselect_b32 s64, 0, s64", "s_mul_i32 s65, s65, s63"],
              6: ["s_add_u32 s48, s48, 1", f"s_cmp_eq_u32 s48, {K1_NSLOT}", "s_cselect_b32 s49, s53, s52", "s_cselect_b32 s48, 0, s48"],
              7: ["v_xor_b32 v1, 64, v1", "v_xor_b32 v2, 64, v2"], 8: ["v_add_u32 v1, s65, v1", "v_add_u32 v2, s65, v2"], 9: ["v_add_u32 v3, s49, v3"]}
    SPREAD = cfg.get("spread")
    extra1 = {}
    if SPREAD:
        extra0 = {6: ["v_xad_u32 v1, v1, 64, s65"], 8: ["v_xad_u32 v2, v2, 64, s65"], 10: ["v_add_u32 v3, s49, v3"]}
        extra1 = {5: ["s_sub_u32 s54, s54, 1", "s_and_b32 s63, s54, 1", "s_add_u32 s64, s64, s63"],
                  6: [f"s_cmp_eq_u32 s64, {K1_NX}", f"s_cselect_b32 s65, s66, {K1_XS}", "s_cselect_b32 s64, 0, s64"],
                  7: ["s_mul_i32 s65, s65, s63", "s_add_u32 s48, s48, 1", f"s_cmp_eq_u32 s48, {K1_NSLOT}"],
                  8: ["s_cselect_b32 s49, s53, s52", "s_cselect_b32 s48, 0, s48"],
                  11: ["s_cmp_lg_u32 s54, 0"]}
        if PF2:
            t_ = touch()
            th_, tk_ = map(int, cfg.get("tpos", "1:9").split(":"))
            ex_ = extra1 if th_ else extra0
            after_dec = th_ == 1 and tk_ >= 5
            cmp_ = f"s_cmp_ge_u32 s54, {4 + L2D}" if after_dec else f"s_cmp_gt_u32 s54, {4 + L2D}"
            def addx(d, k, ls, front=False):
                d[k] = (ls + d.get(k, [])) if front else (d.get(k, []) + ls)
            if th_ == 1 and tk_ == 9:
                extra1[9] = [cmp_, "s_cselect_b32 s94, s62, 0", t_[0]]
                extra1[10] = t_[1:4]
                extra1[11] = [t_[4], "s_cmp_lg_u32 s54, 0"]
            else:
                assert not (th_ == 1 and 3 < tk_ < 9)
                addx(ex_, tk_, [cmp_, "s_cselect_b32 s94, s62, 0", t_[0]])
                addx(ex_, tk_ + 1, [t_[1], t_[2], t_[3], t_[4]])
        elif L2D:
            extra1[9] = [f"s_cmp_ge_u32 s54, {4 + L2D}", "s_cselect_b32 s94, s62, 0", "s_and_b32 s55, s59, 31"]
            extra1[10] = [f"s_mul_i32 s55, s55, {32*6144}", "s_add_u32 s59, s59, 1", f"buffer_load_dword v{PFD}, v{PFA}, s[92:95], s55 offen"]
    for k in range(0 if M16 else 12):
        A(m[k])
        if k < 5:
            A(r[2*k]); A(r[2*k+1])
        for l in extra0.get(k, []): A(l)
        if L2D and k == 10 and not SPREAD:
            assert not PF2
            A(f"s_cmp_gt_u32 s54, {4 + L2D}")
            A("s_cselect_b32 s94, s62, 0")
            l2pf()
    if not M16: A("s_waitcnt lgkmcnt(0)")
    m = mfmas(XB, WB); r = reads(XA, WA, 0)
    for k in range(0 if M16 else 12):
        A(m[k])
        if k < 5:
            A(r[2*k]); A(r[2*k+1])
        for l in extra1.get(k, []): A(l)
        if k == 8 and not SPREAD:
            A("s_sub_u32 s54, s54, 1"); A("s_cmp_lg_u32 s54, 0")
    if cfg.get("prof") == "3":
        A("s_memtime s[96:97]")
        A("s_barrier")
        A("s_memtime s[98:99]")
        A("s_waitcnt lgkmcnt(0)")
        A("s_sub_u32 s98, s98, s96")
        A("s_add_u32 s100, s100, s98")
        A("s_cmp_lg_u32 s54, 0")
    elif cfg.get("prof") == "4":
        A("s_barrier")
        A("s_memrealtime s[96:97]")
        A("s_sub_u32 m0, 32, s54")
        A("s_waitcnt lgkmcnt(0)")
        A(f"v_writelane_b32 v{PV}, s96, m0")
        A("s_cmp_lg_u32 s54, 0")
    else:
        A("s_barrier")
    A("s_cbranch_scc1 K1_CLOOP")
    A("s_waitcnt lgkmcnt(0)")
    if cfg.get("prof") == "3":
        A("s_memtime s[96:97]")
        A("s_waitcnt lgkmcnt(0)")
        A("s_sub_u32 s96, s96, s101")
        A(f"v_writelane_b32 v{PV}, s100, 0")
        A(f"v_writelane_b32 v{PV}, s96, 2")
    vstamp(A, cfg, 2, PV)
    E8 = cfg.get("e8")
    T1 = 4
    VB = acc(1, 0)
    QL = E8 and cfg.get("qlate", "1") == "1"
    V = acc(0, 2) if QL else acc(1, 0)
    Q = V + 16 if QL else acc(1, 0) + 32
    NT8 = 2 if E8 else 4
    if M16:
        A("""
        v_and_b32 v42, 15, v0            ; i
        v_lshrrev_b32 v43, 4, v0
        v_lshlrev_b32 v1, 4, v42
        v_lshl_add_u32 v40, v43, 9, v1   ; Q, V images : row * 512 + i * 16
        v_and_b32 v41, 1, v43
        v_lshl_add_u32 v41, v41, 10, v1
        v_lshrrev_b32 v43, 1, v43
        v_lshl_add_u32 v41, v43, 9, v41  ; swapped order : (row & 1) * 1024 + (row >> 1) * 512 + i * 16
        v_lshrrev_b32 v42, 3, v42
        v_lshl_add_u32 v42, v42, 7, v40  ; K image : tokens 8..15 and 16..23 change places
        """)
    A(f"""
    v_lshlrev_b32 v1, 4, v0          ; lane*16
    s_cmp_lg_u32 s51, 0
    s_cbranch_scc1 K1_E1T1
    s_mov_b32 s56, {fhex(32**-0.5 * LOG2E)}
    s_mov_b32 s57, s56
    s_lshl_b32 s47, s50, 13
    s_add_u32 s47, s47, {QST}
    v_add_u32 v44, s47, v{40 if M16 else 1}           ; Q staging address
    """)
    O2 = 256 if M16 else 1024
    def swap_tile(d):
        if M16:
            for k in range(4): A(f"v_permlane16_swap_b32 v{d+k}, v{d+4+k}")
    def handoff(srcs):
        for k, src in enumerate(srcs):
            cvt_tile(A, T1 + 8*k, src)
            A(f"ds_write_b128 v45, v[{T1+8*k}:{T1+8*k+3}] offset:{k*2048}")
            A(f"ds_write_b128 v45, v[{T1+8*k+4}:{T1+8*k+7}] offset:{k*2048+O2}")
        A("s_waitcnt lgkmcnt(0)")
        A("s_barrier")
    if E8:
        A(f"""
        s_lshl_b32 s47, s50, 13
        s_add_u32 s47, s47, {HB0}
        v_add_u32 v45, s47, v{41 if M16 else 1}
        """)
        A.nop(2)
        handoff([acc(0, 2), acc(0, 3), acc(2, 2), acc(2, 3)])
    else:
        A.nop(6)
    def bq_stage(tts, sc, adr, inplace):
        for tt in tts:
            for k in range(8):
                a = acc(1, tt) + 2*k
                A(f"v_pk_mul_f32 v[{a}:{a+1}], v[{a}:{a+1}], s[{sc}:{sc+1}]")
            d = acc(1, tt) if inplace else T1 + 8*tt
            cvt_tile(A, d, acc(1, tt))
            A(f"ds_write_b128 v{adr}, v[{d}:{d+3}] offset:{tt*2048}")
            A(f"ds_write_b128 v{adr}, v[{d+4}:{d+7}] offset:{tt*2048+O2}")
    if QL:
        A("""
        v_mov_b32 v26, v44
        s_mov_b32 s64, s56
        s_mov_b32 s65, s56
        """)
    else:
        bq_stage(range(4), 56, 44, False)
    for tt in range(NT8):
        cvt_tile(A, V + 8*tt, acc(2, tt))
        swap_tile(V + 8*tt)
    A("s_branch K1_E2J")
    A.label("K1_E1T1")
    A(f"""
    s_lshl_b32 s58, s41, 1
    s_add_u32 s58, s58, s50
    s_lshl_b32 s58, s58, 14
    s_add_u32 s58, s58, s70
    s_lshl_b32 s47, s50, 14
    v_add_u32 v44, s47, v{42 if M16 else 1}
    v_add_u32 v43, s47, v{40 if M16 else 1}
    """)
    if E8:
        A(f"""
        s_lshl_b32 s47, s50, 12
        s_add_u32 s47, s47, {HB1}
        v_add_u32 v45, s47, v{41 if M16 else 1}
        """)
        handoff([acc(0, 2), acc(0, 3)])
    else:
        A.nop(10)
    KA, K2 = (42, 128) if M16 else (1, 1024)
    VA = 40 if M16 else 1
    for tt in range(4):
        cvt_tile(A, T1 + 8*tt, acc(1, tt))
        A(f"buffer_store_dwordx4 v[{T1+8*tt}:{T1+8*tt+3}], v{KA}, s[32:35], s58 offen sc1")
        A(f"buffer_store_dwordx4 v[{T1+8*tt+4}:{T1+8*tt+7}], v{KA}, s[32:35], s58 offen offset:{K2} sc1")
        A("s_add_u32 s58, s58, 4096")
    A(f"s_sub_u32 s58, s58, {4*4096 - 2048}")
    for tt in range(4):
        cvt_tile(A, VB + 8*tt, acc(2, tt))
        A(f"buffer_store_dwordx4 v[{VB+8*tt}:{VB+8*tt+3}], v{VA}, s[32:35], s58 offen sc1")
        A(f"buffer_store_dwordx4 v[{VB+8*tt+4}:{VB+8*tt+7}], v{VA}, s[32:35], s58 offen offset:{O2} sc1")
        A("s_add_u32 s58, s58, 4096")
    for tt in range(4):
        A(f"ds_write_b128 v44, v[{T1+8*tt}:{T1+8*tt+3}] offset:{tt*4096}")
        A(f"ds_write_b128 v44, v[{T1+8*tt+4}:{T1+8*tt+7}] offset:{tt*4096+K2}")
        A(f"ds_write_b128 v43, v[{VB+8*tt}:{VB+8*tt+3}] offset:{tt*4096+2048}")
        A(f"ds_write_b128 v43, v[{VB+8*tt+4}:{VB+8*tt+7}] offset:{tt*4096+2048+O2}")
    A.label("K1_E2J")
    WP = 36
    krow = (lambda s, sec: 16*sec + 4*s) if M16 else (lambda s, sec: 16*s + 8*sec)
    def feat_setup(tb):
        A(f"""
        v_lshrrev_b32 v5, 5, v0          ; hh
        v_bfe_u32 v6, v0, 2, 2           ; i>>2
        v_lshl_add_u32 v6, v5, {3 if M16 else 2}, v6     ; 4hh + (i>>2)
        v_bfe_u32 v7, v0, 4, 1
        v_lshlrev_b32 v7, 5, v7
        v_and_b32 v8, 3, v0
        v_lshl_add_u32 v7, v8, 3, v7     ; (g&1)*32 + (i&3)*8
        v_lshl_add_u32 v2, v6, 6, v7
        v_add_u32 v2, {K1_WPHI}, v2
        """)
        for s in range(2):
            for sec in range(2):
                A(f"ds_read_b64_tr_b16 v[{WP+4*s+2*sec}:{WP+4*s+2*sec+1}], v2 offset:{krow(s, sec)*64}")
        A(f"""
        s_mul_i32 s47, s50, {K1_TBUF}
        s_add_u32 s47, s47, {tb}
        v_mul_u32_u24 v25, 136, v6
        v_add_u32 v25, v25, v7
        v_add_u32 v25, s47, v25
        v_and_b32 v8, 31, v0
        v_mul_u32_u24 v24, 136, v8
        v_lshl_add_u32 v24, v5, 3, v24
        v_add_u32 v24, s47, v24
        v_bfe_u32 v8, v0, 2, 1
        v_bfe_u32 v9, v0, 4, 1
        v_cmp_eq_u32 vcc, v8, v9
        v_mov_b32 v9, 0x3f803f80
        v_mov_b32 v8, 0
        v_cndmask_b32 v20, v8, v9, vcc
        v_cndmask_b32 v21, v8, v9, vcc
        v_cndmask_b32 v22, v8, v9, vcc
        v_cndmask_b32 v23, v8, v9, vcc
        """)
    feat_setup(TBUF0)
    for tt in range(NT8):
        cvt_tile(A, Q + 8*tt, acc(0, tt))
        swap_tile(Q + 8*tt)
    if M16: A("s_nop 0")
    if E8: A.label("K1_E2L")
    A("s_waitcnt lgkmcnt(0)")
    for tt in range(NT8):
        a = acc(0, tt)
        A(f"v_mfma_f32_32x32x16_bf16 v[{a}:{a+15}], v[{WP}:{WP+3}], v[{Q+8*tt}:{Q+8*tt+3}], 0")
    for tt in range(NT8):
        a = acc(0, tt)
        A(f"v_mfma_f32_32x32x16_bf16 v[{a}:{a+15}], v[{WP+4}:{WP+7}], v[{Q+8*tt+4}:{Q+8*tt+7}], v[{a}:{a+15}]")
    A(f"""
    s_mov_b32 s56, {fhex(LOG2E)}
    s_mov_b32 s57, s56
    """)
    A.nop(10)
    EP = acc(2, 0)
    PH = EP + 16
    AF = PH + 16
    KV0 = AF + 16
    KV1 = 44
    Z0, Z1, SEL1 = 12, 16, 20
    PHQ = 128
    def kv_mfmas(tt):
        out = []
        for s in range(2):
            for fb in range(2):
                kv = KV0 if fb == 0 else KV1
                z = Z0 if fb == 0 else Z1
                af = AF + (fb*2+s)*4
                c = "0" if (tt == 0 and s == 0) else f"v[{kv}:{kv+15}]"
                cz = "0" if (tt == 0 and s == 0) else f"v[{z}:{z+3}]"
                out.append(f"v_mfma_f32_32x32x16_bf16 v[{kv}:{kv+15}], v[{af}:{af+3}], v[{V+8*tt+4*s}:{V+8*tt+4*s+3}], {c}")
                out.append(f"v_mfma_f32_16x16x32_bf16 v[{z}:{z+3}], v[{SEL1}:{SEL1+3}], v[{af}:{af+3}], {cz}")
        return out
    if E8: F1POS = min(int(cfg.get("f1pos", 0)), 1)
    for tt in range(NT8):
        P = acc(0, tt)
        A(f"v_max3_f32 v4, v{P}, v{P+1}, v{P+2}")
        A(f"v_max3_f32 v5, -v{P}, -v{P+1}, -v{P+2}")
        for k in range(3, 15, 2):
            A(f"v_max3_f32 v4, v4, v{P+k}, v{P+k+1}")
            A(f"v_max3_f32 v5, v5, -v{P+k}, -v{P+k+1}")
        A(f"v_max_f32 v4, v4, v{P+15}")
        A(f"v_max_f32 v5, v5, -v{P+15}")
        A.nop(2)
        A("v_permlane32_swap_b32 v4, v5")
        A("s_nop 0")
        A("v_max_f32 v4, v4, v5")
        A("v_mov_b32 v5, v4")
        A.nop(2)
        A("v_permlane32_swap_b32 v4, v5")
        A("s_nop 0")
        A(f"v_mul_f32 v6, {fhex(-LOG2E)}, v4")
        A(f"v_mul_f32 v8, {fhex(-LOG2E)}, v5")
        for k in range(8):
            A(f"v_pk_fma_f32 v[{EP+2*k}:{EP+2*k+1}], v[{P+2*k}:{P+2*k+1}], s[56:57], v[6:7] op_sel_hi:[1,1,0]")
            A(f"v_pk_fma_f32 v[{P+2*k}:{P+2*k+1}], v[{P+2*k}:{P+2*k+1}], s[56:57], v[8:9] op_sel_hi:[1,1,0] neg_lo:[0,1,0] neg_hi:[0,1,0]")
        for k in range(16):
            A(f"v_exp_f32 v{EP+k}, v{EP+k}")
            A(f"v_exp_f32 v{P+k}, v{P+k}")
        if tt > 0:
            j = A.uid("K1_KVS")
            A("s_cmp_lg_u32 s51, 0"); A(f"s_cbranch_scc1 {j}")
            A("s_waitcnt lgkmcnt(0)")
            for l in kv_mfmas(tt-1): A(l)
            A.label(j)
        A(f"v_pk_add_f32 v[4:5], v[{EP}:{EP+1}], v[{EP+2}:{EP+3}]")
        A(f"v_pk_add_f32 v[6:7], v[{P}:{P+1}], v[{P+2}:{P+3}]")
        for k in range(2, 8):
            A(f"v_pk_add_f32 v[4:5], v[4:5], v[{EP+2*k}:{EP+2*k+1}]")
            A(f"v_pk_add_f32 v[6:7], v[6:7], v[{P+2*k}:{P+2*k+1}]")
        A("v_add_f32 v4, v4, v5")
        A("v_add_f32 v6, v6, v7")
        A.nop(2)
        A("v_permlane32_swap_b32 v4, v6")
        A("s_nop 0")
        A("v_add_f32 v4, v4, v6")
        A("v_rcp_f32 v4, v4")
        A("s_nop 0")
        A("v_mov_b32 v6, v4")
        A.nop(2)
        A("v_permlane32_swap_b32 v4, v6")
        A("s_nop 0")
        for k in range(8):
            A(f"v_pk_mul_f32 v[{EP+2*k}:{EP+2*k+1}], v[{EP+2*k}:{EP+2*k+1}], v[4:5] op_sel_hi:[1,0]")
            A(f"v_pk_mul_f32 v[{P+2*k}:{P+2*k+1}], v[{P+2*k}:{P+2*k+1}], v[6:7] op_sel_hi:[1,0]")
        j1 = A.uid("K1_T0"); j2 = A.uid("K1_TJ")
        A("s_cmp_eq_u32 s51, 0"); A(f"s_cbranch_scc1 {j1}")
        cvt_tile(A, PHQ + 16*tt, EP)
        cvt_tile(A, PHQ + 16*tt + 8, P)
        if tt == F1POS:
            if E8:
                A("s_cmp_ge_u32 s40, 4"); A(f"s_cbranch_scc1 {j2}")
            A("s_waitcnt vmcnt(0)")
            set_flag(A, "s67")
            vstamp(A, cfg, 3, PV)
        A(f"s_branch {j2}")
        A.label(j1)
        cvt_tile(A, PH, EP)
        cvt_tile(A, PH + 8, P)
        for sign in range(2):
            for b in range(4):
                A(f"ds_write_b64 v24, v[{PH+8*sign+2*b}:{PH+8*sign+2*b+1}] offset:{sign*64+b*16}")
        for fb in range(2):
            for s in range(2):
                for sec in range(2):
                    af = AF + (fb*2+s)*4 + 2*sec
                    A(f"ds_read_b64_tr_b16 v[{af}:{af+1}], v25 offset:{krow(s, sec)*136 + fb*64}")
        A.label(j2)
    A("s_cmp_lg_u32 s51, 0")
    A("s_cbranch_scc1 KF_JOIN")
    if QL:
        QN = int(cfg.get("qn", 4))
        A("s_cmp_ge_u32 s40, 4")
        A("s_cbranch_scc1 K1_QL0")
        bq_stage(range(QN), 64, 26, True)
        A(f"s_waitcnt lgkmcnt({2 * QN})")
        for l in kv_mfmas(NT8 - 1): A(l)
        bq_stage(range(QN, 4), 64, 26, True)
        A("s_branch K1_QL1")
        A("K1_QL0:")
        A("s_waitcnt lgkmcnt(0)")
        for l in kv_mfmas(NT8 - 1): A(l)
        A("K1_QL1:")
    else:
        A("s_waitcnt lgkmcnt(0)")
        for l in kv_mfmas(NT8 - 1): A(l)
    if E8:
        A(f"""
        s_cmp_ge_u32 s40, 4
        s_cselect_b32 s38, {HB0 - RED0}, 0
        s_cselect_b32 s55, 512, 0
        s_add_u32 s38, s38, {RED0}
        s_add_u32 s55, s55, {ZRED}
        """)
    else:
        A(f"s_mov_b32 s38, {RED0}")
        A(f"s_mov_b32 s55, {ZRED}")
    A(f"""
    s_lshl_b32 s47, s50, 13
    s_add_u32 s47, s47, s38
    v_add_u32 v2, s47, v1
    v_and_b32 v3, 31, v0
    v_lshlrev_b32 v3, 2, v3
    s_lshl_b32 s47, s50, 8
    s_add_u32 s47, s47, s55
    v_add_u32 v3, s47, v3
    """)
    A.nop(8)
    A(f"ds_write_b32 v3, v{Z0}")
    A(f"ds_write_b32 v3, v{Z1} offset:128")
    for fb in range(2):
        kv = KV0 if fb == 0 else KV1
        for q in range(4):
            A(f"ds_write_b128 v2, v[{kv+4*q}:{kv+4*q+3}] offset:{fb*4096+q*1024}")
    A("s_branch KF_JOIN")
    A.label("K1_LOADER")
    if cfg.get("lprio"): A(f"s_setprio {cfg.get('lprio')[0]}")
    def l_srd0():
        A("""
        s_cmp_eq_u32 s44, 0
        s_cselect_b32 s28, s6, s8
        s_cselect_b32 s29, s7, s9
        """)
        A(f"s_mov_b32 s30, {1024*6144}")
        A("s_mov_b32 s31, 0x00020000")
    def l_srd1():
        srd(A, 20, 6, 1024*6144)
        srd(A, 24, 8, 1024*6144)
    if not ES:
        srd(A, 16, 4, 2048*2048)
        l_srd1()
    A(f"""
    s_sub_u32 s50, s40, 4            ; w
    s_lshr_b32 s44, s50, 1
    """)
    if not ES: l_srd0()
    R1 = cfg.get("r1", "1") if cfg.get("pf2") else (cfg.get("r1", "0") if (PF3 or PF4) else "0")
    if R1 != "0":
        HM = cfg.get("hmap", "f") == "h"
        RB = 1 if HM else 2; HB = 4 if HM else 3
        NW = 3 << (4 - RB)
        A(f"""
        s_lshr_b32 s47, s45, {RSH}
        s_mul_i32 s47, s47, {ROT}
        s_and_b32 s51, s45, 1
        s_mul_i32 s51, s51, {ROT2}
        s_add_u32 s47, s47, s51
        s_and_b32 s51, s50, 1
        s_lshl_b32 s51, s51, 1
        s_add_u32 s51, s51, s47
        v_mul_u32_u24 v20, 43, v0
        v_lshrrev_b32 v20, {10 if HM else 9}, v20
        v_mul_u32_u24 v21, {NW}, v20
        v_sub_u32 v21, v0, v21           ; lane % NW
        v_add_u32 v20, s51, v20
        v_and_b32 v20, 31, v20
        v_mul_u32_u24 v20, {32*6144}, v20
        s_and_b32 s51, s42, 1
        s_lshl_b32 s51, s51, {RB}
        s_and_b32 s52, s41, {(1 << RB) - 1}
        s_add_u32 s51, s51, s52
        s_lshl_b32 s51, s51, {4 - RB}
        v_and_b32 v22, {(1 << (4 - RB)) - 1}, v21
        v_add_u32 v22, s51, v22
        v_mul_u32_u24 v22, 6144, v22
        v_lshrrev_b32 v21, {4 - RB}, v21
        v_lshl_add_u32 v22, v21, 11, v22
        s_lshr_b32 s51, s42, 1
        s_lshl_b32 s51, s51, 7
        v_add3_u32 v20, v20, v22, s51
        v_mov_b32 v23, 0x7ffffff0
        v_cmp_gt_u32 vcc, {2 * NW}, v0
        s_lshl_b32 s51, s41, 8
        s_and_b32 s52, s42, {(1 << HB) - 1}
        s_lshl_b32 s52, s52, {8 - HB}
        v_cndmask_b32 v20, v23, v20, vcc
        s_add_u32 s51, s51, s52
        s_lshl_b32 s52, s50, {6 - HB}
        s_add_u32 s51, s51, s52
        {"" if ES else "buffer_load_dword v24, v20, s[28:31], 0 offen"}
        v_and_b32 v21, {(1 << (6 - HB)) - 1}, v0
        v_add_u32 v21, s51, v21
        v_lshlrev_b32 v21, 11, v21
        v_lshrrev_b32 v22, {6 - HB}, v0
        s_lshr_b32 s47, s47, 1
        v_add_u32 v22, s47, v22
        v_and_b32 v22, 15, v22
        v_lshl_add_u32 v21, v22, 7, v21
        v_cmp_gt_u32 vcc, {2 << (6 - HB)}, v0
        s_nop 1
        v_cndmask_b32 v21, v23, v21, vcc
        {"" if ES else "buffer_load_dword v25, v21, s[16:19], 0 offen"}
        """)
    if not ES: srd(A, 36, 10, 32*2048)
    A(f"""
    v_lshrrev_b32 v1, 3, v0
    v_lshrrev_b32 v2, 4, v0
    v_and_b32 v3, 7, v0
    v_xor_b32 v3, v3, v2
    v_lshlrev_b32 v3, 4, v3
    v_lshl_add_u32 v4, v1, 11, v3
    s_lshl_b32 s47, s41, 8
    s_lshl_b32 s51, s50, 6
    s_add_u32 s47, s47, s51
    s_lshl_b32 s47, s47, 11          ; (r*256 + 64w)*2048
    v_add_u32 v4, s47, v4            ; piece 0
    v_xor_b32 v5, 64, v4
    v_add_u32 v5, 16384, v5
    v_add_u32 v6, 32768, v4
    v_add_u32 v7, 32768, v5
    v_add_u32 v12, 65536, v4
    v_add_u32 v13, 65536, v5
    v_add_u32 v14, 98304, v4
    v_add_u32 v15, 98304, v5
    """)
    if ES:
        assert R1 == "2"
        A("s_waitcnt lgkmcnt(0)")
        rstamp(41)
        l_srd0()
        A("buffer_load_dword v24, v20, s[28:31], 0 offen")
        srd(A, 16, 4, 2048*2048)
        A("buffer_load_dword v25, v21, s[16:19], 0 offen")
        l_srd1()
        srd(A, 36, 10, 32*2048)
        srd(A, 32, 14, WS_USED)
    A(f"""
    v_lshrrev_b32 v1, {3 if cfg.get("expw") else 2}, v0
    s_and_b32 s47, s50, 1
    s_lshl_b32 s47, s47, 4
    v_add_u32 v1, s47, v1            ; krow = 16*(w&1) + (l>>2)
    v_mul_u32_u24 v1, 6144, v1
    v_and_b32 v3, {7 if cfg.get("expw") else 3}, v0
    {"v_lshrrev_b32 v2, 4, v0" if cfg.get("m16") else ""}
    {"v_and_b32 v2, 2, v2" if cfg.get("m16") else ""}
    {"v_xor_b32 v3, v2, v3            ; m16 : the column halves of k rows 8..15 change places" if cfg.get("m16") else ""}
    v_lshl_add_u32 v1, v3, 4, v1
    s_lshl_b32 s47, s42, 6           ; 64h
    {"s_and_b32 s47, s47, 0x780" if cfg.get("expw") else ""}
    s_lshl_b32 s51, s44, 11          ; type*2048
    s_add_u32 s52, s47, s51
    v_add_u32 v9, s52, v1            ; seg1 : B.q / B.k
    s_sub_u32 s52, 2048, s51
    s_add_u32 s52, s52, s47
    v_add_u32 v8, s52, v1            ; seg0 : A.k / A.q
    s_add_u32 s52, s47, 4096
    v_add_u32 v10, s52, v1           ; seg2 : A.v / B.v
    v_lshlrev_b32 v11, 4, v0
    s_and_b32 s51, s50, 1
    s_lshl_b32 s51, s51, 10
    s_lshl_b32 s47, s42, 11
    s_add_u32 s47, s47, s51          ; w_phi offset = h*2048 + (w&1)*1024
    s_add_u32 m0, s51, {K1_WPHI}
    s_lshl_b32 s55, s50, 13          ; w*8192  (x pieces)
    {"s_waitcnt vmcnt(0)" if R1 == "1" else ""}
    buffer_load_dwordx4 v11, s[36:39], s47 offen lds
    s_lshl_b32 s51, s50, 10
    s_add_u32 s56, s51, {K1_WB}      ; W pieces : + w*1024
    s_lshr_b32 s47, s45, {RSH}
    s_mul_i32 s47, s47, {ROT}
    s_and_b32 s51, s45, 1
    s_mul_i32 s51, s51, {ROT2}
    s_add_u32 s47, s47, s51
    s_and_b32 s47, s47, 31           ; first k block (rotated per XCD group: spreads the x column reads over the channels)
    s_lshl_b32 s58, s47, 6           ; soffset x
    s_mul_i32 s59, s47, {32*6144}    ; soffset W
    s_mov_b32 s60, 0                 ; block
    s_mov_b32 s61, s55               ; x slot
    s_mov_b32 s62, s56               ; W slot
    s_add_u32 s55, s55, {K1_XS*K1_NX}
    s_add_u32 s56, s56, {K1_SLOT*K1_NSLOT}
    """)
    if PF3:
        TE = int(cfg.get("te", 2))
        OFFL = int(cfg.get("offl", 0))
        XT = int(cfg.get("pfx", 1))
        BW = TE // 2; LB = BW.bit_length() - 1
        assert cfg.get("hmap", "f") == "f"
        A(f"""
        s_and_b32 s51, s42, 7            ; head within the XCD
        s_and_b32 s52, s41, 3            ; token block within the XCD
        s_and_b32 s63, s42, 1
        s_lshl_b32 s63, s63, 2
        s_add_u32 s63, s63, s52          ; share of the pair's weight lines
        s_lshl_b32 s63, s63, 2           ; first row
        s_and_b32 s64, s50, 1
        s_lshl_b32 s64, s64, {5 + LB}    ; first row of this wave's group of blocks
        s_add_u32 s63, s63, s64
        v_bfe_u32 v27, v0, 2, {LB})
        v_lshlrev_b32 v30, 5, v27        ; 32 * block
        v_and_b32 v26, 3, v0
        v_add3_u32 v26, v26, v30, s63    ; row
        v_mul_u32_u24 v26, 6144, v26
        v_lshrrev_b32 v27, {2 + LB}, v0  ; segment
        v_lshl_add_u32 v26, v27, 11, v26
        s_lshr_b32 s63, s42, 1
        s_lshl_b32 s63, s63, 7
        v_add_u32 v26, s63, v26          ; + column of the pair
        v_mov_b32 v29, 0x7ffffff0
        v_cmp_gt_u32 vcc, 3, v27
        """.replace("v_bfe_u32 v27, v0, 2, 0)", "v_mov_b32 v27, 0").replace(")\n", "\n"))
        if OFFL:
            A(f"""
            s_cmp_lt_u32 s51, 6
            s_cselect_b64 vcc, vcc, 0
            v_cndmask_b32 v26, v29, v26, vcc
            s_lshl_b32 s63, s51, 2
            s_add_u32 s63, s63, s52
            s_lshl_b32 s63, s63, 2
            v_and_b32 v28, 3, v0
            v_add_u32 v31, s63, v28
            v_and_b32 v28, 31, v31
            v_add3_u32 v28, v28, v30, s64
            v_mul_u32_u24 v28, 6144, v28
            v_lshrrev_b32 v31, 5, v31
            v_lshl_add_u32 v28, v31, 11, v28
            s_lshr_b32 s63, s42, 1
            s_or_b32 s63, s63, 3
            s_lshl_b32 s63, s63, 7
            v_add_u32 v28, s63, v28
            v_cmp_eq_u32 vcc, 3, v27
            s_cmp_lt_u32 s51, 6
            s_cselect_b64 vcc, vcc, 0
            v_cndmask_b32 v26, v26, v28, vcc
            """)
        else:
            A("s_nop 1\nv_cndmask_b32 v26, v29, v26, vcc")
        if OFFL == 2:
            A(f"""
            s_mul_i32 s63, s51, 43
            v_add_u32 v27, s63, v0
            v_cmp_gt_u32 vcc, 43, v0
            s_movk_i32 s63, 0x100
            v_cmp_gt_u32 s[64:65], s63, v27
            s_and_b64 vcc, vcc, s[64:65]
            s_cmp_lt_u32 s51, 6
            s_cselect_b64 vcc, vcc, 0
            """)
        else:
            A(f"""
            s_lshl_b32 s63, s51, 5
            v_add_u32 v27, s63, v0
            v_cmp_gt_u32 vcc, 32, v0
            """)
        A(f"""
        s_lshl_b32 s63, s41, 8
        v_add_u32 v27, s63, v27          ; x row
        v_lshlrev_b32 v27, 11, v27
        v_cndmask_b32 v27, v29, v27, vcc
        s_lshr_b32 s63, s58, 6
        s_add_u32 s63, s63, {TL}
        s_and_b32 s63, s63, 31
        s_mul_i32 s64, s63, {32*6144}    ; weight offset
        s_lshr_b32 s63, s63, 1
        s_add_u32 s63, s63, s50
        s_and_b32 s63, s63, 15
        s_lshl_b32 s65, s63, 7           ; x offset
        s_cmp_lt_u32 s50, {BW}
        s_cselect_b32 s67, {2048*2048 if XT else 0}, 0
        s_cmp_lt_u32 s50, 2
        s_cselect_b32 s92, s6, s8
        s_cselect_b32 s93, s7, s9
        s_mov_b32 s94, 0
        s_mov_b32 s95, 0x00020000
        s_mov_b32 s88, s4
        s_mov_b32 s89, s5
        s_mov_b32 s90, 0
        s_mov_b32 s91, 0x00020000
        """)
    def pf4_setup():
        touch_addr("s50", 26, 27, 28, 29, True, "s66")
        A(f"""
        s_mov_b32 s67, s94
        s_cmp_ge_u32 s50, 2
        s_mov_b32 s64, {TL*32*6144}
        s_cselect_b32 s64, {TL*64}, s64
        s_mov_b32 s65, {64*6144}
        s_cselect_b32 s65, 128, s65
        """)
    ED = ES and cfg.get("ed", "1") == "1"
    if PF4 and not ED: pf4_setup()
    if PF4 and ED:
        A("""
        s_mov_b32 s92, s4
        s_mov_b32 s93, s5
        s_mov_b32 s94, 0
        s_mov_b32 s95, 0x00020000
        s_mov_b32 s64, 0
        v_mov_b32 v26, 0
        """)
    rstamp(42)
    if cfg.get("lprio"): A(f"s_setprio {cfg.get('lprio')[1]}")
    A("K1_LLOOP:")
    XV = [4, 5, 6, 7, 12, 13, 14, 15]
    def ld_x(i0=0, i1=8):
        for i in range(i0, i1):
            A(f"s_add_u32 m0, s61, {i*1024}")
            A("s_nop 0")
            A(f"buffer_load_dwordx4 v{XV[i]}, s[16:19], s58 offen lds")
        if i1 == 8: A(f"""
        s_add_u32 s58, s58, 128
        s_and_b32 s58, s58, 2047
        s_add_u32 s61, s61, {K1_XS}
        s_cmp_eq_u32 s61, s55
        s_cselect_b32 s47, {K1_XS*K1_NX}, 0
        s_sub_u32 s61, s61, s47
        """)
    def ld_w():
        for sg in range(3):
            A(f"s_add_u32 m0, s62, {sg*4096}")
            A("s_nop 0")
            A(f"buffer_load_dwordx4 v{8+sg}, s[{20+4*sg}:{23+4*sg}], s59 offen lds")
        A(f"""
        s_add_u32 s59, s59, {32*6144}
        s_cmp_eq_u32 s59, {1024*6144}
        s_cselect_b32 s59, 0, s59
        s_add_u32 s62, s62, {K1_SLOT}
        s_cmp_eq_u32 s62, s56
        s_cselect_b32 s47, {K1_SLOT*K1_NSLOT}, 0
        s_sub_u32 s62, s62, s47
        """)
    E8 = cfg.get("e8")
    def lsync(n=14):
        if cfg.get("prof") == "3":
            A("s_memtime s[96:97]")
            A(f"s_waitcnt vmcnt({n})")
            A("s_memtime s[98:99]")
            A("s_barrier")
            A("s_memtime s[90:91]")
            A("s_waitcnt lgkmcnt(0)")
            A("s_sub_u32 s96, s98, s96")
            A("s_add_u32 s100, s100, s96")
            A("s_sub_u32 s90, s90, s98")
            A("s_add_u32 s101, s101, s90")
        else:
            A(f"s_waitcnt vmcnt({n})")
            A("s_barrier")
    if cfg.get("prof") == "3":
        A("s_cmp_lg_u32 s60, 0")
        A("s_cbranch_scc1 K1_LP3")
        A("s_mov_b32 s100, 0")
        A("s_mov_b32 s101, 0")
        A.label("K1_LP3")
    BAL = int(cfg.get("bal", 0))
    NT = 2 if PF3 else 1 if PF4 else 0
    if BAL:
        ld_w(); ld_x(0, 8 - BAL)
    else:
        ld_x(); ld_w()
    A("""
    s_cmp_lt_u32 s60, 4
    s_cbranch_scc1 K1_LS1
    """)
    lsync(14 - BAL + NT)
    A("K1_LS1:")
    if BAL: ld_x(8 - BAL, 8)
    ld_w()
    if PF4:
        if ED:
            A("s_cmp_lg_u32 s60, 0"); A("s_cbranch_scc1 K1_PFS")
            pf4_setup()
            A("K1_PFS:")
        A(f"""
        s_cmp_le_u32 s60, {30 - TL}
        s_cselect_b32 s94, s67, 0
        buffer_load_dword v31, v26, s[92:95], s64 offen
        s_add_u32 s64, s64, s65
        """)
    if PF3:
        A(f"""
        s_and_b32 s63, s60, {TE - 1}
        s_cmp_le_u32 s60, {32 - TL - TE}
        s_cselect_b32 s63, s63, 1
        s_cmp_eq_u32 s63, 0
        s_cselect_b32 s94, {1024*6144}, 0
        s_cselect_b32 s90, s67, 0
        s_cselect_b32 s63, {TE*32*6144}, 0
        s_cselect_b32 s66, {TE*64}, 0
        buffer_load_dword v31, v26, s[92:95], s64 offen
        buffer_load_dword v31, v27, s[88:91], s65 offen
        s_add_u32 s64, s64, s63
        s_cmp_eq_u32 s64, {1024*6144}
        s_cselect_b32 s64, 0, s64
        s_add_u32 s65, s65, s66
        s_and_b32 s65, s65, 2047
        """)
    A("""
    s_cmp_lt_u32 s60, 2
    s_cbranch_scc1 K1_LS2
    """)
    if cfg.get("prof") == "4":
        A("s_cmp_lg_u32 s60, 2"); A("s_cbranch_scc1 K1_P4A"); rstamp(43); A(f"s_waitcnt vmcnt({14 + 2*NT})"); rstamp(44); A("K1_P4A:")
    lsync(14 + 2*NT)
    A("K1_LS2:")
    GW, GX, GA = (160, 168, 200) if E8 else (32, 64, 40)
    G1 = E8 and cfg.get("g1", "1") == "1"
    NG = 4 if G1 else 2
    XT8 = E8 and cfg.get("xt", "1") == "1"
    def gate_loads():
        srd(A, 36, 12, 2048)
        A(f"""
        s_lshl_b32 s47, s41, 8
        s_lshl_b32 s51, s42, 3
        s_add_u32 s47, s47, s51
        s_lshl_b32 s51, s50, 1
        {"s_and_b32 s51, s51, 4" if G1 else ""}
        s_add_u32 s63, s47, s51          ; t0 = r*256 + h*8 + 2w  /  + 4th
        s_lshl_b32 s51, s63, 11
        v_lshlrev_b32 v1, 5, v0
        buffer_load_dwordx4 v[{GW}:{GW+3}], v1, s[36:39], 0 offen
        buffer_load_dwordx4 v[{GW+4}:{GW+7}], v1, s[36:39], 0 offen offset:16
        """)
        for j in range(NG):
            A(f"buffer_load_dwordx4 v[{GX+8*j}:{GX+8*j+3}], v1, s[16:19], s51 offen")
            A(f"buffer_load_dwordx4 v[{GX+8*j+4}:{GX+8*j+7}], v1, s[16:19], s51 offen offset:16")
            if j < NG - 1: A("s_add_u32 s51, s51, 2048")
    def dbg_srd(r=36):
        A(f"""
        s_mov_b32 s{r}, s86
        s_mov_b32 s{r+1}, s87
        s_mov_b32 s{r+2}, 256
        s_mov_b32 s{r+3}, 0x00020000
        v_mov_b32 v46, 0
        """)
    A(f"""
    s_add_u32 s60, s60, 2
    s_cmp_lt_u32 s60, 32
    s_cbranch_scc1 K1_LLOOP
    """)
    if cfg.get("lf") == "1": A("K1_LPOST:")
    def ltail(gate):
        GN = (3 + 2*NG if gate else 1) if E8 else 0
        if E8:
            if gate:
                gate_loads()
                A("s_mov_b32 s84, s63")
            dbg_srd(92)
            poll_issue(A, 47, 46, 92, "0")
        A(f"""
        s_waitcnt vmcnt({3 + NT + GN})
        s_barrier
        """)
        if E8:
            setup_p2(A)
            A(f"s_add_u32 s74, s74, {2*65536}        ; oA offset of tiles 2, 3")
        A(f"""
        s_waitcnt vmcnt({GN})
        s_barrier
        """)
    if G1:
        A("s_bitcmp1_b32 s50, 0")
        A("s_cbranch_scc1 K1_LT1")
        ltail(False)
        A("s_branch K1_LT2")
        A("K1_LT1:")
        ltail(True)
        A("K1_LT2:")
    else:
        ltail(True)
    if cfg.get("prof") == "3":
        A(f"v_writelane_b32 v{PV}, s100, 0")
        A(f"v_writelane_b32 v{PV}, s101, 1")
    if cfg.get("lprio"): A("s_setprio 0")
    if E8:
        setup_p3(A)
        A("s_barrier")
        A(f"""
        s_and_b32 s51, s50, 1
        {"s_xor_b32 s51, s51, 1" if XT8 else ""}
        s_lshr_b32 s50, s50, 1
        """)
        feat_setup(TBUF1)
        A(f"""
        v_lshlrev_b32 v1, 4, v0          ; lane*16
        s_lshl_b32 s47, s50, 13
        s_add_u32 s47, s47, {HB0}
        s_lshl_b32 s38, s50, 12
        s_add_u32 s38, s38, {HB1}
        s_cmp_eq_u32 s51, 0
        s_cselect_b32 s47, s47, s38
        v_add_u32 v45, s47, v1
        """)
        for j in range(NG): A(f"v_mov_b32 v{GA+j}, 0")
        A("s_barrier")
        vstamp(A, cfg, 2, PV)
        A("s_waitcnt vmcnt(0)")
        poll_check(A, 47, 46, 92, "0", "PG", expect="0x100")
        A("s_barrier")
        EPR = cfg.get("eprio", "00")
        if EPR != "00":
            A(f"s_setprio {EPR[1]}")
            A("s_cmp_lg_u32 s51, 0")
            A("s_cbranch_scc1 K1_LP1")
            A(f"s_setprio {EPR[0]}")
            A("K1_LP1:")
        for k in range(2):
            A(f"ds_read_b128 v[{Q+8*k}:{Q+8*k+3}], v45 offset:{k*2048}")
            A(f"ds_read_b128 v[{Q+8*k+4}:{Q+8*k+7}], v45 offset:{k*2048+1024}")
        A("s_cmp_lg_u32 s51, 0")
        A(f"s_cbranch_scc1 {'K1_E2L' if (XT8 and G1) else 'K1_LNV'}")
        for k in range(2):
            A(f"ds_read_b128 v[{V+8*k}:{V+8*k+3}], v45 offset:{4096+k*2048}")
            A(f"ds_read_b128 v[{V+8*k+4}:{V+8*k+7}], v45 offset:{4096+k*2048+1024}")
        if G1 and not XT8: A("s_branch K1_E2L")
        A("K1_LNV:")
        for k in range(8):
            for j in range(NG):
                A(f"v_dot2c_f32_bf16 v{GA+j}, v{GX+8*j+k}, v{GW+k}")
            if NG == 2: A("s_nop 1")
        A.nop(3)
        for rot in (8, 4, 2, 1):
            for j in range(NG): A(f"v_add_f32_dpp v{GA+j}, v{GA+j}, v{GA+j} row_ror:{rot} row_mask:0xf bank_mask:0xf")
            if NG == 2: A("s_nop 1")
        if G1:
            A(f"""
            v_permlane16_swap_b32 v{GA}, v{GA+1}
            s_nop 0
            v_permlane16_swap_b32 v{GA+2}, v{GA+3}
            s_nop 1
            v_add_f32 v{GA}, v{GA}, v{GA+1}          ; rows : a01, b01, a23, b23
            v_add_f32 v{GA+1}, v{GA+2}, v{GA+3}      ; rows : c01, d01, c23, d23
            s_nop 1
            v_permlane32_swap_b32 v{GA}, v{GA+1}
            s_nop 1
            v_add_f32 v{GA}, v{GA}, v{GA+1}
            """)
        else:
            A(f"""
            v_permlane16_swap_b32 v{GA}, v{GA+1}
            s_nop 1
            v_add_f32 v{GA}, v{GA}, v{GA+1}          ; rows : a01, b01, a23, b23
            v_mov_b32 v{GA+1}, v{GA}
            s_nop 1
            v_permlane32_swap_b32 v{GA}, v{GA+1}
            s_nop 1
            v_add_f32 v{GA}, v{GA}, v{GA+1}          ; lanes 0..15 : token t0, lanes 16..31 : token t0 + 1
            """)
        A(f"""
        v_mul_f32 v{GA}, {fhex(-LOG2E)}, v{GA}
        v_exp_f32 v{GA}, v{GA}
        v_lshrrev_b32 v{GA+2}, 4, v0
        v_lshlrev_b32 v{GA+2}, 2, v{GA+2}
        v_add_f32 v{GA}, 1.0, v{GA}
        v_rcp_f32 v{GA}, v{GA}
        s_lshl_b32 s47, s84, 2
        s_add_u32 s47, s47, {WS_G}
        s_mov_b32 exec_lo, 0x10001
        s_mov_b32 exec_hi, {"0x10001" if G1 else "0"}
        buffer_store_dword v{GA}, v{GA+2}, s[32:35], s47 offen sc1
        s_mov_b64 exec, -1
        """)
        A("s_branch K1_E2L")
    else:
        gate_loads()
        A("""
        s_barrier
        s_barrier
        """)
        vstamp(A, cfg, 2, PV)
        for j in range(2): A(f"v_mov_b32 v{40+j}, 0")
        A("s_waitcnt vmcnt(0)")
        for k in range(8):
            for j in range(2):
                A(f"v_dot2c_f32_bf16 v{40+j}, v{GX+8*j+k}, v{32+k}")
            A("s_nop 1")
        A("v_lshlrev_b32 v3, 2, v0")
        A.nop(3)
        for mask in (1, 2, 4, 8, 16, 32):
            A(f"v_xor_b32 v4, {mask*4}, v3")
            for j in range(2): A(f"ds_bpermute_b32 v{5+j}, v4, v{40+j}")
            A("s_waitcnt lgkmcnt(0)")
            for j in range(2): A(f"v_add_f32 v{40+j}, v{40+j}, v{5+j}")
        A(f"v_cmp_eq_u32 vcc, 1, v0")
        A("s_nop 1")
        A(f"v_cndmask_b32 v40, v40, v41, vcc")
        A(f"""
        v_mul_f32 v40, {fhex(-LOG2E)}, v40
        v_exp_f32 v40, v40
        s_nop 0
        v_add_f32 v40, 1.0, v40
        v_rcp_f32 v40, v40
        s_lshl_b32 s47, s63, 2
        s_add_u32 s47, s47, {WS_G}
        s_mov_b64 exec, 3
        buffer_store_dword v40, v3, s[32:35], s47 offen sc1
        s_mov_b64 exec, -1
        """)
        setup_p2(A)
        setup_p3(A)
        A(f"""
        s_mov_b32 s85, s36
        v_and_b32 v35, 15, v0
        v_lshlrev_b32 v35, 2, v35
        """)
        dbg_srd()
        poll_issue(A, 47, 46, 36, "0")
        A("s_waitcnt vmcnt(0)")
        poll_check(A, 47, 46, 36, "0", "PG", expect="0x100")
        poll_issue(A, 47, 35, 32, "s78")
        A("s_waitcnt vmcnt(0)")
        poll_check(A, 47, 35, 32, "s78", "P1")
        vstamp(A, cfg, 3, PV)
        A(f"""
        v_lshlrev_b32 v3, 4, v0
        s_lshl_b32 s47, s50, 12          ; w*4096
        s_add_u32 m0, s47, {2*16384}
        s_lshl_b32 s51, s41, 1
        s_add_u32 s51, s51, 2
        s_and_b32 s51, s51, 15
        s_lshl_b32 s51, s51, 14
        s_add_u32 s51, s51, s47
        s_add_u32 s51, s51, s70
        """)
        for j in range(4):
            A(f"buffer_load_dwordx4 v3, s[32:35], s51 offen offset:{j*1024} sc1 lds")
        A("s_mov_b32 s36, s85")
    A.label("KF_JOIN")
    if cfg.get("e8") and cfg.get("eprio", "00") != "00": A("s_setprio 0")
    Q, K0, K1, V0, V1, SEL, NEGM, SA, SB, O, L, P = 8, 16, 20, 24, 28, 40, 48, 64, 80, 96, 112, 120
    PR = 33
    RD = 192
    if cfg.get("prof"): A(f"v_mov_b32 v{PR}, v{PV}")
    vstamp(A, cfg, 4, PR)
    JL = cfg.get("jl") == "1"
    def j_sel():
        A(f"""
        v_bfe_u32 v4, v0, 2, 1
        v_bfe_u32 v5, v0, 4, 1
        v_cmp_eq_u32 vcc, v4, v5
        v_mov_b32 v5, 0x3f803f80
        v_mov_b32 v4, 0
        v_cndmask_b32 v{SEL}, v4, v5, vcc
        v_cndmask_b32 v{SEL+1}, v4, v5, vcc
        v_cndmask_b32 v{SEL+2}, v4, v5, vcc
        v_cndmask_b32 v{SEL+3}, v4, v5, vcc
        v_mov_b32 v1, v3                 ; cur
        v_add_u32 v2, 16384, v3          ; next
        """)
    def j_zero(a, b):
        z = [O+i for i in range(16)]
        for i in range(4): z += [L+i, V1+i, P+4+i]
        z += [35, 36, 37, 38, 39, 45] + ([] if E8 else [46])
        for i in z[a:b]: A(f"v_mov_b32 v{i}, 0")
    A("v_lshlrev_b32 v3, 4, v0          ; lane*16")
    if not JL: j_sel()
    A(f"""
    s_lshl_b32 s47, s40, 11
    s_add_u32 s47, s47, {QST}
    v_add_u32 v6, s47, v3            ; Q staging address
    s_lshl_b32 s47, s40, 10
    s_add_u32 s47, s47, {RED0}
    v_add_u32 v7, s47, v3
    """)
    if not JL: j_zero(0, 99)
    if E8:
        A("v_and_b32 v46, 15, v0")
        A("v_lshlrev_b32 v46, 2, v46")
        poll_issue(A, 47, 46, 32, "s78")
    A(f"""
    s_mov_b32 s60, 0
    s_mov_b32 s61, 1
    s_waitcnt lgkmcnt(0)
    s_barrier
    """)
    vstamp(A, cfg, 5, PR)
    NRD = 4 if E8 else 2
    A(f"""
    ds_read_b128 v[{Q}:{Q+3}], v6
    ds_read_b128 v[{NEGM}:{NEGM+3}], v3
    ds_read_b128 v[{Q+4}:{Q+7}], v6 offset:1024
    ds_read_b128 v[{NEGM+4}:{NEGM+7}], v3 offset:1024
    ds_read_b128 v[{K0}:{K0+3}], v3 offset:4096
    ds_read_b128 v[{K1}:{K1+3}], v3 offset:{4096+1024}
    ds_read_b128 v[{V0}:{V0+3}], v3 offset:2048
    ds_read_b128 v[{RD}:{RD+3}], v7
    ds_read_b128 v[{RD+4}:{RD+7}], v7 offset:8192
    """)
    if E8:
        A(f"ds_read_b128 v[{RD+12}:{RD+15}], v7 offset:{HB0 - RED0}")
        A(f"ds_read_b128 v[{RD+16}:{RD+19}], v7 offset:{HB0 - RED0 + 8192}")
    if JL: j_zero(0, 20)
    A(f"""
    s_waitcnt lgkmcnt({5 + NRD})
    v_mfma_f32_32x32x16_bf16 v[{SA}:{SA+15}], v[{NEGM}:{NEGM+3}], v[{Q}:{Q+3}], 0
    s_waitcnt lgkmcnt({3 + NRD})
    v_mfma_f32_32x32x16_bf16 v[{SA}:{SA+15}], v[{NEGM+4}:{NEGM+7}], v[{Q+4}:{Q+7}], v[{SA}:{SA+15}]
    s_waitcnt lgkmcnt({1 + NRD})
    v_mfma_f32_32x32x16_bf16 v[{SB}:{SB+15}], v[{K0}:{K0+3}], v[{Q}:{Q+3}], 0
    v_mfma_f32_32x32x16_bf16 v[{SB}:{SB+15}], v[{K1}:{K1+3}], v[{Q+4}:{Q+7}], v[{SB}:{SB+15}]
    """)
    if JL: j_sel(); j_zero(20, 99)
    A(f"""
    s_waitcnt lgkmcnt(0)
    v_pk_add_f32 v[{RD}:{RD+1}], v[{RD}:{RD+1}], v[{RD+4}:{RD+5}]
    v_pk_add_f32 v[{RD+2}:{RD+3}], v[{RD+2}:{RD+3}], v[{RD+6}:{RD+7}]
    """)
    if E8:
        A(f"""
        v_pk_add_f32 v[{RD+12}:{RD+13}], v[{RD+12}:{RD+13}], v[{RD+16}:{RD+17}]
        v_pk_add_f32 v[{RD+14}:{RD+15}], v[{RD+14}:{RD+15}], v[{RD+18}:{RD+19}]
        v_pk_add_f32 v[{RD}:{RD+1}], v[{RD}:{RD+1}], v[{RD+12}:{RD+13}]
        v_pk_add_f32 v[{RD+2}:{RD+3}], v[{RD+2}:{RD+3}], v[{RD+14}:{RD+15}]
        s_cmp_lg_u32 s40, 7
        s_cbranch_scc1 KJ_NOZ
        v_lshlrev_b32 v4, 2, v0
        v_add_u32 v5, {ZRED}, v4
        ds_read_b32 v{RD+8}, v5
        ds_read_b32 v{RD+9}, v5 offset:256
        ds_read_b32 v{RD+10}, v5 offset:512
        ds_read_b32 v{RD+11}, v5 offset:768
        s_waitcnt lgkmcnt(0)
        v_add_f32 v{RD+8}, v{RD+8}, v{RD+9}
        v_add_f32 v{RD+10}, v{RD+10}, v{RD+11}
        v_add_f32 v{RD+8}, v{RD+8}, v{RD+10}
        KJ_NOZ:
        """)
    else:
        A(f"""
        s_cmp_lg_u32 s40, 7
        buffer_store_dwordx4 v[{RD}:{RD+3}], v3, s[32:35], s79 offen sc1
        s_cbranch_scc1 KJ_NOZ
        v_lshlrev_b32 v4, 2, v0
        v_add_u32 v5, {ZRED}, v4
        ds_read_b32 v{RD+8}, v5
        ds_read_b32 v{RD+9}, v5 offset:256
        s_waitcnt lgkmcnt(0)
        v_add_f32 v{RD+8}, v{RD+8}, v{RD+9}
        buffer_store_dword v{RD+8}, v4, s[32:35], s89 offen sc1
        KJ_NOZ:
        """)
    A.nop(6)
    A(f"v_max3_f32 v4, v{SA}, v{SA+1}, v{SA+2}")
    A(f"v_max3_f32 v5, v{SA+3}, v{SA+4}, v{SA+5}")
    for k in range(6, 14, 4):
        A(f"v_max3_f32 v4, v4, v{SA+k}, v{SA+k+1}")
        A(f"v_max3_f32 v5, v5, v{SA+k+2}, v{SA+k+3}")
    A(f"v_max3_f32 v4, v4, v{SA+14}, v{SA+15}")
    for k in range(0, 16, 4):
        A(f"v_max3_f32 v4, v4, v{SB+k}, v{SB+k+1}")
        A(f"v_max3_f32 v5, v5, v{SB+k+2}, v{SB+k+3}")
    A("v_max_f32 v4, v4, v5")
    A("v_mov_b32 v5, v4")
    A.nop(2)
    A("v_permlane32_swap_b32 v4, v5")
    A("s_nop 0")
    A("v_max_f32 v4, v4, v5")
    A(f"v_add_f32 v4, {fhex(BIAS)}, v4")
    for i in range(16):
        A(f"v_sub_f32 v{NEGM+i}, 0, v4")
    for k in range(8):
        A(f"v_pk_add_f32 v[{SA+2*k}:{SA+2*k+1}], v[{SA+2*k}:{SA+2*k+1}], v[{NEGM}:{NEGM+1}]")
    if E8:
        A("s_waitcnt vmcnt(0)")
        poll_check(A, 47, 46, 32, "s78", "P1")
        A(f"""
        buffer_store_dwordx4 v[{RD}:{RD+3}], v3, s[32:35], s79 offen sc1
        s_cmp_lg_u32 s40, 7
        s_cbranch_scc1 KJ_NOZ2
        v_lshlrev_b32 v4, 2, v0
        buffer_store_dword v{RD+8}, v4, s[32:35], s89 offen sc1
        KJ_NOZ2:
        s_lshl_b32 s47, s40, 11
        s_add_u32 m0, s47, {2*16384}
        s_lshl_b32 s38, s41, 1
        s_add_u32 s38, s38, 2
        s_and_b32 s38, s38, 15
        s_lshl_b32 s38, s38, 14
        s_add_u32 s38, s38, s47
        s_add_u32 s81, s38, s70
        buffer_load_dwordx4 v3, s[32:35], s81 offen sc1 lds
        buffer_load_dwordx4 v3, s[32:35], s81 offen offset:1024 sc1 lds
        """)
    vstamp(A, cfg, 6, PR)
    if cfg.get("prof") == "2":
        A("s_mov_b32 s100, 15"); A(f"v_mov_b32 v{PR}, 0"); bstamp(A, cfg, 2); A("s_mov_b32 s100, 0")
    def dma_ops():
        a = ["s_mov_b32 m0, s72", "s_add_u32 s81, s70, s71", "s_add_u32 s72, s72, 16384",
             "buffer_load_dwordx4 v3, s[32:35], s81 offen sc1 lds"]
        b = ["buffer_load_dwordx4 v3, s[32:35], s81 offen offset:1024 sc1 lds",
             f"s_and_b32 s72, s72, {RING-1}", "s_add_u32 s71, s71, 16384", "s_and_b32 s71, s71, 0x3ffff"]
        return a, b
    def dma_chunk():
        a, b = dma_ops()
        for l in a + b: A(l)
    class LQ:
        def __init__(s, init): s.q = list(init)
        def rd(s, tag, text):
            def f(): A(text); s.q.append(tag)
            return f
        def wait(s, *tags):
            idx = max([k for k, t in enumerate(s.q) if t in tags], default=-1)
            if idx < 0: return
            A(f"s_waitcnt lgkmcnt({min(15, len(s.q) - 1 - idx)})")
            s.q = s.q[idx+1:]
    LQM = [None]
    def tile(i, Sa, Sb, sideA=(), sideB=(), end=()):
        e = lambda k: f"v_exp_f32 v{Sa+k}, v{Sa+k}"
        c = lambda k: f"v_cvt_pk_bf16_f32 v{P+k}, v{Sa+2*k}, v{Sa+2*k+1}"
        QK0 = f"v_mfma_f32_32x32x16_bf16 v[{Sb}:{Sb+15}], v[{K0}:{K0+3}], v[{Q}:{Q+3}], v[{NEGM}:{NEGM+15}]"
        QK1 = f"v_mfma_f32_32x32x16_bf16 v[{Sb}:{Sb+15}], v[{K1}:{K1+3}], v[{Q+4}:{Q+7}], v[{Sb}:{Sb+15}]"
        PV0 = f"v_mfma_f32_32x32x16_bf16 v[{O}:{O+15}], v[{V0}:{V0+3}], v[{P}:{P+3}], v[{O}:{O+15}]"
        PV1 = f"v_mfma_f32_32x32x16_bf16 v[{O}:{O+15}], v[{V1}:{V1+3}], v[{P+4}:{P+7}], v[{O}:{O+15}]"
        L0 = f"v_mfma_f32_16x16x32_bf16 v[{L}:{L+3}], v[{SEL}:{SEL+3}], v[{P}:{P+3}], v[{L}:{L+3}]"
        L1 = f"v_mfma_f32_16x16x32_bf16 v[{L}:{L+3}], v[{SEL}:{SEL+3}], v[{P+4}:{P+7}], v[{L}:{L+3}]"
        W = "s_waitcnt lgkmcnt(3)"
        def addr(tt, fr):
            return (f"v1 offset:{tt*4096+fr*1024}" if tt < 4 else f"v2 offset:{(tt-4)*4096+fr*1024}")
        rK0 = f"ds_read_b128 v[{K0}:{K0+3}], {addr(i+2, 0)}"; rK1 = f"ds_read_b128 v[{K1}:{K1+3}], {addr(i+2, 1)}"
        rV0 = f"ds_read_b128 v[{V0}:{V0+3}], {addr(i+1, 2)}"; rV1 = f"ds_read_b128 v[{V1}:{V1+3}], {addr(i, 3)}"
        WV1 = WK0 = WK1 = WV0 = W
        lq = LQM[0]
        if lq:
            WV1, WK0, WK1, WV0 = [(lambda t=t: lq.wait(t)) for t in ("V1", "K0", "K1", "V0")]
            rV1, rK0, rK1, rV0 = lq.rd("V1", rV1), lq.rd("K0", rK0), lq.rd("K1", rK1), lq.rd("V0", rV0)
        seq = [e(0), e(1), WV1, PV1, rV1, *sideA, e(2), e(3), e(4), e(5), WK0, QK0, rK0, e(6), e(7), c(0), c(1), L1, c(2), c(3), e(8), WK1, QK1, rK1,
               *sideB, e(9), e(10), e(11), WV0, PV0, rV0, e(12), e(13), e(14), L0, e(15), c(4), c(5), c(6), c(7), *end]
        for x in seq:
            if callable(x): x()
            else: A(x)
    PRIO = [int(c) for c in cfg.get("prio", "3210")]
    def period(sides=None, dma=True):
        if dma: dma_chunk()
        for i in range(4):
            sa, sb, en = (sides or {}).get(i, ((), (), ()))
            if cfg.get("prio"): A(f"s_setprio {PRIO[i]}")
            tile(i, SA if i % 2 == 0 else SB, SB if i % 2 == 0 else SA, sa, sb, en)
        A(f"""
        v_mov_b32 v1, v2
        v_add_u32 v2, 16384, v2
        v_and_b32 v2, {RING-1}, v2
        """)
    A.label("K2_LOOP")
    period()
    if cfg.get("prof") == "2":
        pbar(A, cfg, "s_waitcnt vmcnt(2)")
        A("""
        s_add_u32 s60, s60, 1
        s_cmp_lg_u32 s60, s61
        s_cbranch_scc1 K2_LOOP
        """)
    else:
        A(f"""
        s_add_u32 s60, s60, 1
        s_cmp_lg_u32 s60, s61
        s_waitcnt vmcnt(2)
        s_barrier
        s_cbranch_scc1 K2_LOOP
        """)
    A(f"""
    s_cmp_eq_u32 s60, 1
    s_cbranch_scc1 KD_1
    s_cmp_eq_u32 s60, 3
    s_cbranch_scc1 KD_3
    s_cmp_eq_u32 s60, 4
    s_cbranch_scc1 KD_4
    s_branch KD_7
    KD_1:
    s_mov_b32 s61, 3
    """)
    set_flag(A, "s68")
    A(f"""
    s_branch K2_LOOP
    KD_3:
    v_lshlrev_b32 v46, 2, v0
    s_mov_b32 s61, 4
    """)
    poll_issue(A, 47, 46, 32, "s77")
    A("s_branch K2_LOOP")
    A.label("KD_4")
    vstamp(A, cfg, 7, PR)
    poll_check(A, 47, 46, 32, "s77", "PK")
    KVP = 192; ZP = 224
    A(f"""
    s_cmp_eq_u32 s40, 4
    s_cselect_b32 s84, 1, 0          ; wave 4 also reduces z
    """)
    def kvload(rr):
        def f():
            A(f"buffer_load_dwordx4 v[{KVP+4*rr}:{KVP+4*rr+3}], v3, s[32:35], s75 offen sc1")
            A("s_add_u32 s75, s75, 8192")
        return f
    def zload(rr):
        def f():
            j = A.uid("KZ")
            A("s_cmp_eq_u32 s84, 0"); A(f"s_cbranch_scc1 {j}")
            A(f"buffer_load_dword v{ZP+rr}, v46, s[32:35], s76 offen offset:{256*rr} sc1")
            A(f"buffer_load_dword v{ZP+rr+1}, v46, s[32:35], s76 offen offset:{256*rr+256} sc1")
            A.label(j)
        return f
    period({i: ((kvload(2*i),), (kvload(2*i+1),), (zload(2*i),)) for i in range(4)})
    pbar(A, cfg, "s_waitcnt vmcnt(10)")
    def kvsum():
        A("s_waitcnt vmcnt(2)")
        A(f"""
        s_lshr_b32 s47, s40, 1
        s_lshl_b32 s47, s47, 10
        s_and_b32 s38, s40, 1
        s_lshl_b32 s38, s38, 3
        s_add_u32 s47, s47, s38
        s_add_u32 s47, s47, {KVT_L}
        v_add_u32 v4, s47, v3            ; kvT write address
        """)
        b = KVP
        for rr in range(1, 8):
            A(f"v_pk_add_f32 v[{b}:{b+1}], v[{b}:{b+1}], v[{b+4*rr}:{b+4*rr+1}]")
            A(f"v_pk_add_f32 v[{b+2}:{b+3}], v[{b+2}:{b+3}], v[{b+4*rr+2}:{b+4*rr+3}]")
        A(f"v_cvt_pk_bf16_f32 v{b}, v{b}, v{b+1}")
        A(f"v_cvt_pk_bf16_f32 v{b+1}, v{b+2}, v{b+3}")
        A(f"ds_write_b64 v4, v[{b}:{b+1}]")
        j = A.uid("KZS")
        A("s_cmp_eq_u32 s84, 0"); A(f"s_cbranch_scc1 {j}")
        for rr in range(1, 8):
            A(f"v_add_f32 v{ZP}, v{ZP}, v{ZP+rr}")
        A(f"""
        v_lshlrev_b32 v5, 1, v0
        v_add_u32 v5, {Z_L}, v5          ; z write address (lane = f)
        v_cvt_pk_bf16_f32 v{ZP}, v{ZP}, v{ZP}
        ds_write_b16 v5, v{ZP}
        """)
        A.label(j)
    period({1: ((), (), (kvsum,))})
    pbar(A, cfg, None)
    A(f"""
    s_mov_b32 s60, 6
    s_mov_b32 s61, 7
    {"s_lshr_b32 s47, s40, 2" if XT8 else "s_mov_b32 s47, 0"}
    s_xor_b32 s47, s47, s40
    s_and_b32 s47, s47, {1 if E8 else 5}
    s_cmp_lg_u32 s47, 1
    s_cbranch_scc1 K2_LOOP
    """)
    KVT, ZR, NUM, DEN, OA = 192, 208, 224, 240, 244
    A(f"""
    v_add_u32 v4, {KVT_L}, v3
    v_lshrrev_b32 v5, 5, v0
    v_lshlrev_b32 v5, 3, v5
    v_add_u32 v5, {Z_L}, v5          ; Z + hh*8
    """)
    for s in range(4):
        A(f"ds_read_b128 v[{KVT+4*s}:{KVT+4*s+3}], v4 offset:{s*1024}")
        A(f"ds_read_b64 v[{ZR+4*s}:{ZR+4*s+1}], v5 offset:{32*s}")
        A(f"ds_read_b64 v[{ZR+4*s+2}:{ZR+4*s+3}], v5 offset:{32*s+16}")
    def zmask():
        A("v_bfe_u32 v4, v0, 2, 1")
        A("v_bfe_u32 v5, v0, 4, 1")
        A("v_cmp_eq_u32 vcc, v4, v5")
        A("v_mov_b32 v4, 0")
        A("s_nop 0")
        for k in range(16): A(f"v_cndmask_b32 v{ZR+k}, v4, v{ZR+k}, vcc")
    def amfma(t):
        def f():
            for s in range(4):
                c = "0" if s == 0 else f"v[{NUM}:{NUM+15}]"
                A(f"v_mfma_f32_32x32x16_bf16 v[{NUM}:{NUM+15}], v[{KVT+4*s}:{KVT+4*s+3}], v[{PHQ+16*t+4*s}:{PHQ+16*t+4*s+3}], {c}")
                c = "0" if s == 0 else f"v[{DEN}:{DEN+3}]"
                A(f"v_mfma_f32_16x16x32_bf16 v[{DEN}:{DEN+3}], v[{ZR+4*s}:{ZR+4*s+3}], v[{PHQ+16*t+4*s}:{PHQ+16*t+4*s+3}], {c}")
        return f
    def afin():
        A(f"v_add_f32 v4, {fhex(1e-6)}, v{DEN}")
        A("v_rcp_f32 v4, v4")
        A("s_nop 0")
        for k in range(8):
            A(f"v_pk_mul_f32 v[{NUM+2*k}:{NUM+2*k+1}], v[{NUM+2*k}:{NUM+2*k+1}], v[4:5] op_sel_hi:[1,0]")
        cvt_tile(A, OA, NUM)
        A(f"buffer_store_dwordx4 v[{OA}:{OA+3}], v3, s[32:35], s74 offen sc1")
        A(f"buffer_store_dwordx4 v[{OA+4}:{OA+7}], v3, s[32:35], s74 offen offset:1024 sc1")
        A("s_add_u32 s74, s74, 65536")
    if E8:
        period({0: ((), (), (zmask, amfma(0))), 1: ((), (), (afin, amfma(1))), 2: ((), (), (afin,))})
        pbar(A, cfg, "s_waitcnt vmcnt(6)")
    else:
        period({0: ((), (), (zmask, amfma(0))), 1: ((), (), (afin, amfma(1))), 2: ((), (), (afin, amfma(2))), 3: ((), (), (afin, amfma(3)))})
        A.nop(12)
        afin()
        pbar(A, cfg, "s_waitcnt vmcnt(10)")
    P16 = cfg.get("p16")
    A.label("KD_7")
    A(f"""
    s_mov_b32 s60, 7
    v_and_b32 v45, 31, v0
    v_lshlrev_b32 v45, 2, v45        ; (l&31)*4
    v_lshlrev_b32 v35, 2, v0         ; lane*4
    v_lshrrev_b32 v4, 3, v0
    v_lshlrev_b32 v5, 11, v4         ; row*2048
    v_and_b32 v7, 7, v0
    v_bfe_u32 v6, v0, 4, {2 if P16 else 1}
    v_lshlrev_b32 v6, {1 if P16 else 2}, v6
    v_xor_b32 v7, v7, v6
    v_lshl_add_u32 v5, v7, 4, v5
    s_lshl_b32 s47, s18, 9
    s_lshl_b32 s38, s19, 4
    s_add_u32 s47, s47, s38
    s_lshl_b32 s47, s47, 11
    s_lshl_b32 s38, s17, 7
    s_add_u32 s47, s47, s38          ; + C*128
    v_add_u32 v36, s47, v5           ; piece 0
    v_add_u32 v37, {16384 - 1024}, v36 ; piece 1 (with offset:1024)
    v_lshrrev_b32 v7, 5, v0          ; hh
    v_bfe_u32 v6, v0, 2, 2           ; i>>2
    v_lshl_add_u32 v7, v7, 2, v6
    v_lshlrev_b32 v7, 7, v7
    v_bfe_u32 v6, v0, 4, 1
    v_bfe_u32 v5, v0, 1, 1
    v_lshl_add_u32 v6, v6, 1, v5
    v_bfe_u32 v5, v0, 3, 1
    v_lshlrev_b32 v5, 2, v5
    v_xor_b32 v6, v6, v5
    v_lshl_add_u32 v7, v6, 4, v7
    v_and_b32 v5, 1, v0
    v_lshl_add_u32 v7, v5, 3, v7
    s_lshl_b32 s38, s18, 13
    v_add_u32 v38, s38, v7           ; cb=0
    v_xor_b32 v39, 64, v38           ; cb=1
    s_add_u32 s80, s30, {WSL(0)}
    """)
    if P16:
        A(f"""
        v_lshrrev_b32 v4, 4, v0          ; q4
        v_and_b32 v5, 15, v0             ; i
        v_lshlrev_b32 v39, 4, v5
        v_lshl_add_u32 v39, v4, 9, v39   ; o : q4 * 512 + i * 16
        v_lshrrev_b32 v6, 1, v4
        v_lshlrev_b32 v6, 4, v6          ; 16 fr
        v_and_b32 v7, 1, v4
        v_lshl_add_u32 v6, v7, 2, v6     ; + 4 hh
        v_lshrrev_b32 v5, 2, v5
        v_add_u32 v6, v6, v5             ; k row
        v_lshlrev_b32 v38, 7, v6
        v_bfe_u32 v6, v6, 1, 2           ; (row >> 1) & 3
        v_lshl_add_u32 v38, v6, 5, v38
        v_and_b32 v5, 3, v0
        v_lshl_add_u32 v38, v5, 3, v38
        v_add_u32 v38, s38, v38
        v_and_b32 v45, 15, v0
        v_lshlrev_b32 v45, 2, v45        ; (l&15)*4
        """)
    def wo_ops(m0src):
        a = [m0src, "s_nop 0", "buffer_load_dwordx4 v36, s[20:23], s29 offen lds"]
        b = ["buffer_load_dwordx4 v37, s[20:23], s29 offen offset:1024 lds", f"s_add_u32 s29, s29, {64*2048}"]
        return a, b
    A.label("K2_LOOPB")
    wa, wb = wo_ops("s_mov_b32 m0, s80")
    wb = wb + ["s_add_u32 s80, s80, 16384"]
    ca, cb_ = dma_ops()
    period({0: (tuple(wa), tuple(wb), ()), 1: (tuple(wa), tuple(wb), ()), 2: (tuple(ca), tuple(cb_), ())}, dma=False)
    if cfg.get("prof") == "2":
        pbar(A, cfg, "s_waitcnt vmcnt(6)")
        A("""
        s_add_u32 s60, s60, 1
        s_cmp_eq_u32 s60, 10
        """)
    else:
        A("""
        s_add_u32 s60, s60, 1
        s_cmp_eq_u32 s60, 10
        s_waitcnt vmcnt(6)
        s_barrier
        """)
    A(f"""
    s_cbranch_scc1 KB_10
    s_cmp_eq_u32 s60, 9
    s_cbranch_scc1 KB_9
    s_and_b32 s47, s40, 5
    s_cmp_lg_u32 s47, 1
    s_cbranch_scc1 K2_LOOPB
    """)
    set_flag(A, "s88")
    A("s_branch K2_LOOPB")
    A.label("KB_9")
    poll_issue(A, 47, 35, 32, "s36")
    A("s_branch K2_LOOPB")
    A.label("KB_10")
    vstamp(A, cfg, 8, PR)
    poll_check(A, 47, 35, 32, "s36", "PA")
    G, OMG = 32, 34
    OF = 128
    vm = VM(A, ["W4", "W4", "W5", "W5", "c12", "c12"])
    vm.now("G", f"buffer_load_dword v{G}, v45, s[32:35], s31 offen sc1")
    if P16: vm.now("G", f"buffer_load_dword v35, v45, s[32:35], s31 offen offset:64 sc1")
    OV = 39 if P16 else 3
    ooff = (lambda j: (j >> 1)*2048 + (j & 1)*256) if P16 else (lambda j: j*1024)
    nld = [0]
    AE = int(cfg.get("ae", 0))
    assert AE in (0, 4, 5) and not (AE and P16)
    OFA = (lambda s: OF + 16*(s % 5)) if AE else (lambda s: OF + 16*s)
    ACE, WE, WEA = 224, (208, 216), 116
    def oload():
        k = nld[0]; nld[0] += 1
        s, j = divmod(k, 4)
        r = OFA(s) + 4*j
        def f():
            vm.now(f"o{k}" if AE else "o", f"buffer_load_dwordx4 v[{r}:{r+3}], v{OV}, s[32:35], s28 offen offset:{ooff(j)} sc1")
            if j == 3: A("s_add_u32 s28, s28, 4096")
        return f
    if AE:
        A(f"v_add_u32 v{WEA}, {WSL(0)}, v38")
        A(f"v_add_u32 v{WEA+1}, {WSL(0)}, v39")
        LQM[0] = LQ(["V1", "K0", "K1", "V0"])
    def ae_read(k, cb):
        s, j = divmod(k, 4)
        fs = []
        for sec in range(2):
            r = WE[k & 1] + 4*cb + 2*sec
            fs.append(LQM[0].rd(f"w{k}{cb}", f"ds_read_b64_tr_b16 v[{r}:{r+1}], v{WEA+cb} offset:{s*16384 + (16*j+8*sec)*128}"))
        return tuple(fs)
    def ae_mfma(k, cb):
        s, j = divmod(k, 4)
        def f():
            vm.wait(f"o{k}"); LQM[0].wait(f"w{k}{cb}")
            a = ACE + 16*cb; w = WE[k & 1] + 4*cb; o = OFA(s) + 4*j
            A(f"v_mfma_f32_32x32x16_bf16 v[{a}:{a+15}], v[{w}:{w+3}], v[{o}:{o+3}], " + ("0" if k == 0 else f"v[{a}:{a+15}]"))
        return f
    def lines(tag, ls):
        def f():
            for l in ls:
                if l.startswith("buffer_"): vm.now(tag, l)
                else: A(l)
        return f
    BT = int(cfg.get("btouch", 0))
    def btouch():
        A(f"""
        s_and_b32 s47, s16, 3
        s_lshl_b32 s47, s47, 3
        s_add_u32 s47, s47, s40
        s_lshl_b32 s47, s47, 5
        v_add_u32 v44, s47, v0
        v_lshlrev_b32 v44, 11, v44
        s_lshl_b32 s47, s17, 7
        v_add_u32 v44, s47, v44
        v_mov_b32 v4, 0x7ffffff0
        v_cmp_gt_u32 vcc, 32, v0
        s_mov_b32 s92, s6
        s_mov_b32 s93, s7
        s_mov_b32 s94, {1024*2048}
        s_mov_b32 s95, 0x00020000
        v_cndmask_b32 v44, v4, v44, vcc
        """)
        vm.now("T", "buffer_load_dword v44, v44, s[92:95], 0 offen")
    for n in range(10, 16):
        sides = {}
        if n <= 12:
            a, b = dma_ops()
            sides[0] = ((lines(f"c{n+3}", a),), (lines(f"c{n+3}", b),), (oload(),))
            sides[1] = ((oload(),), (oload(),), ())
            if AE == 5 and n == 12:
                sides[2] = ((), (), ()); sides[3] = ((), (), ())
                sides[1] = ((oload(),), (oload(),), ())
            else:
                sides[2] = ((oload(),), (oload(),), ())
                sides[3] = ((oload(),), (), ())
        elif n <= 14:
            a, b = wo_ops(f"s_add_u32 m0, s30, {WSL(n - 7)}")
            if AE == 4:
                sides[0] = ((lines("W", a),), (lines("W", b),), (oload(),))
                sides[1] = ((oload(),), (oload(),), ())
                sides[2] = ((oload(),), (), ()) if n == 14 else ((oload(),), (oload(),), ())
                sides[3] = ((), (), ()) if n == 14 else ((oload(),), (), ())
            else:
                sides[0] = ((lines("W", a),), (lines("W", b),), (oload(),))
                sides[1] = ((oload(),), (oload(),), ())
                sides[2] = ((oload(),), (), ())
                sides[3] = ((oload(),), (), ())
        else:
            sides[0] = ((oload(),), (oload(),), ())
            sides[1] = ((oload(),), (oload(),), ())
        if n == BT: sides[3] = (sides[3][0], sides[3][1], tuple(sides[3][2]) + (btouch,))
        if AE:
            assert AE == 4
            for i in range(4):
                sa, sb, en = sides.get(i, ((), (), ()))
                k = 4*(n - (16 - AE)) + i
                if 0 <= k < 4*AE:
                    sa = (ae_mfma(k, 0),) + tuple(sa); sb = (ae_mfma(k, 1),) + tuple(sb)
                if 0 <= k + 1 < 4*AE:
                    sa = tuple(sa) + ae_read(k + 1, 0); sb = tuple(sb) + ae_read(k + 1, 1)
                sides[i] = (sa, sb, en)
        period(sides, dma=False)
        if n <= 13:
            pbar(A, cfg, lambda: vm.wait(f"c{n+2}"))
        elif cfg.get("prof") == "2":
            bstamp(A, cfg, 0); bstamp(A, cfg, 1); bstamp(A, cfg, 2)
        if n == 12: vstamp(A, cfg, 9, PR)
    assert nld[0] == 32
    A(f"""
    s_mov_b32 s60, 16
    s_waitcnt lgkmcnt(0)
    v_mfma_f32_32x32x16_bf16 v[{O}:{O+15}], v[{V1}:{V1+3}], v[{P+4}:{P+7}], v[{O}:{O+15}]
    v_mfma_f32_16x16x32_bf16 v[{L}:{L+3}], v[{SEL}:{SEL+3}], v[{P+4}:{P+7}], v[{L}:{L+3}]
    """)
    vstamp(A, cfg, 10, PR)
    rst(A, cfg, 0)
    A("v_lshlrev_b32 v45, 3, v0")
    A.nop(12)
    A.label("K2_FIN")
    A(f"v_rcp_f32 v4, v{L}")
    A("s_nop 0")
    for k in range(8):
        A(f"v_pk_mul_f32 v[{O+2*k}:{O+2*k+1}], v[{O+2*k}:{O+2*k+1}], v[4:5] op_sel_hi:[1,0]")
    A("v_mov_b32 v6, 0")
    for k in range(16):
        A(f"v_fma_f32 v6, v{O+k}, 0, v6")
    A(f"""
    v_mov_b32 v7, {fhex(2.0**120)}
    v_cmp_u_f32 vcc, v6, v6
    v_cmp_nlt_f32 s[62:63], v{L}, v7
    s_or_b64 vcc, vcc, s[62:63]
    """)
    if cfg.get("force_fb"):
        A("s_mov_b64 vcc, -1")
    A(f"""
    s_cmp_eq_u32 s60, 16
    s_cselect_b64 vcc, vcc, 0
    s_cbranch_vccnz K2_FB
    """)
    for i in range(8):
        A(f"v_cvt_pk_bf16_f32 v{P+i}, v{O+2*i}, v{O+2*i+1}")
    A(f"buffer_store_dwordx4 v[{P}:{P+3}], v3, s[32:35], s73 offen sc1")
    A(f"buffer_store_dwordx4 v[{P+4}:{P+7}], v3, s[32:35], s73 offen offset:1024 sc1")
    EF = cfg.get("ef")
    if EF:
        A("""
        s_cmp_lt_u32 s40, 4
        s_cbranch_scc0 K3_EF1
        s_waitcnt vmcnt(0)
        """)
        set_flag(A, "s69")
        A("""
        s_branch K3_EF2
        K3_EF1:
        s_setprio 1
        s_waitcnt vmcnt(2)
        K3_EF2:
        """)
    else:
        A("s_waitcnt vmcnt(2)")
    A("s_barrier")
    vstamp(A, cfg, 11, PR)
    rst(A, cfg, 1)
    LQM[0] = None
    WFJ = [16, 24, 48, 56]
    ACCA, ACCB = (ACE if AE else 64), 96
    OFB = (lambda s: OF + 16*(s % 6)) if AE else (lambda s: OF + 16*s)
    P3V = cfg.get("p3v") in ("2", "3")
    OD = int(cfg.get("od", 8))
    P3R = cfg.get("p3v") == "3"
    BSL = lambda b: 32768 + 16384 * b if b < 2 else WSL(b - 2)
    def waddr(s, slot=WSL):
        if slot is None:
            A("v_add_u32 v40, s90, v38")
            A("v_add_u32 v41, s90, v39")
            A("s_add_u32 s90, s90, 16384")
            A("s_and_b32 s90, s90, 0x1ffff")
            return
        A(f"v_add_u32 v40, {slot(s)}, v38")
        if P16:
            A("v_xor_b32 v41, 32, v40"); A("v_xor_b32 v42, 64, v40"); A("v_xor_b32 v43, 0x60, v40")
        else:
            A(f"v_add_u32 v41, {slot(s)}, v39")
    W16F = lambda hd, cg: WFJ[2*hd + (cg >> 1)] + 4*(cg & 1)
    def wread16(hd, cg):
        for sec in range(2):
            r = W16F(hd, cg) + 2*sec
            A(f"ds_read_b64_tr_b16 v[{r}:{r+1}], v{40+cg} offset:{(32*hd+8*sec)*128}")
    def gemm16(acc_, after, owait, slot=WSL, inl={}, stamp=None, fs_tail=None):
        waddr(0, slot)
        A("s_nop 0")
        for hd in range(2):
            for cg in range(4): wread16(hd, cg)
        OX = [int(x) for x in cfg.get("ox", "0:0").split(":")]
        iss = [4 * OD]
        for t in range(32): iss.append(min(32, iss[-1] + (2 if OX[0] <= t < OX[1] else 1)))
        def jbody(s, j, more=0):
            last = s == 7
            hd, b = j >> 1, j & 1
            if owait: A(f"s_waitcnt vmcnt({iss[4*s + j] - (4*s + j) - 1})")
            for cg in range(4):
                if b == 0: A(f"s_waitcnt lgkmcnt({2*(3 - cg) + (0 if (last and hd == 1) else 8) + more})")
                w = W16F(hd, cg); o = OF + 16*s + 4*j; a = acc_ + 4*(2*cg + b)
                c = "0" if (s == 0 and hd == 0) else f"v[{a}:{a+3}]"
                A(f"v_mfma_f32_16x16x32_bf16 v[{a}:{a+3}], v[{w}:{w+3}], v[{o}:{o+3}], {c}")
                if b == 1 and not last: wread16(hd, cg)
            if j == 0 and not last: waddr(s + 1, slot)
            for l in inl.get((s, j), []):
                if callable(l): l()
                else: A(l)
            if owait:
                for n in range(iss[4*s + j], iss[4*s + j + 1]): o_load(n >> 2, n & 3)
        for s in range(8):
            for j in range(4):
                if fs_tail and s == 7 and j == 2:
                    A("s_cmp_eq_u32 s18, 0"); A("s_cbranch_scc1 K3_G0T")
                    A("s_barrier")
                    for q in range(8): A(f"ds_read_b128 v[{OF+4*q}:{OF+4*q+3}], v4 offset:{q*1024}")
                    jbody(7, 2, 8); jbody(7, 3, 8)
                    if stamp is not None: rst(A, cfg, stamp + s)
                    fs_tail()
                    A.label("K3_G0T")
                jbody(s, j)
            if s in after: after[s]()
            if stamp is not None and cfg.get("prof") == "5" and (s in (1, 3, 5, 7) or owait):
                rst(A, cfg, stamp + s)
    def wreads(j):
        for cb in range(2):
            for sec in range(2):
                r = WFJ[j] + 4*cb + 2*sec
                A(f"ds_read_b64_tr_b16 v[{r}:{r+1}], v{40+cb} offset:{(16*j+8*sec)*128}")
    def gemm(acc_, after, owait, slot=WSL, inl={}, stamp=None, s0=0, fs_tail=None):
        if P16: return gemm16(acc_, after, owait, slot, inl, stamp, fs_tail)
        waddr(s0, slot)
        for j in range(4): wreads(j)
        for s in range(s0, 8):
            last = s == 7
            for j in range(4):
                if owait: A(f"s_waitcnt vmcnt({min(4*OD + 4*s + j, 32) - (4*s + j) - 1 + (4 if (AE and 4*s + j < 4*OD) else 0)})")
                for cb in range(2):
                    n = (14 - 2*cb) if not last else (14 - 4*j - 2*cb)
                    A(f"s_waitcnt lgkmcnt({n})")
                    w = WFJ[j] + 4*cb; o = (OFB(s) if owait else OFA(s)) + 4*j; a = acc_ + 16*cb
                    c = "0" if (s == 0 and j == 0) else f"v[{a}:{a+15}]"
                    A(f"v_mfma_f32_32x32x16_bf16 v[{a}:{a+15}], v[{w}:{w+3}], v[{o}:{o+3}], {c}")
                if not last:
                    if j == 0: waddr(s + 1, slot)
                    wreads(j)
                for l in inl.get((s, j), []):
                    if callable(l): l()
                    else: A(l)
                if owait and s + OD < 8: o_load(s + OD, j)
            if s in after: after[s]()
            if stamp is not None and cfg.get("prof") == "5" and (s in (1, 3, 5, 7) or owait):
                rst(A, cfg, stamp + s)
    def refill(s0):
        for s in range(s0, s0 + 4):
            a, b = wo_ops(f"s_add_u32 m0, s30, {WSL(s)}")
            for l in a + b: A(l)
    def a_flag():
        A("s_waitcnt vmcnt(0)")
        set_flag(A, "s69")
    def a_mid():
        A("s_barrier")
        A("""
        s_mov_b32 s20, s6
        s_mov_b32 s21, s7
        s_mov_b32 s29, 0
        """)
        refill(0)
    def a_poll():
        poll_issue(A, 46, 45, 32, "s83", n=2)
    FBPOS = int(cfg.get("fbpos", 2))
    RB0 = 32768 if P3V else 0
    NZ = cfg.get("nz") == "1"
    if NZ:
        assert cfg.get("fs") == "1"
        RB0 = 0
    def out_addr():
        A(f"""
        v_sub_f32 v{OMG}, 1.0, v{G}
        {"v_sub_f32 v46, 1.0, v35" if P16 else ""}
        v_and_b32 v4, {15 if P16 else 31}, v0
        s_lshl_b32 s38, s19, 5
        v_add_u32 v4, s38, v4
        v_mul_u32_u24 v4, {K3_ROW}, v4
        v_lshrrev_b32 v5, {4 if P16 else 5}, v0
        v_lshl_add_u32 v4, v5, 4, v4
        s_mul_i32 s38, s18, {K3_RED}
        {f"s_add_u32 s38, s38, {RB0}" if RB0 else ""}
        v_add_u32 v4, s38, v4            ; write address
        s_lshl_b32 s38, s40, 6
        v_add_u32 v10, s38, v0           ; tid
        v_lshrrev_b32 v5, 3, v10
        v_and_b32 v6, 7, v10             ; chunk
        v_mul_u32_u24 v7, {K3_ROW}, v5
        v_lshl_add_u32 v7, v6, 5, v7     ; read address
        {f"v_add_u32 v7, {RB0}, v7" if RB0 else ""}
        s_lshl_b32 s38, s16, 7
        v_add_u32 v5, s38, v5
        v_lshlrev_b32 v5, 11, v5
        v_lshl_add_u32 v5, v6, 4, v5
        s_lshl_b32 s38, s17, 7
        v_add_u32 v5, s38, v5            ; out offset
        """)
    FS = cfg.get("fs") == "1"
    assert not FS or (P16 and P3V and not AE and not P3R)
    def out_addr_fs():
        A(f"""
        v_sub_f32 v{OMG}, 1.0, v{G}
        v_sub_f32 v46, 1.0, v35
        s_lshl_b32 s38, s19, 13
        s_add_u32 s38, s38, {RB0}
        v_lshl_add_u32 v4, v0, 4, s38
        v_and_b32 v5, 15, v0
        s_lshl_b32 s38, s16, 7
        s_lshl_b32 s47, s19, 5
        s_add_u32 s38, s38, s47
        v_add_u32 v5, s38, v5            ; token
        v_lshlrev_b32 v5, 11, v5
        v_lshrrev_b32 v6, 4, v0
        v_lshl_add_u32 v5, v6, 4, v5
        s_lshl_b32 s38, s17, 7
        v_add_u32 v5, s38, v5            ; out offset
        v_add_u32 v6, {16*2048}, v5      ; tokens 16..31
        """)
    def prof_out():
        if cfg.get("prof"):
            A("s_waitcnt vmcnt(0)")
            vstamp(A, cfg, 14, PR)
            rst(A, cfg, 24)
            A(f"""
            s_mov_b32 s92, s14
            s_mov_b32 s93, s15
            s_mov_b32 s94, {64*MB}
            s_mov_b32 s95, 0x00020000
            s_lshl_b32 s90, s2, 3
            s_add_u32 s90, s90, s40
            s_lshl_b32 s90, s90, {8 if cfg.get("prof") in ("2", "3", "4", "5") else 7}
            s_add_u32 s90, s90, {WS_PROFV}
            v_lshlrev_b32 v1, 2, v0
            s_mov_b64 exec, {-1 if cfg.get("prof") in ("2", "3", "4", "5") else "0xffffffff"}
            buffer_store_dword v{PR}, v1, s[92:95], s90 offen
            """)
    def fma_out():
        for k in range(16):
            om = 46 if (P16 and (k >> 1) & 1) else OMG
            A(f"v_pk_fma_f32 v[{ACCA+2*k}:{ACCA+2*k+1}], v[{ACCB+2*k}:{ACCB+2*k+1}], v[{om}:{om+1}], v[{ACCA+2*k}:{ACCA+2*k+1}] op_sel_hi:[1,0,1]")
    def fs_tail1():
        vstamp(A, cfg, 13, PR)
        A("s_waitcnt lgkmcnt(0)")
        for k in range(16):
            A(f"v_pk_add_f32 v[{ACCA+2*k}:{ACCA+2*k+1}], v[{ACCA+2*k}:{ACCA+2*k+1}], v[{OF+2*k}:{OF+2*k+1}]")
        fma_out()
        rst(A, cfg, 22)
        D = OF + 32
        grp = [(p, b) for b in range(2) for p in range(2)]
        for g, (p, b) in enumerate(grp):
            x = ACCA + 4*(2*(2*p) + b); y = ACCA + 4*(2*(2*p + 1) + b); d = D + 4*g
            A(f"v_cvt_pk_bf16_f32 v{d}, v{x}, v{x+1}")
            A(f"v_cvt_pk_bf16_f32 v{d+1}, v{x+2}, v{x+3}")
            A(f"v_cvt_pk_bf16_f32 v{d+2}, v{y}, v{y+1}")
            A(f"v_cvt_pk_bf16_f32 v{d+3}, v{y+2}, v{y+3}")
        A("s_nop 1")
        for sw in ("32", "16"):
            for g in range(4):
                d = D + 4*g
                A(f"v_permlane{sw}_swap_b32 v{d}, v{d+2}")
                A(f"v_permlane{sw}_swap_b32 v{d+1}, v{d+3}")
        rst(A, cfg, 23)
        for g, (p, b) in enumerate(grp):
            d = D + 4*g
            A(f"buffer_store_dwordx4 v[{d}:{d+3}], v{5 + b}, s[24:27], 0 offen offset:{p*64} {cfg.get('ost', 'nt').replace('+', ' ')}")
        prof_out()
        A("s_endpgm")
    def scale_a():
        for k in range(16):
            if P16 and (k >> 1) & 1:
                A(f"v_pk_mul_f32 v[{ACCA+2*k}:{ACCA+2*k+1}], v[{ACCA+2*k}:{ACCA+2*k+1}], v[34:35] op_sel:[0,1] op_sel_hi:[1,1]")
            else:
                A(f"v_pk_mul_f32 v[{ACCA+2*k}:{ACCA+2*k+1}], v[{ACCA+2*k}:{ACCA+2*k+1}], v[{G}:{G+1}] op_sel_hi:[1,0]")
    def o_load(s, j):
        if j == 0:
            if s == 0: A(f"s_sub_u32 s28, s28, 32768" if cfg.get("expo") else f"s_add_u32 s28, s28, {4*MB - 32768}")
            if P3R:
                A("s_add_u32 s85, s28, s91")
                A("s_add_u32 s91, s91, 4096")
                A("s_and_b32 s91, s91, 0x7fff")
            elif s: A("s_add_u32 s28, s28, 4096")
        r = OFB(s) + 4*j
        A(f"buffer_load_dwordx4 v[{r}:{r+3}], v{OV}, s[32:35], {'s85' if P3R else 's28'} offen offset:{ooff(j)} sc1")
    def o_loads():
        for s in range(OD):
            for j in range(4): o_load(s, j)
    if P3V:
        A("""
        s_mov_b32 s20, s6
        s_mov_b32 s21, s7
        s_mov_b32 s29, 0
        """)
        inl = {}
        def bslab(b, s, j):
            a_, b_ = wo_ops(f"s_add_u32 m0, s30, {BSL(b)}")
            inl[(s, j)] = a_; inl[(s, j + 1)] = b_
        BS = cfg.get("bs", "0")
        bslab(0, 0, 0); bslab(1, 1, 0)
        if BS == "0":
            bslab(2, 4, 0); bslab(3, 4, 2); bslab(4, 5, 0); bslab(5, 5, 2)
        else:
            bslab(2, 2, 0); bslab(3, 3, 0); bslab(4, 4, 0); bslab(5, 5, 0)
        bslab(6, 6, 0); bslab(7, 6, 2)
        def a_flag2():
            if EF:
                j = A.uid("K3_F")
                A("s_cmp_lt_u32 s40, 4"); A(f"s_cbranch_scc1 {j}")
            A(f"s_waitcnt vmcnt({2 * min(FBPOS + 1, 2)})")
            set_flag(A, "s69")
            if EF:
                A("s_setprio 0")
                A.label(j)
        EP = int(cfg.get("ep", 0))
        def a_bar5():
            if EP:
                A("s_waitcnt vmcnt(7)")
                A("s_barrier")
                poll_check(A, 46, 45, 32, "s83", "PB", n=2)
                for b in (6, 7):
                    a_, b_ = wo_ops(f"s_add_u32 m0, s30, {BSL(b)}")
                    for l in a_ + b_: A(l)
                for s_ in range(EP):
                    for j in range(4): o_load(s_, j)
            else:
                A("s_barrier")
                a_poll()
        if EP:
            assert OD == EP + 2 and not P3R
            del inl[(6, 0)], inl[(6, 1)], inl[(6, 2)], inl[(6, 3)]
            inl[(4, 0)] = inl[(4, 0)] + [a_poll]
            for s_ in (6, 7):
                for j in range(4): inl[(s_, j)] = [(lambda s_=s_, j=j: o_load(EP + s_ - 6, j))]
        aft = {3: lambda: A("s_barrier"), 5: a_bar5}
        if FBPOS == 3: aft[3] = lambda: (a_flag2(), A("s_barrier"))
        else: aft[FBPOS] = a_flag2
        if BS == "1":
            assert FBPOS in (0, 1)
            if FBPOS == 1: aft[1] = lambda: (a_flag2(), A("s_barrier"))
            else: aft[1] = lambda: A("s_barrier")
        if AE:
            assert not EP and not P3R and BS == "0"
            inl.clear()
            n_ = 0
            for b in range(6):
                a_, b_ = wo_ops(f"s_add_u32 m0, s30, {BSL(b)}")
                inl[(AE + b // 4, b % 4)] = a_ + b_
            def a_flag3():
                j = A.uid("K3_F")
                if EF: A("s_cmp_lt_u32 s40, 4"); A(f"s_cbranch_scc1 {j}")
                nb = min(4 * (FBPOS + 1), 6)
                A(f"s_waitcnt vmcnt({2 * nb})")
                set_flag(A, "s69")
                if EF: A("s_setprio 0")
                A.label(j)
            AEP = int(cfg.get("aep", 6))
            assert AEP > AE + FBPOS or AEP == 7
            aft = {AE + FBPOS: a_flag3}
            aft[AEP] = a_poll if AEP != AE + FBPOS else (lambda: (a_flag3(), a_poll()))
            gemm(ACCA, aft, False, WSL, inl, 2, AE)
        else:
            gemm(ACCA, aft, False, WSL, inl, 2)
        vstamp(A, cfg, 12, PR)
        if P3R:
            RM = int(cfg.get("rmask", 6))
            A(f"""
            s_and_b32 s47, s17, {RM}
            s_lshl_b32 s90, s47, 14
            s_lshl_b32 s91, s47, 12
            v_add_u32 v38, 32768, v38
            v_add_u32 v39, 32768, v39
            """)
            if cfg.get("gfirst", "1") == "1":
                A("""
                s_and_b32 s47, s17, 1
                s_cmp_eq_u32 s47, s18
                s_cbranch_scc0 K3_NP
                s_setprio 1
                K3_NP:
                """)
        A(f"s_waitcnt vmcnt({4 * OD if EP else 0})")
        rst(A, cfg, 10)
        A("s_barrier")
        rst(A, cfg, 11)
        if not EP:
            poll_check(A, 46, 45, 32, "s83", "PB", n=2)
            rst(A, cfg, 12)
            o_loads()
            if AE:
                for b in (6, 7):
                    a_, b_ = wo_ops(f"s_add_u32 m0, s30, {BSL(b)}")
                    for l in a_ + b_: A(l)
            rst(A, cfg, 13)
        if cfg.get("bp"):
            j = A.uid("K3_BP")
            A(f"s_cmp_eq_u32 s18, {cfg.get('bp')[0]}"); A(f"s_cbranch_scc0 {j}"); A(f"s_setprio {cfg.get('bp')[1]}"); A.label(j)
        if FS: out_addr_fs()
        else: out_addr()
        scale_a()
        srd(A, 24, 8, 4194304)
        def zbar(g):
            def f():
                j = A.uid("K3_Z")
                A(f"s_cmp_eq_u32 s18, {g}"); A(f"s_cbranch_scc0 {j}"); A("s_barrier"); A.label(j)
            return f
        if P3R:
            gemm(ACCB, {}, True, None, {}, 14)
            vstamp(A, cfg, 13, PR)
            A("s_setprio 0")
            A("s_barrier")
            A.nop(12)
        elif AE:
            gemm(ACCB, {4: lambda: A("s_barrier")}, True, BSL, {}, 14)
            vstamp(A, cfg, 13, PR)
            A.nop(12)
        elif FS:
            aftB = {} if NZ else {int(cfg.get("zs", 4)): zbar(1)}
            if cfg.get("bpd"): aftB[int(cfg.get("bpd"))] = lambda: A("s_setprio 0")
            gemm(ACCB, aftB, True, BSL, {}, 14, 0, fs_tail1)
            vstamp(A, cfg, 13, PR)
            if not NZ: A("s_barrier")
            A.nop(12)
            fma_out()
            for q in range(8): A(f"ds_write_b128 v4, v[{ACCA+4*q}:{ACCA+4*q+3}] offset:{q*1024}")
            A("s_waitcnt lgkmcnt(0)")
            rst(A, cfg, 22)
            A("s_barrier")
            rst(A, cfg, 23)
            prof_out()
            A("s_endpgm")
        else:
            gemm(ACCB, {4: zbar(1)}, True, BSL, {}, 14)
            vstamp(A, cfg, 13, PR)
            zbar(0)()
            A.nop(12)
    else:
        gemm(ACCA, {FBPOS: a_flag, 3: a_mid, 5: a_poll}, False)
        A("s_barrier")
        refill(4)
        vstamp(A, cfg, 12, PR)
        A("s_waitcnt vmcnt(8)")
        poll_check(A, 46, 45, 32, "s83", "PB", n=2)
        o_loads()
        A("s_waitcnt vmcnt(31)")
        A("s_barrier")
        gemm(ACCB, {}, True)
        vstamp(A, cfg, 13, PR)
        out_addr()
        scale_a()
        A("s_barrier")
        srd(A, 24, 8, 4194304)
        A.nop(4)
    if not FS:
        for k in range(16):
            om = 46 if (P16 and (k >> 1) & 1) else OMG
            A(f"v_pk_fma_f32 v[{ACCA+2*k}:{ACCA+2*k+1}], v[{ACCB+2*k}:{ACCB+2*k+1}], v[{om}:{om+1}], v[{ACCA+2*k}:{ACCA+2*k+1}] op_sel_hi:[1,0,1]")
        for cb in range(2):
            for q in range(4):
                r = ACCA + 16*cb + 4*q
                if P16: A(f"ds_write_b128 v4, v[{r}:{r+3}] offset:{(q & 1)*16*K3_ROW + (2*cb + (q >> 1))*64}")
                else: A(f"ds_write_b128 v4, v[{r}:{r+3}] offset:{cb*128 + q*32}")
        A("s_waitcnt lgkmcnt(0)")
        rst(A, cfg, 22)
        A("s_barrier")
        rst(A, cfg, 23)
        R = 128
        for it in range(2):
            for g in range(2):
                for hf in range(2):
                    r = R + 16*it + 8*g + 4*hf
                    A(f"ds_read_b128 v[{r}:{r+3}], v7 offset:{it*64*K3_ROW + g*K3_RED + hf*16}")
        for it in range(2):
            A(f"s_waitcnt lgkmcnt({4 - 4*it})")
            r = R + 16*it
            for k in range(4):
                A(f"v_pk_add_f32 v[{r+2*k}:{r+2*k+1}], v[{r+2*k}:{r+2*k+1}], v[{r+8+2*k}:{r+8+2*k+1}]")
            for k in range(4):
                A(f"v_cvt_pk_bf16_f32 v{r+k}, v{r+2*k}, v{r+2*k+1}")
            A(f"buffer_store_dwordx4 v[{r}:{r+3}], v5, s[24:27], 0 offen {cfg.get('ost', 'nt').replace('+', ' ')}")
            if it == 0: A(f"v_add_u32 v5, {64*2048}, v5")
        if cfg.get("prof"):
            A("s_waitcnt vmcnt(0)")
            vstamp(A, cfg, 14, PR)
            rst(A, cfg, 24)
            A(f"""
            s_mov_b32 s92, s14
            s_mov_b32 s93, s15
            s_mov_b32 s94, {64*MB}
            s_mov_b32 s95, 0x00020000
            s_lshl_b32 s90, s2, 3
            s_add_u32 s90, s90, s40
            s_lshl_b32 s90, s90, {8 if cfg.get("prof") in ("2", "3", "4", "5") else 7}
            s_add_u32 s90, s90, {WS_PROFV}
            v_lshlrev_b32 v1, 2, v0
            s_mov_b64 exec, {-1 if cfg.get("prof") in ("2", "3", "4", "5") else "0xffffffff"}
            buffer_store_dword v{PR}, v1, s[92:95], s90 offen
            """)
        A("s_endpgm")
    A.label("K2_FB")
    vstamp(A, cfg, 15, PR)
    A("s_mov_b32 s60, 17")
    A("s_mov_b32 s61, 0")
    for i in range(16): A(f"v_mov_b32 v{O+i}, 0")
    for i in range(4): A(f"v_mov_b32 v{L+i}, 0")
    A(f"v_mov_b32 v44, 0xff800000")
    A.label("K2_FBL")
    A(f"""
    buffer_load_dwordx4 v[{K0}:{K0+3}], v3, s[32:35], s70 offen sc1
    buffer_load_dwordx4 v[{K1}:{K1+3}], v3, s[32:35], s70 offen offset:1024 sc1
    buffer_load_dwordx4 v[{V0}:{V0+3}], v3, s[32:35], s70 offen offset:2048 sc1
    buffer_load_dwordx4 v[{V1}:{V1+3}], v3, s[32:35], s70 offen offset:3072 sc1
    s_add_u32 s70, s70, 4096
    s_waitcnt vmcnt(0)
    v_mfma_f32_32x32x16_bf16 v[{SA}:{SA+15}], v[{K0}:{K0+3}], v[{Q}:{Q+3}], 0
    v_mfma_f32_32x32x16_bf16 v[{SA}:{SA+15}], v[{K1}:{K1+3}], v[{Q+4}:{Q+7}], v[{SA}:{SA+15}]
    """)
    A.nop(12)
    A(f"v_max3_f32 v4, v{SA}, v{SA+1}, v{SA+2}")
    for k in range(3, 15, 2):
        A(f"v_max3_f32 v4, v4, v{SA+k}, v{SA+k+1}")
    A(f"v_max3_f32 v4, v4, v{SA+15}, v44")
    A("v_mov_b32 v5, v4")
    A.nop(2)
    A("v_permlane32_swap_b32 v4, v5")
    A("s_nop 0")
    A("v_max_f32 v4, v4, v5")
    A("v_sub_f32 v5, v44, v4")
    A("v_exp_f32 v5, v5")
    A("v_mov_b32 v44, v4")
    for k in range(16):
        A(f"v_sub_f32 v{SA+k}, v{SA+k}, v4")
    for k in range(16):
        A(f"v_exp_f32 v{SA+k}, v{SA+k}")
    for k in range(16):
        A(f"v_mul_f32 v{O+k}, v{O+k}, v5")
    for k in range(4):
        A(f"v_mul_f32 v{L+k}, v{L+k}, v5")
    for k in range(8):
        A(f"v_cvt_pk_bf16_f32 v{P+k}, v{SA+2*k}, v{SA+2*k+1}")
    A("s_nop 1")
    A(f"""
    v_mfma_f32_32x32x16_bf16 v[{O}:{O+15}], v[{V0}:{V0+3}], v[{P}:{P+3}], v[{O}:{O+15}]
    v_mfma_f32_16x16x32_bf16 v[{L}:{L+3}], v[{SEL}:{SEL+3}], v[{P}:{P+3}], v[{L}:{L+3}]
    v_mfma_f32_32x32x16_bf16 v[{O}:{O+15}], v[{V1}:{V1+3}], v[{P+4}:{P+7}], v[{O}:{O+15}]
    v_mfma_f32_16x16x32_bf16 v[{L}:{L+3}], v[{SEL}:{SEL+3}], v[{P+4}:{P+7}], v[{L}:{L+3}]
    s_add_u32 s61, s61, 1
    s_cmp_lt_u32 s61, 64
    """)
    A.nop(12)
    A("s_cbranch_scc1 K2_FBL")
    A("s_branch K2_FIN")
    A.label("KF_END")
    A("s_endpgm")
    if cfg.get("lf") == "1":
        L_ = A.lines
        i0 = L_.index("K1_LOADER:"); i1 = L_.index("K1_LPOST:")
        blk = L_[i0:i1]
        del L_[i0:i1]
        b = L_.index("    s_cbranch_scc1 K1_LOADER")
        assert L_[b-1].strip() == "s_cmp_ge_u32 s40, 4"
        L_[b-1:b+1] = ["    s_cmp_lt_u32 s40, 4", "    s_cbranch_scc1 K1_CONS"] + blk + ["    s_branch K1_LPOST", "K1_CONS:"]
    WU = cfg.get("wu")
    if WU:
        L_ = A.lines
        def after(pred, nth=0, start=0):
            k = [i for i in range(start, len(L_)) if pred(L_[i].strip())]
            return k[nth] + 1
        def stub(pos, name, nxt, skip=False):
            L_[pos:pos] = ([f"    s_branch {name}S"] if skip else []) + [f"{name}:", f"    s_branch {nxt}"] + ([f"{name}S:"] if skip else [])
        kb10 = L_.index("KB_10:")
        stub(after(lambda l: l == "s_endpgm"), "WU_9", "WU_BACK")
        stub(after(lambda l: l == "s_branch K3_EF2"), "WU_8", "WU_9" if WU == "1" else "WU_BACK")
        stub(after(lambda l: l == "s_barrier", 1, kb10), "WU_7", "WU_BACK", skip=True)
        stub(kb10, "WU_6", "WU_7" if WU == "1" else "WU_BACK")
        stub(after(lambda l: l == "s_branch K1_E2L"), "WU_5", "WU_BACK")
        stub(after(lambda l: l.startswith("s_branch K1_TJ_")), "WU_4", "WU_5" if WU == "1" else "WU_BACK")
        p = after(lambda l: l == "s_barrier", 0, L_.index("K1_NOZ:")) - 1
        d = []
        if WU == "1":
            for w, t in ((0, "WU_4"), (1, "WU_6"), (2, "WU_8")): d += [f"    s_cmp_eq_u32 s40, {w}", f"    s_cbranch_scc1 {t}"]
        else:
            d += ["    s_cmp_eq_u32 s40, 9"] + [f"    s_cbranch_scc1 {t}" for t in ("WU_4", "WU_5", "WU_6", "WU_7", "WU_8", "WU_9")]
        L_[p:p] = d + ["WU_BACK:"]
    return K, KG_LDS
```

```python
from common import *

KNAME = NAME + "_kernel"
K1_XS = 32768
K1_NX = 3
K1_WB = K1_XS * K1_NX
K1_SLOT = 12288
K1_NSLOT = 5
K1_WPHI = K1_WB + K1_SLOT * K1_NSLOT
K1_TBUF = 4352
RING = 65536
QST = 65536
TBUF0 = 81920
RED0 = 98304
ZRED = 114688
KVT_L = 116736
Z_L = 120832
KG_LDS = 163840
def WSL(s): return 65536 + 16384 * s if s < 6 else 16384 * (s - 6)
WS_F1 = WS_FLAG
WS_FK = WS_FLAG + 4096
WS_FA = WS_FLAG + 16384
WS_FB = WS_FLAG + 20480
HB0 = 122880
HB1 = 139264
TBUF1 = 147456
BIAS = 80.0
K3_ROW = 272
K3_RED = 128 * K3_ROW
SPIN_MAX = 1 << 16
WS_PROFV = WS_PROF

def cvt_tile(A, dst, src):
    for i in range(8):
        A(f"v_cvt_pk_bf16_f32 v{dst+i}, v{src+2*i}, v{src+2*i+1}")

def bstamp(A, cfg, kind, reg=33):
    if cfg.get("prof") == "2":
        A("s_memtime s[96:97]")
        A(f"s_add_u32 m0, s100, {16*kind}")
        A("s_waitcnt lgkmcnt(0)")
        A(f"v_writelane_b32 v{reg}, s96, m0")
        if kind == 2: A("s_add_u32 s100, s100, 1")

def pbar(A, cfg, wait):
    bstamp(A, cfg, 0)
    if callable(wait): wait()
    elif wait: A(wait)
    bstamp(A, cfg, 1)
    A("s_barrier")
    bstamp(A, cfg, 2)

def vstamp(A, cfg, i, reg):
    if cfg.get("prof") == "1":
        A("s_memtime s[96:97]")
        A("s_memrealtime s[98:99]")
        A("s_waitcnt lgkmcnt(0)")
        A(f"v_writelane_b32 v{reg}, s96, {2*i}")
        A(f"v_writelane_b32 v{reg}, s98, {2*i+1}")

def rst(A, cfg, lane, reg=33):
    if cfg.get("prof") == "5":
        A("s_memrealtime s[96:97]")
        A("s_waitcnt lgkmcnt(0)")
        A(f"v_writelane_b32 v{reg}, s96, {lane}")

def poll_issue(A, vdst, vaddr, srd, soff, n=1):
    if n == 1: A(f"buffer_load_dword v{vdst}, v{vaddr}, s[{srd}:{srd+3}], {soff} offen sc1")
    else:      A(f"buffer_load_dwordx2 v[{vdst}:{vdst+1}], v{vaddr}, s[{srd}:{srd+3}], {soff} offen sc1")

def poll_check(A, vdst, vaddr, srd, soff, tag, expect=1, n=1):
    ok = A.uid(tag + "_OK"); sp = A.uid(tag + "_SP")
    def test():
        if n == 2: A(f"v_and_b32 v{vdst}, v{vdst}, v{vdst+1}")
        A(f"v_cmp_eq_u32 vcc, {expect}, v{vdst}")
        A("s_cmp_eq_u64 vcc, -1")
        A(f"s_cbranch_scc1 {ok}")
    test()
    A("s_mov_b32 s82, 0")
    A.label(sp)
    A("s_sleep 2")
    poll_issue(A, vdst, vaddr, srd, soff, n)
    A("s_add_u32 s82, s82, 1")
    A("s_waitcnt vmcnt(0)")
    test()
    A(f"s_cmp_lt_u32 s82, {SPIN_MAX}")
    A(f"s_cbranch_scc1 {sp}")
    A.label(ok)

def set_flag(A, soff):
    A(f"""
    s_mov_b64 exec, 1
    v_mov_b32 v4, 1
    v_mov_b32 v5, 0
    buffer_store_dword v4, v5, s[32:35], {soff} offen sc1
    s_mov_b64 exec, -1
    """)

class VM:
    def __init__(s, A, init=()): s.A = A; s.q = list(init)
    def op(s, tag, text):
        def f(): s.A(text); s.q.append(tag)
        return f
    def now(s, tag, text): s.op(tag, text)()
    def wait(s, *tags):
        idx = max([k for k, t in enumerate(s.q) if t in tags], default=-1)
        if idx < 0: return
        s.A(f"s_waitcnt vmcnt({len(s.q) - 1 - idx})")
        s.q = s.q[idx+1:]

def setup_p2(A):
    A(f"""
    s_lshl_b32 s70, s42, 18
    s_add_u32 s70, s70, {WS_KVB}
    s_lshl_b32 s47, s41, 1
    s_add_u32 s47, s47, 3
    s_and_b32 s47, s47, 15           ; chunk 3 of the rotated order
    s_lshl_b32 s47, s47, 14
    s_lshl_b32 s38, s40, 11
    s_add_u32 s71, s47, s38          ; offset within the head of this wave's part of the next chunk
    s_add_u32 s72, s38, {3*16384}    ; LDS offset of the same
    s_lshl_b32 s47, s41, 3
    s_add_u32 s47, s47, s40
    s_lshl_b32 s47, s47, 5
    s_add_u32 s47, s47, s42
    s_lshl_b32 s73, s47, 11
    s_add_u32 s73, s73, {WS_OB}      ; oB store offset
    s_lshr_b32 s39, s40, 1
    s_and_b32 s39, s39, 1            ; th
    s_lshl_b32 s47, s41, 3
    s_lshl_b32 s38, s39, 2
    s_add_u32 s47, s47, s38          ; r*8 + th*4
    s_lshl_b32 s47, s47, 5
    s_add_u32 s47, s47, s42
    s_lshl_b32 s74, s47, 11
    s_add_u32 s74, s74, {WS_OA}      ; oA store offset (waves 1, 3)
    s_lshl_b32 s75, s42, 16
    s_lshl_b32 s47, s40, 10
    s_add_u32 s75, s75, s47
    s_add_u32 s75, s75, {WS_KVP}
    s_lshl_b32 s47, s41, 13
    s_add_u32 s79, s75, s47          ; kv partial store offset
    s_lshl_b32 s76, s42, 11
    s_add_u32 s76, s76, {WS_ZP}
    s_lshl_b32 s47, s41, 8
    s_add_u32 s89, s76, s47          ; z partial store offset
    s_lshl_b32 s77, s42, 8
    s_add_u32 s77, s77, {WS_FK}
    s_lshl_b32 s47, s41, 5
    s_add_u32 s68, s77, s47
    s_lshl_b32 s47, s40, 2
    s_add_u32 s68, s68, s47
    s_lshl_b32 s78, s42, 6
    s_add_u32 s78, s78, {WS_F1}      ; F1 line
    s_lshl_b32 s47, s41, 3
    s_add_u32 s67, s78, s47
    s_lshl_b32 s38, s39, 2
    s_add_u32 s67, s67, s38
    s_lshl_b32 s88, s41, 8
    s_lshl_b32 s47, s42, 3
    s_add_u32 s88, s88, s47
    s_add_u32 s88, s88, s38
    s_add_u32 s88, s88, {WS_FA}
    s_lshl_b32 s47, s41, 1
    s_lshr_b32 s38, s40, 2
    s_add_u32 s47, s47, s38
    s_lshl_b32 s69, s47, 9
    s_lshl_b32 s47, s42, 4
    s_add_u32 s69, s69, s47
    s_and_b32 s47, s40, 3
    s_lshl_b32 s47, s47, 2
    s_add_u32 s69, s69, s47
    s_add_u32 s69, s69, {WS_FB}
    """)

def setup_p3(A):
    A(f"""
    s_load_dwordx2 s[4:5], s[0:1], 24
    s_load_dwordx2 s[6:7], s[0:1], 48
    s_load_dwordx2 s[8:9], s[0:1], 64
    s_lshr_b32 s16, s45, 1
    s_lshl_b32 s16, s16, 2
    s_lshr_b32 s47, s46, 3
    s_add_u32 s16, s16, s47          ; T = 4*(e>>1) + (i>>3)
    s_and_b32 s17, s45, 1
    s_lshl_b32 s17, s17, 3
    s_and_b32 s47, s46, 7
    s_add_u32 s17, s17, s47          ; C = 8*(e&1) + (i&7)
    s_lshr_b32 s18, s40, 2           ; grp
    s_and_b32 s19, s40, 3            ; tq
    s_lshl_b32 s47, s16, 2
    s_add_u32 s47, s47, s19          ; tb3
    s_lshl_b32 s28, s47, 16
    s_lshl_b32 s38, s18, 15
    s_add_u32 s28, s28, s38
    s_add_u32 s28, s28, {WS_OA}      ; o stream offset
    s_lshl_b32 s31, s47, 7
    s_add_u32 s31, s31, {WS_G}       ; g offset
    s_lshr_b32 s47, s16, 1
    s_lshl_b32 s36, s47, 8
    s_add_u32 s36, s36, {WS_FA}
    s_lshl_b32 s83, s16, 9
    s_add_u32 s83, s83, {WS_FB}
    s_lshl_b32 s30, s18, 13
    s_lshl_b32 s38, s19, 11
    s_add_u32 s30, s30, s38
    s_mov_b32 s29, 0                 ; wo soffset
    s_waitcnt lgkmcnt(0)
    s_mov_b32 s20, s4
    s_mov_b32 s21, s5
    s_mov_b32 s22, {1024*2048}
    s_mov_b32 s23, 0x00020000
    """)

def gen_kg(A, cfg):
    K = KNAME
    F1POS = int(cfg.get("f1pos", 2))
    ROT = int(cfg.get("rot", 12))
    RSH = int(cfg.get("rsh", 0))
    ROT2 = int(cfg.get("rot2", 0))
    PV = 255
    kernel_begin(A, K)
    A(f"""
    s_cmp_ge_u32 s2, 256
    s_cbranch_scc1 KF_END
    s_load_dwordx2 s[4:5], s[0:1], 0
    s_load_dwordx2 s[6:7], s[0:1], 8
    s_load_dwordx2 s[8:9], s[0:1], 40
    s_load_dwordx2 s[10:11], s[0:1], 16
    s_load_dwordx2 s[12:13], s[0:1], 56
    s_load_dwordx2 s[14:15], s[0:1], 80
    s_load_dwordx2 s[86:87], s[0:1], 72
    v_lshrrev_b32 v1, 6, v0
    v_and_b32 v0, 63, v0
    v_readfirstlane_b32 s40, v1
    s_and_b32 s45, s2, 7
    s_lshr_b32 s46, s2, 3
    """)
    if cfg.get("prof"): A(f"v_mov_b32 v{PV}, 0")
    vstamp(A, cfg, 0, PV)
    if cfg.get("prof") == "4":
        A("s_memrealtime s[96:97]")
        A("s_waitcnt lgkmcnt(0)")
        A(f"v_writelane_b32 v{PV}, s96, 40")
    ES = cfg.get("es") == "1"
    assert not ES or cfg.get("hmap", "f") == "f"
    if cfg.get("hmap", "f") == "f":
        A("""
        s_and_b32 s41, s45, 1
        s_lshl_b32 s41, s41, 2
        s_lshr_b32 s47, s46, 3
        s_add_u32 s41, s41, s47          ; r = 4(e&1) + (i>>3)
        s_lshr_b32 s42, s45, 1
        s_lshl_b32 s42, s42, 3
        s_and_b32 s47, s46, 7
        s_add_u32 s42, s42, s47          ; h = 8(e>>1) + (i&7)
        """)
        if not ES: A("s_waitcnt lgkmcnt(0)")
    elif cfg.get("hmap") == "h":
        A("""
        s_lshr_b32 s41, s45, 1
        s_lshl_b32 s41, s41, 1
        s_lshr_b32 s47, s46, 4
        s_add_u32 s41, s41, s47          ; r = 2(e>>1) + (i>>4)
        s_and_b32 s42, s45, 1
        s_lshl_b32 s42, s42, 4
        s_and_b32 s47, s46, 15
        s_add_u32 s42, s42, s47          ; h = 16(e&1) + (i&15)
        s_waitcnt lgkmcnt(0)
        """)
    else:
        A("""
        s_and_b32 s41, s46, 7            ; r
        s_lshl_b32 s42, s45, 2
        s_lshr_b32 s47, s46, 3
        s_add_u32 s42, s42, s47          ; h = 4e + (i>>3)
        s_waitcnt lgkmcnt(0)
        """)
    def rstamp(lane):
        if cfg.get("prof") == "4":
            A("s_memrealtime s[96:97]")
            A("s_waitcnt lgkmcnt(0)")
            A(f"v_writelane_b32 v{PV}, s96, {lane}")
    if not ES:
        rstamp(41)
        srd(A, 32, 14, WS_USED)
    A("""
    s_cmp_ge_u32 s40, 4
    s_cbranch_scc1 K1_LOADER
    """)
    if ES:
        A("s_waitcnt lgkmcnt(0)")
        rstamp(41)
        srd(A, 32, 14, WS_USED)
    PF3 = cfg.get("pf3")
    PF4 = cfg.get("pf4")
    L2D = int(cfg.get("l2d", 2)) if not (PF3 or PF4) else 0
    TL = int(cfg.get("tl", 4))
    TC = int(cfg.get("tc", 8))
    def touch_addr(w, dst, t0, t1, t2, shift, sa):
        OFFL = int(cfg.get("offl", 0))
        A(f"""
        s_and_b32 s47, s42, 1
        s_lshl_b32 s47, s47, 2
        s_and_b32 s38, s41, 3
        s_add_u32 s47, s47, s38          ; share of the pair's weight lines
        s_lshl_b32 s47, s47, 2           ; first row
        v_bfe_u32 v{t0}, v0, 2, 1
        v_lshlrev_b32 v{t0}, 5, v{t0}    ; 32 * block
        v_and_b32 v{t2}, 3, v0
        v_add3_u32 v{dst}, v{t2}, v{t0}, s47
        v_mul_u32_u24 v{dst}, 6144, v{dst}
        v_lshrrev_b32 v{t1}, 3, v0       ; segment
        v_lshl_add_u32 v{dst}, v{t1}, 11, v{dst}
        s_lshr_b32 s47, s42, 1
        s_lshl_b32 s47, s47, 7
        v_add_u32 v{dst}, s47, v{dst}
        s_and_b32 {sa}, s42, 7
        """)
        if OFFL:
            A(f"""
            s_lshl_b32 s47, {sa}, 2
            s_add_u32 s47, s47, s38
            s_lshl_b32 s47, s47, 2
            v_add_u32 v{t2}, s47, v{t2}      ; line of the last pair : 0..95
            v_lshrrev_b32 v{t1}, 5, v{t2}
            v_and_b32 v{t2}, 31, v{t2}
            v_add_u32 v{t2}, v{t2}, v{t0}
            v_mul_u32_u24 v{t2}, 6144, v{t2}
            v_lshl_add_u32 v{t2}, v{t1}, 11, v{t2}
            s_lshr_b32 s47, s42, 1
            s_or_b32 s47, s47, 3
            s_lshl_b32 s47, s47, 7
            v_add_u32 v{t2}, s47, v{t2}
            v_cmp_lt_u32 vcc, 23, v0
            s_nop 1
            v_cndmask_b32 v{dst}, v{dst}, v{t2}, vcc
            s_cmp_lt_u32 {sa}, 6
            s_cselect_b32 s63, 32, 0         ; live lanes of the weight waves
            """)
            if OFFL == 1:
                A(f"""
                s_lshl_b32 s47, {sa}, 4           ; first x row : 16 * head
                s_mul_i32 s38, {sa}, 80
                s_sub_u32 s38, s38, {6*80 - 96}
                s_cmp_lt_u32 {sa}, 6
                s_cselect_b32 s47, s47, s38
                s_cselect_b32 {sa}, 16, 40        ; live lanes of wave 2
                s_cselect_b32 s38, 0, 40         ; live lanes of wave 3
                s_cmp_eq_u32 {w}, 3
                s_cselect_b32 {sa}, s38, {sa}
                s_cselect_b32 s38, 40, 0
                s_add_u32 s47, s47, s38
                """)
            elif OFFL == 2:
                A(f"""
                s_mul_i32 s47, {sa}, 43
                s_cmp_lt_u32 {sa}, 5
                s_cselect_b32 s38, 43, 41
                s_cmp_lt_u32 {sa}, 6
                s_cselect_b32 {sa}, s38, 0
                s_cmp_eq_u32 {w}, 3
                s_cselect_b32 {sa}, 0, {sa}
                """)
            else:
                A(f"""
                s_lshl_b32 s47, {sa}, 5
                s_cmp_eq_u32 {w}, 3
                s_cselect_b32 {sa}, 0, 32
                """)
        else:
            A(f"""
            s_mov_b32 s63, 24
            s_lshl_b32 s47, {sa}, 5
            s_cmp_eq_u32 {w}, 3
            s_cselect_b32 {sa}, 0, 32
            """)
        A(f"""
        s_lshl_b32 s38, s41, 8
        s_add_u32 s47, s47, s38
        v_add_u32 v{t1}, s47, v0
        v_lshlrev_b32 v{t1}, 11, v{t1}   ; x row
        v_bfe_u32 v{t0}, v0, 1, 1
        s_and_b32 s38, s45, 1
        v_xor_b32 v{t0}, s38, v{t0}      ; 0 : ours
        v_and_b32 v{t2}, 3, v0
        s_lshr_b32 s38, s45, 1
        v_xor_b32 v{t2}, s38, v{t2}
        s_cmp_ge_u32 {w}, 2
        s_cselect_b64 vcc, -1, 0
        s_cselect_b32 s47, {sa}, s63      ; live lanes
        s_mov_b32 s38, {(TC - TL) * 32 * 6144}
        s_cselect_b32 s38, {(TC - TL) * 64}, s38
        v_cndmask_b32 v{dst}, v{dst}, v{t1}, vcc
        v_cndmask_b32 v{t0}, v{t0}, v{t2}, vcc
        v_cmp_eq_u32 vcc, 0, v{t0}
        """)
        if shift:
            A(f"""
            v_mov_b32 v{t1}, s38
            s_nop 0
            v_cndmask_b32 v{t1}, 0, v{t1}, vcc
            v_add_u32 v{dst}, v{dst}, v{t1}
            v_cmp_gt_u32 vcc, s47, v0
            v_mov_b32 v{t1}, 0x7ffffff0
            s_nop 0
            v_cndmask_b32 v{dst}, v{t1}, v{dst}, vcc
            """)
        else:
            A(f"""
            v_cmp_gt_u32 s[62:63], s47, v0
            v_mov_b32 v{t1}, 0x7ffffff0
            s_and_b64 vcc, vcc, s[62:63]
            v_cndmask_b32 v{dst+2}, v{t1}, v{dst}, vcc
            v_cndmask_b32 v{dst}, v{t1}, v{dst}, s[62:63]
            """)
        A(f"""
        s_cmp_eq_u32 {w}, 0
        s_cselect_b32 s92, s6, s8
        s_cselect_b32 s93, s7, s9
        s_cmp_ge_u32 {w}, 2
        s_cselect_b32 s92, s4, s92
        s_cselect_b32 s93, s5, s93
        s_mov_b32 s94, {1024*6144}
        s_cselect_b32 s94, {2048*2048}, s94
        s_mov_b32 s95, 0x00020000
        """)
    rng = lambda t: range(*map(int, t.split(":"))) if t else range(0)
    PFA_ = rng(cfg.get("pfa", f"0:{4+L2D}")); PFB_ = rng(cfg.get("pfb", ""))
    PFA, PFD = 252, 253
    def l2pf(step=None):
        if step is None:
            A("s_and_b32 s55, s59, 31")
        else:
            A(f"s_add_u32 s55, s63, {step}")
            A("s_and_b32 s55, s55, 31")
        A(f"s_mul_i32 s55, s55, {32*6144}")
        A(f"buffer_load_dword v{PFD}, v{PFA}, s[92:95], s55 offen")
        if step is None: A("s_add_u32 s59, s59, 1")
    PF2 = cfg.get("pf2")
    def touch():
        return [f"buffer_load_dword v{PFD}, v{PFA}, s[92:95], s55 offen", "s_add_u32 s55, s55, s59", "s_cmp_eq_u32 s55, s56",
                "s_cselect_b32 s55, 0, s55", "s_xor_b32 s59, s59, s57"]
    if PF2:
        XW = int(cfg.get("pfx", 1))
        HM = cfg.get("hmap", "f") == "h"
        RB = 1 if HM else 2
        HB = 4 if HM else 3
        R20 = 0 if cfg.get("r2") == "early0" else 4
        A(f"""
        s_and_b32 s47, s42, 1
        s_lshl_b32 s47, s47, {RB}
        s_and_b32 s38, s41, {(1 << RB) - 1}
        s_add_u32 s47, s47, s38          ; share of the weight lines
        s_lshr_b32 s38, s42, 1
        s_lshl_b32 s47, s47, {4 - RB}    ; first row of the share
        s_lshl_b32 s38, s38, 7
        v_and_b32 v4, {(1 << (4 - RB)) - 1}, v0
        v_add_u32 v4, s47, v4
        v_mul_u32_u24 v4, 6144, v4
        v_lshrrev_b32 v5, {4 - RB}, v0
        v_lshl_add_u32 v4, v5, 11, v4    ; + segment * 2048
        v_add_u32 v4, s38, v4
        s_lshl_b32 s47, s41, 8
        s_and_b32 s38, s42, {(1 << HB) - 1}
        s_lshl_b32 s38, s38, {8 - HB}
        s_add_u32 s47, s47, s38
        v_add_u32 v6, s47, v0
        v_lshlrev_b32 v6, 11, v6
        s_cmp_eq_u32 s40, 0
        s_cselect_b64 vcc, -1, 0
        s_cselect_b32 s38, {1 << (7 - HB)}, {3 << (4 - RB)}
        v_mov_b32 v5, 0x7ffffff0
        v_cndmask_b32 v4, v4, v6, vcc
        v_cmp_gt_u32 vcc, s38, v0
        s_cmp_eq_u32 s40, 2
        s_cselect_b32 s92, s6, s8
        s_cselect_b32 s93, s7, s9
        s_cmp_ge_u32 s40, 2
        s_cselect_b32 s62, {1024*6144}, 0
        v_cndmask_b32 v{PFA}, v5, v4, vcc
        s_lshr_b32 s63, s45, {RSH}
        s_mul_i32 s63, s63, {ROT}
        s_and_b32 s47, s45, 1
        s_mul_i32 s47, s47, {ROT2}
        s_add_u32 s63, s63, s47
        s_add_u32 s63, s63, {R20}        ; first block of this round
        s_and_b32 s55, s63, 31
        s_mul_i32 s55, s55, {32*6144}
        s_mov_b32 s59, {32*6144}
        s_mov_b32 s57, 0
        s_mov_b32 s56, {1024*6144}
        s_cmp_lg_u32 s40, 0
        s_cbranch_scc1 K1_PFW
        s_mov_b32 s92, s4
        s_mov_b32 s93, s5
        s_mov_b32 s62, {2048*2048 if XW else 0}
        s_lshr_b32 s55, s63, 1
        s_and_b32 s55, s55, 15
        s_lshl_b32 s55, s55, 7
        s_mov_b32 s59, {1 << (18 - HB)}
        s_mov_b32 s57, {(1 << (18 - HB)) ^ ((128 - (1 << (18 - HB))) & 0xffffffff)}
        s_mov_b32 s56, 2048
        K1_PFW:
        s_mov_b32 s94, s62
        s_mov_b32 s95, 0x00020000
        """)
        if cfg.get("r2") == "early0":
            for t in range(int(cfg.get("e0n", 4))):
                for l in touch(): A(l)
        if cfg.get("r2") == "early":
            for t in range(L2D):
                for l in touch(): A(l)
    elif L2D:
        A(f"""
        s_and_b32 s47, s42, 1
        s_lshl_b32 s47, s47, 2
        s_and_b32 s38, s41, 3
        s_add_u32 s47, s47, s38
        s_lshr_b32 s38, s42, 1
        
        s_lshl_b32 s47, s47, 2           ; first of 4 rows
        s_lshl_b32 s38, s38, 7
        v_and_b32 v4, 3, v0
        v_add_u32 v4, s47, v4
        v_mul_u32_u24 v4, 6144, v4
        v_lshrrev_b32 v5, 2, v0
        v_lshl_add_u32 v4, v5, 11, v4    ; + segment * 2048
        v_add_u32 v4, s38, v4
        v_mov_b32 v5, 0x7ffffff0
        v_cmp_gt_u32 vcc, 12, v0
        s_cmp_eq_u32 s40, 2
        s_cselect_b32 s92, s6, s8
        s_cselect_b32 s93, s7, s9
        s_cmp_ge_u32 s40, 2
        s_cselect_b32 s62, {1024*6144}, 0
        s_mov_b32 s94, s62
        s_mov_b32 s95, 0x00020000
        v_cndmask_b32 v{PFA}, v5, v4, vcc
        s_lshr_b32 s63, s45, {RSH}
        s_mul_i32 s63, s63, {ROT}
        s_add_u32 s59, s63, {4 + L2D}
        """)
        for t in PFA_: l2pf(t)
    if PF4:
        assert ROT == 0 and ROT2 == 0
        touch_addr("s40", PFA, 4, 5, 6, False, "s62")
        A(f"""
        s_cmp_ge_u32 s40, 2
        s_mov_b32 s59, {64*6144}
        s_cselect_b32 s59, 128, s59
        s_mov_b32 s55, 0
        """)
        for t in range(int(cfg.get("r0", 0))):
            A(f"buffer_load_dword v{PFD}, v{PFA}, s[92:95], s55 offen")
            A("s_add_u32 s55, s55, s59")
        A(f"""
        s_cmp_ge_u32 s40, 2
        s_mov_b32 s55, {TL*32*6144}
        s_cselect_b32 s55, {TL*64}, s55
        """)
    rstamp(42)
    setup_p2(A)
    rstamp(43)
    A(f"""
    s_cmp_lg_u32 s40, 0
    s_cbranch_scc1 K1_NOZ
    v_lshlrev_b32 v4, 2, v0
    v_lshrrev_b32 v6, 2, v0
    v_lshlrev_b32 v6, 9, v6
    v_and_b32 v7, 3, v0
    v_lshl_add_u32 v6, v7, 2, v6
    v_mov_b32 v5, 0
    s_mov_b64 exec, 3
    buffer_store_dword v5, v4, s[32:35], s67 offen sc1
    buffer_store_dword v5, v4, s[32:35], s88 offen sc1
    s_mov_b64 exec, 0xff
    buffer_store_dword v5, v4, s[32:35], s68 offen sc1
    buffer_store_dword v5, v6, s[32:35], s69 offen sc1
    s_mov_b32 s36, s86
    s_mov_b32 s37, s87
    s_mov_b32 s38, 256
    s_mov_b32 s39, 0x00020000
    """)
    LATE = cfg.get("late")
    if not LATE:
        A("""
        s_waitcnt vmcnt(0)
        s_mov_b64 exec, 1
        v_mov_b32 v6, 1
        buffer_atomic_add v6, v5, s[36:39], 0 offen
        s_mov_b64 exec, -1
        """)
    else:
        A("s_mov_b64 exec, -1")
    A("""
    K1_NOZ:
    """)
    rstamp(44)
    setup_p3(A)
    rstamp(45)
    TW = cfg.get("tw")
    if TW:
        assert PF4
        A(f"""
        s_cmp_eq_u32 s40, 1
        s_cbranch_scc0 K1_TW2
        v_lshlrev_b32 v4, 12, v0
        s_lshl_b32 s47, s41, 15
        s_add_u32 s47, s47, s70
        s_mov_b64 exec, 0xff
        buffer_load_dword v{PFD}, v4, s[32:35], s47 offen
        s_mov_b64 exec, 1
        buffer_load_dword v{PFD}, v4, s[32:35], s79 offen
        buffer_load_dword v{PFD}, v4, s[32:35], s89 offen
        s_mov_b64 exec, -1
        K1_TW2:
        s_cmp_eq_u32 s40, 2
        s_cbranch_scc0 K1_TW3
        v_lshlrev_b32 v4, 16, v0
        s_sub_u32 s47, s73, {2*65536}
        s_mov_b64 exec, 0xff
        buffer_load_dword v{PFD}, v4, s[32:35], s47 offen
        s_sub_u32 s47, s47, {WS_OB - WS_OA}
        buffer_load_dword v{PFD}, v4, s[32:35], s47 offen
        s_mov_b64 exec, -1
        K1_TW3:
        """)
        if TW == "1":
            A(f"""
            s_cmp_eq_u32 s40, 3
            s_cbranch_scc0 K1_TW4
            s_mov_b32 s96, s8
            s_mov_b32 s97, s9
            s_mov_b32 s98, 4194304
            s_mov_b32 s99, 0x00020000
            v_lshlrev_b32 v4, 12, v0
            s_lshl_b32 s47, s16, 18
            s_lshl_b32 s38, s17, 7
            s_add_u32 s47, s47, s38
            buffer_load_dword v{PFD}, v4, s[96:99], s47 offen
            K1_TW4:
            """)
    XA, WA = 4, 20
    XB, WB = 32, 48
    ACC = 60
    acc = lambda sg, tt: ACC + (sg * 4 + tt) * 16
    A(f"""
    s_lshr_b32 s50, s40, 1           ; th
    s_and_b32 s51, s40, 1            ; type
    v_and_b32 v4, 31, v0
    v_lshrrev_b32 v5, 5, v0          ; hh
    v_bfe_u32 v6, v0, 2, 2           ; f = (l>>2)&3
    v_bfe_u32 v7, v0, 1, 3           ; (row>>1)&7
    v_xor_b32 v7, v5, v7
    v_lshlrev_b32 v7, 4, v7
    v_lshl_add_u32 v1, v4, 7, v7
    s_lshl_b32 s47, s50, 14
    v_add_u32 v1, s47, v1            ; vxa0
    v_xor_b32 v2, 32, v1             ; vxa1
    v_lshl_add_u32 v7, v5, 3, v6
    v_lshlrev_b32 v7, 6, v7          ; *64
    v_bfe_u32 v8, v0, 4, 1           ; g&1
    v_lshl_add_u32 v7, v8, 5, v7
    v_and_b32 v9, 3, v0
    v_lshl_add_u32 v7, v9, 3, v7
    s_lshl_b32 s47, s51, 11
    s_add_u32 s47, s47, {K1_WB}
    v_add_u32 v3, s47, v7            ; vwa
    """)
    M16 = cfg.get("m16")
    if M16:
        assert cfg.get("e8") and cfg.get("spread")
        A(f"""
        v_and_b32 v4, 15, v0             ; i
        v_lshrrev_b32 v5, 4, v0          ; q4
        v_lshrrev_b32 v6, 1, v4
        v_xor_b32 v6, v5, v6
        v_lshlrev_b32 v6, 4, v6
        v_lshl_add_u32 v1, v4, 7, v6
        s_lshl_b32 s38, s50, 14
        v_add_u32 v1, s38, v1
        v_lshrrev_b32 v6, 2, v4
        v_lshl_add_u32 v6, v5, 3, v6     ; k row 8 q4 + (i >> 2)
        v_lshlrev_b32 v6, 6, v6
        v_and_b32 v7, 1, v5
        v_lshl_add_u32 v6, v7, 5, v6
        v_and_b32 v7, 3, v0
        v_lshl_add_u32 v6, v7, 3, v6
        v_add_u32 v3, s47, v6            ; W columns 0..15
        v_xor_b32 v2, 32, v3             ; W columns 16..31
        """)
    A(f"""
    s_mov_b32 s48, {1 if cfg.get("spread") else 0}
    s_mov_b32 s49, {K1_SLOT}
    s_mov_b32 s65, 0
    s_mov_b32 s52, {K1_SLOT}
    s_mov_b32 s53, {-(K1_NSLOT-1)*K1_SLOT & 0xffffffff}
    s_mov_b32 s54, 32
    s_mov_b32 s64, 0                 ; x slot
    s_mov_b32 s66, {-(K1_NX-1)*K1_XS & 0xffffffff}
    """)
    for i in range(192):
        A(f"v_mov_b32 v{ACC+i}, 0")
    if PF2 and cfg.get("r2") != "early":
        for t in range(L2D + (4 - int(cfg.get("e0n", 4)) if cfg.get("r2") == "early0" else 0)):
            for l in touch(): A(l)
    rstamp(46)
    A("s_barrier")
    vstamp(A, cfg, 1, PV)
    if cfg.get("prof") == "4":
        A("s_memrealtime s[96:97]")
        A("s_waitcnt lgkmcnt(0)")
        A(f"v_writelane_b32 v{PV}, s96, 0")
    if cfg.get("prof") == "3":
        A("s_memtime s[96:97]")
        A("s_mov_b32 s100, 0")
        A("s_waitcnt lgkmcnt(0)")
        A("s_mov_b32 s101, s96")
    if L2D:
        for t in PFB_: l2pf(t)
    def reads(X, W, s):
        r = []
        xa = 1 if s == 0 else 2
        for tt in range(4):
            r.append(f"ds_read_b128 v[{X+4*tt}:{X+4*tt+3}], v{xa} offset:{tt*4096}")
        for sg in range(3):
            for sec in range(2):
                r.append(f"ds_read_b64_tr_b16 v[{W+4*sg+2*sec}:{W+4*sg+2*sec+1}], v3 offset:{sg*4096 + s*1024 + sec*256}")
        return [r[4], r[5], r[0], r[1], r[2], r[3], r[6], r[7], r[8], r[9]]
    def mfmas(X, W):
        m = []
        for sg in range(3):
            for tt in range(4):
                a = acc(sg, tt)
                w = f"v[{W+4*sg}:{W+4*sg+3}]"; x = f"v[{X+4*tt}:{X+4*tt+3}]"
                if cfg.get("exp16"):
                    m.append(f"v_mfma_f32_16x16x32_bf16 v[{a}:{a+3}], {w}, {x}, v[{a}:{a+3}]\nv_mfma_f32_16x16x32_bf16 v[{a+8}:{a+11}], {x}, {w}, v[{a+8}:{a+11}]")
                elif sg < 2: m.append(f"v_mfma_f32_32x32x16_bf16 v[{a}:{a+15}], {w}, {x}, v[{a}:{a+15}]")
                else:      m.append(f"v_mfma_f32_32x32x16_bf16 v[{a}:{a+15}], {x}, {w}, v[{a}:{a+15}]")
        return m
    X16, W16 = 4, 36
    def acc16(g, c):
        sg, ch = c >> 1, c & 1
        return acc(sg, g >> 1) + ((g & 1) * 8 + ch * 4 if sg < 2 else ch * 8 + (g & 1) * 4)
    def mf16(g, c):
        a = acc16(g, c); w = f"v[{W16+4*c}:{W16+4*c+3}]"; x = f"v[{X16+4*g}:{X16+4*g+3}]"
        return f"v_mfma_f32_16x16x32_bf16 v[{a}:{a+3}], " + (f"{w}, {x}" if c < 4 else f"{x}, {w}") + f", v[{a}:{a+3}]"
    rx16 = lambda g: f"ds_read_b128 v[{X16+4*g}:{X16+4*g+3}], v1 offset:{g*2048}"
    rw16 = lambda c, sec: f"ds_read_b64_tr_b16 v[{W16+4*c+2*sec}:{W16+4*c+2*sec+1}], v{3 - (c & 1)} offset:{(c >> 1)*4096 + sec*256}"
    H1R = {23: [rw16(5, 0), rw16(5, 1)]}
    for c in range(0, 5):
        H1R[4*c+3] = [rw16(c, 0)]; H1R[4*c+4] = [rw16(c, 1)]
    XAP = [int(x) for x in cfg.get("m16a", "0,1,2,4").split(",")]
    for g, k in enumerate(XAP): H1R[k] = [rx16(g)] + H1R.get(k, [])
    H1L = [l for k in range(24) for l in H1R.get(k, [])]
    H1N = lambda l: len(H1L) - 1 - H1L.index(l)
    if M16:
        for l in H1L: A(l)
    else:
        for l in reads(XA, WA, 0): A(l)
    if LATE:
        A("""
        s_cmp_lg_u32 s40, 0
        s_cbranch_scc1 K1_NOARR
        s_mov_b32 s96, s86
        s_mov_b32 s97, s87
        s_mov_b32 s98, 256
        s_mov_b32 s99, 0x00020000
        v_mov_b32 v32, 0
        v_mov_b32 v33, 1
        s_waitcnt vmcnt(0)
        s_mov_b64 exec, 1
        buffer_atomic_add v33, v32, s[96:99], 0 offen
        s_mov_b64 exec, -1
        K1_NOARR:
        """)
    if PF4:
        for t in range((TC - TL) // 2):
            A(f"buffer_load_dword v{PFD}, v{PFA+2}, s[92:95], s55 offen")
            A("s_add_u32 s55, s55, s59")
    A.label("K1_CLOOP")
    if M16:
        XP = int(cfg.get("m16x", 0))
        XS_ = int(cfg.get("m16s", 1))
        XBP = [XP + XS_ * g for g in range(4)]
        fr0 = [k for k in range(24) if k not in XBP and k % 4 != 3]
        ex0 = {[k for k in fr0 if k > XBP[-1]][0]: ["v_xad_u32 v1, v1, 64, s65"]}
        f2 = [k for k in fr0 if k not in ex0]
        ex0[f2[1]] = ["v_add_u32 v3, s49, v3"]; ex0[f2[3]] = ["v_add_u32 v2, s49, v2"]
        sal = ["s_sub_u32 s54, s54, 1", "s_and_b32 s63, s54, 1", "s_add_u32 s64, s64, s63",
               f"s_cmp_eq_u32 s64, {K1_NX}", f"s_cselect_b32 s65, s66, {K1_XS}", "s_cselect_b32 s64, 0, s64",
               "s_mul_i32 s65, s65, s63", "s_add_u32 s48, s48, 1", f"s_cmp_eq_u32 s48, {K1_NSLOT}",
               "s_cselect_b32 s49, s53, s52", "s_cselect_b32 s48, 0, s48", "s_cmp_lg_u32 s54, 0"]
        free = [k for k in range(1, 23) if len(H1R.get(k, [])) == 0]
        ex1 = {k: [] for k in free}
        for n, l in enumerate(sal): ex1[free[n * len(free) // len(sal)]].append(l)
        for k in range(24):
            nb = len([x for x in XBP if x < k])
            if k % 4 == 0:
                c = k // 4
                n = H1N(rw16(c, 1))
                if c == 0: n = min(n, H1N(rx16(0)))
                A(f"s_waitcnt lgkmcnt({min(15, n + nb)})")
                done = n
            if k in (1, 2, 3) and H1N(rx16(k)) < done:
                done = H1N(rx16(k)); A(f"s_waitcnt lgkmcnt({min(15, done + nb)})")
            A(mf16(k % 4, k // 4))
            if k in XBP: A(rx16(4 + XBP.index(k)))
            for l in ex0.get(k, []): A(l)
        for k in range(24):
            if k < 4 and (k == 0 or XS_ > 1): A(f"s_waitcnt lgkmcnt({(3 - k if XS_ > 1 else 0) + len([l for j in range(k) for l in H1R.get(j, [])])})")
            A(mf16(4 + k % 4, k // 4))
            for l in H1R.get(k, []) + ex1.get(k, []): A(l)
    else:
        A("s_waitcnt lgkmcnt(0)")
    m = mfmas(XA, WA); r = reads(XB, WB, 1)
    extra0 = {4: ["s_and_b32 s63, s54, 1", "s_add_u32 s64, s64, s63", f"s_cmp_eq_u32 s64, {K1_NX}",
                  f"s_cselect_b32 s65, s66, {K1_XS}", "s_cselect_b32 s64, 0, s64", "s_mul_i32 s65, s65, s63"],
              6: ["s_add_u32 s48, s48, 1", f"s_cmp_eq_u32 s48, {K1_NSLOT}", "s_cselect_b32 s49, s53, s52", "s_cselect_b32 s48, 0, s48"],
              7: ["v_xor_b32 v1, 64, v1", "v_xor_b32 v2, 64, v2"], 8: ["v_add_u32 v1, s65, v1", "v_add_u32 v2, s65, v2"], 9: ["v_add_u32 v3, s49, v3"]}
    SPREAD = cfg.get("spread")
    extra1 = {}
    if SPREAD:
        extra0 = {6: ["v_xad_u32 v1, v1, 64, s65"], 8: ["v_xad_u32 v2, v2, 64, s65"], 10: ["v_add_u32 v3, s49, v3"]}
        extra1 = {5: ["s_sub_u32 s54, s54, 1", "s_and_b32 s63, s54, 1", "s_add_u32 s64, s64, s63"],
                  6: [f"s_cmp_eq_u32 s64, {K1_NX}", f"s_cselect_b32 s65, s66, {K1_XS}", "s_cselect_b32 s64, 0, s64"],
                  7: ["s_mul_i32 s65, s65, s63", "s_add_u32 s48, s48, 1", f"s_cmp_eq_u32 s48, {K1_NSLOT}"],
                  8: ["s_cselect_b32 s49, s53, s52", "s_cselect_b32 s48, 0, s48"],
                  11: ["s_cmp_lg_u32 s54, 0"]}
        if PF2:
            t_ = touch()
            th_, tk_ = map(int, cfg.get("tpos", "1:9").split(":"))
            ex_ = extra1 if th_ else extra0
            after_dec = th_ == 1 and tk_ >= 5
            cmp_ = f"s_cmp_ge_u32 s54, {4 + L2D}" if after_dec else f"s_cmp_gt_u32 s54, {4 + L2D}"
            def addx(d, k, ls, front=False):
                d[k] = (ls + d.get(k, [])) if front else (d.get(k, []) + ls)
            if th_ == 1 and tk_ == 9:
                extra1[9] = [cmp_, "s_cselect_b32 s94, s62, 0", t_[0]]
                extra1[10] = t_[1:4]
                extra1[11] = [t_[4], "s_cmp_lg_u32 s54, 0"]
            else:
                assert not (th_ == 1 and 3 < tk_ < 9)
                addx(ex_, tk_, [cmp_, "s_cselect_b32 s94, s62, 0", t_[0]])
                addx(ex_, tk_ + 1, [t_[1], t_[2], t_[3], t_[4]])
        elif L2D:
            extra1[9] = [f"s_cmp_ge_u32 s54, {4 + L2D}", "s_cselect_b32 s94, s62, 0", "s_and_b32 s55, s59, 31"]
            extra1[10] = [f"s_mul_i32 s55, s55, {32*6144}", "s_add_u32 s59, s59, 1", f"buffer_load_dword v{PFD}, v{PFA}, s[92:95], s55 offen"]
    for k in range(0 if M16 else 12):
        A(m[k])
        if k < 5:
            A(r[2*k]); A(r[2*k+1])
        for l in extra0.get(k, []): A(l)
        if L2D and k == 10 and not SPREAD:
            assert not PF2
            A(f"s_cmp_gt_u32 s54, {4 + L2D}")
            A("s_cselect_b32 s94, s62, 0")
            l2pf()
    if not M16: A("s_waitcnt lgkmcnt(0)")
    m = mfmas(XB, WB); r = reads(XA, WA, 0)
    for k in range(0 if M16 else 12):
        A(m[k])
        if k < 5:
            A(r[2*k]); A(r[2*k+1])
        for l in extra1.get(k, []): A(l)
        if k == 8 and not SPREAD:
            A("s_sub_u32 s54, s54, 1"); A("s_cmp_lg_u32 s54, 0")
    if cfg.get("prof") == "3":
        A("s_memtime s[96:97]")
        A("s_barrier")
        A("s_memtime s[98:99]")
        A("s_waitcnt lgkmcnt(0)")
        A("s_sub_u32 s98, s98, s96")
        A("s_add_u32 s100, s100, s98")
        A("s_cmp_lg_u32 s54, 0")
    elif cfg.get("prof") == "4":
        A("s_barrier")
        A("s_memrealtime s[96:97]")
        A("s_sub_u32 m0, 32, s54")
        A("s_waitcnt lgkmcnt(0)")
        A(f"v_writelane_b32 v{PV}, s96, m0")
        A("s_cmp_lg_u32 s54, 0")
    else:
        A("s_barrier")
    A("s_cbranch_scc1 K1_CLOOP")
    A("s_waitcnt lgkmcnt(0)")
    if cfg.get("prof") == "3":
        A("s_memtime s[96:97]")
        A("s_waitcnt lgkmcnt(0)")
        A("s_sub_u32 s96, s96, s101")
        A(f"v_writelane_b32 v{PV}, s100, 0")
        A(f"v_writelane_b32 v{PV}, s96, 2")
    vstamp(A, cfg, 2, PV)
    E8 = cfg.get("e8")
    T1 = 4
    VB = acc(1, 0)
    QL = E8 and cfg.get("qlate", "1") == "1"
    V = acc(0, 2) if QL else acc(1, 0)
    Q = V + 16 if QL else acc(1, 0) + 32
    NT8 = 2 if E8 else 4
    if M16:
        A("""
        v_and_b32 v42, 15, v0            ; i
        v_lshrrev_b32 v43, 4, v0
        v_lshlrev_b32 v1, 4, v42
        v_lshl_add_u32 v40, v43, 9, v1   ; Q, V images : row * 512 + i * 16
        v_and_b32 v41, 1, v43
        v_lshl_add_u32 v41, v41, 10, v1
        v_lshrrev_b32 v43, 1, v43
        v_lshl_add_u32 v41, v43, 9, v41  ; swapped order : (row & 1) * 1024 + (row >> 1) * 512 + i * 16
        v_lshrrev_b32 v42, 3, v42
        v_lshl_add_u32 v42, v42, 7, v40  ; K image : tokens 8..15 and 16..23 change places
        """)
    A(f"""
    v_lshlrev_b32 v1, 4, v0          ; lane*16
    s_cmp_lg_u32 s51, 0
    s_cbranch_scc1 K1_E1T1
    s_mov_b32 s56, {fhex(32**-0.5 * LOG2E)}
    s_mov_b32 s57, s56
    s_lshl_b32 s47, s50, 13
    s_add_u32 s47, s47, {QST}
    v_add_u32 v44, s47, v{40 if M16 else 1}           ; Q staging address
    """)
    O2 = 256 if M16 else 1024
    def swap_tile(d):
        if M16:
            for k in range(4): A(f"v_permlane16_swap_b32 v{d+k}, v{d+4+k}")
    def handoff(srcs):
        for k, src in enumerate(srcs):
            cvt_tile(A, T1 + 8*k, src)
            A(f"ds_write_b128 v45, v[{T1+8*k}:{T1+8*k+3}] offset:{k*2048}")
            A(f"ds_write_b128 v45, v[{T1+8*k+4}:{T1+8*k+7}] offset:{k*2048+O2}")
        A("s_waitcnt lgkmcnt(0)")
        A("s_barrier")
    if E8:
        A(f"""
        s_lshl_b32 s47, s50, 13
        s_add_u32 s47, s47, {HB0}
        v_add_u32 v45, s47, v{41 if M16 else 1}
        """)
        A.nop(2)
        handoff([acc(0, 2), acc(0, 3), acc(2, 2), acc(2, 3)])
    else:
        A.nop(6)
    def bq_stage(tts, sc, adr, inplace):
        for tt in tts:
            for k in range(8):
                a = acc(1, tt) + 2*k
                A(f"v_pk_mul_f32 v[{a}:{a+1}], v[{a}:{a+1}], s[{sc}:{sc+1}]")
            d = acc(1, tt) if inplace else T1 + 8*tt
            cvt_tile(A, d, acc(1, tt))
            A(f"ds_write_b128 v{adr}, v[{d}:{d+3}] offset:{tt*2048}")
            A(f"ds_write_b128 v{adr}, v[{d+4}:{d+7}] offset:{tt*2048+O2}")
    if QL:
        A("""
        v_mov_b32 v26, v44
        s_mov_b32 s64, s56
        s_mov_b32 s65, s56
        """)
    else:
        bq_stage(range(4), 56, 44, False)
    for tt in range(NT8):
        cvt_tile(A, V + 8*tt, acc(2, tt))
        swap_tile(V + 8*tt)
    A("s_branch K1_E2J")
    A.label("K1_E1T1")
    A(f"""
    s_lshl_b32 s58, s41, 1
    s_add_u32 s58, s58, s50
    s_lshl_b32 s58, s58, 14
    s_add_u32 s58, s58, s70
    s_lshl_b32 s47, s50, 14
    v_add_u32 v44, s47, v{42 if M16 else 1}
    v_add_u32 v43, s47, v{40 if M16 else 1}
    """)
    if E8:
        A(f"""
        s_lshl_b32 s47, s50, 12
        s_add_u32 s47, s47, {HB1}
        v_add_u32 v45, s47, v{41 if M16 else 1}
        """)
        handoff([acc(0, 2), acc(0, 3)])
    else:
        A.nop(10)
    KA, K2 = (42, 128) if M16 else (1, 1024)
    VA = 40 if M16 else 1
    for tt in range(4):
        cvt_tile(A, T1 + 8*tt, acc(1, tt))
        A(f"buffer_store_dwordx4 v[{T1+8*tt}:{T1+8*tt+3}], v{KA}, s[32:35], s58 offen sc1")
        A(f"buffer_store_dwordx4 v[{T1+8*tt+4}:{T1+8*tt+7}], v{KA}, s[32:35], s58 offen offset:{K2} sc1")
        A("s_add_u32 s58, s58, 4096")
    A(f"s_sub_u32 s58, s58, {4*4096 - 2048}")
    for tt in range(4):
        cvt_tile(A, VB + 8*tt, acc(2, tt))
        A(f"buffer_store_dwordx4 v[{VB+8*tt}:{VB+8*tt+3}], v{VA}, s[32:35], s58 offen sc1")
        A(f"buffer_store_dwordx4 v[{VB+8*tt+4}:{VB+8*tt+7}], v{VA}, s[32:35], s58 offen offset:{O2} sc1")
        A("s_add_u32 s58, s58, 4096")
    for tt in range(4):
        A(f"ds_write_b128 v44, v[{T1+8*tt}:{T1+8*tt+3}] offset:{tt*4096}")
        A(f"ds_write_b128 v44, v[{T1+8*tt+4}:{T1+8*tt+7}] offset:{tt*4096+K2}")
        A(f"ds_write_b128 v43, v[{VB+8*tt}:{VB+8*tt+3}] offset:{tt*4096+2048}")
        A(f"ds_write_b128 v43, v[{VB+8*tt+4}:{VB+8*tt+7}] offset:{tt*4096+2048+O2}")
    A.label("K1_E2J")
    WP = 36
    krow = (lambda s, sec: 16*sec + 4*s) if M16 else (lambda s, sec: 16*s + 8*sec)
    def feat_setup(tb):
        A(f"""
        v_lshrrev_b32 v5, 5, v0          ; hh
        v_bfe_u32 v6, v0, 2, 2           ; i>>2
        v_lshl_add_u32 v6, v5, {3 if M16 else 2}, v6     ; 4hh + (i>>2)
        v_bfe_u32 v7, v0, 4, 1
        v_lshlrev_b32 v7, 5, v7
        v_and_b32 v8, 3, v0
        v_lshl_add_u32 v7, v8, 3, v7     ; (g&1)*32 + (i&3)*8
        v_lshl_add_u32 v2, v6, 6, v7
        v_add_u32 v2, {K1_WPHI}, v2
        """)
        for s in range(2):
            for sec in range(2):
                A(f"ds_read_b64_tr_b16 v[{WP+4*s+2*sec}:{WP+4*s+2*sec+1}], v2 offset:{krow(s, sec)*64}")
        A(f"""
        s_mul_i32 s47, s50, {K1_TBUF}
        s_add_u32 s47, s47, {tb}
        v_mul_u32_u24 v25, 136, v6
        v_add_u32 v25, v25, v7
        v_add_u32 v25, s47, v25
        v_and_b32 v8, 31, v0
        v_mul_u32_u24 v24, 136, v8
        v_lshl_add_u32 v24, v5, 3, v24
        v_add_u32 v24, s47, v24
        v_bfe_u32 v8, v0, 2, 1
        v_bfe_u32 v9, v0, 4, 1
        v_cmp_eq_u32 vcc, v8, v9
        v_mov_b32 v9, 0x3f803f80
        v_mov_b32 v8, 0
        v_cndmask_b32 v20, v8, v9, vcc
        v_cndmask_b32 v21, v8, v9, vcc
        v_cndmask_b32 v22, v8, v9, vcc
        v_cndmask_b32 v23, v8, v9, vcc
        """)
    feat_setup(TBUF0)
    for tt in range(NT8):
        cvt_tile(A, Q + 8*tt, acc(0, tt))
        swap_tile(Q + 8*tt)
    if M16: A("s_nop 0")
    if E8: A.label("K1_E2L")
    A("s_waitcnt lgkmcnt(0)")
    for tt in range(NT8):
        a = acc(0, tt)
        A(f"v_mfma_f32_32x32x16_bf16 v[{a}:{a+15}], v[{WP}:{WP+3}], v[{Q+8*tt}:{Q+8*tt+3}], 0")
    for tt in range(NT8):
        a = acc(0, tt)
        A(f"v_mfma_f32_32x32x16_bf16 v[{a}:{a+15}], v[{WP+4}:{WP+7}], v[{Q+8*tt+4}:{Q+8*tt+7}], v[{a}:{a+15}]")
    A(f"""
    s_mov_b32 s56, {fhex(LOG2E)}
    s_mov_b32 s57, s56
    """)
    A.nop(10)
    EP = acc(2, 0)
    PH = EP + 16
    AF = PH + 16
    KV0 = AF + 16
    KV1 = 44
    Z0, Z1, SEL1 = 12, 16, 20
    PHQ = 128
    def kv_mfmas(tt):
        out = []
        for s in range(2):
            for fb in range(2):
                kv = KV0 if fb == 0 else KV1
                z = Z0 if fb == 0 else Z1
                af = AF + (fb*2+s)*4
                c = "0" if (tt == 0 and s == 0) else f"v[{kv}:{kv+15}]"
                cz = "0" if (tt == 0 and s == 0) else f"v[{z}:{z+3}]"
                out.append(f"v_mfma_f32_32x32x16_bf16 v[{kv}:{kv+15}], v[{af}:{af+3}], v[{V+8*tt+4*s}:{V+8*tt+4*s+3}], {c}")
                out.append(f"v_mfma_f32_16x16x32_bf16 v[{z}:{z+3}], v[{SEL1}:{SEL1+3}], v[{af}:{af+3}], {cz}")
        return out
    if E8: F1POS = min(int(cfg.get("f1pos", 0)), 1)
    for tt in range(NT8):
        P = acc(0, tt)
        A(f"v_max3_f32 v4, v{P}, v{P+1}, v{P+2}")
        A(f"v_max3_f32 v5, -v{P}, -v{P+1}, -v{P+2}")
        for k in range(3, 15, 2):
            A(f"v_max3_f32 v4, v4, v{P+k}, v{P+k+1}")
            A(f"v_max3_f32 v5, v5, -v{P+k}, -v{P+k+1}")
        A(f"v_max_f32 v4, v4, v{P+15}")
        A(f"v_max_f32 v5, v5, -v{P+15}")
        A.nop(2)
        A("v_permlane32_swap_b32 v4, v5")
        A("s_nop 0")
        A("v_max_f32 v4, v4, v5")
        A("v_mov_b32 v5, v4")
        A.nop(2)
        A("v_permlane32_swap_b32 v4, v5")
        A("s_nop 0")
        A(f"v_mul_f32 v6, {fhex(-LOG2E)}, v4")
        A(f"v_mul_f32 v8, {fhex(-LOG2E)}, v5")
        for k in range(8):
            A(f"v_pk_fma_f32 v[{EP+2*k}:{EP+2*k+1}], v[{P+2*k}:{P+2*k+1}], s[56:57], v[6:7] op_sel_hi:[1,1,0]")
            A(f"v_pk_fma_f32 v[{P+2*k}:{P+2*k+1}], v[{P+2*k}:{P+2*k+1}], s[56:57], v[8:9] op_sel_hi:[1,1,0] neg_lo:[0,1,0] neg_hi:[0,1,0]")
        for k in range(16):
            A(f"v_exp_f32 v{EP+k}, v{EP+k}")
            A(f"v_exp_f32 v{P+k}, v{P+k}")
        if tt > 0:
            j = A.uid("K1_KVS")
            A("s_cmp_lg_u32 s51, 0"); A(f"s_cbranch_scc1 {j}")
            A("s_waitcnt lgkmcnt(0)")
            for l in kv_mfmas(tt-1): A(l)
            A.label(j)
        A(f"v_pk_add_f32 v[4:5], v[{EP}:{EP+1}], v[{EP+2}:{EP+3}]")
        A(f"v_pk_add_f32 v[6:7], v[{P}:{P+1}], v[{P+2}:{P+3}]")
        for k in range(2, 8):
            A(f"v_pk_add_f32 v[4:5], v[4:5], v[{EP+2*k}:{EP+2*k+1}]")
            A(f"v_pk_add_f32 v[6:7], v[6:7], v[{P+2*k}:{P+2*k+1}]")
        A("v_add_f32 v4, v4, v5")
        A("v_add_f32 v6, v6, v7")
        A.nop(2)
        A("v_permlane32_swap_b32 v4, v6")
        A("s_nop 0")
        A("v_add_f32 v4, v4, v6")
        A("v_rcp_f32 v4, v4")
        A("s_nop 0")
        A("v_mov_b32 v6, v4")
        A.nop(2)
        A("v_permlane32_swap_b32 v4, v6")
        A("s_nop 0")
        for k in range(8):
            A(f"v_pk_mul_f32 v[{EP+2*k}:{EP+2*k+1}], v[{EP+2*k}:{EP+2*k+1}], v[4:5] op_sel_hi:[1,0]")
            A(f"v_pk_mul_f32 v[{P+2*k}:{P+2*k+1}], v[{P+2*k}:{P+2*k+1}], v[6:7] op_sel_hi:[1,0]")
        j1 = A.uid("K1_T0"); j2 = A.uid("K1_TJ")
        A("s_cmp_eq_u32 s51, 0"); A(f"s_cbranch_scc1 {j1}")
        cvt_tile(A, PHQ + 16*tt, EP)
        cvt_tile(A, PHQ + 16*tt + 8, P)
        if tt == F1POS:
            if E8:
                A("s_cmp_ge_u32 s40, 4"); A(f"s_cbranch_scc1 {j2}")
            A("s_waitcnt vmcnt(0)")
            set_flag(A, "s67")
            vstamp(A, cfg, 3, PV)
        A(f"s_branch {j2}")
        A.label(j1)
        cvt_tile(A, PH, EP)
        cvt_tile(A, PH + 8, P)
        for sign in range(2):
            for b in range(4):
                A(f"ds_write_b64 v24, v[{PH+8*sign+2*b}:{PH+8*sign+2*b+1}] offset:{sign*64+b*16}")
        for fb in range(2):
            for s in range(2):
                for sec in range(2):
                    af = AF + (fb*2+s)*4 + 2*sec
                    A(f"ds_read_b64_tr_b16 v[{af}:{af+1}], v25 offset:{krow(s, sec)*136 + fb*64}")
        A.label(j2)
    A("s_cmp_lg_u32 s51, 0")
    A("s_cbranch_scc1 KF_JOIN")
    if QL:
        QN = int(cfg.get("qn", 4))
        A("s_cmp_ge_u32 s40, 4")
        A("s_cbranch_scc1 K1_QL0")
        bq_stage(range(QN), 64, 26, True)
        A(f"s_waitcnt lgkmcnt({2 * QN})")
        for l in kv_mfmas(NT8 - 1): A(l)
        bq_stage(range(QN, 4), 64, 26, True)
        A("s_branch K1_QL1")
        A("K1_QL0:")
        A("s_waitcnt lgkmcnt(0)")
        for l in kv_mfmas(NT8 - 1): A(l)
        A("K1_QL1:")
    else:
        A("s_waitcnt lgkmcnt(0)")
        for l in kv_mfmas(NT8 - 1): A(l)
    if E8:
        A(f"""
        s_cmp_ge_u32 s40, 4
        s_cselect_b32 s38, {HB0 - RED0}, 0
        s_cselect_b32 s55, 512, 0
        s_add_u32 s38, s38, {RED0}
        s_add_u32 s55, s55, {ZRED}
        """)
    else:
        A(f"s_mov_b32 s38, {RED0}")
        A(f"s_mov_b32 s55, {ZRED}")
    A(f"""
    s_lshl_b32 s47, s50, 13
    s_add_u32 s47, s47, s38
    v_add_u32 v2, s47, v1
    v_and_b32 v3, 31, v0
    v_lshlrev_b32 v3, 2, v3
    s_lshl_b32 s47, s50, 8
    s_add_u32 s47, s47, s55
    v_add_u32 v3, s47, v3
    """)
    A.nop(8)
    A(f"ds_write_b32 v3, v{Z0}")
    A(f"ds_write_b32 v3, v{Z1} offset:128")
    for fb in range(2):
        kv = KV0 if fb == 0 else KV1
        for q in range(4):
            A(f"ds_write_b128 v2, v[{kv+4*q}:{kv+4*q+3}] offset:{fb*4096+q*1024}")
    A("s_branch KF_JOIN")
    A.label("K1_LOADER")
    if cfg.get("lprio"): A(f"s_setprio {cfg.get('lprio')[0]}")
    def l_srd0():
        A("""
        s_cmp_eq_u32 s44, 0
        s_cselect_b32 s28, s6, s8
        s_cselect_b32 s29, s7, s9
        """)
        A(f"s_mov_b32 s30, {1024*6144}")
        A("s_mov_b32 s31, 0x00020000")
    def l_srd1():
        srd(A, 20, 6, 1024*6144)
        srd(A, 24, 8, 1024*6144)
    if not ES:
        srd(A, 16, 4, 2048*2048)
        l_srd1()
    A(f"""
    s_sub_u32 s50, s40, 4            ; w
    s_lshr_b32 s44, s50, 1
    """)
    if not ES: l_srd0()
    R1 = cfg.get("r1", "1") if cfg.get("pf2") else (cfg.get("r1", "0") if (PF3 or PF4) else "0")
    if R1 != "0":
        HM = cfg.get("hmap", "f") == "h"
        RB = 1 if HM else 2; HB = 4 if HM else 3
        NW = 3 << (4 - RB)
        A(f"""
        s_lshr_b32 s47, s45, {RSH}
        s_mul_i32 s47, s47, {ROT}
        s_and_b32 s51, s45, 1
        s_mul_i32 s51, s51, {ROT2}
        s_add_u32 s47, s47, s51          ; first block
        s_and_b32 s51, s50, 1
        s_lshl_b32 s51, s51, 1
        s_add_u32 s51, s51, s47
        v_mul_u32_u24 v20, 43, v0
        v_lshrrev_b32 v20, {10 if HM else 9}, v20
        v_mul_u32_u24 v21, {NW}, v20
        v_sub_u32 v21, v0, v21           ; lane % NW
        v_add_u32 v20, s51, v20
        v_and_b32 v20, 31, v20
        v_mul_u32_u24 v20, {32*6144}, v20
        s_and_b32 s51, s42, 1
        s_lshl_b32 s51, s51, {RB}
        s_and_b32 s52, s41, {(1 << RB) - 1}
        s_add_u32 s51, s51, s52
        s_lshl_b32 s51, s51, {4 - RB}    ; first row of the share
        v_and_b32 v22, {(1 << (4 - RB)) - 1}, v21
        v_add_u32 v22, s51, v22
        v_mul_u32_u24 v22, 6144, v22
        v_lshrrev_b32 v21, {4 - RB}, v21
        v_lshl_add_u32 v22, v21, 11, v22
        s_lshr_b32 s51, s42, 1
        s_lshl_b32 s51, s51, 7
        v_add3_u32 v20, v20, v22, s51
        v_mov_b32 v23, 0x7ffffff0
        v_cmp_gt_u32 vcc, {2 * NW}, v0
        s_lshl_b32 s51, s41, 8
        s_and_b32 s52, s42, {(1 << HB) - 1}
        s_lshl_b32 s52, s52, {8 - HB}
        v_cndmask_b32 v20, v23, v20, vcc
        s_add_u32 s51, s51, s52
        s_lshl_b32 s52, s50, {6 - HB}
        s_add_u32 s51, s51, s52
        {"" if ES else "buffer_load_dword v24, v20, s[28:31], 0 offen"}
        v_and_b32 v21, {(1 << (6 - HB)) - 1}, v0
        v_add_u32 v21, s51, v21
        v_lshlrev_b32 v21, 11, v21
        v_lshrrev_b32 v22, {6 - HB}, v0
        s_lshr_b32 s47, s47, 1
        v_add_u32 v22, s47, v22
        v_and_b32 v22, 15, v22
        v_lshl_add_u32 v21, v22, 7, v21
        v_cmp_gt_u32 vcc, {2 << (6 - HB)}, v0
        s_nop 1
        v_cndmask_b32 v21, v23, v21, vcc
        {"" if ES else "buffer_load_dword v25, v21, s[16:19], 0 offen"}
        """)
    if not ES: srd(A, 36, 10, 32*2048)
    A(f"""
    v_lshrrev_b32 v1, 3, v0
    v_lshrrev_b32 v2, 4, v0
    v_and_b32 v3, 7, v0
    v_xor_b32 v3, v3, v2
    v_lshlrev_b32 v3, 4, v3
    v_lshl_add_u32 v4, v1, 11, v3
    s_lshl_b32 s47, s41, 8
    s_lshl_b32 s51, s50, 6
    s_add_u32 s47, s47, s51
    s_lshl_b32 s47, s47, 11          ; (r*256 + 64w)*2048
    v_add_u32 v4, s47, v4            ; piece 0
    v_xor_b32 v5, 64, v4
    v_add_u32 v5, 16384, v5
    v_add_u32 v6, 32768, v4
    v_add_u32 v7, 32768, v5
    v_add_u32 v12, 65536, v4
    v_add_u32 v13, 65536, v5
    v_add_u32 v14, 98304, v4
    v_add_u32 v15, 98304, v5
    """)
    if ES:
        assert R1 == "2"
        A("s_waitcnt lgkmcnt(0)")
        rstamp(41)
        l_srd0()
        A("buffer_load_dword v24, v20, s[28:31], 0 offen")
        srd(A, 16, 4, 2048*2048)
        A("buffer_load_dword v25, v21, s[16:19], 0 offen")
        l_srd1()
        srd(A, 36, 10, 32*2048)
        srd(A, 32, 14, WS_USED)
    A(f"""
    v_lshrrev_b32 v1, {3 if cfg.get("expw") else 2}, v0
    s_and_b32 s47, s50, 1
    s_lshl_b32 s47, s47, 4
    v_add_u32 v1, s47, v1            ; krow = 16*(w&1) + (l>>2)
    v_mul_u32_u24 v1, 6144, v1
    v_and_b32 v3, {7 if cfg.get("expw") else 3}, v0
    {"v_lshrrev_b32 v2, 4, v0" if cfg.get("m16") else ""}
    {"v_and_b32 v2, 2, v2" if cfg.get("m16") else ""}
    {"v_xor_b32 v3, v2, v3            ; m16 : the column halves of k rows 8..15 change places" if cfg.get("m16") else ""}
    v_lshl_add_u32 v1, v3, 4, v1
    s_lshl_b32 s47, s42, 6           ; 64h
    {"s_and_b32 s47, s47, 0x780" if cfg.get("expw") else ""}
    s_lshl_b32 s51, s44, 11          ; type*2048
    s_add_u32 s52, s47, s51
    v_add_u32 v9, s52, v1            ; seg1 : B.q / B.k
    s_sub_u32 s52, 2048, s51
    s_add_u32 s52, s52, s47
    v_add_u32 v8, s52, v1            ; seg0 : A.k / A.q
    s_add_u32 s52, s47, 4096
    v_add_u32 v10, s52, v1           ; seg2 : A.v / B.v
    v_lshlrev_b32 v11, 4, v0
    s_and_b32 s51, s50, 1
    s_lshl_b32 s51, s51, 10
    s_lshl_b32 s47, s42, 11
    s_add_u32 s47, s47, s51          ; w_phi offset = h*2048 + (w&1)*1024
    s_add_u32 m0, s51, {K1_WPHI}
    s_lshl_b32 s55, s50, 13          ; w*8192  (x pieces)
    {"s_waitcnt vmcnt(0)" if R1 == "1" else ""}
    buffer_load_dwordx4 v11, s[36:39], s47 offen lds
    s_lshl_b32 s51, s50, 10
    s_add_u32 s56, s51, {K1_WB}      ; W pieces : + w*1024
    s_lshr_b32 s47, s45, {RSH}
    s_mul_i32 s47, s47, {ROT}
    s_and_b32 s51, s45, 1
    s_mul_i32 s51, s51, {ROT2}
    s_add_u32 s47, s47, s51
    s_and_b32 s47, s47, 31           ; first k block (rotated per XCD group: spreads the x column reads over the channels)
    s_lshl_b32 s58, s47, 6           ; soffset x
    s_mul_i32 s59, s47, {32*6144}    ; soffset W
    s_mov_b32 s60, 0                 ; block
    s_mov_b32 s61, s55               ; x slot
    s_mov_b32 s62, s56               ; W slot
    s_add_u32 s55, s55, {K1_XS*K1_NX}
    s_add_u32 s56, s56, {K1_SLOT*K1_NSLOT}
    """)
    if PF3:
        TE = int(cfg.get("te", 2))
        OFFL = int(cfg.get("offl", 0))
        XT = int(cfg.get("pfx", 1))
        BW = TE // 2; LB = BW.bit_length() - 1
        assert cfg.get("hmap", "f") == "f"
        A(f"""
        s_and_b32 s51, s42, 7            ; head within the XCD
        s_and_b32 s52, s41, 3            ; token block within the XCD
        s_and_b32 s63, s42, 1
        s_lshl_b32 s63, s63, 2
        s_add_u32 s63, s63, s52          ; share of the pair's weight lines
        s_lshl_b32 s63, s63, 2           ; first row
        s_and_b32 s64, s50, 1
        s_lshl_b32 s64, s64, {5 + LB}    ; first row of this wave's group of blocks
        s_add_u32 s63, s63, s64
        v_bfe_u32 v27, v0, 2, {LB})
        v_lshlrev_b32 v30, 5, v27        ; 32 * block
        v_and_b32 v26, 3, v0
        v_add3_u32 v26, v26, v30, s63    ; row
        v_mul_u32_u24 v26, 6144, v26
        v_lshrrev_b32 v27, {2 + LB}, v0  ; segment
        v_lshl_add_u32 v26, v27, 11, v26
        s_lshr_b32 s63, s42, 1
        s_lshl_b32 s63, s63, 7
        v_add_u32 v26, s63, v26          ; + column of the pair
        v_mov_b32 v29, 0x7ffffff0
        v_cmp_gt_u32 vcc, 3, v27
        """.replace("v_bfe_u32 v27, v0, 2, 0)", "v_mov_b32 v27, 0").replace(")\n", "\n"))
        if OFFL:
            A(f"""
            s_cmp_lt_u32 s51, 6
            s_cselect_b64 vcc, vcc, 0
            v_cndmask_b32 v26, v29, v26, vcc
            s_lshl_b32 s63, s51, 2
            s_add_u32 s63, s63, s52
            s_lshl_b32 s63, s63, 2
            v_and_b32 v28, 3, v0
            v_add_u32 v31, s63, v28          ; line of the last pair : 0..95
            v_and_b32 v28, 31, v31
            v_add3_u32 v28, v28, v30, s64
            v_mul_u32_u24 v28, 6144, v28
            v_lshrrev_b32 v31, 5, v31
            v_lshl_add_u32 v28, v31, 11, v28
            s_lshr_b32 s63, s42, 1
            s_or_b32 s63, s63, 3
            s_lshl_b32 s63, s63, 7
            v_add_u32 v28, s63, v28
            v_cmp_eq_u32 vcc, 3, v27
            s_cmp_lt_u32 s51, 6
            s_cselect_b64 vcc, vcc, 0
            v_cndmask_b32 v26, v26, v28, vcc
            """)
        else:
            A("s_nop 1\nv_cndmask_b32 v26, v29, v26, vcc")
        if OFFL == 2:
            A(f"""
            s_mul_i32 s63, s51, 43
            v_add_u32 v27, s63, v0
            v_cmp_gt_u32 vcc, 43, v0
            s_movk_i32 s63, 0x100
            v_cmp_gt_u32 s[64:65], s63, v27
            s_and_b64 vcc, vcc, s[64:65]
            s_cmp_lt_u32 s51, 6
            s_cselect_b64 vcc, vcc, 0
            """)
        else:
            A(f"""
            s_lshl_b32 s63, s51, 5
            v_add_u32 v27, s63, v0
            v_cmp_gt_u32 vcc, 32, v0
            """)
        A(f"""
        s_lshl_b32 s63, s41, 8
        v_add_u32 v27, s63, v27          ; x row
        v_lshlrev_b32 v27, 11, v27
        v_cndmask_b32 v27, v29, v27, vcc
        s_lshr_b32 s63, s58, 6           ; first block
        s_add_u32 s63, s63, {TL}
        s_and_b32 s63, s63, 31
        s_mul_i32 s64, s63, {32*6144}    ; weight offset
        s_lshr_b32 s63, s63, 1
        s_add_u32 s63, s63, s50
        s_and_b32 s63, s63, 15
        s_lshl_b32 s65, s63, 7           ; x offset
        s_cmp_lt_u32 s50, {BW}
        s_cselect_b32 s67, {2048*2048 if XT else 0}, 0
        s_cmp_lt_u32 s50, 2
        s_cselect_b32 s92, s6, s8
        s_cselect_b32 s93, s7, s9
        s_mov_b32 s94, 0
        s_mov_b32 s95, 0x00020000
        s_mov_b32 s88, s4
        s_mov_b32 s89, s5
        s_mov_b32 s90, 0
        s_mov_b32 s91, 0x00020000
        """)
    def pf4_setup():
        touch_addr("s50", 26, 27, 28, 29, True, "s66")
        A(f"""
        s_mov_b32 s67, s94
        s_cmp_ge_u32 s50, 2
        s_mov_b32 s64, {TL*32*6144}
        s_cselect_b32 s64, {TL*64}, s64
        s_mov_b32 s65, {64*6144}
        s_cselect_b32 s65, 128, s65
        """)
    ED = ES and cfg.get("ed", "1") == "1"
    if PF4 and not ED: pf4_setup()
    if PF4 and ED:
        A("""
        s_mov_b32 s92, s4
        s_mov_b32 s93, s5
        s_mov_b32 s94, 0
        s_mov_b32 s95, 0x00020000
        s_mov_b32 s64, 0
        v_mov_b32 v26, 0
        """)
    rstamp(42)
    if cfg.get("lprio"): A(f"s_setprio {cfg.get('lprio')[1]}")
    A("K1_LLOOP:")
    XV = [4, 5, 6, 7, 12, 13, 14, 15]
    def ld_x(i0=0, i1=8):
        for i in range(i0, i1):
            A(f"s_add_u32 m0, s61, {i*1024}")
            A("s_nop 0")
            A(f"buffer_load_dwordx4 v{XV[i]}, s[16:19], s58 offen lds")
        if i1 == 8: A(f"""
        s_add_u32 s58, s58, 128
        s_and_b32 s58, s58, 2047
        s_add_u32 s61, s61, {K1_XS}
        s_cmp_eq_u32 s61, s55
        s_cselect_b32 s47, {K1_XS*K1_NX}, 0
        s_sub_u32 s61, s61, s47
        """)
    def ld_w():
        for sg in range(3):
            A(f"s_add_u32 m0, s62, {sg*4096}")
            A("s_nop 0")
            A(f"buffer_load_dwordx4 v{8+sg}, s[{20+4*sg}:{23+4*sg}], s59 offen lds")
        A(f"""
        s_add_u32 s59, s59, {32*6144}
        s_cmp_eq_u32 s59, {1024*6144}
        s_cselect_b32 s59, 0, s59
        s_add_u32 s62, s62, {K1_SLOT}
        s_cmp_eq_u32 s62, s56
        s_cselect_b32 s47, {K1_SLOT*K1_NSLOT}, 0
        s_sub_u32 s62, s62, s47
        """)
    E8 = cfg.get("e8")
    def lsync(n=14):
        if cfg.get("prof") == "3":
            A("s_memtime s[96:97]")
            A(f"s_waitcnt vmcnt({n})")
            A("s_memtime s[98:99]")
            A("s_barrier")
            A("s_memtime s[90:91]")
            A("s_waitcnt lgkmcnt(0)")
            A("s_sub_u32 s96, s98, s96")
            A("s_add_u32 s100, s100, s96")
            A("s_sub_u32 s90, s90, s98")
            A("s_add_u32 s101, s101, s90")
        else:
            A(f"s_waitcnt vmcnt({n})")
            A("s_barrier")
    if cfg.get("prof") == "3":
        A("s_cmp_lg_u32 s60, 0")
        A("s_cbranch_scc1 K1_LP3")
        A("s_mov_b32 s100, 0")
        A("s_mov_b32 s101, 0")
        A.label("K1_LP3")
    BAL = int(cfg.get("bal", 0))
    NT = 2 if PF3 else 1 if PF4 else 0
    if BAL:
        ld_w(); ld_x(0, 8 - BAL)
    else:
        ld_x(); ld_w()
    A("""
    s_cmp_lt_u32 s60, 4
    s_cbranch_scc1 K1_LS1
    """)
    lsync(14 - BAL + NT)
    A("K1_LS1:")
    if BAL: ld_x(8 - BAL, 8)
    ld_w()
    if PF4:
        if ED:
            A("s_cmp_lg_u32 s60, 0"); A("s_cbranch_scc1 K1_PFS")
            pf4_setup()
            A("K1_PFS:")
        A(f"""
        s_cmp_le_u32 s60, {30 - TL}
        s_cselect_b32 s94, s67, 0
        buffer_load_dword v31, v26, s[92:95], s64 offen
        s_add_u32 s64, s64, s65
        """)
    if PF3:
        A(f"""
        s_and_b32 s63, s60, {TE - 1}
        s_cmp_le_u32 s60, {32 - TL - TE}
        s_cselect_b32 s63, s63, 1
        s_cmp_eq_u32 s63, 0
        s_cselect_b32 s94, {1024*6144}, 0
        s_cselect_b32 s90, s67, 0
        s_cselect_b32 s63, {TE*32*6144}, 0
        s_cselect_b32 s66, {TE*64}, 0
        buffer_load_dword v31, v26, s[92:95], s64 offen
        buffer_load_dword v31, v27, s[88:91], s65 offen
        s_add_u32 s64, s64, s63
        s_cmp_eq_u32 s64, {1024*6144}
        s_cselect_b32 s64, 0, s64
        s_add_u32 s65, s65, s66
        s_and_b32 s65, s65, 2047
        """)
    A("""
    s_cmp_lt_u32 s60, 2
    s_cbranch_scc1 K1_LS2
    """)
    if cfg.get("prof") == "4":
        A("s_cmp_lg_u32 s60, 2"); A("s_cbranch_scc1 K1_P4A"); rstamp(43); A(f"s_waitcnt vmcnt({14 + 2*NT})"); rstamp(44); A("K1_P4A:")
    lsync(14 + 2*NT)
    A("K1_LS2:")
    GW, GX, GA = (160, 168, 200) if E8 else (32, 64, 40)
    G1 = E8 and cfg.get("g1", "1") == "1"
    NG = 4 if G1 else 2
    XT8 = E8 and cfg.get("xt", "1") == "1"
    def gate_loads():
        srd(A, 36, 12, 2048)
        A(f"""
        s_lshl_b32 s47, s41, 8
        s_lshl_b32 s51, s42, 3
        s_add_u32 s47, s47, s51
        s_lshl_b32 s51, s50, 1
        {"s_and_b32 s51, s51, 4" if G1 else ""}
        s_add_u32 s63, s47, s51          ; t0 = r*256 + h*8 + 2w  /  + 4th
        s_lshl_b32 s51, s63, 11
        v_lshlrev_b32 v1, 5, v0
        buffer_load_dwordx4 v[{GW}:{GW+3}], v1, s[36:39], 0 offen
        buffer_load_dwordx4 v[{GW+4}:{GW+7}], v1, s[36:39], 0 offen offset:16
        """)
        for j in range(NG):
            A(f"buffer_load_dwordx4 v[{GX+8*j}:{GX+8*j+3}], v1, s[16:19], s51 offen")
            A(f"buffer_load_dwordx4 v[{GX+8*j+4}:{GX+8*j+7}], v1, s[16:19], s51 offen offset:16")
            if j < NG - 1: A("s_add_u32 s51, s51, 2048")
    def dbg_srd(r=36):
        A(f"""
        s_mov_b32 s{r}, s86
        s_mov_b32 s{r+1}, s87
        s_mov_b32 s{r+2}, 256
        s_mov_b32 s{r+3}, 0x00020000
        v_mov_b32 v46, 0
        """)
    A(f"""
    s_add_u32 s60, s60, 2
    s_cmp_lt_u32 s60, 32
    s_cbranch_scc1 K1_LLOOP
    """)
    if cfg.get("lf") == "1": A("K1_LPOST:")
    def ltail(gate):
        GN = (3 + 2*NG if gate else 1) if E8 else 0
        if E8:
            if gate:
                gate_loads()
                A("s_mov_b32 s84, s63")
            dbg_srd(92)
            poll_issue(A, 47, 46, 92, "0")
        A(f"""
        s_waitcnt vmcnt({3 + NT + GN})
        s_barrier
        """)
        if E8:
            setup_p2(A)
            A(f"s_add_u32 s74, s74, {2*65536}        ; oA offset of tiles 2, 3")
        A(f"""
        s_waitcnt vmcnt({GN})
        s_barrier
        """)
    if G1:
        A("s_bitcmp1_b32 s50, 0")
        A("s_cbranch_scc1 K1_LT1")
        ltail(False)
        A("s_branch K1_LT2")
        A("K1_LT1:")
        ltail(True)
        A("K1_LT2:")
    else:
        ltail(True)
    if cfg.get("prof") == "3":
        A(f"v_writelane_b32 v{PV}, s100, 0")
        A(f"v_writelane_b32 v{PV}, s101, 1")
    if cfg.get("lprio"): A("s_setprio 0")
    if E8:
        setup_p3(A)
        A("s_barrier")
        A(f"""
        s_and_b32 s51, s50, 1
        {"s_xor_b32 s51, s51, 1" if XT8 else ""}
        s_lshr_b32 s50, s50, 1
        """)
        feat_setup(TBUF1)
        A(f"""
        v_lshlrev_b32 v1, 4, v0          ; lane*16
        s_lshl_b32 s47, s50, 13
        s_add_u32 s47, s47, {HB0}
        s_lshl_b32 s38, s50, 12
        s_add_u32 s38, s38, {HB1}
        s_cmp_eq_u32 s51, 0
        s_cselect_b32 s47, s47, s38
        v_add_u32 v45, s47, v1
        """)
        for j in range(NG): A(f"v_mov_b32 v{GA+j}, 0")
        GE = cfg.get("ge") == "1"
        def gate_calc():
            for k in range(8):
                for j in range(NG):
                    A(f"v_dot2c_f32_bf16 v{GA+j}, v{GX+8*j+k}, v{GW+k}")
                if NG == 2: A("s_nop 1")
            A.nop(3)
            for rot in (8, 4, 2, 1):
                for j in range(NG): A(f"v_add_f32_dpp v{GA+j}, v{GA+j}, v{GA+j} row_ror:{rot} row_mask:0xf bank_mask:0xf")
                if NG == 2: A("s_nop 1")
            if G1:
                A(f"""
                v_permlane16_swap_b32 v{GA}, v{GA+1}
                s_nop 0
                v_permlane16_swap_b32 v{GA+2}, v{GA+3}
                s_nop 1
                v_add_f32 v{GA}, v{GA}, v{GA+1}          ; rows : a01, b01, a23, b23
                v_add_f32 v{GA+1}, v{GA+2}, v{GA+3}      ; rows : c01, d01, c23, d23
                s_nop 1
                v_permlane32_swap_b32 v{GA}, v{GA+1}
                s_nop 1
                v_add_f32 v{GA}, v{GA}, v{GA+1}
                """)
            else:
                A(f"""
                v_permlane16_swap_b32 v{GA}, v{GA+1}
                s_nop 1
                v_add_f32 v{GA}, v{GA}, v{GA+1}          ; rows : a01, b01, a23, b23
                v_mov_b32 v{GA+1}, v{GA}
                s_nop 1
                v_permlane32_swap_b32 v{GA}, v{GA+1}
                s_nop 1
                v_add_f32 v{GA}, v{GA}, v{GA+1}          ; lanes 0..15 : token t0, lanes 16..31 : token t0 + 1
                """)
            A(f"""
            v_mul_f32 v{GA}, {fhex(-LOG2E)}, v{GA}
            v_exp_f32 v{GA}, v{GA}
            v_lshrrev_b32 v{GA+2}, 4, v0
            v_lshlrev_b32 v{GA+2}, 2, v{GA+2}
            v_add_f32 v{GA}, 1.0, v{GA}
            v_rcp_f32 v{GA}, v{GA}
            s_lshl_b32 s47, s84, 2
            s_add_u32 s47, s47, {WS_G}
            s_mov_b32 exec_lo, 0x10001
            s_mov_b32 exec_hi, {"0x10001" if G1 else "0"}
            buffer_store_dword v{GA}, v{GA+2}, s[32:35], s47 offen sc1
            s_mov_b64 exec, -1
            """)
        if GE:
            assert XT8 and G1
            A("s_waitcnt vmcnt(0)")
            poll_check(A, 47, 46, 92, "0", "PG", expect="0x100")
            A("s_cmp_lg_u32 s51, 0"); A("s_cbranch_scc1 K1_GE1")
            gate_calc()
            A.label("K1_GE1")
        A("s_barrier")
        vstamp(A, cfg, 2, PV)
        if not GE:
            A("s_waitcnt vmcnt(0)")
            poll_check(A, 47, 46, 92, "0", "PG", expect="0x100")
        A("s_barrier")
        EPR = cfg.get("eprio", "00")
        if EPR != "00":
            A(f"s_setprio {EPR[1]}")
            A("s_cmp_lg_u32 s51, 0")
            A("s_cbranch_scc1 K1_LP1")
            A(f"s_setprio {EPR[0]}")
            A("K1_LP1:")
        for k in range(2):
            A(f"ds_read_b128 v[{Q+8*k}:{Q+8*k+3}], v45 offset:{k*2048}")
            A(f"ds_read_b128 v[{Q+8*k+4}:{Q+8*k+7}], v45 offset:{k*2048+1024}")
        A("s_cmp_lg_u32 s51, 0")
        A(f"s_cbranch_scc1 {'K1_E2L' if (XT8 and G1) else 'K1_LNV'}")
        for k in range(2):
            A(f"ds_read_b128 v[{V+8*k}:{V+8*k+3}], v45 offset:{4096+k*2048}")
            A(f"ds_read_b128 v[{V+8*k+4}:{V+8*k+7}], v45 offset:{4096+k*2048+1024}")
        if G1 and not XT8: A("s_branch K1_E2L")
        A("K1_LNV:")
        if not GE: gate_calc()
        A("s_branch K1_E2L")
    else:
        gate_loads()
        A("""
        s_barrier
        s_barrier
        """)
        vstamp(A, cfg, 2, PV)
        for j in range(2): A(f"v_mov_b32 v{40+j}, 0")
        A("s_waitcnt vmcnt(0)")
        for k in range(8):
            for j in range(2):
                A(f"v_dot2c_f32_bf16 v{40+j}, v{GX+8*j+k}, v{32+k}")
            A("s_nop 1")
        A("v_lshlrev_b32 v3, 2, v0")
        A.nop(3)
        for mask in (1, 2, 4, 8, 16, 32):
            A(f"v_xor_b32 v4, {mask*4}, v3")
            for j in range(2): A(f"ds_bpermute_b32 v{5+j}, v4, v{40+j}")
            A("s_waitcnt lgkmcnt(0)")
            for j in range(2): A(f"v_add_f32 v{40+j}, v{40+j}, v{5+j}")
        A(f"v_cmp_eq_u32 vcc, 1, v0")
        A("s_nop 1")
        A(f"v_cndmask_b32 v40, v40, v41, vcc")
        A(f"""
        v_mul_f32 v40, {fhex(-LOG2E)}, v40
        v_exp_f32 v40, v40
        s_nop 0
        v_add_f32 v40, 1.0, v40
        v_rcp_f32 v40, v40
        s_lshl_b32 s47, s63, 2
        s_add_u32 s47, s47, {WS_G}
        s_mov_b64 exec, 3
        buffer_store_dword v40, v3, s[32:35], s47 offen sc1
        s_mov_b64 exec, -1
        """)
        setup_p2(A)
        setup_p3(A)
        A(f"""
        s_mov_b32 s85, s36
        v_and_b32 v35, 15, v0
        v_lshlrev_b32 v35, 2, v35
        """)
        dbg_srd()
        poll_issue(A, 47, 46, 36, "0")
        A("s_waitcnt vmcnt(0)")
        poll_check(A, 47, 46, 36, "0", "PG", expect="0x100")
        poll_issue(A, 47, 35, 32, "s78")
        A("s_waitcnt vmcnt(0)")
        poll_check(A, 47, 35, 32, "s78", "P1")
        vstamp(A, cfg, 3, PV)
        A(f"""
        v_lshlrev_b32 v3, 4, v0
        s_lshl_b32 s47, s50, 12          ; w*4096
        s_add_u32 m0, s47, {2*16384}
        s_lshl_b32 s51, s41, 1
        s_add_u32 s51, s51, 2
        s_and_b32 s51, s51, 15
        s_lshl_b32 s51, s51, 14
        s_add_u32 s51, s51, s47
        s_add_u32 s51, s51, s70
        """)
        for j in range(4):
            A(f"buffer_load_dwordx4 v3, s[32:35], s51 offen offset:{j*1024} sc1 lds")
        A("s_mov_b32 s36, s85")
    A.label("KF_JOIN")
    if cfg.get("e8") and cfg.get("eprio", "00") != "00": A("s_setprio 0")
    Q, K0, K1, V0, V1, SEL, NEGM, SA, SB, O, L, P = 8, 16, 20, 24, 28, 40, 48, 64, 80, 96, 112, 120
    PR = 33
    RD = 192
    if cfg.get("prof"): A(f"v_mov_b32 v{PR}, v{PV}")
    vstamp(A, cfg, 4, PR)
    JL = cfg.get("jl") == "1"
    def j_sel():
        A(f"""
        v_bfe_u32 v4, v0, 2, 1
        v_bfe_u32 v5, v0, 4, 1
        v_cmp_eq_u32 vcc, v4, v5
        v_mov_b32 v5, 0x3f803f80
        v_mov_b32 v4, 0
        v_cndmask_b32 v{SEL}, v4, v5, vcc
        v_cndmask_b32 v{SEL+1}, v4, v5, vcc
        v_cndmask_b32 v{SEL+2}, v4, v5, vcc
        v_cndmask_b32 v{SEL+3}, v4, v5, vcc
        v_mov_b32 v1, v3                 ; cur
        v_add_u32 v2, 16384, v3          ; next
        """)
    def j_zero(a, b):
        z = [O+i for i in range(16)]
        for i in range(4): z += [L+i, V1+i, P+4+i]
        z += [35, 36, 37, 38, 39, 45] + ([] if E8 else [46])
        for i in z[a:b]: A(f"v_mov_b32 v{i}, 0")
    A("v_lshlrev_b32 v3, 4, v0          ; lane*16")
    if not JL: j_sel()
    A(f"""
    s_lshl_b32 s47, s40, 11
    s_add_u32 s47, s47, {QST}
    v_add_u32 v6, s47, v3            ; Q staging address
    s_lshl_b32 s47, s40, 10
    s_add_u32 s47, s47, {RED0}
    v_add_u32 v7, s47, v3
    """)
    if not JL: j_zero(0, 99)
    if E8:
        A("v_and_b32 v46, 15, v0")
        A("v_lshlrev_b32 v46, 2, v46")
        if cfg.get("dp", "1") != "2": poll_issue(A, 47, 46, 32, "s78")
    A(f"""
    s_mov_b32 s60, 0
    s_mov_b32 s61, 1
    s_waitcnt lgkmcnt(0)
    s_barrier
    """)
    vstamp(A, cfg, 5, PR)
    NRD = 4 if E8 else 2
    A(f"""
    ds_read_b128 v[{Q}:{Q+3}], v6
    ds_read_b128 v[{NEGM}:{NEGM+3}], v3
    ds_read_b128 v[{Q+4}:{Q+7}], v6 offset:1024
    ds_read_b128 v[{NEGM+4}:{NEGM+7}], v3 offset:1024
    ds_read_b128 v[{K0}:{K0+3}], v3 offset:4096
    ds_read_b128 v[{K1}:{K1+3}], v3 offset:{4096+1024}
    ds_read_b128 v[{V0}:{V0+3}], v3 offset:2048
    ds_read_b128 v[{RD}:{RD+3}], v7
    ds_read_b128 v[{RD+4}:{RD+7}], v7 offset:8192
    """)
    if E8:
        A(f"ds_read_b128 v[{RD+12}:{RD+15}], v7 offset:{HB0 - RED0}")
        A(f"ds_read_b128 v[{RD+16}:{RD+19}], v7 offset:{HB0 - RED0 + 8192}")
    if JL: j_zero(0, 20)
    A(f"""
    s_waitcnt lgkmcnt({5 + NRD})
    v_mfma_f32_32x32x16_bf16 v[{SA}:{SA+15}], v[{NEGM}:{NEGM+3}], v[{Q}:{Q+3}], 0
    s_waitcnt lgkmcnt({3 + NRD})
    v_mfma_f32_32x32x16_bf16 v[{SA}:{SA+15}], v[{NEGM+4}:{NEGM+7}], v[{Q+4}:{Q+7}], v[{SA}:{SA+15}]
    s_waitcnt lgkmcnt({1 + NRD})
    v_mfma_f32_32x32x16_bf16 v[{SB}:{SB+15}], v[{K0}:{K0+3}], v[{Q}:{Q+3}], 0
    v_mfma_f32_32x32x16_bf16 v[{SB}:{SB+15}], v[{K1}:{K1+3}], v[{Q+4}:{Q+7}], v[{SB}:{SB+15}]
    """)
    if JL: j_sel(); j_zero(20, 99)
    A(f"""
    s_waitcnt lgkmcnt(0)
    v_pk_add_f32 v[{RD}:{RD+1}], v[{RD}:{RD+1}], v[{RD+4}:{RD+5}]
    v_pk_add_f32 v[{RD+2}:{RD+3}], v[{RD+2}:{RD+3}], v[{RD+6}:{RD+7}]
    """)
    if E8:
        A(f"""
        v_pk_add_f32 v[{RD+12}:{RD+13}], v[{RD+12}:{RD+13}], v[{RD+16}:{RD+17}]
        v_pk_add_f32 v[{RD+14}:{RD+15}], v[{RD+14}:{RD+15}], v[{RD+18}:{RD+19}]
        v_pk_add_f32 v[{RD}:{RD+1}], v[{RD}:{RD+1}], v[{RD+12}:{RD+13}]
        v_pk_add_f32 v[{RD+2}:{RD+3}], v[{RD+2}:{RD+3}], v[{RD+14}:{RD+15}]
        s_cmp_lg_u32 s40, 7
        s_cbranch_scc1 KJ_NOZ
        v_lshlrev_b32 v4, 2, v0
        v_add_u32 v5, {ZRED}, v4
        ds_read_b32 v{RD+8}, v5
        ds_read_b32 v{RD+9}, v5 offset:256
        ds_read_b32 v{RD+10}, v5 offset:512
        ds_read_b32 v{RD+11}, v5 offset:768
        s_waitcnt lgkmcnt(0)
        v_add_f32 v{RD+8}, v{RD+8}, v{RD+9}
        v_add_f32 v{RD+10}, v{RD+10}, v{RD+11}
        v_add_f32 v{RD+8}, v{RD+8}, v{RD+10}
        KJ_NOZ:
        """)
    else:
        A(f"""
        s_cmp_lg_u32 s40, 7
        buffer_store_dwordx4 v[{RD}:{RD+3}], v3, s[32:35], s79 offen sc1
        s_cbranch_scc1 KJ_NOZ
        v_lshlrev_b32 v4, 2, v0
        v_add_u32 v5, {ZRED}, v4
        ds_read_b32 v{RD+8}, v5
        ds_read_b32 v{RD+9}, v5 offset:256
        s_waitcnt lgkmcnt(0)
        v_add_f32 v{RD+8}, v{RD+8}, v{RD+9}
        buffer_store_dword v{RD+8}, v4, s[32:35], s89 offen sc1
        KJ_NOZ:
        """)
    A.nop(6)
    A(f"v_max3_f32 v4, v{SA}, v{SA+1}, v{SA+2}")
    A(f"v_max3_f32 v5, v{SA+3}, v{SA+4}, v{SA+5}")
    for k in range(6, 14, 4):
        A(f"v_max3_f32 v4, v4, v{SA+k}, v{SA+k+1}")
        A(f"v_max3_f32 v5, v5, v{SA+k+2}, v{SA+k+3}")
    A(f"v_max3_f32 v4, v4, v{SA+14}, v{SA+15}")
    for k in range(0, 16, 4):
        A(f"v_max3_f32 v4, v4, v{SB+k}, v{SB+k+1}")
        A(f"v_max3_f32 v5, v5, v{SB+k+2}, v{SB+k+3}")
    A("v_max_f32 v4, v4, v5")
    A("v_mov_b32 v5, v4")
    A.nop(2)
    A("v_permlane32_swap_b32 v4, v5")
    A("s_nop 0")
    A("v_max_f32 v4, v4, v5")
    A(f"v_add_f32 v4, {fhex(BIAS)}, v4")
    if cfg.get("np") == "1":
        for i in range(2): A(f"v_sub_f32 v{NEGM+i}, 0, v4")
        for i in range(2, 16, 2): A(f"v_pk_mov_b32 v[{NEGM+i}:{NEGM+i+1}], v[{NEGM}:{NEGM+1}], v[{NEGM}:{NEGM+1}] op_sel:[0,1]")
    else:
        for i in range(16):
            A(f"v_sub_f32 v{NEGM+i}, 0, v4")
    for k in range(8):
        A(f"v_pk_add_f32 v[{SA+2*k}:{SA+2*k+1}], v[{SA+2*k}:{SA+2*k+1}], v[{NEGM}:{NEGM+1}]")
    DX = int(cfg.get("dx", 0))
    def chunk2():
        A(f"""
        s_lshl_b32 s47, s40, 11
        s_add_u32 m0, s47, {2*16384}
        s_lshl_b32 s38, s41, 1
        s_add_u32 s38, s38, 2
        s_and_b32 s38, s38, 15
        s_lshl_b32 s38, s38, 14
        s_add_u32 s38, s38, s47
        s_add_u32 s81, s38, s70
        buffer_load_dwordx4 v3, s[32:35], s81 offen sc1 lds
        buffer_load_dwordx4 v3, s[32:35], s81 offen offset:1024 sc1 lds
        """)
    if DX:
        assert E8 and cfg.get("prof") != "2" and 1 <= DX <= 3
        DP = cfg.get("dp", "1")
        if DP == "2": poll_issue(A, 47, 46, 32, "s78")
        if DP == "3": poll_issue(A, 45, 46, 32, "s78")
        A(f"""
        buffer_store_dwordx4 v[{RD}:{RD+3}], v3, s[32:35], s79 offen sc1
        s_cmp_lg_u32 s40, 7
        s_cbranch_scc1 KJ_NOZ2
        v_lshlrev_b32 v4, 2, v0
        buffer_store_dword v{RD+8}, v4, s[32:35], s89 offen sc1
        KJ_NOZ2:
        """)
    elif E8:
        A("s_waitcnt vmcnt(0)")
        poll_check(A, 47, 46, 32, "s78", "P1")
        A(f"""
        buffer_store_dwordx4 v[{RD}:{RD+3}], v3, s[32:35], s79 offen sc1
        s_cmp_lg_u32 s40, 7
        s_cbranch_scc1 KJ_NOZ2
        v_lshlrev_b32 v4, 2, v0
        buffer_store_dword v{RD+8}, v4, s[32:35], s89 offen sc1
        KJ_NOZ2:
        s_lshl_b32 s47, s40, 11
        s_add_u32 m0, s47, {2*16384}
        s_lshl_b32 s38, s41, 1
        s_add_u32 s38, s38, 2
        s_and_b32 s38, s38, 15
        s_lshl_b32 s38, s38, 14
        s_add_u32 s38, s38, s47
        s_add_u32 s81, s38, s70
        buffer_load_dwordx4 v3, s[32:35], s81 offen sc1 lds
        buffer_load_dwordx4 v3, s[32:35], s81 offen offset:1024 sc1 lds
        """)
    vstamp(A, cfg, 6, PR)
    if cfg.get("prof") == "2":
        A("s_mov_b32 s100, 15"); A(f"v_mov_b32 v{PR}, 0"); bstamp(A, cfg, 2); A("s_mov_b32 s100, 0")
    def dma_ops():
        a = ["s_mov_b32 m0, s72", "s_add_u32 s81, s70, s71", "s_add_u32 s72, s72, 16384",
             "buffer_load_dwordx4 v3, s[32:35], s81 offen sc1 lds"]
        b = ["buffer_load_dwordx4 v3, s[32:35], s81 offen offset:1024 sc1 lds",
             f"s_and_b32 s72, s72, {RING-1}", "s_add_u32 s71, s71, 16384", "s_and_b32 s71, s71, 0x3ffff"]
        return a, b
    def dma_chunk():
        a, b = dma_ops()
        for l in a + b: A(l)
    class LQ:
        def __init__(s, init): s.q = list(init)
        def rd(s, tag, text):
            def f(): A(text); s.q.append(tag)
            return f
        def wait(s, *tags):
            idx = max([k for k, t in enumerate(s.q) if t in tags], default=-1)
            if idx < 0: return
            A(f"s_waitcnt lgkmcnt({min(15, len(s.q) - 1 - idx)})")
            s.q = s.q[idx+1:]
    LQM = [None]
    def tile(i, Sa, Sb, sideA=(), sideB=(), end=()):
        e = lambda k: f"v_exp_f32 v{Sa+k}, v{Sa+k}"
        c = lambda k: f"v_cvt_pk_bf16_f32 v{P+k}, v{Sa+2*k}, v{Sa+2*k+1}"
        QK0 = f"v_mfma_f32_32x32x16_bf16 v[{Sb}:{Sb+15}], v[{K0}:{K0+3}], v[{Q}:{Q+3}], v[{NEGM}:{NEGM+15}]"
        QK1 = f"v_mfma_f32_32x32x16_bf16 v[{Sb}:{Sb+15}], v[{K1}:{K1+3}], v[{Q+4}:{Q+7}], v[{Sb}:{Sb+15}]"
        PV0 = f"v_mfma_f32_32x32x16_bf16 v[{O}:{O+15}], v[{V0}:{V0+3}], v[{P}:{P+3}], v[{O}:{O+15}]"
        PV1 = f"v_mfma_f32_32x32x16_bf16 v[{O}:{O+15}], v[{V1}:{V1+3}], v[{P+4}:{P+7}], v[{O}:{O+15}]"
        L0 = f"v_mfma_f32_16x16x32_bf16 v[{L}:{L+3}], v[{SEL}:{SEL+3}], v[{P}:{P+3}], v[{L}:{L+3}]"
        L1 = f"v_mfma_f32_16x16x32_bf16 v[{L}:{L+3}], v[{SEL}:{SEL+3}], v[{P+4}:{P+7}], v[{L}:{L+3}]"
        W = "s_waitcnt lgkmcnt(3)"
        def addr(tt, fr):
            return (f"v1 offset:{tt*4096+fr*1024}" if tt < 4 else f"v2 offset:{(tt-4)*4096+fr*1024}")
        rK0 = f"ds_read_b128 v[{K0}:{K0+3}], {addr(i+2, 0)}"; rK1 = f"ds_read_b128 v[{K1}:{K1+3}], {addr(i+2, 1)}"
        rV0 = f"ds_read_b128 v[{V0}:{V0+3}], {addr(i+1, 2)}"; rV1 = f"ds_read_b128 v[{V1}:{V1+3}], {addr(i, 3)}"
        WV1 = WK0 = WK1 = WV0 = W
        lq = LQM[0]
        if lq:
            WV1, WK0, WK1, WV0 = [(lambda t=t: lq.wait(t)) for t in ("V1", "K0", "K1", "V0")]
            rV1, rK0, rK1, rV0 = lq.rd("V1", rV1), lq.rd("K0", rK0), lq.rd("K1", rK1), lq.rd("V0", rV0)
        seq = [e(0), e(1), WV1, PV1, rV1, *sideA, e(2), e(3), e(4), e(5), WK0, QK0, rK0, e(6), e(7), c(0), c(1), L1, c(2), c(3), e(8), WK1, QK1, rK1,
               *sideB, e(9), e(10), e(11), WV0, PV0, rV0, e(12), e(13), e(14), L0, e(15), c(4), c(5), c(6), c(7), *end]
        for x in seq:
            if callable(x): x()
            else: A(x)
    PRIO = [int(c) for c in cfg.get("prio", "3210")]
    def period(sides=None, dma=True, head=False):
        if head and DX:
            A("s_cmp_eq_u32 s60, 0"); A("s_cbranch_scc1 K2_ND")
            dma_chunk()
            A.label("K2_ND")
        elif dma: dma_chunk()
        for i in range(4):
            sa, sb, en = (sides or {}).get(i, ((), (), ()))
            if head and DX and i == 2:
                A(f"""
                s_cmp_eq_u32 s60, 1
                s_cbranch_scc0 K2_N2
                s_waitcnt vmcnt(5)
                s_barrier
                K2_N2:
                """)
            if cfg.get("prio"): A(f"s_setprio {PRIO[i]}")
            tile(i, SA if i % 2 == 0 else SB, SB if i % 2 == 0 else SA, sa, sb, en)
            if head and DX and i == DX - 1:
                A("s_cmp_eq_u32 s60, 0"); A("s_cbranch_scc1 K2_P0X"); A.label("K2_P0R")
        A(f"""
        v_mov_b32 v1, v2
        v_add_u32 v2, 16384, v2
        v_and_b32 v2, {RING-1}, v2
        """)
    if DX:
        A("s_branch K2_LOOP")
        A.label("K2_P0X")
        if DP == "3":
            A("""
            s_waitcnt vmcnt(2)
            v_cmp_eq_u32 vcc, 1, v47
            s_cmp_eq_u64 vcc, -1
            s_cbranch_scc1 K2_P0K
            s_waitcnt vmcnt(1)
            v_mov_b32 v47, v45
            """)
        else:
            A("s_waitcnt vmcnt(1)")
        poll_check(A, 47, 46, 32, "s78", "P1")
        A.label("K2_P0K")
        chunk2()
        dma_chunk()
        A("s_branch K2_P0R")
    A.label("K2_LOOP")
    period(head=True)
    if DX:
        A(f"""
        s_add_u32 s60, s60, 1
        s_cmp_eq_u32 s60, 1
        s_cbranch_scc0 K2_W2
        s_waitcnt vmcnt(4)
        s_branch K2_W4
        K2_W2:
        s_waitcnt vmcnt(2)
        K2_W4:
        s_cmp_lg_u32 s60, s61
        s_barrier
        s_cbranch_scc1 K2_LOOP
        """)
    elif cfg.get("prof") == "2":
        pbar(A, cfg, "s_waitcnt vmcnt(2)")
        A("""
        s_add_u32 s60, s60, 1
        s_cmp_lg_u32 s60, s61
        s_cbranch_scc1 K2_LOOP
        """)
    else:
        A(f"""
        s_add_u32 s60, s60, 1
        s_cmp_lg_u32 s60, s61
        s_waitcnt vmcnt(2)
        s_barrier
        s_cbranch_scc1 K2_LOOP
        """)
    A(f"""
    s_cmp_eq_u32 s60, 1
    s_cbranch_scc1 KD_1
    s_cmp_eq_u32 s60, 3
    s_cbranch_scc1 KD_3
    s_cmp_eq_u32 s60, 4
    s_cbranch_scc1 KD_4
    s_branch KD_7
    KD_1:
    s_mov_b32 s61, 3
    """)
    set_flag(A, "s68")
    A(f"""
    s_branch K2_LOOP
    KD_3:
    v_lshlrev_b32 v46, 2, v0
    s_mov_b32 s61, 4
    """)
    poll_issue(A, 47, 46, 32, "s77")
    A("s_branch K2_LOOP")
    A.label("KD_4")
    vstamp(A, cfg, 7, PR)
    poll_check(A, 47, 46, 32, "s77", "PK")
    KVP = 192; ZP = 224
    A(f"""
    s_cmp_eq_u32 s40, 4
    s_cselect_b32 s84, 1, 0          ; wave 4 also reduces z
    """)
    def kvload(rr):
        def f():
            A(f"buffer_load_dwordx4 v[{KVP+4*rr}:{KVP+4*rr+3}], v3, s[32:35], s75 offen sc1")
            A("s_add_u32 s75, s75, 8192")
        return f
    def zload(rr):
        def f():
            j = A.uid("KZ")
            A("s_cmp_eq_u32 s84, 0"); A(f"s_cbranch_scc1 {j}")
            A(f"buffer_load_dword v{ZP+rr}, v46, s[32:35], s76 offen offset:{256*rr} sc1")
            A(f"buffer_load_dword v{ZP+rr+1}, v46, s[32:35], s76 offen offset:{256*rr+256} sc1")
            A.label(j)
        return f
    period({i: ((kvload(2*i),), (kvload(2*i+1),), (zload(2*i),)) for i in range(4)})
    pbar(A, cfg, "s_waitcnt vmcnt(10)")
    def kvsum():
        A("s_waitcnt vmcnt(2)")
        A(f"""
        s_lshr_b32 s47, s40, 1
        s_lshl_b32 s47, s47, 10
        s_and_b32 s38, s40, 1
        s_lshl_b32 s38, s38, 3
        s_add_u32 s47, s47, s38
        s_add_u32 s47, s47, {KVT_L}
        v_add_u32 v4, s47, v3            ; kvT write address
        """)
        b = KVP
        for rr in range(1, 8):
            A(f"v_pk_add_f32 v[{b}:{b+1}], v[{b}:{b+1}], v[{b+4*rr}:{b+4*rr+1}]")
            A(f"v_pk_add_f32 v[{b+2}:{b+3}], v[{b+2}:{b+3}], v[{b+4*rr+2}:{b+4*rr+3}]")
        A(f"v_cvt_pk_bf16_f32 v{b}, v{b}, v{b+1}")
        A(f"v_cvt_pk_bf16_f32 v{b+1}, v{b+2}, v{b+3}")
        A(f"ds_write_b64 v4, v[{b}:{b+1}]")
        j = A.uid("KZS")
        A("s_cmp_eq_u32 s84, 0"); A(f"s_cbranch_scc1 {j}")
        for rr in range(1, 8):
            A(f"v_add_f32 v{ZP}, v{ZP}, v{ZP+rr}")
        A(f"""
        v_lshlrev_b32 v5, 1, v0
        v_add_u32 v5, {Z_L}, v5          ; z write address (lane = f)
        v_cvt_pk_bf16_f32 v{ZP}, v{ZP}, v{ZP}
        ds_write_b16 v5, v{ZP}
        """)
        A.label(j)
    period({1: ((), (), (kvsum,))})
    pbar(A, cfg, None)
    A(f"""
    s_mov_b32 s60, 6
    s_mov_b32 s61, 7
    {"s_lshr_b32 s47, s40, 2" if XT8 else "s_mov_b32 s47, 0"}
    s_xor_b32 s47, s47, s40
    s_and_b32 s47, s47, {1 if E8 else 5}
    s_cmp_lg_u32 s47, 1
    s_cbranch_scc1 K2_LOOP
    """)
    KVT, ZR, NUM, DEN, OA = 192, 208, 224, 240, 244
    A(f"""
    v_add_u32 v4, {KVT_L}, v3
    v_lshrrev_b32 v5, 5, v0
    v_lshlrev_b32 v5, 3, v5
    v_add_u32 v5, {Z_L}, v5          ; Z + hh*8
    """)
    for s in range(4):
        A(f"ds_read_b128 v[{KVT+4*s}:{KVT+4*s+3}], v4 offset:{s*1024}")
        A(f"ds_read_b64 v[{ZR+4*s}:{ZR+4*s+1}], v5 offset:{32*s}")
        A(f"ds_read_b64 v[{ZR+4*s+2}:{ZR+4*s+3}], v5 offset:{32*s+16}")
    def zmask():
        A("v_bfe_u32 v4, v0, 2, 1")
        A("v_bfe_u32 v5, v0, 4, 1")
        A("v_cmp_eq_u32 vcc, v4, v5")
        A("v_mov_b32 v4, 0")
        A("s_nop 0")
        for k in range(16): A(f"v_cndmask_b32 v{ZR+k}, v4, v{ZR+k}, vcc")
    def amfma(t):
        def f():
            for s in range(4):
                c = "0" if s == 0 else f"v[{NUM}:{NUM+15}]"
                A(f"v_mfma_f32_32x32x16_bf16 v[{NUM}:{NUM+15}], v[{KVT+4*s}:{KVT+4*s+3}], v[{PHQ+16*t+4*s}:{PHQ+16*t+4*s+3}], {c}")
                c = "0" if s == 0 else f"v[{DEN}:{DEN+3}]"
                A(f"v_mfma_f32_16x16x32_bf16 v[{DEN}:{DEN+3}], v[{ZR+4*s}:{ZR+4*s+3}], v[{PHQ+16*t+4*s}:{PHQ+16*t+4*s+3}], {c}")
        return f
    def afin():
        A(f"v_add_f32 v4, {fhex(1e-6)}, v{DEN}")
        A("v_rcp_f32 v4, v4")
        A("s_nop 0")
        for k in range(8):
            A(f"v_pk_mul_f32 v[{NUM+2*k}:{NUM+2*k+1}], v[{NUM+2*k}:{NUM+2*k+1}], v[4:5] op_sel_hi:[1,0]")
        cvt_tile(A, OA, NUM)
        A(f"buffer_store_dwordx4 v[{OA}:{OA+3}], v3, s[32:35], s74 offen sc1")
        A(f"buffer_store_dwordx4 v[{OA+4}:{OA+7}], v3, s[32:35], s74 offen offset:1024 sc1")
        A("s_add_u32 s74, s74, 65536")
    if E8:
        period({0: ((), (), (zmask, amfma(0))), 1: ((), (), (afin, amfma(1))), 2: ((), (), (afin,))})
        pbar(A, cfg, "s_waitcnt vmcnt(6)")
    else:
        period({0: ((), (), (zmask, amfma(0))), 1: ((), (), (afin, amfma(1))), 2: ((), (), (afin, amfma(2))), 3: ((), (), (afin, amfma(3)))})
        A.nop(12)
        afin()
        pbar(A, cfg, "s_waitcnt vmcnt(10)")
    P16 = cfg.get("p16")
    A.label("KD_7")
    A(f"""
    s_mov_b32 s60, 7
    v_and_b32 v45, 31, v0
    v_lshlrev_b32 v45, 2, v45        ; (l&31)*4
    v_lshlrev_b32 v35, 2, v0         ; lane*4
    v_lshrrev_b32 v4, 3, v0
    v_lshlrev_b32 v5, 11, v4         ; row*2048
    v_and_b32 v7, 7, v0
    v_bfe_u32 v6, v0, 4, {2 if P16 else 1}
    v_lshlrev_b32 v6, {1 if P16 else 2}, v6
    v_xor_b32 v7, v7, v6
    v_lshl_add_u32 v5, v7, 4, v5
    s_lshl_b32 s47, s18, 9
    s_lshl_b32 s38, s19, 4
    s_add_u32 s47, s47, s38
    s_lshl_b32 s47, s47, 11
    s_lshl_b32 s38, s17, 7
    s_add_u32 s47, s47, s38          ; + C*128
    v_add_u32 v36, s47, v5           ; piece 0
    v_add_u32 v37, {16384 - 1024}, v36 ; piece 1 (with offset:1024)
    v_lshrrev_b32 v7, 5, v0          ; hh
    v_bfe_u32 v6, v0, 2, 2           ; i>>2
    v_lshl_add_u32 v7, v7, 2, v6
    v_lshlrev_b32 v7, 7, v7
    v_bfe_u32 v6, v0, 4, 1
    v_bfe_u32 v5, v0, 1, 1
    v_lshl_add_u32 v6, v6, 1, v5
    v_bfe_u32 v5, v0, 3, 1
    v_lshlrev_b32 v5, 2, v5
    v_xor_b32 v6, v6, v5
    v_lshl_add_u32 v7, v6, 4, v7
    v_and_b32 v5, 1, v0
    v_lshl_add_u32 v7, v5, 3, v7
    s_lshl_b32 s38, s18, 13
    v_add_u32 v38, s38, v7           ; cb=0
    v_xor_b32 v39, 64, v38           ; cb=1
    s_add_u32 s80, s30, {WSL(0)}
    """)
    if P16:
        A(f"""
        v_lshrrev_b32 v4, 4, v0          ; q4
        v_and_b32 v5, 15, v0             ; i
        v_lshlrev_b32 v39, 4, v5
        v_lshl_add_u32 v39, v4, 9, v39   ; o : q4 * 512 + i * 16
        v_lshrrev_b32 v6, 1, v4
        v_lshlrev_b32 v6, 4, v6          ; 16 fr
        v_and_b32 v7, 1, v4
        v_lshl_add_u32 v6, v7, 2, v6     ; + 4 hh
        v_lshrrev_b32 v5, 2, v5
        v_add_u32 v6, v6, v5             ; k row
        v_lshlrev_b32 v38, 7, v6
        v_bfe_u32 v6, v6, 1, 2           ; (row >> 1) & 3
        v_lshl_add_u32 v38, v6, 5, v38
        v_and_b32 v5, 3, v0
        v_lshl_add_u32 v38, v5, 3, v38
        v_add_u32 v38, s38, v38
        v_and_b32 v45, 15, v0
        v_lshlrev_b32 v45, 2, v45        ; (l&15)*4
        """)
    def wo_ops(m0src):
        a = [m0src, "s_nop 0", "buffer_load_dwordx4 v36, s[20:23], s29 offen lds"]
        b = ["buffer_load_dwordx4 v37, s[20:23], s29 offen offset:1024 lds", f"s_add_u32 s29, s29, {64*2048}"]
        return a, b
    A.label("K2_LOOPB")
    wa, wb = wo_ops("s_mov_b32 m0, s80")
    wb = wb + ["s_add_u32 s80, s80, 16384"]
    ca, cb_ = dma_ops()
    period({0: (tuple(wa), tuple(wb), ()), 1: (tuple(wa), tuple(wb), ()), 2: (tuple(ca), tuple(cb_), ())}, dma=False)
    if cfg.get("prof") == "2":
        pbar(A, cfg, "s_waitcnt vmcnt(6)")
        A("""
        s_add_u32 s60, s60, 1
        s_cmp_eq_u32 s60, 10
        """)
    else:
        A("""
        s_add_u32 s60, s60, 1
        s_cmp_eq_u32 s60, 10
        s_waitcnt vmcnt(6)
        s_barrier
        """)
    A(f"""
    s_cbranch_scc1 KB_10
    s_cmp_eq_u32 s60, 9
    s_cbranch_scc1 KB_9
    s_and_b32 s47, s40, 5
    s_cmp_lg_u32 s47, 1
    s_cbranch_scc1 K2_LOOPB
    """)
    set_flag(A, "s88")
    A("s_branch K2_LOOPB")
    A.label("KB_9")
    poll_issue(A, 47, 35, 32, "s36")
    A("s_branch K2_LOOPB")
    A.label("KB_10")
    vstamp(A, cfg, 8, PR)
    poll_check(A, 47, 35, 32, "s36", "PA")
    G, OMG = 32, 34
    OF = 128
    vm = VM(A, ["W4", "W4", "W5", "W5", "c12", "c12"])
    vm.now("G", f"buffer_load_dword v{G}, v45, s[32:35], s31 offen sc1")
    if P16: vm.now("G", f"buffer_load_dword v35, v45, s[32:35], s31 offen offset:64 sc1")
    OV = 39 if P16 else 3
    ooff = (lambda j: (j >> 1)*2048 + (j & 1)*256) if P16 else (lambda j: j*1024)
    nld = [0]
    AE = int(cfg.get("ae", 0))
    assert AE in (0, 4, 5) and not (AE and P16)
    OFA = (lambda s: OF + 16*(s % 5)) if AE else (lambda s: OF + 16*s)
    ACE, WE, WEA = 224, (208, 216), 116
    def oload():
        k = nld[0]; nld[0] += 1
        s, j = divmod(k, 4)
        r = OFA(s) + 4*j
        def f():
            vm.now(f"o{k}" if AE else "o", f"buffer_load_dwordx4 v[{r}:{r+3}], v{OV}, s[32:35], s28 offen offset:{ooff(j)} sc1")
            if j == 3: A("s_add_u32 s28, s28, 4096")
        return f
    if AE:
        A(f"v_add_u32 v{WEA}, {WSL(0)}, v38")
        A(f"v_add_u32 v{WEA+1}, {WSL(0)}, v39")
        LQM[0] = LQ(["V1", "K0", "K1", "V0"])
    def ae_read(k, cb):
        s, j = divmod(k, 4)
        fs = []
        for sec in range(2):
            r = WE[k & 1] + 4*cb + 2*sec
            fs.append(LQM[0].rd(f"w{k}{cb}", f"ds_read_b64_tr_b16 v[{r}:{r+1}], v{WEA+cb} offset:{s*16384 + (16*j+8*sec)*128}"))
        return tuple(fs)
    def ae_mfma(k, cb):
        s, j = divmod(k, 4)
        def f():
            vm.wait(f"o{k}"); LQM[0].wait(f"w{k}{cb}")
            a = ACE + 16*cb; w = WE[k & 1] + 4*cb; o = OFA(s) + 4*j
            A(f"v_mfma_f32_32x32x16_bf16 v[{a}:{a+15}], v[{w}:{w+3}], v[{o}:{o+3}], " + ("0" if k == 0 else f"v[{a}:{a+15}]"))
        return f
    def lines(tag, ls):
        def f():
            for l in ls:
                if l.startswith("buffer_"): vm.now(tag, l)
                else: A(l)
        return f
    BT = int(cfg.get("btouch", 0))
    def btouch():
        A(f"""
        s_and_b32 s47, s16, 3
        s_lshl_b32 s47, s47, 3
        s_add_u32 s47, s47, s40
        s_lshl_b32 s47, s47, 5           ; first row : (T&3)*256 + wave*32
        v_add_u32 v44, s47, v0
        v_lshlrev_b32 v44, 11, v44
        s_lshl_b32 s47, s17, 7
        v_add_u32 v44, s47, v44
        v_mov_b32 v4, 0x7ffffff0
        v_cmp_gt_u32 vcc, 32, v0
        s_mov_b32 s92, s6
        s_mov_b32 s93, s7
        s_mov_b32 s94, {1024*2048}
        s_mov_b32 s95, 0x00020000
        v_cndmask_b32 v44, v4, v44, vcc
        """)
        vm.now("T", "buffer_load_dword v44, v44, s[92:95], 0 offen")
    for n in range(10, 16):
        sides = {}
        if n <= 12:
            a, b = dma_ops()
            sides[0] = ((lines(f"c{n+3}", a),), (lines(f"c{n+3}", b),), (oload(),))
            sides[1] = ((oload(),), (oload(),), ())
            if AE == 5 and n == 12:
                sides[2] = ((), (), ()); sides[3] = ((), (), ())
                sides[1] = ((oload(),), (oload(),), ())
            else:
                sides[2] = ((oload(),), (oload(),), ())
                sides[3] = ((oload(),), (), ())
        elif n <= 14:
            a, b = wo_ops(f"s_add_u32 m0, s30, {WSL(n - 7)}")
            if AE == 4:
                sides[0] = ((lines("W", a),), (lines("W", b),), (oload(),))
                sides[1] = ((oload(),), (oload(),), ())
                sides[2] = ((oload(),), (), ()) if n == 14 else ((oload(),), (oload(),), ())
                sides[3] = ((), (), ()) if n == 14 else ((oload(),), (), ())
            else:
                sides[0] = ((lines("W", a),), (lines("W", b),), (oload(),))
                sides[1] = ((oload(),), (oload(),), ())
                sides[2] = ((oload(),), (), ())
                sides[3] = ((oload(),), (), ())
        else:
            sides[0] = ((oload(),), (oload(),), ())
            sides[1] = ((oload(),), (oload(),), ())
        if n == BT: sides[3] = (sides[3][0], sides[3][1], tuple(sides[3][2]) + (btouch,))
        if AE:
            assert AE == 4
            for i in range(4):
                sa, sb, en = sides.get(i, ((), (), ()))
                k = 4*(n - (16 - AE)) + i
                if 0 <= k < 4*AE:
                    sa = (ae_mfma(k, 0),) + tuple(sa); sb = (ae_mfma(k, 1),) + tuple(sb)
                if 0 <= k + 1 < 4*AE:
                    sa = tuple(sa) + ae_read(k + 1, 0); sb = tuple(sb) + ae_read(k + 1, 1)
                sides[i] = (sa, sb, en)
        period(sides, dma=False)
        if n <= 13:
            pbar(A, cfg, lambda: vm.wait(f"c{n+2}"))
        elif cfg.get("prof") == "2":
            bstamp(A, cfg, 0); bstamp(A, cfg, 1); bstamp(A, cfg, 2)
        if n == 12: vstamp(A, cfg, 9, PR)
    assert nld[0] == 32
    A(f"""
    s_mov_b32 s60, 16
    s_waitcnt lgkmcnt(0)
    v_mfma_f32_32x32x16_bf16 v[{O}:{O+15}], v[{V1}:{V1+3}], v[{P+4}:{P+7}], v[{O}:{O+15}]
    v_mfma_f32_16x16x32_bf16 v[{L}:{L+3}], v[{SEL}:{SEL+3}], v[{P+4}:{P+7}], v[{L}:{L+3}]
    """)
    vstamp(A, cfg, 10, PR)
    rst(A, cfg, 0)
    A("v_lshlrev_b32 v45, 3, v0")
    A.nop(12)
    A.label("K2_FIN")
    A(f"v_rcp_f32 v4, v{L}")
    A("s_nop 0")
    for k in range(8):
        A(f"v_pk_mul_f32 v[{O+2*k}:{O+2*k+1}], v[{O+2*k}:{O+2*k+1}], v[4:5] op_sel_hi:[1,0]")
    FA = cfg.get("fa") == "1"
    def ob_out():
        for i in range(8):
            A(f"v_cvt_pk_bf16_f32 v{P+i}, v{O+2*i}, v{O+2*i+1}")
        A(f"buffer_store_dwordx4 v[{P}:{P+3}], v3, s[32:35], s73 offen sc1")
        A(f"buffer_store_dwordx4 v[{P+4}:{P+7}], v3, s[32:35], s73 offen offset:1024 sc1")
    if FA: ob_out()
    A("v_mov_b32 v6, 0")
    for k in range(16):
        A(f"v_fma_f32 v6, v{O+k}, 0, v6")
    A(f"""
    v_mov_b32 v7, {fhex(2.0**120)}
    v_cmp_u_f32 vcc, v6, v6
    v_cmp_nlt_f32 s[62:63], v{L}, v7
    s_or_b64 vcc, vcc, s[62:63]
    """)
    if cfg.get("force_fb"):
        A("s_mov_b64 vcc, -1")
    A(f"""
    s_cmp_eq_u32 s60, 16
    s_cselect_b64 vcc, vcc, 0
    s_cbranch_vccnz K2_FB
    """)
    if not FA: ob_out()
    EF = cfg.get("ef")
    if EF:
        A("""
        s_cmp_lt_u32 s40, 4
        s_cbranch_scc0 K3_EF1
        s_waitcnt vmcnt(0)
        """)
        set_flag(A, "s69")
        A("""
        s_branch K3_EF2
        K3_EF1:
        s_setprio 1
        s_waitcnt vmcnt(2)
        K3_EF2:
        """)
    else:
        A("s_waitcnt vmcnt(2)")
    A("s_barrier")
    vstamp(A, cfg, 11, PR)
    rst(A, cfg, 1)
    LQM[0] = None
    WFJ = [16, 24, 48, 56]
    ACCA, ACCB = (ACE if AE else 64), 96
    OFB = (lambda s: OF + 16*(s % 6)) if AE else (lambda s: OF + 16*s)
    P3V = cfg.get("p3v") in ("2", "3")
    OD = int(cfg.get("od", 8))
    P3R = cfg.get("p3v") == "3"
    BSL = lambda b: 32768 + 16384 * b if b < 2 else WSL(b - 2)
    def waddr(s, slot=WSL):
        if slot is None:
            A("v_add_u32 v40, s90, v38")
            A("v_add_u32 v41, s90, v39")
            A("s_add_u32 s90, s90, 16384")
            A("s_and_b32 s90, s90, 0x1ffff")
            return
        A(f"v_add_u32 v40, {slot(s)}, v38")
        if P16:
            A("v_xor_b32 v41, 32, v40"); A("v_xor_b32 v42, 64, v40"); A("v_xor_b32 v43, 0x60, v40")
        else:
            A(f"v_add_u32 v41, {slot(s)}, v39")
    W16F = lambda hd, cg: WFJ[2*hd + (cg >> 1)] + 4*(cg & 1)
    def wread16(hd, cg):
        for sec in range(2):
            r = W16F(hd, cg) + 2*sec
            A(f"ds_read_b64_tr_b16 v[{r}:{r+1}], v{40+cg} offset:{(32*hd+8*sec)*128}")
    def gemm16(acc_, after, owait, slot=WSL, inl={}, stamp=None, fs_tail=None):
        waddr(0, slot)
        A("s_nop 0")
        for hd in range(2):
            for cg in range(4): wread16(hd, cg)
        OX = [int(x) for x in cfg.get("ox", "0:0").split(":")]
        iss = [4 * OD]
        for t in range(32): iss.append(min(32, iss[-1] + (2 if OX[0] <= t < OX[1] else 1)))
        def jbody(s, j, more=0):
            last = s == 7
            hd, b = j >> 1, j & 1
            if owait: A(f"s_waitcnt vmcnt({iss[4*s + j] - (4*s + j) - 1})")
            for cg in range(4):
                if b == 0: A(f"s_waitcnt lgkmcnt({2*(3 - cg) + (0 if (last and hd == 1) else 8) + more})")
                w = W16F(hd, cg); o = OF + 16*s + 4*j; a = acc_ + 4*(2*cg + b)
                c = "0" if (s == 0 and hd == 0) else f"v[{a}:{a+3}]"
                A(f"v_mfma_f32_16x16x32_bf16 v[{a}:{a+3}], v[{w}:{w+3}], v[{o}:{o+3}], {c}")
                if b == 1 and not last: wread16(hd, cg)
            if j == 0 and not last: waddr(s + 1, slot)
            for l in inl.get((s, j), []):
                if callable(l): l()
                else: A(l)
            if owait:
                for n in range(iss[4*s + j], iss[4*s + j + 1]): o_load(n >> 2, n & 3)
        for s in range(8):
            for j in range(4):
                if fs_tail and s == 7 and j == 2:
                    A("s_cmp_eq_u32 s18, 0"); A("s_cbranch_scc1 K3_G0T")
                    A("s_barrier")
                    for q in range(8): A(f"ds_read_b128 v[{OF+4*q}:{OF+4*q+3}], v4 offset:{q*1024}")
                    jbody(7, 2, 8); jbody(7, 3, 8)
                    if stamp is not None: rst(A, cfg, stamp + s)
                    fs_tail()
                    A.label("K3_G0T")
                jbody(s, j)
            if s in after: after[s]()
            if stamp is not None and cfg.get("prof") == "5" and (s in (1, 3, 5, 7) or owait):
                rst(A, cfg, stamp + s)
    def wreads(j):
        for cb in range(2):
            for sec in range(2):
                r = WFJ[j] + 4*cb + 2*sec
                A(f"ds_read_b64_tr_b16 v[{r}:{r+1}], v{40+cb} offset:{(16*j+8*sec)*128}")
    def gemm(acc_, after, owait, slot=WSL, inl={}, stamp=None, s0=0, fs_tail=None):
        if P16: return gemm16(acc_, after, owait, slot, inl, stamp, fs_tail)
        waddr(s0, slot)
        for j in range(4): wreads(j)
        for s in range(s0, 8):
            last = s == 7
            for j in range(4):
                if owait: A(f"s_waitcnt vmcnt({min(4*OD + 4*s + j, 32) - (4*s + j) - 1 + (4 if (AE and 4*s + j < 4*OD) else 0)})")
                for cb in range(2):
                    n = (14 - 2*cb) if not last else (14 - 4*j - 2*cb)
                    A(f"s_waitcnt lgkmcnt({n})")
                    w = WFJ[j] + 4*cb; o = (OFB(s) if owait else OFA(s)) + 4*j; a = acc_ + 16*cb
                    c = "0" if (s == 0 and j == 0) else f"v[{a}:{a+15}]"
                    A(f"v_mfma_f32_32x32x16_bf16 v[{a}:{a+15}], v[{w}:{w+3}], v[{o}:{o+3}], {c}")
                if not last:
                    if j == 0: waddr(s + 1, slot)
                    wreads(j)
                for l in inl.get((s, j), []):
                    if callable(l): l()
                    else: A(l)
                if owait and s + OD < 8: o_load(s + OD, j)
            if s in after: after[s]()
            if stamp is not None and cfg.get("prof") == "5" and (s in (1, 3, 5, 7) or owait):
                rst(A, cfg, stamp + s)
    def refill(s0):
        for s in range(s0, s0 + 4):
            a, b = wo_ops(f"s_add_u32 m0, s30, {WSL(s)}")
            for l in a + b: A(l)
    def a_flag():
        A("s_waitcnt vmcnt(0)")
        set_flag(A, "s69")
    def a_mid():
        A("s_barrier")
        A("""
        s_mov_b32 s20, s6
        s_mov_b32 s21, s7
        s_mov_b32 s29, 0
        """)
        refill(0)
    def a_poll():
        poll_issue(A, 46, 45, 32, "s83", n=2)
    FBPOS = int(cfg.get("fbpos", 2))
    RB0 = 32768 if P3V else 0
    NZ = cfg.get("nz") == "1"
    if NZ:
        assert cfg.get("fs") == "1"
        RB0 = 0
    def out_addr():
        A(f"""
        v_sub_f32 v{OMG}, 1.0, v{G}
        {"v_sub_f32 v46, 1.0, v35" if P16 else ""}
        v_and_b32 v4, {15 if P16 else 31}, v0
        s_lshl_b32 s38, s19, 5
        v_add_u32 v4, s38, v4
        v_mul_u32_u24 v4, {K3_ROW}, v4
        v_lshrrev_b32 v5, {4 if P16 else 5}, v0
        v_lshl_add_u32 v4, v5, 4, v4
        s_mul_i32 s38, s18, {K3_RED}
        {f"s_add_u32 s38, s38, {RB0}" if RB0 else ""}
        v_add_u32 v4, s38, v4            ; write address
        s_lshl_b32 s38, s40, 6
        v_add_u32 v10, s38, v0           ; tid
        v_lshrrev_b32 v5, 3, v10
        v_and_b32 v6, 7, v10             ; chunk
        v_mul_u32_u24 v7, {K3_ROW}, v5
        v_lshl_add_u32 v7, v6, 5, v7     ; read address
        {f"v_add_u32 v7, {RB0}, v7" if RB0 else ""}
        s_lshl_b32 s38, s16, 7
        v_add_u32 v5, s38, v5
        v_lshlrev_b32 v5, 11, v5
        v_lshl_add_u32 v5, v6, 4, v5
        s_lshl_b32 s38, s17, 7
        v_add_u32 v5, s38, v5            ; out offset
        """)
    FS = cfg.get("fs") == "1"
    assert not FS or (P16 and P3V and not AE and not P3R)
    def out_addr_fs():
        A(f"""
        v_sub_f32 v{OMG}, 1.0, v{G}
        v_sub_f32 v46, 1.0, v35
        s_lshl_b32 s38, s19, 13
        s_add_u32 s38, s38, {RB0}
        v_lshl_add_u32 v4, v0, 4, s38
        v_and_b32 v5, 15, v0
        s_lshl_b32 s38, s16, 7
        s_lshl_b32 s47, s19, 5
        s_add_u32 s38, s38, s47
        v_add_u32 v5, s38, v5            ; token
        v_lshlrev_b32 v5, 11, v5
        v_lshrrev_b32 v6, 4, v0
        v_lshl_add_u32 v5, v6, 4, v5
        s_lshl_b32 s38, s17, 7
        v_add_u32 v5, s38, v5            ; out offset
        v_add_u32 v6, {16*2048}, v5      ; tokens 16..31
        """)
    def prof_out():
        if cfg.get("prof"):
            A("s_waitcnt vmcnt(0)")
            vstamp(A, cfg, 14, PR)
            rst(A, cfg, 24)
            A(f"""
            s_mov_b32 s92, s14
            s_mov_b32 s93, s15
            s_mov_b32 s94, {64*MB}
            s_mov_b32 s95, 0x00020000
            s_lshl_b32 s90, s2, 3
            s_add_u32 s90, s90, s40
            s_lshl_b32 s90, s90, {8 if cfg.get("prof") in ("2", "3", "4", "5") else 7}
            s_add_u32 s90, s90, {WS_PROFV}
            v_lshlrev_b32 v1, 2, v0
            s_mov_b64 exec, {-1 if cfg.get("prof") in ("2", "3", "4", "5") else "0xffffffff"}
            buffer_store_dword v{PR}, v1, s[92:95], s90 offen
            """)
    def fma_out():
        for k in range(16):
            om = 46 if (P16 and (k >> 1) & 1) else OMG
            A(f"v_pk_fma_f32 v[{ACCA+2*k}:{ACCA+2*k+1}], v[{ACCB+2*k}:{ACCB+2*k+1}], v[{om}:{om+1}], v[{ACCA+2*k}:{ACCA+2*k+1}] op_sel_hi:[1,0,1]")
    def fs_tail1():
        vstamp(A, cfg, 13, PR)
        A("s_waitcnt lgkmcnt(0)")
        D = OF + 32
        grp = [(p, b) for b in range(2) for p in range(2)]
        if cfg.get("st") == "1":
            ks = lambda b: [k for k in range(16) if ((k >> 1) & 1) == b]
            def add(b):
                for k in ks(b): A(f"v_pk_add_f32 v[{ACCA+2*k}:{ACCA+2*k+1}], v[{ACCA+2*k}:{ACCA+2*k+1}], v[{OF+2*k}:{OF+2*k+1}]")
            def fma(b):
                for k in ks(b): A(f"v_pk_fma_f32 v[{ACCA+2*k}:{ACCA+2*k+1}], v[{ACCB+2*k}:{ACCB+2*k+1}], v[{46 if b else OMG}:{(46 if b else OMG)+1}], v[{ACCA+2*k}:{ACCA+2*k+1}] op_sel_hi:[1,0,1]")
            def cvt(b):
                for g, (p, b_) in enumerate(grp):
                    if b_ != b: continue
                    x = ACCA + 4*(2*(2*p) + b); y = ACCA + 4*(2*(2*p + 1) + b); d = D + 4*g
                    A(f"v_cvt_pk_bf16_f32 v{d}, v{x}, v{x+1}")
                    A(f"v_cvt_pk_bf16_f32 v{d+1}, v{x+2}, v{x+3}")
                    A(f"v_cvt_pk_bf16_f32 v{d+2}, v{y}, v{y+1}")
                    A(f"v_cvt_pk_bf16_f32 v{d+3}, v{y+2}, v{y+3}")
            def swp(b):
                for sw in ("32", "16"):
                    for g, (p, b_) in enumerate(grp):
                        if b_ != b: continue
                        d = D + 4*g
                        A(f"v_permlane{sw}_swap_b32 v{d}, v{d+2}")
                        A(f"v_permlane{sw}_swap_b32 v{d+1}, v{d+3}")
                    if sw == "32": A("s_nop 1")
            def sto(b):
                for g, (p, b_) in enumerate(grp):
                    if b_ != b: continue
                    d = D + 4*g
                    A(f"buffer_store_dwordx4 v[{d}:{d+3}], v{5 + b}, s[24:27], 0 offen offset:{p*64} {cfg.get('ost', 'nt').replace('+', ' ')}")
            assert P16
            add(0); add(1); fma(0); cvt(0); A("s_nop 1"); swp(0); fma(1); sto(0); cvt(1); A("s_nop 1"); swp(1)
            rst(A, cfg, 22); rst(A, cfg, 23)
            sto(1)
            prof_out()
            A("s_endpgm")
            return
        for k in range(16):
            A(f"v_pk_add_f32 v[{ACCA+2*k}:{ACCA+2*k+1}], v[{ACCA+2*k}:{ACCA+2*k+1}], v[{OF+2*k}:{OF+2*k+1}]")
        fma_out()
        rst(A, cfg, 22)
        for g, (p, b) in enumerate(grp):
            x = ACCA + 4*(2*(2*p) + b); y = ACCA + 4*(2*(2*p + 1) + b); d = D + 4*g
            A(f"v_cvt_pk_bf16_f32 v{d}, v{x}, v{x+1}")
            A(f"v_cvt_pk_bf16_f32 v{d+1}, v{x+2}, v{x+3}")
            A(f"v_cvt_pk_bf16_f32 v{d+2}, v{y}, v{y+1}")
            A(f"v_cvt_pk_bf16_f32 v{d+3}, v{y+2}, v{y+3}")
        A("s_nop 1")
        for sw in ("32", "16"):
            for g in range(4):
                d = D + 4*g
                A(f"v_permlane{sw}_swap_b32 v{d}, v{d+2}")
                A(f"v_permlane{sw}_swap_b32 v{d+1}, v{d+3}")
        rst(A, cfg, 23)
        for g, (p, b) in enumerate(grp):
            d = D + 4*g
            A(f"buffer_store_dwordx4 v[{d}:{d+3}], v{5 + b}, s[24:27], 0 offen offset:{p*64} {cfg.get('ost', 'nt').replace('+', ' ')}")
        prof_out()
        A("s_endpgm")
    def scale_a():
        for k in range(16):
            if P16 and (k >> 1) & 1:
                A(f"v_pk_mul_f32 v[{ACCA+2*k}:{ACCA+2*k+1}], v[{ACCA+2*k}:{ACCA+2*k+1}], v[34:35] op_sel:[0,1] op_sel_hi:[1,1]")
            else:
                A(f"v_pk_mul_f32 v[{ACCA+2*k}:{ACCA+2*k+1}], v[{ACCA+2*k}:{ACCA+2*k+1}], v[{G}:{G+1}] op_sel_hi:[1,0]")
    def o_load(s, j):
        if j == 0:
            if s == 0: A(f"s_sub_u32 s28, s28, 32768" if cfg.get("expo") else f"s_add_u32 s28, s28, {4*MB - 32768}")
            if P3R:
                A("s_add_u32 s85, s28, s91")
                A("s_add_u32 s91, s91, 4096")
                A("s_and_b32 s91, s91, 0x7fff")
            elif s: A("s_add_u32 s28, s28, 4096")
        r = OFB(s) + 4*j
        A(f"buffer_load_dwordx4 v[{r}:{r+3}], v{OV}, s[32:35], {'s85' if P3R else 's28'} offen offset:{ooff(j)} sc1")
    def o_loads():
        for s in range(OD):
            for j in range(4): o_load(s, j)
    if P3V:
        A("""
        s_mov_b32 s20, s6
        s_mov_b32 s21, s7
        s_mov_b32 s29, 0
        """)
        inl = {}
        def bslab(b, s, j):
            a_, b_ = wo_ops(f"s_add_u32 m0, s30, {BSL(b)}")
            inl[(s, j)] = a_; inl[(s, j + 1)] = b_
        BS = cfg.get("bs", "0")
        bslab(0, 0, 0); bslab(1, 1, 0)
        if BS == "0":
            bslab(2, 4, 0); bslab(3, 4, 2); bslab(4, 5, 0); bslab(5, 5, 2)
        else:
            bslab(2, 2, 0); bslab(3, 3, 0); bslab(4, 4, 0); bslab(5, 5, 0)
        bslab(6, 6, 0); bslab(7, 6, 2)
        def a_flag2():
            if EF:
                j = A.uid("K3_F")
                A("s_cmp_lt_u32 s40, 4"); A(f"s_cbranch_scc1 {j}")
            A(f"s_waitcnt vmcnt({2 * min(FBPOS + 1, 2)})")
            set_flag(A, "s69")
            if EF:
                A("s_setprio 0")
                A.label(j)
        EP = int(cfg.get("ep", 0))
        def a_bar5():
            if EP:
                A("s_waitcnt vmcnt(7)")
                A("s_barrier")
                poll_check(A, 46, 45, 32, "s83", "PB", n=2)
                for b in (6, 7):
                    a_, b_ = wo_ops(f"s_add_u32 m0, s30, {BSL(b)}")
                    for l in a_ + b_: A(l)
                for s_ in range(EP):
                    for j in range(4): o_load(s_, j)
            else:
                A("s_barrier")
                a_poll()
        if EP:
            assert OD == EP + 2 and not P3R
            del inl[(6, 0)], inl[(6, 1)], inl[(6, 2)], inl[(6, 3)]
            inl[(4, 0)] = inl[(4, 0)] + [a_poll]
            for s_ in (6, 7):
                for j in range(4): inl[(s_, j)] = [(lambda s_=s_, j=j: o_load(EP + s_ - 6, j))]
        aft = {3: lambda: A("s_barrier"), 5: a_bar5}
        if FBPOS == 3: aft[3] = lambda: (a_flag2(), A("s_barrier"))
        else: aft[FBPOS] = a_flag2
        if BS == "1":
            assert FBPOS in (0, 1)
            if FBPOS == 1: aft[1] = lambda: (a_flag2(), A("s_barrier"))
            else: aft[1] = lambda: A("s_barrier")
        if AE:
            assert not EP and not P3R and BS == "0"
            inl.clear()
            n_ = 0
            for b in range(6):
                a_, b_ = wo_ops(f"s_add_u32 m0, s30, {BSL(b)}")
                inl[(AE + b // 4, b % 4)] = a_ + b_
            def a_flag3():
                j = A.uid("K3_F")
                if EF: A("s_cmp_lt_u32 s40, 4"); A(f"s_cbranch_scc1 {j}")
                nb = min(4 * (FBPOS + 1), 6)
                A(f"s_waitcnt vmcnt({2 * nb})")
                set_flag(A, "s69")
                if EF: A("s_setprio 0")
                A.label(j)
            AEP = int(cfg.get("aep", 6))
            assert AEP > AE + FBPOS or AEP == 7
            aft = {AE + FBPOS: a_flag3}
            aft[AEP] = a_poll if AEP != AE + FBPOS else (lambda: (a_flag3(), a_poll()))
            gemm(ACCA, aft, False, WSL, inl, 2, AE)
        else:
            gemm(ACCA, aft, False, WSL, inl, 2)
        vstamp(A, cfg, 12, PR)
        if P3R:
            RM = int(cfg.get("rmask", 6))
            A(f"""
            s_and_b32 s47, s17, {RM}         ; first slab
            s_lshl_b32 s90, s47, 14
            s_lshl_b32 s91, s47, 12
            v_add_u32 v38, 32768, v38
            v_add_u32 v39, 32768, v39
            """)
            if cfg.get("gfirst", "1") == "1":
                A("""
                s_and_b32 s47, s17, 1            ; group that loads first
                s_cmp_eq_u32 s47, s18
                s_cbranch_scc0 K3_NP
                s_setprio 1
                K3_NP:
                """)
        A(f"s_waitcnt vmcnt({4 * OD if EP else 0})")
        rst(A, cfg, 10)
        A("s_barrier")
        rst(A, cfg, 11)
        if not EP:
            poll_check(A, 46, 45, 32, "s83", "PB", n=2)
            rst(A, cfg, 12)
            o_loads()
            if AE:
                for b in (6, 7):
                    a_, b_ = wo_ops(f"s_add_u32 m0, s30, {BSL(b)}")
                    for l in a_ + b_: A(l)
            rst(A, cfg, 13)
        if cfg.get("bp"):
            j = A.uid("K3_BP")
            A(f"s_cmp_eq_u32 s18, {cfg.get('bp')[0]}"); A(f"s_cbranch_scc0 {j}"); A(f"s_setprio {cfg.get('bp')[1]}"); A.label(j)
        if FS: out_addr_fs()
        else: out_addr()
        scale_a()
        srd(A, 24, 8, 4194304)
        def zbar(g):
            def f():
                j = A.uid("K3_Z")
                A(f"s_cmp_eq_u32 s18, {g}"); A(f"s_cbranch_scc0 {j}"); A("s_barrier"); A.label(j)
            return f
        if P3R:
            gemm(ACCB, {}, True, None, {}, 14)
            vstamp(A, cfg, 13, PR)
            A("s_setprio 0")
            A("s_barrier")
            A.nop(12)
        elif AE:
            gemm(ACCB, {4: lambda: A("s_barrier")}, True, BSL, {}, 14)
            vstamp(A, cfg, 13, PR)
            A.nop(12)
        elif FS:
            aftB = {} if NZ else {int(cfg.get("zs", 4)): zbar(1)}
            if cfg.get("bpd"): aftB[int(cfg.get("bpd"))] = lambda: A("s_setprio 0")
            gemm(ACCB, aftB, True, BSL, {}, 14, 0, fs_tail1)
            vstamp(A, cfg, 13, PR)
            if not NZ: A("s_barrier")
            A.nop(12)
            fma_out()
            for q in range(8): A(f"ds_write_b128 v4, v[{ACCA+4*q}:{ACCA+4*q+3}] offset:{q*1024}")
            A("s_waitcnt lgkmcnt(0)")
            rst(A, cfg, 22)
            A("s_barrier")
            rst(A, cfg, 23)
            prof_out()
            A("s_endpgm")
        else:
            gemm(ACCB, {4: zbar(1)}, True, BSL, {}, 14)
            vstamp(A, cfg, 13, PR)
            zbar(0)()
            A.nop(12)
    else:
        gemm(ACCA, {FBPOS: a_flag, 3: a_mid, 5: a_poll}, False)
        A("s_barrier")
        refill(4)
        vstamp(A, cfg, 12, PR)
        A("s_waitcnt vmcnt(8)")
        poll_check(A, 46, 45, 32, "s83", "PB", n=2)
        o_loads()
        A("s_waitcnt vmcnt(31)")
        A("s_barrier")
        gemm(ACCB, {}, True)
        vstamp(A, cfg, 13, PR)
        out_addr()
        scale_a()
        A("s_barrier")
        srd(A, 24, 8, 4194304)
        A.nop(4)
    if not FS:
        for k in range(16):
            om = 46 if (P16 and (k >> 1) & 1) else OMG
            A(f"v_pk_fma_f32 v[{ACCA+2*k}:{ACCA+2*k+1}], v[{ACCB+2*k}:{ACCB+2*k+1}], v[{om}:{om+1}], v[{ACCA+2*k}:{ACCA+2*k+1}] op_sel_hi:[1,0,1]")
        for cb in range(2):
            for q in range(4):
                r = ACCA + 16*cb + 4*q
                if P16: A(f"ds_write_b128 v4, v[{r}:{r+3}] offset:{(q & 1)*16*K3_ROW + (2*cb + (q >> 1))*64}")
                else: A(f"ds_write_b128 v4, v[{r}:{r+3}] offset:{cb*128 + q*32}")
        A("s_waitcnt lgkmcnt(0)")
        rst(A, cfg, 22)
        A("s_barrier")
        rst(A, cfg, 23)
        R = 128
        for it in range(2):
            for g in range(2):
                for hf in range(2):
                    r = R + 16*it + 8*g + 4*hf
                    A(f"ds_read_b128 v[{r}:{r+3}], v7 offset:{it*64*K3_ROW + g*K3_RED + hf*16}")
        for it in range(2):
            A(f"s_waitcnt lgkmcnt({4 - 4*it})")
            r = R + 16*it
            for k in range(4):
                A(f"v_pk_add_f32 v[{r+2*k}:{r+2*k+1}], v[{r+2*k}:{r+2*k+1}], v[{r+8+2*k}:{r+8+2*k+1}]")
            for k in range(4):
                A(f"v_cvt_pk_bf16_f32 v{r+k}, v{r+2*k}, v{r+2*k+1}")
            A(f"buffer_store_dwordx4 v[{r}:{r+3}], v5, s[24:27], 0 offen {cfg.get('ost', 'nt').replace('+', ' ')}")
            if it == 0: A(f"v_add_u32 v5, {64*2048}, v5")
        if cfg.get("prof"):
            A("s_waitcnt vmcnt(0)")
            vstamp(A, cfg, 14, PR)
            rst(A, cfg, 24)
            A(f"""
            s_mov_b32 s92, s14
            s_mov_b32 s93, s15
            s_mov_b32 s94, {64*MB}
            s_mov_b32 s95, 0x00020000
            s_lshl_b32 s90, s2, 3
            s_add_u32 s90, s90, s40
            s_lshl_b32 s90, s90, {8 if cfg.get("prof") in ("2", "3", "4", "5") else 7}
            s_add_u32 s90, s90, {WS_PROFV}
            v_lshlrev_b32 v1, 2, v0
            s_mov_b64 exec, {-1 if cfg.get("prof") in ("2", "3", "4", "5") else "0xffffffff"}
            buffer_store_dword v{PR}, v1, s[92:95], s90 offen
            """)
        A("s_endpgm")
    A.label("K2_FB")
    vstamp(A, cfg, 15, PR)
    A("s_mov_b32 s60, 17")
    A("s_mov_b32 s61, 0")
    for i in range(16): A(f"v_mov_b32 v{O+i}, 0")
    for i in range(4): A(f"v_mov_b32 v{L+i}, 0")
    A(f"v_mov_b32 v44, 0xff800000")
    A.label("K2_FBL")
    A(f"""
    buffer_load_dwordx4 v[{K0}:{K0+3}], v3, s[32:35], s70 offen sc1
    buffer_load_dwordx4 v[{K1}:{K1+3}], v3, s[32:35], s70 offen offset:1024 sc1
    buffer_load_dwordx4 v[{V0}:{V0+3}], v3, s[32:35], s70 offen offset:2048 sc1
    buffer_load_dwordx4 v[{V1}:{V1+3}], v3, s[32:35], s70 offen offset:3072 sc1
    s_add_u32 s70, s70, 4096
    s_waitcnt vmcnt(0)
    v_mfma_f32_32x32x16_bf16 v[{SA}:{SA+15}], v[{K0}:{K0+3}], v[{Q}:{Q+3}], 0
    v_mfma_f32_32x32x16_bf16 v[{SA}:{SA+15}], v[{K1}:{K1+3}], v[{Q+4}:{Q+7}], v[{SA}:{SA+15}]
    """)
    A.nop(12)
    A(f"v_max3_f32 v4, v{SA}, v{SA+1}, v{SA+2}")
    for k in range(3, 15, 2):
        A(f"v_max3_f32 v4, v4, v{SA+k}, v{SA+k+1}")
    A(f"v_max3_f32 v4, v4, v{SA+15}, v44")
    A("v_mov_b32 v5, v4")
    A.nop(2)
    A("v_permlane32_swap_b32 v4, v5")
    A("s_nop 0")
    A("v_max_f32 v4, v4, v5")
    A("v_sub_f32 v5, v44, v4")
    A("v_exp_f32 v5, v5")
    A("v_mov_b32 v44, v4")
    for k in range(16):
        A(f"v_sub_f32 v{SA+k}, v{SA+k}, v4")
    for k in range(16):
        A(f"v_exp_f32 v{SA+k}, v{SA+k}")
    for k in range(16):
        A(f"v_mul_f32 v{O+k}, v{O+k}, v5")
    for k in range(4):
        A(f"v_mul_f32 v{L+k}, v{L+k}, v5")
    for k in range(8):
        A(f"v_cvt_pk_bf16_f32 v{P+k}, v{SA+2*k}, v{SA+2*k+1}")
    A("s_nop 1")
    A(f"""
    v_mfma_f32_32x32x16_bf16 v[{O}:{O+15}], v[{V0}:{V0+3}], v[{P}:{P+3}], v[{O}:{O+15}]
    v_mfma_f32_16x16x32_bf16 v[{L}:{L+3}], v[{SEL}:{SEL+3}], v[{P}:{P+3}], v[{L}:{L+3}]
    v_mfma_f32_32x32x16_bf16 v[{O}:{O+15}], v[{V1}:{V1+3}], v[{P+4}:{P+7}], v[{O}:{O+15}]
    v_mfma_f32_16x16x32_bf16 v[{L}:{L+3}], v[{SEL}:{SEL+3}], v[{P+4}:{P+7}], v[{L}:{L+3}]
    s_add_u32 s61, s61, 1
    s_cmp_lt_u32 s61, 64
    """)
    A.nop(12)
    A("s_cbranch_scc1 K2_FBL")
    A("s_branch K2_FIN")
    A.label("KF_END")
    A("s_endpgm")
    if cfg.get("lf") == "1":
        L_ = A.lines
        i0 = L_.index("K1_LOADER:"); i1 = L_.index("K1_LPOST:")
        blk = L_[i0:i1]
        del L_[i0:i1]
        b = L_.index("    s_cbranch_scc1 K1_LOADER")
        assert L_[b-1].strip() == "s_cmp_ge_u32 s40, 4"
        L_[b-1:b+1] = ["    s_cmp_lt_u32 s40, 4", "    s_cbranch_scc1 K1_CONS"] + blk + ["    s_branch K1_LPOST", "K1_CONS:"]
    WU = cfg.get("wu")
    if WU:
        L_ = A.lines
        def after(pred, nth=0, start=0):
            k = [i for i in range(start, len(L_)) if pred(L_[i].strip())]
            return k[nth] + 1
        def stub(pos, name, nxt, skip=False):
            L_[pos:pos] = ([f"    s_branch {name}S"] if skip else []) + [f"{name}:", f"    s_branch {nxt}"] + ([f"{name}S:"] if skip else [])
        kb10 = L_.index("KB_10:")
        stub(after(lambda l: l == "s_endpgm"), "WU_9", "WU_BACK")
        stub(after(lambda l: l == "s_branch K3_EF2"), "WU_8", "WU_9" if WU == "1" else "WU_BACK")
        stub(after(lambda l: l == "s_barrier", 1, kb10), "WU_7", "WU_BACK", skip=True)
        stub(kb10, "WU_6", "WU_7" if WU == "1" else "WU_BACK")
        stub(after(lambda l: l == "s_branch K1_E2L"), "WU_5", "WU_BACK")
        stub(after(lambda l: l.startswith("s_branch K1_TJ_")), "WU_4", "WU_5" if WU == "1" else "WU_BACK")
        p = after(lambda l: l == "s_barrier", 0, L_.index("K1_NOZ:")) - 1
        d = []
        if WU == "1":
            for w, t in ((0, "WU_4"), (1, "WU_6"), (2, "WU_8")): d += [f"    s_cmp_eq_u32 s40, {w}", f"    s_cbranch_scc1 {t}"]
        else:
            d += ["    s_cmp_eq_u32 s40, 9"] + [f"    s_cbranch_scc1 {t}" for t in ("WU_4", "WU_5", "WU_6", "WU_7", "WU_8", "WU_9")]
        L_[p:p] = d + ["WU_BACK:"]
    return K, KG_LDS
```

```python
from common import *

KNAME = NAME + "_kernel"
K1_XS = 32768
K1_NX = 3
K1_WB = K1_XS * K1_NX
K1_SLOT = 12288
K1_NSLOT = 5
K1_WPHI = K1_WB + K1_SLOT * K1_NSLOT
K1_TBUF = 4352
RING = 65536
QST = 65536
TBUF0 = 81920
RED0 = 98304
ZRED = 114688
KVT_L = 116736
Z_L = 120832
KG_LDS = 163840
def WSL(s): return 65536 + 16384 * s if s < 6 else 16384 * (s - 6)
WS_F1 = WS_FLAG
WS_FK = WS_FLAG + 4096
WS_FA = WS_FLAG + 16384
WS_FB = WS_FLAG + 20480
HB0 = 122880
HB1 = 139264
TBUF1 = 147456
BIAS = 80.0
K3_ROW = 272
K3_RED = 128 * K3_ROW
SPIN_MAX = 1 << 16
WS_PROFV = WS_PROF

def cvt_tile(A, dst, src):
    for i in range(8):
        A(f"v_cvt_pk_bf16_f32 v{dst+i}, v{src+2*i}, v{src+2*i+1}")

def bstamp(A, cfg, kind, reg=33):
    if cfg.get("prof") == "2":
        A("s_memtime s[96:97]")
        A(f"s_add_u32 m0, s100, {16*kind}")
        A("s_waitcnt lgkmcnt(0)")
        A(f"v_writelane_b32 v{reg}, s96, m0")
        if kind == 2: A("s_add_u32 s100, s100, 1")

def pbar(A, cfg, wait):
    bstamp(A, cfg, 0)
    if callable(wait): wait()
    elif wait: A(wait)
    bstamp(A, cfg, 1)
    A("s_barrier")
    bstamp(A, cfg, 2)

def vstamp(A, cfg, i, reg):
    if cfg.get("prof") == "1":
        A("s_memtime s[96:97]")
        A("s_memrealtime s[98:99]")
        A("s_waitcnt lgkmcnt(0)")
        A(f"v_writelane_b32 v{reg}, s96, {2*i}")
        A(f"v_writelane_b32 v{reg}, s98, {2*i+1}")

def rst(A, cfg, lane, reg=33):
    if cfg.get("prof") == "5":
        A("s_memrealtime s[96:97]")
        A("s_waitcnt lgkmcnt(0)")
        A(f"v_writelane_b32 v{reg}, s96, {lane}")

def est(A, cfg, lane, reg):
    if cfg.get("prof") == "6":
        A("s_memtime s[96:97]")
        A("s_waitcnt lgkmcnt(0)")
        A(f"v_writelane_b32 v{reg}, s96, {lane}")

def poll_issue(A, vdst, vaddr, srd, soff, n=1):
    if n == 1: A(f"buffer_load_dword v{vdst}, v{vaddr}, s[{srd}:{srd+3}], {soff} offen sc1")
    else:      A(f"buffer_load_dwordx2 v[{vdst}:{vdst+1}], v{vaddr}, s[{srd}:{srd+3}], {soff} offen sc1")

def poll_check(A, vdst, vaddr, srd, soff, tag, expect=1, n=1):
    ok = A.uid(tag + "_OK"); sp = A.uid(tag + "_SP")
    def test():
        if n == 2: A(f"v_and_b32 v{vdst}, v{vdst}, v{vdst+1}")
        A(f"v_cmp_eq_u32 vcc, {expect}, v{vdst}")
        A("s_cmp_eq_u64 vcc, -1")
        A(f"s_cbranch_scc1 {ok}")
    test()
    A("s_mov_b32 s82, 0")
    A.label(sp)
    A("s_sleep 2")
    poll_issue(A, vdst, vaddr, srd, soff, n)
    A("s_add_u32 s82, s82, 1")
    A("s_waitcnt vmcnt(0)")
    test()
    A(f"s_cmp_lt_u32 s82, {SPIN_MAX}")
    A(f"s_cbranch_scc1 {sp}")
    A.label(ok)

def set_flag(A, soff):
    A(f"""
    s_mov_b64 exec, 1
    v_mov_b32 v4, 1
    v_mov_b32 v5, 0
    buffer_store_dword v4, v5, s[32:35], {soff} offen sc1
    s_mov_b64 exec, -1
    """)

class VM:
    def __init__(s, A, init=()): s.A = A; s.q = list(init)
    def op(s, tag, text):
        def f(): s.A(text); s.q.append(tag)
        return f
    def now(s, tag, text): s.op(tag, text)()
    def wait(s, *tags):
        idx = max([k for k, t in enumerate(s.q) if t in tags], default=-1)
        if idx < 0: return
        s.A(f"s_waitcnt vmcnt({len(s.q) - 1 - idx})")
        s.q = s.q[idx+1:]

def setup_p2(A):
    A(f"""
    s_lshl_b32 s70, s42, 18
    s_add_u32 s70, s70, {WS_KVB}
    s_lshl_b32 s47, s41, 1
    s_add_u32 s47, s47, 3
    s_and_b32 s47, s47, 15           ; chunk 3 of the rotated order
    s_lshl_b32 s47, s47, 14
    s_lshl_b32 s38, s40, 11
    s_add_u32 s71, s47, s38          ; offset within the head of this wave's part of the next chunk
    s_add_u32 s72, s38, {3*16384}    ; LDS offset of the same
    s_lshl_b32 s47, s41, 3
    s_add_u32 s47, s47, s40
    s_lshl_b32 s47, s47, 5
    s_add_u32 s47, s47, s42
    s_lshl_b32 s73, s47, 11
    s_add_u32 s73, s73, {WS_OB}      ; oB store offset
    s_lshr_b32 s39, s40, 1
    s_and_b32 s39, s39, 1            ; th
    s_lshl_b32 s47, s41, 3
    s_lshl_b32 s38, s39, 2
    s_add_u32 s47, s47, s38          ; r*8 + th*4
    s_lshl_b32 s47, s47, 5
    s_add_u32 s47, s47, s42
    s_lshl_b32 s74, s47, 11
    s_add_u32 s74, s74, {WS_OA}      ; oA store offset (waves 1, 3)
    s_lshl_b32 s75, s42, 16
    s_lshl_b32 s47, s40, 10
    s_add_u32 s75, s75, s47
    s_add_u32 s75, s75, {WS_KVP}
    s_lshl_b32 s47, s41, 13
    s_add_u32 s79, s75, s47          ; kv partial store offset
    s_lshl_b32 s76, s42, 11
    s_add_u32 s76, s76, {WS_ZP}
    s_lshl_b32 s47, s41, 8
    s_add_u32 s89, s76, s47          ; z partial store offset
    s_lshl_b32 s77, s42, 8
    s_add_u32 s77, s77, {WS_FK}
    s_lshl_b32 s47, s41, 5
    s_add_u32 s68, s77, s47
    s_lshl_b32 s47, s40, 2
    s_add_u32 s68, s68, s47
    s_lshl_b32 s78, s42, 6
    s_add_u32 s78, s78, {WS_F1}      ; F1 line
    s_lshl_b32 s47, s41, 3
    s_add_u32 s67, s78, s47
    s_lshl_b32 s38, s39, 2
    s_add_u32 s67, s67, s38
    s_lshl_b32 s88, s41, 8
    s_lshl_b32 s47, s42, 3
    s_add_u32 s88, s88, s47
    s_add_u32 s88, s88, s38
    s_add_u32 s88, s88, {WS_FA}
    s_lshl_b32 s47, s41, 1
    s_lshr_b32 s38, s40, 2
    s_add_u32 s47, s47, s38
    s_lshl_b32 s69, s47, 9
    s_lshl_b32 s47, s42, 4
    s_add_u32 s69, s69, s47
    s_and_b32 s47, s40, 3
    s_lshl_b32 s47, s47, 2
    s_add_u32 s69, s69, s47
    s_add_u32 s69, s69, {WS_FB}
    """)

def setup_p3(A):
    A(f"""
    s_load_dwordx2 s[4:5], s[0:1], 24
    s_load_dwordx2 s[6:7], s[0:1], 48
    s_load_dwordx2 s[8:9], s[0:1], 64
    s_lshr_b32 s16, s45, 1
    s_lshl_b32 s16, s16, 2
    s_lshr_b32 s47, s46, 3
    s_add_u32 s16, s16, s47          ; T = 4*(e>>1) + (i>>3)
    s_and_b32 s17, s45, 1
    s_lshl_b32 s17, s17, 3
    s_and_b32 s47, s46, 7
    s_add_u32 s17, s17, s47          ; C = 8*(e&1) + (i&7)
    s_lshr_b32 s18, s40, 2           ; grp
    s_and_b32 s19, s40, 3            ; tq
    s_lshl_b32 s47, s16, 2
    s_add_u32 s47, s47, s19          ; tb3
    s_lshl_b32 s28, s47, 16
    s_lshl_b32 s38, s18, 15
    s_add_u32 s28, s28, s38
    s_add_u32 s28, s28, {WS_OA}      ; o stream offset
    s_lshl_b32 s31, s47, 7
    s_add_u32 s31, s31, {WS_G}       ; g offset
    s_lshr_b32 s47, s16, 1
    s_lshl_b32 s36, s47, 8
    s_add_u32 s36, s36, {WS_FA}
    s_lshl_b32 s83, s16, 9
    s_add_u32 s83, s83, {WS_FB}
    s_lshl_b32 s30, s18, 13
    s_lshl_b32 s38, s19, 11
    s_add_u32 s30, s30, s38
    s_mov_b32 s29, 0                 ; wo soffset
    s_waitcnt lgkmcnt(0)
    s_mov_b32 s20, s4
    s_mov_b32 s21, s5
    s_mov_b32 s22, {1024*2048}
    s_mov_b32 s23, 0x00020000
    """)

def gen_kg(A, cfg):
    K = KNAME
    F1POS = int(cfg.get("f1pos", 2))
    ROT = int(cfg.get("rot", 12))
    RSH = int(cfg.get("rsh", 0))
    ROT2 = int(cfg.get("rot2", 0))
    PV = 255
    kernel_begin(A, K)
    A(f"""
    s_cmp_ge_u32 s2, 256
    s_cbranch_scc1 KF_END
    s_load_dwordx2 s[4:5], s[0:1], 0
    s_load_dwordx2 s[6:7], s[0:1], 8
    s_load_dwordx2 s[8:9], s[0:1], 40
    s_load_dwordx2 s[10:11], s[0:1], 16
    s_load_dwordx2 s[12:13], s[0:1], 56
    s_load_dwordx2 s[14:15], s[0:1], 80
    s_load_dwordx2 s[86:87], s[0:1], 72
    v_lshrrev_b32 v1, 6, v0
    v_and_b32 v0, 63, v0
    v_readfirstlane_b32 s40, v1
    s_and_b32 s45, s2, 7
    s_lshr_b32 s46, s2, 3
    """)
    if cfg.get("prof"): A(f"v_mov_b32 v{PV}, 0")
    vstamp(A, cfg, 0, PV)
    if cfg.get("prof") == "4":
        A("s_memrealtime s[96:97]")
        A("s_waitcnt lgkmcnt(0)")
        A(f"v_writelane_b32 v{PV}, s96, 40")
    ES = cfg.get("es") == "1"
    assert not ES or cfg.get("hmap", "f") == "f"
    if cfg.get("hmap", "f") == "f":
        A("""
        s_and_b32 s41, s45, 1
        s_lshl_b32 s41, s41, 2
        s_lshr_b32 s47, s46, 3
        s_add_u32 s41, s41, s47          ; r = 4(e&1) + (i>>3)
        s_lshr_b32 s42, s45, 1
        s_lshl_b32 s42, s42, 3
        s_and_b32 s47, s46, 7
        s_add_u32 s42, s42, s47          ; h = 8(e>>1) + (i&7)
        """)
        if not ES: A("s_waitcnt lgkmcnt(0)")
    elif cfg.get("hmap") == "h":
        A("""
        s_lshr_b32 s41, s45, 1
        s_lshl_b32 s41, s41, 1
        s_lshr_b32 s47, s46, 4
        s_add_u32 s41, s41, s47          ; r = 2(e>>1) + (i>>4)
        s_and_b32 s42, s45, 1
        s_lshl_b32 s42, s42, 4
        s_and_b32 s47, s46, 15
        s_add_u32 s42, s42, s47          ; h = 16(e&1) + (i&15)
        s_waitcnt lgkmcnt(0)
        """)
    else:
        A("""
        s_and_b32 s41, s46, 7            ; r
        s_lshl_b32 s42, s45, 2
        s_lshr_b32 s47, s46, 3
        s_add_u32 s42, s42, s47          ; h = 4e + (i>>3)
        s_waitcnt lgkmcnt(0)
        """)
    def rstamp(lane):
        if cfg.get("prof") == "4":
            A("s_memrealtime s[96:97]")
            A("s_waitcnt lgkmcnt(0)")
            A(f"v_writelane_b32 v{PV}, s96, {lane}")
    if not ES:
        rstamp(41)
        srd(A, 32, 14, WS_USED)
    A("""
    s_cmp_ge_u32 s40, 4
    s_cbranch_scc1 K1_LOADER
    """)
    if ES:
        A("s_waitcnt lgkmcnt(0)")
        rstamp(41)
        srd(A, 32, 14, WS_USED)
    PF3 = cfg.get("pf3")
    PF4 = cfg.get("pf4")
    L2D = int(cfg.get("l2d", 2)) if not (PF3 or PF4) else 0
    TL = int(cfg.get("tl", 4))
    TC = int(cfg.get("tc", 8))
    def touch_addr(w, dst, t0, t1, t2, shift, sa):
        OFFL = int(cfg.get("offl", 0))
        A(f"""
        s_and_b32 s47, s42, 1
        s_lshl_b32 s47, s47, 2
        s_and_b32 s38, s41, 3
        s_add_u32 s47, s47, s38          ; share of the pair's weight lines
        s_lshl_b32 s47, s47, 2           ; first row
        v_bfe_u32 v{t0}, v0, 2, 1
        v_lshlrev_b32 v{t0}, 5, v{t0}    ; 32 * block
        v_and_b32 v{t2}, 3, v0
        v_add3_u32 v{dst}, v{t2}, v{t0}, s47
        v_mul_u32_u24 v{dst}, 6144, v{dst}
        v_lshrrev_b32 v{t1}, 3, v0       ; segment
        v_lshl_add_u32 v{dst}, v{t1}, 11, v{dst}
        s_lshr_b32 s47, s42, 1
        s_lshl_b32 s47, s47, 7
        v_add_u32 v{dst}, s47, v{dst}
        s_and_b32 {sa}, s42, 7
        """)
        if OFFL:
            A(f"""
            s_lshl_b32 s47, {sa}, 2
            s_add_u32 s47, s47, s38
            s_lshl_b32 s47, s47, 2
            v_add_u32 v{t2}, s47, v{t2}      ; line of the last pair : 0..95
            v_lshrrev_b32 v{t1}, 5, v{t2}
            v_and_b32 v{t2}, 31, v{t2}
            v_add_u32 v{t2}, v{t2}, v{t0}
            v_mul_u32_u24 v{t2}, 6144, v{t2}
            v_lshl_add_u32 v{t2}, v{t1}, 11, v{t2}
            s_lshr_b32 s47, s42, 1
            s_or_b32 s47, s47, 3
            s_lshl_b32 s47, s47, 7
            v_add_u32 v{t2}, s47, v{t2}
            v_cmp_lt_u32 vcc, 23, v0
            s_nop 1
            v_cndmask_b32 v{dst}, v{dst}, v{t2}, vcc
            s_cmp_lt_u32 {sa}, 6
            s_cselect_b32 s63, 32, 0         ; live lanes of the weight waves
            """)
            if OFFL == 1:
                A(f"""
                s_lshl_b32 s47, {sa}, 4           ; first x row : 16 * head
                s_mul_i32 s38, {sa}, 80
                s_sub_u32 s38, s38, {6*80 - 96}
                s_cmp_lt_u32 {sa}, 6
                s_cselect_b32 s47, s47, s38
                s_cselect_b32 {sa}, 16, 40        ; live lanes of wave 2
                s_cselect_b32 s38, 0, 40         ; live lanes of wave 3
                s_cmp_eq_u32 {w}, 3
                s_cselect_b32 {sa}, s38, {sa}
                s_cselect_b32 s38, 40, 0
                s_add_u32 s47, s47, s38
                """)
            elif OFFL == 2:
                A(f"""
                s_mul_i32 s47, {sa}, 43
                s_cmp_lt_u32 {sa}, 5
                s_cselect_b32 s38, 43, 41
                s_cmp_lt_u32 {sa}, 6
                s_cselect_b32 {sa}, s38, 0
                s_cmp_eq_u32 {w}, 3
                s_cselect_b32 {sa}, 0, {sa}
                """)
            else:
                A(f"""
                s_lshl_b32 s47, {sa}, 5
                s_cmp_eq_u32 {w}, 3
                s_cselect_b32 {sa}, 0, 32
                """)
        else:
            A(f"""
            s_mov_b32 s63, 24
            s_lshl_b32 s47, {sa}, 5
            s_cmp_eq_u32 {w}, 3
            s_cselect_b32 {sa}, 0, 32
            """)
        A(f"""
        s_lshl_b32 s38, s41, 8
        s_add_u32 s47, s47, s38
        v_add_u32 v{t1}, s47, v0
        v_lshlrev_b32 v{t1}, 11, v{t1}   ; x row
        v_bfe_u32 v{t0}, v0, 1, 1
        s_and_b32 s38, s45, 1
        v_xor_b32 v{t0}, s38, v{t0}      ; 0 : ours
        v_and_b32 v{t2}, 3, v0
        s_lshr_b32 s38, s45, 1
        v_xor_b32 v{t2}, s38, v{t2}
        s_cmp_ge_u32 {w}, 2
        s_cselect_b64 vcc, -1, 0
        s_cselect_b32 s47, {sa}, s63      ; live lanes
        s_mov_b32 s38, {(TC - TL) * 32 * 6144}
        s_cselect_b32 s38, {(TC - TL) * 64}, s38
        v_cndmask_b32 v{dst}, v{dst}, v{t1}, vcc
        v_cndmask_b32 v{t0}, v{t0}, v{t2}, vcc
        v_cmp_eq_u32 vcc, 0, v{t0}
        """)
        if shift:
            A(f"""
            v_mov_b32 v{t1}, s38
            s_nop 0
            v_cndmask_b32 v{t1}, 0, v{t1}, vcc
            v_add_u32 v{dst}, v{dst}, v{t1}
            v_cmp_gt_u32 vcc, s47, v0
            v_mov_b32 v{t1}, 0x7ffffff0
            s_nop 0
            v_cndmask_b32 v{dst}, v{t1}, v{dst}, vcc
            """)
        else:
            A(f"""
            v_cmp_gt_u32 s[62:63], s47, v0
            v_mov_b32 v{t1}, 0x7ffffff0
            s_and_b64 vcc, vcc, s[62:63]
            v_cndmask_b32 v{dst+2}, v{t1}, v{dst}, vcc
            v_cndmask_b32 v{dst}, v{t1}, v{dst}, s[62:63]
            """)
        A(f"""
        s_cmp_eq_u32 {w}, 0
        s_cselect_b32 s92, s6, s8
        s_cselect_b32 s93, s7, s9
        s_cmp_ge_u32 {w}, 2
        s_cselect_b32 s92, s4, s92
        s_cselect_b32 s93, s5, s93
        s_mov_b32 s94, {1024*6144}
        s_cselect_b32 s94, {2048*2048}, s94
        s_mov_b32 s95, 0x00020000
        """)
    rng = lambda t: range(*map(int, t.split(":"))) if t else range(0)
    PFA_ = rng(cfg.get("pfa", f"0:{4+L2D}")); PFB_ = rng(cfg.get("pfb", ""))
    PFA, PFD = 252, 253
    def l2pf(step=None):
        if step is None:
            A("s_and_b32 s55, s59, 31")
        else:
            A(f"s_add_u32 s55, s63, {step}")
            A("s_and_b32 s55, s55, 31")
        A(f"s_mul_i32 s55, s55, {32*6144}")
        A(f"buffer_load_dword v{PFD}, v{PFA}, s[92:95], s55 offen")
        if step is None: A("s_add_u32 s59, s59, 1")
    PF2 = cfg.get("pf2")
    def touch():
        return [f"buffer_load_dword v{PFD}, v{PFA}, s[92:95], s55 offen", "s_add_u32 s55, s55, s59", "s_cmp_eq_u32 s55, s56",
                "s_cselect_b32 s55, 0, s55", "s_xor_b32 s59, s59, s57"]
    if PF2:
        XW = int(cfg.get("pfx", 1))
        HM = cfg.get("hmap", "f") == "h"
        RB = 1 if HM else 2
        HB = 4 if HM else 3
        R20 = 0 if cfg.get("r2") == "early0" else 4
        A(f"""
        s_and_b32 s47, s42, 1
        s_lshl_b32 s47, s47, {RB}
        s_and_b32 s38, s41, {(1 << RB) - 1}
        s_add_u32 s47, s47, s38          ; share of the weight lines
        s_lshr_b32 s38, s42, 1
        s_lshl_b32 s47, s47, {4 - RB}    ; first row of the share
        s_lshl_b32 s38, s38, 7
        v_and_b32 v4, {(1 << (4 - RB)) - 1}, v0
        v_add_u32 v4, s47, v4
        v_mul_u32_u24 v4, 6144, v4
        v_lshrrev_b32 v5, {4 - RB}, v0
        v_lshl_add_u32 v4, v5, 11, v4    ; + segment * 2048
        v_add_u32 v4, s38, v4
        s_lshl_b32 s47, s41, 8
        s_and_b32 s38, s42, {(1 << HB) - 1}
        s_lshl_b32 s38, s38, {8 - HB}
        s_add_u32 s47, s47, s38
        v_add_u32 v6, s47, v0
        v_lshlrev_b32 v6, 11, v6
        s_cmp_eq_u32 s40, 0
        s_cselect_b64 vcc, -1, 0
        s_cselect_b32 s38, {1 << (7 - HB)}, {3 << (4 - RB)}
        v_mov_b32 v5, 0x7ffffff0
        v_cndmask_b32 v4, v4, v6, vcc
        v_cmp_gt_u32 vcc, s38, v0
        s_cmp_eq_u32 s40, 2
        s_cselect_b32 s92, s6, s8
        s_cselect_b32 s93, s7, s9
        s_cmp_ge_u32 s40, 2
        s_cselect_b32 s62, {1024*6144}, 0
        v_cndmask_b32 v{PFA}, v5, v4, vcc
        s_lshr_b32 s63, s45, {RSH}
        s_mul_i32 s63, s63, {ROT}
        s_and_b32 s47, s45, 1
        s_mul_i32 s47, s47, {ROT2}
        s_add_u32 s63, s63, s47
        s_add_u32 s63, s63, {R20}        ; first block of this round
        s_and_b32 s55, s63, 31
        s_mul_i32 s55, s55, {32*6144}
        s_mov_b32 s59, {32*6144}
        s_mov_b32 s57, 0
        s_mov_b32 s56, {1024*6144}
        s_cmp_lg_u32 s40, 0
        s_cbranch_scc1 K1_PFW
        s_mov_b32 s92, s4
        s_mov_b32 s93, s5
        s_mov_b32 s62, {2048*2048 if XW else 0}
        s_lshr_b32 s55, s63, 1
        s_and_b32 s55, s55, 15
        s_lshl_b32 s55, s55, 7
        s_mov_b32 s59, {1 << (18 - HB)}
        s_mov_b32 s57, {(1 << (18 - HB)) ^ ((128 - (1 << (18 - HB))) & 0xffffffff)}
        s_mov_b32 s56, 2048
        K1_PFW:
        s_mov_b32 s94, s62
        s_mov_b32 s95, 0x00020000
        """)
        if cfg.get("r2") == "early0":
            for t in range(int(cfg.get("e0n", 4))):
                for l in touch(): A(l)
        if cfg.get("r2") == "early":
            for t in range(L2D):
                for l in touch(): A(l)
    elif L2D:
        A(f"""
        s_and_b32 s47, s42, 1
        s_lshl_b32 s47, s47, 2
        s_and_b32 s38, s41, 3
        s_add_u32 s47, s47, s38
        s_lshr_b32 s38, s42, 1
        
        s_lshl_b32 s47, s47, 2           ; first of 4 rows
        s_lshl_b32 s38, s38, 7
        v_and_b32 v4, 3, v0
        v_add_u32 v4, s47, v4
        v_mul_u32_u24 v4, 6144, v4
        v_lshrrev_b32 v5, 2, v0
        v_lshl_add_u32 v4, v5, 11, v4    ; + segment * 2048
        v_add_u32 v4, s38, v4
        v_mov_b32 v5, 0x7ffffff0
        v_cmp_gt_u32 vcc, 12, v0
        s_cmp_eq_u32 s40, 2
        s_cselect_b32 s92, s6, s8
        s_cselect_b32 s93, s7, s9
        s_cmp_ge_u32 s40, 2
        s_cselect_b32 s62, {1024*6144}, 0
        s_mov_b32 s94, s62
        s_mov_b32 s95, 0x00020000
        v_cndmask_b32 v{PFA}, v5, v4, vcc
        s_lshr_b32 s63, s45, {RSH}
        s_mul_i32 s63, s63, {ROT}
        s_add_u32 s59, s63, {4 + L2D}
        """)
        for t in PFA_: l2pf(t)
    if PF4:
        assert ROT == 0 and ROT2 == 0
        touch_addr("s40", PFA, 4, 5, 6, False, "s62")
        A(f"""
        s_cmp_ge_u32 s40, 2
        s_mov_b32 s59, {64*6144}
        s_cselect_b32 s59, 128, s59
        s_mov_b32 s55, 0
        """)
        for t in range(int(cfg.get("r0", 0))):
            A(f"buffer_load_dword v{PFD}, v{PFA}, s[92:95], s55 offen")
            A("s_add_u32 s55, s55, s59")
        A(f"""
        s_cmp_ge_u32 s40, 2
        s_mov_b32 s55, {TL*32*6144}
        s_cselect_b32 s55, {TL*64}, s55
        """)
    rstamp(42)
    setup_p2(A)
    rstamp(43)
    A(f"""
    s_cmp_lg_u32 s40, 0
    s_cbranch_scc1 K1_NOZ
    v_lshlrev_b32 v4, 2, v0
    v_lshrrev_b32 v6, 2, v0
    v_lshlrev_b32 v6, 9, v6
    v_and_b32 v7, 3, v0
    v_lshl_add_u32 v6, v7, 2, v6
    v_mov_b32 v5, 0
    s_mov_b64 exec, 3
    buffer_store_dword v5, v4, s[32:35], s67 offen sc1
    buffer_store_dword v5, v4, s[32:35], s88 offen sc1
    s_mov_b64 exec, 0xff
    buffer_store_dword v5, v4, s[32:35], s68 offen sc1
    buffer_store_dword v5, v6, s[32:35], s69 offen sc1
    s_mov_b32 s36, s86
    s_mov_b32 s37, s87
    s_mov_b32 s38, 256
    s_mov_b32 s39, 0x00020000
    """)
    LATE = cfg.get("late")
    if not LATE:
        A("""
        s_waitcnt vmcnt(0)
        s_mov_b64 exec, 1
        v_mov_b32 v6, 1
        buffer_atomic_add v6, v5, s[36:39], 0 offen
        s_mov_b64 exec, -1
        """)
    else:
        A("s_mov_b64 exec, -1")
    A("""
    K1_NOZ:
    """)
    rstamp(44)
    setup_p3(A)
    rstamp(45)
    TW = cfg.get("tw")
    if TW:
        assert PF4
        A(f"""
        s_cmp_eq_u32 s40, 1
        s_cbranch_scc0 K1_TW2
        v_lshlrev_b32 v4, 12, v0
        s_lshl_b32 s47, s41, 15
        s_add_u32 s47, s47, s70
        s_mov_b64 exec, 0xff
        buffer_load_dword v{PFD}, v4, s[32:35], s47 offen
        s_mov_b64 exec, 1
        buffer_load_dword v{PFD}, v4, s[32:35], s79 offen
        buffer_load_dword v{PFD}, v4, s[32:35], s89 offen
        s_mov_b64 exec, -1
        K1_TW2:
        s_cmp_eq_u32 s40, 2
        s_cbranch_scc0 K1_TW3
        v_lshlrev_b32 v4, 16, v0
        s_sub_u32 s47, s73, {2*65536}
        s_mov_b64 exec, 0xff
        buffer_load_dword v{PFD}, v4, s[32:35], s47 offen
        s_sub_u32 s47, s47, {WS_OB - WS_OA}
        buffer_load_dword v{PFD}, v4, s[32:35], s47 offen
        s_mov_b64 exec, -1
        K1_TW3:
        """)
        if TW == "1":
            A(f"""
            s_cmp_eq_u32 s40, 3
            s_cbranch_scc0 K1_TW4
            s_mov_b32 s96, s8
            s_mov_b32 s97, s9
            s_mov_b32 s98, 4194304
            s_mov_b32 s99, 0x00020000
            v_lshlrev_b32 v4, 12, v0
            s_lshl_b32 s47, s16, 18
            s_lshl_b32 s38, s17, 7
            s_add_u32 s47, s47, s38
            buffer_load_dword v{PFD}, v4, s[96:99], s47 offen
            K1_TW4:
            """)
    XA, WA = 4, 20
    XB, WB = 32, 48
    ACC = 60
    acc = lambda sg, tt: ACC + (sg * 4 + tt) * 16
    A(f"""
    s_lshr_b32 s50, s40, 1           ; th
    s_and_b32 s51, s40, 1            ; type
    v_and_b32 v4, 31, v0
    v_lshrrev_b32 v5, 5, v0          ; hh
    v_bfe_u32 v6, v0, 2, 2           ; f = (l>>2)&3
    v_bfe_u32 v7, v0, 1, 3           ; (row>>1)&7
    v_xor_b32 v7, v5, v7
    v_lshlrev_b32 v7, 4, v7
    v_lshl_add_u32 v1, v4, 7, v7
    s_lshl_b32 s47, s50, 14
    v_add_u32 v1, s47, v1            ; vxa0
    v_xor_b32 v2, 32, v1             ; vxa1
    v_lshl_add_u32 v7, v5, 3, v6
    v_lshlrev_b32 v7, 6, v7          ; *64
    v_bfe_u32 v8, v0, 4, 1           ; g&1
    v_lshl_add_u32 v7, v8, 5, v7
    v_and_b32 v9, 3, v0
    v_lshl_add_u32 v7, v9, 3, v7
    s_lshl_b32 s47, s51, 11
    s_add_u32 s47, s47, {K1_WB}
    v_add_u32 v3, s47, v7            ; vwa
    """)
    M16 = cfg.get("m16")
    if M16:
        assert cfg.get("e8") and cfg.get("spread")
        A(f"""
        v_and_b32 v4, 15, v0             ; i
        v_lshrrev_b32 v5, 4, v0          ; q4
        v_lshrrev_b32 v6, 1, v4
        v_xor_b32 v6, v5, v6
        v_lshlrev_b32 v6, 4, v6
        v_lshl_add_u32 v1, v4, 7, v6
        s_lshl_b32 s38, s50, 14
        v_add_u32 v1, s38, v1
        v_lshrrev_b32 v6, 2, v4
        v_lshl_add_u32 v6, v5, 3, v6     ; k row 8 q4 + (i >> 2)
        v_lshlrev_b32 v6, 6, v6
        v_and_b32 v7, 1, v5
        v_lshl_add_u32 v6, v7, 5, v6
        v_and_b32 v7, 3, v0
        v_lshl_add_u32 v6, v7, 3, v6
        v_add_u32 v3, s47, v6            ; W columns 0..15
        v_xor_b32 v2, 32, v3             ; W columns 16..31
        """)
    A(f"""
    s_mov_b32 s48, {1 if cfg.get("spread") else 0}
    s_mov_b32 s49, {K1_SLOT}
    s_mov_b32 s65, 0
    s_mov_b32 s52, {K1_SLOT}
    s_mov_b32 s53, {-(K1_NSLOT-1)*K1_SLOT & 0xffffffff}
    s_mov_b32 s54, 32
    s_mov_b32 s64, 0                 ; x slot
    s_mov_b32 s66, {-(K1_NX-1)*K1_XS & 0xffffffff}
    """)
    for i in range(192):
        A(f"v_mov_b32 v{ACC+i}, 0")
    if PF2 and cfg.get("r2") != "early":
        for t in range(L2D + (4 - int(cfg.get("e0n", 4)) if cfg.get("r2") == "early0" else 0)):
            for l in touch(): A(l)
    rstamp(46)
    A("s_barrier")
    vstamp(A, cfg, 1, PV)
    if cfg.get("prof") == "4":
        A("s_memrealtime s[96:97]")
        A("s_waitcnt lgkmcnt(0)")
        A(f"v_writelane_b32 v{PV}, s96, 0")
    if cfg.get("prof") == "3":
        A("s_memtime s[96:97]")
        A("s_mov_b32 s100, 0")
        A("s_waitcnt lgkmcnt(0)")
        A("s_mov_b32 s101, s96")
    if L2D:
        for t in PFB_: l2pf(t)
    def reads(X, W, s):
        r = []
        xa = 1 if s == 0 else 2
        for tt in range(4):
            r.append(f"ds_read_b128 v[{X+4*tt}:{X+4*tt+3}], v{xa} offset:{tt*4096}")
        for sg in range(3):
            for sec in range(2):
                r.append(f"ds_read_b64_tr_b16 v[{W+4*sg+2*sec}:{W+4*sg+2*sec+1}], v3 offset:{sg*4096 + s*1024 + sec*256}")
        return [r[4], r[5], r[0], r[1], r[2], r[3], r[6], r[7], r[8], r[9]]
    def mfmas(X, W):
        m = []
        for sg in range(3):
            for tt in range(4):
                a = acc(sg, tt)
                w = f"v[{W+4*sg}:{W+4*sg+3}]"; x = f"v[{X+4*tt}:{X+4*tt+3}]"
                if cfg.get("exp16"):
                    m.append(f"v_mfma_f32_16x16x32_bf16 v[{a}:{a+3}], {w}, {x}, v[{a}:{a+3}]\nv_mfma_f32_16x16x32_bf16 v[{a+8}:{a+11}], {x}, {w}, v[{a+8}:{a+11}]")
                elif sg < 2: m.append(f"v_mfma_f32_32x32x16_bf16 v[{a}:{a+15}], {w}, {x}, v[{a}:{a+15}]")
                else:      m.append(f"v_mfma_f32_32x32x16_bf16 v[{a}:{a+15}], {x}, {w}, v[{a}:{a+15}]")
        return m
    X16, W16 = 4, 36
    def acc16(g, c):
        sg, ch = c >> 1, c & 1
        return acc(sg, g >> 1) + ((g & 1) * 8 + ch * 4 if sg < 2 else ch * 8 + (g & 1) * 4)
    def mf16(g, c):
        a = acc16(g, c); w = f"v[{W16+4*c}:{W16+4*c+3}]"; x = f"v[{X16+4*g}:{X16+4*g+3}]"
        return f"v_mfma_f32_16x16x32_bf16 v[{a}:{a+3}], " + (f"{w}, {x}" if c < 4 else f"{x}, {w}") + f", v[{a}:{a+3}]"
    rx16 = lambda g: f"ds_read_b128 v[{X16+4*g}:{X16+4*g+3}], v1 offset:{g*2048}"
    rw16 = lambda c, sec: f"ds_read_b64_tr_b16 v[{W16+4*c+2*sec}:{W16+4*c+2*sec+1}], v{3 - (c & 1)} offset:{(c >> 1)*4096 + sec*256}"
    H1R = {23: [rw16(5, 0), rw16(5, 1)]}
    for c in range(0, 5):
        H1R[4*c+3] = [rw16(c, 0)]; H1R[4*c+4] = [rw16(c, 1)]
    XAP = [int(x) for x in cfg.get("m16a", "0,1,2,4").split(",")]
    for g, k in enumerate(XAP): H1R[k] = [rx16(g)] + H1R.get(k, [])
    H1L = [l for k in range(24) for l in H1R.get(k, [])]
    H1N = lambda l: len(H1L) - 1 - H1L.index(l)
    if M16:
        for l in H1L: A(l)
    else:
        for l in reads(XA, WA, 0): A(l)
    if LATE:
        A("""
        s_cmp_lg_u32 s40, 0
        s_cbranch_scc1 K1_NOARR
        s_mov_b32 s96, s86
        s_mov_b32 s97, s87
        s_mov_b32 s98, 256
        s_mov_b32 s99, 0x00020000
        v_mov_b32 v32, 0
        v_mov_b32 v33, 1
        s_waitcnt vmcnt(0)
        s_mov_b64 exec, 1
        buffer_atomic_add v33, v32, s[96:99], 0 offen
        s_mov_b64 exec, -1
        K1_NOARR:
        """)
    if PF4:
        for t in range((TC - TL) // 2):
            A(f"buffer_load_dword v{PFD}, v{PFA+2}, s[92:95], s55 offen")
            A("s_add_u32 s55, s55, s59")
    A.label("K1_CLOOP")
    if M16:
        XP = int(cfg.get("m16x", 0))
        XS_ = int(cfg.get("m16s", 1))
        XBP = [XP + XS_ * g for g in range(4)]
        fr0 = [k for k in range(24) if k not in XBP and k % 4 != 3]
        ex0 = {[k for k in fr0 if k > XBP[-1]][0]: ["v_xad_u32 v1, v1, 64, s65"]}
        f2 = [k for k in fr0 if k not in ex0]
        ex0[f2[1]] = ["v_add_u32 v3, s49, v3"]; ex0[f2[3]] = ["v_add_u32 v2, s49, v2"]
        sal = ["s_sub_u32 s54, s54, 1", "s_and_b32 s63, s54, 1", "s_add_u32 s64, s64, s63",
               f"s_cmp_eq_u32 s64, {K1_NX}", f"s_cselect_b32 s65, s66, {K1_XS}", "s_cselect_b32 s64, 0, s64",
               "s_mul_i32 s65, s65, s63", "s_add_u32 s48, s48, 1", f"s_cmp_eq_u32 s48, {K1_NSLOT}",
               "s_cselect_b32 s49, s53, s52", "s_cselect_b32 s48, 0, s48", "s_cmp_lg_u32 s54, 0"]
        free = [k for k in range(1, 23) if len(H1R.get(k, [])) == 0]
        ex1 = {k: [] for k in free}
        for n, l in enumerate(sal): ex1[free[n * len(free) // len(sal)]].append(l)
        for k in range(24):
            nb = len([x for x in XBP if x < k])
            if k % 4 == 0:
                c = k // 4
                n = H1N(rw16(c, 1))
                if c == 0: n = min(n, H1N(rx16(0)))
                A(f"s_waitcnt lgkmcnt({min(15, n + nb)})")
                done = n
            if k in (1, 2, 3) and H1N(rx16(k)) < done:
                done = H1N(rx16(k)); A(f"s_waitcnt lgkmcnt({min(15, done + nb)})")
            A(mf16(k % 4, k // 4))
            if k in XBP: A(rx16(4 + XBP.index(k)))
            for l in ex0.get(k, []): A(l)
        for k in range(24):
            if k < 4 and (k == 0 or XS_ > 1): A(f"s_waitcnt lgkmcnt({(3 - k if XS_ > 1 else 0) + len([l for j in range(k) for l in H1R.get(j, [])])})")
            A(mf16(4 + k % 4, k // 4))
            for l in H1R.get(k, []) + ex1.get(k, []): A(l)
    else:
        A("s_waitcnt lgkmcnt(0)")
    m = mfmas(XA, WA); r = reads(XB, WB, 1)
    extra0 = {4: ["s_and_b32 s63, s54, 1", "s_add_u32 s64, s64, s63", f"s_cmp_eq_u32 s64, {K1_NX}",
                  f"s_cselect_b32 s65, s66, {K1_XS}", "s_cselect_b32 s64, 0, s64", "s_mul_i32 s65, s65, s63"],
              6: ["s_add_u32 s48, s48, 1", f"s_cmp_eq_u32 s48, {K1_NSLOT}", "s_cselect_b32 s49, s53, s52", "s_cselect_b32 s48, 0, s48"],
              7: ["v_xor_b32 v1, 64, v1", "v_xor_b32 v2, 64, v2"], 8: ["v_add_u32 v1, s65, v1", "v_add_u32 v2, s65, v2"], 9: ["v_add_u32 v3, s49, v3"]}
    SPREAD = cfg.get("spread")
    extra1 = {}
    if SPREAD:
        extra0 = {6: ["v_xad_u32 v1, v1, 64, s65"], 8: ["v_xad_u32 v2, v2, 64, s65"], 10: ["v_add_u32 v3, s49, v3"]}
        extra1 = {5: ["s_sub_u32 s54, s54, 1", "s_and_b32 s63, s54, 1", "s_add_u32 s64, s64, s63"],
                  6: [f"s_cmp_eq_u32 s64, {K1_NX}", f"s_cselect_b32 s65, s66, {K1_XS}", "s_cselect_b32 s64, 0, s64"],
                  7: ["s_mul_i32 s65, s65, s63", "s_add_u32 s48, s48, 1", f"s_cmp_eq_u32 s48, {K1_NSLOT}"],
                  8: ["s_cselect_b32 s49, s53, s52", "s_cselect_b32 s48, 0, s48"],
                  11: ["s_cmp_lg_u32 s54, 0"]}
        if PF2:
            t_ = touch()
            th_, tk_ = map(int, cfg.get("tpos", "1:9").split(":"))
            ex_ = extra1 if th_ else extra0
            after_dec = th_ == 1 and tk_ >= 5
            cmp_ = f"s_cmp_ge_u32 s54, {4 + L2D}" if after_dec else f"s_cmp_gt_u32 s54, {4 + L2D}"
            def addx(d, k, ls, front=False):
                d[k] = (ls + d.get(k, [])) if front else (d.get(k, []) + ls)
            if th_ == 1 and tk_ == 9:
                extra1[9] = [cmp_, "s_cselect_b32 s94, s62, 0", t_[0]]
                extra1[10] = t_[1:4]
                extra1[11] = [t_[4], "s_cmp_lg_u32 s54, 0"]
            else:
                assert not (th_ == 1 and 3 < tk_ < 9)
                addx(ex_, tk_, [cmp_, "s_cselect_b32 s94, s62, 0", t_[0]])
                addx(ex_, tk_ + 1, [t_[1], t_[2], t_[3], t_[4]])
        elif L2D:
            extra1[9] = [f"s_cmp_ge_u32 s54, {4 + L2D}", "s_cselect_b32 s94, s62, 0", "s_and_b32 s55, s59, 31"]
            extra1[10] = [f"s_mul_i32 s55, s55, {32*6144}", "s_add_u32 s59, s59, 1", f"buffer_load_dword v{PFD}, v{PFA}, s[92:95], s55 offen"]
    for k in range(0 if M16 else 12):
        A(m[k])
        if k < 5:
            A(r[2*k]); A(r[2*k+1])
        for l in extra0.get(k, []): A(l)
        if L2D and k == 10 and not SPREAD:
            assert not PF2
            A(f"s_cmp_gt_u32 s54, {4 + L2D}")
            A("s_cselect_b32 s94, s62, 0")
            l2pf()
    if not M16: A("s_waitcnt lgkmcnt(0)")
    m = mfmas(XB, WB); r = reads(XA, WA, 0)
    for k in range(0 if M16 else 12):
        A(m[k])
        if k < 5:
            A(r[2*k]); A(r[2*k+1])
        for l in extra1.get(k, []): A(l)
        if k == 8 and not SPREAD:
            A("s_sub_u32 s54, s54, 1"); A("s_cmp_lg_u32 s54, 0")
    if cfg.get("prof") == "3":
        A("s_memtime s[96:97]")
        A("s_barrier")
        A("s_memtime s[98:99]")
        A("s_waitcnt lgkmcnt(0)")
        A("s_sub_u32 s98, s98, s96")
        A("s_add_u32 s100, s100, s98")
        A("s_cmp_lg_u32 s54, 0")
    elif cfg.get("prof") == "4":
        A("s_barrier")
        A("s_memrealtime s[96:97]")
        A("s_sub_u32 m0, 32, s54")
        A("s_waitcnt lgkmcnt(0)")
        A(f"v_writelane_b32 v{PV}, s96, m0")
        A("s_cmp_lg_u32 s54, 0")
    else:
        A("s_barrier")
    A("s_cbranch_scc1 K1_CLOOP")
    A("s_waitcnt lgkmcnt(0)")
    if cfg.get("prof") == "3":
        A("s_memtime s[96:97]")
        A("s_waitcnt lgkmcnt(0)")
        A("s_sub_u32 s96, s96, s101")
        A(f"v_writelane_b32 v{PV}, s100, 0")
        A(f"v_writelane_b32 v{PV}, s96, 2")
    vstamp(A, cfg, 2, PV)
    est(A, cfg, 0, PV)
    E8 = cfg.get("e8")
    T1 = 4
    VB = acc(1, 0)
    QL = E8 and cfg.get("qlate", "1") == "1"
    V = acc(0, 2) if QL else acc(1, 0)
    Q = V + 16 if QL else acc(1, 0) + 32
    NT8 = 2 if E8 else 4
    if M16:
        A("""
        v_and_b32 v42, 15, v0            ; i
        v_lshrrev_b32 v43, 4, v0
        v_lshlrev_b32 v1, 4, v42
        v_lshl_add_u32 v40, v43, 9, v1   ; Q, V images : row * 512 + i * 16
        v_and_b32 v41, 1, v43
        v_lshl_add_u32 v41, v41, 10, v1
        v_lshrrev_b32 v43, 1, v43
        v_lshl_add_u32 v41, v43, 9, v41  ; swapped order : (row & 1) * 1024 + (row >> 1) * 512 + i * 16
        v_lshrrev_b32 v42, 3, v42
        v_lshl_add_u32 v42, v42, 7, v40  ; K image : tokens 8..15 and 16..23 change places
        """)
    A(f"""
    v_lshlrev_b32 v1, 4, v0          ; lane*16
    s_cmp_lg_u32 s51, 0
    s_cbranch_scc1 K1_E1T1
    s_mov_b32 s56, {fhex(32**-0.5 * LOG2E)}
    s_mov_b32 s57, s56
    s_lshl_b32 s47, s50, 13
    s_add_u32 s47, s47, {QST}
    v_add_u32 v44, s47, v{40 if M16 else 1}           ; Q staging address
    """)
    O2 = 256 if M16 else 1024
    def swap_tile(d):
        if M16:
            for k in range(4): A(f"v_permlane16_swap_b32 v{d+k}, v{d+4+k}")
    def handoff(srcs, more=None):
        for k, src in enumerate(srcs):
            cvt_tile(A, T1 + 8*k, src)
            A(f"ds_write_b128 v45, v[{T1+8*k}:{T1+8*k+3}] offset:{k*2048}")
            A(f"ds_write_b128 v45, v[{T1+8*k+4}:{T1+8*k+7}] offset:{k*2048+O2}")
        if more: more()
        A("s_waitcnt lgkmcnt(0)")
        A("s_barrier")
        est(A, cfg, 1, PV)
    if E8:
        A(f"""
        s_lshl_b32 s47, s50, 13
        s_add_u32 s47, s47, {HB0}
        v_add_u32 v45, s47, v{41 if M16 else 1}
        """)
        A.nop(2)
        handoff([acc(0, 2), acc(0, 3), acc(2, 2), acc(2, 3)])
    else:
        A.nop(6)
    def bq_stage(tts, sc, adr, inplace):
        for tt in tts:
            for k in range(8):
                a = acc(1, tt) + 2*k
                A(f"v_pk_mul_f32 v[{a}:{a+1}], v[{a}:{a+1}], s[{sc}:{sc+1}]")
            d = acc(1, tt) if inplace else T1 + 8*tt
            cvt_tile(A, d, acc(1, tt))
            A(f"ds_write_b128 v{adr}, v[{d}:{d+3}] offset:{tt*2048}")
            A(f"ds_write_b128 v{adr}, v[{d+4}:{d+7}] offset:{tt*2048+O2}")
    if QL:
        A("""
        v_mov_b32 v26, v44
        s_mov_b32 s64, s56
        s_mov_b32 s65, s56
        """)
    else:
        bq_stage(range(4), 56, 44, False)
    for tt in range(NT8):
        cvt_tile(A, V + 8*tt, acc(2, tt))
        swap_tile(V + 8*tt)
    A("s_branch K1_E2J")
    A.label("K1_E1T1")
    A(f"""
    s_lshl_b32 s58, s41, 1
    s_add_u32 s58, s58, s50
    s_lshl_b32 s58, s58, 14
    s_add_u32 s58, s58, s70
    s_lshl_b32 s47, s50, 14
    v_add_u32 v44, s47, v{42 if M16 else 1}
    v_add_u32 v43, s47, v{40 if M16 else 1}
    """)
    if E8:
        A(f"""
        s_lshl_b32 s47, s50, 12
        s_add_u32 s47, s47, {HB1}
        v_add_u32 v45, s47, v{41 if M16 else 1}
        """)
        KA, K2 = (42, 128) if M16 else (1, 1024)
        KE = int(cfg.get("ke", 0))
        def ktile(tt):
            cvt_tile(A, T1 + 8*tt, acc(1, tt))
            A(f"s_add_u32 s47, s58, {4096*tt}")
            A(f"buffer_store_dwordx4 v[{T1+8*tt}:{T1+8*tt+3}], v{KA}, s[32:35], s47 offen sc1")
            A(f"buffer_store_dwordx4 v[{T1+8*tt+4}:{T1+8*tt+7}], v{KA}, s[32:35], s47 offen offset:{K2} sc1")
        handoff([acc(0, 2), acc(0, 3)], (lambda: [ktile(tt) for tt in (2, 3)[:KE]]) if KE else None)
    else:
        A.nop(10)
        KE = 0
    KA, K2 = (42, 128) if M16 else (1, 1024)
    VA = 40 if M16 else 1
    if KE:
        for tt in range(4):
            if tt not in (2, 3)[:KE]: ktile(tt)
        A("s_add_u32 s58, s58, 2048")
    else:
      for tt in range(4):
        cvt_tile(A, T1 + 8*tt, acc(1, tt))
        A(f"buffer_store_dwordx4 v[{T1+8*tt}:{T1+8*tt+3}], v{KA}, s[32:35], s58 offen sc1")
        A(f"buffer_store_dwordx4 v[{T1+8*tt+4}:{T1+8*tt+7}], v{KA}, s[32:35], s58 offen offset:{K2} sc1")
        A("s_add_u32 s58, s58, 4096")
      A(f"s_sub_u32 s58, s58, {4*4096 - 2048}")
    for tt in range(4):
        cvt_tile(A, VB + 8*tt, acc(2, tt))
        A(f"buffer_store_dwordx4 v[{VB+8*tt}:{VB+8*tt+3}], v{VA}, s[32:35], s58 offen sc1")
        A(f"buffer_store_dwordx4 v[{VB+8*tt+4}:{VB+8*tt+7}], v{VA}, s[32:35], s58 offen offset:{O2} sc1")
        A("s_add_u32 s58, s58, 4096")
    for tt in range(4):
        A(f"ds_write_b128 v44, v[{T1+8*tt}:{T1+8*tt+3}] offset:{tt*4096}")
        A(f"ds_write_b128 v44, v[{T1+8*tt+4}:{T1+8*tt+7}] offset:{tt*4096+K2}")
        A(f"ds_write_b128 v43, v[{VB+8*tt}:{VB+8*tt+3}] offset:{tt*4096+2048}")
        A(f"ds_write_b128 v43, v[{VB+8*tt+4}:{VB+8*tt+7}] offset:{tt*4096+2048+O2}")
    A.label("K1_E2J")
    WP = 36
    krow = (lambda s, sec: 16*sec + 4*s) if M16 else (lambda s, sec: 16*s + 8*sec)
    def feat_setup(tb):
        A(f"""
        v_lshrrev_b32 v5, 5, v0          ; hh
        v_bfe_u32 v6, v0, 2, 2           ; i>>2
        v_lshl_add_u32 v6, v5, {3 if M16 else 2}, v6     ; 4hh + (i>>2)
        v_bfe_u32 v7, v0, 4, 1
        v_lshlrev_b32 v7, 5, v7
        v_and_b32 v8, 3, v0
        v_lshl_add_u32 v7, v8, 3, v7     ; (g&1)*32 + (i&3)*8
        v_lshl_add_u32 v2, v6, 6, v7
        v_add_u32 v2, {K1_WPHI}, v2
        """)
        for s in range(2):
            for sec in range(2):
                A(f"ds_read_b64_tr_b16 v[{WP+4*s+2*sec}:{WP+4*s+2*sec+1}], v2 offset:{krow(s, sec)*64}")
        A(f"""
        s_mul_i32 s47, s50, {K1_TBUF}
        s_add_u32 s47, s47, {tb}
        v_mul_u32_u24 v25, 136, v6
        v_add_u32 v25, v25, v7
        v_add_u32 v25, s47, v25
        v_and_b32 v8, 31, v0
        v_mul_u32_u24 v24, 136, v8
        v_lshl_add_u32 v24, v5, 3, v24
        v_add_u32 v24, s47, v24
        v_bfe_u32 v8, v0, 2, 1
        v_bfe_u32 v9, v0, 4, 1
        v_cmp_eq_u32 vcc, v8, v9
        v_mov_b32 v9, 0x3f803f80
        v_mov_b32 v8, 0
        v_cndmask_b32 v20, v8, v9, vcc
        v_cndmask_b32 v21, v8, v9, vcc
        v_cndmask_b32 v22, v8, v9, vcc
        v_cndmask_b32 v23, v8, v9, vcc
        """)
    feat_setup(TBUF0)
    for tt in range(NT8):
        cvt_tile(A, Q + 8*tt, acc(0, tt))
        swap_tile(Q + 8*tt)
    if M16: A("s_nop 0")
    if E8: A.label("K1_E2L")
    est(A, cfg, 2, PV)
    A("s_waitcnt lgkmcnt(0)")
    for tt in range(NT8):
        a = acc(0, tt)
        A(f"v_mfma_f32_32x32x16_bf16 v[{a}:{a+15}], v[{WP}:{WP+3}], v[{Q+8*tt}:{Q+8*tt+3}], 0")
    for tt in range(NT8):
        a = acc(0, tt)
        A(f"v_mfma_f32_32x32x16_bf16 v[{a}:{a+15}], v[{WP+4}:{WP+7}], v[{Q+8*tt+4}:{Q+8*tt+7}], v[{a}:{a+15}]")
    A(f"""
    s_mov_b32 s56, {fhex(LOG2E)}
    s_mov_b32 s57, s56
    """)
    F1E = E8 and cfg.get("f1pos") == "9"
    if F1E:
        j = A.uid("K1_F1E")
        A("s_cmp_ge_u32 s40, 4"); A(f"s_cbranch_scc1 {j}")
        A("s_cmp_eq_u32 s51, 0"); A(f"s_cbranch_scc1 {j}")
        A("s_waitcnt vmcnt(0)")
        set_flag(A, "s67")
        vstamp(A, cfg, 3, PV)
        A.label(j)
    A.nop(10)
    EP = acc(2, 0)
    PH = EP + 16
    AF = PH + 16
    KV0 = AF + 16
    KV1 = 44
    Z0, Z1, SEL1 = 12, 16, 20
    PHQ = 128
    def kv_mfmas(tt):
        out = []
        for s in range(2):
            for fb in range(2):
                kv = KV0 if fb == 0 else KV1
                z = Z0 if fb == 0 else Z1
                af = AF + (fb*2+s)*4
                c = "0" if (tt == 0 and s == 0) else f"v[{kv}:{kv+15}]"
                cz = "0" if (tt == 0 and s == 0) else f"v[{z}:{z+3}]"
                out.append(f"v_mfma_f32_32x32x16_bf16 v[{kv}:{kv+15}], v[{af}:{af+3}], v[{V+8*tt+4*s}:{V+8*tt+4*s+3}], {c}")
                out.append(f"v_mfma_f32_16x16x32_bf16 v[{z}:{z+3}], v[{SEL1}:{SEL1+3}], v[{af}:{af+3}], {cz}")
        return out
    if E8: F1POS = -1 if F1E else min(int(cfg.get("f1pos", 0)), 1)
    est(A, cfg, 3, PV)
    for tt in range(NT8):
        P = acc(0, tt)
        A(f"v_max3_f32 v4, v{P}, v{P+1}, v{P+2}")
        A(f"v_max3_f32 v5, -v{P}, -v{P+1}, -v{P+2}")
        for k in range(3, 15, 2):
            A(f"v_max3_f32 v4, v4, v{P+k}, v{P+k+1}")
            A(f"v_max3_f32 v5, v5, -v{P+k}, -v{P+k+1}")
        A(f"v_max_f32 v4, v4, v{P+15}")
        A(f"v_max_f32 v5, v5, -v{P+15}")
        A.nop(2)
        A("v_permlane32_swap_b32 v4, v5")
        A("s_nop 0")
        A("v_max_f32 v4, v4, v5")
        A("v_mov_b32 v5, v4")
        A.nop(2)
        A("v_permlane32_swap_b32 v4, v5")
        A("s_nop 0")
        A(f"v_mul_f32 v6, {fhex(-LOG2E)}, v4")
        A(f"v_mul_f32 v8, {fhex(-LOG2E)}, v5")
        for k in range(8):
            A(f"v_pk_fma_f32 v[{EP+2*k}:{EP+2*k+1}], v[{P+2*k}:{P+2*k+1}], s[56:57], v[6:7] op_sel_hi:[1,1,0]")
            A(f"v_pk_fma_f32 v[{P+2*k}:{P+2*k+1}], v[{P+2*k}:{P+2*k+1}], s[56:57], v[8:9] op_sel_hi:[1,1,0] neg_lo:[0,1,0] neg_hi:[0,1,0]")
        for k in range(16):
            A(f"v_exp_f32 v{EP+k}, v{EP+k}")
            A(f"v_exp_f32 v{P+k}, v{P+k}")
        if tt > 0:
            j = A.uid("K1_KVS")
            A("s_cmp_lg_u32 s51, 0"); A(f"s_cbranch_scc1 {j}")
            A("s_waitcnt lgkmcnt(0)")
            for l in kv_mfmas(tt-1): A(l)
            A.label(j)
        A(f"v_pk_add_f32 v[4:5], v[{EP}:{EP+1}], v[{EP+2}:{EP+3}]")
        A(f"v_pk_add_f32 v[6:7], v[{P}:{P+1}], v[{P+2}:{P+3}]")
        for k in range(2, 8):
            A(f"v_pk_add_f32 v[4:5], v[4:5], v[{EP+2*k}:{EP+2*k+1}]")
            A(f"v_pk_add_f32 v[6:7], v[6:7], v[{P+2*k}:{P+2*k+1}]")
        A("v_add_f32 v4, v4, v5")
        A("v_add_f32 v6, v6, v7")
        A.nop(2)
        A("v_permlane32_swap_b32 v4, v6")
        A("s_nop 0")
        A("v_add_f32 v4, v4, v6")
        A("v_rcp_f32 v4, v4")
        A("s_nop 0")
        A("v_mov_b32 v6, v4")
        A.nop(2)
        A("v_permlane32_swap_b32 v4, v6")
        A("s_nop 0")
        for k in range(8):
            A(f"v_pk_mul_f32 v[{EP+2*k}:{EP+2*k+1}], v[{EP+2*k}:{EP+2*k+1}], v[4:5] op_sel_hi:[1,0]")
            A(f"v_pk_mul_f32 v[{P+2*k}:{P+2*k+1}], v[{P+2*k}:{P+2*k+1}], v[6:7] op_sel_hi:[1,0]")
        j1 = A.uid("K1_T0"); j2 = A.uid("K1_TJ")
        A("s_cmp_eq_u32 s51, 0"); A(f"s_cbranch_scc1 {j1}")
        cvt_tile(A, PHQ + 16*tt, EP)
        cvt_tile(A, PHQ + 16*tt + 8, P)
        if tt == F1POS:
            if E8:
                A("s_cmp_ge_u32 s40, 4"); A(f"s_cbranch_scc1 {j2}")
            A("s_waitcnt vmcnt(0)")
            set_flag(A, "s67")
            vstamp(A, cfg, 3, PV)
        A(f"s_branch {j2}")
        A.label(j1)
        cvt_tile(A, PH, EP)
        cvt_tile(A, PH + 8, P)
        for sign in range(2):
            for b in range(4):
                A(f"ds_write_b64 v24, v[{PH+8*sign+2*b}:{PH+8*sign+2*b+1}] offset:{sign*64+b*16}")
        for fb in range(2):
            for s in range(2):
                for sec in range(2):
                    af = AF + (fb*2+s)*4 + 2*sec
                    A(f"ds_read_b64_tr_b16 v[{af}:{af+1}], v25 offset:{krow(s, sec)*136 + fb*64}")
        A.label(j2)
        est(A, cfg, 4 + tt, PV)
        if cfg.get("tp") and tt == 0:
            j3 = A.uid("K1_TP")
            A("s_cmp_lt_u32 s40, 4"); A(f"s_cbranch_scc1 {j3}")
            A("s_cmp_lg_u32 s51, 0"); A(f"s_cbranch_scc1 {j3}")
            A(f"s_setprio {cfg.get('tp')}")
            A.label(j3)
    A("s_cmp_lg_u32 s51, 0")
    A("s_cbranch_scc1 KF_JOIN")
    if QL:
        QN = int(cfg.get("qn", 4))
        A("s_cmp_ge_u32 s40, 4")
        A("s_cbranch_scc1 K1_QL0")
        bq_stage(range(QN), 64, 26, True)
        A(f"s_waitcnt lgkmcnt({2 * QN})")
        for l in kv_mfmas(NT8 - 1): A(l)
        bq_stage(range(QN, 4), 64, 26, True)
        A("s_branch K1_QL1")
        A("K1_QL0:")
        A("s_waitcnt lgkmcnt(0)")
        for l in kv_mfmas(NT8 - 1): A(l)
        A("K1_QL1:")
    else:
        A("s_waitcnt lgkmcnt(0)")
        for l in kv_mfmas(NT8 - 1): A(l)
    est(A, cfg, 6, PV)
    if E8:
        A(f"""
        s_cmp_ge_u32 s40, 4
        s_cselect_b32 s38, {HB0 - RED0}, 0
        s_cselect_b32 s55, 512, 0
        s_add_u32 s38, s38, {RED0}
        s_add_u32 s55, s55, {ZRED}
        """)
    else:
        A(f"s_mov_b32 s38, {RED0}")
        A(f"s_mov_b32 s55, {ZRED}")
    A(f"""
    s_lshl_b32 s47, s50, 13
    s_add_u32 s47, s47, s38
    v_add_u32 v2, s47, v1
    v_and_b32 v3, 31, v0
    v_lshlrev_b32 v3, 2, v3
    s_lshl_b32 s47, s50, 8
    s_add_u32 s47, s47, s55
    v_add_u32 v3, s47, v3
    """)
    A.nop(8)
    A(f"ds_write_b32 v3, v{Z0}")
    A(f"ds_write_b32 v3, v{Z1} offset:128")
    for fb in range(2):
        kv = KV0 if fb == 0 else KV1
        for q in range(4):
            A(f"ds_write_b128 v2, v[{kv+4*q}:{kv+4*q+3}] offset:{fb*4096+q*1024}")
    A("s_branch KF_JOIN")
    A.label("K1_LOADER")
    if cfg.get("lprio"): A(f"s_setprio {cfg.get('lprio')[0]}")
    def l_srd0():
        A("""
        s_cmp_eq_u32 s44, 0
        s_cselect_b32 s28, s6, s8
        s_cselect_b32 s29, s7, s9
        """)
        A(f"s_mov_b32 s30, {1024*6144}")
        A("s_mov_b32 s31, 0x00020000")
    def l_srd1():
        srd(A, 20, 6, 1024*6144)
        srd(A, 24, 8, 1024*6144)
    if not ES:
        srd(A, 16, 4, 2048*2048)
        l_srd1()
    A(f"""
    s_sub_u32 s50, s40, 4            ; w
    s_lshr_b32 s44, s50, 1
    """)
    if not ES: l_srd0()
    R1 = cfg.get("r1", "1") if cfg.get("pf2") else (cfg.get("r1", "0") if (PF3 or PF4) else "0")
    if R1 != "0":
        HM = cfg.get("hmap", "f") == "h"
        RB = 1 if HM else 2; HB = 4 if HM else 3
        NW = 3 << (4 - RB)
        A(f"""
        s_lshr_b32 s47, s45, {RSH}
        s_mul_i32 s47, s47, {ROT}
        s_and_b32 s51, s45, 1
        s_mul_i32 s51, s51, {ROT2}
        s_add_u32 s47, s47, s51          ; first block
        s_and_b32 s51, s50, 1
        s_lshl_b32 s51, s51, 1
        s_add_u32 s51, s51, s47
        v_mul_u32_u24 v20, 43, v0
        v_lshrrev_b32 v20, {10 if HM else 9}, v20
        v_mul_u32_u24 v21, {NW}, v20
        v_sub_u32 v21, v0, v21           ; lane % NW
        v_add_u32 v20, s51, v20
        v_and_b32 v20, 31, v20
        v_mul_u32_u24 v20, {32*6144}, v20
        s_and_b32 s51, s42, 1
        s_lshl_b32 s51, s51, {RB}
        s_and_b32 s52, s41, {(1 << RB) - 1}
        s_add_u32 s51, s51, s52
        s_lshl_b32 s51, s51, {4 - RB}    ; first row of the share
        v_and_b32 v22, {(1 << (4 - RB)) - 1}, v21
        v_add_u32 v22, s51, v22
        v_mul_u32_u24 v22, 6144, v22
        v_lshrrev_b32 v21, {4 - RB}, v21
        v_lshl_add_u32 v22, v21, 11, v22
        s_lshr_b32 s51, s42, 1
        s_lshl_b32 s51, s51, 7
        v_add3_u32 v20, v20, v22, s51
        v_mov_b32 v23, 0x7ffffff0
        v_cmp_gt_u32 vcc, {2 * NW}, v0
        s_lshl_b32 s51, s41, 8
        s_and_b32 s52, s42, {(1 << HB) - 1}
        s_lshl_b32 s52, s52, {8 - HB}
        v_cndmask_b32 v20, v23, v20, vcc
        s_add_u32 s51, s51, s52
        s_lshl_b32 s52, s50, {6 - HB}
        s_add_u32 s51, s51, s52
        {"" if ES else "buffer_load_dword v24, v20, s[28:31], 0 offen"}
        v_and_b32 v21, {(1 << (6 - HB)) - 1}, v0
        v_add_u32 v21, s51, v21
        v_lshlrev_b32 v21, 11, v21
        v_lshrrev_b32 v22, {6 - HB}, v0
        s_lshr_b32 s47, s47, 1
        v_add_u32 v22, s47, v22
        v_and_b32 v22, 15, v22
        v_lshl_add_u32 v21, v22, 7, v21
        v_cmp_gt_u32 vcc, {2 << (6 - HB)}, v0
        s_nop 1
        v_cndmask_b32 v21, v23, v21, vcc
        {"" if ES else "buffer_load_dword v25, v21, s[16:19], 0 offen"}
        """)
    if not ES: srd(A, 36, 10, 32*2048)
    A(f"""
    v_lshrrev_b32 v1, 3, v0
    v_lshrrev_b32 v2, 4, v0
    v_and_b32 v3, 7, v0
    v_xor_b32 v3, v3, v2
    v_lshlrev_b32 v3, 4, v3
    v_lshl_add_u32 v4, v1, 11, v3
    s_lshl_b32 s47, s41, 8
    s_lshl_b32 s51, s50, 6
    s_add_u32 s47, s47, s51
    s_lshl_b32 s47, s47, 11          ; (r*256 + 64w)*2048
    v_add_u32 v4, s47, v4            ; piece 0
    v_xor_b32 v5, 64, v4
    v_add_u32 v5, 16384, v5
    v_add_u32 v6, 32768, v4
    v_add_u32 v7, 32768, v5
    v_add_u32 v12, 65536, v4
    v_add_u32 v13, 65536, v5
    v_add_u32 v14, 98304, v4
    v_add_u32 v15, 98304, v5
    """)
    if ES:
        assert R1 == "2"
        A("s_waitcnt lgkmcnt(0)")
        rstamp(41)
        l_srd0()
        A("buffer_load_dword v24, v20, s[28:31], 0 offen")
        srd(A, 16, 4, 2048*2048)
        A("buffer_load_dword v25, v21, s[16:19], 0 offen")
        l_srd1()
        srd(A, 36, 10, 32*2048)
        srd(A, 32, 14, WS_USED)
    A(f"""
    v_lshrrev_b32 v1, {3 if cfg.get("expw") else 2}, v0
    s_and_b32 s47, s50, 1
    s_lshl_b32 s47, s47, 4
    v_add_u32 v1, s47, v1            ; krow = 16*(w&1) + (l>>2)
    v_mul_u32_u24 v1, 6144, v1
    v_and_b32 v3, {7 if cfg.get("expw") else 3}, v0
    {"v_lshrrev_b32 v2, 4, v0" if cfg.get("m16") else ""}
    {"v_and_b32 v2, 2, v2" if cfg.get("m16") else ""}
    {"v_xor_b32 v3, v2, v3            ; m16 : the column halves of k rows 8..15 change places" if cfg.get("m16") else ""}
    v_lshl_add_u32 v1, v3, 4, v1
    s_lshl_b32 s47, s42, 6           ; 64h
    {"s_and_b32 s47, s47, 0x780" if cfg.get("expw") else ""}
    s_lshl_b32 s51, s44, 11          ; type*2048
    s_add_u32 s52, s47, s51
    v_add_u32 v9, s52, v1            ; seg1 : B.q / B.k
    s_sub_u32 s52, 2048, s51
    s_add_u32 s52, s52, s47
    v_add_u32 v8, s52, v1            ; seg0 : A.k / A.q
    s_add_u32 s52, s47, 4096
    v_add_u32 v10, s52, v1           ; seg2 : A.v / B.v
    v_lshlrev_b32 v11, 4, v0
    s_and_b32 s51, s50, 1
    s_lshl_b32 s51, s51, 10
    s_lshl_b32 s47, s42, 11
    s_add_u32 s47, s47, s51          ; w_phi offset = h*2048 + (w&1)*1024
    s_add_u32 m0, s51, {K1_WPHI}
    s_lshl_b32 s55, s50, 13          ; w*8192  (x pieces)
    {"s_waitcnt vmcnt(0)" if R1 == "1" else ""}
    buffer_load_dwordx4 v11, s[36:39], s47 offen lds
    s_lshl_b32 s51, s50, 10
    s_add_u32 s56, s51, {K1_WB}      ; W pieces : + w*1024
    s_lshr_b32 s47, s45, {RSH}
    s_mul_i32 s47, s47, {ROT}
    s_and_b32 s51, s45, 1
    s_mul_i32 s51, s51, {ROT2}
    s_add_u32 s47, s47, s51
    s_and_b32 s47, s47, 31           ; first k block (rotated per XCD group: spreads the x column reads over the channels)
    s_lshl_b32 s58, s47, 6           ; soffset x
    s_mul_i32 s59, s47, {32*6144}    ; soffset W
    s_mov_b32 s60, 0                 ; block
    s_mov_b32 s61, s55               ; x slot
    s_mov_b32 s62, s56               ; W slot
    s_add_u32 s55, s55, {K1_XS*K1_NX}
    s_add_u32 s56, s56, {K1_SLOT*K1_NSLOT}
    """)
    if PF3:
        TE = int(cfg.get("te", 2))
        OFFL = int(cfg.get("offl", 0))
        XT = int(cfg.get("pfx", 1))
        BW = TE // 2; LB = BW.bit_length() - 1
        assert cfg.get("hmap", "f") == "f"
        A(f"""
        s_and_b32 s51, s42, 7            ; head within the XCD
        s_and_b32 s52, s41, 3            ; token block within the XCD
        s_and_b32 s63, s42, 1
        s_lshl_b32 s63, s63, 2
        s_add_u32 s63, s63, s52          ; share of the pair's weight lines
        s_lshl_b32 s63, s63, 2           ; first row
        s_and_b32 s64, s50, 1
        s_lshl_b32 s64, s64, {5 + LB}    ; first row of this wave's group of blocks
        s_add_u32 s63, s63, s64
        v_bfe_u32 v27, v0, 2, {LB})
        v_lshlrev_b32 v30, 5, v27        ; 32 * block
        v_and_b32 v26, 3, v0
        v_add3_u32 v26, v26, v30, s63    ; row
        v_mul_u32_u24 v26, 6144, v26
        v_lshrrev_b32 v27, {2 + LB}, v0  ; segment
        v_lshl_add_u32 v26, v27, 11, v26
        s_lshr_b32 s63, s42, 1
        s_lshl_b32 s63, s63, 7
        v_add_u32 v26, s63, v26          ; + column of the pair
        v_mov_b32 v29, 0x7ffffff0
        v_cmp_gt_u32 vcc, 3, v27
        """.replace("v_bfe_u32 v27, v0, 2, 0)", "v_mov_b32 v27, 0").replace(")\n", "\n"))
        if OFFL:
            A(f"""
            s_cmp_lt_u32 s51, 6
            s_cselect_b64 vcc, vcc, 0
            v_cndmask_b32 v26, v29, v26, vcc
            s_lshl_b32 s63, s51, 2
            s_add_u32 s63, s63, s52
            s_lshl_b32 s63, s63, 2
            v_and_b32 v28, 3, v0
            v_add_u32 v31, s63, v28          ; line of the last pair : 0..95
            v_and_b32 v28, 31, v31
            v_add3_u32 v28, v28, v30, s64
            v_mul_u32_u24 v28, 6144, v28
            v_lshrrev_b32 v31, 5, v31
            v_lshl_add_u32 v28, v31, 11, v28
            s_lshr_b32 s63, s42, 1
            s_or_b32 s63, s63, 3
            s_lshl_b32 s63, s63, 7
            v_add_u32 v28, s63, v28
            v_cmp_eq_u32 vcc, 3, v27
            s_cmp_lt_u32 s51, 6
            s_cselect_b64 vcc, vcc, 0
            v_cndmask_b32 v26, v26, v28, vcc
            """)
        else:
            A("s_nop 1\nv_cndmask_b32 v26, v29, v26, vcc")
        if OFFL == 2:
            A(f"""
            s_mul_i32 s63, s51, 43
            v_add_u32 v27, s63, v0
            v_cmp_gt_u32 vcc, 43, v0
            s_movk_i32 s63, 0x100
            v_cmp_gt_u32 s[64:65], s63, v27
            s_and_b64 vcc, vcc, s[64:65]
            s_cmp_lt_u32 s51, 6
            s_cselect_b64 vcc, vcc, 0
            """)
        else:
            A(f"""
            s_lshl_b32 s63, s51, 5
            v_add_u32 v27, s63, v0
            v_cmp_gt_u32 vcc, 32, v0
            """)
        A(f"""
        s_lshl_b32 s63, s41, 8
        v_add_u32 v27, s63, v27          ; x row
        v_lshlrev_b32 v27, 11, v27
        v_cndmask_b32 v27, v29, v27, vcc
        s_lshr_b32 s63, s58, 6           ; first block
        s_add_u32 s63, s63, {TL}
        s_and_b32 s63, s63, 31
        s_mul_i32 s64, s63, {32*6144}    ; weight offset
        s_lshr_b32 s63, s63, 1
        s_add_u32 s63, s63, s50
        s_and_b32 s63, s63, 15
        s_lshl_b32 s65, s63, 7           ; x offset
        s_cmp_lt_u32 s50, {BW}
        s_cselect_b32 s67, {2048*2048 if XT else 0}, 0
        s_cmp_lt_u32 s50, 2
        s_cselect_b32 s92, s6, s8
        s_cselect_b32 s93, s7, s9
        s_mov_b32 s94, 0
        s_mov_b32 s95, 0x00020000
        s_mov_b32 s88, s4
        s_mov_b32 s89, s5
        s_mov_b32 s90, 0
        s_mov_b32 s91, 0x00020000
        """)
    def pf4_setup():
        touch_addr("s50", 26, 27, 28, 29, True, "s66")
        A(f"""
        s_mov_b32 s67, s94
        s_cmp_ge_u32 s50, 2
        s_mov_b32 s64, {TL*32*6144}
        s_cselect_b32 s64, {TL*64}, s64
        s_mov_b32 s65, {64*6144}
        s_cselect_b32 s65, 128, s65
        """)
    ED = ES and cfg.get("ed", "1") == "1"
    if PF4 and not ED: pf4_setup()
    if PF4 and ED:
        A("""
        s_mov_b32 s92, s4
        s_mov_b32 s93, s5
        s_mov_b32 s94, 0
        s_mov_b32 s95, 0x00020000
        s_mov_b32 s64, 0
        v_mov_b32 v26, 0
        """)
    rstamp(42)
    if cfg.get("lprio"): A(f"s_setprio {cfg.get('lprio')[1]}")
    A("K1_LLOOP:")
    XV = [4, 5, 6, 7, 12, 13, 14, 15]
    def ld_x(i0=0, i1=8):
        for i in range(i0, i1):
            A(f"s_add_u32 m0, s61, {i*1024}")
            A("s_nop 0")
            A(f"buffer_load_dwordx4 v{XV[i]}, s[16:19], s58 offen lds")
        if i1 == 8: A(f"""
        s_add_u32 s58, s58, 128
        s_and_b32 s58, s58, 2047
        s_add_u32 s61, s61, {K1_XS}
        s_cmp_eq_u32 s61, s55
        s_cselect_b32 s47, {K1_XS*K1_NX}, 0
        s_sub_u32 s61, s61, s47
        """)
    def ld_w():
        for sg in range(3):
            A(f"s_add_u32 m0, s62, {sg*4096}")
            A("s_nop 0")
            A(f"buffer_load_dwordx4 v{8+sg}, s[{20+4*sg}:{23+4*sg}], s59 offen lds")
        A(f"""
        s_add_u32 s59, s59, {32*6144}
        s_cmp_eq_u32 s59, {1024*6144}
        s_cselect_b32 s59, 0, s59
        s_add_u32 s62, s62, {K1_SLOT}
        s_cmp_eq_u32 s62, s56
        s_cselect_b32 s47, {K1_SLOT*K1_NSLOT}, 0
        s_sub_u32 s62, s62, s47
        """)
    E8 = cfg.get("e8")
    def lsync(n=14):
        if cfg.get("prof") == "3":
            A("s_memtime s[96:97]")
            A(f"s_waitcnt vmcnt({n})")
            A("s_memtime s[98:99]")
            A("s_barrier")
            A("s_memtime s[90:91]")
            A("s_waitcnt lgkmcnt(0)")
            A("s_sub_u32 s96, s98, s96")
            A("s_add_u32 s100, s100, s96")
            A("s_sub_u32 s90, s90, s98")
            A("s_add_u32 s101, s101, s90")
        else:
            A(f"s_waitcnt vmcnt({n})")
            A("s_barrier")
    if cfg.get("prof") == "3":
        A("s_cmp_lg_u32 s60, 0")
        A("s_cbranch_scc1 K1_LP3")
        A("s_mov_b32 s100, 0")
        A("s_mov_b32 s101, 0")
        A.label("K1_LP3")
    BAL = int(cfg.get("bal", 0))
    NT = 2 if PF3 else 1 if PF4 else 0
    if BAL:
        ld_w(); ld_x(0, 8 - BAL)
    else:
        ld_x(); ld_w()
    A("""
    s_cmp_lt_u32 s60, 4
    s_cbranch_scc1 K1_LS1
    """)
    lsync(14 - BAL + NT)
    A("K1_LS1:")
    if BAL: ld_x(8 - BAL, 8)
    ld_w()
    if PF4:
        if ED:
            A("s_cmp_lg_u32 s60, 0"); A("s_cbranch_scc1 K1_PFS")
            pf4_setup()
            A("K1_PFS:")
        A(f"""
        s_cmp_le_u32 s60, {30 - TL}
        s_cselect_b32 s94, s67, 0
        buffer_load_dword v31, v26, s[92:95], s64 offen
        s_add_u32 s64, s64, s65
        """)
    if PF3:
        A(f"""
        s_and_b32 s63, s60, {TE - 1}
        s_cmp_le_u32 s60, {32 - TL - TE}
        s_cselect_b32 s63, s63, 1
        s_cmp_eq_u32 s63, 0
        s_cselect_b32 s94, {1024*6144}, 0
        s_cselect_b32 s90, s67, 0
        s_cselect_b32 s63, {TE*32*6144}, 0
        s_cselect_b32 s66, {TE*64}, 0
        buffer_load_dword v31, v26, s[92:95], s64 offen
        buffer_load_dword v31, v27, s[88:91], s65 offen
        s_add_u32 s64, s64, s63
        s_cmp_eq_u32 s64, {1024*6144}
        s_cselect_b32 s64, 0, s64
        s_add_u32 s65, s65, s66
        s_and_b32 s65, s65, 2047
        """)
    A("""
    s_cmp_lt_u32 s60, 2
    s_cbranch_scc1 K1_LS2
    """)
    if cfg.get("prof") == "4":
        A("s_cmp_lg_u32 s60, 2"); A("s_cbranch_scc1 K1_P4A"); rstamp(43); A(f"s_waitcnt vmcnt({14 + 2*NT})"); rstamp(44); A("K1_P4A:")
    lsync(14 + 2*NT)
    A("K1_LS2:")
    GW, GX, GA = (160, 168, 200) if E8 else (32, 64, 40)
    G1 = E8 and cfg.get("g1", "1") == "1"
    NG = 4 if G1 else 2
    XT8 = E8 and cfg.get("xt", "1") == "1"
    def gate_loads():
        srd(A, 36, 12, 2048)
        A(f"""
        s_lshl_b32 s47, s41, 8
        s_lshl_b32 s51, s42, 3
        s_add_u32 s47, s47, s51
        s_lshl_b32 s51, s50, 1
        {"s_and_b32 s51, s51, 4" if G1 else ""}
        s_add_u32 s63, s47, s51          ; t0 = r*256 + h*8 + 2w  /  + 4th
        s_lshl_b32 s51, s63, 11
        v_lshlrev_b32 v1, 5, v0
        buffer_load_dwordx4 v[{GW}:{GW+3}], v1, s[36:39], 0 offen
        buffer_load_dwordx4 v[{GW+4}:{GW+7}], v1, s[36:39], 0 offen offset:16
        """)
        for j in range(NG):
            A(f"buffer_load_dwordx4 v[{GX+8*j}:{GX+8*j+3}], v1, s[16:19], s51 offen")
            A(f"buffer_load_dwordx4 v[{GX+8*j+4}:{GX+8*j+7}], v1, s[16:19], s51 offen offset:16")
            if j < NG - 1: A("s_add_u32 s51, s51, 2048")
    def dbg_srd(r=36):
        A(f"""
        s_mov_b32 s{r}, s86
        s_mov_b32 s{r+1}, s87
        s_mov_b32 s{r+2}, 256
        s_mov_b32 s{r+3}, 0x00020000
        v_mov_b32 v46, 0
        """)
    A(f"""
    s_add_u32 s60, s60, 2
    s_cmp_lt_u32 s60, 32
    s_cbranch_scc1 K1_LLOOP
    """)
    if cfg.get("lf") == "1": A("K1_LPOST:")
    def ltail(gate):
        GN = (3 + 2*NG if gate else 1) if E8 else 0
        if E8:
            if gate:
                gate_loads()
                A("s_mov_b32 s84, s63")
            dbg_srd(92)
            poll_issue(A, 47, 46, 92, "0")
        A(f"""
        s_waitcnt vmcnt({3 + NT + GN})
        s_barrier
        """)
        if E8:
            setup_p2(A)
            A(f"s_add_u32 s74, s74, {2*65536}        ; oA offset of tiles 2, 3")
        A(f"""
        s_waitcnt vmcnt({GN})
        s_barrier
        """)
    GS = G1 and XT8 and cfg.get("gs") == "1"
    if G1:
        A("s_bitcmp1_b32 s50, 0")
        A("s_cbranch_scc0 K1_LT1" if GS else "s_cbranch_scc1 K1_LT1")
        ltail(False)
        A("s_branch K1_LT2")
        A("K1_LT1:")
        ltail(True)
        A("K1_LT2:")
    else:
        ltail(True)
    if cfg.get("prof") == "3":
        A(f"v_writelane_b32 v{PV}, s100, 0")
        A(f"v_writelane_b32 v{PV}, s101, 1")
    if cfg.get("lprio"): A("s_setprio 0")
    if E8:
        setup_p3(A)
        A("s_barrier")
        A(f"""
        s_and_b32 s51, s50, 1
        {"s_xor_b32 s51, s51, 1" if XT8 else ""}
        s_lshr_b32 s50, s50, 1
        """)
        feat_setup(TBUF1)
        A(f"""
        v_lshlrev_b32 v1, 4, v0          ; lane*16
        s_lshl_b32 s47, s50, 13
        s_add_u32 s47, s47, {HB0}
        s_lshl_b32 s38, s50, 12
        s_add_u32 s38, s38, {HB1}
        s_cmp_eq_u32 s51, 0
        s_cselect_b32 s47, s47, s38
        v_add_u32 v45, s47, v1
        """)
        for j in range(NG): A(f"v_mov_b32 v{GA+j}, 0")
        GE = cfg.get("ge") == "1"
        def gate_calc():
            for k in range(8):
                for j in range(NG):
                    A(f"v_dot2c_f32_bf16 v{GA+j}, v{GX+8*j+k}, v{GW+k}")
                if NG == 2: A("s_nop 1")
            A.nop(3)
            for rot in (8, 4, 2, 1):
                for j in range(NG): A(f"v_add_f32_dpp v{GA+j}, v{GA+j}, v{GA+j} row_ror:{rot} row_mask:0xf bank_mask:0xf")
                if NG == 2: A("s_nop 1")
            if G1:
                A(f"""
                v_permlane16_swap_b32 v{GA}, v{GA+1}
                s_nop 0
                v_permlane16_swap_b32 v{GA+2}, v{GA+3}
                s_nop 1
                v_add_f32 v{GA}, v{GA}, v{GA+1}          ; rows : a01, b01, a23, b23
                v_add_f32 v{GA+1}, v{GA+2}, v{GA+3}      ; rows : c01, d01, c23, d23
                s_nop 1
                v_permlane32_swap_b32 v{GA}, v{GA+1}
                s_nop 1
                v_add_f32 v{GA}, v{GA}, v{GA+1}
                """)
            else:
                A(f"""
                v_permlane16_swap_b32 v{GA}, v{GA+1}
                s_nop 1
                v_add_f32 v{GA}, v{GA}, v{GA+1}          ; rows : a01, b01, a23, b23
                v_mov_b32 v{GA+1}, v{GA}
                s_nop 1
                v_permlane32_swap_b32 v{GA}, v{GA+1}
                s_nop 1
                v_add_f32 v{GA}, v{GA}, v{GA+1}          ; lanes 0..15 : token t0, lanes 16..31 : token t0 + 1
                """)
            A(f"""
            v_mul_f32 v{GA}, {fhex(-LOG2E)}, v{GA}
            v_exp_f32 v{GA}, v{GA}
            v_lshrrev_b32 v{GA+2}, 4, v0
            v_lshlrev_b32 v{GA+2}, 2, v{GA+2}
            v_add_f32 v{GA}, 1.0, v{GA}
            v_rcp_f32 v{GA}, v{GA}
            s_lshl_b32 s47, s84, 2
            s_add_u32 s47, s47, {WS_G}
            s_mov_b32 exec_lo, 0x10001
            s_mov_b32 exec_hi, {"0x10001" if G1 else "0"}
            buffer_store_dword v{GA}, v{GA+2}, s[32:35], s47 offen sc1
            s_mov_b64 exec, -1
            """)
        if GE:
            assert XT8 and G1
            A("s_waitcnt vmcnt(0)")
            poll_check(A, 47, 46, 92, "0", "PG", expect="0x100")
            A("s_cmp_lg_u32 s51, 0"); A("s_cbranch_scc1 K1_GE1")
            gate_calc()
            A.label("K1_GE1")
        A("s_barrier")
        vstamp(A, cfg, 2, PV)
        est(A, cfg, 0, PV)
        if not GE:
            A("s_waitcnt vmcnt(0)")
            poll_check(A, 47, 46, 92, "0", "PG", expect="0x100")
        A("s_barrier")
        est(A, cfg, 1, PV)
        EPR = cfg.get("eprio", "00")
        if EPR != "00":
            A(f"s_setprio {EPR[1]}")
            A("s_cmp_lg_u32 s51, 0")
            A("s_cbranch_scc1 K1_LP1")
            A(f"s_setprio {EPR[0]}")
            A("K1_LP1:")
        for k in range(2):
            A(f"ds_read_b128 v[{Q+8*k}:{Q+8*k+3}], v45 offset:{k*2048}")
            A(f"ds_read_b128 v[{Q+8*k+4}:{Q+8*k+7}], v45 offset:{k*2048+1024}")
        A("s_cmp_lg_u32 s51, 0")
        A(f"s_cbranch_scc1 {'K1_E2L' if (XT8 and G1 and not GS) else 'K1_LNV'}")
        for k in range(2):
            A(f"ds_read_b128 v[{V+8*k}:{V+8*k+3}], v45 offset:{4096+k*2048}")
            A(f"ds_read_b128 v[{V+8*k+4}:{V+8*k+7}], v45 offset:{4096+k*2048+1024}")
        if G1 and (GS or not XT8): A("s_branch K1_E2L")
        A("K1_LNV:")
        if not GE: gate_calc()
        A("s_branch K1_E2L")
    else:
        gate_loads()
        A("""
        s_barrier
        s_barrier
        """)
        vstamp(A, cfg, 2, PV)
        for j in range(2): A(f"v_mov_b32 v{40+j}, 0")
        A("s_waitcnt vmcnt(0)")
        for k in range(8):
            for j in range(2):
                A(f"v_dot2c_f32_bf16 v{40+j}, v{GX+8*j+k}, v{32+k}")
            A("s_nop 1")
        A("v_lshlrev_b32 v3, 2, v0")
        A.nop(3)
        for mask in (1, 2, 4, 8, 16, 32):
            A(f"v_xor_b32 v4, {mask*4}, v3")
            for j in range(2): A(f"ds_bpermute_b32 v{5+j}, v4, v{40+j}")
            A("s_waitcnt lgkmcnt(0)")
            for j in range(2): A(f"v_add_f32 v{40+j}, v{40+j}, v{5+j}")
        A(f"v_cmp_eq_u32 vcc, 1, v0")
        A("s_nop 1")
        A(f"v_cndmask_b32 v40, v40, v41, vcc")
        A(f"""
        v_mul_f32 v40, {fhex(-LOG2E)}, v40
        v_exp_f32 v40, v40
        s_nop 0
        v_add_f32 v40, 1.0, v40
        v_rcp_f32 v40, v40
        s_lshl_b32 s47, s63, 2
        s_add_u32 s47, s47, {WS_G}
        s_mov_b64 exec, 3
        buffer_store_dword v40, v3, s[32:35], s47 offen sc1
        s_mov_b64 exec, -1
        """)
        setup_p2(A)
        setup_p3(A)
        A(f"""
        s_mov_b32 s85, s36
        v_and_b32 v35, 15, v0
        v_lshlrev_b32 v35, 2, v35
        """)
        dbg_srd()
        poll_issue(A, 47, 46, 36, "0")
        A("s_waitcnt vmcnt(0)")
        poll_check(A, 47, 46, 36, "0", "PG", expect="0x100")
        poll_issue(A, 47, 35, 32, "s78")
        A("s_waitcnt vmcnt(0)")
        poll_check(A, 47, 35, 32, "s78", "P1")
        vstamp(A, cfg, 3, PV)
        A(f"""
        v_lshlrev_b32 v3, 4, v0
        s_lshl_b32 s47, s50, 12          ; w*4096
        s_add_u32 m0, s47, {2*16384}
        s_lshl_b32 s51, s41, 1
        s_add_u32 s51, s51, 2
        s_and_b32 s51, s51, 15
        s_lshl_b32 s51, s51, 14
        s_add_u32 s51, s51, s47
        s_add_u32 s51, s51, s70
        """)
        for j in range(4):
            A(f"buffer_load_dwordx4 v3, s[32:35], s51 offen offset:{j*1024} sc1 lds")
        A("s_mov_b32 s36, s85")
    A.label("KF_JOIN")
    if cfg.get("e8") and (cfg.get("eprio", "00") != "00" or cfg.get("tp")): A("s_setprio 0")
    Q, K0, K1, V0, V1, SEL, NEGM, SA, SB, O, L, P = 8, 16, 20, 24, 28, 40, 48, 64, 80, 96, 112, 120
    PR = 33
    RD = 192
    if cfg.get("prof"): A(f"v_mov_b32 v{PR}, v{PV}")
    vstamp(A, cfg, 4, PR)
    est(A, cfg, 7, PR)
    JL = cfg.get("jl") == "1"
    def j_sel():
        A(f"""
        v_bfe_u32 v4, v0, 2, 1
        v_bfe_u32 v5, v0, 4, 1
        v_cmp_eq_u32 vcc, v4, v5
        v_mov_b32 v5, 0x3f803f80
        v_mov_b32 v4, 0
        v_cndmask_b32 v{SEL}, v4, v5, vcc
        v_cndmask_b32 v{SEL+1}, v4, v5, vcc
        v_cndmask_b32 v{SEL+2}, v4, v5, vcc
        v_cndmask_b32 v{SEL+3}, v4, v5, vcc
        v_mov_b32 v1, v3                 ; cur
        v_add_u32 v2, 16384, v3          ; next
        """)
    def j_zero(a, b):
        z = [O+i for i in range(16)]
        for i in range(4): z += [L+i, V1+i, P+4+i]
        z += [35, 36, 37, 38, 39, 45] + ([] if E8 else [46])
        for i in z[a:b]: A(f"v_mov_b32 v{i}, 0")
    A("v_lshlrev_b32 v3, 4, v0          ; lane*16")
    if not JL: j_sel()
    A(f"""
    s_lshl_b32 s47, s40, 11
    s_add_u32 s47, s47, {QST}
    v_add_u32 v6, s47, v3            ; Q staging address
    s_lshl_b32 s47, s40, 10
    s_add_u32 s47, s47, {RED0}
    v_add_u32 v7, s47, v3
    """)
    if not JL: j_zero(0, 99)
    if E8:
        A("v_and_b32 v46, 15, v0")
        A("v_lshlrev_b32 v46, 2, v46")
        if cfg.get("dp", "1") != "2": poll_issue(A, 47, 46, 32, "s78")
    A(f"""
    s_mov_b32 s60, 0
    s_mov_b32 s61, 1
    s_waitcnt lgkmcnt(0)
    """)
    est(A, cfg, 8, PR)
    A("s_barrier")
    est(A, cfg, 9, PR)
    vstamp(A, cfg, 5, PR)
    NRD = 4 if E8 else 2
    A(f"""
    ds_read_b128 v[{Q}:{Q+3}], v6
    ds_read_b128 v[{NEGM}:{NEGM+3}], v3
    ds_read_b128 v[{Q+4}:{Q+7}], v6 offset:1024
    ds_read_b128 v[{NEGM+4}:{NEGM+7}], v3 offset:1024
    ds_read_b128 v[{K0}:{K0+3}], v3 offset:4096
    ds_read_b128 v[{K1}:{K1+3}], v3 offset:{4096+1024}
    ds_read_b128 v[{V0}:{V0+3}], v3 offset:2048
    ds_read_b128 v[{RD}:{RD+3}], v7
    ds_read_b128 v[{RD+4}:{RD+7}], v7 offset:8192
    """)
    if E8:
        A(f"ds_read_b128 v[{RD+12}:{RD+15}], v7 offset:{HB0 - RED0}")
        A(f"ds_read_b128 v[{RD+16}:{RD+19}], v7 offset:{HB0 - RED0 + 8192}")
    if JL: j_zero(0, 20)
    A(f"""
    s_waitcnt lgkmcnt({5 + NRD})
    v_mfma_f32_32x32x16_bf16 v[{SA}:{SA+15}], v[{NEGM}:{NEGM+3}], v[{Q}:{Q+3}], 0
    s_waitcnt lgkmcnt({3 + NRD})
    v_mfma_f32_32x32x16_bf16 v[{SA}:{SA+15}], v[{NEGM+4}:{NEGM+7}], v[{Q+4}:{Q+7}], v[{SA}:{SA+15}]
    s_waitcnt lgkmcnt({1 + NRD})
    v_mfma_f32_32x32x16_bf16 v[{SB}:{SB+15}], v[{K0}:{K0+3}], v[{Q}:{Q+3}], 0
    v_mfma_f32_32x32x16_bf16 v[{SB}:{SB+15}], v[{K1}:{K1+3}], v[{Q+4}:{Q+7}], v[{SB}:{SB+15}]
    """)
    if JL: j_sel(); j_zero(20, 99)
    A(f"""
    s_waitcnt lgkmcnt(0)
    v_pk_add_f32 v[{RD}:{RD+1}], v[{RD}:{RD+1}], v[{RD+4}:{RD+5}]
    v_pk_add_f32 v[{RD+2}:{RD+3}], v[{RD+2}:{RD+3}], v[{RD+6}:{RD+7}]
    """)
    if E8:
        A(f"""
        v_pk_add_f32 v[{RD+12}:{RD+13}], v[{RD+12}:{RD+13}], v[{RD+16}:{RD+17}]
        v_pk_add_f32 v[{RD+14}:{RD+15}], v[{RD+14}:{RD+15}], v[{RD+18}:{RD+19}]
        v_pk_add_f32 v[{RD}:{RD+1}], v[{RD}:{RD+1}], v[{RD+12}:{RD+13}]
        v_pk_add_f32 v[{RD+2}:{RD+3}], v[{RD+2}:{RD+3}], v[{RD+14}:{RD+15}]
        s_cmp_lg_u32 s40, 7
        s_cbranch_scc1 KJ_NOZ
        v_lshlrev_b32 v4, 2, v0
        v_add_u32 v5, {ZRED}, v4
        ds_read_b32 v{RD+8}, v5
        ds_read_b32 v{RD+9}, v5 offset:256
        ds_read_b32 v{RD+10}, v5 offset:512
        ds_read_b32 v{RD+11}, v5 offset:768
        s_waitcnt lgkmcnt(0)
        v_add_f32 v{RD+8}, v{RD+8}, v{RD+9}
        v_add_f32 v{RD+10}, v{RD+10}, v{RD+11}
        v_add_f32 v{RD+8}, v{RD+8}, v{RD+10}
        KJ_NOZ:
        """)
    else:
        A(f"""
        s_cmp_lg_u32 s40, 7
        buffer_store_dwordx4 v[{RD}:{RD+3}], v3, s[32:35], s79 offen sc1
        s_cbranch_scc1 KJ_NOZ
        v_lshlrev_b32 v4, 2, v0
        v_add_u32 v5, {ZRED}, v4
        ds_read_b32 v{RD+8}, v5
        ds_read_b32 v{RD+9}, v5 offset:256
        s_waitcnt lgkmcnt(0)
        v_add_f32 v{RD+8}, v{RD+8}, v{RD+9}
        buffer_store_dword v{RD+8}, v4, s[32:35], s89 offen sc1
        KJ_NOZ:
        """)
    A.nop(6)
    A(f"v_max3_f32 v4, v{SA}, v{SA+1}, v{SA+2}")
    A(f"v_max3_f32 v5, v{SA+3}, v{SA+4}, v{SA+5}")
    for k in range(6, 14, 4):
        A(f"v_max3_f32 v4, v4, v{SA+k}, v{SA+k+1}")
        A(f"v_max3_f32 v5, v5, v{SA+k+2}, v{SA+k+3}")
    A(f"v_max3_f32 v4, v4, v{SA+14}, v{SA+15}")
    for k in range(0, 16, 4):
        A(f"v_max3_f32 v4, v4, v{SB+k}, v{SB+k+1}")
        A(f"v_max3_f32 v5, v5, v{SB+k+2}, v{SB+k+3}")
    A("v_max_f32 v4, v4, v5")
    A("v_mov_b32 v5, v4")
    A.nop(2)
    A("v_permlane32_swap_b32 v4, v5")
    A("s_nop 0")
    A("v_max_f32 v4, v4, v5")
    A(f"v_add_f32 v4, {fhex(BIAS)}, v4")
    if cfg.get("np") == "1":
        for i in range(2): A(f"v_sub_f32 v{NEGM+i}, 0, v4")
        for i in range(2, 16, 2): A(f"v_pk_mov_b32 v[{NEGM+i}:{NEGM+i+1}], v[{NEGM}:{NEGM+1}], v[{NEGM}:{NEGM+1}] op_sel:[0,1]")
    else:
        for i in range(16):
            A(f"v_sub_f32 v{NEGM+i}, 0, v4")
    for k in range(8):
        A(f"v_pk_add_f32 v[{SA+2*k}:{SA+2*k+1}], v[{SA+2*k}:{SA+2*k+1}], v[{NEGM}:{NEGM+1}]")
    DX = int(cfg.get("dx", 0))
    def chunk2():
        A(f"""
        s_lshl_b32 s47, s40, 11
        s_add_u32 m0, s47, {2*16384}
        s_lshl_b32 s38, s41, 1
        s_add_u32 s38, s38, 2
        s_and_b32 s38, s38, 15
        s_lshl_b32 s38, s38, 14
        s_add_u32 s38, s38, s47
        s_add_u32 s81, s38, s70
        buffer_load_dwordx4 v3, s[32:35], s81 offen sc1 lds
        buffer_load_dwordx4 v3, s[32:35], s81 offen offset:1024 sc1 lds
        """)
    if DX:
        assert E8 and cfg.get("prof") != "2" and 1 <= DX <= 3
        DP = cfg.get("dp", "1")
        if DP == "2": poll_issue(A, 47, 46, 32, "s78")
        if DP == "3": poll_issue(A, 45, 46, 32, "s78")
        A(f"""
        buffer_store_dwordx4 v[{RD}:{RD+3}], v3, s[32:35], s79 offen sc1
        s_cmp_lg_u32 s40, 7
        s_cbranch_scc1 KJ_NOZ2
        v_lshlrev_b32 v4, 2, v0
        buffer_store_dword v{RD+8}, v4, s[32:35], s89 offen sc1
        KJ_NOZ2:
        """)
    elif E8:
        A("s_waitcnt vmcnt(0)")
        poll_check(A, 47, 46, 32, "s78", "P1")
        A(f"""
        buffer_store_dwordx4 v[{RD}:{RD+3}], v3, s[32:35], s79 offen sc1
        s_cmp_lg_u32 s40, 7
        s_cbranch_scc1 KJ_NOZ2
        v_lshlrev_b32 v4, 2, v0
        buffer_store_dword v{RD+8}, v4, s[32:35], s89 offen sc1
        KJ_NOZ2:
        s_lshl_b32 s47, s40, 11
        s_add_u32 m0, s47, {2*16384}
        s_lshl_b32 s38, s41, 1
        s_add_u32 s38, s38, 2
        s_and_b32 s38, s38, 15
        s_lshl_b32 s38, s38, 14
        s_add_u32 s38, s38, s47
        s_add_u32 s81, s38, s70
        buffer_load_dwordx4 v3, s[32:35], s81 offen sc1 lds
        buffer_load_dwordx4 v3, s[32:35], s81 offen offset:1024 sc1 lds
        """)
    vstamp(A, cfg, 6, PR)
    est(A, cfg, 10, PR)
    if cfg.get("prof") == "2":
        A("s_mov_b32 s100, 15"); A(f"v_mov_b32 v{PR}, 0"); bstamp(A, cfg, 2); A("s_mov_b32 s100, 0")
    def dma_ops():
        a = ["s_mov_b32 m0, s72", "s_add_u32 s81, s70, s71", "s_add_u32 s72, s72, 16384",
             "buffer_load_dwordx4 v3, s[32:35], s81 offen sc1 lds"]
        b = ["buffer_load_dwordx4 v3, s[32:35], s81 offen offset:1024 sc1 lds",
             f"s_and_b32 s72, s72, {RING-1}", "s_add_u32 s71, s71, 16384", "s_and_b32 s71, s71, 0x3ffff"]
        return a, b
    def dma_chunk():
        a, b = dma_ops()
        for l in a + b: A(l)
    class LQ:
        def __init__(s, init): s.q = list(init)
        def rd(s, tag, text):
            def f(): A(text); s.q.append(tag)
            return f
        def wait(s, *tags):
            idx = max([k for k, t in enumerate(s.q) if t in tags], default=-1)
            if idx < 0: return
            A(f"s_waitcnt lgkmcnt({min(15, len(s.q) - 1 - idx)})")
            s.q = s.q[idx+1:]
    LQM = [None]
    def tile(i, Sa, Sb, sideA=(), sideB=(), end=()):
        e = lambda k: f"v_exp_f32 v{Sa+k}, v{Sa+k}"
        c = lambda k: f"v_cvt_pk_bf16_f32 v{P+k}, v{Sa+2*k}, v{Sa+2*k+1}"
        QK0 = f"v_mfma_f32_32x32x16_bf16 v[{Sb}:{Sb+15}], v[{K0}:{K0+3}], v[{Q}:{Q+3}], v[{NEGM}:{NEGM+15}]"
        QK1 = f"v_mfma_f32_32x32x16_bf16 v[{Sb}:{Sb+15}], v[{K1}:{K1+3}], v[{Q+4}:{Q+7}], v[{Sb}:{Sb+15}]"
        PV0 = f"v_mfma_f32_32x32x16_bf16 v[{O}:{O+15}], v[{V0}:{V0+3}], v[{P}:{P+3}], v[{O}:{O+15}]"
        PV1 = f"v_mfma_f32_32x32x16_bf16 v[{O}:{O+15}], v[{V1}:{V1+3}], v[{P+4}:{P+7}], v[{O}:{O+15}]"
        L0 = f"v_mfma_f32_16x16x32_bf16 v[{L}:{L+3}], v[{SEL}:{SEL+3}], v[{P}:{P+3}], v[{L}:{L+3}]"
        L1 = f"v_mfma_f32_16x16x32_bf16 v[{L}:{L+3}], v[{SEL}:{SEL+3}], v[{P+4}:{P+7}], v[{L}:{L+3}]"
        W = "s_waitcnt lgkmcnt(3)"
        def addr(tt, fr):
            return (f"v1 offset:{tt*4096+fr*1024}" if tt < 4 else f"v2 offset:{(tt-4)*4096+fr*1024}")
        rK0 = f"ds_read_b128 v[{K0}:{K0+3}], {addr(i+2, 0)}"; rK1 = f"ds_read_b128 v[{K1}:{K1+3}], {addr(i+2, 1)}"
        rV0 = f"ds_read_b128 v[{V0}:{V0+3}], {addr(i+1, 2)}"; rV1 = f"ds_read_b128 v[{V1}:{V1+3}], {addr(i, 3)}"
        WV1 = WK0 = WK1 = WV0 = W
        lq = LQM[0]
        if lq:
            WV1, WK0, WK1, WV0 = [(lambda t=t: lq.wait(t)) for t in ("V1", "K0", "K1", "V0")]
            rV1, rK0, rK1, rV0 = lq.rd("V1", rV1), lq.rd("K0", rK0), lq.rd("K1", rK1), lq.rd("V0", rV0)
        seq = [e(0), e(1), WV1, PV1, rV1, *sideA, e(2), e(3), e(4), e(5), WK0, QK0, rK0, e(6), e(7), c(0), c(1), L1, c(2), c(3), e(8), WK1, QK1, rK1,
               *sideB, e(9), e(10), e(11), WV0, PV0, rV0, e(12), e(13), e(14), L0, e(15), c(4), c(5), c(6), c(7), *end]
        for x in seq:
            if callable(x): x()
            else: A(x)
    PRIO = [int(c) for c in cfg.get("prio", "3210")]
    def period(sides=None, dma=True, head=False):
        if head and DX:
            A("s_cmp_eq_u32 s60, 0"); A("s_cbranch_scc1 K2_ND")
            dma_chunk()
            A.label("K2_ND")
        elif dma: dma_chunk()
        for i in range(4):
            sa, sb, en = (sides or {}).get(i, ((), (), ()))
            if head and DX and i == 2:
                A(f"""
                s_cmp_eq_u32 s60, 1
                s_cbranch_scc0 K2_N2
                s_waitcnt vmcnt(5)
                s_barrier
                K2_N2:
                """)
            if cfg.get("prio"): A(f"s_setprio {PRIO[i]}")
            tile(i, SA if i % 2 == 0 else SB, SB if i % 2 == 0 else SA, sa, sb, en)
            if head and DX and i == DX - 1:
                A("s_cmp_eq_u32 s60, 0"); A("s_cbranch_scc1 K2_P0X"); A.label("K2_P0R")
        A(f"""
        v_mov_b32 v1, v2
        v_add_u32 v2, 16384, v2
        v_and_b32 v2, {RING-1}, v2
        """)
    if DX:
        A("s_branch K2_LOOP")
        A.label("K2_P0X")
        if DP == "3":
            A("""
            s_waitcnt vmcnt(2)
            v_cmp_eq_u32 vcc, 1, v47
            s_cmp_eq_u64 vcc, -1
            s_cbranch_scc1 K2_P0K
            s_waitcnt vmcnt(1)
            v_mov_b32 v47, v45
            """)
        else:
            A("s_waitcnt vmcnt(1)")
        poll_check(A, 47, 46, 32, "s78", "P1")
        A.label("K2_P0K")
        chunk2()
        dma_chunk()
        A("s_branch K2_P0R")
    A.label("K2_LOOP")
    period(head=True)
    if DX:
        A(f"""
        s_add_u32 s60, s60, 1
        s_cmp_eq_u32 s60, 1
        s_cbranch_scc0 K2_W2
        s_waitcnt vmcnt(4)
        s_branch K2_W4
        K2_W2:
        s_waitcnt vmcnt(2)
        K2_W4:
        s_cmp_lg_u32 s60, s61
        s_barrier
        s_cbranch_scc1 K2_LOOP
        """)
    elif cfg.get("prof") == "2":
        pbar(A, cfg, "s_waitcnt vmcnt(2)")
        A("""
        s_add_u32 s60, s60, 1
        s_cmp_lg_u32 s60, s61
        s_cbranch_scc1 K2_LOOP
        """)
    else:
        A(f"""
        s_add_u32 s60, s60, 1
        s_cmp_lg_u32 s60, s61
        s_waitcnt vmcnt(2)
        s_barrier
        s_cbranch_scc1 K2_LOOP
        """)
    A(f"""
    s_cmp_eq_u32 s60, 1
    s_cbranch_scc1 KD_1
    s_cmp_eq_u32 s60, 3
    s_cbranch_scc1 KD_3
    s_cmp_eq_u32 s60, 4
    s_cbranch_scc1 KD_4
    s_branch KD_7
    KD_1:
    s_mov_b32 s61, 3
    """)
    set_flag(A, "s68")
    A(f"""
    s_branch K2_LOOP
    KD_3:
    v_lshlrev_b32 v46, 2, v0
    s_mov_b32 s61, 4
    """)
    poll_issue(A, 47, 46, 32, "s77")
    A("s_branch K2_LOOP")
    A.label("KD_4")
    vstamp(A, cfg, 7, PR)
    poll_check(A, 47, 46, 32, "s77", "PK")
    KVP = 192; ZP = 224
    A(f"""
    s_cmp_eq_u32 s40, 4
    s_cselect_b32 s84, 1, 0          ; wave 4 also reduces z
    """)
    def kvload(rr):
        def f():
            A(f"buffer_load_dwordx4 v[{KVP+4*rr}:{KVP+4*rr+3}], v3, s[32:35], s75 offen sc1")
            A("s_add_u32 s75, s75, 8192")
        return f
    def zload(rr):
        def f():
            j = A.uid("KZ")
            A("s_cmp_eq_u32 s84, 0"); A(f"s_cbranch_scc1 {j}")
            A(f"buffer_load_dword v{ZP+rr}, v46, s[32:35], s76 offen offset:{256*rr} sc1")
            A(f"buffer_load_dword v{ZP+rr+1}, v46, s[32:35], s76 offen offset:{256*rr+256} sc1")
            A.label(j)
        return f
    period({i: ((kvload(2*i),), (kvload(2*i+1),), (zload(2*i),)) for i in range(4)})
    pbar(A, cfg, "s_waitcnt vmcnt(10)")
    def kvsum():
        A("s_waitcnt vmcnt(2)")
        A(f"""
        s_lshr_b32 s47, s40, 1
        s_lshl_b32 s47, s47, 10
        s_and_b32 s38, s40, 1
        s_lshl_b32 s38, s38, 3
        s_add_u32 s47, s47, s38
        s_add_u32 s47, s47, {KVT_L}
        v_add_u32 v4, s47, v3            ; kvT write address
        """)
        b = KVP
        for rr in range(1, 8):
            A(f"v_pk_add_f32 v[{b}:{b+1}], v[{b}:{b+1}], v[{b+4*rr}:{b+4*rr+1}]")
            A(f"v_pk_add_f32 v[{b+2}:{b+3}], v[{b+2}:{b+3}], v[{b+4*rr+2}:{b+4*rr+3}]")
        A(f"v_cvt_pk_bf16_f32 v{b}, v{b}, v{b+1}")
        A(f"v_cvt_pk_bf16_f32 v{b+1}, v{b+2}, v{b+3}")
        A(f"ds_write_b64 v4, v[{b}:{b+1}]")
        j = A.uid("KZS")
        A("s_cmp_eq_u32 s84, 0"); A(f"s_cbranch_scc1 {j}")
        for rr in range(1, 8):
            A(f"v_add_f32 v{ZP}, v{ZP}, v{ZP+rr}")
        A(f"""
        v_lshlrev_b32 v5, 1, v0
        v_add_u32 v5, {Z_L}, v5          ; z write address (lane = f)
        v_cvt_pk_bf16_f32 v{ZP}, v{ZP}, v{ZP}
        ds_write_b16 v5, v{ZP}
        """)
        A.label(j)
    period({1: ((), (), (kvsum,))})
    pbar(A, cfg, None)
    A(f"""
    s_mov_b32 s60, 6
    s_mov_b32 s61, 7
    {"s_lshr_b32 s47, s40, 2" if XT8 else "s_mov_b32 s47, 0"}
    s_xor_b32 s47, s47, s40
    s_and_b32 s47, s47, {1 if E8 else 5}
    s_cmp_lg_u32 s47, 1
    s_cbranch_scc1 K2_LOOP
    """)
    KVT, ZR, NUM, DEN, OA = 192, 208, 224, 240, 244
    A(f"""
    v_add_u32 v4, {KVT_L}, v3
    v_lshrrev_b32 v5, 5, v0
    v_lshlrev_b32 v5, 3, v5
    v_add_u32 v5, {Z_L}, v5          ; Z + hh*8
    """)
    for s in range(4):
        A(f"ds_read_b128 v[{KVT+4*s}:{KVT+4*s+3}], v4 offset:{s*1024}")
        A(f"ds_read_b64 v[{ZR+4*s}:{ZR+4*s+1}], v5 offset:{32*s}")
        A(f"ds_read_b64 v[{ZR+4*s+2}:{ZR+4*s+3}], v5 offset:{32*s+16}")
    def zmask():
        A("v_bfe_u32 v4, v0, 2, 1")
        A("v_bfe_u32 v5, v0, 4, 1")
        A("v_cmp_eq_u32 vcc, v4, v5")
        A("v_mov_b32 v4, 0")
        A("s_nop 0")
        for k in range(16): A(f"v_cndmask_b32 v{ZR+k}, v4, v{ZR+k}, vcc")
    def amfma(t):
        def f():
            for s in range(4):
                c = "0" if s == 0 else f"v[{NUM}:{NUM+15}]"
                A(f"v_mfma_f32_32x32x16_bf16 v[{NUM}:{NUM+15}], v[{KVT+4*s}:{KVT+4*s+3}], v[{PHQ+16*t+4*s}:{PHQ+16*t+4*s+3}], {c}")
                c = "0" if s == 0 else f"v[{DEN}:{DEN+3}]"
                A(f"v_mfma_f32_16x16x32_bf16 v[{DEN}:{DEN+3}], v[{ZR+4*s}:{ZR+4*s+3}], v[{PHQ+16*t+4*s}:{PHQ+16*t+4*s+3}], {c}")
        return f
    def afin():
        A(f"v_add_f32 v4, {fhex(1e-6)}, v{DEN}")
        A("v_rcp_f32 v4, v4")
        A("s_nop 0")
        for k in range(8):
            A(f"v_pk_mul_f32 v[{NUM+2*k}:{NUM+2*k+1}], v[{NUM+2*k}:{NUM+2*k+1}], v[4:5] op_sel_hi:[1,0]")
        cvt_tile(A, OA, NUM)
        A(f"buffer_store_dwordx4 v[{OA}:{OA+3}], v3, s[32:35], s74 offen sc1")
        A(f"buffer_store_dwordx4 v[{OA+4}:{OA+7}], v3, s[32:35], s74 offen offset:1024 sc1")
        A("s_add_u32 s74, s74, 65536")
    if E8:
        period({0: ((), (), (zmask, amfma(0))), 1: ((), (), (afin, amfma(1))), 2: ((), (), (afin,))})
        pbar(A, cfg, "s_waitcnt vmcnt(6)")
    else:
        period({0: ((), (), (zmask, amfma(0))), 1: ((), (), (afin, amfma(1))), 2: ((), (), (afin, amfma(2))), 3: ((), (), (afin, amfma(3)))})
        A.nop(12)
        afin()
        pbar(A, cfg, "s_waitcnt vmcnt(10)")
    P16 = cfg.get("p16")
    A.label("KD_7")
    A(f"""
    s_mov_b32 s60, 7
    v_and_b32 v45, 31, v0
    v_lshlrev_b32 v45, 2, v45        ; (l&31)*4
    v_lshlrev_b32 v35, 2, v0         ; lane*4
    v_lshrrev_b32 v4, 3, v0
    v_lshlrev_b32 v5, 11, v4         ; row*2048
    v_and_b32 v7, 7, v0
    v_bfe_u32 v6, v0, 4, {2 if P16 else 1}
    v_lshlrev_b32 v6, {1 if P16 else 2}, v6
    v_xor_b32 v7, v7, v6
    v_lshl_add_u32 v5, v7, 4, v5
    s_lshl_b32 s47, s18, 9
    s_lshl_b32 s38, s19, 4
    s_add_u32 s47, s47, s38
    s_lshl_b32 s47, s47, 11
    s_lshl_b32 s38, s17, 7
    s_add_u32 s47, s47, s38          ; + C*128
    v_add_u32 v36, s47, v5           ; piece 0
    v_add_u32 v37, {16384 - 1024}, v36 ; piece 1 (with offset:1024)
    v_lshrrev_b32 v7, 5, v0          ; hh
    v_bfe_u32 v6, v0, 2, 2           ; i>>2
    v_lshl_add_u32 v7, v7, 2, v6
    v_lshlrev_b32 v7, 7, v7
    v_bfe_u32 v6, v0, 4, 1
    v_bfe_u32 v5, v0, 1, 1
    v_lshl_add_u32 v6, v6, 1, v5
    v_bfe_u32 v5, v0, 3, 1
    v_lshlrev_b32 v5, 2, v5
    v_xor_b32 v6, v6, v5
    v_lshl_add_u32 v7, v6, 4, v7
    v_and_b32 v5, 1, v0
    v_lshl_add_u32 v7, v5, 3, v7
    s_lshl_b32 s38, s18, 13
    v_add_u32 v38, s38, v7           ; cb=0
    v_xor_b32 v39, 64, v38           ; cb=1
    s_add_u32 s80, s30, {WSL(0)}
    """)
    if P16:
        A(f"""
        v_lshrrev_b32 v4, 4, v0          ; q4
        v_and_b32 v5, 15, v0             ; i
        v_lshlrev_b32 v39, 4, v5
        v_lshl_add_u32 v39, v4, 9, v39   ; o : q4 * 512 + i * 16
        v_lshrrev_b32 v6, 1, v4
        v_lshlrev_b32 v6, 4, v6          ; 16 fr
        v_and_b32 v7, 1, v4
        v_lshl_add_u32 v6, v7, 2, v6     ; + 4 hh
        v_lshrrev_b32 v5, 2, v5
        v_add_u32 v6, v6, v5             ; k row
        v_lshlrev_b32 v38, 7, v6
        v_bfe_u32 v6, v6, 1, 2           ; (row >> 1) & 3
        v_lshl_add_u32 v38, v6, 5, v38
        v_and_b32 v5, 3, v0
        v_lshl_add_u32 v38, v5, 3, v38
        v_add_u32 v38, s38, v38
        v_and_b32 v45, 15, v0
        v_lshlrev_b32 v45, 2, v45        ; (l&15)*4
        """)
    def wo_ops(m0src):
        a = [m0src, "s_nop 0", "buffer_load_dwordx4 v36, s[20:23], s29 offen lds"]
        b = ["buffer_load_dwordx4 v37, s[20:23], s29 offen offset:1024 lds", f"s_add_u32 s29, s29, {64*2048}"]
        return a, b
    A.label("K2_LOOPB")
    wa, wb = wo_ops("s_mov_b32 m0, s80")
    wb = wb + ["s_add_u32 s80, s80, 16384"]
    ca, cb_ = dma_ops()
    period({0: (tuple(wa), tuple(wb), ()), 1: (tuple(wa), tuple(wb), ()), 2: (tuple(ca), tuple(cb_), ())}, dma=False)
    if cfg.get("prof") == "2":
        pbar(A, cfg, "s_waitcnt vmcnt(6)")
        A("""
        s_add_u32 s60, s60, 1
        s_cmp_eq_u32 s60, 10
        """)
    else:
        A("""
        s_add_u32 s60, s60, 1
        s_cmp_eq_u32 s60, 10
        s_waitcnt vmcnt(6)
        s_barrier
        """)
    A(f"""
    s_cbranch_scc1 KB_10
    s_cmp_eq_u32 s60, 9
    s_cbranch_scc1 KB_9
    s_and_b32 s47, s40, 5
    s_cmp_lg_u32 s47, 1
    s_cbranch_scc1 K2_LOOPB
    """)
    set_flag(A, "s88")
    A("s_branch K2_LOOPB")
    A.label("KB_9")
    poll_issue(A, 47, 35, 32, "s36")
    A("s_branch K2_LOOPB")
    A.label("KB_10")
    vstamp(A, cfg, 8, PR)
    poll_check(A, 47, 35, 32, "s36", "PA")
    G, OMG = 32, 34
    OF = 128
    vm = VM(A, ["W4", "W4", "W5", "W5", "c12", "c12"])
    vm.now("G", f"buffer_load_dword v{G}, v45, s[32:35], s31 offen sc1")
    if P16: vm.now("G", f"buffer_load_dword v35, v45, s[32:35], s31 offen offset:64 sc1")
    OV = 39 if P16 else 3
    ooff = (lambda j: (j >> 1)*2048 + (j & 1)*256) if P16 else (lambda j: j*1024)
    nld = [0]
    AE = int(cfg.get("ae", 0))
    assert AE in (0, 4, 5) and not (AE and P16)
    OFA = (lambda s: OF + 16*(s % 5)) if AE else (lambda s: OF + 16*s)
    ACE, WE, WEA = 224, (208, 216), 116
    def oload():
        k = nld[0]; nld[0] += 1
        s, j = divmod(k, 4)
        r = OFA(s) + 4*j
        def f():
            vm.now(f"o{k}" if AE else "o", f"buffer_load_dwordx4 v[{r}:{r+3}], v{OV}, s[32:35], s28 offen offset:{ooff(j)} sc1")
            if j == 3: A("s_add_u32 s28, s28, 4096")
        return f
    if AE:
        A(f"v_add_u32 v{WEA}, {WSL(0)}, v38")
        A(f"v_add_u32 v{WEA+1}, {WSL(0)}, v39")
        LQM[0] = LQ(["V1", "K0", "K1", "V0"])
    def ae_read(k, cb):
        s, j = divmod(k, 4)
        fs = []
        for sec in range(2):
            r = WE[k & 1] + 4*cb + 2*sec
            fs.append(LQM[0].rd(f"w{k}{cb}", f"ds_read_b64_tr_b16 v[{r}:{r+1}], v{WEA+cb} offset:{s*16384 + (16*j+8*sec)*128}"))
        return tuple(fs)
    def ae_mfma(k, cb):
        s, j = divmod(k, 4)
        def f():
            vm.wait(f"o{k}"); LQM[0].wait(f"w{k}{cb}")
            a = ACE + 16*cb; w = WE[k & 1] + 4*cb; o = OFA(s) + 4*j
            A(f"v_mfma_f32_32x32x16_bf16 v[{a}:{a+15}], v[{w}:{w+3}], v[{o}:{o+3}], " + ("0" if k == 0 else f"v[{a}:{a+15}]"))
        return f
    def lines(tag, ls):
        def f():
            for l in ls:
                if l.startswith("buffer_"): vm.now(tag, l)
                else: A(l)
        return f
    BT = int(cfg.get("btouch", 0))
    def btouch():
        A(f"""
        s_and_b32 s47, s16, 3
        s_lshl_b32 s47, s47, 3
        s_add_u32 s47, s47, s40
        s_lshl_b32 s47, s47, 5           ; first row : (T&3)*256 + wave*32
        v_add_u32 v44, s47, v0
        v_lshlrev_b32 v44, 11, v44
        s_lshl_b32 s47, s17, 7
        v_add_u32 v44, s47, v44
        v_mov_b32 v4, 0x7ffffff0
        v_cmp_gt_u32 vcc, 32, v0
        s_mov_b32 s92, s6
        s_mov_b32 s93, s7
        s_mov_b32 s94, {1024*2048}
        s_mov_b32 s95, 0x00020000
        v_cndmask_b32 v44, v4, v44, vcc
        """)
        vm.now("T", "buffer_load_dword v44, v44, s[92:95], 0 offen")
    for n in range(10, 16):
        sides = {}
        if n <= 12:
            a, b = dma_ops()
            sides[0] = ((lines(f"c{n+3}", a),), (lines(f"c{n+3}", b),), (oload(),))
            sides[1] = ((oload(),), (oload(),), ())
            if AE == 5 and n == 12:
                sides[2] = ((), (), ()); sides[3] = ((), (), ())
                sides[1] = ((oload(),), (oload(),), ())
            else:
                sides[2] = ((oload(),), (oload(),), ())
                sides[3] = ((oload(),), (), ())
        elif n <= 14:
            a, b = wo_ops(f"s_add_u32 m0, s30, {WSL(n - 7)}")
            if AE == 4:
                sides[0] = ((lines("W", a),), (lines("W", b),), (oload(),))
                sides[1] = ((oload(),), (oload(),), ())
                sides[2] = ((oload(),), (), ()) if n == 14 else ((oload(),), (oload(),), ())
                sides[3] = ((), (), ()) if n == 14 else ((oload(),), (), ())
            else:
                sides[0] = ((lines("W", a),), (lines("W", b),), (oload(),))
                sides[1] = ((oload(),), (oload(),), ())
                sides[2] = ((oload(),), (), ())
                sides[3] = ((oload(),), (), ())
        else:
            sides[0] = ((oload(),), (oload(),), ())
            sides[1] = ((oload(),), (oload(),), ())
        if n == BT: sides[3] = (sides[3][0], sides[3][1], tuple(sides[3][2]) + (btouch,))
        if AE:
            assert AE == 4
            for i in range(4):
                sa, sb, en = sides.get(i, ((), (), ()))
                k = 4*(n - (16 - AE)) + i
                if 0 <= k < 4*AE:
                    sa = (ae_mfma(k, 0),) + tuple(sa); sb = (ae_mfma(k, 1),) + tuple(sb)
                if 0 <= k + 1 < 4*AE:
                    sa = tuple(sa) + ae_read(k + 1, 0); sb = tuple(sb) + ae_read(k + 1, 1)
                sides[i] = (sa, sb, en)
        period(sides, dma=False)
        if n <= 13:
            pbar(A, cfg, lambda: vm.wait(f"c{n+2}"))
        elif cfg.get("prof") == "2":
            bstamp(A, cfg, 0); bstamp(A, cfg, 1); bstamp(A, cfg, 2)
        if n == 12: vstamp(A, cfg, 9, PR)
    assert nld[0] == 32
    A(f"""
    s_mov_b32 s60, 16
    s_waitcnt lgkmcnt(0)
    v_mfma_f32_32x32x16_bf16 v[{O}:{O+15}], v[{V1}:{V1+3}], v[{P+4}:{P+7}], v[{O}:{O+15}]
    v_mfma_f32_16x16x32_bf16 v[{L}:{L+3}], v[{SEL}:{SEL+3}], v[{P+4}:{P+7}], v[{L}:{L+3}]
    """)
    vstamp(A, cfg, 10, PR)
    rst(A, cfg, 0)
    A("v_lshlrev_b32 v45, 3, v0")
    A.nop(12)
    A.label("K2_FIN")
    A(f"v_rcp_f32 v4, v{L}")
    A("s_nop 0")
    for k in range(8):
        A(f"v_pk_mul_f32 v[{O+2*k}:{O+2*k+1}], v[{O+2*k}:{O+2*k+1}], v[4:5] op_sel_hi:[1,0]")
    FA = cfg.get("fa") == "1"
    def ob_out():
        for i in range(8):
            A(f"v_cvt_pk_bf16_f32 v{P+i}, v{O+2*i}, v{O+2*i+1}")
        A(f"buffer_store_dwordx4 v[{P}:{P+3}], v3, s[32:35], s73 offen sc1")
        A(f"buffer_store_dwordx4 v[{P+4}:{P+7}], v3, s[32:35], s73 offen offset:1024 sc1")
    if FA: ob_out()
    A("v_mov_b32 v6, 0")
    for k in range(16):
        A(f"v_fma_f32 v6, v{O+k}, 0, v6")
    A(f"""
    v_mov_b32 v7, {fhex(2.0**120)}
    v_cmp_u_f32 vcc, v6, v6
    v_cmp_nlt_f32 s[62:63], v{L}, v7
    s_or_b64 vcc, vcc, s[62:63]
    """)
    if cfg.get("force_fb"):
        A("s_mov_b64 vcc, -1")
    A(f"""
    s_cmp_eq_u32 s60, 16
    s_cselect_b64 vcc, vcc, 0
    s_cbranch_vccnz K2_FB
    """)
    if not FA: ob_out()
    EF = cfg.get("ef")
    if EF:
        A("""
        s_cmp_lt_u32 s40, 4
        s_cbranch_scc0 K3_EF1
        s_waitcnt vmcnt(0)
        """)
        set_flag(A, "s69")
        A("""
        s_branch K3_EF2
        K3_EF1:
        s_setprio 1
        s_waitcnt vmcnt(2)
        K3_EF2:
        """)
    else:
        A("s_waitcnt vmcnt(2)")
    A("s_barrier")
    vstamp(A, cfg, 11, PR)
    rst(A, cfg, 1)
    LQM[0] = None
    WFJ = [16, 24, 48, 56]
    ACCA, ACCB = (ACE if AE else 64), 96
    OFB = (lambda s: OF + 16*(s % 6)) if AE else (lambda s: OF + 16*s)
    P3V = cfg.get("p3v") in ("2", "3")
    OD = int(cfg.get("od", 8))
    P3R = cfg.get("p3v") == "3"
    BSL = lambda b: 32768 + 16384 * b if b < 2 else WSL(b - 2)
    def waddr(s, slot=WSL):
        if slot is None:
            A("v_add_u32 v40, s90, v38")
            A("v_add_u32 v41, s90, v39")
            A("s_add_u32 s90, s90, 16384")
            A("s_and_b32 s90, s90, 0x1ffff")
            return
        A(f"v_add_u32 v40, {slot(s)}, v38")
        if P16:
            A("v_xor_b32 v41, 32, v40"); A("v_xor_b32 v42, 64, v40"); A("v_xor_b32 v43, 0x60, v40")
        else:
            A(f"v_add_u32 v41, {slot(s)}, v39")
    W16F = lambda hd, cg: WFJ[2*hd + (cg >> 1)] + 4*(cg & 1)
    def wread16(hd, cg):
        for sec in range(2):
            r = W16F(hd, cg) + 2*sec
            A(f"ds_read_b64_tr_b16 v[{r}:{r+1}], v{40+cg} offset:{(32*hd+8*sec)*128}")
    def gemm16(acc_, after, owait, slot=WSL, inl={}, stamp=None, fs_tail=None):
        waddr(0, slot)
        A("s_nop 0")
        for hd in range(2):
            for cg in range(4): wread16(hd, cg)
        OX = [int(x) for x in cfg.get("ox", "0:0").split(":")]
        iss = [4 * OD]
        for t in range(32): iss.append(min(32, iss[-1] + (2 if OX[0] <= t < OX[1] else 1)))
        def jbody(s, j, more=0):
            last = s == 7
            hd, b = j >> 1, j & 1
            if owait: A(f"s_waitcnt vmcnt({iss[4*s + j] - (4*s + j) - 1})")
            for cg in range(4):
                if b == 0: A(f"s_waitcnt lgkmcnt({2*(3 - cg) + (0 if (last and hd == 1) else 8) + more})")
                w = W16F(hd, cg); o = OF + 16*s + 4*j; a = acc_ + 4*(2*cg + b)
                c = "0" if (s == 0 and hd == 0) else f"v[{a}:{a+3}]"
                A(f"v_mfma_f32_16x16x32_bf16 v[{a}:{a+3}], v[{w}:{w+3}], v[{o}:{o+3}], {c}")
                if b == 1 and not last: wread16(hd, cg)
            if j == 0 and not last: waddr(s + 1, slot)
            for l in inl.get((s, j), []):
                if callable(l): l()
                else: A(l)
            if owait:
                for n in range(iss[4*s + j], iss[4*s + j + 1]): o_load(n >> 2, n & 3)
        for s in range(8):
            for j in range(4):
                if fs_tail and s == 7 and j == 2:
                    A("s_cmp_eq_u32 s18, 0"); A("s_cbranch_scc1 K3_G0T")
                    A("s_barrier")
                    for q in range(8): A(f"ds_read_b128 v[{OF+4*q}:{OF+4*q+3}], v4 offset:{q*1024}")
                    jbody(7, 2, 8); jbody(7, 3, 8)
                    if stamp is not None: rst(A, cfg, stamp + s)
                    fs_tail()
                    A.label("K3_G0T")
                jbody(s, j)
            if s in after: after[s]()
            if stamp is not None and cfg.get("prof") == "5" and (s in (1, 3, 5, 7) or owait):
                rst(A, cfg, stamp + s)
    def wreads(j):
        for cb in range(2):
            for sec in range(2):
                r = WFJ[j] + 4*cb + 2*sec
                A(f"ds_read_b64_tr_b16 v[{r}:{r+1}], v{40+cb} offset:{(16*j+8*sec)*128}")
    def gemm(acc_, after, owait, slot=WSL, inl={}, stamp=None, s0=0, fs_tail=None):
        if P16: return gemm16(acc_, after, owait, slot, inl, stamp, fs_tail)
        waddr(s0, slot)
        for j in range(4): wreads(j)
        for s in range(s0, 8):
            last = s == 7
            for j in range(4):
                if owait: A(f"s_waitcnt vmcnt({min(4*OD + 4*s + j, 32) - (4*s + j) - 1 + (4 if (AE and 4*s + j < 4*OD) else 0)})")
                for cb in range(2):
                    n = (14 - 2*cb) if not last else (14 - 4*j - 2*cb)
                    A(f"s_waitcnt lgkmcnt({n})")
                    w = WFJ[j] + 4*cb; o = (OFB(s) if owait else OFA(s)) + 4*j; a = acc_ + 16*cb
                    c = "0" if (s == 0 and j == 0) else f"v[{a}:{a+15}]"
                    A(f"v_mfma_f32_32x32x16_bf16 v[{a}:{a+15}], v[{w}:{w+3}], v[{o}:{o+3}], {c}")
                if not last:
                    if j == 0: waddr(s + 1, slot)
                    wreads(j)
                for l in inl.get((s, j), []):
                    if callable(l): l()
                    else: A(l)
                if owait and s + OD < 8: o_load(s + OD, j)
            if s in after: after[s]()
            if stamp is not None and cfg.get("prof") == "5" and (s in (1, 3, 5, 7) or owait):
                rst(A, cfg, stamp + s)
    def refill(s0):
        for s in range(s0, s0 + 4):
            a, b = wo_ops(f"s_add_u32 m0, s30, {WSL(s)}")
            for l in a + b: A(l)
    def a_flag():
        A("s_waitcnt vmcnt(0)")
        set_flag(A, "s69")
    def a_mid():
        A("s_barrier")
        A("""
        s_mov_b32 s20, s6
        s_mov_b32 s21, s7
        s_mov_b32 s29, 0
        """)
        refill(0)
    def a_poll():
        poll_issue(A, 46, 45, 32, "s83", n=2)
    FBPOS = int(cfg.get("fbpos", 2))
    RB0 = 32768 if P3V else 0
    NZ = cfg.get("nz") == "1"
    if NZ:
        assert cfg.get("fs") == "1"
        RB0 = 0
    def out_addr():
        A(f"""
        v_sub_f32 v{OMG}, 1.0, v{G}
        {"v_sub_f32 v46, 1.0, v35" if P16 else ""}
        v_and_b32 v4, {15 if P16 else 31}, v0
        s_lshl_b32 s38, s19, 5
        v_add_u32 v4, s38, v4
        v_mul_u32_u24 v4, {K3_ROW}, v4
        v_lshrrev_b32 v5, {4 if P16 else 5}, v0
        v_lshl_add_u32 v4, v5, 4, v4
        s_mul_i32 s38, s18, {K3_RED}
        {f"s_add_u32 s38, s38, {RB0}" if RB0 else ""}
        v_add_u32 v4, s38, v4            ; write address
        s_lshl_b32 s38, s40, 6
        v_add_u32 v10, s38, v0           ; tid
        v_lshrrev_b32 v5, 3, v10
        v_and_b32 v6, 7, v10             ; chunk
        v_mul_u32_u24 v7, {K3_ROW}, v5
        v_lshl_add_u32 v7, v6, 5, v7     ; read address
        {f"v_add_u32 v7, {RB0}, v7" if RB0 else ""}
        s_lshl_b32 s38, s16, 7
        v_add_u32 v5, s38, v5
        v_lshlrev_b32 v5, 11, v5
        v_lshl_add_u32 v5, v6, 4, v5
        s_lshl_b32 s38, s17, 7
        v_add_u32 v5, s38, v5            ; out offset
        """)
    FS = cfg.get("fs") == "1"
    assert not FS or (P16 and P3V and not AE and not P3R)
    def out_addr_fs():
        A(f"""
        v_sub_f32 v{OMG}, 1.0, v{G}
        v_sub_f32 v46, 1.0, v35
        s_lshl_b32 s38, s19, 13
        s_add_u32 s38, s38, {RB0}
        v_lshl_add_u32 v4, v0, 4, s38
        v_and_b32 v5, 15, v0
        s_lshl_b32 s38, s16, 7
        s_lshl_b32 s47, s19, 5
        s_add_u32 s38, s38, s47
        v_add_u32 v5, s38, v5            ; token
        v_lshlrev_b32 v5, 11, v5
        v_lshrrev_b32 v6, 4, v0
        v_lshl_add_u32 v5, v6, 4, v5
        s_lshl_b32 s38, s17, 7
        v_add_u32 v5, s38, v5            ; out offset
        v_add_u32 v6, {16*2048}, v5      ; tokens 16..31
        """)
    def prof_out():
        if cfg.get("prof"):
            A("s_waitcnt vmcnt(0)")
            vstamp(A, cfg, 14, PR)
            rst(A, cfg, 24)
            A(f"""
            s_mov_b32 s92, s14
            s_mov_b32 s93, s15
            s_mov_b32 s94, {64*MB}
            s_mov_b32 s95, 0x00020000
            s_lshl_b32 s90, s2, 3
            s_add_u32 s90, s90, s40
            s_lshl_b32 s90, s90, {8 if cfg.get("prof") in ("2", "3", "4", "5", "6") else 7}
            s_add_u32 s90, s90, {WS_PROFV}
            v_lshlrev_b32 v1, 2, v0
            s_mov_b64 exec, {-1 if cfg.get("prof") in ("2", "3", "4", "5", "6") else "0xffffffff"}
            buffer_store_dword v{PR}, v1, s[92:95], s90 offen
            """)
    def fma_out():
        for k in range(16):
            om = 46 if (P16 and (k >> 1) & 1) else OMG
            A(f"v_pk_fma_f32 v[{ACCA+2*k}:{ACCA+2*k+1}], v[{ACCB+2*k}:{ACCB+2*k+1}], v[{om}:{om+1}], v[{ACCA+2*k}:{ACCA+2*k+1}] op_sel_hi:[1,0,1]")
    def fs_tail1():
        vstamp(A, cfg, 13, PR)
        A("s_waitcnt lgkmcnt(0)")
        D = OF + 32
        grp = [(p, b) for b in range(2) for p in range(2)]
        if cfg.get("st") == "1":
            ks = lambda b: [k for k in range(16) if ((k >> 1) & 1) == b]
            def add(b):
                for k in ks(b): A(f"v_pk_add_f32 v[{ACCA+2*k}:{ACCA+2*k+1}], v[{ACCA+2*k}:{ACCA+2*k+1}], v[{OF+2*k}:{OF+2*k+1}]")
            def fma(b):
                for k in ks(b): A(f"v_pk_fma_f32 v[{ACCA+2*k}:{ACCA+2*k+1}], v[{ACCB+2*k}:{ACCB+2*k+1}], v[{46 if b else OMG}:{(46 if b else OMG)+1}], v[{ACCA+2*k}:{ACCA+2*k+1}] op_sel_hi:[1,0,1]")
            def cvt(b):
                for g, (p, b_) in enumerate(grp):
                    if b_ != b: continue
                    x = ACCA + 4*(2*(2*p) + b); y = ACCA + 4*(2*(2*p + 1) + b); d = D + 4*g
                    A(f"v_cvt_pk_bf16_f32 v{d}, v{x}, v{x+1}")
                    A(f"v_cvt_pk_bf16_f32 v{d+1}, v{x+2}, v{x+3}")
                    A(f"v_cvt_pk_bf16_f32 v{d+2}, v{y}, v{y+1}")
                    A(f"v_cvt_pk_bf16_f32 v{d+3}, v{y+2}, v{y+3}")
            def swp(b):
                for sw in ("32", "16"):
                    for g, (p, b_) in enumerate(grp):
                        if b_ != b: continue
                        d = D + 4*g
                        A(f"v_permlane{sw}_swap_b32 v{d}, v{d+2}")
                        A(f"v_permlane{sw}_swap_b32 v{d+1}, v{d+3}")
                    if sw == "32": A("s_nop 1")
            def sto(b):
                for g, (p, b_) in enumerate(grp):
                    if b_ != b: continue
                    d = D + 4*g
                    A(f"buffer_store_dwordx4 v[{d}:{d+3}], v{5 + b}, s[24:27], 0 offen offset:{p*64} {cfg.get('ost', 'nt').replace('+', ' ')}")
            assert P16
            add(0); add(1); fma(0); cvt(0); A("s_nop 1"); swp(0); fma(1); sto(0); cvt(1); A("s_nop 1"); swp(1)
            rst(A, cfg, 22); rst(A, cfg, 23)
            sto(1)
            prof_out()
            A("s_endpgm")
            return
        for k in range(16):
            A(f"v_pk_add_f32 v[{ACCA+2*k}:{ACCA+2*k+1}], v[{ACCA+2*k}:{ACCA+2*k+1}], v[{OF+2*k}:{OF+2*k+1}]")
        fma_out()
        rst(A, cfg, 22)
        for g, (p, b) in enumerate(grp):
            x = ACCA + 4*(2*(2*p) + b); y = ACCA + 4*(2*(2*p + 1) + b); d = D + 4*g
            A(f"v_cvt_pk_bf16_f32 v{d}, v{x}, v{x+1}")
            A(f"v_cvt_pk_bf16_f32 v{d+1}, v{x+2}, v{x+3}")
            A(f"v_cvt_pk_bf16_f32 v{d+2}, v{y}, v{y+1}")
            A(f"v_cvt_pk_bf16_f32 v{d+3}, v{y+2}, v{y+3}")
        A("s_nop 1")
        for sw in ("32", "16"):
            for g in range(4):
                d = D + 4*g
                A(f"v_permlane{sw}_swap_b32 v{d}, v{d+2}")
                A(f"v_permlane{sw}_swap_b32 v{d+1}, v{d+3}")
        rst(A, cfg, 23)
        for g, (p, b) in enumerate(grp):
            d = D + 4*g
            A(f"buffer_store_dwordx4 v[{d}:{d+3}], v{5 + b}, s[24:27], 0 offen offset:{p*64} {cfg.get('ost', 'nt').replace('+', ' ')}")
        prof_out()
        A("s_endpgm")
    def scale_a():
        for k in range(16):
            if P16 and (k >> 1) & 1:
                A(f"v_pk_mul_f32 v[{ACCA+2*k}:{ACCA+2*k+1}], v[{ACCA+2*k}:{ACCA+2*k+1}], v[34:35] op_sel:[0,1] op_sel_hi:[1,1]")
            else:
                A(f"v_pk_mul_f32 v[{ACCA+2*k}:{ACCA+2*k+1}], v[{ACCA+2*k}:{ACCA+2*k+1}], v[{G}:{G+1}] op_sel_hi:[1,0]")
    def o_load(s, j):
        if j == 0:
            if s == 0: A(f"s_sub_u32 s28, s28, 32768" if cfg.get("expo") else f"s_add_u32 s28, s28, {4*MB - 32768}")
            if P3R:
                A("s_add_u32 s85, s28, s91")
                A("s_add_u32 s91, s91, 4096")
                A("s_and_b32 s91, s91, 0x7fff")
            elif s: A("s_add_u32 s28, s28, 4096")
        r = OFB(s) + 4*j
        A(f"buffer_load_dwordx4 v[{r}:{r+3}], v{OV}, s[32:35], {'s85' if P3R else 's28'} offen offset:{ooff(j)} sc1")
    def o_loads():
        for s in range(OD):
            for j in range(4): o_load(s, j)
    if P3V:
        A("""
        s_mov_b32 s20, s6
        s_mov_b32 s21, s7
        s_mov_b32 s29, 0
        """)
        inl = {}
        def bslab(b, s, j):
            a_, b_ = wo_ops(f"s_add_u32 m0, s30, {BSL(b)}")
            inl[(s, j)] = a_; inl[(s, j + 1)] = b_
        BS = cfg.get("bs", "0")
        bslab(0, 0, 0); bslab(1, 1, 0)
        if BS == "0":
            bslab(2, 4, 0); bslab(3, 4, 2); bslab(4, 5, 0); bslab(5, 5, 2)
        else:
            bslab(2, 2, 0); bslab(3, 3, 0); bslab(4, 4, 0); bslab(5, 5, 0)
        bslab(6, 6, 0); bslab(7, 6, 2)
        def a_flag2():
            if EF:
                j = A.uid("K3_F")
                A("s_cmp_lt_u32 s40, 4"); A(f"s_cbranch_scc1 {j}")
            A(f"s_waitcnt vmcnt({2 * min(FBPOS + 1, 2)})")
            set_flag(A, "s69")
            if EF:
                A("s_setprio 0")
                A.label(j)
        EP = int(cfg.get("ep", 0))
        def a_bar5():
            if EP:
                A("s_waitcnt vmcnt(7)")
                A("s_barrier")
                poll_check(A, 46, 45, 32, "s83", "PB", n=2)
                for b in (6, 7):
                    a_, b_ = wo_ops(f"s_add_u32 m0, s30, {BSL(b)}")
                    for l in a_ + b_: A(l)
                for s_ in range(EP):
                    for j in range(4): o_load(s_, j)
            else:
                A("s_barrier")
                a_poll()
        if EP:
            assert OD == EP + 2 and not P3R
            del inl[(6, 0)], inl[(6, 1)], inl[(6, 2)], inl[(6, 3)]
            inl[(4, 0)] = inl[(4, 0)] + [a_poll]
            for s_ in (6, 7):
                for j in range(4): inl[(s_, j)] = [(lambda s_=s_, j=j: o_load(EP + s_ - 6, j))]
        aft = {3: lambda: A("s_barrier"), 5: a_bar5}
        if FBPOS == 3: aft[3] = lambda: (a_flag2(), A("s_barrier"))
        else: aft[FBPOS] = a_flag2
        if BS == "1":
            assert FBPOS in (0, 1)
            if FBPOS == 1: aft[1] = lambda: (a_flag2(), A("s_barrier"))
            else: aft[1] = lambda: A("s_barrier")
        if AE:
            assert not EP and not P3R and BS == "0"
            inl.clear()
            n_ = 0
            for b in range(6):
                a_, b_ = wo_ops(f"s_add_u32 m0, s30, {BSL(b)}")
                inl[(AE + b // 4, b % 4)] = a_ + b_
            def a_flag3():
                j = A.uid("K3_F")
                if EF: A("s_cmp_lt_u32 s40, 4"); A(f"s_cbranch_scc1 {j}")
                nb = min(4 * (FBPOS + 1), 6)
                A(f"s_waitcnt vmcnt({2 * nb})")
                set_flag(A, "s69")
                if EF: A("s_setprio 0")
                A.label(j)
            AEP = int(cfg.get("aep", 6))
            assert AEP > AE + FBPOS or AEP == 7
            aft = {AE + FBPOS: a_flag3}
            aft[AEP] = a_poll if AEP != AE + FBPOS else (lambda: (a_flag3(), a_poll()))
            gemm(ACCA, aft, False, WSL, inl, 2, AE)
        else:
            gemm(ACCA, aft, False, WSL, inl, 2)
        vstamp(A, cfg, 12, PR)
        if P3R:
            RM = int(cfg.get("rmask", 6))
            A(f"""
            s_and_b32 s47, s17, {RM}         ; first slab
            s_lshl_b32 s90, s47, 14
            s_lshl_b32 s91, s47, 12
            v_add_u32 v38, 32768, v38
            v_add_u32 v39, 32768, v39
            """)
            if cfg.get("gfirst", "1") == "1":
                A("""
                s_and_b32 s47, s17, 1            ; group that loads first
                s_cmp_eq_u32 s47, s18
                s_cbranch_scc0 K3_NP
                s_setprio 1
                K3_NP:
                """)
        A(f"s_waitcnt vmcnt({4 * OD if EP else 0})")
        rst(A, cfg, 10)
        A("s_barrier")
        rst(A, cfg, 11)
        if not EP:
            poll_check(A, 46, 45, 32, "s83", "PB", n=2)
            rst(A, cfg, 12)
            o_loads()
            if AE:
                for b in (6, 7):
                    a_, b_ = wo_ops(f"s_add_u32 m0, s30, {BSL(b)}")
                    for l in a_ + b_: A(l)
            rst(A, cfg, 13)
        if cfg.get("bp"):
            j = A.uid("K3_BP")
            A(f"s_cmp_eq_u32 s18, {cfg.get('bp')[0]}"); A(f"s_cbranch_scc0 {j}"); A(f"s_setprio {cfg.get('bp')[1]}"); A.label(j)
        if FS: out_addr_fs()
        else: out_addr()
        scale_a()
        srd(A, 24, 8, 4194304)
        def zbar(g):
            def f():
                j = A.uid("K3_Z")
                A(f"s_cmp_eq_u32 s18, {g}"); A(f"s_cbranch_scc0 {j}"); A("s_barrier"); A.label(j)
            return f
        if P3R:
            gemm(ACCB, {}, True, None, {}, 14)
            vstamp(A, cfg, 13, PR)
            A("s_setprio 0")
            A("s_barrier")
            A.nop(12)
        elif AE:
            gemm(ACCB, {4: lambda: A("s_barrier")}, True, BSL, {}, 14)
            vstamp(A, cfg, 13, PR)
            A.nop(12)
        elif FS:
            aftB = {} if NZ else {int(cfg.get("zs", 4)): zbar(1)}
            if cfg.get("bpd"): aftB[int(cfg.get("bpd"))] = lambda: A("s_setprio 0")
            gemm(ACCB, aftB, True, BSL, {}, 14, 0, fs_tail1)
            vstamp(A, cfg, 13, PR)
            if not NZ: A("s_barrier")
            A.nop(12)
            fma_out()
            for q in range(8): A(f"ds_write_b128 v4, v[{ACCA+4*q}:{ACCA+4*q+3}] offset:{q*1024}")
            A("s_waitcnt lgkmcnt(0)")
            rst(A, cfg, 22)
            A("s_barrier")
            rst(A, cfg, 23)
            prof_out()
            A("s_endpgm")
        else:
            gemm(ACCB, {4: zbar(1)}, True, BSL, {}, 14)
            vstamp(A, cfg, 13, PR)
            zbar(0)()
            A.nop(12)
    else:
        gemm(ACCA, {FBPOS: a_flag, 3: a_mid, 5: a_poll}, False)
        A("s_barrier")
        refill(4)
        vstamp(A, cfg, 12, PR)
        A("s_waitcnt vmcnt(8)")
        poll_check(A, 46, 45, 32, "s83", "PB", n=2)
        o_loads()
        A("s_waitcnt vmcnt(31)")
        A("s_barrier")
        gemm(ACCB, {}, True)
        vstamp(A, cfg, 13, PR)
        out_addr()
        scale_a()
        A("s_barrier")
        srd(A, 24, 8, 4194304)
        A.nop(4)
    if not FS:
        for k in range(16):
            om = 46 if (P16 and (k >> 1) & 1) else OMG
            A(f"v_pk_fma_f32 v[{ACCA+2*k}:{ACCA+2*k+1}], v[{ACCB+2*k}:{ACCB+2*k+1}], v[{om}:{om+1}], v[{ACCA+2*k}:{ACCA+2*k+1}] op_sel_hi:[1,0,1]")
        for cb in range(2):
            for q in range(4):
                r = ACCA + 16*cb + 4*q
                if P16: A(f"ds_write_b128 v4, v[{r}:{r+3}] offset:{(q & 1)*16*K3_ROW + (2*cb + (q >> 1))*64}")
                else: A(f"ds_write_b128 v4, v[{r}:{r+3}] offset:{cb*128 + q*32}")
        A("s_waitcnt lgkmcnt(0)")
        rst(A, cfg, 22)
        A("s_barrier")
        rst(A, cfg, 23)
        R = 128
        for it in range(2):
            for g in range(2):
                for hf in range(2):
                    r = R + 16*it + 8*g + 4*hf
                    A(f"ds_read_b128 v[{r}:{r+3}], v7 offset:{it*64*K3_ROW + g*K3_RED + hf*16}")
        for it in range(2):
            A(f"s_waitcnt lgkmcnt({4 - 4*it})")
            r = R + 16*it
            for k in range(4):
                A(f"v_pk_add_f32 v[{r+2*k}:{r+2*k+1}], v[{r+2*k}:{r+2*k+1}], v[{r+8+2*k}:{r+8+2*k+1}]")
            for k in range(4):
                A(f"v_cvt_pk_bf16_f32 v{r+k}, v{r+2*k}, v{r+2*k+1}")
            A(f"buffer_store_dwordx4 v[{r}:{r+3}], v5, s[24:27], 0 offen {cfg.get('ost', 'nt').replace('+', ' ')}")
            if it == 0: A(f"v_add_u32 v5, {64*2048}, v5")
        if cfg.get("prof"):
            A("s_waitcnt vmcnt(0)")
            vstamp(A, cfg, 14, PR)
            rst(A, cfg, 24)
            A(f"""
            s_mov_b32 s92, s14
            s_mov_b32 s93, s15
            s_mov_b32 s94, {64*MB}
            s_mov_b32 s95, 0x00020000
            s_lshl_b32 s90, s2, 3
            s_add_u32 s90, s90, s40
            s_lshl_b32 s90, s90, {8 if cfg.get("prof") in ("2", "3", "4", "5", "6") else 7}
            s_add_u32 s90, s90, {WS_PROFV}
            v_lshlrev_b32 v1, 2, v0
            s_mov_b64 exec, {-1 if cfg.get("prof") in ("2", "3", "4", "5", "6") else "0xffffffff"}
            buffer_store_dword v{PR}, v1, s[92:95], s90 offen
            """)
        A("s_endpgm")
    A.label("K2_FB")
    vstamp(A, cfg, 15, PR)
    A("s_mov_b32 s60, 17")
    A("s_mov_b32 s61, 0")
    for i in range(16): A(f"v_mov_b32 v{O+i}, 0")
    for i in range(4): A(f"v_mov_b32 v{L+i}, 0")
    A(f"v_mov_b32 v44, 0xff800000")
    A.label("K2_FBL")
    A(f"""
    buffer_load_dwordx4 v[{K0}:{K0+3}], v3, s[32:35], s70 offen sc1
    buffer_load_dwordx4 v[{K1}:{K1+3}], v3, s[32:35], s70 offen offset:1024 sc1
    buffer_load_dwordx4 v[{V0}:{V0+3}], v3, s[32:35], s70 offen offset:2048 sc1
    buffer_load_dwordx4 v[{V1}:{V1+3}], v3, s[32:35], s70 offen offset:3072 sc1
    s_add_u32 s70, s70, 4096
    s_waitcnt vmcnt(0)
    v_mfma_f32_32x32x16_bf16 v[{SA}:{SA+15}], v[{K0}:{K0+3}], v[{Q}:{Q+3}], 0
    v_mfma_f32_32x32x16_bf16 v[{SA}:{SA+15}], v[{K1}:{K1+3}], v[{Q+4}:{Q+7}], v[{SA}:{SA+15}]
    """)
    A.nop(12)
    A(f"v_max3_f32 v4, v{SA}, v{SA+1}, v{SA+2}")
    for k in range(3, 15, 2):
        A(f"v_max3_f32 v4, v4, v{SA+k}, v{SA+k+1}")
    A(f"v_max3_f32 v4, v4, v{SA+15}, v44")
    A("v_mov_b32 v5, v4")
    A.nop(2)
    A("v_permlane32_swap_b32 v4, v5")
    A("s_nop 0")
    A("v_max_f32 v4, v4, v5")
    A("v_sub_f32 v5, v44, v4")
    A("v_exp_f32 v5, v5")
    A("v_mov_b32 v44, v4")
    for k in range(16):
        A(f"v_sub_f32 v{SA+k}, v{SA+k}, v4")
    for k in range(16):
        A(f"v_exp_f32 v{SA+k}, v{SA+k}")
    for k in range(16):
        A(f"v_mul_f32 v{O+k}, v{O+k}, v5")
    for k in range(4):
        A(f"v_mul_f32 v{L+k}, v{L+k}, v5")
    for k in range(8):
        A(f"v_cvt_pk_bf16_f32 v{P+k}, v{SA+2*k}, v{SA+2*k+1}")
    A("s_nop 1")
    A(f"""
    v_mfma_f32_32x32x16_bf16 v[{O}:{O+15}], v[{V0}:{V0+3}], v[{P}:{P+3}], v[{O}:{O+15}]
    v_mfma_f32_16x16x32_bf16 v[{L}:{L+3}], v[{SEL}:{SEL+3}], v[{P}:{P+3}], v[{L}:{L+3}]
    v_mfma_f32_32x32x16_bf16 v[{O}:{O+15}], v[{V1}:{V1+3}], v[{P+4}:{P+7}], v[{O}:{O+15}]
    v_mfma_f32_16x16x32_bf16 v[{L}:{L+3}], v[{SEL}:{SEL+3}], v[{P+4}:{P+7}], v[{L}:{L+3}]
    s_add_u32 s61, s61, 1
    s_cmp_lt_u32 s61, 64
    """)
    A.nop(12)
    A("s_cbranch_scc1 K2_FBL")
    A("s_branch K2_FIN")
    A.label("KF_END")
    A("s_endpgm")
    if cfg.get("lf") == "1":
        L_ = A.lines
        i0 = L_.index("K1_LOADER:"); i1 = L_.index("K1_LPOST:")
        blk = L_[i0:i1]
        del L_[i0:i1]
        b = L_.index("    s_cbranch_scc1 K1_LOADER")
        assert L_[b-1].strip() == "s_cmp_ge_u32 s40, 4"
        L_[b-1:b+1] = ["    s_cmp_lt_u32 s40, 4", "    s_cbranch_scc1 K1_CONS"] + blk + ["    s_branch K1_LPOST", "K1_CONS:"]
    WU = cfg.get("wu")
    if WU:
        L_ = A.lines
        def after(pred, nth=0, start=0):
            k = [i for i in range(start, len(L_)) if pred(L_[i].strip())]
            return k[nth] + 1
        def stub(pos, name, nxt, skip=False):
            L_[pos:pos] = ([f"    s_branch {name}S"] if skip else []) + [f"{name}:", f"    s_branch {nxt}"] + ([f"{name}S:"] if skip else [])
        kb10 = L_.index("KB_10:")
        stub(after(lambda l: l == "s_endpgm"), "WU_9", "WU_BACK")
        stub(after(lambda l: l == "s_branch K3_EF2"), "WU_8", "WU_9" if WU == "1" else "WU_BACK")
        stub(after(lambda l: l == "s_barrier", 1, kb10), "WU_7", "WU_BACK", skip=True)
        stub(kb10, "WU_6", "WU_7" if WU == "1" else "WU_BACK")
        stub(after(lambda l: l == "s_branch K1_E2L"), "WU_5", "WU_BACK")
        stub(after(lambda l: l.startswith("s_branch K1_TJ_")), "WU_4", "WU_5" if WU == "1" else "WU_BACK")
        p = after(lambda l: l == "s_barrier", 0, L_.index("K1_NOZ:")) - 1
        d = []
        if WU == "1":
            for w, t in ((0, "WU_4"), (1, "WU_6"), (2, "WU_8")): d += [f"    s_cmp_eq_u32 s40, {w}", f"    s_cbranch_scc1 {t}"]
        else:
            d += ["    s_cmp_eq_u32 s40, 9"] + [f"    s_cbranch_scc1 {t}" for t in ("WU_4", "WU_5", "WU_6", "WU_7", "WU_8", "WU_9")]
        L_[p:p] = d + ["WU_BACK:"]
    return K, KG_LDS
```

```python
from common import *

KNAME = NAME + "_kernel"
K1_XS = 32768
K1_NX = 3
K1_WB = K1_XS * K1_NX
K1_SLOT = 12288
K1_NSLOT = 5
K1_WPHI = K1_WB + K1_SLOT * K1_NSLOT
K1_TBUF = 4352
RING = 65536
QST = 65536
TBUF0 = 81920
RED0 = 98304
ZRED = 114688
KVT_L = 116736
Z_L = 120832
KG_LDS = 163840
def WSL(s): return 65536 + 16384 * s if s < 6 else 16384 * (s - 6)
WS_F1 = WS_FLAG
WS_FK = WS_FLAG + 4096
WS_FA = WS_FLAG + 16384
WS_FB = WS_FLAG + 20480
HB0 = 122880
HB1 = 139264
TBUF1 = 147456
BIAS = 80.0
K3_ROW = 272
K3_RED = 128 * K3_ROW
SPIN_MAX = 1 << 16
WS_PROFV = WS_PROF

def cvt_tile(A, dst, src):
    for i in range(8):
        A(f"v_cvt_pk_bf16_f32 v{dst+i}, v{src+2*i}, v{src+2*i+1}")

def bstamp(A, cfg, kind, reg=33):
    if cfg.get("prof") == "2":
        A("s_memtime s[96:97]")
        A(f"s_add_u32 m0, s100, {16*kind}")
        A("s_waitcnt lgkmcnt(0)")
        A(f"v_writelane_b32 v{reg}, s96, m0")
        if kind == 2: A("s_add_u32 s100, s100, 1")

def pbar(A, cfg, wait):
    bstamp(A, cfg, 0)
    if callable(wait): wait()
    elif wait: A(wait)
    bstamp(A, cfg, 1)
    A("s_barrier")
    bstamp(A, cfg, 2)

def vstamp(A, cfg, i, reg):
    if cfg.get("prof") == "1":
        A("s_memtime s[96:97]")
        A("s_memrealtime s[98:99]")
        A("s_waitcnt lgkmcnt(0)")
        A(f"v_writelane_b32 v{reg}, s96, {2*i}")
        A(f"v_writelane_b32 v{reg}, s98, {2*i+1}")

def rst(A, cfg, lane, reg=33):
    if cfg.get("prof") == "5":
        A("s_memrealtime s[96:97]")
        A("s_waitcnt lgkmcnt(0)")
        A(f"v_writelane_b32 v{reg}, s96, {lane}")

def est(A, cfg, lane, reg):
    if cfg.get("prof") == "6":
        A("s_memtime s[96:97]")
        A("s_waitcnt lgkmcnt(0)")
        A(f"v_writelane_b32 v{reg}, s96, {lane}")

def poll_issue(A, vdst, vaddr, srd, soff, n=1):
    if n == 1: A(f"buffer_load_dword v{vdst}, v{vaddr}, s[{srd}:{srd+3}], {soff} offen sc1")
    else:      A(f"buffer_load_dwordx2 v[{vdst}:{vdst+1}], v{vaddr}, s[{srd}:{srd+3}], {soff} offen sc1")

def poll_check(A, vdst, vaddr, srd, soff, tag, expect=1, n=1):
    ok = A.uid(tag + "_OK"); sp = A.uid(tag + "_SP")
    def test():
        if n == 2: A(f"v_and_b32 v{vdst}, v{vdst}, v{vdst+1}")
        A(f"v_cmp_eq_u32 vcc, {expect}, v{vdst}")
        A("s_cmp_eq_u64 vcc, -1")
        A(f"s_cbranch_scc1 {ok}")
    test()
    A("s_mov_b32 s82, 0")
    A.label(sp)
    A("s_sleep 2")
    poll_issue(A, vdst, vaddr, srd, soff, n)
    A("s_add_u32 s82, s82, 1")
    A("s_waitcnt vmcnt(0)")
    test()
    A(f"s_cmp_lt_u32 s82, {SPIN_MAX}")
    A(f"s_cbranch_scc1 {sp}")
    A.label(ok)

def set_flag(A, soff):
    A(f"""
    s_mov_b64 exec, 1
    v_mov_b32 v4, 1
    v_mov_b32 v5, 0
    buffer_store_dword v4, v5, s[32:35], {soff} offen sc1
    s_mov_b64 exec, -1
    """)

class VM:
    def __init__(s, A, init=()): s.A = A; s.q = list(init)
    def op(s, tag, text):
        def f(): s.A(text); s.q.append(tag)
        return f
    def now(s, tag, text): s.op(tag, text)()
    def wait(s, *tags):
        idx = max([k for k, t in enumerate(s.q) if t in tags], default=-1)
        if idx < 0: return
        s.A(f"s_waitcnt vmcnt({len(s.q) - 1 - idx})")
        s.q = s.q[idx+1:]

def setup_p2(A):
    A(f"""
    s_lshl_b32 s70, s42, 18
    s_add_u32 s70, s70, {WS_KVB}
    s_lshl_b32 s47, s41, 1
    s_add_u32 s47, s47, 3
    s_and_b32 s47, s47, 15           ; chunk 3 of the rotated order
    s_lshl_b32 s47, s47, 14
    s_lshl_b32 s38, s40, 11
    s_add_u32 s71, s47, s38          ; offset within the head of this wave's part of the next chunk
    s_add_u32 s72, s38, {3*16384}    ; LDS offset of the same
    s_lshl_b32 s47, s41, 3
    s_add_u32 s47, s47, s40
    s_lshl_b32 s47, s47, 5
    s_add_u32 s47, s47, s42
    s_lshl_b32 s73, s47, 11
    s_add_u32 s73, s73, {WS_OB}      ; oB store offset
    s_lshr_b32 s39, s40, 1
    s_and_b32 s39, s39, 1            ; th
    s_lshl_b32 s47, s41, 3
    s_lshl_b32 s38, s39, 2
    s_add_u32 s47, s47, s38          ; r*8 + th*4
    s_lshl_b32 s47, s47, 5
    s_add_u32 s47, s47, s42
    s_lshl_b32 s74, s47, 11
    s_add_u32 s74, s74, {WS_OA}      ; oA store offset (waves 1, 3)
    s_lshl_b32 s75, s42, 16
    s_lshl_b32 s47, s40, 10
    s_add_u32 s75, s75, s47
    s_add_u32 s75, s75, {WS_KVP}
    s_lshl_b32 s47, s41, 13
    s_add_u32 s79, s75, s47          ; kv partial store offset
    s_lshl_b32 s76, s42, 11
    s_add_u32 s76, s76, {WS_ZP}
    s_lshl_b32 s47, s41, 8
    s_add_u32 s89, s76, s47          ; z partial store offset
    s_lshl_b32 s77, s42, 8
    s_add_u32 s77, s77, {WS_FK}
    s_lshl_b32 s47, s41, 5
    s_add_u32 s68, s77, s47
    s_lshl_b32 s47, s40, 2
    s_add_u32 s68, s68, s47
    s_lshl_b32 s78, s42, 6
    s_add_u32 s78, s78, {WS_F1}      ; F1 line
    s_lshl_b32 s47, s41, 3
    s_add_u32 s67, s78, s47
    s_lshl_b32 s38, s39, 2
    s_add_u32 s67, s67, s38
    s_lshl_b32 s88, s41, 8
    s_lshl_b32 s47, s42, 3
    s_add_u32 s88, s88, s47
    s_add_u32 s88, s88, s38
    s_add_u32 s88, s88, {WS_FA}
    s_lshl_b32 s47, s41, 1
    s_lshr_b32 s38, s40, 2
    s_add_u32 s47, s47, s38
    s_lshl_b32 s69, s47, 9
    s_lshl_b32 s47, s42, 4
    s_add_u32 s69, s69, s47
    s_and_b32 s47, s40, 3
    s_lshl_b32 s47, s47, 2
    s_add_u32 s69, s69, s47
    s_add_u32 s69, s69, {WS_FB}
    """)

def setup_p3(A):
    A(f"""
    s_load_dwordx2 s[4:5], s[0:1], 24
    s_load_dwordx2 s[6:7], s[0:1], 48
    s_load_dwordx2 s[8:9], s[0:1], 64
    s_lshr_b32 s16, s45, 1
    s_lshl_b32 s16, s16, 2
    s_lshr_b32 s47, s46, 3
    s_add_u32 s16, s16, s47          ; T = 4*(e>>1) + (i>>3)
    s_and_b32 s17, s45, 1
    s_lshl_b32 s17, s17, 3
    s_and_b32 s47, s46, 7
    s_add_u32 s17, s17, s47          ; C = 8*(e&1) + (i&7)
    s_lshr_b32 s18, s40, 2           ; grp
    s_and_b32 s19, s40, 3            ; tq
    s_lshl_b32 s47, s16, 2
    s_add_u32 s47, s47, s19          ; tb3
    s_lshl_b32 s28, s47, 16
    s_lshl_b32 s38, s18, 15
    s_add_u32 s28, s28, s38
    s_add_u32 s28, s28, {WS_OA}      ; o stream offset
    s_lshl_b32 s31, s47, 7
    s_add_u32 s31, s31, {WS_G}       ; g offset
    s_lshr_b32 s47, s16, 1
    s_lshl_b32 s36, s47, 8
    s_add_u32 s36, s36, {WS_FA}
    s_lshl_b32 s83, s16, 9
    s_add_u32 s83, s83, {WS_FB}
    s_lshl_b32 s30, s18, 13
    s_lshl_b32 s38, s19, 11
    s_add_u32 s30, s30, s38
    s_mov_b32 s29, 0                 ; wo soffset
    s_waitcnt lgkmcnt(0)
    s_mov_b32 s20, s4
    s_mov_b32 s21, s5
    s_mov_b32 s22, {1024*2048}
    s_mov_b32 s23, 0x00020000
    """)

def gen_kg(A, cfg):
    K = KNAME
    F1POS = int(cfg.get("f1pos", 2))
    ROT = int(cfg.get("rot", 12))
    RSH = int(cfg.get("rsh", 0))
    ROT2 = int(cfg.get("rot2", 0))
    PV = 255
    kernel_begin(A, K)
    A(f"""
    s_cmp_ge_u32 s2, 256
    s_cbranch_scc1 KF_END
    s_load_dwordx2 s[4:5], s[0:1], 0
    s_load_dwordx2 s[6:7], s[0:1], 8
    s_load_dwordx2 s[8:9], s[0:1], 40
    s_load_dwordx2 s[10:11], s[0:1], 16
    s_load_dwordx2 s[12:13], s[0:1], 56
    s_load_dwordx2 s[14:15], s[0:1], 80
    s_load_dwordx2 s[86:87], s[0:1], 72
    v_lshrrev_b32 v1, 6, v0
    v_and_b32 v0, 63, v0
    v_readfirstlane_b32 s40, v1
    s_and_b32 s45, s2, 7
    s_lshr_b32 s46, s2, 3
    """)
    if cfg.get("prof"): A(f"v_mov_b32 v{PV}, 0")
    vstamp(A, cfg, 0, PV)
    if cfg.get("prof") == "4":
        A("s_memrealtime s[96:97]")
        A("s_waitcnt lgkmcnt(0)")
        A(f"v_writelane_b32 v{PV}, s96, 40")
    ES = cfg.get("es") == "1"
    assert not ES or cfg.get("hmap", "f") == "f"
    if cfg.get("hmap", "f") == "f":
        A("""
        s_and_b32 s41, s45, 1
        s_lshl_b32 s41, s41, 2
        s_lshr_b32 s47, s46, 3
        s_add_u32 s41, s41, s47          ; r = 4(e&1) + (i>>3)
        s_lshr_b32 s42, s45, 1
        s_lshl_b32 s42, s42, 3
        s_and_b32 s47, s46, 7
        s_add_u32 s42, s42, s47          ; h = 8(e>>1) + (i&7)
        """)
        if not ES: A("s_waitcnt lgkmcnt(0)")
    elif cfg.get("hmap") == "h":
        A("""
        s_lshr_b32 s41, s45, 1
        s_lshl_b32 s41, s41, 1
        s_lshr_b32 s47, s46, 4
        s_add_u32 s41, s41, s47          ; r = 2(e>>1) + (i>>4)
        s_and_b32 s42, s45, 1
        s_lshl_b32 s42, s42, 4
        s_and_b32 s47, s46, 15
        s_add_u32 s42, s42, s47          ; h = 16(e&1) + (i&15)
        s_waitcnt lgkmcnt(0)
        """)
    else:
        A("""
        s_and_b32 s41, s46, 7            ; r
        s_lshl_b32 s42, s45, 2
        s_lshr_b32 s47, s46, 3
        s_add_u32 s42, s42, s47          ; h = 4e + (i>>3)
        s_waitcnt lgkmcnt(0)
        """)
    def rstamp(lane):
        if cfg.get("prof") == "4":
            A("s_memrealtime s[96:97]")
            A("s_waitcnt lgkmcnt(0)")
            A(f"v_writelane_b32 v{PV}, s96, {lane}")
    if not ES:
        rstamp(41)
        srd(A, 32, 14, WS_USED)
    A("""
    s_cmp_ge_u32 s40, 4
    s_cbranch_scc1 K1_LOADER
    """)
    if ES:
        A("s_waitcnt lgkmcnt(0)")
        rstamp(41)
        srd(A, 32, 14, WS_USED)
    PF3 = cfg.get("pf3")
    PF4 = cfg.get("pf4")
    L2D = int(cfg.get("l2d", 2)) if not (PF3 or PF4) else 0
    TL = int(cfg.get("tl", 4))
    TC = int(cfg.get("tc", 8))
    def touch_addr(w, dst, t0, t1, t2, shift, sa):
        OFFL = int(cfg.get("offl", 0))
        A(f"""
        s_and_b32 s47, s42, 1
        s_lshl_b32 s47, s47, 2
        s_and_b32 s38, s41, 3
        s_add_u32 s47, s47, s38          ; share of the pair's weight lines
        s_lshl_b32 s47, s47, 2           ; first row
        v_bfe_u32 v{t0}, v0, 2, 1
        v_lshlrev_b32 v{t0}, 5, v{t0}    ; 32 * block
        v_and_b32 v{t2}, 3, v0
        v_add3_u32 v{dst}, v{t2}, v{t0}, s47
        v_mul_u32_u24 v{dst}, 6144, v{dst}
        v_lshrrev_b32 v{t1}, 3, v0       ; segment
        v_lshl_add_u32 v{dst}, v{t1}, 11, v{dst}
        s_lshr_b32 s47, s42, 1
        s_lshl_b32 s47, s47, 7
        v_add_u32 v{dst}, s47, v{dst}
        s_and_b32 {sa}, s42, 7
        """)
        if OFFL:
            A(f"""
            s_lshl_b32 s47, {sa}, 2
            s_add_u32 s47, s47, s38
            s_lshl_b32 s47, s47, 2
            v_add_u32 v{t2}, s47, v{t2}      ; line of the last pair : 0..95
            v_lshrrev_b32 v{t1}, 5, v{t2}
            v_and_b32 v{t2}, 31, v{t2}
            v_add_u32 v{t2}, v{t2}, v{t0}
            v_mul_u32_u24 v{t2}, 6144, v{t2}
            v_lshl_add_u32 v{t2}, v{t1}, 11, v{t2}
            s_lshr_b32 s47, s42, 1
            s_or_b32 s47, s47, 3
            s_lshl_b32 s47, s47, 7
            v_add_u32 v{t2}, s47, v{t2}
            v_cmp_lt_u32 vcc, 23, v0
            s_nop 1
            v_cndmask_b32 v{dst}, v{dst}, v{t2}, vcc
            s_cmp_lt_u32 {sa}, 6
            s_cselect_b32 s63, 32, 0         ; live lanes of the weight waves
            """)
            if OFFL == 1:
                A(f"""
                s_lshl_b32 s47, {sa}, 4           ; first x row : 16 * head
                s_mul_i32 s38, {sa}, 80
                s_sub_u32 s38, s38, {6*80 - 96}
                s_cmp_lt_u32 {sa}, 6
                s_cselect_b32 s47, s47, s38
                s_cselect_b32 {sa}, 16, 40        ; live lanes of wave 2
                s_cselect_b32 s38, 0, 40         ; live lanes of wave 3
                s_cmp_eq_u32 {w}, 3
                s_cselect_b32 {sa}, s38, {sa}
                s_cselect_b32 s38, 40, 0
                s_add_u32 s47, s47, s38
                """)
            elif OFFL == 2:
                A(f"""
                s_mul_i32 s47, {sa}, 43
                s_cmp_lt_u32 {sa}, 5
                s_cselect_b32 s38, 43, 41
                s_cmp_lt_u32 {sa}, 6
                s_cselect_b32 {sa}, s38, 0
                s_cmp_eq_u32 {w}, 3
                s_cselect_b32 {sa}, 0, {sa}
                """)
            else:
                A(f"""
                s_lshl_b32 s47, {sa}, 5
                s_cmp_eq_u32 {w}, 3
                s_cselect_b32 {sa}, 0, 32
                """)
        else:
            A(f"""
            s_mov_b32 s63, 24
            s_lshl_b32 s47, {sa}, 5
            s_cmp_eq_u32 {w}, 3
            s_cselect_b32 {sa}, 0, 32
            """)
        A(f"""
        s_lshl_b32 s38, s41, 8
        s_add_u32 s47, s47, s38
        v_add_u32 v{t1}, s47, v0
        v_lshlrev_b32 v{t1}, 11, v{t1}   ; x row
        v_bfe_u32 v{t0}, v0, 1, 1
        s_and_b32 s38, s45, 1
        v_xor_b32 v{t0}, s38, v{t0}      ; 0 : ours
        v_and_b32 v{t2}, 3, v0
        s_lshr_b32 s38, s45, 1
        v_xor_b32 v{t2}, s38, v{t2}
        s_cmp_ge_u32 {w}, 2
        s_cselect_b64 vcc, -1, 0
        s_cselect_b32 s47, {sa}, s63      ; live lanes
        s_mov_b32 s38, {(TC - TL) * 32 * 6144}
        s_cselect_b32 s38, {(TC - TL) * 64}, s38
        v_cndmask_b32 v{dst}, v{dst}, v{t1}, vcc
        v_cndmask_b32 v{t0}, v{t0}, v{t2}, vcc
        v_cmp_eq_u32 vcc, 0, v{t0}
        """)
        if shift:
            A(f"""
            v_mov_b32 v{t1}, s38
            s_nop 0
            v_cndmask_b32 v{t1}, 0, v{t1}, vcc
            v_add_u32 v{dst}, v{dst}, v{t1}
            v_cmp_gt_u32 vcc, s47, v0
            v_mov_b32 v{t1}, 0x7ffffff0
            s_nop 0
            v_cndmask_b32 v{dst}, v{t1}, v{dst}, vcc
            """)
        else:
            A(f"""
            v_cmp_gt_u32 s[62:63], s47, v0
            v_mov_b32 v{t1}, 0x7ffffff0
            s_and_b64 vcc, vcc, s[62:63]
            v_cndmask_b32 v{dst+2}, v{t1}, v{dst}, vcc
            v_cndmask_b32 v{dst}, v{t1}, v{dst}, s[62:63]
            """)
        A(f"""
        s_cmp_eq_u32 {w}, 0
        s_cselect_b32 s92, s6, s8
        s_cselect_b32 s93, s7, s9
        s_cmp_ge_u32 {w}, 2
        s_cselect_b32 s92, s4, s92
        s_cselect_b32 s93, s5, s93
        s_mov_b32 s94, {1024*6144}
        s_cselect_b32 s94, {2048*2048}, s94
        s_mov_b32 s95, 0x00020000
        """)
    rng = lambda t: range(*map(int, t.split(":"))) if t else range(0)
    PFA_ = rng(cfg.get("pfa", f"0:{4+L2D}")); PFB_ = rng(cfg.get("pfb", ""))
    PFA, PFD = 252, 253
    def l2pf(step=None):
        if step is None:
            A("s_and_b32 s55, s59, 31")
        else:
            A(f"s_add_u32 s55, s63, {step}")
            A("s_and_b32 s55, s55, 31")
        A(f"s_mul_i32 s55, s55, {32*6144}")
        A(f"buffer_load_dword v{PFD}, v{PFA}, s[92:95], s55 offen")
        if step is None: A("s_add_u32 s59, s59, 1")
    PF2 = cfg.get("pf2")
    def touch():
        return [f"buffer_load_dword v{PFD}, v{PFA}, s[92:95], s55 offen", "s_add_u32 s55, s55, s59", "s_cmp_eq_u32 s55, s56",
                "s_cselect_b32 s55, 0, s55", "s_xor_b32 s59, s59, s57"]
    if PF2:
        XW = int(cfg.get("pfx", 1))
        HM = cfg.get("hmap", "f") == "h"
        RB = 1 if HM else 2
        HB = 4 if HM else 3
        R20 = 0 if cfg.get("r2") == "early0" else 4
        A(f"""
        s_and_b32 s47, s42, 1
        s_lshl_b32 s47, s47, {RB}
        s_and_b32 s38, s41, {(1 << RB) - 1}
        s_add_u32 s47, s47, s38          ; share of the weight lines
        s_lshr_b32 s38, s42, 1
        s_lshl_b32 s47, s47, {4 - RB}    ; first row of the share
        s_lshl_b32 s38, s38, 7
        v_and_b32 v4, {(1 << (4 - RB)) - 1}, v0
        v_add_u32 v4, s47, v4
        v_mul_u32_u24 v4, 6144, v4
        v_lshrrev_b32 v5, {4 - RB}, v0
        v_lshl_add_u32 v4, v5, 11, v4    ; + segment * 2048
        v_add_u32 v4, s38, v4
        s_lshl_b32 s47, s41, 8
        s_and_b32 s38, s42, {(1 << HB) - 1}
        s_lshl_b32 s38, s38, {8 - HB}
        s_add_u32 s47, s47, s38
        v_add_u32 v6, s47, v0
        v_lshlrev_b32 v6, 11, v6
        s_cmp_eq_u32 s40, 0
        s_cselect_b64 vcc, -1, 0
        s_cselect_b32 s38, {1 << (7 - HB)}, {3 << (4 - RB)}
        v_mov_b32 v5, 0x7ffffff0
        v_cndmask_b32 v4, v4, v6, vcc
        v_cmp_gt_u32 vcc, s38, v0
        s_cmp_eq_u32 s40, 2
        s_cselect_b32 s92, s6, s8
        s_cselect_b32 s93, s7, s9
        s_cmp_ge_u32 s40, 2
        s_cselect_b32 s62, {1024*6144}, 0
        v_cndmask_b32 v{PFA}, v5, v4, vcc
        s_lshr_b32 s63, s45, {RSH}
        s_mul_i32 s63, s63, {ROT}
        s_and_b32 s47, s45, 1
        s_mul_i32 s47, s47, {ROT2}
        s_add_u32 s63, s63, s47
        s_add_u32 s63, s63, {R20}        ; first block of this round
        s_and_b32 s55, s63, 31
        s_mul_i32 s55, s55, {32*6144}
        s_mov_b32 s59, {32*6144}
        s_mov_b32 s57, 0
        s_mov_b32 s56, {1024*6144}
        s_cmp_lg_u32 s40, 0
        s_cbranch_scc1 K1_PFW
        s_mov_b32 s92, s4
        s_mov_b32 s93, s5
        s_mov_b32 s62, {2048*2048 if XW else 0}
        s_lshr_b32 s55, s63, 1
        s_and_b32 s55, s55, 15
        s_lshl_b32 s55, s55, 7
        s_mov_b32 s59, {1 << (18 - HB)}
        s_mov_b32 s57, {(1 << (18 - HB)) ^ ((128 - (1 << (18 - HB))) & 0xffffffff)}
        s_mov_b32 s56, 2048
        K1_PFW:
        s_mov_b32 s94, s62
        s_mov_b32 s95, 0x00020000
        """)
        if cfg.get("r2") == "early0":
            for t in range(int(cfg.get("e0n", 4))):
                for l in touch(): A(l)
        if cfg.get("r2") == "early":
            for t in range(L2D):
                for l in touch(): A(l)
    elif L2D:
        A(f"""
        s_and_b32 s47, s42, 1
        s_lshl_b32 s47, s47, 2
        s_and_b32 s38, s41, 3
        s_add_u32 s47, s47, s38
        s_lshr_b32 s38, s42, 1
        
        s_lshl_b32 s47, s47, 2           ; first of 4 rows
        s_lshl_b32 s38, s38, 7
        v_and_b32 v4, 3, v0
        v_add_u32 v4, s47, v4
        v_mul_u32_u24 v4, 6144, v4
        v_lshrrev_b32 v5, 2, v0
        v_lshl_add_u32 v4, v5, 11, v4    ; + segment * 2048
        v_add_u32 v4, s38, v4
        v_mov_b32 v5, 0x7ffffff0
        v_cmp_gt_u32 vcc, 12, v0
        s_cmp_eq_u32 s40, 2
        s_cselect_b32 s92, s6, s8
        s_cselect_b32 s93, s7, s9
        s_cmp_ge_u32 s40, 2
        s_cselect_b32 s62, {1024*6144}, 0
        s_mov_b32 s94, s62
        s_mov_b32 s95, 0x00020000
        v_cndmask_b32 v{PFA}, v5, v4, vcc
        s_lshr_b32 s63, s45, {RSH}
        s_mul_i32 s63, s63, {ROT}
        s_add_u32 s59, s63, {4 + L2D}
        """)
        for t in PFA_: l2pf(t)
    if PF4:
        assert ROT == 0 and ROT2 == 0
        touch_addr("s40", PFA, 4, 5, 6, False, "s62")
        A(f"""
        s_cmp_ge_u32 s40, 2
        s_mov_b32 s59, {64*6144}
        s_cselect_b32 s59, 128, s59
        s_mov_b32 s55, 0
        """)
        for t in range(int(cfg.get("r0", 0))):
            A(f"buffer_load_dword v{PFD}, v{PFA}, s[92:95], s55 offen")
            A("s_add_u32 s55, s55, s59")
        A(f"""
        s_cmp_ge_u32 s40, 2
        s_mov_b32 s55, {TL*32*6144}
        s_cselect_b32 s55, {TL*64}, s55
        """)
    rstamp(42)
    setup_p2(A)
    rstamp(43)
    A(f"""
    s_cmp_lg_u32 s40, 0
    s_cbranch_scc1 K1_NOZ
    v_lshlrev_b32 v4, 2, v0
    v_lshrrev_b32 v6, 2, v0
    v_lshlrev_b32 v6, 9, v6
    v_and_b32 v7, 3, v0
    v_lshl_add_u32 v6, v7, 2, v6
    v_mov_b32 v5, 0
    s_mov_b64 exec, 3
    buffer_store_dword v5, v4, s[32:35], s67 offen sc1
    buffer_store_dword v5, v4, s[32:35], s88 offen sc1
    s_mov_b64 exec, 0xff
    buffer_store_dword v5, v4, s[32:35], s68 offen sc1
    buffer_store_dword v5, v6, s[32:35], s69 offen sc1
    s_mov_b32 s36, s86
    s_mov_b32 s37, s87
    s_mov_b32 s38, 256
    s_mov_b32 s39, 0x00020000
    """)
    LATE = cfg.get("late")
    if not LATE:
        A("""
        s_waitcnt vmcnt(0)
        s_mov_b64 exec, 1
        v_mov_b32 v6, 1
        buffer_atomic_add v6, v5, s[36:39], 0 offen
        s_mov_b64 exec, -1
        """)
    else:
        A("s_mov_b64 exec, -1")
    A("""
    K1_NOZ:
    """)
    rstamp(44)
    setup_p3(A)
    rstamp(45)
    TW = cfg.get("tw")
    if TW:
        assert PF4
        A(f"""
        s_cmp_eq_u32 s40, 1
        s_cbranch_scc0 K1_TW2
        v_lshlrev_b32 v4, 12, v0
        s_lshl_b32 s47, s41, 15
        s_add_u32 s47, s47, s70
        s_mov_b64 exec, 0xff
        buffer_load_dword v{PFD}, v4, s[32:35], s47 offen
        s_mov_b64 exec, 1
        buffer_load_dword v{PFD}, v4, s[32:35], s79 offen
        buffer_load_dword v{PFD}, v4, s[32:35], s89 offen
        s_mov_b64 exec, -1
        K1_TW2:
        s_cmp_eq_u32 s40, 2
        s_cbranch_scc0 K1_TW3
        v_lshlrev_b32 v4, 16, v0
        s_sub_u32 s47, s73, {2*65536}
        s_mov_b64 exec, 0xff
        buffer_load_dword v{PFD}, v4, s[32:35], s47 offen
        s_sub_u32 s47, s47, {WS_OB - WS_OA}
        buffer_load_dword v{PFD}, v4, s[32:35], s47 offen
        s_mov_b64 exec, -1
        K1_TW3:
        """)
        if TW == "1":
            A(f"""
            s_cmp_eq_u32 s40, 3
            s_cbranch_scc0 K1_TW4
            s_mov_b32 s96, s8
            s_mov_b32 s97, s9
            s_mov_b32 s98, 4194304
            s_mov_b32 s99, 0x00020000
            v_lshlrev_b32 v4, 12, v0
            s_lshl_b32 s47, s16, 18
            s_lshl_b32 s38, s17, 7
            s_add_u32 s47, s47, s38
            buffer_load_dword v{PFD}, v4, s[96:99], s47 offen
            K1_TW4:
            """)
    XA, WA = 4, 20
    XB, WB = 32, 48
    ACC = 60
    acc = lambda sg, tt: ACC + (sg * 4 + tt) * 16
    A(f"""
    s_lshr_b32 s50, s40, 1           ; th
    s_and_b32 s51, s40, 1            ; type
    v_and_b32 v4, 31, v0
    v_lshrrev_b32 v5, 5, v0          ; hh
    v_bfe_u32 v6, v0, 2, 2           ; f = (l>>2)&3
    v_bfe_u32 v7, v0, 1, 3           ; (row>>1)&7
    v_xor_b32 v7, v5, v7
    v_lshlrev_b32 v7, 4, v7
    v_lshl_add_u32 v1, v4, 7, v7
    s_lshl_b32 s47, s50, 14
    v_add_u32 v1, s47, v1            ; vxa0
    v_xor_b32 v2, 32, v1             ; vxa1
    v_lshl_add_u32 v7, v5, 3, v6
    v_lshlrev_b32 v7, 6, v7          ; *64
    v_bfe_u32 v8, v0, 4, 1           ; g&1
    v_lshl_add_u32 v7, v8, 5, v7
    v_and_b32 v9, 3, v0
    v_lshl_add_u32 v7, v9, 3, v7
    s_lshl_b32 s47, s51, 11
    s_add_u32 s47, s47, {K1_WB}
    v_add_u32 v3, s47, v7            ; vwa
    """)
    M16 = cfg.get("m16")
    if M16:
        assert cfg.get("e8") and cfg.get("spread")
        A(f"""
        v_and_b32 v4, 15, v0             ; i
        v_lshrrev_b32 v5, 4, v0          ; q4
        v_lshrrev_b32 v6, 1, v4
        v_xor_b32 v6, v5, v6
        v_lshlrev_b32 v6, 4, v6
        v_lshl_add_u32 v1, v4, 7, v6
        s_lshl_b32 s38, s50, 14
        v_add_u32 v1, s38, v1
        v_lshrrev_b32 v6, 2, v4
        v_lshl_add_u32 v6, v5, 3, v6     ; k row 8 q4 + (i >> 2)
        v_lshlrev_b32 v6, 6, v6
        v_and_b32 v7, 1, v5
        v_lshl_add_u32 v6, v7, 5, v6
        v_and_b32 v7, 3, v0
        v_lshl_add_u32 v6, v7, 3, v6
        v_add_u32 v3, s47, v6            ; W columns 0..15
        v_xor_b32 v2, 32, v3             ; W columns 16..31
        """)
    A(f"""
    s_mov_b32 s48, {1 if cfg.get("spread") else 0}
    s_mov_b32 s49, {K1_SLOT}
    s_mov_b32 s65, 0
    s_mov_b32 s52, {K1_SLOT}
    s_mov_b32 s53, {-(K1_NSLOT-1)*K1_SLOT & 0xffffffff}
    s_mov_b32 s54, 32
    s_mov_b32 s64, 0                 ; x slot
    s_mov_b32 s66, {-(K1_NX-1)*K1_XS & 0xffffffff}
    """)
    for i in range(192):
        A(f"v_mov_b32 v{ACC+i}, 0")
    if PF2 and cfg.get("r2") != "early":
        for t in range(L2D + (4 - int(cfg.get("e0n", 4)) if cfg.get("r2") == "early0" else 0)):
            for l in touch(): A(l)
    rstamp(46)
    A("s_barrier")
    vstamp(A, cfg, 1, PV)
    if cfg.get("prof") == "4":
        A("s_memrealtime s[96:97]")
        A("s_waitcnt lgkmcnt(0)")
        A(f"v_writelane_b32 v{PV}, s96, 0")
    if cfg.get("prof") == "3":
        A("s_memtime s[96:97]")
        A("s_mov_b32 s100, 0")
        A("s_waitcnt lgkmcnt(0)")
        A("s_mov_b32 s101, s96")
    if L2D:
        for t in PFB_: l2pf(t)
    def reads(X, W, s):
        r = []
        xa = 1 if s == 0 else 2
        for tt in range(4):
            r.append(f"ds_read_b128 v[{X+4*tt}:{X+4*tt+3}], v{xa} offset:{tt*4096}")
        for sg in range(3):
            for sec in range(2):
                r.append(f"ds_read_b64_tr_b16 v[{W+4*sg+2*sec}:{W+4*sg+2*sec+1}], v3 offset:{sg*4096 + s*1024 + sec*256}")
        return [r[4], r[5], r[0], r[1], r[2], r[3], r[6], r[7], r[8], r[9]]
    def mfmas(X, W):
        m = []
        for sg in range(3):
            for tt in range(4):
                a = acc(sg, tt)
                w = f"v[{W+4*sg}:{W+4*sg+3}]"; x = f"v[{X+4*tt}:{X+4*tt+3}]"
                if cfg.get("exp16"):
                    m.append(f"v_mfma_f32_16x16x32_bf16 v[{a}:{a+3}], {w}, {x}, v[{a}:{a+3}]\nv_mfma_f32_16x16x32_bf16 v[{a+8}:{a+11}], {x}, {w}, v[{a+8}:{a+11}]")
                elif sg < 2: m.append(f"v_mfma_f32_32x32x16_bf16 v[{a}:{a+15}], {w}, {x}, v[{a}:{a+15}]")
                else:      m.append(f"v_mfma_f32_32x32x16_bf16 v[{a}:{a+15}], {x}, {w}, v[{a}:{a+15}]")
        return m
    X16, W16 = 4, 36
    def acc16(g, c):
        sg, ch = c >> 1, c & 1
        return acc(sg, g >> 1) + ((g & 1) * 8 + ch * 4 if sg < 2 else ch * 8 + (g & 1) * 4)
    def mf16(g, c):
        a = acc16(g, c); w = f"v[{W16+4*c}:{W16+4*c+3}]"; x = f"v[{X16+4*g}:{X16+4*g+3}]"
        return f"v_mfma_f32_16x16x32_bf16 v[{a}:{a+3}], " + (f"{w}, {x}" if c < 4 else f"{x}, {w}") + f", v[{a}:{a+3}]"
    rx16 = lambda g: f"ds_read_b128 v[{X16+4*g}:{X16+4*g+3}], v1 offset:{g*2048}"
    rw16 = lambda c, sec: f"ds_read_b64_tr_b16 v[{W16+4*c+2*sec}:{W16+4*c+2*sec+1}], v{3 - (c & 1)} offset:{(c >> 1)*4096 + sec*256}"
    H1R = {23: [rw16(5, 0), rw16(5, 1)]}
    for c in range(0, 5):
        H1R[4*c+3] = [rw16(c, 0)]; H1R[4*c+4] = [rw16(c, 1)]
    XAP = [int(x) for x in cfg.get("m16a", "0,1,2,4").split(",")]
    for g, k in enumerate(XAP): H1R[k] = [rx16(g)] + H1R.get(k, [])
    H1L = [l for k in range(24) for l in H1R.get(k, [])]
    H1N = lambda l: len(H1L) - 1 - H1L.index(l)
    if M16:
        for l in H1L: A(l)
    else:
        for l in reads(XA, WA, 0): A(l)
    if LATE:
        A("""
        s_cmp_lg_u32 s40, 0
        s_cbranch_scc1 K1_NOARR
        s_mov_b32 s96, s86
        s_mov_b32 s97, s87
        s_mov_b32 s98, 256
        s_mov_b32 s99, 0x00020000
        v_mov_b32 v32, 0
        v_mov_b32 v33, 1
        s_waitcnt vmcnt(0)
        s_mov_b64 exec, 1
        buffer_atomic_add v33, v32, s[96:99], 0 offen
        s_mov_b64 exec, -1
        K1_NOARR:
        """)
    if PF4:
        for t in range((TC - TL) // 2):
            A(f"buffer_load_dword v{PFD}, v{PFA+2}, s[92:95], s55 offen")
            A("s_add_u32 s55, s55, s59")
    A.label("K1_CLOOP")
    if M16:
        XP = int(cfg.get("m16x", 0))
        XS_ = int(cfg.get("m16s", 1))
        XBP = [XP + XS_ * g for g in range(4)]
        fr0 = [k for k in range(24) if k not in XBP and k % 4 != 3]
        ex0 = {[k for k in fr0 if k > XBP[-1]][0]: ["v_xad_u32 v1, v1, 64, s65"]}
        f2 = [k for k in fr0 if k not in ex0]
        ex0[f2[1]] = ["v_add_u32 v3, s49, v3"]; ex0[f2[3]] = ["v_add_u32 v2, s49, v2"]
        sal = ["s_sub_u32 s54, s54, 1", "s_and_b32 s63, s54, 1", "s_add_u32 s64, s64, s63",
               f"s_cmp_eq_u32 s64, {K1_NX}", f"s_cselect_b32 s65, s66, {K1_XS}", "s_cselect_b32 s64, 0, s64",
               "s_mul_i32 s65, s65, s63", "s_add_u32 s48, s48, 1", f"s_cmp_eq_u32 s48, {K1_NSLOT}",
               "s_cselect_b32 s49, s53, s52", "s_cselect_b32 s48, 0, s48", "s_cmp_lg_u32 s54, 0"]
        free = [k for k in range(1, 23) if len(H1R.get(k, [])) == 0]
        ex1 = {k: [] for k in free}
        for n, l in enumerate(sal): ex1[free[n * len(free) // len(sal)]].append(l)
        for k in range(24):
            nb = len([x for x in XBP if x < k])
            if k % 4 == 0:
                c = k // 4
                n = H1N(rw16(c, 1))
                if c == 0: n = min(n, H1N(rx16(0)))
                A(f"s_waitcnt lgkmcnt({min(15, n + nb)})")
                done = n
            if k in (1, 2, 3) and H1N(rx16(k)) < done:
                done = H1N(rx16(k)); A(f"s_waitcnt lgkmcnt({min(15, done + nb)})")
            A(mf16(k % 4, k // 4))
            if k in XBP: A(rx16(4 + XBP.index(k)))
            for l in ex0.get(k, []): A(l)
        for k in range(24):
            if k < 4 and (k == 0 or XS_ > 1): A(f"s_waitcnt lgkmcnt({(3 - k if XS_ > 1 else 0) + len([l for j in range(k) for l in H1R.get(j, [])])})")
            A(mf16(4 + k % 4, k // 4))
            for l in H1R.get(k, []) + ex1.get(k, []): A(l)
    else:
        A("s_waitcnt lgkmcnt(0)")
    m = mfmas(XA, WA); r = reads(XB, WB, 1)
    extra0 = {4: ["s_and_b32 s63, s54, 1", "s_add_u32 s64, s64, s63", f"s_cmp_eq_u32 s64, {K1_NX}",
                  f"s_cselect_b32 s65, s66, {K1_XS}", "s_cselect_b32 s64, 0, s64", "s_mul_i32 s65, s65, s63"],
              6: ["s_add_u32 s48, s48, 1", f"s_cmp_eq_u32 s48, {K1_NSLOT}", "s_cselect_b32 s49, s53, s52", "s_cselect_b32 s48, 0, s48"],
              7: ["v_xor_b32 v1, 64, v1", "v_xor_b32 v2, 64, v2"], 8: ["v_add_u32 v1, s65, v1", "v_add_u32 v2, s65, v2"], 9: ["v_add_u32 v3, s49, v3"]}
    SPREAD = cfg.get("spread")
    extra1 = {}
    if SPREAD:
        extra0 = {6: ["v_xad_u32 v1, v1, 64, s65"], 8: ["v_xad_u32 v2, v2, 64, s65"], 10: ["v_add_u32 v3, s49, v3"]}
        extra1 = {5: ["s_sub_u32 s54, s54, 1", "s_and_b32 s63, s54, 1", "s_add_u32 s64, s64, s63"],
                  6: [f"s_cmp_eq_u32 s64, {K1_NX}", f"s_cselect_b32 s65, s66, {K1_XS}", "s_cselect_b32 s64, 0, s64"],
                  7: ["s_mul_i32 s65, s65, s63", "s_add_u32 s48, s48, 1", f"s_cmp_eq_u32 s48, {K1_NSLOT}"],
                  8: ["s_cselect_b32 s49, s53, s52", "s_cselect_b32 s48, 0, s48"],
                  11: ["s_cmp_lg_u32 s54, 0"]}
        if PF2:
            t_ = touch()
            th_, tk_ = map(int, cfg.get("tpos", "1:9").split(":"))
            ex_ = extra1 if th_ else extra0
            after_dec = th_ == 1 and tk_ >= 5
            cmp_ = f"s_cmp_ge_u32 s54, {4 + L2D}" if after_dec else f"s_cmp_gt_u32 s54, {4 + L2D}"
            def addx(d, k, ls, front=False):
                d[k] = (ls + d.get(k, [])) if front else (d.get(k, []) + ls)
            if th_ == 1 and tk_ == 9:
                extra1[9] = [cmp_, "s_cselect_b32 s94, s62, 0", t_[0]]
                extra1[10] = t_[1:4]
                extra1[11] = [t_[4], "s_cmp_lg_u32 s54, 0"]
            else:
                assert not (th_ == 1 and 3 < tk_ < 9)
                addx(ex_, tk_, [cmp_, "s_cselect_b32 s94, s62, 0", t_[0]])
                addx(ex_, tk_ + 1, [t_[1], t_[2], t_[3], t_[4]])
        elif L2D:
            extra1[9] = [f"s_cmp_ge_u32 s54, {4 + L2D}", "s_cselect_b32 s94, s62, 0", "s_and_b32 s55, s59, 31"]
            extra1[10] = [f"s_mul_i32 s55, s55, {32*6144}", "s_add_u32 s59, s59, 1", f"buffer_load_dword v{PFD}, v{PFA}, s[92:95], s55 offen"]
    for k in range(0 if M16 else 12):
        A(m[k])
        if k < 5:
            A(r[2*k]); A(r[2*k+1])
        for l in extra0.get(k, []): A(l)
        if L2D and k == 10 and not SPREAD:
            assert not PF2
            A(f"s_cmp_gt_u32 s54, {4 + L2D}")
            A("s_cselect_b32 s94, s62, 0")
            l2pf()
    if not M16: A("s_waitcnt lgkmcnt(0)")
    m = mfmas(XB, WB); r = reads(XA, WA, 0)
    for k in range(0 if M16 else 12):
        A(m[k])
        if k < 5:
            A(r[2*k]); A(r[2*k+1])
        for l in extra1.get(k, []): A(l)
        if k == 8 and not SPREAD:
            A("s_sub_u32 s54, s54, 1"); A("s_cmp_lg_u32 s54, 0")
    if cfg.get("prof") == "3":
        A("s_memtime s[96:97]")
        A("s_barrier")
        A("s_memtime s[98:99]")
        A("s_waitcnt lgkmcnt(0)")
        A("s_sub_u32 s98, s98, s96")
        A("s_add_u32 s100, s100, s98")
        A("s_cmp_lg_u32 s54, 0")
    elif cfg.get("prof") == "4":
        A("s_barrier")
        A("s_memrealtime s[96:97]")
        A("s_sub_u32 m0, 32, s54")
        A("s_waitcnt lgkmcnt(0)")
        A(f"v_writelane_b32 v{PV}, s96, m0")
        A("s_cmp_lg_u32 s54, 0")
    else:
        A("s_barrier")
    A("s_cbranch_scc1 K1_CLOOP")
    A("s_waitcnt lgkmcnt(0)")
    if cfg.get("prof") == "3":
        A("s_memtime s[96:97]")
        A("s_waitcnt lgkmcnt(0)")
        A("s_sub_u32 s96, s96, s101")
        A(f"v_writelane_b32 v{PV}, s100, 0")
        A(f"v_writelane_b32 v{PV}, s96, 2")
    vstamp(A, cfg, 2, PV)
    est(A, cfg, 0, PV)
    E8 = cfg.get("e8")
    T1 = 4
    VB = acc(1, 0)
    QL = E8 and cfg.get("qlate", "1") == "1"
    V = acc(0, 2) if QL else acc(1, 0)
    Q = V + 16 if QL else acc(1, 0) + 32
    NT8 = 2 if E8 else 4
    if M16:
        A("""
        v_and_b32 v42, 15, v0            ; i
        v_lshrrev_b32 v43, 4, v0
        v_lshlrev_b32 v1, 4, v42
        v_lshl_add_u32 v40, v43, 9, v1   ; Q, V images : row * 512 + i * 16
        v_and_b32 v41, 1, v43
        v_lshl_add_u32 v41, v41, 10, v1
        v_lshrrev_b32 v43, 1, v43
        v_lshl_add_u32 v41, v43, 9, v41  ; swapped order : (row & 1) * 1024 + (row >> 1) * 512 + i * 16
        v_lshrrev_b32 v42, 3, v42
        v_lshl_add_u32 v42, v42, 7, v40  ; K image : tokens 8..15 and 16..23 change places
        """)
    A(f"""
    v_lshlrev_b32 v1, 4, v0          ; lane*16
    s_cmp_lg_u32 s51, 0
    s_cbranch_scc1 K1_E1T1
    s_mov_b32 s56, {fhex(32**-0.5 * LOG2E)}
    s_mov_b32 s57, s56
    s_lshl_b32 s47, s50, 13
    s_add_u32 s47, s47, {QST}
    v_add_u32 v44, s47, v{40 if M16 else 1}           ; Q staging address
    """)
    O2 = 256 if M16 else 1024
    def swap_tile(d):
        if M16:
            for k in range(4): A(f"v_permlane16_swap_b32 v{d+k}, v{d+4+k}")
    def handoff(srcs, more=None):
        for k, src in enumerate(srcs):
            cvt_tile(A, T1 + 8*k, src)
            A(f"ds_write_b128 v45, v[{T1+8*k}:{T1+8*k+3}] offset:{k*2048}")
            A(f"ds_write_b128 v45, v[{T1+8*k+4}:{T1+8*k+7}] offset:{k*2048+O2}")
        if more: more()
        A("s_waitcnt lgkmcnt(0)")
        A("s_barrier")
        est(A, cfg, 1, PV)
    if E8:
        A(f"""
        s_lshl_b32 s47, s50, 13
        s_add_u32 s47, s47, {HB0}
        v_add_u32 v45, s47, v{41 if M16 else 1}
        """)
        A.nop(2)
        handoff([acc(0, 2), acc(0, 3), acc(2, 2), acc(2, 3)])
    else:
        A.nop(6)
    def bq_stage(tts, sc, adr, inplace):
        for tt in tts:
            for k in range(8):
                a = acc(1, tt) + 2*k
                A(f"v_pk_mul_f32 v[{a}:{a+1}], v[{a}:{a+1}], s[{sc}:{sc+1}]")
            d = acc(1, tt) if inplace else T1 + 8*tt
            cvt_tile(A, d, acc(1, tt))
            A(f"ds_write_b128 v{adr}, v[{d}:{d+3}] offset:{tt*2048}")
            A(f"ds_write_b128 v{adr}, v[{d+4}:{d+7}] offset:{tt*2048+O2}")
    if QL:
        A("""
        v_mov_b32 v26, v44
        s_mov_b32 s64, s56
        s_mov_b32 s65, s56
        """)
    else:
        bq_stage(range(4), 56, 44, False)
    for tt in range(NT8):
        cvt_tile(A, V + 8*tt, acc(2, tt))
        swap_tile(V + 8*tt)
    A("s_branch K1_E2J")
    A.label("K1_E1T1")
    A(f"""
    s_lshl_b32 s58, s41, 1
    s_add_u32 s58, s58, s50
    s_lshl_b32 s58, s58, 14
    s_add_u32 s58, s58, s70
    s_lshl_b32 s47, s50, 14
    v_add_u32 v44, s47, v{42 if M16 else 1}
    v_add_u32 v43, s47, v{40 if M16 else 1}
    """)
    if E8:
        A(f"""
        s_lshl_b32 s47, s50, 12
        s_add_u32 s47, s47, {HB1}
        v_add_u32 v45, s47, v{41 if M16 else 1}
        """)
        KA, K2 = (42, 128) if M16 else (1, 1024)
        KE = int(cfg.get("ke", 0))
        def ktile(tt):
            cvt_tile(A, T1 + 8*tt, acc(1, tt))
            A(f"s_add_u32 s47, s58, {4096*tt}")
            A(f"buffer_store_dwordx4 v[{T1+8*tt}:{T1+8*tt+3}], v{KA}, s[32:35], s47 offen sc1")
            A(f"buffer_store_dwordx4 v[{T1+8*tt+4}:{T1+8*tt+7}], v{KA}, s[32:35], s47 offen offset:{K2} sc1")
        handoff([acc(0, 2), acc(0, 3)], (lambda: [ktile(tt) for tt in (2, 3)[:KE]]) if KE else None)
    else:
        A.nop(10)
        KE = 0
    KA, K2 = (42, 128) if M16 else (1, 1024)
    VA = 40 if M16 else 1
    if KE:
        for tt in range(4):
            if tt not in (2, 3)[:KE]: ktile(tt)
        A("s_add_u32 s58, s58, 2048")
    else:
      for tt in range(4):
        cvt_tile(A, T1 + 8*tt, acc(1, tt))
        A(f"buffer_store_dwordx4 v[{T1+8*tt}:{T1+8*tt+3}], v{KA}, s[32:35], s58 offen sc1")
        A(f"buffer_store_dwordx4 v[{T1+8*tt+4}:{T1+8*tt+7}], v{KA}, s[32:35], s58 offen offset:{K2} sc1")
        A("s_add_u32 s58, s58, 4096")
      A(f"s_sub_u32 s58, s58, {4*4096 - 2048}")
    for tt in range(4):
        cvt_tile(A, VB + 8*tt, acc(2, tt))
        A(f"buffer_store_dwordx4 v[{VB+8*tt}:{VB+8*tt+3}], v{VA}, s[32:35], s58 offen sc1")
        A(f"buffer_store_dwordx4 v[{VB+8*tt+4}:{VB+8*tt+7}], v{VA}, s[32:35], s58 offen offset:{O2} sc1")
        A("s_add_u32 s58, s58, 4096")
    for tt in range(4):
        A(f"ds_write_b128 v44, v[{T1+8*tt}:{T1+8*tt+3}] offset:{tt*4096}")
        A(f"ds_write_b128 v44, v[{T1+8*tt+4}:{T1+8*tt+7}] offset:{tt*4096+K2}")
        A(f"ds_write_b128 v43, v[{VB+8*tt}:{VB+8*tt+3}] offset:{tt*4096+2048}")
        A(f"ds_write_b128 v43, v[{VB+8*tt+4}:{VB+8*tt+7}] offset:{tt*4096+2048+O2}")
    A.label("K1_E2J")
    WP = 36
    krow = (lambda s, sec: 16*sec + 4*s) if M16 else (lambda s, sec: 16*s + 8*sec)
    def feat_setup(tb):
        A(f"""
        v_lshrrev_b32 v5, 5, v0          ; hh
        v_bfe_u32 v6, v0, 2, 2           ; i>>2
        v_lshl_add_u32 v6, v5, {3 if M16 else 2}, v6     ; 4hh + (i>>2)
        v_bfe_u32 v7, v0, 4, 1
        v_lshlrev_b32 v7, 5, v7
        v_and_b32 v8, 3, v0
        v_lshl_add_u32 v7, v8, 3, v7     ; (g&1)*32 + (i&3)*8
        v_lshl_add_u32 v2, v6, 6, v7
        v_add_u32 v2, {K1_WPHI}, v2
        """)
        for s in range(2):
            for sec in range(2):
                A(f"ds_read_b64_tr_b16 v[{WP+4*s+2*sec}:{WP+4*s+2*sec+1}], v2 offset:{krow(s, sec)*64}")
        A(f"""
        s_mul_i32 s47, s50, {K1_TBUF}
        s_add_u32 s47, s47, {tb}
        v_mul_u32_u24 v25, 136, v6
        v_add_u32 v25, v25, v7
        v_add_u32 v25, s47, v25
        v_and_b32 v8, 31, v0
        v_mul_u32_u24 v24, 136, v8
        v_lshl_add_u32 v24, v5, 3, v24
        v_add_u32 v24, s47, v24
        v_bfe_u32 v8, v0, 2, 1
        v_bfe_u32 v9, v0, 4, 1
        v_cmp_eq_u32 vcc, v8, v9
        v_mov_b32 v9, 0x3f803f80
        v_mov_b32 v8, 0
        v_cndmask_b32 v20, v8, v9, vcc
        v_cndmask_b32 v21, v8, v9, vcc
        v_cndmask_b32 v22, v8, v9, vcc
        v_cndmask_b32 v23, v8, v9, vcc
        """)
    feat_setup(TBUF0)
    for tt in range(NT8):
        cvt_tile(A, Q + 8*tt, acc(0, tt))
        swap_tile(Q + 8*tt)
    if M16: A("s_nop 0")
    if E8: A.label("K1_E2L")
    est(A, cfg, 2, PV)
    A("s_waitcnt lgkmcnt(0)")
    for tt in range(NT8):
        a = acc(0, tt)
        A(f"v_mfma_f32_32x32x16_bf16 v[{a}:{a+15}], v[{WP}:{WP+3}], v[{Q+8*tt}:{Q+8*tt+3}], 0")
    for tt in range(NT8):
        a = acc(0, tt)
        A(f"v_mfma_f32_32x32x16_bf16 v[{a}:{a+15}], v[{WP+4}:{WP+7}], v[{Q+8*tt+4}:{Q+8*tt+7}], v[{a}:{a+15}]")
    A(f"""
    s_mov_b32 s56, {fhex(LOG2E)}
    s_mov_b32 s57, s56
    """)
    F1E = E8 and cfg.get("f1pos") == "9"
    if F1E:
        j = A.uid("K1_F1E")
        A("s_cmp_ge_u32 s40, 4"); A(f"s_cbranch_scc1 {j}")
        A("s_cmp_eq_u32 s51, 0"); A(f"s_cbranch_scc1 {j}")
        A("s_waitcnt vmcnt(0)")
        set_flag(A, "s67")
        vstamp(A, cfg, 3, PV)
        A.label(j)
    A.nop(10)
    EP = acc(2, 0)
    PH = EP + 16
    AF = PH + 16
    KV0 = AF + 16
    KV1 = 44
    Z0, Z1, SEL1 = 12, 16, 20
    PHQ = 128
    def kv_mfmas(tt):
        out = []
        for s in range(2):
            for fb in range(2):
                kv = KV0 if fb == 0 else KV1
                z = Z0 if fb == 0 else Z1
                af = AF + (fb*2+s)*4
                c = "0" if (tt == 0 and s == 0) else f"v[{kv}:{kv+15}]"
                cz = "0" if (tt == 0 and s == 0) else f"v[{z}:{z+3}]"
                out.append(f"v_mfma_f32_32x32x16_bf16 v[{kv}:{kv+15}], v[{af}:{af+3}], v[{V+8*tt+4*s}:{V+8*tt+4*s+3}], {c}")
                out.append(f"v_mfma_f32_16x16x32_bf16 v[{z}:{z+3}], v[{SEL1}:{SEL1+3}], v[{af}:{af+3}], {cz}")
        return out
    if E8: F1POS = -1 if F1E else min(int(cfg.get("f1pos", 0)), 1)
    est(A, cfg, 3, PV)
    for tt in range(NT8):
        P = acc(0, tt)
        A(f"v_max3_f32 v4, v{P}, v{P+1}, v{P+2}")
        A(f"v_max3_f32 v5, -v{P}, -v{P+1}, -v{P+2}")
        for k in range(3, 15, 2):
            A(f"v_max3_f32 v4, v4, v{P+k}, v{P+k+1}")
            A(f"v_max3_f32 v5, v5, -v{P+k}, -v{P+k+1}")
        A(f"v_max_f32 v4, v4, v{P+15}")
        A(f"v_max_f32 v5, v5, -v{P+15}")
        A.nop(2)
        A("v_permlane32_swap_b32 v4, v5")
        A("s_nop 0")
        A("v_max_f32 v4, v4, v5")
        A("v_mov_b32 v5, v4")
        A.nop(2)
        A("v_permlane32_swap_b32 v4, v5")
        A("s_nop 0")
        A(f"v_mul_f32 v6, {fhex(-LOG2E)}, v4")
        A(f"v_mul_f32 v8, {fhex(-LOG2E)}, v5")
        for k in range(8):
            A(f"v_pk_fma_f32 v[{EP+2*k}:{EP+2*k+1}], v[{P+2*k}:{P+2*k+1}], s[56:57], v[6:7] op_sel_hi:[1,1,0]")
            A(f"v_pk_fma_f32 v[{P+2*k}:{P+2*k+1}], v[{P+2*k}:{P+2*k+1}], s[56:57], v[8:9] op_sel_hi:[1,1,0] neg_lo:[0,1,0] neg_hi:[0,1,0]")
        for k in range(16):
            A(f"v_exp_f32 v{EP+k}, v{EP+k}")
            A(f"v_exp_f32 v{P+k}, v{P+k}")
        if tt > 0:
            j = A.uid("K1_KVS")
            A("s_cmp_lg_u32 s51, 0"); A(f"s_cbranch_scc1 {j}")
            A("s_waitcnt lgkmcnt(0)")
            for l in kv_mfmas(tt-1): A(l)
            A.label(j)
        A(f"v_pk_add_f32 v[4:5], v[{EP}:{EP+1}], v[{EP+2}:{EP+3}]")
        A(f"v_pk_add_f32 v[6:7], v[{P}:{P+1}], v[{P+2}:{P+3}]")
        for k in range(2, 8):
            A(f"v_pk_add_f32 v[4:5], v[4:5], v[{EP+2*k}:{EP+2*k+1}]")
            A(f"v_pk_add_f32 v[6:7], v[6:7], v[{P+2*k}:{P+2*k+1}]")
        A("v_add_f32 v4, v4, v5")
        A("v_add_f32 v6, v6, v7")
        A.nop(2)
        A("v_permlane32_swap_b32 v4, v6")
        A("s_nop 0")
        A("v_add_f32 v4, v4, v6")
        A("v_rcp_f32 v4, v4")
        A("s_nop 0")
        A("v_mov_b32 v6, v4")
        A.nop(2)
        A("v_permlane32_swap_b32 v4, v6")
        A("s_nop 0")
        for k in range(8):
            A(f"v_pk_mul_f32 v[{EP+2*k}:{EP+2*k+1}], v[{EP+2*k}:{EP+2*k+1}], v[4:5] op_sel_hi:[1,0]")
            A(f"v_pk_mul_f32 v[{P+2*k}:{P+2*k+1}], v[{P+2*k}:{P+2*k+1}], v[6:7] op_sel_hi:[1,0]")
        j1 = A.uid("K1_T0"); j2 = A.uid("K1_TJ")
        A("s_cmp_eq_u32 s51, 0"); A(f"s_cbranch_scc1 {j1}")
        cvt_tile(A, PHQ + 16*tt, EP)
        cvt_tile(A, PHQ + 16*tt + 8, P)
        if tt == F1POS:
            if E8:
                A("s_cmp_ge_u32 s40, 4"); A(f"s_cbranch_scc1 {j2}")
            A("s_waitcnt vmcnt(0)")
            set_flag(A, "s67")
            vstamp(A, cfg, 3, PV)
        A(f"s_branch {j2}")
        A.label(j1)
        cvt_tile(A, PH, EP)
        cvt_tile(A, PH + 8, P)
        for sign in range(2):
            for b in range(4):
                A(f"ds_write_b64 v24, v[{PH+8*sign+2*b}:{PH+8*sign+2*b+1}] offset:{sign*64+b*16}")
        for fb in range(2):
            for s in range(2):
                for sec in range(2):
                    af = AF + (fb*2+s)*4 + 2*sec
                    A(f"ds_read_b64_tr_b16 v[{af}:{af+1}], v25 offset:{krow(s, sec)*136 + fb*64}")
        A.label(j2)
        est(A, cfg, 4 + tt, PV)
        if cfg.get("tp") and tt == 0:
            j3 = A.uid("K1_TP")
            A("s_cmp_lt_u32 s40, 4"); A(f"s_cbranch_scc1 {j3}")
            A("s_cmp_lg_u32 s51, 0"); A(f"s_cbranch_scc1 {j3}")
            A(f"s_setprio {cfg.get('tp')}")
            A.label(j3)
    A("s_cmp_lg_u32 s51, 0")
    A("s_cbranch_scc1 KF_JOIN")
    if QL:
        QN = int(cfg.get("qn", 4))
        A("s_cmp_ge_u32 s40, 4")
        A("s_cbranch_scc1 K1_QL0")
        bq_stage(range(QN), 64, 26, True)
        A(f"s_waitcnt lgkmcnt({2 * QN})")
        for l in kv_mfmas(NT8 - 1): A(l)
        bq_stage(range(QN, 4), 64, 26, True)
        A("s_branch K1_QL1")
        A("K1_QL0:")
        A("s_waitcnt lgkmcnt(0)")
        for l in kv_mfmas(NT8 - 1): A(l)
        A("K1_QL1:")
    else:
        A("s_waitcnt lgkmcnt(0)")
        for l in kv_mfmas(NT8 - 1): A(l)
    est(A, cfg, 6, PV)
    if E8:
        A(f"""
        s_cmp_ge_u32 s40, 4
        s_cselect_b32 s38, {HB0 - RED0}, 0
        s_cselect_b32 s55, 512, 0
        s_add_u32 s38, s38, {RED0}
        s_add_u32 s55, s55, {ZRED}
        """)
    else:
        A(f"s_mov_b32 s38, {RED0}")
        A(f"s_mov_b32 s55, {ZRED}")
    A(f"""
    s_lshl_b32 s47, s50, 13
    s_add_u32 s47, s47, s38
    v_add_u32 v2, s47, v1
    v_and_b32 v3, 31, v0
    v_lshlrev_b32 v3, 2, v3
    s_lshl_b32 s47, s50, 8
    s_add_u32 s47, s47, s55
    v_add_u32 v3, s47, v3
    """)
    A.nop(8)
    A(f"ds_write_b32 v3, v{Z0}")
    A(f"ds_write_b32 v3, v{Z1} offset:128")
    for fb in range(2):
        kv = KV0 if fb == 0 else KV1
        for q in range(4):
            A(f"ds_write_b128 v2, v[{kv+4*q}:{kv+4*q+3}] offset:{fb*4096+q*1024}")
    A("s_branch KF_JOIN")
    A.label("K1_LOADER")
    if cfg.get("lprio"): A(f"s_setprio {cfg.get('lprio')[0]}")
    def l_srd0():
        A("""
        s_cmp_eq_u32 s44, 0
        s_cselect_b32 s28, s6, s8
        s_cselect_b32 s29, s7, s9
        """)
        A(f"s_mov_b32 s30, {1024*6144}")
        A("s_mov_b32 s31, 0x00020000")
    def l_srd1():
        srd(A, 20, 6, 1024*6144)
        srd(A, 24, 8, 1024*6144)
    if not ES:
        srd(A, 16, 4, 2048*2048)
        l_srd1()
    A(f"""
    s_sub_u32 s50, s40, 4            ; w
    s_lshr_b32 s44, s50, 1
    """)
    if not ES: l_srd0()
    R1 = cfg.get("r1", "1") if cfg.get("pf2") else (cfg.get("r1", "0") if (PF3 or PF4) else "0")
    if R1 != "0":
        HM = cfg.get("hmap", "f") == "h"
        RB = 1 if HM else 2; HB = 4 if HM else 3
        NW = 3 << (4 - RB)
        A(f"""
        s_lshr_b32 s47, s45, {RSH}
        s_mul_i32 s47, s47, {ROT}
        s_and_b32 s51, s45, 1
        s_mul_i32 s51, s51, {ROT2}
        s_add_u32 s47, s47, s51          ; first block
        s_and_b32 s51, s50, 1
        s_lshl_b32 s51, s51, 1
        s_add_u32 s51, s51, s47
        v_mul_u32_u24 v20, 43, v0
        v_lshrrev_b32 v20, {10 if HM else 9}, v20
        v_mul_u32_u24 v21, {NW}, v20
        v_sub_u32 v21, v0, v21           ; lane % NW
        v_add_u32 v20, s51, v20
        v_and_b32 v20, 31, v20
        v_mul_u32_u24 v20, {32*6144}, v20
        s_and_b32 s51, s42, 1
        s_lshl_b32 s51, s51, {RB}
        s_and_b32 s52, s41, {(1 << RB) - 1}
        s_add_u32 s51, s51, s52
        s_lshl_b32 s51, s51, {4 - RB}    ; first row of the share
        v_and_b32 v22, {(1 << (4 - RB)) - 1}, v21
        v_add_u32 v22, s51, v22
        v_mul_u32_u24 v22, 6144, v22
        v_lshrrev_b32 v21, {4 - RB}, v21
        v_lshl_add_u32 v22, v21, 11, v22
        s_lshr_b32 s51, s42, 1
        s_lshl_b32 s51, s51, 7
        v_add3_u32 v20, v20, v22, s51
        v_mov_b32 v23, 0x7ffffff0
        v_cmp_gt_u32 vcc, {2 * NW}, v0
        s_lshl_b32 s51, s41, 8
        s_and_b32 s52, s42, {(1 << HB) - 1}
        s_lshl_b32 s52, s52, {8 - HB}
        v_cndmask_b32 v20, v23, v20, vcc
        s_add_u32 s51, s51, s52
        s_lshl_b32 s52, s50, {6 - HB}
        s_add_u32 s51, s51, s52
        {"" if ES else "buffer_load_dword v24, v20, s[28:31], 0 offen"}
        v_and_b32 v21, {(1 << (6 - HB)) - 1}, v0
        v_add_u32 v21, s51, v21
        v_lshlrev_b32 v21, 11, v21
        v_lshrrev_b32 v22, {6 - HB}, v0
        s_lshr_b32 s47, s47, 1
        v_add_u32 v22, s47, v22
        v_and_b32 v22, 15, v22
        v_lshl_add_u32 v21, v22, 7, v21
        v_cmp_gt_u32 vcc, {2 << (6 - HB)}, v0
        s_nop 1
        v_cndmask_b32 v21, v23, v21, vcc
        {"" if ES else "buffer_load_dword v25, v21, s[16:19], 0 offen"}
        """)
    if not ES: srd(A, 36, 10, 32*2048)
    A(f"""
    v_lshrrev_b32 v1, 3, v0
    v_lshrrev_b32 v2, 4, v0
    v_and_b32 v3, 7, v0
    v_xor_b32 v3, v3, v2
    v_lshlrev_b32 v3, 4, v3
    v_lshl_add_u32 v4, v1, 11, v3
    s_lshl_b32 s47, s41, 8
    s_lshl_b32 s51, s50, 6
    s_add_u32 s47, s47, s51
    s_lshl_b32 s47, s47, 11          ; (r*256 + 64w)*2048
    v_add_u32 v4, s47, v4            ; piece 0
    v_xor_b32 v5, 64, v4
    v_add_u32 v5, 16384, v5
    v_add_u32 v6, 32768, v4
    v_add_u32 v7, 32768, v5
    v_add_u32 v12, 65536, v4
    v_add_u32 v13, 65536, v5
    v_add_u32 v14, 98304, v4
    v_add_u32 v15, 98304, v5
    """)
    if ES:
        assert R1 == "2"
        A("s_waitcnt lgkmcnt(0)")
        rstamp(41)
        l_srd0()
        A("buffer_load_dword v24, v20, s[28:31], 0 offen")
        srd(A, 16, 4, 2048*2048)
        A("buffer_load_dword v25, v21, s[16:19], 0 offen")
        l_srd1()
        srd(A, 36, 10, 32*2048)
        srd(A, 32, 14, WS_USED)
    A(f"""
    v_lshrrev_b32 v1, {3 if cfg.get("expw") else 2}, v0
    s_and_b32 s47, s50, 1
    s_lshl_b32 s47, s47, 4
    v_add_u32 v1, s47, v1            ; krow = 16*(w&1) + (l>>2)
    v_mul_u32_u24 v1, 6144, v1
    v_and_b32 v3, {7 if cfg.get("expw") else 3}, v0
    {"v_lshrrev_b32 v2, 4, v0" if cfg.get("m16") else ""}
    {"v_and_b32 v2, 2, v2" if cfg.get("m16") else ""}
    {"v_xor_b32 v3, v2, v3            ; m16 : the column halves of k rows 8..15 change places" if cfg.get("m16") else ""}
    v_lshl_add_u32 v1, v3, 4, v1
    s_lshl_b32 s47, s42, 6           ; 64h
    {"s_and_b32 s47, s47, 0x780" if cfg.get("expw") else ""}
    s_lshl_b32 s51, s44, 11          ; type*2048
    s_add_u32 s52, s47, s51
    v_add_u32 v9, s52, v1            ; seg1 : B.q / B.k
    s_sub_u32 s52, 2048, s51
    s_add_u32 s52, s52, s47
    v_add_u32 v8, s52, v1            ; seg0 : A.k / A.q
    s_add_u32 s52, s47, 4096
    v_add_u32 v10, s52, v1           ; seg2 : A.v / B.v
    v_lshlrev_b32 v11, 4, v0
    s_and_b32 s51, s50, 1
    s_lshl_b32 s51, s51, 10
    s_lshl_b32 s47, s42, 11
    s_add_u32 s47, s47, s51          ; w_phi offset = h*2048 + (w&1)*1024
    s_add_u32 m0, s51, {K1_WPHI}
    s_lshl_b32 s55, s50, 13          ; w*8192  (x pieces)
    {"s_waitcnt vmcnt(0)" if R1 == "1" else ""}
    buffer_load_dwordx4 v11, s[36:39], s47 offen lds
    s_lshl_b32 s51, s50, 10
    s_add_u32 s56, s51, {K1_WB}      ; W pieces : + w*1024
    s_lshr_b32 s47, s45, {RSH}
    s_mul_i32 s47, s47, {ROT}
    s_and_b32 s51, s45, 1
    s_mul_i32 s51, s51, {ROT2}
    s_add_u32 s47, s47, s51
    s_and_b32 s47, s47, 31           ; first k block (rotated per XCD group: spreads the x column reads over the channels)
    s_lshl_b32 s58, s47, 6           ; soffset x
    s_mul_i32 s59, s47, {32*6144}    ; soffset W
    s_mov_b32 s60, 0                 ; block
    s_mov_b32 s61, s55               ; x slot
    s_mov_b32 s62, s56               ; W slot
    s_add_u32 s55, s55, {K1_XS*K1_NX}
    s_add_u32 s56, s56, {K1_SLOT*K1_NSLOT}
    """)
    if PF3:
        TE = int(cfg.get("te", 2))
        OFFL = int(cfg.get("offl", 0))
        XT = int(cfg.get("pfx", 1))
        BW = TE // 2; LB = BW.bit_length() - 1
        assert cfg.get("hmap", "f") == "f"
        A(f"""
        s_and_b32 s51, s42, 7            ; head within the XCD
        s_and_b32 s52, s41, 3            ; token block within the XCD
        s_and_b32 s63, s42, 1
        s_lshl_b32 s63, s63, 2
        s_add_u32 s63, s63, s52          ; share of the pair's weight lines
        s_lshl_b32 s63, s63, 2           ; first row
        s_and_b32 s64, s50, 1
        s_lshl_b32 s64, s64, {5 + LB}    ; first row of this wave's group of blocks
        s_add_u32 s63, s63, s64
        v_bfe_u32 v27, v0, 2, {LB})
        v_lshlrev_b32 v30, 5, v27        ; 32 * block
        v_and_b32 v26, 3, v0
        v_add3_u32 v26, v26, v30, s63    ; row
        v_mul_u32_u24 v26, 6144, v26
        v_lshrrev_b32 v27, {2 + LB}, v0  ; segment
        v_lshl_add_u32 v26, v27, 11, v26
        s_lshr_b32 s63, s42, 1
        s_lshl_b32 s63, s63, 7
        v_add_u32 v26, s63, v26          ; + column of the pair
        v_mov_b32 v29, 0x7ffffff0
        v_cmp_gt_u32 vcc, 3, v27
        """.replace("v_bfe_u32 v27, v0, 2, 0)", "v_mov_b32 v27, 0").replace(")\n", "\n"))
        if OFFL:
            A(f"""
            s_cmp_lt_u32 s51, 6
            s_cselect_b64 vcc, vcc, 0
            v_cndmask_b32 v26, v29, v26, vcc
            s_lshl_b32 s63, s51, 2
            s_add_u32 s63, s63, s52
            s_lshl_b32 s63, s63, 2
            v_and_b32 v28, 3, v0
            v_add_u32 v31, s63, v28          ; line of the last pair : 0..95
            v_and_b32 v28, 31, v31
            v_add3_u32 v28, v28, v30, s64
            v_mul_u32_u24 v28, 6144, v28
            v_lshrrev_b32 v31, 5, v31
            v_lshl_add_u32 v28, v31, 11, v28
            s_lshr_b32 s63, s42, 1
            s_or_b32 s63, s63, 3
            s_lshl_b32 s63, s63, 7
            v_add_u32 v28, s63, v28
            v_cmp_eq_u32 vcc, 3, v27
            s_cmp_lt_u32 s51, 6
            s_cselect_b64 vcc, vcc, 0
            v_cndmask_b32 v26, v26, v28, vcc
            """)
        else:
            A("s_nop 1\nv_cndmask_b32 v26, v29, v26, vcc")
        if OFFL == 2:
            A(f"""
            s_mul_i32 s63, s51, 43
            v_add_u32 v27, s63, v0
            v_cmp_gt_u32 vcc, 43, v0
            s_movk_i32 s63, 0x100
            v_cmp_gt_u32 s[64:65], s63, v27
            s_and_b64 vcc, vcc, s[64:65]
            s_cmp_lt_u32 s51, 6
            s_cselect_b64 vcc, vcc, 0
            """)
        else:
            A(f"""
            s_lshl_b32 s63, s51, 5
            v_add_u32 v27, s63, v0
            v_cmp_gt_u32 vcc, 32, v0
            """)
        A(f"""
        s_lshl_b32 s63, s41, 8
        v_add_u32 v27, s63, v27          ; x row
        v_lshlrev_b32 v27, 11, v27
        v_cndmask_b32 v27, v29, v27, vcc
        s_lshr_b32 s63, s58, 6           ; first block
        s_add_u32 s63, s63, {TL}
        s_and_b32 s63, s63, 31
        s_mul_i32 s64, s63, {32*6144}    ; weight offset
        s_lshr_b32 s63, s63, 1
        s_add_u32 s63, s63, s50
        s_and_b32 s63, s63, 15
        s_lshl_b32 s65, s63, 7           ; x offset
        s_cmp_lt_u32 s50, {BW}
        s_cselect_b32 s67, {2048*2048 if XT else 0}, 0
        s_cmp_lt_u32 s50, 2
        s_cselect_b32 s92, s6, s8
        s_cselect_b32 s93, s7, s9
        s_mov_b32 s94, 0
        s_mov_b32 s95, 0x00020000
        s_mov_b32 s88, s4
        s_mov_b32 s89, s5
        s_mov_b32 s90, 0
        s_mov_b32 s91, 0x00020000
        """)
    def pf4_setup():
        touch_addr("s50", 26, 27, 28, 29, True, "s66")
        A(f"""
        s_mov_b32 s67, s94
        s_cmp_ge_u32 s50, 2
        s_mov_b32 s64, {TL*32*6144}
        s_cselect_b32 s64, {TL*64}, s64
        s_mov_b32 s65, {64*6144}
        s_cselect_b32 s65, 128, s65
        """)
    ED = ES and cfg.get("ed", "1") == "1"
    if PF4 and not ED: pf4_setup()
    if PF4 and ED:
        A("""
        s_mov_b32 s92, s4
        s_mov_b32 s93, s5
        s_mov_b32 s94, 0
        s_mov_b32 s95, 0x00020000
        s_mov_b32 s64, 0
        v_mov_b32 v26, 0
        """)
    rstamp(42)
    if cfg.get("lprio"): A(f"s_setprio {cfg.get('lprio')[1]}")
    A("K1_LLOOP:")
    XV = [4, 5, 6, 7, 12, 13, 14, 15]
    def ld_x(i0=0, i1=8):
        for i in range(i0, i1):
            A(f"s_add_u32 m0, s61, {i*1024}")
            A("s_nop 0")
            A(f"buffer_load_dwordx4 v{XV[i]}, s[16:19], s58 offen lds")
        if i1 == 8: A(f"""
        s_add_u32 s58, s58, 128
        s_and_b32 s58, s58, 2047
        s_add_u32 s61, s61, {K1_XS}
        s_cmp_eq_u32 s61, s55
        s_cselect_b32 s47, {K1_XS*K1_NX}, 0
        s_sub_u32 s61, s61, s47
        """)
    def ld_w():
        for sg in range(3):
            A(f"s_add_u32 m0, s62, {sg*4096}")
            A("s_nop 0")
            A(f"buffer_load_dwordx4 v{8+sg}, s[{20+4*sg}:{23+4*sg}], s59 offen lds")
        A(f"""
        s_add_u32 s59, s59, {32*6144}
        s_cmp_eq_u32 s59, {1024*6144}
        s_cselect_b32 s59, 0, s59
        s_add_u32 s62, s62, {K1_SLOT}
        s_cmp_eq_u32 s62, s56
        s_cselect_b32 s47, {K1_SLOT*K1_NSLOT}, 0
        s_sub_u32 s62, s62, s47
        """)
    E8 = cfg.get("e8")
    def lsync(n=14):
        if cfg.get("prof") == "3":
            A("s_memtime s[96:97]")
            A(f"s_waitcnt vmcnt({n})")
            A("s_memtime s[98:99]")
            A("s_barrier")
            A("s_memtime s[90:91]")
            A("s_waitcnt lgkmcnt(0)")
            A("s_sub_u32 s96, s98, s96")
            A("s_add_u32 s100, s100, s96")
            A("s_sub_u32 s90, s90, s98")
            A("s_add_u32 s101, s101, s90")
        else:
            A(f"s_waitcnt vmcnt({n})")
            A("s_barrier")
    if cfg.get("prof") == "3":
        A("s_cmp_lg_u32 s60, 0")
        A("s_cbranch_scc1 K1_LP3")
        A("s_mov_b32 s100, 0")
        A("s_mov_b32 s101, 0")
        A.label("K1_LP3")
    BAL = int(cfg.get("bal", 0))
    NT = 2 if PF3 else 1 if PF4 else 0
    if BAL:
        ld_w(); ld_x(0, 8 - BAL)
    else:
        ld_x(); ld_w()
    A("""
    s_cmp_lt_u32 s60, 4
    s_cbranch_scc1 K1_LS1
    """)
    lsync(14 - BAL + NT)
    A("K1_LS1:")
    if BAL: ld_x(8 - BAL, 8)
    ld_w()
    if PF4:
        if ED:
            A("s_cmp_lg_u32 s60, 0"); A("s_cbranch_scc1 K1_PFS")
            pf4_setup()
            A("K1_PFS:")
        A(f"""
        s_cmp_le_u32 s60, {30 - TL}
        s_cselect_b32 s94, s67, 0
        buffer_load_dword v31, v26, s[92:95], s64 offen
        s_add_u32 s64, s64, s65
        """)
    if PF3:
        A(f"""
        s_and_b32 s63, s60, {TE - 1}
        s_cmp_le_u32 s60, {32 - TL - TE}
        s_cselect_b32 s63, s63, 1
        s_cmp_eq_u32 s63, 0
        s_cselect_b32 s94, {1024*6144}, 0
        s_cselect_b32 s90, s67, 0
        s_cselect_b32 s63, {TE*32*6144}, 0
        s_cselect_b32 s66, {TE*64}, 0
        buffer_load_dword v31, v26, s[92:95], s64 offen
        buffer_load_dword v31, v27, s[88:91], s65 offen
        s_add_u32 s64, s64, s63
        s_cmp_eq_u32 s64, {1024*6144}
        s_cselect_b32 s64, 0, s64
        s_add_u32 s65, s65, s66
        s_and_b32 s65, s65, 2047
        """)
    A("""
    s_cmp_lt_u32 s60, 2
    s_cbranch_scc1 K1_LS2
    """)
    if cfg.get("prof") == "4":
        A("s_cmp_lg_u32 s60, 2"); A("s_cbranch_scc1 K1_P4A"); rstamp(43); A(f"s_waitcnt vmcnt({14 + 2*NT})"); rstamp(44); A("K1_P4A:")
    lsync(14 + 2*NT)
    A("K1_LS2:")
    GW, GX, GA = (160, 168, 200) if E8 else (32, 64, 40)
    G1 = E8 and cfg.get("g1", "1") == "1"
    NG = 4 if G1 else 2
    XT8 = E8 and cfg.get("xt", "1") == "1"
    def gate_loads():
        srd(A, 36, 12, 2048)
        A(f"""
        s_lshl_b32 s47, s41, 8
        s_lshl_b32 s51, s42, 3
        s_add_u32 s47, s47, s51
        s_lshl_b32 s51, s50, 1
        {"s_and_b32 s51, s51, 4" if G1 else ""}
        s_add_u32 s63, s47, s51          ; t0 = r*256 + h*8 + 2w  /  + 4th
        s_lshl_b32 s51, s63, 11
        v_lshlrev_b32 v1, 5, v0
        buffer_load_dwordx4 v[{GW}:{GW+3}], v1, s[36:39], 0 offen
        buffer_load_dwordx4 v[{GW+4}:{GW+7}], v1, s[36:39], 0 offen offset:16
        """)
        for j in range(NG):
            A(f"buffer_load_dwordx4 v[{GX+8*j}:{GX+8*j+3}], v1, s[16:19], s51 offen")
            A(f"buffer_load_dwordx4 v[{GX+8*j+4}:{GX+8*j+7}], v1, s[16:19], s51 offen offset:16")
            if j < NG - 1: A("s_add_u32 s51, s51, 2048")
    def dbg_srd(r=36):
        A(f"""
        s_mov_b32 s{r}, s86
        s_mov_b32 s{r+1}, s87
        s_mov_b32 s{r+2}, 256
        s_mov_b32 s{r+3}, 0x00020000
        v_mov_b32 v46, 0
        """)
    A(f"""
    s_add_u32 s60, s60, 2
    s_cmp_lt_u32 s60, 32
    s_cbranch_scc1 K1_LLOOP
    """)
    if cfg.get("lf") == "1": A("K1_LPOST:")
    def ltail(gate):
        GN = (3 + 2*NG if gate else 1) if E8 else 0
        if E8:
            if gate:
                gate_loads()
                A("s_mov_b32 s84, s63")
            dbg_srd(92)
            poll_issue(A, 47, 46, 92, "0")
        A(f"""
        s_waitcnt vmcnt({3 + NT + GN})
        s_barrier
        """)
        if E8:
            setup_p2(A)
            A(f"s_add_u32 s74, s74, {2*65536}        ; oA offset of tiles 2, 3")
        A(f"""
        s_waitcnt vmcnt({GN})
        s_barrier
        """)
    GS = G1 and XT8 and cfg.get("gs") == "1"
    if G1:
        A("s_bitcmp1_b32 s50, 0")
        A("s_cbranch_scc0 K1_LT1" if GS else "s_cbranch_scc1 K1_LT1")
        ltail(False)
        A("s_branch K1_LT2")
        A("K1_LT1:")
        ltail(True)
        A("K1_LT2:")
    else:
        ltail(True)
    if cfg.get("prof") == "3":
        A(f"v_writelane_b32 v{PV}, s100, 0")
        A(f"v_writelane_b32 v{PV}, s101, 1")
    if cfg.get("lprio"): A("s_setprio 0")
    if E8:
        setup_p3(A)
        A("s_barrier")
        A(f"""
        s_and_b32 s51, s50, 1
        {"s_xor_b32 s51, s51, 1" if XT8 else ""}
        s_lshr_b32 s50, s50, 1
        """)
        feat_setup(TBUF1)
        A(f"""
        v_lshlrev_b32 v1, 4, v0          ; lane*16
        s_lshl_b32 s47, s50, 13
        s_add_u32 s47, s47, {HB0}
        s_lshl_b32 s38, s50, 12
        s_add_u32 s38, s38, {HB1}
        s_cmp_eq_u32 s51, 0
        s_cselect_b32 s47, s47, s38
        v_add_u32 v45, s47, v1
        """)
        for j in range(NG): A(f"v_mov_b32 v{GA+j}, 0")
        GE = cfg.get("ge") == "1"
        def gate_calc():
            for k in range(8):
                for j in range(NG):
                    A(f"v_dot2c_f32_bf16 v{GA+j}, v{GX+8*j+k}, v{GW+k}")
                if NG == 2: A("s_nop 1")
            A.nop(3)
            for rot in (8, 4, 2, 1):
                for j in range(NG): A(f"v_add_f32_dpp v{GA+j}, v{GA+j}, v{GA+j} row_ror:{rot} row_mask:0xf bank_mask:0xf")
                if NG == 2: A("s_nop 1")
            if G1:
                A(f"""
                v_permlane16_swap_b32 v{GA}, v{GA+1}
                s_nop 0
                v_permlane16_swap_b32 v{GA+2}, v{GA+3}
                s_nop 1
                v_add_f32 v{GA}, v{GA}, v{GA+1}          ; rows : a01, b01, a23, b23
                v_add_f32 v{GA+1}, v{GA+2}, v{GA+3}      ; rows : c01, d01, c23, d23
                s_nop 1
                v_permlane32_swap_b32 v{GA}, v{GA+1}
                s_nop 1
                v_add_f32 v{GA}, v{GA}, v{GA+1}
                """)
            else:
                A(f"""
                v_permlane16_swap_b32 v{GA}, v{GA+1}
                s_nop 1
                v_add_f32 v{GA}, v{GA}, v{GA+1}          ; rows : a01, b01, a23, b23
                v_mov_b32 v{GA+1}, v{GA}
                s_nop 1
                v_permlane32_swap_b32 v{GA}, v{GA+1}
                s_nop 1
                v_add_f32 v{GA}, v{GA}, v{GA+1}          ; lanes 0..15 : token t0, lanes 16..31 : token t0 + 1
                """)
            A(f"""
            v_mul_f32 v{GA}, {fhex(-LOG2E)}, v{GA}
            v_exp_f32 v{GA}, v{GA}
            v_lshrrev_b32 v{GA+2}, 4, v0
            v_lshlrev_b32 v{GA+2}, 2, v{GA+2}
            v_add_f32 v{GA}, 1.0, v{GA}
            v_rcp_f32 v{GA}, v{GA}
            s_lshl_b32 s47, s84, 2
            s_add_u32 s47, s47, {WS_G}
            s_mov_b32 exec_lo, 0x10001
            s_mov_b32 exec_hi, {"0x10001" if G1 else "0"}
            buffer_store_dword v{GA}, v{GA+2}, s[32:35], s47 offen sc1
            s_mov_b64 exec, -1
            """)
        if GE:
            assert XT8 and G1
            A("s_waitcnt vmcnt(0)")
            poll_check(A, 47, 46, 92, "0", "PG", expect="0x100")
            A("s_cmp_lg_u32 s51, 0"); A("s_cbranch_scc1 K1_GE1")
            gate_calc()
            A.label("K1_GE1")
        A("s_barrier")
        vstamp(A, cfg, 2, PV)
        est(A, cfg, 0, PV)
        if not GE:
            A("s_waitcnt vmcnt(0)")
            poll_check(A, 47, 46, 92, "0", "PG", expect="0x100")
        A("s_barrier")
        est(A, cfg, 1, PV)
        EPR = cfg.get("eprio", "00")
        if EPR != "00":
            A(f"s_setprio {EPR[1]}")
            A("s_cmp_lg_u32 s51, 0")
            A("s_cbranch_scc1 K1_LP1")
            A(f"s_setprio {EPR[0]}")
            A("K1_LP1:")
        for k in range(2):
            A(f"ds_read_b128 v[{Q+8*k}:{Q+8*k+3}], v45 offset:{k*2048}")
            A(f"ds_read_b128 v[{Q+8*k+4}:{Q+8*k+7}], v45 offset:{k*2048+1024}")
        A("s_cmp_lg_u32 s51, 0")
        A(f"s_cbranch_scc1 {'K1_E2L' if (XT8 and G1 and not GS) else 'K1_LNV'}")
        for k in range(2):
            A(f"ds_read_b128 v[{V+8*k}:{V+8*k+3}], v45 offset:{4096+k*2048}")
            A(f"ds_read_b128 v[{V+8*k+4}:{V+8*k+7}], v45 offset:{4096+k*2048+1024}")
        if G1 and (GS or not XT8): A("s_branch K1_E2L")
        A("K1_LNV:")
        if not GE: gate_calc()
        A("s_branch K1_E2L")
    else:
        gate_loads()
        A("""
        s_barrier
        s_barrier
        """)
        vstamp(A, cfg, 2, PV)
        for j in range(2): A(f"v_mov_b32 v{40+j}, 0")
        A("s_waitcnt vmcnt(0)")
        for k in range(8):
            for j in range(2):
                A(f"v_dot2c_f32_bf16 v{40+j}, v{GX+8*j+k}, v{32+k}")
            A("s_nop 1")
        A("v_lshlrev_b32 v3, 2, v0")
        A.nop(3)
        for mask in (1, 2, 4, 8, 16, 32):
            A(f"v_xor_b32 v4, {mask*4}, v3")
            for j in range(2): A(f"ds_bpermute_b32 v{5+j}, v4, v{40+j}")
            A("s_waitcnt lgkmcnt(0)")
            for j in range(2): A(f"v_add_f32 v{40+j}, v{40+j}, v{5+j}")
        A(f"v_cmp_eq_u32 vcc, 1, v0")
        A("s_nop 1")
        A(f"v_cndmask_b32 v40, v40, v41, vcc")
        A(f"""
        v_mul_f32 v40, {fhex(-LOG2E)}, v40
        v_exp_f32 v40, v40
        s_nop 0
        v_add_f32 v40, 1.0, v40
        v_rcp_f32 v40, v40
        s_lshl_b32 s47, s63, 2
        s_add_u32 s47, s47, {WS_G}
        s_mov_b64 exec, 3
        buffer_store_dword v40, v3, s[32:35], s47 offen sc1
        s_mov_b64 exec, -1
        """)
        setup_p2(A)
        setup_p3(A)
        A(f"""
        s_mov_b32 s85, s36
        v_and_b32 v35, 15, v0
        v_lshlrev_b32 v35, 2, v35
        """)
        dbg_srd()
        poll_issue(A, 47, 46, 36, "0")
        A("s_waitcnt vmcnt(0)")
        poll_check(A, 47, 46, 36, "0", "PG", expect="0x100")
        poll_issue(A, 47, 35, 32, "s78")
        A("s_waitcnt vmcnt(0)")
        poll_check(A, 47, 35, 32, "s78", "P1")
        vstamp(A, cfg, 3, PV)
        A(f"""
        v_lshlrev_b32 v3, 4, v0
        s_lshl_b32 s47, s50, 12          ; w*4096
        s_add_u32 m0, s47, {2*16384}
        s_lshl_b32 s51, s41, 1
        s_add_u32 s51, s51, 2
        s_and_b32 s51, s51, 15
        s_lshl_b32 s51, s51, 14
        s_add_u32 s51, s51, s47
        s_add_u32 s51, s51, s70
        """)
        for j in range(4):
            A(f"buffer_load_dwordx4 v3, s[32:35], s51 offen offset:{j*1024} sc1 lds")
        A("s_mov_b32 s36, s85")
    A.label("KF_JOIN")
    if cfg.get("e8") and (cfg.get("eprio", "00") != "00" or cfg.get("tp")): A("s_setprio 0")
    Q, K0, K1, V0, V1, SEL, NEGM, SA, SB, O, L, P = 8, 16, 20, 24, 28, 40, 48, 64, 80, 96, 112, 120
    PR = 33
    RD = 192
    if cfg.get("prof"): A(f"v_mov_b32 v{PR}, v{PV}")
    vstamp(A, cfg, 4, PR)
    est(A, cfg, 7, PR)
    JL = cfg.get("jl") == "1"
    def j_sel():
        A(f"""
        v_bfe_u32 v4, v0, 2, 1
        v_bfe_u32 v5, v0, 4, 1
        v_cmp_eq_u32 vcc, v4, v5
        v_mov_b32 v5, 0x3f803f80
        v_mov_b32 v4, 0
        v_cndmask_b32 v{SEL}, v4, v5, vcc
        v_cndmask_b32 v{SEL+1}, v4, v5, vcc
        v_cndmask_b32 v{SEL+2}, v4, v5, vcc
        v_cndmask_b32 v{SEL+3}, v4, v5, vcc
        v_mov_b32 v1, v3                 ; cur
        v_add_u32 v2, 16384, v3          ; next
        """)
    def j_zero(a, b):
        z = [O+i for i in range(16)]
        for i in range(4): z += [L+i, V1+i, P+4+i]
        z += [35, 36, 37, 38, 39, 45] + ([] if E8 else [46])
        for i in z[a:b]: A(f"v_mov_b32 v{i}, 0")
    A("v_lshlrev_b32 v3, 4, v0          ; lane*16")
    if not JL: j_sel()
    A(f"""
    s_lshl_b32 s47, s40, 11
    s_add_u32 s47, s47, {QST}
    v_add_u32 v6, s47, v3            ; Q staging address
    s_lshl_b32 s47, s40, 10
    s_add_u32 s47, s47, {RED0}
    v_add_u32 v7, s47, v3
    """)
    if not JL: j_zero(0, 99)
    if E8:
        A("v_and_b32 v46, 15, v0")
        A("v_lshlrev_b32 v46, 2, v46")
        if cfg.get("dp", "1") != "2": poll_issue(A, 47, 46, 32, "s78")
    A(f"""
    s_mov_b32 s60, 0
    s_mov_b32 s61, 1
    s_waitcnt lgkmcnt(0)
    """)
    est(A, cfg, 8, PR)
    A("s_barrier")
    est(A, cfg, 9, PR)
    vstamp(A, cfg, 5, PR)
    NRD = 4 if E8 else 2
    A(f"""
    ds_read_b128 v[{Q}:{Q+3}], v6
    ds_read_b128 v[{NEGM}:{NEGM+3}], v3
    ds_read_b128 v[{Q+4}:{Q+7}], v6 offset:1024
    ds_read_b128 v[{NEGM+4}:{NEGM+7}], v3 offset:1024
    ds_read_b128 v[{K0}:{K0+3}], v3 offset:4096
    ds_read_b128 v[{K1}:{K1+3}], v3 offset:{4096+1024}
    ds_read_b128 v[{V0}:{V0+3}], v3 offset:2048
    ds_read_b128 v[{RD}:{RD+3}], v7
    ds_read_b128 v[{RD+4}:{RD+7}], v7 offset:8192
    """)
    if E8:
        A(f"ds_read_b128 v[{RD+12}:{RD+15}], v7 offset:{HB0 - RED0}")
        A(f"ds_read_b128 v[{RD+16}:{RD+19}], v7 offset:{HB0 - RED0 + 8192}")
    if JL: j_zero(0, 20)
    A(f"""
    s_waitcnt lgkmcnt({5 + NRD})
    v_mfma_f32_32x32x16_bf16 v[{SA}:{SA+15}], v[{NEGM}:{NEGM+3}], v[{Q}:{Q+3}], 0
    s_waitcnt lgkmcnt({3 + NRD})
    v_mfma_f32_32x32x16_bf16 v[{SA}:{SA+15}], v[{NEGM+4}:{NEGM+7}], v[{Q+4}:{Q+7}], v[{SA}:{SA+15}]
    """)
    M32 = cfg.get("m32") == "1"
    JR = cfg.get("jr") == "1"
    if not M32:
        A(f"""
        s_waitcnt lgkmcnt({1 + NRD})
        v_mfma_f32_32x32x16_bf16 v[{SB}:{SB+15}], v[{K0}:{K0+3}], v[{Q}:{Q+3}], 0
        v_mfma_f32_32x32x16_bf16 v[{SB}:{SB+15}], v[{K1}:{K1+3}], v[{Q+4}:{Q+7}], v[{SB}:{SB+15}]
        """)
    if JL: j_sel(); j_zero(20, 99)
    def rd_sums():
      A(f"""
      s_waitcnt lgkmcnt(0)
      v_pk_add_f32 v[{RD}:{RD+1}], v[{RD}:{RD+1}], v[{RD+4}:{RD+5}]
      v_pk_add_f32 v[{RD+2}:{RD+3}], v[{RD+2}:{RD+3}], v[{RD+6}:{RD+7}]
      """)
      if E8:
        A(f"""
        v_pk_add_f32 v[{RD+12}:{RD+13}], v[{RD+12}:{RD+13}], v[{RD+16}:{RD+17}]
        v_pk_add_f32 v[{RD+14}:{RD+15}], v[{RD+14}:{RD+15}], v[{RD+18}:{RD+19}]
        v_pk_add_f32 v[{RD}:{RD+1}], v[{RD}:{RD+1}], v[{RD+12}:{RD+13}]
        v_pk_add_f32 v[{RD+2}:{RD+3}], v[{RD+2}:{RD+3}], v[{RD+14}:{RD+15}]
        s_cmp_lg_u32 s40, 7
        s_cbranch_scc1 KJ_NOZ
        v_lshlrev_b32 v4, 2, v0
        v_add_u32 v5, {ZRED}, v4
        ds_read_b32 v{RD+8}, v5
        ds_read_b32 v{RD+9}, v5 offset:256
        ds_read_b32 v{RD+10}, v5 offset:512
        ds_read_b32 v{RD+11}, v5 offset:768
        s_waitcnt lgkmcnt(0)
        v_add_f32 v{RD+8}, v{RD+8}, v{RD+9}
        v_add_f32 v{RD+10}, v{RD+10}, v{RD+11}
        v_add_f32 v{RD+8}, v{RD+8}, v{RD+10}
        KJ_NOZ:
        """)
      else:
        A(f"""
        s_cmp_lg_u32 s40, 7
        buffer_store_dwordx4 v[{RD}:{RD+3}], v3, s[32:35], s79 offen sc1
        s_cbranch_scc1 KJ_NOZ
        v_lshlrev_b32 v4, 2, v0
        v_add_u32 v5, {ZRED}, v4
        ds_read_b32 v{RD+8}, v5
        ds_read_b32 v{RD+9}, v5 offset:256
        s_waitcnt lgkmcnt(0)
        v_add_f32 v{RD+8}, v{RD+8}, v{RD+9}
        buffer_store_dword v{RD+8}, v4, s[32:35], s89 offen sc1
        KJ_NOZ:
        """)
    if not JR: rd_sums()
    else: assert E8 and JL
    A.nop(6)
    A(f"v_max3_f32 v4, v{SA}, v{SA+1}, v{SA+2}")
    A(f"v_max3_f32 v5, v{SA+3}, v{SA+4}, v{SA+5}")
    for k in range(6, 14, 4):
        A(f"v_max3_f32 v4, v4, v{SA+k}, v{SA+k+1}")
        A(f"v_max3_f32 v5, v5, v{SA+k+2}, v{SA+k+3}")
    A(f"v_max3_f32 v4, v4, v{SA+14}, v{SA+15}")
    for k in range(0, 16, 4):
        if M32: break
        A(f"v_max3_f32 v4, v4, v{SB+k}, v{SB+k+1}")
        A(f"v_max3_f32 v5, v5, v{SB+k+2}, v{SB+k+3}")
    A("v_max_f32 v4, v4, v5")
    A("v_mov_b32 v5, v4")
    A.nop(2)
    A("v_permlane32_swap_b32 v4, v5")
    A("s_nop 0")
    A("v_max_f32 v4, v4, v5")
    A(f"v_add_f32 v4, {fhex(BIAS)}, v4")
    if cfg.get("np") == "1":
        for i in range(2): A(f"v_sub_f32 v{NEGM+i}, 0, v4")
        for i in range(2, 16, 2): A(f"v_pk_mov_b32 v[{NEGM+i}:{NEGM+i+1}], v[{NEGM}:{NEGM+1}], v[{NEGM}:{NEGM+1}] op_sel:[0,1]")
    else:
        for i in range(16):
            A(f"v_sub_f32 v{NEGM+i}, 0, v4")
    for k in range(8):
        A(f"v_pk_add_f32 v[{SA+2*k}:{SA+2*k+1}], v[{SA+2*k}:{SA+2*k+1}], v[{NEGM}:{NEGM+1}]")
    if JR: rd_sums()
    DX = int(cfg.get("dx", 0))
    def chunk2():
        A(f"""
        s_lshl_b32 s47, s40, 11
        s_add_u32 m0, s47, {2*16384}
        s_lshl_b32 s38, s41, 1
        s_add_u32 s38, s38, 2
        s_and_b32 s38, s38, 15
        s_lshl_b32 s38, s38, 14
        s_add_u32 s38, s38, s47
        s_add_u32 s81, s38, s70
        buffer_load_dwordx4 v3, s[32:35], s81 offen sc1 lds
        buffer_load_dwordx4 v3, s[32:35], s81 offen offset:1024 sc1 lds
        """)
    if DX:
        assert E8 and cfg.get("prof") != "2" and 1 <= DX <= 3
        DP = cfg.get("dp", "1")
        if DP == "2": poll_issue(A, 47, 46, 32, "s78")
        if DP == "3": poll_issue(A, 45, 46, 32, "s78")
        A(f"""
        buffer_store_dwordx4 v[{RD}:{RD+3}], v3, s[32:35], s79 offen sc1
        s_cmp_lg_u32 s40, 7
        s_cbranch_scc1 KJ_NOZ2
        v_lshlrev_b32 v4, 2, v0
        buffer_store_dword v{RD+8}, v4, s[32:35], s89 offen sc1
        KJ_NOZ2:
        """)
    elif E8:
        A("s_waitcnt vmcnt(0)")
        poll_check(A, 47, 46, 32, "s78", "P1")
        A(f"""
        buffer_store_dwordx4 v[{RD}:{RD+3}], v3, s[32:35], s79 offen sc1
        s_cmp_lg_u32 s40, 7
        s_cbranch_scc1 KJ_NOZ2
        v_lshlrev_b32 v4, 2, v0
        buffer_store_dword v{RD+8}, v4, s[32:35], s89 offen sc1
        KJ_NOZ2:
        s_lshl_b32 s47, s40, 11
        s_add_u32 m0, s47, {2*16384}
        s_lshl_b32 s38, s41, 1
        s_add_u32 s38, s38, 2
        s_and_b32 s38, s38, 15
        s_lshl_b32 s38, s38, 14
        s_add_u32 s38, s38, s47
        s_add_u32 s81, s38, s70
        buffer_load_dwordx4 v3, s[32:35], s81 offen sc1 lds
        buffer_load_dwordx4 v3, s[32:35], s81 offen offset:1024 sc1 lds
        """)
    vstamp(A, cfg, 6, PR)
    est(A, cfg, 10, PR)
    if cfg.get("prof") == "2":
        A("s_mov_b32 s100, 15"); A(f"v_mov_b32 v{PR}, 0"); bstamp(A, cfg, 2); A("s_mov_b32 s100, 0")
    def dma_ops():
        a = ["s_mov_b32 m0, s72", "s_add_u32 s81, s70, s71", "s_add_u32 s72, s72, 16384",
             "buffer_load_dwordx4 v3, s[32:35], s81 offen sc1 lds"]
        b = ["buffer_load_dwordx4 v3, s[32:35], s81 offen offset:1024 sc1 lds",
             f"s_and_b32 s72, s72, {RING-1}", "s_add_u32 s71, s71, 16384", "s_and_b32 s71, s71, 0x3ffff"]
        return a, b
    def dma_chunk():
        a, b = dma_ops()
        for l in a + b: A(l)
    class LQ:
        def __init__(s, init): s.q = list(init)
        def rd(s, tag, text):
            def f(): A(text); s.q.append(tag)
            return f
        def wait(s, *tags):
            idx = max([k for k, t in enumerate(s.q) if t in tags], default=-1)
            if idx < 0: return
            A(f"s_waitcnt lgkmcnt({min(15, len(s.q) - 1 - idx)})")
            s.q = s.q[idx+1:]
    LQM = [None]
    def tile(i, Sa, Sb, sideA=(), sideB=(), end=()):
        e = lambda k: f"v_exp_f32 v{Sa+k}, v{Sa+k}"
        c = lambda k: f"v_cvt_pk_bf16_f32 v{P+k}, v{Sa+2*k}, v{Sa+2*k+1}"
        QK0 = f"v_mfma_f32_32x32x16_bf16 v[{Sb}:{Sb+15}], v[{K0}:{K0+3}], v[{Q}:{Q+3}], v[{NEGM}:{NEGM+15}]"
        QK1 = f"v_mfma_f32_32x32x16_bf16 v[{Sb}:{Sb+15}], v[{K1}:{K1+3}], v[{Q+4}:{Q+7}], v[{Sb}:{Sb+15}]"
        PV0 = f"v_mfma_f32_32x32x16_bf16 v[{O}:{O+15}], v[{V0}:{V0+3}], v[{P}:{P+3}], v[{O}:{O+15}]"
        PV1 = f"v_mfma_f32_32x32x16_bf16 v[{O}:{O+15}], v[{V1}:{V1+3}], v[{P+4}:{P+7}], v[{O}:{O+15}]"
        L0 = f"v_mfma_f32_16x16x32_bf16 v[{L}:{L+3}], v[{SEL}:{SEL+3}], v[{P}:{P+3}], v[{L}:{L+3}]"
        L1 = f"v_mfma_f32_16x16x32_bf16 v[{L}:{L+3}], v[{SEL}:{SEL+3}], v[{P+4}:{P+7}], v[{L}:{L+3}]"
        W = "s_waitcnt lgkmcnt(3)"
        def addr(tt, fr):
            return (f"v1 offset:{tt*4096+fr*1024}" if tt < 4 else f"v2 offset:{(tt-4)*4096+fr*1024}")
        rK0 = f"ds_read_b128 v[{K0}:{K0+3}], {addr(i+2, 0)}"; rK1 = f"ds_read_b128 v[{K1}:{K1+3}], {addr(i+2, 1)}"
        rV0 = f"ds_read_b128 v[{V0}:{V0+3}], {addr(i+1, 2)}"; rV1 = f"ds_read_b128 v[{V1}:{V1+3}], {addr(i, 3)}"
        WV1 = WK0 = WK1 = WV0 = W
        lq = LQM[0]
        if lq:
            WV1, WK0, WK1, WV0 = [(lambda t=t: lq.wait(t)) for t in ("V1", "K0", "K1", "V0")]
            rV1, rK0, rK1, rV0 = lq.rd("V1", rV1), lq.rd("K0", rK0), lq.rd("K1", rK1), lq.rd("V0", rV0)
        seq = [e(0), e(1), WV1, PV1, rV1, *sideA, e(2), e(3), e(4), e(5), WK0, QK0, rK0, e(6), e(7), c(0), c(1), L1, c(2), c(3), e(8), WK1, QK1, rK1,
               *sideB, e(9), e(10), e(11), WV0, PV0, rV0, e(12), e(13), e(14), L0, e(15), c(4), c(5), c(6), c(7), *end]
        for x in seq:
            if callable(x): x()
            else: A(x)
    PRIO = [int(c) for c in cfg.get("prio", "3210")]
    def period(sides=None, dma=True, head=False):
        if head and DX:
            A("s_cmp_eq_u32 s60, 0"); A("s_cbranch_scc1 K2_ND")
            dma_chunk()
            A.label("K2_ND")
        elif dma: dma_chunk()
        for i in range(4):
            sa, sb, en = (sides or {}).get(i, ((), (), ()))
            if head and DX and i == 2:
                A(f"""
                s_cmp_eq_u32 s60, 1
                s_cbranch_scc0 K2_N2
                s_waitcnt vmcnt(5)
                s_barrier
                K2_N2:
                """)
            if cfg.get("prio"): A(f"s_setprio {PRIO[i]}")
            tile(i, SA if i % 2 == 0 else SB, SB if i % 2 == 0 else SA, sa, sb, en)
            if head and DX and i == DX - 1:
                A("s_cmp_eq_u32 s60, 0"); A("s_cbranch_scc1 K2_P0X"); A.label("K2_P0R")
        A(f"""
        v_mov_b32 v1, v2
        v_add_u32 v2, 16384, v2
        v_and_b32 v2, {RING-1}, v2
        """)
    if DX:
        A("s_branch K2_LOOP")
        A.label("K2_P0X")
        if DP == "3":
            A("""
            s_waitcnt vmcnt(2)
            v_cmp_eq_u32 vcc, 1, v47
            s_cmp_eq_u64 vcc, -1
            s_cbranch_scc1 K2_P0K
            s_waitcnt vmcnt(1)
            v_mov_b32 v47, v45
            """)
        else:
            A("s_waitcnt vmcnt(1)")
        poll_check(A, 47, 46, 32, "s78", "P1")
        A.label("K2_P0K")
        chunk2()
        dma_chunk()
        A("s_branch K2_P0R")
    A.label("K2_LOOP")
    period(head=True)
    if DX:
        A(f"""
        s_add_u32 s60, s60, 1
        s_cmp_eq_u32 s60, 1
        s_cbranch_scc0 K2_W2
        s_waitcnt vmcnt(4)
        s_branch K2_W4
        K2_W2:
        s_waitcnt vmcnt(2)
        K2_W4:
        s_cmp_lg_u32 s60, s61
        s_barrier
        s_cbranch_scc1 K2_LOOP
        """)
    elif cfg.get("prof") == "2":
        pbar(A, cfg, "s_waitcnt vmcnt(2)")
        A("""
        s_add_u32 s60, s60, 1
        s_cmp_lg_u32 s60, s61
        s_cbranch_scc1 K2_LOOP
        """)
    else:
        A(f"""
        s_add_u32 s60, s60, 1
        s_cmp_lg_u32 s60, s61
        s_waitcnt vmcnt(2)
        s_barrier
        s_cbranch_scc1 K2_LOOP
        """)
    A(f"""
    s_cmp_eq_u32 s60, 1
    s_cbranch_scc1 KD_1
    s_cmp_eq_u32 s60, 3
    s_cbranch_scc1 KD_3
    s_cmp_eq_u32 s60, 4
    s_cbranch_scc1 KD_4
    s_branch KD_7
    KD_1:
    s_mov_b32 s61, 3
    """)
    set_flag(A, "s68")
    A(f"""
    s_branch K2_LOOP
    KD_3:
    v_lshlrev_b32 v46, 2, v0
    s_mov_b32 s61, 4
    """)
    poll_issue(A, 47, 46, 32, "s77")
    A("s_branch K2_LOOP")
    A.label("KD_4")
    vstamp(A, cfg, 7, PR)
    poll_check(A, 47, 46, 32, "s77", "PK")
    KVP = 192; ZP = 224
    A(f"""
    s_cmp_eq_u32 s40, 4
    s_cselect_b32 s84, 1, 0          ; wave 4 also reduces z
    """)
    def kvload(rr):
        def f():
            A(f"buffer_load_dwordx4 v[{KVP+4*rr}:{KVP+4*rr+3}], v3, s[32:35], s75 offen sc1")
            A("s_add_u32 s75, s75, 8192")
        return f
    def zload(rr):
        def f():
            j = A.uid("KZ")
            A("s_cmp_eq_u32 s84, 0"); A(f"s_cbranch_scc1 {j}")
            A(f"buffer_load_dword v{ZP+rr}, v46, s[32:35], s76 offen offset:{256*rr} sc1")
            A(f"buffer_load_dword v{ZP+rr+1}, v46, s[32:35], s76 offen offset:{256*rr+256} sc1")
            A.label(j)
        return f
    period({i: ((kvload(2*i),), (kvload(2*i+1),), (zload(2*i),)) for i in range(4)})
    pbar(A, cfg, "s_waitcnt vmcnt(10)")
    def kvsum():
        A("s_waitcnt vmcnt(2)")
        A(f"""
        s_lshr_b32 s47, s40, 1
        s_lshl_b32 s47, s47, 10
        s_and_b32 s38, s40, 1
        s_lshl_b32 s38, s38, 3
        s_add_u32 s47, s47, s38
        s_add_u32 s47, s47, {KVT_L}
        v_add_u32 v4, s47, v3            ; kvT write address
        """)
        b = KVP
        for rr in range(1, 8):
            A(f"v_pk_add_f32 v[{b}:{b+1}], v[{b}:{b+1}], v[{b+4*rr}:{b+4*rr+1}]")
            A(f"v_pk_add_f32 v[{b+2}:{b+3}], v[{b+2}:{b+3}], v[{b+4*rr+2}:{b+4*rr+3}]")
        A(f"v_cvt_pk_bf16_f32 v{b}, v{b}, v{b+1}")
        A(f"v_cvt_pk_bf16_f32 v{b+1}, v{b+2}, v{b+3}")
        A(f"ds_write_b64 v4, v[{b}:{b+1}]")
        j = A.uid("KZS")
        A("s_cmp_eq_u32 s84, 0"); A(f"s_cbranch_scc1 {j}")
        for rr in range(1, 8):
            A(f"v_add_f32 v{ZP}, v{ZP}, v{ZP+rr}")
        A(f"""
        v_lshlrev_b32 v5, 1, v0
        v_add_u32 v5, {Z_L}, v5          ; z write address (lane = f)
        v_cvt_pk_bf16_f32 v{ZP}, v{ZP}, v{ZP}
        ds_write_b16 v5, v{ZP}
        """)
        A.label(j)
    period({1: ((), (), (kvsum,))})
    pbar(A, cfg, None)
    A(f"""
    s_mov_b32 s60, 6
    s_mov_b32 s61, 7
    {"s_lshr_b32 s47, s40, 2" if XT8 else "s_mov_b32 s47, 0"}
    s_xor_b32 s47, s47, s40
    s_and_b32 s47, s47, {1 if E8 else 5}
    s_cmp_lg_u32 s47, 1
    s_cbranch_scc1 K2_LOOP
    """)
    KVT, ZR, NUM, DEN, OA = 192, 208, 224, 240, 244
    A(f"""
    v_add_u32 v4, {KVT_L}, v3
    v_lshrrev_b32 v5, 5, v0
    v_lshlrev_b32 v5, 3, v5
    v_add_u32 v5, {Z_L}, v5          ; Z + hh*8
    """)
    for s in range(4):
        A(f"ds_read_b128 v[{KVT+4*s}:{KVT+4*s+3}], v4 offset:{s*1024}")
        A(f"ds_read_b64 v[{ZR+4*s}:{ZR+4*s+1}], v5 offset:{32*s}")
        A(f"ds_read_b64 v[{ZR+4*s+2}:{ZR+4*s+3}], v5 offset:{32*s+16}")
    def zmask():
        A("v_bfe_u32 v4, v0, 2, 1")
        A("v_bfe_u32 v5, v0, 4, 1")
        A("v_cmp_eq_u32 vcc, v4, v5")
        A("v_mov_b32 v4, 0")
        A("s_nop 0")
        for k in range(16): A(f"v_cndmask_b32 v{ZR+k}, v4, v{ZR+k}, vcc")
    def amfma(t):
        def f():
            for s in range(4):
                c = "0" if s == 0 else f"v[{NUM}:{NUM+15}]"
                A(f"v_mfma_f32_32x32x16_bf16 v[{NUM}:{NUM+15}], v[{KVT+4*s}:{KVT+4*s+3}], v[{PHQ+16*t+4*s}:{PHQ+16*t+4*s+3}], {c}")
                c = "0" if s == 0 else f"v[{DEN}:{DEN+3}]"
                A(f"v_mfma_f32_16x16x32_bf16 v[{DEN}:{DEN+3}], v[{ZR+4*s}:{ZR+4*s+3}], v[{PHQ+16*t+4*s}:{PHQ+16*t+4*s+3}], {c}")
        return f
    def afin():
        A(f"v_add_f32 v4, {fhex(1e-6)}, v{DEN}")
        A("v_rcp_f32 v4, v4")
        A("s_nop 0")
        for k in range(8):
            A(f"v_pk_mul_f32 v[{NUM+2*k}:{NUM+2*k+1}], v[{NUM+2*k}:{NUM+2*k+1}], v[4:5] op_sel_hi:[1,0]")
        cvt_tile(A, OA, NUM)
        A(f"buffer_store_dwordx4 v[{OA}:{OA+3}], v3, s[32:35], s74 offen sc1")
        A(f"buffer_store_dwordx4 v[{OA+4}:{OA+7}], v3, s[32:35], s74 offen offset:1024 sc1")
        A("s_add_u32 s74, s74, 65536")
    if E8:
        period({0: ((), (), (zmask, amfma(0))), 1: ((), (), (afin, amfma(1))), 2: ((), (), (afin,))})
        pbar(A, cfg, "s_waitcnt vmcnt(6)")
    else:
        period({0: ((), (), (zmask, amfma(0))), 1: ((), (), (afin, amfma(1))), 2: ((), (), (afin, amfma(2))), 3: ((), (), (afin, amfma(3)))})
        A.nop(12)
        afin()
        pbar(A, cfg, "s_waitcnt vmcnt(10)")
    P16 = cfg.get("p16")
    A.label("KD_7")
    A(f"""
    s_mov_b32 s60, 7
    v_and_b32 v45, 31, v0
    v_lshlrev_b32 v45, 2, v45        ; (l&31)*4
    v_lshlrev_b32 v35, 2, v0         ; lane*4
    v_lshrrev_b32 v4, 3, v0
    v_lshlrev_b32 v5, 11, v4         ; row*2048
    v_and_b32 v7, 7, v0
    v_bfe_u32 v6, v0, 4, {2 if P16 else 1}
    v_lshlrev_b32 v6, {1 if P16 else 2}, v6
    v_xor_b32 v7, v7, v6
    v_lshl_add_u32 v5, v7, 4, v5
    s_lshl_b32 s47, s18, 9
    s_lshl_b32 s38, s19, 4
    s_add_u32 s47, s47, s38
    s_lshl_b32 s47, s47, 11
    s_lshl_b32 s38, s17, 7
    s_add_u32 s47, s47, s38          ; + C*128
    v_add_u32 v36, s47, v5           ; piece 0
    v_add_u32 v37, {16384 - 1024}, v36 ; piece 1 (with offset:1024)
    v_lshrrev_b32 v7, 5, v0          ; hh
    v_bfe_u32 v6, v0, 2, 2           ; i>>2
    v_lshl_add_u32 v7, v7, 2, v6
    v_lshlrev_b32 v7, 7, v7
    v_bfe_u32 v6, v0, 4, 1
    v_bfe_u32 v5, v0, 1, 1
    v_lshl_add_u32 v6, v6, 1, v5
    v_bfe_u32 v5, v0, 3, 1
    v_lshlrev_b32 v5, 2, v5
    v_xor_b32 v6, v6, v5
    v_lshl_add_u32 v7, v6, 4, v7
    v_and_b32 v5, 1, v0
    v_lshl_add_u32 v7, v5, 3, v7
    s_lshl_b32 s38, s18, 13
    v_add_u32 v38, s38, v7           ; cb=0
    v_xor_b32 v39, 64, v38           ; cb=1
    s_add_u32 s80, s30, {WSL(0)}
    """)
    if P16:
        A(f"""
        v_lshrrev_b32 v4, 4, v0          ; q4
        v_and_b32 v5, 15, v0             ; i
        v_lshlrev_b32 v39, 4, v5
        v_lshl_add_u32 v39, v4, 9, v39   ; o : q4 * 512 + i * 16
        v_lshrrev_b32 v6, 1, v4
        v_lshlrev_b32 v6, 4, v6          ; 16 fr
        v_and_b32 v7, 1, v4
        v_lshl_add_u32 v6, v7, 2, v6     ; + 4 hh
        v_lshrrev_b32 v5, 2, v5
        v_add_u32 v6, v6, v5             ; k row
        v_lshlrev_b32 v38, 7, v6
        v_bfe_u32 v6, v6, 1, 2           ; (row >> 1) & 3
        v_lshl_add_u32 v38, v6, 5, v38
        v_and_b32 v5, 3, v0
        v_lshl_add_u32 v38, v5, 3, v38
        v_add_u32 v38, s38, v38
        v_and_b32 v45, 15, v0
        v_lshlrev_b32 v45, 2, v45        ; (l&15)*4
        """)
    def wo_ops(m0src):
        a = [m0src, "s_nop 0", "buffer_load_dwordx4 v36, s[20:23], s29 offen lds"]
        b = ["buffer_load_dwordx4 v37, s[20:23], s29 offen offset:1024 lds", f"s_add_u32 s29, s29, {64*2048}"]
        return a, b
    A.label("K2_LOOPB")
    wa, wb = wo_ops("s_mov_b32 m0, s80")
    wb = wb + ["s_add_u32 s80, s80, 16384"]
    ca, cb_ = dma_ops()
    period({0: (tuple(wa), tuple(wb), ()), 1: (tuple(wa), tuple(wb), ()), 2: (tuple(ca), tuple(cb_), ())}, dma=False)
    if cfg.get("prof") == "2":
        pbar(A, cfg, "s_waitcnt vmcnt(6)")
        A("""
        s_add_u32 s60, s60, 1
        s_cmp_eq_u32 s60, 10
        """)
    else:
        A("""
        s_add_u32 s60, s60, 1
        s_cmp_eq_u32 s60, 10
        s_waitcnt vmcnt(6)
        s_barrier
        """)
    A(f"""
    s_cbranch_scc1 KB_10
    s_cmp_eq_u32 s60, 9
    s_cbranch_scc1 KB_9
    s_and_b32 s47, s40, 5
    s_cmp_lg_u32 s47, 1
    s_cbranch_scc1 K2_LOOPB
    """)
    set_flag(A, "s88")
    A("s_branch K2_LOOPB")
    A.label("KB_9")
    poll_issue(A, 47, 35, 32, "s36")
    A("s_branch K2_LOOPB")
    A.label("KB_10")
    vstamp(A, cfg, 8, PR)
    poll_check(A, 47, 35, 32, "s36", "PA")
    G, OMG = 32, 34
    OF = 128
    vm = VM(A, ["W4", "W4", "W5", "W5", "c12", "c12"])
    vm.now("G", f"buffer_load_dword v{G}, v45, s[32:35], s31 offen sc1")
    if P16: vm.now("G", f"buffer_load_dword v35, v45, s[32:35], s31 offen offset:64 sc1")
    OV = 39 if P16 else 3
    ooff = (lambda j: (j >> 1)*2048 + (j & 1)*256) if P16 else (lambda j: j*1024)
    nld = [0]
    AE = int(cfg.get("ae", 0))
    assert AE in (0, 4, 5) and not (AE and P16)
    OFA = (lambda s: OF + 16*(s % 5)) if AE else (lambda s: OF + 16*s)
    ACE, WE, WEA = 224, (208, 216), 116
    def oload():
        k = nld[0]; nld[0] += 1
        s, j = divmod(k, 4)
        r = OFA(s) + 4*j
        def f():
            vm.now(f"o{k}" if AE else "o", f"buffer_load_dwordx4 v[{r}:{r+3}], v{OV}, s[32:35], s28 offen offset:{ooff(j)} sc1")
            if j == 3: A("s_add_u32 s28, s28, 4096")
        return f
    if AE:
        A(f"v_add_u32 v{WEA}, {WSL(0)}, v38")
        A(f"v_add_u32 v{WEA+1}, {WSL(0)}, v39")
        LQM[0] = LQ(["V1", "K0", "K1", "V0"])
    def ae_read(k, cb):
        s, j = divmod(k, 4)
        fs = []
        for sec in range(2):
            r = WE[k & 1] + 4*cb + 2*sec
            fs.append(LQM[0].rd(f"w{k}{cb}", f"ds_read_b64_tr_b16 v[{r}:{r+1}], v{WEA+cb} offset:{s*16384 + (16*j+8*sec)*128}"))
        return tuple(fs)
    def ae_mfma(k, cb):
        s, j = divmod(k, 4)
        def f():
            vm.wait(f"o{k}"); LQM[0].wait(f"w{k}{cb}")
            a = ACE + 16*cb; w = WE[k & 1] + 4*cb; o = OFA(s) + 4*j
            A(f"v_mfma_f32_32x32x16_bf16 v[{a}:{a+15}], v[{w}:{w+3}], v[{o}:{o+3}], " + ("0" if k == 0 else f"v[{a}:{a+15}]"))
        return f
    def lines(tag, ls):
        def f():
            for l in ls:
                if l.startswith("buffer_"): vm.now(tag, l)
                else: A(l)
        return f
    BT = int(cfg.get("btouch", 0))
    def btouch():
        A(f"""
        s_and_b32 s47, s16, 3
        s_lshl_b32 s47, s47, 3
        s_add_u32 s47, s47, s40
        s_lshl_b32 s47, s47, 5           ; first row : (T&3)*256 + wave*32
        v_add_u32 v44, s47, v0
        v_lshlrev_b32 v44, 11, v44
        s_lshl_b32 s47, s17, 7
        v_add_u32 v44, s47, v44
        v_mov_b32 v4, 0x7ffffff0
        v_cmp_gt_u32 vcc, 32, v0
        s_mov_b32 s92, s6
        s_mov_b32 s93, s7
        s_mov_b32 s94, {1024*2048}
        s_mov_b32 s95, 0x00020000
        v_cndmask_b32 v44, v4, v44, vcc
        """)
        vm.now("T", "buffer_load_dword v44, v44, s[92:95], 0 offen")
    for n in range(10, 16):
        sides = {}
        if n <= 12:
            a, b = dma_ops()
            sides[0] = ((lines(f"c{n+3}", a),), (lines(f"c{n+3}", b),), (oload(),))
            sides[1] = ((oload(),), (oload(),), ())
            if AE == 5 and n == 12:
                sides[2] = ((), (), ()); sides[3] = ((), (), ())
                sides[1] = ((oload(),), (oload(),), ())
            else:
                sides[2] = ((oload(),), (oload(),), ())
                sides[3] = ((oload(),), (), ())
        elif n <= 14:
            a, b = wo_ops(f"s_add_u32 m0, s30, {WSL(n - 7)}")
            if AE == 4:
                sides[0] = ((lines("W", a),), (lines("W", b),), (oload(),))
                sides[1] = ((oload(),), (oload(),), ())
                sides[2] = ((oload(),), (), ()) if n == 14 else ((oload(),), (oload(),), ())
                sides[3] = ((), (), ()) if n == 14 else ((oload(),), (), ())
            else:
                sides[0] = ((lines("W", a),), (lines("W", b),), (oload(),))
                sides[1] = ((oload(),), (oload(),), ())
                sides[2] = ((oload(),), (), ())
                sides[3] = ((oload(),), (), ())
        else:
            sides[0] = ((oload(),), (oload(),), ())
            sides[1] = ((oload(),), (oload(),), ())
        if n == BT: sides[3] = (sides[3][0], sides[3][1], tuple(sides[3][2]) + (btouch,))
        if AE:
            assert AE == 4
            for i in range(4):
                sa, sb, en = sides.get(i, ((), (), ()))
                k = 4*(n - (16 - AE)) + i
                if 0 <= k < 4*AE:
                    sa = (ae_mfma(k, 0),) + tuple(sa); sb = (ae_mfma(k, 1),) + tuple(sb)
                if 0 <= k + 1 < 4*AE:
                    sa = tuple(sa) + ae_read(k + 1, 0); sb = tuple(sb) + ae_read(k + 1, 1)
                sides[i] = (sa, sb, en)
        period(sides, dma=False)
        if n <= 13:
            pbar(A, cfg, lambda: vm.wait(f"c{n+2}"))
        elif cfg.get("prof") == "2":
            bstamp(A, cfg, 0); bstamp(A, cfg, 1); bstamp(A, cfg, 2)
        if n == 12: vstamp(A, cfg, 9, PR)
    assert nld[0] == 32
    A(f"""
    s_mov_b32 s60, 16
    s_waitcnt lgkmcnt(0)
    v_mfma_f32_32x32x16_bf16 v[{O}:{O+15}], v[{V1}:{V1+3}], v[{P+4}:{P+7}], v[{O}:{O+15}]
    v_mfma_f32_16x16x32_bf16 v[{L}:{L+3}], v[{SEL}:{SEL+3}], v[{P+4}:{P+7}], v[{L}:{L+3}]
    """)
    vstamp(A, cfg, 10, PR)
    rst(A, cfg, 0)
    A("v_lshlrev_b32 v45, 3, v0")
    A.nop(12)
    A.label("K2_FIN")
    A(f"v_rcp_f32 v4, v{L}")
    A("s_nop 0")
    for k in range(8):
        A(f"v_pk_mul_f32 v[{O+2*k}:{O+2*k+1}], v[{O+2*k}:{O+2*k+1}], v[4:5] op_sel_hi:[1,0]")
    FA = cfg.get("fa") == "1"
    def ob_out():
        for i in range(8):
            A(f"v_cvt_pk_bf16_f32 v{P+i}, v{O+2*i}, v{O+2*i+1}")
        A(f"buffer_store_dwordx4 v[{P}:{P+3}], v3, s[32:35], s73 offen sc1")
        A(f"buffer_store_dwordx4 v[{P+4}:{P+7}], v3, s[32:35], s73 offen offset:1024 sc1")
    if FA: ob_out()
    A("v_mov_b32 v6, 0")
    for k in range(16):
        A(f"v_fma_f32 v6, v{O+k}, 0, v6")
    A(f"""
    v_mov_b32 v7, {fhex(2.0**120)}
    v_cmp_u_f32 vcc, v6, v6
    v_cmp_nlt_f32 s[62:63], v{L}, v7
    s_or_b64 vcc, vcc, s[62:63]
    """)
    if cfg.get("force_fb"):
        A("s_mov_b64 vcc, -1")
    A(f"""
    s_cmp_eq_u32 s60, 16
    s_cselect_b64 vcc, vcc, 0
    s_cbranch_vccnz K2_FB
    """)
    if not FA: ob_out()
    EF = cfg.get("ef")
    if EF:
        A("""
        s_cmp_lt_u32 s40, 4
        s_cbranch_scc0 K3_EF1
        s_waitcnt vmcnt(0)
        """)
        set_flag(A, "s69")
        A("""
        s_branch K3_EF2
        K3_EF1:
        s_setprio 1
        s_waitcnt vmcnt(2)
        K3_EF2:
        """)
    else:
        A("s_waitcnt vmcnt(2)")
    A("s_barrier")
    vstamp(A, cfg, 11, PR)
    rst(A, cfg, 1)
    LQM[0] = None
    WFJ = [16, 24, 48, 56]
    ACCA, ACCB = (ACE if AE else 64), 96
    OFB = (lambda s: OF + 16*(s % 6)) if AE else (lambda s: OF + 16*s)
    P3V = cfg.get("p3v") in ("2", "3")
    OD = int(cfg.get("od", 8))
    P3R = cfg.get("p3v") == "3"
    BSL = lambda b: 32768 + 16384 * b if b < 2 else WSL(b - 2)
    def waddr(s, slot=WSL):
        if slot is None:
            A("v_add_u32 v40, s90, v38")
            A("v_add_u32 v41, s90, v39")
            A("s_add_u32 s90, s90, 16384")
            A("s_and_b32 s90, s90, 0x1ffff")
            return
        A(f"v_add_u32 v40, {slot(s)}, v38")
        if P16:
            A("v_xor_b32 v41, 32, v40"); A("v_xor_b32 v42, 64, v40"); A("v_xor_b32 v43, 0x60, v40")
        else:
            A(f"v_add_u32 v41, {slot(s)}, v39")
    W16F = lambda hd, cg: WFJ[2*hd + (cg >> 1)] + 4*(cg & 1)
    def wread16(hd, cg):
        for sec in range(2):
            r = W16F(hd, cg) + 2*sec
            A(f"ds_read_b64_tr_b16 v[{r}:{r+1}], v{40+cg} offset:{(32*hd+8*sec)*128}")
    def gemm16(acc_, after, owait, slot=WSL, inl={}, stamp=None, fs_tail=None):
        waddr(0, slot)
        A("s_nop 0")
        for hd in range(2):
            for cg in range(4): wread16(hd, cg)
        OX = [int(x) for x in cfg.get("ox", "0:0").split(":")]
        iss = [4 * OD]
        for t in range(32): iss.append(min(32, iss[-1] + (2 if OX[0] <= t < OX[1] else 1)))
        def jbody(s, j, more=0):
            last = s == 7
            hd, b = j >> 1, j & 1
            if owait: A(f"s_waitcnt vmcnt({iss[4*s + j] - (4*s + j) - 1})")
            for cg in range(4):
                if b == 0: A(f"s_waitcnt lgkmcnt({2*(3 - cg) + (0 if (last and hd == 1) else 8) + more})")
                w = W16F(hd, cg); o = OF + 16*s + 4*j; a = acc_ + 4*(2*cg + b)
                c = "0" if (s == 0 and hd == 0) else f"v[{a}:{a+3}]"
                A(f"v_mfma_f32_16x16x32_bf16 v[{a}:{a+3}], v[{w}:{w+3}], v[{o}:{o+3}], {c}")
                if b == 1 and not last: wread16(hd, cg)
            if j == 0 and not last: waddr(s + 1, slot)
            for l in inl.get((s, j), []):
                if callable(l): l()
                else: A(l)
            if owait:
                for n in range(iss[4*s + j], iss[4*s + j + 1]): o_load(n >> 2, n & 3)
        for s in range(8):
            for j in range(4):
                if fs_tail and s == 7 and j == 2:
                    A("s_cmp_eq_u32 s18, 0"); A("s_cbranch_scc1 K3_G0T")
                    A("s_barrier")
                    for q in range(8): A(f"ds_read_b128 v[{OF+4*q}:{OF+4*q+3}], v4 offset:{q*1024}")
                    jbody(7, 2, 8); jbody(7, 3, 8)
                    if stamp is not None: rst(A, cfg, stamp + s)
                    fs_tail()
                    A.label("K3_G0T")
                jbody(s, j)
            if s in after: after[s]()
            if stamp is not None and cfg.get("prof") == "5" and (s in (1, 3, 5, 7) or owait):
                rst(A, cfg, stamp + s)
    def wreads(j):
        for cb in range(2):
            for sec in range(2):
                r = WFJ[j] + 4*cb + 2*sec
                A(f"ds_read_b64_tr_b16 v[{r}:{r+1}], v{40+cb} offset:{(16*j+8*sec)*128}")
    def gemm(acc_, after, owait, slot=WSL, inl={}, stamp=None, s0=0, fs_tail=None):
        if P16: return gemm16(acc_, after, owait, slot, inl, stamp, fs_tail)
        waddr(s0, slot)
        for j in range(4): wreads(j)
        for s in range(s0, 8):
            last = s == 7
            for j in range(4):
                if owait: A(f"s_waitcnt vmcnt({min(4*OD + 4*s + j, 32) - (4*s + j) - 1 + (4 if (AE and 4*s + j < 4*OD) else 0)})")
                for cb in range(2):
                    n = (14 - 2*cb) if not last else (14 - 4*j - 2*cb)
                    A(f"s_waitcnt lgkmcnt({n})")
                    w = WFJ[j] + 4*cb; o = (OFB(s) if owait else OFA(s)) + 4*j; a = acc_ + 16*cb
                    c = "0" if (s == 0 and j == 0) else f"v[{a}:{a+15}]"
                    A(f"v_mfma_f32_32x32x16_bf16 v[{a}:{a+15}], v[{w}:{w+3}], v[{o}:{o+3}], {c}")
                if not last:
                    if j == 0: waddr(s + 1, slot)
                    wreads(j)
                for l in inl.get((s, j), []):
                    if callable(l): l()
                    else: A(l)
                if owait and s + OD < 8: o_load(s + OD, j)
            if s in after: after[s]()
            if stamp is not None and cfg.get("prof") == "5" and (s in (1, 3, 5, 7) or owait):
                rst(A, cfg, stamp + s)
    def refill(s0):
        for s in range(s0, s0 + 4):
            a, b = wo_ops(f"s_add_u32 m0, s30, {WSL(s)}")
            for l in a + b: A(l)
    def a_flag():
        A("s_waitcnt vmcnt(0)")
        set_flag(A, "s69")
    def a_mid():
        A("s_barrier")
        A("""
        s_mov_b32 s20, s6
        s_mov_b32 s21, s7
        s_mov_b32 s29, 0
        """)
        refill(0)
    def a_poll():
        poll_issue(A, 46, 45, 32, "s83", n=2)
    FBPOS = int(cfg.get("fbpos", 2))
    RB0 = 32768 if P3V else 0
    NZ = cfg.get("nz") == "1"
    if NZ:
        assert cfg.get("fs") == "1"
        RB0 = 0
    def out_addr():
        A(f"""
        v_sub_f32 v{OMG}, 1.0, v{G}
        {"v_sub_f32 v46, 1.0, v35" if P16 else ""}
        v_and_b32 v4, {15 if P16 else 31}, v0
        s_lshl_b32 s38, s19, 5
        v_add_u32 v4, s38, v4
        v_mul_u32_u24 v4, {K3_ROW}, v4
        v_lshrrev_b32 v5, {4 if P16 else 5}, v0
        v_lshl_add_u32 v4, v5, 4, v4
        s_mul_i32 s38, s18, {K3_RED}
        {f"s_add_u32 s38, s38, {RB0}" if RB0 else ""}
        v_add_u32 v4, s38, v4            ; write address
        s_lshl_b32 s38, s40, 6
        v_add_u32 v10, s38, v0           ; tid
        v_lshrrev_b32 v5, 3, v10
        v_and_b32 v6, 7, v10             ; chunk
        v_mul_u32_u24 v7, {K3_ROW}, v5
        v_lshl_add_u32 v7, v6, 5, v7     ; read address
        {f"v_add_u32 v7, {RB0}, v7" if RB0 else ""}
        s_lshl_b32 s38, s16, 7
        v_add_u32 v5, s38, v5
        v_lshlrev_b32 v5, 11, v5
        v_lshl_add_u32 v5, v6, 4, v5
        s_lshl_b32 s38, s17, 7
        v_add_u32 v5, s38, v5            ; out offset
        """)
    FS = cfg.get("fs") == "1"
    assert not FS or (P16 and P3V and not AE and not P3R)
    def out_addr_fs():
        A(f"""
        v_sub_f32 v{OMG}, 1.0, v{G}
        v_sub_f32 v46, 1.0, v35
        s_lshl_b32 s38, s19, 13
        s_add_u32 s38, s38, {RB0}
        v_lshl_add_u32 v4, v0, 4, s38
        v_and_b32 v5, 15, v0
        s_lshl_b32 s38, s16, 7
        s_lshl_b32 s47, s19, 5
        s_add_u32 s38, s38, s47
        v_add_u32 v5, s38, v5            ; token
        v_lshlrev_b32 v5, 11, v5
        v_lshrrev_b32 v6, 4, v0
        v_lshl_add_u32 v5, v6, 4, v5
        s_lshl_b32 s38, s17, 7
        v_add_u32 v5, s38, v5            ; out offset
        v_add_u32 v6, {16*2048}, v5      ; tokens 16..31
        """)
    def prof_out():
        if cfg.get("prof"):
            A("s_waitcnt vmcnt(0)")
            vstamp(A, cfg, 14, PR)
            rst(A, cfg, 24)
            A(f"""
            s_mov_b32 s92, s14
            s_mov_b32 s93, s15
            s_mov_b32 s94, {64*MB}
            s_mov_b32 s95, 0x00020000
            s_lshl_b32 s90, s2, 3
            s_add_u32 s90, s90, s40
            s_lshl_b32 s90, s90, {8 if cfg.get("prof") in ("2", "3", "4", "5", "6") else 7}
            s_add_u32 s90, s90, {WS_PROFV}
            v_lshlrev_b32 v1, 2, v0
            s_mov_b64 exec, {-1 if cfg.get("prof") in ("2", "3", "4", "5", "6") else "0xffffffff"}
            buffer_store_dword v{PR}, v1, s[92:95], s90 offen
            """)
    def fma_out():
        for k in range(16):
            om = 46 if (P16 and (k >> 1) & 1) else OMG
            A(f"v_pk_fma_f32 v[{ACCA+2*k}:{ACCA+2*k+1}], v[{ACCB+2*k}:{ACCB+2*k+1}], v[{om}:{om+1}], v[{ACCA+2*k}:{ACCA+2*k+1}] op_sel_hi:[1,0,1]")
    def fs_tail1():
        vstamp(A, cfg, 13, PR)
        A("s_waitcnt lgkmcnt(0)")
        D = OF + 32
        grp = [(p, b) for b in range(2) for p in range(2)]
        if cfg.get("st") == "1":
            ks = lambda b: [k for k in range(16) if ((k >> 1) & 1) == b]
            def add(b):
                for k in ks(b): A(f"v_pk_add_f32 v[{ACCA+2*k}:{ACCA+2*k+1}], v[{ACCA+2*k}:{ACCA+2*k+1}], v[{OF+2*k}:{OF+2*k+1}]")
            def fma(b):
                for k in ks(b): A(f"v_pk_fma_f32 v[{ACCA+2*k}:{ACCA+2*k+1}], v[{ACCB+2*k}:{ACCB+2*k+1}], v[{46 if b else OMG}:{(46 if b else OMG)+1}], v[{ACCA+2*k}:{ACCA+2*k+1}] op_sel_hi:[1,0,1]")
            def cvt(b):
                for g, (p, b_) in enumerate(grp):
                    if b_ != b: continue
                    x = ACCA + 4*(2*(2*p) + b); y = ACCA + 4*(2*(2*p + 1) + b); d = D + 4*g
                    A(f"v_cvt_pk_bf16_f32 v{d}, v{x}, v{x+1}")
                    A(f"v_cvt_pk_bf16_f32 v{d+1}, v{x+2}, v{x+3}")
                    A(f"v_cvt_pk_bf16_f32 v{d+2}, v{y}, v{y+1}")
                    A(f"v_cvt_pk_bf16_f32 v{d+3}, v{y+2}, v{y+3}")
            def swp(b):
                for sw in ("32", "16"):
                    for g, (p, b_) in enumerate(grp):
                        if b_ != b: continue
                        d = D + 4*g
                        A(f"v_permlane{sw}_swap_b32 v{d}, v{d+2}")
                        A(f"v_permlane{sw}_swap_b32 v{d+1}, v{d+3}")
                    if sw == "32": A("s_nop 1")
            def sto(b):
                for g, (p, b_) in enumerate(grp):
                    if b_ != b: continue
                    d = D + 4*g
                    A(f"buffer_store_dwordx4 v[{d}:{d+3}], v{5 + b}, s[24:27], 0 offen offset:{p*64} {cfg.get('ost', 'nt').replace('+', ' ')}")
            assert P16
            add(0); add(1); fma(0); cvt(0); A("s_nop 1"); swp(0); fma(1); sto(0); cvt(1); A("s_nop 1"); swp(1)
            rst(A, cfg, 22); rst(A, cfg, 23)
            sto(1)
            prof_out()
            A("s_endpgm")
            return
        for k in range(16):
            A(f"v_pk_add_f32 v[{ACCA+2*k}:{ACCA+2*k+1}], v[{ACCA+2*k}:{ACCA+2*k+1}], v[{OF+2*k}:{OF+2*k+1}]")
        fma_out()
        rst(A, cfg, 22)
        for g, (p, b) in enumerate(grp):
            x = ACCA + 4*(2*(2*p) + b); y = ACCA + 4*(2*(2*p + 1) + b); d = D + 4*g
            A(f"v_cvt_pk_bf16_f32 v{d}, v{x}, v{x+1}")
            A(f"v_cvt_pk_bf16_f32 v{d+1}, v{x+2}, v{x+3}")
            A(f"v_cvt_pk_bf16_f32 v{d+2}, v{y}, v{y+1}")
            A(f"v_cvt_pk_bf16_f32 v{d+3}, v{y+2}, v{y+3}")
        A("s_nop 1")
        for sw in ("32", "16"):
            for g in range(4):
                d = D + 4*g
                A(f"v_permlane{sw}_swap_b32 v{d}, v{d+2}")
                A(f"v_permlane{sw}_swap_b32 v{d+1}, v{d+3}")
        rst(A, cfg, 23)
        for g, (p, b) in enumerate(grp):
            d = D + 4*g
            A(f"buffer_store_dwordx4 v[{d}:{d+3}], v{5 + b}, s[24:27], 0 offen offset:{p*64} {cfg.get('ost', 'nt').replace('+', ' ')}")
        prof_out()
        A("s_endpgm")
    def scale_a():
        for k in range(16):
            if P16 and (k >> 1) & 1:
                A(f"v_pk_mul_f32 v[{ACCA+2*k}:{ACCA+2*k+1}], v[{ACCA+2*k}:{ACCA+2*k+1}], v[34:35] op_sel:[0,1] op_sel_hi:[1,1]")
            else:
                A(f"v_pk_mul_f32 v[{ACCA+2*k}:{ACCA+2*k+1}], v[{ACCA+2*k}:{ACCA+2*k+1}], v[{G}:{G+1}] op_sel_hi:[1,0]")
    def o_load(s, j):
        if j == 0:
            if s == 0: A(f"s_sub_u32 s28, s28, 32768" if cfg.get("expo") else f"s_add_u32 s28, s28, {4*MB - 32768}")
            if P3R:
                A("s_add_u32 s85, s28, s91")
                A("s_add_u32 s91, s91, 4096")
                A("s_and_b32 s91, s91, 0x7fff")
            elif s: A("s_add_u32 s28, s28, 4096")
        r = OFB(s) + 4*j
        A(f"buffer_load_dwordx4 v[{r}:{r+3}], v{OV}, s[32:35], {'s85' if P3R else 's28'} offen offset:{ooff(j)} sc1")
    def o_loads():
        for s in range(OD):
            for j in range(4): o_load(s, j)
    if P3V:
        A("""
        s_mov_b32 s20, s6
        s_mov_b32 s21, s7
        s_mov_b32 s29, 0
        """)
        inl = {}
        def bslab(b, s, j):
            a_, b_ = wo_ops(f"s_add_u32 m0, s30, {BSL(b)}")
            inl[(s, j)] = a_; inl[(s, j + 1)] = b_
        BS = cfg.get("bs", "0")
        bslab(0, 0, 0); bslab(1, 1, 0)
        if BS == "0":
            bslab(2, 4, 0); bslab(3, 4, 2); bslab(4, 5, 0); bslab(5, 5, 2)
        else:
            bslab(2, 2, 0); bslab(3, 3, 0); bslab(4, 4, 0); bslab(5, 5, 0)
        bslab(6, 6, 0); bslab(7, 6, 2)
        def a_flag2():
            if EF:
                j = A.uid("K3_F")
                A("s_cmp_lt_u32 s40, 4"); A(f"s_cbranch_scc1 {j}")
            A(f"s_waitcnt vmcnt({2 * min(FBPOS + 1, 2)})")
            set_flag(A, "s69")
            if EF:
                A("s_setprio 0")
                A.label(j)
        EP = int(cfg.get("ep", 0))
        def a_bar5():
            if EP:
                A("s_waitcnt vmcnt(7)")
                A("s_barrier")
                poll_check(A, 46, 45, 32, "s83", "PB", n=2)
                for b in (6, 7):
                    a_, b_ = wo_ops(f"s_add_u32 m0, s30, {BSL(b)}")
                    for l in a_ + b_: A(l)
                for s_ in range(EP):
                    for j in range(4): o_load(s_, j)
            else:
                A("s_barrier")
                a_poll()
        if EP:
            assert OD == EP + 2 and not P3R
            del inl[(6, 0)], inl[(6, 1)], inl[(6, 2)], inl[(6, 3)]
            inl[(4, 0)] = inl[(4, 0)] + [a_poll]
            for s_ in (6, 7):
                for j in range(4): inl[(s_, j)] = [(lambda s_=s_, j=j: o_load(EP + s_ - 6, j))]
        aft = {3: lambda: A("s_barrier"), 5: a_bar5}
        if FBPOS == 3: aft[3] = lambda: (a_flag2(), A("s_barrier"))
        else: aft[FBPOS] = a_flag2
        if BS == "1":
            assert FBPOS in (0, 1)
            if FBPOS == 1: aft[1] = lambda: (a_flag2(), A("s_barrier"))
            else: aft[1] = lambda: A("s_barrier")
        if AE:
            assert not EP and not P3R and BS == "0"
            inl.clear()
            n_ = 0
            for b in range(6):
                a_, b_ = wo_ops(f"s_add_u32 m0, s30, {BSL(b)}")
                inl[(AE + b // 4, b % 4)] = a_ + b_
            def a_flag3():
                j = A.uid("K3_F")
                if EF: A("s_cmp_lt_u32 s40, 4"); A(f"s_cbranch_scc1 {j}")
                nb = min(4 * (FBPOS + 1), 6)
                A(f"s_waitcnt vmcnt({2 * nb})")
                set_flag(A, "s69")
                if EF: A("s_setprio 0")
                A.label(j)
            AEP = int(cfg.get("aep", 6))
            assert AEP > AE + FBPOS or AEP == 7
            aft = {AE + FBPOS: a_flag3}
            aft[AEP] = a_poll if AEP != AE + FBPOS else (lambda: (a_flag3(), a_poll()))
            gemm(ACCA, aft, False, WSL, inl, 2, AE)
        else:
            gemm(ACCA, aft, False, WSL, inl, 2)
        vstamp(A, cfg, 12, PR)
        if P3R:
            RM = int(cfg.get("rmask", 6))
            A(f"""
            s_and_b32 s47, s17, {RM}         ; first slab
            s_lshl_b32 s90, s47, 14
            s_lshl_b32 s91, s47, 12
            v_add_u32 v38, 32768, v38
            v_add_u32 v39, 32768, v39
            """)
            if cfg.get("gfirst", "1") == "1":
                A("""
                s_and_b32 s47, s17, 1            ; group that loads first
                s_cmp_eq_u32 s47, s18
                s_cbranch_scc0 K3_NP
                s_setprio 1
                K3_NP:
                """)
        A(f"s_waitcnt vmcnt({4 * OD if EP else 0})")
        rst(A, cfg, 10)
        A("s_barrier")
        rst(A, cfg, 11)
        if not EP:
            poll_check(A, 46, 45, 32, "s83", "PB", n=2)
            rst(A, cfg, 12)
            o_loads()
            if AE:
                for b in (6, 7):
                    a_, b_ = wo_ops(f"s_add_u32 m0, s30, {BSL(b)}")
                    for l in a_ + b_: A(l)
            rst(A, cfg, 13)
        if cfg.get("bp"):
            j = A.uid("K3_BP")
            A(f"s_cmp_eq_u32 s18, {cfg.get('bp')[0]}"); A(f"s_cbranch_scc0 {j}"); A(f"s_setprio {cfg.get('bp')[1]}"); A.label(j)
        if FS: out_addr_fs()
        else: out_addr()
        scale_a()
        srd(A, 24, 8, 4194304)
        def zbar(g):
            def f():
                j = A.uid("K3_Z")
                A(f"s_cmp_eq_u32 s18, {g}"); A(f"s_cbranch_scc0 {j}"); A("s_barrier"); A.label(j)
            return f
        if P3R:
            gemm(ACCB, {}, True, None, {}, 14)
            vstamp(A, cfg, 13, PR)
            A("s_setprio 0")
            A("s_barrier")
            A.nop(12)
        elif AE:
            gemm(ACCB, {4: lambda: A("s_barrier")}, True, BSL, {}, 14)
            vstamp(A, cfg, 13, PR)
            A.nop(12)
        elif FS:
            aftB = {} if NZ else {int(cfg.get("zs", 4)): zbar(1)}
            if cfg.get("bpd"): aftB[int(cfg.get("bpd"))] = lambda: A("s_setprio 0")
            gemm(ACCB, aftB, True, BSL, {}, 14, 0, fs_tail1)
            vstamp(A, cfg, 13, PR)
            if not NZ: A("s_barrier")
            A.nop(12)
            fma_out()
            for q in range(8): A(f"ds_write_b128 v4, v[{ACCA+4*q}:{ACCA+4*q+3}] offset:{q*1024}")
            A("s_waitcnt lgkmcnt(0)")
            rst(A, cfg, 22)
            A("s_barrier")
            rst(A, cfg, 23)
            prof_out()
            A("s_endpgm")
        else:
            gemm(ACCB, {4: zbar(1)}, True, BSL, {}, 14)
            vstamp(A, cfg, 13, PR)
            zbar(0)()
            A.nop(12)
    else:
        gemm(ACCA, {FBPOS: a_flag, 3: a_mid, 5: a_poll}, False)
        A("s_barrier")
        refill(4)
        vstamp(A, cfg, 12, PR)
        A("s_waitcnt vmcnt(8)")
        poll_check(A, 46, 45, 32, "s83", "PB", n=2)
        o_loads()
        A("s_waitcnt vmcnt(31)")
        A("s_barrier")
        gemm(ACCB, {}, True)
        vstamp(A, cfg, 13, PR)
        out_addr()
        scale_a()
        A("s_barrier")
        srd(A, 24, 8, 4194304)
        A.nop(4)
    if not FS:
        for k in range(16):
            om = 46 if (P16 and (k >> 1) & 1) else OMG
            A(f"v_pk_fma_f32 v[{ACCA+2*k}:{ACCA+2*k+1}], v[{ACCB+2*k}:{ACCB+2*k+1}], v[{om}:{om+1}], v[{ACCA+2*k}:{ACCA+2*k+1}] op_sel_hi:[1,0,1]")
        for cb in range(2):
            for q in range(4):
                r = ACCA + 16*cb + 4*q
                if P16: A(f"ds_write_b128 v4, v[{r}:{r+3}] offset:{(q & 1)*16*K3_ROW + (2*cb + (q >> 1))*64}")
                else: A(f"ds_write_b128 v4, v[{r}:{r+3}] offset:{cb*128 + q*32}")
        A("s_waitcnt lgkmcnt(0)")
        rst(A, cfg, 22)
        A("s_barrier")
        rst(A, cfg, 23)
        R = 128
        for it in range(2):
            for g in range(2):
                for hf in range(2):
                    r = R + 16*it + 8*g + 4*hf
                    A(f"ds_read_b128 v[{r}:{r+3}], v7 offset:{it*64*K3_ROW + g*K3_RED + hf*16}")
        for it in range(2):
            A(f"s_waitcnt lgkmcnt({4 - 4*it})")
            r = R + 16*it
            for k in range(4):
                A(f"v_pk_add_f32 v[{r+2*k}:{r+2*k+1}], v[{r+2*k}:{r+2*k+1}], v[{r+8+2*k}:{r+8+2*k+1}]")
            for k in range(4):
                A(f"v_cvt_pk_bf16_f32 v{r+k}, v{r+2*k}, v{r+2*k+1}")
            A(f"buffer_store_dwordx4 v[{r}:{r+3}], v5, s[24:27], 0 offen {cfg.get('ost', 'nt').replace('+', ' ')}")
            if it == 0: A(f"v_add_u32 v5, {64*2048}, v5")
        if cfg.get("prof"):
            A("s_waitcnt vmcnt(0)")
            vstamp(A, cfg, 14, PR)
            rst(A, cfg, 24)
            A(f"""
            s_mov_b32 s92, s14
            s_mov_b32 s93, s15
            s_mov_b32 s94, {64*MB}
            s_mov_b32 s95, 0x00020000
            s_lshl_b32 s90, s2, 3
            s_add_u32 s90, s90, s40
            s_lshl_b32 s90, s90, {8 if cfg.get("prof") in ("2", "3", "4", "5", "6") else 7}
            s_add_u32 s90, s90, {WS_PROFV}
            v_lshlrev_b32 v1, 2, v0
            s_mov_b64 exec, {-1 if cfg.get("prof") in ("2", "3", "4", "5", "6") else "0xffffffff"}
            buffer_store_dword v{PR}, v1, s[92:95], s90 offen
            """)
        A("s_endpgm")
    A.label("K2_FB")
    vstamp(A, cfg, 15, PR)
    A("s_mov_b32 s60, 17")
    A("s_mov_b32 s61, 0")
    for i in range(16): A(f"v_mov_b32 v{O+i}, 0")
    for i in range(4): A(f"v_mov_b32 v{L+i}, 0")
    A(f"v_mov_b32 v44, 0xff800000")
    A.label("K2_FBL")
    A(f"""
    buffer_load_dwordx4 v[{K0}:{K0+3}], v3, s[32:35], s70 offen sc1
    buffer_load_dwordx4 v[{K1}:{K1+3}], v3, s[32:35], s70 offen offset:1024 sc1
    buffer_load_dwordx4 v[{V0}:{V0+3}], v3, s[32:35], s70 offen offset:2048 sc1
    buffer_load_dwordx4 v[{V1}:{V1+3}], v3, s[32:35], s70 offen offset:3072 sc1
    s_add_u32 s70, s70, 4096
    s_waitcnt vmcnt(0)
    v_mfma_f32_32x32x16_bf16 v[{SA}:{SA+15}], v[{K0}:{K0+3}], v[{Q}:{Q+3}], 0
    v_mfma_f32_32x32x16_bf16 v[{SA}:{SA+15}], v[{K1}:{K1+3}], v[{Q+4}:{Q+7}], v[{SA}:{SA+15}]
    """)
    A.nop(12)
    A(f"v_max3_f32 v4, v{SA}, v{SA+1}, v{SA+2}")
    for k in range(3, 15, 2):
        A(f"v_max3_f32 v4, v4, v{SA+k}, v{SA+k+1}")
    A(f"v_max3_f32 v4, v4, v{SA+15}, v44")
    A("v_mov_b32 v5, v4")
    A.nop(2)
    A("v_permlane32_swap_b32 v4, v5")
    A("s_nop 0")
    A("v_max_f32 v4, v4, v5")
    A("v_sub_f32 v5, v44, v4")
    A("v_exp_f32 v5, v5")
    A("v_mov_b32 v44, v4")
    for k in range(16):
        A(f"v_sub_f32 v{SA+k}, v{SA+k}, v4")
    for k in range(16):
        A(f"v_exp_f32 v{SA+k}, v{SA+k}")
    for k in range(16):
        A(f"v_mul_f32 v{O+k}, v{O+k}, v5")
    for k in range(4):
        A(f"v_mul_f32 v{L+k}, v{L+k}, v5")
    for k in range(8):
        A(f"v_cvt_pk_bf16_f32 v{P+k}, v{SA+2*k}, v{SA+2*k+1}")
    A("s_nop 1")
    A(f"""
    v_mfma_f32_32x32x16_bf16 v[{O}:{O+15}], v[{V0}:{V0+3}], v[{P}:{P+3}], v[{O}:{O+15}]
    v_mfma_f32_16x16x32_bf16 v[{L}:{L+3}], v[{SEL}:{SEL+3}], v[{P}:{P+3}], v[{L}:{L+3}]
    v_mfma_f32_32x32x16_bf16 v[{O}:{O+15}], v[{V1}:{V1+3}], v[{P+4}:{P+7}], v[{O}:{O+15}]
    v_mfma_f32_16x16x32_bf16 v[{L}:{L+3}], v[{SEL}:{SEL+3}], v[{P+4}:{P+7}], v[{L}:{L+3}]
    s_add_u32 s61, s61, 1
    s_cmp_lt_u32 s61, 64
    """)
    A.nop(12)
    A("s_cbranch_scc1 K2_FBL")
    A("s_branch K2_FIN")
    A.label("KF_END")
    A("s_endpgm")
    if cfg.get("lf") == "1":
        L_ = A.lines
        i0 = L_.index("K1_LOADER:"); i1 = L_.index("K1_LPOST:")
        blk = L_[i0:i1]
        del L_[i0:i1]
        b = L_.index("    s_cbranch_scc1 K1_LOADER")
        assert L_[b-1].strip() == "s_cmp_ge_u32 s40, 4"
        L_[b-1:b+1] = ["    s_cmp_lt_u32 s40, 4", "    s_cbranch_scc1 K1_CONS"] + blk + ["    s_branch K1_LPOST", "K1_CONS:"]
    WU = cfg.get("wu")
    if WU:
        L_ = A.lines
        def after(pred, nth=0, start=0):
            k = [i for i in range(start, len(L_)) if pred(L_[i].strip())]
            return k[nth] + 1
        def stub(pos, name, nxt, skip=False):
            L_[pos:pos] = ([f"    s_branch {name}S"] if skip else []) + [f"{name}:", f"    s_branch {nxt}"] + ([f"{name}S:"] if skip else [])
        kb10 = L_.index("KB_10:")
        stub(after(lambda l: l == "s_endpgm"), "WU_9", "WU_BACK")
        stub(after(lambda l: l == "s_branch K3_EF2"), "WU_8", "WU_9" if WU == "1" else "WU_BACK")
        stub(after(lambda l: l == "s_barrier", 1, kb10), "WU_7", "WU_BACK", skip=True)
        stub(kb10, "WU_6", "WU_7" if WU == "1" else "WU_BACK")
        stub(after(lambda l: l == "s_branch K1_E2L"), "WU_5", "WU_BACK")
        stub(after(lambda l: l.startswith("s_branch K1_TJ_")), "WU_4", "WU_5" if WU == "1" else "WU_BACK")
        p = after(lambda l: l == "s_barrier", 0, L_.index("K1_NOZ:")) - 1
        d = []
        if WU == "1":
            for w, t in ((0, "WU_4"), (1, "WU_6"), (2, "WU_8")): d += [f"    s_cmp_eq_u32 s40, {w}", f"    s_cbranch_scc1 {t}"]
        else:
            d += ["    s_cmp_eq_u32 s40, 9"] + [f"    s_cbranch_scc1 {t}" for t in ("WU_4", "WU_5", "WU_6", "WU_7", "WU_8", "WU_9")]
        L_[p:p] = d + ["WU_BACK:"]
    return K, KG_LDS
```

```python
from common import *

KNAME = NAME + "_kernel"
K1_XS = 32768
K1_NX = 3
K1_WB = K1_XS * K1_NX
K1_SLOT = 12288
K1_NSLOT = 5
K1_WPHI = K1_WB + K1_SLOT * K1_NSLOT
K1_TBUF = 4352
RING = 65536
QST = 65536
TBUF0 = 81920
RED0 = 98304
ZRED = 114688
KVT_L = 116736
Z_L = 120832
KG_LDS = 163840
def WSL(s): return 65536 + 16384 * s if s < 6 else 16384 * (s - 6)
WS_F1 = WS_FLAG
WS_FK = WS_FLAG + 4096
WS_FA = WS_FLAG + 16384
WS_FB = WS_FLAG + 20480
HB0 = 122880
HB1 = 139264
TBUF1 = 147456
BIAS = 80.0
K3_ROW = 272
K3_RED = 128 * K3_ROW
SPIN_MAX = 1 << 16
WS_PROFV = WS_PROF

def cvt_tile(A, dst, src):
    for i in range(8):
        A(f"v_cvt_pk_bf16_f32 v{dst+i}, v{src+2*i}, v{src+2*i+1}")

def bstamp(A, cfg, kind, reg=33):
    if cfg.get("prof") == "2":
        A("s_memtime s[96:97]")
        A(f"s_add_u32 m0, s100, {16*kind}")
        A("s_waitcnt lgkmcnt(0)")
        A(f"v_writelane_b32 v{reg}, s96, m0")
        if kind == 2: A("s_add_u32 s100, s100, 1")

def pbar(A, cfg, wait):
    bstamp(A, cfg, 0)
    if callable(wait): wait()
    elif wait: A(wait)
    bstamp(A, cfg, 1)
    A("s_barrier")
    bstamp(A, cfg, 2)

def vstamp(A, cfg, i, reg):
    if cfg.get("prof") == "1":
        A("s_memtime s[96:97]")
        A("s_memrealtime s[98:99]")
        A("s_waitcnt lgkmcnt(0)")
        A(f"v_writelane_b32 v{reg}, s96, {2*i}")
        A(f"v_writelane_b32 v{reg}, s98, {2*i+1}")

def rst(A, cfg, lane, reg=33):
    if cfg.get("prof") == "5":
        A("s_memrealtime s[96:97]")
        A("s_waitcnt lgkmcnt(0)")
        A(f"v_writelane_b32 v{reg}, s96, {lane}")

def est(A, cfg, lane, reg):
    if cfg.get("prof") == "6":
        A("s_memtime s[96:97]")
        A("s_waitcnt lgkmcnt(0)")
        A(f"v_writelane_b32 v{reg}, s96, {lane}")

def poll_issue(A, vdst, vaddr, srd, soff, n=1):
    if n == 1: A(f"buffer_load_dword v{vdst}, v{vaddr}, s[{srd}:{srd+3}], {soff} offen sc1")
    else:      A(f"buffer_load_dwordx2 v[{vdst}:{vdst+1}], v{vaddr}, s[{srd}:{srd+3}], {soff} offen sc1")

def poll_check(A, vdst, vaddr, srd, soff, tag, expect=1, n=1):
    ok = A.uid(tag + "_OK"); sp = A.uid(tag + "_SP")
    def test():
        if n == 2: A(f"v_and_b32 v{vdst}, v{vdst}, v{vdst+1}")
        A(f"v_cmp_eq_u32 vcc, {expect}, v{vdst}")
        A("s_cmp_eq_u64 vcc, -1")
        A(f"s_cbranch_scc1 {ok}")
    test()
    A("s_mov_b32 s82, 0")
    A.label(sp)
    A("s_sleep 2")
    poll_issue(A, vdst, vaddr, srd, soff, n)
    A("s_add_u32 s82, s82, 1")
    A("s_waitcnt vmcnt(0)")
    test()
    A(f"s_cmp_lt_u32 s82, {SPIN_MAX}")
    A(f"s_cbranch_scc1 {sp}")
    A.label(ok)

def set_flag(A, soff):
    A(f"""
    s_mov_b64 exec, 1
    v_mov_b32 v4, 1
    v_mov_b32 v5, 0
    buffer_store_dword v4, v5, s[32:35], {soff} offen sc1
    s_mov_b64 exec, -1
    """)

class VM:
    def __init__(s, A, init=()): s.A = A; s.q = list(init)
    def op(s, tag, text):
        def f(): s.A(text); s.q.append(tag)
        return f
    def now(s, tag, text): s.op(tag, text)()
    def wait(s, *tags):
        idx = max([k for k, t in enumerate(s.q) if t in tags], default=-1)
        if idx < 0: return
        s.A(f"s_waitcnt vmcnt({len(s.q) - 1 - idx})")
        s.q = s.q[idx+1:]

def setup_p2(A):
    A(f"""
    s_lshl_b32 s70, s42, 18
    s_add_u32 s70, s70, {WS_KVB}
    s_lshl_b32 s47, s41, 1
    s_add_u32 s47, s47, 3
    s_and_b32 s47, s47, 15           ; chunk 3 of the rotated order
    s_lshl_b32 s47, s47, 14
    s_lshl_b32 s38, s40, 11
    s_add_u32 s71, s47, s38          ; offset within the head of this wave's part of the next chunk
    s_add_u32 s72, s38, {3*16384}    ; LDS offset of the same
    s_lshl_b32 s47, s41, 3
    s_add_u32 s47, s47, s40
    s_lshl_b32 s47, s47, 5
    s_add_u32 s47, s47, s42
    s_lshl_b32 s73, s47, 11
    s_add_u32 s73, s73, {WS_OB}      ; oB store offset
    s_lshr_b32 s39, s40, 1
    s_and_b32 s39, s39, 1            ; th
    s_lshl_b32 s47, s41, 3
    s_lshl_b32 s38, s39, 2
    s_add_u32 s47, s47, s38          ; r*8 + th*4
    s_lshl_b32 s47, s47, 5
    s_add_u32 s47, s47, s42
    s_lshl_b32 s74, s47, 11
    s_add_u32 s74, s74, {WS_OA}      ; oA store offset (waves 1, 3)
    s_lshl_b32 s75, s42, 16
    s_lshl_b32 s47, s40, 10
    s_add_u32 s75, s75, s47
    s_add_u32 s75, s75, {WS_KVP}
    s_lshl_b32 s47, s41, 13
    s_add_u32 s79, s75, s47          ; kv partial store offset
    s_lshl_b32 s76, s42, 11
    s_add_u32 s76, s76, {WS_ZP}
    s_lshl_b32 s47, s41, 8
    s_add_u32 s89, s76, s47          ; z partial store offset
    s_lshl_b32 s77, s42, 8
    s_add_u32 s77, s77, {WS_FK}
    s_lshl_b32 s47, s41, 5
    s_add_u32 s68, s77, s47
    s_lshl_b32 s47, s40, 2
    s_add_u32 s68, s68, s47
    s_lshl_b32 s78, s42, 6
    s_add_u32 s78, s78, {WS_F1}      ; F1 line
    s_lshl_b32 s47, s41, 3
    s_add_u32 s67, s78, s47
    s_lshl_b32 s38, s39, 2
    s_add_u32 s67, s67, s38
    s_lshl_b32 s88, s41, 8
    s_lshl_b32 s47, s42, 3
    s_add_u32 s88, s88, s47
    s_add_u32 s88, s88, s38
    s_add_u32 s88, s88, {WS_FA}
    s_lshl_b32 s47, s41, 1
    s_lshr_b32 s38, s40, 2
    s_add_u32 s47, s47, s38
    s_lshl_b32 s69, s47, 9
    s_lshl_b32 s47, s42, 4
    s_add_u32 s69, s69, s47
    s_and_b32 s47, s40, 3
    s_lshl_b32 s47, s47, 2
    s_add_u32 s69, s69, s47
    s_add_u32 s69, s69, {WS_FB}
    """)

def setup_p3(A):
    A(f"""
    s_load_dwordx2 s[4:5], s[0:1], 24
    s_load_dwordx2 s[6:7], s[0:1], 48
    s_load_dwordx2 s[8:9], s[0:1], 64
    s_lshr_b32 s16, s45, 1
    s_lshl_b32 s16, s16, 2
    s_lshr_b32 s47, s46, 3
    s_add_u32 s16, s16, s47          ; T = 4*(e>>1) + (i>>3)
    s_and_b32 s17, s45, 1
    s_lshl_b32 s17, s17, 3
    s_and_b32 s47, s46, 7
    s_add_u32 s17, s17, s47          ; C = 8*(e&1) + (i&7)
    s_lshr_b32 s18, s40, 2           ; grp
    s_and_b32 s19, s40, 3            ; tq
    s_lshl_b32 s47, s16, 2
    s_add_u32 s47, s47, s19          ; tb3
    s_lshl_b32 s28, s47, 16
    s_lshl_b32 s38, s18, 15
    s_add_u32 s28, s28, s38
    s_add_u32 s28, s28, {WS_OA}      ; o stream offset
    s_lshl_b32 s31, s47, 7
    s_add_u32 s31, s31, {WS_G}       ; g offset
    s_lshr_b32 s47, s16, 1
    s_lshl_b32 s36, s47, 8
    s_add_u32 s36, s36, {WS_FA}
    s_lshl_b32 s83, s16, 9
    s_add_u32 s83, s83, {WS_FB}
    s_lshl_b32 s30, s18, 13
    s_lshl_b32 s38, s19, 11
    s_add_u32 s30, s30, s38
    s_mov_b32 s29, 0                 ; wo soffset
    s_waitcnt lgkmcnt(0)
    s_mov_b32 s20, s4
    s_mov_b32 s21, s5
    s_mov_b32 s22, {1024*2048}
    s_mov_b32 s23, 0x00020000
    """)

def gen_kg(A, cfg):
    K = KNAME
    F1POS = int(cfg.get("f1pos", 2))
    ROT = int(cfg.get("rot", 12))
    RSH = int(cfg.get("rsh", 0))
    ROT2 = int(cfg.get("rot2", 0))
    PV = 255
    kernel_begin(A, K)
    A(f"""
    s_cmp_ge_u32 s2, 256
    s_cbranch_scc1 KF_END
    s_load_dwordx2 s[4:5], s[0:1], 0
    s_load_dwordx2 s[6:7], s[0:1], 8
    s_load_dwordx2 s[8:9], s[0:1], 40
    s_load_dwordx2 s[10:11], s[0:1], 16
    s_load_dwordx2 s[12:13], s[0:1], 56
    s_load_dwordx2 s[14:15], s[0:1], 80
    s_load_dwordx2 s[86:87], s[0:1], 72
    v_lshrrev_b32 v1, 6, v0
    v_and_b32 v0, 63, v0
    v_readfirstlane_b32 s40, v1
    s_and_b32 s45, s2, 7
    s_lshr_b32 s46, s2, 3
    """)
    if cfg.get("prof"): A(f"v_mov_b32 v{PV}, 0")
    vstamp(A, cfg, 0, PV)
    if cfg.get("prof") == "4":
        A("s_memrealtime s[96:97]")
        A("s_waitcnt lgkmcnt(0)")
        A(f"v_writelane_b32 v{PV}, s96, 40")
    ES = cfg.get("es") == "1"
    assert not ES or cfg.get("hmap", "f") == "f"
    if cfg.get("hmap", "f") == "f":
        A("""
        s_and_b32 s41, s45, 1
        s_lshl_b32 s41, s41, 2
        s_lshr_b32 s47, s46, 3
        s_add_u32 s41, s41, s47          ; r = 4(e&1) + (i>>3)
        s_lshr_b32 s42, s45, 1
        s_lshl_b32 s42, s42, 3
        s_and_b32 s47, s46, 7
        s_add_u32 s42, s42, s47          ; h = 8(e>>1) + (i&7)
        """)
        if not ES: A("s_waitcnt lgkmcnt(0)")
    elif cfg.get("hmap") == "h":
        A("""
        s_lshr_b32 s41, s45, 1
        s_lshl_b32 s41, s41, 1
        s_lshr_b32 s47, s46, 4
        s_add_u32 s41, s41, s47          ; r = 2(e>>1) + (i>>4)
        s_and_b32 s42, s45, 1
        s_lshl_b32 s42, s42, 4
        s_and_b32 s47, s46, 15
        s_add_u32 s42, s42, s47          ; h = 16(e&1) + (i&15)
        s_waitcnt lgkmcnt(0)
        """)
    else:
        A("""
        s_and_b32 s41, s46, 7            ; r
        s_lshl_b32 s42, s45, 2
        s_lshr_b32 s47, s46, 3
        s_add_u32 s42, s42, s47          ; h = 4e + (i>>3)
        s_waitcnt lgkmcnt(0)
        """)
    def rstamp(lane):
        if cfg.get("prof") == "4":
            A("s_memrealtime s[96:97]")
            A("s_waitcnt lgkmcnt(0)")
            A(f"v_writelane_b32 v{PV}, s96, {lane}")
    if not ES:
        rstamp(41)
        srd(A, 32, 14, WS_USED)
    A("""
    s_cmp_ge_u32 s40, 4
    s_cbranch_scc1 K1_LOADER
    """)
    if ES:
        A("s_waitcnt lgkmcnt(0)")
        rstamp(41)
        srd(A, 32, 14, WS_USED)
    PF3 = cfg.get("pf3")
    PF4 = cfg.get("pf4")
    L2D = int(cfg.get("l2d", 2)) if not (PF3 or PF4) else 0
    TL = int(cfg.get("tl", 4))
    TC = int(cfg.get("tc", 8))
    def touch_addr(w, dst, t0, t1, t2, shift, sa):
        OFFL = int(cfg.get("offl", 0))
        A(f"""
        s_and_b32 s47, s42, 1
        s_lshl_b32 s47, s47, 2
        s_and_b32 s38, s41, 3
        s_add_u32 s47, s47, s38          ; share of the pair's weight lines
        s_lshl_b32 s47, s47, 2           ; first row
        v_bfe_u32 v{t0}, v0, 2, 1
        v_lshlrev_b32 v{t0}, 5, v{t0}    ; 32 * block
        v_and_b32 v{t2}, 3, v0
        v_add3_u32 v{dst}, v{t2}, v{t0}, s47
        v_mul_u32_u24 v{dst}, 6144, v{dst}
        v_lshrrev_b32 v{t1}, 3, v0       ; segment
        v_lshl_add_u32 v{dst}, v{t1}, 11, v{dst}
        s_lshr_b32 s47, s42, 1
        s_lshl_b32 s47, s47, 7
        v_add_u32 v{dst}, s47, v{dst}
        s_and_b32 {sa}, s42, 7
        """)
        if OFFL:
            A(f"""
            s_lshl_b32 s47, {sa}, 2
            s_add_u32 s47, s47, s38
            s_lshl_b32 s47, s47, 2
            v_add_u32 v{t2}, s47, v{t2}      ; line of the last pair : 0..95
            v_lshrrev_b32 v{t1}, 5, v{t2}
            v_and_b32 v{t2}, 31, v{t2}
            v_add_u32 v{t2}, v{t2}, v{t0}
            v_mul_u32_u24 v{t2}, 6144, v{t2}
            v_lshl_add_u32 v{t2}, v{t1}, 11, v{t2}
            s_lshr_b32 s47, s42, 1
            s_or_b32 s47, s47, 3
            s_lshl_b32 s47, s47, 7
            v_add_u32 v{t2}, s47, v{t2}
            v_cmp_lt_u32 vcc, 23, v0
            s_nop 1
            v_cndmask_b32 v{dst}, v{dst}, v{t2}, vcc
            s_cmp_lt_u32 {sa}, 6
            s_cselect_b32 s63, 32, 0         ; live lanes of the weight waves
            """)
            if OFFL == 1:
                A(f"""
                s_lshl_b32 s47, {sa}, 4           ; first x row : 16 * head
                s_mul_i32 s38, {sa}, 80
                s_sub_u32 s38, s38, {6*80 - 96}
                s_cmp_lt_u32 {sa}, 6
                s_cselect_b32 s47, s47, s38
                s_cselect_b32 {sa}, 16, 40        ; live lanes of wave 2
                s_cselect_b32 s38, 0, 40         ; live lanes of wave 3
                s_cmp_eq_u32 {w}, 3
                s_cselect_b32 {sa}, s38, {sa}
                s_cselect_b32 s38, 40, 0
                s_add_u32 s47, s47, s38
                """)
            elif OFFL == 2:
                A(f"""
                s_mul_i32 s47, {sa}, 43
                s_cmp_lt_u32 {sa}, 5
                s_cselect_b32 s38, 43, 41
                s_cmp_lt_u32 {sa}, 6
                s_cselect_b32 {sa}, s38, 0
                s_cmp_eq_u32 {w}, 3
                s_cselect_b32 {sa}, 0, {sa}
                """)
            else:
                A(f"""
                s_lshl_b32 s47, {sa}, 5
                s_cmp_eq_u32 {w}, 3
                s_cselect_b32 {sa}, 0, 32
                """)
        else:
            A(f"""
            s_mov_b32 s63, 24
            s_lshl_b32 s47, {sa}, 5
            s_cmp_eq_u32 {w}, 3
            s_cselect_b32 {sa}, 0, 32
            """)
        A(f"""
        s_lshl_b32 s38, s41, 8
        s_add_u32 s47, s47, s38
        v_add_u32 v{t1}, s47, v0
        v_lshlrev_b32 v{t1}, 11, v{t1}   ; x row
        v_bfe_u32 v{t0}, v0, 1, 1
        s_and_b32 s38, s45, 1
        v_xor_b32 v{t0}, s38, v{t0}      ; 0 : ours
        v_and_b32 v{t2}, 3, v0
        s_lshr_b32 s38, s45, 1
        v_xor_b32 v{t2}, s38, v{t2}
        s_cmp_ge_u32 {w}, 2
        s_cselect_b64 vcc, -1, 0
        s_cselect_b32 s47, {sa}, s63      ; live lanes
        s_mov_b32 s38, {(TC - TL) * 32 * 6144}
        s_cselect_b32 s38, {(TC - TL) * 64}, s38
        v_cndmask_b32 v{dst}, v{dst}, v{t1}, vcc
        v_cndmask_b32 v{t0}, v{t0}, v{t2}, vcc
        v_cmp_eq_u32 vcc, 0, v{t0}
        """)
        if shift:
            A(f"""
            v_mov_b32 v{t1}, s38
            s_nop 0
            v_cndmask_b32 v{t1}, 0, v{t1}, vcc
            v_add_u32 v{dst}, v{dst}, v{t1}
            v_cmp_gt_u32 vcc, s47, v0
            v_mov_b32 v{t1}, 0x7ffffff0
            s_nop 0
            v_cndmask_b32 v{dst}, v{t1}, v{dst}, vcc
            """)
        else:
            A(f"""
            v_cmp_gt_u32 s[62:63], s47, v0
            v_mov_b32 v{t1}, 0x7ffffff0
            s_and_b64 vcc, vcc, s[62:63]
            v_cndmask_b32 v{dst+2}, v{t1}, v{dst}, vcc
            v_cndmask_b32 v{dst}, v{t1}, v{dst}, s[62:63]
            """)
        A(f"""
        s_cmp_eq_u32 {w}, 0
        s_cselect_b32 s92, s6, s8
        s_cselect_b32 s93, s7, s9
        s_cmp_ge_u32 {w}, 2
        s_cselect_b32 s92, s4, s92
        s_cselect_b32 s93, s5, s93
        s_mov_b32 s94, {1024*6144}
        s_cselect_b32 s94, {2048*2048}, s94
        s_mov_b32 s95, 0x00020000
        """)
    rng = lambda t: range(*map(int, t.split(":"))) if t else range(0)
    PFA_ = rng(cfg.get("pfa", f"0:{4+L2D}")); PFB_ = rng(cfg.get("pfb", ""))
    PFA, PFD = 252, 253
    def l2pf(step=None):
        if step is None:
            A("s_and_b32 s55, s59, 31")
        else:
            A(f"s_add_u32 s55, s63, {step}")
            A("s_and_b32 s55, s55, 31")
        A(f"s_mul_i32 s55, s55, {32*6144}")
        A(f"buffer_load_dword v{PFD}, v{PFA}, s[92:95], s55 offen")
        if step is None: A("s_add_u32 s59, s59, 1")
    PF2 = cfg.get("pf2")
    def touch():
        return [f"buffer_load_dword v{PFD}, v{PFA}, s[92:95], s55 offen", "s_add_u32 s55, s55, s59", "s_cmp_eq_u32 s55, s56",
                "s_cselect_b32 s55, 0, s55", "s_xor_b32 s59, s59, s57"]
    if PF2:
        XW = int(cfg.get("pfx", 1))
        HM = cfg.get("hmap", "f") == "h"
        RB = 1 if HM else 2
        HB = 4 if HM else 3
        R20 = 0 if cfg.get("r2") == "early0" else 4
        A(f"""
        s_and_b32 s47, s42, 1
        s_lshl_b32 s47, s47, {RB}
        s_and_b32 s38, s41, {(1 << RB) - 1}
        s_add_u32 s47, s47, s38          ; share of the weight lines
        s_lshr_b32 s38, s42, 1
        s_lshl_b32 s47, s47, {4 - RB}    ; first row of the share
        s_lshl_b32 s38, s38, 7
        v_and_b32 v4, {(1 << (4 - RB)) - 1}, v0
        v_add_u32 v4, s47, v4
        v_mul_u32_u24 v4, 6144, v4
        v_lshrrev_b32 v5, {4 - RB}, v0
        v_lshl_add_u32 v4, v5, 11, v4    ; + segment * 2048
        v_add_u32 v4, s38, v4
        s_lshl_b32 s47, s41, 8
        s_and_b32 s38, s42, {(1 << HB) - 1}
        s_lshl_b32 s38, s38, {8 - HB}
        s_add_u32 s47, s47, s38
        v_add_u32 v6, s47, v0
        v_lshlrev_b32 v6, 11, v6
        s_cmp_eq_u32 s40, 0
        s_cselect_b64 vcc, -1, 0
        s_cselect_b32 s38, {1 << (7 - HB)}, {3 << (4 - RB)}
        v_mov_b32 v5, 0x7ffffff0
        v_cndmask_b32 v4, v4, v6, vcc
        v_cmp_gt_u32 vcc, s38, v0
        s_cmp_eq_u32 s40, 2
        s_cselect_b32 s92, s6, s8
        s_cselect_b32 s93, s7, s9
        s_cmp_ge_u32 s40, 2
        s_cselect_b32 s62, {1024*6144}, 0
        v_cndmask_b32 v{PFA}, v5, v4, vcc
        s_lshr_b32 s63, s45, {RSH}
        s_mul_i32 s63, s63, {ROT}
        s_and_b32 s47, s45, 1
        s_mul_i32 s47, s47, {ROT2}
        s_add_u32 s63, s63, s47
        s_add_u32 s63, s63, {R20}        ; first block of this round
        s_and_b32 s55, s63, 31
        s_mul_i32 s55, s55, {32*6144}
        s_mov_b32 s59, {32*6144}
        s_mov_b32 s57, 0
        s_mov_b32 s56, {1024*6144}
        s_cmp_lg_u32 s40, 0
        s_cbranch_scc1 K1_PFW
        s_mov_b32 s92, s4
        s_mov_b32 s93, s5
        s_mov_b32 s62, {2048*2048 if XW else 0}
        s_lshr_b32 s55, s63, 1
        s_and_b32 s55, s55, 15
        s_lshl_b32 s55, s55, 7
        s_mov_b32 s59, {1 << (18 - HB)}
        s_mov_b32 s57, {(1 << (18 - HB)) ^ ((128 - (1 << (18 - HB))) & 0xffffffff)}
        s_mov_b32 s56, 2048
        K1_PFW:
        s_mov_b32 s94, s62
        s_mov_b32 s95, 0x00020000
        """)
        if cfg.get("r2") == "early0":
            for t in range(int(cfg.get("e0n", 4))):
                for l in touch(): A(l)
        if cfg.get("r2") == "early":
            for t in range(L2D):
                for l in touch(): A(l)
    elif L2D:
        A(f"""
        s_and_b32 s47, s42, 1
        s_lshl_b32 s47, s47, 2
        s_and_b32 s38, s41, 3
        s_add_u32 s47, s47, s38
        s_lshr_b32 s38, s42, 1
        
        s_lshl_b32 s47, s47, 2           ; first of 4 rows
        s_lshl_b32 s38, s38, 7
        v_and_b32 v4, 3, v0
        v_add_u32 v4, s47, v4
        v_mul_u32_u24 v4, 6144, v4
        v_lshrrev_b32 v5, 2, v0
        v_lshl_add_u32 v4, v5, 11, v4    ; + segment * 2048
        v_add_u32 v4, s38, v4
        v_mov_b32 v5, 0x7ffffff0
        v_cmp_gt_u32 vcc, 12, v0
        s_cmp_eq_u32 s40, 2
        s_cselect_b32 s92, s6, s8
        s_cselect_b32 s93, s7, s9
        s_cmp_ge_u32 s40, 2
        s_cselect_b32 s62, {1024*6144}, 0
        s_mov_b32 s94, s62
        s_mov_b32 s95, 0x00020000
        v_cndmask_b32 v{PFA}, v5, v4, vcc
        s_lshr_b32 s63, s45, {RSH}
        s_mul_i32 s63, s63, {ROT}
        s_add_u32 s59, s63, {4 + L2D}
        """)
        for t in PFA_: l2pf(t)
    if PF4:
        assert ROT == 0 and ROT2 == 0
        touch_addr("s40", PFA, 4, 5, 6, False, "s62")
        A(f"""
        s_cmp_ge_u32 s40, 2
        s_mov_b32 s59, {64*6144}
        s_cselect_b32 s59, 128, s59
        s_mov_b32 s55, 0
        """)
        for t in range(int(cfg.get("r0", 0))):
            A(f"buffer_load_dword v{PFD}, v{PFA}, s[92:95], s55 offen")
            A("s_add_u32 s55, s55, s59")
        A(f"""
        s_cmp_ge_u32 s40, 2
        s_mov_b32 s55, {TL*32*6144}
        s_cselect_b32 s55, {TL*64}, s55
        """)
    rstamp(42)
    setup_p2(A)
    rstamp(43)
    A(f"""
    s_cmp_lg_u32 s40, 0
    s_cbranch_scc1 K1_NOZ
    v_lshlrev_b32 v4, 2, v0
    v_lshrrev_b32 v6, 2, v0
    v_lshlrev_b32 v6, 9, v6
    v_and_b32 v7, 3, v0
    v_lshl_add_u32 v6, v7, 2, v6
    v_mov_b32 v5, 0
    s_mov_b64 exec, 3
    buffer_store_dword v5, v4, s[32:35], s67 offen sc1
    buffer_store_dword v5, v4, s[32:35], s88 offen sc1
    s_mov_b64 exec, 0xff
    buffer_store_dword v5, v4, s[32:35], s68 offen sc1
    buffer_store_dword v5, v6, s[32:35], s69 offen sc1
    s_mov_b32 s36, s86
    s_mov_b32 s37, s87
    s_mov_b32 s38, 256
    s_mov_b32 s39, 0x00020000
    """)
    LATE = cfg.get("late")
    if not LATE:
        A("""
        s_waitcnt vmcnt(0)
        s_mov_b64 exec, 1
        v_mov_b32 v6, 1
        buffer_atomic_add v6, v5, s[36:39], 0 offen
        s_mov_b64 exec, -1
        """)
    else:
        A("s_mov_b64 exec, -1")
    A("""
    K1_NOZ:
    """)
    rstamp(44)
    setup_p3(A)
    rstamp(45)
    TW = cfg.get("tw")
    if TW:
        assert PF4
        A(f"""
        s_cmp_eq_u32 s40, 1
        s_cbranch_scc0 K1_TW2
        v_lshlrev_b32 v4, 12, v0
        s_lshl_b32 s47, s41, 15
        s_add_u32 s47, s47, s70
        s_mov_b64 exec, 0xff
        buffer_load_dword v{PFD}, v4, s[32:35], s47 offen
        s_mov_b64 exec, 1
        buffer_load_dword v{PFD}, v4, s[32:35], s79 offen
        buffer_load_dword v{PFD}, v4, s[32:35], s89 offen
        s_mov_b64 exec, -1
        K1_TW2:
        s_cmp_eq_u32 s40, 2
        s_cbranch_scc0 K1_TW3
        v_lshlrev_b32 v4, 16, v0
        s_sub_u32 s47, s73, {2*65536}
        s_mov_b64 exec, 0xff
        buffer_load_dword v{PFD}, v4, s[32:35], s47 offen
        s_sub_u32 s47, s47, {WS_OB - WS_OA}
        buffer_load_dword v{PFD}, v4, s[32:35], s47 offen
        s_mov_b64 exec, -1
        K1_TW3:
        """)
        if TW == "1":
            A(f"""
            s_cmp_eq_u32 s40, 3
            s_cbranch_scc0 K1_TW4
            s_mov_b32 s96, s8
            s_mov_b32 s97, s9
            s_mov_b32 s98, 4194304
            s_mov_b32 s99, 0x00020000
            v_lshlrev_b32 v4, 12, v0
            s_lshl_b32 s47, s16, 18
            s_lshl_b32 s38, s17, 7
            s_add_u32 s47, s47, s38
            buffer_load_dword v{PFD}, v4, s[96:99], s47 offen
            K1_TW4:
            """)
    XA, WA = 4, 20
    XB, WB = 32, 48
    ACC = 60
    acc = lambda sg, tt: ACC + (sg * 4 + tt) * 16
    A(f"""
    s_lshr_b32 s50, s40, 1           ; th
    s_and_b32 s51, s40, 1            ; type
    v_and_b32 v4, 31, v0
    v_lshrrev_b32 v5, 5, v0          ; hh
    v_bfe_u32 v6, v0, 2, 2           ; f = (l>>2)&3
    v_bfe_u32 v7, v0, 1, 3           ; (row>>1)&7
    v_xor_b32 v7, v5, v7
    v_lshlrev_b32 v7, 4, v7
    v_lshl_add_u32 v1, v4, 7, v7
    s_lshl_b32 s47, s50, 14
    v_add_u32 v1, s47, v1            ; vxa0
    v_xor_b32 v2, 32, v1             ; vxa1
    v_lshl_add_u32 v7, v5, 3, v6
    v_lshlrev_b32 v7, 6, v7          ; *64
    v_bfe_u32 v8, v0, 4, 1           ; g&1
    v_lshl_add_u32 v7, v8, 5, v7
    v_and_b32 v9, 3, v0
    v_lshl_add_u32 v7, v9, 3, v7
    s_lshl_b32 s47, s51, 11
    s_add_u32 s47, s47, {K1_WB}
    v_add_u32 v3, s47, v7            ; vwa
    """)
    M16 = cfg.get("m16")
    if M16:
        assert cfg.get("e8") and cfg.get("spread")
        A(f"""
        v_and_b32 v4, 15, v0             ; i
        v_lshrrev_b32 v5, 4, v0          ; q4
        v_lshrrev_b32 v6, 1, v4
        v_xor_b32 v6, v5, v6
        v_lshlrev_b32 v6, 4, v6
        v_lshl_add_u32 v1, v4, 7, v6
        s_lshl_b32 s38, s50, 14
        v_add_u32 v1, s38, v1
        v_lshrrev_b32 v6, 2, v4
        v_lshl_add_u32 v6, v5, 3, v6     ; k row 8 q4 + (i >> 2)
        v_lshlrev_b32 v6, 6, v6
        v_and_b32 v7, 1, v5
        v_lshl_add_u32 v6, v7, 5, v6
        v_and_b32 v7, 3, v0
        v_lshl_add_u32 v6, v7, 3, v6
        v_add_u32 v3, s47, v6            ; W columns 0..15
        v_xor_b32 v2, 32, v3             ; W columns 16..31
        """)
    A(f"""
    s_mov_b32 s48, {1 if cfg.get("spread") else 0}
    s_mov_b32 s49, {K1_SLOT}
    s_mov_b32 s65, 0
    s_mov_b32 s52, {K1_SLOT}
    s_mov_b32 s53, {-(K1_NSLOT-1)*K1_SLOT & 0xffffffff}
    s_mov_b32 s54, 32
    s_mov_b32 s64, 0                 ; x slot
    s_mov_b32 s66, {-(K1_NX-1)*K1_XS & 0xffffffff}
    """)
    for i in range(192):
        A(f"v_mov_b32 v{ACC+i}, 0")
    if PF2 and cfg.get("r2") != "early":
        for t in range(L2D + (4 - int(cfg.get("e0n", 4)) if cfg.get("r2") == "early0" else 0)):
            for l in touch(): A(l)
    rstamp(46)
    A("s_barrier")
    vstamp(A, cfg, 1, PV)
    if cfg.get("prof") == "4":
        A("s_memrealtime s[96:97]")
        A("s_waitcnt lgkmcnt(0)")
        A(f"v_writelane_b32 v{PV}, s96, 0")
    if cfg.get("prof") == "3":
        A("s_memtime s[96:97]")
        A("s_mov_b32 s100, 0")
        A("s_waitcnt lgkmcnt(0)")
        A("s_mov_b32 s101, s96")
    if L2D:
        for t in PFB_: l2pf(t)
    def reads(X, W, s):
        r = []
        xa = 1 if s == 0 else 2
        for tt in range(4):
            r.append(f"ds_read_b128 v[{X+4*tt}:{X+4*tt+3}], v{xa} offset:{tt*4096}")
        for sg in range(3):
            for sec in range(2):
                r.append(f"ds_read_b64_tr_b16 v[{W+4*sg+2*sec}:{W+4*sg+2*sec+1}], v3 offset:{sg*4096 + s*1024 + sec*256}")
        return [r[4], r[5], r[0], r[1], r[2], r[3], r[6], r[7], r[8], r[9]]
    def mfmas(X, W):
        m = []
        for sg in range(3):
            for tt in range(4):
                a = acc(sg, tt)
                w = f"v[{W+4*sg}:{W+4*sg+3}]"; x = f"v[{X+4*tt}:{X+4*tt+3}]"
                if cfg.get("exp16"):
                    m.append(f"v_mfma_f32_16x16x32_bf16 v[{a}:{a+3}], {w}, {x}, v[{a}:{a+3}]\nv_mfma_f32_16x16x32_bf16 v[{a+8}:{a+11}], {x}, {w}, v[{a+8}:{a+11}]")
                elif sg < 2: m.append(f"v_mfma_f32_32x32x16_bf16 v[{a}:{a+15}], {w}, {x}, v[{a}:{a+15}]")
                else:      m.append(f"v_mfma_f32_32x32x16_bf16 v[{a}:{a+15}], {x}, {w}, v[{a}:{a+15}]")
        return m
    X16, W16 = 4, 36
    def acc16(g, c):
        sg, ch = c >> 1, c & 1
        return acc(sg, g >> 1) + ((g & 1) * 8 + ch * 4 if sg < 2 else ch * 8 + (g & 1) * 4)
    def mf16(g, c):
        a = acc16(g, c); w = f"v[{W16+4*c}:{W16+4*c+3}]"; x = f"v[{X16+4*g}:{X16+4*g+3}]"
        return f"v_mfma_f32_16x16x32_bf16 v[{a}:{a+3}], " + (f"{w}, {x}" if c < 4 else f"{x}, {w}") + f", v[{a}:{a+3}]"
    rx16 = lambda g: f"ds_read_b128 v[{X16+4*g}:{X16+4*g+3}], v1 offset:{g*2048}"
    rw16 = lambda c, sec: f"ds_read_b64_tr_b16 v[{W16+4*c+2*sec}:{W16+4*c+2*sec+1}], v{3 - (c & 1)} offset:{(c >> 1)*4096 + sec*256}"
    H1R = {23: [rw16(5, 0), rw16(5, 1)]}
    for c in range(0, 5):
        H1R[4*c+3] = [rw16(c, 0)]; H1R[4*c+4] = [rw16(c, 1)]
    XAP = [int(x) for x in cfg.get("m16a", "0,1,2,4").split(",")]
    for g, k in enumerate(XAP): H1R[k] = [rx16(g)] + H1R.get(k, [])
    H1L = [l for k in range(24) for l in H1R.get(k, [])]
    H1N = lambda l: len(H1L) - 1 - H1L.index(l)
    if M16:
        for l in H1L: A(l)
    else:
        for l in reads(XA, WA, 0): A(l)
    if LATE:
        A("""
        s_cmp_lg_u32 s40, 0
        s_cbranch_scc1 K1_NOARR
        s_mov_b32 s96, s86
        s_mov_b32 s97, s87
        s_mov_b32 s98, 256
        s_mov_b32 s99, 0x00020000
        v_mov_b32 v32, 0
        v_mov_b32 v33, 1
        s_waitcnt vmcnt(0)
        s_mov_b64 exec, 1
        buffer_atomic_add v33, v32, s[96:99], 0 offen
        s_mov_b64 exec, -1
        K1_NOARR:
        """)
    if PF4:
        for t in range((TC - TL) // 2):
            A(f"buffer_load_dword v{PFD}, v{PFA+2}, s[92:95], s55 offen")
            A("s_add_u32 s55, s55, s59")
    A.label("K1_CLOOP")
    if M16:
        XP = int(cfg.get("m16x", 0))
        XS_ = int(cfg.get("m16s", 1))
        XBP = [XP + XS_ * g for g in range(4)]
        fr0 = [k for k in range(24) if k not in XBP and k % 4 != 3]
        ex0 = {[k for k in fr0 if k > XBP[-1]][0]: ["v_xad_u32 v1, v1, 64, s65"]}
        f2 = [k for k in fr0 if k not in ex0]
        ex0[f2[1]] = ["v_add_u32 v3, s49, v3"]; ex0[f2[3]] = ["v_add_u32 v2, s49, v2"]
        sal = ["s_sub_u32 s54, s54, 1", "s_and_b32 s63, s54, 1", "s_add_u32 s64, s64, s63",
               f"s_cmp_eq_u32 s64, {K1_NX}", f"s_cselect_b32 s65, s66, {K1_XS}", "s_cselect_b32 s64, 0, s64",
               "s_mul_i32 s65, s65, s63", "s_add_u32 s48, s48, 1", f"s_cmp_eq_u32 s48, {K1_NSLOT}",
               "s_cselect_b32 s49, s53, s52", "s_cselect_b32 s48, 0, s48", "s_cmp_lg_u32 s54, 0"]
        free = [k for k in range(1, 23) if len(H1R.get(k, [])) == 0]
        ex1 = {k: [] for k in free}
        for n, l in enumerate(sal): ex1[free[n * len(free) // len(sal)]].append(l)
        for k in range(24):
            nb = len([x for x in XBP if x < k])
            if k % 4 == 0:
                c = k // 4
                n = H1N(rw16(c, 1))
                if c == 0: n = min(n, H1N(rx16(0)))
                A(f"s_waitcnt lgkmcnt({min(15, n + nb)})")
                done = n
            if k in (1, 2, 3) and H1N(rx16(k)) < done:
                done = H1N(rx16(k)); A(f"s_waitcnt lgkmcnt({min(15, done + nb)})")
            A(mf16(k % 4, k // 4))
            if k in XBP: A(rx16(4 + XBP.index(k)))
            for l in ex0.get(k, []): A(l)
        for k in range(24):
            if k < 4 and (k == 0 or XS_ > 1): A(f"s_waitcnt lgkmcnt({(3 - k if XS_ > 1 else 0) + len([l for j in range(k) for l in H1R.get(j, [])])})")
            A(mf16(4 + k % 4, k // 4))
            for l in H1R.get(k, []) + ex1.get(k, []): A(l)
    else:
        A("s_waitcnt lgkmcnt(0)")
    m = mfmas(XA, WA); r = reads(XB, WB, 1)
    extra0 = {4: ["s_and_b32 s63, s54, 1", "s_add_u32 s64, s64, s63", f"s_cmp_eq_u32 s64, {K1_NX}",
                  f"s_cselect_b32 s65, s66, {K1_XS}", "s_cselect_b32 s64, 0, s64", "s_mul_i32 s65, s65, s63"],
              6: ["s_add_u32 s48, s48, 1", f"s_cmp_eq_u32 s48, {K1_NSLOT}", "s_cselect_b32 s49, s53, s52", "s_cselect_b32 s48, 0, s48"],
              7: ["v_xor_b32 v1, 64, v1", "v_xor_b32 v2, 64, v2"], 8: ["v_add_u32 v1, s65, v1", "v_add_u32 v2, s65, v2"], 9: ["v_add_u32 v3, s49, v3"]}
    SPREAD = cfg.get("spread")
    extra1 = {}
    if SPREAD:
        extra0 = {6: ["v_xad_u32 v1, v1, 64, s65"], 8: ["v_xad_u32 v2, v2, 64, s65"], 10: ["v_add_u32 v3, s49, v3"]}
        extra1 = {5: ["s_sub_u32 s54, s54, 1", "s_and_b32 s63, s54, 1", "s_add_u32 s64, s64, s63"],
                  6: [f"s_cmp_eq_u32 s64, {K1_NX}", f"s_cselect_b32 s65, s66, {K1_XS}", "s_cselect_b32 s64, 0, s64"],
                  7: ["s_mul_i32 s65, s65, s63", "s_add_u32 s48, s48, 1", f"s_cmp_eq_u32 s48, {K1_NSLOT}"],
                  8: ["s_cselect_b32 s49, s53, s52", "s_cselect_b32 s48, 0, s48"],
                  11: ["s_cmp_lg_u32 s54, 0"]}
        if PF2:
            t_ = touch()
            th_, tk_ = map(int, cfg.get("tpos", "1:9").split(":"))
            ex_ = extra1 if th_ else extra0
            after_dec = th_ == 1 and tk_ >= 5
            cmp_ = f"s_cmp_ge_u32 s54, {4 + L2D}" if after_dec else f"s_cmp_gt_u32 s54, {4 + L2D}"
            def addx(d, k, ls, front=False):
                d[k] = (ls + d.get(k, [])) if front else (d.get(k, []) + ls)
            if th_ == 1 and tk_ == 9:
                extra1[9] = [cmp_, "s_cselect_b32 s94, s62, 0", t_[0]]
                extra1[10] = t_[1:4]
                extra1[11] = [t_[4], "s_cmp_lg_u32 s54, 0"]
            else:
                assert not (th_ == 1 and 3 < tk_ < 9)
                addx(ex_, tk_, [cmp_, "s_cselect_b32 s94, s62, 0", t_[0]])
                addx(ex_, tk_ + 1, [t_[1], t_[2], t_[3], t_[4]])
        elif L2D:
            extra1[9] = [f"s_cmp_ge_u32 s54, {4 + L2D}", "s_cselect_b32 s94, s62, 0", "s_and_b32 s55, s59, 31"]
            extra1[10] = [f"s_mul_i32 s55, s55, {32*6144}", "s_add_u32 s59, s59, 1", f"buffer_load_dword v{PFD}, v{PFA}, s[92:95], s55 offen"]
    for k in range(0 if M16 else 12):
        A(m[k])
        if k < 5:
            A(r[2*k]); A(r[2*k+1])
        for l in extra0.get(k, []): A(l)
        if L2D and k == 10 and not SPREAD:
            assert not PF2
            A(f"s_cmp_gt_u32 s54, {4 + L2D}")
            A("s_cselect_b32 s94, s62, 0")
            l2pf()
    if not M16: A("s_waitcnt lgkmcnt(0)")
    m = mfmas(XB, WB); r = reads(XA, WA, 0)
    for k in range(0 if M16 else 12):
        A(m[k])
        if k < 5:
            A(r[2*k]); A(r[2*k+1])
        for l in extra1.get(k, []): A(l)
        if k == 8 and not SPREAD:
            A("s_sub_u32 s54, s54, 1"); A("s_cmp_lg_u32 s54, 0")
    if cfg.get("prof") == "3":
        A("s_memtime s[96:97]")
        A("s_barrier")
        A("s_memtime s[98:99]")
        A("s_waitcnt lgkmcnt(0)")
        A("s_sub_u32 s98, s98, s96")
        A("s_add_u32 s100, s100, s98")
        A("s_cmp_lg_u32 s54, 0")
    elif cfg.get("prof") == "4":
        A("s_barrier")
        A("s_memrealtime s[96:97]")
        A("s_sub_u32 m0, 32, s54")
        A("s_waitcnt lgkmcnt(0)")
        A(f"v_writelane_b32 v{PV}, s96, m0")
        A("s_cmp_lg_u32 s54, 0")
    else:
        A("s_barrier")
    A("s_cbranch_scc1 K1_CLOOP")
    A("s_waitcnt lgkmcnt(0)")
    if cfg.get("prof") == "3":
        A("s_memtime s[96:97]")
        A("s_waitcnt lgkmcnt(0)")
        A("s_sub_u32 s96, s96, s101")
        A(f"v_writelane_b32 v{PV}, s100, 0")
        A(f"v_writelane_b32 v{PV}, s96, 2")
    vstamp(A, cfg, 2, PV)
    est(A, cfg, 0, PV)
    E8 = cfg.get("e8")
    T1 = 4
    VB = acc(1, 0)
    QL = E8 and cfg.get("qlate", "1") == "1"
    V = acc(0, 2) if QL else acc(1, 0)
    Q = V + 16 if QL else acc(1, 0) + 32
    NT8 = 2 if E8 else 4
    if M16:
        A("""
        v_and_b32 v42, 15, v0            ; i
        v_lshrrev_b32 v43, 4, v0
        v_lshlrev_b32 v1, 4, v42
        v_lshl_add_u32 v40, v43, 9, v1   ; Q, V images : row * 512 + i * 16
        v_and_b32 v41, 1, v43
        v_lshl_add_u32 v41, v41, 10, v1
        v_lshrrev_b32 v43, 1, v43
        v_lshl_add_u32 v41, v43, 9, v41  ; swapped order : (row & 1) * 1024 + (row >> 1) * 512 + i * 16
        v_lshrrev_b32 v42, 3, v42
        v_lshl_add_u32 v42, v42, 7, v40  ; K image : tokens 8..15 and 16..23 change places
        """)
    A(f"""
    v_lshlrev_b32 v1, 4, v0          ; lane*16
    s_cmp_lg_u32 s51, 0
    s_cbranch_scc1 K1_E1T1
    s_mov_b32 s56, {fhex(32**-0.5 * LOG2E)}
    s_mov_b32 s57, s56
    s_lshl_b32 s47, s50, 13
    s_add_u32 s47, s47, {QST}
    v_add_u32 v44, s47, v{40 if M16 else 1}           ; Q staging address
    """)
    O2 = 256 if M16 else 1024
    def swap_tile(d):
        if M16:
            for k in range(4): A(f"v_permlane16_swap_b32 v{d+k}, v{d+4+k}")
    def handoff(srcs, more=None):
        for k, src in enumerate(srcs):
            cvt_tile(A, T1 + 8*k, src)
            A(f"ds_write_b128 v45, v[{T1+8*k}:{T1+8*k+3}] offset:{k*2048}")
            A(f"ds_write_b128 v45, v[{T1+8*k+4}:{T1+8*k+7}] offset:{k*2048+O2}")
        if more: more()
        A("s_waitcnt lgkmcnt(0)")
        A("s_barrier")
        est(A, cfg, 1, PV)
    if E8:
        A(f"""
        s_lshl_b32 s47, s50, 13
        s_add_u32 s47, s47, {HB0}
        v_add_u32 v45, s47, v{41 if M16 else 1}
        """)
        A.nop(2)
        handoff([acc(0, 2), acc(0, 3), acc(2, 2), acc(2, 3)])
    else:
        A.nop(6)
    def bq_stage(tts, sc, adr, inplace):
        for tt in tts:
            for k in range(8):
                a = acc(1, tt) + 2*k
                A(f"v_pk_mul_f32 v[{a}:{a+1}], v[{a}:{a+1}], s[{sc}:{sc+1}]")
            d = acc(1, tt) if inplace else T1 + 8*tt
            cvt_tile(A, d, acc(1, tt))
            A(f"ds_write_b128 v{adr}, v[{d}:{d+3}] offset:{tt*2048}")
            A(f"ds_write_b128 v{adr}, v[{d+4}:{d+7}] offset:{tt*2048+O2}")
    if QL:
        A("""
        v_mov_b32 v26, v44
        s_mov_b32 s64, s56
        s_mov_b32 s65, s56
        """)
    else:
        bq_stage(range(4), 56, 44, False)
    for tt in range(NT8):
        cvt_tile(A, V + 8*tt, acc(2, tt))
        swap_tile(V + 8*tt)
    A("s_branch K1_E2J")
    A.label("K1_E1T1")
    A(f"""
    s_lshl_b32 s58, s41, 1
    s_add_u32 s58, s58, s50
    s_lshl_b32 s58, s58, 14
    s_add_u32 s58, s58, s70
    s_lshl_b32 s47, s50, 14
    v_add_u32 v44, s47, v{42 if M16 else 1}
    v_add_u32 v43, s47, v{40 if M16 else 1}
    """)
    if E8:
        A(f"""
        s_lshl_b32 s47, s50, 12
        s_add_u32 s47, s47, {HB1}
        v_add_u32 v45, s47, v{41 if M16 else 1}
        """)
        KA, K2 = (42, 128) if M16 else (1, 1024)
        KE = int(cfg.get("ke", 0))
        def ktile(tt):
            cvt_tile(A, T1 + 8*tt, acc(1, tt))
            A(f"s_add_u32 s47, s58, {4096*tt}")
            A(f"buffer_store_dwordx4 v[{T1+8*tt}:{T1+8*tt+3}], v{KA}, s[32:35], s47 offen sc1")
            A(f"buffer_store_dwordx4 v[{T1+8*tt+4}:{T1+8*tt+7}], v{KA}, s[32:35], s47 offen offset:{K2} sc1")
        handoff([acc(0, 2), acc(0, 3)], (lambda: [ktile(tt) for tt in (2, 3)[:KE]]) if KE else None)
    else:
        A.nop(10)
        KE = 0
    KA, K2 = (42, 128) if M16 else (1, 1024)
    VA = 40 if M16 else 1
    if KE:
        for tt in range(4):
            if tt not in (2, 3)[:KE]: ktile(tt)
        A("s_add_u32 s58, s58, 2048")
    else:
      for tt in range(4):
        cvt_tile(A, T1 + 8*tt, acc(1, tt))
        A(f"buffer_store_dwordx4 v[{T1+8*tt}:{T1+8*tt+3}], v{KA}, s[32:35], s58 offen sc1")
        A(f"buffer_store_dwordx4 v[{T1+8*tt+4}:{T1+8*tt+7}], v{KA}, s[32:35], s58 offen offset:{K2} sc1")
        A("s_add_u32 s58, s58, 4096")
      A(f"s_sub_u32 s58, s58, {4*4096 - 2048}")
    for tt in range(4):
        cvt_tile(A, VB + 8*tt, acc(2, tt))
        A(f"buffer_store_dwordx4 v[{VB+8*tt}:{VB+8*tt+3}], v{VA}, s[32:35], s58 offen sc1")
        A(f"buffer_store_dwordx4 v[{VB+8*tt+4}:{VB+8*tt+7}], v{VA}, s[32:35], s58 offen offset:{O2} sc1")
        A("s_add_u32 s58, s58, 4096")
    for tt in range(4):
        A(f"ds_write_b128 v44, v[{T1+8*tt}:{T1+8*tt+3}] offset:{tt*4096}")
        A(f"ds_write_b128 v44, v[{T1+8*tt+4}:{T1+8*tt+7}] offset:{tt*4096+K2}")
        A(f"ds_write_b128 v43, v[{VB+8*tt}:{VB+8*tt+3}] offset:{tt*4096+2048}")
        A(f"ds_write_b128 v43, v[{VB+8*tt+4}:{VB+8*tt+7}] offset:{tt*4096+2048+O2}")
    A.label("K1_E2J")
    WP = 36
    krow = (lambda s, sec: 16*sec + 4*s) if M16 else (lambda s, sec: 16*s + 8*sec)
    def feat_setup(tb):
        A(f"""
        v_lshrrev_b32 v5, 5, v0          ; hh
        v_bfe_u32 v6, v0, 2, 2           ; i>>2
        v_lshl_add_u32 v6, v5, {3 if M16 else 2}, v6     ; 4hh + (i>>2)
        v_bfe_u32 v7, v0, 4, 1
        v_lshlrev_b32 v7, 5, v7
        v_and_b32 v8, 3, v0
        v_lshl_add_u32 v7, v8, 3, v7     ; (g&1)*32 + (i&3)*8
        v_lshl_add_u32 v2, v6, 6, v7
        v_add_u32 v2, {K1_WPHI}, v2
        """)
        for s in range(2):
            for sec in range(2):
                A(f"ds_read_b64_tr_b16 v[{WP+4*s+2*sec}:{WP+4*s+2*sec+1}], v2 offset:{krow(s, sec)*64}")
        A(f"""
        s_mul_i32 s47, s50, {K1_TBUF}
        s_add_u32 s47, s47, {tb}
        v_mul_u32_u24 v25, 136, v6
        v_add_u32 v25, v25, v7
        v_add_u32 v25, s47, v25
        v_and_b32 v8, 31, v0
        v_mul_u32_u24 v24, 136, v8
        v_lshl_add_u32 v24, v5, 3, v24
        v_add_u32 v24, s47, v24
        v_bfe_u32 v8, v0, 2, 1
        v_bfe_u32 v9, v0, 4, 1
        v_cmp_eq_u32 vcc, v8, v9
        v_mov_b32 v9, 0x3f803f80
        v_mov_b32 v8, 0
        v_cndmask_b32 v20, v8, v9, vcc
        v_cndmask_b32 v21, v8, v9, vcc
        v_cndmask_b32 v22, v8, v9, vcc
        v_cndmask_b32 v23, v8, v9, vcc
        """)
    feat_setup(TBUF0)
    for tt in range(NT8):
        cvt_tile(A, Q + 8*tt, acc(0, tt))
        swap_tile(Q + 8*tt)
    if M16: A("s_nop 0")
    if E8: A.label("K1_E2L")
    est(A, cfg, 2, PV)
    A("s_waitcnt lgkmcnt(0)")
    for tt in range(NT8):
        a = acc(0, tt)
        A(f"v_mfma_f32_32x32x16_bf16 v[{a}:{a+15}], v[{WP}:{WP+3}], v[{Q+8*tt}:{Q+8*tt+3}], 0")
    for tt in range(NT8):
        a = acc(0, tt)
        A(f"v_mfma_f32_32x32x16_bf16 v[{a}:{a+15}], v[{WP+4}:{WP+7}], v[{Q+8*tt+4}:{Q+8*tt+7}], v[{a}:{a+15}]")
    A(f"""
    s_mov_b32 s56, {fhex(LOG2E)}
    s_mov_b32 s57, s56
    """)
    F1E = E8 and cfg.get("f1pos") == "9"
    if F1E:
        j = A.uid("K1_F1E")
        A("s_cmp_ge_u32 s40, 4"); A(f"s_cbranch_scc1 {j}")
        A("s_cmp_eq_u32 s51, 0"); A(f"s_cbranch_scc1 {j}")
        A("s_waitcnt vmcnt(0)")
        set_flag(A, "s67")
        vstamp(A, cfg, 3, PV)
        A.label(j)
    A.nop(10)
    EP = acc(2, 0)
    PH = EP + 16
    AF = PH + 16
    KV0 = AF + 16
    KV1 = 44
    Z0, Z1, SEL1 = 12, 16, 20
    PHQ = 128
    def kv_mfmas(tt):
        out = []
        for s in range(2):
            for fb in range(2):
                kv = KV0 if fb == 0 else KV1
                z = Z0 if fb == 0 else Z1
                af = AF + (fb*2+s)*4
                c = "0" if (tt == 0 and s == 0) else f"v[{kv}:{kv+15}]"
                cz = "0" if (tt == 0 and s == 0) else f"v[{z}:{z+3}]"
                out.append(f"v_mfma_f32_32x32x16_bf16 v[{kv}:{kv+15}], v[{af}:{af+3}], v[{V+8*tt+4*s}:{V+8*tt+4*s+3}], {c}")
                out.append(f"v_mfma_f32_16x16x32_bf16 v[{z}:{z+3}], v[{SEL1}:{SEL1+3}], v[{af}:{af+3}], {cz}")
        return out
    if E8: F1POS = -1 if F1E else min(int(cfg.get("f1pos", 0)), 1)
    est(A, cfg, 3, PV)
    for tt in range(NT8):
        P = acc(0, tt)
        A(f"v_max3_f32 v4, v{P}, v{P+1}, v{P+2}")
        A(f"v_max3_f32 v5, -v{P}, -v{P+1}, -v{P+2}")
        for k in range(3, 15, 2):
            A(f"v_max3_f32 v4, v4, v{P+k}, v{P+k+1}")
            A(f"v_max3_f32 v5, v5, -v{P+k}, -v{P+k+1}")
        A(f"v_max_f32 v4, v4, v{P+15}")
        A(f"v_max_f32 v5, v5, -v{P+15}")
        A.nop(2)
        A("v_permlane32_swap_b32 v4, v5")
        A("s_nop 0")
        A("v_max_f32 v4, v4, v5")
        A("v_mov_b32 v5, v4")
        A.nop(2)
        A("v_permlane32_swap_b32 v4, v5")
        A("s_nop 0")
        A(f"v_mul_f32 v6, {fhex(-LOG2E)}, v4")
        A(f"v_mul_f32 v8, {fhex(-LOG2E)}, v5")
        for k in range(8):
            A(f"v_pk_fma_f32 v[{EP+2*k}:{EP+2*k+1}], v[{P+2*k}:{P+2*k+1}], s[56:57], v[6:7] op_sel_hi:[1,1,0]")
            A(f"v_pk_fma_f32 v[{P+2*k}:{P+2*k+1}], v[{P+2*k}:{P+2*k+1}], s[56:57], v[8:9] op_sel_hi:[1,1,0] neg_lo:[0,1,0] neg_hi:[0,1,0]")
        for k in range(16):
            A(f"v_exp_f32 v{EP+k}, v{EP+k}")
            A(f"v_exp_f32 v{P+k}, v{P+k}")
        if tt > 0:
            j = A.uid("K1_KVS")
            A("s_cmp_lg_u32 s51, 0"); A(f"s_cbranch_scc1 {j}")
            A("s_waitcnt lgkmcnt(0)")
            for l in kv_mfmas(tt-1): A(l)
            A.label(j)
        A(f"v_pk_add_f32 v[4:5], v[{EP}:{EP+1}], v[{EP+2}:{EP+3}]")
        A(f"v_pk_add_f32 v[6:7], v[{P}:{P+1}], v[{P+2}:{P+3}]")
        for k in range(2, 8):
            A(f"v_pk_add_f32 v[4:5], v[4:5], v[{EP+2*k}:{EP+2*k+1}]")
            A(f"v_pk_add_f32 v[6:7], v[6:7], v[{P+2*k}:{P+2*k+1}]")
        A("v_add_f32 v4, v4, v5")
        A("v_add_f32 v6, v6, v7")
        A.nop(2)
        A("v_permlane32_swap_b32 v4, v6")
        A("s_nop 0")
        A("v_add_f32 v4, v4, v6")
        A("v_rcp_f32 v4, v4")
        A("s_nop 0")
        A("v_mov_b32 v6, v4")
        A.nop(2)
        A("v_permlane32_swap_b32 v4, v6")
        A("s_nop 0")
        for k in range(8):
            A(f"v_pk_mul_f32 v[{EP+2*k}:{EP+2*k+1}], v[{EP+2*k}:{EP+2*k+1}], v[4:5] op_sel_hi:[1,0]")
            A(f"v_pk_mul_f32 v[{P+2*k}:{P+2*k+1}], v[{P+2*k}:{P+2*k+1}], v[6:7] op_sel_hi:[1,0]")
        j1 = A.uid("K1_T0"); j2 = A.uid("K1_TJ")
        A("s_cmp_eq_u32 s51, 0"); A(f"s_cbranch_scc1 {j1}")
        cvt_tile(A, PHQ + 16*tt, EP)
        cvt_tile(A, PHQ + 16*tt + 8, P)
        if tt == F1POS:
            if E8:
                A("s_cmp_ge_u32 s40, 4"); A(f"s_cbranch_scc1 {j2}")
            A("s_waitcnt vmcnt(0)")
            set_flag(A, "s67")
            vstamp(A, cfg, 3, PV)
        A(f"s_branch {j2}")
        A.label(j1)
        cvt_tile(A, PH, EP)
        cvt_tile(A, PH + 8, P)
        for sign in range(2):
            for b in range(4):
                A(f"ds_write_b64 v24, v[{PH+8*sign+2*b}:{PH+8*sign+2*b+1}] offset:{sign*64+b*16}")
        for fb in range(2):
            for s in range(2):
                for sec in range(2):
                    af = AF + (fb*2+s)*4 + 2*sec
                    A(f"ds_read_b64_tr_b16 v[{af}:{af+1}], v25 offset:{krow(s, sec)*136 + fb*64}")
        A.label(j2)
        est(A, cfg, 4 + tt, PV)
        if cfg.get("tp") and tt == 0:
            j3 = A.uid("K1_TP")
            A("s_cmp_lt_u32 s40, 4"); A(f"s_cbranch_scc1 {j3}")
            A("s_cmp_lg_u32 s51, 0"); A(f"s_cbranch_scc1 {j3}")
            A(f"s_setprio {cfg.get('tp')}")
            A.label(j3)
    A("s_cmp_lg_u32 s51, 0")
    A("s_cbranch_scc1 KF_JOIN")
    if QL:
        QN = int(cfg.get("qn", 4))
        A("s_cmp_ge_u32 s40, 4")
        A("s_cbranch_scc1 K1_QL0")
        bq_stage(range(QN), 64, 26, True)
        A(f"s_waitcnt lgkmcnt({2 * QN})")
        for l in kv_mfmas(NT8 - 1): A(l)
        bq_stage(range(QN, 4), 64, 26, True)
        A("s_branch K1_QL1")
        A("K1_QL0:")
        A("s_waitcnt lgkmcnt(0)")
        for l in kv_mfmas(NT8 - 1): A(l)
        A("K1_QL1:")
    else:
        A("s_waitcnt lgkmcnt(0)")
        for l in kv_mfmas(NT8 - 1): A(l)
    est(A, cfg, 6, PV)
    if E8:
        A(f"""
        s_cmp_ge_u32 s40, 4
        s_cselect_b32 s38, {HB0 - RED0}, 0
        s_cselect_b32 s55, 512, 0
        s_add_u32 s38, s38, {RED0}
        s_add_u32 s55, s55, {ZRED}
        """)
    else:
        A(f"s_mov_b32 s38, {RED0}")
        A(f"s_mov_b32 s55, {ZRED}")
    A(f"""
    s_lshl_b32 s47, s50, 13
    s_add_u32 s47, s47, s38
    v_add_u32 v2, s47, v1
    v_and_b32 v3, 31, v0
    v_lshlrev_b32 v3, 2, v3
    s_lshl_b32 s47, s50, 8
    s_add_u32 s47, s47, s55
    v_add_u32 v3, s47, v3
    """)
    A.nop(8)
    A(f"ds_write_b32 v3, v{Z0}")
    A(f"ds_write_b32 v3, v{Z1} offset:128")
    for fb in range(2):
        kv = KV0 if fb == 0 else KV1
        for q in range(4):
            A(f"ds_write_b128 v2, v[{kv+4*q}:{kv+4*q+3}] offset:{fb*4096+q*1024}")
    A("s_branch KF_JOIN")
    A.label("K1_LOADER")
    if cfg.get("lprio"): A(f"s_setprio {cfg.get('lprio')[0]}")
    def l_srd0():
        A("""
        s_cmp_eq_u32 s44, 0
        s_cselect_b32 s28, s6, s8
        s_cselect_b32 s29, s7, s9
        """)
        A(f"s_mov_b32 s30, {1024*6144}")
        A("s_mov_b32 s31, 0x00020000")
    def l_srd1():
        srd(A, 20, 6, 1024*6144)
        srd(A, 24, 8, 1024*6144)
    if not ES:
        srd(A, 16, 4, 2048*2048)
        l_srd1()
    A(f"""
    s_sub_u32 s50, s40, 4            ; w
    s_lshr_b32 s44, s50, 1
    """)
    if not ES: l_srd0()
    R1 = cfg.get("r1", "1") if cfg.get("pf2") else (cfg.get("r1", "0") if (PF3 or PF4) else "0")
    if R1 != "0":
        HM = cfg.get("hmap", "f") == "h"
        RB = 1 if HM else 2; HB = 4 if HM else 3
        NW = 3 << (4 - RB)
        A(f"""
        s_lshr_b32 s47, s45, {RSH}
        s_mul_i32 s47, s47, {ROT}
        s_and_b32 s51, s45, 1
        s_mul_i32 s51, s51, {ROT2}
        s_add_u32 s47, s47, s51          ; first block
        s_and_b32 s51, s50, 1
        s_lshl_b32 s51, s51, 1
        s_add_u32 s51, s51, s47
        v_mul_u32_u24 v20, 43, v0
        v_lshrrev_b32 v20, {10 if HM else 9}, v20
        v_mul_u32_u24 v21, {NW}, v20
        v_sub_u32 v21, v0, v21           ; lane % NW
        v_add_u32 v20, s51, v20
        v_and_b32 v20, 31, v20
        v_mul_u32_u24 v20, {32*6144}, v20
        s_and_b32 s51, s42, 1
        s_lshl_b32 s51, s51, {RB}
        s_and_b32 s52, s41, {(1 << RB) - 1}
        s_add_u32 s51, s51, s52
        s_lshl_b32 s51, s51, {4 - RB}    ; first row of the share
        v_and_b32 v22, {(1 << (4 - RB)) - 1}, v21
        v_add_u32 v22, s51, v22
        v_mul_u32_u24 v22, 6144, v22
        v_lshrrev_b32 v21, {4 - RB}, v21
        v_lshl_add_u32 v22, v21, 11, v22
        s_lshr_b32 s51, s42, 1
        s_lshl_b32 s51, s51, 7
        v_add3_u32 v20, v20, v22, s51
        v_mov_b32 v23, 0x7ffffff0
        v_cmp_gt_u32 vcc, {2 * NW}, v0
        s_lshl_b32 s51, s41, 8
        s_and_b32 s52, s42, {(1 << HB) - 1}
        s_lshl_b32 s52, s52, {8 - HB}
        v_cndmask_b32 v20, v23, v20, vcc
        s_add_u32 s51, s51, s52
        s_lshl_b32 s52, s50, {6 - HB}
        s_add_u32 s51, s51, s52
        {"" if ES else "buffer_load_dword v24, v20, s[28:31], 0 offen"}
        v_and_b32 v21, {(1 << (6 - HB)) - 1}, v0
        v_add_u32 v21, s51, v21
        v_lshlrev_b32 v21, 11, v21
        v_lshrrev_b32 v22, {6 - HB}, v0
        s_lshr_b32 s47, s47, 1
        v_add_u32 v22, s47, v22
        v_and_b32 v22, 15, v22
        v_lshl_add_u32 v21, v22, 7, v21
        v_cmp_gt_u32 vcc, {2 << (6 - HB)}, v0
        s_nop 1
        v_cndmask_b32 v21, v23, v21, vcc
        {"" if ES else "buffer_load_dword v25, v21, s[16:19], 0 offen"}
        """)
    if not ES: srd(A, 36, 10, 32*2048)
    A(f"""
    v_lshrrev_b32 v1, 3, v0
    v_lshrrev_b32 v2, 4, v0
    v_and_b32 v3, 7, v0
    v_xor_b32 v3, v3, v2
    v_lshlrev_b32 v3, 4, v3
    v_lshl_add_u32 v4, v1, 11, v3
    s_lshl_b32 s47, s41, 8
    s_lshl_b32 s51, s50, 6
    s_add_u32 s47, s47, s51
    s_lshl_b32 s47, s47, 11          ; (r*256 + 64w)*2048
    v_add_u32 v4, s47, v4            ; piece 0
    v_xor_b32 v5, 64, v4
    v_add_u32 v5, 16384, v5
    v_add_u32 v6, 32768, v4
    v_add_u32 v7, 32768, v5
    v_add_u32 v12, 65536, v4
    v_add_u32 v13, 65536, v5
    v_add_u32 v14, 98304, v4
    v_add_u32 v15, 98304, v5
    """)
    if ES:
        assert R1 == "2"
        A("s_waitcnt lgkmcnt(0)")
        rstamp(41)
        l_srd0()
        A("buffer_load_dword v24, v20, s[28:31], 0 offen")
        srd(A, 16, 4, 2048*2048)
        A("buffer_load_dword v25, v21, s[16:19], 0 offen")
        l_srd1()
        srd(A, 36, 10, 32*2048)
        srd(A, 32, 14, WS_USED)
    A(f"""
    v_lshrrev_b32 v1, {3 if cfg.get("expw") else 2}, v0
    s_and_b32 s47, s50, 1
    s_lshl_b32 s47, s47, 4
    v_add_u32 v1, s47, v1            ; krow = 16*(w&1) + (l>>2)
    v_mul_u32_u24 v1, 6144, v1
    v_and_b32 v3, {7 if cfg.get("expw") else 3}, v0
    {"v_lshrrev_b32 v2, 4, v0" if cfg.get("m16") else ""}
    {"v_and_b32 v2, 2, v2" if cfg.get("m16") else ""}
    {"v_xor_b32 v3, v2, v3            ; m16 : the column halves of k rows 8..15 change places" if cfg.get("m16") else ""}
    v_lshl_add_u32 v1, v3, 4, v1
    s_lshl_b32 s47, s42, 6           ; 64h
    {"s_and_b32 s47, s47, 0x780" if cfg.get("expw") else ""}
    s_lshl_b32 s51, s44, 11          ; type*2048
    s_add_u32 s52, s47, s51
    v_add_u32 v9, s52, v1            ; seg1 : B.q / B.k
    s_sub_u32 s52, 2048, s51
    s_add_u32 s52, s52, s47
    v_add_u32 v8, s52, v1            ; seg0 : A.k / A.q
    s_add_u32 s52, s47, 4096
    v_add_u32 v10, s52, v1           ; seg2 : A.v / B.v
    v_lshlrev_b32 v11, 4, v0
    s_and_b32 s51, s50, 1
    s_lshl_b32 s51, s51, 10
    s_lshl_b32 s47, s42, 11
    s_add_u32 s47, s47, s51          ; w_phi offset = h*2048 + (w&1)*1024
    s_add_u32 m0, s51, {K1_WPHI}
    s_lshl_b32 s55, s50, 13          ; w*8192  (x pieces)
    {"s_waitcnt vmcnt(0)" if R1 == "1" else ""}
    buffer_load_dwordx4 v11, s[36:39], s47 offen lds
    s_lshl_b32 s51, s50, 10
    s_add_u32 s56, s51, {K1_WB}      ; W pieces : + w*1024
    s_lshr_b32 s47, s45, {RSH}
    s_mul_i32 s47, s47, {ROT}
    s_and_b32 s51, s45, 1
    s_mul_i32 s51, s51, {ROT2}
    s_add_u32 s47, s47, s51
    s_and_b32 s47, s47, 31           ; first k block (rotated per XCD group: spreads the x column reads over the channels)
    s_lshl_b32 s58, s47, 6           ; soffset x
    s_mul_i32 s59, s47, {32*6144}    ; soffset W
    s_mov_b32 s60, 0                 ; block
    s_mov_b32 s61, s55               ; x slot
    s_mov_b32 s62, s56               ; W slot
    s_add_u32 s55, s55, {K1_XS*K1_NX}
    s_add_u32 s56, s56, {K1_SLOT*K1_NSLOT}
    """)
    if PF3:
        TE = int(cfg.get("te", 2))
        OFFL = int(cfg.get("offl", 0))
        XT = int(cfg.get("pfx", 1))
        BW = TE // 2; LB = BW.bit_length() - 1
        assert cfg.get("hmap", "f") == "f"
        A(f"""
        s_and_b32 s51, s42, 7            ; head within the XCD
        s_and_b32 s52, s41, 3            ; token block within the XCD
        s_and_b32 s63, s42, 1
        s_lshl_b32 s63, s63, 2
        s_add_u32 s63, s63, s52          ; share of the pair's weight lines
        s_lshl_b32 s63, s63, 2           ; first row
        s_and_b32 s64, s50, 1
        s_lshl_b32 s64, s64, {5 + LB}    ; first row of this wave's group of blocks
        s_add_u32 s63, s63, s64
        v_bfe_u32 v27, v0, 2, {LB})
        v_lshlrev_b32 v30, 5, v27        ; 32 * block
        v_and_b32 v26, 3, v0
        v_add3_u32 v26, v26, v30, s63    ; row
        v_mul_u32_u24 v26, 6144, v26
        v_lshrrev_b32 v27, {2 + LB}, v0  ; segment
        v_lshl_add_u32 v26, v27, 11, v26
        s_lshr_b32 s63, s42, 1
        s_lshl_b32 s63, s63, 7
        v_add_u32 v26, s63, v26          ; + column of the pair
        v_mov_b32 v29, 0x7ffffff0
        v_cmp_gt_u32 vcc, 3, v27
        """.replace("v_bfe_u32 v27, v0, 2, 0)", "v_mov_b32 v27, 0").replace(")\n", "\n"))
        if OFFL:
            A(f"""
            s_cmp_lt_u32 s51, 6
            s_cselect_b64 vcc, vcc, 0
            v_cndmask_b32 v26, v29, v26, vcc
            s_lshl_b32 s63, s51, 2
            s_add_u32 s63, s63, s52
            s_lshl_b32 s63, s63, 2
            v_and_b32 v28, 3, v0
            v_add_u32 v31, s63, v28          ; line of the last pair : 0..95
            v_and_b32 v28, 31, v31
            v_add3_u32 v28, v28, v30, s64
            v_mul_u32_u24 v28, 6144, v28
            v_lshrrev_b32 v31, 5, v31
            v_lshl_add_u32 v28, v31, 11, v28
            s_lshr_b32 s63, s42, 1
            s_or_b32 s63, s63, 3
            s_lshl_b32 s63, s63, 7
            v_add_u32 v28, s63, v28
            v_cmp_eq_u32 vcc, 3, v27
            s_cmp_lt_u32 s51, 6
            s_cselect_b64 vcc, vcc, 0
            v_cndmask_b32 v26, v26, v28, vcc
            """)
        else:
            A("s_nop 1\nv_cndmask_b32 v26, v29, v26, vcc")
        if OFFL == 2:
            A(f"""
            s_mul_i32 s63, s51, 43
            v_add_u32 v27, s63, v0
            v_cmp_gt_u32 vcc, 43, v0
            s_movk_i32 s63, 0x100
            v_cmp_gt_u32 s[64:65], s63, v27
            s_and_b64 vcc, vcc, s[64:65]
            s_cmp_lt_u32 s51, 6
            s_cselect_b64 vcc, vcc, 0
            """)
        else:
            A(f"""
            s_lshl_b32 s63, s51, 5
            v_add_u32 v27, s63, v0
            v_cmp_gt_u32 vcc, 32, v0
            """)
        A(f"""
        s_lshl_b32 s63, s41, 8
        v_add_u32 v27, s63, v27          ; x row
        v_lshlrev_b32 v27, 11, v27
        v_cndmask_b32 v27, v29, v27, vcc
        s_lshr_b32 s63, s58, 6           ; first block
        s_add_u32 s63, s63, {TL}
        s_and_b32 s63, s63, 31
        s_mul_i32 s64, s63, {32*6144}    ; weight offset
        s_lshr_b32 s63, s63, 1
        s_add_u32 s63, s63, s50
        s_and_b32 s63, s63, 15
        s_lshl_b32 s65, s63, 7           ; x offset
        s_cmp_lt_u32 s50, {BW}
        s_cselect_b32 s67, {2048*2048 if XT else 0}, 0
        s_cmp_lt_u32 s50, 2
        s_cselect_b32 s92, s6, s8
        s_cselect_b32 s93, s7, s9
        s_mov_b32 s94, 0
        s_mov_b32 s95, 0x00020000
        s_mov_b32 s88, s4
        s_mov_b32 s89, s5
        s_mov_b32 s90, 0
        s_mov_b32 s91, 0x00020000
        """)
    def pf4_setup():
        touch_addr("s50", 26, 27, 28, 29, True, "s66")
        A(f"""
        s_mov_b32 s67, s94
        s_cmp_ge_u32 s50, 2
        s_mov_b32 s64, {TL*32*6144}
        s_cselect_b32 s64, {TL*64}, s64
        s_mov_b32 s65, {64*6144}
        s_cselect_b32 s65, 128, s65
        """)
    ED = ES and cfg.get("ed", "1") == "1"
    if PF4 and not ED: pf4_setup()
    if PF4 and ED:
        A("""
        s_mov_b32 s92, s4
        s_mov_b32 s93, s5
        s_mov_b32 s94, 0
        s_mov_b32 s95, 0x00020000
        s_mov_b32 s64, 0
        v_mov_b32 v26, 0
        """)
    rstamp(42)
    if cfg.get("lprio"): A(f"s_setprio {cfg.get('lprio')[1]}")
    A("K1_LLOOP:")
    XV = [4, 5, 6, 7, 12, 13, 14, 15]
    def ld_x(i0=0, i1=8):
        for i in range(i0, i1):
            A(f"s_add_u32 m0, s61, {i*1024}")
            A("s_nop 0")
            A(f"buffer_load_dwordx4 v{XV[i]}, s[16:19], s58 offen lds")
        if i1 == 8: A(f"""
        s_add_u32 s58, s58, 128
        s_and_b32 s58, s58, 2047
        s_add_u32 s61, s61, {K1_XS}
        s_cmp_eq_u32 s61, s55
        s_cselect_b32 s47, {K1_XS*K1_NX}, 0
        s_sub_u32 s61, s61, s47
        """)
    def ld_w():
        for sg in range(3):
            A(f"s_add_u32 m0, s62, {sg*4096}")
            A("s_nop 0")
            A(f"buffer_load_dwordx4 v{8+sg}, s[{20+4*sg}:{23+4*sg}], s59 offen lds")
        A(f"""
        s_add_u32 s59, s59, {32*6144}
        s_cmp_eq_u32 s59, {1024*6144}
        s_cselect_b32 s59, 0, s59
        s_add_u32 s62, s62, {K1_SLOT}
        s_cmp_eq_u32 s62, s56
        s_cselect_b32 s47, {K1_SLOT*K1_NSLOT}, 0
        s_sub_u32 s62, s62, s47
        """)
    E8 = cfg.get("e8")
    def lsync(n=14):
        if cfg.get("prof") == "3":
            A("s_memtime s[96:97]")
            A(f"s_waitcnt vmcnt({n})")
            A("s_memtime s[98:99]")
            A("s_barrier")
            A("s_memtime s[90:91]")
            A("s_waitcnt lgkmcnt(0)")
            A("s_sub_u32 s96, s98, s96")
            A("s_add_u32 s100, s100, s96")
            A("s_sub_u32 s90, s90, s98")
            A("s_add_u32 s101, s101, s90")
        else:
            A(f"s_waitcnt vmcnt({n})")
            A("s_barrier")
    if cfg.get("prof") == "3":
        A("s_cmp_lg_u32 s60, 0")
        A("s_cbranch_scc1 K1_LP3")
        A("s_mov_b32 s100, 0")
        A("s_mov_b32 s101, 0")
        A.label("K1_LP3")
    BAL = int(cfg.get("bal", 0))
    NT = 2 if PF3 else 1 if PF4 else 0
    if BAL:
        ld_w(); ld_x(0, 8 - BAL)
    else:
        ld_x(); ld_w()
    A("""
    s_cmp_lt_u32 s60, 4
    s_cbranch_scc1 K1_LS1
    """)
    lsync(14 - BAL + NT)
    A("K1_LS1:")
    if BAL: ld_x(8 - BAL, 8)
    ld_w()
    if PF4:
        if ED:
            A("s_cmp_lg_u32 s60, 0"); A("s_cbranch_scc1 K1_PFS")
            pf4_setup()
            A("K1_PFS:")
        A(f"""
        s_cmp_le_u32 s60, {30 - TL}
        s_cselect_b32 s94, s67, 0
        buffer_load_dword v31, v26, s[92:95], s64 offen
        s_add_u32 s64, s64, s65
        """)
    if PF3:
        A(f"""
        s_and_b32 s63, s60, {TE - 1}
        s_cmp_le_u32 s60, {32 - TL - TE}
        s_cselect_b32 s63, s63, 1
        s_cmp_eq_u32 s63, 0
        s_cselect_b32 s94, {1024*6144}, 0
        s_cselect_b32 s90, s67, 0
        s_cselect_b32 s63, {TE*32*6144}, 0
        s_cselect_b32 s66, {TE*64}, 0
        buffer_load_dword v31, v26, s[92:95], s64 offen
        buffer_load_dword v31, v27, s[88:91], s65 offen
        s_add_u32 s64, s64, s63
        s_cmp_eq_u32 s64, {1024*6144}
        s_cselect_b32 s64, 0, s64
        s_add_u32 s65, s65, s66
        s_and_b32 s65, s65, 2047
        """)
    A("""
    s_cmp_lt_u32 s60, 2
    s_cbranch_scc1 K1_LS2
    """)
    if cfg.get("prof") == "4":
        A("s_cmp_lg_u32 s60, 2"); A("s_cbranch_scc1 K1_P4A"); rstamp(43); A(f"s_waitcnt vmcnt({14 + 2*NT})"); rstamp(44); A("K1_P4A:")
    lsync(14 + 2*NT)
    A("K1_LS2:")
    GW, GX, GA = (160, 168, 200) if E8 else (32, 64, 40)
    G1 = E8 and cfg.get("g1", "1") == "1"
    NG = 4 if G1 else 2
    XT8 = E8 and cfg.get("xt", "1") == "1"
    def gate_loads():
        srd(A, 36, 12, 2048)
        A(f"""
        s_lshl_b32 s47, s41, 8
        s_lshl_b32 s51, s42, 3
        s_add_u32 s47, s47, s51
        s_lshl_b32 s51, s50, 1
        {"s_and_b32 s51, s51, 4" if G1 else ""}
        s_add_u32 s63, s47, s51          ; t0 = r*256 + h*8 + 2w  /  + 4th
        s_lshl_b32 s51, s63, 11
        v_lshlrev_b32 v1, 5, v0
        buffer_load_dwordx4 v[{GW}:{GW+3}], v1, s[36:39], 0 offen
        buffer_load_dwordx4 v[{GW+4}:{GW+7}], v1, s[36:39], 0 offen offset:16
        """)
        for j in range(NG):
            A(f"buffer_load_dwordx4 v[{GX+8*j}:{GX+8*j+3}], v1, s[16:19], s51 offen")
            A(f"buffer_load_dwordx4 v[{GX+8*j+4}:{GX+8*j+7}], v1, s[16:19], s51 offen offset:16")
            if j < NG - 1: A("s_add_u32 s51, s51, 2048")
    def dbg_srd(r=36):
        A(f"""
        s_mov_b32 s{r}, s86
        s_mov_b32 s{r+1}, s87
        s_mov_b32 s{r+2}, 256
        s_mov_b32 s{r+3}, 0x00020000
        v_mov_b32 v46, 0
        """)
    A(f"""
    s_add_u32 s60, s60, 2
    s_cmp_lt_u32 s60, 32
    s_cbranch_scc1 K1_LLOOP
    """)
    if cfg.get("lf") == "1": A("K1_LPOST:")
    def ltail(gate):
        GN = (3 + 2*NG if gate else 1) if E8 else 0
        if E8:
            if gate:
                gate_loads()
                A("s_mov_b32 s84, s63")
            dbg_srd(92)
            poll_issue(A, 47, 46, 92, "0")
        A(f"""
        s_waitcnt vmcnt({3 + NT + GN})
        s_barrier
        """)
        if E8:
            setup_p2(A)
            A(f"s_add_u32 s74, s74, {2*65536}        ; oA offset of tiles 2, 3")
        A(f"""
        s_waitcnt vmcnt({GN})
        s_barrier
        """)
    GS = G1 and XT8 and cfg.get("gs") == "1"
    if G1:
        A("s_bitcmp1_b32 s50, 0")
        A("s_cbranch_scc0 K1_LT1" if GS else "s_cbranch_scc1 K1_LT1")
        ltail(False)
        A("s_branch K1_LT2")
        A("K1_LT1:")
        ltail(True)
        A("K1_LT2:")
    else:
        ltail(True)
    if cfg.get("prof") == "3":
        A(f"v_writelane_b32 v{PV}, s100, 0")
        A(f"v_writelane_b32 v{PV}, s101, 1")
    if cfg.get("lprio"): A("s_setprio 0")
    if E8:
        setup_p3(A)
        A("s_barrier")
        A(f"""
        s_and_b32 s51, s50, 1
        {"s_xor_b32 s51, s51, 1" if XT8 else ""}
        s_lshr_b32 s50, s50, 1
        """)
        feat_setup(TBUF1)
        A(f"""
        v_lshlrev_b32 v1, 4, v0          ; lane*16
        s_lshl_b32 s47, s50, 13
        s_add_u32 s47, s47, {HB0}
        s_lshl_b32 s38, s50, 12
        s_add_u32 s38, s38, {HB1}
        s_cmp_eq_u32 s51, 0
        s_cselect_b32 s47, s47, s38
        v_add_u32 v45, s47, v1
        """)
        for j in range(NG): A(f"v_mov_b32 v{GA+j}, 0")
        GE = cfg.get("ge") == "1"
        def gate_calc():
            for k in range(8):
                for j in range(NG):
                    A(f"v_dot2c_f32_bf16 v{GA+j}, v{GX+8*j+k}, v{GW+k}")
                if NG == 2: A("s_nop 1")
            A.nop(3)
            for rot in (8, 4, 2, 1):
                for j in range(NG): A(f"v_add_f32_dpp v{GA+j}, v{GA+j}, v{GA+j} row_ror:{rot} row_mask:0xf bank_mask:0xf")
                if NG == 2: A("s_nop 1")
            if G1:
                A(f"""
                v_permlane16_swap_b32 v{GA}, v{GA+1}
                s_nop 0
                v_permlane16_swap_b32 v{GA+2}, v{GA+3}
                s_nop 1
                v_add_f32 v{GA}, v{GA}, v{GA+1}          ; rows : a01, b01, a23, b23
                v_add_f32 v{GA+1}, v{GA+2}, v{GA+3}      ; rows : c01, d01, c23, d23
                s_nop 1
                v_permlane32_swap_b32 v{GA}, v{GA+1}
                s_nop 1
                v_add_f32 v{GA}, v{GA}, v{GA+1}
                """)
            else:
                A(f"""
                v_permlane16_swap_b32 v{GA}, v{GA+1}
                s_nop 1
                v_add_f32 v{GA}, v{GA}, v{GA+1}          ; rows : a01, b01, a23, b23
                v_mov_b32 v{GA+1}, v{GA}
                s_nop 1
                v_permlane32_swap_b32 v{GA}, v{GA+1}
                s_nop 1
                v_add_f32 v{GA}, v{GA}, v{GA+1}          ; lanes 0..15 : token t0, lanes 16..31 : token t0 + 1
                """)
            A(f"""
            v_mul_f32 v{GA}, {fhex(-LOG2E)}, v{GA}
            v_exp_f32 v{GA}, v{GA}
            v_lshrrev_b32 v{GA+2}, 4, v0
            v_lshlrev_b32 v{GA+2}, 2, v{GA+2}
            v_add_f32 v{GA}, 1.0, v{GA}
            v_rcp_f32 v{GA}, v{GA}
            s_lshl_b32 s47, s84, 2
            s_add_u32 s47, s47, {WS_G}
            s_mov_b32 exec_lo, 0x10001
            s_mov_b32 exec_hi, {"0x10001" if G1 else "0"}
            buffer_store_dword v{GA}, v{GA+2}, s[32:35], s47 offen sc1
            s_mov_b64 exec, -1
            """)
        if GE:
            assert XT8 and G1
            A("s_waitcnt vmcnt(0)")
            poll_check(A, 47, 46, 92, "0", "PG", expect="0x100")
            A("s_cmp_lg_u32 s51, 0"); A("s_cbranch_scc1 K1_GE1")
            gate_calc()
            A.label("K1_GE1")
        A("s_barrier")
        vstamp(A, cfg, 2, PV)
        est(A, cfg, 0, PV)
        if not GE:
            A("s_waitcnt vmcnt(0)")
            poll_check(A, 47, 46, 92, "0", "PG", expect="0x100")
        A("s_barrier")
        est(A, cfg, 1, PV)
        EPR = cfg.get("eprio", "00")
        if EPR != "00":
            A(f"s_setprio {EPR[1]}")
            A("s_cmp_lg_u32 s51, 0")
            A("s_cbranch_scc1 K1_LP1")
            A(f"s_setprio {EPR[0]}")
            A("K1_LP1:")
        for k in range(2):
            A(f"ds_read_b128 v[{Q+8*k}:{Q+8*k+3}], v45 offset:{k*2048}")
            A(f"ds_read_b128 v[{Q+8*k+4}:{Q+8*k+7}], v45 offset:{k*2048+1024}")
        A("s_cmp_lg_u32 s51, 0")
        A(f"s_cbranch_scc1 {'K1_E2L' if (XT8 and G1 and not GS) else 'K1_LNV'}")
        for k in range(2):
            A(f"ds_read_b128 v[{V+8*k}:{V+8*k+3}], v45 offset:{4096+k*2048}")
            A(f"ds_read_b128 v[{V+8*k+4}:{V+8*k+7}], v45 offset:{4096+k*2048+1024}")
        if G1 and (GS or not XT8): A("s_branch K1_E2L")
        A("K1_LNV:")
        if not GE: gate_calc()
        A("s_branch K1_E2L")
    else:
        gate_loads()
        A("""
        s_barrier
        s_barrier
        """)
        vstamp(A, cfg, 2, PV)
        for j in range(2): A(f"v_mov_b32 v{40+j}, 0")
        A("s_waitcnt vmcnt(0)")
        for k in range(8):
            for j in range(2):
                A(f"v_dot2c_f32_bf16 v{40+j}, v{GX+8*j+k}, v{32+k}")
            A("s_nop 1")
        A("v_lshlrev_b32 v3, 2, v0")
        A.nop(3)
        for mask in (1, 2, 4, 8, 16, 32):
            A(f"v_xor_b32 v4, {mask*4}, v3")
            for j in range(2): A(f"ds_bpermute_b32 v{5+j}, v4, v{40+j}")
            A("s_waitcnt lgkmcnt(0)")
            for j in range(2): A(f"v_add_f32 v{40+j}, v{40+j}, v{5+j}")
        A(f"v_cmp_eq_u32 vcc, 1, v0")
        A("s_nop 1")
        A(f"v_cndmask_b32 v40, v40, v41, vcc")
        A(f"""
        v_mul_f32 v40, {fhex(-LOG2E)}, v40
        v_exp_f32 v40, v40
        s_nop 0
        v_add_f32 v40, 1.0, v40
        v_rcp_f32 v40, v40
        s_lshl_b32 s47, s63, 2
        s_add_u32 s47, s47, {WS_G}
        s_mov_b64 exec, 3
        buffer_store_dword v40, v3, s[32:35], s47 offen sc1
        s_mov_b64 exec, -1
        """)
        setup_p2(A)
        setup_p3(A)
        A(f"""
        s_mov_b32 s85, s36
        v_and_b32 v35, 15, v0
        v_lshlrev_b32 v35, 2, v35
        """)
        dbg_srd()
        poll_issue(A, 47, 46, 36, "0")
        A("s_waitcnt vmcnt(0)")
        poll_check(A, 47, 46, 36, "0", "PG", expect="0x100")
        poll_issue(A, 47, 35, 32, "s78")
        A("s_waitcnt vmcnt(0)")
        poll_check(A, 47, 35, 32, "s78", "P1")
        vstamp(A, cfg, 3, PV)
        A(f"""
        v_lshlrev_b32 v3, 4, v0
        s_lshl_b32 s47, s50, 12          ; w*4096
        s_add_u32 m0, s47, {2*16384}
        s_lshl_b32 s51, s41, 1
        s_add_u32 s51, s51, 2
        s_and_b32 s51, s51, 15
        s_lshl_b32 s51, s51, 14
        s_add_u32 s51, s51, s47
        s_add_u32 s51, s51, s70
        """)
        for j in range(4):
            A(f"buffer_load_dwordx4 v3, s[32:35], s51 offen offset:{j*1024} sc1 lds")
        A("s_mov_b32 s36, s85")
    A.label("KF_JOIN")
    if cfg.get("e8") and (cfg.get("eprio", "00") != "00" or cfg.get("tp")): A("s_setprio 0")
    Q, K0, K1, V0, V1, SEL, NEGM, SA, SB, O, L, P = 8, 16, 20, 24, 28, 40, 48, 64, 80, 96, 112, 120
    PR = 33
    RD = 192
    if cfg.get("prof"): A(f"v_mov_b32 v{PR}, v{PV}")
    vstamp(A, cfg, 4, PR)
    est(A, cfg, 7, PR)
    JL = cfg.get("jl") == "1"
    def j_sel():
        A(f"""
        v_bfe_u32 v4, v0, 2, 1
        v_bfe_u32 v5, v0, 4, 1
        v_cmp_eq_u32 vcc, v4, v5
        v_mov_b32 v5, 0x3f803f80
        v_mov_b32 v4, 0
        v_cndmask_b32 v{SEL}, v4, v5, vcc
        v_cndmask_b32 v{SEL+1}, v4, v5, vcc
        v_cndmask_b32 v{SEL+2}, v4, v5, vcc
        v_cndmask_b32 v{SEL+3}, v4, v5, vcc
        v_mov_b32 v1, v3                 ; cur
        v_add_u32 v2, 16384, v3          ; next
        """)
    def j_zero(a, b):
        z = [O+i for i in range(16)]
        for i in range(4): z += [L+i, V1+i, P+4+i]
        z += [35, 36, 37, 38, 39, 45] + ([] if E8 else [46])
        for i in z[a:b]: A(f"v_mov_b32 v{i}, 0")
    A("v_lshlrev_b32 v3, 4, v0          ; lane*16")
    if not JL: j_sel()
    A(f"""
    s_lshl_b32 s47, s40, 11
    s_add_u32 s47, s47, {QST}
    v_add_u32 v6, s47, v3            ; Q staging address
    s_lshl_b32 s47, s40, 10
    s_add_u32 s47, s47, {RED0}
    v_add_u32 v7, s47, v3
    """)
    if not JL: j_zero(0, 99)
    if E8:
        A("v_and_b32 v46, 15, v0")
        A("v_lshlrev_b32 v46, 2, v46")
        if cfg.get("dp", "1") != "2": poll_issue(A, 47, 46, 32, "s78")
    A(f"""
    s_mov_b32 s60, 0
    s_mov_b32 s61, 1
    s_waitcnt lgkmcnt(0)
    """)
    est(A, cfg, 8, PR)
    A("s_barrier")
    est(A, cfg, 9, PR)
    vstamp(A, cfg, 5, PR)
    NRD = 4 if E8 else 2
    A(f"""
    ds_read_b128 v[{Q}:{Q+3}], v6
    ds_read_b128 v[{NEGM}:{NEGM+3}], v3
    ds_read_b128 v[{Q+4}:{Q+7}], v6 offset:1024
    ds_read_b128 v[{NEGM+4}:{NEGM+7}], v3 offset:1024
    ds_read_b128 v[{K0}:{K0+3}], v3 offset:4096
    ds_read_b128 v[{K1}:{K1+3}], v3 offset:{4096+1024}
    ds_read_b128 v[{V0}:{V0+3}], v3 offset:2048
    ds_read_b128 v[{RD}:{RD+3}], v7
    ds_read_b128 v[{RD+4}:{RD+7}], v7 offset:8192
    """)
    if E8:
        A(f"ds_read_b128 v[{RD+12}:{RD+15}], v7 offset:{HB0 - RED0}")
        A(f"ds_read_b128 v[{RD+16}:{RD+19}], v7 offset:{HB0 - RED0 + 8192}")
    if JL: j_zero(0, 20)
    A(f"""
    s_waitcnt lgkmcnt({5 + NRD})
    v_mfma_f32_32x32x16_bf16 v[{SA}:{SA+15}], v[{NEGM}:{NEGM+3}], v[{Q}:{Q+3}], 0
    s_waitcnt lgkmcnt({3 + NRD})
    v_mfma_f32_32x32x16_bf16 v[{SA}:{SA+15}], v[{NEGM+4}:{NEGM+7}], v[{Q+4}:{Q+7}], v[{SA}:{SA+15}]
    """)
    M32 = cfg.get("m32") == "1"
    JR = cfg.get("jr") == "1"
    if not M32:
        A(f"""
        s_waitcnt lgkmcnt({1 + NRD})
        v_mfma_f32_32x32x16_bf16 v[{SB}:{SB+15}], v[{K0}:{K0+3}], v[{Q}:{Q+3}], 0
        v_mfma_f32_32x32x16_bf16 v[{SB}:{SB+15}], v[{K1}:{K1+3}], v[{Q+4}:{Q+7}], v[{SB}:{SB+15}]
        """)
    if JL: j_sel(); j_zero(20, 99)
    def rd_sums():
      A(f"""
      s_waitcnt lgkmcnt(0)
      v_pk_add_f32 v[{RD}:{RD+1}], v[{RD}:{RD+1}], v[{RD+4}:{RD+5}]
      v_pk_add_f32 v[{RD+2}:{RD+3}], v[{RD+2}:{RD+3}], v[{RD+6}:{RD+7}]
      """)
      if E8:
        A(f"""
        v_pk_add_f32 v[{RD+12}:{RD+13}], v[{RD+12}:{RD+13}], v[{RD+16}:{RD+17}]
        v_pk_add_f32 v[{RD+14}:{RD+15}], v[{RD+14}:{RD+15}], v[{RD+18}:{RD+19}]
        v_pk_add_f32 v[{RD}:{RD+1}], v[{RD}:{RD+1}], v[{RD+12}:{RD+13}]
        v_pk_add_f32 v[{RD+2}:{RD+3}], v[{RD+2}:{RD+3}], v[{RD+14}:{RD+15}]
        s_cmp_lg_u32 s40, 7
        s_cbranch_scc1 KJ_NOZ
        v_lshlrev_b32 v4, 2, v0
        v_add_u32 v5, {ZRED}, v4
        ds_read_b32 v{RD+8}, v5
        ds_read_b32 v{RD+9}, v5 offset:256
        ds_read_b32 v{RD+10}, v5 offset:512
        ds_read_b32 v{RD+11}, v5 offset:768
        s_waitcnt lgkmcnt(0)
        v_add_f32 v{RD+8}, v{RD+8}, v{RD+9}
        v_add_f32 v{RD+10}, v{RD+10}, v{RD+11}
        v_add_f32 v{RD+8}, v{RD+8}, v{RD+10}
        KJ_NOZ:
        """)
      else:
        A(f"""
        s_cmp_lg_u32 s40, 7
        buffer_store_dwordx4 v[{RD}:{RD+3}], v3, s[32:35], s79 offen sc1
        s_cbranch_scc1 KJ_NOZ
        v_lshlrev_b32 v4, 2, v0
        v_add_u32 v5, {ZRED}, v4
        ds_read_b32 v{RD+8}, v5
        ds_read_b32 v{RD+9}, v5 offset:256
        s_waitcnt lgkmcnt(0)
        v_add_f32 v{RD+8}, v{RD+8}, v{RD+9}
        buffer_store_dword v{RD+8}, v4, s[32:35], s89 offen sc1
        KJ_NOZ:
        """)
    if not JR: rd_sums()
    else: assert E8 and JL
    A.nop(6)
    A(f"v_max3_f32 v4, v{SA}, v{SA+1}, v{SA+2}")
    A(f"v_max3_f32 v5, v{SA+3}, v{SA+4}, v{SA+5}")
    for k in range(6, 14, 4):
        A(f"v_max3_f32 v4, v4, v{SA+k}, v{SA+k+1}")
        A(f"v_max3_f32 v5, v5, v{SA+k+2}, v{SA+k+3}")
    A(f"v_max3_f32 v4, v4, v{SA+14}, v{SA+15}")
    for k in range(0, 16, 4):
        if M32: break
        A(f"v_max3_f32 v4, v4, v{SB+k}, v{SB+k+1}")
        A(f"v_max3_f32 v5, v5, v{SB+k+2}, v{SB+k+3}")
    A("v_max_f32 v4, v4, v5")
    A("v_mov_b32 v5, v4")
    A.nop(2)
    A("v_permlane32_swap_b32 v4, v5")
    A("s_nop 0")
    A("v_max_f32 v4, v4, v5")
    A(f"v_add_f32 v4, {fhex(BIAS)}, v4")
    if cfg.get("np") == "1":
        for i in range(2): A(f"v_sub_f32 v{NEGM+i}, 0, v4")
        for i in range(2, 16, 2): A(f"v_pk_mov_b32 v[{NEGM+i}:{NEGM+i+1}], v[{NEGM}:{NEGM+1}], v[{NEGM}:{NEGM+1}] op_sel:[0,1]")
    else:
        for i in range(16):
            A(f"v_sub_f32 v{NEGM+i}, 0, v4")
    for k in range(8):
        A(f"v_pk_add_f32 v[{SA+2*k}:{SA+2*k+1}], v[{SA+2*k}:{SA+2*k+1}], v[{NEGM}:{NEGM+1}]")
    if JR: rd_sums()
    DX = int(cfg.get("dx", 0))
    def chunk2():
        A(f"""
        s_lshl_b32 s47, s40, 11
        s_add_u32 m0, s47, {2*16384}
        s_lshl_b32 s38, s41, 1
        s_add_u32 s38, s38, 2
        s_and_b32 s38, s38, 15
        s_lshl_b32 s38, s38, 14
        s_add_u32 s38, s38, s47
        s_add_u32 s81, s38, s70
        buffer_load_dwordx4 v3, s[32:35], s81 offen sc1 lds
        buffer_load_dwordx4 v3, s[32:35], s81 offen offset:1024 sc1 lds
        """)
    if DX:
        assert E8 and cfg.get("prof") != "2" and 1 <= DX <= 3
        DP = cfg.get("dp", "1")
        if DP == "2": poll_issue(A, 47, 46, 32, "s78")
        if DP == "3": poll_issue(A, 45, 46, 32, "s78")
        A(f"""
        buffer_store_dwordx4 v[{RD}:{RD+3}], v3, s[32:35], s79 offen sc1
        s_cmp_lg_u32 s40, 7
        s_cbranch_scc1 KJ_NOZ2
        v_lshlrev_b32 v4, 2, v0
        buffer_store_dword v{RD+8}, v4, s[32:35], s89 offen sc1
        KJ_NOZ2:
        """)
    elif E8:
        A("s_waitcnt vmcnt(0)")
        poll_check(A, 47, 46, 32, "s78", "P1")
        A(f"""
        buffer_store_dwordx4 v[{RD}:{RD+3}], v3, s[32:35], s79 offen sc1
        s_cmp_lg_u32 s40, 7
        s_cbranch_scc1 KJ_NOZ2
        v_lshlrev_b32 v4, 2, v0
        buffer_store_dword v{RD+8}, v4, s[32:35], s89 offen sc1
        KJ_NOZ2:
        s_lshl_b32 s47, s40, 11
        s_add_u32 m0, s47, {2*16384}
        s_lshl_b32 s38, s41, 1
        s_add_u32 s38, s38, 2
        s_and_b32 s38, s38, 15
        s_lshl_b32 s38, s38, 14
        s_add_u32 s38, s38, s47
        s_add_u32 s81, s38, s70
        buffer_load_dwordx4 v3, s[32:35], s81 offen sc1 lds
        buffer_load_dwordx4 v3, s[32:35], s81 offen offset:1024 sc1 lds
        """)
    vstamp(A, cfg, 6, PR)
    est(A, cfg, 10, PR)
    if cfg.get("prof") == "2":
        A("s_mov_b32 s100, 15"); A(f"v_mov_b32 v{PR}, 0"); bstamp(A, cfg, 2); A("s_mov_b32 s100, 0")
    def dma_ops():
        a = ["s_mov_b32 m0, s72", "s_add_u32 s81, s70, s71", "s_add_u32 s72, s72, 16384",
             "buffer_load_dwordx4 v3, s[32:35], s81 offen sc1 lds"]
        b = ["buffer_load_dwordx4 v3, s[32:35], s81 offen offset:1024 sc1 lds",
             f"s_and_b32 s72, s72, {RING-1}", "s_add_u32 s71, s71, 16384", "s_and_b32 s71, s71, 0x3ffff"]
        return a, b
    def dma_chunk():
        a, b = dma_ops()
        for l in a + b: A(l)
    class LQ:
        def __init__(s, init): s.q = list(init)
        def rd(s, tag, text):
            def f(): A(text); s.q.append(tag)
            return f
        def wait(s, *tags):
            idx = max([k for k, t in enumerate(s.q) if t in tags], default=-1)
            if idx < 0: return
            A(f"s_waitcnt lgkmcnt({min(15, len(s.q) - 1 - idx)})")
            s.q = s.q[idx+1:]
    LQM = [None]
    def tile(i, Sa, Sb, sideA=(), sideB=(), end=()):
        e = lambda k: f"v_exp_f32 v{Sa+k}, v{Sa+k}"
        c = lambda k: f"v_cvt_pk_bf16_f32 v{P+k}, v{Sa+2*k}, v{Sa+2*k+1}"
        QK0 = f"v_mfma_f32_32x32x16_bf16 v[{Sb}:{Sb+15}], v[{K0}:{K0+3}], v[{Q}:{Q+3}], v[{NEGM}:{NEGM+15}]"
        QK1 = f"v_mfma_f32_32x32x16_bf16 v[{Sb}:{Sb+15}], v[{K1}:{K1+3}], v[{Q+4}:{Q+7}], v[{Sb}:{Sb+15}]"
        PV0 = f"v_mfma_f32_32x32x16_bf16 v[{O}:{O+15}], v[{V0}:{V0+3}], v[{P}:{P+3}], v[{O}:{O+15}]"
        PV1 = f"v_mfma_f32_32x32x16_bf16 v[{O}:{O+15}], v[{V1}:{V1+3}], v[{P+4}:{P+7}], v[{O}:{O+15}]"
        L0 = f"v_mfma_f32_16x16x32_bf16 v[{L}:{L+3}], v[{SEL}:{SEL+3}], v[{P}:{P+3}], v[{L}:{L+3}]"
        L1 = f"v_mfma_f32_16x16x32_bf16 v[{L}:{L+3}], v[{SEL}:{SEL+3}], v[{P+4}:{P+7}], v[{L}:{L+3}]"
        W = "s_waitcnt lgkmcnt(3)"
        def addr(tt, fr):
            return (f"v1 offset:{tt*4096+fr*1024}" if tt < 4 else f"v2 offset:{(tt-4)*4096+fr*1024}")
        rK0 = f"ds_read_b128 v[{K0}:{K0+3}], {addr(i+2, 0)}"; rK1 = f"ds_read_b128 v[{K1}:{K1+3}], {addr(i+2, 1)}"
        rV0 = f"ds_read_b128 v[{V0}:{V0+3}], {addr(i+1, 2)}"; rV1 = f"ds_read_b128 v[{V1}:{V1+3}], {addr(i, 3)}"
        WV1 = WK0 = WK1 = WV0 = W
        lq = LQM[0]
        if lq:
            WV1, WK0, WK1, WV0 = [(lambda t=t: lq.wait(t)) for t in ("V1", "K0", "K1", "V0")]
            rV1, rK0, rK1, rV0 = lq.rd("V1", rV1), lq.rd("K0", rK0), lq.rd("K1", rK1), lq.rd("V0", rV0)
        seq = [e(0), e(1), WV1, PV1, rV1, *sideA, e(2), e(3), e(4), e(5), WK0, QK0, rK0, e(6), e(7), c(0), c(1), L1, c(2), c(3), e(8), WK1, QK1, rK1,
               *sideB, e(9), e(10), e(11), WV0, PV0, rV0, e(12), e(13), e(14), L0, e(15), c(4), c(5), c(6), c(7), *end]
        for x in seq:
            if callable(x): x()
            else: A(x)
    PRIO = [int(c) for c in cfg.get("prio", "3210")]
    def period(sides=None, dma=True, head=False):
        if head and DX:
            A("s_cmp_eq_u32 s60, 0"); A("s_cbranch_scc1 K2_ND")
            dma_chunk()
            A.label("K2_ND")
        elif dma: dma_chunk()
        for i in range(4):
            sa, sb, en = (sides or {}).get(i, ((), (), ()))
            if head and DX and i == 2:
                A(f"""
                s_cmp_eq_u32 s60, 1
                s_cbranch_scc0 K2_N2
                s_waitcnt vmcnt(5)
                s_barrier
                K2_N2:
                """)
            if cfg.get("prio"): A(f"s_setprio {PRIO[i]}")
            tile(i, SA if i % 2 == 0 else SB, SB if i % 2 == 0 else SA, sa, sb, en)
            if head and DX and i == DX - 1:
                A("s_cmp_eq_u32 s60, 0"); A("s_cbranch_scc1 K2_P0X"); A.label("K2_P0R")
        A(f"""
        v_mov_b32 v1, v2
        v_add_u32 v2, 16384, v2
        v_and_b32 v2, {RING-1}, v2
        """)
    if DX:
        A("s_branch K2_LOOP")
        A.label("K2_P0X")
        if DP == "3":
            A("""
            s_waitcnt vmcnt(2)
            v_cmp_eq_u32 vcc, 1, v47
            s_cmp_eq_u64 vcc, -1
            s_cbranch_scc1 K2_P0K
            s_waitcnt vmcnt(1)
            v_mov_b32 v47, v45
            """)
        else:
            A("s_waitcnt vmcnt(1)")
        poll_check(A, 47, 46, 32, "s78", "P1")
        A.label("K2_P0K")
        chunk2()
        dma_chunk()
        A("s_branch K2_P0R")
    A.label("K2_LOOP")
    period(head=True)
    if DX:
        A(f"""
        s_add_u32 s60, s60, 1
        s_cmp_eq_u32 s60, 1
        s_cbranch_scc0 K2_W2
        s_waitcnt vmcnt(4)
        s_branch K2_W4
        K2_W2:
        s_waitcnt vmcnt(2)
        K2_W4:
        s_cmp_lg_u32 s60, s61
        s_barrier
        s_cbranch_scc1 K2_LOOP
        """)
    elif cfg.get("prof") == "2":
        pbar(A, cfg, "s_waitcnt vmcnt(2)")
        A("""
        s_add_u32 s60, s60, 1
        s_cmp_lg_u32 s60, s61
        s_cbranch_scc1 K2_LOOP
        """)
    else:
        A(f"""
        s_add_u32 s60, s60, 1
        s_cmp_lg_u32 s60, s61
        s_waitcnt vmcnt(2)
        s_barrier
        s_cbranch_scc1 K2_LOOP
        """)
    A(f"""
    s_cmp_eq_u32 s60, 1
    s_cbranch_scc1 KD_1
    s_cmp_eq_u32 s60, 3
    s_cbranch_scc1 KD_3
    s_cmp_eq_u32 s60, 4
    s_cbranch_scc1 KD_4
    s_branch KD_7
    KD_1:
    s_mov_b32 s61, 3
    """)
    set_flag(A, "s68")
    A(f"""
    s_branch K2_LOOP
    KD_3:
    v_lshlrev_b32 v46, 2, v0
    s_mov_b32 s61, 4
    """)
    poll_issue(A, 47, 46, 32, "s77")
    A("s_branch K2_LOOP")
    A.label("KD_4")
    vstamp(A, cfg, 7, PR)
    poll_check(A, 47, 46, 32, "s77", "PK")
    KVP = 192; ZP = 224
    A(f"""
    s_cmp_eq_u32 s40, 4
    s_cselect_b32 s84, 1, 0          ; wave 4 also reduces z
    """)
    def kvload(rr):
        def f():
            A(f"buffer_load_dwordx4 v[{KVP+4*rr}:{KVP+4*rr+3}], v3, s[32:35], s75 offen sc1")
            A("s_add_u32 s75, s75, 8192")
        return f
    def zload(rr):
        def f():
            j = A.uid("KZ")
            A("s_cmp_eq_u32 s84, 0"); A(f"s_cbranch_scc1 {j}")
            A(f"buffer_load_dword v{ZP+rr}, v46, s[32:35], s76 offen offset:{256*rr} sc1")
            A(f"buffer_load_dword v{ZP+rr+1}, v46, s[32:35], s76 offen offset:{256*rr+256} sc1")
            A.label(j)
        return f
    period({i: ((kvload(2*i),), (kvload(2*i+1),), (zload(2*i),)) for i in range(4)})
    pbar(A, cfg, "s_waitcnt vmcnt(10)")
    def kvsum():
        A("s_waitcnt vmcnt(2)")
        A(f"""
        s_lshr_b32 s47, s40, 1
        s_lshl_b32 s47, s47, 10
        s_and_b32 s38, s40, 1
        s_lshl_b32 s38, s38, 3
        s_add_u32 s47, s47, s38
        s_add_u32 s47, s47, {KVT_L}
        v_add_u32 v4, s47, v3            ; kvT write address
        """)
        b = KVP
        for rr in range(1, 8):
            A(f"v_pk_add_f32 v[{b}:{b+1}], v[{b}:{b+1}], v[{b+4*rr}:{b+4*rr+1}]")
            A(f"v_pk_add_f32 v[{b+2}:{b+3}], v[{b+2}:{b+3}], v[{b+4*rr+2}:{b+4*rr+3}]")
        A(f"v_cvt_pk_bf16_f32 v{b}, v{b}, v{b+1}")
        A(f"v_cvt_pk_bf16_f32 v{b+1}, v{b+2}, v{b+3}")
        A(f"ds_write_b64 v4, v[{b}:{b+1}]")
        j = A.uid("KZS")
        A("s_cmp_eq_u32 s84, 0"); A(f"s_cbranch_scc1 {j}")
        for rr in range(1, 8):
            A(f"v_add_f32 v{ZP}, v{ZP}, v{ZP+rr}")
        A(f"""
        v_lshlrev_b32 v5, 1, v0
        v_add_u32 v5, {Z_L}, v5          ; z write address (lane = f)
        v_cvt_pk_bf16_f32 v{ZP}, v{ZP}, v{ZP}
        ds_write_b16 v5, v{ZP}
        """)
        A.label(j)
    period({1: ((), (), (kvsum,))})
    pbar(A, cfg, None)
    A(f"""
    s_mov_b32 s60, 6
    s_mov_b32 s61, 7
    {"s_lshr_b32 s47, s40, 2" if XT8 else "s_mov_b32 s47, 0"}
    s_xor_b32 s47, s47, s40
    s_and_b32 s47, s47, {1 if E8 else 5}
    s_cmp_lg_u32 s47, 1
    s_cbranch_scc1 K2_LOOP
    """)
    KVT, ZR, NUM, DEN, OA = 192, 208, 224, 240, 244
    A(f"""
    v_add_u32 v4, {KVT_L}, v3
    v_lshrrev_b32 v5, 5, v0
    v_lshlrev_b32 v5, 3, v5
    v_add_u32 v5, {Z_L}, v5          ; Z + hh*8
    """)
    for s in range(4):
        A(f"ds_read_b128 v[{KVT+4*s}:{KVT+4*s+3}], v4 offset:{s*1024}")
        A(f"ds_read_b64 v[{ZR+4*s}:{ZR+4*s+1}], v5 offset:{32*s}")
        A(f"ds_read_b64 v[{ZR+4*s+2}:{ZR+4*s+3}], v5 offset:{32*s+16}")
    def zmask():
        A("v_bfe_u32 v4, v0, 2, 1")
        A("v_bfe_u32 v5, v0, 4, 1")
        A("v_cmp_eq_u32 vcc, v4, v5")
        A("v_mov_b32 v4, 0")
        A("s_nop 0")
        for k in range(16): A(f"v_cndmask_b32 v{ZR+k}, v4, v{ZR+k}, vcc")
    def amfma(t):
        def f():
            for s in range(4):
                c = "0" if s == 0 else f"v[{NUM}:{NUM+15}]"
                A(f"v_mfma_f32_32x32x16_bf16 v[{NUM}:{NUM+15}], v[{KVT+4*s}:{KVT+4*s+3}], v[{PHQ+16*t+4*s}:{PHQ+16*t+4*s+3}], {c}")
                c = "0" if s == 0 else f"v[{DEN}:{DEN+3}]"
                A(f"v_mfma_f32_16x16x32_bf16 v[{DEN}:{DEN+3}], v[{ZR+4*s}:{ZR+4*s+3}], v[{PHQ+16*t+4*s}:{PHQ+16*t+4*s+3}], {c}")
        return f
    def afin():
        A(f"v_add_f32 v4, {fhex(1e-6)}, v{DEN}")
        A("v_rcp_f32 v4, v4")
        A("s_nop 0")
        for k in range(8):
            A(f"v_pk_mul_f32 v[{NUM+2*k}:{NUM+2*k+1}], v[{NUM+2*k}:{NUM+2*k+1}], v[4:5] op_sel_hi:[1,0]")
        cvt_tile(A, OA, NUM)
        A(f"buffer_store_dwordx4 v[{OA}:{OA+3}], v3, s[32:35], s74 offen sc1")
        A(f"buffer_store_dwordx4 v[{OA+4}:{OA+7}], v3, s[32:35], s74 offen offset:1024 sc1")
        A("s_add_u32 s74, s74, 65536")
    if E8:
        period({0: ((), (), (zmask, amfma(0))), 1: ((), (), (afin, amfma(1))), 2: ((), (), (afin,))})
        pbar(A, cfg, "s_waitcnt vmcnt(6)")
    else:
        period({0: ((), (), (zmask, amfma(0))), 1: ((), (), (afin, amfma(1))), 2: ((), (), (afin, amfma(2))), 3: ((), (), (afin, amfma(3)))})
        A.nop(12)
        afin()
        pbar(A, cfg, "s_waitcnt vmcnt(10)")
    P16 = cfg.get("p16")
    A.label("KD_7")
    A(f"""
    s_mov_b32 s60, 7
    v_and_b32 v45, 31, v0
    v_lshlrev_b32 v45, 2, v45        ; (l&31)*4
    v_lshlrev_b32 v35, 2, v0         ; lane*4
    v_lshrrev_b32 v4, 3, v0
    v_lshlrev_b32 v5, 11, v4         ; row*2048
    v_and_b32 v7, 7, v0
    v_bfe_u32 v6, v0, 4, {2 if P16 else 1}
    v_lshlrev_b32 v6, {1 if P16 else 2}, v6
    v_xor_b32 v7, v7, v6
    v_lshl_add_u32 v5, v7, 4, v5
    s_lshl_b32 s47, s18, 9
    s_lshl_b32 s38, s19, 4
    s_add_u32 s47, s47, s38
    s_lshl_b32 s47, s47, 11
    s_lshl_b32 s38, s17, 7
    s_add_u32 s47, s47, s38          ; + C*128
    v_add_u32 v36, s47, v5           ; piece 0
    v_add_u32 v37, {16384 - 1024}, v36 ; piece 1 (with offset:1024)
    v_lshrrev_b32 v7, 5, v0          ; hh
    v_bfe_u32 v6, v0, 2, 2           ; i>>2
    v_lshl_add_u32 v7, v7, 2, v6
    v_lshlrev_b32 v7, 7, v7
    v_bfe_u32 v6, v0, 4, 1
    v_bfe_u32 v5, v0, 1, 1
    v_lshl_add_u32 v6, v6, 1, v5
    v_bfe_u32 v5, v0, 3, 1
    v_lshlrev_b32 v5, 2, v5
    v_xor_b32 v6, v6, v5
    v_lshl_add_u32 v7, v6, 4, v7
    v_and_b32 v5, 1, v0
    v_lshl_add_u32 v7, v5, 3, v7
    s_lshl_b32 s38, s18, 13
    v_add_u32 v38, s38, v7           ; cb=0
    v_xor_b32 v39, 64, v38           ; cb=1
    s_add_u32 s80, s30, {WSL(0)}
    """)
    if P16:
        A(f"""
        v_lshrrev_b32 v4, 4, v0          ; q4
        v_and_b32 v5, 15, v0             ; i
        v_lshlrev_b32 v39, 4, v5
        v_lshl_add_u32 v39, v4, 9, v39   ; o : q4 * 512 + i * 16
        v_lshrrev_b32 v6, 1, v4
        v_lshlrev_b32 v6, 4, v6          ; 16 fr
        v_and_b32 v7, 1, v4
        v_lshl_add_u32 v6, v7, 2, v6     ; + 4 hh
        v_lshrrev_b32 v5, 2, v5
        v_add_u32 v6, v6, v5             ; k row
        v_lshlrev_b32 v38, 7, v6
        v_bfe_u32 v6, v6, 1, 2           ; (row >> 1) & 3
        v_lshl_add_u32 v38, v6, 5, v38
        v_and_b32 v5, 3, v0
        v_lshl_add_u32 v38, v5, 3, v38
        v_add_u32 v38, s38, v38
        v_and_b32 v45, 15, v0
        v_lshlrev_b32 v45, 2, v45        ; (l&15)*4
        """)
    def wo_ops(m0src):
        a = [m0src, "s_nop 0", "buffer_load_dwordx4 v36, s[20:23], s29 offen lds"]
        b = ["buffer_load_dwordx4 v37, s[20:23], s29 offen offset:1024 lds", f"s_add_u32 s29, s29, {64*2048}"]
        return a, b
    A.label("K2_LOOPB")
    wa, wb = wo_ops("s_mov_b32 m0, s80")
    wb = wb + ["s_add_u32 s80, s80, 16384"]
    ca, cb_ = dma_ops()
    period({0: (tuple(wa), tuple(wb), ()), 1: (tuple(wa), tuple(wb), ()), 2: (tuple(ca), tuple(cb_), ())}, dma=False)
    if cfg.get("prof") == "2":
        pbar(A, cfg, "s_waitcnt vmcnt(6)")
        A("""
        s_add_u32 s60, s60, 1
        s_cmp_eq_u32 s60, 10
        """)
    else:
        A("""
        s_add_u32 s60, s60, 1
        s_cmp_eq_u32 s60, 10
        s_waitcnt vmcnt(6)
        s_barrier
        """)
    A(f"""
    s_cbranch_scc1 KB_10
    s_cmp_eq_u32 s60, 9
    s_cbranch_scc1 KB_9
    s_and_b32 s47, s40, 5
    s_cmp_lg_u32 s47, 1
    s_cbranch_scc1 K2_LOOPB
    """)
    set_flag(A, "s88")
    A("s_branch K2_LOOPB")
    A.label("KB_9")
    poll_issue(A, 47, 35, 32, "s36")
    A("s_branch K2_LOOPB")
    A.label("KB_10")
    vstamp(A, cfg, 8, PR)
    poll_check(A, 47, 35, 32, "s36", "PA")
    G, OMG = 32, 34
    OF = 128
    vm = VM(A, ["W4", "W4", "W5", "W5", "c12", "c12"])
    vm.now("G", f"buffer_load_dword v{G}, v45, s[32:35], s31 offen sc1")
    if P16: vm.now("G", f"buffer_load_dword v35, v45, s[32:35], s31 offen offset:64 sc1")
    OV = 39 if P16 else 3
    ooff = (lambda j: (j >> 1)*2048 + (j & 1)*256) if P16 else (lambda j: j*1024)
    nld = [0]
    AE = int(cfg.get("ae", 0))
    assert AE in (0, 4, 5) and not (AE and P16)
    OFA = (lambda s: OF + 16*(s % 5)) if AE else (lambda s: OF + 16*s)
    ACE, WE, WEA = 224, (208, 216), 116
    def oload():
        k = nld[0]; nld[0] += 1
        s, j = divmod(k, 4)
        r = OFA(s) + 4*j
        def f():
            vm.now(f"o{k}" if AE else "o", f"buffer_load_dwordx4 v[{r}:{r+3}], v{OV}, s[32:35], s28 offen offset:{ooff(j)} sc1")
            if j == 3: A("s_add_u32 s28, s28, 4096")
        return f
    if AE:
        A(f"v_add_u32 v{WEA}, {WSL(0)}, v38")
        A(f"v_add_u32 v{WEA+1}, {WSL(0)}, v39")
        LQM[0] = LQ(["V1", "K0", "K1", "V0"])
    def ae_read(k, cb):
        s, j = divmod(k, 4)
        fs = []
        for sec in range(2):
            r = WE[k & 1] + 4*cb + 2*sec
            fs.append(LQM[0].rd(f"w{k}{cb}", f"ds_read_b64_tr_b16 v[{r}:{r+1}], v{WEA+cb} offset:{s*16384 + (16*j+8*sec)*128}"))
        return tuple(fs)
    def ae_mfma(k, cb):
        s, j = divmod(k, 4)
        def f():
            vm.wait(f"o{k}"); LQM[0].wait(f"w{k}{cb}")
            a = ACE + 16*cb; w = WE[k & 1] + 4*cb; o = OFA(s) + 4*j
            A(f"v_mfma_f32_32x32x16_bf16 v[{a}:{a+15}], v[{w}:{w+3}], v[{o}:{o+3}], " + ("0" if k == 0 else f"v[{a}:{a+15}]"))
        return f
    def lines(tag, ls):
        def f():
            for l in ls:
                if l.startswith("buffer_"): vm.now(tag, l)
                else: A(l)
        return f
    BT = int(cfg.get("btouch", 0))
    def btouch():
        A(f"""
        s_and_b32 s47, s16, 3
        s_lshl_b32 s47, s47, 3
        s_add_u32 s47, s47, s40
        s_lshl_b32 s47, s47, 5           ; first row : (T&3)*256 + wave*32
        v_add_u32 v44, s47, v0
        v_lshlrev_b32 v44, 11, v44
        s_lshl_b32 s47, s17, 7
        v_add_u32 v44, s47, v44
        v_mov_b32 v4, 0x7ffffff0
        v_cmp_gt_u32 vcc, 32, v0
        s_mov_b32 s92, s6
        s_mov_b32 s93, s7
        s_mov_b32 s94, {1024*2048}
        s_mov_b32 s95, 0x00020000
        v_cndmask_b32 v44, v4, v44, vcc
        """)
        vm.now("T", "buffer_load_dword v44, v44, s[92:95], 0 offen")
    for n in range(10, 16):
        sides = {}
        if n <= 12:
            a, b = dma_ops()
            sides[0] = ((lines(f"c{n+3}", a),), (lines(f"c{n+3}", b),), (oload(),))
            sides[1] = ((oload(),), (oload(),), ())
            if AE == 5 and n == 12:
                sides[2] = ((), (), ()); sides[3] = ((), (), ())
                sides[1] = ((oload(),), (oload(),), ())
            else:
                sides[2] = ((oload(),), (oload(),), ())
                sides[3] = ((oload(),), (), ())
        elif n <= 14:
            a, b = wo_ops(f"s_add_u32 m0, s30, {WSL(n - 7)}")
            if AE == 4:
                sides[0] = ((lines("W", a),), (lines("W", b),), (oload(),))
                sides[1] = ((oload(),), (oload(),), ())
                sides[2] = ((oload(),), (), ()) if n == 14 else ((oload(),), (oload(),), ())
                sides[3] = ((), (), ()) if n == 14 else ((oload(),), (), ())
            else:
                sides[0] = ((lines("W", a),), (lines("W", b),), (oload(),))
                sides[1] = ((oload(),), (oload(),), ())
                sides[2] = ((oload(),), (), ())
                sides[3] = ((oload(),), (), ())
        else:
            sides[0] = ((oload(),), (oload(),), ())
            sides[1] = ((oload(),), (oload(),), ())
        if n == BT: sides[3] = (sides[3][0], sides[3][1], tuple(sides[3][2]) + (btouch,))
        if AE:
            assert AE == 4
            for i in range(4):
                sa, sb, en = sides.get(i, ((), (), ()))
                k = 4*(n - (16 - AE)) + i
                if 0 <= k < 4*AE:
                    sa = (ae_mfma(k, 0),) + tuple(sa); sb = (ae_mfma(k, 1),) + tuple(sb)
                if 0 <= k + 1 < 4*AE:
                    sa = tuple(sa) + ae_read(k + 1, 0); sb = tuple(sb) + ae_read(k + 1, 1)
                sides[i] = (sa, sb, en)
        period(sides, dma=False)
        if n <= 13:
            pbar(A, cfg, lambda: vm.wait(f"c{n+2}"))
        elif cfg.get("prof") == "2":
            bstamp(A, cfg, 0); bstamp(A, cfg, 1); bstamp(A, cfg, 2)
        if n == 12: vstamp(A, cfg, 9, PR)
    assert nld[0] == 32
    A(f"""
    s_mov_b32 s60, 16
    s_waitcnt lgkmcnt(0)
    v_mfma_f32_32x32x16_bf16 v[{O}:{O+15}], v[{V1}:{V1+3}], v[{P+4}:{P+7}], v[{O}:{O+15}]
    v_mfma_f32_16x16x32_bf16 v[{L}:{L+3}], v[{SEL}:{SEL+3}], v[{P+4}:{P+7}], v[{L}:{L+3}]
    """)
    vstamp(A, cfg, 10, PR)
    rst(A, cfg, 0)
    A("v_lshlrev_b32 v45, 3, v0")
    A.nop(12)
    A.label("K2_FIN")
    A(f"v_rcp_f32 v4, v{L}")
    A("s_nop 0")
    for k in range(8):
        A(f"v_pk_mul_f32 v[{O+2*k}:{O+2*k+1}], v[{O+2*k}:{O+2*k+1}], v[4:5] op_sel_hi:[1,0]")
    FA = cfg.get("fa") == "1"
    def ob_out():
        for i in range(8):
            A(f"v_cvt_pk_bf16_f32 v{P+i}, v{O+2*i}, v{O+2*i+1}")
        A(f"buffer_store_dwordx4 v[{P}:{P+3}], v3, s[32:35], s73 offen sc1")
        A(f"buffer_store_dwordx4 v[{P+4}:{P+7}], v3, s[32:35], s73 offen offset:1024 sc1")
    if FA: ob_out()
    A("v_mov_b32 v6, 0")
    for k in range(16):
        A(f"v_fma_f32 v6, v{O+k}, 0, v6")
    A(f"""
    v_mov_b32 v7, {fhex(2.0**120)}
    v_cmp_u_f32 vcc, v6, v6
    v_cmp_nlt_f32 s[62:63], v{L}, v7
    s_or_b64 vcc, vcc, s[62:63]
    """)
    if cfg.get("force_fb"):
        A("s_mov_b64 vcc, -1")
    A(f"""
    s_cmp_eq_u32 s60, 16
    s_cselect_b64 vcc, vcc, 0
    s_cbranch_vccnz K2_FB
    """)
    if not FA: ob_out()
    EF = cfg.get("ef")
    if EF == "2":
        A("""
        s_cmp_lt_u32 s40, 4
        s_cbranch_scc0 K3_EF1
        s_waitcnt vmcnt(2)
        s_barrier
        s_waitcnt vmcnt(0)
        """)
        set_flag(A, "s69")
        A("""
        s_branch K3_EF2
        K3_EF1:
        s_setprio 1
        s_waitcnt vmcnt(2)
        s_barrier
        K3_EF2:
        """)
    elif EF:
        A("""
        s_cmp_lt_u32 s40, 4
        s_cbranch_scc0 K3_EF1
        s_waitcnt vmcnt(0)
        """)
        set_flag(A, "s69")
        A("""
        s_branch K3_EF2
        K3_EF1:
        s_setprio 1
        s_waitcnt vmcnt(2)
        K3_EF2:
        """)
    else:
        A("s_waitcnt vmcnt(2)")
    if EF != "2": A("s_barrier")
    vstamp(A, cfg, 11, PR)
    rst(A, cfg, 1)
    LQM[0] = None
    WFJ = [16, 24, 48, 56]
    ACCA, ACCB = (ACE if AE else 64), 96
    OFB = (lambda s: OF + 16*(s % 6)) if AE else (lambda s: OF + 16*s)
    P3V = cfg.get("p3v") in ("2", "3")
    OD = int(cfg.get("od", 8))
    P3R = cfg.get("p3v") == "3"
    BSL = lambda b: 32768 + 16384 * b if b < 2 else WSL(b - 2)
    def waddr(s, slot=WSL):
        if slot is None:
            A("v_add_u32 v40, s90, v38")
            A("v_add_u32 v41, s90, v39")
            A("s_add_u32 s90, s90, 16384")
            A("s_and_b32 s90, s90, 0x1ffff")
            return
        A(f"v_add_u32 v40, {slot(s)}, v38")
        if P16:
            A("v_xor_b32 v41, 32, v40"); A("v_xor_b32 v42, 64, v40"); A("v_xor_b32 v43, 0x60, v40")
        else:
            A(f"v_add_u32 v41, {slot(s)}, v39")
    W16F = lambda hd, cg: WFJ[2*hd + (cg >> 1)] + 4*(cg & 1)
    def wread16(hd, cg):
        for sec in range(2):
            r = W16F(hd, cg) + 2*sec
            A(f"ds_read_b64_tr_b16 v[{r}:{r+1}], v{40+cg} offset:{(32*hd+8*sec)*128}")
    def gemm16(acc_, after, owait, slot=WSL, inl={}, stamp=None, fs_tail=None):
        waddr(0, slot)
        A("s_nop 0")
        for hd in range(2):
            for cg in range(4): wread16(hd, cg)
        OX = [int(x) for x in cfg.get("ox", "0:0").split(":")]
        iss = [4 * OD]
        for t in range(32): iss.append(min(32, iss[-1] + (2 if OX[0] <= t < OX[1] else 1)))
        def jbody(s, j, more=0):
            last = s == 7
            hd, b = j >> 1, j & 1
            if owait: A(f"s_waitcnt vmcnt({iss[4*s + j] - (4*s + j) - 1})")
            for cg in range(4):
                if b == 0: A(f"s_waitcnt lgkmcnt({2*(3 - cg) + (0 if (last and hd == 1) else 8) + more})")
                w = W16F(hd, cg); o = OF + 16*s + 4*j; a = acc_ + 4*(2*cg + b)
                c = "0" if (s == 0 and hd == 0) else f"v[{a}:{a+3}]"
                A(f"v_mfma_f32_16x16x32_bf16 v[{a}:{a+3}], v[{w}:{w+3}], v[{o}:{o+3}], {c}")
                if b == 1 and not last: wread16(hd, cg)
            if j == 0 and not last: waddr(s + 1, slot)
            for l in inl.get((s, j), []):
                if callable(l): l()
                else: A(l)
            if owait:
                for n in range(iss[4*s + j], iss[4*s + j + 1]): o_load(n >> 2, n & 3)
        for s in range(8):
            for j in range(4):
                if fs_tail and s == 7 and j == 2:
                    A("s_cmp_eq_u32 s18, 0"); A("s_cbranch_scc1 K3_G0T")
                    A("s_barrier")
                    for q in range(8): A(f"ds_read_b128 v[{OF+4*q}:{OF+4*q+3}], v4 offset:{q*1024}")
                    jbody(7, 2, 8); jbody(7, 3, 8)
                    if stamp is not None: rst(A, cfg, stamp + s)
                    fs_tail()
                    A.label("K3_G0T")
                jbody(s, j)
            if s in after: after[s]()
            if stamp is not None and cfg.get("prof") == "5" and (s in (1, 3, 5, 7) or owait):
                rst(A, cfg, stamp + s)
    def wreads(j):
        for cb in range(2):
            for sec in range(2):
                r = WFJ[j] + 4*cb + 2*sec
                A(f"ds_read_b64_tr_b16 v[{r}:{r+1}], v{40+cb} offset:{(16*j+8*sec)*128}")
    def gemm(acc_, after, owait, slot=WSL, inl={}, stamp=None, s0=0, fs_tail=None):
        if P16: return gemm16(acc_, after, owait, slot, inl, stamp, fs_tail)
        waddr(s0, slot)
        for j in range(4): wreads(j)
        for s in range(s0, 8):
            last = s == 7
            for j in range(4):
                if owait: A(f"s_waitcnt vmcnt({min(4*OD + 4*s + j, 32) - (4*s + j) - 1 + (4 if (AE and 4*s + j < 4*OD) else 0)})")
                for cb in range(2):
                    n = (14 - 2*cb) if not last else (14 - 4*j - 2*cb)
                    A(f"s_waitcnt lgkmcnt({n})")
                    w = WFJ[j] + 4*cb; o = (OFB(s) if owait else OFA(s)) + 4*j; a = acc_ + 16*cb
                    c = "0" if (s == 0 and j == 0) else f"v[{a}:{a+15}]"
                    A(f"v_mfma_f32_32x32x16_bf16 v[{a}:{a+15}], v[{w}:{w+3}], v[{o}:{o+3}], {c}")
                if not last:
                    if j == 0: waddr(s + 1, slot)
                    wreads(j)
                for l in inl.get((s, j), []):
                    if callable(l): l()
                    else: A(l)
                if owait and s + OD < 8: o_load(s + OD, j)
            if s in after: after[s]()
            if stamp is not None and cfg.get("prof") == "5" and (s in (1, 3, 5, 7) or owait):
                rst(A, cfg, stamp + s)
    def refill(s0):
        for s in range(s0, s0 + 4):
            a, b = wo_ops(f"s_add_u32 m0, s30, {WSL(s)}")
            for l in a + b: A(l)
    def a_flag():
        A("s_waitcnt vmcnt(0)")
        set_flag(A, "s69")
    def a_mid():
        A("s_barrier")
        A("""
        s_mov_b32 s20, s6
        s_mov_b32 s21, s7
        s_mov_b32 s29, 0
        """)
        refill(0)
    def a_poll():
        poll_issue(A, 46, 45, 32, "s83", n=2)
    FBPOS = int(cfg.get("fbpos", 2))
    RB0 = 32768 if P3V else 0
    NZ = cfg.get("nz") == "1"
    if NZ:
        assert cfg.get("fs") == "1"
        RB0 = 0
    def out_addr():
        A(f"""
        v_sub_f32 v{OMG}, 1.0, v{G}
        {"v_sub_f32 v46, 1.0, v35" if P16 else ""}
        v_and_b32 v4, {15 if P16 else 31}, v0
        s_lshl_b32 s38, s19, 5
        v_add_u32 v4, s38, v4
        v_mul_u32_u24 v4, {K3_ROW}, v4
        v_lshrrev_b32 v5, {4 if P16 else 5}, v0
        v_lshl_add_u32 v4, v5, 4, v4
        s_mul_i32 s38, s18, {K3_RED}
        {f"s_add_u32 s38, s38, {RB0}" if RB0 else ""}
        v_add_u32 v4, s38, v4            ; write address
        s_lshl_b32 s38, s40, 6
        v_add_u32 v10, s38, v0           ; tid
        v_lshrrev_b32 v5, 3, v10
        v_and_b32 v6, 7, v10             ; chunk
        v_mul_u32_u24 v7, {K3_ROW}, v5
        v_lshl_add_u32 v7, v6, 5, v7     ; read address
        {f"v_add_u32 v7, {RB0}, v7" if RB0 else ""}
        s_lshl_b32 s38, s16, 7
        v_add_u32 v5, s38, v5
        v_lshlrev_b32 v5, 11, v5
        v_lshl_add_u32 v5, v6, 4, v5
        s_lshl_b32 s38, s17, 7
        v_add_u32 v5, s38, v5            ; out offset
        """)
    FS = cfg.get("fs") == "1"
    assert not FS or (P16 and P3V and not AE and not P3R)
    def out_addr_fs():
        A(f"""
        v_sub_f32 v{OMG}, 1.0, v{G}
        v_sub_f32 v46, 1.0, v35
        s_lshl_b32 s38, s19, 13
        s_add_u32 s38, s38, {RB0}
        v_lshl_add_u32 v4, v0, 4, s38
        v_and_b32 v5, 15, v0
        s_lshl_b32 s38, s16, 7
        s_lshl_b32 s47, s19, 5
        s_add_u32 s38, s38, s47
        v_add_u32 v5, s38, v5            ; token
        v_lshlrev_b32 v5, 11, v5
        v_lshrrev_b32 v6, 4, v0
        v_lshl_add_u32 v5, v6, 4, v5
        s_lshl_b32 s38, s17, 7
        v_add_u32 v5, s38, v5            ; out offset
        v_add_u32 v6, {16*2048}, v5      ; tokens 16..31
        """)
    def prof_out():
        if cfg.get("prof"):
            A("s_waitcnt vmcnt(0)")
            vstamp(A, cfg, 14, PR)
            rst(A, cfg, 24)
            A(f"""
            s_mov_b32 s92, s14
            s_mov_b32 s93, s15
            s_mov_b32 s94, {64*MB}
            s_mov_b32 s95, 0x00020000
            s_lshl_b32 s90, s2, 3
            s_add_u32 s90, s90, s40
            s_lshl_b32 s90, s90, {8 if cfg.get("prof") in ("2", "3", "4", "5", "6") else 7}
            s_add_u32 s90, s90, {WS_PROFV}
            v_lshlrev_b32 v1, 2, v0
            s_mov_b64 exec, {-1 if cfg.get("prof") in ("2", "3", "4", "5", "6") else "0xffffffff"}
            buffer_store_dword v{PR}, v1, s[92:95], s90 offen
            """)
    def fma_out():
        for k in range(16):
            om = 46 if (P16 and (k >> 1) & 1) else OMG
            A(f"v_pk_fma_f32 v[{ACCA+2*k}:{ACCA+2*k+1}], v[{ACCB+2*k}:{ACCB+2*k+1}], v[{om}:{om+1}], v[{ACCA+2*k}:{ACCA+2*k+1}] op_sel_hi:[1,0,1]")
    def fs_tail1():
        vstamp(A, cfg, 13, PR)
        A("s_waitcnt lgkmcnt(0)")
        D = OF + 32
        grp = [(p, b) for b in range(2) for p in range(2)]
        if cfg.get("st") == "1":
            ks = lambda b: [k for k in range(16) if ((k >> 1) & 1) == b]
            def add(b):
                for k in ks(b): A(f"v_pk_add_f32 v[{ACCA+2*k}:{ACCA+2*k+1}], v[{ACCA+2*k}:{ACCA+2*k+1}], v[{OF+2*k}:{OF+2*k+1}]")
            def fma(b):
                for k in ks(b): A(f"v_pk_fma_f32 v[{ACCA+2*k}:{ACCA+2*k+1}], v[{ACCB+2*k}:{ACCB+2*k+1}], v[{46 if b else OMG}:{(46 if b else OMG)+1}], v[{ACCA+2*k}:{ACCA+2*k+1}] op_sel_hi:[1,0,1]")
            def cvt(b):
                for g, (p, b_) in enumerate(grp):
                    if b_ != b: continue
                    x = ACCA + 4*(2*(2*p) + b); y = ACCA + 4*(2*(2*p + 1) + b); d = D + 4*g
                    A(f"v_cvt_pk_bf16_f32 v{d}, v{x}, v{x+1}")
                    A(f"v_cvt_pk_bf16_f32 v{d+1}, v{x+2}, v{x+3}")
                    A(f"v_cvt_pk_bf16_f32 v{d+2}, v{y}, v{y+1}")
                    A(f"v_cvt_pk_bf16_f32 v{d+3}, v{y+2}, v{y+3}")
            def swp(b):
                for sw in ("32", "16"):
                    for g, (p, b_) in enumerate(grp):
                        if b_ != b: continue
                        d = D + 4*g
                        A(f"v_permlane{sw}_swap_b32 v{d}, v{d+2}")
                        A(f"v_permlane{sw}_swap_b32 v{d+1}, v{d+3}")
                    if sw == "32": A("s_nop 1")
            def sto(b):
                for g, (p, b_) in enumerate(grp):
                    if b_ != b: continue
                    d = D + 4*g
                    A(f"buffer_store_dwordx4 v[{d}:{d+3}], v{5 + b}, s[24:27], 0 offen offset:{p*64} {cfg.get('ost', 'nt').replace('+', ' ')}")
            assert P16
            add(0); add(1); fma(0); cvt(0); A("s_nop 1"); swp(0); fma(1); sto(0); cvt(1); A("s_nop 1"); swp(1)
            rst(A, cfg, 22); rst(A, cfg, 23)
            sto(1)
            prof_out()
            A("s_endpgm")
            return
        for k in range(16):
            A(f"v_pk_add_f32 v[{ACCA+2*k}:{ACCA+2*k+1}], v[{ACCA+2*k}:{ACCA+2*k+1}], v[{OF+2*k}:{OF+2*k+1}]")
        fma_out()
        rst(A, cfg, 22)
        for g, (p, b) in enumerate(grp):
            x = ACCA + 4*(2*(2*p) + b); y = ACCA + 4*(2*(2*p + 1) + b); d = D + 4*g
            A(f"v_cvt_pk_bf16_f32 v{d}, v{x}, v{x+1}")
            A(f"v_cvt_pk_bf16_f32 v{d+1}, v{x+2}, v{x+3}")
            A(f"v_cvt_pk_bf16_f32 v{d+2}, v{y}, v{y+1}")
            A(f"v_cvt_pk_bf16_f32 v{d+3}, v{y+2}, v{y+3}")
        A("s_nop 1")
        for sw in ("32", "16"):
            for g in range(4):
                d = D + 4*g
                A(f"v_permlane{sw}_swap_b32 v{d}, v{d+2}")
                A(f"v_permlane{sw}_swap_b32 v{d+1}, v{d+3}")
        rst(A, cfg, 23)
        for g, (p, b) in enumerate(grp):
            d = D + 4*g
            A(f"buffer_store_dwordx4 v[{d}:{d+3}], v{5 + b}, s[24:27], 0 offen offset:{p*64} {cfg.get('ost', 'nt').replace('+', ' ')}")
        prof_out()
        A("s_endpgm")
    def scale_a():
        for k in range(16):
            if P16 and (k >> 1) & 1:
                A(f"v_pk_mul_f32 v[{ACCA+2*k}:{ACCA+2*k+1}], v[{ACCA+2*k}:{ACCA+2*k+1}], v[34:35] op_sel:[0,1] op_sel_hi:[1,1]")
            else:
                A(f"v_pk_mul_f32 v[{ACCA+2*k}:{ACCA+2*k+1}], v[{ACCA+2*k}:{ACCA+2*k+1}], v[{G}:{G+1}] op_sel_hi:[1,0]")
    def o_load(s, j):
        if j == 0:
            if s == 0: A(f"s_sub_u32 s28, s28, 32768" if cfg.get("expo") else f"s_add_u32 s28, s28, {4*MB - 32768}")
            if P3R:
                A("s_add_u32 s85, s28, s91")
                A("s_add_u32 s91, s91, 4096")
                A("s_and_b32 s91, s91, 0x7fff")
            elif s: A("s_add_u32 s28, s28, 4096")
        r = OFB(s) + 4*j
        A(f"buffer_load_dwordx4 v[{r}:{r+3}], v{OV}, s[32:35], {'s85' if P3R else 's28'} offen offset:{ooff(j)} sc1")
    def o_loads():
        for s in range(OD):
            for j in range(4): o_load(s, j)
    if P3V:
        A("""
        s_mov_b32 s20, s6
        s_mov_b32 s21, s7
        s_mov_b32 s29, 0
        """)
        inl = {}
        def bslab(b, s, j):
            a_, b_ = wo_ops(f"s_add_u32 m0, s30, {BSL(b)}")
            inl[(s, j)] = a_; inl[(s, j + 1)] = b_
        BS = cfg.get("bs", "0")
        bslab(0, 0, 0); bslab(1, 1, 0)
        if BS == "0":
            bslab(2, 4, 0); bslab(3, 4, 2); bslab(4, 5, 0); bslab(5, 5, 2)
        else:
            bslab(2, 2, 0); bslab(3, 3, 0); bslab(4, 4, 0); bslab(5, 5, 0)
        bslab(6, 6, 0); bslab(7, 6, 2)
        def a_flag2():
            if EF:
                j = A.uid("K3_F")
                A("s_cmp_lt_u32 s40, 4"); A(f"s_cbranch_scc1 {j}")
            A(f"s_waitcnt vmcnt({2 * min(FBPOS + 1, 2)})")
            set_flag(A, "s69")
            if EF:
                A("s_setprio 0")
                A.label(j)
        EP = int(cfg.get("ep", 0))
        def a_bar5():
            if EP:
                A("s_waitcnt vmcnt(7)")
                A("s_barrier")
                poll_check(A, 46, 45, 32, "s83", "PB", n=2)
                for b in (6, 7):
                    a_, b_ = wo_ops(f"s_add_u32 m0, s30, {BSL(b)}")
                    for l in a_ + b_: A(l)
                for s_ in range(EP):
                    for j in range(4): o_load(s_, j)
            else:
                A("s_barrier")
                a_poll()
        if EP:
            assert OD == EP + 2 and not P3R
            del inl[(6, 0)], inl[(6, 1)], inl[(6, 2)], inl[(6, 3)]
            inl[(4, 0)] = inl[(4, 0)] + [a_poll]
            for s_ in (6, 7):
                for j in range(4): inl[(s_, j)] = [(lambda s_=s_, j=j: o_load(EP + s_ - 6, j))]
        aft = {3: lambda: A("s_barrier"), 5: a_bar5}
        if FBPOS == 3: aft[3] = lambda: (a_flag2(), A("s_barrier"))
        else: aft[FBPOS] = a_flag2
        if BS == "1":
            assert FBPOS in (0, 1)
            if FBPOS == 1: aft[1] = lambda: (a_flag2(), A("s_barrier"))
            else: aft[1] = lambda: A("s_barrier")
        if AE:
            assert not EP and not P3R and BS == "0"
            inl.clear()
            n_ = 0
            for b in range(6):
                a_, b_ = wo_ops(f"s_add_u32 m0, s30, {BSL(b)}")
                inl[(AE + b // 4, b % 4)] = a_ + b_
            def a_flag3():
                j = A.uid("K3_F")
                if EF: A("s_cmp_lt_u32 s40, 4"); A(f"s_cbranch_scc1 {j}")
                nb = min(4 * (FBPOS + 1), 6)
                A(f"s_waitcnt vmcnt({2 * nb})")
                set_flag(A, "s69")
                if EF: A("s_setprio 0")
                A.label(j)
            AEP = int(cfg.get("aep", 6))
            assert AEP > AE + FBPOS or AEP == 7
            aft = {AE + FBPOS: a_flag3}
            aft[AEP] = a_poll if AEP != AE + FBPOS else (lambda: (a_flag3(), a_poll()))
            gemm(ACCA, aft, False, WSL, inl, 2, AE)
        else:
            gemm(ACCA, aft, False, WSL, inl, 2)
        vstamp(A, cfg, 12, PR)
        if P3R:
            RM = int(cfg.get("rmask", 6))
            A(f"""
            s_and_b32 s47, s17, {RM}         ; first slab
            s_lshl_b32 s90, s47, 14
            s_lshl_b32 s91, s47, 12
            v_add_u32 v38, 32768, v38
            v_add_u32 v39, 32768, v39
            """)
            if cfg.get("gfirst", "1") == "1":
                A("""
                s_and_b32 s47, s17, 1            ; group that loads first
                s_cmp_eq_u32 s47, s18
                s_cbranch_scc0 K3_NP
                s_setprio 1
                K3_NP:
                """)
        A(f"s_waitcnt vmcnt({4 * OD if EP else 0})")
        rst(A, cfg, 10)
        A("s_barrier")
        rst(A, cfg, 11)
        if not EP:
            poll_check(A, 46, 45, 32, "s83", "PB", n=2)
            rst(A, cfg, 12)
            o_loads()
            if AE:
                for b in (6, 7):
                    a_, b_ = wo_ops(f"s_add_u32 m0, s30, {BSL(b)}")
                    for l in a_ + b_: A(l)
            rst(A, cfg, 13)
        if cfg.get("bp"):
            j = A.uid("K3_BP")
            A(f"s_cmp_eq_u32 s18, {cfg.get('bp')[0]}"); A(f"s_cbranch_scc0 {j}"); A(f"s_setprio {cfg.get('bp')[1]}"); A.label(j)
        if FS: out_addr_fs()
        else: out_addr()
        scale_a()
        srd(A, 24, 8, 4194304)
        def zbar(g):
            def f():
                j = A.uid("K3_Z")
                A(f"s_cmp_eq_u32 s18, {g}"); A(f"s_cbranch_scc0 {j}"); A("s_barrier"); A.label(j)
            return f
        if P3R:
            gemm(ACCB, {}, True, None, {}, 14)
            vstamp(A, cfg, 13, PR)
            A("s_setprio 0")
            A("s_barrier")
            A.nop(12)
        elif AE:
            gemm(ACCB, {4: lambda: A("s_barrier")}, True, BSL, {}, 14)
            vstamp(A, cfg, 13, PR)
            A.nop(12)
        elif FS:
            aftB = {} if NZ else {int(cfg.get("zs", 4)): zbar(1)}
            if cfg.get("bpd"): aftB[int(cfg.get("bpd"))] = lambda: A("s_setprio 0")
            gemm(ACCB, aftB, True, BSL, {}, 14, 0, fs_tail1)
            vstamp(A, cfg, 13, PR)
            if not NZ: A("s_barrier")
            A.nop(12)
            fma_out()
            for q in range(8): A(f"ds_write_b128 v4, v[{ACCA+4*q}:{ACCA+4*q+3}] offset:{q*1024}")
            A("s_waitcnt lgkmcnt(0)")
            rst(A, cfg, 22)
            A("s_barrier")
            rst(A, cfg, 23)
            prof_out()
            A("s_endpgm")
        else:
            gemm(ACCB, {4: zbar(1)}, True, BSL, {}, 14)
            vstamp(A, cfg, 13, PR)
            zbar(0)()
            A.nop(12)
    else:
        gemm(ACCA, {FBPOS: a_flag, 3: a_mid, 5: a_poll}, False)
        A("s_barrier")
        refill(4)
        vstamp(A, cfg, 12, PR)
        A("s_waitcnt vmcnt(8)")
        poll_check(A, 46, 45, 32, "s83", "PB", n=2)
        o_loads()
        A("s_waitcnt vmcnt(31)")
        A("s_barrier")
        gemm(ACCB, {}, True)
        vstamp(A, cfg, 13, PR)
        out_addr()
        scale_a()
        A("s_barrier")
        srd(A, 24, 8, 4194304)
        A.nop(4)
    if not FS:
        for k in range(16):
            om = 46 if (P16 and (k >> 1) & 1) else OMG
            A(f"v_pk_fma_f32 v[{ACCA+2*k}:{ACCA+2*k+1}], v[{ACCB+2*k}:{ACCB+2*k+1}], v[{om}:{om+1}], v[{ACCA+2*k}:{ACCA+2*k+1}] op_sel_hi:[1,0,1]")
        for cb in range(2):
            for q in range(4):
                r = ACCA + 16*cb + 4*q
                if P16: A(f"ds_write_b128 v4, v[{r}:{r+3}] offset:{(q & 1)*16*K3_ROW + (2*cb + (q >> 1))*64}")
                else: A(f"ds_write_b128 v4, v[{r}:{r+3}] offset:{cb*128 + q*32}")
        A("s_waitcnt lgkmcnt(0)")
        rst(A, cfg, 22)
        A("s_barrier")
        rst(A, cfg, 23)
        R = 128
        for it in range(2):
            for g in range(2):
                for hf in range(2):
                    r = R + 16*it + 8*g + 4*hf
                    A(f"ds_read_b128 v[{r}:{r+3}], v7 offset:{it*64*K3_ROW + g*K3_RED + hf*16}")
        for it in range(2):
            A(f"s_waitcnt lgkmcnt({4 - 4*it})")
            r = R + 16*it
            for k in range(4):
                A(f"v_pk_add_f32 v[{r+2*k}:{r+2*k+1}], v[{r+2*k}:{r+2*k+1}], v[{r+8+2*k}:{r+8+2*k+1}]")
            for k in range(4):
                A(f"v_cvt_pk_bf16_f32 v{r+k}, v{r+2*k}, v{r+2*k+1}")
            A(f"buffer_store_dwordx4 v[{r}:{r+3}], v5, s[24:27], 0 offen {cfg.get('ost', 'nt').replace('+', ' ')}")
            if it == 0: A(f"v_add_u32 v5, {64*2048}, v5")
        if cfg.get("prof"):
            A("s_waitcnt vmcnt(0)")
            vstamp(A, cfg, 14, PR)
            rst(A, cfg, 24)
            A(f"""
            s_mov_b32 s92, s14
            s_mov_b32 s93, s15
            s_mov_b32 s94, {64*MB}
            s_mov_b32 s95, 0x00020000
            s_lshl_b32 s90, s2, 3
            s_add_u32 s90, s90, s40
            s_lshl_b32 s90, s90, {8 if cfg.get("prof") in ("2", "3", "4", "5", "6") else 7}
            s_add_u32 s90, s90, {WS_PROFV}
            v_lshlrev_b32 v1, 2, v0
            s_mov_b64 exec, {-1 if cfg.get("prof") in ("2", "3", "4", "5", "6") else "0xffffffff"}
            buffer_store_dword v{PR}, v1, s[92:95], s90 offen
            """)
        A("s_endpgm")
    A.label("K2_FB")
    vstamp(A, cfg, 15, PR)
    A("s_mov_b32 s60, 17")
    A("s_mov_b32 s61, 0")
    for i in range(16): A(f"v_mov_b32 v{O+i}, 0")
    for i in range(4): A(f"v_mov_b32 v{L+i}, 0")
    A(f"v_mov_b32 v44, 0xff800000")
    A.label("K2_FBL")
    A(f"""
    buffer_load_dwordx4 v[{K0}:{K0+3}], v3, s[32:35], s70 offen sc1
    buffer_load_dwordx4 v[{K1}:{K1+3}], v3, s[32:35], s70 offen offset:1024 sc1
    buffer_load_dwordx4 v[{V0}:{V0+3}], v3, s[32:35], s70 offen offset:2048 sc1
    buffer_load_dwordx4 v[{V1}:{V1+3}], v3, s[32:35], s70 offen offset:3072 sc1
    s_add_u32 s70, s70, 4096
    s_waitcnt vmcnt(0)
    v_mfma_f32_32x32x16_bf16 v[{SA}:{SA+15}], v[{K0}:{K0+3}], v[{Q}:{Q+3}], 0
    v_mfma_f32_32x32x16_bf16 v[{SA}:{SA+15}], v[{K1}:{K1+3}], v[{Q+4}:{Q+7}], v[{SA}:{SA+15}]
    """)
    A.nop(12)
    A(f"v_max3_f32 v4, v{SA}, v{SA+1}, v{SA+2}")
    for k in range(3, 15, 2):
        A(f"v_max3_f32 v4, v4, v{SA+k}, v{SA+k+1}")
    A(f"v_max3_f32 v4, v4, v{SA+15}, v44")
    A("v_mov_b32 v5, v4")
    A.nop(2)
    A("v_permlane32_swap_b32 v4, v5")
    A("s_nop 0")
    A("v_max_f32 v4, v4, v5")
    A("v_sub_f32 v5, v44, v4")
    A("v_exp_f32 v5, v5")
    A("v_mov_b32 v44, v4")
    for k in range(16):
        A(f"v_sub_f32 v{SA+k}, v{SA+k}, v4")
    for k in range(16):
        A(f"v_exp_f32 v{SA+k}, v{SA+k}")
    for k in range(16):
        A(f"v_mul_f32 v{O+k}, v{O+k}, v5")
    for k in range(4):
        A(f"v_mul_f32 v{L+k}, v{L+k}, v5")
    for k in range(8):
        A(f"v_cvt_pk_bf16_f32 v{P+k}, v{SA+2*k}, v{SA+2*k+1}")
    A("s_nop 1")
    A(f"""
    v_mfma_f32_32x32x16_bf16 v[{O}:{O+15}], v[{V0}:{V0+3}], v[{P}:{P+3}], v[{O}:{O+15}]
    v_mfma_f32_16x16x32_bf16 v[{L}:{L+3}], v[{SEL}:{SEL+3}], v[{P}:{P+3}], v[{L}:{L+3}]
    v_mfma_f32_32x32x16_bf16 v[{O}:{O+15}], v[{V1}:{V1+3}], v[{P+4}:{P+7}], v[{O}:{O+15}]
    v_mfma_f32_16x16x32_bf16 v[{L}:{L+3}], v[{SEL}:{SEL+3}], v[{P+4}:{P+7}], v[{L}:{L+3}]
    s_add_u32 s61, s61, 1
    s_cmp_lt_u32 s61, 64
    """)
    A.nop(12)
    A("s_cbranch_scc1 K2_FBL")
    A("s_branch K2_FIN")
    A.label("KF_END")
    A("s_endpgm")
    if cfg.get("lf") == "1":
        L_ = A.lines
        i0 = L_.index("K1_LOADER:"); i1 = L_.index("K1_LPOST:")
        blk = L_[i0:i1]
        del L_[i0:i1]
        b = L_.index("    s_cbranch_scc1 K1_LOADER")
        assert L_[b-1].strip() == "s_cmp_ge_u32 s40, 4"
        L_[b-1:b+1] = ["    s_cmp_lt_u32 s40, 4", "    s_cbranch_scc1 K1_CONS"] + blk + ["    s_branch K1_LPOST", "K1_CONS:"]
    WU = cfg.get("wu")
    if WU:
        L_ = A.lines
        def after(pred, nth=0, start=0):
            k = [i for i in range(start, len(L_)) if pred(L_[i].strip())]
            return k[nth] + 1
        def stub(pos, name, nxt, skip=False):
            L_[pos:pos] = ([f"    s_branch {name}S"] if skip else []) + [f"{name}:", f"    s_branch {nxt}"] + ([f"{name}S:"] if skip else [])
        kb10 = L_.index("KB_10:")
        stub(after(lambda l: l == "s_endpgm"), "WU_9", "WU_BACK")
        stub(after(lambda l: l == "s_branch K3_EF2"), "WU_8", "WU_9" if WU == "1" else "WU_BACK")
        stub(after(lambda l: l == "s_barrier", 1, kb10), "WU_7", "WU_BACK", skip=True)
        stub(kb10, "WU_6", "WU_7" if WU == "1" else "WU_BACK")
        stub(after(lambda l: l == "s_branch K1_E2L"), "WU_5", "WU_BACK")
        stub(after(lambda l: l.startswith("s_branch K1_TJ_")), "WU_4", "WU_5" if WU == "1" else "WU_BACK")
        p = after(lambda l: l == "s_barrier", 0, L_.index("K1_NOZ:")) - 1
        d = []
        if WU == "1":
            for w, t in ((0, "WU_4"), (1, "WU_6"), (2, "WU_8")): d += [f"    s_cmp_eq_u32 s40, {w}", f"    s_cbranch_scc1 {t}"]
        else:
            d += ["    s_cmp_eq_u32 s40, 9"] + [f"    s_cbranch_scc1 {t}" for t in ("WU_4", "WU_5", "WU_6", "WU_7", "WU_8", "WU_9")]
        L_[p:p] = d + ["WU_BACK:"]
    return K, KG_LDS
```

```python
from common import *

KNAME = NAME + "_kernel"
K1_XS = 32768
K1_NX = 3
K1_WB = K1_XS * K1_NX
K1_SLOT = 12288
K1_NSLOT = 5
K1_WPHI = K1_WB + K1_SLOT * K1_NSLOT
K1_TBUF = 4352
RING = 65536
QST = 65536
TBUF0 = 81920
RED0 = 98304
ZRED = 114688
KVT_L = 116736
Z_L = 120832
KG_LDS = 163840
def WSL(s): return 65536 + 16384 * s if s < 6 else 16384 * (s - 6)
WS_F1 = WS_FLAG
WS_FK = WS_FLAG + 4096
WS_FA = WS_FLAG + 16384
WS_FB = WS_FLAG + 20480
HB0 = 122880
HB1 = 139264
TBUF1 = 147456
BIAS = 80.0
K3_ROW = 272
K3_RED = 128 * K3_ROW
SPIN_MAX = 1 << 16
WS_PROFV = WS_PROF

def cvt_tile(A, dst, src):
    for i in range(8):
        A(f"v_cvt_pk_bf16_f32 v{dst+i}, v{src+2*i}, v{src+2*i+1}")

def bstamp(A, cfg, kind, reg=33):
    if cfg.get("prof") == "2":
        A("s_memtime s[96:97]")
        A(f"s_add_u32 m0, s100, {16*kind}")
        A("s_waitcnt lgkmcnt(0)")
        A(f"v_writelane_b32 v{reg}, s96, m0")
        if kind == 2: A("s_add_u32 s100, s100, 1")

def pbar(A, cfg, wait):
    bstamp(A, cfg, 0)
    if callable(wait): wait()
    elif wait: A(wait)
    bstamp(A, cfg, 1)
    A("s_barrier")
    bstamp(A, cfg, 2)

def vstamp(A, cfg, i, reg):
    if cfg.get("prof") == "1":
        A("s_memtime s[96:97]")
        A("s_memrealtime s[98:99]")
        A("s_waitcnt lgkmcnt(0)")
        A(f"v_writelane_b32 v{reg}, s96, {2*i}")
        A(f"v_writelane_b32 v{reg}, s98, {2*i+1}")

def rst(A, cfg, lane, reg=33):
    if cfg.get("prof") == "5":
        A("s_memrealtime s[96:97]")
        A("s_waitcnt lgkmcnt(0)")
        A(f"v_writelane_b32 v{reg}, s96, {lane}")

def est(A, cfg, lane, reg):
    if cfg.get("prof") == "6":
        A("s_memtime s[96:97]")
        A("s_waitcnt lgkmcnt(0)")
        A(f"v_writelane_b32 v{reg}, s96, {lane}")

NOSLEEP = set()
def poll_issue(A, vdst, vaddr, srd, soff, n=1):
    if n == 1: A(f"buffer_load_dword v{vdst}, v{vaddr}, s[{srd}:{srd+3}], {soff} offen sc1")
    else:      A(f"buffer_load_dwordx2 v[{vdst}:{vdst+1}], v{vaddr}, s[{srd}:{srd+3}], {soff} offen sc1")

def poll_check(A, vdst, vaddr, srd, soff, tag, expect=1, n=1):
    ok = A.uid(tag + "_OK"); sp = A.uid(tag + "_SP")
    def test():
        if n == 2: A(f"v_and_b32 v{vdst}, v{vdst}, v{vdst+1}")
        A(f"v_cmp_eq_u32 vcc, {expect}, v{vdst}")
        A("s_cmp_eq_u64 vcc, -1")
        A(f"s_cbranch_scc1 {ok}")
    test()
    A("s_mov_b32 s82, 0")
    A.label(sp)
    if tag not in NOSLEEP: A("s_sleep 2")
    poll_issue(A, vdst, vaddr, srd, soff, n)
    A("s_add_u32 s82, s82, 1")
    A("s_waitcnt vmcnt(0)")
    test()
    A(f"s_cmp_lt_u32 s82, {SPIN_MAX}")
    A(f"s_cbranch_scc1 {sp}")
    A.label(ok)

def set_flag(A, soff):
    A(f"""
    s_mov_b64 exec, 1
    v_mov_b32 v4, 1
    v_mov_b32 v5, 0
    buffer_store_dword v4, v5, s[32:35], {soff} offen sc1
    s_mov_b64 exec, -1
    """)

class VM:
    def __init__(s, A, init=()): s.A = A; s.q = list(init)
    def op(s, tag, text):
        def f(): s.A(text); s.q.append(tag)
        return f
    def now(s, tag, text): s.op(tag, text)()
    def wait(s, *tags):
        idx = max([k for k, t in enumerate(s.q) if t in tags], default=-1)
        if idx < 0: return
        s.A(f"s_waitcnt vmcnt({len(s.q) - 1 - idx})")
        s.q = s.q[idx+1:]

def setup_p2(A):
    A(f"""
    s_lshl_b32 s70, s42, 18
    s_add_u32 s70, s70, {WS_KVB}
    s_lshl_b32 s47, s41, 1
    s_add_u32 s47, s47, 3
    s_and_b32 s47, s47, 15           ; chunk 3 of the rotated order
    s_lshl_b32 s47, s47, 14
    s_lshl_b32 s38, s40, 11
    s_add_u32 s71, s47, s38          ; offset within the head of this wave's part of the next chunk
    s_add_u32 s72, s38, {3*16384}    ; LDS offset of the same
    s_lshl_b32 s47, s41, 3
    s_add_u32 s47, s47, s40
    s_lshl_b32 s47, s47, 5
    s_add_u32 s47, s47, s42
    s_lshl_b32 s73, s47, 11
    s_add_u32 s73, s73, {WS_OB}      ; oB store offset
    s_lshr_b32 s39, s40, 1
    s_and_b32 s39, s39, 1            ; th
    s_lshl_b32 s47, s41, 3
    s_lshl_b32 s38, s39, 2
    s_add_u32 s47, s47, s38          ; r*8 + th*4
    s_lshl_b32 s47, s47, 5
    s_add_u32 s47, s47, s42
    s_lshl_b32 s74, s47, 11
    s_add_u32 s74, s74, {WS_OA}      ; oA store offset (waves 1, 3)
    s_lshl_b32 s75, s42, 16
    s_lshl_b32 s47, s40, 10
    s_add_u32 s75, s75, s47
    s_add_u32 s75, s75, {WS_KVP}
    s_lshl_b32 s47, s41, 13
    s_add_u32 s79, s75, s47          ; kv partial store offset
    s_lshl_b32 s76, s42, 11
    s_add_u32 s76, s76, {WS_ZP}
    s_lshl_b32 s47, s41, 8
    s_add_u32 s89, s76, s47          ; z partial store offset
    s_lshl_b32 s77, s42, 8
    s_add_u32 s77, s77, {WS_FK}
    s_lshl_b32 s47, s41, 5
    s_add_u32 s68, s77, s47
    s_lshl_b32 s47, s40, 2
    s_add_u32 s68, s68, s47
    s_lshl_b32 s78, s42, 6
    s_add_u32 s78, s78, {WS_F1}      ; F1 line
    s_lshl_b32 s47, s41, 3
    s_add_u32 s67, s78, s47
    s_lshl_b32 s38, s39, 2
    s_add_u32 s67, s67, s38
    s_lshl_b32 s88, s41, 8
    s_lshl_b32 s47, s42, 3
    s_add_u32 s88, s88, s47
    s_add_u32 s88, s88, s38
    s_add_u32 s88, s88, {WS_FA}
    s_lshl_b32 s47, s41, 1
    s_lshr_b32 s38, s40, 2
    s_add_u32 s47, s47, s38
    s_lshl_b32 s69, s47, 9
    s_lshl_b32 s47, s42, 4
    s_add_u32 s69, s69, s47
    s_and_b32 s47, s40, 3
    s_lshl_b32 s47, s47, 2
    s_add_u32 s69, s69, s47
    s_add_u32 s69, s69, {WS_FB}
    """)

def setup_p3(A):
    A(f"""
    s_load_dwordx2 s[4:5], s[0:1], 24
    s_load_dwordx2 s[6:7], s[0:1], 48
    s_load_dwordx2 s[8:9], s[0:1], 64
    s_lshr_b32 s16, s45, 1
    s_lshl_b32 s16, s16, 2
    s_lshr_b32 s47, s46, 3
    s_add_u32 s16, s16, s47          ; T = 4*(e>>1) + (i>>3)
    s_and_b32 s17, s45, 1
    s_lshl_b32 s17, s17, 3
    s_and_b32 s47, s46, 7
    s_add_u32 s17, s17, s47          ; C = 8*(e&1) + (i&7)
    s_lshr_b32 s18, s40, 2           ; grp
    s_and_b32 s19, s40, 3            ; tq
    s_lshl_b32 s47, s16, 2
    s_add_u32 s47, s47, s19          ; tb3
    s_lshl_b32 s28, s47, 16
    s_lshl_b32 s38, s18, 15
    s_add_u32 s28, s28, s38
    s_add_u32 s28, s28, {WS_OA}      ; o stream offset
    s_lshl_b32 s31, s47, 7
    s_add_u32 s31, s31, {WS_G}       ; g offset
    s_lshr_b32 s47, s16, 1
    s_lshl_b32 s36, s47, 8
    s_add_u32 s36, s36, {WS_FA}
    s_lshl_b32 s83, s16, 9
    s_add_u32 s83, s83, {WS_FB}
    s_lshl_b32 s30, s18, 13
    s_lshl_b32 s38, s19, 11
    s_add_u32 s30, s30, s38
    s_mov_b32 s29, 0                 ; wo soffset
    s_waitcnt lgkmcnt(0)
    s_mov_b32 s20, s4
    s_mov_b32 s21, s5
    s_mov_b32 s22, {1024*2048}
    s_mov_b32 s23, 0x00020000
    """)

def gen_kg(A, cfg):
    K = KNAME
    NOSLEEP.clear(); NOSLEEP.update(cfg.get("nsl", "").split(":"))
    F1POS = int(cfg.get("f1pos", 2))
    ROT = int(cfg.get("rot", 12))
    RSH = int(cfg.get("rsh", 0))
    ROT2 = int(cfg.get("rot2", 0))
    PV = 255
    kernel_begin(A, K)
    A(f"""
    s_cmp_ge_u32 s2, 256
    s_cbranch_scc1 KF_END
    s_load_dwordx2 s[4:5], s[0:1], 0
    s_load_dwordx2 s[6:7], s[0:1], 8
    s_load_dwordx2 s[8:9], s[0:1], 40
    s_load_dwordx2 s[10:11], s[0:1], 16
    s_load_dwordx2 s[12:13], s[0:1], 56
    s_load_dwordx2 s[14:15], s[0:1], 80
    s_load_dwordx2 s[86:87], s[0:1], 72
    v_lshrrev_b32 v1, 6, v0
    v_and_b32 v0, 63, v0
    v_readfirstlane_b32 s40, v1
    s_and_b32 s45, s2, 7
    s_lshr_b32 s46, s2, 3
    """)
    if cfg.get("prof"): A(f"v_mov_b32 v{PV}, 0")
    vstamp(A, cfg, 0, PV)
    if cfg.get("prof") == "4":
        A("s_memrealtime s[96:97]")
        A("s_waitcnt lgkmcnt(0)")
        A(f"v_writelane_b32 v{PV}, s96, 40")
    ES = cfg.get("es") == "1"
    assert not ES or cfg.get("hmap", "f") == "f"
    if cfg.get("hmap", "f") == "f":
        A("""
        s_and_b32 s41, s45, 1
        s_lshl_b32 s41, s41, 2
        s_lshr_b32 s47, s46, 3
        s_add_u32 s41, s41, s47          ; r = 4(e&1) + (i>>3)
        s_lshr_b32 s42, s45, 1
        s_lshl_b32 s42, s42, 3
        s_and_b32 s47, s46, 7
        s_add_u32 s42, s42, s47          ; h = 8(e>>1) + (i&7)
        """)
        if not ES: A("s_waitcnt lgkmcnt(0)")
    elif cfg.get("hmap") == "h":
        A("""
        s_lshr_b32 s41, s45, 1
        s_lshl_b32 s41, s41, 1
        s_lshr_b32 s47, s46, 4
        s_add_u32 s41, s41, s47          ; r = 2(e>>1) + (i>>4)
        s_and_b32 s42, s45, 1
        s_lshl_b32 s42, s42, 4
        s_and_b32 s47, s46, 15
        s_add_u32 s42, s42, s47          ; h = 16(e&1) + (i&15)
        s_waitcnt lgkmcnt(0)
        """)
    else:
        A("""
        s_and_b32 s41, s46, 7            ; r
        s_lshl_b32 s42, s45, 2
        s_lshr_b32 s47, s46, 3
        s_add_u32 s42, s42, s47          ; h = 4e + (i>>3)
        s_waitcnt lgkmcnt(0)
        """)
    def rstamp(lane):
        if cfg.get("prof") == "4":
            A("s_memrealtime s[96:97]")
            A("s_waitcnt lgkmcnt(0)")
            A(f"v_writelane_b32 v{PV}, s96, {lane}")
    if not ES:
        rstamp(41)
        srd(A, 32, 14, WS_USED)
    A("""
    s_cmp_ge_u32 s40, 4
    s_cbranch_scc1 K1_LOADER
    """)
    if ES:
        A("s_waitcnt lgkmcnt(0)")
        rstamp(41)
        srd(A, 32, 14, WS_USED)
    PF3 = cfg.get("pf3")
    PF4 = cfg.get("pf4")
    L2D = int(cfg.get("l2d", 2)) if not (PF3 or PF4) else 0
    TL = int(cfg.get("tl", 4))
    TC = int(cfg.get("tc", 8))
    def touch_addr(w, dst, t0, t1, t2, shift, sa):
        OFFL = int(cfg.get("offl", 0))
        A(f"""
        s_and_b32 s47, s42, 1
        s_lshl_b32 s47, s47, 2
        s_and_b32 s38, s41, 3
        s_add_u32 s47, s47, s38          ; share of the pair's weight lines
        s_lshl_b32 s47, s47, 2           ; first row
        v_bfe_u32 v{t0}, v0, 2, 1
        v_lshlrev_b32 v{t0}, 5, v{t0}    ; 32 * block
        v_and_b32 v{t2}, 3, v0
        v_add3_u32 v{dst}, v{t2}, v{t0}, s47
        v_mul_u32_u24 v{dst}, 6144, v{dst}
        v_lshrrev_b32 v{t1}, 3, v0       ; segment
        v_lshl_add_u32 v{dst}, v{t1}, 11, v{dst}
        s_lshr_b32 s47, s42, 1
        s_lshl_b32 s47, s47, 7
        v_add_u32 v{dst}, s47, v{dst}
        s_and_b32 {sa}, s42, 7
        """)
        if OFFL:
            A(f"""
            s_lshl_b32 s47, {sa}, 2
            s_add_u32 s47, s47, s38
            s_lshl_b32 s47, s47, 2
            v_add_u32 v{t2}, s47, v{t2}      ; line of the last pair : 0..95
            v_lshrrev_b32 v{t1}, 5, v{t2}
            v_and_b32 v{t2}, 31, v{t2}
            v_add_u32 v{t2}, v{t2}, v{t0}
            v_mul_u32_u24 v{t2}, 6144, v{t2}
            v_lshl_add_u32 v{t2}, v{t1}, 11, v{t2}
            s_lshr_b32 s47, s42, 1
            s_or_b32 s47, s47, 3
            s_lshl_b32 s47, s47, 7
            v_add_u32 v{t2}, s47, v{t2}
            v_cmp_lt_u32 vcc, 23, v0
            s_nop 1
            v_cndmask_b32 v{dst}, v{dst}, v{t2}, vcc
            s_cmp_lt_u32 {sa}, 6
            s_cselect_b32 s63, 32, 0         ; live lanes of the weight waves
            """)
            if OFFL == 1:
                A(f"""
                s_lshl_b32 s47, {sa}, 4           ; first x row : 16 * head
                s_mul_i32 s38, {sa}, 80
                s_sub_u32 s38, s38, {6*80 - 96}
                s_cmp_lt_u32 {sa}, 6
                s_cselect_b32 s47, s47, s38
                s_cselect_b32 {sa}, 16, 40        ; live lanes of wave 2
                s_cselect_b32 s38, 0, 40         ; live lanes of wave 3
                s_cmp_eq_u32 {w}, 3
                s_cselect_b32 {sa}, s38, {sa}
                s_cselect_b32 s38, 40, 0
                s_add_u32 s47, s47, s38
                """)
            elif OFFL == 2:
                A(f"""
                s_mul_i32 s47, {sa}, 43
                s_cmp_lt_u32 {sa}, 5
                s_cselect_b32 s38, 43, 41
                s_cmp_lt_u32 {sa}, 6
                s_cselect_b32 {sa}, s38, 0
                s_cmp_eq_u32 {w}, 3
                s_cselect_b32 {sa}, 0, {sa}
                """)
            else:
                A(f"""
                s_lshl_b32 s47, {sa}, 5
                s_cmp_eq_u32 {w}, 3
                s_cselect_b32 {sa}, 0, 32
                """)
        else:
            A(f"""
            s_mov_b32 s63, 24
            s_lshl_b32 s47, {sa}, 5
            s_cmp_eq_u32 {w}, 3
            s_cselect_b32 {sa}, 0, 32
            """)
        A(f"""
        s_lshl_b32 s38, s41, 8
        s_add_u32 s47, s47, s38
        v_add_u32 v{t1}, s47, v0
        v_lshlrev_b32 v{t1}, 11, v{t1}   ; x row
        v_bfe_u32 v{t0}, v0, 1, 1
        s_and_b32 s38, s45, 1
        v_xor_b32 v{t0}, s38, v{t0}      ; 0 : ours
        v_and_b32 v{t2}, 3, v0
        s_lshr_b32 s38, s45, 1
        v_xor_b32 v{t2}, s38, v{t2}
        s_cmp_ge_u32 {w}, 2
        s_cselect_b64 vcc, -1, 0
        s_cselect_b32 s47, {sa}, s63      ; live lanes
        s_mov_b32 s38, {(TC - TL) * 32 * 6144}
        s_cselect_b32 s38, {(TC - TL) * 64}, s38
        v_cndmask_b32 v{dst}, v{dst}, v{t1}, vcc
        v_cndmask_b32 v{t0}, v{t0}, v{t2}, vcc
        v_cmp_eq_u32 vcc, 0, v{t0}
        """)
        if shift:
            A(f"""
            v_mov_b32 v{t1}, s38
            s_nop 0
            v_cndmask_b32 v{t1}, 0, v{t1}, vcc
            v_add_u32 v{dst}, v{dst}, v{t1}
            v_cmp_gt_u32 vcc, s47, v0
            v_mov_b32 v{t1}, 0x7ffffff0
            s_nop 0
            v_cndmask_b32 v{dst}, v{t1}, v{dst}, vcc
            """)
        else:
            A(f"""
            v_cmp_gt_u32 s[62:63], s47, v0
            v_mov_b32 v{t1}, 0x7ffffff0
            s_and_b64 vcc, vcc, s[62:63]
            v_cndmask_b32 v{dst+2}, v{t1}, v{dst}, vcc
            v_cndmask_b32 v{dst}, v{t1}, v{dst}, s[62:63]
            """)
        A(f"""
        s_cmp_eq_u32 {w}, 0
        s_cselect_b32 s92, s6, s8
        s_cselect_b32 s93, s7, s9
        s_cmp_ge_u32 {w}, 2
        s_cselect_b32 s92, s4, s92
        s_cselect_b32 s93, s5, s93
        s_mov_b32 s94, {1024*6144}
        s_cselect_b32 s94, {2048*2048}, s94
        s_mov_b32 s95, 0x00020000
        """)
    rng = lambda t: range(*map(int, t.split(":"))) if t else range(0)
    PFA_ = rng(cfg.get("pfa", f"0:{4+L2D}")); PFB_ = rng(cfg.get("pfb", ""))
    PFA, PFD = 252, 253
    def l2pf(step=None):
        if step is None:
            A("s_and_b32 s55, s59, 31")
        else:
            A(f"s_add_u32 s55, s63, {step}")
            A("s_and_b32 s55, s55, 31")
        A(f"s_mul_i32 s55, s55, {32*6144}")
        A(f"buffer_load_dword v{PFD}, v{PFA}, s[92:95], s55 offen")
        if step is None: A("s_add_u32 s59, s59, 1")
    PF2 = cfg.get("pf2")
    def touch():
        return [f"buffer_load_dword v{PFD}, v{PFA}, s[92:95], s55 offen", "s_add_u32 s55, s55, s59", "s_cmp_eq_u32 s55, s56",
                "s_cselect_b32 s55, 0, s55", "s_xor_b32 s59, s59, s57"]
    if PF2:
        XW = int(cfg.get("pfx", 1))
        HM = cfg.get("hmap", "f") == "h"
        RB = 1 if HM else 2
        HB = 4 if HM else 3
        R20 = 0 if cfg.get("r2") == "early0" else 4
        A(f"""
        s_and_b32 s47, s42, 1
        s_lshl_b32 s47, s47, {RB}
        s_and_b32 s38, s41, {(1 << RB) - 1}
        s_add_u32 s47, s47, s38          ; share of the weight lines
        s_lshr_b32 s38, s42, 1
        s_lshl_b32 s47, s47, {4 - RB}    ; first row of the share
        s_lshl_b32 s38, s38, 7
        v_and_b32 v4, {(1 << (4 - RB)) - 1}, v0
        v_add_u32 v4, s47, v4
        v_mul_u32_u24 v4, 6144, v4
        v_lshrrev_b32 v5, {4 - RB}, v0
        v_lshl_add_u32 v4, v5, 11, v4    ; + segment * 2048
        v_add_u32 v4, s38, v4
        s_lshl_b32 s47, s41, 8
        s_and_b32 s38, s42, {(1 << HB) - 1}
        s_lshl_b32 s38, s38, {8 - HB}
        s_add_u32 s47, s47, s38
        v_add_u32 v6, s47, v0
        v_lshlrev_b32 v6, 11, v6
        s_cmp_eq_u32 s40, 0
        s_cselect_b64 vcc, -1, 0
        s_cselect_b32 s38, {1 << (7 - HB)}, {3 << (4 - RB)}
        v_mov_b32 v5, 0x7ffffff0
        v_cndmask_b32 v4, v4, v6, vcc
        v_cmp_gt_u32 vcc, s38, v0
        s_cmp_eq_u32 s40, 2
        s_cselect_b32 s92, s6, s8
        s_cselect_b32 s93, s7, s9
        s_cmp_ge_u32 s40, 2
        s_cselect_b32 s62, {1024*6144}, 0
        v_cndmask_b32 v{PFA}, v5, v4, vcc
        s_lshr_b32 s63, s45, {RSH}
        s_mul_i32 s63, s63, {ROT}
        s_and_b32 s47, s45, 1
        s_mul_i32 s47, s47, {ROT2}
        s_add_u32 s63, s63, s47
        s_add_u32 s63, s63, {R20}        ; first block of this round
        s_and_b32 s55, s63, 31
        s_mul_i32 s55, s55, {32*6144}
        s_mov_b32 s59, {32*6144}
        s_mov_b32 s57, 0
        s_mov_b32 s56, {1024*6144}
        s_cmp_lg_u32 s40, 0
        s_cbranch_scc1 K1_PFW
        s_mov_b32 s92, s4
        s_mov_b32 s93, s5
        s_mov_b32 s62, {2048*2048 if XW else 0}
        s_lshr_b32 s55, s63, 1
        s_and_b32 s55, s55, 15
        s_lshl_b32 s55, s55, 7
        s_mov_b32 s59, {1 << (18 - HB)}
        s_mov_b32 s57, {(1 << (18 - HB)) ^ ((128 - (1 << (18 - HB))) & 0xffffffff)}
        s_mov_b32 s56, 2048
        K1_PFW:
        s_mov_b32 s94, s62
        s_mov_b32 s95, 0x00020000
        """)
        if cfg.get("r2") == "early0":
            for t in range(int(cfg.get("e0n", 4))):
                for l in touch(): A(l)
        if cfg.get("r2") == "early":
            for t in range(L2D):
                for l in touch(): A(l)
    elif L2D:
        A(f"""
        s_and_b32 s47, s42, 1
        s_lshl_b32 s47, s47, 2
        s_and_b32 s38, s41, 3
        s_add_u32 s47, s47, s38
        s_lshr_b32 s38, s42, 1
        
        s_lshl_b32 s47, s47, 2           ; first of 4 rows
        s_lshl_b32 s38, s38, 7
        v_and_b32 v4, 3, v0
        v_add_u32 v4, s47, v4
        v_mul_u32_u24 v4, 6144, v4
        v_lshrrev_b32 v5, 2, v0
        v_lshl_add_u32 v4, v5, 11, v4    ; + segment * 2048
        v_add_u32 v4, s38, v4
        v_mov_b32 v5, 0x7ffffff0
        v_cmp_gt_u32 vcc, 12, v0
        s_cmp_eq_u32 s40, 2
        s_cselect_b32 s92, s6, s8
        s_cselect_b32 s93, s7, s9
        s_cmp_ge_u32 s40, 2
        s_cselect_b32 s62, {1024*6144}, 0
        s_mov_b32 s94, s62
        s_mov_b32 s95, 0x00020000
        v_cndmask_b32 v{PFA}, v5, v4, vcc
        s_lshr_b32 s63, s45, {RSH}
        s_mul_i32 s63, s63, {ROT}
        s_add_u32 s59, s63, {4 + L2D}
        """)
        for t in PFA_: l2pf(t)
    if PF4:
        assert ROT == 0 and ROT2 == 0
        touch_addr("s40", PFA, 4, 5, 6, False, "s62")
        A(f"""
        s_cmp_ge_u32 s40, 2
        s_mov_b32 s59, {64*6144}
        s_cselect_b32 s59, 128, s59
        s_mov_b32 s55, 0
        """)
        for t in range(int(cfg.get("r0", 0))):
            A(f"buffer_load_dword v{PFD}, v{PFA}, s[92:95], s55 offen")
            A("s_add_u32 s55, s55, s59")
        A(f"""
        s_cmp_ge_u32 s40, 2
        s_mov_b32 s55, {TL*32*6144}
        s_cselect_b32 s55, {TL*64}, s55
        """)
    rstamp(42)
    setup_p2(A)
    rstamp(43)
    A(f"""
    s_cmp_lg_u32 s40, 0
    s_cbranch_scc1 K1_NOZ
    v_lshlrev_b32 v4, 2, v0
    v_lshrrev_b32 v6, 2, v0
    v_lshlrev_b32 v6, 9, v6
    v_and_b32 v7, 3, v0
    v_lshl_add_u32 v6, v7, 2, v6
    v_mov_b32 v5, 0
    s_mov_b64 exec, 3
    buffer_store_dword v5, v4, s[32:35], s67 offen sc1
    buffer_store_dword v5, v4, s[32:35], s88 offen sc1
    s_mov_b64 exec, 0xff
    buffer_store_dword v5, v4, s[32:35], s68 offen sc1
    buffer_store_dword v5, v6, s[32:35], s69 offen sc1
    s_mov_b32 s36, s86
    s_mov_b32 s37, s87
    s_mov_b32 s38, 256
    s_mov_b32 s39, 0x00020000
    """)
    LATE = cfg.get("late")
    if not LATE:
        A("""
        s_waitcnt vmcnt(0)
        s_mov_b64 exec, 1
        v_mov_b32 v6, 1
        buffer_atomic_add v6, v5, s[36:39], 0 offen
        s_mov_b64 exec, -1
        """)
    else:
        A("s_mov_b64 exec, -1")
    A("""
    K1_NOZ:
    """)
    rstamp(44)
    setup_p3(A)
    rstamp(45)
    TW = cfg.get("tw")
    if TW:
        assert PF4
        A(f"""
        s_cmp_eq_u32 s40, 1
        s_cbranch_scc0 K1_TW2
        v_lshlrev_b32 v4, 12, v0
        s_lshl_b32 s47, s41, 15
        s_add_u32 s47, s47, s70
        s_mov_b64 exec, 0xff
        buffer_load_dword v{PFD}, v4, s[32:35], s47 offen
        s_mov_b64 exec, 1
        buffer_load_dword v{PFD}, v4, s[32:35], s79 offen
        buffer_load_dword v{PFD}, v4, s[32:35], s89 offen
        s_mov_b64 exec, -1
        K1_TW2:
        s_cmp_eq_u32 s40, 2
        s_cbranch_scc0 K1_TW3
        v_lshlrev_b32 v4, 16, v0
        s_sub_u32 s47, s73, {2*65536}
        s_mov_b64 exec, 0xff
        buffer_load_dword v{PFD}, v4, s[32:35], s47 offen
        s_sub_u32 s47, s47, {WS_OB - WS_OA}
        buffer_load_dword v{PFD}, v4, s[32:35], s47 offen
        s_mov_b64 exec, -1
        K1_TW3:
        """)
        if TW == "1":
            A(f"""
            s_cmp_eq_u32 s40, 3
            s_cbranch_scc0 K1_TW4
            s_mov_b32 s96, s8
            s_mov_b32 s97, s9
            s_mov_b32 s98, 4194304
            s_mov_b32 s99, 0x00020000
            v_lshlrev_b32 v4, 12, v0
            s_lshl_b32 s47, s16, 18
            s_lshl_b32 s38, s17, 7
            s_add_u32 s47, s47, s38
            buffer_load_dword v{PFD}, v4, s[96:99], s47 offen
            K1_TW4:
            """)
    XA, WA = 4, 20
    XB, WB = 32, 48
    ACC = 60
    acc = lambda sg, tt: ACC + (sg * 4 + tt) * 16
    A(f"""
    s_lshr_b32 s50, s40, 1           ; th
    s_and_b32 s51, s40, 1            ; type
    v_and_b32 v4, 31, v0
    v_lshrrev_b32 v5, 5, v0          ; hh
    v_bfe_u32 v6, v0, 2, 2           ; f = (l>>2)&3
    v_bfe_u32 v7, v0, 1, 3           ; (row>>1)&7
    v_xor_b32 v7, v5, v7
    v_lshlrev_b32 v7, 4, v7
    v_lshl_add_u32 v1, v4, 7, v7
    s_lshl_b32 s47, s50, 14
    v_add_u32 v1, s47, v1            ; vxa0
    v_xor_b32 v2, 32, v1             ; vxa1
    v_lshl_add_u32 v7, v5, 3, v6
    v_lshlrev_b32 v7, 6, v7          ; *64
    v_bfe_u32 v8, v0, 4, 1           ; g&1
    v_lshl_add_u32 v7, v8, 5, v7
    v_and_b32 v9, 3, v0
    v_lshl_add_u32 v7, v9, 3, v7
    s_lshl_b32 s47, s51, 11
    s_add_u32 s47, s47, {K1_WB}
    v_add_u32 v3, s47, v7            ; vwa
    """)
    M16 = cfg.get("m16")
    if M16:
        assert cfg.get("e8") and cfg.get("spread")
        A(f"""
        v_and_b32 v4, 15, v0             ; i
        v_lshrrev_b32 v5, 4, v0          ; q4
        v_lshrrev_b32 v6, 1, v4
        v_xor_b32 v6, v5, v6
        v_lshlrev_b32 v6, 4, v6
        v_lshl_add_u32 v1, v4, 7, v6
        s_lshl_b32 s38, s50, 14
        v_add_u32 v1, s38, v1
        v_lshrrev_b32 v6, 2, v4
        v_lshl_add_u32 v6, v5, 3, v6     ; k row 8 q4 + (i >> 2)
        v_lshlrev_b32 v6, 6, v6
        v_and_b32 v7, 1, v5
        v_lshl_add_u32 v6, v7, 5, v6
        v_and_b32 v7, 3, v0
        v_lshl_add_u32 v6, v7, 3, v6
        v_add_u32 v3, s47, v6            ; W columns 0..15
        v_xor_b32 v2, 32, v3             ; W columns 16..31
        """)
    A(f"""
    s_mov_b32 s48, {1 if cfg.get("spread") else 0}
    s_mov_b32 s49, {K1_SLOT}
    s_mov_b32 s65, 0
    s_mov_b32 s52, {K1_SLOT}
    s_mov_b32 s53, {-(K1_NSLOT-1)*K1_SLOT & 0xffffffff}
    s_mov_b32 s54, 32
    s_mov_b32 s64, 0                 ; x slot
    s_mov_b32 s66, {-(K1_NX-1)*K1_XS & 0xffffffff}
    """)
    for i in range(192):
        A(f"v_mov_b32 v{ACC+i}, 0")
    if PF2 and cfg.get("r2") != "early":
        for t in range(L2D + (4 - int(cfg.get("e0n", 4)) if cfg.get("r2") == "early0" else 0)):
            for l in touch(): A(l)
    rstamp(46)
    A("s_barrier")
    vstamp(A, cfg, 1, PV)
    if cfg.get("prof") == "4":
        A("s_memrealtime s[96:97]")
        A("s_waitcnt lgkmcnt(0)")
        A(f"v_writelane_b32 v{PV}, s96, 0")
    if cfg.get("prof") == "3":
        A("s_memtime s[96:97]")
        A("s_mov_b32 s100, 0")
        A("s_waitcnt lgkmcnt(0)")
        A("s_mov_b32 s101, s96")
    if L2D:
        for t in PFB_: l2pf(t)
    def reads(X, W, s):
        r = []
        xa = 1 if s == 0 else 2
        for tt in range(4):
            r.append(f"ds_read_b128 v[{X+4*tt}:{X+4*tt+3}], v{xa} offset:{tt*4096}")
        for sg in range(3):
            for sec in range(2):
                r.append(f"ds_read_b64_tr_b16 v[{W+4*sg+2*sec}:{W+4*sg+2*sec+1}], v3 offset:{sg*4096 + s*1024 + sec*256}")
        return [r[4], r[5], r[0], r[1], r[2], r[3], r[6], r[7], r[8], r[9]]
    def mfmas(X, W):
        m = []
        for sg in range(3):
            for tt in range(4):
                a = acc(sg, tt)
                w = f"v[{W+4*sg}:{W+4*sg+3}]"; x = f"v[{X+4*tt}:{X+4*tt+3}]"
                if cfg.get("exp16"):
                    m.append(f"v_mfma_f32_16x16x32_bf16 v[{a}:{a+3}], {w}, {x}, v[{a}:{a+3}]\nv_mfma_f32_16x16x32_bf16 v[{a+8}:{a+11}], {x}, {w}, v[{a+8}:{a+11}]")
                elif sg < 2: m.append(f"v_mfma_f32_32x32x16_bf16 v[{a}:{a+15}], {w}, {x}, v[{a}:{a+15}]")
                else:      m.append(f"v_mfma_f32_32x32x16_bf16 v[{a}:{a+15}], {x}, {w}, v[{a}:{a+15}]")
        return m
    X16, W16 = 4, 36
    def acc16(g, c):
        sg, ch = c >> 1, c & 1
        return acc(sg, g >> 1) + ((g & 1) * 8 + ch * 4 if sg < 2 else ch * 8 + (g & 1) * 4)
    def mf16(g, c):
        a = acc16(g, c); w = f"v[{W16+4*c}:{W16+4*c+3}]"; x = f"v[{X16+4*g}:{X16+4*g+3}]"
        return f"v_mfma_f32_16x16x32_bf16 v[{a}:{a+3}], " + (f"{w}, {x}" if c < 4 else f"{x}, {w}") + f", v[{a}:{a+3}]"
    rx16 = lambda g: f"ds_read_b128 v[{X16+4*g}:{X16+4*g+3}], v1 offset:{g*2048}"
    rw16 = lambda c, sec: f"ds_read_b64_tr_b16 v[{W16+4*c+2*sec}:{W16+4*c+2*sec+1}], v{3 - (c & 1)} offset:{(c >> 1)*4096 + sec*256}"
    H1R = {23: [rw16(5, 0), rw16(5, 1)]}
    for c in range(0, 5):
        H1R[4*c+3] = [rw16(c, 0)]; H1R[4*c+4] = [rw16(c, 1)]
    XAP = [int(x) for x in cfg.get("m16a", "0,1,2,4").split(",")]
    for g, k in enumerate(XAP): H1R[k] = [rx16(g)] + H1R.get(k, [])
    H1L = [l for k in range(24) for l in H1R.get(k, [])]
    H1N = lambda l: len(H1L) - 1 - H1L.index(l)
    if M16:
        for l in H1L: A(l)
    else:
        for l in reads(XA, WA, 0): A(l)
    if LATE:
        A("""
        s_cmp_lg_u32 s40, 0
        s_cbranch_scc1 K1_NOARR
        s_mov_b32 s96, s86
        s_mov_b32 s97, s87
        s_mov_b32 s98, 256
        s_mov_b32 s99, 0x00020000
        v_mov_b32 v32, 0
        v_mov_b32 v33, 1
        s_waitcnt vmcnt(0)
        s_mov_b64 exec, 1
        buffer_atomic_add v33, v32, s[96:99], 0 offen
        s_mov_b64 exec, -1
        K1_NOARR:
        """)
    if PF4:
        for t in range((TC - TL) // 2):
            A(f"buffer_load_dword v{PFD}, v{PFA+2}, s[92:95], s55 offen")
            A("s_add_u32 s55, s55, s59")
    A.label("K1_CLOOP")
    if M16:
        XP = int(cfg.get("m16x", 0))
        XS_ = int(cfg.get("m16s", 1))
        XBP = [XP + XS_ * g for g in range(4)]
        fr0 = [k for k in range(24) if k not in XBP and k % 4 != 3]
        ex0 = {[k for k in fr0 if k > XBP[-1]][0]: ["v_xad_u32 v1, v1, 64, s65"]}
        f2 = [k for k in fr0 if k not in ex0]
        ex0[f2[1]] = ["v_add_u32 v3, s49, v3"]; ex0[f2[3]] = ["v_add_u32 v2, s49, v2"]
        sal = ["s_sub_u32 s54, s54, 1", "s_and_b32 s63, s54, 1", "s_add_u32 s64, s64, s63",
               f"s_cmp_eq_u32 s64, {K1_NX}", f"s_cselect_b32 s65, s66, {K1_XS}", "s_cselect_b32 s64, 0, s64",
               "s_mul_i32 s65, s65, s63", "s_add_u32 s48, s48, 1", f"s_cmp_eq_u32 s48, {K1_NSLOT}",
               "s_cselect_b32 s49, s53, s52", "s_cselect_b32 s48, 0, s48", "s_cmp_lg_u32 s54, 0"]
        free = [k for k in range(1, 23) if len(H1R.get(k, [])) == 0]
        ex1 = {k: [] for k in free}
        for n, l in enumerate(sal): ex1[free[n * len(free) // len(sal)]].append(l)
        for k in range(24):
            nb = len([x for x in XBP if x < k])
            if k % 4 == 0:
                c = k // 4
                n = H1N(rw16(c, 1))
                if c == 0: n = min(n, H1N(rx16(0)))
                A(f"s_waitcnt lgkmcnt({min(15, n + nb)})")
                done = n
            if k in (1, 2, 3) and H1N(rx16(k)) < done:
                done = H1N(rx16(k)); A(f"s_waitcnt lgkmcnt({min(15, done + nb)})")
            A(mf16(k % 4, k // 4))
            if k in XBP: A(rx16(4 + XBP.index(k)))
            for l in ex0.get(k, []): A(l)
        for k in range(24):
            if k < 4 and (k == 0 or XS_ > 1): A(f"s_waitcnt lgkmcnt({(3 - k if XS_ > 1 else 0) + len([l for j in range(k) for l in H1R.get(j, [])])})")
            A(mf16(4 + k % 4, k // 4))
            for l in H1R.get(k, []) + ex1.get(k, []): A(l)
    else:
        A("s_waitcnt lgkmcnt(0)")
    m = mfmas(XA, WA); r = reads(XB, WB, 1)
    extra0 = {4: ["s_and_b32 s63, s54, 1", "s_add_u32 s64, s64, s63", f"s_cmp_eq_u32 s64, {K1_NX}",
                  f"s_cselect_b32 s65, s66, {K1_XS}", "s_cselect_b32 s64, 0, s64", "s_mul_i32 s65, s65, s63"],
              6: ["s_add_u32 s48, s48, 1", f"s_cmp_eq_u32 s48, {K1_NSLOT}", "s_cselect_b32 s49, s53, s52", "s_cselect_b32 s48, 0, s48"],
              7: ["v_xor_b32 v1, 64, v1", "v_xor_b32 v2, 64, v2"], 8: ["v_add_u32 v1, s65, v1", "v_add_u32 v2, s65, v2"], 9: ["v_add_u32 v3, s49, v3"]}
    SPREAD = cfg.get("spread")
    extra1 = {}
    if SPREAD:
        extra0 = {6: ["v_xad_u32 v1, v1, 64, s65"], 8: ["v_xad_u32 v2, v2, 64, s65"], 10: ["v_add_u32 v3, s49, v3"]}
        extra1 = {5: ["s_sub_u32 s54, s54, 1", "s_and_b32 s63, s54, 1", "s_add_u32 s64, s64, s63"],
                  6: [f"s_cmp_eq_u32 s64, {K1_NX}", f"s_cselect_b32 s65, s66, {K1_XS}", "s_cselect_b32 s64, 0, s64"],
                  7: ["s_mul_i32 s65, s65, s63", "s_add_u32 s48, s48, 1", f"s_cmp_eq_u32 s48, {K1_NSLOT}"],
                  8: ["s_cselect_b32 s49, s53, s52", "s_cselect_b32 s48, 0, s48"],
                  11: ["s_cmp_lg_u32 s54, 0"]}
        if PF2:
            t_ = touch()
            th_, tk_ = map(int, cfg.get("tpos", "1:9").split(":"))
            ex_ = extra1 if th_ else extra0
            after_dec = th_ == 1 and tk_ >= 5
            cmp_ = f"s_cmp_ge_u32 s54, {4 + L2D}" if after_dec else f"s_cmp_gt_u32 s54, {4 + L2D}"
            def addx(d, k, ls, front=False):
                d[k] = (ls + d.get(k, [])) if front else (d.get(k, []) + ls)
            if th_ == 1 and tk_ == 9:
                extra1[9] = [cmp_, "s_cselect_b32 s94, s62, 0", t_[0]]
                extra1[10] = t_[1:4]
                extra1[11] = [t_[4], "s_cmp_lg_u32 s54, 0"]
            else:
                assert not (th_ == 1 and 3 < tk_ < 9)
                addx(ex_, tk_, [cmp_, "s_cselect_b32 s94, s62, 0", t_[0]])
                addx(ex_, tk_ + 1, [t_[1], t_[2], t_[3], t_[4]])
        elif L2D:
            extra1[9] = [f"s_cmp_ge_u32 s54, {4 + L2D}", "s_cselect_b32 s94, s62, 0", "s_and_b32 s55, s59, 31"]
            extra1[10] = [f"s_mul_i32 s55, s55, {32*6144}", "s_add_u32 s59, s59, 1", f"buffer_load_dword v{PFD}, v{PFA}, s[92:95], s55 offen"]
    for k in range(0 if M16 else 12):
        A(m[k])
        if k < 5:
            A(r[2*k]); A(r[2*k+1])
        for l in extra0.get(k, []): A(l)
        if L2D and k == 10 and not SPREAD:
            assert not PF2
            A(f"s_cmp_gt_u32 s54, {4 + L2D}")
            A("s_cselect_b32 s94, s62, 0")
            l2pf()
    if not M16: A("s_waitcnt lgkmcnt(0)")
    m = mfmas(XB, WB); r = reads(XA, WA, 0)
    for k in range(0 if M16 else 12):
        A(m[k])
        if k < 5:
            A(r[2*k]); A(r[2*k+1])
        for l in extra1.get(k, []): A(l)
        if k == 8 and not SPREAD:
            A("s_sub_u32 s54, s54, 1"); A("s_cmp_lg_u32 s54, 0")
    if cfg.get("prof") == "3":
        A("s_memtime s[96:97]")
        A("s_barrier")
        A("s_memtime s[98:99]")
        A("s_waitcnt lgkmcnt(0)")
        A("s_sub_u32 s98, s98, s96")
        A("s_add_u32 s100, s100, s98")
        A("s_cmp_lg_u32 s54, 0")
    elif cfg.get("prof") == "4":
        A("s_barrier")
        A("s_memrealtime s[96:97]")
        A("s_sub_u32 m0, 32, s54")
        A("s_waitcnt lgkmcnt(0)")
        A(f"v_writelane_b32 v{PV}, s96, m0")
        A("s_cmp_lg_u32 s54, 0")
    else:
        A("s_barrier")
    A("s_cbranch_scc1 K1_CLOOP")
    A("s_waitcnt lgkmcnt(0)")
    if cfg.get("prof") == "3":
        A("s_memtime s[96:97]")
        A("s_waitcnt lgkmcnt(0)")
        A("s_sub_u32 s96, s96, s101")
        A(f"v_writelane_b32 v{PV}, s100, 0")
        A(f"v_writelane_b32 v{PV}, s96, 2")
    vstamp(A, cfg, 2, PV)
    est(A, cfg, 0, PV)
    E8 = cfg.get("e8")
    T1 = 4
    VB = acc(1, 0)
    QL = E8 and cfg.get("qlate", "1") == "1"
    V = acc(0, 2) if QL else acc(1, 0)
    Q = V + 16 if QL else acc(1, 0) + 32
    NT8 = 2 if E8 else 4
    if M16:
        A("""
        v_and_b32 v42, 15, v0            ; i
        v_lshrrev_b32 v43, 4, v0
        v_lshlrev_b32 v1, 4, v42
        v_lshl_add_u32 v40, v43, 9, v1   ; Q, V images : row * 512 + i * 16
        v_and_b32 v41, 1, v43
        v_lshl_add_u32 v41, v41, 10, v1
        v_lshrrev_b32 v43, 1, v43
        v_lshl_add_u32 v41, v43, 9, v41  ; swapped order : (row & 1) * 1024 + (row >> 1) * 512 + i * 16
        v_lshrrev_b32 v42, 3, v42
        v_lshl_add_u32 v42, v42, 7, v40  ; K image : tokens 8..15 and 16..23 change places
        """)
    A(f"""
    v_lshlrev_b32 v1, 4, v0          ; lane*16
    s_cmp_lg_u32 s51, 0
    s_cbranch_scc1 K1_E1T1
    s_mov_b32 s56, {fhex(32**-0.5 * LOG2E)}
    s_mov_b32 s57, s56
    s_lshl_b32 s47, s50, 13
    s_add_u32 s47, s47, {QST}
    v_add_u32 v44, s47, v{40 if M16 else 1}           ; Q staging address
    """)
    O2 = 256 if M16 else 1024
    def swap_tile(d):
        if M16:
            for k in range(4): A(f"v_permlane16_swap_b32 v{d+k}, v{d+4+k}")
    def handoff(srcs, more=None):
        for k, src in enumerate(srcs):
            cvt_tile(A, T1 + 8*k, src)
            A(f"ds_write_b128 v45, v[{T1+8*k}:{T1+8*k+3}] offset:{k*2048}")
            A(f"ds_write_b128 v45, v[{T1+8*k+4}:{T1+8*k+7}] offset:{k*2048+O2}")
        if more: more()
        A("s_waitcnt lgkmcnt(0)")
        A("s_barrier")
        est(A, cfg, 1, PV)
    if E8:
        A(f"""
        s_lshl_b32 s47, s50, 13
        s_add_u32 s47, s47, {HB0}
        v_add_u32 v45, s47, v{41 if M16 else 1}
        """)
        A.nop(2)
        handoff([acc(0, 2), acc(0, 3), acc(2, 2), acc(2, 3)])
    else:
        A.nop(6)
    def bq_stage(tts, sc, adr, inplace):
        for tt in tts:
            for k in range(8):
                a = acc(1, tt) + 2*k
                A(f"v_pk_mul_f32 v[{a}:{a+1}], v[{a}:{a+1}], s[{sc}:{sc+1}]")
            d = acc(1, tt) if inplace else T1 + 8*tt
            cvt_tile(A, d, acc(1, tt))
            A(f"ds_write_b128 v{adr}, v[{d}:{d+3}] offset:{tt*2048}")
            A(f"ds_write_b128 v{adr}, v[{d+4}:{d+7}] offset:{tt*2048+O2}")
    if QL:
        A("""
        v_mov_b32 v26, v44
        s_mov_b32 s64, s56
        s_mov_b32 s65, s56
        """)
    else:
        bq_stage(range(4), 56, 44, False)
    for tt in range(NT8):
        cvt_tile(A, V + 8*tt, acc(2, tt))
        swap_tile(V + 8*tt)
    A("s_branch K1_E2J")
    A.label("K1_E1T1")
    A(f"""
    s_lshl_b32 s58, s41, 1
    s_add_u32 s58, s58, s50
    s_lshl_b32 s58, s58, 14
    s_add_u32 s58, s58, s70
    s_lshl_b32 s47, s50, 14
    v_add_u32 v44, s47, v{42 if M16 else 1}
    v_add_u32 v43, s47, v{40 if M16 else 1}
    """)
    if E8:
        A(f"""
        s_lshl_b32 s47, s50, 12
        s_add_u32 s47, s47, {HB1}
        v_add_u32 v45, s47, v{41 if M16 else 1}
        """)
        KA, K2 = (42, 128) if M16 else (1, 1024)
        KE = int(cfg.get("ke", 0))
        def ktile(tt):
            cvt_tile(A, T1 + 8*tt, acc(1, tt))
            A(f"s_add_u32 s47, s58, {4096*tt}")
            A(f"buffer_store_dwordx4 v[{T1+8*tt}:{T1+8*tt+3}], v{KA}, s[32:35], s47 offen sc1")
            A(f"buffer_store_dwordx4 v[{T1+8*tt+4}:{T1+8*tt+7}], v{KA}, s[32:35], s47 offen offset:{K2} sc1")
        handoff([acc(0, 2), acc(0, 3)], (lambda: [ktile(tt) for tt in (2, 3)[:KE]]) if KE else None)
    else:
        A.nop(10)
        KE = 0
    KA, K2 = (42, 128) if M16 else (1, 1024)
    VA = 40 if M16 else 1
    if KE:
        for tt in range(4):
            if tt not in (2, 3)[:KE]: ktile(tt)
        A("s_add_u32 s58, s58, 2048")
    else:
      for tt in range(4):
        cvt_tile(A, T1 + 8*tt, acc(1, tt))
        A(f"buffer_store_dwordx4 v[{T1+8*tt}:{T1+8*tt+3}], v{KA}, s[32:35], s58 offen sc1")
        A(f"buffer_store_dwordx4 v[{T1+8*tt+4}:{T1+8*tt+7}], v{KA}, s[32:35], s58 offen offset:{K2} sc1")
        A("s_add_u32 s58, s58, 4096")
      A(f"s_sub_u32 s58, s58, {4*4096 - 2048}")
    for tt in range(4):
        cvt_tile(A, VB + 8*tt, acc(2, tt))
        A(f"buffer_store_dwordx4 v[{VB+8*tt}:{VB+8*tt+3}], v{VA}, s[32:35], s58 offen sc1")
        A(f"buffer_store_dwordx4 v[{VB+8*tt+4}:{VB+8*tt+7}], v{VA}, s[32:35], s58 offen offset:{O2} sc1")
        A("s_add_u32 s58, s58, 4096")
    for tt in range(4):
        A(f"ds_write_b128 v44, v[{T1+8*tt}:{T1+8*tt+3}] offset:{tt*4096}")
        A(f"ds_write_b128 v44, v[{T1+8*tt+4}:{T1+8*tt+7}] offset:{tt*4096+K2}")
        A(f"ds_write_b128 v43, v[{VB+8*tt}:{VB+8*tt+3}] offset:{tt*4096+2048}")
        A(f"ds_write_b128 v43, v[{VB+8*tt+4}:{VB+8*tt+7}] offset:{tt*4096+2048+O2}")
    A.label("K1_E2J")
    WP = 36
    krow = (lambda s, sec: 16*sec + 4*s) if M16 else (lambda s, sec: 16*s + 8*sec)
    def feat_setup(tb):
        A(f"""
        v_lshrrev_b32 v5, 5, v0          ; hh
        v_bfe_u32 v6, v0, 2, 2           ; i>>2
        v_lshl_add_u32 v6, v5, {3 if M16 else 2}, v6     ; 4hh + (i>>2)
        v_bfe_u32 v7, v0, 4, 1
        v_lshlrev_b32 v7, 5, v7
        v_and_b32 v8, 3, v0
        v_lshl_add_u32 v7, v8, 3, v7     ; (g&1)*32 + (i&3)*8
        v_lshl_add_u32 v2, v6, 6, v7
        v_add_u32 v2, {K1_WPHI}, v2
        """)
        for s in range(2):
            for sec in range(2):
                A(f"ds_read_b64_tr_b16 v[{WP+4*s+2*sec}:{WP+4*s+2*sec+1}], v2 offset:{krow(s, sec)*64}")
        A(f"""
        s_mul_i32 s47, s50, {K1_TBUF}
        s_add_u32 s47, s47, {tb}
        v_mul_u32_u24 v25, 136, v6
        v_add_u32 v25, v25, v7
        v_add_u32 v25, s47, v25
        v_and_b32 v8, 31, v0
        v_mul_u32_u24 v24, 136, v8
        v_lshl_add_u32 v24, v5, 3, v24
        v_add_u32 v24, s47, v24
        v_bfe_u32 v8, v0, 2, 1
        v_bfe_u32 v9, v0, 4, 1
        v_cmp_eq_u32 vcc, v8, v9
        v_mov_b32 v9, 0x3f803f80
        v_mov_b32 v8, 0
        v_cndmask_b32 v20, v8, v9, vcc
        v_cndmask_b32 v21, v8, v9, vcc
        v_cndmask_b32 v22, v8, v9, vcc
        v_cndmask_b32 v23, v8, v9, vcc
        """)
    feat_setup(TBUF0)
    for tt in range(NT8):
        cvt_tile(A, Q + 8*tt, acc(0, tt))
        swap_tile(Q + 8*tt)
    if M16: A("s_nop 0")
    if E8: A.label("K1_E2L")
    est(A, cfg, 2, PV)
    A("s_waitcnt lgkmcnt(0)")
    for tt in range(NT8):
        a = acc(0, tt)
        A(f"v_mfma_f32_32x32x16_bf16 v[{a}:{a+15}], v[{WP}:{WP+3}], v[{Q+8*tt}:{Q+8*tt+3}], 0")
    for tt in range(NT8):
        a = acc(0, tt)
        A(f"v_mfma_f32_32x32x16_bf16 v[{a}:{a+15}], v[{WP+4}:{WP+7}], v[{Q+8*tt+4}:{Q+8*tt+7}], v[{a}:{a+15}]")
    A(f"""
    s_mov_b32 s56, {fhex(LOG2E)}
    s_mov_b32 s57, s56
    """)
    F1E = E8 and cfg.get("f1pos") == "9"
    if F1E:
        j = A.uid("K1_F1E")
        A("s_cmp_ge_u32 s40, 4"); A(f"s_cbranch_scc1 {j}")
        A("s_cmp_eq_u32 s51, 0"); A(f"s_cbranch_scc1 {j}")
        A("s_waitcnt vmcnt(0)")
        set_flag(A, "s67")
        vstamp(A, cfg, 3, PV)
        A.label(j)
    A.nop(10)
    EP = acc(2, 0)
    PH = EP + 16
    AF = PH + 16
    KV0 = AF + 16
    KV1 = 44
    Z0, Z1, SEL1 = 12, 16, 20
    PHQ = 128
    def kv_mfmas(tt):
        out = []
        for s in range(2):
            for fb in range(2):
                kv = KV0 if fb == 0 else KV1
                z = Z0 if fb == 0 else Z1
                af = AF + (fb*2+s)*4
                c = "0" if (tt == 0 and s == 0) else f"v[{kv}:{kv+15}]"
                cz = "0" if (tt == 0 and s == 0) else f"v[{z}:{z+3}]"
                out.append(f"v_mfma_f32_32x32x16_bf16 v[{kv}:{kv+15}], v[{af}:{af+3}], v[{V+8*tt+4*s}:{V+8*tt+4*s+3}], {c}")
                out.append(f"v_mfma_f32_16x16x32_bf16 v[{z}:{z+3}], v[{SEL1}:{SEL1+3}], v[{af}:{af+3}], {cz}")
        return out
    if E8: F1POS = -1 if F1E else min(int(cfg.get("f1pos", 0)), 1)
    est(A, cfg, 3, PV)
    for tt in range(NT8):
        P = acc(0, tt)
        A(f"v_max3_f32 v4, v{P}, v{P+1}, v{P+2}")
        A(f"v_max3_f32 v5, -v{P}, -v{P+1}, -v{P+2}")
        for k in range(3, 15, 2):
            A(f"v_max3_f32 v4, v4, v{P+k}, v{P+k+1}")
            A(f"v_max3_f32 v5, v5, -v{P+k}, -v{P+k+1}")
        A(f"v_max_f32 v4, v4, v{P+15}")
        A(f"v_max_f32 v5, v5, -v{P+15}")
        A.nop(2)
        A("v_permlane32_swap_b32 v4, v5")
        A("s_nop 0")
        A("v_max_f32 v4, v4, v5")
        A("v_mov_b32 v5, v4")
        A.nop(2)
        A("v_permlane32_swap_b32 v4, v5")
        A("s_nop 0")
        A(f"v_mul_f32 v6, {fhex(-LOG2E)}, v4")
        A(f"v_mul_f32 v8, {fhex(-LOG2E)}, v5")
        for k in range(8):
            A(f"v_pk_fma_f32 v[{EP+2*k}:{EP+2*k+1}], v[{P+2*k}:{P+2*k+1}], s[56:57], v[6:7] op_sel_hi:[1,1,0]")
            A(f"v_pk_fma_f32 v[{P+2*k}:{P+2*k+1}], v[{P+2*k}:{P+2*k+1}], s[56:57], v[8:9] op_sel_hi:[1,1,0] neg_lo:[0,1,0] neg_hi:[0,1,0]")
        for k in range(16):
            A(f"v_exp_f32 v{EP+k}, v{EP+k}")
            A(f"v_exp_f32 v{P+k}, v{P+k}")
        if tt > 0:
            j = A.uid("K1_KVS")
            A("s_cmp_lg_u32 s51, 0"); A(f"s_cbranch_scc1 {j}")
            A("s_waitcnt lgkmcnt(0)")
            for l in kv_mfmas(tt-1): A(l)
            A.label(j)
        A(f"v_pk_add_f32 v[4:5], v[{EP}:{EP+1}], v[{EP+2}:{EP+3}]")
        A(f"v_pk_add_f32 v[6:7], v[{P}:{P+1}], v[{P+2}:{P+3}]")
        for k in range(2, 8):
            A(f"v_pk_add_f32 v[4:5], v[4:5], v[{EP+2*k}:{EP+2*k+1}]")
            A(f"v_pk_add_f32 v[6:7], v[6:7], v[{P+2*k}:{P+2*k+1}]")
        A("v_add_f32 v4, v4, v5")
        A("v_add_f32 v6, v6, v7")
        A.nop(2)
        A("v_permlane32_swap_b32 v4, v6")
        A("s_nop 0")
        A("v_add_f32 v4, v4, v6")
        A("v_rcp_f32 v4, v4")
        A("s_nop 0")
        A("v_mov_b32 v6, v4")
        A.nop(2)
        A("v_permlane32_swap_b32 v4, v6")
        A("s_nop 0")
        for k in range(8):
            A(f"v_pk_mul_f32 v[{EP+2*k}:{EP+2*k+1}], v[{EP+2*k}:{EP+2*k+1}], v[4:5] op_sel_hi:[1,0]")
            A(f"v_pk_mul_f32 v[{P+2*k}:{P+2*k+1}], v[{P+2*k}:{P+2*k+1}], v[6:7] op_sel_hi:[1,0]")
        j1 = A.uid("K1_T0"); j2 = A.uid("K1_TJ")
        A("s_cmp_eq_u32 s51, 0"); A(f"s_cbranch_scc1 {j1}")
        cvt_tile(A, PHQ + 16*tt, EP)
        cvt_tile(A, PHQ + 16*tt + 8, P)
        if tt == F1POS:
            if E8:
                A("s_cmp_ge_u32 s40, 4"); A(f"s_cbranch_scc1 {j2}")
            A("s_waitcnt vmcnt(0)")
            set_flag(A, "s67")
            vstamp(A, cfg, 3, PV)
        A(f"s_branch {j2}")
        A.label(j1)
        cvt_tile(A, PH, EP)
        cvt_tile(A, PH + 8, P)
        for sign in range(2):
            for b in range(4):
                A(f"ds_write_b64 v24, v[{PH+8*sign+2*b}:{PH+8*sign+2*b+1}] offset:{sign*64+b*16}")
        for fb in range(2):
            for s in range(2):
                for sec in range(2):
                    af = AF + (fb*2+s)*4 + 2*sec
                    A(f"ds_read_b64_tr_b16 v[{af}:{af+1}], v25 offset:{krow(s, sec)*136 + fb*64}")
        A.label(j2)
        est(A, cfg, 4 + tt, PV)
        if cfg.get("tp") and tt == 0:
            j3 = A.uid("K1_TP")
            A("s_cmp_lt_u32 s40, 4"); A(f"s_cbranch_scc1 {j3}")
            A("s_cmp_lg_u32 s51, 0"); A(f"s_cbranch_scc1 {j3}")
            A(f"s_setprio {cfg.get('tp')}")
            A.label(j3)
    A("s_cmp_lg_u32 s51, 0")
    A("s_cbranch_scc1 KF_JOIN")
    if QL:
        QN = int(cfg.get("qn", 4))
        A("s_cmp_ge_u32 s40, 4")
        A("s_cbranch_scc1 K1_QL0")
        bq_stage(range(QN), 64, 26, True)
        A(f"s_waitcnt lgkmcnt({2 * QN})")
        for l in kv_mfmas(NT8 - 1): A(l)
        bq_stage(range(QN, 4), 64, 26, True)
        A("s_branch K1_QL1")
        A("K1_QL0:")
        A("s_waitcnt lgkmcnt(0)")
        for l in kv_mfmas(NT8 - 1): A(l)
        A("K1_QL1:")
    else:
        A("s_waitcnt lgkmcnt(0)")
        for l in kv_mfmas(NT8 - 1): A(l)
    est(A, cfg, 6, PV)
    if E8:
        A(f"""
        s_cmp_ge_u32 s40, 4
        s_cselect_b32 s38, {HB0 - RED0}, 0
        s_cselect_b32 s55, 512, 0
        s_add_u32 s38, s38, {RED0}
        s_add_u32 s55, s55, {ZRED}
        """)
    else:
        A(f"s_mov_b32 s38, {RED0}")
        A(f"s_mov_b32 s55, {ZRED}")
    A(f"""
    s_lshl_b32 s47, s50, 13
    s_add_u32 s47, s47, s38
    v_add_u32 v2, s47, v1
    v_and_b32 v3, 31, v0
    v_lshlrev_b32 v3, 2, v3
    s_lshl_b32 s47, s50, 8
    s_add_u32 s47, s47, s55
    v_add_u32 v3, s47, v3
    """)
    A.nop(8)
    A(f"ds_write_b32 v3, v{Z0}")
    A(f"ds_write_b32 v3, v{Z1} offset:128")
    for fb in range(2):
        kv = KV0 if fb == 0 else KV1
        for q in range(4):
            A(f"ds_write_b128 v2, v[{kv+4*q}:{kv+4*q+3}] offset:{fb*4096+q*1024}")
    A("s_branch KF_JOIN")
    A.label("K1_LOADER")
    if cfg.get("lprio"): A(f"s_setprio {cfg.get('lprio')[0]}")
    def l_srd0():
        A("""
        s_cmp_eq_u32 s44, 0
        s_cselect_b32 s28, s6, s8
        s_cselect_b32 s29, s7, s9
        """)
        A(f"s_mov_b32 s30, {1024*6144}")
        A("s_mov_b32 s31, 0x00020000")
    def l_srd1():
        srd(A, 20, 6, 1024*6144)
        srd(A, 24, 8, 1024*6144)
    if not ES:
        srd(A, 16, 4, 2048*2048)
        l_srd1()
    A(f"""
    s_sub_u32 s50, s40, 4            ; w
    s_lshr_b32 s44, s50, 1
    """)
    if not ES: l_srd0()
    R1 = cfg.get("r1", "1") if cfg.get("pf2") else (cfg.get("r1", "0") if (PF3 or PF4) else "0")
    if R1 != "0":
        HM = cfg.get("hmap", "f") == "h"
        RB = 1 if HM else 2; HB = 4 if HM else 3
        NW = 3 << (4 - RB)
        A(f"""
        s_lshr_b32 s47, s45, {RSH}
        s_mul_i32 s47, s47, {ROT}
        s_and_b32 s51, s45, 1
        s_mul_i32 s51, s51, {ROT2}
        s_add_u32 s47, s47, s51          ; first block
        s_and_b32 s51, s50, 1
        s_lshl_b32 s51, s51, 1
        s_add_u32 s51, s51, s47
        v_mul_u32_u24 v20, 43, v0
        v_lshrrev_b32 v20, {10 if HM else 9}, v20
        v_mul_u32_u24 v21, {NW}, v20
        v_sub_u32 v21, v0, v21           ; lane % NW
        v_add_u32 v20, s51, v20
        v_and_b32 v20, 31, v20
        v_mul_u32_u24 v20, {32*6144}, v20
        s_and_b32 s51, s42, 1
        s_lshl_b32 s51, s51, {RB}
        s_and_b32 s52, s41, {(1 << RB) - 1}
        s_add_u32 s51, s51, s52
        s_lshl_b32 s51, s51, {4 - RB}    ; first row of the share
        v_and_b32 v22, {(1 << (4 - RB)) - 1}, v21
        v_add_u32 v22, s51, v22
        v_mul_u32_u24 v22, 6144, v22
        v_lshrrev_b32 v21, {4 - RB}, v21
        v_lshl_add_u32 v22, v21, 11, v22
        s_lshr_b32 s51, s42, 1
        s_lshl_b32 s51, s51, 7
        v_add3_u32 v20, v20, v22, s51
        v_mov_b32 v23, 0x7ffffff0
        v_cmp_gt_u32 vcc, {2 * NW}, v0
        s_lshl_b32 s51, s41, 8
        s_and_b32 s52, s42, {(1 << HB) - 1}
        s_lshl_b32 s52, s52, {8 - HB}
        v_cndmask_b32 v20, v23, v20, vcc
        s_add_u32 s51, s51, s52
        s_lshl_b32 s52, s50, {6 - HB}
        s_add_u32 s51, s51, s52
        {"" if ES else "buffer_load_dword v24, v20, s[28:31], 0 offen"}
        v_and_b32 v21, {(1 << (6 - HB)) - 1}, v0
        v_add_u32 v21, s51, v21
        v_lshlrev_b32 v21, 11, v21
        v_lshrrev_b32 v22, {6 - HB}, v0
        s_lshr_b32 s47, s47, 1
        v_add_u32 v22, s47, v22
        v_and_b32 v22, 15, v22
        v_lshl_add_u32 v21, v22, 7, v21
        v_cmp_gt_u32 vcc, {2 << (6 - HB)}, v0
        s_nop 1
        v_cndmask_b32 v21, v23, v21, vcc
        {"" if ES else "buffer_load_dword v25, v21, s[16:19], 0 offen"}
        """)
    if not ES: srd(A, 36, 10, 32*2048)
    A(f"""
    v_lshrrev_b32 v1, 3, v0
    v_lshrrev_b32 v2, 4, v0
    v_and_b32 v3, 7, v0
    v_xor_b32 v3, v3, v2
    v_lshlrev_b32 v3, 4, v3
    v_lshl_add_u32 v4, v1, 11, v3
    s_lshl_b32 s47, s41, 8
    s_lshl_b32 s51, s50, 6
    s_add_u32 s47, s47, s51
    s_lshl_b32 s47, s47, 11          ; (r*256 + 64w)*2048
    v_add_u32 v4, s47, v4            ; piece 0
    v_xor_b32 v5, 64, v4
    v_add_u32 v5, 16384, v5
    v_add_u32 v6, 32768, v4
    v_add_u32 v7, 32768, v5
    v_add_u32 v12, 65536, v4
    v_add_u32 v13, 65536, v5
    v_add_u32 v14, 98304, v4
    v_add_u32 v15, 98304, v5
    """)
    if ES:
        assert R1 == "2"
        A("s_waitcnt lgkmcnt(0)")
        rstamp(41)
        l_srd0()
        A("buffer_load_dword v24, v20, s[28:31], 0 offen")
        srd(A, 16, 4, 2048*2048)
        A("buffer_load_dword v25, v21, s[16:19], 0 offen")
        l_srd1()
        srd(A, 36, 10, 32*2048)
        srd(A, 32, 14, WS_USED)
    A(f"""
    v_lshrrev_b32 v1, {3 if cfg.get("expw") else 2}, v0
    s_and_b32 s47, s50, 1
    s_lshl_b32 s47, s47, 4
    v_add_u32 v1, s47, v1            ; krow = 16*(w&1) + (l>>2)
    v_mul_u32_u24 v1, 6144, v1
    v_and_b32 v3, {7 if cfg.get("expw") else 3}, v0
    {"v_lshrrev_b32 v2, 4, v0" if cfg.get("m16") else ""}
    {"v_and_b32 v2, 2, v2" if cfg.get("m16") else ""}
    {"v_xor_b32 v3, v2, v3            ; m16 : the column halves of k rows 8..15 change places" if cfg.get("m16") else ""}
    v_lshl_add_u32 v1, v3, 4, v1
    s_lshl_b32 s47, s42, 6           ; 64h
    {"s_and_b32 s47, s47, 0x780" if cfg.get("expw") else ""}
    s_lshl_b32 s51, s44, 11          ; type*2048
    s_add_u32 s52, s47, s51
    v_add_u32 v9, s52, v1            ; seg1 : B.q / B.k
    s_sub_u32 s52, 2048, s51
    s_add_u32 s52, s52, s47
    v_add_u32 v8, s52, v1            ; seg0 : A.k / A.q
    s_add_u32 s52, s47, 4096
    v_add_u32 v10, s52, v1           ; seg2 : A.v / B.v
    v_lshlrev_b32 v11, 4, v0
    s_and_b32 s51, s50, 1
    s_lshl_b32 s51, s51, 10
    s_lshl_b32 s47, s42, 11
    s_add_u32 s47, s47, s51          ; w_phi offset = h*2048 + (w&1)*1024
    s_add_u32 m0, s51, {K1_WPHI}
    s_lshl_b32 s55, s50, 13          ; w*8192  (x pieces)
    {"s_waitcnt vmcnt(0)" if R1 == "1" else ""}
    buffer_load_dwordx4 v11, s[36:39], s47 offen lds
    s_lshl_b32 s51, s50, 10
    s_add_u32 s56, s51, {K1_WB}      ; W pieces : + w*1024
    s_lshr_b32 s47, s45, {RSH}
    s_mul_i32 s47, s47, {ROT}
    s_and_b32 s51, s45, 1
    s_mul_i32 s51, s51, {ROT2}
    s_add_u32 s47, s47, s51
    s_and_b32 s47, s47, 31           ; first k block (rotated per XCD group: spreads the x column reads over the channels)
    s_lshl_b32 s58, s47, 6           ; soffset x
    s_mul_i32 s59, s47, {32*6144}    ; soffset W
    s_mov_b32 s60, 0                 ; block
    s_mov_b32 s61, s55               ; x slot
    s_mov_b32 s62, s56               ; W slot
    s_add_u32 s55, s55, {K1_XS*K1_NX}
    s_add_u32 s56, s56, {K1_SLOT*K1_NSLOT}
    """)
    if PF3:
        TE = int(cfg.get("te", 2))
        OFFL = int(cfg.get("offl", 0))
        XT = int(cfg.get("pfx", 1))
        BW = TE // 2; LB = BW.bit_length() - 1
        assert cfg.get("hmap", "f") == "f"
        A(f"""
        s_and_b32 s51, s42, 7            ; head within the XCD
        s_and_b32 s52, s41, 3            ; token block within the XCD
        s_and_b32 s63, s42, 1
        s_lshl_b32 s63, s63, 2
        s_add_u32 s63, s63, s52          ; share of the pair's weight lines
        s_lshl_b32 s63, s63, 2           ; first row
        s_and_b32 s64, s50, 1
        s_lshl_b32 s64, s64, {5 + LB}    ; first row of this wave's group of blocks
        s_add_u32 s63, s63, s64
        v_bfe_u32 v27, v0, 2, {LB})
        v_lshlrev_b32 v30, 5, v27        ; 32 * block
        v_and_b32 v26, 3, v0
        v_add3_u32 v26, v26, v30, s63    ; row
        v_mul_u32_u24 v26, 6144, v26
        v_lshrrev_b32 v27, {2 + LB}, v0  ; segment
        v_lshl_add_u32 v26, v27, 11, v26
        s_lshr_b32 s63, s42, 1
        s_lshl_b32 s63, s63, 7
        v_add_u32 v26, s63, v26          ; + column of the pair
        v_mov_b32 v29, 0x7ffffff0
        v_cmp_gt_u32 vcc, 3, v27
        """.replace("v_bfe_u32 v27, v0, 2, 0)", "v_mov_b32 v27, 0").replace(")\n", "\n"))
        if OFFL:
            A(f"""
            s_cmp_lt_u32 s51, 6
            s_cselect_b64 vcc, vcc, 0
            v_cndmask_b32 v26, v29, v26, vcc
            s_lshl_b32 s63, s51, 2
            s_add_u32 s63, s63, s52
            s_lshl_b32 s63, s63, 2
            v_and_b32 v28, 3, v0
            v_add_u32 v31, s63, v28          ; line of the last pair : 0..95
            v_and_b32 v28, 31, v31
            v_add3_u32 v28, v28, v30, s64
            v_mul_u32_u24 v28, 6144, v28
            v_lshrrev_b32 v31, 5, v31
            v_lshl_add_u32 v28, v31, 11, v28
            s_lshr_b32 s63, s42, 1
            s_or_b32 s63, s63, 3
            s_lshl_b32 s63, s63, 7
            v_add_u32 v28, s63, v28
            v_cmp_eq_u32 vcc, 3, v27
            s_cmp_lt_u32 s51, 6
            s_cselect_b64 vcc, vcc, 0
            v_cndmask_b32 v26, v26, v28, vcc
            """)
        else:
            A("s_nop 1\nv_cndmask_b32 v26, v29, v26, vcc")
        if OFFL == 2:
            A(f"""
            s_mul_i32 s63, s51, 43
            v_add_u32 v27, s63, v0
            v_cmp_gt_u32 vcc, 43, v0
            s_movk_i32 s63, 0x100
            v_cmp_gt_u32 s[64:65], s63, v27
            s_and_b64 vcc, vcc, s[64:65]
            s_cmp_lt_u32 s51, 6
            s_cselect_b64 vcc, vcc, 0
            """)
        else:
            A(f"""
            s_lshl_b32 s63, s51, 5
            v_add_u32 v27, s63, v0
            v_cmp_gt_u32 vcc, 32, v0
            """)
        A(f"""
        s_lshl_b32 s63, s41, 8
        v_add_u32 v27, s63, v27          ; x row
        v_lshlrev_b32 v27, 11, v27
        v_cndmask_b32 v27, v29, v27, vcc
        s_lshr_b32 s63, s58, 6           ; first block
        s_add_u32 s63, s63, {TL}
        s_and_b32 s63, s63, 31
        s_mul_i32 s64, s63, {32*6144}    ; weight offset
        s_lshr_b32 s63, s63, 1
        s_add_u32 s63, s63, s50
        s_and_b32 s63, s63, 15
        s_lshl_b32 s65, s63, 7           ; x offset
        s_cmp_lt_u32 s50, {BW}
        s_cselect_b32 s67, {2048*2048 if XT else 0}, 0
        s_cmp_lt_u32 s50, 2
        s_cselect_b32 s92, s6, s8
        s_cselect_b32 s93, s7, s9
        s_mov_b32 s94, 0
        s_mov_b32 s95, 0x00020000
        s_mov_b32 s88, s4
        s_mov_b32 s89, s5
        s_mov_b32 s90, 0
        s_mov_b32 s91, 0x00020000
        """)
    def pf4_setup():
        touch_addr("s50", 26, 27, 28, 29, True, "s66")
        A(f"""
        s_mov_b32 s67, s94
        s_cmp_ge_u32 s50, 2
        s_mov_b32 s64, {TL*32*6144}
        s_cselect_b32 s64, {TL*64}, s64
        s_mov_b32 s65, {64*6144}
        s_cselect_b32 s65, 128, s65
        """)
    ED = ES and cfg.get("ed", "1") == "1"
    if PF4 and not ED: pf4_setup()
    if PF4 and ED:
        A("""
        s_mov_b32 s92, s4
        s_mov_b32 s93, s5
        s_mov_b32 s94, 0
        s_mov_b32 s95, 0x00020000
        s_mov_b32 s64, 0
        v_mov_b32 v26, 0
        """)
    rstamp(42)
    if cfg.get("lprio"): A(f"s_setprio {cfg.get('lprio')[1]}")
    A("K1_LLOOP:")
    XV = [4, 5, 6, 7, 12, 13, 14, 15]
    def ld_x(i0=0, i1=8):
        for i in range(i0, i1):
            A(f"s_add_u32 m0, s61, {i*1024}")
            A("s_nop 0")
            A(f"buffer_load_dwordx4 v{XV[i]}, s[16:19], s58 offen lds")
        if i1 == 8: A(f"""
        s_add_u32 s58, s58, 128
        s_and_b32 s58, s58, 2047
        s_add_u32 s61, s61, {K1_XS}
        s_cmp_eq_u32 s61, s55
        s_cselect_b32 s47, {K1_XS*K1_NX}, 0
        s_sub_u32 s61, s61, s47
        """)
    def ld_w():
        for sg in range(3):
            A(f"s_add_u32 m0, s62, {sg*4096}")
            A("s_nop 0")
            A(f"buffer_load_dwordx4 v{8+sg}, s[{20+4*sg}:{23+4*sg}], s59 offen lds")
        A(f"""
        s_add_u32 s59, s59, {32*6144}
        s_cmp_eq_u32 s59, {1024*6144}
        s_cselect_b32 s59, 0, s59
        s_add_u32 s62, s62, {K1_SLOT}
        s_cmp_eq_u32 s62, s56
        s_cselect_b32 s47, {K1_SLOT*K1_NSLOT}, 0
        s_sub_u32 s62, s62, s47
        """)
    E8 = cfg.get("e8")
    def lsync(n=14):
        if cfg.get("prof") == "3":
            A("s_memtime s[96:97]")
            A(f"s_waitcnt vmcnt({n})")
            A("s_memtime s[98:99]")
            A("s_barrier")
            A("s_memtime s[90:91]")
            A("s_waitcnt lgkmcnt(0)")
            A("s_sub_u32 s96, s98, s96")
            A("s_add_u32 s100, s100, s96")
            A("s_sub_u32 s90, s90, s98")
            A("s_add_u32 s101, s101, s90")
        else:
            A(f"s_waitcnt vmcnt({n})")
            A("s_barrier")
    if cfg.get("prof") == "3":
        A("s_cmp_lg_u32 s60, 0")
        A("s_cbranch_scc1 K1_LP3")
        A("s_mov_b32 s100, 0")
        A("s_mov_b32 s101, 0")
        A.label("K1_LP3")
    BAL = int(cfg.get("bal", 0))
    NT = 2 if PF3 else 1 if PF4 else 0
    if BAL:
        ld_w(); ld_x(0, 8 - BAL)
    else:
        ld_x(); ld_w()
    A("""
    s_cmp_lt_u32 s60, 4
    s_cbranch_scc1 K1_LS1
    """)
    lsync(14 - BAL + NT)
    A("K1_LS1:")
    if BAL: ld_x(8 - BAL, 8)
    ld_w()
    if PF4:
        if ED:
            A("s_cmp_lg_u32 s60, 0"); A("s_cbranch_scc1 K1_PFS")
            pf4_setup()
            A("K1_PFS:")
        A(f"""
        s_cmp_le_u32 s60, {30 - TL}
        s_cselect_b32 s94, s67, 0
        buffer_load_dword v31, v26, s[92:95], s64 offen
        s_add_u32 s64, s64, s65
        """)
    if PF3:
        A(f"""
        s_and_b32 s63, s60, {TE - 1}
        s_cmp_le_u32 s60, {32 - TL - TE}
        s_cselect_b32 s63, s63, 1
        s_cmp_eq_u32 s63, 0
        s_cselect_b32 s94, {1024*6144}, 0
        s_cselect_b32 s90, s67, 0
        s_cselect_b32 s63, {TE*32*6144}, 0
        s_cselect_b32 s66, {TE*64}, 0
        buffer_load_dword v31, v26, s[92:95], s64 offen
        buffer_load_dword v31, v27, s[88:91], s65 offen
        s_add_u32 s64, s64, s63
        s_cmp_eq_u32 s64, {1024*6144}
        s_cselect_b32 s64, 0, s64
        s_add_u32 s65, s65, s66
        s_and_b32 s65, s65, 2047
        """)
    A("""
    s_cmp_lt_u32 s60, 2
    s_cbranch_scc1 K1_LS2
    """)
    if cfg.get("prof") == "4":
        A("s_cmp_lg_u32 s60, 2"); A("s_cbranch_scc1 K1_P4A"); rstamp(43); A(f"s_waitcnt vmcnt({14 + 2*NT})"); rstamp(44); A("K1_P4A:")
    lsync(14 + 2*NT)
    A("K1_LS2:")
    GW, GX, GA = (160, 168, 200) if E8 else (32, 64, 40)
    G1 = E8 and cfg.get("g1", "1") == "1"
    NG = 4 if G1 else 2
    XT8 = E8 and cfg.get("xt", "1") == "1"
    def gate_loads():
        srd(A, 36, 12, 2048)
        A(f"""
        s_lshl_b32 s47, s41, 8
        s_lshl_b32 s51, s42, 3
        s_add_u32 s47, s47, s51
        s_lshl_b32 s51, s50, 1
        {"s_and_b32 s51, s51, 4" if G1 else ""}
        s_add_u32 s63, s47, s51          ; t0 = r*256 + h*8 + 2w  /  + 4th
        s_lshl_b32 s51, s63, 11
        v_lshlrev_b32 v1, 5, v0
        buffer_load_dwordx4 v[{GW}:{GW+3}], v1, s[36:39], 0 offen
        buffer_load_dwordx4 v[{GW+4}:{GW+7}], v1, s[36:39], 0 offen offset:16
        """)
        for j in range(NG):
            A(f"buffer_load_dwordx4 v[{GX+8*j}:{GX+8*j+3}], v1, s[16:19], s51 offen")
            A(f"buffer_load_dwordx4 v[{GX+8*j+4}:{GX+8*j+7}], v1, s[16:19], s51 offen offset:16")
            if j < NG - 1: A("s_add_u32 s51, s51, 2048")
    def dbg_srd(r=36):
        A(f"""
        s_mov_b32 s{r}, s86
        s_mov_b32 s{r+1}, s87
        s_mov_b32 s{r+2}, 256
        s_mov_b32 s{r+3}, 0x00020000
        v_mov_b32 v46, 0
        """)
    A(f"""
    s_add_u32 s60, s60, 2
    s_cmp_lt_u32 s60, 32
    s_cbranch_scc1 K1_LLOOP
    """)
    if cfg.get("lf") == "1": A("K1_LPOST:")
    def ltail(gate):
        GN = (3 + 2*NG if gate else 1) if E8 else 0
        if E8:
            if gate:
                gate_loads()
                A("s_mov_b32 s84, s63")
            dbg_srd(92)
            poll_issue(A, 47, 46, 92, "0")
        A(f"""
        s_waitcnt vmcnt({3 + NT + GN})
        s_barrier
        """)
        if E8:
            setup_p2(A)
            A(f"s_add_u32 s74, s74, {2*65536}        ; oA offset of tiles 2, 3")
        A(f"""
        s_waitcnt vmcnt({GN})
        s_barrier
        """)
    GS = G1 and XT8 and cfg.get("gs") == "1"
    if G1:
        A("s_bitcmp1_b32 s50, 0")
        A("s_cbranch_scc0 K1_LT1" if GS else "s_cbranch_scc1 K1_LT1")
        ltail(False)
        A("s_branch K1_LT2")
        A("K1_LT1:")
        ltail(True)
        A("K1_LT2:")
    else:
        ltail(True)
    if cfg.get("prof") == "3":
        A(f"v_writelane_b32 v{PV}, s100, 0")
        A(f"v_writelane_b32 v{PV}, s101, 1")
    if cfg.get("lprio"): A("s_setprio 0")
    if E8:
        setup_p3(A)
        A("s_barrier")
        A(f"""
        s_and_b32 s51, s50, 1
        {"s_xor_b32 s51, s51, 1" if XT8 else ""}
        s_lshr_b32 s50, s50, 1
        """)
        feat_setup(TBUF1)
        A(f"""
        v_lshlrev_b32 v1, 4, v0          ; lane*16
        s_lshl_b32 s47, s50, 13
        s_add_u32 s47, s47, {HB0}
        s_lshl_b32 s38, s50, 12
        s_add_u32 s38, s38, {HB1}
        s_cmp_eq_u32 s51, 0
        s_cselect_b32 s47, s47, s38
        v_add_u32 v45, s47, v1
        """)
        for j in range(NG): A(f"v_mov_b32 v{GA+j}, 0")
        GE = cfg.get("ge") == "1"
        def gate_calc():
            for k in range(8):
                for j in range(NG):
                    A(f"v_dot2c_f32_bf16 v{GA+j}, v{GX+8*j+k}, v{GW+k}")
                if NG == 2: A("s_nop 1")
            A.nop(3)
            for rot in (8, 4, 2, 1):
                for j in range(NG): A(f"v_add_f32_dpp v{GA+j}, v{GA+j}, v{GA+j} row_ror:{rot} row_mask:0xf bank_mask:0xf")
                if NG == 2: A("s_nop 1")
            if G1:
                A(f"""
                v_permlane16_swap_b32 v{GA}, v{GA+1}
                s_nop 0
                v_permlane16_swap_b32 v{GA+2}, v{GA+3}
                s_nop 1
                v_add_f32 v{GA}, v{GA}, v{GA+1}          ; rows : a01, b01, a23, b23
                v_add_f32 v{GA+1}, v{GA+2}, v{GA+3}      ; rows : c01, d01, c23, d23
                s_nop 1
                v_permlane32_swap_b32 v{GA}, v{GA+1}
                s_nop 1
                v_add_f32 v{GA}, v{GA}, v{GA+1}
                """)
            else:
                A(f"""
                v_permlane16_swap_b32 v{GA}, v{GA+1}
                s_nop 1
                v_add_f32 v{GA}, v{GA}, v{GA+1}          ; rows : a01, b01, a23, b23
                v_mov_b32 v{GA+1}, v{GA}
                s_nop 1
                v_permlane32_swap_b32 v{GA}, v{GA+1}
                s_nop 1
                v_add_f32 v{GA}, v{GA}, v{GA+1}          ; lanes 0..15 : token t0, lanes 16..31 : token t0 + 1
                """)
            A(f"""
            v_mul_f32 v{GA}, {fhex(-LOG2E)}, v{GA}
            v_exp_f32 v{GA}, v{GA}
            v_lshrrev_b32 v{GA+2}, 4, v0
            v_lshlrev_b32 v{GA+2}, 2, v{GA+2}
            v_add_f32 v{GA}, 1.0, v{GA}
            v_rcp_f32 v{GA}, v{GA}
            s_lshl_b32 s47, s84, 2
            s_add_u32 s47, s47, {WS_G}
            s_mov_b32 exec_lo, 0x10001
            s_mov_b32 exec_hi, {"0x10001" if G1 else "0"}
            buffer_store_dword v{GA}, v{GA+2}, s[32:35], s47 offen sc1
            s_mov_b64 exec, -1
            """)
        if GE:
            assert XT8 and G1
            A("s_waitcnt vmcnt(0)")
            poll_check(A, 47, 46, 92, "0", "PG", expect="0x100")
            A("s_cmp_lg_u32 s51, 0"); A("s_cbranch_scc1 K1_GE1")
            gate_calc()
            A.label("K1_GE1")
        A("s_barrier")
        vstamp(A, cfg, 2, PV)
        est(A, cfg, 0, PV)
        if not GE:
            A("s_waitcnt vmcnt(0)")
            poll_check(A, 47, 46, 92, "0", "PG", expect="0x100")
        A("s_barrier")
        est(A, cfg, 1, PV)
        EPR = cfg.get("eprio", "00")
        if EPR != "00":
            A(f"s_setprio {EPR[1]}")
            A("s_cmp_lg_u32 s51, 0")
            A("s_cbranch_scc1 K1_LP1")
            A(f"s_setprio {EPR[0]}")
            A("K1_LP1:")
        for k in range(2):
            A(f"ds_read_b128 v[{Q+8*k}:{Q+8*k+3}], v45 offset:{k*2048}")
            A(f"ds_read_b128 v[{Q+8*k+4}:{Q+8*k+7}], v45 offset:{k*2048+1024}")
        A("s_cmp_lg_u32 s51, 0")
        A(f"s_cbranch_scc1 {'K1_E2L' if (XT8 and G1 and not GS) else 'K1_LNV'}")
        for k in range(2):
            A(f"ds_read_b128 v[{V+8*k}:{V+8*k+3}], v45 offset:{4096+k*2048}")
            A(f"ds_read_b128 v[{V+8*k+4}:{V+8*k+7}], v45 offset:{4096+k*2048+1024}")
        if G1 and (GS or not XT8): A("s_branch K1_E2L")
        A("K1_LNV:")
        if not GE: gate_calc()
        A("s_branch K1_E2L")
    else:
        gate_loads()
        A("""
        s_barrier
        s_barrier
        """)
        vstamp(A, cfg, 2, PV)
        for j in range(2): A(f"v_mov_b32 v{40+j}, 0")
        A("s_waitcnt vmcnt(0)")
        for k in range(8):
            for j in range(2):
                A(f"v_dot2c_f32_bf16 v{40+j}, v{GX+8*j+k}, v{32+k}")
            A("s_nop 1")
        A("v_lshlrev_b32 v3, 2, v0")
        A.nop(3)
        for mask in (1, 2, 4, 8, 16, 32):
            A(f"v_xor_b32 v4, {mask*4}, v3")
            for j in range(2): A(f"ds_bpermute_b32 v{5+j}, v4, v{40+j}")
            A("s_waitcnt lgkmcnt(0)")
            for j in range(2): A(f"v_add_f32 v{40+j}, v{40+j}, v{5+j}")
        A(f"v_cmp_eq_u32 vcc, 1, v0")
        A("s_nop 1")
        A(f"v_cndmask_b32 v40, v40, v41, vcc")
        A(f"""
        v_mul_f32 v40, {fhex(-LOG2E)}, v40
        v_exp_f32 v40, v40
        s_nop 0
        v_add_f32 v40, 1.0, v40
        v_rcp_f32 v40, v40
        s_lshl_b32 s47, s63, 2
        s_add_u32 s47, s47, {WS_G}
        s_mov_b64 exec, 3
        buffer_store_dword v40, v3, s[32:35], s47 offen sc1
        s_mov_b64 exec, -1
        """)
        setup_p2(A)
        setup_p3(A)
        A(f"""
        s_mov_b32 s85, s36
        v_and_b32 v35, 15, v0
        v_lshlrev_b32 v35, 2, v35
        """)
        dbg_srd()
        poll_issue(A, 47, 46, 36, "0")
        A("s_waitcnt vmcnt(0)")
        poll_check(A, 47, 46, 36, "0", "PG", expect="0x100")
        poll_issue(A, 47, 35, 32, "s78")
        A("s_waitcnt vmcnt(0)")
        poll_check(A, 47, 35, 32, "s78", "P1")
        vstamp(A, cfg, 3, PV)
        A(f"""
        v_lshlrev_b32 v3, 4, v0
        s_lshl_b32 s47, s50, 12          ; w*4096
        s_add_u32 m0, s47, {2*16384}
        s_lshl_b32 s51, s41, 1
        s_add_u32 s51, s51, 2
        s_and_b32 s51, s51, 15
        s_lshl_b32 s51, s51, 14
        s_add_u32 s51, s51, s47
        s_add_u32 s51, s51, s70
        """)
        for j in range(4):
            A(f"buffer_load_dwordx4 v3, s[32:35], s51 offen offset:{j*1024} sc1 lds")
        A("s_mov_b32 s36, s85")
    A.label("KF_JOIN")
    if cfg.get("e8") and (cfg.get("eprio", "00") != "00" or cfg.get("tp")): A("s_setprio 0")
    Q, K0, K1, V0, V1, SEL, NEGM, SA, SB, O, L, P = 8, 16, 20, 24, 28, 40, 48, 64, 80, 96, 112, 120
    PR = 33
    RD = 192
    if cfg.get("prof"): A(f"v_mov_b32 v{PR}, v{PV}")
    vstamp(A, cfg, 4, PR)
    est(A, cfg, 7, PR)
    JL = cfg.get("jl") == "1"
    def j_sel():
        A(f"""
        v_bfe_u32 v4, v0, 2, 1
        v_bfe_u32 v5, v0, 4, 1
        v_cmp_eq_u32 vcc, v4, v5
        v_mov_b32 v5, 0x3f803f80
        v_mov_b32 v4, 0
        v_cndmask_b32 v{SEL}, v4, v5, vcc
        v_cndmask_b32 v{SEL+1}, v4, v5, vcc
        v_cndmask_b32 v{SEL+2}, v4, v5, vcc
        v_cndmask_b32 v{SEL+3}, v4, v5, vcc
        v_mov_b32 v1, v3                 ; cur
        v_add_u32 v2, 16384, v3          ; next
        """)
    def j_zero(a, b):
        z = [O+i for i in range(16)]
        for i in range(4): z += [L+i, V1+i, P+4+i]
        z += [35, 36, 37, 38, 39, 45] + ([] if E8 else [46])
        for i in z[a:b]: A(f"v_mov_b32 v{i}, 0")
    A("v_lshlrev_b32 v3, 4, v0          ; lane*16")
    if not JL: j_sel()
    A(f"""
    s_lshl_b32 s47, s40, 11
    s_add_u32 s47, s47, {QST}
    v_add_u32 v6, s47, v3            ; Q staging address
    s_lshl_b32 s47, s40, 10
    s_add_u32 s47, s47, {RED0}
    v_add_u32 v7, s47, v3
    """)
    if not JL: j_zero(0, 99)
    if E8:
        A("v_and_b32 v46, 15, v0")
        A("v_lshlrev_b32 v46, 2, v46")
        if cfg.get("dp", "1") != "2": poll_issue(A, 47, 46, 32, "s78")
    A(f"""
    s_mov_b32 s60, 0
    s_mov_b32 s61, 1
    s_waitcnt lgkmcnt(0)
    """)
    est(A, cfg, 8, PR)
    A("s_barrier")
    est(A, cfg, 9, PR)
    vstamp(A, cfg, 5, PR)
    NRD = 4 if E8 else 2
    A(f"""
    ds_read_b128 v[{Q}:{Q+3}], v6
    ds_read_b128 v[{NEGM}:{NEGM+3}], v3
    ds_read_b128 v[{Q+4}:{Q+7}], v6 offset:1024
    ds_read_b128 v[{NEGM+4}:{NEGM+7}], v3 offset:1024
    ds_read_b128 v[{K0}:{K0+3}], v3 offset:4096
    ds_read_b128 v[{K1}:{K1+3}], v3 offset:{4096+1024}
    ds_read_b128 v[{V0}:{V0+3}], v3 offset:2048
    ds_read_b128 v[{RD}:{RD+3}], v7
    ds_read_b128 v[{RD+4}:{RD+7}], v7 offset:8192
    """)
    if E8:
        A(f"ds_read_b128 v[{RD+12}:{RD+15}], v7 offset:{HB0 - RED0}")
        A(f"ds_read_b128 v[{RD+16}:{RD+19}], v7 offset:{HB0 - RED0 + 8192}")
    if JL: j_zero(0, 20)
    A(f"""
    s_waitcnt lgkmcnt({5 + NRD})
    v_mfma_f32_32x32x16_bf16 v[{SA}:{SA+15}], v[{NEGM}:{NEGM+3}], v[{Q}:{Q+3}], 0
    s_waitcnt lgkmcnt({3 + NRD})
    v_mfma_f32_32x32x16_bf16 v[{SA}:{SA+15}], v[{NEGM+4}:{NEGM+7}], v[{Q+4}:{Q+7}], v[{SA}:{SA+15}]
    """)
    M32 = cfg.get("m32") == "1"
    JR = cfg.get("jr") == "1"
    if not M32:
        A(f"""
        s_waitcnt lgkmcnt({1 + NRD})
        v_mfma_f32_32x32x16_bf16 v[{SB}:{SB+15}], v[{K0}:{K0+3}], v[{Q}:{Q+3}], 0
        v_mfma_f32_32x32x16_bf16 v[{SB}:{SB+15}], v[{K1}:{K1+3}], v[{Q+4}:{Q+7}], v[{SB}:{SB+15}]
        """)
    if JL: j_sel(); j_zero(20, 99)
    def rd_sums():
      A(f"""
      s_waitcnt lgkmcnt(0)
      v_pk_add_f32 v[{RD}:{RD+1}], v[{RD}:{RD+1}], v[{RD+4}:{RD+5}]
      v_pk_add_f32 v[{RD+2}:{RD+3}], v[{RD+2}:{RD+3}], v[{RD+6}:{RD+7}]
      """)
      if E8:
        A(f"""
        v_pk_add_f32 v[{RD+12}:{RD+13}], v[{RD+12}:{RD+13}], v[{RD+16}:{RD+17}]
        v_pk_add_f32 v[{RD+14}:{RD+15}], v[{RD+14}:{RD+15}], v[{RD+18}:{RD+19}]
        v_pk_add_f32 v[{RD}:{RD+1}], v[{RD}:{RD+1}], v[{RD+12}:{RD+13}]
        v_pk_add_f32 v[{RD+2}:{RD+3}], v[{RD+2}:{RD+3}], v[{RD+14}:{RD+15}]
        s_cmp_lg_u32 s40, 7
        s_cbranch_scc1 KJ_NOZ
        v_lshlrev_b32 v4, 2, v0
        v_add_u32 v5, {ZRED}, v4
        ds_read_b32 v{RD+8}, v5
        ds_read_b32 v{RD+9}, v5 offset:256
        ds_read_b32 v{RD+10}, v5 offset:512
        ds_read_b32 v{RD+11}, v5 offset:768
        s_waitcnt lgkmcnt(0)
        v_add_f32 v{RD+8}, v{RD+8}, v{RD+9}
        v_add_f32 v{RD+10}, v{RD+10}, v{RD+11}
        v_add_f32 v{RD+8}, v{RD+8}, v{RD+10}
        KJ_NOZ:
        """)
      else:
        A(f"""
        s_cmp_lg_u32 s40, 7
        buffer_store_dwordx4 v[{RD}:{RD+3}], v3, s[32:35], s79 offen sc1
        s_cbranch_scc1 KJ_NOZ
        v_lshlrev_b32 v4, 2, v0
        v_add_u32 v5, {ZRED}, v4
        ds_read_b32 v{RD+8}, v5
        ds_read_b32 v{RD+9}, v5 offset:256
        s_waitcnt lgkmcnt(0)
        v_add_f32 v{RD+8}, v{RD+8}, v{RD+9}
        buffer_store_dword v{RD+8}, v4, s[32:35], s89 offen sc1
        KJ_NOZ:
        """)
    if not JR: rd_sums()
    else: assert E8 and JL
    A.nop(6)
    A(f"v_max3_f32 v4, v{SA}, v{SA+1}, v{SA+2}")
    A(f"v_max3_f32 v5, v{SA+3}, v{SA+4}, v{SA+5}")
    for k in range(6, 14, 4):
        A(f"v_max3_f32 v4, v4, v{SA+k}, v{SA+k+1}")
        A(f"v_max3_f32 v5, v5, v{SA+k+2}, v{SA+k+3}")
    A(f"v_max3_f32 v4, v4, v{SA+14}, v{SA+15}")
    for k in range(0, 16, 4):
        if M32: break
        A(f"v_max3_f32 v4, v4, v{SB+k}, v{SB+k+1}")
        A(f"v_max3_f32 v5, v5, v{SB+k+2}, v{SB+k+3}")
    A("v_max_f32 v4, v4, v5")
    A("v_mov_b32 v5, v4")
    A.nop(2)
    A("v_permlane32_swap_b32 v4, v5")
    A("s_nop 0")
    A("v_max_f32 v4, v4, v5")
    A(f"v_add_f32 v4, {fhex(BIAS)}, v4")
    if cfg.get("np") == "1":
        for i in range(2): A(f"v_sub_f32 v{NEGM+i}, 0, v4")
        for i in range(2, 16, 2): A(f"v_pk_mov_b32 v[{NEGM+i}:{NEGM+i+1}], v[{NEGM}:{NEGM+1}], v[{NEGM}:{NEGM+1}] op_sel:[0,1]")
    else:
        for i in range(16):
            A(f"v_sub_f32 v{NEGM+i}, 0, v4")
    for k in range(8):
        A(f"v_pk_add_f32 v[{SA+2*k}:{SA+2*k+1}], v[{SA+2*k}:{SA+2*k+1}], v[{NEGM}:{NEGM+1}]")
    if JR: rd_sums()
    DX = int(cfg.get("dx", 0))
    def chunk2():
        A(f"""
        s_lshl_b32 s47, s40, 11
        s_add_u32 m0, s47, {2*16384}
        s_lshl_b32 s38, s41, 1
        s_add_u32 s38, s38, 2
        s_and_b32 s38, s38, 15
        s_lshl_b32 s38, s38, 14
        s_add_u32 s38, s38, s47
        s_add_u32 s81, s38, s70
        buffer_load_dwordx4 v3, s[32:35], s81 offen sc1 lds
        buffer_load_dwordx4 v3, s[32:35], s81 offen offset:1024 sc1 lds
        """)
    if DX:
        assert E8 and cfg.get("prof") != "2" and 1 <= DX <= 3
        DP = cfg.get("dp", "1")
        if DP == "2": poll_issue(A, 47, 46, 32, "s78")
        if DP == "3": poll_issue(A, 45, 46, 32, "s78")
        A(f"""
        buffer_store_dwordx4 v[{RD}:{RD+3}], v3, s[32:35], s79 offen sc1
        s_cmp_lg_u32 s40, 7
        s_cbranch_scc1 KJ_NOZ2
        v_lshlrev_b32 v4, 2, v0
        buffer_store_dword v{RD+8}, v4, s[32:35], s89 offen sc1
        KJ_NOZ2:
        """)
    elif E8:
        A("s_waitcnt vmcnt(0)")
        poll_check(A, 47, 46, 32, "s78", "P1")
        A(f"""
        buffer_store_dwordx4 v[{RD}:{RD+3}], v3, s[32:35], s79 offen sc1
        s_cmp_lg_u32 s40, 7
        s_cbranch_scc1 KJ_NOZ2
        v_lshlrev_b32 v4, 2, v0
        buffer_store_dword v{RD+8}, v4, s[32:35], s89 offen sc1
        KJ_NOZ2:
        s_lshl_b32 s47, s40, 11
        s_add_u32 m0, s47, {2*16384}
        s_lshl_b32 s38, s41, 1
        s_add_u32 s38, s38, 2
        s_and_b32 s38, s38, 15
        s_lshl_b32 s38, s38, 14
        s_add_u32 s38, s38, s47
        s_add_u32 s81, s38, s70
        buffer_load_dwordx4 v3, s[32:35], s81 offen sc1 lds
        buffer_load_dwordx4 v3, s[32:35], s81 offen offset:1024 sc1 lds
        """)
    vstamp(A, cfg, 6, PR)
    est(A, cfg, 10, PR)
    if cfg.get("prof") == "2":
        A("s_mov_b32 s100, 15"); A(f"v_mov_b32 v{PR}, 0"); bstamp(A, cfg, 2); A("s_mov_b32 s100, 0")
    def dma_ops():
        a = ["s_mov_b32 m0, s72", "s_add_u32 s81, s70, s71", "s_add_u32 s72, s72, 16384",
             "buffer_load_dwordx4 v3, s[32:35], s81 offen sc1 lds"]
        b = ["buffer_load_dwordx4 v3, s[32:35], s81 offen offset:1024 sc1 lds",
             f"s_and_b32 s72, s72, {RING-1}", "s_add_u32 s71, s71, 16384", "s_and_b32 s71, s71, 0x3ffff"]
        return a, b
    def dma_chunk():
        a, b = dma_ops()
        for l in a + b: A(l)
    class LQ:
        def __init__(s, init): s.q = list(init)
        def rd(s, tag, text):
            def f(): A(text); s.q.append(tag)
            return f
        def wait(s, *tags):
            idx = max([k for k, t in enumerate(s.q) if t in tags], default=-1)
            if idx < 0: return
            A(f"s_waitcnt lgkmcnt({min(15, len(s.q) - 1 - idx)})")
            s.q = s.q[idx+1:]
    LQM = [None]
    def tile(i, Sa, Sb, sideA=(), sideB=(), end=()):
        e = lambda k: f"v_exp_f32 v{Sa+k}, v{Sa+k}"
        c = lambda k: f"v_cvt_pk_bf16_f32 v{P+k}, v{Sa+2*k}, v{Sa+2*k+1}"
        QK0 = f"v_mfma_f32_32x32x16_bf16 v[{Sb}:{Sb+15}], v[{K0}:{K0+3}], v[{Q}:{Q+3}], v[{NEGM}:{NEGM+15}]"
        QK1 = f"v_mfma_f32_32x32x16_bf16 v[{Sb}:{Sb+15}], v[{K1}:{K1+3}], v[{Q+4}:{Q+7}], v[{Sb}:{Sb+15}]"
        PV0 = f"v_mfma_f32_32x32x16_bf16 v[{O}:{O+15}], v[{V0}:{V0+3}], v[{P}:{P+3}], v[{O}:{O+15}]"
        PV1 = f"v_mfma_f32_32x32x16_bf16 v[{O}:{O+15}], v[{V1}:{V1+3}], v[{P+4}:{P+7}], v[{O}:{O+15}]"
        L0 = f"v_mfma_f32_16x16x32_bf16 v[{L}:{L+3}], v[{SEL}:{SEL+3}], v[{P}:{P+3}], v[{L}:{L+3}]"
        L1 = f"v_mfma_f32_16x16x32_bf16 v[{L}:{L+3}], v[{SEL}:{SEL+3}], v[{P+4}:{P+7}], v[{L}:{L+3}]"
        W = "s_waitcnt lgkmcnt(3)"
        def addr(tt, fr):
            return (f"v1 offset:{tt*4096+fr*1024}" if tt < 4 else f"v2 offset:{(tt-4)*4096+fr*1024}")
        rK0 = f"ds_read_b128 v[{K0}:{K0+3}], {addr(i+2, 0)}"; rK1 = f"ds_read_b128 v[{K1}:{K1+3}], {addr(i+2, 1)}"
        rV0 = f"ds_read_b128 v[{V0}:{V0+3}], {addr(i+1, 2)}"; rV1 = f"ds_read_b128 v[{V1}:{V1+3}], {addr(i, 3)}"
        WV1 = WK0 = WK1 = WV0 = W
        lq = LQM[0]
        if lq:
            WV1, WK0, WK1, WV0 = [(lambda t=t: lq.wait(t)) for t in ("V1", "K0", "K1", "V0")]
            rV1, rK0, rK1, rV0 = lq.rd("V1", rV1), lq.rd("K0", rK0), lq.rd("K1", rK1), lq.rd("V0", rV0)
        seq = [e(0), e(1), WV1, PV1, rV1, *sideA, e(2), e(3), e(4), e(5), WK0, QK0, rK0, e(6), e(7), c(0), c(1), L1, c(2), c(3), e(8), WK1, QK1, rK1,
               *sideB, e(9), e(10), e(11), WV0, PV0, rV0, e(12), e(13), e(14), L0, e(15), c(4), c(5), c(6), c(7), *end]
        for x in seq:
            if callable(x): x()
            else: A(x)
    PRIO = [int(c) for c in cfg.get("prio", "3210")]
    def period(sides=None, dma=True, head=False):
        if head and DX:
            A("s_cmp_eq_u32 s60, 0"); A("s_cbranch_scc1 K2_ND")
            dma_chunk()
            A.label("K2_ND")
        elif dma: dma_chunk()
        for i in range(4):
            sa, sb, en = (sides or {}).get(i, ((), (), ()))
            if head and DX and i == 2:
                A(f"""
                s_cmp_eq_u32 s60, 1
                s_cbranch_scc0 K2_N2
                s_waitcnt vmcnt(5)
                s_barrier
                K2_N2:
                """)
            if cfg.get("prio"): A(f"s_setprio {PRIO[i]}")
            tile(i, SA if i % 2 == 0 else SB, SB if i % 2 == 0 else SA, sa, sb, en)
            if head and DX and i == DX - 1:
                A("s_cmp_eq_u32 s60, 0"); A("s_cbranch_scc1 K2_P0X"); A.label("K2_P0R")
        A(f"""
        v_mov_b32 v1, v2
        v_add_u32 v2, 16384, v2
        v_and_b32 v2, {RING-1}, v2
        """)
    if DX:
        A("s_branch K2_LOOP")
        A.label("K2_P0X")
        if DP == "3":
            A("""
            s_waitcnt vmcnt(2)
            v_cmp_eq_u32 vcc, 1, v47
            s_cmp_eq_u64 vcc, -1
            s_cbranch_scc1 K2_P0K
            s_waitcnt vmcnt(1)
            v_mov_b32 v47, v45
            """)
        else:
            A("s_waitcnt vmcnt(1)")
        poll_check(A, 47, 46, 32, "s78", "P1")
        A.label("K2_P0K")
        chunk2()
        dma_chunk()
        A("s_branch K2_P0R")
    A.label("K2_LOOP")
    period(head=True)
    if DX:
        A(f"""
        s_add_u32 s60, s60, 1
        s_cmp_eq_u32 s60, 1
        s_cbranch_scc0 K2_W2
        s_waitcnt vmcnt(4)
        s_branch K2_W4
        K2_W2:
        s_waitcnt vmcnt(2)
        K2_W4:
        s_cmp_lg_u32 s60, s61
        s_barrier
        s_cbranch_scc1 K2_LOOP
        """)
    elif cfg.get("prof") == "2":
        pbar(A, cfg, "s_waitcnt vmcnt(2)")
        A("""
        s_add_u32 s60, s60, 1
        s_cmp_lg_u32 s60, s61
        s_cbranch_scc1 K2_LOOP
        """)
    else:
        A(f"""
        s_add_u32 s60, s60, 1
        s_cmp_lg_u32 s60, s61
        s_waitcnt vmcnt(2)
        s_barrier
        s_cbranch_scc1 K2_LOOP
        """)
    A(f"""
    s_cmp_eq_u32 s60, 1
    s_cbranch_scc1 KD_1
    s_cmp_eq_u32 s60, 3
    s_cbranch_scc1 KD_3
    s_cmp_eq_u32 s60, 4
    s_cbranch_scc1 KD_4
    s_branch KD_7
    KD_1:
    s_mov_b32 s61, 3
    """)
    set_flag(A, "s68")
    A(f"""
    s_branch K2_LOOP
    KD_3:
    v_lshlrev_b32 v46, 2, v0
    s_mov_b32 s61, 4
    """)
    poll_issue(A, 47, 46, 32, "s77")
    A("s_branch K2_LOOP")
    A.label("KD_4")
    vstamp(A, cfg, 7, PR)
    poll_check(A, 47, 46, 32, "s77", "PK")
    KVP = 192; ZP = 224
    A(f"""
    s_cmp_eq_u32 s40, 4
    s_cselect_b32 s84, 1, 0          ; wave 4 also reduces z
    """)
    def kvload(rr):
        def f():
            A(f"buffer_load_dwordx4 v[{KVP+4*rr}:{KVP+4*rr+3}], v3, s[32:35], s75 offen sc1")
            A("s_add_u32 s75, s75, 8192")
        return f
    def zload(rr):
        def f():
            j = A.uid("KZ")
            A("s_cmp_eq_u32 s84, 0"); A(f"s_cbranch_scc1 {j}")
            A(f"buffer_load_dword v{ZP+rr}, v46, s[32:35], s76 offen offset:{256*rr} sc1")
            A(f"buffer_load_dword v{ZP+rr+1}, v46, s[32:35], s76 offen offset:{256*rr+256} sc1")
            A.label(j)
        return f
    period({i: ((kvload(2*i),), (kvload(2*i+1),), (zload(2*i),)) for i in range(4)})
    pbar(A, cfg, "s_waitcnt vmcnt(10)")
    def kvsum():
        A("s_waitcnt vmcnt(2)")
        A(f"""
        s_lshr_b32 s47, s40, 1
        s_lshl_b32 s47, s47, 10
        s_and_b32 s38, s40, 1
        s_lshl_b32 s38, s38, 3
        s_add_u32 s47, s47, s38
        s_add_u32 s47, s47, {KVT_L}
        v_add_u32 v4, s47, v3            ; kvT write address
        """)
        b = KVP
        for rr in range(1, 8):
            A(f"v_pk_add_f32 v[{b}:{b+1}], v[{b}:{b+1}], v[{b+4*rr}:{b+4*rr+1}]")
            A(f"v_pk_add_f32 v[{b+2}:{b+3}], v[{b+2}:{b+3}], v[{b+4*rr+2}:{b+4*rr+3}]")
        A(f"v_cvt_pk_bf16_f32 v{b}, v{b}, v{b+1}")
        A(f"v_cvt_pk_bf16_f32 v{b+1}, v{b+2}, v{b+3}")
        A(f"ds_write_b64 v4, v[{b}:{b+1}]")
        j = A.uid("KZS")
        A("s_cmp_eq_u32 s84, 0"); A(f"s_cbranch_scc1 {j}")
        for rr in range(1, 8):
            A(f"v_add_f32 v{ZP}, v{ZP}, v{ZP+rr}")
        A(f"""
        v_lshlrev_b32 v5, 1, v0
        v_add_u32 v5, {Z_L}, v5          ; z write address (lane = f)
        v_cvt_pk_bf16_f32 v{ZP}, v{ZP}, v{ZP}
        ds_write_b16 v5, v{ZP}
        """)
        A.label(j)
    period({1: ((), (), (kvsum,))})
    pbar(A, cfg, None)
    A(f"""
    s_mov_b32 s60, 6
    s_mov_b32 s61, 7
    {"s_lshr_b32 s47, s40, 2" if XT8 else "s_mov_b32 s47, 0"}
    s_xor_b32 s47, s47, s40
    s_and_b32 s47, s47, {1 if E8 else 5}
    s_cmp_lg_u32 s47, 1
    s_cbranch_scc1 K2_LOOP
    """)
    KVT, ZR, NUM, DEN, OA = 192, 208, 224, 240, 244
    A(f"""
    v_add_u32 v4, {KVT_L}, v3
    v_lshrrev_b32 v5, 5, v0
    v_lshlrev_b32 v5, 3, v5
    v_add_u32 v5, {Z_L}, v5          ; Z + hh*8
    """)
    for s in range(4):
        A(f"ds_read_b128 v[{KVT+4*s}:{KVT+4*s+3}], v4 offset:{s*1024}")
        A(f"ds_read_b64 v[{ZR+4*s}:{ZR+4*s+1}], v5 offset:{32*s}")
        A(f"ds_read_b64 v[{ZR+4*s+2}:{ZR+4*s+3}], v5 offset:{32*s+16}")
    def zmask():
        A("v_bfe_u32 v4, v0, 2, 1")
        A("v_bfe_u32 v5, v0, 4, 1")
        A("v_cmp_eq_u32 vcc, v4, v5")
        A("v_mov_b32 v4, 0")
        A("s_nop 0")
        for k in range(16): A(f"v_cndmask_b32 v{ZR+k}, v4, v{ZR+k}, vcc")
    def amfma(t):
        def f():
            for s in range(4):
                c = "0" if s == 0 else f"v[{NUM}:{NUM+15}]"
                A(f"v_mfma_f32_32x32x16_bf16 v[{NUM}:{NUM+15}], v[{KVT+4*s}:{KVT+4*s+3}], v[{PHQ+16*t+4*s}:{PHQ+16*t+4*s+3}], {c}")
                c = "0" if s == 0 else f"v[{DEN}:{DEN+3}]"
                A(f"v_mfma_f32_16x16x32_bf16 v[{DEN}:{DEN+3}], v[{ZR+4*s}:{ZR+4*s+3}], v[{PHQ+16*t+4*s}:{PHQ+16*t+4*s+3}], {c}")
        return f
    def afin():
        A(f"v_add_f32 v4, {fhex(1e-6)}, v{DEN}")
        A("v_rcp_f32 v4, v4")
        A("s_nop 0")
        for k in range(8):
            A(f"v_pk_mul_f32 v[{NUM+2*k}:{NUM+2*k+1}], v[{NUM+2*k}:{NUM+2*k+1}], v[4:5] op_sel_hi:[1,0]")
        cvt_tile(A, OA, NUM)
        A(f"buffer_store_dwordx4 v[{OA}:{OA+3}], v3, s[32:35], s74 offen sc1")
        A(f"buffer_store_dwordx4 v[{OA+4}:{OA+7}], v3, s[32:35], s74 offen offset:1024 sc1")
        A("s_add_u32 s74, s74, 65536")
    if E8:
        period({0: ((), (), (zmask, amfma(0))), 1: ((), (), (afin, amfma(1))), 2: ((), (), (afin,))})
        pbar(A, cfg, "s_waitcnt vmcnt(6)")
    else:
        period({0: ((), (), (zmask, amfma(0))), 1: ((), (), (afin, amfma(1))), 2: ((), (), (afin, amfma(2))), 3: ((), (), (afin, amfma(3)))})
        A.nop(12)
        afin()
        pbar(A, cfg, "s_waitcnt vmcnt(10)")
    P16 = cfg.get("p16")
    A.label("KD_7")
    A(f"""
    s_mov_b32 s60, 7
    v_and_b32 v45, 31, v0
    v_lshlrev_b32 v45, 2, v45        ; (l&31)*4
    v_lshlrev_b32 v35, 2, v0         ; lane*4
    v_lshrrev_b32 v4, 3, v0
    v_lshlrev_b32 v5, 11, v4         ; row*2048
    v_and_b32 v7, 7, v0
    v_bfe_u32 v6, v0, 4, {2 if P16 else 1}
    v_lshlrev_b32 v6, {1 if P16 else 2}, v6
    v_xor_b32 v7, v7, v6
    v_lshl_add_u32 v5, v7, 4, v5
    s_lshl_b32 s47, s18, 9
    s_lshl_b32 s38, s19, 4
    s_add_u32 s47, s47, s38
    s_lshl_b32 s47, s47, 11
    s_lshl_b32 s38, s17, 7
    s_add_u32 s47, s47, s38          ; + C*128
    v_add_u32 v36, s47, v5           ; piece 0
    v_add_u32 v37, {16384 - 1024}, v36 ; piece 1 (with offset:1024)
    v_lshrrev_b32 v7, 5, v0          ; hh
    v_bfe_u32 v6, v0, 2, 2           ; i>>2
    v_lshl_add_u32 v7, v7, 2, v6
    v_lshlrev_b32 v7, 7, v7
    v_bfe_u32 v6, v0, 4, 1
    v_bfe_u32 v5, v0, 1, 1
    v_lshl_add_u32 v6, v6, 1, v5
    v_bfe_u32 v5, v0, 3, 1
    v_lshlrev_b32 v5, 2, v5
    v_xor_b32 v6, v6, v5
    v_lshl_add_u32 v7, v6, 4, v7
    v_and_b32 v5, 1, v0
    v_lshl_add_u32 v7, v5, 3, v7
    s_lshl_b32 s38, s18, 13
    v_add_u32 v38, s38, v7           ; cb=0
    v_xor_b32 v39, 64, v38           ; cb=1
    s_add_u32 s80, s30, {WSL(0)}
    """)
    if P16:
        A(f"""
        v_lshrrev_b32 v4, 4, v0          ; q4
        v_and_b32 v5, 15, v0             ; i
        v_lshlrev_b32 v39, 4, v5
        v_lshl_add_u32 v39, v4, 9, v39   ; o : q4 * 512 + i * 16
        v_lshrrev_b32 v6, 1, v4
        v_lshlrev_b32 v6, 4, v6          ; 16 fr
        v_and_b32 v7, 1, v4
        v_lshl_add_u32 v6, v7, 2, v6     ; + 4 hh
        v_lshrrev_b32 v5, 2, v5
        v_add_u32 v6, v6, v5             ; k row
        v_lshlrev_b32 v38, 7, v6
        v_bfe_u32 v6, v6, 1, 2           ; (row >> 1) & 3
        v_lshl_add_u32 v38, v6, 5, v38
        v_and_b32 v5, 3, v0
        v_lshl_add_u32 v38, v5, 3, v38
        v_add_u32 v38, s38, v38
        v_and_b32 v45, 15, v0
        v_lshlrev_b32 v45, 2, v45        ; (l&15)*4
        """)
    def wo_ops(m0src):
        a = [m0src, "s_nop 0", "buffer_load_dwordx4 v36, s[20:23], s29 offen lds"]
        b = ["buffer_load_dwordx4 v37, s[20:23], s29 offen offset:1024 lds", f"s_add_u32 s29, s29, {64*2048}"]
        return a, b
    A.label("K2_LOOPB")
    wa, wb = wo_ops("s_mov_b32 m0, s80")
    wb = wb + ["s_add_u32 s80, s80, 16384"]
    ca, cb_ = dma_ops()
    period({0: (tuple(wa), tuple(wb), ()), 1: (tuple(wa), tuple(wb), ()), 2: (tuple(ca), tuple(cb_), ())}, dma=False)
    if cfg.get("prof") == "2":
        pbar(A, cfg, "s_waitcnt vmcnt(6)")
        A("""
        s_add_u32 s60, s60, 1
        s_cmp_eq_u32 s60, 10
        """)
    else:
        A("""
        s_add_u32 s60, s60, 1
        s_cmp_eq_u32 s60, 10
        s_waitcnt vmcnt(6)
        s_barrier
        """)
    A(f"""
    s_cbranch_scc1 KB_10
    s_cmp_eq_u32 s60, 9
    s_cbranch_scc1 KB_9
    s_and_b32 s47, s40, 5
    s_cmp_lg_u32 s47, 1
    s_cbranch_scc1 K2_LOOPB
    """)
    set_flag(A, "s88")
    A("s_branch K2_LOOPB")
    A.label("KB_9")
    poll_issue(A, 47, 35, 32, "s36")
    A("s_branch K2_LOOPB")
    A.label("KB_10")
    vstamp(A, cfg, 8, PR)
    poll_check(A, 47, 35, 32, "s36", "PA")
    G, OMG = 32, 34
    OF = 128
    vm = VM(A, ["W4", "W4", "W5", "W5", "c12", "c12"])
    vm.now("G", f"buffer_load_dword v{G}, v45, s[32:35], s31 offen sc1")
    if P16: vm.now("G", f"buffer_load_dword v35, v45, s[32:35], s31 offen offset:64 sc1")
    OV = 39 if P16 else 3
    ooff = (lambda j: (j >> 1)*2048 + (j & 1)*256) if P16 else (lambda j: j*1024)
    nld = [0]
    AE = int(cfg.get("ae", 0))
    assert AE in (0, 4, 5) and not (AE and P16)
    OFA = (lambda s: OF + 16*(s % 5)) if AE else (lambda s: OF + 16*s)
    ACE, WE, WEA = 224, (208, 216), 116
    def oload():
        k = nld[0]; nld[0] += 1
        s, j = divmod(k, 4)
        r = OFA(s) + 4*j
        def f():
            vm.now(f"o{k}" if AE else "o", f"buffer_load_dwordx4 v[{r}:{r+3}], v{OV}, s[32:35], s28 offen offset:{ooff(j)} sc1")
            if j == 3: A("s_add_u32 s28, s28, 4096")
        return f
    if AE:
        A(f"v_add_u32 v{WEA}, {WSL(0)}, v38")
        A(f"v_add_u32 v{WEA+1}, {WSL(0)}, v39")
        LQM[0] = LQ(["V1", "K0", "K1", "V0"])
    def ae_read(k, cb):
        s, j = divmod(k, 4)
        fs = []
        for sec in range(2):
            r = WE[k & 1] + 4*cb + 2*sec
            fs.append(LQM[0].rd(f"w{k}{cb}", f"ds_read_b64_tr_b16 v[{r}:{r+1}], v{WEA+cb} offset:{s*16384 + (16*j+8*sec)*128}"))
        return tuple(fs)
    def ae_mfma(k, cb):
        s, j = divmod(k, 4)
        def f():
            vm.wait(f"o{k}"); LQM[0].wait(f"w{k}{cb}")
            a = ACE + 16*cb; w = WE[k & 1] + 4*cb; o = OFA(s) + 4*j
            A(f"v_mfma_f32_32x32x16_bf16 v[{a}:{a+15}], v[{w}:{w+3}], v[{o}:{o+3}], " + ("0" if k == 0 else f"v[{a}:{a+15}]"))
        return f
    def lines(tag, ls):
        def f():
            for l in ls:
                if l.startswith("buffer_"): vm.now(tag, l)
                else: A(l)
        return f
    BT = int(cfg.get("btouch", 0))
    def btouch():
        A(f"""
        s_and_b32 s47, s16, 3
        s_lshl_b32 s47, s47, 3
        s_add_u32 s47, s47, s40
        s_lshl_b32 s47, s47, 5           ; first row : (T&3)*256 + wave*32
        v_add_u32 v44, s47, v0
        v_lshlrev_b32 v44, 11, v44
        s_lshl_b32 s47, s17, 7
        v_add_u32 v44, s47, v44
        v_mov_b32 v4, 0x7ffffff0
        v_cmp_gt_u32 vcc, 32, v0
        s_mov_b32 s92, s6
        s_mov_b32 s93, s7
        s_mov_b32 s94, {1024*2048}
        s_mov_b32 s95, 0x00020000
        v_cndmask_b32 v44, v4, v44, vcc
        """)
        vm.now("T", "buffer_load_dword v44, v44, s[92:95], 0 offen")
    for n in range(10, 16):
        sides = {}
        if n <= 12:
            a, b = dma_ops()
            sides[0] = ((lines(f"c{n+3}", a),), (lines(f"c{n+3}", b),), (oload(),))
            sides[1] = ((oload(),), (oload(),), ())
            if AE == 5 and n == 12:
                sides[2] = ((), (), ()); sides[3] = ((), (), ())
                sides[1] = ((oload(),), (oload(),), ())
            else:
                sides[2] = ((oload(),), (oload(),), ())
                sides[3] = ((oload(),), (), ())
        elif n <= 14:
            a, b = wo_ops(f"s_add_u32 m0, s30, {WSL(n - 7)}")
            if AE == 4:
                sides[0] = ((lines("W", a),), (lines("W", b),), (oload(),))
                sides[1] = ((oload(),), (oload(),), ())
                sides[2] = ((oload(),), (), ()) if n == 14 else ((oload(),), (oload(),), ())
                sides[3] = ((), (), ()) if n == 14 else ((oload(),), (), ())
            else:
                sides[0] = ((lines("W", a),), (lines("W", b),), (oload(),))
                sides[1] = ((oload(),), (oload(),), ())
                sides[2] = ((oload(),), (), ())
                sides[3] = ((oload(),), (), ())
        else:
            sides[0] = ((oload(),), (oload(),), ())
            sides[1] = ((oload(),), (oload(),), ())
        if n == BT: sides[3] = (sides[3][0], sides[3][1], tuple(sides[3][2]) + (btouch,))
        if AE:
            assert AE == 4
            for i in range(4):
                sa, sb, en = sides.get(i, ((), (), ()))
                k = 4*(n - (16 - AE)) + i
                if 0 <= k < 4*AE:
                    sa = (ae_mfma(k, 0),) + tuple(sa); sb = (ae_mfma(k, 1),) + tuple(sb)
                if 0 <= k + 1 < 4*AE:
                    sa = tuple(sa) + ae_read(k + 1, 0); sb = tuple(sb) + ae_read(k + 1, 1)
                sides[i] = (sa, sb, en)
        period(sides, dma=False)
        if n <= 13:
            pbar(A, cfg, lambda: vm.wait(f"c{n+2}"))
        elif cfg.get("prof") == "2":
            bstamp(A, cfg, 0); bstamp(A, cfg, 1); bstamp(A, cfg, 2)
        if n == 12: vstamp(A, cfg, 9, PR)
    assert nld[0] == 32
    A(f"""
    s_mov_b32 s60, 16
    s_waitcnt lgkmcnt(0)
    v_mfma_f32_32x32x16_bf16 v[{O}:{O+15}], v[{V1}:{V1+3}], v[{P+4}:{P+7}], v[{O}:{O+15}]
    v_mfma_f32_16x16x32_bf16 v[{L}:{L+3}], v[{SEL}:{SEL+3}], v[{P+4}:{P+7}], v[{L}:{L+3}]
    """)
    vstamp(A, cfg, 10, PR)
    rst(A, cfg, 0)
    A("v_lshlrev_b32 v45, 3, v0")
    A.nop(12)
    A.label("K2_FIN")
    A(f"v_rcp_f32 v4, v{L}")
    A("s_nop 0")
    for k in range(8):
        A(f"v_pk_mul_f32 v[{O+2*k}:{O+2*k+1}], v[{O+2*k}:{O+2*k+1}], v[4:5] op_sel_hi:[1,0]")
    FA = cfg.get("fa") == "1"
    def ob_out():
        for i in range(8):
            A(f"v_cvt_pk_bf16_f32 v{P+i}, v{O+2*i}, v{O+2*i+1}")
        A(f"buffer_store_dwordx4 v[{P}:{P+3}], v3, s[32:35], s73 offen sc1")
        A(f"buffer_store_dwordx4 v[{P+4}:{P+7}], v3, s[32:35], s73 offen offset:1024 sc1")
    if FA: ob_out()
    A("v_mov_b32 v6, 0")
    for k in range(16):
        A(f"v_fma_f32 v6, v{O+k}, 0, v6")
    A(f"""
    v_mov_b32 v7, {fhex(2.0**120)}
    v_cmp_u_f32 vcc, v6, v6
    v_cmp_nlt_f32 s[62:63], v{L}, v7
    s_or_b64 vcc, vcc, s[62:63]
    """)
    if cfg.get("force_fb"):
        A("s_mov_b64 vcc, -1")
    A(f"""
    s_cmp_eq_u32 s60, 16
    s_cselect_b64 vcc, vcc, 0
    s_cbranch_vccnz K2_FB
    """)
    if not FA: ob_out()
    EF = cfg.get("ef")
    if EF == "2":
        A("""
        s_cmp_lt_u32 s40, 4
        s_cbranch_scc0 K3_EF1
        s_waitcnt vmcnt(2)
        s_barrier
        s_waitcnt vmcnt(0)
        """)
        set_flag(A, "s69")
        A("""
        s_branch K3_EF2
        K3_EF1:
        s_setprio 1
        s_waitcnt vmcnt(2)
        s_barrier
        K3_EF2:
        """)
    elif EF:
        A("""
        s_cmp_lt_u32 s40, 4
        s_cbranch_scc0 K3_EF1
        s_waitcnt vmcnt(0)
        """)
        set_flag(A, "s69")
        A("""
        s_branch K3_EF2
        K3_EF1:
        s_setprio 1
        s_waitcnt vmcnt(2)
        K3_EF2:
        """)
    else:
        A("s_waitcnt vmcnt(2)")
    if EF != "2": A("s_barrier")
    vstamp(A, cfg, 11, PR)
    rst(A, cfg, 1)
    LQM[0] = None
    WFJ = [16, 24, 48, 56]
    ACCA, ACCB = (ACE if AE else 64), 96
    OFB = (lambda s: OF + 16*(s % 6)) if AE else (lambda s: OF + 16*s)
    P3V = cfg.get("p3v") in ("2", "3")
    OD = int(cfg.get("od", 8))
    P3R = cfg.get("p3v") == "3"
    BSL = lambda b: 32768 + 16384 * b if b < 2 else WSL(b - 2)
    def waddr(s, slot=WSL):
        if slot is None:
            A("v_add_u32 v40, s90, v38")
            A("v_add_u32 v41, s90, v39")
            A("s_add_u32 s90, s90, 16384")
            A("s_and_b32 s90, s90, 0x1ffff")
            return
        A(f"v_add_u32 v40, {slot(s)}, v38")
        if P16:
            A("v_xor_b32 v41, 32, v40"); A("v_xor_b32 v42, 64, v40"); A("v_xor_b32 v43, 0x60, v40")
        else:
            A(f"v_add_u32 v41, {slot(s)}, v39")
    W16F = lambda hd, cg: WFJ[2*hd + (cg >> 1)] + 4*(cg & 1)
    def wread16(hd, cg):
        for sec in range(2):
            r = W16F(hd, cg) + 2*sec
            A(f"ds_read_b64_tr_b16 v[{r}:{r+1}], v{40+cg} offset:{(32*hd+8*sec)*128}")
    def gemm16(acc_, after, owait, slot=WSL, inl={}, stamp=None, fs_tail=None):
        waddr(0, slot)
        A("s_nop 0")
        for hd in range(2):
            for cg in range(4): wread16(hd, cg)
        OX = [int(x) for x in cfg.get("ox", "0:0").split(":")]
        iss = [4 * OD]
        for t in range(32): iss.append(min(32, iss[-1] + (2 if OX[0] <= t < OX[1] else 1)))
        def jbody(s, j, more=0):
            last = s == 7
            hd, b = j >> 1, j & 1
            if owait: A(f"s_waitcnt vmcnt({iss[4*s + j] - (4*s + j) - 1})")
            for cg in range(4):
                if b == 0: A(f"s_waitcnt lgkmcnt({2*(3 - cg) + (0 if (last and hd == 1) else 8) + more})")
                w = W16F(hd, cg); o = OF + 16*s + 4*j; a = acc_ + 4*(2*cg + b)
                c = "0" if (s == 0 and hd == 0) else f"v[{a}:{a+3}]"
                A(f"v_mfma_f32_16x16x32_bf16 v[{a}:{a+3}], v[{w}:{w+3}], v[{o}:{o+3}], {c}")
                if b == 1 and not last: wread16(hd, cg)
            if j == 0 and not last: waddr(s + 1, slot)
            for l in inl.get((s, j), []):
                if callable(l): l()
                else: A(l)
            if owait:
                for n in range(iss[4*s + j], iss[4*s + j + 1]): o_load(n >> 2, n & 3)
        for s in range(8):
            for j in range(4):
                if fs_tail and s == 7 and j == 2:
                    A("s_cmp_eq_u32 s18, 0"); A("s_cbranch_scc1 K3_G0T")
                    A("s_barrier")
                    for q in range(8): A(f"ds_read_b128 v[{OF+4*q}:{OF+4*q+3}], v4 offset:{q*1024}")
                    jbody(7, 2, 8); jbody(7, 3, 8)
                    if stamp is not None: rst(A, cfg, stamp + s)
                    fs_tail()
                    A.label("K3_G0T")
                jbody(s, j)
            if s in after: after[s]()
            if stamp is not None and cfg.get("prof") == "5" and (s in (1, 3, 5, 7) or owait):
                rst(A, cfg, stamp + s)
    def wreads(j):
        for cb in range(2):
            for sec in range(2):
                r = WFJ[j] + 4*cb + 2*sec
                A(f"ds_read_b64_tr_b16 v[{r}:{r+1}], v{40+cb} offset:{(16*j+8*sec)*128}")
    def gemm(acc_, after, owait, slot=WSL, inl={}, stamp=None, s0=0, fs_tail=None):
        if P16: return gemm16(acc_, after, owait, slot, inl, stamp, fs_tail)
        waddr(s0, slot)
        for j in range(4): wreads(j)
        for s in range(s0, 8):
            last = s == 7
            for j in range(4):
                if owait: A(f"s_waitcnt vmcnt({min(4*OD + 4*s + j, 32) - (4*s + j) - 1 + (4 if (AE and 4*s + j < 4*OD) else 0)})")
                for cb in range(2):
                    n = (14 - 2*cb) if not last else (14 - 4*j - 2*cb)
                    A(f"s_waitcnt lgkmcnt({n})")
                    w = WFJ[j] + 4*cb; o = (OFB(s) if owait else OFA(s)) + 4*j; a = acc_ + 16*cb
                    c = "0" if (s == 0 and j == 0) else f"v[{a}:{a+15}]"
                    A(f"v_mfma_f32_32x32x16_bf16 v[{a}:{a+15}], v[{w}:{w+3}], v[{o}:{o+3}], {c}")
                if not last:
                    if j == 0: waddr(s + 1, slot)
                    wreads(j)
                for l in inl.get((s, j), []):
                    if callable(l): l()
                    else: A(l)
                if owait and s + OD < 8: o_load(s + OD, j)
            if s in after: after[s]()
            if stamp is not None and cfg.get("prof") == "5" and (s in (1, 3, 5, 7) or owait):
                rst(A, cfg, stamp + s)
    def refill(s0):
        for s in range(s0, s0 + 4):
            a, b = wo_ops(f"s_add_u32 m0, s30, {WSL(s)}")
            for l in a + b: A(l)
    def a_flag():
        A("s_waitcnt vmcnt(0)")
        set_flag(A, "s69")
    def a_mid():
        A("s_barrier")
        A("""
        s_mov_b32 s20, s6
        s_mov_b32 s21, s7
        s_mov_b32 s29, 0
        """)
        refill(0)
    def a_poll():
        poll_issue(A, 46, 45, 32, "s83", n=2)
    FBPOS = int(cfg.get("fbpos", 2))
    RB0 = 32768 if P3V else 0
    NZ = cfg.get("nz") == "1"
    if NZ:
        assert cfg.get("fs") == "1"
        RB0 = 0
    def out_addr():
        A(f"""
        v_sub_f32 v{OMG}, 1.0, v{G}
        {"v_sub_f32 v46, 1.0, v35" if P16 else ""}
        v_and_b32 v4, {15 if P16 else 31}, v0
        s_lshl_b32 s38, s19, 5
        v_add_u32 v4, s38, v4
        v_mul_u32_u24 v4, {K3_ROW}, v4
        v_lshrrev_b32 v5, {4 if P16 else 5}, v0
        v_lshl_add_u32 v4, v5, 4, v4
        s_mul_i32 s38, s18, {K3_RED}
        {f"s_add_u32 s38, s38, {RB0}" if RB0 else ""}
        v_add_u32 v4, s38, v4            ; write address
        s_lshl_b32 s38, s40, 6
        v_add_u32 v10, s38, v0           ; tid
        v_lshrrev_b32 v5, 3, v10
        v_and_b32 v6, 7, v10             ; chunk
        v_mul_u32_u24 v7, {K3_ROW}, v5
        v_lshl_add_u32 v7, v6, 5, v7     ; read address
        {f"v_add_u32 v7, {RB0}, v7" if RB0 else ""}
        s_lshl_b32 s38, s16, 7
        v_add_u32 v5, s38, v5
        v_lshlrev_b32 v5, 11, v5
        v_lshl_add_u32 v5, v6, 4, v5
        s_lshl_b32 s38, s17, 7
        v_add_u32 v5, s38, v5            ; out offset
        """)
    FS = cfg.get("fs") == "1"
    assert not FS or (P16 and P3V and not AE and not P3R)
    def out_addr_fs():
        A(f"""
        v_sub_f32 v{OMG}, 1.0, v{G}
        v_sub_f32 v46, 1.0, v35
        s_lshl_b32 s38, s19, 13
        s_add_u32 s38, s38, {RB0}
        v_lshl_add_u32 v4, v0, 4, s38
        v_and_b32 v5, 15, v0
        s_lshl_b32 s38, s16, 7
        s_lshl_b32 s47, s19, 5
        s_add_u32 s38, s38, s47
        v_add_u32 v5, s38, v5            ; token
        v_lshlrev_b32 v5, 11, v5
        v_lshrrev_b32 v6, 4, v0
        v_lshl_add_u32 v5, v6, 4, v5
        s_lshl_b32 s38, s17, 7
        v_add_u32 v5, s38, v5            ; out offset
        v_add_u32 v6, {16*2048}, v5      ; tokens 16..31
        """)
    def prof_out():
        if cfg.get("prof"):
            A("s_waitcnt vmcnt(0)")
            vstamp(A, cfg, 14, PR)
            rst(A, cfg, 24)
            A(f"""
            s_mov_b32 s92, s14
            s_mov_b32 s93, s15
            s_mov_b32 s94, {64*MB}
            s_mov_b32 s95, 0x00020000
            s_lshl_b32 s90, s2, 3
            s_add_u32 s90, s90, s40
            s_lshl_b32 s90, s90, {8 if cfg.get("prof") in ("2", "3", "4", "5", "6") else 7}
            s_add_u32 s90, s90, {WS_PROFV}
            v_lshlrev_b32 v1, 2, v0
            s_mov_b64 exec, {-1 if cfg.get("prof") in ("2", "3", "4", "5", "6") else "0xffffffff"}
            buffer_store_dword v{PR}, v1, s[92:95], s90 offen
            """)
    def fma_out():
        for k in range(16):
            om = 46 if (P16 and (k >> 1) & 1) else OMG
            A(f"v_pk_fma_f32 v[{ACCA+2*k}:{ACCA+2*k+1}], v[{ACCB+2*k}:{ACCB+2*k+1}], v[{om}:{om+1}], v[{ACCA+2*k}:{ACCA+2*k+1}] op_sel_hi:[1,0,1]")
    def fs_tail1():
        vstamp(A, cfg, 13, PR)
        A("s_waitcnt lgkmcnt(0)")
        D = OF + 32
        grp = [(p, b) for b in range(2) for p in range(2)]
        if cfg.get("st") == "1":
            ks = lambda b: [k for k in range(16) if ((k >> 1) & 1) == b]
            def add(b):
                for k in ks(b): A(f"v_pk_add_f32 v[{ACCA+2*k}:{ACCA+2*k+1}], v[{ACCA+2*k}:{ACCA+2*k+1}], v[{OF+2*k}:{OF+2*k+1}]")
            def fma(b):
                for k in ks(b): A(f"v_pk_fma_f32 v[{ACCA+2*k}:{ACCA+2*k+1}], v[{ACCB+2*k}:{ACCB+2*k+1}], v[{46 if b else OMG}:{(46 if b else OMG)+1}], v[{ACCA+2*k}:{ACCA+2*k+1}] op_sel_hi:[1,0,1]")
            def cvt(b):
                for g, (p, b_) in enumerate(grp):
                    if b_ != b: continue
                    x = ACCA + 4*(2*(2*p) + b); y = ACCA + 4*(2*(2*p + 1) + b); d = D + 4*g
                    A(f"v_cvt_pk_bf16_f32 v{d}, v{x}, v{x+1}")
                    A(f"v_cvt_pk_bf16_f32 v{d+1}, v{x+2}, v{x+3}")
                    A(f"v_cvt_pk_bf16_f32 v{d+2}, v{y}, v{y+1}")
                    A(f"v_cvt_pk_bf16_f32 v{d+3}, v{y+2}, v{y+3}")
            def swp(b):
                for sw in ("32", "16"):
                    for g, (p, b_) in enumerate(grp):
                        if b_ != b: continue
                        d = D + 4*g
                        A(f"v_permlane{sw}_swap_b32 v{d}, v{d+2}")
                        A(f"v_permlane{sw}_swap_b32 v{d+1}, v{d+3}")
                    if sw == "32": A("s_nop 1")
            def sto(b):
                for g, (p, b_) in enumerate(grp):
                    if b_ != b: continue
                    d = D + 4*g
                    A(f"buffer_store_dwordx4 v[{d}:{d+3}], v{5 + b}, s[24:27], 0 offen offset:{p*64} {cfg.get('ost', 'nt').replace('+', ' ')}")
            assert P16
            add(0); add(1); fma(0); cvt(0); A("s_nop 1"); swp(0); fma(1); sto(0); cvt(1); A("s_nop 1"); swp(1)
            rst(A, cfg, 22); rst(A, cfg, 23)
            sto(1)
            prof_out()
            A("s_endpgm")
            return
        for k in range(16):
            A(f"v_pk_add_f32 v[{ACCA+2*k}:{ACCA+2*k+1}], v[{ACCA+2*k}:{ACCA+2*k+1}], v[{OF+2*k}:{OF+2*k+1}]")
        fma_out()
        rst(A, cfg, 22)
        for g, (p, b) in enumerate(grp):
            x = ACCA + 4*(2*(2*p) + b); y = ACCA + 4*(2*(2*p + 1) + b); d = D + 4*g
            A(f"v_cvt_pk_bf16_f32 v{d}, v{x}, v{x+1}")
            A(f"v_cvt_pk_bf16_f32 v{d+1}, v{x+2}, v{x+3}")
            A(f"v_cvt_pk_bf16_f32 v{d+2}, v{y}, v{y+1}")
            A(f"v_cvt_pk_bf16_f32 v{d+3}, v{y+2}, v{y+3}")
        A("s_nop 1")
        for sw in ("32", "16"):
            for g in range(4):
                d = D + 4*g
                A(f"v_permlane{sw}_swap_b32 v{d}, v{d+2}")
                A(f"v_permlane{sw}_swap_b32 v{d+1}, v{d+3}")
        rst(A, cfg, 23)
        for g, (p, b) in enumerate(grp):
            d = D + 4*g
            A(f"buffer_store_dwordx4 v[{d}:{d+3}], v{5 + b}, s[24:27], 0 offen offset:{p*64} {cfg.get('ost', 'nt').replace('+', ' ')}")
        prof_out()
        A("s_endpgm")
    def scale_a():
        for k in range(16):
            if P16 and (k >> 1) & 1:
                A(f"v_pk_mul_f32 v[{ACCA+2*k}:{ACCA+2*k+1}], v[{ACCA+2*k}:{ACCA+2*k+1}], v[34:35] op_sel:[0,1] op_sel_hi:[1,1]")
            else:
                A(f"v_pk_mul_f32 v[{ACCA+2*k}:{ACCA+2*k+1}], v[{ACCA+2*k}:{ACCA+2*k+1}], v[{G}:{G+1}] op_sel_hi:[1,0]")
    def o_load(s, j):
        if j == 0:
            if s == 0: A(f"s_sub_u32 s28, s28, 32768" if cfg.get("expo") else f"s_add_u32 s28, s28, {4*MB - 32768}")
            if P3R:
                A("s_add_u32 s85, s28, s91")
                A("s_add_u32 s91, s91, 4096")
                A("s_and_b32 s91, s91, 0x7fff")
            elif s: A("s_add_u32 s28, s28, 4096")
        r = OFB(s) + 4*j
        A(f"buffer_load_dwordx4 v[{r}:{r+3}], v{OV}, s[32:35], {'s85' if P3R else 's28'} offen offset:{ooff(j)} sc1")
    def o_loads():
        for s in range(OD):
            for j in range(4): o_load(s, j)
    if P3V:
        A("""
        s_mov_b32 s20, s6
        s_mov_b32 s21, s7
        s_mov_b32 s29, 0
        """)
        inl = {}
        def bslab(b, s, j):
            a_, b_ = wo_ops(f"s_add_u32 m0, s30, {BSL(b)}")
            inl[(s, j)] = a_; inl[(s, j + 1)] = b_
        BS = cfg.get("bs", "0")
        bslab(0, 0, 0); bslab(1, 1, 0)
        if BS == "0":
            bslab(2, 4, 0); bslab(3, 4, 2); bslab(4, 5, 0); bslab(5, 5, 2)
        else:
            bslab(2, 2, 0); bslab(3, 3, 0); bslab(4, 4, 0); bslab(5, 5, 0)
        bslab(6, 6, 0); bslab(7, 6, 2)
        def a_flag2():
            if EF:
                j = A.uid("K3_F")
                A("s_cmp_lt_u32 s40, 4"); A(f"s_cbranch_scc1 {j}")
            A(f"s_waitcnt vmcnt({2 * min(FBPOS + 1, 2)})")
            set_flag(A, "s69")
            if EF:
                A("s_setprio 0")
                A.label(j)
        EP = int(cfg.get("ep", 0))
        def a_bar5():
            if EP:
                A("s_waitcnt vmcnt(7)")
                A("s_barrier")
                poll_check(A, 46, 45, 32, "s83", "PB", n=2)
                for b in (6, 7):
                    a_, b_ = wo_ops(f"s_add_u32 m0, s30, {BSL(b)}")
                    for l in a_ + b_: A(l)
                for s_ in range(EP):
                    for j in range(4): o_load(s_, j)
            else:
                A("s_barrier")
                a_poll()
        if EP:
            assert OD == EP + 2 and not P3R
            del inl[(6, 0)], inl[(6, 1)], inl[(6, 2)], inl[(6, 3)]
            inl[(4, 0)] = inl[(4, 0)] + [a_poll]
            for s_ in (6, 7):
                for j in range(4): inl[(s_, j)] = [(lambda s_=s_, j=j: o_load(EP + s_ - 6, j))]
        aft = {3: lambda: A("s_barrier"), 5: a_bar5}
        if FBPOS == 3: aft[3] = lambda: (a_flag2(), A("s_barrier"))
        else: aft[FBPOS] = a_flag2
        if BS == "1":
            assert FBPOS in (0, 1)
            if FBPOS == 1: aft[1] = lambda: (a_flag2(), A("s_barrier"))
            else: aft[1] = lambda: A("s_barrier")
        if AE:
            assert not EP and not P3R and BS == "0"
            inl.clear()
            n_ = 0
            for b in range(6):
                a_, b_ = wo_ops(f"s_add_u32 m0, s30, {BSL(b)}")
                inl[(AE + b // 4, b % 4)] = a_ + b_
            def a_flag3():
                j = A.uid("K3_F")
                if EF: A("s_cmp_lt_u32 s40, 4"); A(f"s_cbranch_scc1 {j}")
                nb = min(4 * (FBPOS + 1), 6)
                A(f"s_waitcnt vmcnt({2 * nb})")
                set_flag(A, "s69")
                if EF: A("s_setprio 0")
                A.label(j)
            AEP = int(cfg.get("aep", 6))
            assert AEP > AE + FBPOS or AEP == 7
            aft = {AE + FBPOS: a_flag3}
            aft[AEP] = a_poll if AEP != AE + FBPOS else (lambda: (a_flag3(), a_poll()))
            gemm(ACCA, aft, False, WSL, inl, 2, AE)
        else:
            gemm(ACCA, aft, False, WSL, inl, 2)
        vstamp(A, cfg, 12, PR)
        if P3R:
            RM = int(cfg.get("rmask", 6))
            A(f"""
            s_and_b32 s47, s17, {RM}         ; first slab
            s_lshl_b32 s90, s47, 14
            s_lshl_b32 s91, s47, 12
            v_add_u32 v38, 32768, v38
            v_add_u32 v39, 32768, v39
            """)
            if cfg.get("gfirst", "1") == "1":
                A("""
                s_and_b32 s47, s17, 1            ; group that loads first
                s_cmp_eq_u32 s47, s18
                s_cbranch_scc0 K3_NP
                s_setprio 1
                K3_NP:
                """)
        A(f"s_waitcnt vmcnt({4 * OD if EP else 0})")
        rst(A, cfg, 10)
        PB1 = cfg.get("pb") in ("1", "2")
        if not PB1: A("s_barrier")
        rst(A, cfg, 11)
        if not EP:
            poll_check(A, 46, 45, 32, "s83", "PB", n=2)
            rst(A, cfg, 12)
            o_loads()
            if PB1:
                assert not AE
                if cfg.get("pb") == "1": A("s_barrier")
            if AE:
                for b in (6, 7):
                    a_, b_ = wo_ops(f"s_add_u32 m0, s30, {BSL(b)}")
                    for l in a_ + b_: A(l)
            rst(A, cfg, 13)
        if cfg.get("bp"):
            j = A.uid("K3_BP")
            A(f"s_cmp_eq_u32 s18, {cfg.get('bp')[0]}"); A(f"s_cbranch_scc0 {j}"); A(f"s_setprio {cfg.get('bp')[1]}"); A.label(j)
        if FS: out_addr_fs()
        else: out_addr()
        scale_a()
        srd(A, 24, 8, 4194304)
        if cfg.get("pb") == "2": A("s_barrier")
        def zbar(g):
            def f():
                j = A.uid("K3_Z")
                A(f"s_cmp_eq_u32 s18, {g}"); A(f"s_cbranch_scc0 {j}"); A("s_barrier"); A.label(j)
            return f
        if P3R:
            gemm(ACCB, {}, True, None, {}, 14)
            vstamp(A, cfg, 13, PR)
            A("s_setprio 0")
            A("s_barrier")
            A.nop(12)
        elif AE:
            gemm(ACCB, {4: lambda: A("s_barrier")}, True, BSL, {}, 14)
            vstamp(A, cfg, 13, PR)
            A.nop(12)
        elif FS:
            aftB = {} if NZ else {int(cfg.get("zs", 4)): zbar(1)}
            if cfg.get("bpd"): aftB[int(cfg.get("bpd"))] = lambda: A("s_setprio 0")
            gemm(ACCB, aftB, True, BSL, {}, 14, 0, fs_tail1)
            vstamp(A, cfg, 13, PR)
            if not NZ: A("s_barrier")
            A.nop(12)
            fma_out()
            for q in range(8): A(f"ds_write_b128 v4, v[{ACCA+4*q}:{ACCA+4*q+3}] offset:{q*1024}")
            A("s_waitcnt lgkmcnt(0)")
            rst(A, cfg, 22)
            A("s_barrier")
            rst(A, cfg, 23)
            prof_out()
            A("s_endpgm")
        else:
            gemm(ACCB, {4: zbar(1)}, True, BSL, {}, 14)
            vstamp(A, cfg, 13, PR)
            zbar(0)()
            A.nop(12)
    else:
        gemm(ACCA, {FBPOS: a_flag, 3: a_mid, 5: a_poll}, False)
        A("s_barrier")
        refill(4)
        vstamp(A, cfg, 12, PR)
        A("s_waitcnt vmcnt(8)")
        poll_check(A, 46, 45, 32, "s83", "PB", n=2)
        o_loads()
        A("s_waitcnt vmcnt(31)")
        A("s_barrier")
        gemm(ACCB, {}, True)
        vstamp(A, cfg, 13, PR)
        out_addr()
        scale_a()
        A("s_barrier")
        srd(A, 24, 8, 4194304)
        A.nop(4)
    if not FS:
        for k in range(16):
            om = 46 if (P16 and (k >> 1) & 1) else OMG
            A(f"v_pk_fma_f32 v[{ACCA+2*k}:{ACCA+2*k+1}], v[{ACCB+2*k}:{ACCB+2*k+1}], v[{om}:{om+1}], v[{ACCA+2*k}:{ACCA+2*k+1}] op_sel_hi:[1,0,1]")
        for cb in range(2):
            for q in range(4):
                r = ACCA + 16*cb + 4*q
                if P16: A(f"ds_write_b128 v4, v[{r}:{r+3}] offset:{(q & 1)*16*K3_ROW + (2*cb + (q >> 1))*64}")
                else: A(f"ds_write_b128 v4, v[{r}:{r+3}] offset:{cb*128 + q*32}")
        A("s_waitcnt lgkmcnt(0)")
        rst(A, cfg, 22)
        A("s_barrier")
        rst(A, cfg, 23)
        R = 128
        for it in range(2):
            for g in range(2):
                for hf in range(2):
                    r = R + 16*it + 8*g + 4*hf
                    A(f"ds_read_b128 v[{r}:{r+3}], v7 offset:{it*64*K3_ROW + g*K3_RED + hf*16}")
        for it in range(2):
            A(f"s_waitcnt lgkmcnt({4 - 4*it})")
            r = R + 16*it
            for k in range(4):
                A(f"v_pk_add_f32 v[{r+2*k}:{r+2*k+1}], v[{r+2*k}:{r+2*k+1}], v[{r+8+2*k}:{r+8+2*k+1}]")
            for k in range(4):
                A(f"v_cvt_pk_bf16_f32 v{r+k}, v{r+2*k}, v{r+2*k+1}")
            A(f"buffer_store_dwordx4 v[{r}:{r+3}], v5, s[24:27], 0 offen {cfg.get('ost', 'nt').replace('+', ' ')}")
            if it == 0: A(f"v_add_u32 v5, {64*2048}, v5")
        if cfg.get("prof"):
            A("s_waitcnt vmcnt(0)")
            vstamp(A, cfg, 14, PR)
            rst(A, cfg, 24)
            A(f"""
            s_mov_b32 s92, s14
            s_mov_b32 s93, s15
            s_mov_b32 s94, {64*MB}
            s_mov_b32 s95, 0x00020000
            s_lshl_b32 s90, s2, 3
            s_add_u32 s90, s90, s40
            s_lshl_b32 s90, s90, {8 if cfg.get("prof") in ("2", "3", "4", "5", "6") else 7}
            s_add_u32 s90, s90, {WS_PROFV}
            v_lshlrev_b32 v1, 2, v0
            s_mov_b64 exec, {-1 if cfg.get("prof") in ("2", "3", "4", "5", "6") else "0xffffffff"}
            buffer_store_dword v{PR}, v1, s[92:95], s90 offen
            """)
        A("s_endpgm")
    A.label("K2_FB")
    vstamp(A, cfg, 15, PR)
    A("s_mov_b32 s60, 17")
    A("s_mov_b32 s61, 0")
    for i in range(16): A(f"v_mov_b32 v{O+i}, 0")
    for i in range(4): A(f"v_mov_b32 v{L+i}, 0")
    A(f"v_mov_b32 v44, 0xff800000")
    A.label("K2_FBL")
    A(f"""
    buffer_load_dwordx4 v[{K0}:{K0+3}], v3, s[32:35], s70 offen sc1
    buffer_load_dwordx4 v[{K1}:{K1+3}], v3, s[32:35], s70 offen offset:1024 sc1
    buffer_load_dwordx4 v[{V0}:{V0+3}], v3, s[32:35], s70 offen offset:2048 sc1
    buffer_load_dwordx4 v[{V1}:{V1+3}], v3, s[32:35], s70 offen offset:3072 sc1
    s_add_u32 s70, s70, 4096
    s_waitcnt vmcnt(0)
    v_mfma_f32_32x32x16_bf16 v[{SA}:{SA+15}], v[{K0}:{K0+3}], v[{Q}:{Q+3}], 0
    v_mfma_f32_32x32x16_bf16 v[{SA}:{SA+15}], v[{K1}:{K1+3}], v[{Q+4}:{Q+7}], v[{SA}:{SA+15}]
    """)
    A.nop(12)
    A(f"v_max3_f32 v4, v{SA}, v{SA+1}, v{SA+2}")
    for k in range(3, 15, 2):
        A(f"v_max3_f32 v4, v4, v{SA+k}, v{SA+k+1}")
    A(f"v_max3_f32 v4, v4, v{SA+15}, v44")
    A("v_mov_b32 v5, v4")
    A.nop(2)
    A("v_permlane32_swap_b32 v4, v5")
    A("s_nop 0")
    A("v_max_f32 v4, v4, v5")
    A("v_sub_f32 v5, v44, v4")
    A("v_exp_f32 v5, v5")
    A("v_mov_b32 v44, v4")
    for k in range(16):
        A(f"v_sub_f32 v{SA+k}, v{SA+k}, v4")
    for k in range(16):
        A(f"v_exp_f32 v{SA+k}, v{SA+k}")
    for k in range(16):
        A(f"v_mul_f32 v{O+k}, v{O+k}, v5")
    for k in range(4):
        A(f"v_mul_f32 v{L+k}, v{L+k}, v5")
    for k in range(8):
        A(f"v_cvt_pk_bf16_f32 v{P+k}, v{SA+2*k}, v{SA+2*k+1}")
    A("s_nop 1")
    A(f"""
    v_mfma_f32_32x32x16_bf16 v[{O}:{O+15}], v[{V0}:{V0+3}], v[{P}:{P+3}], v[{O}:{O+15}]
    v_mfma_f32_16x16x32_bf16 v[{L}:{L+3}], v[{SEL}:{SEL+3}], v[{P}:{P+3}], v[{L}:{L+3}]
    v_mfma_f32_32x32x16_bf16 v[{O}:{O+15}], v[{V1}:{V1+3}], v[{P+4}:{P+7}], v[{O}:{O+15}]
    v_mfma_f32_16x16x32_bf16 v[{L}:{L+3}], v[{SEL}:{SEL+3}], v[{P+4}:{P+7}], v[{L}:{L+3}]
    s_add_u32 s61, s61, 1
    s_cmp_lt_u32 s61, 64
    """)
    A.nop(12)
    A("s_cbranch_scc1 K2_FBL")
    A("s_branch K2_FIN")
    A.label("KF_END")
    A("s_endpgm")
    if cfg.get("lf") == "1":
        L_ = A.lines
        i0 = L_.index("K1_LOADER:"); i1 = L_.index("K1_LPOST:")
        blk = L_[i0:i1]
        del L_[i0:i1]
        b = L_.index("    s_cbranch_scc1 K1_LOADER")
        assert L_[b-1].strip() == "s_cmp_ge_u32 s40, 4"
        L_[b-1:b+1] = ["    s_cmp_lt_u32 s40, 4", "    s_cbranch_scc1 K1_CONS"] + blk + ["    s_branch K1_LPOST", "K1_CONS:"]
    WU = cfg.get("wu")
    if WU:
        L_ = A.lines
        def after(pred, nth=0, start=0):
            k = [i for i in range(start, len(L_)) if pred(L_[i].strip())]
            return k[nth] + 1
        def stub(pos, name, nxt, skip=False):
            L_[pos:pos] = ([f"    s_branch {name}S"] if skip else []) + [f"{name}:", f"    s_branch {nxt}"] + ([f"{name}S:"] if skip else [])
        kb10 = L_.index("KB_10:")
        stub(after(lambda l: l == "s_endpgm"), "WU_9", "WU_BACK")
        stub(after(lambda l: l == "s_branch K3_EF2"), "WU_8", "WU_9" if WU == "1" else "WU_BACK")
        stub(after(lambda l: l == "s_barrier", 1, kb10), "WU_7", "WU_BACK", skip=True)
        stub(kb10, "WU_6", "WU_7" if WU == "1" else "WU_BACK")
        stub(after(lambda l: l == "s_branch K1_E2L"), "WU_5", "WU_BACK")
        stub(after(lambda l: l.startswith("s_branch K1_TJ_")), "WU_4", "WU_5" if WU == "1" else "WU_BACK")
        p = after(lambda l: l == "s_barrier", 0, L_.index("K1_NOZ:")) - 1
        d = []
        if WU == "1":
            for w, t in ((0, "WU_4"), (1, "WU_6"), (2, "WU_8")): d += [f"    s_cmp_eq_u32 s40, {w}", f"    s_cbranch_scc1 {t}"]
        else:
            d += ["    s_cmp_eq_u32 s40, 9"] + [f"    s_cbranch_scc1 {t}" for t in ("WU_4", "WU_5", "WU_6", "WU_7", "WU_8", "WU_9")]
        L_[p:p] = d + ["WU_BACK:"]
    return K, KG_LDS
```
